```python
import torch

def _softmax(x, axis=-1):
    return torch.softmax(x, dim=axis)

def _gelu(x):
    return torch.nn.functional.gelu(x, approximate='tanh')

def _silu(x):
    return torch.nn.functional.silu(x)

def _sigmoid(x):
    return torch.sigmoid(x)

def _layernorm(x, axis=-1, eps=1e-05):
    m = x.mean(dim=axis, keepdim=True)
    v = x.var(dim=axis, keepdim=True, unbiased=False)
    return (x - m) / torch.sqrt(v + eps)

def _scatter_add(tgt, idx, src, axis=0):
    return tgt.clone().index_add_(axis, idx, src)

def _segment_sum(src, seg, n):
    out = torch.zeros((n,) + src.shape[1:], dtype=src.dtype)
    return out.index_add_(0, seg, src)

def _pad(x, pw):
    flat = tuple((v for pair in reversed(pw) for v in pair))
    return torch.nn.functional.pad(x, flat)
kernel_name = 'concat_heads__sliding_local_dilated__memory_aug_recurrent_mem_tr__prompt'

def setup_inputs():

    _w = lambda a: (lambda t: t.to(torch.bfloat16) if t.is_floating_point() else t)(torch.as_tensor(a))

    def _A_setup():
        B, S, D = (1, 2048, 512)
        return {'x': _w((lambda *s: torch.randn(*s, dtype=torch.bfloat16) * 0.2)(B, S, D)), 'wqkv': _w((lambda *s: torch.randn(*s, dtype=torch.bfloat16) * 0.2)(D, 3 * D)), 'wo': _w((lambda *s: torch.randn(*s, dtype=torch.bfloat16) * 0.05)(D, D))}
    _A_in = _A_setup()

    def _B_setup():
        B, S, Dm = (1, 2048, 512)
        H, Dh = (32, 128)
        M, seg = (8, 32)
        seg = min(seg, S)
        S = S // seg * seg
        return {'x': _w((lambda *s: torch.randn(*s, dtype=torch.bfloat16) * 0.05)(B, S, Dm)), 'mem0': _w((lambda *s: torch.randn(*s, dtype=torch.bfloat16) * 1.6)(B, M, Dm)), 'Wq': _w((lambda *s: torch.randn(*s, dtype=torch.bfloat16) * 0.8)(Dm, H, Dh) * Dm ** (-0.5)), 'Wk': _w((lambda *s: torch.randn(*s, dtype=torch.bfloat16) * 0.8)(Dm, H, Dh) * Dm ** (-0.5)), 'Wv': _w((lambda *s: torch.randn(*s, dtype=torch.bfloat16) * 1.6)(Dm, H, Dh) * Dm ** (-0.5)), 'Wo': _w((lambda *s: torch.randn(*s, dtype=torch.bfloat16) * 1.6)(H, Dh, Dm) * (H * Dh) ** (-0.5)), 'seg_len': seg}
    _B_in = _B_setup()
    return {'A_x': _A_in['x'], 'A_wqkv': _A_in['wqkv'], 'A_wo': _A_in['wo'], 'B_x': _B_in['x'], 'B_mem0': _B_in['mem0'], 'B_Wq': _B_in['Wq'], 'B_Wk': _B_in['Wk'], 'B_Wv': _B_in['Wv'], 'B_Wo': _B_in['Wo'], 'B_seg_len': _B_in['seg_len']}

def reference(A_x, A_wqkv, A_wo, B_x, B_mem0, B_Wq, B_Wk, B_Wv, B_Wo, B_seg_len):

    def _A_ref(x, wqkv, wo):
        B, S, D = x.shape
        H = 32
        Dh = D // H
        W, dil = (8, 2)
        qkv = (lambda x, *d: x.permute(*d))((x @ wqkv).reshape(B, S, 3, H, Dh), 2, 0, 3, 1, 4)
        q, k, v = (qkv[0], qkv[1], qkv[2])
        scale = Dh ** (-0.5)
        pos = torch.arange(S)
        off = torch.arange(W) * dil
        idx = pos[:, None] - off[None, :]
        mask = idx >= 0
        idx_c = torch.where(mask, idx, 0).reshape(-1)
        kg = k[:, :, idx_c, :].reshape(B, H, S, W, Dh)
        vg = v[:, :, idx_c, :].reshape(B, H, S, W, Dh)
        logits = torch.einsum('bhsd,bhswd->bhsw', q, kg) * scale
        logits = torch.where(mask[None, None, :, :], logits, -1000000000.0)
        attn = _softmax(logits, axis=-1)
        o = torch.einsum('bhsw,bhswd->bhsd', attn, vg)
        return (lambda x, *d: x.permute(*d))(o, 0, 2, 1, 3).reshape(B, S, D) @ wo

    def _B_ref(x, mem0, Wq, Wk, Wv, Wo, seg_len):
        B, S, Dm = x.shape
        H, Dh = (Wq.shape[1], Wq.shape[2])
        M = mem0.shape[1]
        scale = Dh ** (-0.5)
        n_seg = S // seg_len
        L = M + seg_len
        idx = torch.arange(L)
        mask = (idx[:, None] < M) | (idx[:, None] >= idx[None, :])
        mem = mem0
        outs = []
        for s in range(n_seg):
            xs = x[:, s * seg_len:(s + 1) * seg_len, :].clone()
            h = torch.concatenate([mem, xs], axis=1)
            q = torch.einsum('btd,dhe->bhte', h, Wq)
            k = torch.einsum('btd,dhe->bhte', h, Wk)
            v = torch.einsum('btd,dhe->bhte', h, Wv)
            scores = torch.einsum('bhqe,bhke->bhqk', q, k) * scale
            scores = torch.where(mask[None, None], scores, -1000000000.0)
            p = _softmax(scores, axis=-1)
            o = torch.einsum('bhqk,bhke->bhqe', p, v)
            o = torch.einsum('bhte,hed->btd', o, Wo)
            mem = o[:, :M, :].clone()
            outs.append(o[:, M:, :])
        return torch.concatenate(outs, axis=1)
    a = _A_ref(A_x, A_wqkv, A_wo)
    b = _B_ref(B_x, B_mem0, B_Wq, B_Wk, B_Wv, B_Wo, B_seg_len)
    return torch.concatenate([a, b], axis=-1)
```

```python
import re

REG_RE = re.compile(r'^(-|abs\()?([vas])(\d+)\)?$')
RNG_RE = re.compile(r'^(-)?([vas])\[(\d+):(\d+)\]$')
TRANS = ('v_exp_f32', 'v_log_f32', 'v_rcp_f32', 'v_rsq_f32', 'v_sqrt_f32', 'v_sin_f32', 'v_cos_f32', 'v_rcp_iflag_f32')


def regs_of(tok):
    tok = tok.strip()
    m = REG_RE.match(tok)
    if m:
        return [(m.group(2), int(m.group(3)))]
    m = RNG_RE.match(tok)
    if m:
        return [(m.group(2), i) for i in range(int(m.group(3)), int(m.group(4)) + 1)]
    if tok in ('vcc', 'vcc_lo', 'vcc_hi'):
        return [('vcc', 0)]
    if tok == 'exec':
        return [('exec', 0)]
    if tok == 'm0':
        return [('m0', 0)]
    return []


def split_ops(s):
    out, depth, cur = [], 0, ''
    for ch in s:
        if ch in '[(':
            depth += 1
        if ch in '])':
            depth -= 1
        if ch == ',' and depth == 0:
            out.append(cur.strip()); cur = ''
        else:
            cur += ch
    if cur.strip():
        out.append(cur.strip())
    return out


class Ins:
    __slots__ = ('text', 'op', 'cls', 'wr', 'rd', 'ab', 'c', 'passes', 'ws', 'dpp', 'perm', 'rl', 'lds_dma',
                 'wide', 'label', 'target', 'data')

    def __init__(self):
        self.wr = set(); self.rd = set(); self.ab = set(); self.c = []; self.passes = 0; self.ws = 1
        self.dpp = False; self.perm = False; self.rl = False; self.lds_dma = False; self.wide = False
        self.label = None; self.target = None; self.data = set(); self.cls = 'other'


def parse(text):
    I = Ins(); I.text = text
    body = text.split(';')[0].strip()
    parts = body.split(None, 1)
    op = parts[0]; I.op = op
    rest = parts[1] if len(parts) > 1 else ''
    ops = split_ops(rest)
    mods = ''
    if ops:
        lp = ops[-1].split(None, 1)
        if len(lp) > 1 and not lp[0].startswith('hwreg') and not op.startswith('s_waitcnt'):
            ops[-1] = lp[0]; mods = lp[1]
    R = [regs_of(o) for o in ops]
    if op.startswith('v_mfma'):
        I.cls = 'mfma'; I.wr = set(R[0]); I.ab = set(R[1]) | set(R[2]); I.c = R[3]
        I.rd = I.ab | set(I.c); I.passes = 8 if '32x32' in op else 4
    elif op.startswith('v_smfmac'):
        I.cls = 'mfma'; I.wr = set(R[0]); I.ab = set(R[1]) | set(R[2]) | set(R[3]); I.c = R[0]
        I.rd = I.ab | set(I.c); I.passes = 8 if '32x32' in op else 4
    elif op.startswith('v_'):
        I.cls = 'valu'
        base = op.replace('_e32', '').replace('_e64', '').replace('_dpp', '')
        if base in TRANS:
            I.cls = 'trans'
        I.dpp = op.endswith('_dpp')
        if op.startswith('v_permlane'):
            I.perm = True; I.wr = set(R[0]) | set(R[1]); I.rd = set(I.wr)
        elif op.startswith('v_nop'):
            pass
        else:
            I.wr = set(R[0])
            first_src = 1
            if re.match(r'v_(add|sub|subrev|addc|subb)_co_', op) or op.startswith('v_mad_u64'):
                I.wr |= set(R[1]); first_src = 2
            for r in R[first_src:]:
                I.rd |= set(r)
            if re.match(r'v_(fmac|dot2c|mac)', op) or I.dpp:
                I.rd |= set(R[0])
            if op.startswith('v_readfirstlane') or op.startswith('v_readlane'):
                I.rl = True
            if op.startswith('v_cmpx'):
                raise ValueError('v_cmpx not modelled')
    elif op.startswith('ds_read') or op.startswith('ds_bpermute') or op.startswith('ds_swizzle'):
        I.cls = 'dsr'; I.wr = set(R[0])
        for r in R[1:]:
            I.rd |= set(r)
    elif op.startswith('ds_'):
        I.cls = 'dsw'
        for r in R:
            I.rd |= set(r)
    elif op.startswith('buffer_load') or op.startswith('global_load'):
        I.cls = 'vml'
        if re.search(r'\blds\b', mods) or '_lds_' in op:
            I.lds_dma = True
            for r in R:
                I.rd |= set(r)
            I.rd.add(('m0', 0))
        else:
            I.wr = set(R[0])
            for r in R[1:]:
                I.rd |= set(r)
    elif op.startswith('buffer_store'):
        I.cls = 'vms'
        for r in R:
            I.rd |= set(r)
        I.data = set(R[0]); I.wide = len(R[0]) >= 3
    elif op.startswith('buffer_atomic'):
        I.cls = 'vms'
        for r in R:
            I.rd |= set(r)
        if re.search(r'\bsc0\b', mods):
            I.cls = 'vml'; I.wr = set(R[0])
    elif op.startswith('buffer_') or op.startswith('global_'):
        raise ValueError('not modelled: ' + text)
    elif op.startswith('s_load') or op.startswith('s_memtime') or op.startswith('s_memrealtime'):
        I.cls = 'smem'; I.wr = set(R[0])
        for r in R[1:]:
            I.rd |= set(r)
    elif op == 's_nop':
        I.cls = 'nop'; I.ws = int(ops[0], 0) + 1
    elif op == 's_waitcnt':
        I.cls = 'wait'
    elif op.startswith('s_cbranch') or op == 's_branch':
        I.cls = 'branch'; I.target = ops[0]
    elif op in ('s_barrier', 's_endpgm', 's_setprio', 's_sleep'):
        I.cls = 'other'
    elif op.startswith('s_'):
        I.cls = 'salu'
        if op.startswith('s_cmp') or op.startswith('s_bitcmp'):
            for r in R:
                I.rd |= set(r)
        else:
            I.wr = set(R[0])
            for r in R[1:]:
                I.rd |= set(r)
            if 'saveexec' in op:
                I.wr.add(('exec', 0))
    else:
        raise ValueError('unknown instruction: ' + text)
    return I


def need(P, I):
    n = 0
    pv = P.cls in ('valu', 'trans')
    iv = I.cls in ('valu', 'trans')
    if pv:
        wv = {r for r in P.wr if r[0] in 'va'}
        wsg = {r for r in P.wr if r[0] in ('s', 'vcc')}
        if I.cls == 'mfma' and wv & I.rd:
            n = max(n, 2)
        if iv and (I.perm or I.dpp) and wv & I.rd:
            n = max(n, 2)
        if iv and I.rl and wv & I.rd:
            n = max(n, 1)
        if P.cls == 'trans' and I.cls == 'valu' and wv & I.rd:
            n = max(n, 1)
        if wsg & I.rd:
            if iv:
                n = max(n, 4 if I.op.startswith('v_readlane') or I.op.startswith('v_writelane') else 2)
            if I.cls in ('vml', 'vms'):
                n = max(n, 5)
            if I.cls in ('salu', 'smem'):
                n = max(n, 1)
    if P.cls == 'mfma':
        big = P.passes + 4
        if I.cls == 'mfma':
            if P.wr & I.ab:
                n = max(n, big)
            cs = set(I.c)
            if P.wr & cs:
                if not (cs == P.wr and I.passes == P.passes):
                    n = max(n, P.passes + 2)
            elif P.wr & I.wr and not (I.wr == P.wr and I.passes == P.passes):
                n = max(n, P.passes + 2)
        elif iv:
            if P.wr & (I.rd | I.wr):
                n = max(n, big)
            if set(P.c) & I.wr:
                n = max(n, P.passes - 1)
        elif I.cls in ('dsr', 'dsw', 'vml', 'vms'):
            if P.wr & (I.rd | I.wr):
                n = max(n, big)
    if P.cls == 'salu' and ('m0', 0) in P.wr and I.lds_dma:
        n = max(n, 1)
    if P.cls == 'vms' and P.wide and P.data & I.wr:
        n = max(n, 2)
    return n


class Emitter:
    def __init__(self):
        self.ins = []
        self.lgkm = []
        self.vm = []
        self.uid = 0

    def _hist(self, upto=None):
        out, acc = [], 0
        seq = self.ins if upto is None else self.ins[:upto]
        for x in reversed(seq):
            if isinstance(x, Ins) and x.label is None:
                out.append((x, acc))
                acc += x.ws
                if acc > 24:
                    break
        return out

    def _push(self, I):
        self.ins.append(I)

    def _apply_wait(self, text):
        m = re.search(r'vmcnt\((\d+)\)', text)
        if m:
            n = int(m.group(1))
            while len(self.vm) > n:
                self.vm.pop(0)
        m = re.search(r'lgkmcnt\((\d+)\)', text)
        if m:
            n = int(m.group(1))
            if n > 0 and any(x.cls == 'smem' for x in self.lgkm):
                return
            while len(self.lgkm) > n:
                self.lgkm.pop(0)

    def wait(self, vm=None, lgkm=None):
        parts = []
        if vm is not None and len(self.vm) > vm:
            parts.append('vmcnt(%d)' % min(vm, 63))
        if lgkm is not None and len(self.lgkm) > lgkm:
            if any(x.cls == 'smem' for x in self.lgkm):
                lgkm = 0
            parts.append('lgkmcnt(%d)' % min(lgkm, 15))
        if parts:
            t = 's_waitcnt ' + ' '.join(parts)
            self._push(parse(t)); self._apply_wait(t)

    def __call__(self, text):
        for line in text.split('\n'):
            line = line.strip()
            if not line or line.startswith(';'):
                continue
            if line.endswith(':'):
                self.label(line[:-1]); continue
            self._one(line)

    def _one(self, line):
        I = parse(line)
        if I.cls == 'wait':
            self._push(I); self._apply_wait(line); return
        touch = I.rd | I.wr
        vmN = lgN = None
        for k, P in enumerate(self.vm):
            if P.wr & touch:
                vmN = len(self.vm) - 1 - k
        for k, P in enumerate(self.lgkm):
            if P.wr & touch:
                lgN = len(self.lgkm) - 1 - k
        if vmN is not None or lgN is not None:
            self.wait(vmN, lgN)
        short = 0
        for P, dist in self._hist():
            short = max(short, need(P, I) - dist)
        while short > 0:
            k = min(short, 16)
            self._push(parse('s_nop %d' % (k - 1)))
            short -= k
        self._push(I)
        if I.cls in ('dsr', 'dsw', 'smem'):
            self.lgkm.append(I)
            if I.cls == 'smem' and len(I.wr) > 1:
                self.lgkm.append(I)
        if I.cls in ('vml', 'vms'):
            self.vm.append(I)
            assert len(self.vm) <= 63, 'vmcnt overflow'

    def prewait(self, line):
        I = parse(line.strip())
        touch = I.rd | I.wr
        vmN = lgN = None
        for k, P in enumerate(self.vm):
            if P.wr & touch:
                vmN = len(self.vm) - 1 - k
        for k, P in enumerate(self.lgkm):
            if P.wr & touch:
                lgN = len(self.lgkm) - 1 - k
        if vmN is not None or lgN is not None:
            self.wait(vmN, lgN)

    def slots(self, seq):
        for n, (m, fl) in enumerate(seq):
            if m:
                self._one(m)
            k = len(fl)
            while k > 0 and isinstance(fl[k - 1], str) and fl[k - 1].startswith('v_'):
                k -= 1
            for f in fl[:k]:
                f() if callable(f) else self(f)
            if k < len(fl) and n + 1 < len(seq) and seq[n + 1][0]:
                self.prewait(seq[n + 1][0])
            for f in fl[k:]:
                self(f)

    def label(self, name):
        I = Ins(); I.label = name; I.text = name + ':'; I.ws = 0; I.op = ''
        self._push(I)

    def comment(self, t):
        self.ins.append('; ' + t)

    def raw(self, t):
        self.ins.append(t)

    def newlabel(self, base='L'):
        self.uid += 1
        return '%s_%d' % (base, self.uid)

    def lds_writes_done(self):
        last = None
        for k, P in enumerate(self.lgkm):
            if P.cls == 'dsw':
                last = k
        if last is not None:
            self.wait(lgkm=len(self.lgkm) - 1 - last)

    def barrier(self):
        self.lds_writes_done()
        self._one('s_barrier')

    def forget(self):
        self.vm = []; self.lgkm = []

    def state(self):
        return (list(self.vm), list(self.lgkm))

    def set_state(self, st):
        self.vm, self.lgkm = list(st[0]), list(st[1])

    def check_branches(self):
        pos = {x.label: i for i, x in enumerate(self.ins) if isinstance(x, Ins) and x.label}
        bad = []
        for i, x in enumerate(self.ins):
            if isinstance(x, Ins) and x.cls == 'branch':
                assert x.target in pos, 'missing label ' + x.target
                hist = self._hist(i + 1)
                acc = 0
                for y in self.ins[pos[x.target]:]:
                    if not isinstance(y, Ins) or y.label:
                        continue
                    for P, dist in hist:
                        if need(P, y) > dist + acc:
                            bad.append((x.text, P.text, y.text))
                    acc += y.ws
                    if acc > 16 or y.op == 's_branch' or y.op == 's_endpgm':
                        break
        return bad

    def text(self):
        bad = self.check_branches()
        assert not bad, 'hazards on taken branches: %r' % (bad[:5],)
        out = []
        for x in self.ins:
            if isinstance(x, str):
                out.append(x)
            elif x.label:
                out.append(x.text)
            else:
                out.append('  ' + x.text)
        return '\n'.join(out) + '\n'


def vr(b, n=1, k='v'):
    return '%s%d' % (k, b) if n == 1 else '%s[%d:%d]' % (k, b, b + n - 1)


def sr(b, n=1):
    return vr(b, n, 's')
```

```python
from common import *

L_MB, L_T, L_OB, L_DUMMY, L_KX, L_WL = 0, 8192, 12288, 14336, 16384, 32768
vL16, vPst, vMst, vTw, vTr, vKXr, vOw, vWL0, vWL1, vMw, vIdx, vSelC = range(12)
EX, PM, VX = 12, 16, 20
TMP = 28
MA = 32
ACC = 64
X, KXR, SPARE = 88, 104, 120
SB = [X, X + 8, KXR, KXR + 8, SPARE]
R1 = [MA + 8, MA + 16, MA + 24] + SB + [X, X + 8]
WO_SB = [KXR, KXR + 8, X, X + 8, ACC, ACC + 8]
sStep, sMcur, sMnext, sMarm, sPst, sPld, sParm, sKV, sC, sExp, sMbaseP, sMbaseS, sPbaseS, sPbaseL, sFl, sFch, sTog, sNan, sA, sB = range(50, 70)
sSel = 70
sOK = 78
sPl2 = 79
sMn2 = 3
sMask = 100
sVx, sVt = 96, 97
sFm = 98
sDbgT = 80

STREAM = [('q', 0, 0), ('q', 1, 0), ('k', 0, 0), ('k', 1, 0), ('q', 0, 1),
          ('q', 1, 1), ('k', 0, 1), ('k', 1, 1), ('q', 1, 6), ('q', 1, 7),
          ('o', 5, 0), ('o', 5, 1), ('o', 6, 0), ('o', 6, 1), ('o', 7, 0), ('o', 7, 1)]
WLPOS = {op: p for op, p in zip(STREAM[10:14], range(4))}
WLPOS.update({op: 4 + p for p, op in enumerate(STREAM[14:16] + STREAM[:10])})
ALLOPS = [(m, ft, i) for m in 'qkv' for ft in range(2) for i in range(8)] + [('o', t, kb) for t in range(8) for kb in range(2)]
RES = {}
for n, op in enumerate([o for o in ALLOPS if o not in STREAM]):
    RES[op] = ('a', 8 * n) if n < 32 else ('v', 128 + 8 * (n - 32))
PARK = {}
for n, op in enumerate(STREAM[14:16] + STREAM[:10]):
    PARK[op] = 32 + 8 * n
for n, op in enumerate(STREAM[10:14]):
    PARK[op] = 48 + 8 * n


def wl_addr(op, half):
    p = WLPOS[op]
    off = (p >> 1) * 16384 + (p & 1) * 2048 + half * 1024
    return (vWL0, off) if off < 65536 else (vWL1, off - 65536)


def wl_read(e, op, dst):
    for half in range(2):
        a, off = wl_addr(op, half)
        e(f"ds_read_b128 {vr(dst + 4 * half, 4)}, v{a} offset:{off}")


def wl_write(e, op, src):
    for half in range(2):
        a, off = wl_addr(op, half)
        e(f"ds_write_b128 v{a}, {vr(src + 4 * half, 4)} offset:{off}")


def chain_startup(e, cfg):
    h = S_ROLE
    tA, tB, tC, tD = EX, EX + 1, EX + 2, EX + 3
    t0, t1, t2, t3 = TMP, TMP + 1, TMP + 2, TMP + 3
    lane = PM
    e(f"""v_and_b32 v{lane}, 63, v0
          v_lshlrev_b32 v{vL16}, 4, v{lane}
          v_lshrrev_b32 v{t0}, 4, v{lane}
          v_and_b32 v{t1}, 15, v{lane}""")
    e(f"""v_lshrrev_b32 v{t2}, 2, v{lane}
          v_lshlrev_b32 v{t2}, 12, v{t2}
          v_and_b32 v{t3}, 3, v{lane}
          v_lshl_add_u32 v{vPst}, v{t3}, 4, v{t2}""")
    e(f"""v_and_b32 v{t2}, 1, v{lane}
          v_lshlrev_b32 v{t2}, 5, v{t2}
          v_lshl_add_u32 v{t2}, v{t0}, 3, v{t2}
          v_and_b32 v{t3}, 4, v{lane}
          v_add_u32 v{t2}, v{t2}, v{t3}
          v_and_b32 v{t3}, 10, v{lane}
          v_cmp_ne_u32 vcc, 0, v{t3}
          v_mov_b32 v{t3}, 0x40000000
          v_cndmask_b32 v{vMst}, v{t2}, v{t3}, vcc""")
    e(f"""s_lshl_b32 s{sA}, s{S_WAVE}, 10
          s_add_u32 s{sA}, s{sA}, {L_T}
          v_lshlrev_b32 v{t2}, 5, v{t1}
          v_lshl_add_u32 v{t2}, v{t0}, 3, v{t2}
          v_add_u32 v{vTw}, s{sA}, v{t2}""")
    e(f"""v_lshrrev_b32 v{t2}, 5, v{lane}
          v_lshlrev_b32 v{t2}, 9, v{t2}
          v_and_b32 v{t3}, 31, v{lane}
          v_lshl_add_u32 v{t2}, v{t3}, 3, v{t2}
          v_add_u32 v{vTr}, {L_T}, v{t2}""")
    e(f"""v_lshlrev_b32 v{t2}, 9, v{t0}
          v_lshl_add_u32 v{t2}, v{t1}, 4, v{t2}
          v_add_u32 v{vKXr}, {L_KX}, v{t2}""")
    e(f"""s_lshl_b32 s{sA}, s{S_WAVE}, 9
          s_add_u32 s{sA}, s{sA}, {L_OB}
          v_lshrrev_b32 v{t2}, 5, v{lane}
          v_lshlrev_b32 v{t2}, 8, v{t2}
          v_and_b32 v{t3}, 16, v{lane}
          v_add_u32 v{t2}, v{t2}, v{t3}
          v_and_b32 v{t3}, 12, v{lane}
          v_lshl_add_u32 v{t2}, v{t3}, 4, v{t2}
          v_and_b32 v{t3}, 1, v{lane}
          v_lshl_add_u32 v{t2}, v{t3}, 5, v{t2}
          v_and_b32 v{t3}, 2, v{lane}
          v_lshl_add_u32 v{t2}, v{t3}, 10, v{t2}
          v_add_u32 v{vOw}, s{sA}, v{t2}""")
    e(f"""s_lshl_b32 s{sA}, s{S_WAVE}, 12
          s_add_u32 s{sA}, s{sA}, {L_WL}
          v_add_u32 v{vWL0}, s{sA}, v{vL16}
          v_add_u32 v{vWL1}, 0x10000, v{vWL0}
          s_lshl_b32 s{sA}, s{S_WAVE}, 11
          v_add_u32 v{vMw}, s{sA}, v{vL16}""")
    e(f"""v_and_b32 v{t2}, 1, v{lane}
          v_cmp_ne_u32 vcc, 0, v{t2}
          v_mov_b32 v{t2}, 0x4444
          v_mov_b32 v{t3}, 0xeeee
          v_cndmask_b32 v{vIdx}, v{t2}, v{t3}, vcc
          v_mov_b32 v{t2}, 0x3f80
          v_mov_b32 v{t3}, 0x3f800000
          v_cndmask_b32 v{vSelC}, v{t2}, v{t3}, vcc
          v_lshrrev_b32 v{t2}, 1, v{t1}""")
    for j in range(4):
        e(f"v_cmp_eq_u32 {sr(sSel + 2 * j, 2)}, {j}, v{t2}")
    e(f"""v_lshlrev_b32 v{tA}, 13, v{t0}
          v_lshl_add_u32 v{tA}, v{t1}, 4, v{tA}""")
    e(f"""v_bfe_u32 v{t2}, v{lane}, 2, 1
          v_lshlrev_b32 v{tB}, 12, v{t2}
          v_bfe_u32 v{t2}, v{lane}, 5, 1
          v_lshl_add_u32 v{tB}, v{t2}, 10, v{tB}
          v_bfe_u32 v{t2}, v{lane}, 3, 1
          v_lshl_add_u32 v{tB}, v{t2}, 9, v{tB}
          v_bfe_u32 v{t2}, v{lane}, 4, 1
          v_lshl_add_u32 v{tB}, v{t2}, 8, v{tB}
          v_and_b32 v{t2}, 3, v{lane}
          v_lshl_add_u32 v{tB}, v{t2}, 3, v{tB}
          s_lshl_b32 s{sA}, s{S_WAVE}, 6
          v_add_u32 v{tB}, s{sA}, v{tB}""")
    e(f"""v_lshrrev_b32 v{t3}, 2, v{lane}
          v_lshlrev_b32 v{tC}, 10, v{t3}
          v_lshl_add_u32 v{tC}, v{t2}, 3, v{tC}
          s_lshl_b32 s{sA}, s{S_WAVE}, 8
          v_add_u32 v{tC}, s{sA}, v{tC}""")
    e(f"""v_lshrrev_b32 v{t2}, 1, v{t1}
          v_lshlrev_b32 v{tD}, 10, v{t2}
          v_lshl_add_u32 v{tD}, v{t0}, 3, v{tD}
          v_and_b32 v{t2}, 1, v{lane}
          v_lshl_add_u32 v{tD}, v{t2}, 2, v{tD}""")
    e(f"""s_lshl_b32 s{sA}, s{S_WAVE}, 11
          s_add_u32 s{sMbaseP}, s{sA}, {WS_M}
          s_lshl_b32 s{sB}, s{h}, 13
          s_add_u32 s{sPbaseL}, s{sA}, s{sB}
          s_add_u32 s{sPbaseL}, s{sPbaseL}, {WS_P}
          s_lshl_b32 s{sA}, s{S_WAVE}, 16
          s_lshl_b32 s{sB}, s{h}, 6
          s_add_u32 s{sPbaseS}, s{sA}, s{sB}
          s_add_u32 s{sPbaseS}, s{sPbaseS}, {WS_P}""")
    e(f"""s_lshr_b32 s{sA}, s{h}, 3
          s_lshl_b32 s{sMbaseS}, s{sA}, 11
          s_and_b32 s{sA}, s{S_WAVE}, 1
          s_lshl_b32 s{sA}, s{sA}, 10
          s_add_u32 s{sMbaseS}, s{sMbaseS}, s{sA}
          s_and_b32 s{sA}, s{h}, 1
          s_lshl_b32 s{sA}, s{sA}, 9
          s_add_u32 s{sMbaseS}, s{sMbaseS}, s{sA}
          s_lshr_b32 s{sA}, s{S_WAVE}, 1
          s_lshl_b32 s{sA}, s{sA}, 8
          s_add_u32 s{sMbaseS}, s{sMbaseS}, s{sA}
          s_and_b32 s{sA}, s{h}, 6
          s_lshl_b32 s{sA}, s{sA}, 5
          s_add_u32 s{sMbaseS}, s{sMbaseS}, s{sA}
          s_add_u32 s{sMbaseS}, s{sMbaseS}, {WS_M}""")
    e(f"""s_mul_i32 s{sKV}, s{h}, {64 * UNIT}
          s_lshl_b32 s{sA}, s{S_WAVE}, 11
          s_add_u32 s{sKV}, s{sKV}, s{sA}
          s_add_u32 s{sKV}, s{sKV}, {WS_QKV + 8192}
          s_lshl_b32 s{sExp}, s{h}, 18
          s_lshl_b32 s{sA}, s{S_WAVE}, 10
          s_add_u32 s{sExp}, s{sExp}, s{sA}
          s_add_u32 s{sExp}, s{sExp}, {WS_EXP}
          s_lshl_b32 s{sFl}, s{h}, 8
          s_add_u32 s{sFl}, s{sFl}, {F_QKV}
          s_lshl_b32 s{sFch}, s{h}, 7
          s_lshl_b32 s{sA}, s{S_WAVE}, 2
          s_add_u32 s{sFch}, s{sFch}, s{sA}
          s_add_u32 s{sFch}, s{sFch}, {F_CH}
          s_mov_b32 s{sC}, 0x3e0293ee
          s_mov_b32 s{sOK}, 1""")
    for j in range(4):
        e(f"v_mov_b32 v{32 + j}, {SENT1}")
    e(f"""v_mov_b32 v36, -1
          s_add_u32 s{sA}, s{sPbaseL}, 0x40000
          s_add_u32 s{sB}, s{sMbaseS}, 8192
          buffer_store_dwordx4 v[32:35], v{vL16}, {sr(S_WS, 4)}, s{sPbaseL} offen sc1
          buffer_store_dwordx4 v[32:35], v{vL16}, {sr(S_WS, 4)}, s{sPbaseL} offen offset:1024 sc1
          buffer_store_dwordx4 v[32:35], v{vL16}, {sr(S_WS, 4)}, s{sA} offen sc1
          buffer_store_dwordx4 v[32:35], v{vL16}, {sr(S_WS, 4)}, s{sA} offen offset:1024 sc1
          buffer_store_dword v36, v{vMst}, {sr(S_WS, 4)}, s{sB} offen sc1""")
    srd(e, S_T1, P_MEM0, 8192)
    chunks = [('o', kb, Q) for kb in range(2) for Q in range(4)] + [(m, b, 0) for m in 'qkv' for b in range(8)]
    ring = {4: L_WL + 2 * 16384, 5: L_WL + 3 * 16384, 6: L_WL + 4 * 16384, 0: L_WL + 5 * 16384, 1: L_WL + 6 * 16384,
            2: L_WL + 7 * 16384, 3: 0}
    ptr = {'q': P_WQ, 'k': P_WK, 'v': P_WV, 'o': P_WO}
    sHq, sHo = sMcur, sMnext
    e(f"""s_lshl_b32 s{sHq}, s{h}, 8
          s_lshl_b32 s{sHo}, s{h}, 17""")
    for w in range(1, 4):
        e(f"s_cmp_eq_u32 s{S_WAVE}, {w}\n s_cbranch_scc1 L_cs_w{w}")
    st0 = e.state()
    for w in range(4):
        if w:
            e.label(f"L_cs_w{w}"); e.set_state(st0)
        cur = [None]

        def dma(r):
            m, x, Q = chunks[r]
            if cur[0] != m:
                srd(e, S_T0, ptr[m], 0x400000); cur[0] = m
            for jj in range(4):
                j = 4 * w + jj
                if m == 'o':
                    gB, i = j >> 2, j & 3
                    row = 64 * x + 32 * (Q >> 1) + 2 * (Q & 1) + 16 * (gB & 1) + 8 * (gB >> 1) + 4 * (i >> 1) + (i & 1)
                    e(f"""s_add_u32 s{sA}, s{sHo}, {row * 1024}
                          s_mov_b32 m0, {ring[r % 7] + j * 1024}
                          buffer_load_dwordx4 v{vL16}, {sr(S_T0, 4)}, s{sA} offen lds""")
                else:
                    e(f"""s_add_u32 s{sA}, s{sHq}, {(64 * x + 4 * j) * 8192}
                          s_mov_b32 m0, {ring[r % 7] + j * 1024}
                          buffer_load_dwordx4 v{tA}, {sr(S_T0, 4)}, s{sA} offen lds""")
            marks[r] = e.vm[-1]

        marks = {}
        for r in range(6):
            dma(r)
        parked = STREAM[14:16] + STREAM[:10]
        for r in range(32):
            m, x, Q = chunks[r]
            k = e.vm.index(marks[r]) if marks[r] in e.vm else None
            if k is not None:
                e.wait(vm=len(e.vm) - 1 - k)
            e.wait(lgkm=0)
            e("s_barrier")
            if r == 0 and w == 0:
                e.comment("every wave's arming and flag-zeroing stores are complete: count this workgroup in")
                e(f"""s_cmp_lg_u32 s{S_XCC}, 0
                      s_cselect_b32 s{sA}, 0x10001, 1
                      v_mov_b32 v{t0}, s{sA}
                      s_mov_b64 exec, 1
                      buffer_atomic_add v{t0}, off, {sr(S_DBG, 4)}, 0 offset:{D_INIT}
                      s_mov_b64 exec, -1""")
            if r + 6 < 32:
                dma(r + 6)
            if r == 8:
                for op in STREAM[10:14]:
                    wl_write(e, op, PARK[op])
                e.wait(lgkm=0)
            if r == 10:
                e(f"buffer_load_dword v{PM + 1}, off, {sr(S_DBG, 4)}, 0 offset:{D_INIT} sc1")
            if r == 17:
                e(f"""v_readfirstlane_b32 s{sNan}, v{PM + 1}
                      v_lshrrev_b32 v{PM + 3}, 2, v{vL16}
                      buffer_load_dword v{PM + 2}, v{PM + 3}, {sr(S_WS, 4)}, s{sFl} offen sc1""")
            if r == 24:
                e(f"""v_cmp_ne_u32 {sr(sFm, 2)}, 0, v{PM + 2}
                      s_and_b32 s{sOK}, s{sFm}, 3
                      s_cmp_eq_u32 s{sOK}, 3
                      s_cselect_b32 s{sOK}, 1, 0
                      s_and_b32 s{sA}, s{sNan}, 0xffff
                      s_cmp_eq_u32 s{sA}, 256
                      s_cselect_b32 s{sOK}, s{sOK}, 0""")
                kx_dma(e, L_KX)
            if r >= 26:
                for op in parked[2 * (r - 26):2 * (r - 26) + 2]:
                    wl_write(e, op, PARK[op])
            if r == 27:
                e.wait(lgkm=0)
                for bb in range(2):
                    for t in range(4):
                        e(f"buffer_load_dword v{MA + 8 + 4 * bb + t}, v{tD}, {sr(S_T1, 4)}, 0 offen offset:{(128 * w + 64 * bb + 16 * t) * 2}")
            e(f"v_add_u32 v{t1}, {ring[r % 7]}, v{tC if m == 'o' else tB}")
            if m == 'o':
                for t in range(8):
                    op = ('o', t, x)
                    kind, base = RES[op] if op in RES else ('v', PARK[op])
                    e(f"ds_read_b64_tr_b16 {vr(base + 2 * Q, 2, kind)}, v{t1} offset:{t * 32}")
            else:
                i = x ^ (2 * w)
                for ft in range(2):
                    op = (m, ft, i)
                    kind, base = RES[op] if op in RES else ('v', PARK[op])
                    for Q in range(4):
                        e(f"ds_read_b64_tr_b16 {vr(base + 2 * Q, 2, kind)}, v{t1} offset:{(32 * (Q & 1) + 8 * (Q >> 1)) * 256 + ft * 32}")
        e.wait(vm=0, lgkm=0)
        if w < 3:
            e("s_branch L_cs_done")
    e.label("L_cs_done")
    e("s_barrier")
    e(f"s_mov_b32 s{sA}, 0x05040100\n s_mov_b32 s{sB}, 0x07060302")
    for bb in range(2):
        s = MA + 8 + 4 * bb
        d = MA + 4 * bb
        e(f"""v_perm_b32 v{d}, v{s + 1}, v{s}, s{sA}
              v_perm_b32 v{d + 1}, v{s + 3}, v{s + 2}, s{sA}
              v_perm_b32 v{d + 2}, v{s + 1}, v{s}, s{sB}
              v_perm_b32 v{d + 3}, v{s + 3}, v{s + 2}, s{sB}""")
    e(f"""s_cmp_lg_u32 s{sOK}, 0
          s_cbranch_scc1 L_cs_ready
          L_cs_p1:
          buffer_load_dword v{t0}, off, {sr(S_DBG, 4)}, 0 offset:{D_INIT} sc1
          s_sub_u32 s{S_SPIN}, s{S_SPIN}, 1
          s_cbranch_scc1 L_end
          v_readfirstlane_b32 s{sNan}, v{t0}
          s_and_b32 s{sA}, s{sNan}, 0xffff
          s_cmp_eq_u32 s{sA}, 256
          s_cbranch_scc0 L_cs_p1
          L_cs_p2:
          buffer_load_dword v{t0}, v{PM + 3}, {sr(S_WS, 4)}, s{sFl} offen sc1
          s_sub_u32 s{S_SPIN}, s{S_SPIN}, 1
          s_cbranch_scc1 L_end
          v_cmp_ne_u32 {sr(sFm, 2)}, 0, v{t0}
          s_and_b32 s{sA}, s{sFm}, 3
          s_cmp_eq_u32 s{sA}, 3
          s_cbranch_scc0 L_cs_p2""")
    kx_dma(e, L_KX)
    e.wait(vm=0)
    e.label("L_cs_ready")
    e(f"""v_mov_b32 v{PM + 1}, 0
          v_mov_b32 v{PM + 2}, 0
          s_mov_b32 s{sStep}, 0
          s_mov_b32 s{sTog}, 0""")
    prep_a(e)
    prep_b(e)
    e.wait(lgkm=0)
    if cfg.get('diag'):
        e.raw(f"  s_memtime {sr(sDbgT + 6, 2)}\n  s_memrealtime {sr(sDbgT + 10, 2)}\n  s_memtime {sr(sDbgT, 2)}\n  s_memtime {sr(sDbgT + 2, 2)}\n  s_mov_b32 s{sDbgT + 5}, 0\n  s_waitcnt lgkmcnt(0)")
    e(f"""s_lshr_b32 s{sA}, s{sNan}, 16
          s_cmp_lg_u32 s{sA}, 0
          s_cbranch_scc1 L_step_s""")
    if cfg.get('force_slow'):
        e("s_branch L_step_s")


def kx_dma(e, ldsbase=None):
    if ldsbase is not None:
        e(f"s_lshl_b32 s{sA}, s{S_WAVE}, 11\n s_add_u32 m0, s{sA}, {ldsbase}")
    e(f"""buffer_load_dwordx4 v{vL16}, {sr(S_WS, 4)}, s{sKV} offen sc1 lds
          buffer_load_dwordx4 v{vL16}, {sr(S_WS, 4)}, s{sKV} offen offset:1024 sc1 lds""")


def wl_lines(op, dst):
    out = []
    for half in range(2):
        a, off = wl_addr(op, half)
        out.append(f"ds_read_b128 {vr(dst + 4 * half, 4)}, v{a} offset:{off}")
    return out


def delay(e, cyc):
    n = cyc // 4
    while n > 0:
        k = min(n, 16)
        e(f"s_nop {k - 1}")
        n -= k


def prep_a(e):
    other = [f"v_mov_b64 {vr(ACC + j, 2)}, 0" for j in range(0, 24, 2)]
    other += f"""s_and_b32 s{sA}, s{sStep}, 3
          s_lshl_b32 s{sA}, s{sA}, 13
          s_add_u32 s{sMcur}, s{sMbaseP}, s{sA}
          s_xor_b32 s{sB}, s{sA}, 0x4000
          s_add_u32 s{sMarm}, s{sMbaseS}, s{sB}
          s_add_u32 s{sA}, s{sA}, 0x2000
          s_and_b32 s{sA}, s{sA}, 0x7fff
          s_add_u32 s{sMnext}, s{sMbaseS}, s{sA}
          s_and_b32 s{sA}, s{sStep}, 1
          s_lshl_b32 s{sA}, s{sA}, 18
          s_add_u32 s{sPst}, s{sPbaseS}, s{sA}
          s_add_u32 s{sPld}, s{sPbaseL}, s{sA}
          s_xor_b32 s{sA}, s{sA}, 0x40000
          s_add_u32 s{sParm}, s{sPbaseL}, s{sA}""".split('\n')
    reads = sum([wl_lines(STREAM[o], R1[o]) for o in range(3, 8)], [])
    for r in reads:
        e(r)
        for _ in range(3):
            if other:
                e(other.pop(0))
    for o in other:
        e(o)


def prep_b(e):
    other = [f"v_xor_b32 v{TMP + p}, {p << 11}, v{vMw}" for p in range(1, 4)]
    other += f"""s_sub_u32 s{sVx}, s{sKV}, s{sTog}
          s_add_u32 s{sVx}, s{sVx}, {8192 - L_KX}
          s_add_u32 s{sKV}, s{sKV}, {UNIT}
          s_add_u32 s{sVt}, s{sKV}, 8192
          s_xor_b32 s{sA}, s{sTog}, 0x2000
          s_lshl_b32 s{sB}, s{S_WAVE}, 11
          s_add_u32 s{sA}, s{sA}, s{sB}
          s_add_u32 m0, s{sA}, {L_KX}
          s_cmp_gt_u32 s{sStep}, 1
          s_cselect_b32 s{sA}, 4096, 0
          s_add_u32 s{sExp}, s{sExp}, s{sA}
          s_max_u32 s{sA}, s{sStep}, 1
          s_sub_u32 s{sA}, s{sA}, 1
          v_mov_b32 v{TMP}, s{sA}""".split('\n')
    reads = sum([wl_lines(STREAM[o], R1[o]) for o in range(3)], [])
    for r in reads:
        e(r)
        for _ in range(3):
            if other:
                e(other.pop(0))
    for o in other:
        e(o)


def chain_loop(e, cfg, sfx, st):
    W = sr(S_WS, 4)
    acc = {('q', 0): ACC, ('q', 1): ACC + 4, ('k', 0): ACC + 8, ('k', 1): ACC + 12, ('v', 0): ACC + 16, ('v', 1): ACC + 20}
    loc = dict(RES)
    for o in range(10):
        loc[STREAM[o]] = ('v', R1[o])
    for o in range(6):
        loc[STREAM[10 + o]] = ('v', WO_SB[o])

    def stamp(n):
        seg = cfg.get('seg')
        if seg and n == seg[1]:
            e.raw(f"  s_memtime {sr(sDbgT + 2, 2)}")
        if seg and n == 9:
            e.raw(f"  s_waitcnt lgkmcnt(0)\n  s_sub_u32 s{sDbgT + 4}, s{sDbgT + 2}, s{sDbgT}\n  s_add_u32 s{sDbgT + 5}, s{sDbgT + 5}, s{sDbgT + 4}")
        if seg and n == seg[0]:
            e.raw(f"  s_memtime {sr(sDbgT, 2)}")

    def P(m, ft, i):
        k, b = loc[(m, ft, i)]
        return f"v_smfmac_f32_16x16x64_bf16 {vr(acc[(m, ft)], 4)}, {vr(MA + 4 * i, 4)}, {vr(b, 8, k)}, v{vIdx}"

    def post(a, dst):
        return [f"v_add_f32 v{a}, v{a}, v{a + 1}", f"v_add_f32 v{a + 2}, v{a + 2}, v{a + 3}",
                f"v_cvt_pk_bf16_f32 v{dst}, v{a}, v{a + 2}"]

    def xread(kb):
        return [f"ds_read_b64_tr_b16 {vr(X + 4 * kb, 2)}, v{vTr} offset:{kb * 1024}",
                f"ds_read_b64_tr_b16 {vr(X + 4 * kb + 2, 2)}, v{vTr} offset:{kb * 1024 + 256}"]

    def mread(i):
        return f"ds_read_b128 {vr(MA + 4 * i, 4)}, v{TMP + (i >> 1)} offset:{(i & 1) * 1024}"

    kx_dst = [KXR, KXR + 4, KXR + 8, KXR + 12, SPARE, SPARE + 4, KXR, KXR + 4]

    def kxread(n):
        return f"ds_read_b128 {vr(kx_dst[n], 4)}, v{vKXr} offset:{(n >> 1) * 2048 + (n & 1) * 256}"

    Sx = [ACC, ACC + 4]
    Sm, Px = ACC + 8, ACC + 12

    def smx(n):
        kb, t = n >> 1, n & 1
        c = '0' if kb == 0 else vr(Sx[t], 4)
        return f"v_mfma_f32_16x16x32_bf16 {vr(Sx[t], 4)}, {vr(kx_dst[n], 4)}, {vr(X + 4 * kb, 4)}, {c}"

    def smm(kb):
        c = '0' if kb == 0 else vr(Sm, 4)
        return f"v_mfma_f32_16x16x32_bf16 {vr(Sm, 4)}, {vr(X + 4 * kb, 4)}, {vr(X + 4 * kb, 4)}, {c}"

    vm = [f"buffer_store_dwordx4 {vr(ACC + 8, 4)}, v{vL16}, {W}, s{sParm} offen {st}",
          f"buffer_store_dwordx4 {vr(ACC + 8, 4)}, v{vL16}, {W}, s{sParm} offen offset:1024 {st}",
          f"buffer_store_dword v{TMP + 3}, v{vMst}, {W}, s{sMarm} offen {st}",
          f"buffer_load_dwordx4 {vr(VX, 4)}, v{vKXr}, {W}, s{sVx} offen sc1",
          f"buffer_load_dwordx4 {vr(VX + 4, 4)}, v{vKXr}, {W}, s{sVx} offen offset:256 sc1",
          f"buffer_load_dwordx4 v{vL16}, {W}, s{sKV} offen sc1 lds",
          f"buffer_load_dwordx4 v{vL16}, {W}, s{sKV} offen offset:1024 sc1 lds",
          f"buffer_load_dword v{TMP + 2}, v{TMP + 2}, {W}, s{sVt} offen sc1",
          f"buffer_store_dwordx4 {vr(EX, 4)}, v{vL16}, {W}, s{sExp} offen sc1",
          f"s_mov_b64 exec, 1\n buffer_store_dword v{TMP}, off, {W}, s{sFch} sc1\n s_mov_b64 exec, -1"]
    rf = wl_lines(STREAM[8], R1[8]) + wl_lines(STREAM[9], R1[9])
    wo = sum([wl_lines(STREAM[10 + o], WO_SB[o]) for o in range(6)], [])
    q0p, q1p, k0p, k1p = post(ACC, ACC + 1), post(ACC + 4, ACC + 5), post(ACC + 8, EX), post(ACC + 12, EX + 1)
    v0p, v1p = post(ACC + 16, EX + 2), post(ACC + 20, EX + 3)
    m0, m1 = TMP, TMP + 1
    st_ = lambda n: (lambda: stamp(n))

    e.forget()
    e.label(f"L_step_{sfx}")
    stamp(9); stamp(0)
    e(f"ds_write_b128 v{vMw}, {vr(MA, 4)}")
    sent = [f"v_mov_b32 v{ACC + 8 + j}, {SENT1}" for j in range(4)]
    e.slots([
        (P('q', 0, 0), [f"ds_write_b128 v{vMw}, {vr(MA + 4, 4)} offset:1024"]),
        (P('q', 1, 0), [vm[3]]),
        (P('k', 0, 0), [vm[4]]),
        (P('k', 1, 0), [e.barrier, mread(2)]),
        (P('q', 0, 1), [mread(3)]),
        (P('q', 1, 1), [mread(4), vm[5]]),
        (P('k', 0, 1), [mread(5)]),
        (P('k', 1, 1), [mread(6)]),
        (P('v', 0, 0), [mread(7), f"v_lshlrev_b32 v{TMP + 2}, 1, v{vL16}"]),
        (P('v', 1, 0), [rf[0], vm[6], f"v_mov_b32 v{TMP + 3}, -1"]),
        (P('v', 0, 1), [rf[1]]),
        (P('v', 1, 1), [rf[2], st_(1)]),
        (P('q', 0, 2), [rf[3]]),
        (P('q', 0, 3), [kxread(0), vm[7]]),
        (P('q', 0, 4), [kxread(1)]),
        (P('q', 0, 5), [kxread(2)]),
        (P('q', 0, 6), [kxread(3)]),
        (P('q', 0, 7), [kxread(4), vm[8]]),
        (P('q', 1, 2), [kxread(5)]),
        (P('q', 1, 3), ["s_nop 0"]),
        (P('q', 1, 4), ["s_nop 0"]),
        (P('q', 1, 5), [q0p[0]]),
        (P('q', 1, 6), [q0p[1]]),
        (P('q', 1, 7), [st_(2), q0p[2]]),
        (P('k', 0, 2), [vm[9]]),
        (P('k', 0, 3), ["s_nop 1"]),
        (P('k', 0, 4), [q1p[0]]),
        (P('k', 0, 5), [q1p[1]]),
        (P('k', 0, 6), [q1p[2]]),
        (P('k', 0, 7), [f"ds_write2_b32 v{vTw}, v{ACC + 1}, v{ACC + 5} offset0:0 offset1:128", "s_nop 0"]),
        (P('k', 1, 2), [vm[2], "s_nop 1"]),
        (P('k', 1, 3), [k0p[0]]),
        (P('k', 1, 4), [e.barrier, k0p[1]]),
        (P('k', 1, 5), xread(0) + [k0p[2]]),
        (P('k', 1, 6), xread(1) + [sent[0]]),
        (P('k', 1, 7), xread(2) + [st_(3), sent[1]]),
        (P('v', 0, 2), xread(3) + [sent[2]]),
        (P('v', 0, 3), [sent[3]]),
        (smx(0), k1p[0:2]),
        (smx(1), [k1p[2], f"ds_write2_b32 v{vTw}, v{EX}, v{EX + 1} offset0:1 offset1:129"]),
        (smx(2), [kxread(6), vm[0]]),
        (smx(3), [kxread(7)]),
        (smx(4), []),
        (smx(5), [e.barrier] + xread(0)),
        (P('v', 0, 4), xread(1)),
        (smx(6), xread(2)),
        (smx(7), xread(3) + [st_(4)]),
        (P('v', 0, 5), [wo[0], vm[1]]),
        (P('v', 0, 6), [wo[1]]),
        (P('v', 0, 7), [wo[2]]),
        (smm(0), [wo[3], f"v_max3_f32 v{m0}, v{Sx[0]}, v{Sx[0] + 1}, v{Sx[0] + 2}"]),
        (smm(1), [f"v_max3_f32 v{m1}, v{Sx[0] + 3}, v{Sx[1]}, v{Sx[1] + 1}", f"v_max3_f32 v{m0}, v{m0}, v{Sx[1] + 2}, v{Sx[1] + 3}"]),
        (smm(2), [f"v_max_f32 v{m0}, v{m0}, v{m1}", v0p[0]]),
        (smm(3), [wo[4], v0p[1], v0p[2]]),
        (P('v', 1, 2), [wo[5], "s_nop 0"]),
        (P('v', 1, 3), [wo[6], f"v_max3_f32 v{m0}, v{m0}, v{Sm + 2}, v{Sm + 3}", f"v_mov_b32 v{m1}, v{m0}"]),
        (P('v', 1, 4), [wo[7], f"v_permlane32_swap_b32 v{m0}, v{m1}", f"v_max_f32 v{m0}, v{m0}, v{m1}", f"v_mov_b32 v{m1}, v{m0}"]),
        (P('v', 1, 5), ["s_nop 0", f"v_permlane16_swap_b32 v{m0}, v{m1}", f"v_max_f32 v{m0}, v{m0}, v{m1}", f"v_mul_f32 v{m0}, s{sC}, v{m0}"]),
        (P('v', 1, 6), [f"v_fma_f32 v{Sm + 2}, v{Sm + 2}, s{sC}, -v{m0}"]),
        (P('v', 1, 7), [f"v_fma_f32 v{Sm + 3}, v{Sm + 3}, s{sC}, -v{m0}", f"v_exp_f32 v{Sm + 2}, v{Sm + 2}", f"v_exp_f32 v{Sm + 3}, v{Sm + 3}"]),
    ])
    for j in range(0, 8, 2):
        e(f"v_pk_fma_f32 {vr(ACC + j, 2)}, {vr(ACC + j, 2)}, {sr(sC, 2)}, {vr(m0, 2)} op_sel_hi:[1,0,0] neg_lo:[0,0,1] neg_hi:[0,0,1]")
    for j in range(8):
        e(f"v_exp_f32 v{ACC + j}, v{ACC + j}")
    stamp(5)
    e("\n".join(v1p))
    e(f"s_cmp_eq_u32 s{sStep}, 63\n s_cbranch_scc1 L_final")
    for j in range(4):
        e(f"v_cvt_pk_bf16_f32 v{Px + j}, v{ACC + 2 * j}, v{ACC + 2 * j + 1}")
    e(f"""v_cvt_pk_bf16_f32 v{PM}, v{Sm + 2}, v{Sm + 3}
          v_cvt_pk_bf16_f32 v{PM + 3}, v{Sm + 2}, v{Sm + 3}
          v_pk_add_f32 {vr(ACC, 2)}, {vr(ACC, 2)}, {vr(ACC + 2, 2)}
          v_pk_add_f32 {vr(ACC + 4, 2)}, {vr(ACC + 4, 2)}, {vr(ACC + 6, 2)}
          v_pk_add_f32 {vr(ACC, 2)}, {vr(ACC, 2)}, {vr(Sm + 2, 2)}
          v_pk_add_f32 {vr(m0, 2)}, {vr(ACC, 2)}, {vr(ACC + 4, 2)}""")
    O = SPARE
    zero = [f"v_mov_b64 {vr(MA + j, 2)}, 0" for j in range(0, 32, 2)]
    e.slots([
        (f"v_mfma_f32_16x16x32_bf16 {vr(O, 4)}, {vr(VX, 4)}, {vr(Px, 4)}, 0",
         [f"v_add_f32 v{m0}, v{m0}, v{m1}", f"v_mov_b32 v{m1}, v{m0}"]),
        (f"v_mfma_f32_16x16x32_bf16 {vr(O + 4, 4)}, {vr(VX + 4, 4)}, {vr(Px, 4)}, 0",
         [f"v_permlane32_swap_b32 v{m0}, v{m1}"]),
        (f"v_mfma_f32_16x16x16_bf16 {vr(O, 4)}, {vr(EX + 2, 2)}, {vr(PM, 2)}, {vr(O, 4)}",
         [f"v_add_f32 v{m0}, v{m0}, v{m1}", f"v_mov_b32 v{m1}, v{m0}"]),
        (f"v_mfma_f32_16x16x16_bf16 {vr(O + 4, 4)}, {vr(EX + 2, 2)}, {vr(PM + 2, 2)}, {vr(O + 4, 4)}",
         [f"v_permlane16_swap_b32 v{m0}, v{m1}", f"v_add_f32 v{m0}, v{m0}, v{m1}", f"v_rcp_f32 v{m0}, v{m0}",
          zero.pop(0), zero.pop(0)]),
    ])
    for j in range(0, 8, 2):
        e(f"v_pk_mul_f32 {vr(O + j, 2)}, {vr(O + j, 2)}, {vr(m0, 2)} op_sel_hi:[1,0]")
    OA = ACC + 16
    for j in range(4):
        e(f"v_cvt_pk_bf16_f32 v{O + j}, v{O + 2 * j}, v{O + 2 * j + 1}")
    e(f"ds_write_b128 v{vOw}, {vr(O, 4)}")
    for _ in range(7):
        e(zero.pop(0))
    e.barrier()
    e(f"""ds_read_b128 {vr(OA, 4)}, v{vL16} offset:{L_OB}
          ds_read_b128 {vr(OA + 4, 4)}, v{vL16} offset:{L_OB + 1024}""")
    for z in zero:
        e(z)
    e(f"""v_xor_b32 v{vKXr}, 0x2000, v{vKXr}
          s_xor_b32 s{sTog}, s{sTog}, 0x2000
          s_mov_b32 s{sNan}, 0
          s_mov_b32 s{sPl2}, s{sPld}
          s_mov_b32 s{sMn2}, s{sMnext}
          s_add_u32 s{sStep}, s{sStep}, 1""")
    stamp(6)
    OUT = SPARE
    seq = []
    pend = []
    for t in range(8):
        for kb in range(2):
            k, b = loc[('o', t, kb)]
            fl = []
            if t >= 2:
                p = post(MA + 4 * (t - 2), OUT + t - 2)
                fl = p[0:1] if kb == 0 else p[1:3]
            else:
                fl = [wo[8 + 2 * t + kb], "s_nop 0"]
            if t == 6 and kb == 0:
                fl = [f"buffer_store_dwordx4 {vr(OUT, 4)}, v{vPst}, {W}, s{sPst} offen {st}"] + fl
            seq.append((f"v_smfmac_f32_16x16x64_bf16 {vr(MA + 4 * t, 4)}, {vr(OA + 4 * kb, 4)}, {vr(b, 8, k)}, v{vIdx}", fl))
    e.slots(seq)
    PL, D, SEL = MA + 8, MA + 16, MA + 20
    e("\n".join(post(MA + 24, OUT + 6)))
    sel = [f"v_cndmask_b32 v{SEL + j}, 0, v{vSelC}, {sr(sSel + 2 * j, 2)}" for j in range(4)]
    e("\n".join(sel[:3]))
    e("\n".join(post(MA + 28, OUT + 7)))
    e(f"buffer_store_dwordx4 {vr(OUT + 4, 4)}, v{vPst}, {W}, s{sPst} offen offset:2048 {st}")
    stamp(7)
    e(sel[3])
    prep_a(e)
    delay(e, cfg.get('dPe', 0))
    e(f"s_bitcmp1_b32 s{S_WAVE}, 0\n s_cbranch_scc0 L_pollP_{sfx}")
    delay(e, cfg.get('dPl', 0))
    e.label(f"L_pollP_{sfx}")
    e(f"""buffer_load_dwordx4 {vr(PL, 4)}, v{vL16}, {W}, s{sPl2} offen sc1
          buffer_load_dwordx4 {vr(PL + 4, 4)}, v{vL16}, {W}, s{sPl2} offen offset:1024 sc1
          v_mfma_f32_16x16x32_bf16 {vr(D, 4)}, {vr(PL, 4)}, {vr(SEL, 4)}, 0
          v_mfma_f32_16x16x32_bf16 {vr(D, 4)}, {vr(PL + 4, 4)}, {vr(SEL, 4)}, {vr(D, 4)}
          v_permlane32_swap_b32 v{D}, v{D + 2}
          v_permlane32_swap_b32 v{D + 1}, v{D + 3}
          v_add_f32 v{D}, v{D}, v{D + 2}
          v_add_f32 v{D + 1}, v{D + 1}, v{D + 3}
          v_permlane16_swap_b32 v{D}, v{D + 1}
          v_add_f32 v{D}, v{D}, v{D + 1}
          v_cmp_u_f32 vcc, v{D}, v{D}
          s_cbranch_vccnz L_nanP_{sfx}
          L_okP_{sfx}:
          v_mov_b32_dpp v{D + 1}, v{D} quad_perm:[2,3,0,1] row_mask:0xf bank_mask:0xf
          v_cvt_pk_bf16_f32 v{D}, v{D}, v{D + 1}
          v_min_u32 v{TMP + 1}, -2, v{D}
          buffer_store_dword v{TMP + 1}, v{vMst}, {W}, s{sMn2} offen {st}""")
    stamp(8)
    e(f"""s_bitcmp1_b32 s{S_WAVE}, 0
          s_cbranch_scc1 L_prepb_{sfx}""")
    delay(e, cfg.get('dMe', 0))
    e.label(f"L_prepb_{sfx}")
    prep_b(e)
    delay(e, cfg.get('dMl', 0))
    C0 = VX + 6
    e(f"""s_add_u32 s{sOK}, s{sStep}, 1
          s_min_u32 s{sOK}, s{sOK}, 63
          L_chkf_{sfx}:
          s_bitcmp1_b64 {sr(sFm, 2)}, s{sOK}
          s_cbranch_scc0 L_flag_{sfx}
          L_pollM_{sfx}:
          buffer_load_dwordx4 {vr(MA, 4)}, v{vL16}, {W}, s{sMcur} offen sc1
          buffer_load_dwordx4 {vr(MA + 4, 4)}, v{vL16}, {W}, s{sMcur} offen offset:1024 sc1
          s_sub_u32 s{S_SPIN}, s{S_SPIN}, 1
          s_cbranch_scc1 L_end
          s_waitcnt lgkmcnt(0)
          v_max3_u32 v{C0}, v{MA}, v{MA + 1}, v{MA + 2}
          v_max3_u32 v{C0 + 1}, v{MA + 3}, v{MA + 4}, v{MA + 5}
          v_max3_u32 v{C0}, v{MA + 6}, v{MA + 7}, v{C0}
          v_max_u32 v{C0}, v{C0}, v{C0 + 1}
          v_cmp_eq_u32 vcc, -1, v{C0}
          s_cbranch_vccz L_step_{sfx}
          s_branch L_pollM_{sfx}""")
    e.forget()
    e(f"""L_nanP_{sfx}:
          s_sub_u32 s{S_SPIN}, s{S_SPIN}, 1
          s_cbranch_scc1 L_end
          s_add_u32 s{sNan}, s{sNan}, 1
          s_cmp_lt_u32 s{sNan}, 32
          s_cbranch_scc1 L_pollP_{sfx}
          s_mov_b32 s{sA}, {SENT1}
          s_mov_b64 {sr(sMask, 2)}, 0""")
    for j in range(8):
        e(f"v_cmp_eq_u32 vcc, s{sA}, v{PL + j}\n s_or_b64 {sr(sMask, 2)}, {sr(sMask, 2)}, vcc")
    e(f"""s_cbranch_scc1 L_pollP_{sfx}
          s_branch L_okP_{sfx}
          L_flag_{sfx}:
          v_lshrrev_b32 v{C0}, 2, v{vL16}
          buffer_load_dword v{C0}, v{C0}, {W}, s{sFl} offen sc1
          s_sub_u32 s{S_SPIN}, s{S_SPIN}, 1
          s_cbranch_scc1 L_end
          v_cmp_ne_u32 {sr(sFm, 2)}, 0, v{C0}
          s_nop 1
          s_branch L_chkf_{sfx}""")


def chain_final(e, cfg):
    W = sr(S_WS, 4)
    e.forget()
    e(f"""L_final:
          s_add_u32 s{sExp}, s{sExp}, 4096
          buffer_store_dwordx4 {vr(EX, 4)}, v{vL16}, {W}, s{sExp} offen sc1
          v_mov_b32 v{TMP}, 64
          s_waitcnt vmcnt(0) lgkmcnt(0)
          buffer_store_dword v{TMP}, off, {W}, s{sFch} sc1""")
    if cfg.get('diag'):
        e(f"""s_memtime {sr(sDbgT + 8, 2)}
              s_memrealtime {sr(sDbgT + 12, 2)}
              s_lshl_b32 s{sA}, s{S_ROLE}, 2
              s_add_u32 s{sA}, s{sA}, s{S_WAVE}
              s_lshl_b32 s{sA}, s{sA}, 6
              s_add_u32 s{sA}, s{sA}, 0x6000000
              s_waitcnt lgkmcnt(0)
              s_sub_u32 s{sDbgT + 8}, s{sDbgT + 8}, s{sDbgT + 6}""")
        for n, r in enumerate([sDbgT + 8, sDbgT + 5, S_SPIN, sDbgT + 14, sDbgT + 10, sDbgT + 12]):
            e(f"v_mov_b32 v{TMP + 1}, s{r}\n buffer_store_dword v{TMP + 1}, off, {W}, s{sA} offset:{4 * n}")
    e("s_waitcnt vmcnt(0)\n s_branch L_end")


def chain(e, cfg):
    chain_startup(e, cfg)
    chain_loop(e, cfg, 'f', '')
    chain_loop(e, cfg, 's', 'sc1')
    chain_final(e, cfg)
```

```python
from asm import *

NAME = "concat_heads__sliding_local_dilated__memory_aug_recurrent_mem_tr__prompt"
UNIT = 24576
NHH = 36
WS_QKV = 0
WS_OF = 0x3800000
WS_EXP = 0x4800000
WS_P = 0x5000000
WS_M = 0x5080000
WS_FLAG = 0x5090000
F_QKV = WS_FLAG
F_CH = WS_FLAG + 0x2800
F_AT = WS_FLAG + 0x4000
F_HINT = WS_FLAG + 0x6000
WS_SIZE = 0x10000000
SENT1 = 0x7F817F81
D_TICKET = 0
D_INIT = 32
D_OVER = 36
S_WS, S_DBG, S_T0, S_T1 = 4, 8, 12, 16
P_AX, P_AWQKV, P_AWO, P_BX, P_MEM0, P_WQ, P_WK, P_WV, P_WO, P_SEG, P_OUT, P_DBG, P_WSP = [20 + 2 * i for i in range(13)]
S_WAVE, S_ROLE, S_XCC, S_SPIN = 46, 47, 48, 49
LDS_BYTES = 163840
SPIN_MAX = 400000


def srd(e, s, ptr, nbytes):
    e(f"""s_mov_b32 s{s}, s{ptr}
          s_and_b32 s{s+1}, s{ptr+1}, 0xffff
          s_mov_b32 s{s+2}, {nbytes}
          s_mov_b32 s{s+3}, 0x20000""")
```

```python
from common import *

W = sr(S_WS, 4)
DBG = sr(S_DBG, 4)
sWid, sA, sB, sC_, sD, sE, sF, sG, sH, sI, sJ, sK = range(50, 62)
S_W0, S_W1, S_W2, S_X = 64, 68, 72, 76
NEG = 0xf149f2ca


def wait_init(e, tag, tmp):
    e(f"""L_wi_{tag}:
          buffer_load_dword v{tmp}, off, {DBG}, 0 offset:{D_INIT} sc1
          s_sub_u32 s{S_SPIN}, s{S_SPIN}, 1
          s_cbranch_scc1 L_end
          v_readfirstlane_b32 s{sA}, v{tmp}
          s_and_b32 s{sA}, s{sA}, 0xffff
          s_cmp_eq_u32 s{sA}, 256
          s_cbranch_scc0 L_wi_{tag}""")


def count_in(e, tmp):
    e(f"""v_mov_b32 v{tmp}, 1
          s_mov_b64 exec, 1
          buffer_atomic_add v{tmp}, off, {DBG}, 0 offset:{D_INIT}
          s_mov_b64 exec, -1""")


def srd_sel(e, s, pa, pb, na, nb):
    e(f"""s_cselect_b32 s{s}, s{pa}, s{pb}
          s_cselect_b32 s{s+1}, s{pa+1}, s{pb+1}
          s_mov_b32 s{s+2}, {nb}
          s_cselect_b32 s{s+2}, {na}, s{s+2}
          s_mov_b32 s{s+3}, 0x20000""")


def lane_consts(e, lane, l16, sig):
    e(f"""v_and_b32 v{lane}, 63, v0
          v_lshlrev_b32 v{l16}, 4, v{lane}
          v_and_b32 v{sig}, 39, v{lane}
          v_bfe_u32 v{lane + 1}, v{lane}, 3, 1
          v_lshl_or_b32 v{sig}, v{lane + 1}, 4, v{sig}
          v_bfe_u32 v{lane + 1}, v{lane}, 4, 1
          v_lshl_or_b32 v{sig}, v{lane + 1}, 3, v{sig}
          v_lshlrev_b32 v{sig}, 4, v{sig}""")


XROW = 1040
XBUF = 32 * XROW
RING0 = 33792


def proj(e, cfg):
    lane, t1, vL16, vSig, vSrc, vTr, vXr, vT, vIn = 1, 2, 3, 4, 5, 6, 7, 8, 9
    XF, ACC, OUT = 16, 32, 80
    sHH, sSeg, sStride, sCol, sUnit, sFlag, sXb, sPrev = sC_, sD, sE, sF, sG, sH, sI, sJ
    e(f"""s_mul_i32 s{sHH}, s{sWid}, 171
          s_lshr_b32 s{sHH}, s{sHH}, 10
          s_mul_i32 s{sA}, s{sHH}, 6
          s_sub_u32 s{sSeg}, s{sWid}, s{sA}
          s_cmp_lt_u32 s{sHH}, 32""")
    srd_sel(e, S_W0, P_WQ, P_AWQKV, 0x400000, 0x180000)
    srd_sel(e, S_W1, P_WK, P_AWQKV, 0x400000, 0x180000)
    srd_sel(e, S_W2, P_WV, P_AWQKV, 0x400000, 0x180000)
    srd_sel(e, S_X, P_BX, P_AX, 0x200000, 0x200000)
    e(f"""s_mov_b32 s{sStride}, 3072
          s_cselect_b32 s{sStride}, 8192, s{sStride}
          s_cselect_b32 s{sK}, 0, 1024
          s_and_b32 s{sCol}, s{sHH}, 31
          s_lshl_b32 s{sCol}, s{sCol}, 8""")
    lane_consts(e, lane, vL16, vSig)
    e(f"""v_lshrrev_b32 v{t1}, 4, v{lane}
          v_mul_lo_u32 v{vSrc}, v{t1}, s{sStride}
          v_and_b32 v{t1}, 15, v{lane}
          v_lshl_add_u32 v{vSrc}, v{t1}, 4, v{vSrc}""")
    e(f"""v_lshrrev_b32 v{t1}, 5, v{lane}
          v_lshlrev_b32 v{vTr}, 11, v{t1}
          v_bfe_u32 v{t1}, v{lane}, 2, 2
          v_lshl_add_u32 v{vTr}, v{t1}, 8, v{vTr}
          v_bfe_u32 v{t1}, v{lane}, 4, 1
          v_lshl_add_u32 v{vTr}, v{t1}, 5, v{vTr}
          v_and_b32 v{t1}, 3, v{lane}
          v_lshl_add_u32 v{vTr}, v{t1}, 3, v{vTr}
          s_lshl_b32 s{sA}, s{S_WAVE}, 6
          v_add_u32 v{vTr}, s{sA}, v{vTr}""")
    e(f"""v_and_b32 v{t1}, 31, v{lane}
          v_mul_u32_u24 v{vXr}, {XROW}, v{t1}
          v_lshrrev_b32 v{t1}, 5, v{lane}
          v_lshl_add_u32 v{vXr}, v{t1}, 4, v{vXr}""")
    e(f"""s_lshl_b32 s{sA}, s{sHH}, 6
          s_add_u32 s{sA}, s{sA}, s{sSeg}
          s_mul_i32 s{sUnit}, s{sA}, {UNIT}
          s_lshl_b32 s{sB}, s{S_WAVE}, 11
          s_add_u32 s{sUnit}, s{sUnit}, s{sB}
          s_lshl_b32 s{sFlag}, s{sA}, 2
          s_add_u32 s{sFlag}, s{sFlag}, {F_QKV}
          s_mov_b32 s{sXb}, 0""")

    def xdma(seg_s, buf_s):
        e(f"""s_lshl_b32 s{sA}, s{seg_s}, 15
              s_lshl_b32 s{sB}, s{S_WAVE}, 13
              s_add_u32 s{sA}, s{sA}, s{sB}
              s_mul_i32 s{sB}, s{S_WAVE}, {8 * XROW}
              s_add_u32 s{sB}, s{sB}, s{buf_s}""")
        return [f"""s_add_u32 m0, s{sB}, {j * XROW}
                  s_add_u32 s3, s{sA}, {j * 1024}
                  buffer_load_dwordx4 v{vL16}, {sr(S_X, 4)}, s3 offen lds""" for j in range(8)]

    for l in xdma(sSeg, sXb):
        e(l)
    sRow = sPrev
    e(f"""s_lshl_b32 s{sA}, s{S_WAVE}, 4
          s_mul_i32 s{sRow}, s{sA}, s{sStride}
          s_add_u32 s{sRow}, s{sRow}, s{sCol}
          s_lshl_b32 s62, s{sStride}, 2
          s_lshl_b32 s63, s{S_WAVE}, 12""")
    order = [1, 2, 0]
    srds = [S_W0, S_W1, S_W2]
    dst = [('a', 0), ('a', 128), ('v', 128)]
    marks = {}

    def dma(r):
        m, b = order[r // 8], r % 8
        e(f"""s_mul_i32 s{sA}, s{sStride}, {64 * b}
              s_add_u32 s{sA}, s{sA}, s{sRow}
              s_mul_i32 s{sB}, s{sK}, {m}
              s_add_u32 s{sA}, s{sA}, s{sB}""")
        for j in range(4):
            e(f"""s_add_u32 m0, s63, {RING0 + (r % 7) * 16384 + j * 1024}
                  buffer_load_dwordx4 v{vSrc}, {sr(srds[m], 4)}, s{sA} offen lds""")
            if j < 3:
                e(f"s_add_u32 s{sA}, s{sA}, s62")
        marks[r] = e.vm[-1]

    for r in range(6):
        dma(r)
    for r in range(24):
        m, b = order[r // 8], r % 8
        e.wait(vm=len(e.vm) - 1 - e.vm.index(marks[r]), lgkm=0)
        e("s_barrier")
        if r == 0:
            e(f"s_cmp_lg_u32 s{S_WAVE}, 0\n s_cbranch_scc1 L_pj_in")
            count_in(e, vT)
            e.vm.pop()
            e.label("L_pj_in")
        if r + 6 < 24:
            dma(r + 6)
        e(f"v_add_u32 v{vT + 2}, {RING0 + (r % 7) * 16384}, v{vTr}")
        k, base = dst[m]
        for ksl in range(4):
            for z in range(2):
                e(f"ds_read_b64_tr_b16 {vr(base + 4 * (4 * b + ksl) + 2 * z, 2, k)}, v{vT + 2} offset:{(16 * ksl + 4 * z) * 256}")
    e.wait(vm=0, lgkm=0)
    wait_init(e, 'pj', vT)
    e(f"s_mov_b32 s{sPrev}, 0\n v_mov_b32 v{vIn}, 1")
    e.forget()
    e.label("L_pj_loop")
    e(f"""s_waitcnt vmcnt(6)
          s_barrier
          v_add_u32 v{vT}, s{sXb}, v{vXr}
          s_add_u32 s62, s{sSeg}, 6
          s_min_u32 s62, s62, 63
          s_sub_u32 s63, {XBUF}, s{sXb}""")
    nxt = xdma(62, 63)
    for ks in range(3):
        e(f"ds_read_b128 {vr(XF + 4 * ks, 4)}, v{vT} offset:{32 * ks}")
    for ks in range(32):
        x = vr(XF + 4 * (ks % 4), 4)
        c = [('0' if ks == 0 else vr(ACC + 16 * m, 16)) for m in range(3)]
        e(f"v_mfma_f32_32x32x16_bf16 {vr(ACC, 16)}, {vr(4 * ks, 4, 'a')}, {x}, {c[0]}")
        if ks + 3 < 32:
            e(f"ds_read_b128 {vr(XF + 4 * ((ks + 3) % 4), 4)}, v{vT} offset:{32 * (ks + 3)}")
        e(f"v_mfma_f32_32x32x16_bf16 {vr(ACC + 16, 16)}, {vr(128 + 4 * ks, 4, 'a')}, {x}, {c[1]}")
        if ks < 8:
            e(nxt[ks])
        if ks == 20:
            e.comment("the previous segment's stores of every wave are complete behind this barrier: raise its flag")
            e(f"""s_waitcnt vmcnt(8)
                  s_barrier
                  s_cmp_eq_u32 s{sPrev}, 0
                  s_cbranch_scc1 L_pj_nf
                  s_mov_b64 exec, 1
                  buffer_store_dword v{vIn}, off, {W}, s{sPrev} sc1
                  s_mov_b64 exec, -1
                  L_pj_nf:""")
            e.vm.pop()
        e(f"v_mfma_f32_32x32x16_bf16 {vr(ACC + 32, 16)}, {x}, {vr(128 + 4 * ks, 4)}, {c[2]}")
    for m in range(3):
        for j in range(8):
            e(f"v_cvt_pk_bf16_f32 v{OUT + 8 * m + j}, v{ACC + 16 * m + 2 * j}, v{ACC + 16 * m + 2 * j + 1}")
        a = vSig if m == 1 else vL16
        e(f"""s_add_u32 s{sA}, s{sUnit}, {8192 * m}
              buffer_store_dwordx4 {vr(OUT + 8 * m, 4)}, v{a}, {W}, s{sA} offen sc1
              buffer_store_dwordx4 {vr(OUT + 8 * m + 4, 4)}, v{a}, {W}, s{sA} offen offset:1024 sc1""")
    e(f"""s_cmp_eq_u32 s{S_WAVE}, 0
          s_cselect_b32 s{sPrev}, s{sFlag}, 0
          s_add_u32 s{sFlag}, s{sFlag}, 24
          s_add_u32 s{sUnit}, s{sUnit}, {6 * UNIT}
          s_sub_u32 s{sXb}, {XBUF}, s{sXb}
          s_add_u32 s{sSeg}, s{sSeg}, 6
          s_cmp_lt_u32 s{sSeg}, 64
          s_cbranch_scc1 L_pj_loop
          s_waitcnt vmcnt(0)
          s_barrier
          s_cmp_eq_u32 s{sPrev}, 0
          s_cbranch_scc1 L_phase2
          s_mov_b64 exec, 1
          buffer_store_dword v{vIn}, off, {W}, s{sPrev} sc1
          s_mov_b64 exec, -1""")


def poll_ge(e, tag, tmp, voff, soff, cmpv, nl):
    off = f"v{voff}" if voff is not None else "off"
    e(f"""L_pg_{tag}:
          buffer_load_dword v{tmp}, {off}, {W}, {soff} {'offen' if voff is not None else ''} sc1
          s_sub_u32 s{S_SPIN}, s{S_SPIN}, 1
          s_cbranch_scc1 L_end
          v_cmp_gt_u32 vcc, {cmpv}, v{tmp}
          s_and_b32 vcc_lo, vcc_lo, {(1 << nl) - 1}
          s_cbranch_scc0 L_pk_{tag}
          s_sleep 4
          s_branch L_pg_{tag}
          L_pk_{tag}:""")


def softmax_tail(e, vals, m0, m1, sC):
    v = list(vals)
    e(f"v_max3_f32 v{m0}, v{v[0]}, v{v[1]}, v{v[2]}")
    k = 3
    while k + 1 < len(v):
        e(f"v_max3_f32 v{m0}, v{m0}, v{v[k]}, v{v[k + 1]}"); k += 2
    if k < len(v):
        e(f"v_max_f32 v{m0}, v{m0}, v{v[k]}")
    e(f"""v_mov_b32 v{m1}, v{m0}
          v_permlane32_swap_b32 v{m0}, v{m1}
          v_max_f32 v{m0}, v{m0}, v{m1}
          v_mul_f32 v{m0}, s{sC}, v{m0}""")
    for r in v:
        e(f"v_fma_f32 v{r}, v{r}, s{sC}, -v{m0}")
    for r in v:
        e(f"v_exp_f32 v{r}, v{r}")
    e(f"v_add_f32 v{m0}, v{v[0]}, v{v[1]}\n v_add_f32 v{m1}, v{v[2]}, v{v[3]}")
    for k in range(4, len(v), 2):
        e(f"v_add_f32 v{m0}, v{m0}, v{v[k]}\n v_add_f32 v{m1}, v{m1}, v{v[k + 1]}")
    e(f"""v_add_f32 v{m0}, v{m0}, v{m1}
          v_mov_b32 v{m1}, v{m0}
          v_permlane32_swap_b32 v{m0}, v{m1}
          v_add_f32 v{m0}, v{m0}, v{m1}
          v_rcp_f32 v{m0}, v{m0}""")


def attn_b(e, cfg):
    lane, t1, vL16, vSig, vVm, vKm, vT, m0, m1, vOne, vF = range(1, 12)
    BIAS, Q, K, V, S, D0, D1, KM, VM, PX, PMm, O = 16, 32, 64, 96, 128, 144, 160, 176, 192, 208, 216, 128
    sSeg, sUnit, sExp, sOut, sFq, sFc, sFa, sCc, sLds = sC_, sD, sE, sF, sG, sH, sI, sJ, sK
    h = sWid
    lane_consts(e, lane, vL16, vSig)
    e(f"""v_and_b32 v{t1}, 31, v{lane}
          v_lshrrev_b32 v{vT}, 5, v{lane}
          v_lshlrev_b32 v{vT}, 2, v{vT}
          v_sub_u32 v{t1}, v{t1}, v{vT}
          v_mov_b32 v{vT}, {NEG}""")
    for r in range(16):
        e(f"v_cmp_gt_i32 vcc, {8 * (r >> 2) + (r & 3)}, v{t1}\n v_cndmask_b32 v{BIAS + r}, 0, v{vT}, vcc")
    e(f"""v_lshrrev_b32 v{t1}, 5, v{lane}
          v_lshlrev_b32 v{vVm}, 8, v{t1}
          v_and_b32 v{t1}, 15, v{lane}
          v_lshl_add_u32 v{vVm}, v{t1}, 4, v{vVm}
          v_bfe_u32 v{t1}, v{lane}, 4, 1
          v_lshl_add_u32 v{vVm}, v{t1}, 2, v{vVm}
          v_add_u32 v{vVm}, 8, v{vVm}""")
    e(f"""s_lshl_b32 s{sLds}, s{S_WAVE}, 12
          v_and_b32 v{t1}, 3, v{lane}
          v_lshlrev_b32 v{vKm}, 8, v{t1}
          v_lshrrev_b32 v{t1}, 5, v{lane}
          v_lshl_add_u32 v{vKm}, v{t1}, 6, v{vKm}
          v_bfe_u32 v{t1}, v{lane}, 2, 2
          v_lshl_add_u32 v{vKm}, v{t1}, 4, v{vKm}
          v_add_u32 v{vKm}, s{sLds}, v{vKm}
          v_lshlrev_b32 v{vF}, 2, v{lane}
          v_mov_b32 v{vOne}, 1""")
    for wc in range(4):
        e(f"v_mov_b64 {vr(VM + 4 * wc + 2, 2)}, 0")
    e(f"v_mov_b64 {vr(PMm + 2, 2)}, 0")
    e(f"""s_mov_b32 s{sSeg}, s{S_WAVE}
          s_lshl_b32 s{sA}, s{h}, 6
          s_add_u32 s{sA}, s{sA}, s{sSeg}
          s_mul_i32 s{sUnit}, s{sA}, {UNIT}
          s_lshl_b32 s{sExp}, s{sA}, 12
          s_add_u32 s{sExp}, s{sExp}, {WS_EXP}
          s_lshl_b32 s{sFq}, s{sA}, 2
          s_add_u32 s{sFq}, s{sFq}, {F_QKV}
          s_lshl_b32 s{sFc}, s{h}, 7
          s_add_u32 s{sFc}, s{sFc}, {F_CH}
          s_lshl_b32 s{sA}, s{sSeg}, 5
          s_add_u32 s{sA}, s{sA}, s{h}
          s_lshl_b32 s{sOut}, s{sA}, 13
          s_add_u32 s{sOut}, s{sOut}, {WS_OF}
          s_lshl_b32 s{sFa}, s{sA}, 2
          s_add_u32 s{sFa}, s{sFa}, {F_AT}
          s_mov_b32 s{sCc}, 0x3e0293ee""")
    e.wait(vm=0, lgkm=0)
    e.label("L_ab_loop")
    poll_ge(e, 'abq', vT, None, f"s{sFq}", 1, 1)
    e(f"s_add_u32 s{sA}, s{sUnit}, 4096")
    for base, a, off in ((K, vSig, 8192), (Q, vL16, 0), (V, vL16, 16384)):
        e(f"s_add_u32 s{sA}, s{sUnit}, {off}\n s_add_u32 s{sB}, s{sUnit}, {off + 4096}")
        for j in range(8):
            e(f"buffer_load_dwordx4 {vr(base + 4 * j, 4)}, v{a}, {W}, s{sA if j < 4 else sB} offen offset:{1024 * (j & 3)} sc1")
    for j in range(8):
        c = vr(BIAS, 16) if j == 0 else vr(S, 16)
        e(f"v_mfma_f32_32x32x16_bf16 {vr(S, 16)}, {vr(K + 4 * j, 4)}, {vr(Q + 4 * j, 4)}, {c}")
    e(f"s_add_u32 s{sA}, s{sSeg}, 1")
    e.wait(vm=0)
    poll_ge(e, 'abc', vT, vF, f"s{sFc}", f"s{sA}", 4)
    e(f"s_mov_b32 m0, s{sLds}")
    for j in range(4):
        e(f"buffer_load_dwordx4 v{vL16}, {W}, s{sExp} offen offset:{1024 * j} sc1 lds")
    for wc in range(4):
        for a in range(2):
            e(f"buffer_load_dword v{VM + 4 * wc + a}, v{vVm}, {W}, s{sExp} offen offset:{1024 * wc + 512 * a} sc1")
    e.wait(vm=8)
    for wc in range(4):
        for z in range(2):
            e(f"ds_read_b64_tr_b16 {vr(KM + 4 * wc + 2 * z, 2)}, v{vKm} offset:{1024 * wc + 128 * z}")
    for wc in range(4):
        for ab, D in ((0, D0), (1, D1)):
            c = '0' if wc == 0 else vr(D, 16)
            e(f"v_mfma_f32_32x32x16_bf16 {vr(D, 16)}, {vr(KM + 4 * wc, 4)}, {vr(Q + 4 * (2 * wc + ab), 4)}, {c}")
    sm = [D0, D0 + 1, D0 + 4, D0 + 5]
    for r in sm:
        e(f"v_add_f32 v{r}, v{r}, v{r - D0 + D1 + 2}")
    softmax_tail(e, [S + r for r in range(16)] + sm, m0, m1, sCc)
    for j in range(8):
        e(f"v_cvt_pk_bf16_f32 v{PX + j}, v{S + 2 * j}, v{S + 2 * j + 1}")
    e(f"v_cvt_pk_bf16_f32 v{PMm}, v{D0}, v{D0 + 1}\n v_cvt_pk_bf16_f32 v{PMm + 1}, v{D0 + 4}, v{D0 + 5}")
    for wc in range(4):
        o = vr(O + 16 * wc, 16)
        e(f"""v_mfma_f32_32x32x16_bf16 {o}, {vr(V + 8 * wc, 4)}, {vr(PX, 4)}, 0
              v_mfma_f32_32x32x16_bf16 {o}, {vr(V + 8 * wc + 4, 4)}, {vr(PX + 4, 4)}, {o}
              v_mfma_f32_32x32x16_bf16 {o}, {vr(VM + 4 * wc, 4)}, {vr(PMm, 4)}, {o}""")
    e(f"s_add_u32 s{sB}, s{sOut}, 4096")
    for wc in range(4):
        o = O + 16 * wc
        for j in range(16):
            e(f"v_mul_f32 v{o + j}, v{o + j}, v{m0}")
        for j in range(8):
            e(f"v_cvt_pk_bf16_f32 v{Q + 8 * wc + j}, v{o + 2 * j}, v{o + 2 * j + 1}")
        for ab in range(2):
            j = 2 * wc + ab
            e(f"buffer_store_dwordx4 {vr(Q + 4 * j, 4)}, v{vL16}, {W}, s{sOut if j < 4 else sB} offen offset:{1024 * (j & 3)} sc1")
    e(f"""s_waitcnt vmcnt(0)
          s_mov_b64 exec, 1
          buffer_store_dword v{vOne}, off, {W}, s{sFa} sc1
          s_mov_b64 exec, -1
          s_add_u32 s{sUnit}, s{sUnit}, {4 * UNIT}
          s_add_u32 s{sExp}, s{sExp}, {4 * 4096}
          s_add_u32 s{sFq}, s{sFq}, 16
          s_add_u32 s{sOut}, s{sOut}, {4 * 32 * 8192}
          s_add_u32 s{sFa}, s{sFa}, {4 * 128}
          s_add_u32 s{sSeg}, s{sSeg}, 4
          s_cmp_lt_u32 s{sSeg}, 64
          s_cbranch_scc1 L_ab_loop
          s_branch L_end""")


def out_b(e, cfg):
    lane, t1, vL16, vSrc, vTr, vO, vSt, vT, vF, vRw, vRr = range(1, 12)
    ACC, RD = 16, 32
    sU, sSl, sRow, sLds, sOf, sFa, sTog = sC_, sD, sE, sF, sG, sH, sI
    srd(e, S_W0, P_WO, 0x400000)
    srd(e, S_W1, P_OUT, 0x400000)
    e(f"""s_sub_u32 s{sU}, s{sWid}, 64
          s_and_b32 s{sSl}, s{sU}, 15
          s_lshr_b32 s{sU}, s{sU}, 4
          v_and_b32 v{lane}, 63, v0
          v_lshlrev_b32 v{vL16}, 4, v{lane}
          v_lshlrev_b32 v{vF}, 2, v{lane}""")
    e(f"""v_lshrrev_b32 v{t1}, 2, v{lane}
          v_lshlrev_b32 v{vSrc}, 10, v{t1}
          v_and_b32 v{t1}, 3, v{lane}
          v_lshl_add_u32 v{vSrc}, v{t1}, 4, v{vSrc}
          s_lshl_b32 s{sRow}, s{S_WAVE}, 20
          s_lshl_b32 s{sA}, s{sSl}, 6
          s_add_u32 s{sRow}, s{sRow}, s{sA}
          s_lshl_b32 s{sLds}, s{S_WAVE}, 15""")
    e(f"""v_lshlrev_b32 v{vTr}, 3, v{t1}
          v_lshrrev_b32 v{t1}, 5, v{lane}
          v_lshl_add_u32 v{vTr}, v{t1}, 10, v{vTr}
          v_bfe_u32 v{t1}, v{lane}, 2, 3
          v_lshl_add_u32 v{vTr}, v{t1}, 6, v{vTr}
          v_add_u32 v{vTr}, s{sLds}, v{vTr}""")
    e(f"""v_lshrrev_b32 v{t1}, 4, v{lane}
          v_lshlrev_b32 v{vO}, 9, v{t1}
          v_lshlrev_b32 v{vSt}, 3, v{t1}
          v_and_b32 v{t1}, 15, v{lane}
          v_lshl_add_u32 v{vO}, v{t1}, 4, v{vO}
          v_lshl_add_u32 v{vSt}, v{t1}, 11, v{vSt}
          s_lshl_b32 s{sA}, s{S_WAVE}, 11
          s_add_u32 s{sA}, s{sA}, 131072
          v_add_u32 v{vRw}, s{sA}, v{vL16}
          s_lshl_b32 s{sA}, s{S_WAVE}, 10
          s_add_u32 s{sA}, s{sA}, 131072
          v_add_u32 v{vRr}, s{sA}, v{vL16}""")
    e.wait(vm=0, lgkm=0)
    e("s_barrier")
    marks = {}

    def dma(ks):
        for j in range(2):
            e(f"""s_add_u32 m0, s{sLds}, {(ks % 16) * 2048 + j * 1024}
                  s_add_u32 s{sA}, s{sRow}, {(32 * ks + 16 * j) * 1024}
                  buffer_load_dwordx4 v{vSrc}, {sr(S_W0, 4)}, s{sA} offen lds""")
        marks[ks] = e.vm[-1]

    for ks in range(15):
        dma(ks)
    for ks in range(32):
        e.wait(vm=len(e.vm) - 1 - e.vm.index(marks[ks]), lgkm=0)
        if ks + 15 < 32:
            dma(ks + 15)
        for dt in range(2):
            for z in range(2):
                e(f"ds_read_b64_tr_b16 {vr(8 * ks + 4 * dt + 2 * z, 2, 'a')}, v{vTr} offset:{(ks % 16) * 2048 + z * 512 + dt * 32}")
    e.wait(vm=0, lgkm=0)
    e(f"s_mov_b32 s{sTog}, 0")
    e.label("L_ob_loop")
    e(f"""s_lshr_b32 s{sA}, s{sU}, 1
          s_lshl_b32 s{sA}, s{sA}, 5
          s_lshl_b32 s{sB}, s{S_WAVE}, 3
          s_add_u32 s{sA}, s{sA}, s{sB}
          s_lshl_b32 s{sFa}, s{sA}, 2
          s_add_u32 s{sFa}, s{sFa}, {F_AT}
          s_lshl_b32 s{sOf}, s{sA}, 13
          s_and_b32 s{sB}, s{sU}, 1
          s_lshl_b32 s{sB}, s{sB}, 8
          s_add_u32 s{sOf}, s{sOf}, s{sB}
          s_add_u32 s{sOf}, s{sOf}, {WS_OF}""")
    poll_ge(e, 'ob', vT, vF, f"s{sFa}", 1, 8)
    for ks in range(32):
        if ks % 2 == 0:
            e(f"s_add_u32 s{sA}, s{sOf}, {ks * 2048}")
        e(f"buffer_load_dwordx4 {vr(128 + 4 * ks, 4)}, v{vO}, {W}, s{sA} offen offset:{(ks & 1) * 2048} sc1")
    for ks in range(32):
        for dt in range(2):
            c = '0' if ks == 0 else vr(ACC + 4 * dt, 4)
            e(f"v_mfma_f32_16x16x32_bf16 {vr(ACC + 4 * dt, 4)}, {vr(8 * ks + 4 * dt, 4, 'a')}, {vr(128 + 4 * ks, 4)}, {c}")
    e(f"""v_add_u32 v{vT}, s{sTog}, v{vRw}
          ds_write_b128 v{vT}, {vr(ACC, 4)}
          ds_write_b128 v{vT}, {vr(ACC + 4, 4)} offset:1024""")
    e.barrier()
    e(f"""s_cmp_ge_u32 s{S_WAVE}, 2
          s_cbranch_scc1 L_ob_next
          v_add_u32 v{vT}, s{sTog}, v{vRr}""")
    for p in range(4):
        e(f"ds_read_b128 {vr(RD + 4 * p, 4)}, v{vT} offset:{2048 * p}")
    for r in range(4):
        e(f"""v_add_f32 v{RD + r}, v{RD + r}, v{RD + 4 + r}
              v_add_f32 v{RD + 8 + r}, v{RD + 8 + r}, v{RD + 12 + r}
              v_add_f32 v{RD + r}, v{RD + r}, v{RD + 8 + r}""")
    e(f"""v_cvt_pk_bf16_f32 v{RD}, v{RD}, v{RD + 1}
          v_cvt_pk_bf16_f32 v{RD + 1}, v{RD + 2}, v{RD + 3}
          s_lshl_b32 s{sA}, s{sU}, 15
          s_lshl_b32 s{sB}, s{sSl}, 6
          s_add_u32 s{sA}, s{sA}, s{sB}
          s_lshl_b32 s{sB}, s{S_WAVE}, 5
          s_add_u32 s{sA}, s{sA}, s{sB}
          buffer_store_dwordx2 {vr(RD, 2)}, v{vSt}, {sr(S_W1, 4)}, s{sA} offen offset:1024
          L_ob_next:
          s_xor_b32 s{sTog}, s{sTog}, 8192
          s_add_u32 s{sU}, s{sU}, 10
          s_cmp_lt_u32 s{sU}, 128
          s_cbranch_scc1 L_ob_loop
          s_branch L_end""")


def part_a(e, cfg):
    lane, t1, vL16, vSig, vSrc, vTr, vT, m0, m1, vSt, vW, vNeg = range(1, 13)
    BC, BP, BPX = 16, 32, 48
    SC, SP, O, PX = 64, 80, 96, 112
    Q, KC, KP, VC, VP = 128, 160, 192, 224, 48
    sSeg, sCh, sUnit, sPrevU, sFq, sCc, sRow = sC_, sD, sE, sF, sG, sH, sI
    srd(e, S_W0, P_AWO, 0x80000)
    srd(e, S_W1, P_OUT, 0x400000)
    lane_consts(e, lane, vL16, vSig)
    e(f"""s_sub_u32 s{sSeg}, s{sWid}, 32
          s_and_b32 s{sCh}, s{sSeg}, 1
          s_lshr_b32 s{sSeg}, s{sSeg}, 1
          s_mov_b32 s{sCc}, 0x3eb8aa3b""")
    e(f"""v_and_b32 v{t1}, 31, v{lane}
          v_lshrrev_b32 v{vT}, 5, v{lane}
          v_lshlrev_b32 v{vT}, 2, v{vT}
          v_sub_u32 v{t1}, v{t1}, v{vT}
          v_mov_b32 v{vNeg}, {NEG}""")
    for base, add in ((BC, 0), (BP, 32)):
        for r in range(16):
            e(f"""v_add_u32 v{vT}, {add - 8 * (r >> 2) - (r & 3)}, v{t1}
                  v_and_b32 v{vT}, 0xfffffff1, v{vT}
                  v_cmp_ne_u32 vcc, 0, v{vT}
                  v_cndmask_b32 v{base + r}, 0, v{vNeg}, vcc""")
    e(f"""v_lshrrev_b32 v{t1}, 5, v{lane}
          v_lshlrev_b32 v{vSrc}, 10, v{t1}
          v_and_b32 v{t1}, 31, v{lane}
          v_lshl_add_u32 v{vSrc}, v{t1}, 4, v{vSrc}
          v_lshlrev_b32 v{vSt}, 11, v{t1}
          s_lshl_b32 s{sRow}, s{S_WAVE}, 13
          s_lshl_b32 s{sA}, s{sCh}, 9
          s_add_u32 s{sRow}, s{sRow}, s{sA}
          s_lshl_b32 s63, s{S_WAVE}, 12""")
    e(f"""v_lshrrev_b32 v{t1}, 5, v{lane}
          v_lshlrev_b32 v{vTr}, 11, v{t1}
          v_lshl_add_u32 v{vSt}, v{t1}, 3, v{vSt}
          v_bfe_u32 v{t1}, v{lane}, 2, 2
          v_lshl_add_u32 v{vTr}, v{t1}, 9, v{vTr}
          v_bfe_u32 v{t1}, v{lane}, 4, 1
          v_lshl_add_u32 v{vTr}, v{t1}, 5, v{vTr}
          v_and_b32 v{t1}, 3, v{lane}
          v_lshl_add_u32 v{vTr}, v{t1}, 3, v{vTr}
          s_lshl_b32 s{sA}, s{S_WAVE}, 7
          v_add_u32 v{vTr}, s{sA}, v{vTr}
          s_lshl_b32 s{sA}, s{S_WAVE}, 13
          v_add_u32 v{vW}, s{sA}, v{vL16}""")
    e.wait(vm=0, lgkm=0)
    e("s_barrier")
    marks = {}

    def dma(r):
        for j in range(4):
            e(f"""s_add_u32 m0, s63, {(r % 8) * 16384 + j * 1024}
                  s_add_u32 s{sA}, s{sRow}, {(32 * r + 2 * j) * 1024}
                  buffer_load_dwordx4 v{vSrc}, {sr(S_W0, 4)}, s{sA} offen lds""")
        marks[r] = e.vm[-1]

    for r in range(7):
        dma(r)
    for r in range(16):
        e.wait(vm=len(e.vm) - 1 - e.vm.index(marks[r]), lgkm=0)
        e("s_barrier")
        if r + 7 < 16:
            dma(r + 7)
        e(f"v_add_u32 v{vT}, {(r % 8) * 16384}, v{vTr}")
        for hl in range(2):
            for dt in range(2):
                for z in range(2):
                    e(f"ds_read_b64_tr_b16 {vr(8 * (2 * r + hl) + 4 * dt + 2 * z, 2, 'a')}, v{vT} offset:{(16 * hl + 8 * z) * 512 + dt * 64}")
    e.wait(vm=0, lgkm=0)
    e.label("L_pa_loop")
    e(f"""s_add_u32 s{sA}, s{S_WAVE}, 32
          s_lshl_b32 s{sA}, s{sA}, 6
          s_add_u32 s{sA}, s{sA}, s{sSeg}
          s_mul_i32 s{sUnit}, s{sA}, {UNIT}
          s_lshl_b32 s{sFq}, s{sA}, 2
          s_add_u32 s{sFq}, s{sFq}, {F_QKV}
          s_cmp_eq_u32 s{sSeg}, 0
          s_cselect_b32 s{sA}, 0, {UNIT}
          s_cselect_b32 s{sB}, 0, 4
          s_cselect_b64 vcc, -1, 0
          s_sub_u32 s{sPrevU}, s{sUnit}, s{sA}
          s_sub_u32 s62, s{sFq}, s{sB}""")
    for r in range(8, 16):
        e(f"v_cndmask_b32 v{BP + r - 8}, v{BP + r}, v{vNeg}, vcc")
    poll_ge(e, 'pa1', vT, None, f"s{sFq}", 1, 1)
    poll_ge(e, 'pa2', vT, None, "s62", 1, 1)
    for base, a, u, off in ((Q, vL16, sUnit, 0), (KC, vSig, sUnit, 8192), (KP, vSig, sPrevU, 8192), (VC, vL16, sUnit, 16384)):
        e(f"s_add_u32 s{sA}, s{u}, {off}\n s_add_u32 s{sB}, s{u}, {off + 4096}")
        for j in range(8):
            e(f"buffer_load_dwordx4 {vr(base + 4 * j, 4)}, v{a}, {W}, s{sA if j < 4 else sB} offen offset:{1024 * (j & 3)} sc1")
    e(f"s_add_u32 s{sA}, s{sPrevU}, {16384 + 1024}\n s_add_u32 s{sB}, s{sPrevU}, {16384 + 1024 + 4096}")
    for wc in range(4):
        e(f"buffer_load_dwordx4 {vr(VP + 4 * wc, 4)}, v{vL16}, {W}, s{sA if wc < 2 else sB} offen offset:{2048 * (wc & 1)} sc1")
    e("s_barrier")
    for j in range(8):
        wc, ab = j >> 1, j & 1
        e(f"""v_mfma_f32_32x32x16_bf16 {vr(SC, 16)}, {vr(KC + 4 * j, 4)}, {vr(Q + 4 * j, 4)}, {vr(BC, 16)}
              v_mfma_f32_32x32x16_bf16 {vr(SP, 16)}, {vr(KP + 4 * j, 4)}, {vr(Q + 4 * j, 4)}, {vr(BP - 8, 16)}""")
        softmax_tail(e, [SC + r for r in range(16)] + [SP + r for r in range(8, 16)], m0, m1, sCc)
        for k in range(8):
            e(f"v_cvt_pk_bf16_f32 v{PX + k}, v{SC + 2 * k}, v{SC + 2 * k + 1}")
        for k in range(4):
            e(f"v_cvt_pk_bf16_f32 v{PX + 8 + k}, v{SP + 8 + 2 * k}, v{SP + 8 + 2 * k + 1}")
        o = vr(O, 16)
        e(f"""v_mfma_f32_32x32x16_bf16 {o}, {vr(VC + 8 * wc, 4)}, {vr(PX, 4)}, 0
              v_mfma_f32_32x32x16_bf16 {o}, {vr(VC + 8 * wc + 4, 4)}, {vr(PX + 4, 4)}, {o}
              v_mfma_f32_32x32x16_bf16 {o}, {vr(VP + 4 * wc, 4)}, {vr(PX + 8, 4)}, {o}""")
        for k in range(8):
            e(f"v_mul_f32 v{O + 8 * ab + k}, v{O + 8 * ab + k}, v{m0}")
        for k in range(4):
            e(f"v_cvt_pk_bf16_f32 v{124 + k}, v{O + 8 * ab + 2 * k}, v{O + 8 * ab + 2 * k + 1}")
        e(f"ds_write_b128 v{vW}, {vr(124, 4)} offset:{1024 * j}")
    e.barrier()
    for hd in range(32):
        e(f"ds_read_b128 {vr(128 + 4 * hd, 4)}, v{vL16} offset:{1024 * hd}")
        if hd >= 8:
            k = hd - 8
            for dt in range(2):
                c = '0' if k == 0 else vr(SC + 16 * dt, 16)
                e(f"v_mfma_f32_32x32x16_bf16 {vr(SC + 16 * dt, 16)}, {vr(8 * k + 4 * dt, 4, 'a')}, {vr(128 + 4 * k, 4)}, {c}")
    for k in range(24, 32):
        for dt in range(2):
            e(f"v_mfma_f32_32x32x16_bf16 {vr(SC + 16 * dt, 16)}, {vr(8 * k + 4 * dt, 4, 'a')}, {vr(128 + 4 * k, 4)}, {vr(SC + 16 * dt, 16)}")
    e(f"""s_lshl_b32 s{sA}, s{sSeg}, 16
          s_lshl_b32 s{sB}, s{sCh}, 9
          s_add_u32 s{sA}, s{sA}, s{sB}
          s_lshl_b32 s{sB}, s{S_WAVE}, 7
          s_add_u32 s{sA}, s{sA}, s{sB}""")
    for dt in range(2):
        for a in range(4):
            r = SC + 16 * dt + 4 * a
            d = O + 2 * (4 * dt + a)
            e(f"""v_cvt_pk_bf16_f32 v{d}, v{r}, v{r + 1}
                  v_cvt_pk_bf16_f32 v{d + 1}, v{r + 2}, v{r + 3}
                  buffer_store_dwordx2 {vr(d, 2)}, v{vSt}, {sr(S_W1, 4)}, s{sA} offen offset:{64 * dt + 16 * a}""")
    e(f"""s_add_u32 s{sSeg}, s{sSeg}, 16
          s_cmp_lt_u32 s{sSeg}, 64
          s_cbranch_scc1 L_pa_loop
          s_branch L_end""")


def worker(e, cfg):
    e(f"""s_sub_u32 s{sWid}, s{S_ROLE}, 32
          s_cmp_lt_u32 s{sWid}, 216
          s_cbranch_scc1 L_proj""")
    st = e.state()
    e(f"s_cmp_lg_u32 s{S_WAVE}, 0\n s_cbranch_scc1 L_sp_in\n s_waitcnt vmcnt(0)")
    count_in(e, 2)
    e.label("L_sp_in")
    wait_init(e, 'sp', 3)
    e("s_branch L_phase2")
    e.label("L_proj"); e.set_state(st)
    proj(e, cfg)
    e.label("L_phase2")
    e(f"""s_cmp_lt_u32 s{sWid}, 32
          s_cbranch_scc1 L_attn_b
          s_cmp_lt_u32 s{sWid}, 64
          s_cbranch_scc1 L_part_a""")
    st = e.state()
    out_b(e, cfg)
    e.label("L_attn_b"); e.set_state(st)
    attn_b(e, cfg)
    e.label("L_part_a"); e.set_state(st)
    part_a(e, cfg)
```

```python
import sys
from common import *
import chain as CH

HEADER = open('cdna_kernels/' + NAME + '.s.ref').read().split('; Override launch')[0]


def prologue(e, cfg):
    e(f"""s_cmp_ge_u32 s2, 256
          s_cbranch_scc1 L_end""")
    if cfg.get('diag'):
        e("s_memrealtime s[94:95]")
    e(f"""s_load_dwordx16 s[20:35], s[0:1], 0
          s_load_dwordx8 s[36:43], s[0:1], 64
          s_load_dwordx2 s[44:45], s[0:1], 96
          s_getreg_b32 s{S_XCC}, hwreg(HW_REG_XCC_ID, 0, 3)
          v_lshrrev_b32 v1, 6, v0
          v_readfirstlane_b32 s{S_WAVE}, v1
          s_mov_b32 s{S_SPIN}, {SPIN_MAX}
          s_waitcnt lgkmcnt(0)""")
    srd(e, S_WS, P_WSP, WS_SIZE)
    srd(e, S_DBG, P_DBG, 256)
    e(f"""s_cmp_lg_u32 s{S_WAVE}, 0
          s_cbranch_scc1 L_role_wait
          s_lshl_b32 s50, s{S_XCC}, 2
          v_mov_b32 v2, 1
          s_mov_b64 exec, 1
          buffer_atomic_add v2, off, {sr(S_DBG, 4)}, s50 sc0
          s_mov_b64 exec, 0xffffffff
          v_mov_b32 v3, 0
          v_lshlrev_b32 v4, 2, v0
          s_lshl_b32 s51, s2, 7
          s_add_u32 s51, s51, {WS_FLAG}
          buffer_store_dword v3, v4, {sr(S_WS, 4)}, s51 offen sc1
          s_mov_b64 exec, -1
          v_readfirstlane_b32 s52, v2
          s_lshl_b32 s53, s{S_XCC}, 5
          s_add_u32 s53, s53, s52
          s_cmp_lt_u32 s52, 32
          s_cbranch_scc1 L_role_got""")
    e(f"""v_mov_b32 v2, 1
          s_mov_b64 exec, 1
          buffer_atomic_add v2, off, {sr(S_DBG, 4)}, 0 offset:{D_OVER} sc0
          s_mov_b64 exec, -1
          v_readfirstlane_b32 s52, v2
          L_role_poll:
          buffer_load_dwordx4 v[4:7], off, {sr(S_DBG, 4)}, 0 sc1
          buffer_load_dwordx4 v[8:11], off, {sr(S_DBG, 4)}, 0 offset:16 sc1
          s_sub_u32 s{S_SPIN}, s{S_SPIN}, 1
          s_cbranch_scc1 L_end
          s_mov_b32 s62, 0""")
    for j in range(8):
        e(f"v_readfirstlane_b32 s{54 + j}, v{4 + j}\n s_add_u32 s62, s62, s{54 + j}")
    e("s_cmp_eq_u32 s62, 256\n s_cbranch_scc0 L_role_poll")
    for j in range(8):
        e(f"""s_min_u32 s62, s{54 + j}, 32
              s_add_u32 s53, s62, s52
              s_add_u32 s53, s53, {32 * j}
              s_sub_u32 s62, 32, s62
              s_cmp_lt_u32 s52, s62
              s_cbranch_scc1 L_role_got
              s_sub_u32 s52, s52, s62""")
    e(f"""s_branch L_end
          L_role_got:
          v_mov_b32 v2, s53
          v_mov_b32 v3, 0
          ds_write_b32 v3, v2
          s_waitcnt lgkmcnt(0)
          L_role_wait:
          s_barrier
          v_mov_b32 v3, 0
          ds_read_b32 v2, v3
          v_readfirstlane_b32 s{S_ROLE}, v2
          s_barrier
          s_and_b32 s{S_ROLE}, s{S_ROLE}, 255""")


def fake_worker(e, cfg):
    e(f"""s_cmp_lg_u32 s{S_WAVE}, 0
          s_cbranch_scc1 L_end
          s_waitcnt vmcnt(0)
          v_mov_b32 v2, 1
          s_mov_b64 exec, 1
          buffer_atomic_add v2, off, {sr(S_DBG, 4)}, 0 offset:{D_INIT}
          s_mov_b64 exec, -1
          s_cmp_ge_u32 s{S_ROLE}, {32 + NHH}
          s_cbranch_scc1 L_end
          L_fw_poll:
          buffer_load_dword v3, off, {sr(S_DBG, 4)}, 0 offset:{D_INIT} sc1
          s_sub_u32 s{S_SPIN}, s{S_SPIN}, 1
          s_cbranch_scc1 L_end
          v_readfirstlane_b32 s50, v3
          s_and_b32 s50, s50, 0xffff
          s_cmp_eq_u32 s50, 256
          s_cbranch_scc0 L_fw_poll
          s_sub_u32 s50, s{S_ROLE}, 32
          s_lshl_b32 s50, s50, 8
          s_add_u32 s50, s50, {F_QKV}
          v_mov_b32 v2, 1
          v_lshlrev_b32 v4, 2, v0
          buffer_store_dword v2, v4, {sr(S_WS, 4)}, s50 offen sc1
          s_waitcnt vmcnt(0)
          s_branch L_end""")


def build(cfg):
    e = Emitter()
    prologue(e, cfg)
    e(f"s_cmp_ge_u32 s{S_ROLE}, 32\n s_cbranch_scc1 L_worker")
    st = e.state()
    CH.chain(e, cfg)
    e.label("L_worker"); e.set_state(st)
    if cfg.get('fake_proj'):
        fake_worker(e, cfg)
    else:
        import workers
        workers.worker(e, cfg)
    e.label("L_end")
    K = NAME + "_kernel"
    return HEADER + f"""; @launch grid=(256,1,1) block=(256,1,1) lds={LDS_BYTES}
.amdgcn_target "amdgcn-amd-amdhsa--gfx950"
.text
.globl {K}
.p2align 8
.type {K},@function
{K}:
""" + e.text() + f"""  s_endpgm
.section .rodata,"a"
.p2align 6
.amdhsa_kernel {K}
  .amdhsa_next_free_vgpr 512
  .amdhsa_next_free_sgpr 102
  .amdhsa_accum_offset 256
  .amdhsa_group_segment_fixed_size 0
  .amdhsa_kernarg_size 104
  .amdhsa_user_sgpr_count 2
  .amdhsa_user_sgpr_kernarg_segment_ptr 1
  .amdhsa_system_sgpr_workgroup_id_x 1
.end_amdhsa_kernel
"""


if __name__ == '__main__':
    out = sys.argv[1]
    cfg = eval(sys.argv[2]) if len(sys.argv) > 2 else {}
    open(out, 'w').write(build(cfg))
```

```python
import re

REG_RE = re.compile(r'^(-|abs\()?([vas])(\d+)\)?$')
RNG_RE = re.compile(r'^(-)?([vas])\[(\d+):(\d+)\]$')
TRANS = ('v_exp_f32', 'v_log_f32', 'v_rcp_f32', 'v_rsq_f32', 'v_sqrt_f32', 'v_sin_f32', 'v_cos_f32', 'v_rcp_iflag_f32')


def regs_of(tok):
    tok = tok.strip()
    m = REG_RE.match(tok)
    if m:
        return [(m.group(2), int(m.group(3)))]
    m = RNG_RE.match(tok)
    if m:
        return [(m.group(2), i) for i in range(int(m.group(3)), int(m.group(4)) + 1)]
    if tok in ('vcc', 'vcc_lo', 'vcc_hi'):
        return [('vcc', 0)]
    if tok in ('exec', 'exec_lo', 'exec_hi'):
        return [('exec', 0)]
    if tok == 'm0':
        return [('m0', 0)]
    return []


def split_ops(s):
    out, depth, cur = [], 0, ''
    for ch in s:
        if ch in '[(':
            depth += 1
        if ch in '])':
            depth -= 1
        if ch == ',' and depth == 0:
            out.append(cur.strip()); cur = ''
        else:
            cur += ch
    if cur.strip():
        out.append(cur.strip())
    return out


class Ins:
    __slots__ = ('text', 'op', 'cls', 'wr', 'rd', 'ab', 'c', 'passes', 'ws', 'dpp', 'perm', 'rl', 'lds_dma',
                 'wide', 'label', 'target', 'data')

    def __init__(self):
        self.wr = set(); self.rd = set(); self.ab = set(); self.c = []; self.passes = 0; self.ws = 1
        self.dpp = False; self.perm = False; self.rl = False; self.lds_dma = False; self.wide = False
        self.label = None; self.target = None; self.data = set(); self.cls = 'other'


def parse(text):
    I = Ins(); I.text = text
    body = text.split(';')[0].strip()
    parts = body.split(None, 1)
    op = parts[0]; I.op = op
    rest = parts[1] if len(parts) > 1 else ''
    ops = split_ops(rest)
    mods = ''
    if ops:
        lp = ops[-1].split(None, 1)
        if len(lp) > 1 and not lp[0].startswith('hwreg') and not op.startswith('s_waitcnt'):
            ops[-1] = lp[0]; mods = lp[1]
    R = [regs_of(o) for o in ops]
    if op.startswith('v_mfma'):
        I.cls = 'mfma'; I.wr = set(R[0]); I.ab = set(R[1]) | set(R[2]); I.c = R[3]
        I.rd = I.ab | set(I.c); I.passes = 8 if '32x32' in op else 4
    elif op.startswith('v_smfmac'):
        I.cls = 'mfma'; I.wr = set(R[0]); I.ab = set(R[1]) | set(R[2]) | set(R[3]); I.c = R[0]
        I.rd = I.ab | set(I.c); I.passes = 8 if '32x32' in op else 4
    elif op.startswith('v_'):
        I.cls = 'valu'
        base = op.replace('_e32', '').replace('_e64', '').replace('_dpp', '')
        if base in TRANS:
            I.cls = 'trans'
        I.dpp = op.endswith('_dpp')
        if op.startswith('v_permlane'):
            I.perm = True; I.wr = set(R[0]) | set(R[1]); I.rd = set(I.wr)
        elif op.startswith('v_nop'):
            pass
        else:
            I.wr = set(R[0])
            first_src = 1
            if re.match(r'v_(add|sub|subrev|addc|subb)_co_', op) or op.startswith('v_mad_u64'):
                I.wr |= set(R[1]); first_src = 2
            for r in R[first_src:]:
                I.rd |= set(r)
            if re.match(r'v_(fmac|dot2c|mac)', op) or I.dpp:
                I.rd |= set(R[0])
            if op.startswith('v_readfirstlane') or op.startswith('v_readlane'):
                I.rl = True
            if op.startswith('v_cmpx'):
                raise ValueError('v_cmpx not modelled')
    elif op.startswith('ds_read') or op.startswith('ds_bpermute') or op.startswith('ds_swizzle'):
        I.cls = 'dsr'; I.wr = set(R[0])
        for r in R[1:]:
            I.rd |= set(r)
    elif op.startswith('ds_'):
        I.cls = 'dsw'
        for r in R:
            I.rd |= set(r)
    elif op.startswith('buffer_load') or op.startswith('global_load'):
        I.cls = 'vml'
        if re.search(r'\blds\b', mods) or '_lds_' in op:
            I.lds_dma = True
            for r in R:
                I.rd |= set(r)
            I.rd.add(('m0', 0))
        else:
            I.wr = set(R[0])
            for r in R[1:]:
                I.rd |= set(r)
    elif op.startswith('buffer_store'):
        I.cls = 'vms'
        for r in R:
            I.rd |= set(r)
        I.data = set(R[0]); I.wide = len(R[0]) >= 3
    elif op.startswith('buffer_atomic'):
        I.cls = 'vms'
        for r in R:
            I.rd |= set(r)
        if re.search(r'\bsc0\b', mods):
            I.cls = 'vml'; I.wr = set(R[0])
    elif op.startswith('buffer_') or op.startswith('global_'):
        raise ValueError('not modelled: ' + text)
    elif op.startswith('s_load') or op.startswith('s_memtime') or op.startswith('s_memrealtime'):
        I.cls = 'smem'; I.wr = set(R[0])
        for r in R[1:]:
            I.rd |= set(r)
    elif op == 's_nop':
        I.cls = 'nop'; I.ws = int(ops[0], 0) + 1
    elif op == 's_waitcnt':
        I.cls = 'wait'
    elif op.startswith('s_cbranch') or op == 's_branch':
        I.cls = 'branch'; I.target = ops[0]
    elif op in ('s_barrier', 's_endpgm', 's_setprio', 's_sleep'):
        I.cls = 'other'
    elif op.startswith('s_'):
        I.cls = 'salu'
        if op.startswith('s_cmp') or op.startswith('s_bitcmp'):
            for r in R:
                I.rd |= set(r)
        else:
            I.wr = set(R[0])
            for r in R[1:]:
                I.rd |= set(r)
            if 'saveexec' in op:
                I.wr.add(('exec', 0))
    else:
        raise ValueError('unknown instruction: ' + text)
    return I


def need(P, I):
    n = 0
    pv = P.cls in ('valu', 'trans')
    iv = I.cls in ('valu', 'trans')
    if pv:
        wv = {r for r in P.wr if r[0] in 'va'}
        wsg = {r for r in P.wr if r[0] in ('s', 'vcc')}
        if I.cls == 'mfma' and wv & I.rd:
            n = max(n, 2)
        if iv and (I.perm or I.dpp) and wv & I.rd:
            n = max(n, 2)
        if iv and I.rl and wv & I.rd:
            n = max(n, 1)
        if P.cls == 'trans' and I.cls == 'valu' and wv & I.rd:
            n = max(n, 1)
        if wsg & I.rd:
            if iv:
                n = max(n, 4 if I.op.startswith('v_readlane') or I.op.startswith('v_writelane') else 2)
            if I.cls in ('vml', 'vms'):
                n = max(n, 5)
            if I.cls in ('salu', 'smem'):
                n = max(n, 1)
    if P.cls == 'mfma':
        big = P.passes + 4
        if I.cls == 'mfma':
            if P.wr & I.ab:
                n = max(n, big)
            cs = set(I.c)
            if P.wr & cs:
                if not (cs == P.wr and I.passes == P.passes):
                    n = max(n, P.passes + 2)
            elif P.wr & I.wr and not (I.wr == P.wr and I.passes == P.passes):
                n = max(n, P.passes + 2)
        elif iv:
            if P.wr & (I.rd | I.wr):
                n = max(n, big)
            if set(P.c) & I.wr:
                n = max(n, P.passes - 1)
        elif I.cls in ('dsr', 'dsw', 'vml', 'vms'):
            if P.wr & (I.rd | I.wr):
                n = max(n, big)
    if P.cls == 'salu' and ('m0', 0) in P.wr and I.lds_dma:
        n = max(n, 1)
    if P.cls == 'vms' and P.wide and P.data & I.wr:
        n = max(n, 2)
    return n


class Emitter:
    def __init__(self):
        self.ins = []
        self.lgkm = []
        self.vm = []
        self.uid = 0
        self.slot_hook = None
        self.slot_no = 0

    def _hist(self, upto=None):
        out, acc = [], 0
        seq = self.ins if upto is None else self.ins[:upto]
        for x in reversed(seq):
            if isinstance(x, Ins) and x.label is None:
                out.append((x, acc))
                acc += x.ws
                if acc > 24:
                    break
        return out

    def _push(self, I):
        self.ins.append(I)

    def _apply_wait(self, text):
        m = re.search(r'vmcnt\((\d+)\)', text)
        if m:
            n = int(m.group(1))
            while len(self.vm) > n:
                self.vm.pop(0)
        m = re.search(r'lgkmcnt\((\d+)\)', text)
        if m:
            n = int(m.group(1))
            if n > 0 and any(x.cls == 'smem' for x in self.lgkm):
                return
            while len(self.lgkm) > n:
                self.lgkm.pop(0)

    def wait(self, vm=None, lgkm=None):
        parts = []
        if vm is not None and len(self.vm) > vm:
            parts.append('vmcnt(%d)' % min(vm, 63))
        if lgkm is not None and len(self.lgkm) > lgkm:
            if any(x.cls == 'smem' for x in self.lgkm):
                lgkm = 0
            parts.append('lgkmcnt(%d)' % min(lgkm, 15))
        if parts:
            t = 's_waitcnt ' + ' '.join(parts)
            self._push(parse(t)); self._apply_wait(t)

    def __call__(self, text):
        for line in text.split('\n'):
            line = line.strip()
            if not line or line.startswith(';'):
                continue
            if line.endswith(':'):
                self.label(line[:-1]); continue
            self._one(line)

    def _one(self, line):
        I = parse(line)
        if I.cls == 'wait':
            self._push(I); self._apply_wait(line); return
        touch = I.rd | I.wr
        vmN = lgN = None
        for k, P in enumerate(self.vm):
            if P.wr & touch:
                vmN = len(self.vm) - 1 - k
        for k, P in enumerate(self.lgkm):
            if P.wr & touch:
                lgN = len(self.lgkm) - 1 - k
        if vmN is not None or lgN is not None:
            self.wait(vmN, lgN)
        short = 0
        for P, dist in self._hist():
            short = max(short, need(P, I) - dist)
        while short > 0:
            k = min(short, 16)
            self._push(parse('s_nop %d' % (k - 1)))
            short -= k
        self._push(I)
        if I.cls in ('dsr', 'dsw', 'smem'):
            self.lgkm.append(I)
            if I.cls == 'smem' and len(I.wr) > 1:
                self.lgkm.append(I)
        if I.cls in ('vml', 'vms'):
            self.vm.append(I)
            assert len(self.vm) <= 63, 'vmcnt overflow'

    def loose(self, line):
        self._one(line.strip())
        J = parse(line.strip()); J.wr = set()
        self.vm[-1] = J

    def prewait(self, line):
        I = parse(line.strip())
        touch = I.rd | I.wr
        vmN = lgN = None
        for k, P in enumerate(self.vm):
            if P.wr & touch:
                vmN = len(self.vm) - 1 - k
        for k, P in enumerate(self.lgkm):
            if P.wr & touch:
                lgN = len(self.lgkm) - 1 - k
        if vmN is not None or lgN is not None:
            self.wait(vmN, lgN)

    def slots(self, seq):
        for n, (m, fl) in enumerate(seq):
            if m:
                self._one(m)
            if self.slot_hook:
                self.slot_hook(self.slot_no)
            self.slot_no += 1
            k = len(fl)
            while k > 0 and isinstance(fl[k - 1], str) and fl[k - 1].startswith('v_'):
                k -= 1
            for f in fl[:k]:
                f() if callable(f) else self(f)
            if k < len(fl) and n + 1 < len(seq) and seq[n + 1][0]:
                self.prewait(seq[n + 1][0])
            for f in fl[k:]:
                self(f)

    def label(self, name):
        I = Ins(); I.label = name; I.text = name + ':'; I.ws = 0; I.op = ''
        self._push(I)

    def comment(self, t):
        self.ins.append('; ' + t)

    def raw(self, t):
        self.ins.append(t)

    def newlabel(self, base='L'):
        self.uid += 1
        return '%s_%d' % (base, self.uid)

    def lds_writes_done(self):
        last = None
        for k, P in enumerate(self.lgkm):
            if P.cls == 'dsw':
                last = k
        if last is not None:
            self.wait(lgkm=len(self.lgkm) - 1 - last)

    def barrier(self):
        self.lds_writes_done()
        self._one('s_barrier')

    def forget(self):
        self.vm = []; self.lgkm = []

    def state(self):
        return (list(self.vm), list(self.lgkm))

    def set_state(self, st):
        self.vm, self.lgkm = list(st[0]), list(st[1])

    def check_branches(self):
        pos = {x.label: i for i, x in enumerate(self.ins) if isinstance(x, Ins) and x.label}
        bad = []
        for i, x in enumerate(self.ins):
            if isinstance(x, Ins) and x.cls == 'branch':
                assert x.target in pos, 'missing label ' + x.target
                hist = self._hist(i + 1)
                acc = 0
                for y in self.ins[pos[x.target]:]:
                    if not isinstance(y, Ins) or y.label:
                        continue
                    for P, dist in hist:
                        if need(P, y) > dist + acc:
                            bad.append((x.text, P.text, y.text))
                    acc += y.ws
                    if acc > 16 or y.op == 's_branch' or y.op == 's_endpgm':
                        break
        return bad

    def text(self):
        bad = self.check_branches()
        assert not bad, 'hazards on taken branches: %r' % (bad[:5],)
        out = []
        for x in self.ins:
            if isinstance(x, str):
                out.append(x)
            elif x.label:
                out.append(x.text)
            else:
                out.append('  ' + x.text)
        return '\n'.join(out) + '\n'


def vr(b, n=1, k='v'):
    return '%s%d' % (k, b) if n == 1 else '%s[%d:%d]' % (k, b, b + n - 1)


def sr(b, n=1):
    return vr(b, n, 's')
```

```python
from common import *

L_T, L_OB, L_DUMMY, L_KX, L_WL = 8192, 12288, 14336, 16384, 32768
vL16, vPst, vMst, vTw, vTr, vKXr, vOw, vWL0, vWL1, vMw, vIdx, vSelC = range(12)
EX, PM, VX = 12, 16, 20
TMP = 28
MA = 32
ACC = 64
X, KXR, SPARE = 88, 104, 120
R1 = [MA + 8, MA + 16, MA + 24, X, X + 8, KXR, KXR + 8, SPARE, X, X + 8]
WO_SB = [KXR, KXR + 8, X, X + 8, ACC, ACC + 8]
(sStep, sMcur, sProg, sMtog, sG, sKl, sPst2, sKV, sC, sExp, sMcur2, sMbaseS, sPbaseS, sPbaseL, sFl, sFch, sTog, sNan,
 sA, sB) = range(50, 70)
sSel = 70
sOK, sHl, sMn2 = 78, 79, 3
sArm, sFm = 18, 98
sVx, sVt, sHs, sOK2, sG2 = 96, 97, 16, 17, 100
HV, HS, HA, HD = TMP + 2, TMP + 3, VX + 2, VX + 3
S_M0 = 84
sDbgT = 80

STREAM = [('q', 0, 0), ('q', 1, 0), ('k', 0, 0), ('k', 1, 0), ('q', 0, 1), ('q', 1, 1), ('k', 0, 1), ('k', 1, 1),
          ('q', 0, 5), ('q', 0, 7),
          ('o', 5, 0), ('o', 5, 1), ('o', 6, 0), ('o', 6, 1), ('o', 7, 0), ('o', 7, 1)]
WLPOS = {op: p for op, p in zip(STREAM[10:14], range(4))}
WLPOS.update({op: 4 + p for p, op in enumerate(STREAM[14:16] + STREAM[:10])})
ALLOPS = [(m, ft, i) for m in 'qkv' for ft in range(2) for i in range(8)] + [('o', t, kb) for t in range(8) for kb in range(2)]
RES = {}
for n, op in enumerate([o for o in ALLOPS if o not in STREAM]):
    RES[op] = ('a', 8 * n) if n < 32 else ('v', 128 + 8 * (n - 32))
PARK = {}
for n, op in enumerate(STREAM[14:16] + STREAM[:10]):
    PARK[op] = 32 + 8 * n
for n, op in enumerate(STREAM[10:14]):
    PARK[op] = 48 + 8 * n
W = sr(S_WS, 4)
CFG = {}


def wl_addr(op, half):
    p = WLPOS[op]
    off = (p >> 1) * 16384 + (p & 1) * 2048 + half * 1024
    return (vWL0, off) if off < 65536 else (vWL1, off - 65536)


def wl_write(e, op, src):
    for half in range(2):
        a, off = wl_addr(op, half)
        e(f"ds_write_b128 v{a}, {vr(src + 4 * half, 4)} offset:{off}")


def wl_lines(op, dst):
    out = []
    for half in range(2):
        a, off = wl_addr(op, half)
        out.append(f"ds_read_b128 {vr(dst + 4 * half, 4)}, v{a} offset:{off}")
    return out


def delay(e, cyc):
    n = cyc // 4
    while n > 0:
        k = min(n, 16)
        e(f"s_nop {k - 1}")
        n -= k


def mix(reads, other, per=3):
    out = []
    other = list(other)
    for r in reads:
        out.append(r)
        for _ in range(per):
            if other:
                out.append(other.pop(0))
    return out + other


def mload(b):
    return f"buffer_load_dwordx4 {vr(MA + 4 * b, 4)}, v{vMw}, {W}, s{sMcur if b == 0 else sMcur2} offen sc1"


def kx_dma(e, ldsbase):
    e(f"""s_lshl_b32 s{sA}, s{S_WAVE}, 11
          s_add_u32 m0, s{sA}, {ldsbase}
          buffer_load_dwordx4 v{vL16}, {W}, s{sKV} offen sc1 lds
          buffer_load_dwordx4 v{vL16}, {W}, s{sKV} offen offset:1024 sc1 lds""")


def scalar_lines():
    return [x.strip() for x in f"""s_and_b32 s{sA}, s{sStep}, 3
          s_lshl_b32 s{sA}, s{sA}, 13
          s_add_u32 s{sMcur}, s{sA}, {WS_M}
          s_add_u32 s{sMcur2}, s{sA}, {WS_M + 4096}
          s_and_b32 s{sA}, s{sA}, 0x2000
          s_add_u32 s{sMn2}, s{sMbaseS}, s{sA}
          s_lshl_b32 s{sMtog}, s{sA}, 1
          s_sub_u32 s{sVx}, s{sKV}, s{sTog}
          s_add_u32 s{sVx}, s{sVx}, {8192 - L_KX}
          s_add_u32 s{sKV}, s{sKV}, {0 if CFG.get('samekv') else UNIT}
          s_add_u32 s{sVt}, s{sKV}, 8192
          s_xor_b32 s{sA}, s{sTog}, 0x2000
          s_add_u32 m0, s{sA}, s{sKl}
          s_cmp_gt_u32 s{sStep}, 1
          s_cselect_b32 s{sA}, 4096, 0
          s_add_u32 s{sExp}, s{sExp}, s{sA}
          s_add_u32 s{sOK2}, s{sStep}, 1
          s_min_u32 s{sOK}, s{sOK2}, 63
          s_max_u32 s{sProg}, s{sStep}, 1
          s_sub_u32 s{sProg}, s{sProg}, 1
          s_and_b32 s{sG2}, s{sOK2}, 1""".split('\n')]


def prep_a_lines():
    other = [f"v_mov_b64 {vr(ACC + j, 2)}, 0" for j in range(0, 24, 2)] + [f"v_lshlrev_b32 v{PM + 3}, 1, v{vL16}", f"v_lshrrev_b32 v{TMP}, 2, v{vL16}"]
    reads = sum([wl_lines(STREAM[o], R1[o]) for o in range(3, 8)], [])
    return mix(reads, other, 2)


def prep_b_lines():
    other = [f"v_xor_b32 v{vMst}, s{sMtog}, v{vMst}"] + [f"v_xor_b32 v{TMP + p}, {p << 10}, v{vMw}" for p in range(1, 4)]
    reads = sum([wl_lines(STREAM[o], R1[o]) for o in range(3)], [])
    return mix(reads, other, 1)


def chain_startup(e, cfg):
    h = S_ROLE
    tA, tB, tC, tD = EX, EX + 1, EX + 2, EX + 3
    t0, t1, t2, t3 = TMP, TMP + 1, TMP + 2, TMP + 3
    lane = PM
    chunks = [('o', kb, Q) for kb in range(2) for Q in range(4)] + [(m, b, 0) for m in 'qkv' for b in range(8)]
    ring = {4: L_WL + 2 * 16384, 5: L_WL + 3 * 16384, 6: L_WL + 4 * 16384, 0: L_WL + 5 * 16384, 1: L_WL + 6 * 16384,
            2: L_WL + 7 * 16384, 3: 0}
    ptr = {'q': P_WQ, 'k': P_WK, 'v': P_WV, 'o': P_WO}
    sHq, sHo, sLw = sMcur, sProg, sMcur2
    cur, marks = [None], {}

    def dma(r):
        m, x, Q = chunks[r]
        if cur[0] != m:
            srd(e, S_T0, ptr[m], 0x400000); cur[0] = m
        for i in range(4):
            if m == 'o':
                row = 64 * x + 32 * (Q >> 1) + 2 * (Q & 1) + 4 * (i >> 1) + (i & 1)
                e(f"""s_add_u32 s{sA}, s{sHo}, {row * 1024}
                      s_add_u32 m0, s{sLw}, {ring[r % 7] + i * 1024}
                      buffer_load_dwordx4 v{vL16}, {sr(S_T0, 4)}, s{sA} offen lds""")
            else:
                e(f"""s_add_u32 s{sA}, s{sHq}, {(128 * (x & 3) + 64 * (x >> 2) + 4 * i) * 8192}
                      s_add_u32 m0, s{sLw}, {ring[r % 7] + i * 1024}
                      buffer_load_dwordx4 v{tA}, {sr(S_T0, 4)}, s{sA} offen lds""")
        marks[r] = e.vm[-1]

    e(f"""v_and_b32 v{lane}, 63, v0
          v_lshlrev_b32 v{vL16}, 4, v{lane}
          s_and_b32 s{sA}, s{S_WAVE}, 1
          s_lshr_b32 s{sB}, s{S_WAVE}, 1
          s_lshl_b32 s{sHo}, s{h}, 17
          s_lshl_b32 s{sLw}, s{sA}, 14
          s_add_u32 s{sHo}, s{sHo}, s{sLw}
          s_lshl_b32 s{sLw}, s{sB}, 13
          s_add_u32 s{sHo}, s{sHo}, s{sLw}
          s_lshl_b32 s{sHq}, s{h}, 8
          s_lshl_b32 s{sLw}, s{S_WAVE}, 17
          s_add_u32 s{sHq}, s{sHq}, s{sLw}
          s_lshl_b32 s{sLw}, s{S_WAVE}, 12""")
    for r in range(6):
        dma(r)
    e(f"""v_lshrrev_b32 v{t0}, 4, v{lane}
          v_and_b32 v{t1}, 15, v{lane}
          s_lshl_b32 s{sA}, s{S_WAVE}, 10
          v_add_u32 v{vMw}, s{sA}, v{vL16}
          v_lshlrev_b32 v{PM + 3}, 2, v{lane}""")
    e(f"""v_lshrrev_b32 v{t2}, 2, v{lane}
          v_lshlrev_b32 v{t2}, 12, v{t2}
          v_and_b32 v{t3}, 3, v{lane}
          v_lshl_add_u32 v{vPst}, v{t3}, 4, v{t2}""")
    e(f"""v_and_b32 v{t2}, 1, v{lane}
          v_lshlrev_b32 v{t2}, 5, v{t2}
          v_lshl_add_u32 v{t2}, v{t0}, 3, v{t2}
          v_and_b32 v{t3}, 4, v{lane}
          v_add_u32 v{t2}, v{t2}, v{t3}
          v_and_b32 v{t3}, 8, v{lane}
          v_cmp_ne_u32 {sr(sArm, 2)}, 0, v{t3}
          v_lshl_add_u32 v{t2}, v{t3}, 11, v{t2}
          v_and_b32 v{t3}, 2, v{lane}
          v_lshl_add_u32 v{vMst}, v{t3}, 29, v{t2}""")
    srd(e, S_M0, P_MEM0, 8192)
    e(f"""v_and_b32 v{t2}, 1, v{lane}
          v_lshlrev_b32 v{tD}, 10, v{t2}
          v_lshl_add_u32 v{tD}, v{t0}, 1, v{tD}
          v_bfe_u32 v{t2}, v{lane}, 2, 1
          v_lshl_add_u32 v{tD}, v{t2}, 6, v{tD}
          s_and_b32 s{sA}, s{h}, 6
          s_lshl_b32 s{sA}, s{sA}, 10
          s_lshr_b32 s{sB}, s{h}, 3
          s_lshl_b32 s{sB}, s{sB}, 8
          s_add_u32 s{sA}, s{sA}, s{sB}
          s_and_b32 s{sB}, s{S_WAVE}, 1
          s_lshl_b32 s{sB}, s{sB}, 7
          s_add_u32 s{sA}, s{sA}, s{sB}
          s_lshr_b32 s{sB}, s{S_WAVE}, 1
          s_lshl_b32 s{sB}, s{sB}, 3
          s_add_u32 s{sA}, s{sA}, s{sB}
          s_and_b32 s{sB}, s{h}, 1
          s_lshl_b32 s{sB}, s{sB}, 4
          s_add_u32 s{sA}, s{sA}, s{sB}
          buffer_load_ushort v{VX}, v{tD}, {sr(S_M0, 4)}, s{sA} offen
          buffer_load_ushort v{VX + 1}, v{tD}, {sr(S_M0, 4)}, s{sA} offen offset:32""")
    e(f"""s_lshl_b32 s{sA}, s{S_WAVE}, 10
          s_add_u32 s{sA}, s{sA}, {L_T}
          v_lshlrev_b32 v{t2}, 5, v{t1}
          v_lshl_add_u32 v{t2}, v{t0}, 3, v{t2}
          v_add_u32 v{vTw}, s{sA}, v{t2}
          v_lshrrev_b32 v{t2}, 5, v{lane}
          v_lshlrev_b32 v{t2}, 9, v{t2}
          v_and_b32 v{t3}, 31, v{lane}
          v_lshl_add_u32 v{t2}, v{t3}, 3, v{t2}
          v_add_u32 v{vTr}, {L_T}, v{t2}
          v_lshlrev_b32 v{t2}, 9, v{t0}
          v_lshl_add_u32 v{t2}, v{t1}, 4, v{t2}
          v_add_u32 v{vKXr}, {L_KX}, v{t2}""")
    e(f"""s_lshl_b32 s{sA}, s{S_WAVE}, 9
          s_add_u32 s{sA}, s{sA}, {L_OB}
          v_lshrrev_b32 v{t2}, 5, v{lane}
          v_lshlrev_b32 v{t2}, 8, v{t2}
          v_and_b32 v{t3}, 16, v{lane}
          v_add_u32 v{t2}, v{t2}, v{t3}
          v_and_b32 v{t3}, 12, v{lane}
          v_lshl_add_u32 v{t2}, v{t3}, 4, v{t2}
          v_and_b32 v{t3}, 1, v{lane}
          v_lshl_add_u32 v{t2}, v{t3}, 5, v{t2}
          v_and_b32 v{t3}, 2, v{lane}
          v_lshl_add_u32 v{t2}, v{t3}, 10, v{t2}
          v_add_u32 v{vOw}, s{sA}, v{t2}
          s_add_u32 s{sA}, s{sLw}, {L_WL}
          v_add_u32 v{vWL0}, s{sA}, v{vL16}
          v_add_u32 v{vWL1}, 0x10000, v{vWL0}""")
    e(f"""v_and_b32 v{t2}, 1, v{lane}
          v_cmp_ne_u32 vcc, 0, v{t2}
          v_mov_b32 v{t2}, 0x4444
          v_mov_b32 v{t3}, 0xeeee
          v_cndmask_b32 v{vIdx}, v{t2}, v{t3}, vcc
          v_mov_b32 v{t2}, 0x3f80
          v_mov_b32 v{t3}, 0x3f800000
          v_cndmask_b32 v{vSelC}, v{t2}, v{t3}, vcc
          v_lshrrev_b32 v{t2}, 1, v{t1}""")
    for j in range(4):
        e(f"v_cmp_eq_u32 {sr(sSel + 2 * j, 2)}, {j}, v{t2}")
    e(f"""v_lshlrev_b32 v{tA}, 13, v{t0}
          v_lshl_add_u32 v{tA}, v{t1}, 4, v{tA}""")
    e(f"""v_bfe_u32 v{t2}, v{lane}, 2, 1
          v_lshlrev_b32 v{tB}, 12, v{t2}
          v_bfe_u32 v{t2}, v{lane}, 5, 1
          v_lshl_add_u32 v{tB}, v{t2}, 10, v{tB}
          v_bfe_u32 v{t2}, v{lane}, 3, 1
          v_lshl_add_u32 v{tB}, v{t2}, 9, v{tB}
          v_bfe_u32 v{t2}, v{lane}, 4, 1
          v_lshl_add_u32 v{tB}, v{t2}, 8, v{tB}
          v_and_b32 v{t2}, 3, v{lane}
          v_lshl_add_u32 v{tB}, v{t2}, 3, v{tB}
          s_lshl_b32 s{sA}, s{S_WAVE}, 6
          v_add_u32 v{tB}, s{sA}, v{tB}""")
    e(f"""v_lshrrev_b32 v{t3}, 2, v{lane}
          v_lshlrev_b32 v{tC}, 10, v{t3}
          v_lshl_add_u32 v{tC}, v{t2}, 3, v{tC}
          s_lshl_b32 s{sA}, s{S_WAVE}, 8
          v_add_u32 v{tC}, s{sA}, v{tC}""")
    e(f"""s_lshl_b32 s{sA}, s{S_WAVE}, 11
          s_lshl_b32 s{sB}, s{h}, 13
          s_add_u32 s{sPbaseL}, s{sA}, s{sB}
          s_add_u32 s{sPbaseL}, s{sPbaseL}, {WS_P}
          s_lshl_b32 s{sA}, s{S_WAVE}, 16
          s_lshl_b32 s{sB}, s{h}, 6
          s_add_u32 s{sPbaseS}, s{sA}, s{sB}
          s_add_u32 s{sPbaseS}, s{sPbaseS}, {WS_P}""")
    e(f"""s_and_b32 s{sA}, s{S_WAVE}, 1
          s_lshl_b32 s{sMbaseS}, s{sA}, 12
          s_and_b32 s{sA}, s{h}, 24
          s_lshl_b32 s{sA}, s{sA}, 7
          s_add_u32 s{sMbaseS}, s{sMbaseS}, s{sA}
          s_and_b32 s{sA}, s{h}, 1
          s_lshl_b32 s{sA}, s{sA}, 9
          s_add_u32 s{sMbaseS}, s{sMbaseS}, s{sA}
          s_lshr_b32 s{sA}, s{S_WAVE}, 1
          s_lshl_b32 s{sA}, s{sA}, 8
          s_add_u32 s{sMbaseS}, s{sMbaseS}, s{sA}
          s_and_b32 s{sA}, s{h}, 6
          s_lshl_b32 s{sA}, s{sA}, 5
          s_add_u32 s{sMbaseS}, s{sMbaseS}, s{sA}
          s_add_u32 s{sMbaseS}, s{sMbaseS}, {WS_M}""")
    e(f"""s_mul_i32 s{sKV}, s{h}, {64 * UNIT}
          s_lshl_b32 s{sA}, s{S_WAVE}, 11
          s_add_u32 s{sKV}, s{sKV}, s{sA}
          s_add_u32 s{sKV}, s{sKV}, {WS_QKV + 8192}
          s_lshl_b32 s{sExp}, s{h}, 18
          s_lshl_b32 s{sA}, s{S_WAVE}, 10
          s_add_u32 s{sExp}, s{sExp}, s{sA}
          s_add_u32 s{sExp}, s{sExp}, {WS_EXP}
          s_lshl_b32 s{sFl}, s{h}, 8
          s_add_u32 s{sFl}, s{sFl}, {F_QKV}
          s_lshl_b32 s{sFch}, s{h}, 7
          s_lshl_b32 s{sA}, s{S_WAVE}, 2
          s_add_u32 s{sFch}, s{sFch}, s{sA}
          s_add_u32 s{sFch}, s{sFch}, {F_CH}
          s_mov_b32 s{sC}, 0x3e0293ee
          s_add_u32 s{sPst2}, s{sPbaseS}, 4096
          s_lshl_b32 s{sKl}, s{S_WAVE}, 11
          s_add_u32 s{sKl}, s{sKl}, {L_KX}
          s_lshl_b32 s{sHl}, s{h}, 7
          s_add_u32 s{sHl}, s{sHl}, {F_HINT}
          s_lshl_b32 s{sHs}, s{h}, 2
          s_lshl_b32 s{sA}, s{S_WAVE}, 10
          s_add_u32 s{sHs}, s{sHs}, s{sA}
          s_add_u32 s{sHs}, s{sHs}, {F_HINT}
          s_mov_b32 s{sOK}, 1""")
    e(f"""v_mov_b64 {vr(VX + 4, 2)}, 0
          v_mov_b64 {vr(VX + 6, 2)}, 0
          v_mov_b32 v{VX + 2}, -1
          s_add_u32 s{sB}, s{sMbaseS}, 8192
          buffer_store_dwordx4 {vr(VX + 4, 4)}, v{vL16}, {W}, s{sPbaseL} offen sc1
          buffer_store_dwordx4 {vr(VX + 4, 4)}, v{vL16}, {W}, s{sPbaseL} offen offset:1024 sc1
          buffer_store_dword v{VX + 2}, v{vMst}, {W}, s{sB} offen sc1""")
    parked = STREAM[14:16] + STREAM[:10]
    for r in range(32):
        m, x, Q = chunks[r]
        if marks[r] in e.vm:
            e.wait(vm=len(e.vm) - 1 - e.vm.index(marks[r]))
        e.wait(lgkm=0)
        e("s_barrier")
        if r == 6:
            e.comment("publish this wave's piece of mem0 in slot 0 (and arm slot 2)")
            e(f"""v_lshl_or_b32 v{VX}, v{VX + 1}, 16, v{VX}
                  v_min_u32 v{VX}, -2, v{VX}
                  v_cndmask_b32 v{VX}, v{VX}, -1, {sr(sArm, 2)}
                  buffer_store_dword v{VX}, v{vMst}, {W}, s{sMbaseS} offen sc1""")
        if r == 12:
            e.comment("every wave's arming and flag-zeroing stores are complete: count this workgroup in")
            e(f"""s_cmp_lg_u32 s{S_WAVE}, 0
                  s_cbranch_scc1 L_cs_in
                  s_cmp_lg_u32 s{S_XCC}, 0
                  s_cselect_b32 s{sA}, 0x10001, 1
                  v_mov_b32 v{t0}, s{sA}
                  s_mov_b64 exec, 1
                  buffer_atomic_add v{t0}, off, {sr(S_DBG, 4)}, 0 offset:{D_INIT}
                  s_mov_b64 exec, -1""")
            e.vm.pop()
            e.label("L_cs_in")
        if r + 6 < 32:
            dma(r + 6)
        if r == 8:
            for op in STREAM[10:14]:
                wl_write(e, op, PARK[op])
            e.wait(lgkm=0)
        if r == 16:
            e(f"buffer_load_dword v{PM + 1}, off, {sr(S_DBG, 4)}, 0 offset:{D_INIT} sc1")
        if r == 23:
            e(f"""v_readfirstlane_b32 s{sNan}, v{PM + 1}
                  buffer_load_dword v{PM + 2}, v{PM + 3}, {W}, s{sFl} offen sc1""")
            e(f"""s_add_u32 m0, s{sLw}, {L_KX + 8192}
                  s_lshr_b32 m0, m0, 1
                  s_add_u32 m0, m0, {(L_KX + 8192) // 2}
                  s_lshl_b32 s{sB}, s{h}, 10
                  s_add_u32 s{sB}, s{sB}, {WS_M}
                  buffer_load_dwordx4 v{vL16}, {W}, s{sPbaseL} offen sc1 lds
                  buffer_load_dwordx4 v{vL16}, {W}, s{sPbaseL} offen offset:1024 sc1 lds
                  buffer_load_dwordx4 v{vL16}, {W}, s{sHl} offen sc1 lds
                  buffer_load_dwordx4 v{vL16}, {W}, s{sB} offen sc1 lds""")
        if r == 30:
            e(f"""v_cmp_ne_u32 {sr(sFm, 2)}, 0, v{PM + 2}
                  s_and_b32 s{sOK}, s{sFm}, 3
                  s_cmp_eq_u32 s{sOK}, 3
                  s_cselect_b32 s{sOK}, 1, 0
                  s_and_b32 s{sA}, s{sNan}, 0xffff
                  s_cmp_eq_u32 s{sA}, 256
                  s_cselect_b32 s{sOK}, s{sOK}, 0""")
            kx_dma(e, L_KX)
        if r >= 26:
            for op in parked[2 * (r - 26):2 * (r - 26) + 2]:
                wl_write(e, op, PARK[op])
        e(f"v_add_u32 v{t1}, {ring[r % 7]}, v{tC if m == 'o' else tB}")
        if m == 'o':
            for t in range(8):
                op = ('o', t, x)
                kind, base = RES[op] if op in RES else ('v', PARK[op])
                e(f"ds_read_b64_tr_b16 {vr(base + 2 * Q, 2, kind)}, v{t1} offset:{t * 32}")
        else:
            for w in range(1, 4):
                e(f"s_cmp_eq_u32 s{S_WAVE}, {w}\n s_cbranch_scc1 L_cs{r}_{w}")
            st0 = e.state()
            for w in range(4):
                if w:
                    e.label(f"L_cs{r}_{w}"); e.set_state(st0)
                for ft in range(2):
                    op = (m, ft, 2 * ((x & 3) ^ w) + (x >> 2))
                    kind, base = RES[op] if op in RES else ('v', PARK[op])
                    for Q in range(4):
                        e(f"ds_read_b64_tr_b16 {vr(base + 2 * Q, 2, kind)}, v{t1} offset:{(32 * (Q & 1) + 8 * (Q >> 1)) * 256 + ft * 32}")
                if w < 3:
                    e(f"s_branch L_cs{r}_e")
            e.label(f"L_cs{r}_e")
    e.wait(lgkm=0)
    dbg_max(e, cfg, 9, v=PM, mask=1)
    e(f"""s_cmp_lg_u32 s{sOK}, 0
          s_cbranch_scc1 L_cs_ready
          L_cs_p1:
          buffer_load_dword v{t0}, off, {sr(S_DBG, 4)}, 0 offset:{D_INIT} sc1
          s_sub_u32 s{S_SPIN}, s{S_SPIN}, 1
          s_cbranch_scc1 L_end
          v_readfirstlane_b32 s{sNan}, v{t0}
          s_and_b32 s{sA}, s{sNan}, 0xffff
          s_cmp_eq_u32 s{sA}, 256
          s_cbranch_scc0 L_cs_p1
          L_cs_p2:
          buffer_load_dword v{t0}, v{PM + 3}, {W}, s{sFl} offen sc1
          s_sub_u32 s{S_SPIN}, s{S_SPIN}, 1
          s_cbranch_scc1 L_end
          v_cmp_ne_u32 {sr(sFm, 2)}, 0, v{t0}
          s_and_b32 s{sA}, s{sFm}, 3
          s_cmp_eq_u32 s{sA}, 3
          s_cbranch_scc0 L_cs_p2""")
    kx_dma(e, L_KX)
    e.label("L_cs_ready")
    e(f"""v_mov_b32 v{PM + 1}, 0
          v_mov_b32 v{PM + 2}, 0
          s_mov_b32 s{sStep}, 0
          s_mov_b32 s{sTog}, 0""")
    e("\n".join(scalar_lines() + prep_a_lines()))
    for b in range(2):
        e(mload(b))
    e("\n".join(prep_b_lines()))
    dbg_max(e, cfg, 11, v=PM, mask=1)
    e("s_waitcnt vmcnt(0) lgkmcnt(0)\n s_barrier")
    if cfg.get('diag'):
        e.raw(f"  s_memtime {sr(sDbgT + 6, 2)}\n  s_memrealtime {sr(sDbgT + 10, 2)}\n  s_mov_b32 s{sDbgT + 5}, 0\n  s_mov_b32 s12, 0\n  s_mov_b32 s13, 0\n  s_mov_b32 s14, 0\n  s_mov_b32 s15, 0\n  s_waitcnt lgkmcnt(0)")
    e(f"""s_lshr_b32 s{sA}, s{sNan}, 16
          s_mov_b32 s{sNan}, 0
          s_cmp_lg_u32 s{sA}, 0
          s_cbranch_scc1 L_step_s""")
    if cfg.get('force_slow'):
        e("s_branch L_step_s")


def chain_loop(e, cfg, sfx, st):
    acc = {('q', 0): ACC, ('q', 1): ACC + 4, ('k', 0): ACC + 8, ('k', 1): ACC + 12, ('v', 0): ACC + 16, ('v', 1): ACC + 20}
    loc = dict(RES)
    for o in range(10):
        loc[STREAM[o]] = ('v', R1[o])
    for o in range(6):
        loc[STREAM[10 + o]] = ('v', WO_SB[o])
    diag = cfg.get('diag')

    def stamp(n):
        tr = cfg.get('trace')
        if tr and n in tr:
            e.raw(f"  s_memtime {sr(20 + 2 * tr.index(n), 2)}")

    def trace_out(where, TR):
        if cfg.get('trace') and cfg.get('tpos', 'mid') == where:
            e(f"""s_memtime s[32:33]
                  s_memrealtime s[34:35]
                  s_lshl_b32 s40, s{S_ROLE}, 2
                  s_add_u32 s40, s40, s{S_WAVE}
                  s_lshl_b32 s40, s40, 6
                  s_add_u32 s40, s40, s{sStep}
                  s_lshl_b32 s40, s40, 5
                  s_add_u32 s40, s40, 0x6200000
                  s_waitcnt lgkmcnt(0)""")
            for j in range(8):
                e(f"v_mov_b32 v{TR + j}, s{20 + 2 * j}")
            e(f"""s_mov_b64 exec, 1
                  buffer_store_dwordx4 {vr(TR, 4)}, off, {W}, s40
                  buffer_store_dwordx4 {vr(TR + 4, 4)}, off, {W}, s40 offset:16
                  s_mov_b64 exec, -1""")

    def P(m, ft, i):
        k, b = loc[(m, ft, i)]
        return f"v_smfmac_f32_16x16x64_bf16 {vr(acc[(m, ft)], 4)}, {vr(MA + 4 * i, 4)}, {vr(b, 8, k)}, v{vIdx}"

    def post(a, dst):
        return [f"v_add_f32 v{a}, v{a}, v{a + 1}", f"v_add_f32 v{a + 2}, v{a + 2}, v{a + 3}",
                f"v_cvt_pk_bf16_f32 v{dst}, v{a}, v{a + 2}"]

    def xread(kb):
        return [f"ds_read_b64_tr_b16 {vr(X + 4 * kb, 2)}, v{vTr} offset:{kb * 1024}",
                f"ds_read_b64_tr_b16 {vr(X + 4 * kb + 2, 2)}, v{vTr} offset:{kb * 1024 + 256}"]

    kx_dst = [KXR, SPARE, KXR + 4, SPARE + 4, KXR + 8, KXR, KXR + 12, KXR + 4]

    def kxread(n):
        return f"ds_read_b128 {vr(kx_dst[n], 4)}, v{vKXr} offset:{(n >> 1) * 2048 + (n & 1) * 256}"

    Sx = [ACC, ACC + 4]
    Sm, Px = ACC + 8, ACC + 12

    def smx(n):
        kb, t = n >> 1, n & 1
        c = '0' if kb == 0 else vr(Sx[t], 4)
        return f"v_mfma_f32_16x16x32_bf16 {vr(Sx[t], 4)}, {vr(kx_dst[n], 4)}, {vr(X + 4 * kb, 4)}, {c}"

    def smm(kb):
        c = '0' if kb == 0 else vr(Sm, 4)
        return f"v_mfma_f32_16x16x32_bf16 {vr(Sm, 4)}, {vr(X + 4 * kb, 4)}, {vr(X + 4 * kb, 4)}, {c}"

    pace = cfg.get('pace', 0)
    ldH = lambda: pace and e.loose(f"buffer_load_dword v{HD}, v{HA}, {W}, s{sHl} offen sc1")
    ldV = [f"buffer_load_dwordx4 {vr(VX, 4)}, v{vKXr}, {W}, s{sVx} offen sc1",
           f"buffer_load_dwordx4 {vr(VX + 4, 4)}, v{vKXr}, {W}, s{sVx} offen offset:256 sc1"]
    ldK = [f"buffer_load_dwordx4 v{vL16}, {W}, s{sKV} offen sc1 lds",
           f"buffer_load_dwordx4 v{vL16}, {W}, s{sKV} offen offset:1024 sc1 lds"]
    touch = f"buffer_load_dword v{PM + 3}, {W}, s{sVt} offen sc1 lds"
    export = f"buffer_store_dwordx4 {vr(EX, 4)}, v{vL16}, {W}, s{sExp} offen sc1"
    progress = f"s_mov_b64 exec, 1\n buffer_store_dword v{TMP}, off, {W}, s{sFch} sc1\n s_mov_b64 exec, -1"
    ldF = f"buffer_load_dword v{TMP}, v{TMP}, {W}, s{sFl} offen sc1"
    if cfg.get('noexp'):
        export = progress = "s_nop 0"
    rf = sum([wl_lines(STREAM[o], R1[o]) for o in range(8, 10)], [])
    wo = sum([wl_lines(STREAM[10 + o], WO_SB[o]) for o in range(6)], [])
    q0p, q1p, k0p, k1p = post(ACC, ACC + 1), post(ACC + 4, ACC + 5), post(ACC + 8, EX), post(ACC + 12, EX + 1)
    v0p, v1p = post(ACC + 16, EX + 2), post(ACC + 20, EX + 3)
    m0, m1 = TMP, TMP + 1
    C0 = PM
    zero = [f"v_mov_b64 {vr(MA + j, 2)}, 0" for j in range(0, 32, 2)]
    st_ = lambda n: (lambda: stamp(n))
    mx = lambda d, a, b, c_: f"v_max3_f32 v{d}, v{a}, v{b}, v{c_}"

    def check(blocks):
        r = [MA + 4 * b + j for b in blocks for j in range(4)]
        out = [f"v_max3_u32 v{C0}, v{r[0]}, v{r[1]}, v{r[2]}"]
        k = 3
        while k + 1 < len(r):
            out.append(f"v_max3_u32 v{C0}, v{C0}, v{r[k]}, v{r[k + 1]}"); k += 2
        out.append(f"v_max_u32 v{C0}, v{C0}, v{r[k]}")
        out.append(f"v_cmp_eq_u32 vcc, -1, v{C0}")
        return out

    def mread(i):
        return f"ds_read_b128 {vr(MA + 4 * i, 4)}, v{TMP + (i >> 1)} offset:{(i & 1) * 4096}"

    e.slot_no = 0
    e.slot_hook = lambda n: stamp(100 + n)
    e.forget()
    e.label(f"L_step_{sfx}")
    e("s_waitcnt vmcnt(2)")
    e.label(f"L_chkE_{sfx}")
    e("\n".join(check((0,))))
    e(f"""ds_write_b128 v{vMw}, {vr(MA, 4)}
          s_cbranch_vccnz L_retE_{sfx}""")
    stamp(0)
    cl_ = check((1,))
    z = lambda: zero.pop(0)
    lw = lambda n: (lambda: e.wait(lgkm=n))
    seq = [
        (P('q', 0, 0), [lambda: e.loose(mload(1))]),
        (P('q', 1, 0), [ldV[0]]),
        (P('k', 0, 0), [ldV[1], ldF, e.barrier, mread(2), mread(4)]),
        (P('k', 1, 0), [mread(6), "s_waitcnt vmcnt(4)", cl_[0]]),
        (P('v', 0, 0), [cl_[1]]),
        (P('v', 1, 0), [cl_[2], f"ds_write_b128 v{vMw}, {vr(MA + 4, 4)} offset:4096", f"s_cbranch_vccnz L_retL_{sfx}", f"L_okL_{sfx}:"]),
        (P('q', 0, 1), [st_(1)]),
        (P('q', 1, 1), []),
        (P('k', 0, 1), [rf[0]]),
        (P('k', 1, 1), [rf[1], lw(3)]),
        (P('q', 0, 2), [rf[2]]),
        (P('q', 1, 2), [e.lds_writes_done]),
        (P('k', 0, 2), [e.barrier, ldK[0], mread(3)]),
        (P('k', 1, 2), [mread(5)]),
        (P('q', 0, 4), [mread(7)]),
        (P('q', 1, 4), [ldK[1], f"s_movk_i32 m0, {L_DUMMY}"]),
        (P('k', 0, 4), [rf[3]]),
        (P('k', 1, 4), [touch]),
        (P('q', 0, 6), [kxread(0)]),
        (P('q', 1, 6), [kxread(2)]),
        (P('k', 0, 6), [export, lambda: trace_out('mid', SPARE)]),
        (P('k', 1, 6), [kxread(4), st_(2), lw(3)]),
        (P('q', 0, 3), [kxread(6)]),
        (P('q', 0, 5), [kxread(1)]),
        (P('q', 0, 7), [kxread(3), f"v_cmp_ne_u32 {sr(sFm, 2)}, 0, v{TMP}"]),
        (P('q', 1, 3), [f"v_mov_b32 v{TMP}, s{sProg}"]),
        (P('q', 1, 5), [progress]),
        (P('q', 1, 7), ["s_nop 0", q0p[0]]),
        (P('k', 0, 3), ["s_nop 0", q0p[1]]),
        (P('k', 0, 5), ["s_nop 0", q0p[2]]),
        (P('k', 0, 7), [q1p[0]]),
        (P('k', 1, 3), ["s_nop 0", q1p[1]]),
        (P('k', 1, 5), ["s_nop 0", q1p[2]]),
        (P('k', 1, 7), [f"ds_write2_b32 v{vTw}, v{ACC + 1}, v{ACC + 5} offset0:0 offset1:128", st_(3), k0p[0]]),
        (P('v', 0, 1), ["s_nop 0", k0p[1]]),
        (P('v', 0, 2), ["s_nop 0", k0p[2], k1p[0]]),
        (P('v', 0, 3), [k1p[1], k1p[2]]),
        (P('v', 0, 4), [f"ds_write2_b32 v{vTw}, v{EX}, v{EX + 1} offset0:1 offset1:129", z()]),
        (P('v', 0, 5), [z()]),
        (P('v', 0, 6), [f"v_mov_b32 v{HV}, s{sOK2}"]),
        (P('v', 0, 7), [f"v_lshlrev_b32 v{HS}, 3, v{vL16}"]),
        (P('v', 1, 1), [e.lds_writes_done]),
        (P('v', 1, 2), [e.barrier] + xread(0)),
        (P('v', 1, 3), xread(1) + [z()]),
        (P('v', 1, 4), xread(2) + [z()]),
        (P('v', 1, 5), xread(3) + [z()]),
        (P('v', 1, 6), [z()]),
        (P('v', 1, 7), [st_(4), lw(4), z()]),
        (smx(0), [v0p[0], v0p[1]]),
        (smx(2), [kxread(5), v0p[2], lw(1)]),
        (smx(4), [kxread(7), z(), z()]),
        (smx(6), [f"s_cmp_eq_u32 s{sStep}, 63", v1p[0], v1p[1]]),
        (smm(0), [v1p[2], z()]),
        (smm(1), ["s_cbranch_scc1 L_final", z()] + ([f"v_exp_f32 v{m1}, v{vIdx}"] if cfg.get('warm', 1) == 2 else [])),
        (smm(2), [mx(m0, Sx[0], Sx[0] + 1, Sx[0] + 2), z()]),
        (smm(3), [z(), z()]),
        (smx(1), [lw(0), z(), z()]),
        (smx(3), [f"s_add_u32 s{sStep}, s{sStep}, 1"] + ([f"v_exp_f32 v{m1}, v{vIdx}"] if cfg.get('warm', 1) == 1 else [])),
        (smx(5), [f"s_xor_b32 s{sTog}, s{sTog}, 0x2000", mx(m0, m0, Sx[0] + 3, Sm + 2), f"v_max_f32 v{m0}, v{m0}, v{Sm + 3}"]),
        (smx(7), [wo[0], wo[1], wo[2], wo[3], f"s_mov_b32 s{sG}, s{sG2}", f"v_xor_b32 v{vKXr}, 0x2000, v{vKXr}"]),
    ]
    e.slots(seq)
    assert not zero
    e(f"""{mx(m0, m0, Sx[1], Sx[1] + 1)}
          {mx(m0, m0, Sx[1] + 2, Sx[1] + 3)}
          v_mov_b32 v{m1}, v{m0}
          v_permlane32_swap_b32 v{m0}, v{m1}
          v_max_f32 v{m0}, v{m0}, v{m1}
          v_mov_b32 v{m1}, v{m0}
          v_permlane16_swap_b32 v{m0}, v{m1}
          v_max_f32 v{m0}, v{m0}, v{m1}
          v_mul_f32 v{m0}, s{sC}, v{m0}""")
    for j in (0, 2, 4, 6, 10):
        e(f"v_pk_fma_f32 {vr(ACC + j, 2)}, {vr(ACC + j, 2)}, {sr(sC, 2)}, {vr(m0, 2)} op_sel_hi:[1,0,0] neg_lo:[0,0,1] neg_hi:[0,0,1]")
    for j in (0, 1, 2, 3, 4, 5, 6, 7, 10, 11):
        e(f"v_exp_f32 v{ACC + j}, v{ACC + j}")
    stamp(5)
    for j in range(4):
        e(f"v_cvt_pk_bf16_f32 v{Px + j}, v{ACC + 2 * j}, v{ACC + 2 * j + 1}")
    e(f"""v_cvt_pk_bf16_f32 v{PM}, v{Sm + 2}, v{Sm + 3}
          v_cvt_pk_bf16_f32 v{PM + 3}, v{Sm + 2}, v{Sm + 3}
          v_pk_add_f32 {vr(ACC, 2)}, {vr(ACC, 2)}, {vr(ACC + 2, 2)}
          v_pk_add_f32 {vr(ACC + 4, 2)}, {vr(ACC + 4, 2)}, {vr(ACC + 6, 2)}
          v_pk_add_f32 {vr(ACC, 2)}, {vr(ACC, 2)}, {vr(Sm + 2, 2)}
          v_pk_add_f32 {vr(m0, 2)}, {vr(ACC, 2)}, {vr(ACC + 4, 2)}""")
    O = SPARE
    mpos = cfg.get('mpos', 'w')
    mark = ["s_mov_b64 exec, 0xff", f"buffer_store_dword v{HV}, v{HS}, {W}, s{sHs} offen {st}", "s_mov_b64 exec, -1", st_(15)]
    hsetup = [f"v_bfe_u32 v{HA}, v{vL16}, 2, 7", f"v_mov_b32 v{HD}, {cfg.get('hdef', -1)}"]
    e.slots([
        (f"v_mfma_f32_16x16x32_bf16 {vr(O, 4)}, {vr(VX, 4)}, {vr(Px, 4)}, 0",
         [f"v_add_f32 v{m0}, v{m0}, v{m1}", f"v_mov_b32 v{m1}, v{m0}"]),
        (f"v_mfma_f32_16x16x32_bf16 {vr(O + 4, 4)}, {vr(VX + 4, 4)}, {vr(Px, 4)}, 0",
         (mark if mpos == 'q' else []) + [f"v_permlane32_swap_b32 v{m0}, v{m1}"]),
        (f"v_mfma_f32_16x16x16_bf16 {vr(O, 4)}, {vr(EX + 2, 2)}, {vr(PM, 2)}, {vr(O, 4)}",
         [f"v_add_f32 v{m0}, v{m0}, v{m1}", f"v_mov_b32 v{m1}, v{m0}"]),
        (f"v_mfma_f32_16x16x16_bf16 {vr(O + 4, 4)}, {vr(EX + 2, 2)}, {vr(PM + 2, 2)}, {vr(O + 4, 4)}",
         [f"v_permlane16_swap_b32 v{m0}, v{m1}", f"v_add_f32 v{m0}, v{m0}, v{m1}", f"v_rcp_f32 v{m0}, v{m0}",
          ] + (mark if mpos == 'p' else hsetup)),
    ])
    for j in range(0, 8, 2):
        e(f"v_pk_mul_f32 {vr(O + j, 2)}, {vr(O + j, 2)}, {vr(m0, 2)} op_sel_hi:[1,0]")
    OA = ACC + 16
    for j in range(4):
        e(f"v_cvt_pk_bf16_f32 v{O + j}, v{O + 2 * j}, v{O + 2 * j + 1}")
    e(f"ds_write_b128 v{vOw}, {vr(O, 4)}")
    if mpos == 'w' and pace:
        e("\n".join(mark[:3])); stamp(15)
    if mpos == 'p':
        e("\n".join(hsetup))
    if cfg.get('h0'):
        delay(e, cfg['h0']); ldH()
    e.barrier()
    e(f"""ds_read_b128 {vr(OA, 4)}, v{vL16} offset:{L_OB}
          ds_read_b128 {vr(OA + 4, 4)}, v{vL16} offset:{L_OB + 1024}""")
    ldH(); e("s_nop 2"); ldH()
    stamp(6)
    OUT = SPARE

    def pstore(c):
        return f"buffer_store_dwordx4 {vr(OUT + 4 * c, 4)}, v{vPst}, {W}, s{sPbaseS} offen offset:{c * 2048} {st}"

    tag = lambda j: f"v_and_or_b32 v{OUT + j}, v{OUT + j}, -2, s{sG}"
    seq = []
    for t in range(8):
        for kb in range(2):
            k, b = loc[('o', t, kb)]
            if t >= 2:
                p = post(MA + 4 * (t - 2), OUT + t - 2)
                fl = p[0:1] if kb == 0 else p[1:3]
                if kb == 0 and t % 2 == 1:
                    fl = fl + [tag(t - 3)]
            else:
                fl = ["s_nop 0"]
            n = 2 * t + kb
            if 1 <= n <= 8:
                fl = [wo[3 + n]] + fl
            hc = cfg.get('hc', 10)
            if n in cfg.get('hs', (0, 2, 4, 8)) and pace:
                fl = [ldH] + [x for x in fl if x != "s_nop 0"]
            if n == hc and pace:
                fl = fl + [f"v_cmp_gt_u32 vcc, s{sStep}, v{HD}"]
            if n == hc + 1:
                fl = fl + [st_(16)] + ([f"s_cbranch_vccnz L_hret_{sfx}"] if pace else []) + [f"L_hok_{sfx}:", st_(13)]
            if kb == 0 and t == 6:
                fl = [pstore(0)] + fl
            seq.append((f"v_smfmac_f32_16x16x64_bf16 {vr(MA + 4 * t, 4)}, {vr(OA + 4 * kb, 4)}, {vr(b, 8, k)}, v{vIdx}", fl))
    e.slots(seq)
    PL, D, SEL, PL2 = MA + 8, MA + 16, MA + 20, MA + 24
    e("\n".join(post(MA + 24, OUT + 6) + [tag(6)]))
    e("\n".join(post(MA + 28, OUT + 7)))
    e(pstore(1))
    stamp(7)
    trace_out('late', MA)
    e(f"s_bitcmp1_b32 s{S_WAVE}, 0\n s_cbranch_scc1 L_x1_{sfx}")
    e.slot_hook = None
    st0 = e.state()
    ldP = [f"buffer_load_dwordx4 {vr(PL, 4)}, v{vL16}, {W}, s{sPbaseL} offen sc1",
           f"buffer_load_dwordx4 {vr(PL + 4, 4)}, v{vL16}, {W}, s{sPbaseL} offen offset:1024 sc1"]
    tP, dM, eM, gM = cfg.get('tP', (260, 380)), cfg.get('dM', (260, 140)), cfg.get('eM', 200), cfg.get('gM', (120, 120))
    for w in range(2):
        if w:
            e.label(f"L_x{w}_{sfx}"); e.set_state(st0)
        clk = [[12, 48][w]]
        pa = prep_a_lines()
        valu = [f"v_cndmask_b32 v{SEL + j}, 0, v{vSelC}, {sr(sSel + 2 * j, 2)}" for j in range(4)] + scalar_lines() + [l for l in pa if not l.startswith('ds_')]
        if diag:
            valu += [f"s_cmp_eq_u32 s{sStep}, 10", f"s_cselect_b32 s{sDbgT + 6}, s36, s{sDbgT + 6}"] + [f"s_cselect_b32 s{k}, 0, s{k}" for k in range(12, 16)]
        reads = [l for l in pa if l.startswith('ds_')]
        pool = valu
        if cfg.get('fo', 2) == 1:
            head = mix(reads[:8], [l for l in valu if l.startswith('v_')], 2)
            e("\n".join(head)); clk[0] += 170
            pool = [l for l in valu if not l.startswith('v_')]; reads = reads[8:]
        if cfg.get('fo', 2) == 2:
            pool = [l for l in valu if not l.startswith('v_')]
            reads = mix(reads, [l for l in valu if l.startswith('v_')], 2)

        def until(t):
            while clk[0] + 4 <= t and pool:
                e(pool.pop(0)); clk[0] += 4
            if clk[0] + 4 <= t:
                delay(e, t - clk[0]); clk[0] = t

        until(tP[w])
        e.loose(ldP[0]); e.loose(ldP[1]); stamp(11)
        ldP2 = [x.replace(vr(PL, 4), vr(PL2, 4)).replace(vr(PL + 4, 4), vr(PL2 + 4, 4)) for x in ldP]
        rest = mix(reads, pool, 2)
        nsp = cfg.get('nsp', 14)
        e("\n".join(rest[:nsp]))
        delay(e, cfg.get('dP2', 0))
        e.loose(ldP2[0]); e.loose(ldP2[1])
        e("\n".join(rest[nsp:]))
        e(f"s_mov_b32 s{sNan}, 0")
        if diag:
            e.raw("  s_memtime s[36:37]")
        ny = 2
        e(f"""s_waitcnt vmcnt({ny + 1})
              L_redP{w}_{sfx}:
              v_mfma_f32_16x16x32_bf16 {vr(D, 4)}, {vr(PL, 4)}, {vr(SEL, 4)}, 0
              s_waitcnt vmcnt({ny})
              v_mfma_f32_16x16x32_bf16 {vr(D, 4)}, {vr(PL + 4, 4)}, {vr(SEL, 4)}, {vr(D, 4)}
              v_xor_b32 v{C0}, s{sG}, v{PL}
              v_bitop3_b32 v{C0}, v{C0}, v{PL + 2}, s{sG} bitop3:0xf6
              v_bitop3_b32 v{C0}, v{C0}, v{PL + 4}, s{sG} bitop3:0xf6
              v_bitop3_b32 v{C0}, v{C0}, v{PL + 6}, s{sG} bitop3:0xf6
              v_and_b32 v{C0}, 1, v{C0}
              v_cmp_ne_u32 vcc, 0, v{C0}
              s_cbranch_vccnz L_reP{w}_{sfx}
              v_permlane32_swap_b32 v{D}, v{D + 2}
              v_permlane32_swap_b32 v{D + 1}, v{D + 3}
              v_add_f32 v{D}, v{D}, v{D + 2}
              v_add_f32 v{D + 1}, v{D + 1}, v{D + 3}
              v_permlane16_swap_b32 v{D}, v{D + 1}
              v_add_f32 v{D}, v{D}, v{D + 1}
              v_mov_b32_dpp v{D + 1}, v{D} quad_perm:[2,3,0,1] row_mask:0xf bank_mask:0xf
              v_cvt_pk_bf16_f32 v{D}, v{D}, v{D + 1}
              v_min_u32 v{D}, -2, v{D}
              v_cndmask_b32 v{VX + 4}, v{D}, -1, {sr(sArm, 2)}
              buffer_store_dword v{VX + 4}, v{vMst}, {W}, s{sMn2} offen {st}""")
        stamp(8)
        pb = ["s_waitcnt vmcnt(1)"] + prep_b_lines()
        d = dM[w]
        if d >= 100:
            e("\n".join(pb)); d -= 100; pb = []
        delay(e, d)
        e.loose(mload(0)); stamp(12)
        d = gM[w]
        if pb:
            pb[0] = "s_waitcnt vmcnt(2)"
            e("\n".join(pb)); d -= 100
        delay(e, d)
        e.loose(mload(0)); e.loose(mload(1))
        e(f"""s_bitcmp1_b64 {sr(sFm, 2)}, s{sOK}
              s_waitcnt lgkmcnt(0)
              s_cbranch_scc1 L_step_{sfx}
              s_branch L_flag_{sfx}""")
        e.forget()
        e(f"L_reP{w}_{sfx}:\n s_waitcnt vmcnt(0)")
        for j in range(0, 8, 2):
            e(f"v_mov_b64 {vr(PL + j, 2)}, {vr(PL2 + j, 2)}")
        e.loose(ldP2[0]); e.loose(ldP2[1])
        e(f"""{'s_add_u32 s12, s12, 1' if diag else ''}
              s_sub_u32 s{S_SPIN}, s{S_SPIN}, 1
              s_cbranch_scc0 L_redP{w}_{sfx}
              s_branch L_end""")
    e.forget()
    e(f"L_hret_{sfx}:")
    for k in range(6):
        e(f"v_cmp_gt_u32 vcc, s{sStep}, v{HD}")
        ldH()
        if diag:
            e("s_add_u32 s15, s15, 1")
        e(f"s_cbranch_vccz L_{'hrel' if cfg.get('dH') is not None else 'hok'}_{sfx}")
    e(f"""s_sub_u32 s{S_SPIN}, s{S_SPIN}, 1
          s_waitcnt vmcnt(24)
          s_cbranch_scc0 L_hret_{sfx}
          s_branch L_end
          L_hrel_{sfx}:""")
    delay(e, cfg.get('dH') or 0)
    e(f"s_branch L_hok_{sfx}")
    e.forget()
    e(f"""L_flag_{sfx}:
          v_lshrrev_b32 v{C0}, 2, v{vL16}
          buffer_load_dword v{C0}, v{C0}, {W}, s{sFl} offen sc1
          s_sub_u32 s{S_SPIN}, s{S_SPIN}, 1
          s_cbranch_scc1 L_end
          v_cmp_ne_u32 {sr(sFm, 2)}, 0, v{C0}
          s_bitcmp1_b64 {sr(sFm, 2)}, s{sOK}
          s_cbranch_scc1 L_step_{sfx}
          s_branch L_flag_{sfx}""")
    e.forget()
    e(f"L_retE_{sfx}:")
    e.loose(mload(0)); e.loose(mload(1))
    e(f"""{'s_add_u32 s13, s13, 1' if diag else ''}
          s_sub_u32 s{S_SPIN}, s{S_SPIN}, 1
          s_waitcnt vmcnt(3)
          s_cbranch_scc0 L_chkE_{sfx}
          s_branch L_end""")
    e(f"L_retL_{sfx}:")
    e.loose(mload(1))
    e(f"""{'s_add_u32 s14, s14, 1' if diag else ''}
          s_sub_u32 s{S_SPIN}, s{S_SPIN}, 1
          s_cbranch_scc1 L_end
          s_bitcmp1_b32 s{sNan}, 0
          s_bitset1_b32 s{sNan}, 0
          s_waitcnt vmcnt(4)
          s_cbranch_scc0 L_retL1_{sfx}
          s_waitcnt vmcnt(1)
          L_retL1_{sfx}:""")
    e("\n".join(cl_))
    e(f"""ds_write_b128 v{vMw}, {vr(MA + 4, 4)} offset:4096
          s_cbranch_vccz L_okL_{sfx}
          s_branch L_retL_{sfx}""")


def chain_final(e, cfg):
    e.forget()
    e(f"""L_final:
          s_add_u32 s{sExp}, s{sExp}, 4096
          buffer_store_dwordx4 {vr(EX, 4)}, v{vL16}, {W}, s{sExp} offen sc1
          v_mov_b32 v{TMP + 1}, 64
          s_waitcnt vmcnt(0) lgkmcnt(0)
          buffer_store_dword v{TMP + 1}, off, {W}, s{sFch} sc1""")
    if cfg.get('diag'):
        e(f"""s_memrealtime {sr(sDbgT + 12, 2)}
              s_lshl_b32 s{sA}, s{S_ROLE}, 2
              s_add_u32 s{sA}, s{sA}, s{S_WAVE}
              s_lshl_b32 s{sA}, s{sA}, 6
              s_add_u32 s{sA}, s{sA}, 0x6000000
              s_waitcnt lgkmcnt(0)
              s_sub_u32 s{sDbgT + 8}, s36, s{sDbgT + 6}""")
        for n, r in enumerate([sDbgT + 8, sDbgT + 5, S_SPIN, sDbgT + 14, sDbgT + 10, sDbgT + 12, 12, 13, 14, 15]):
            e(f"v_mov_b32 v{TMP + 2}, s{r}\n buffer_store_dword v{TMP + 2}, off, {W}, s{sA} offset:{4 * n}")
    dbg_max(e, cfg, 12, v=TMP + 2)
    e("s_waitcnt vmcnt(0)\n s_branch L_end")


def chain(e, cfg):
    CFG.clear(); CFG.update(cfg)
    chain_startup(e, cfg)
    chain_loop(e, cfg, 'f', '')
    chain_loop(e, cfg, 's', 'sc1')
    chain_final(e, cfg)
```

```python
from common import *

W = sr(S_WS, 4)
DBG = sr(S_DBG, 4)
sWid, sA, sB, sC_, sD, sE, sF, sG, sH, sI, sJ, sK = range(50, 62)
S_W0, S_W1, S_W2, S_X = 64, 68, 72, 76
NEG = 0xf149f2ca


def wait_init(e, tag, tmp):
    e(f"""L_wi_{tag}:
          buffer_load_dword v{tmp}, off, {DBG}, 0 offset:{D_INIT} sc1
          s_sub_u32 s{S_SPIN}, s{S_SPIN}, 1
          s_cbranch_scc1 L_end
          v_readfirstlane_b32 s{sA}, v{tmp}
          s_and_b32 s{sA}, s{sA}, 0xffff
          s_cmp_eq_u32 s{sA}, 256
          s_cbranch_scc0 L_wi_{tag}""")


def count_in(e, tmp):
    e(f"""v_mov_b32 v{tmp}, 1
          s_mov_b64 exec, 1
          buffer_atomic_add v{tmp}, off, {DBG}, 0 offset:{D_INIT}
          s_mov_b64 exec, -1""")


def srd_sel(e, s, pa, pb, na, nb):
    e(f"""s_cselect_b32 s{s}, s{pa}, s{pb}
          s_cselect_b32 s{s+1}, s{pa+1}, s{pb+1}
          s_mov_b32 s{s+2}, {nb}
          s_cselect_b32 s{s+2}, {na}, s{s+2}
          s_mov_b32 s{s+3}, 0x20000""")


def lane_consts(e, lane, l16, sig):
    e(f"""v_and_b32 v{lane}, 63, v0
          v_lshlrev_b32 v{l16}, 4, v{lane}
          v_and_b32 v{sig}, 39, v{lane}
          v_bfe_u32 v{lane + 1}, v{lane}, 3, 1
          v_lshl_or_b32 v{sig}, v{lane + 1}, 4, v{sig}
          v_bfe_u32 v{lane + 1}, v{lane}, 4, 1
          v_lshl_or_b32 v{sig}, v{lane + 1}, 3, v{sig}
          v_lshlrev_b32 v{sig}, 4, v{sig}""")


XROW = 1040
XBUF = 32 * XROW
RING0 = 33792


def proj(e, cfg):
    lane, t1, vL16, vSig, vSrc, vTr, vXr, vT, vIn = 1, 2, 3, 4, 5, 6, 7, 8, 9
    XF, ACC, OUT = 16, 32, 80
    sHH, sSeg, sStride, sCol, sUnit, sFlag, sXb, sPrev = sC_, sD, sE, sF, sG, sH, sI, sJ
    e(f"""s_mul_i32 s{sHH}, s{sWid}, 171
          s_lshr_b32 s{sHH}, s{sHH}, 10
          s_mul_i32 s{sA}, s{sHH}, 6
          s_sub_u32 s{sSeg}, s{sWid}, s{sA}
          s_cmp_lt_u32 s{sHH}, 32""")
    srd_sel(e, S_W0, P_WQ, P_AWQKV, 0x400000, 0x180000)
    srd_sel(e, S_W1, P_WK, P_AWQKV, 0x400000, 0x180000)
    srd_sel(e, S_W2, P_WV, P_AWQKV, 0x400000, 0x180000)
    srd_sel(e, S_X, P_BX, P_AX, 0x200000, 0x200000)
    e(f"""s_mov_b32 s{sStride}, 3072
          s_cselect_b32 s{sStride}, 8192, s{sStride}
          s_cselect_b32 s{sK}, 0, 1024
          s_and_b32 s{sCol}, s{sHH}, 31
          s_lshl_b32 s{sCol}, s{sCol}, 8""")
    lane_consts(e, lane, vL16, vSig)
    e(f"""v_lshrrev_b32 v{t1}, 4, v{lane}
          v_mul_lo_u32 v{vSrc}, v{t1}, s{sStride}
          v_and_b32 v{t1}, 15, v{lane}
          v_lshl_add_u32 v{vSrc}, v{t1}, 4, v{vSrc}""")
    e(f"""v_lshrrev_b32 v{t1}, 5, v{lane}
          v_lshlrev_b32 v{vTr}, 11, v{t1}
          v_bfe_u32 v{t1}, v{lane}, 2, 2
          v_lshl_add_u32 v{vTr}, v{t1}, 8, v{vTr}
          v_bfe_u32 v{t1}, v{lane}, 4, 1
          v_lshl_add_u32 v{vTr}, v{t1}, 5, v{vTr}
          v_and_b32 v{t1}, 3, v{lane}
          v_lshl_add_u32 v{vTr}, v{t1}, 3, v{vTr}
          s_lshl_b32 s{sA}, s{S_WAVE}, 6
          v_add_u32 v{vTr}, s{sA}, v{vTr}""")
    e(f"""v_and_b32 v{t1}, 31, v{lane}
          v_mul_u32_u24 v{vXr}, {XROW}, v{t1}
          v_lshrrev_b32 v{t1}, 5, v{lane}
          v_lshl_add_u32 v{vXr}, v{t1}, 4, v{vXr}""")
    e(f"""s_lshl_b32 s{sA}, s{sHH}, 6
          s_add_u32 s{sA}, s{sA}, s{sSeg}
          s_mul_i32 s{sUnit}, s{sA}, {UNIT}
          s_lshl_b32 s{sB}, s{S_WAVE}, 11
          s_add_u32 s{sUnit}, s{sUnit}, s{sB}
          s_lshl_b32 s{sFlag}, s{sA}, 2
          s_add_u32 s{sFlag}, s{sFlag}, {F_QKV}
          s_mov_b32 s{sXb}, 0""")

    def xdma(seg_s, buf_s):
        e(f"""s_lshl_b32 s{sA}, s{seg_s}, 15
              s_lshl_b32 s{sB}, s{S_WAVE}, 13
              s_add_u32 s{sA}, s{sA}, s{sB}
              s_mul_i32 s{sB}, s{S_WAVE}, {8 * XROW}
              s_add_u32 s{sB}, s{sB}, s{buf_s}""")
        return [f"""s_add_u32 m0, s{sB}, {j * XROW}
                  s_add_u32 s3, s{sA}, {j * 1024}
                  buffer_load_dwordx4 v{vL16}, {sr(S_X, 4)}, s3 offen lds""" for j in range(8)]

    for l in xdma(sSeg, sXb):
        e(l)
    sRow = sPrev
    e(f"""s_lshl_b32 s{sA}, s{S_WAVE}, 4
          s_mul_i32 s{sRow}, s{sA}, s{sStride}
          s_add_u32 s{sRow}, s{sRow}, s{sCol}
          s_lshl_b32 s62, s{sStride}, 2
          s_lshl_b32 s63, s{S_WAVE}, 12""")
    order = [1, 2, 0]
    srds = [S_W0, S_W1, S_W2]
    dst = [('a', 0), ('a', 128), ('v', 128)]
    marks = {}

    def dma(r):
        m, b = order[r // 8], r % 8
        e(f"""s_mul_i32 s{sA}, s{sStride}, {64 * b}
              s_add_u32 s{sA}, s{sA}, s{sRow}
              s_mul_i32 s{sB}, s{sK}, {m}
              s_add_u32 s{sA}, s{sA}, s{sB}""")
        for j in range(4):
            e(f"""s_add_u32 m0, s63, {RING0 + (r % 7) * 16384 + j * 1024}
                  buffer_load_dwordx4 v{vSrc}, {sr(srds[m], 4)}, s{sA} offen lds""")
            if j < 3:
                e(f"s_add_u32 s{sA}, s{sA}, s62")
        marks[r] = e.vm[-1]

    for r in range(6):
        dma(r)
    for r in range(24):
        m, b = order[r // 8], r % 8
        e.wait(vm=len(e.vm) - 1 - e.vm.index(marks[r]), lgkm=0)
        e("s_barrier")
        if r == 0:
            e(f"s_cmp_lg_u32 s{S_WAVE}, 0\n s_cbranch_scc1 L_pj_in")
            count_in(e, vT)
            e.vm.pop()
            e.label("L_pj_in")
        if r + 6 < 24:
            dma(r + 6)
        e(f"v_add_u32 v{vT + 2}, {RING0 + (r % 7) * 16384}, v{vTr}")
        k, base = dst[m]
        for ksl in range(4):
            for z in range(2):
                e(f"ds_read_b64_tr_b16 {vr(base + 4 * (4 * b + ksl) + 2 * z, 2, k)}, v{vT + 2} offset:{(16 * ksl + 4 * z) * 256}")
    e.wait(vm=0, lgkm=0)
    dbg_max(e, cfg, 14, v=vT + 3)
    wait_init(e, 'pj', vT)
    if cfg.get('diag'):
        e("s_memrealtime s[86:87]\n s_waitcnt lgkmcnt(0)")
    e(f"s_mov_b32 s{sPrev}, 0\n v_mov_b32 v{vIn}, 1")
    e.forget()
    e.label("L_pj_loop")
    e(f"""s_waitcnt vmcnt(6)
          s_barrier
          v_add_u32 v{vT}, s{sXb}, v{vXr}
          s_add_u32 s62, s{sSeg}, 6
          s_min_u32 s62, s62, 63
          s_sub_u32 s63, {XBUF}, s{sXb}""")
    nxt = xdma(62, 63)
    for ks in range(3):
        e(f"ds_read_b128 {vr(XF + 4 * ks, 4)}, v{vT} offset:{32 * ks}")
    for ks in range(32):
        x = vr(XF + 4 * (ks % 4), 4)
        c = [('0' if ks == 0 else vr(ACC + 16 * m, 16)) for m in range(3)]
        e(f"v_mfma_f32_32x32x16_bf16 {vr(ACC, 16)}, {vr(4 * ks, 4, 'a')}, {x}, {c[0]}")
        if ks + 3 < 32:
            e(f"ds_read_b128 {vr(XF + 4 * ((ks + 3) % 4), 4)}, v{vT} offset:{32 * (ks + 3)}")
        e(f"v_mfma_f32_32x32x16_bf16 {vr(ACC + 16, 16)}, {vr(128 + 4 * ks, 4, 'a')}, {x}, {c[1]}")
        if ks < 8:
            e(nxt[ks])
        if ks == 20:
            e.comment("the previous segment's stores of every wave are complete behind this barrier: raise its flag")
            e(f"""s_waitcnt vmcnt(8)
                  s_barrier
                  s_cmp_eq_u32 s{sPrev}, 0
                  s_cbranch_scc1 L_pj_nf
                  s_mov_b64 exec, 1
                  buffer_store_dword v{vIn}, off, {W}, s{sPrev} sc1
                  s_mov_b64 exec, -1
                  L_pj_nf:""")
            e.vm.pop()
        e(f"v_mfma_f32_32x32x16_bf16 {vr(ACC + 32, 16)}, {x}, {vr(128 + 4 * ks, 4)}, {c[2]}")
    for m in range(3):
        for j in range(8):
            e(f"v_cvt_pk_bf16_f32 v{OUT + 8 * m + j}, v{ACC + 16 * m + 2 * j}, v{ACC + 16 * m + 2 * j + 1}")
        a = vSig if m == 1 else vL16
        e(f"""s_add_u32 s{sA}, s{sUnit}, {8192 * m}
              buffer_store_dwordx4 {vr(OUT + 8 * m, 4)}, v{a}, {W}, s{sA} offen sc1
              buffer_store_dwordx4 {vr(OUT + 8 * m + 4, 4)}, v{a}, {W}, s{sA} offen offset:1024 sc1""")
    e(f"""s_cmp_eq_u32 s{S_WAVE}, 0
          s_cselect_b32 s{sPrev}, s{sFlag}, 0
          s_add_u32 s{sFlag}, s{sFlag}, 24
          s_add_u32 s{sUnit}, s{sUnit}, {6 * UNIT}
          s_sub_u32 s{sXb}, {XBUF}, s{sXb}
          s_add_u32 s{sSeg}, s{sSeg}, 6
          s_cmp_lt_u32 s{sSeg}, 64
          s_cbranch_scc1 L_pj_loop
          s_waitcnt vmcnt(0)
          s_barrier
          s_cmp_eq_u32 s{sPrev}, 0
          s_cbranch_scc1 L_phase2
          s_mov_b64 exec, 1
          buffer_store_dword v{vIn}, off, {W}, s{sPrev} sc1
          s_mov_b64 exec, -1""")


def poll_ge(e, tag, tmp, voff, soff, cmpv, nl):
    off = f"v{voff}" if voff is not None else "off"
    e(f"""L_pg_{tag}:
          buffer_load_dword v{tmp}, {off}, {W}, {soff} {'offen' if voff is not None else ''} sc1
          s_sub_u32 s{S_SPIN}, s{S_SPIN}, 1
          s_cbranch_scc1 L_end
          v_cmp_gt_u32 vcc, {cmpv}, v{tmp}
          s_and_b32 vcc_lo, vcc_lo, {(1 << nl) - 1}
          s_cbranch_scc0 L_pk_{tag}
          s_sleep 4
          s_branch L_pg_{tag}
          L_pk_{tag}:""")


def nap_until(e, tag, tmp, soff, need, st, unit):
    e(f"""L_nap_{tag}:
          buffer_load_dword v{tmp}, off, {W}, {soff} sc1
          s_sub_u32 s{S_SPIN}, s{S_SPIN}, 1
          s_cbranch_scc1 L_end
          v_readfirstlane_b32 s{st}, v{tmp}
          s_sub_u32 s{st}, {need}, s{st}
          s_cbranch_scc1 L_napx_{tag}
          s_cmp_eq_u32 s{st}, 0
          s_cbranch_scc1 L_napx_{tag}
          s_min_u32 s{st}, s{st}, 8
          L_napl_{tag}:
          s_sleep {unit}
          s_sub_u32 s{st}, s{st}, 1
          s_cmp_lg_u32 s{st}, 0
          s_cbranch_scc1 L_napl_{tag}
          s_branch L_nap_{tag}
          L_napx_{tag}:""")


def softmax_tail(e, vals, m0, m1, sC):
    v = list(vals)
    e(f"v_max3_f32 v{m0}, v{v[0]}, v{v[1]}, v{v[2]}")
    k = 3
    while k + 1 < len(v):
        e(f"v_max3_f32 v{m0}, v{m0}, v{v[k]}, v{v[k + 1]}"); k += 2
    if k < len(v):
        e(f"v_max_f32 v{m0}, v{m0}, v{v[k]}")
    e(f"""v_mov_b32 v{m1}, v{m0}
          v_permlane32_swap_b32 v{m0}, v{m1}
          v_max_f32 v{m0}, v{m0}, v{m1}
          v_mul_f32 v{m0}, s{sC}, v{m0}""")
    for r in v:
        e(f"v_fma_f32 v{r}, v{r}, s{sC}, -v{m0}")
    for r in v:
        e(f"v_exp_f32 v{r}, v{r}")
    e(f"v_add_f32 v{m0}, v{v[0]}, v{v[1]}\n v_add_f32 v{m1}, v{v[2]}, v{v[3]}")
    for k in range(4, len(v), 2):
        e(f"v_add_f32 v{m0}, v{m0}, v{v[k]}\n v_add_f32 v{m1}, v{m1}, v{v[k + 1]}")
    e(f"""v_add_f32 v{m0}, v{m0}, v{m1}
          v_mov_b32 v{m1}, v{m0}
          v_permlane32_swap_b32 v{m0}, v{m1}
          v_add_f32 v{m0}, v{m0}, v{m1}
          v_rcp_f32 v{m0}, v{m0}""")


def attn_b(e, cfg):
    lane, t1, vL16, vSig, vVm, vKm, vT, m0, m1, vOne, vF = range(1, 12)
    BIAS, Q, K, V, S, D0, D1, KM, VM, PX, PMm, O = 16, 32, 64, 96, 128, 144, 160, 176, 192, 208, 216, 128
    sSeg, sUnit, sExp, sOut, sFq, sFc, sFa, sCc, sLds = sC_, sD, sE, sF, sG, sH, sI, sJ, sK
    h = sWid
    lane_consts(e, lane, vL16, vSig)
    e(f"""v_and_b32 v{t1}, 31, v{lane}
          v_lshrrev_b32 v{vT}, 5, v{lane}
          v_lshlrev_b32 v{vT}, 2, v{vT}
          v_sub_u32 v{t1}, v{t1}, v{vT}
          v_mov_b32 v{vT}, {NEG}""")
    for r in range(16):
        e(f"v_cmp_gt_i32 vcc, {8 * (r >> 2) + (r & 3)}, v{t1}\n v_cndmask_b32 v{BIAS + r}, 0, v{vT}, vcc")
    e(f"""v_lshrrev_b32 v{t1}, 5, v{lane}
          v_lshlrev_b32 v{vVm}, 8, v{t1}
          v_and_b32 v{t1}, 15, v{lane}
          v_lshl_add_u32 v{vVm}, v{t1}, 4, v{vVm}
          v_bfe_u32 v{t1}, v{lane}, 4, 1
          v_lshl_add_u32 v{vVm}, v{t1}, 2, v{vVm}
          v_add_u32 v{vVm}, 8, v{vVm}""")
    e(f"""s_lshl_b32 s{sLds}, s{S_WAVE}, 12
          v_and_b32 v{t1}, 3, v{lane}
          v_lshlrev_b32 v{vKm}, 8, v{t1}
          v_lshrrev_b32 v{t1}, 5, v{lane}
          v_lshl_add_u32 v{vKm}, v{t1}, 6, v{vKm}
          v_bfe_u32 v{t1}, v{lane}, 2, 2
          v_lshl_add_u32 v{vKm}, v{t1}, 4, v{vKm}
          v_add_u32 v{vKm}, s{sLds}, v{vKm}
          v_lshlrev_b32 v{vF}, 2, v{lane}
          v_mov_b32 v{vOne}, 1""")
    for wc in range(4):
        e(f"v_mov_b64 {vr(VM + 4 * wc + 2, 2)}, 0")
    e(f"v_mov_b64 {vr(PMm + 2, 2)}, 0")
    e(f"""s_mov_b32 s{sSeg}, s{S_WAVE}
          s_lshl_b32 s{sA}, s{h}, 6
          s_add_u32 s{sA}, s{sA}, s{sSeg}
          s_mul_i32 s{sUnit}, s{sA}, {UNIT}
          s_lshl_b32 s{sExp}, s{sA}, 12
          s_add_u32 s{sExp}, s{sExp}, {WS_EXP}
          s_lshl_b32 s{sFq}, s{sA}, 2
          s_add_u32 s{sFq}, s{sFq}, {F_QKV}
          s_lshl_b32 s{sFc}, s{h}, 7
          s_add_u32 s{sFc}, s{sFc}, {F_CH}
          s_lshl_b32 s{sA}, s{sSeg}, 5
          s_add_u32 s{sA}, s{sA}, s{h}
          s_lshl_b32 s{sOut}, s{sA}, 13
          s_add_u32 s{sOut}, s{sOut}, {WS_OF}
          s_lshl_b32 s{sFa}, s{sA}, 2
          s_add_u32 s{sFa}, s{sFa}, {F_AT}
          s_mov_b32 s{sCc}, 0x3e0293ee""")
    e.wait(vm=0, lgkm=0)
    e.label("L_ab_loop")
    poll_ge(e, 'abq', vT, None, f"s{sFq}", 1, 1)
    e(f"s_add_u32 s{sA}, s{sUnit}, 4096")
    for base, a, off in ((K, vSig, 8192), (Q, vL16, 0), (V, vL16, 16384)):
        e(f"s_add_u32 s{sA}, s{sUnit}, {off}\n s_add_u32 s{sB}, s{sUnit}, {off + 4096}")
        for j in range(8):
            e(f"buffer_load_dwordx4 {vr(base + 4 * j, 4)}, v{a}, {W}, s{sA if j < 4 else sB} offen offset:{1024 * (j & 3)} sc1")
    for j in range(8):
        c = vr(BIAS, 16) if j == 0 else vr(S, 16)
        e(f"v_mfma_f32_32x32x16_bf16 {vr(S, 16)}, {vr(K + 4 * j, 4)}, {vr(Q + 4 * j, 4)}, {c}")
    e(f"s_add_u32 s{sA}, s{sSeg}, 1")
    e.wait(vm=0)
    if cfg.get('nap', 1):
        e(f"s_min_u32 s62, s{sSeg}, 62")
        nap_until(e, 'ab', vT, f"s{sFc}", "s62", sB, cfg.get('napu', 24))
    poll_ge(e, 'abc', vT, vF, f"s{sFc}", f"s{sA}", 4)
    e(f"s_mov_b32 m0, s{sLds}")
    for j in range(4):
        e(f"buffer_load_dwordx4 v{vL16}, {W}, s{sExp} offen offset:{1024 * j} sc1 lds")
    for wc in range(4):
        for a in range(2):
            e(f"buffer_load_dword v{VM + 4 * wc + a}, v{vVm}, {W}, s{sExp} offen offset:{1024 * wc + 512 * a} sc1")
    e.wait(vm=8)
    for wc in range(4):
        for z in range(2):
            e(f"ds_read_b64_tr_b16 {vr(KM + 4 * wc + 2 * z, 2)}, v{vKm} offset:{1024 * wc + 128 * z}")
    for wc in range(4):
        for ab, D in ((0, D0), (1, D1)):
            c = '0' if wc == 0 else vr(D, 16)
            e(f"v_mfma_f32_32x32x16_bf16 {vr(D, 16)}, {vr(KM + 4 * wc, 4)}, {vr(Q + 4 * (2 * wc + ab), 4)}, {c}")
    sm = [D0, D0 + 1, D0 + 4, D0 + 5]
    for r in sm:
        e(f"v_add_f32 v{r}, v{r}, v{r - D0 + D1 + 2}")
    softmax_tail(e, [S + r for r in range(16)] + sm, m0, m1, sCc)
    for j in range(8):
        e(f"v_cvt_pk_bf16_f32 v{PX + j}, v{S + 2 * j}, v{S + 2 * j + 1}")
    e(f"v_cvt_pk_bf16_f32 v{PMm}, v{D0}, v{D0 + 1}\n v_cvt_pk_bf16_f32 v{PMm + 1}, v{D0 + 4}, v{D0 + 5}")
    for wc in range(4):
        o = vr(O + 16 * wc, 16)
        e(f"""v_mfma_f32_32x32x16_bf16 {o}, {vr(V + 8 * wc, 4)}, {vr(PX, 4)}, 0
              v_mfma_f32_32x32x16_bf16 {o}, {vr(V + 8 * wc + 4, 4)}, {vr(PX + 4, 4)}, {o}
              v_mfma_f32_32x32x16_bf16 {o}, {vr(VM + 4 * wc, 4)}, {vr(PMm, 4)}, {o}""")
    e(f"s_add_u32 s{sB}, s{sOut}, 4096")
    for wc in range(4):
        o = O + 16 * wc
        for j in range(16):
            e(f"v_mul_f32 v{o + j}, v{o + j}, v{m0}")
        for j in range(8):
            e(f"v_cvt_pk_bf16_f32 v{Q + 8 * wc + j}, v{o + 2 * j}, v{o + 2 * j + 1}")
        for ab in range(2):
            j = 2 * wc + ab
            e(f"buffer_store_dwordx4 {vr(Q + 4 * j, 4)}, v{vL16}, {W}, s{sOut if j < 4 else sB} offen offset:{1024 * (j & 3)} sc1")
    e(f"""s_waitcnt vmcnt(0)
          s_mov_b64 exec, 1
          buffer_store_dword v{vOne}, off, {W}, s{sFa} sc1
          s_mov_b64 exec, -1
          s_add_u32 s{sUnit}, s{sUnit}, {4 * UNIT}
          s_add_u32 s{sExp}, s{sExp}, {4 * 4096}
          s_add_u32 s{sFq}, s{sFq}, 16
          s_add_u32 s{sOut}, s{sOut}, {4 * 32 * 8192}
          s_add_u32 s{sFa}, s{sFa}, {4 * 128}
          s_add_u32 s{sSeg}, s{sSeg}, 4
          s_cmp_lt_u32 s{sSeg}, 64
          s_cbranch_scc1 L_ab_loop
          s_branch L_end""")


def out_b(e, cfg):
    lane, t1, vL16, vSrc, vTr, vO, vSt, vT, vF, vRw, vRr = range(1, 12)
    ACC, RD = 16, 32
    sU, sSl, sRow, sLds, sOf, sFa, sTog = sC_, sD, sE, sF, sG, sH, sI
    srd(e, S_W0, P_WO, 0x400000)
    srd(e, S_W1, P_OUT, 0x400000)
    e(f"""s_sub_u32 s{sU}, s{sWid}, 64
          s_and_b32 s{sSl}, s{sU}, 15
          s_lshr_b32 s{sU}, s{sU}, 4
          v_and_b32 v{lane}, 63, v0
          v_lshlrev_b32 v{vL16}, 4, v{lane}
          v_lshlrev_b32 v{vF}, 2, v{lane}""")
    e(f"""v_lshrrev_b32 v{t1}, 2, v{lane}
          v_lshlrev_b32 v{vSrc}, 10, v{t1}
          v_and_b32 v{t1}, 3, v{lane}
          v_lshl_add_u32 v{vSrc}, v{t1}, 4, v{vSrc}
          s_lshl_b32 s{sRow}, s{S_WAVE}, 20
          s_lshl_b32 s{sA}, s{sSl}, 6
          s_add_u32 s{sRow}, s{sRow}, s{sA}
          s_lshl_b32 s{sLds}, s{S_WAVE}, 15""")
    e(f"""v_lshlrev_b32 v{vTr}, 3, v{t1}
          v_lshrrev_b32 v{t1}, 5, v{lane}
          v_lshl_add_u32 v{vTr}, v{t1}, 10, v{vTr}
          v_bfe_u32 v{t1}, v{lane}, 2, 3
          v_lshl_add_u32 v{vTr}, v{t1}, 6, v{vTr}
          v_add_u32 v{vTr}, s{sLds}, v{vTr}""")
    e(f"""v_lshrrev_b32 v{t1}, 4, v{lane}
          v_lshlrev_b32 v{vO}, 9, v{t1}
          v_lshlrev_b32 v{vSt}, 3, v{t1}
          v_and_b32 v{t1}, 15, v{lane}
          v_lshl_add_u32 v{vO}, v{t1}, 4, v{vO}
          v_lshl_add_u32 v{vSt}, v{t1}, 11, v{vSt}
          s_lshl_b32 s{sA}, s{S_WAVE}, 11
          s_add_u32 s{sA}, s{sA}, 131072
          v_add_u32 v{vRw}, s{sA}, v{vL16}
          s_lshl_b32 s{sA}, s{S_WAVE}, 10
          s_add_u32 s{sA}, s{sA}, 131072
          v_add_u32 v{vRr}, s{sA}, v{vL16}""")
    e.wait(vm=0, lgkm=0)
    e("s_barrier")
    marks = {}

    def dma(ks):
        for j in range(2):
            e(f"""s_add_u32 m0, s{sLds}, {(ks % 16) * 2048 + j * 1024}
                  s_add_u32 s{sA}, s{sRow}, {(32 * ks + 16 * j) * 1024}
                  buffer_load_dwordx4 v{vSrc}, {sr(S_W0, 4)}, s{sA} offen lds""")
        marks[ks] = e.vm[-1]

    for ks in range(15):
        dma(ks)
    for ks in range(32):
        e.wait(vm=len(e.vm) - 1 - e.vm.index(marks[ks]), lgkm=0)
        if ks + 15 < 32:
            dma(ks + 15)
        for dt in range(2):
            for z in range(2):
                e(f"ds_read_b64_tr_b16 {vr(8 * ks + 4 * dt + 2 * z, 2, 'a')}, v{vTr} offset:{(ks % 16) * 2048 + z * 512 + dt * 32}")
    e.wait(vm=0, lgkm=0)
    e(f"s_mov_b32 s{sTog}, 0")
    e.label("L_ob_loop")
    e(f"""s_lshr_b32 s{sA}, s{sU}, 1
          s_lshl_b32 s{sA}, s{sA}, 5
          s_lshl_b32 s{sB}, s{S_WAVE}, 3
          s_add_u32 s{sA}, s{sA}, s{sB}
          s_lshl_b32 s{sFa}, s{sA}, 2
          s_add_u32 s{sFa}, s{sFa}, {F_AT}
          s_lshl_b32 s{sOf}, s{sA}, 13
          s_and_b32 s{sB}, s{sU}, 1
          s_lshl_b32 s{sB}, s{sB}, 8
          s_add_u32 s{sOf}, s{sOf}, s{sB}
          s_add_u32 s{sOf}, s{sOf}, {WS_OF}""")
    if cfg.get('nap', 1):
        e(f"""s_lshr_b32 s62, s{sU}, 1
              s_add_u32 s62, s62, 1
              s_min_u32 s62, s62, 62
              s_and_b32 s63, s{sWid}, 31
              s_lshl_b32 s63, s63, 7
              s_add_u32 s63, s63, {F_CH}""")
        nap_until(e, 'ob', vT, "s63", "s62", sB, cfg.get('napu', 24))
    poll_ge(e, 'ob', vT, vF, f"s{sFa}", 1, 8)
    for ks in range(32):
        if ks % 2 == 0:
            e(f"s_add_u32 s{sA}, s{sOf}, {ks * 2048}")
        e(f"buffer_load_dwordx4 {vr(128 + 4 * ks, 4)}, v{vO}, {W}, s{sA} offen offset:{(ks & 1) * 2048} sc1")
    for ks in range(32):
        for dt in range(2):
            c = '0' if ks == 0 else vr(ACC + 4 * dt, 4)
            e(f"v_mfma_f32_16x16x32_bf16 {vr(ACC + 4 * dt, 4)}, {vr(8 * ks + 4 * dt, 4, 'a')}, {vr(128 + 4 * ks, 4)}, {c}")
    e(f"""v_add_u32 v{vT}, s{sTog}, v{vRw}
          ds_write_b128 v{vT}, {vr(ACC, 4)}
          ds_write_b128 v{vT}, {vr(ACC + 4, 4)} offset:1024""")
    e.barrier()
    e(f"""s_cmp_ge_u32 s{S_WAVE}, 2
          s_cbranch_scc1 L_ob_next
          v_add_u32 v{vT}, s{sTog}, v{vRr}""")
    for p in range(4):
        e(f"ds_read_b128 {vr(RD + 4 * p, 4)}, v{vT} offset:{2048 * p}")
    for r in range(4):
        e(f"""v_add_f32 v{RD + r}, v{RD + r}, v{RD + 4 + r}
              v_add_f32 v{RD + 8 + r}, v{RD + 8 + r}, v{RD + 12 + r}
              v_add_f32 v{RD + r}, v{RD + r}, v{RD + 8 + r}""")
    e(f"""v_cvt_pk_bf16_f32 v{RD}, v{RD}, v{RD + 1}
          v_cvt_pk_bf16_f32 v{RD + 1}, v{RD + 2}, v{RD + 3}
          s_lshl_b32 s{sA}, s{sU}, 15
          s_lshl_b32 s{sB}, s{sSl}, 6
          s_add_u32 s{sA}, s{sA}, s{sB}
          s_lshl_b32 s{sB}, s{S_WAVE}, 5
          s_add_u32 s{sA}, s{sA}, s{sB}
          buffer_store_dwordx2 {vr(RD, 2)}, v{vSt}, {sr(S_W1, 4)}, s{sA} offen offset:1024
          L_ob_next:
          s_xor_b32 s{sTog}, s{sTog}, 8192
          s_add_u32 s{sU}, s{sU}, 10
          s_cmp_lt_u32 s{sU}, 128
          s_cbranch_scc1 L_ob_loop
          s_branch L_end""")


def part_a(e, cfg):
    lane, t1, vL16, vSig, vSrc, vTr, vT, m0, m1, vSt, vW, vNeg = range(1, 13)
    BC, BP, BPX = 16, 32, 48
    SC, SP, O, PX = 64, 80, 96, 112
    Q, KC, KP, VC, VP = 128, 160, 192, 224, 48
    sSeg, sCh, sUnit, sPrevU, sFq, sCc, sRow = sC_, sD, sE, sF, sG, sH, sI
    srd(e, S_W0, P_AWO, 0x80000)
    srd(e, S_W1, P_OUT, 0x400000)
    lane_consts(e, lane, vL16, vSig)
    e(f"""s_sub_u32 s{sSeg}, s{sWid}, 32
          s_and_b32 s{sCh}, s{sSeg}, 1
          s_lshr_b32 s{sSeg}, s{sSeg}, 1
          s_mov_b32 s{sCc}, 0x3eb8aa3b""")
    e(f"""v_and_b32 v{t1}, 31, v{lane}
          v_lshrrev_b32 v{vT}, 5, v{lane}
          v_lshlrev_b32 v{vT}, 2, v{vT}
          v_sub_u32 v{t1}, v{t1}, v{vT}
          v_mov_b32 v{vNeg}, {NEG}""")
    for base, add in ((BC, 0), (BP, 32)):
        for r in range(16):
            e(f"""v_add_u32 v{vT}, {add - 8 * (r >> 2) - (r & 3)}, v{t1}
                  v_and_b32 v{vT}, 0xfffffff1, v{vT}
                  v_cmp_ne_u32 vcc, 0, v{vT}
                  v_cndmask_b32 v{base + r}, 0, v{vNeg}, vcc""")
    e(f"""v_lshrrev_b32 v{t1}, 5, v{lane}
          v_lshlrev_b32 v{vSrc}, 10, v{t1}
          v_and_b32 v{t1}, 31, v{lane}
          v_lshl_add_u32 v{vSrc}, v{t1}, 4, v{vSrc}
          v_lshlrev_b32 v{vSt}, 11, v{t1}
          s_lshl_b32 s{sRow}, s{S_WAVE}, 13
          s_lshl_b32 s{sA}, s{sCh}, 9
          s_add_u32 s{sRow}, s{sRow}, s{sA}
          s_lshl_b32 s63, s{S_WAVE}, 12""")
    e(f"""v_lshrrev_b32 v{t1}, 5, v{lane}
          v_lshlrev_b32 v{vTr}, 11, v{t1}
          v_lshl_add_u32 v{vSt}, v{t1}, 3, v{vSt}
          v_bfe_u32 v{t1}, v{lane}, 2, 2
          v_lshl_add_u32 v{vTr}, v{t1}, 9, v{vTr}
          v_bfe_u32 v{t1}, v{lane}, 4, 1
          v_lshl_add_u32 v{vTr}, v{t1}, 5, v{vTr}
          v_and_b32 v{t1}, 3, v{lane}
          v_lshl_add_u32 v{vTr}, v{t1}, 3, v{vTr}
          s_lshl_b32 s{sA}, s{S_WAVE}, 7
          v_add_u32 v{vTr}, s{sA}, v{vTr}
          s_lshl_b32 s{sA}, s{S_WAVE}, 13
          v_add_u32 v{vW}, s{sA}, v{vL16}""")
    e.wait(vm=0, lgkm=0)
    e("s_barrier")
    marks = {}

    def dma(r):
        for j in range(4):
            e(f"""s_add_u32 m0, s63, {(r % 8) * 16384 + j * 1024}
                  s_add_u32 s{sA}, s{sRow}, {(32 * r + 2 * j) * 1024}
                  buffer_load_dwordx4 v{vSrc}, {sr(S_W0, 4)}, s{sA} offen lds""")
        marks[r] = e.vm[-1]

    for r in range(7):
        dma(r)
    for r in range(16):
        e.wait(vm=len(e.vm) - 1 - e.vm.index(marks[r]), lgkm=0)
        e("s_barrier")
        if r + 7 < 16:
            dma(r + 7)
        e(f"v_add_u32 v{vT}, {(r % 8) * 16384}, v{vTr}")
        for hl in range(2):
            for dt in range(2):
                for z in range(2):
                    e(f"ds_read_b64_tr_b16 {vr(8 * (2 * r + hl) + 4 * dt + 2 * z, 2, 'a')}, v{vT} offset:{(16 * hl + 8 * z) * 512 + dt * 64}")
    e.wait(vm=0, lgkm=0)
    e.label("L_pa_loop")
    e(f"""s_add_u32 s{sA}, s{S_WAVE}, 32
          s_lshl_b32 s{sA}, s{sA}, 6
          s_add_u32 s{sA}, s{sA}, s{sSeg}
          s_mul_i32 s{sUnit}, s{sA}, {UNIT}
          s_lshl_b32 s{sFq}, s{sA}, 2
          s_add_u32 s{sFq}, s{sFq}, {F_QKV}
          s_cmp_eq_u32 s{sSeg}, 0
          s_cselect_b32 s{sA}, 0, {UNIT}
          s_cselect_b32 s{sB}, 0, 4
          s_cselect_b64 vcc, -1, 0
          s_sub_u32 s{sPrevU}, s{sUnit}, s{sA}
          s_sub_u32 s62, s{sFq}, s{sB}""")
    for r in range(8, 16):
        e(f"v_cndmask_b32 v{BP + r - 8}, v{BP + r}, v{vNeg}, vcc")
    poll_ge(e, 'pa1', vT, None, f"s{sFq}", 1, 1)
    poll_ge(e, 'pa2', vT, None, "s62", 1, 1)
    for base, a, u, off in ((Q, vL16, sUnit, 0), (KC, vSig, sUnit, 8192), (KP, vSig, sPrevU, 8192), (VC, vL16, sUnit, 16384)):
        e(f"s_add_u32 s{sA}, s{u}, {off}\n s_add_u32 s{sB}, s{u}, {off + 4096}")
        for j in range(8):
            e(f"buffer_load_dwordx4 {vr(base + 4 * j, 4)}, v{a}, {W}, s{sA if j < 4 else sB} offen offset:{1024 * (j & 3)} sc1")
    e(f"s_add_u32 s{sA}, s{sPrevU}, {16384 + 1024}\n s_add_u32 s{sB}, s{sPrevU}, {16384 + 1024 + 4096}")
    for wc in range(4):
        e(f"buffer_load_dwordx4 {vr(VP + 4 * wc, 4)}, v{vL16}, {W}, s{sA if wc < 2 else sB} offen offset:{2048 * (wc & 1)} sc1")
    e("s_barrier")
    for j in range(8):
        wc, ab = j >> 1, j & 1
        e(f"""v_mfma_f32_32x32x16_bf16 {vr(SC, 16)}, {vr(KC + 4 * j, 4)}, {vr(Q + 4 * j, 4)}, {vr(BC, 16)}
              v_mfma_f32_32x32x16_bf16 {vr(SP, 16)}, {vr(KP + 4 * j, 4)}, {vr(Q + 4 * j, 4)}, {vr(BP - 8, 16)}""")
        softmax_tail(e, [SC + r for r in range(16)] + [SP + r for r in range(8, 16)], m0, m1, sCc)
        for k in range(8):
            e(f"v_cvt_pk_bf16_f32 v{PX + k}, v{SC + 2 * k}, v{SC + 2 * k + 1}")
        for k in range(4):
            e(f"v_cvt_pk_bf16_f32 v{PX + 8 + k}, v{SP + 8 + 2 * k}, v{SP + 8 + 2 * k + 1}")
        o = vr(O, 16)
        e(f"""v_mfma_f32_32x32x16_bf16 {o}, {vr(VC + 8 * wc, 4)}, {vr(PX, 4)}, 0
              v_mfma_f32_32x32x16_bf16 {o}, {vr(VC + 8 * wc + 4, 4)}, {vr(PX + 4, 4)}, {o}
              v_mfma_f32_32x32x16_bf16 {o}, {vr(VP + 4 * wc, 4)}, {vr(PX + 8, 4)}, {o}""")
        for k in range(8):
            e(f"v_mul_f32 v{O + 8 * ab + k}, v{O + 8 * ab + k}, v{m0}")
        for k in range(4):
            e(f"v_cvt_pk_bf16_f32 v{124 + k}, v{O + 8 * ab + 2 * k}, v{O + 8 * ab + 2 * k + 1}")
        e(f"ds_write_b128 v{vW}, {vr(124, 4)} offset:{1024 * j}")
    e.barrier()
    for hd in range(32):
        e(f"ds_read_b128 {vr(128 + 4 * hd, 4)}, v{vL16} offset:{1024 * hd}")
        if hd >= 8:
            k = hd - 8
            for dt in range(2):
                c = '0' if k == 0 else vr(SC + 16 * dt, 16)
                e(f"v_mfma_f32_32x32x16_bf16 {vr(SC + 16 * dt, 16)}, {vr(8 * k + 4 * dt, 4, 'a')}, {vr(128 + 4 * k, 4)}, {c}")
    for k in range(24, 32):
        for dt in range(2):
            e(f"v_mfma_f32_32x32x16_bf16 {vr(SC + 16 * dt, 16)}, {vr(8 * k + 4 * dt, 4, 'a')}, {vr(128 + 4 * k, 4)}, {vr(SC + 16 * dt, 16)}")
    e(f"""s_lshl_b32 s{sA}, s{sSeg}, 16
          s_lshl_b32 s{sB}, s{sCh}, 9
          s_add_u32 s{sA}, s{sA}, s{sB}
          s_lshl_b32 s{sB}, s{S_WAVE}, 7
          s_add_u32 s{sA}, s{sA}, s{sB}""")
    for dt in range(2):
        for a in range(4):
            r = SC + 16 * dt + 4 * a
            d = O + 2 * (4 * dt + a)
            e(f"""v_cvt_pk_bf16_f32 v{d}, v{r}, v{r + 1}
                  v_cvt_pk_bf16_f32 v{d + 1}, v{r + 2}, v{r + 3}
                  buffer_store_dwordx2 {vr(d, 2)}, v{vSt}, {sr(S_W1, 4)}, s{sA} offen offset:{64 * dt + 16 * a}""")
    e(f"""s_add_u32 s{sSeg}, s{sSeg}, 16
          s_cmp_lt_u32 s{sSeg}, 64
          s_cbranch_scc1 L_pa_loop
          s_branch L_end""")


def worker(e, cfg):
    e(f"""s_sub_u32 s{sWid}, s{S_ROLE}, 32
          s_cmp_lt_u32 s{sWid}, 216
          s_cbranch_scc1 L_proj""")
    st = e.state()
    e(f"s_cmp_lg_u32 s{S_WAVE}, 0\n s_cbranch_scc1 L_sp_in\n s_waitcnt vmcnt(0)")
    count_in(e, 2)
    e.label("L_sp_in")
    wait_init(e, 'sp', 3)
    e("s_branch L_phase2")
    e.label("L_proj"); e.set_state(st)
    proj(e, cfg)
    e.label("L_phase2")
    dbg_max(e, cfg, 15, v=12)
    if cfg.get('diag'):
        e("s_memrealtime s[88:89]\n s_waitcnt lgkmcnt(0)")
    if cfg.get('nophase2'):
        e("s_branch L_end")
    e(f"""s_cmp_lt_u32 s{sWid}, 32
          s_cbranch_scc1 L_attn_b
          s_cmp_lt_u32 s{sWid}, 64
          s_cbranch_scc1 L_part_a""")
    st = e.state()
    out_b(e, cfg)
    e.label("L_attn_b"); e.set_state(st)
    attn_b(e, cfg)
    e.label("L_part_a"); e.set_state(st)
    part_a(e, cfg)
```

```python
import sys
from common import *
import chain3 as CH

HEADER = open('cdna_kernels/' + NAME + '.s.ref').read().split('; Override launch')[0]


def prologue(e, cfg):
    e(f"""s_cmp_ge_u32 s2, 256
          s_cbranch_scc1 L_end""")
    if cfg.get('diag'):
        e("s_memrealtime s[94:95]")
    e(f"""s_load_dwordx16 s[20:35], s[0:1], 0
          s_load_dwordx8 s[36:43], s[0:1], 64
          s_load_dwordx2 s[44:45], s[0:1], 96
          s_getreg_b32 s{S_XCC}, hwreg(HW_REG_XCC_ID, 0, 3)
          v_lshrrev_b32 v1, 6, v0
          v_readfirstlane_b32 s{S_WAVE}, v1
          s_mov_b32 s{S_SPIN}, {SPIN_MAX}
          s_waitcnt lgkmcnt(0)""")
    srd(e, S_WS, P_WSP, WS_SIZE)
    srd(e, S_DBG, P_DBG, 256)
    e(f"""s_cmp_lg_u32 s{S_WAVE}, 0
          s_cbranch_scc1 L_role_wait
          s_lshl_b32 s50, s{S_XCC}, 2
          v_mov_b32 v2, 1
          s_mov_b64 exec, 1
          buffer_atomic_add v2, off, {sr(S_DBG, 4)}, s50 sc0
          s_mov_b64 exec, 0xffffffff
          v_mov_b32 v3, 0
          v_lshlrev_b32 v4, 2, v0
          s_lshl_b32 s51, s2, 7
          s_add_u32 s51, s51, {WS_FLAG}
          buffer_store_dword v3, v4, {sr(S_WS, 4)}, s51 offen sc1
          s_mov_b64 exec, -1
          v_readfirstlane_b32 s52, v2
          s_lshl_b32 s53, s{S_XCC}, 5
          s_add_u32 s53, s53, s52
          s_cmp_lt_u32 s52, 32
          s_cbranch_scc1 L_role_got""")
    e(f"""v_mov_b32 v2, 1
          s_mov_b64 exec, 1
          buffer_atomic_add v2, off, {sr(S_DBG, 4)}, 0 offset:{D_OVER} sc0
          s_mov_b64 exec, -1
          v_readfirstlane_b32 s52, v2
          L_role_poll:
          buffer_load_dwordx4 v[4:7], off, {sr(S_DBG, 4)}, 0 sc1
          buffer_load_dwordx4 v[8:11], off, {sr(S_DBG, 4)}, 0 offset:16 sc1
          s_sub_u32 s{S_SPIN}, s{S_SPIN}, 1
          s_cbranch_scc1 L_end
          s_mov_b32 s62, 0""")
    for j in range(8):
        e(f"v_readfirstlane_b32 s{54 + j}, v{4 + j}\n s_add_u32 s62, s62, s{54 + j}")
    e("s_cmp_eq_u32 s62, 256\n s_cbranch_scc0 L_role_poll")
    for j in range(8):
        e(f"""s_min_u32 s62, s{54 + j}, 32
              s_add_u32 s53, s62, s52
              s_add_u32 s53, s53, {32 * j}
              s_sub_u32 s62, 32, s62
              s_cmp_lt_u32 s52, s62
              s_cbranch_scc1 L_role_got
              s_sub_u32 s52, s52, s62""")
    e(f"""s_branch L_end
          L_role_got:
          v_mov_b32 v2, s53
          v_mov_b32 v3, 0
          ds_write_b32 v3, v2
          s_waitcnt lgkmcnt(0)
          L_role_wait:
          s_barrier
          v_mov_b32 v3, 0
          ds_read_b32 v2, v3
          v_readfirstlane_b32 s{S_ROLE}, v2
          s_barrier
          s_and_b32 s{S_ROLE}, s{S_ROLE}, 255""")


def fake_worker(e, cfg):
    e(f"""s_cmp_lg_u32 s{S_WAVE}, 0
          s_cbranch_scc1 L_end
          s_waitcnt vmcnt(0)
          v_mov_b32 v2, 1
          s_mov_b64 exec, 1
          buffer_atomic_add v2, off, {sr(S_DBG, 4)}, 0 offset:{D_INIT}
          s_mov_b64 exec, -1
          s_cmp_ge_u32 s{S_ROLE}, {32 + NHH}
          s_cbranch_scc1 L_end
          L_fw_poll:
          buffer_load_dword v3, off, {sr(S_DBG, 4)}, 0 offset:{D_INIT} sc1
          s_sub_u32 s{S_SPIN}, s{S_SPIN}, 1
          s_cbranch_scc1 L_end
          v_readfirstlane_b32 s50, v3
          s_and_b32 s50, s50, 0xffff
          s_cmp_eq_u32 s50, 256
          s_cbranch_scc0 L_fw_poll
          s_sub_u32 s50, s{S_ROLE}, 32
          s_lshl_b32 s50, s50, 8
          s_add_u32 s50, s50, {F_QKV}
          v_mov_b32 v2, 1
          v_lshlrev_b32 v4, 2, v0
          buffer_store_dword v2, v4, {sr(S_WS, 4)}, s50 offen sc1
          s_waitcnt vmcnt(0)
          s_branch L_end""")


def build(cfg):
    e = Emitter()
    prologue(e, cfg)
    e(f"s_cmp_ge_u32 s{S_ROLE}, 32\n s_cbranch_scc1 L_worker")
    st = e.state()
    CH.chain(e, cfg)
    e.label("L_worker"); e.set_state(st)
    if cfg.get('fake_proj'):
        fake_worker(e, cfg)
    else:
        import workers
        workers.worker(e, cfg)
    e.label("L_end")
    if cfg.get('diag'):
        e.forget()
        e(f"""s_cmp_ge_u32 s2, 256
              s_cbranch_scc1 L_end2
              s_waitcnt vmcnt(0)
              s_memrealtime s[92:93]
              s_lshl_b32 s90, s{S_ROLE}, 2
              s_add_u32 s90, s90, s{S_WAVE}
              s_lshl_b32 s90, s90, 4
              s_add_u32 s90, s90, 0x6100000
              s_waitcnt lgkmcnt(0)
              v_mov_b32 v2, s94
              v_mov_b32 v3, s92
              v_mov_b32 v4, s88
              v_mov_b32 v5, s86
              buffer_store_dwordx4 v[2:5], off, {sr(S_WS, 4)}, s90
              L_end2:""")
    K = NAME + "_kernel"
    return HEADER + f"""; @launch grid=(256,1,1) block=(256,1,1) lds={LDS_BYTES}
.amdgcn_target "amdgcn-amd-amdhsa--gfx950"
.text
.globl {K}
.p2align 8
.type {K},@function
{K}:
""" + e.text() + f"""  s_endpgm
.section .rodata,"a"
.p2align 6
.amdhsa_kernel {K}
  .amdhsa_next_free_vgpr 512
  .amdhsa_next_free_sgpr 102
  .amdhsa_accum_offset 256
  .amdhsa_group_segment_fixed_size 0
  .amdhsa_kernarg_size 104
  .amdhsa_user_sgpr_count 2
  .amdhsa_user_sgpr_kernarg_segment_ptr 1
  .amdhsa_system_sgpr_workgroup_id_x 1
.end_amdhsa_kernel
"""


if __name__ == '__main__':
    out = sys.argv[1]
    cfg = eval(sys.argv[2]) if len(sys.argv) > 2 else {}
    open(out, 'w').write(build(cfg))
```

```python
from asm import *

NAME = "concat_heads__sliding_local_dilated__memory_aug_recurrent_mem_tr__prompt"
UNIT = 24576
NHH = 36
WS_QKV = 0
WS_OF = 0x3800000
WS_EXP = 0x4800000
WS_P = 0x5000000
WS_M = 0x5080000
WS_FLAG = 0x5090000
F_QKV = WS_FLAG
F_CH = WS_FLAG + 0x2800
F_AT = WS_FLAG + 0x4000
F_HINT = WS_FLAG + 0x6000
WS_SIZE = 0x10000000
SENT1 = 0x7F817F81
D_TICKET = 0
D_INIT = 32
D_OVER = 64
S_WS, S_DBG, S_T0, S_T1 = 4, 8, 12, 16
P_AX, P_AWQKV, P_AWO, P_BX, P_MEM0, P_WQ, P_WK, P_WV, P_WO, P_SEG, P_OUT, P_DBG, P_WSP = [20 + 2 * i for i in range(13)]
S_WAVE, S_ROLE, S_XCC, S_SPIN = 46, 47, 48, 49
LDS_BYTES = 163840
SPIN_MAX = 400000


def srd(e, s, ptr, nbytes):
    e(f"""s_mov_b32 s{s}, s{ptr}
          s_and_b32 s{s+1}, s{ptr+1}, 0xffff
          s_mov_b32 s{s+2}, {nbytes}
          s_mov_b32 s{s+3}, 0x20000""")


def dbg_max(e, cfg, word, neg=False, v=2):
    if cfg.get('dbgt'):
        e(f"""s_memrealtime s[92:93]
              s_waitcnt lgkmcnt(0)
              {'s_not_b32 s92, s92' if neg else ''}
              v_mov_b32 v{v}, s92
              s_mov_b64 exec, 1
              buffer_atomic_umax v{v}, off, {sr(S_DBG, 4)}, 0 offset:{4 * word}
              s_mov_b64 exec, -1""")
        e.vm.pop()
```

```python
import sys
from common import *
import chain3 as CH

HEADER = open('cdna_kernels/' + NAME + '.s.ref').read().split('; Override launch')[0]


def prologue(e, cfg):
    e(f"""s_cmp_ge_u32 s2, 256
          s_cbranch_scc1 L_end""")
    if cfg.get('diag'):
        e("s_memrealtime s[94:95]")
    e(f"""s_load_dwordx16 s[20:35], s[0:1], 0
          s_load_dwordx8 s[36:43], s[0:1], 64
          s_load_dwordx2 s[44:45], s[0:1], 96
          s_getreg_b32 s{S_XCC}, hwreg(HW_REG_XCC_ID, 0, 3)
          v_lshrrev_b32 v1, 6, v0
          v_readfirstlane_b32 s{S_WAVE}, v1
          s_mov_b32 s{S_SPIN}, {SPIN_MAX}
          s_waitcnt lgkmcnt(0)""")
    srd(e, S_WS, P_WSP, WS_SIZE)
    srd(e, S_DBG, P_DBG, 256)
    dbg_max(e, cfg, 10, True, 5, 31)
    e(f"""s_cmp_lg_u32 s{S_WAVE}, 0
          s_cbranch_scc1 L_role_wait
          s_lshl_b32 s50, s{S_XCC}, 2
          v_mov_b32 v2, 1
          s_mov_b64 exec, 1
          buffer_atomic_add v2, off, {sr(S_DBG, 4)}, s50 sc0
          s_mov_b64 exec, 0xffffffff
          v_mov_b32 v3, 0
          v_lshlrev_b32 v4, 2, v0
          s_lshl_b32 s51, s2, 7
          s_add_u32 s51, s51, {WS_FLAG}
          buffer_store_dword v3, v4, {sr(S_WS, 4)}, s51 offen sc1
          s_mov_b64 exec, -1
          v_readfirstlane_b32 s52, v2
          s_lshl_b32 s53, s{S_XCC}, 5
          s_add_u32 s53, s53, s52
          s_cmp_lt_u32 s52, 32
          s_cbranch_scc1 L_role_got""")
    e(f"""v_mov_b32 v2, 1
          s_mov_b64 exec, 1
          buffer_atomic_add v2, off, {sr(S_DBG, 4)}, 0 offset:{D_OVER} sc0
          s_mov_b64 exec, -1
          v_readfirstlane_b32 s52, v2
          L_role_poll:
          buffer_load_dwordx4 v[4:7], off, {sr(S_DBG, 4)}, 0 sc1
          buffer_load_dwordx4 v[8:11], off, {sr(S_DBG, 4)}, 0 offset:16 sc1
          s_sub_u32 s{S_SPIN}, s{S_SPIN}, 1
          s_cbranch_scc1 L_end
          s_mov_b32 s62, 0""")
    for j in range(8):
        e(f"v_readfirstlane_b32 s{54 + j}, v{4 + j}\n s_add_u32 s62, s62, s{54 + j}")
    e("s_cmp_eq_u32 s62, 256\n s_cbranch_scc0 L_role_poll")
    for j in range(8):
        e(f"""s_min_u32 s62, s{54 + j}, 32
              s_add_u32 s53, s62, s52
              s_add_u32 s53, s53, {32 * j}
              s_sub_u32 s62, 32, s62
              s_cmp_lt_u32 s52, s62
              s_cbranch_scc1 L_role_got
              s_sub_u32 s52, s52, s62""")
    e(f"""s_branch L_end
          L_role_got:
          v_mov_b32 v2, s53
          v_mov_b32 v3, 0
          ds_write_b32 v3, v2
          s_waitcnt lgkmcnt(0)
          L_role_wait:
          s_barrier
          v_mov_b32 v3, 0
          ds_read_b32 v2, v3
          v_readfirstlane_b32 s{S_ROLE}, v2
          s_barrier
          s_and_b32 s{S_ROLE}, s{S_ROLE}, 255""")


def fake_worker(e, cfg):
    e(f"""s_cmp_lg_u32 s{S_WAVE}, 0
          s_cbranch_scc1 L_end
          s_waitcnt vmcnt(0)
          v_mov_b32 v2, 1
          s_mov_b64 exec, 1
          buffer_atomic_add v2, off, {sr(S_DBG, 4)}, 0 offset:{D_INIT}
          s_mov_b64 exec, -1
          s_cmp_ge_u32 s{S_ROLE}, {32 + NHH}
          s_cbranch_scc1 L_end
          L_fw_poll:
          buffer_load_dword v3, off, {sr(S_DBG, 4)}, 0 offset:{D_INIT} sc1
          s_sub_u32 s{S_SPIN}, s{S_SPIN}, 1
          s_cbranch_scc1 L_end
          v_readfirstlane_b32 s50, v3
          s_and_b32 s50, s50, 0xffff
          s_cmp_eq_u32 s50, 256
          s_cbranch_scc0 L_fw_poll
          s_sub_u32 s50, s{S_ROLE}, 32
          s_lshl_b32 s50, s50, 8
          s_add_u32 s50, s50, {F_QKV}
          v_mov_b32 v2, 1
          v_lshlrev_b32 v4, 2, v0
          buffer_store_dword v2, v4, {sr(S_WS, 4)}, s50 offen sc1
          s_waitcnt vmcnt(0)
          s_branch L_end""")


def build(cfg):
    e = Emitter()
    prologue(e, cfg)
    e(f"s_cmp_ge_u32 s{S_ROLE}, 32\n s_cbranch_scc1 L_worker")
    st = e.state()
    CH.chain(e, cfg)
    e.label("L_worker"); e.set_state(st)
    if cfg.get('fake_proj'):
        fake_worker(e, cfg)
    else:
        import workers
        workers.worker(e, cfg)
    e.label("L_end")
    if cfg.get('dbgt'):
        e.forget()
        e("s_cmp_ge_u32 s2, 256\n s_cbranch_scc1 L_end3\n s_waitcnt vmcnt(0)")
        dbg_max(e, cfg, 13, mask=0)
        e.label("L_end3")
    if cfg.get('diag'):
        e.forget()
        e(f"""s_cmp_ge_u32 s2, 256
              s_cbranch_scc1 L_end2
              s_waitcnt vmcnt(0)
              s_memrealtime s[92:93]
              s_lshl_b32 s90, s{S_ROLE}, 2
              s_add_u32 s90, s90, s{S_WAVE}
              s_lshl_b32 s90, s90, 4
              s_add_u32 s90, s90, 0x6100000
              s_waitcnt lgkmcnt(0)
              v_mov_b32 v2, s94
              v_mov_b32 v3, s92
              v_mov_b32 v4, s88
              v_mov_b32 v5, s86
              buffer_store_dwordx4 v[2:5], off, {sr(S_WS, 4)}, s90
              L_end2:""")
    K = NAME + "_kernel"
    return HEADER + f"""; @launch grid=(256,1,1) block=(256,1,1) lds={LDS_BYTES}
.amdgcn_target "amdgcn-amd-amdhsa--gfx950"
.text
.globl {K}
.p2align 8
.type {K},@function
{K}:
""" + e.text() + f"""  s_endpgm
.section .rodata,"a"
.p2align 6
.amdhsa_kernel {K}
  .amdhsa_next_free_vgpr 512
  .amdhsa_next_free_sgpr 102
  .amdhsa_accum_offset 256
  .amdhsa_group_segment_fixed_size 0
  .amdhsa_kernarg_size 104
  .amdhsa_user_sgpr_count 2
  .amdhsa_user_sgpr_kernarg_segment_ptr 1
  .amdhsa_system_sgpr_workgroup_id_x 1
.end_amdhsa_kernel
"""


if __name__ == '__main__':
    out = sys.argv[1]
    cfg = eval(sys.argv[2]) if len(sys.argv) > 2 else {}
    open(out, 'w').write(build(cfg))
```

```python
from asm import *

NAME = "concat_heads__sliding_local_dilated__memory_aug_recurrent_mem_tr__prompt"
UNIT = 24576
NHH = 36
WS_QKV = 0
WS_OF = 0x3800000
WS_EXP = 0x4800000
WS_P = 0x5000000
WS_M = 0x5080000
WS_FLAG = 0x5090000
F_QKV = WS_FLAG
F_CH = WS_FLAG + 0x2800
F_AT = WS_FLAG + 0x4000
F_HINT = WS_FLAG + 0x6000
WS_SIZE = 0x10000000
SENT1 = 0x7F817F81
D_TICKET = 0
D_INIT = 32
D_OVER = 64
S_WS, S_DBG, S_T0, S_T1 = 4, 8, 12, 16
P_AX, P_AWQKV, P_AWO, P_BX, P_MEM0, P_WQ, P_WK, P_WV, P_WO, P_SEG, P_OUT, P_DBG, P_WSP = [20 + 2 * i for i in range(13)]
S_WAVE, S_ROLE, S_XCC, S_SPIN = 46, 47, 48, 49
LDS_BYTES = 163840
SPIN_MAX = 400000


def srd(e, s, ptr, nbytes):
    e(f"""s_mov_b32 s{s}, s{ptr}
          s_and_b32 s{s+1}, s{ptr+1}, 0xffff
          s_mov_b32 s{s+2}, {nbytes}
          s_mov_b32 s{s+3}, 0x20000""")


def dbg_max(e, cfg, word, neg=False, v=2, mask=7):
    if cfg.get('dbgt'):
        lb = e.newlabel('L_dm')
        e(f"""s_lshr_b32 s92, s2, 3
              s_and_b32 s92, s92, {mask}
              s_or_b32 s92, s92, s{S_WAVE}
              s_cbranch_scc1 {lb}
              s_memrealtime s[92:93]
              s_waitcnt lgkmcnt(0)
              {'s_not_b32 s92, s92' if neg else ''}
              v_mov_b32 v{v}, s92
              s_mov_b64 exec, 1
              buffer_atomic_umax v{v}, off, {sr(S_DBG, 4)}, 0 offset:{4 * word}
              s_mov_b64 exec, -1""")
        e.vm.pop()
        e.label(lb)
```

```python
from common import *

L_T, L_OB, L_DUMMY, L_KX, L_WL = 8192, 12288, 14336, 16384, 32768
vL16, vPst, vMst, vTw, vTr, vKXr, vOw, vWL0, vWL1, vMw, vIdx, vSelC = range(12)
EX, PM, VX = 12, 16, 20
TMP = 28
MA = 32
ACC = 64
X, KXR, SPARE = 88, 104, 120
R1 = [MA + 8, MA + 16, MA + 24, X, X + 8, KXR, KXR + 8, SPARE, X, X + 8]
WO_SB = [KXR, KXR + 8, X, X + 8, ACC, ACC + 8]
(sStep, sMcur, sProg, sMtog, sG, sKl, sPst2, sKV, sC, sExp, sMcur2, sMbaseS, sPbaseS, sPbaseL, sFl, sFch, sTog, sNan,
 sA, sB) = range(50, 70)
sSel = 70
sOK, sHl, sMn2 = 78, 79, 3
sArm, sFm = 18, 98
sVx, sVt, sHs, sOK2, sG2 = 96, 97, 16, 17, 100
HV, HS, HA, HD = TMP + 2, TMP + 3, VX + 2, VX + 3
S_M0 = 84
sDbgT = 80

STREAM = [('q', 0, 0), ('q', 1, 0), ('k', 0, 0), ('k', 1, 0), ('q', 0, 1), ('q', 1, 1), ('k', 0, 1), ('k', 1, 1),
          ('q', 0, 5), ('q', 0, 7),
          ('o', 5, 0), ('o', 5, 1), ('o', 6, 0), ('o', 6, 1), ('o', 7, 0), ('o', 7, 1)]
WLPOS = {op: p for op, p in zip(STREAM[10:14], range(4))}
WLPOS.update({op: 4 + p for p, op in enumerate(STREAM[14:16] + STREAM[:10])})
ALLOPS = [(m, ft, i) for m in 'qkv' for ft in range(2) for i in range(8)] + [('o', t, kb) for t in range(8) for kb in range(2)]
RES = {}
for n, op in enumerate([o for o in ALLOPS if o not in STREAM]):
    RES[op] = ('a', 8 * n) if n < 32 else ('v', 128 + 8 * (n - 32))
PARK = {}
for n, op in enumerate(STREAM[14:16] + STREAM[:10]):
    PARK[op] = 32 + 8 * n
for n, op in enumerate(STREAM[10:14]):
    PARK[op] = 48 + 8 * n
W = sr(S_WS, 4)
CFG = {}


def wl_addr(op, half):
    p = WLPOS[op]
    off = (p >> 1) * 16384 + (p & 1) * 2048 + half * 1024
    return (vWL0, off) if off < 65536 else (vWL1, off - 65536)


def wl_write(e, op, src):
    for half in range(2):
        a, off = wl_addr(op, half)
        e(f"ds_write_b128 v{a}, {vr(src + 4 * half, 4)} offset:{off}")


def wl_lines(op, dst):
    out = []
    for half in range(2):
        a, off = wl_addr(op, half)
        out.append(f"ds_read_b128 {vr(dst + 4 * half, 4)}, v{a} offset:{off}")
    return out


def delay(e, cyc):
    n = cyc // 4
    while n > 0:
        k = min(n, 16)
        e(f"s_nop {k - 1}")
        n -= k


def mix(reads, other, per=3):
    out = []
    other = list(other)
    for r in reads:
        out.append(r)
        for _ in range(per):
            if other:
                out.append(other.pop(0))
    return out + other


def mload(b):
    return f"buffer_load_dwordx4 {vr(MA + 4 * b, 4)}, v{vMw}, {W}, s{sMcur if b == 0 else sMcur2} offen sc1"


def kx_dma(e, ldsbase):
    e(f"""s_lshl_b32 s{sA}, s{S_WAVE}, 11
          s_add_u32 m0, s{sA}, {ldsbase}
          buffer_load_dwordx4 v{vL16}, {W}, s{sKV} offen sc1 lds
          buffer_load_dwordx4 v{vL16}, {W}, s{sKV} offen offset:1024 sc1 lds""")


def scalar_lines():
    return [x.strip() for x in f"""s_and_b32 s{sA}, s{sStep}, 3
          s_lshl_b32 s{sA}, s{sA}, 13
          s_add_u32 s{sMcur}, s{sA}, {WS_M}
          s_add_u32 s{sMcur2}, s{sA}, {WS_M + 4096}
          s_and_b32 s{sA}, s{sA}, 0x2000
          s_add_u32 s{sMn2}, s{sMbaseS}, s{sA}
          s_lshl_b32 s{sMtog}, s{sA}, 1
          s_sub_u32 s{sVx}, s{sKV}, s{sTog}
          s_add_u32 s{sVx}, s{sVx}, {8192 - L_KX}
          s_add_u32 s{sKV}, s{sKV}, {0 if CFG.get('samekv') else UNIT}
          s_add_u32 s{sVt}, s{sKV}, 8192
          s_xor_b32 s{sA}, s{sTog}, 0x2000
          s_add_u32 m0, s{sA}, s{sKl}
          s_cmp_gt_u32 s{sStep}, 1
          s_cselect_b32 s{sA}, 4096, 0
          s_add_u32 s{sExp}, s{sExp}, s{sA}
          s_add_u32 s{sOK2}, s{sStep}, 1
          s_min_u32 s{sOK}, s{sOK2}, 63
          s_max_u32 s{sProg}, s{sStep}, 1
          s_sub_u32 s{sProg}, s{sProg}, 1
          s_and_b32 s{sG2}, s{sOK2}, 1""".split('\n')]


def prep_a_lines():
    other = [f"v_mov_b64 {vr(ACC + j, 2)}, 0" for j in range(0, 24, 2)] + [f"v_lshlrev_b32 v{PM + 3}, 1, v{vL16}", f"v_lshrrev_b32 v{TMP}, 2, v{vL16}"]
    reads = sum([wl_lines(STREAM[o], R1[o]) for o in range(3, 8)], [])
    return mix(reads, other, 2)


def prep_b_lines():
    other = [f"v_xor_b32 v{vMst}, s{sMtog}, v{vMst}"] + [f"v_xor_b32 v{TMP + p}, {p << 10}, v{vMw}" for p in range(1, 4)]
    reads = sum([wl_lines(STREAM[o], R1[o]) for o in range(3)], [])
    return mix(reads, other, 1)


def chain_startup(e, cfg):
    h = S_ROLE
    tA, tB, tC, tD = EX, EX + 1, EX + 2, EX + 3
    t0, t1, t2, t3 = TMP, TMP + 1, TMP + 2, TMP + 3
    lane = PM
    chunks = [('o', kb, Q) for kb in range(2) for Q in range(4)] + [(m, b, 0) for m in 'qkv' for b in range(8)]
    ring = {4: L_WL + 2 * 16384, 5: L_WL + 3 * 16384, 6: L_WL + 4 * 16384, 0: L_WL + 5 * 16384, 1: L_WL + 6 * 16384,
            2: L_WL + 7 * 16384, 3: 0}
    ptr = {'q': P_WQ, 'k': P_WK, 'v': P_WV, 'o': P_WO}
    sHq, sHo, sLw = sMcur, sProg, sMcur2
    cur, marks = [None], {}

    def dma(r):
        m, x, Q = chunks[r]
        if cur[0] != m:
            srd(e, S_T0, ptr[m], 0x400000); cur[0] = m
        for i in range(4):
            if m == 'o':
                row = 64 * x + 32 * (Q >> 1) + 2 * (Q & 1) + 4 * (i >> 1) + (i & 1)
                e(f"""s_add_u32 s{sA}, s{sHo}, {row * 1024}
                      s_add_u32 m0, s{sLw}, {ring[r % 7] + i * 1024}
                      buffer_load_dwordx4 v{vL16}, {sr(S_T0, 4)}, s{sA} offen lds""")
            else:
                e(f"""s_add_u32 s{sA}, s{sHq}, {(128 * (x & 3) + 64 * (x >> 2) + 4 * i) * 8192}
                      s_add_u32 m0, s{sLw}, {ring[r % 7] + i * 1024}
                      buffer_load_dwordx4 v{tA}, {sr(S_T0, 4)}, s{sA} offen lds""")
        marks[r] = e.vm[-1]

    e(f"""v_and_b32 v{lane}, 63, v0
          v_lshlrev_b32 v{vL16}, 4, v{lane}
          s_and_b32 s{sA}, s{S_WAVE}, 1
          s_lshr_b32 s{sB}, s{S_WAVE}, 1
          s_lshl_b32 s{sHo}, s{h}, 17
          s_lshl_b32 s{sLw}, s{sA}, 14
          s_add_u32 s{sHo}, s{sHo}, s{sLw}
          s_lshl_b32 s{sLw}, s{sB}, 13
          s_add_u32 s{sHo}, s{sHo}, s{sLw}
          s_lshl_b32 s{sHq}, s{h}, 8
          s_lshl_b32 s{sLw}, s{S_WAVE}, 17
          s_add_u32 s{sHq}, s{sHq}, s{sLw}
          s_lshl_b32 s{sLw}, s{S_WAVE}, 12""")
    for r in range(6):
        dma(r)
    e(f"""v_lshrrev_b32 v{t0}, 4, v{lane}
          v_and_b32 v{t1}, 15, v{lane}
          s_lshl_b32 s{sA}, s{S_WAVE}, 10
          v_add_u32 v{vMw}, s{sA}, v{vL16}
          v_lshlrev_b32 v{PM + 3}, 2, v{lane}""")
    e(f"""v_lshrrev_b32 v{t2}, 2, v{lane}
          v_lshlrev_b32 v{t2}, 12, v{t2}
          v_and_b32 v{t3}, 3, v{lane}
          v_lshl_add_u32 v{vPst}, v{t3}, 4, v{t2}""")
    e(f"""v_and_b32 v{t2}, 1, v{lane}
          v_lshlrev_b32 v{t2}, 5, v{t2}
          v_lshl_add_u32 v{t2}, v{t0}, 3, v{t2}
          v_and_b32 v{t3}, 4, v{lane}
          v_add_u32 v{t2}, v{t2}, v{t3}
          v_and_b32 v{t3}, 8, v{lane}
          v_cmp_ne_u32 {sr(sArm, 2)}, 0, v{t3}
          v_lshl_add_u32 v{t2}, v{t3}, 11, v{t2}
          v_and_b32 v{t3}, 2, v{lane}
          v_lshl_add_u32 v{vMst}, v{t3}, 29, v{t2}""")
    srd(e, S_M0, P_MEM0, 8192)
    e(f"""v_and_b32 v{t2}, 1, v{lane}
          v_lshlrev_b32 v{tD}, 10, v{t2}
          v_lshl_add_u32 v{tD}, v{t0}, 1, v{tD}
          v_bfe_u32 v{t2}, v{lane}, 2, 1
          v_lshl_add_u32 v{tD}, v{t2}, 6, v{tD}
          s_and_b32 s{sA}, s{h}, 6
          s_lshl_b32 s{sA}, s{sA}, 10
          s_lshr_b32 s{sB}, s{h}, 3
          s_lshl_b32 s{sB}, s{sB}, 8
          s_add_u32 s{sA}, s{sA}, s{sB}
          s_and_b32 s{sB}, s{S_WAVE}, 1
          s_lshl_b32 s{sB}, s{sB}, 7
          s_add_u32 s{sA}, s{sA}, s{sB}
          s_lshr_b32 s{sB}, s{S_WAVE}, 1
          s_lshl_b32 s{sB}, s{sB}, 3
          s_add_u32 s{sA}, s{sA}, s{sB}
          s_and_b32 s{sB}, s{h}, 1
          s_lshl_b32 s{sB}, s{sB}, 4
          s_add_u32 s{sA}, s{sA}, s{sB}
          buffer_load_ushort v{VX}, v{tD}, {sr(S_M0, 4)}, s{sA} offen
          buffer_load_ushort v{VX + 1}, v{tD}, {sr(S_M0, 4)}, s{sA} offen offset:32""")
    e(f"""s_lshl_b32 s{sA}, s{S_WAVE}, 10
          s_add_u32 s{sA}, s{sA}, {L_T}
          v_lshlrev_b32 v{t2}, 5, v{t1}
          v_lshl_add_u32 v{t2}, v{t0}, 3, v{t2}
          v_add_u32 v{vTw}, s{sA}, v{t2}
          v_lshrrev_b32 v{t2}, 5, v{lane}
          v_lshlrev_b32 v{t2}, 9, v{t2}
          v_and_b32 v{t3}, 31, v{lane}
          v_lshl_add_u32 v{t2}, v{t3}, 3, v{t2}
          v_add_u32 v{vTr}, {L_T}, v{t2}
          v_lshlrev_b32 v{t2}, 9, v{t0}
          v_lshl_add_u32 v{t2}, v{t1}, 4, v{t2}
          v_add_u32 v{vKXr}, {L_KX}, v{t2}""")
    e(f"""s_lshl_b32 s{sA}, s{S_WAVE}, 9
          s_add_u32 s{sA}, s{sA}, {L_OB}
          v_lshrrev_b32 v{t2}, 5, v{lane}
          v_lshlrev_b32 v{t2}, 8, v{t2}
          v_and_b32 v{t3}, 16, v{lane}
          v_add_u32 v{t2}, v{t2}, v{t3}
          v_and_b32 v{t3}, 12, v{lane}
          v_lshl_add_u32 v{t2}, v{t3}, 4, v{t2}
          v_and_b32 v{t3}, 1, v{lane}
          v_lshl_add_u32 v{t2}, v{t3}, 5, v{t2}
          v_and_b32 v{t3}, 2, v{lane}
          v_lshl_add_u32 v{t2}, v{t3}, 10, v{t2}
          v_add_u32 v{vOw}, s{sA}, v{t2}
          s_add_u32 s{sA}, s{sLw}, {L_WL}
          v_add_u32 v{vWL0}, s{sA}, v{vL16}
          v_add_u32 v{vWL1}, 0x10000, v{vWL0}""")
    e(f"""v_and_b32 v{t2}, 1, v{lane}
          v_cmp_ne_u32 vcc, 0, v{t2}
          v_mov_b32 v{t2}, 0x4444
          v_mov_b32 v{t3}, 0xeeee
          v_cndmask_b32 v{vIdx}, v{t2}, v{t3}, vcc
          v_mov_b32 v{t2}, 0x3f80
          v_mov_b32 v{t3}, 0x3f800000
          v_cndmask_b32 v{vSelC}, v{t2}, v{t3}, vcc
          v_lshrrev_b32 v{t2}, 1, v{t1}""")
    for j in range(4):
        e(f"v_cmp_eq_u32 {sr(sSel + 2 * j, 2)}, {j}, v{t2}")
    e(f"""v_lshlrev_b32 v{tA}, 13, v{t0}
          v_lshlrev_b32 v{t2}, 2, v{t0}
          v_xor_b32 v{t2}, v{t2}, v{t1}
          v_lshl_add_u32 v{tA}, v{t2}, 4, v{tA}""")
    e(f"""v_bfe_u32 v{t2}, v{lane}, 2, 1
          v_lshlrev_b32 v{tB}, 12, v{t2}
          v_bfe_u32 v{t2}, v{lane}, 5, 1
          v_lshl_add_u32 v{tB}, v{t2}, 10, v{tB}
          v_bfe_u32 v{t2}, v{lane}, 3, 1
          v_lshl_add_u32 v{tB}, v{t2}, 9, v{tB}
          v_bfe_u32 v{t2}, v{lane}, 4, 1
          v_lshl_add_u32 v{tB}, v{t2}, 8, v{tB}
          v_and_b32 v{t2}, 3, v{lane}
          v_lshl_add_u32 v{tB}, v{t2}, 3, v{tB}
          v_bfe_u32 v{t3}, v{tB}, 8, 2
          v_xor_b32 v{t3}, s{S_WAVE}, v{t3}
          v_lshl_add_u32 v{tB}, v{t3}, 6, v{tB}""")
    e(f"""v_lshrrev_b32 v{t3}, 2, v{lane}
          v_lshlrev_b32 v{tC}, 10, v{t3}
          v_lshl_add_u32 v{tC}, v{t2}, 3, v{tC}
          s_lshl_b32 s{sA}, s{S_WAVE}, 8
          v_add_u32 v{tC}, s{sA}, v{tC}""")
    e(f"""s_lshl_b32 s{sA}, s{S_WAVE}, 11
          s_lshl_b32 s{sB}, s{h}, 13
          s_add_u32 s{sPbaseL}, s{sA}, s{sB}
          s_add_u32 s{sPbaseL}, s{sPbaseL}, {WS_P}
          s_lshl_b32 s{sA}, s{S_WAVE}, 16
          s_lshl_b32 s{sB}, s{h}, 6
          s_add_u32 s{sPbaseS}, s{sA}, s{sB}
          s_add_u32 s{sPbaseS}, s{sPbaseS}, {WS_P}""")
    e(f"""s_and_b32 s{sA}, s{S_WAVE}, 1
          s_lshl_b32 s{sMbaseS}, s{sA}, 12
          s_and_b32 s{sA}, s{h}, 24
          s_lshl_b32 s{sA}, s{sA}, 7
          s_add_u32 s{sMbaseS}, s{sMbaseS}, s{sA}
          s_and_b32 s{sA}, s{h}, 1
          s_lshl_b32 s{sA}, s{sA}, 9
          s_add_u32 s{sMbaseS}, s{sMbaseS}, s{sA}
          s_lshr_b32 s{sA}, s{S_WAVE}, 1
          s_lshl_b32 s{sA}, s{sA}, 8
          s_add_u32 s{sMbaseS}, s{sMbaseS}, s{sA}
          s_and_b32 s{sA}, s{h}, 6
          s_lshl_b32 s{sA}, s{sA}, 5
          s_add_u32 s{sMbaseS}, s{sMbaseS}, s{sA}
          s_add_u32 s{sMbaseS}, s{sMbaseS}, {WS_M}""")
    e(f"""s_mul_i32 s{sKV}, s{h}, {64 * UNIT}
          s_lshl_b32 s{sA}, s{S_WAVE}, 11
          s_add_u32 s{sKV}, s{sKV}, s{sA}
          s_add_u32 s{sKV}, s{sKV}, {WS_QKV + 8192}
          s_lshl_b32 s{sExp}, s{h}, 18
          s_lshl_b32 s{sA}, s{S_WAVE}, 10
          s_add_u32 s{sExp}, s{sExp}, s{sA}
          s_add_u32 s{sExp}, s{sExp}, {WS_EXP}
          s_lshl_b32 s{sFl}, s{h}, 8
          s_add_u32 s{sFl}, s{sFl}, {F_QKV}
          s_lshl_b32 s{sFch}, s{h}, 7
          s_lshl_b32 s{sA}, s{S_WAVE}, 2
          s_add_u32 s{sFch}, s{sFch}, s{sA}
          s_add_u32 s{sFch}, s{sFch}, {F_CH}
          s_mov_b32 s{sC}, 0x3e0293ee
          s_add_u32 s{sPst2}, s{sPbaseS}, 4096
          s_lshl_b32 s{sKl}, s{S_WAVE}, 11
          s_add_u32 s{sKl}, s{sKl}, {L_KX}
          s_lshl_b32 s{sHl}, s{h}, 7
          s_add_u32 s{sHl}, s{sHl}, {F_HINT}
          s_lshl_b32 s{sHs}, s{h}, 2
          s_lshl_b32 s{sA}, s{S_WAVE}, 10
          s_add_u32 s{sHs}, s{sHs}, s{sA}
          s_add_u32 s{sHs}, s{sHs}, {F_HINT}
          s_mov_b32 s{sOK}, 1""")
    e(f"""v_mov_b64 {vr(VX + 4, 2)}, 0
          v_mov_b64 {vr(VX + 6, 2)}, 0
          v_mov_b32 v{VX + 2}, -1
          s_add_u32 s{sB}, s{sMbaseS}, 8192
          buffer_store_dwordx4 {vr(VX + 4, 4)}, v{vL16}, {W}, s{sPbaseL} offen sc1
          buffer_store_dwordx4 {vr(VX + 4, 4)}, v{vL16}, {W}, s{sPbaseL} offen offset:1024 sc1
          buffer_store_dword v{VX + 2}, v{vMst}, {W}, s{sB} offen sc1""")
    confirm_barrier(e, 'ch')
    parked = STREAM[14:16] + STREAM[:10]
    for r in range(32):
        m, x, Q = chunks[r]
        if marks[r] in e.vm:
            e.wait(vm=len(e.vm) - 1 - e.vm.index(marks[r]))
        e.wait(lgkm=0)
        e("s_barrier")
        if r == 6:
            e.comment("publish this wave's piece of mem0 in slot 0 (and arm slot 2)")
            e(f"""v_lshl_or_b32 v{VX}, v{VX + 1}, 16, v{VX}
                  v_min_u32 v{VX}, -2, v{VX}
                  v_cndmask_b32 v{VX}, v{VX}, -1, {sr(sArm, 2)}
                  buffer_store_dword v{VX}, v{vMst}, {W}, s{sMbaseS} offen sc1""")
        if r == 12:
            e.comment("every wave's arming stores are complete: count this member as armed")
            e(f"""s_cmp_lg_u32 s{S_WAVE}, 0
                  s_cbranch_scc1 L_cs_in
                  s_cmp_lg_u32 s{S_XCC}, 0
                  s_mov_b32 s{sB}, 0x10000
                  s_cselect_b32 s{sA}, 0x1010000, s{sB}
                  v_mov_b32 v{t0}, s{sA}
                  s_mov_b64 exec, 1
                  buffer_atomic_add v{t0}, off, {sr(S_DBG, 4)}, 0 offset:{D_INIT}
                  s_mov_b64 exec, -1""")
            e.vm.pop()
            e.label("L_cs_in")
        if r + 6 < 32:
            dma(r + 6)
        if r == 8:
            for op in STREAM[10:14]:
                wl_write(e, op, PARK[op])
            e.wait(lgkm=0)
        if r == 16:
            e(f"buffer_load_dword v{PM + 1}, off, {sr(S_DBG, 4)}, 0 offset:{D_INIT} sc1")
        if r == 23:
            e(f"""v_readfirstlane_b32 s{sNan}, v{PM + 1}
                  buffer_load_dword v{PM + 2}, v{PM + 3}, {W}, s{sFl} offen sc1""")
            e(f"""s_add_u32 m0, s{sLw}, {L_KX + 8192}
                  s_lshr_b32 m0, m0, 1
                  s_add_u32 m0, m0, {(L_KX + 8192) // 2}
                  s_lshl_b32 s{sB}, s{h}, 10
                  s_add_u32 s{sB}, s{sB}, {WS_M}
                  buffer_load_dwordx4 v{vL16}, {W}, s{sPbaseL} offen sc1 lds
                  buffer_load_dwordx4 v{vL16}, {W}, s{sPbaseL} offen offset:1024 sc1 lds
                  buffer_load_dwordx4 v{vL16}, {W}, s{sHl} offen sc1 lds
                  buffer_load_dwordx4 v{vL16}, {W}, s{sB} offen sc1 lds""")
        if r == 30:
            e(f"""v_cmp_ne_u32 {sr(sFm, 2)}, 0, v{PM + 2}
                  s_and_b32 s{sOK}, s{sFm}, 3
                  s_cmp_eq_u32 s{sOK}, 3
                  s_cselect_b32 s{sOK}, 1, 0
                  s_and_b32 s{sA}, s{sNan}, 0xffffff
                  s_cmp_eq_u32 s{sA}, 0x200100
                  s_cselect_b32 s{sOK}, s{sOK}, 0""")
            kx_dma(e, L_KX)
        if r >= 26:
            for op in parked[2 * (r - 26):2 * (r - 26) + 2]:
                wl_write(e, op, PARK[op])
        e(f"v_add_u32 v{t1}, {ring[r % 7]}, v{tC if m == 'o' else tB}")
        if m == 'o':
            for t in range(8):
                op = ('o', t, x)
                kind, base = RES[op] if op in RES else ('v', PARK[op])
                e(f"ds_read_b64_tr_b16 {vr(base + 2 * Q, 2, kind)}, v{t1} offset:{t * 32}")
        else:
            for w in range(1, 4):
                e(f"s_cmp_eq_u32 s{S_WAVE}, {w}\n s_cbranch_scc1 L_cs{r}_{w}")
            st0 = e.state()
            for w in range(4):
                if w:
                    e.label(f"L_cs{r}_{w}"); e.set_state(st0)
                for ft in range(2):
                    op = (m, ft, 2 * ((x & 3) ^ w) + (x >> 2))
                    kind, base = RES[op] if op in RES else ('v', PARK[op])
                    for Q in range(4):
                        e(f"ds_read_b64_tr_b16 {vr(base + 2 * Q, 2, kind)}, v{t1} offset:{(32 * (Q & 1) + 8 * (Q >> 1)) * 256 + ft * 32}")
                if w < 3:
                    e(f"s_branch L_cs{r}_e")
            e.label(f"L_cs{r}_e")
    e.wait(lgkm=0)
    dbg_max(e, cfg, 9, v=PM, mask=1)
    e(f"""s_cmp_lg_u32 s{sOK}, 0
          s_cbranch_scc1 L_cs_ready
          L_cs_p1:
          buffer_load_dword v{t0}, off, {sr(S_DBG, 4)}, 0 offset:{D_INIT} sc1
          s_sub_u32 s{S_SPIN}, s{S_SPIN}, 1
          s_cbranch_scc1 L_end
          v_readfirstlane_b32 s{sNan}, v{t0}
          s_and_b32 s{sA}, s{sNan}, 0xffffff
          s_cmp_eq_u32 s{sA}, 0x200100
          s_cbranch_scc0 L_cs_p1
          L_cs_p2:
          buffer_load_dword v{t0}, v{PM + 3}, {W}, s{sFl} offen sc1
          s_sub_u32 s{S_SPIN}, s{S_SPIN}, 1
          s_cbranch_scc1 L_end
          v_cmp_ne_u32 {sr(sFm, 2)}, 0, v{t0}
          s_and_b32 s{sA}, s{sFm}, 3
          s_cmp_eq_u32 s{sA}, 3
          s_cbranch_scc0 L_cs_p2""")
    kx_dma(e, L_KX)
    e.label("L_cs_ready")
    e(f"""v_mov_b32 v{PM + 1}, 0
          v_mov_b32 v{PM + 2}, 0
          s_mov_b32 s{sStep}, 0
          s_mov_b32 s{sTog}, 0""")
    e("\n".join(scalar_lines() + prep_a_lines()))
    for b in range(2):
        e(mload(b))
    e("\n".join(prep_b_lines()))
    dbg_max(e, cfg, 11, v=PM, mask=1)
    e("s_waitcnt vmcnt(0) lgkmcnt(0)\n s_barrier")
    if cfg.get('diag'):
        e.raw(f"  s_memtime {sr(sDbgT + 6, 2)}\n  s_memrealtime {sr(sDbgT + 10, 2)}\n  s_mov_b32 s{sDbgT + 5}, 0\n  s_mov_b32 s12, 0\n  s_mov_b32 s13, 0\n  s_mov_b32 s14, 0\n  s_mov_b32 s15, 0\n  s_waitcnt lgkmcnt(0)")
    e(f"""s_lshr_b32 s{sA}, s{sNan}, 24
          s_mov_b32 s{sNan}, 0
          s_cmp_lg_u32 s{sA}, 0
          s_cbranch_scc1 L_step_s""")
    if cfg.get('force_slow'):
        e("s_branch L_step_s")


def chain_loop(e, cfg, sfx, st):
    acc = {('q', 0): ACC, ('q', 1): ACC + 4, ('k', 0): ACC + 8, ('k', 1): ACC + 12, ('v', 0): ACC + 16, ('v', 1): ACC + 20}
    loc = dict(RES)
    for o in range(10):
        loc[STREAM[o]] = ('v', R1[o])
    for o in range(6):
        loc[STREAM[10 + o]] = ('v', WO_SB[o])
    diag = cfg.get('diag')

    def stamp(n):
        tr = cfg.get('trace')
        if tr and n in tr:
            e.raw(f"  s_memtime {sr(20 + 2 * tr.index(n), 2)}")

    def trace_out(where, TR):
        if cfg.get('trace') and cfg.get('tpos', 'mid') == where:
            e(f"""s_memtime s[32:33]
                  s_memrealtime s[34:35]
                  s_lshl_b32 s40, s{S_ROLE}, 2
                  s_add_u32 s40, s40, s{S_WAVE}
                  s_lshl_b32 s40, s40, 6
                  s_add_u32 s40, s40, s{sStep}
                  s_lshl_b32 s40, s40, 5
                  s_add_u32 s40, s40, 0x6200000
                  s_waitcnt lgkmcnt(0)""")
            for j in range(8):
                e(f"v_mov_b32 v{TR + j}, s{20 + 2 * j}")
            e(f"""s_mov_b64 exec, 1
                  buffer_store_dwordx4 {vr(TR, 4)}, off, {W}, s40
                  buffer_store_dwordx4 {vr(TR + 4, 4)}, off, {W}, s40 offset:16
                  s_mov_b64 exec, -1""")

    def P(m, ft, i):
        k, b = loc[(m, ft, i)]
        return f"v_smfmac_f32_16x16x64_bf16 {vr(acc[(m, ft)], 4)}, {vr(MA + 4 * i, 4)}, {vr(b, 8, k)}, v{vIdx}"

    def post(a, dst):
        return [f"v_add_f32 v{a}, v{a}, v{a + 1}", f"v_add_f32 v{a + 2}, v{a + 2}, v{a + 3}",
                f"v_cvt_pk_bf16_f32 v{dst}, v{a}, v{a + 2}"]

    def xread(kb):
        return [f"ds_read_b64_tr_b16 {vr(X + 4 * kb, 2)}, v{vTr} offset:{kb * 1024}",
                f"ds_read_b64_tr_b16 {vr(X + 4 * kb + 2, 2)}, v{vTr} offset:{kb * 1024 + 256}"]

    kx_dst = [KXR, SPARE, KXR + 4, SPARE + 4, KXR + 8, KXR, KXR + 12, KXR + 4]

    def kxread(n):
        return f"ds_read_b128 {vr(kx_dst[n], 4)}, v{vKXr} offset:{(n >> 1) * 2048 + (n & 1) * 256}"

    Sx = [ACC, ACC + 4]
    Sm, Px = ACC + 8, ACC + 12

    def smx(n):
        kb, t = n >> 1, n & 1
        c = '0' if kb == 0 else vr(Sx[t], 4)
        return f"v_mfma_f32_16x16x32_bf16 {vr(Sx[t], 4)}, {vr(kx_dst[n], 4)}, {vr(X + 4 * kb, 4)}, {c}"

    def smm(kb):
        c = '0' if kb == 0 else vr(Sm, 4)
        return f"v_mfma_f32_16x16x32_bf16 {vr(Sm, 4)}, {vr(X + 4 * kb, 4)}, {vr(X + 4 * kb, 4)}, {c}"

    pace = cfg.get('pace', 0)
    ldH = lambda: pace and e.loose(f"buffer_load_dword v{HD}, v{HA}, {W}, s{sHl} offen sc1")
    ldV = [f"buffer_load_dwordx4 {vr(VX, 4)}, v{vKXr}, {W}, s{sVx} offen sc1",
           f"buffer_load_dwordx4 {vr(VX + 4, 4)}, v{vKXr}, {W}, s{sVx} offen offset:256 sc1"]
    ldK = [f"buffer_load_dwordx4 v{vL16}, {W}, s{sKV} offen sc1 lds",
           f"buffer_load_dwordx4 v{vL16}, {W}, s{sKV} offen offset:1024 sc1 lds"]
    touch = f"buffer_load_dword v{PM + 3}, {W}, s{sVt} offen sc1 lds"
    export = f"buffer_store_dwordx4 {vr(EX, 4)}, v{vL16}, {W}, s{sExp} offen sc1"
    progress = f"s_mov_b64 exec, 1\n buffer_store_dword v{TMP}, off, {W}, s{sFch} sc1\n s_mov_b64 exec, -1"
    ldF = f"buffer_load_dword v{TMP}, v{TMP}, {W}, s{sFl} offen sc1"
    if cfg.get('noexp'):
        export = progress = "s_nop 0"
    rf = sum([wl_lines(STREAM[o], R1[o]) for o in range(8, 10)], [])
    wo = sum([wl_lines(STREAM[10 + o], WO_SB[o]) for o in range(6)], [])
    q0p, q1p, k0p, k1p = post(ACC, ACC + 1), post(ACC + 4, ACC + 5), post(ACC + 8, EX), post(ACC + 12, EX + 1)
    v0p, v1p = post(ACC + 16, EX + 2), post(ACC + 20, EX + 3)
    m0, m1 = TMP, TMP + 1
    C0 = PM
    zero = [f"v_mov_b64 {vr(MA + j, 2)}, 0" for j in range(0, 32, 2)]
    st_ = lambda n: (lambda: stamp(n))
    mx = lambda d, a, b, c_: f"v_max3_f32 v{d}, v{a}, v{b}, v{c_}"

    def check(blocks):
        r = [MA + 4 * b + j for b in blocks for j in range(4)]
        out = [f"v_max3_u32 v{C0}, v{r[0]}, v{r[1]}, v{r[2]}"]
        k = 3
        while k + 1 < len(r):
            out.append(f"v_max3_u32 v{C0}, v{C0}, v{r[k]}, v{r[k + 1]}"); k += 2
        out.append(f"v_max_u32 v{C0}, v{C0}, v{r[k]}")
        out.append(f"v_cmp_eq_u32 vcc, -1, v{C0}")
        return out

    def mread(i):
        return f"ds_read_b128 {vr(MA + 4 * i, 4)}, v{TMP + (i >> 1)} offset:{(i & 1) * 4096}"

    e.slot_no = 0
    e.slot_hook = lambda n: stamp(100 + n)
    e.forget()
    e.label(f"L_step_{sfx}")
    e("s_waitcnt vmcnt(2)")
    e.label(f"L_chkE_{sfx}")
    e("\n".join(check((0,))))
    e(f"""ds_write_b128 v{vMw}, {vr(MA, 4)}
          s_cbranch_vccnz L_retE_{sfx}""")
    stamp(0)
    cl_ = check((1,))
    z = lambda: zero.pop(0)
    lw = lambda n: (lambda: e.wait(lgkm=n))
    seq = [
        (P('q', 0, 0), [lambda: e.loose(mload(1))]),
        (P('q', 1, 0), [ldV[0]]),
        (P('k', 0, 0), [ldV[1], ldF, e.barrier, mread(2), mread(4)]),
        (P('k', 1, 0), [mread(6), "s_waitcnt vmcnt(4)", cl_[0]]),
        (P('v', 0, 0), [cl_[1]]),
        (P('v', 1, 0), [cl_[2], f"ds_write_b128 v{vMw}, {vr(MA + 4, 4)} offset:4096", f"s_cbranch_vccnz L_retL_{sfx}", f"L_okL_{sfx}:"]),
        (P('q', 0, 1), [st_(1)]),
        (P('q', 1, 1), []),
        (P('k', 0, 1), [rf[0]]),
        (P('k', 1, 1), [rf[1], lw(3)]),
        (P('q', 0, 2), [rf[2]]),
        (P('q', 1, 2), [e.lds_writes_done]),
        (P('k', 0, 2), [e.barrier, ldK[0], mread(3)]),
        (P('k', 1, 2), [mread(5)]),
        (P('q', 0, 4), [mread(7)]),
        (P('q', 1, 4), [ldK[1], f"s_movk_i32 m0, {L_DUMMY}"]),
        (P('k', 0, 4), [rf[3]]),
        (P('k', 1, 4), [touch]),
        (P('q', 0, 6), [kxread(0)]),
        (P('q', 1, 6), [kxread(2)]),
        (P('k', 0, 6), [export, lambda: trace_out('mid', SPARE)]),
        (P('k', 1, 6), [kxread(4), st_(2), lw(3)]),
        (P('q', 0, 3), [kxread(6)]),
        (P('q', 0, 5), [kxread(1)]),
        (P('q', 0, 7), [kxread(3), f"v_cmp_ne_u32 {sr(sFm, 2)}, 0, v{TMP}"]),
        (P('q', 1, 3), [f"v_mov_b32 v{TMP}, s{sProg}"]),
        (P('q', 1, 5), [progress]),
        (P('q', 1, 7), ["s_nop 0", q0p[0]]),
        (P('k', 0, 3), ["s_nop 0", q0p[1]]),
        (P('k', 0, 5), ["s_nop 0", q0p[2]]),
        (P('k', 0, 7), [q1p[0]]),
        (P('k', 1, 3), ["s_nop 0", q1p[1]]),
        (P('k', 1, 5), ["s_nop 0", q1p[2]]),
        (P('k', 1, 7), [f"ds_write2_b32 v{vTw}, v{ACC + 1}, v{ACC + 5} offset0:0 offset1:128", st_(3), k0p[0]]),
        (P('v', 0, 1), ["s_nop 0", k0p[1]]),
        (P('v', 0, 2), ["s_nop 0", k0p[2], k1p[0]]),
        (P('v', 0, 3), [k1p[1], k1p[2]]),
        (P('v', 0, 4), [f"ds_write2_b32 v{vTw}, v{EX}, v{EX + 1} offset0:1 offset1:129", z()]),
        (P('v', 0, 5), [z()]),
        (P('v', 0, 6), [f"v_mov_b32 v{HV}, s{sOK2}"]),
        (P('v', 0, 7), [f"v_lshlrev_b32 v{HS}, 3, v{vL16}"]),
        (P('v', 1, 1), [e.lds_writes_done]),
        (P('v', 1, 2), [e.barrier] + xread(0)),
        (P('v', 1, 3), xread(1) + [z()]),
        (P('v', 1, 4), xread(2) + [z()]),
        (P('v', 1, 5), xread(3) + [z()]),
        (P('v', 1, 6), [z()]),
        (P('v', 1, 7), [st_(4), lw(4), z()]),
        (smx(0), [v0p[0], v0p[1]]),
        (smx(2), [kxread(5), v0p[2], lw(1)]),
        (smx(4), [kxread(7), z(), z()]),
        (smx(6), [f"s_cmp_eq_u32 s{sStep}, 63", v1p[0], v1p[1]]),
        (smm(0), [v1p[2], z()]),
        (smm(1), ["s_cbranch_scc1 L_final", z()] + ([f"v_exp_f32 v{m1}, v{vIdx}"] if cfg.get('warm', 1) == 2 else [])),
        (smm(2), [mx(m0, Sx[0], Sx[0] + 1, Sx[0] + 2), z()]),
        (smm(3), [z(), z()]),
        (smx(1), [lw(0), z(), z()]),
        (smx(3), [f"s_add_u32 s{sStep}, s{sStep}, 1"] + ([f"v_exp_f32 v{m1}, v{vIdx}"] if cfg.get('warm', 1) == 1 else [])),
        (smx(5), [f"s_xor_b32 s{sTog}, s{sTog}, 0x2000", mx(m0, m0, Sx[0] + 3, Sm + 2), f"v_max_f32 v{m0}, v{m0}, v{Sm + 3}"]),
        (smx(7), [wo[0], wo[1], wo[2], wo[3], f"s_mov_b32 s{sG}, s{sG2}", f"v_xor_b32 v{vKXr}, 0x2000, v{vKXr}"]),
    ]
    e.slots(seq)
    assert not zero
    e(f"""{mx(m0, m0, Sx[1], Sx[1] + 1)}
          {mx(m0, m0, Sx[1] + 2, Sx[1] + 3)}
          v_mov_b32 v{m1}, v{m0}
          v_permlane32_swap_b32 v{m0}, v{m1}
          v_max_f32 v{m0}, v{m0}, v{m1}
          v_mov_b32 v{m1}, v{m0}
          v_permlane16_swap_b32 v{m0}, v{m1}
          v_max_f32 v{m0}, v{m0}, v{m1}
          v_mul_f32 v{m0}, s{sC}, v{m0}""")
    for j in (0, 2, 4, 6, 10):
        e(f"v_pk_fma_f32 {vr(ACC + j, 2)}, {vr(ACC + j, 2)}, {sr(sC, 2)}, {vr(m0, 2)} op_sel_hi:[1,0,0] neg_lo:[0,0,1] neg_hi:[0,0,1]")
    for j in (0, 1, 2, 3, 4, 5, 6, 7, 10, 11):
        e(f"v_exp_f32 v{ACC + j}, v{ACC + j}")
    stamp(5)
    for j in range(4):
        e(f"v_cvt_pk_bf16_f32 v{Px + j}, v{ACC + 2 * j}, v{ACC + 2 * j + 1}")
    e(f"""v_cvt_pk_bf16_f32 v{PM}, v{Sm + 2}, v{Sm + 3}
          v_cvt_pk_bf16_f32 v{PM + 3}, v{Sm + 2}, v{Sm + 3}
          v_pk_add_f32 {vr(ACC, 2)}, {vr(ACC, 2)}, {vr(ACC + 2, 2)}
          v_pk_add_f32 {vr(ACC + 4, 2)}, {vr(ACC + 4, 2)}, {vr(ACC + 6, 2)}
          v_pk_add_f32 {vr(ACC, 2)}, {vr(ACC, 2)}, {vr(Sm + 2, 2)}
          v_pk_add_f32 {vr(m0, 2)}, {vr(ACC, 2)}, {vr(ACC + 4, 2)}""")
    O = SPARE
    mpos = cfg.get('mpos', 'w')
    mark = ["s_mov_b64 exec, 0xff", f"buffer_store_dword v{HV}, v{HS}, {W}, s{sHs} offen {st}", "s_mov_b64 exec, -1", st_(15)]
    hsetup = [f"v_bfe_u32 v{HA}, v{vL16}, 2, 7", f"v_mov_b32 v{HD}, {cfg.get('hdef', -1)}"]
    e.slots([
        (f"v_mfma_f32_16x16x32_bf16 {vr(O, 4)}, {vr(VX, 4)}, {vr(Px, 4)}, 0",
         [f"v_add_f32 v{m0}, v{m0}, v{m1}", f"v_mov_b32 v{m1}, v{m0}"]),
        (f"v_mfma_f32_16x16x32_bf16 {vr(O + 4, 4)}, {vr(VX + 4, 4)}, {vr(Px, 4)}, 0",
         (mark if mpos == 'q' else []) + [f"v_permlane32_swap_b32 v{m0}, v{m1}"]),
        (f"v_mfma_f32_16x16x16_bf16 {vr(O, 4)}, {vr(EX + 2, 2)}, {vr(PM, 2)}, {vr(O, 4)}",
         [f"v_add_f32 v{m0}, v{m0}, v{m1}", f"v_mov_b32 v{m1}, v{m0}"]),
        (f"v_mfma_f32_16x16x16_bf16 {vr(O + 4, 4)}, {vr(EX + 2, 2)}, {vr(PM + 2, 2)}, {vr(O + 4, 4)}",
         [f"v_permlane16_swap_b32 v{m0}, v{m1}", f"v_add_f32 v{m0}, v{m0}, v{m1}", f"v_rcp_f32 v{m0}, v{m0}",
          ] + (mark if mpos == 'p' else hsetup)),
    ])
    for j in range(0, 8, 2):
        e(f"v_pk_mul_f32 {vr(O + j, 2)}, {vr(O + j, 2)}, {vr(m0, 2)} op_sel_hi:[1,0]")
    OA = ACC + 16
    for j in range(4):
        e(f"v_cvt_pk_bf16_f32 v{O + j}, v{O + 2 * j}, v{O + 2 * j + 1}")
    e(f"ds_write_b128 v{vOw}, {vr(O, 4)}")
    if mpos == 'w' and pace:
        e("\n".join(mark[:3])); stamp(15)
    if mpos == 'p':
        e("\n".join(hsetup))
    if cfg.get('h0'):
        delay(e, cfg['h0']); ldH()
    e.barrier()
    e(f"""ds_read_b128 {vr(OA, 4)}, v{vL16} offset:{L_OB}
          ds_read_b128 {vr(OA + 4, 4)}, v{vL16} offset:{L_OB + 1024}""")
    ldH(); e("s_nop 2"); ldH()
    stamp(6)
    OUT = SPARE

    def pstore(c):
        return f"buffer_store_dwordx4 {vr(OUT + 4 * c, 4)}, v{vPst}, {W}, s{sPbaseS} offen offset:{c * 2048} {st}"

    tag = lambda j: f"v_and_or_b32 v{OUT + j}, v{OUT + j}, -2, s{sG}"
    seq = []
    for t in range(8):
        for kb in range(2):
            k, b = loc[('o', t, kb)]
            if t >= 2:
                p = post(MA + 4 * (t - 2), OUT + t - 2)
                fl = p[0:1] if kb == 0 else p[1:3]
                if kb == 0 and t % 2 == 1:
                    fl = fl + [tag(t - 3)]
            else:
                fl = ["s_nop 0"]
            n = 2 * t + kb
            if 1 <= n <= 8:
                fl = [wo[3 + n]] + fl
            hc = cfg.get('hc', 10)
            if n in cfg.get('hs', (0, 2, 4, 8)) and pace:
                fl = [ldH] + [x for x in fl if x != "s_nop 0"]
            if n == hc and pace:
                fl = fl + [f"v_cmp_gt_u32 vcc, s{sStep}, v{HD}"]
            if n == hc + 1:
                fl = fl + [st_(16)] + ([f"s_cbranch_vccnz L_hret_{sfx}"] if pace else []) + [f"L_hok_{sfx}:", st_(13)]
            if kb == 0 and t == 6:
                fl = [pstore(0)] + fl
            seq.append((f"v_smfmac_f32_16x16x64_bf16 {vr(MA + 4 * t, 4)}, {vr(OA + 4 * kb, 4)}, {vr(b, 8, k)}, v{vIdx}", fl))
    e.slots(seq)
    PL, D, SEL, PL2 = MA + 8, MA + 16, MA + 20, MA + 24
    e("\n".join(post(MA + 24, OUT + 6) + [tag(6)]))
    e("\n".join(post(MA + 28, OUT + 7)))
    e(pstore(1))
    stamp(7)
    trace_out('late', MA)
    e(f"s_bitcmp1_b32 s{S_WAVE}, 0\n s_cbranch_scc1 L_x1_{sfx}")
    e.slot_hook = None
    st0 = e.state()
    ldP = [f"buffer_load_dwordx4 {vr(PL, 4)}, v{vL16}, {W}, s{sPbaseL} offen sc1",
           f"buffer_load_dwordx4 {vr(PL + 4, 4)}, v{vL16}, {W}, s{sPbaseL} offen offset:1024 sc1"]
    tP, dM, eM, gM = cfg.get('tP', (260, 380)), cfg.get('dM', (260, 140)), cfg.get('eM', 200), cfg.get('gM', (120, 120))
    for w in range(2):
        if w:
            e.label(f"L_x{w}_{sfx}"); e.set_state(st0)
        clk = [[12, 48][w]]
        pa = prep_a_lines()
        valu = [f"v_cndmask_b32 v{SEL + j}, 0, v{vSelC}, {sr(sSel + 2 * j, 2)}" for j in range(4)] + scalar_lines() + [l for l in pa if not l.startswith('ds_')]
        if diag:
            valu += [f"s_cmp_eq_u32 s{sStep}, 10", f"s_cselect_b32 s{sDbgT + 6}, s36, s{sDbgT + 6}"] + [f"s_cselect_b32 s{k}, 0, s{k}" for k in range(12, 16)]
        reads = [l for l in pa if l.startswith('ds_')]
        pool = valu
        if cfg.get('fo', 2) == 1:
            head = mix(reads[:8], [l for l in valu if l.startswith('v_')], 2)
            e("\n".join(head)); clk[0] += 170
            pool = [l for l in valu if not l.startswith('v_')]; reads = reads[8:]
        if cfg.get('fo', 2) == 2:
            pool = [l for l in valu if not l.startswith('v_')]
            reads = mix(reads, [l for l in valu if l.startswith('v_')], 2)

        def until(t):
            while clk[0] + 4 <= t and pool:
                e(pool.pop(0)); clk[0] += 4
            if clk[0] + 4 <= t:
                delay(e, t - clk[0]); clk[0] = t

        until(tP[w])
        e.loose(ldP[0]); e.loose(ldP[1]); stamp(11)
        ldP2 = [x.replace(vr(PL, 4), vr(PL2, 4)).replace(vr(PL + 4, 4), vr(PL2 + 4, 4)) for x in ldP]
        rest = mix(reads, pool, 2)
        nsp = cfg.get('nsp', 14)
        e("\n".join(rest[:nsp]))
        delay(e, cfg.get('dP2', 0))
        e.loose(ldP2[0]); e.loose(ldP2[1])
        e("\n".join(rest[nsp:]))
        e(f"s_mov_b32 s{sNan}, 0")
        if diag:
            e.raw("  s_memtime s[36:37]")
        ny = 2
        e(f"""s_waitcnt vmcnt({ny + 1})
              L_redP{w}_{sfx}:
              v_mfma_f32_16x16x32_bf16 {vr(D, 4)}, {vr(PL, 4)}, {vr(SEL, 4)}, 0
              s_waitcnt vmcnt({ny})
              v_mfma_f32_16x16x32_bf16 {vr(D, 4)}, {vr(PL + 4, 4)}, {vr(SEL, 4)}, {vr(D, 4)}
              v_xor_b32 v{C0}, s{sG}, v{PL}
              v_bitop3_b32 v{C0}, v{C0}, v{PL + 2}, s{sG} bitop3:0xf6
              v_bitop3_b32 v{C0}, v{C0}, v{PL + 4}, s{sG} bitop3:0xf6
              v_bitop3_b32 v{C0}, v{C0}, v{PL + 6}, s{sG} bitop3:0xf6
              v_and_b32 v{C0}, 1, v{C0}
              v_cmp_ne_u32 vcc, 0, v{C0}
              s_cbranch_vccnz L_reP{w}_{sfx}
              v_permlane32_swap_b32 v{D}, v{D + 2}
              v_permlane32_swap_b32 v{D + 1}, v{D + 3}
              v_add_f32 v{D}, v{D}, v{D + 2}
              v_add_f32 v{D + 1}, v{D + 1}, v{D + 3}
              v_permlane16_swap_b32 v{D}, v{D + 1}
              v_add_f32 v{D}, v{D}, v{D + 1}
              v_mov_b32_dpp v{D + 1}, v{D} quad_perm:[2,3,0,1] row_mask:0xf bank_mask:0xf
              v_cvt_pk_bf16_f32 v{D}, v{D}, v{D + 1}
              v_min_u32 v{D}, -2, v{D}
              v_cndmask_b32 v{VX + 4}, v{D}, -1, {sr(sArm, 2)}
              buffer_store_dword v{VX + 4}, v{vMst}, {W}, s{sMn2} offen {st}""")
        stamp(8)
        pb = ["s_waitcnt vmcnt(1)"] + prep_b_lines()
        d = dM[w]
        if d >= 100:
            e("\n".join(pb)); d -= 100; pb = []
        delay(e, d)
        e.loose(mload(0)); stamp(12)
        d = gM[w]
        if pb:
            pb[0] = "s_waitcnt vmcnt(2)"
            e("\n".join(pb)); d -= 100
        delay(e, d)
        e.loose(mload(0)); e.loose(mload(1))
        e(f"""s_bitcmp1_b64 {sr(sFm, 2)}, s{sOK}
              s_waitcnt lgkmcnt(0)
              s_cbranch_scc1 L_step_{sfx}
              s_branch L_flag_{sfx}""")
        e.forget()
        e(f"L_reP{w}_{sfx}:\n s_waitcnt vmcnt(0)")
        for j in range(0, 8, 2):
            e(f"v_mov_b64 {vr(PL + j, 2)}, {vr(PL2 + j, 2)}")
        e.loose(ldP2[0]); e.loose(ldP2[1])
        e(f"""{'s_add_u32 s12, s12, 1' if diag else ''}
              s_sub_u32 s{S_SPIN}, s{S_SPIN}, 1
              s_cbranch_scc0 L_redP{w}_{sfx}
              s_branch L_end""")
    e.forget()
    e(f"L_hret_{sfx}:")
    for k in range(6):
        e(f"v_cmp_gt_u32 vcc, s{sStep}, v{HD}")
        ldH()
        if diag:
            e("s_add_u32 s15, s15, 1")
        e(f"s_cbranch_vccz L_{'hrel' if cfg.get('dH') is not None else 'hok'}_{sfx}")
    e(f"""s_sub_u32 s{S_SPIN}, s{S_SPIN}, 1
          s_waitcnt vmcnt(24)
          s_cbranch_scc0 L_hret_{sfx}
          s_branch L_end
          L_hrel_{sfx}:""")
    delay(e, cfg.get('dH') or 0)
    e(f"s_branch L_hok_{sfx}")
    e.forget()
    e(f"""L_flag_{sfx}:
          v_lshrrev_b32 v{C0}, 2, v{vL16}
          buffer_load_dword v{C0}, v{C0}, {W}, s{sFl} offen sc1
          s_sub_u32 s{S_SPIN}, s{S_SPIN}, 1
          s_cbranch_scc1 L_end
          v_cmp_ne_u32 {sr(sFm, 2)}, 0, v{C0}
          s_bitcmp1_b64 {sr(sFm, 2)}, s{sOK}
          s_cbranch_scc1 L_step_{sfx}
          s_branch L_flag_{sfx}""")
    e.forget()
    e(f"L_retE_{sfx}:")
    e.loose(mload(0)); e.loose(mload(1))
    e(f"""{'s_add_u32 s13, s13, 1' if diag else ''}
          s_sub_u32 s{S_SPIN}, s{S_SPIN}, 1
          s_waitcnt vmcnt(3)
          s_cbranch_scc0 L_chkE_{sfx}
          s_branch L_end""")
    e(f"L_retL_{sfx}:")
    e.loose(mload(1))
    e(f"""{'s_add_u32 s14, s14, 1' if diag else ''}
          s_sub_u32 s{S_SPIN}, s{S_SPIN}, 1
          s_cbranch_scc1 L_end
          s_bitcmp1_b32 s{sNan}, 0
          s_bitset1_b32 s{sNan}, 0
          s_waitcnt vmcnt(4)
          s_cbranch_scc0 L_retL1_{sfx}
          s_waitcnt vmcnt(1)
          L_retL1_{sfx}:""")
    e("\n".join(cl_))
    e(f"""ds_write_b128 v{vMw}, {vr(MA + 4, 4)} offset:4096
          s_cbranch_vccz L_okL_{sfx}
          s_branch L_retL_{sfx}""")


def chain_final(e, cfg):
    e.forget()
    e(f"""L_final:
          s_add_u32 s{sExp}, s{sExp}, 4096
          buffer_store_dwordx4 {vr(EX, 4)}, v{vL16}, {W}, s{sExp} offen sc1
          v_mov_b32 v{TMP + 1}, 64
          s_waitcnt vmcnt(0) lgkmcnt(0)
          buffer_store_dword v{TMP + 1}, off, {W}, s{sFch} sc1""")
    if cfg.get('diag'):
        e(f"""s_memrealtime {sr(sDbgT + 12, 2)}
              s_lshl_b32 s{sA}, s{S_ROLE}, 2
              s_add_u32 s{sA}, s{sA}, s{S_WAVE}
              s_lshl_b32 s{sA}, s{sA}, 6
              s_add_u32 s{sA}, s{sA}, 0x6000000
              s_waitcnt lgkmcnt(0)
              s_sub_u32 s{sDbgT + 8}, s36, s{sDbgT + 6}""")
        for n, r in enumerate([sDbgT + 8, sDbgT + 5, S_SPIN, sDbgT + 14, sDbgT + 10, sDbgT + 12, 12, 13, 14, 15]):
            e(f"v_mov_b32 v{TMP + 2}, s{r}\n buffer_store_dword v{TMP + 2}, off, {W}, s{sA} offset:{4 * n}")
    dbg_max(e, cfg, 12, v=TMP + 2)
    e("s_waitcnt vmcnt(0)\n s_branch L_end")


def chain(e, cfg):
    CFG.clear(); CFG.update(cfg)
    chain_startup(e, cfg)
    chain_loop(e, cfg, 'f', '')
    chain_loop(e, cfg, 's', 'sc1')
    chain_final(e, cfg)
```

```python
from asm import *

NAME = "concat_heads__sliding_local_dilated__memory_aug_recurrent_mem_tr__prompt"
UNIT = 24576
NHH = 36
WS_QKV = 0
WS_OF = 0x3800000
WS_EXP = 0x4800000
WS_P = 0x5000000
WS_M = 0x5080000
WS_FLAG = 0x5090000
F_QKV = WS_FLAG
F_CH = WS_FLAG + 0x2800
F_AT = WS_FLAG + 0x8000
F_HINT = WS_FLAG + 0x6000
WS_SIZE = 0x10000000
SENT1 = 0x7F817F81
D_CLAIM_SH = 2
D_INIT = 128
D_OVER = 64
S_WS, S_DBG, S_T0, S_T1 = 4, 8, 12, 16
P_AX, P_AWQKV, P_AWO, P_BX, P_MEM0, P_WQ, P_WK, P_WV, P_WO, P_SEG, P_OUT, P_DBG, P_WSP = [20 + 2 * i for i in range(13)]
S_WAVE, S_ROLE, S_XCC, S_SPIN = 46, 47, 48, 49
S_CONF, S_RA, S_RB, S_RC = 101, 0, 1, 39
V_CLAIM = 127
L_ROLE = 33408
NTAIL = 4
S_HEAD, S_EC = 79, 16
LDS_BYTES = 163840
SPIN_MAX = 400000


def srd(e, s, ptr, nbytes):
    e(f"""s_mov_b32 s{s}, s{ptr}
          s_and_b32 s{s+1}, s{ptr+1}, 0xffff
          s_mov_b32 s{s+2}, {nbytes}
          s_mov_b32 s{s+3}, 0x20000""")


def dbg_max(e, cfg, word, neg=False, v=2, mask=7):
    if cfg.get('dbgt'):
        lb = e.newlabel('L_dm')
        e(f"""s_lshr_b32 s92, s2, 3
              s_and_b32 s92, s92, {mask}
              s_or_b32 s92, s92, s{S_WAVE}
              s_cbranch_scc1 {lb}
              s_memrealtime s[92:93]
              s_waitcnt lgkmcnt(0)
              {'s_not_b32 s92, s92' if neg else ''}
              v_mov_b32 v{v}, s92
              s_mov_b64 exec, 1
              buffer_atomic_umax v{v}, off, {sr(S_DBG, 4)}, 0 offset:{4 * word}
              s_mov_b64 exec, -1""")
        e.vm.pop()
        e.label(lb)


def confirm_barrier(e, tag):
    e(f"""s_cmp_lg_u32 s{S_WAVE}, 0
          s_cbranch_scc1 L_cf_{tag}
          s_waitcnt vmcnt({len(e.vm)})
          v_readfirstlane_b32 s{S_RB}, v{V_CLAIM}
          s_cmp_lg_u32 s{S_CONF}, 0
          s_cselect_b32 s{S_RB}, 0, s{S_RB}
          s_bitcmp1_b32 s{S_RB}, s{S_ROLE}
          s_cbranch_scc1 L_reclaim
          v_mov_b32 v{V_CLAIM}, s{S_ROLE}
          v_mov_b32 v{V_CLAIM - 1}, {L_ROLE}
          ds_write_b32 v{V_CLAIM - 1}, v{V_CLAIM}
          v_mov_b32 v{V_CLAIM}, 1
          s_mov_b64 exec, 1
          buffer_atomic_add v{V_CLAIM}, off, {sr(S_DBG, 4)}, 0 offset:{D_INIT}
          s_mov_b64 exec, -1
          s_waitcnt lgkmcnt(0)
          L_cf_{tag}:
          s_barrier
          v_mov_b32 v{V_CLAIM - 1}, {L_ROLE}
          ds_read_b32 v{V_CLAIM - 1}, v{V_CLAIM - 1}
          v_readfirstlane_b32 s{S_RA}, v{V_CLAIM - 1}
          s_cmp_lg_u32 s{S_RA}, s{S_ROLE}
          s_cbranch_scc1 L_restart""")
    e.vm.pop()
```

```python
from common import *

W = sr(S_WS, 4)
DBG = sr(S_DBG, 4)
sWid, sA, sB, sC_, sD, sE, sF, sG, sH, sI, sJ, sK = range(50, 62)
S_W0, S_W1, S_W2, S_X = 64, 68, 72, 76
NEG = 0xf149f2ca


def wait_init(e, tag, tmp, nap=16):
    e(f"""L_wi_{tag}:
          s_sleep {nap}
          buffer_load_dword v{tmp}, off, {DBG}, 0 offset:{D_INIT} sc1
          s_sub_u32 s{S_SPIN}, s{S_SPIN}, 1
          s_cbranch_scc1 L_end
          v_readfirstlane_b32 s{sA}, v{tmp}
          s_and_b32 s{sA}, s{sA}, 0xffff
          s_cmp_eq_u32 s{sA}, 256
          s_cbranch_scc0 L_wi_{tag}""")


def count_in(e, tmp):
    e(f"""v_mov_b32 v{tmp}, 1
          s_mov_b64 exec, 1
          buffer_atomic_add v{tmp}, off, {DBG}, 0 offset:{D_INIT}
          s_mov_b64 exec, -1""")


def srd_sel(e, s, pa, pb, na, nb):
    e(f"""s_cselect_b32 s{s}, s{pa}, s{pb}
          s_cselect_b32 s{s+1}, s{pa+1}, s{pb+1}
          s_mov_b32 s{s+2}, {nb}
          s_cselect_b32 s{s+2}, {na}, s{s+2}
          s_mov_b32 s{s+3}, 0x20000""")


def lane_consts(e, lane, l16, sig):
    e(f"""v_and_b32 v{lane}, 63, v0
          v_lshlrev_b32 v{l16}, 4, v{lane}
          v_and_b32 v{sig}, 39, v{lane}
          v_bfe_u32 v{lane + 1}, v{lane}, 3, 1
          v_lshl_or_b32 v{sig}, v{lane + 1}, 4, v{sig}
          v_bfe_u32 v{lane + 1}, v{lane}, 4, 1
          v_lshl_or_b32 v{sig}, v{lane + 1}, 3, v{sig}
          v_lshlrev_b32 v{sig}, 4, v{sig}""")


XROW = 1040
XBUF = 32 * XROW
RING0 = 33792


def proj(e, cfg):
    lane, t1, vL16, vSig, vSrc, vTr, vXr, vT, vIn = 1, 2, 3, 4, 5, 6, 7, 8, 9
    XF, ACC, OUT = 16, 32, 80
    sHH, sSeg, sStride, sCol, sUnit, sFlag, sXb, sPrev = sC_, sD, sE, sF, sG, sH, sI, sJ
    e(f"""s_mul_i32 s{sHH}, s{sWid}, 171
          s_lshr_b32 s{sHH}, s{sHH}, 10
          s_mul_i32 s{sA}, s{sHH}, 6
          s_sub_u32 s{sSeg}, s{sWid}, s{sA}
          s_cmp_lt_u32 s{sHH}, 32""")
    srd_sel(e, S_W0, P_WQ, P_AWQKV, 0x400000, 0x180000)
    srd_sel(e, S_W1, P_WK, P_AWQKV, 0x400000, 0x180000)
    srd_sel(e, S_W2, P_WV, P_AWQKV, 0x400000, 0x180000)
    srd_sel(e, S_X, P_BX, P_AX, 0x200000, 0x200000)
    e(f"""s_mov_b32 s{sStride}, 3072
          s_cselect_b32 s{sStride}, 8192, s{sStride}
          s_cselect_b32 s{sK}, 0, 1024
          s_and_b32 s{sCol}, s{sHH}, 31
          s_lshl_b32 s{sCol}, s{sCol}, 8""")
    lane_consts(e, lane, vL16, vSig)
    e(f"""v_lshrrev_b32 v{t1}, 4, v{lane}
          v_mul_lo_u32 v{vSrc}, v{t1}, s{sStride}
          v_lshlrev_b32 v{t1}, 2, v{t1}
          v_xor_b32 v{t1}, v{t1}, v{lane}
          v_and_b32 v{t1}, 15, v{t1}
          v_lshl_add_u32 v{vSrc}, v{t1}, 4, v{vSrc}""")
    e(f"""v_lshrrev_b32 v{t1}, 5, v{lane}
          v_lshlrev_b32 v{vTr}, 11, v{t1}
          v_bfe_u32 v{t1}, v{lane}, 2, 2
          v_lshl_add_u32 v{vTr}, v{t1}, 8, v{vTr}
          v_bfe_u32 v{t1}, v{lane}, 4, 1
          v_lshl_add_u32 v{vTr}, v{t1}, 5, v{vTr}
          v_and_b32 v{t1}, 3, v{lane}
          v_lshl_add_u32 v{vTr}, v{t1}, 3, v{vTr}
          v_bfe_u32 v{t1}, v{lane}, 2, 2
          v_xor_b32 v{t1}, s{S_WAVE}, v{t1}
          v_lshl_add_u32 v{vTr}, v{t1}, 6, v{vTr}""")
    e(f"""v_and_b32 v{t1}, 31, v{lane}
          v_mul_u32_u24 v{vXr}, {XROW}, v{t1}
          v_lshrrev_b32 v{t1}, 5, v{lane}
          v_lshl_add_u32 v{vXr}, v{t1}, 4, v{vXr}""")
    e(f"""s_lshl_b32 s{sA}, s{sHH}, 6
          s_add_u32 s{sA}, s{sA}, s{sSeg}
          s_mul_i32 s{sUnit}, s{sA}, {UNIT}
          s_lshl_b32 s{sB}, s{S_WAVE}, 11
          s_add_u32 s{sUnit}, s{sUnit}, s{sB}
          s_lshl_b32 s{sFlag}, s{sA}, 2
          s_add_u32 s{sFlag}, s{sFlag}, {F_QKV}
          s_mov_b32 s{sXb}, 0""")

    def xdma(seg_s, buf_s):
        e(f"""s_lshl_b32 s{sA}, s{seg_s}, 15
              s_lshl_b32 s{sB}, s{S_WAVE}, 13
              s_add_u32 s{sA}, s{sA}, s{sB}
              s_mul_i32 s{sB}, s{S_WAVE}, {8 * XROW}
              s_add_u32 s{sB}, s{sB}, s{buf_s}""")
        return [f"""s_add_u32 m0, s{sB}, {j * XROW}
                  s_add_u32 s3, s{sA}, {j * 1024}
                  buffer_load_dwordx4 v{vL16}, {sr(S_X, 4)}, s3 offen lds""" for j in range(8)]

    for l in xdma(sSeg, sXb):
        e(l)
    sRow = sPrev
    e(f"""s_lshl_b32 s{sA}, s{S_WAVE}, 4
          s_mul_i32 s{sRow}, s{sA}, s{sStride}
          s_add_u32 s{sRow}, s{sRow}, s{sCol}
          s_lshl_b32 s62, s{sStride}, 2
          s_lshl_b32 s63, s{S_WAVE}, 12""")
    order = [1, 2, 0]
    srds = [S_W0, S_W1, S_W2]
    dst = [('a', 0), ('a', 128), ('v', 128)]
    marks = {}

    def dma(r):
        m, b = order[r // 8], r % 8
        e(f"""s_mul_i32 s{sA}, s{sStride}, {64 * b}
              s_add_u32 s{sA}, s{sA}, s{sRow}
              s_mul_i32 s{sB}, s{sK}, {m}
              s_add_u32 s{sA}, s{sA}, s{sB}""")
        for j in range(4):
            e(f"""s_add_u32 m0, s63, {RING0 + (r % 7) * 16384 + j * 1024}
                  buffer_load_dwordx4 v{vSrc}, {sr(srds[m], 4)}, s{sA} offen lds""")
            if j < 3:
                e(f"s_add_u32 s{sA}, s{sA}, s62")
        marks[r] = e.vm[-1]

    for r in range(6):
        dma(r)
    confirm_barrier(e, 'pj')
    for r in range(24):
        m, b = order[r // 8], r % 8
        e.wait(vm=len(e.vm) - 1 - e.vm.index(marks[r]), lgkm=0)
        e("s_barrier")
        if r == 18:
            e(f"buffer_load_dword v{vT + 1}, off, {DBG}, 0 offset:{D_INIT} sc1")
        if r + 6 < 24:
            dma(r + 6)
        e(f"v_add_u32 v{vT + 2}, {RING0 + (r % 7) * 16384}, v{vTr}")
        k, base = dst[m]
        for ksl in range(4):
            for z in range(2):
                e(f"ds_read_b64_tr_b16 {vr(base + 4 * (4 * b + ksl) + 2 * z, 2, k)}, v{vT + 2} offset:{(16 * ksl + 4 * z) * 256}")
    e.wait(vm=0, lgkm=0)
    dbg_max(e, cfg, 14, v=vT + 3)
    e(f"""v_readfirstlane_b32 s{sA}, v{vT + 1}
          s_and_b32 s{sA}, s{sA}, 0xffff
          s_cmp_eq_u32 s{sA}, 256
          s_cbranch_scc1 L_pj_go""")
    wait_init(e, 'pj', vT)
    e.label("L_pj_go")
    if cfg.get('diag'):
        e("s_memrealtime s[86:87]\n s_waitcnt lgkmcnt(0)")
    e(f"s_mov_b32 s{sPrev}, 0\n v_mov_b32 v{vIn}, 1")
    e.forget()
    e.label("L_pj_loop")
    e(f"""s_waitcnt vmcnt(6)
          s_barrier
          v_add_u32 v{vT}, s{sXb}, v{vXr}
          s_add_u32 s62, s{sSeg}, 6
          s_min_u32 s62, s62, 63
          s_sub_u32 s63, {XBUF}, s{sXb}""")
    nxt = xdma(62, 63)
    for ks in range(3):
        e(f"ds_read_b128 {vr(XF + 4 * ks, 4)}, v{vT} offset:{32 * ks}")
    for ks in range(32):
        x = vr(XF + 4 * (ks % 4), 4)
        c = [('0' if ks == 0 else vr(ACC + 16 * m, 16)) for m in range(3)]
        e(f"v_mfma_f32_32x32x16_bf16 {vr(ACC, 16)}, {vr(4 * ks, 4, 'a')}, {x}, {c[0]}")
        if ks + 3 < 32:
            e(f"ds_read_b128 {vr(XF + 4 * ((ks + 3) % 4), 4)}, v{vT} offset:{32 * (ks + 3)}")
        e(f"v_mfma_f32_32x32x16_bf16 {vr(ACC + 16, 16)}, {vr(128 + 4 * ks, 4, 'a')}, {x}, {c[1]}")
        if ks < 8:
            e(nxt[ks])
        if ks == 20:
            e.comment("the previous segment's stores of every wave are complete behind this barrier: raise its flag")
            e(f"""s_waitcnt vmcnt(8)
                  s_barrier
                  s_cmp_eq_u32 s{sPrev}, 0
                  s_cbranch_scc1 L_pj_nf
                  s_mov_b64 exec, 1
                  buffer_store_dword v{vIn}, off, {W}, s{sPrev} sc1
                  s_mov_b64 exec, -1
                  L_pj_nf:""")
            e.vm.pop()
        e(f"v_mfma_f32_32x32x16_bf16 {vr(ACC + 32, 16)}, {x}, {vr(128 + 4 * ks, 4)}, {c[2]}")
    for m in range(3):
        for j in range(8):
            e(f"v_cvt_pk_bf16_f32 v{OUT + 8 * m + j}, v{ACC + 16 * m + 2 * j}, v{ACC + 16 * m + 2 * j + 1}")
        a = vSig if m == 1 else vL16
        e(f"""s_add_u32 s{sA}, s{sUnit}, {8192 * m}
              buffer_store_dwordx4 {vr(OUT + 8 * m, 4)}, v{a}, {W}, s{sA} offen sc1
              buffer_store_dwordx4 {vr(OUT + 8 * m + 4, 4)}, v{a}, {W}, s{sA} offen offset:1024 sc1""")
    e(f"""s_cmp_eq_u32 s{S_WAVE}, 0
          s_cselect_b32 s{sPrev}, s{sFlag}, 0
          s_cmp_ge_u32 s{sSeg}, 6
          s_cbranch_scc1 L_pj_later
          s_waitcnt vmcnt(0)
          s_barrier
          s_cmp_eq_u32 s{sPrev}, 0
          s_cbranch_scc1 L_pj_later
          s_mov_b64 exec, 1
          buffer_store_dword v{vIn}, off, {W}, s{sPrev} sc1
          s_mov_b64 exec, -1
          L_pj_later:
          s_add_u32 s{sFlag}, s{sFlag}, 24
          s_add_u32 s{sUnit}, s{sUnit}, {6 * UNIT}
          s_sub_u32 s{sXb}, {XBUF}, s{sXb}
          s_add_u32 s{sSeg}, s{sSeg}, 6
          s_cmp_lt_u32 s{sSeg}, 64
          s_cbranch_scc1 L_pj_loop
          s_waitcnt vmcnt(0)
          s_barrier
          s_cmp_eq_u32 s{sPrev}, 0
          s_cbranch_scc1 L_phase2
          s_mov_b64 exec, 1
          buffer_store_dword v{vIn}, off, {W}, s{sPrev} sc1
          s_mov_b64 exec, -1""")


def poll_ge(e, tag, tmp, voff, soff, cmpv, nl):
    off = f"v{voff}" if voff is not None else "off"
    e(f"""L_pg_{tag}:
          buffer_load_dword v{tmp}, {off}, {W}, {soff} {'offen' if voff is not None else ''} sc1
          s_sub_u32 s{S_SPIN}, s{S_SPIN}, 1
          s_cbranch_scc1 L_end
          v_cmp_gt_u32 vcc, {cmpv}, v{tmp}
          s_and_b32 vcc_lo, vcc_lo, {(1 << nl) - 1}
          s_cbranch_scc0 L_pk_{tag}
          s_sleep 4
          s_branch L_pg_{tag}
          L_pk_{tag}:""")


def nap_until(e, tag, tmp, soff, need, st, unit):
    e(f"""L_nap_{tag}:
          buffer_load_dword v{tmp}, off, {W}, {soff} sc1
          s_sub_u32 s{S_SPIN}, s{S_SPIN}, 1
          s_cbranch_scc1 L_end
          v_readfirstlane_b32 s{st}, v{tmp}
          s_sub_u32 s{st}, {need}, s{st}
          s_cbranch_scc1 L_napx_{tag}
          s_cmp_eq_u32 s{st}, 0
          s_cbranch_scc1 L_napx_{tag}
          s_min_u32 s{st}, s{st}, 8
          L_napl_{tag}:
          s_sleep {unit}
          s_sub_u32 s{st}, s{st}, 1
          s_cmp_lg_u32 s{st}, 0
          s_cbranch_scc1 L_napl_{tag}
          s_branch L_nap_{tag}
          L_napx_{tag}:""")


def softmax_tail(e, vals, m0, m1, sC):
    v = list(vals)
    e(f"v_max3_f32 v{m0}, v{v[0]}, v{v[1]}, v{v[2]}")
    k = 3
    while k + 1 < len(v):
        e(f"v_max3_f32 v{m0}, v{m0}, v{v[k]}, v{v[k + 1]}"); k += 2
    if k < len(v):
        e(f"v_max_f32 v{m0}, v{m0}, v{v[k]}")
    e(f"""v_mov_b32 v{m1}, v{m0}
          v_permlane32_swap_b32 v{m0}, v{m1}
          v_max_f32 v{m0}, v{m0}, v{m1}
          v_mul_f32 v{m0}, s{sC}, v{m0}""")
    for r in v:
        e(f"v_fma_f32 v{r}, v{r}, s{sC}, -v{m0}")
    for r in v:
        e(f"v_exp_f32 v{r}, v{r}")
    e(f"v_add_f32 v{m0}, v{v[0]}, v{v[1]}\n v_add_f32 v{m1}, v{v[2]}, v{v[3]}")
    for k in range(4, len(v), 2):
        e(f"v_add_f32 v{m0}, v{m0}, v{v[k]}\n v_add_f32 v{m1}, v{m1}, v{v[k + 1]}")
    e(f"""v_add_f32 v{m0}, v{m0}, v{m1}
          v_mov_b32 v{m1}, v{m0}
          v_permlane32_swap_b32 v{m0}, v{m1}
          v_add_f32 v{m0}, v{m0}, v{m1}
          v_rcp_f32 v{m0}, v{m0}""")


def attn_b(e, cfg):
    lane, t1, vL16, vSig, vVm, vKm, vT, m0, m1, vOne, vF = range(1, 12)
    BIAS, Q, K, V, S, D0, D1, KM, VM, PX, PMm, O = 16, 32, 64, 96, 128, 144, 160, 176, 192, 208, 216, 128
    sSeg, sUnit, sExp, sOut, sFq, sFc, sFa, sCc, sLds = sC_, sD, sE, sF, sG, sH, sI, sJ, sK
    h = sWid
    lane_consts(e, lane, vL16, vSig)
    e(f"""v_and_b32 v{t1}, 31, v{lane}
          v_lshrrev_b32 v{vT}, 5, v{lane}
          v_lshlrev_b32 v{vT}, 2, v{vT}
          v_sub_u32 v{t1}, v{t1}, v{vT}
          v_mov_b32 v{vT}, {NEG}""")
    for r in range(16):
        e(f"v_cmp_gt_i32 vcc, {8 * (r >> 2) + (r & 3)}, v{t1}\n v_cndmask_b32 v{BIAS + r}, 0, v{vT}, vcc")
    e(f"""v_lshrrev_b32 v{t1}, 5, v{lane}
          v_lshlrev_b32 v{vVm}, 8, v{t1}
          v_and_b32 v{t1}, 15, v{lane}
          v_lshl_add_u32 v{vVm}, v{t1}, 4, v{vVm}
          v_bfe_u32 v{t1}, v{lane}, 4, 1
          v_lshl_add_u32 v{vVm}, v{t1}, 2, v{vVm}
          v_add_u32 v{vVm}, 8, v{vVm}""")
    e(f"""s_lshl_b32 s{sLds}, s{S_WAVE}, 12
          v_and_b32 v{t1}, 3, v{lane}
          v_lshlrev_b32 v{vKm}, 8, v{t1}
          v_lshrrev_b32 v{t1}, 5, v{lane}
          v_lshl_add_u32 v{vKm}, v{t1}, 6, v{vKm}
          v_bfe_u32 v{t1}, v{lane}, 2, 2
          v_lshl_add_u32 v{vKm}, v{t1}, 4, v{vKm}
          v_add_u32 v{vKm}, s{sLds}, v{vKm}
          v_lshlrev_b32 v{vF}, 2, v{lane}
          v_mov_b32 v{vOne}, 1""")
    for wc in range(4):
        e(f"v_mov_b64 {vr(VM + 4 * wc + 2, 2)}, 0")
    e(f"v_mov_b64 {vr(PMm + 2, 2)}, 0")
    e(f"""s_mov_b32 s{sSeg}, s{S_WAVE}
          s_lshl_b32 s{sA}, s{h}, 6
          s_add_u32 s{sA}, s{sA}, s{sSeg}
          s_mul_i32 s{sUnit}, s{sA}, {UNIT}
          s_lshl_b32 s{sExp}, s{sA}, 12
          s_add_u32 s{sExp}, s{sExp}, {WS_EXP}
          s_lshl_b32 s{sFq}, s{sA}, 2
          s_add_u32 s{sFq}, s{sFq}, {F_QKV}
          s_lshl_b32 s{sFc}, s{h}, 7
          s_add_u32 s{sFc}, s{sFc}, {F_CH}
          s_lshl_b32 s{sA}, s{sSeg}, 5
          s_add_u32 s{sA}, s{sA}, s{h}
          s_lshl_b32 s{sOut}, s{sA}, 13
          s_add_u32 s{sOut}, s{sOut}, {WS_OF}
          s_lshl_b32 s{sFa}, s{sA}, 2
          s_add_u32 s{sFa}, s{sFa}, {F_AT}
          s_mov_b32 s{sCc}, 0x3e0293ee""")
    e.wait(vm=0, lgkm=0)
    e.label("L_ab_loop")
    poll_ge(e, 'abq', vT, None, f"s{sFq}", 1, 1)
    e(f"s_add_u32 s{sA}, s{sUnit}, 4096")
    for base, a, off in ((K, vSig, 8192), (Q, vL16, 0), (V, vL16, 16384)):
        e(f"s_add_u32 s{sA}, s{sUnit}, {off}\n s_add_u32 s{sB}, s{sUnit}, {off + 4096}")
        for j in range(8):
            e(f"buffer_load_dwordx4 {vr(base + 4 * j, 4)}, v{a}, {W}, s{sA if j < 4 else sB} offen offset:{1024 * (j & 3)} sc1")
    for j in range(8):
        c = vr(BIAS, 16) if j == 0 else vr(S, 16)
        e(f"v_mfma_f32_32x32x16_bf16 {vr(S, 16)}, {vr(K + 4 * j, 4)}, {vr(Q + 4 * j, 4)}, {c}")
    e(f"s_add_u32 s{sA}, s{sSeg}, 1")
    e.wait(vm=0)
    if cfg.get('nap', 1):
        e(f"s_min_u32 s62, s{sSeg}, 62")
        nap_until(e, 'ab', vT, f"s{sFc}", "s62", sB, cfg.get('napu', 24))
    poll_ge(e, 'abc', vT, vF, f"s{sFc}", f"s{sA}", 4)
    e(f"s_mov_b32 m0, s{sLds}")
    for j in range(4):
        e(f"buffer_load_dwordx4 v{vL16}, {W}, s{sExp} offen offset:{1024 * j} sc1 lds")
    for wc in range(4):
        for a in range(2):
            e(f"buffer_load_dword v{VM + 4 * wc + a}, v{vVm}, {W}, s{sExp} offen offset:{1024 * wc + 512 * a} sc1")
    e.wait(vm=8)
    for wc in range(4):
        for z in range(2):
            e(f"ds_read_b64_tr_b16 {vr(KM + 4 * wc + 2 * z, 2)}, v{vKm} offset:{1024 * wc + 128 * z}")
    for wc in range(4):
        for ab, D in ((0, D0), (1, D1)):
            c = '0' if wc == 0 else vr(D, 16)
            e(f"v_mfma_f32_32x32x16_bf16 {vr(D, 16)}, {vr(KM + 4 * wc, 4)}, {vr(Q + 4 * (2 * wc + ab), 4)}, {c}")
    sm = [D0, D0 + 1, D0 + 4, D0 + 5]
    for r in sm:
        e(f"v_add_f32 v{r}, v{r}, v{r - D0 + D1 + 2}")
    softmax_tail(e, [S + r for r in range(16)] + sm, m0, m1, sCc)
    for j in range(8):
        e(f"v_cvt_pk_bf16_f32 v{PX + j}, v{S + 2 * j}, v{S + 2 * j + 1}")
    e(f"v_cvt_pk_bf16_f32 v{PMm}, v{D0}, v{D0 + 1}\n v_cvt_pk_bf16_f32 v{PMm + 1}, v{D0 + 4}, v{D0 + 5}")
    for wc in range(4):
        o = vr(O + 16 * wc, 16)
        e(f"""v_mfma_f32_32x32x16_bf16 {o}, {vr(V + 8 * wc, 4)}, {vr(PX, 4)}, 0
              v_mfma_f32_32x32x16_bf16 {o}, {vr(V + 8 * wc + 4, 4)}, {vr(PX + 4, 4)}, {o}
              v_mfma_f32_32x32x16_bf16 {o}, {vr(VM + 4 * wc, 4)}, {vr(PMm, 4)}, {o}""")
    e(f"s_add_u32 s{sB}, s{sOut}, 4096")
    for wc in range(4):
        o = O + 16 * wc
        for j in range(16):
            e(f"v_mul_f32 v{o + j}, v{o + j}, v{m0}")
        for j in range(8):
            e(f"v_cvt_pk_bf16_f32 v{Q + 8 * wc + j}, v{o + 2 * j}, v{o + 2 * j + 1}")
        for ab in range(2):
            j = 2 * wc + ab
            e(f"buffer_store_dwordx4 {vr(Q + 4 * j, 4)}, v{vL16}, {W}, s{sOut if j < 4 else sB} offen offset:{1024 * (j & 3)} sc1")
    e(f"""s_waitcnt vmcnt(0)
          s_mov_b64 exec, 1
          buffer_store_dword v{vOne}, off, {W}, s{sFa} sc1
          s_mov_b64 exec, -1
          s_add_u32 s{sUnit}, s{sUnit}, {4 * UNIT}
          s_add_u32 s{sExp}, s{sExp}, {4 * 4096}
          s_add_u32 s{sFq}, s{sFq}, 16
          s_add_u32 s{sOut}, s{sOut}, {4 * 32 * 8192}
          s_add_u32 s{sFa}, s{sFa}, {4 * 128}
          s_add_u32 s{sSeg}, s{sSeg}, 4
          s_cmp_lt_u32 s{sSeg}, 64
          s_cbranch_scc1 L_ab_loop
          s_branch L_end""")


def out_b(e, cfg):
    lane, t1, vL16, vSrc, vTr, vO, vSt, vT, vF, vRw, vRr = range(1, 12)
    ACC, RD = 16, 32
    sU, sSl, sRow, sLds, sOf, sFa, sTog = sC_, sD, sE, sF, sG, sH, sI
    srd(e, S_W0, P_WO, 0x400000)
    srd(e, S_W1, P_OUT, 0x400000)
    e(f"""s_sub_u32 s{sU}, s{sWid}, 64
          s_and_b32 s{sSl}, s{sU}, 15
          s_lshr_b32 s{sU}, s{sU}, 4
          v_and_b32 v{lane}, 63, v0
          v_lshlrev_b32 v{vL16}, 4, v{lane}
          v_lshlrev_b32 v{vF}, 2, v{lane}""")
    e(f"""v_lshrrev_b32 v{t1}, 2, v{lane}
          v_lshlrev_b32 v{vSrc}, 10, v{t1}
          v_and_b32 v{t1}, 3, v{lane}
          v_lshl_add_u32 v{vSrc}, v{t1}, 4, v{vSrc}
          s_lshl_b32 s{sRow}, s{S_WAVE}, 20
          s_lshl_b32 s{sA}, s{sSl}, 6
          s_add_u32 s{sRow}, s{sRow}, s{sA}
          s_lshl_b32 s{sLds}, s{S_WAVE}, 15""")
    e(f"""v_lshlrev_b32 v{vTr}, 3, v{t1}
          v_lshrrev_b32 v{t1}, 5, v{lane}
          v_lshl_add_u32 v{vTr}, v{t1}, 10, v{vTr}
          v_bfe_u32 v{t1}, v{lane}, 2, 3
          v_lshl_add_u32 v{vTr}, v{t1}, 6, v{vTr}
          v_add_u32 v{vTr}, s{sLds}, v{vTr}""")
    e(f"""v_lshrrev_b32 v{t1}, 4, v{lane}
          v_lshlrev_b32 v{vO}, 9, v{t1}
          v_lshlrev_b32 v{vSt}, 3, v{t1}
          v_and_b32 v{t1}, 15, v{lane}
          v_lshl_add_u32 v{vO}, v{t1}, 4, v{vO}
          v_lshl_add_u32 v{vSt}, v{t1}, 11, v{vSt}
          s_lshl_b32 s{sA}, s{S_WAVE}, 11
          s_add_u32 s{sA}, s{sA}, 131072
          v_add_u32 v{vRw}, s{sA}, v{vL16}
          s_lshl_b32 s{sA}, s{S_WAVE}, 10
          s_add_u32 s{sA}, s{sA}, 131072
          v_add_u32 v{vRr}, s{sA}, v{vL16}""")
    e.wait(vm=0, lgkm=0)
    e("s_barrier")
    marks = {}

    def dma(ks):
        for j in range(2):
            e(f"""s_add_u32 m0, s{sLds}, {(ks % 16) * 2048 + j * 1024}
                  s_add_u32 s{sA}, s{sRow}, {(32 * ks + 16 * j) * 1024}
                  buffer_load_dwordx4 v{vSrc}, {sr(S_W0, 4)}, s{sA} offen lds""")
        marks[ks] = e.vm[-1]

    for ks in range(15):
        dma(ks)
    for ks in range(32):
        e.wait(vm=len(e.vm) - 1 - e.vm.index(marks[ks]), lgkm=0)
        if ks + 15 < 32:
            dma(ks + 15)
        for dt in range(2):
            for z in range(2):
                e(f"ds_read_b64_tr_b16 {vr(8 * ks + 4 * dt + 2 * z, 2, 'a')}, v{vTr} offset:{(ks % 16) * 2048 + z * 512 + dt * 32}")
    e.wait(vm=0, lgkm=0)
    e(f"s_mov_b32 s{sTog}, 0")
    e.label("L_ob_loop")
    e(f"""s_lshr_b32 s{sA}, s{sU}, 1
          s_lshl_b32 s{sA}, s{sA}, 5
          s_lshl_b32 s{sB}, s{S_WAVE}, 3
          s_add_u32 s{sA}, s{sA}, s{sB}
          s_lshl_b32 s{sFa}, s{sA}, 2
          s_add_u32 s{sFa}, s{sFa}, {F_AT}
          s_lshl_b32 s{sOf}, s{sA}, 13
          s_and_b32 s{sB}, s{sU}, 1
          s_lshl_b32 s{sB}, s{sB}, 8
          s_add_u32 s{sOf}, s{sOf}, s{sB}
          s_add_u32 s{sOf}, s{sOf}, {WS_OF}""")
    if cfg.get('nap', 1):
        e(f"""s_lshr_b32 s62, s{sU}, 1
              s_add_u32 s62, s62, 1
              s_min_u32 s62, s62, 62
              s_and_b32 s63, s{sWid}, 31
              s_lshl_b32 s63, s63, 7
              s_add_u32 s63, s63, {F_CH}""")
        nap_until(e, 'ob', vT, "s63", "s62", sB, cfg.get('napu', 24))
    poll_ge(e, 'ob', vT, vF, f"s{sFa}", 1, 8)
    for ks in range(32):
        if ks % 2 == 0:
            e(f"s_add_u32 s{sA}, s{sOf}, {ks * 2048}")
        e(f"buffer_load_dwordx4 {vr(128 + 4 * ks, 4)}, v{vO}, {W}, s{sA} offen offset:{(ks & 1) * 2048} sc1")
    for ks in range(32):
        for dt in range(2):
            c = '0' if ks == 0 else vr(ACC + 4 * dt, 4)
            e(f"v_mfma_f32_16x16x32_bf16 {vr(ACC + 4 * dt, 4)}, {vr(8 * ks + 4 * dt, 4, 'a')}, {vr(128 + 4 * ks, 4)}, {c}")
    e(f"""v_add_u32 v{vT}, s{sTog}, v{vRw}
          ds_write_b128 v{vT}, {vr(ACC, 4)}
          ds_write_b128 v{vT}, {vr(ACC + 4, 4)} offset:1024""")
    e.barrier()
    e(f"""s_cmp_ge_u32 s{S_WAVE}, 2
          s_cbranch_scc1 L_ob_next
          v_add_u32 v{vT}, s{sTog}, v{vRr}""")
    for p in range(4):
        e(f"ds_read_b128 {vr(RD + 4 * p, 4)}, v{vT} offset:{2048 * p}")
    for r in range(4):
        e(f"""v_add_f32 v{RD + r}, v{RD + r}, v{RD + 4 + r}
              v_add_f32 v{RD + 8 + r}, v{RD + 8 + r}, v{RD + 12 + r}
              v_add_f32 v{RD + r}, v{RD + r}, v{RD + 8 + r}""")
    e(f"""v_cvt_pk_bf16_f32 v{RD}, v{RD}, v{RD + 1}
          v_cvt_pk_bf16_f32 v{RD + 1}, v{RD + 2}, v{RD + 3}
          s_lshl_b32 s{sA}, s{sU}, 15
          s_lshl_b32 s{sB}, s{sSl}, 6
          s_add_u32 s{sA}, s{sA}, s{sB}
          s_lshl_b32 s{sB}, s{S_WAVE}, 5
          s_add_u32 s{sA}, s{sA}, s{sB}
          buffer_store_dwordx2 {vr(RD, 2)}, v{vSt}, {sr(S_W1, 4)}, s{sA} offen offset:1024 {cfg.get('ost', '')}
          L_ob_next:
          s_xor_b32 s{sTog}, s{sTog}, 8192
          s_add_u32 s{sU}, s{sU}, 10
          s_cmp_lt_u32 s{sU}, 128
          s_cbranch_scc1 L_ob_loop
          s_branch L_end""")


def part_a(e, cfg):
    lane, t1, vL16, vSig, vSrc, vTr, vT, m0, m1, vSt, vW, vNeg = range(1, 13)
    BC, BP, BPX = 16, 32, 48
    SC, SP, O, PX = 64, 80, 96, 112
    Q, KC, KP, VC, VP = 128, 160, 192, 224, 48
    sSeg, sCh, sUnit, sPrevU, sFq, sCc, sRow = sC_, sD, sE, sF, sG, sH, sI
    srd(e, S_W0, P_AWO, 0x80000)
    srd(e, S_W1, P_OUT, 0x400000)
    lane_consts(e, lane, vL16, vSig)
    e(f"""s_sub_u32 s{sSeg}, s{sWid}, 32
          s_and_b32 s{sCh}, s{sSeg}, 1
          s_lshr_b32 s{sSeg}, s{sSeg}, 1
          s_mov_b32 s{sCc}, 0x3eb8aa3b""")
    e(f"""v_and_b32 v{t1}, 31, v{lane}
          v_lshrrev_b32 v{vT}, 5, v{lane}
          v_lshlrev_b32 v{vT}, 2, v{vT}
          v_sub_u32 v{t1}, v{t1}, v{vT}
          v_mov_b32 v{vNeg}, {NEG}""")
    for base, add in ((BC, 0), (BP, 32)):
        for r in range(16):
            e(f"""v_add_u32 v{vT}, {add - 8 * (r >> 2) - (r & 3)}, v{t1}
                  v_and_b32 v{vT}, 0xfffffff1, v{vT}
                  v_cmp_ne_u32 vcc, 0, v{vT}
                  v_cndmask_b32 v{base + r}, 0, v{vNeg}, vcc""")
    e(f"""v_lshrrev_b32 v{t1}, 5, v{lane}
          v_lshlrev_b32 v{vSrc}, 10, v{t1}
          v_and_b32 v{t1}, 31, v{lane}
          v_lshl_add_u32 v{vSrc}, v{t1}, 4, v{vSrc}
          v_lshlrev_b32 v{vSt}, 11, v{t1}
          s_lshl_b32 s{sRow}, s{S_WAVE}, 13
          s_lshl_b32 s{sA}, s{sCh}, 9
          s_add_u32 s{sRow}, s{sRow}, s{sA}
          s_lshl_b32 s63, s{S_WAVE}, 12""")
    e(f"""v_lshrrev_b32 v{t1}, 5, v{lane}
          v_lshlrev_b32 v{vTr}, 11, v{t1}
          v_lshl_add_u32 v{vSt}, v{t1}, 3, v{vSt}
          v_bfe_u32 v{t1}, v{lane}, 2, 2
          v_lshl_add_u32 v{vTr}, v{t1}, 9, v{vTr}
          v_bfe_u32 v{t1}, v{lane}, 4, 1
          v_lshl_add_u32 v{vTr}, v{t1}, 5, v{vTr}
          v_and_b32 v{t1}, 3, v{lane}
          v_lshl_add_u32 v{vTr}, v{t1}, 3, v{vTr}
          s_lshl_b32 s{sA}, s{S_WAVE}, 7
          v_add_u32 v{vTr}, s{sA}, v{vTr}
          s_lshl_b32 s{sA}, s{S_WAVE}, 13
          v_add_u32 v{vW}, s{sA}, v{vL16}""")
    e.wait(vm=0, lgkm=0)
    e("s_barrier")
    marks = {}

    def dma(r):
        for j in range(4):
            e(f"""s_add_u32 m0, s63, {(r % 8) * 16384 + j * 1024}
                  s_add_u32 s{sA}, s{sRow}, {(32 * r + 2 * j) * 1024}
                  buffer_load_dwordx4 v{vSrc}, {sr(S_W0, 4)}, s{sA} offen lds""")
        marks[r] = e.vm[-1]

    for r in range(7):
        dma(r)
    for r in range(16):
        e.wait(vm=len(e.vm) - 1 - e.vm.index(marks[r]), lgkm=0)
        e("s_barrier")
        if r + 7 < 16:
            dma(r + 7)
        e(f"v_add_u32 v{vT}, {(r % 8) * 16384}, v{vTr}")
        for hl in range(2):
            for dt in range(2):
                for z in range(2):
                    e(f"ds_read_b64_tr_b16 {vr(8 * (2 * r + hl) + 4 * dt + 2 * z, 2, 'a')}, v{vT} offset:{(16 * hl + 8 * z) * 512 + dt * 64}")
    e.wait(vm=0, lgkm=0)
    e.label("L_pa_loop")
    e(f"""s_add_u32 s{sA}, s{S_WAVE}, 32
          s_lshl_b32 s{sA}, s{sA}, 6
          s_add_u32 s{sA}, s{sA}, s{sSeg}
          s_mul_i32 s{sUnit}, s{sA}, {UNIT}
          s_lshl_b32 s{sFq}, s{sA}, 2
          s_add_u32 s{sFq}, s{sFq}, {F_QKV}
          s_cmp_eq_u32 s{sSeg}, 0
          s_cselect_b32 s{sA}, 0, {UNIT}
          s_cselect_b32 s{sB}, 0, 4
          s_cselect_b64 vcc, -1, 0
          s_sub_u32 s{sPrevU}, s{sUnit}, s{sA}
          s_sub_u32 s62, s{sFq}, s{sB}""")
    for r in range(8, 16):
        e(f"v_cndmask_b32 v{BP + r - 8}, v{BP + r}, v{vNeg}, vcc")
    poll_ge(e, 'pa1', vT, None, f"s{sFq}", 1, 1)
    poll_ge(e, 'pa2', vT, None, "s62", 1, 1)
    for base, a, u, off in ((Q, vL16, sUnit, 0), (KC, vSig, sUnit, 8192), (KP, vSig, sPrevU, 8192), (VC, vL16, sUnit, 16384)):
        e(f"s_add_u32 s{sA}, s{u}, {off}\n s_add_u32 s{sB}, s{u}, {off + 4096}")
        for j in range(8):
            e(f"buffer_load_dwordx4 {vr(base + 4 * j, 4)}, v{a}, {W}, s{sA if j < 4 else sB} offen offset:{1024 * (j & 3)} sc1")
    e(f"s_add_u32 s{sA}, s{sPrevU}, {16384 + 1024}\n s_add_u32 s{sB}, s{sPrevU}, {16384 + 1024 + 4096}")
    for wc in range(4):
        e(f"buffer_load_dwordx4 {vr(VP + 4 * wc, 4)}, v{vL16}, {W}, s{sA if wc < 2 else sB} offen offset:{2048 * (wc & 1)} sc1")
    e("s_barrier")
    for j in range(8):
        wc, ab = j >> 1, j & 1
        e(f"""v_mfma_f32_32x32x16_bf16 {vr(SC, 16)}, {vr(KC + 4 * j, 4)}, {vr(Q + 4 * j, 4)}, {vr(BC, 16)}
              v_mfma_f32_32x32x16_bf16 {vr(SP, 16)}, {vr(KP + 4 * j, 4)}, {vr(Q + 4 * j, 4)}, {vr(BP - 8, 16)}""")
        softmax_tail(e, [SC + r for r in range(16)] + [SP + r for r in range(8, 16)], m0, m1, sCc)
        for k in range(8):
            e(f"v_cvt_pk_bf16_f32 v{PX + k}, v{SC + 2 * k}, v{SC + 2 * k + 1}")
        for k in range(4):
            e(f"v_cvt_pk_bf16_f32 v{PX + 8 + k}, v{SP + 8 + 2 * k}, v{SP + 8 + 2 * k + 1}")
        o = vr(O, 16)
        e(f"""v_mfma_f32_32x32x16_bf16 {o}, {vr(VC + 8 * wc, 4)}, {vr(PX, 4)}, 0
              v_mfma_f32_32x32x16_bf16 {o}, {vr(VC + 8 * wc + 4, 4)}, {vr(PX + 4, 4)}, {o}
              v_mfma_f32_32x32x16_bf16 {o}, {vr(VP + 4 * wc, 4)}, {vr(PX + 8, 4)}, {o}""")
        for k in range(8):
            e(f"v_mul_f32 v{O + 8 * ab + k}, v{O + 8 * ab + k}, v{m0}")
        for k in range(4):
            e(f"v_cvt_pk_bf16_f32 v{124 + k}, v{O + 8 * ab + 2 * k}, v{O + 8 * ab + 2 * k + 1}")
        e(f"ds_write_b128 v{vW}, {vr(124, 4)} offset:{1024 * j}")
    e.barrier()
    for hd in range(32):
        e(f"ds_read_b128 {vr(128 + 4 * hd, 4)}, v{vL16} offset:{1024 * hd}")
        if hd >= 8:
            k = hd - 8
            for dt in range(2):
                c = '0' if k == 0 else vr(SC + 16 * dt, 16)
                e(f"v_mfma_f32_32x32x16_bf16 {vr(SC + 16 * dt, 16)}, {vr(8 * k + 4 * dt, 4, 'a')}, {vr(128 + 4 * k, 4)}, {c}")
    for k in range(24, 32):
        for dt in range(2):
            e(f"v_mfma_f32_32x32x16_bf16 {vr(SC + 16 * dt, 16)}, {vr(8 * k + 4 * dt, 4, 'a')}, {vr(128 + 4 * k, 4)}, {vr(SC + 16 * dt, 16)}")
    e(f"""s_lshl_b32 s{sA}, s{sSeg}, 16
          s_lshl_b32 s{sB}, s{sCh}, 9
          s_add_u32 s{sA}, s{sA}, s{sB}
          s_lshl_b32 s{sB}, s{S_WAVE}, 7
          s_add_u32 s{sA}, s{sA}, s{sB}""")
    for dt in range(2):
        for a in range(4):
            r = SC + 16 * dt + 4 * a
            d = O + 2 * (4 * dt + a)
            e(f"""v_cvt_pk_bf16_f32 v{d}, v{r}, v{r + 1}
                  v_cvt_pk_bf16_f32 v{d + 1}, v{r + 2}, v{r + 3}
                  buffer_store_dwordx2 {vr(d, 2)}, v{vSt}, {sr(S_W1, 4)}, s{sA} offen offset:{64 * dt + 16 * a} {cfg.get('ost', '')}""")
    e(f"""s_add_u32 s{sSeg}, s{sSeg}, 16
          s_cmp_lt_u32 s{sSeg}, 64
          s_cbranch_scc1 L_pa_loop
          s_branch L_end""")


def worker(e, cfg):
    e(f"""s_sub_u32 s{sWid}, s{S_ROLE}, 32
          s_cmp_lt_u32 s{sWid}, 216
          s_cbranch_scc1 L_proj""")
    st = e.state()
    e("s_waitcnt vmcnt(0)")
    confirm_barrier(e, 'sp')
    wait_init(e, 'sp', 3, 127)
    e("s_branch L_phase2")
    e.label("L_proj"); e.set_state(st)
    proj(e, cfg)
    e.label("L_phase2")
    dbg_max(e, cfg, 15, v=12)
    if cfg.get('diag'):
        e("s_memrealtime s[88:89]\n s_waitcnt lgkmcnt(0)")
    if cfg.get('nophase2'):
        e("s_branch L_end")
    e(f"""s_cmp_lt_u32 s{sWid}, 32
          s_cbranch_scc1 L_attn_b
          s_cmp_lt_u32 s{sWid}, 64
          s_cbranch_scc1 L_part_a""")
    st = e.state()
    out_b(e, cfg)
    e.label("L_attn_b"); e.set_state(st)
    attn_b(e, cfg)
    e.label("L_part_a"); e.set_state(st)
    part_a(e, cfg)
```

```python
import sys
from common import *
import chain3 as CH

HEADER = open('cdna_kernels/' + NAME + '.s.ref').read().split('; Override launch')[0]


def prologue(e, cfg):
    e(f"""s_cmp_ge_u32 s2, 256
          s_cbranch_scc1 L_end""")
    if cfg.get('diag') or cfg.get('holdto') or cfg.get('holdend'):
        e("s_memrealtime s[94:95]")
    e(f"""s_load_dwordx16 s[20:35], s[0:1], 0
          s_load_dwordx8 s[36:43], s[0:1], 64
          s_load_dwordx2 s[44:45], s[0:1], 96
          s_getreg_b32 s{S_XCC}, hwreg(HW_REG_XCC_ID, 0, 3)
          v_lshrrev_b32 v1, 6, v0
          v_readfirstlane_b32 s{S_WAVE}, v1
          s_mov_b32 s{S_SPIN}, {SPIN_MAX}
          s_waitcnt lgkmcnt(0)""")
    srd(e, S_WS, P_WSP, WS_SIZE)
    srd(e, S_DBG, P_DBG, 256)
    dbg_max(e, cfg, 10, True, 5, 31)
    e(f"""s_lshr_b32 s50, s2, 3
          s_lshl_b32 s{S_ROLE}, s{S_XCC}, 5
          s_add_u32 s{S_ROLE}, s{S_ROLE}, s50
          s_mov_b32 s{S_CONF}, 0
          s_cmp_lg_u32 s{S_WAVE}, 0
          s_cbranch_scc1 L_dispatch
          s_lshl_b32 s51, 1, s50
          s_lshl_b32 s52, s{S_XCC}, {D_CLAIM_SH}
          v_mov_b32 v{V_CLAIM}, s51
          s_mov_b64 exec, 1
          buffer_atomic_or v{V_CLAIM}, off, {sr(S_DBG, 4)}, s52 sc0
          s_mov_b32 exec_lo, -1
          v_mov_b32 v3, 0
          v_lshlrev_b32 v4, 2, v0
          s_lshl_b32 s51, s2, 7
          s_add_u32 s51, s51, {WS_FLAG}
          buffer_store_dword v3, v4, {sr(S_WS, 4)}, s51 offen sc1
          s_mov_b64 exec, -1""")
    e.vm = []
    e.label("L_dispatch")


def reclaim(e):
    e.forget()
    e(f"""L_reclaim:
          s_mov_b32 s{S_RA}, s{S_XCC}
          s_movk_i32 s{S_SPIN}, 600
          L_rc_word:
          v_readfirstlane_b32 s{S_RB}, v{V_CLAIM}
          s_cmp_eq_u32 s{S_RB}, -1
          s_cbranch_scc0 L_rc_try
          s_add_u32 s{S_RA}, s{S_RA}, 1
          s_and_b32 s{S_RA}, s{S_RA}, 7
          s_mov_b32 s{S_RB}, 0
          L_rc_try:
          s_sub_u32 s{S_SPIN}, s{S_SPIN}, 1
          s_cselect_b32 s{S_RA}, 64, s{S_RA}
          s_cbranch_scc1 L_rc_got
          s_mov_b32 s38, s{S_RB}
          s_mov_b32 s39, s{S_RB}
          s_and_b32 s{S_RB}, s{S_ROLE}, 31
          s_add_u32 s{S_RB}, s{S_RB}, s2
          s_and_b32 s{S_RB}, s{S_RB}, 31
          s_lshr_b64 s[38:39], s[38:39], s{S_RB}
          s_ff0_i32_b32 s38, s38
          s_add_u32 s{S_RB}, s{S_RB}, s38
          s_and_b32 s{S_RB}, s{S_RB}, 31
          s_lshl_b32 s{S_RC}, 1, s{S_RB}
          v_mov_b32 v{V_CLAIM}, s{S_RC}
          s_lshl_b32 s{S_RC}, s{S_RA}, {D_CLAIM_SH}
          s_mov_b64 exec, 1
          buffer_atomic_or v{V_CLAIM}, off, {sr(S_DBG, 4)}, s{S_RC} sc0
          s_mov_b64 exec, -1
          v_readfirstlane_b32 s{S_RC}, v{V_CLAIM}
          s_bitcmp1_b32 s{S_RC}, s{S_RB}
          s_cbranch_scc1 L_rc_word
          L_rc_got:
          s_lshl_b32 s{S_RA}, s{S_RA}, 5
          s_or_b32 s{S_RA}, s{S_RA}, s{S_RB}
          v_mov_b32 v{V_CLAIM}, s{S_RA}
          v_mov_b32 v{V_CLAIM - 1}, {L_ROLE}
          ds_write_b32 v{V_CLAIM - 1}, v{V_CLAIM}
          s_waitcnt lgkmcnt(0)
          s_barrier
          L_restart:
          s_cmp_ge_u32 s{S_RA}, 256
          s_cbranch_scc1 L_end
          s_mov_b32 s{S_SPIN}, {SPIN_MAX}
          s_and_b32 s{S_ROLE}, s{S_RA}, 255
          s_mov_b32 s{S_CONF}, 1
          v_mbcnt_lo_u32_b32 v0, -1, 0
          v_mbcnt_hi_u32_b32 v0, -1, v0
          s_waitcnt vmcnt(0) lgkmcnt(0)
          s_barrier
          s_branch L_dispatch""")


def fake_worker(e, cfg):
    e(f"""s_cmp_lg_u32 s{S_WAVE}, 0
          s_cbranch_scc1 L_end
          s_waitcnt vmcnt(0)
          v_mov_b32 v2, 1
          s_mov_b64 exec, 1
          buffer_atomic_add v2, off, {sr(S_DBG, 4)}, 0 offset:{D_INIT}
          s_mov_b64 exec, -1
          s_cmp_ge_u32 s{S_ROLE}, {32 + NHH}
          s_cbranch_scc1 L_end
          L_fw_poll:
          buffer_load_dword v3, off, {sr(S_DBG, 4)}, 0 offset:{D_INIT} sc1
          s_sub_u32 s{S_SPIN}, s{S_SPIN}, 1
          s_cbranch_scc1 L_end
          v_readfirstlane_b32 s50, v3
          s_and_b32 s50, s50, 0xffff
          s_cmp_eq_u32 s50, 256
          s_cbranch_scc0 L_fw_poll
          s_sub_u32 s50, s{S_ROLE}, 32
          s_lshl_b32 s50, s50, 8
          s_add_u32 s50, s50, {F_QKV}
          v_mov_b32 v2, 1
          v_lshlrev_b32 v4, 2, v0
          buffer_store_dword v2, v4, {sr(S_WS, 4)}, s50 offen sc1
          s_waitcnt vmcnt(0)
          s_branch L_end""")


def build(cfg):
    e = Emitter()
    prologue(e, cfg)
    e(f"s_cmp_ge_u32 s{S_ROLE}, 32\n s_cbranch_scc1 L_worker")
    st = e.state()
    CH.chain(e, cfg)
    e.label("L_worker"); e.set_state(st)
    if cfg.get('fake_proj'):
        fake_worker(e, cfg)
    else:
        import workers
        workers.worker(e, cfg)
    reclaim(e)
    e.label("L_end")
    if cfg.get('dbgt'):
        e.forget()
        e("s_cmp_ge_u32 s2, 256\n s_cbranch_scc1 L_end3\n s_waitcnt vmcnt(0)")
        dbg_max(e, cfg, 13, mask=0)
        e.label("L_end3")
    if cfg.get('diag'):
        e.forget()
        e(f"""s_cmp_ge_u32 s2, 256
              s_cbranch_scc1 L_end2
              s_waitcnt vmcnt(0)
              s_memrealtime s[92:93]
              s_lshl_b32 s90, s{S_ROLE}, 2
              s_add_u32 s90, s90, s{S_WAVE}
              s_lshl_b32 s90, s90, 4
              s_add_u32 s90, s90, 0x6100000
              s_waitcnt lgkmcnt(0)
              v_mov_b32 v2, s94
              v_mov_b32 v3, s92
              v_mov_b32 v4, s88
              v_mov_b32 v5, s86
              buffer_store_dwordx4 v[2:5], off, {sr(S_WS, 4)}, s90
              L_end2:""")
    K = NAME + "_kernel"
    return HEADER + f"""; @launch grid=(256,1,1) block=(256,1,1) lds={LDS_BYTES}
.amdgcn_target "amdgcn-amd-amdhsa--gfx950"
.text
.globl {K}
.p2align 8
.type {K},@function
{K}:
""" + e.text() + f"""  s_endpgm
.section .rodata,"a"
.p2align 6
.amdhsa_kernel {K}
  .amdhsa_next_free_vgpr 512
  .amdhsa_next_free_sgpr 102
  .amdhsa_accum_offset 256
  .amdhsa_group_segment_fixed_size 0
  .amdhsa_kernarg_size 104
  .amdhsa_user_sgpr_count 2
  .amdhsa_user_sgpr_kernarg_segment_ptr 1
  .amdhsa_system_sgpr_workgroup_id_x 1
.end_amdhsa_kernel
"""


if __name__ == '__main__':
    out = sys.argv[1]
    cfg = eval(sys.argv[2]) if len(sys.argv) > 2 else {}
    open(out, 'w').write(build(cfg))
```

```python
from common import *

L_T, L_OB, L_DUMMY, L_KX, L_WL = 8192, 12288, 14336, 16384, 32768
vL16, vPst, vMst, vTw, vTr, vKXr, vOw, vWL0, vWL1, vMw, vIdx, vSelC = range(12)
EX, PM, VX = 12, 16, 20
TMP = 28
MA = 32
ACC = 64
X, KXR, SPARE = 88, 104, 120
R1 = [MA + 8, MA + 16, MA + 24, X, X + 8, KXR, KXR + 8, SPARE, X, X + 8]
WO_SB = [KXR, KXR + 8, X, X + 8, ACC, ACC + 8]
(sStep, sMcur, sProg, sMtog, sG, sKl, sPst2, sKV, sC, sExp, sMcur2, sMbaseS, sPbaseS, sPbaseL, sFl, sFch, sTog, sNan,
 sA, sB) = range(50, 70)
sSel = 70
sOK, sHl, sMn2 = 78, 79, 3
sArm, sFm = 18, 98
sVx, sVt, sHs, sOK2, sG2 = 96, 97, 16, 17, 100
HV, HS, HA, HD = TMP + 2, TMP + 3, VX + 2, VX + 3
S_M0 = 84
sDbgT = 80

STREAM = [('q', 0, 0), ('q', 1, 0), ('k', 0, 0), ('k', 1, 0), ('q', 0, 1), ('q', 1, 1), ('k', 0, 1), ('k', 1, 1),
          ('q', 0, 5), ('q', 0, 7),
          ('o', 5, 0), ('o', 5, 1), ('o', 6, 0), ('o', 6, 1), ('o', 7, 0), ('o', 7, 1)]
WLPOS = {op: p for op, p in zip(STREAM[10:14], range(4))}
WLPOS.update({op: 4 + p for p, op in enumerate(STREAM[14:16] + STREAM[:10])})
ALLOPS = [(m, ft, i) for m in 'qkv' for ft in range(2) for i in range(8)] + [('o', t, kb) for t in range(8) for kb in range(2)]
RES = {}
for n, op in enumerate([o for o in ALLOPS if o not in STREAM]):
    RES[op] = ('a', 8 * n) if n < 32 else ('v', 128 + 8 * (n - 32))
PARK = {}
for n, op in enumerate(STREAM[14:16] + STREAM[:10]):
    PARK[op] = 32 + 8 * n
for n, op in enumerate(STREAM[10:14]):
    PARK[op] = 48 + 8 * n
W = sr(S_WS, 4)
CFG = {}


def wl_addr(op, half):
    p = WLPOS[op]
    off = (p >> 1) * 16384 + (p & 1) * 2048 + half * 1024
    return (vWL0, off) if off < 65536 else (vWL1, off - 65536)


def wl_write(e, op, src):
    for half in range(2):
        a, off = wl_addr(op, half)
        e(f"ds_write_b128 v{a}, {vr(src + 4 * half, 4)} offset:{off}")


def wl_lines(op, dst):
    out = []
    for half in range(2):
        a, off = wl_addr(op, half)
        out.append(f"ds_read_b128 {vr(dst + 4 * half, 4)}, v{a} offset:{off}")
    return out


def delay(e, cyc):
    n = cyc // 4
    while n > 0:
        k = min(n, 16)
        e(f"s_nop {k - 1}")
        n -= k


def mix(reads, other, per=3):
    out = []
    other = list(other)
    for r in reads:
        out.append(r)
        for _ in range(per):
            if other:
                out.append(other.pop(0))
    return out + other


def mload(b):
    return f"buffer_load_dwordx4 {vr(MA + 4 * b, 4)}, v{vMw}, {W}, s{sMcur if b == 0 else sMcur2} offen sc1"


def kx_dma(e, ldsbase):
    e(f"""s_lshl_b32 s{sA}, s{S_WAVE}, 11
          s_add_u32 m0, s{sA}, {ldsbase}
          buffer_load_dwordx4 v{vL16}, {W}, s{sKV} offen sc1 lds
          buffer_load_dwordx4 v{vL16}, {W}, s{sKV} offen offset:1024 sc1 lds""")


def scalar_lines():
    return [x.strip() for x in f"""s_and_b32 s{sA}, s{sStep}, 3
          s_lshl_b32 s{sA}, s{sA}, 13
          s_add_u32 s{sMcur}, s{sA}, {WS_M}
          s_add_u32 s{sMcur2}, s{sA}, {WS_M + 4096}
          s_and_b32 s{sA}, s{sA}, 0x2000
          s_add_u32 s{sMn2}, s{sMbaseS}, s{sA}
          s_lshl_b32 s{sMtog}, s{sA}, 1
          s_sub_u32 s{sVx}, s{sKV}, s{sTog}
          s_add_u32 s{sVx}, s{sVx}, {8192 - L_KX}
          s_add_u32 s{sKV}, s{sKV}, {0 if CFG.get('samekv') else UNIT}
          s_add_u32 s{sVt}, s{sKV}, 8192
          s_xor_b32 s{sA}, s{sTog}, 0x2000
          s_add_u32 m0, s{sA}, s{sKl}
          s_cmp_gt_u32 s{sStep}, 1
          s_cselect_b32 s{sA}, 4096, 0
          s_add_u32 s{sExp}, s{sExp}, s{sA}
          s_add_u32 s{sOK2}, s{sStep}, 1
          s_min_u32 s{sOK}, s{sOK2}, 63
          s_max_u32 s{sProg}, s{sStep}, 1
          s_sub_u32 s{sProg}, s{sProg}, 1
          s_and_b32 s{sG2}, s{sOK2}, 1""".split('\n')]


def prep_a_lines():
    other = [f"v_mov_b64 {vr(ACC + j, 2)}, 0" for j in range(0, 24, 2)] + [f"v_lshlrev_b32 v{PM + 3}, 1, v{vL16}", f"v_lshrrev_b32 v{TMP}, 2, v{vL16}"]
    reads = sum([wl_lines(STREAM[o], R1[o]) for o in range(3, 8)], [])
    return mix(reads, other, 2)


def prep_b_lines():
    other = [f"v_xor_b32 v{vMst}, s{sMtog}, v{vMst}"] + [f"v_xor_b32 v{TMP + p}, {p << 10}, v{vMw}" for p in range(1, 4)]
    reads = sum([wl_lines(STREAM[o], R1[o]) for o in range(3)], [])
    return mix(reads, other, 1)


def chain_startup(e, cfg):
    h = S_ROLE
    tA, tB, tC, tD = EX, EX + 1, EX + 2, EX + 3
    t0, t1, t2, t3 = TMP, TMP + 1, TMP + 2, TMP + 3
    lane = PM
    chunks = [('o', kb, Q) for kb in range(2) for Q in range(4)] + [(m, b, 0) for m in 'qkv' for b in range(8)]
    ring = {4: L_WL + 2 * 16384, 5: L_WL + 3 * 16384, 6: L_WL + 4 * 16384, 0: L_WL + 5 * 16384, 1: L_WL + 6 * 16384,
            2: L_WL + 7 * 16384, 3: 0}
    ptr = {'q': P_WQ, 'k': P_WK, 'v': P_WV, 'o': P_WO}
    sHq, sHo, sLw = sMcur, sProg, sMcur2
    cur, marks = [None], {}

    def dma(r):
        m, x, Q = chunks[r]
        if cur[0] != m:
            srd(e, S_T0, ptr[m], 0x400000); cur[0] = m
        for i in range(4):
            if m == 'o':
                row = 64 * x + 32 * (Q >> 1) + 2 * (Q & 1) + 4 * (i >> 1) + (i & 1)
                e(f"""s_add_u32 s{sA}, s{sHo}, {row * 1024}
                      s_add_u32 m0, s{sLw}, {ring[r % 7] + i * 1024}
                      buffer_load_dwordx4 v{vL16}, {sr(S_T0, 4)}, s{sA} offen lds""")
            else:
                e(f"""s_add_u32 s{sA}, s{sHq}, {(128 * (x & 3) + 64 * (x >> 2) + 4 * i) * 8192}
                      s_add_u32 m0, s{sLw}, {ring[r % 7] + i * 1024}
                      buffer_load_dwordx4 v{tA}, {sr(S_T0, 4)}, s{sA} offen lds""")
        marks[r] = e.vm[-1]

    e(f"""v_and_b32 v{lane}, 63, v0
          v_lshlrev_b32 v{vL16}, 4, v{lane}
          s_and_b32 s{sA}, s{S_WAVE}, 1
          s_lshr_b32 s{sB}, s{S_WAVE}, 1
          s_lshl_b32 s{sHo}, s{h}, 17
          s_lshl_b32 s{sLw}, s{sA}, 14
          s_add_u32 s{sHo}, s{sHo}, s{sLw}
          s_lshl_b32 s{sLw}, s{sB}, 13
          s_add_u32 s{sHo}, s{sHo}, s{sLw}
          s_lshl_b32 s{sHq}, s{h}, 8
          s_lshl_b32 s{sLw}, s{S_WAVE}, 17
          s_add_u32 s{sHq}, s{sHq}, s{sLw}
          s_lshl_b32 s{sLw}, s{S_WAVE}, 12""")
    for r in range(6):
        dma(r)
    e(f"""v_lshrrev_b32 v{t0}, 4, v{lane}
          v_and_b32 v{t1}, 15, v{lane}
          s_lshl_b32 s{sA}, s{S_WAVE}, 10
          v_add_u32 v{vMw}, s{sA}, v{vL16}
          v_lshlrev_b32 v{PM + 3}, 2, v{lane}""")
    e(f"""v_lshrrev_b32 v{t2}, 2, v{lane}
          v_lshlrev_b32 v{t2}, 12, v{t2}
          v_and_b32 v{t3}, 3, v{lane}
          v_lshl_add_u32 v{vPst}, v{t3}, 4, v{t2}""")
    e(f"""v_and_b32 v{t2}, 1, v{lane}
          v_lshlrev_b32 v{t2}, 5, v{t2}
          v_lshl_add_u32 v{t2}, v{t0}, 3, v{t2}
          v_and_b32 v{t3}, 4, v{lane}
          v_add_u32 v{t2}, v{t2}, v{t3}
          v_and_b32 v{t3}, 8, v{lane}
          v_cmp_ne_u32 {sr(sArm, 2)}, 0, v{t3}
          v_lshl_add_u32 v{t2}, v{t3}, 11, v{t2}
          v_and_b32 v{t3}, 2, v{lane}
          v_lshl_add_u32 v{vMst}, v{t3}, 29, v{t2}""")
    srd(e, S_M0, P_MEM0, 8192)
    e(f"""v_and_b32 v{t2}, 1, v{lane}
          v_lshlrev_b32 v{tD}, 10, v{t2}
          v_lshl_add_u32 v{tD}, v{t0}, 1, v{tD}
          v_bfe_u32 v{t2}, v{lane}, 2, 1
          v_lshl_add_u32 v{tD}, v{t2}, 6, v{tD}
          s_and_b32 s{sA}, s{h}, 6
          s_lshl_b32 s{sA}, s{sA}, 10
          s_lshr_b32 s{sB}, s{h}, 3
          s_lshl_b32 s{sB}, s{sB}, 8
          s_add_u32 s{sA}, s{sA}, s{sB}
          s_and_b32 s{sB}, s{S_WAVE}, 1
          s_lshl_b32 s{sB}, s{sB}, 7
          s_add_u32 s{sA}, s{sA}, s{sB}
          s_lshr_b32 s{sB}, s{S_WAVE}, 1
          s_lshl_b32 s{sB}, s{sB}, 3
          s_add_u32 s{sA}, s{sA}, s{sB}
          s_and_b32 s{sB}, s{h}, 1
          s_lshl_b32 s{sB}, s{sB}, 4
          s_add_u32 s{sA}, s{sA}, s{sB}
          buffer_load_ushort v{VX}, v{tD}, {sr(S_M0, 4)}, s{sA} offen
          buffer_load_ushort v{VX + 1}, v{tD}, {sr(S_M0, 4)}, s{sA} offen offset:32""")
    e(f"""s_lshl_b32 s{sA}, s{S_WAVE}, 10
          s_add_u32 s{sA}, s{sA}, {L_T}
          v_lshlrev_b32 v{t2}, 5, v{t1}
          v_lshl_add_u32 v{t2}, v{t0}, 3, v{t2}
          v_add_u32 v{vTw}, s{sA}, v{t2}
          v_lshrrev_b32 v{t2}, 5, v{lane}
          v_lshlrev_b32 v{t2}, 9, v{t2}
          v_and_b32 v{t3}, 31, v{lane}
          v_lshl_add_u32 v{t2}, v{t3}, 3, v{t2}
          v_add_u32 v{vTr}, {L_T}, v{t2}
          v_lshlrev_b32 v{t2}, 9, v{t0}
          v_lshl_add_u32 v{t2}, v{t1}, 4, v{t2}
          v_add_u32 v{vKXr}, {L_KX}, v{t2}""")
    e(f"""s_lshl_b32 s{sA}, s{S_WAVE}, 9
          s_add_u32 s{sA}, s{sA}, {L_OB}
          v_lshrrev_b32 v{t2}, 5, v{lane}
          v_lshlrev_b32 v{t2}, 8, v{t2}
          v_and_b32 v{t3}, 16, v{lane}
          v_add_u32 v{t2}, v{t2}, v{t3}
          v_and_b32 v{t3}, 12, v{lane}
          v_lshl_add_u32 v{t2}, v{t3}, 4, v{t2}
          v_and_b32 v{t3}, 1, v{lane}
          v_lshl_add_u32 v{t2}, v{t3}, 5, v{t2}
          v_and_b32 v{t3}, 2, v{lane}
          v_lshl_add_u32 v{t2}, v{t3}, 10, v{t2}
          v_add_u32 v{vOw}, s{sA}, v{t2}
          s_add_u32 s{sA}, s{sLw}, {L_WL}
          v_add_u32 v{vWL0}, s{sA}, v{vL16}
          v_add_u32 v{vWL1}, 0x10000, v{vWL0}""")
    e(f"""v_and_b32 v{t2}, 1, v{lane}
          v_cmp_ne_u32 vcc, 0, v{t2}
          v_mov_b32 v{t2}, 0x4444
          v_mov_b32 v{t3}, 0xeeee
          v_cndmask_b32 v{vIdx}, v{t2}, v{t3}, vcc
          v_mov_b32 v{t2}, 0x3f80
          v_mov_b32 v{t3}, 0x3f800000
          v_cndmask_b32 v{vSelC}, v{t2}, v{t3}, vcc
          v_lshrrev_b32 v{t2}, 1, v{t1}""")
    for j in range(4):
        e(f"v_cmp_eq_u32 {sr(sSel + 2 * j, 2)}, {j}, v{t2}")
    e(f"""v_lshlrev_b32 v{tA}, 13, v{t0}
          v_lshlrev_b32 v{t2}, 2, v{t0}
          v_xor_b32 v{t2}, v{t2}, v{t1}
          v_lshl_add_u32 v{tA}, v{t2}, 4, v{tA}""")
    e(f"""v_bfe_u32 v{t2}, v{lane}, 2, 1
          v_lshlrev_b32 v{tB}, 12, v{t2}
          v_bfe_u32 v{t2}, v{lane}, 5, 1
          v_lshl_add_u32 v{tB}, v{t2}, 10, v{tB}
          v_bfe_u32 v{t2}, v{lane}, 3, 1
          v_lshl_add_u32 v{tB}, v{t2}, 9, v{tB}
          v_bfe_u32 v{t2}, v{lane}, 4, 1
          v_lshl_add_u32 v{tB}, v{t2}, 8, v{tB}
          v_and_b32 v{t2}, 3, v{lane}
          v_lshl_add_u32 v{tB}, v{t2}, 3, v{tB}
          v_bfe_u32 v{t3}, v{tB}, 8, 2
          v_xor_b32 v{t3}, s{S_WAVE}, v{t3}
          v_lshl_add_u32 v{tB}, v{t3}, 6, v{tB}""")
    e(f"""v_lshrrev_b32 v{t3}, 2, v{lane}
          v_lshlrev_b32 v{tC}, 10, v{t3}
          v_lshl_add_u32 v{tC}, v{t2}, 3, v{tC}
          s_lshl_b32 s{sA}, s{S_WAVE}, 8
          v_add_u32 v{tC}, s{sA}, v{tC}""")
    e(f"""s_lshl_b32 s{sA}, s{S_WAVE}, 11
          s_lshl_b32 s{sB}, s{h}, 13
          s_add_u32 s{sPbaseL}, s{sA}, s{sB}
          s_add_u32 s{sPbaseL}, s{sPbaseL}, {WS_P}
          s_lshl_b32 s{sA}, s{S_WAVE}, 16
          s_lshl_b32 s{sB}, s{h}, 6
          s_add_u32 s{sPbaseS}, s{sA}, s{sB}
          s_add_u32 s{sPbaseS}, s{sPbaseS}, {WS_P}""")
    e(f"""s_and_b32 s{sA}, s{S_WAVE}, 1
          s_lshl_b32 s{sMbaseS}, s{sA}, 12
          s_and_b32 s{sA}, s{h}, 24
          s_lshl_b32 s{sA}, s{sA}, 7
          s_add_u32 s{sMbaseS}, s{sMbaseS}, s{sA}
          s_and_b32 s{sA}, s{h}, 1
          s_lshl_b32 s{sA}, s{sA}, 9
          s_add_u32 s{sMbaseS}, s{sMbaseS}, s{sA}
          s_lshr_b32 s{sA}, s{S_WAVE}, 1
          s_lshl_b32 s{sA}, s{sA}, 8
          s_add_u32 s{sMbaseS}, s{sMbaseS}, s{sA}
          s_and_b32 s{sA}, s{h}, 6
          s_lshl_b32 s{sA}, s{sA}, 5
          s_add_u32 s{sMbaseS}, s{sMbaseS}, s{sA}
          s_add_u32 s{sMbaseS}, s{sMbaseS}, {WS_M}""")
    e(f"""s_mul_i32 s{sKV}, s{h}, {64 * UNIT}
          s_lshl_b32 s{sA}, s{S_WAVE}, 11
          s_add_u32 s{sKV}, s{sKV}, s{sA}
          s_add_u32 s{sKV}, s{sKV}, {WS_QKV + 8192}
          s_lshl_b32 s{sExp}, s{h}, 18
          s_lshl_b32 s{sA}, s{S_WAVE}, 10
          s_add_u32 s{sExp}, s{sExp}, s{sA}
          s_add_u32 s{sExp}, s{sExp}, {WS_EXP}
          s_lshl_b32 s{sFl}, s{h}, 8
          s_add_u32 s{sFl}, s{sFl}, {F_QKV}
          s_lshl_b32 s{sFch}, s{h}, 7
          s_lshl_b32 s{sA}, s{S_WAVE}, 2
          s_add_u32 s{sFch}, s{sFch}, s{sA}
          s_add_u32 s{sFch}, s{sFch}, {F_CH}
          s_mov_b32 s{sC}, 0x3e0293ee
          s_add_u32 s{sPst2}, s{sPbaseS}, 4096
          s_lshl_b32 s{sKl}, s{S_WAVE}, 11
          s_add_u32 s{sKl}, s{sKl}, {L_KX}
          s_lshl_b32 s{sHl}, s{h}, 7
          s_add_u32 s{sHl}, s{sHl}, {F_HINT}
          s_lshl_b32 s{sHs}, s{h}, 2
          s_lshl_b32 s{sA}, s{S_WAVE}, 10
          s_add_u32 s{sHs}, s{sHs}, s{sA}
          s_add_u32 s{sHs}, s{sHs}, {F_HINT}
          s_mov_b32 s{sOK}, 1""")
    e(f"""v_mov_b64 {vr(VX + 4, 2)}, 0
          v_mov_b64 {vr(VX + 6, 2)}, 0
          v_mov_b32 v{VX + 2}, -1
          s_add_u32 s{sB}, s{sMbaseS}, 8192
          buffer_store_dwordx4 {vr(VX + 4, 4)}, v{vL16}, {W}, s{sPbaseL} offen sc1
          buffer_store_dwordx4 {vr(VX + 4, 4)}, v{vL16}, {W}, s{sPbaseL} offen offset:1024 sc1
          buffer_store_dword v{VX + 2}, v{vMst}, {W}, s{sB} offen sc1""")
    confirm_barrier(e, 'ch')
    parked = STREAM[14:16] + STREAM[:10]
    for r in range(32):
        m, x, Q = chunks[r]
        if marks[r] in e.vm:
            e.wait(vm=len(e.vm) - 1 - e.vm.index(marks[r]))
        e.wait(lgkm=0)
        e("s_barrier")
        if r == 6:
            e.comment("publish this wave's piece of mem0 in slot 0 (and arm slot 2)")
            e(f"""v_lshl_or_b32 v{VX}, v{VX + 1}, 16, v{VX}
                  v_min_u32 v{VX}, -2, v{VX}
                  v_cndmask_b32 v{VX}, v{VX}, -1, {sr(sArm, 2)}
                  buffer_store_dword v{VX}, v{vMst}, {W}, s{sMbaseS} offen sc1""")
        if r == 12:
            e.comment("every wave's arming stores are complete: count this member as armed")
            e(f"""s_cmp_lg_u32 s{S_WAVE}, 0
                  s_cbranch_scc1 L_cs_in
                  s_cmp_lg_u32 s{S_XCC}, 0
                  s_mov_b32 s{sB}, 0x10000
                  s_cselect_b32 s{sA}, 0x1010000, s{sB}
                  v_mov_b32 v{t0}, s{sA}
                  s_mov_b64 exec, 1
                  buffer_atomic_add v{t0}, off, {sr(S_DBG, 4)}, 0 offset:{D_INIT}
                  s_mov_b64 exec, -1""")
            e.vm.pop()
            e.label("L_cs_in")
        if r + 6 < 32:
            dma(r + 6)
        if r == 8:
            for op in STREAM[10:14]:
                wl_write(e, op, PARK[op])
            e.wait(lgkm=0)
        if r == 16:
            e(f"buffer_load_dword v{PM + 1}, off, {sr(S_DBG, 4)}, 0 offset:{D_INIT} sc1")
        if r == 23:
            e(f"""v_readfirstlane_b32 s{sNan}, v{PM + 1}
                  buffer_load_dword v{PM + 2}, v{PM + 3}, {W}, s{sFl} offen sc1""")
            e(f"""s_add_u32 m0, s{sLw}, {L_KX + 8192}
                  s_lshr_b32 m0, m0, 1
                  s_add_u32 m0, m0, {(L_KX + 8192) // 2}
                  s_lshl_b32 s{sB}, s{h}, 10
                  s_add_u32 s{sB}, s{sB}, {WS_M}
                  buffer_load_dwordx4 v{vL16}, {W}, s{sPbaseL} offen sc1 lds
                  buffer_load_dwordx4 v{vL16}, {W}, s{sPbaseL} offen offset:1024 sc1 lds
                  buffer_load_dwordx4 v{vL16}, {W}, s{sHl} offen sc1 lds
                  buffer_load_dwordx4 v{vL16}, {W}, s{sB} offen sc1 lds""")
        if r == 30:
            e(f"""v_cmp_ne_u32 {sr(sFm, 2)}, 0, v{PM + 2}
                  s_and_b32 s{sOK}, s{sFm}, 3
                  s_cmp_eq_u32 s{sOK}, 3
                  s_cselect_b32 s{sOK}, 1, 0
                  s_and_b32 s{sA}, s{sNan}, 0xffffff
                  s_cmp_eq_u32 s{sA}, 0x200100
                  s_cselect_b32 s{sOK}, s{sOK}, 0""")
            kx_dma(e, L_KX)
        if r >= 26:
            for op in parked[2 * (r - 26):2 * (r - 26) + 2]:
                wl_write(e, op, PARK[op])
        e(f"v_add_u32 v{t1}, {ring[r % 7]}, v{tC if m == 'o' else tB}")
        if m == 'o':
            for t in range(8):
                op = ('o', t, x)
                kind, base = RES[op] if op in RES else ('v', PARK[op])
                e(f"ds_read_b64_tr_b16 {vr(base + 2 * Q, 2, kind)}, v{t1} offset:{t * 32}")
        else:
            for w in range(1, 4):
                e(f"s_cmp_eq_u32 s{S_WAVE}, {w}\n s_cbranch_scc1 L_cs{r}_{w}")
            st0 = e.state()
            for w in range(4):
                if w:
                    e.label(f"L_cs{r}_{w}"); e.set_state(st0)
                for ft in range(2):
                    op = (m, ft, 2 * ((x & 3) ^ w) + (x >> 2))
                    kind, base = RES[op] if op in RES else ('v', PARK[op])
                    for Q in range(4):
                        e(f"ds_read_b64_tr_b16 {vr(base + 2 * Q, 2, kind)}, v{t1} offset:{(32 * (Q & 1) + 8 * (Q >> 1)) * 256 + ft * 32}")
                if w < 3:
                    e(f"s_branch L_cs{r}_e")
            e.label(f"L_cs{r}_e")
    e.wait(lgkm=0)
    dbg_max(e, cfg, 9, v=PM, mask=1)
    e(f"""s_cmp_lg_u32 s{sOK}, 0
          s_cbranch_scc1 L_cs_ready
          L_cs_p1:
          buffer_load_dword v{t0}, off, {sr(S_DBG, 4)}, 0 offset:{D_INIT} sc1
          s_sub_u32 s{S_SPIN}, s{S_SPIN}, 1
          s_cbranch_scc1 L_end
          v_readfirstlane_b32 s{sNan}, v{t0}
          s_and_b32 s{sA}, s{sNan}, 0xffffff
          s_cmp_eq_u32 s{sA}, 0x200100
          s_cbranch_scc0 L_cs_p1
          L_cs_p2:
          buffer_load_dword v{t0}, v{PM + 3}, {W}, s{sFl} offen sc1
          s_sub_u32 s{S_SPIN}, s{S_SPIN}, 1
          s_cbranch_scc1 L_end
          v_cmp_ne_u32 {sr(sFm, 2)}, 0, v{t0}
          s_and_b32 s{sA}, s{sFm}, 3
          s_cmp_eq_u32 s{sA}, 3
          s_cbranch_scc0 L_cs_p2""")
    kx_dma(e, L_KX)
    e.label("L_cs_ready")
    e(f"""v_mov_b32 v{PM + 1}, 0
          v_mov_b32 v{PM + 2}, 0
          s_mov_b32 s{sStep}, 0
          s_mov_b32 s{sTog}, 0""")
    e("\n".join(scalar_lines() + prep_a_lines()))
    for b in range(2):
        e(mload(b))
    e("\n".join(prep_b_lines()))
    dbg_max(e, cfg, 11, v=PM, mask=1)
    if cfg.get('holdto'):
        e(f"""L_hold:
              s_memrealtime s[92:93]
              s_waitcnt lgkmcnt(0)
              s_sub_u32 s92, s92, s94
              s_cmp_lt_u32 s92, {cfg['holdto']}
              s_cbranch_scc1 L_hold""")
    e("s_waitcnt vmcnt(0) lgkmcnt(0)\n s_barrier")
    if cfg.get('diag'):
        e.raw(f"  s_memtime {sr(sDbgT + 6, 2)}\n  s_memrealtime {sr(sDbgT + 10, 2)}\n  s_mov_b32 s{sDbgT + 5}, 0\n  s_mov_b32 s12, 0\n  s_mov_b32 s13, 0\n  s_mov_b32 s14, 0\n  s_mov_b32 s15, 0\n  s_waitcnt lgkmcnt(0)")
    e(f"""s_lshr_b32 s{sA}, s{sNan}, 24
          s_mov_b32 s{sNan}, 0
          s_cmp_lg_u32 s{sA}, 0
          s_cbranch_scc1 L_step_s""")
    if cfg.get('force_slow'):
        e("s_branch L_step_s")


def chain_loop(e, cfg, sfx, st):
    acc = {('q', 0): ACC, ('q', 1): ACC + 4, ('k', 0): ACC + 8, ('k', 1): ACC + 12, ('v', 0): ACC + 16, ('v', 1): ACC + 20}
    loc = dict(RES)
    for o in range(10):
        loc[STREAM[o]] = ('v', R1[o])
    for o in range(6):
        loc[STREAM[10 + o]] = ('v', WO_SB[o])
    diag = cfg.get('diag')

    def stamp(n):
        tr = cfg.get('trace')
        if tr and n in tr:
            e.raw(f"  s_memtime {sr(20 + 2 * tr.index(n), 2)}")

    def trace_out(where, TR):
        if cfg.get('trace') and cfg.get('tpos', 'mid') == where:
            e(f"""s_memtime s[32:33]
                  s_memrealtime s[34:35]
                  s_lshl_b32 s40, s{S_ROLE}, 2
                  s_add_u32 s40, s40, s{S_WAVE}
                  s_lshl_b32 s40, s40, 6
                  s_add_u32 s40, s40, s{sStep}
                  s_lshl_b32 s40, s40, 5
                  s_add_u32 s40, s40, 0x6200000
                  s_waitcnt lgkmcnt(0)""")
            for j in range(8):
                e(f"v_mov_b32 v{TR + j}, s{20 + 2 * j}")
            e(f"""s_mov_b64 exec, 1
                  buffer_store_dwordx4 {vr(TR, 4)}, off, {W}, s40
                  buffer_store_dwordx4 {vr(TR + 4, 4)}, off, {W}, s40 offset:16
                  s_mov_b64 exec, -1""")

    def P(m, ft, i):
        k, b = loc[(m, ft, i)]
        return f"v_smfmac_f32_16x16x64_bf16 {vr(acc[(m, ft)], 4)}, {vr(MA + 4 * i, 4)}, {vr(b, 8, k)}, v{vIdx}"

    def post(a, dst):
        return [f"v_add_f32 v{a}, v{a}, v{a + 1}", f"v_add_f32 v{a + 2}, v{a + 2}, v{a + 3}",
                f"v_cvt_pk_bf16_f32 v{dst}, v{a}, v{a + 2}"]

    def xread(kb):
        return [f"ds_read_b64_tr_b16 {vr(X + 4 * kb, 2)}, v{vTr} offset:{kb * 1024}",
                f"ds_read_b64_tr_b16 {vr(X + 4 * kb + 2, 2)}, v{vTr} offset:{kb * 1024 + 256}"]

    kx_dst = [KXR, SPARE, KXR + 4, SPARE + 4, KXR + 8, KXR, KXR + 12, KXR + 4]

    def kxread(n):
        return f"ds_read_b128 {vr(kx_dst[n], 4)}, v{vKXr} offset:{(n >> 1) * 2048 + (n & 1) * 256}"

    Sx = [ACC, ACC + 4]
    Sm, Px = ACC + 8, ACC + 12

    def smx(n):
        kb, t = n >> 1, n & 1
        c = '0' if kb == 0 else vr(Sx[t], 4)
        return f"v_mfma_f32_16x16x32_bf16 {vr(Sx[t], 4)}, {vr(kx_dst[n], 4)}, {vr(X + 4 * kb, 4)}, {c}"

    def smm(kb):
        c = '0' if kb == 0 else vr(Sm, 4)
        return f"v_mfma_f32_16x16x32_bf16 {vr(Sm, 4)}, {vr(X + 4 * kb, 4)}, {vr(X + 4 * kb, 4)}, {c}"

    pace = cfg.get('pace', 0)
    ldH = lambda: pace and e.loose(f"buffer_load_dword v{HD}, v{HA}, {W}, s{sHl} offen sc1")
    ldV = [f"buffer_load_dwordx4 {vr(VX, 4)}, v{vKXr}, {W}, s{sVx} offen sc1",
           f"buffer_load_dwordx4 {vr(VX + 4, 4)}, v{vKXr}, {W}, s{sVx} offen offset:256 sc1"]
    ldK = [f"buffer_load_dwordx4 v{vL16}, {W}, s{sKV} offen sc1 lds",
           f"buffer_load_dwordx4 v{vL16}, {W}, s{sKV} offen offset:1024 sc1 lds"]
    touch = f"buffer_load_dword v{PM + 3}, {W}, s{sVt} offen sc1 lds"
    export = f"buffer_store_dwordx4 {vr(EX, 4)}, v{vL16}, {W}, s{sExp} offen sc1"
    progress = f"s_mov_b64 exec, 1\n buffer_store_dword v{TMP}, off, {W}, s{sFch} sc1\n s_mov_b64 exec, -1"
    ldF = f"buffer_load_dword v{TMP}, v{TMP}, {W}, s{sFl} offen sc1"
    if cfg.get('noexp'):
        export = progress = "s_nop 0"
    rf = sum([wl_lines(STREAM[o], R1[o]) for o in range(8, 10)], [])
    wo = sum([wl_lines(STREAM[10 + o], WO_SB[o]) for o in range(6)], [])
    q0p, q1p, k0p, k1p = post(ACC, ACC + 1), post(ACC + 4, ACC + 5), post(ACC + 8, EX), post(ACC + 12, EX + 1)
    v0p, v1p = post(ACC + 16, EX + 2), post(ACC + 20, EX + 3)
    m0, m1 = TMP, TMP + 1
    C0 = PM
    zero = [f"v_mov_b64 {vr(MA + j, 2)}, 0" for j in range(0, 32, 2)]
    st_ = lambda n: (lambda: stamp(n))
    mx = lambda d, a, b, c_: f"v_max3_f32 v{d}, v{a}, v{b}, v{c_}"

    def check(blocks):
        r = [MA + 4 * b + j for b in blocks for j in range(4)]
        out = [f"v_max3_u32 v{C0}, v{r[0]}, v{r[1]}, v{r[2]}"]
        k = 3
        while k + 1 < len(r):
            out.append(f"v_max3_u32 v{C0}, v{C0}, v{r[k]}, v{r[k + 1]}"); k += 2
        out.append(f"v_max_u32 v{C0}, v{C0}, v{r[k]}")
        out.append(f"v_cmp_eq_u32 vcc, -1, v{C0}")
        return out

    def mread(i):
        return f"ds_read_b128 {vr(MA + 4 * i, 4)}, v{TMP + (i >> 1)} offset:{(i & 1) * 4096}"

    e.slot_no = 0
    e.slot_hook = lambda n: stamp(100 + n)
    e.forget()
    e.label(f"L_step_{sfx}")
    e("s_waitcnt vmcnt(2)")
    e.label(f"L_chkE_{sfx}")
    e("\n".join(check((0,))))
    e(f"""ds_write_b128 v{vMw}, {vr(MA, 4)}
          s_cbranch_vccnz L_retE_{sfx}""")
    stamp(0)
    cl_ = check((1,))
    z = lambda: zero.pop(0)
    lw = lambda n: (lambda: e.wait(lgkm=n))
    seq = [
        (P('q', 0, 0), [lambda: e.loose(mload(1))]),
        (P('q', 1, 0), [ldV[0]]),
        (P('k', 0, 0), [ldV[1], ldF, e.barrier, mread(2), mread(4)]),
        (P('k', 1, 0), [mread(6), "s_waitcnt vmcnt(4)", cl_[0]]),
        (P('v', 0, 0), [cl_[1]]),
        (P('v', 1, 0), [cl_[2], f"ds_write_b128 v{vMw}, {vr(MA + 4, 4)} offset:4096", f"s_cbranch_vccnz L_retL_{sfx}", f"L_okL_{sfx}:"]),
        (P('q', 0, 1), [st_(1)]),
        (P('q', 1, 1), []),
        (P('k', 0, 1), [rf[0]]),
        (P('k', 1, 1), [rf[1], lw(3)]),
        (P('q', 0, 2), [rf[2]]),
        (P('q', 1, 2), [e.lds_writes_done]),
        (P('k', 0, 2), [e.barrier, ldK[0], mread(3)]),
        (P('k', 1, 2), [mread(5)]),
        (P('q', 0, 4), [mread(7)]),
        (P('q', 1, 4), [ldK[1], f"s_movk_i32 m0, {L_DUMMY}"]),
        (P('k', 0, 4), [rf[3]]),
        (P('k', 1, 4), [touch]),
        (P('q', 0, 6), [kxread(0)]),
        (P('q', 1, 6), [kxread(2)]),
        (P('k', 0, 6), [export, lambda: trace_out('mid', SPARE)]),
        (P('k', 1, 6), [kxread(4), st_(2), lw(3)]),
        (P('q', 0, 3), [kxread(6)]),
        (P('q', 0, 5), [kxread(1)]),
        (P('q', 0, 7), [kxread(3), f"v_cmp_ne_u32 {sr(sFm, 2)}, 0, v{TMP}"]),
        (P('q', 1, 3), [f"v_mov_b32 v{TMP}, s{sProg}"]),
        (P('q', 1, 5), [progress]),
        (P('q', 1, 7), ["s_nop 0", q0p[0]]),
        (P('k', 0, 3), ["s_nop 0", q0p[1]]),
        (P('k', 0, 5), ["s_nop 0", q0p[2]]),
        (P('k', 0, 7), [q1p[0]]),
        (P('k', 1, 3), ["s_nop 0", q1p[1]]),
        (P('k', 1, 5), ["s_nop 0", q1p[2]]),
        (P('k', 1, 7), [f"ds_write2_b32 v{vTw}, v{ACC + 1}, v{ACC + 5} offset0:0 offset1:128", st_(3), k0p[0]]),
        (P('v', 0, 1), ["s_nop 0", k0p[1]]),
        (P('v', 0, 2), ["s_nop 0", k0p[2], k1p[0]]),
        (P('v', 0, 3), [k1p[1], k1p[2]]),
        (P('v', 0, 4), [f"ds_write2_b32 v{vTw}, v{EX}, v{EX + 1} offset0:1 offset1:129", z()]),
        (P('v', 0, 5), [z()]),
        (P('v', 0, 6), [f"v_mov_b32 v{HV}, s{sOK2}"]),
        (P('v', 0, 7), [f"v_lshlrev_b32 v{HS}, 3, v{vL16}"]),
        (P('v', 1, 1), [e.lds_writes_done]),
        (P('v', 1, 2), [e.barrier] + xread(0)),
        (P('v', 1, 3), xread(1) + [z()]),
        (P('v', 1, 4), xread(2) + [z()]),
        (P('v', 1, 5), xread(3) + [z()]),
        (P('v', 1, 6), [z()]),
        (P('v', 1, 7), [st_(4), lw(4), z()]),
        (smx(0), [v0p[0], v0p[1]]),
        (smx(2), [kxread(5), v0p[2], lw(1)]),
        (smx(4), [kxread(7), z(), z()]),
        (smx(6), [f"s_cmp_eq_u32 s{sStep}, 63", v1p[0], v1p[1]]),
        (smm(0), [v1p[2], z()]),
        (smm(1), ["s_cbranch_scc1 L_final", z()] + ([f"v_exp_f32 v{m1}, v{vIdx}"] if cfg.get('warm', 1) == 2 else [])),
        (smm(2), [mx(m0, Sx[0], Sx[0] + 1, Sx[0] + 2), z()]),
        (smm(3), [z(), z()]),
        (smx(1), [lw(0), z(), z()]),
        (smx(3), [f"s_add_u32 s{sStep}, s{sStep}, 1"] + ([f"v_exp_f32 v{m1}, v{vIdx}"] if cfg.get('warm', 1) == 1 else [])),
        (smx(5), [f"s_xor_b32 s{sTog}, s{sTog}, 0x2000", mx(m0, m0, Sx[0] + 3, Sm + 2), f"v_max_f32 v{m0}, v{m0}, v{Sm + 3}"]),
        (smx(7), [wo[0], wo[1], wo[2], wo[3], f"s_mov_b32 s{sG}, s{sG2}", f"v_xor_b32 v{vKXr}, 0x2000, v{vKXr}"]),
    ]
    e.slots(seq)
    assert not zero
    e(f"""{mx(m0, m0, Sx[1], Sx[1] + 1)}
          {mx(m0, m0, Sx[1] + 2, Sx[1] + 3)}
          v_mov_b32 v{m1}, v{m0}
          v_permlane32_swap_b32 v{m0}, v{m1}
          v_max_f32 v{m0}, v{m0}, v{m1}
          v_mov_b32 v{m1}, v{m0}
          v_permlane16_swap_b32 v{m0}, v{m1}
          v_max_f32 v{m0}, v{m0}, v{m1}
          v_mul_f32 v{m0}, s{sC}, v{m0}""")
    for j in (0, 2, 4, 6, 10):
        e(f"v_pk_fma_f32 {vr(ACC + j, 2)}, {vr(ACC + j, 2)}, {sr(sC, 2)}, {vr(m0, 2)} op_sel_hi:[1,0,0] neg_lo:[0,0,1] neg_hi:[0,0,1]")
    for j in (0, 1, 2, 3, 4, 5, 6, 7, 10, 11):
        e(f"v_exp_f32 v{ACC + j}, v{ACC + j}")
    stamp(5)
    for j in range(4):
        e(f"v_cvt_pk_bf16_f32 v{Px + j}, v{ACC + 2 * j}, v{ACC + 2 * j + 1}")
    e(f"""v_cvt_pk_bf16_f32 v{PM}, v{Sm + 2}, v{Sm + 3}
          v_cvt_pk_bf16_f32 v{PM + 3}, v{Sm + 2}, v{Sm + 3}
          v_pk_add_f32 {vr(ACC, 2)}, {vr(ACC, 2)}, {vr(ACC + 2, 2)}
          v_pk_add_f32 {vr(ACC + 4, 2)}, {vr(ACC + 4, 2)}, {vr(ACC + 6, 2)}
          v_pk_add_f32 {vr(ACC, 2)}, {vr(ACC, 2)}, {vr(Sm + 2, 2)}
          v_pk_add_f32 {vr(m0, 2)}, {vr(ACC, 2)}, {vr(ACC + 4, 2)}""")
    O = SPARE
    mpos = cfg.get('mpos', 'w')
    mark = ["s_mov_b64 exec, 0xff", f"buffer_store_dword v{HV}, v{HS}, {W}, s{sHs} offen {st}", "s_mov_b64 exec, -1", st_(15)]
    hsetup = [f"v_bfe_u32 v{HA}, v{vL16}, 2, 7", f"v_mov_b32 v{HD}, {cfg.get('hdef', -1)}"]
    e.slots([
        (f"v_mfma_f32_16x16x32_bf16 {vr(O, 4)}, {vr(VX, 4)}, {vr(Px, 4)}, 0",
         [f"v_add_f32 v{m0}, v{m0}, v{m1}", f"v_mov_b32 v{m1}, v{m0}"]),
        (f"v_mfma_f32_16x16x32_bf16 {vr(O + 4, 4)}, {vr(VX + 4, 4)}, {vr(Px, 4)}, 0",
         (mark if mpos == 'q' else []) + [f"v_permlane32_swap_b32 v{m0}, v{m1}"]),
        (f"v_mfma_f32_16x16x16_bf16 {vr(O, 4)}, {vr(EX + 2, 2)}, {vr(PM, 2)}, {vr(O, 4)}",
         [f"v_add_f32 v{m0}, v{m0}, v{m1}", f"v_mov_b32 v{m1}, v{m0}"]),
        (f"v_mfma_f32_16x16x16_bf16 {vr(O + 4, 4)}, {vr(EX + 2, 2)}, {vr(PM + 2, 2)}, {vr(O + 4, 4)}",
         [f"v_permlane16_swap_b32 v{m0}, v{m1}", f"v_add_f32 v{m0}, v{m0}, v{m1}", f"v_rcp_f32 v{m0}, v{m0}",
          ] + (mark if mpos == 'p' else hsetup)),
    ])
    for j in range(0, 8, 2):
        e(f"v_pk_mul_f32 {vr(O + j, 2)}, {vr(O + j, 2)}, {vr(m0, 2)} op_sel_hi:[1,0]")
    OA = ACC + 16
    for j in range(4):
        e(f"v_cvt_pk_bf16_f32 v{O + j}, v{O + 2 * j}, v{O + 2 * j + 1}")
    e(f"ds_write_b128 v{vOw}, {vr(O, 4)}")
    if mpos == 'w' and pace:
        e("\n".join(mark[:3])); stamp(15)
    if mpos == 'p':
        e("\n".join(hsetup))
    if cfg.get('h0'):
        delay(e, cfg['h0']); ldH()
    e.barrier()
    e(f"""ds_read_b128 {vr(OA, 4)}, v{vL16} offset:{L_OB}
          ds_read_b128 {vr(OA + 4, 4)}, v{vL16} offset:{L_OB + 1024}""")
    ldH(); e("s_nop 2"); ldH()
    stamp(6)
    OUT = SPARE

    def pstore(c):
        return f"buffer_store_dwordx4 {vr(OUT + 4 * c, 4)}, v{vPst}, {W}, s{sPbaseS} offen offset:{c * 2048} {st}"

    tag = lambda j: f"v_and_or_b32 v{OUT + j}, v{OUT + j}, -2, s{sG}"
    seq = []
    for t in range(8):
        for kb in range(2):
            k, b = loc[('o', t, kb)]
            if t >= 2:
                p = post(MA + 4 * (t - 2), OUT + t - 2)
                fl = p[0:1] if kb == 0 else p[1:3]
                if kb == 0 and t % 2 == 1:
                    fl = fl + [tag(t - 3)]
            else:
                fl = ["s_nop 0"]
            n = 2 * t + kb
            if 1 <= n <= 8:
                fl = [wo[3 + n]] + fl
            hc = cfg.get('hc', 10)
            if n in cfg.get('hs', (0, 2, 4, 8)) and pace:
                fl = [ldH] + [x for x in fl if x != "s_nop 0"]
            if n == hc and pace:
                fl = fl + [f"v_cmp_gt_u32 vcc, s{sStep}, v{HD}"]
            if n == hc + 1:
                fl = fl + [st_(16)] + ([f"s_cbranch_vccnz L_hret_{sfx}"] if pace else []) + [f"L_hok_{sfx}:", st_(13)]
            if kb == 0 and t == 6:
                fl = [pstore(0)] + fl
            seq.append((f"v_smfmac_f32_16x16x64_bf16 {vr(MA + 4 * t, 4)}, {vr(OA + 4 * kb, 4)}, {vr(b, 8, k)}, v{vIdx}", fl))
    e.slots(seq)
    PL, D, SEL, PL2 = MA + 8, MA + 16, MA + 20, MA + 24
    e("\n".join(post(MA + 24, OUT + 6) + [tag(6)]))
    e("\n".join(post(MA + 28, OUT + 7)))
    e(pstore(1))
    stamp(7)
    trace_out('late', MA)
    e(f"s_bitcmp1_b32 s{S_WAVE}, 0\n s_cbranch_scc1 L_x1_{sfx}")
    e.slot_hook = None
    st0 = e.state()
    ldP = [f"buffer_load_dwordx4 {vr(PL, 4)}, v{vL16}, {W}, s{sPbaseL} offen sc1",
           f"buffer_load_dwordx4 {vr(PL + 4, 4)}, v{vL16}, {W}, s{sPbaseL} offen offset:1024 sc1"]
    tP, dM, eM, gM = cfg.get('tP', (260, 380)), cfg.get('dM', (260, 140)), cfg.get('eM', 200), cfg.get('gM', (120, 120))
    for w in range(2):
        if w:
            e.label(f"L_x{w}_{sfx}"); e.set_state(st0)
        clk = [[12, 48][w]]
        pa = prep_a_lines()
        valu = [f"v_cndmask_b32 v{SEL + j}, 0, v{vSelC}, {sr(sSel + 2 * j, 2)}" for j in range(4)] + scalar_lines() + [l for l in pa if not l.startswith('ds_')]
        if diag:
            valu += [f"s_cmp_eq_u32 s{sStep}, 10", f"s_cselect_b32 s{sDbgT + 6}, s36, s{sDbgT + 6}"] + [f"s_cselect_b32 s{k}, 0, s{k}" for k in range(12, 16)]
        reads = [l for l in pa if l.startswith('ds_')]
        pool = valu
        if cfg.get('fo', 2) == 1:
            head = mix(reads[:8], [l for l in valu if l.startswith('v_')], 2)
            e("\n".join(head)); clk[0] += 170
            pool = [l for l in valu if not l.startswith('v_')]; reads = reads[8:]
        if cfg.get('fo', 2) == 2:
            pool = [l for l in valu if not l.startswith('v_')]
            reads = mix(reads, [l for l in valu if l.startswith('v_')], 2)

        def until(t):
            while clk[0] + 4 <= t and pool:
                e(pool.pop(0)); clk[0] += 4
            if clk[0] + 4 <= t:
                delay(e, t - clk[0]); clk[0] = t

        until(tP[w])
        e.loose(ldP[0]); e.loose(ldP[1]); stamp(11)
        ldP2 = [x.replace(vr(PL, 4), vr(PL2, 4)).replace(vr(PL + 4, 4), vr(PL2 + 4, 4)) for x in ldP]
        rest = mix(reads, pool, 2)
        nsp = cfg.get('nsp', 14)
        e("\n".join(rest[:nsp]))
        delay(e, cfg.get('dP2', 0))
        e.loose(ldP2[0]); e.loose(ldP2[1])
        e("\n".join(rest[nsp:]))
        e(f"s_mov_b32 s{sNan}, 0")
        if diag:
            e.raw("  s_memtime s[36:37]")
        ny = 2
        e(f"""s_waitcnt vmcnt({ny + 1})
              L_redP{w}_{sfx}:
              v_mfma_f32_16x16x32_bf16 {vr(D, 4)}, {vr(PL, 4)}, {vr(SEL, 4)}, 0
              s_waitcnt vmcnt({ny})
              v_mfma_f32_16x16x32_bf16 {vr(D, 4)}, {vr(PL + 4, 4)}, {vr(SEL, 4)}, {vr(D, 4)}
              v_xor_b32 v{C0}, s{sG}, v{PL}
              v_bitop3_b32 v{C0}, v{C0}, v{PL + 2}, s{sG} bitop3:0xf6
              v_bitop3_b32 v{C0}, v{C0}, v{PL + 4}, s{sG} bitop3:0xf6
              v_bitop3_b32 v{C0}, v{C0}, v{PL + 6}, s{sG} bitop3:0xf6
              v_and_b32 v{C0}, 1, v{C0}
              v_cmp_ne_u32 vcc, 0, v{C0}
              s_cbranch_vccnz L_reP{w}_{sfx}
              v_permlane32_swap_b32 v{D}, v{D + 2}
              v_permlane32_swap_b32 v{D + 1}, v{D + 3}
              v_add_f32 v{D}, v{D}, v{D + 2}
              v_add_f32 v{D + 1}, v{D + 1}, v{D + 3}
              v_permlane16_swap_b32 v{D}, v{D + 1}
              v_add_f32 v{D}, v{D}, v{D + 1}
              v_mov_b32_dpp v{D + 1}, v{D} quad_perm:[2,3,0,1] row_mask:0xf bank_mask:0xf
              v_cvt_pk_bf16_f32 v{D}, v{D}, v{D + 1}
              v_min_u32 v{D}, -2, v{D}
              v_cndmask_b32 v{VX + 4}, v{D}, -1, {sr(sArm, 2)}
              buffer_store_dword v{VX + 4}, v{vMst}, {W}, s{sMn2} offen {st}""")
        stamp(8)
        pb = ["s_waitcnt vmcnt(1)"] + prep_b_lines()
        d = dM[w]
        if d >= 100:
            e("\n".join(pb)); d -= 100; pb = []
        delay(e, d)
        e.loose(mload(0)); stamp(12)
        d = gM[w]
        if pb:
            pb[0] = "s_waitcnt vmcnt(2)"
            e("\n".join(pb)); d -= 100
        delay(e, d)
        e.loose(mload(0)); e.loose(mload(1))
        e(f"""s_bitcmp1_b64 {sr(sFm, 2)}, s{sOK}
              s_waitcnt lgkmcnt(0)
              s_cbranch_scc1 L_step_{sfx}
              s_branch L_flag_{sfx}""")
        e.forget()
        e(f"L_reP{w}_{sfx}:\n s_waitcnt vmcnt(0)")
        for j in range(0, 8, 2):
            e(f"v_mov_b64 {vr(PL + j, 2)}, {vr(PL2 + j, 2)}")
        e.loose(ldP2[0]); e.loose(ldP2[1])
        e(f"""{'s_add_u32 s12, s12, 1' if diag else ''}
              s_sub_u32 s{S_SPIN}, s{S_SPIN}, 1
              s_cbranch_scc0 L_redP{w}_{sfx}
              s_branch L_end""")
    e.forget()
    e(f"L_hret_{sfx}:")
    for k in range(6):
        e(f"v_cmp_gt_u32 vcc, s{sStep}, v{HD}")
        ldH()
        if diag:
            e("s_add_u32 s15, s15, 1")
        e(f"s_cbranch_vccz L_{'hrel' if cfg.get('dH') is not None else 'hok'}_{sfx}")
    e(f"""s_sub_u32 s{S_SPIN}, s{S_SPIN}, 1
          s_waitcnt vmcnt(24)
          s_cbranch_scc0 L_hret_{sfx}
          s_branch L_end
          L_hrel_{sfx}:""")
    delay(e, cfg.get('dH') or 0)
    e(f"s_branch L_hok_{sfx}")
    e.forget()
    e(f"""L_flag_{sfx}:
          v_lshrrev_b32 v{C0}, 2, v{vL16}
          buffer_load_dword v{C0}, v{C0}, {W}, s{sFl} offen sc1
          s_sub_u32 s{S_SPIN}, s{S_SPIN}, 1
          s_cbranch_scc1 L_end
          v_cmp_ne_u32 {sr(sFm, 2)}, 0, v{C0}
          s_bitcmp1_b64 {sr(sFm, 2)}, s{sOK}
          s_cbranch_scc1 L_step_{sfx}
          s_branch L_flag_{sfx}""")
    e.forget()
    e(f"L_retE_{sfx}:")
    e.loose(mload(0)); e.loose(mload(1))
    e(f"""{'s_add_u32 s13, s13, 1' if diag else ''}
          s_sub_u32 s{S_SPIN}, s{S_SPIN}, 1
          s_waitcnt vmcnt(3)
          s_cbranch_scc0 L_chkE_{sfx}
          s_branch L_end""")
    e(f"L_retL_{sfx}:")
    e.loose(mload(1))
    e(f"""{'s_add_u32 s14, s14, 1' if diag else ''}
          s_sub_u32 s{S_SPIN}, s{S_SPIN}, 1
          s_cbranch_scc1 L_end
          s_bitcmp1_b32 s{sNan}, 0
          s_bitset1_b32 s{sNan}, 0
          s_waitcnt vmcnt(4)
          s_cbranch_scc0 L_retL1_{sfx}
          s_waitcnt vmcnt(1)
          L_retL1_{sfx}:""")
    e("\n".join(cl_))
    e(f"""ds_write_b128 v{vMw}, {vr(MA + 4, 4)} offset:4096
          s_cbranch_vccz L_okL_{sfx}
          s_branch L_retL_{sfx}""")


def chain_final(e, cfg):
    e.forget()
    e("L_final:")
    if cfg.get('holdend'):
        e(f"""L_hold2:
              s_memrealtime s[92:93]
              s_waitcnt lgkmcnt(0)
              s_sub_u32 s92, s92, s94
              s_cmp_lt_u32 s92, {cfg['holdend']}
              s_cbranch_scc1 L_hold2""")
    e(f"""s_add_u32 s{sExp}, s{sExp}, 4096
          buffer_store_dwordx4 {vr(EX, 4)}, v{vL16}, {W}, s{sExp} offen sc1
          v_mov_b32 v{TMP + 1}, 64
          s_waitcnt vmcnt(0) lgkmcnt(0)
          buffer_store_dword v{TMP + 1}, off, {W}, s{sFch} sc1""")
    if cfg.get('diag'):
        e(f"""s_memrealtime {sr(sDbgT + 12, 2)}
              s_lshl_b32 s{sA}, s{S_ROLE}, 2
              s_add_u32 s{sA}, s{sA}, s{S_WAVE}
              s_lshl_b32 s{sA}, s{sA}, 6
              s_add_u32 s{sA}, s{sA}, 0x6000000
              s_waitcnt lgkmcnt(0)
              s_sub_u32 s{sDbgT + 8}, s36, s{sDbgT + 6}""")
        for n, r in enumerate([sDbgT + 8, sDbgT + 5, S_SPIN, sDbgT + 14, sDbgT + 10, sDbgT + 12, 12, 13, 14, 15]):
            e(f"v_mov_b32 v{TMP + 2}, s{r}\n buffer_store_dword v{TMP + 2}, off, {W}, s{sA} offset:{4 * n}")
    dbg_max(e, cfg, 12, v=TMP + 2)
    e("s_waitcnt vmcnt(0)\n s_branch L_end")


def chain(e, cfg):
    CFG.clear(); CFG.update(cfg)
    chain_startup(e, cfg)
    chain_loop(e, cfg, 'f', '')
    chain_loop(e, cfg, 's', 'sc1')
    chain_final(e, cfg)
```

```python
from common import *

L_T, L_OB, L_DUMMY, L_KX, L_WL = 8192, 12544, 14592, 16384, 32768
T_PITCH = 1088
vL16, vPst, vMst, vTw, vTr, vKXr, vOw, vWL0, vWL1, vMw, vIdx, vSelC = range(12)
EX, PM, VX = 12, 16, 20
TMP = 28
MA = 32
ACC = 64
X, KXR, SPARE = 88, 104, 120
R1 = [MA + 8, MA + 16, MA + 24, X, X + 8, KXR, KXR + 8, SPARE, X, X + 8]
WO_SB = [KXR, KXR + 8, X, X + 8, ACC, ACC + 8]
(sStep, sMcur, sProg, sMtog, sG, sKl, sPst2, sKV, sC, sExp, sMcur2, sMbaseS, sPbaseS, sPbaseL, sFl, sFch, sTog, sNan,
 sA, sB) = range(50, 70)
sSel = 70
sOK, sHl, sMn2 = 78, 79, 3
sArm, sFm = 18, 98
sVx, sVt, sHs, sOK2, sG2 = 96, 97, 16, 17, 100
HV, HS, HA, HD = TMP + 2, TMP + 3, VX + 2, VX + 3
S_M0 = 84
sDbgT = 80

STREAM = [('q', 0, 0), ('q', 1, 0), ('k', 0, 0), ('k', 1, 0), ('q', 0, 1), ('q', 1, 1), ('k', 0, 1), ('k', 1, 1),
          ('q', 0, 5), ('q', 0, 7),
          ('o', 5, 0), ('o', 5, 1), ('o', 6, 0), ('o', 6, 1), ('o', 7, 0), ('o', 7, 1)]
WLPOS = {op: p for op, p in zip(STREAM[10:14], range(4))}
WLPOS.update({op: 4 + p for p, op in enumerate(STREAM[14:16] + STREAM[:10])})
ALLOPS = [(m, ft, i) for m in 'qkv' for ft in range(2) for i in range(8)] + [('o', t, kb) for t in range(8) for kb in range(2)]
RES = {}
for n, op in enumerate([o for o in ALLOPS if o not in STREAM]):
    RES[op] = ('a', 8 * n) if n < 32 else ('v', 128 + 8 * (n - 32))
PARK = {}
for n, op in enumerate(STREAM[14:16] + STREAM[:10]):
    PARK[op] = 32 + 8 * n
for n, op in enumerate(STREAM[10:14]):
    PARK[op] = 48 + 8 * n
W = sr(S_WS, 4)
CFG = {}


def wl_addr(op, half):
    p = WLPOS[op]
    off = (p >> 1) * 16384 + (p & 1) * 2048 + half * 1024
    return (vWL0, off) if off < 65536 else (vWL1, off - 65536)


def wl_write(e, op, src):
    for half in range(2):
        a, off = wl_addr(op, half)
        e(f"ds_write_b128 v{a}, {vr(src + 4 * half, 4)} offset:{off}")


def wl_lines(op, dst):
    out = []
    for half in range(2):
        a, off = wl_addr(op, half)
        out.append(f"ds_read_b128 {vr(dst + 4 * half, 4)}, v{a} offset:{off}")
    return out


def delay(e, cyc):
    n = cyc // 4
    while n > 0:
        k = min(n, 16)
        e(f"s_nop {k - 1}")
        n -= k


def mix(reads, other, per=3):
    out = []
    other = list(other)
    for r in reads:
        out.append(r)
        for _ in range(per):
            if other:
                out.append(other.pop(0))
    return out + other


def mload(b):
    return f"buffer_load_dwordx4 {vr(MA + 4 * b, 4)}, v{vMw}, {W}, s{sMcur if b == 0 else sMcur2} offen sc1"


def kx_dma(e, ldsbase):
    e(f"""s_lshl_b32 s{sA}, s{S_WAVE}, 11
          s_add_u32 m0, s{sA}, {ldsbase}
          buffer_load_dwordx4 v{vL16}, {W}, s{sKV} offen sc1 lds
          buffer_load_dwordx4 v{vL16}, {W}, s{sKV} offen offset:1024 sc1 lds""")


def scalar_lines():
    return [x.strip() for x in f"""s_and_b32 s{sA}, s{sStep}, 3
          s_lshl_b32 s{sA}, s{sA}, 13
          s_add_u32 s{sMcur}, s{sA}, {WS_M}
          s_add_u32 s{sMcur2}, s{sA}, {WS_M + 4096}
          s_and_b32 s{sA}, s{sA}, 0x2000
          s_add_u32 s{sMn2}, s{sMbaseS}, s{sA}
          s_lshl_b32 s{sMtog}, s{sA}, 1
          s_sub_u32 s{sVx}, s{sKV}, s{sTog}
          s_add_u32 s{sVx}, s{sVx}, {8192 - L_KX}
          s_add_u32 s{sKV}, s{sKV}, {0 if CFG.get('samekv') else UNIT}
          s_add_u32 s{sVt}, s{sKV}, 8192
          s_xor_b32 s{sA}, s{sTog}, 0x2000
          s_add_u32 m0, s{sA}, s{sKl}
          s_cmp_gt_u32 s{sStep}, 1
          s_cselect_b32 s{sA}, 4096, 0
          s_add_u32 s{sExp}, s{sExp}, s{sA}
          s_add_u32 s{sOK2}, s{sStep}, 1
          s_min_u32 s{sOK}, s{sOK2}, 63
          s_max_u32 s{sProg}, s{sStep}, 1
          s_sub_u32 s{sProg}, s{sProg}, 1
          s_and_b32 s{sG2}, s{sOK2}, 1""".split('\n')]


def prep_a_lines():
    other = [f"v_mov_b64 {vr(ACC + j, 2)}, 0" for j in range(0, 24, 2)] + [f"v_lshlrev_b32 v{PM + 3}, 1, v{vL16}", f"v_lshrrev_b32 v{TMP}, 2, v{vL16}"]
    reads = sum([wl_lines(STREAM[o], R1[o]) for o in range(3, 8)], [])
    return mix(reads, other, 2)


def prep_b_lines():
    other = [f"v_xor_b32 v{vMst}, s{sMtog}, v{vMst}"] + [f"v_xor_b32 v{TMP + p}, {p << 10}, v{vMw}" for p in range(1, 4)]
    reads = sum([wl_lines(STREAM[o], R1[o]) for o in range(3)], [])
    return mix(reads, other, 1)


def chain_startup(e, cfg):
    h = S_ROLE
    tA, tB, tC, tD = EX, EX + 1, EX + 2, EX + 3
    t0, t1, t2, t3 = TMP, TMP + 1, TMP + 2, TMP + 3
    lane = PM
    chunks = [('o', kb, Q) for kb in range(2) for Q in range(4)] + [(m, b, 0) for m in 'qkv' for b in range(8)]
    ring = {4: L_WL + 2 * 16384, 5: L_WL + 3 * 16384, 6: L_WL + 4 * 16384, 0: L_WL + 5 * 16384, 1: L_WL + 6 * 16384,
            2: L_WL + 7 * 16384, 3: 0}
    ptr = {'q': P_WQ, 'k': P_WK, 'v': P_WV, 'o': P_WO}
    sHq, sHo, sLw = sMcur, sProg, sMcur2
    cur, marks = [None], {}

    def dma(r):
        m, x, Q = chunks[r]
        if cur[0] != m:
            srd(e, S_T0, ptr[m], 0x400000); cur[0] = m
        for i in range(4):
            if m == 'o':
                row = 64 * x + 32 * (Q >> 1) + 2 * (Q & 1) + 4 * (i >> 1) + (i & 1)
                e(f"""s_add_u32 s{sA}, s{sHo}, {row * 1024}
                      s_add_u32 m0, s{sLw}, {ring[r % 7] + i * 1024}
                      buffer_load_dwordx4 v{vL16}, {sr(S_T0, 4)}, s{sA} offen lds""")
            else:
                e(f"""s_add_u32 s{sA}, s{sHq}, {(128 * (x & 3) + 64 * (x >> 2) + 4 * i) * 8192}
                      s_add_u32 m0, s{sLw}, {ring[r % 7] + i * 1024}
                      buffer_load_dwordx4 v{tA}, {sr(S_T0, 4)}, s{sA} offen lds""")
        marks[r] = e.vm[-1]

    e(f"""v_and_b32 v{lane}, 63, v0
          v_lshlrev_b32 v{vL16}, 4, v{lane}
          s_and_b32 s{sA}, s{S_WAVE}, 1
          s_lshr_b32 s{sB}, s{S_WAVE}, 1
          s_lshl_b32 s{sHo}, s{h}, 17
          s_lshl_b32 s{sLw}, s{sA}, 14
          s_add_u32 s{sHo}, s{sHo}, s{sLw}
          s_lshl_b32 s{sLw}, s{sB}, 13
          s_add_u32 s{sHo}, s{sHo}, s{sLw}
          s_lshl_b32 s{sHq}, s{h}, 8
          s_lshl_b32 s{sLw}, s{S_WAVE}, 17
          s_add_u32 s{sHq}, s{sHq}, s{sLw}
          s_lshl_b32 s{sLw}, s{S_WAVE}, 12""")
    for r in range(6):
        dma(r)
    e(f"""v_lshrrev_b32 v{t0}, 4, v{lane}
          v_and_b32 v{t1}, 15, v{lane}
          s_lshl_b32 s{sA}, s{S_WAVE}, 10
          v_add_u32 v{vMw}, s{sA}, v{vL16}
          v_lshlrev_b32 v{PM + 3}, 2, v{lane}""")
    e(f"""v_lshrrev_b32 v{t2}, 2, v{lane}
          v_lshlrev_b32 v{t2}, 12, v{t2}
          v_and_b32 v{t3}, 3, v{lane}
          v_lshl_add_u32 v{vPst}, v{t3}, 4, v{t2}""")
    e(f"""v_and_b32 v{t2}, 1, v{lane}
          v_lshlrev_b32 v{t2}, 5, v{t2}
          v_lshl_add_u32 v{t2}, v{t0}, 3, v{t2}
          v_and_b32 v{t3}, 4, v{lane}
          v_add_u32 v{t2}, v{t2}, v{t3}
          v_and_b32 v{t3}, 8, v{lane}
          v_cmp_ne_u32 {sr(sArm, 2)}, 0, v{t3}
          v_lshl_add_u32 v{t2}, v{t3}, 11, v{t2}
          v_and_b32 v{t3}, 2, v{lane}
          v_lshl_add_u32 v{vMst}, v{t3}, 29, v{t2}""")
    srd(e, S_M0, P_MEM0, 8192)
    e(f"""v_and_b32 v{t2}, 1, v{lane}
          v_lshlrev_b32 v{tD}, 10, v{t2}
          v_lshl_add_u32 v{tD}, v{t0}, 1, v{tD}
          v_bfe_u32 v{t2}, v{lane}, 2, 1
          v_lshl_add_u32 v{tD}, v{t2}, 6, v{tD}
          s_and_b32 s{sA}, s{h}, 6
          s_lshl_b32 s{sA}, s{sA}, 10
          s_lshr_b32 s{sB}, s{h}, 3
          s_lshl_b32 s{sB}, s{sB}, 8
          s_add_u32 s{sA}, s{sA}, s{sB}
          s_and_b32 s{sB}, s{S_WAVE}, 1
          s_lshl_b32 s{sB}, s{sB}, 7
          s_add_u32 s{sA}, s{sA}, s{sB}
          s_lshr_b32 s{sB}, s{S_WAVE}, 1
          s_lshl_b32 s{sB}, s{sB}, 3
          s_add_u32 s{sA}, s{sA}, s{sB}
          s_and_b32 s{sB}, s{h}, 1
          s_lshl_b32 s{sB}, s{sB}, 4
          s_add_u32 s{sA}, s{sA}, s{sB}
          buffer_load_ushort v{VX}, v{tD}, {sr(S_M0, 4)}, s{sA} offen
          buffer_load_ushort v{VX + 1}, v{tD}, {sr(S_M0, 4)}, s{sA} offen offset:32""")
    e(f"""s_lshl_b32 s{sA}, s{S_WAVE}, 8
          s_add_u32 s{sA}, s{sA}, {L_T}
          v_mul_u32_u24 v{t2}, {T_PITCH}, v{t0}
          v_lshl_add_u32 v{t2}, v{t1}, 3, v{t2}
          v_add_u32 v{vTw}, s{sA}, v{t2}
          v_and_b32 v{t3}, 3, v{lane}
          v_mul_u32_u24 v{t2}, {T_PITCH}, v{t3}
          v_lshrrev_b32 v{t3}, 5, v{lane}
          v_lshl_add_u32 v{t2}, v{t3}, 7, v{t2}
          v_bfe_u32 v{t3}, v{lane}, 2, 3
          v_lshl_add_u32 v{t2}, v{t3}, 3, v{t2}
          v_add_u32 v{vTr}, {L_T}, v{t2}
          v_lshlrev_b32 v{t2}, 9, v{t0}
          v_lshl_add_u32 v{t2}, v{t1}, 4, v{t2}
          v_add_u32 v{vKXr}, {L_KX}, v{t2}""")
    e(f"""s_lshl_b32 s{sA}, s{S_WAVE}, 9
          s_add_u32 s{sA}, s{sA}, {L_OB}
          v_lshrrev_b32 v{t2}, 5, v{lane}
          v_lshlrev_b32 v{t2}, 8, v{t2}
          v_and_b32 v{t3}, 16, v{lane}
          v_add_u32 v{t2}, v{t2}, v{t3}
          v_and_b32 v{t3}, 12, v{lane}
          v_lshl_add_u32 v{t2}, v{t3}, 4, v{t2}
          v_and_b32 v{t3}, 1, v{lane}
          v_lshl_add_u32 v{t2}, v{t3}, 5, v{t2}
          v_add_u32 v{t2}, s{sA}, v{t2}
          v_and_b32 v{t3}, 2, v{lane}
          v_lshlrev_b32 v{t3}, 12, v{t3}
          v_sub_u32 v{vOw}, v{t2}, v{t3}
          s_add_u32 s{sA}, s{sLw}, {L_WL}
          v_add_u32 v{vWL0}, s{sA}, v{vL16}
          v_add_u32 v{vWL1}, 0x10000, v{vWL0}""")
    e(f"""v_and_b32 v{t2}, 1, v{lane}
          v_cmp_ne_u32 vcc, 0, v{t2}
          v_mov_b32 v{t2}, 0x4444
          v_mov_b32 v{t3}, 0xeeee
          v_cndmask_b32 v{vIdx}, v{t2}, v{t3}, vcc
          v_mov_b32 v{t2}, 0x3f80
          v_mov_b32 v{t3}, 0x3f800000
          v_cndmask_b32 v{vSelC}, v{t2}, v{t3}, vcc
          v_lshrrev_b32 v{t2}, 1, v{t1}""")
    for j in range(4):
        e(f"v_cmp_eq_u32 {sr(sSel + 2 * j, 2)}, {j}, v{t2}")
    e(f"""v_lshlrev_b32 v{tA}, 13, v{t0}
          v_lshlrev_b32 v{t2}, 2, v{t0}
          v_xor_b32 v{t2}, v{t2}, v{t1}
          v_lshl_add_u32 v{tA}, v{t2}, 4, v{tA}""")
    e(f"""v_bfe_u32 v{t2}, v{lane}, 2, 1
          v_lshlrev_b32 v{tB}, 12, v{t2}
          v_bfe_u32 v{t2}, v{lane}, 5, 1
          v_lshl_add_u32 v{tB}, v{t2}, 10, v{tB}
          v_bfe_u32 v{t2}, v{lane}, 3, 1
          v_lshl_add_u32 v{tB}, v{t2}, 9, v{tB}
          v_bfe_u32 v{t2}, v{lane}, 4, 1
          v_lshl_add_u32 v{tB}, v{t2}, 8, v{tB}
          v_and_b32 v{t2}, 3, v{lane}
          v_lshl_add_u32 v{tB}, v{t2}, 3, v{tB}
          v_bfe_u32 v{t3}, v{tB}, 8, 2
          v_xor_b32 v{t3}, s{S_WAVE}, v{t3}
          v_lshl_add_u32 v{tB}, v{t3}, 6, v{tB}""")
    e(f"""v_lshrrev_b32 v{t3}, 2, v{lane}
          v_lshlrev_b32 v{tC}, 10, v{t3}
          v_lshl_add_u32 v{tC}, v{t2}, 3, v{tC}
          s_lshl_b32 s{sA}, s{S_WAVE}, 8
          v_add_u32 v{tC}, s{sA}, v{tC}""")
    e(f"""s_lshl_b32 s{sA}, s{S_WAVE}, 11
          s_lshl_b32 s{sB}, s{h}, 13
          s_add_u32 s{sPbaseL}, s{sA}, s{sB}
          s_add_u32 s{sPbaseL}, s{sPbaseL}, {WS_P}
          s_lshl_b32 s{sA}, s{S_WAVE}, 16
          s_lshl_b32 s{sB}, s{h}, 6
          s_add_u32 s{sPbaseS}, s{sA}, s{sB}
          s_add_u32 s{sPbaseS}, s{sPbaseS}, {WS_P}""")
    e(f"""s_and_b32 s{sA}, s{S_WAVE}, 1
          s_lshl_b32 s{sMbaseS}, s{sA}, 12
          s_and_b32 s{sA}, s{h}, 24
          s_lshl_b32 s{sA}, s{sA}, 7
          s_add_u32 s{sMbaseS}, s{sMbaseS}, s{sA}
          s_and_b32 s{sA}, s{h}, 1
          s_lshl_b32 s{sA}, s{sA}, 9
          s_add_u32 s{sMbaseS}, s{sMbaseS}, s{sA}
          s_lshr_b32 s{sA}, s{S_WAVE}, 1
          s_lshl_b32 s{sA}, s{sA}, 8
          s_add_u32 s{sMbaseS}, s{sMbaseS}, s{sA}
          s_and_b32 s{sA}, s{h}, 6
          s_lshl_b32 s{sA}, s{sA}, 5
          s_add_u32 s{sMbaseS}, s{sMbaseS}, s{sA}
          s_add_u32 s{sMbaseS}, s{sMbaseS}, {WS_M}""")
    e(f"""s_mul_i32 s{sKV}, s{h}, {64 * UNIT}
          s_lshl_b32 s{sA}, s{S_WAVE}, 11
          s_add_u32 s{sKV}, s{sKV}, s{sA}
          s_add_u32 s{sKV}, s{sKV}, {WS_QKV + 8192}
          s_lshl_b32 s{sExp}, s{h}, 18
          s_lshl_b32 s{sA}, s{S_WAVE}, 10
          s_add_u32 s{sExp}, s{sExp}, s{sA}
          s_add_u32 s{sExp}, s{sExp}, {WS_EXP}
          s_lshl_b32 s{sFl}, s{h}, 8
          s_add_u32 s{sFl}, s{sFl}, {F_QKV}
          s_lshl_b32 s{sFch}, s{h}, 7
          s_lshl_b32 s{sA}, s{S_WAVE}, 2
          s_add_u32 s{sFch}, s{sFch}, s{sA}
          s_add_u32 s{sFch}, s{sFch}, {F_CH}
          s_mov_b32 s{sC}, 0x3e0293ee
          s_add_u32 s{sPst2}, s{sPbaseS}, 4096
          s_lshl_b32 s{sKl}, s{S_WAVE}, 11
          s_add_u32 s{sKl}, s{sKl}, {L_KX}
          s_lshl_b32 s{sHl}, s{h}, 7
          s_add_u32 s{sHl}, s{sHl}, {F_HINT}
          s_lshl_b32 s{sHs}, s{h}, 2
          s_lshl_b32 s{sA}, s{S_WAVE}, 10
          s_add_u32 s{sHs}, s{sHs}, s{sA}
          s_add_u32 s{sHs}, s{sHs}, {F_HINT}
          s_mov_b32 s{sOK}, 1""")
    e(f"""v_mov_b64 {vr(VX + 4, 2)}, 0
          v_mov_b64 {vr(VX + 6, 2)}, 0
          v_mov_b32 v{VX + 2}, -1
          s_add_u32 s{sB}, s{sMbaseS}, 8192
          buffer_store_dwordx4 {vr(VX + 4, 4)}, v{vL16}, {W}, s{sPbaseL} offen sc1
          buffer_store_dwordx4 {vr(VX + 4, 4)}, v{vL16}, {W}, s{sPbaseL} offen offset:1024 sc1
          buffer_store_dword v{VX + 2}, v{vMst}, {W}, s{sB} offen sc1""")
    confirm_barrier(e, 'ch')
    parked = STREAM[14:16] + STREAM[:10]
    for r in range(32):
        m, x, Q = chunks[r]
        if marks[r] in e.vm:
            e.wait(vm=len(e.vm) - 1 - e.vm.index(marks[r]))
        e.wait(lgkm=0)
        e("s_barrier")
        if r == 6:
            e.comment("publish this wave's piece of mem0 in slot 0 (and arm slot 2)")
            e(f"""v_lshl_or_b32 v{VX}, v{VX + 1}, 16, v{VX}
                  v_min_u32 v{VX}, -2, v{VX}
                  v_cndmask_b32 v{VX}, v{VX}, -1, {sr(sArm, 2)}
                  buffer_store_dword v{VX}, v{vMst}, {W}, s{sMbaseS} offen sc1""")
        if r == 12:
            e.comment("every wave's arming stores are complete: count this member as armed")
            e(f"""s_cmp_lg_u32 s{S_WAVE}, 0
                  s_cbranch_scc1 L_cs_in
                  s_cmp_lg_u32 s{S_XCC}, 0
                  s_mov_b32 s{sB}, 0x10000
                  s_cselect_b32 s{sA}, 0x1010000, s{sB}
                  v_mov_b32 v{t0}, s{sA}
                  s_mov_b64 exec, 1
                  buffer_atomic_add v{t0}, off, {sr(S_DBG, 4)}, 0 offset:{D_INIT}
                  s_mov_b64 exec, -1""")
            e.vm.pop()
            e.label("L_cs_in")
        if r + 6 < 32:
            dma(r + 6)
        if r == 8:
            for op in STREAM[10:14]:
                wl_write(e, op, PARK[op])
            e.wait(lgkm=0)
        if r == cfg.get('r1', 16):
            e(f"buffer_load_dword v{PM + 1}, off, {sr(S_DBG, 4)}, 0 offset:{D_INIT} sc1")
        if r == cfg.get('r2', 23):
            e(f"""v_readfirstlane_b32 s{sNan}, v{PM + 1}
                  buffer_load_dword v{PM + 2}, v{PM + 3}, {W}, s{sFl} offen sc1""")
            e(f"""s_add_u32 m0, s{sLw}, {L_KX + 8192}
                  s_lshr_b32 m0, m0, 1
                  s_add_u32 m0, m0, {(L_KX + 8192) // 2}
                  s_lshl_b32 s{sB}, s{h}, 10
                  s_add_u32 s{sB}, s{sB}, {WS_M}
                  buffer_load_dwordx4 v{vL16}, {W}, s{sPbaseL} offen sc1 lds
                  buffer_load_dwordx4 v{vL16}, {W}, s{sPbaseL} offen offset:1024 sc1 lds
                  buffer_load_dwordx4 v{vL16}, {W}, s{sHl} offen sc1 lds
                  buffer_load_dwordx4 v{vL16}, {W}, s{sB} offen sc1 lds""")
        if r == cfg.get('r3', 30):
            e(f"""v_cmp_ne_u32 {sr(sFm, 2)}, 0, v{PM + 2}
                  s_and_b32 s{sOK}, s{sFm}, 3
                  s_cmp_eq_u32 s{sOK}, 3
                  s_cselect_b32 s{sOK}, 1, 0
                  s_and_b32 s{sA}, s{sNan}, 0xffffff
                  s_cmp_eq_u32 s{sA}, 0x200100
                  s_cselect_b32 s{sOK}, s{sOK}, 0""")
            kx_dma(e, L_KX)
            e(f"""s_add_u32 m0, m0, 8192
                  s_add_u32 s{sA}, s{sKV}, 8192
                  buffer_load_dwordx4 v{vL16}, {W}, s{sA} offen sc1 lds
                  buffer_load_dwordx4 v{vL16}, {W}, s{sA} offen offset:1024 sc1 lds""")
        if r >= 26:
            for op in parked[2 * (r - 26):2 * (r - 26) + 2]:
                wl_write(e, op, PARK[op])
        e(f"v_add_u32 v{t1}, {ring[r % 7]}, v{tC if m == 'o' else tB}")
        if m == 'o':
            for t in range(8):
                op = ('o', t, x)
                kind, base = RES[op] if op in RES else ('v', PARK[op])
                e(f"ds_read_b64_tr_b16 {vr(base + 2 * Q, 2, kind)}, v{t1} offset:{t * 32}")
        else:
            for w in range(1, 4):
                e(f"s_cmp_eq_u32 s{S_WAVE}, {w}\n s_cbranch_scc1 L_cs{r}_{w}")
            st0 = e.state()
            for w in range(4):
                if w:
                    e.label(f"L_cs{r}_{w}"); e.set_state(st0)
                for ft in range(2):
                    op = (m, ft, 2 * ((x & 3) ^ w) + (x >> 2))
                    kind, base = RES[op] if op in RES else ('v', PARK[op])
                    for Q in range(4):
                        e(f"ds_read_b64_tr_b16 {vr(base + 2 * Q, 2, kind)}, v{t1} offset:{(32 * (Q & 1) + 8 * (Q >> 1)) * 256 + ft * 32}")
                if w < 3:
                    e(f"s_branch L_cs{r}_e")
            e.label(f"L_cs{r}_e")
    e.wait(lgkm=0)
    dbg_max(e, cfg, 9, v=PM, mask=1)
    e(f"""s_cmp_lg_u32 s{sOK}, 0
          s_cbranch_scc1 L_cs_ready
          L_cs_p1:
          buffer_load_dword v{t0}, off, {sr(S_DBG, 4)}, 0 offset:{D_INIT} sc1
          s_sub_u32 s{S_SPIN}, s{S_SPIN}, 1
          s_cbranch_scc1 L_end
          v_readfirstlane_b32 s{sNan}, v{t0}
          s_and_b32 s{sA}, s{sNan}, 0xffffff
          s_cmp_eq_u32 s{sA}, 0x200100
          s_cbranch_scc0 L_cs_p1
          L_cs_p2:
          buffer_load_dword v{t0}, v{PM + 3}, {W}, s{sFl} offen sc1
          s_sub_u32 s{S_SPIN}, s{S_SPIN}, 1
          s_cbranch_scc1 L_end
          v_cmp_ne_u32 {sr(sFm, 2)}, 0, v{t0}
          s_and_b32 s{sA}, s{sFm}, 3
          s_cmp_eq_u32 s{sA}, 3
          s_cbranch_scc0 L_cs_p2""")
    kx_dma(e, L_KX)
    e.label("L_cs_ready")
    e(f"""v_mov_b32 v{PM + 1}, 0
          v_mov_b32 v{PM + 2}, 0
          s_mov_b32 s{sStep}, 0
          s_mov_b32 s{sTog}, 0""")
    e("\n".join(scalar_lines() + prep_a_lines()))
    for b in range(2):
        e(mload(b))
    e("\n".join(prep_b_lines()))
    dbg_max(e, cfg, 11, v=PM, mask=1)
    if cfg.get('holdto'):
        e(f"""L_hold:
              s_memrealtime s[92:93]
              s_waitcnt lgkmcnt(0)
              s_sub_u32 s92, s92, s94
              s_cmp_lt_u32 s92, {cfg['holdto']}
              s_cbranch_scc1 L_hold""")
    e("s_waitcnt vmcnt(0) lgkmcnt(0)\n s_barrier")
    if cfg.get('diag'):
        e.raw(f"  s_memtime {sr(sDbgT + 6, 2)}\n  s_memrealtime {sr(sDbgT + 10, 2)}\n  s_mov_b32 s{sDbgT + 5}, 0\n  s_mov_b32 s12, 0\n  s_mov_b32 s13, 0\n  s_mov_b32 s14, 0\n  s_mov_b32 s15, 0\n  s_waitcnt lgkmcnt(0)")
    e(f"""s_lshr_b32 s{sA}, s{sNan}, 24
          s_mov_b32 s{sNan}, 0
          s_cmp_lg_u32 s{sA}, 0
          s_cbranch_scc1 L_step_s""")
    if cfg.get('force_slow'):
        e("s_branch L_step_s")


def chain_loop(e, cfg, sfx, st):
    acc = {('q', 0): ACC, ('q', 1): ACC + 4, ('k', 0): ACC + 8, ('k', 1): ACC + 12, ('v', 0): ACC + 16, ('v', 1): ACC + 20}
    loc = dict(RES)
    for o in range(10):
        loc[STREAM[o]] = ('v', R1[o])
    for o in range(6):
        loc[STREAM[10 + o]] = ('v', WO_SB[o])
    diag = cfg.get('diag')

    def stamp(n):
        tr = cfg.get('trace')
        if tr and n in tr:
            e.raw(f"  s_memtime {sr(20 + 2 * tr.index(n), 2)}")

    def trace_out(where, TR):
        if cfg.get('trace') and cfg.get('tpos', 'mid') == where:
            e(f"""s_memtime s[32:33]
                  s_memrealtime s[34:35]
                  s_lshl_b32 s40, s{S_ROLE}, 2
                  s_add_u32 s40, s40, s{S_WAVE}
                  s_lshl_b32 s40, s40, 6
                  s_add_u32 s40, s40, s{sStep}
                  s_lshl_b32 s40, s40, 5
                  s_add_u32 s40, s40, 0x6200000
                  s_waitcnt lgkmcnt(0)""")
            for j in range(8):
                e(f"v_mov_b32 v{TR + j}, s{20 + 2 * j}")
            e(f"""s_mov_b64 exec, 1
                  buffer_store_dwordx4 {vr(TR, 4)}, off, {W}, s40
                  buffer_store_dwordx4 {vr(TR + 4, 4)}, off, {W}, s40 offset:16
                  s_mov_b64 exec, -1""")

    def P(m, ft, i):
        k, b = loc[(m, ft, i)]
        return f"v_smfmac_f32_16x16x64_bf16 {vr(acc[(m, ft)], 4)}, {vr(MA + 4 * i, 4)}, {vr(b, 8, k)}, v{vIdx}"

    def post(a, dst):
        return [f"v_add_f32 v{a}, v{a}, v{a + 1}", f"v_add_f32 v{a + 2}, v{a + 2}, v{a + 3}",
                f"v_cvt_pk_bf16_f32 v{dst}, v{a}, v{a + 2}"]

    def xread(kb):
        return [f"ds_read_b64_tr_b16 {vr(X + 4 * kb, 2)}, v{vTr} offset:{kb * 256}",
                f"ds_read_b64_tr_b16 {vr(X + 4 * kb + 2, 2)}, v{vTr} offset:{kb * 256 + 64}"]

    kx_dst = [KXR, SPARE, KXR + 4, SPARE + 4, KXR + 8, KXR, KXR + 12, KXR + 4]

    def kxread(n):
        return f"ds_read_b128 {vr(kx_dst[n], 4)}, v{vKXr} offset:{(n >> 1) * 2048 + (n & 1) * 256}"

    Sx = [ACC, ACC + 4]
    Sm, Px = ACC + 8, ACC + 12

    def smx(n):
        kb, t = n >> 1, n & 1
        c = '0' if kb == 0 else vr(Sx[t], 4)
        return f"v_mfma_f32_16x16x32_bf16 {vr(Sx[t], 4)}, {vr(kx_dst[n], 4)}, {vr(X + 4 * kb, 4)}, {c}"

    def smm(kb):
        c = '0' if kb == 0 else vr(Sm, 4)
        return f"v_mfma_f32_16x16x32_bf16 {vr(Sm, 4)}, {vr(X + 4 * kb, 4)}, {vr(X + 4 * kb, 4)}, {c}"

    pace = cfg.get('pace', 0)
    ldH = lambda: pace and e.loose(f"buffer_load_dword v{HD}, v{HA}, {W}, s{sHl} offen sc1")
    ldV = [f"buffer_load_dwordx4 {vr(VX, 4)}, v{vKXr}, {W}, s{sVx} offen sc1",
           f"buffer_load_dwordx4 {vr(VX + 4, 4)}, v{vKXr}, {W}, s{sVx} offen offset:256 sc1"]
    ldK = [f"buffer_load_dwordx4 v{vL16}, {W}, s{sKV} offen sc1 lds",
           f"buffer_load_dwordx4 v{vL16}, {W}, s{sKV} offen offset:1024 sc1 lds"]
    touch = f"buffer_load_dword v{PM + 3}, {W}, s{sVt} offen sc1 lds"
    export = f"buffer_store_dwordx4 {vr(EX, 4)}, v{vL16}, {W}, s{sExp} offen sc1"
    progress = f"s_mov_b64 exec, 1\n buffer_store_dword v{TMP}, off, {W}, s{sFch} sc1\n s_mov_b64 exec, -1"
    ldF = f"buffer_load_dword v{TMP}, v{TMP}, {W}, s{sFl} offen sc1"
    if cfg.get('noexp'):
        export = progress = "s_nop 0"
    rf = sum([wl_lines(STREAM[o], R1[o]) for o in range(8, 10)], [])
    wo = sum([wl_lines(STREAM[10 + o], WO_SB[o]) for o in range(6)], [])
    q0p, q1p, k0p, k1p = post(ACC, ACC + 1), post(ACC + 4, ACC + 5), post(ACC + 8, EX), post(ACC + 12, EX + 1)
    v0p, v1p = post(ACC + 16, EX + 2), post(ACC + 20, EX + 3)
    m0, m1 = TMP, TMP + 1
    C0 = PM
    zero = [f"v_mov_b64 {vr(MA + j, 2)}, 0" for j in range(0, 32, 2)]
    st_ = lambda n: (lambda: stamp(n))
    mx = lambda d, a, b, c_: f"v_max3_f32 v{d}, v{a}, v{b}, v{c_}"

    def check(blocks):
        r = [MA + 4 * b + j for b in blocks for j in range(4)]
        out = [f"v_max3_u32 v{C0}, v{r[0]}, v{r[1]}, v{r[2]}"]
        k = 3
        while k + 1 < len(r):
            out.append(f"v_max3_u32 v{C0}, v{C0}, v{r[k]}, v{r[k + 1]}"); k += 2
        out.append(f"v_max_u32 v{C0}, v{C0}, v{r[k]}")
        out.append(f"v_cmp_eq_u32 vcc, -1, v{C0}")
        return out

    def mread(i):
        return f"ds_read_b128 {vr(MA + 4 * i, 4)}, v{TMP + (i >> 1)} offset:{(i & 1) * 4096}"

    e.slot_no = 0
    e.slot_hook = lambda n: stamp(100 + n)
    e.forget()
    e.label(f"L_step_{sfx}")
    e("s_waitcnt vmcnt(2)")
    e.label(f"L_chkE_{sfx}")
    e("\n".join(check((0,))))
    e(f"""ds_write_b128 v{vMw}, {vr(MA, 4)}
          s_cbranch_vccnz L_retE_{sfx}""")
    stamp(0)
    cl_ = check((1,))
    z = lambda: zero.pop(0)
    lw = lambda n: (lambda: e.wait(lgkm=n))
    seq = [
        (P('q', 0, 0), [lambda: e.loose(mload(1))]),
        (P('q', 1, 0), [ldV[0]]),
        (P('k', 0, 0), [ldV[1], ldF, e.barrier, mread(2), mread(4)]),
        (P('k', 1, 0), [mread(6), "s_waitcnt vmcnt(4)", cl_[0]]),
        (P('v', 0, 0), [cl_[1]]),
        (P('v', 1, 0), [cl_[2], f"ds_write_b128 v{vMw}, {vr(MA + 4, 4)} offset:4096", f"s_cbranch_vccnz L_retL_{sfx}", f"L_okL_{sfx}:"]),
        (P('q', 0, 1), [st_(1)]),
        (P('q', 1, 1), []),
        (P('k', 0, 1), [rf[0]]),
        (P('k', 1, 1), [rf[1], lw(3)]),
        (P('q', 0, 2), [rf[2]]),
        (P('q', 1, 2), [e.lds_writes_done]),
        (P('k', 0, 2), [e.barrier, ldK[0], mread(3)]),
        (P('k', 1, 2), [mread(5)]),
        (P('q', 0, 4), [mread(7)]),
        (P('q', 1, 4), [ldK[1], f"s_movk_i32 m0, {L_DUMMY}"]),
        (P('k', 0, 4), [rf[3]]),
        (P('k', 1, 4), [touch]),
        (P('q', 0, 6), [kxread(0)]),
        (P('q', 1, 6), [kxread(2)]),
        (P('k', 0, 6), [export, lambda: trace_out('mid', SPARE)]),
        (P('k', 1, 6), [kxread(4), st_(2), lw(3)]),
        (P('q', 0, 3), [kxread(6)]),
        (P('q', 0, 5), [kxread(1)]),
        (P('q', 0, 7), [kxread(3), f"v_cmp_ne_u32 {sr(sFm, 2)}, 0, v{TMP}"]),
        (P('q', 1, 3), [f"v_mov_b32 v{TMP}, s{sProg}"]),
        (P('q', 1, 5), [progress]),
        (P('q', 1, 7), ["s_nop 0", q0p[0]]),
        (P('k', 0, 3), ["s_nop 0", q0p[1]]),
        (P('k', 0, 5), ["s_nop 0", q0p[2]]),
        (P('k', 0, 7), [q1p[0]]),
        (P('k', 1, 3), ["s_nop 0", q1p[1]]),
        (P('k', 1, 5), ["s_nop 0", q1p[2]]),
        (P('k', 1, 7), [f"ds_write2_b32 v{vTw}, v{ACC + 1}, v{ACC + 5} offset0:0 offset1:32", st_(3), k0p[0]]),
        (P('v', 0, 1), ["s_nop 0", k0p[1]]),
        (P('v', 1, 1), ["s_nop 0", k0p[2], k1p[0]]),
        (P('v', 0, 2), [k1p[1], k1p[2]]),
        (P('v', 1, 2), [f"ds_write2_b32 v{vTw}, v{EX}, v{EX + 1} offset0:1 offset1:33", z()]),
        (P('v', 0, 3), [z()]),
        (P('v', 1, 3), [z()]),
        (P('v', 0, 4), [z()]),
        (P('v', 1, 4), [e.lds_writes_done, z()]),
        (P('v', 0, 5), [e.barrier] + xread(0)),
        (P('v', 1, 5), xread(1) + [z()]),
        (P('v', 0, 6), xread(2) + [z()]),
        (P('v', 0, 7), xread(3) + [z()]),
        (P('v', 1, 6), [f"s_cmp_eq_u32 s{sStep}, 63", z()]),
        (P('v', 1, 7), [st_(4), lw(4), z()]),
        (smx(0), [z(), z()]),
        (smx(2), [kxread(5), lw(1)]),
        (smx(4), [kxread(7), v0p[0]]),
        (smx(6), [v0p[1], v0p[2]]),
        (smm(0), [v1p[0], v1p[1]]),
        (smm(1), [v1p[2], z()]),
        (smm(2), ["s_cbranch_scc1 L_final", mx(m0, Sx[0], Sx[0] + 1, Sx[0] + 2)]),
        (smm(3), [z(), z()]),
        (smx(1), [lw(0), z()]),
        (smx(3), [f"v_exp_f32 v{m1}, v{vIdx}"] if cfg.get('warm', 1) == 1 else []),
        (smx(5), [mx(m0, m0, Sx[0] + 3, Sm + 2), f"v_max_f32 v{m0}, v{m0}, v{Sm + 3}"]),
        (smx(7), [wo[0], f"s_add_u32 s{sStep}, s{sStep}, 1", wo[1], f"s_xor_b32 s{sTog}, s{sTog}, 0x2000", wo[2],
                  f"s_mov_b32 s{sG}, s{sG2}", wo[3], f"v_xor_b32 v{vKXr}, 0x2000, v{vKXr}"]),
    ]
    e.slots(seq)
    assert not zero
    e(f"""{mx(m0, m0, Sx[1], Sx[1] + 1)}
          {mx(m0, m0, Sx[1] + 2, Sx[1] + 3)}
          v_mov_b32 v{m1}, v{m0}
          v_permlane32_swap_b32 v{m0}, v{m1}
          v_max_f32 v{m0}, v{m0}, v{m1}
          v_mov_b32 v{m1}, v{m0}
          v_permlane16_swap_b32 v{m0}, v{m1}
          v_max_f32 v{m0}, v{m0}, v{m1}
          v_mul_f32 v{m0}, s{sC}, v{m0}""")
    for j in (0, 2, 4, 6, 10):
        e(f"v_pk_fma_f32 {vr(ACC + j, 2)}, {vr(ACC + j, 2)}, {sr(sC, 2)}, {vr(m0, 2)} op_sel_hi:[1,0,0] neg_lo:[0,0,1] neg_hi:[0,0,1]")
    for j in (0, 1, 2, 3, 4, 5, 6, 7, 10, 11):
        e(f"v_exp_f32 v{ACC + j}, v{ACC + j}")
    stamp(5)
    for j in range(4):
        e(f"v_cvt_pk_bf16_f32 v{Px + j}, v{ACC + 2 * j}, v{ACC + 2 * j + 1}")
    e(f"""v_cvt_pk_bf16_f32 v{PM}, v{Sm + 2}, v{Sm + 3}
          v_cvt_pk_bf16_f32 v{PM + 3}, v{Sm + 2}, v{Sm + 3}
          v_pk_add_f32 {vr(ACC, 2)}, {vr(ACC, 2)}, {vr(ACC + 2, 2)}
          v_pk_add_f32 {vr(ACC + 4, 2)}, {vr(ACC + 4, 2)}, {vr(ACC + 6, 2)}
          v_pk_add_f32 {vr(ACC, 2)}, {vr(ACC, 2)}, {vr(Sm + 2, 2)}
          v_pk_add_f32 {vr(m0, 2)}, {vr(ACC, 2)}, {vr(ACC + 4, 2)}""")
    O = SPARE
    mpos = cfg.get('mpos', 'w')
    mark = ["s_mov_b64 exec, 0xff", f"buffer_store_dword v{HV}, v{HS}, {W}, s{sHs} offen {st}", "s_mov_b64 exec, -1", st_(15)]
    hsetup = [f"v_bfe_u32 v{HA}, v{vL16}, 2, 7", f"v_mov_b32 v{HD}, {cfg.get('hdef', -1)}"]
    e.slots([
        (f"v_mfma_f32_16x16x32_bf16 {vr(O, 4)}, {vr(VX, 4)}, {vr(Px, 4)}, 0",
         [f"v_add_f32 v{m0}, v{m0}, v{m1}", f"v_mov_b32 v{m1}, v{m0}"]),
        (f"v_mfma_f32_16x16x32_bf16 {vr(O + 4, 4)}, {vr(VX + 4, 4)}, {vr(Px, 4)}, 0",
         [f"v_permlane32_swap_b32 v{m0}, v{m1}"]),
        (f"v_mfma_f32_16x16x16_bf16 {vr(O, 4)}, {vr(EX + 2, 2)}, {vr(PM, 2)}, {vr(O, 4)}",
         [f"v_add_f32 v{m0}, v{m0}, v{m1}", f"v_mov_b32 v{m1}, v{m0}"]),
        (f"v_mfma_f32_16x16x16_bf16 {vr(O + 4, 4)}, {vr(EX + 2, 2)}, {vr(PM + 2, 2)}, {vr(O + 4, 4)}",
         [f"v_permlane16_swap_b32 v{m0}, v{m1}", f"v_add_f32 v{m0}, v{m0}, v{m1}", f"v_rcp_f32 v{m0}, v{m0}",
          ]),
    ])
    for j in range(0, 8, 2):
        e(f"v_pk_mul_f32 {vr(O + j, 2)}, {vr(O + j, 2)}, {vr(m0, 2)} op_sel_hi:[1,0]")
    OA = ACC + 16
    for j in range(4):
        e(f"v_cvt_pk_bf16_f32 v{O + j}, v{O + 2 * j}, v{O + 2 * j + 1}")
    e(f"ds_write_b128 v{vOw}, {vr(O, 4)}")
    if mpos == 'w' and pace:
        e("\n".join(mark[:3])); stamp(15)
    if mpos == 'p':
        e("\n".join(hsetup))
    if cfg.get('h0'):
        delay(e, cfg['h0']); ldH()
    e.barrier()
    e(f"""ds_read_b128 {vr(OA, 4)}, v{vL16} offset:{L_OB}
          ds_read_b128 {vr(OA + 4, 4)}, v{vL16} offset:{L_OB + 1024}""")
    stamp(6)
    OUT = SPARE

    def pstore(c):
        return f"buffer_store_dwordx4 {vr(OUT + 4 * c, 4)}, v{vPst}, {W}, s{sPbaseS} offen offset:{c * 2048} {st}"

    tag = lambda j: f"v_and_or_b32 v{OUT + j}, v{OUT + j}, -2, s{sG}"
    seq = []
    for t in range(8):
        for kb in range(2):
            k, b = loc[('o', t, kb)]
            if t >= 2:
                p = post(MA + 4 * (t - 2), OUT + t - 2)
                fl = p[0:1] if kb == 0 else p[1:3]
                if kb == 0 and t % 2 == 1:
                    fl = fl + [tag(t - 3)]
            else:
                fl = ["s_nop 0"]
            n = 2 * t + kb
            if 1 <= n <= 8:
                fl = [wo[3 + n]] + fl
            hc = cfg.get('hc', 10)
            if n in cfg.get('hs', (0, 2, 4, 8)) and pace:
                fl = [ldH] + [x for x in fl if x != "s_nop 0"]
            if n == hc and pace:
                fl = fl + [f"v_cmp_gt_u32 vcc, s{sStep}, v{HD}"]
            if n == hc + 1:
                fl = fl + [st_(16)] + ([f"s_cbranch_vccnz L_hret_{sfx}"] if pace else []) + [f"L_hok_{sfx}:", st_(13)]
            if kb == 0 and t == 6:
                fl = [pstore(0)] + fl
            seq.append((f"v_smfmac_f32_16x16x64_bf16 {vr(MA + 4 * t, 4)}, {vr(OA + 4 * kb, 4)}, {vr(b, 8, k)}, v{vIdx}", fl))
    e.slots(seq)
    PL, D, SEL, PL2 = MA + 8, MA + 16, MA + 20, MA + 24
    e("\n".join(post(MA + 24, OUT + 6) + [tag(6)]))
    e("\n".join(post(MA + 28, OUT + 7)))
    e(pstore(1))
    stamp(7)
    trace_out('late', MA)
    e(f"s_bitcmp1_b32 s{S_WAVE}, 0\n s_cbranch_scc1 L_x1_{sfx}")
    e.slot_hook = None
    st0 = e.state()
    ldP = [f"buffer_load_dwordx4 {vr(PL, 4)}, v{vL16}, {W}, s{sPbaseL} offen sc1",
           f"buffer_load_dwordx4 {vr(PL + 4, 4)}, v{vL16}, {W}, s{sPbaseL} offen offset:1024 sc1"]
    tP, dM, eM, gM = cfg.get('tP', (260, 380)), cfg.get('dM', (240, 120)), cfg.get('eM', 200), cfg.get('gM', (120, 120))
    for w in range(2):
        if w:
            e.label(f"L_x{w}_{sfx}"); e.set_state(st0)
        clk = [[12, 48][w]]
        pa = prep_a_lines()
        valu = [f"v_cndmask_b32 v{SEL + j}, 0, v{vSelC}, {sr(sSel + 2 * j, 2)}" for j in range(4)] + scalar_lines() + [l for l in pa if not l.startswith('ds_')]
        if diag:
            valu += [f"s_cmp_eq_u32 s{sStep}, 10", f"s_cselect_b32 s{sDbgT + 6}, s36, s{sDbgT + 6}"] + [f"s_cselect_b32 s{k}, 0, s{k}" for k in range(12, 16)]
        reads = [l for l in pa if l.startswith('ds_')]
        late_v = [l for l in pa if not l.startswith('ds_')]
        pool = [l for l in valu if l not in late_v]
        pool = [l for l in pool if not l.startswith('v_')] + [l for l in pool if l.startswith('v_')]
        def until(t):
            while clk[0] + 4 <= t and pool:
                e(pool.pop(0)); clk[0] += 4
            if clk[0] + 4 <= t:
                delay(e, t - clk[0]); clk[0] = t

        until(tP[w])
        e.loose(ldP[0]); e.loose(ldP[1]); stamp(11)
        ldP2 = [x.replace(vr(PL, 4), vr(PL2, 4)).replace(vr(PL + 4, 4), vr(PL2 + 4, 4)) for x in ldP]
        rest = mix(reads, pool, 2)
        nsp = cfg.get('nsp', (10, 10))[w]
        e("\n".join(rest[:nsp]))
        if nsp is not None:
            delay(e, cfg.get('dP2', (60, 40))[w])
            e.loose(ldP2[0]); e.loose(ldP2[1])
        else:
            nsp = len(rest)
        spare = cfg.get('nsp', (10, 10))[w] is not None
        e("\n".join(rest[nsp:]))
        e(f"s_mov_b32 s{sNan}, 0")
        if diag:
            e.raw("  s_memtime s[36:37]")
        ny = 2 if spare else 0
        e(f"""s_waitcnt vmcnt({ny + 1})
              L_redP{w}_{sfx}:
              v_mfma_f32_16x16x32_bf16 {vr(D, 4)}, {vr(PL, 4)}, {vr(SEL, 4)}, 0
              s_waitcnt vmcnt({ny})
              v_mfma_f32_16x16x32_bf16 {vr(D, 4)}, {vr(PL + 4, 4)}, {vr(SEL, 4)}, {vr(D, 4)}
              v_xor_b32 v{C0}, s{sG}, v{PL}
              v_bitop3_b32 v{C0}, v{C0}, v{PL + 2}, s{sG} bitop3:0xf6
              v_bitop3_b32 v{C0}, v{C0}, v{PL + 4}, s{sG} bitop3:0xf6
              v_bitop3_b32 v{C0}, v{C0}, v{PL + 6}, s{sG} bitop3:0xf6
              v_and_b32 v{C0}, 1, v{C0}
              v_cmp_ne_u32 vcc, 0, v{C0}
              s_cbranch_vccnz L_reP{w}_{sfx}
              v_permlane32_swap_b32 v{D}, v{D + 2}
              v_permlane32_swap_b32 v{D + 1}, v{D + 3}
              v_add_f32 v{D}, v{D}, v{D + 2}
              v_add_f32 v{D + 1}, v{D + 1}, v{D + 3}
              v_permlane16_swap_b32 v{D}, v{D + 1}
              v_add_f32 v{D}, v{D}, v{D + 1}
              v_mov_b32_dpp v{D + 1}, v{D} quad_perm:[2,3,0,1] row_mask:0xf bank_mask:0xf
              v_cvt_pk_bf16_f32 v{D}, v{D}, v{D + 1}
              v_min_u32 v{D}, -2, v{D}
              v_cndmask_b32 v{VX + 4}, v{D}, -1, {sr(sArm, 2)}
              buffer_store_dword v{VX + 4}, v{vMst}, {W}, s{sMn2} offen {st}""")
        stamp(8)
        pb = ["s_waitcnt vmcnt(1)"] + prep_b_lines()
        d = dM[w]
        if d >= 100:
            e("\n".join(pb)); d -= 100; pb = []
        delay(e, d)
        e.loose(mload(0)); stamp(12)
        d = gM[w]
        if pb:
            pb[0] = "s_waitcnt vmcnt(2)"
            e("\n".join(pb)); d -= 100
        k = max(0, min(len(late_v), d // 4))
        e("\n".join(late_v[:k])); d -= 4 * k
        delay(e, d)
        e.loose(mload(0)); e.loose(mload(1))
        e("\n".join(late_v[k:]))
        e(f"""s_bitcmp1_b64 {sr(sFm, 2)}, s{sOK}
              s_waitcnt lgkmcnt(0)
              s_cbranch_scc1 L_step_{sfx}
              s_branch L_flag_{sfx}""")
        e.forget()
        e(f"L_reP{w}_{sfx}:")
        if spare:
            e("s_waitcnt vmcnt(0)")
            for j in range(0, 8, 2):
                e(f"v_mov_b64 {vr(PL + j, 2)}, {vr(PL2 + j, 2)}")
            e.loose(ldP2[0]); e.loose(ldP2[1])
        else:
            e.loose(ldP[0]); e.loose(ldP[1])
            e("s_waitcnt vmcnt(1)")
        e(f"""{'s_add_u32 s12, s12, 1' if diag else ''}
              s_sub_u32 s{S_SPIN}, s{S_SPIN}, 1
              s_cbranch_scc0 L_redP{w}_{sfx}
              s_branch L_end""")
    e.forget()
    e(f"L_hret_{sfx}:")
    for k in range(6):
        e(f"v_cmp_gt_u32 vcc, s{sStep}, v{HD}")
        ldH()
        if diag:
            e("s_add_u32 s15, s15, 1")
        e(f"s_cbranch_vccz L_{'hrel' if cfg.get('dH') is not None else 'hok'}_{sfx}")
    e(f"""s_sub_u32 s{S_SPIN}, s{S_SPIN}, 1
          s_waitcnt vmcnt(24)
          s_cbranch_scc0 L_hret_{sfx}
          s_branch L_end
          L_hrel_{sfx}:""")
    delay(e, cfg.get('dH') or 0)
    e(f"s_branch L_hok_{sfx}")
    e.forget()
    e(f"""L_flag_{sfx}:
          v_lshrrev_b32 v{C0}, 2, v{vL16}
          buffer_load_dword v{C0}, v{C0}, {W}, s{sFl} offen sc1
          s_sub_u32 s{S_SPIN}, s{S_SPIN}, 1
          s_cbranch_scc1 L_end
          v_cmp_ne_u32 {sr(sFm, 2)}, 0, v{C0}
          s_bitcmp1_b64 {sr(sFm, 2)}, s{sOK}
          s_cbranch_scc1 L_step_{sfx}
          s_branch L_flag_{sfx}""")
    e.forget()
    e(f"L_retE_{sfx}:")
    e.loose(mload(0)); e.loose(mload(1))
    e(f"""{'s_add_u32 s13, s13, 1' if diag else ''}
          s_sub_u32 s{S_SPIN}, s{S_SPIN}, 1
          s_waitcnt vmcnt(3)
          s_cbranch_scc0 L_chkE_{sfx}
          s_branch L_end""")
    e(f"L_retL_{sfx}:")
    e.loose(mload(1))
    e(f"""{'s_add_u32 s14, s14, 1' if diag else ''}
          s_sub_u32 s{S_SPIN}, s{S_SPIN}, 1
          s_cbranch_scc1 L_end
          s_bitcmp1_b32 s{sNan}, 0
          s_bitset1_b32 s{sNan}, 0
          s_waitcnt vmcnt(4)
          s_cbranch_scc0 L_retL1_{sfx}
          s_waitcnt vmcnt(1)
          L_retL1_{sfx}:""")
    e("\n".join(cl_))
    e(f"""ds_write_b128 v{vMw}, {vr(MA + 4, 4)} offset:4096
          s_cbranch_vccz L_okL_{sfx}
          s_branch L_retL_{sfx}""")


def chain_final(e, cfg):
    e.forget()
    e("L_final:")
    if cfg.get('holdend'):
        e(f"""L_hold2:
              s_memrealtime s[92:93]
              s_waitcnt lgkmcnt(0)
              s_sub_u32 s92, s92, s94
              s_cmp_lt_u32 s92, {cfg['holdend']}
              s_cbranch_scc1 L_hold2""")
    e(f"""s_add_u32 s{sExp}, s{sExp}, 4096
          buffer_store_dwordx4 {vr(EX, 4)}, v{vL16}, {W}, s{sExp} offen sc1
          v_mov_b32 v{TMP + 1}, 64
          s_waitcnt vmcnt(0) lgkmcnt(0)
          buffer_store_dword v{TMP + 1}, off, {W}, s{sFch} sc1""")
    if cfg.get('diag'):
        e(f"""s_memrealtime {sr(sDbgT + 12, 2)}
              s_lshl_b32 s{sA}, s{S_ROLE}, 2
              s_add_u32 s{sA}, s{sA}, s{S_WAVE}
              s_lshl_b32 s{sA}, s{sA}, 6
              s_add_u32 s{sA}, s{sA}, 0x6000000
              s_waitcnt lgkmcnt(0)
              s_sub_u32 s{sDbgT + 8}, s36, s{sDbgT + 6}""")
        for n, r in enumerate([sDbgT + 8, sDbgT + 5, S_SPIN, sDbgT + 14, sDbgT + 10, sDbgT + 12, 12, 13, 14, 15]):
            e(f"v_mov_b32 v{TMP + 2}, s{r}\n buffer_store_dword v{TMP + 2}, off, {W}, s{sA} offset:{4 * n}")
    dbg_max(e, cfg, 12, v=TMP + 2)
    e("s_waitcnt vmcnt(0)\n s_branch L_end")


def chain(e, cfg):
    CFG.clear(); CFG.update(cfg)
    chain_startup(e, cfg)
    chain_loop(e, cfg, 'f', '')
    chain_loop(e, cfg, 's', 'sc1')
    chain_final(e, cfg)
```

```python
import sys
from common import *
import chain3 as CH

HEADER = open('cdna_kernels/' + NAME + '.s.ref').read().split('; Override launch')[0]


def prologue(e, cfg):
    e(f"""s_cmp_ge_u32 s2, 256
          s_cbranch_scc1 L_end""")
    if cfg.get('diag') or cfg.get('holdto') or cfg.get('holdend'):
        e("s_memrealtime s[94:95]")
    e(f"""s_load_dwordx16 s[20:35], s[0:1], 0
          s_load_dwordx8 s[36:43], s[0:1], 64
          s_load_dwordx2 s[44:45], s[0:1], 96
          s_getreg_b32 s{S_XCC}, hwreg(HW_REG_XCC_ID, 0, 3)
          v_lshrrev_b32 v1, 6, v0
          v_readfirstlane_b32 s{S_WAVE}, v1
          s_mov_b32 s{S_SPIN}, {SPIN_MAX}""")
    if cfg.get('cpf', 1):
        e.comment("pull this kernel's code into the die's L2: every wave reads one word of 64 lines of it")
        e(f"""s_getpc_b64 s[50:51]
              L_pc:
              s_lshr_b32 s52, s2, 3
              s_lshl_b32 s52, s52, 15
              v_lshl_add_u32 v120, v0, 7, s52
              v_and_b32 v120, 0xffff, v120
              v_min_u32 v120, L_end - L_pc, v120
              v_mov_b32 v121, s51
              v_add_co_u32 v120, vcc, s50, v120
              v_addc_co_u32 v121, vcc, 0, v121, vcc""")
        e.loose("global_load_dword v122, v[120:121], off")
        e.vm = []
    e("s_waitcnt lgkmcnt(0)")
    srd(e, S_WS, P_WSP, WS_SIZE)
    srd(e, S_DBG, P_DBG, 256)
    dbg_max(e, cfg, 10, True, 5, 31)
    e(f"""s_lshr_b32 s50, s2, 3
          s_lshl_b32 s{S_ROLE}, s{S_XCC}, 5
          s_add_u32 s{S_ROLE}, s{S_ROLE}, s50
          s_mov_b32 s{S_CONF}, 0
          s_cmp_lg_u32 s{S_WAVE}, 0
          s_cbranch_scc1 L_dispatch
          s_lshl_b32 s51, 1, s50
          s_lshl_b32 s52, s{S_XCC}, {D_CLAIM_SH}
          v_mov_b32 v{V_CLAIM}, s51
          s_mov_b64 exec, 1
          buffer_atomic_or v{V_CLAIM}, off, {sr(S_DBG, 4)}, s52 sc0
          s_mov_b32 exec_lo, -1
          v_mov_b32 v3, 0
          v_lshlrev_b32 v4, 2, v0
          s_lshl_b32 s51, s2, 7
          s_add_u32 s51, s51, {WS_FLAG}
          buffer_store_dword v3, v4, {sr(S_WS, 4)}, s51 offen sc1
          s_mov_b64 exec, -1""")
    e.vm = []
    e.label("L_dispatch")


def reclaim(e):
    e.forget()
    e(f"""L_reclaim:
          s_mov_b32 s{S_RA}, s{S_XCC}
          s_movk_i32 s{S_SPIN}, 600
          L_rc_word:
          v_readfirstlane_b32 s{S_RB}, v{V_CLAIM}
          s_cmp_eq_u32 s{S_RB}, -1
          s_cbranch_scc0 L_rc_try
          s_add_u32 s{S_RA}, s{S_RA}, 1
          s_and_b32 s{S_RA}, s{S_RA}, 7
          s_mov_b32 s{S_RB}, 0
          L_rc_try:
          s_sub_u32 s{S_SPIN}, s{S_SPIN}, 1
          s_cselect_b32 s{S_RA}, 64, s{S_RA}
          s_cbranch_scc1 L_rc_got
          s_mov_b32 s38, s{S_RB}
          s_mov_b32 s39, s{S_RB}
          s_and_b32 s{S_RB}, s{S_ROLE}, 31
          s_add_u32 s{S_RB}, s{S_RB}, s2
          s_and_b32 s{S_RB}, s{S_RB}, 31
          s_lshr_b64 s[38:39], s[38:39], s{S_RB}
          s_ff0_i32_b32 s38, s38
          s_add_u32 s{S_RB}, s{S_RB}, s38
          s_and_b32 s{S_RB}, s{S_RB}, 31
          s_lshl_b32 s{S_RC}, 1, s{S_RB}
          v_mov_b32 v{V_CLAIM}, s{S_RC}
          s_lshl_b32 s{S_RC}, s{S_RA}, {D_CLAIM_SH}
          s_mov_b64 exec, 1
          buffer_atomic_or v{V_CLAIM}, off, {sr(S_DBG, 4)}, s{S_RC} sc0
          s_mov_b64 exec, -1
          v_readfirstlane_b32 s{S_RC}, v{V_CLAIM}
          s_bitcmp1_b32 s{S_RC}, s{S_RB}
          s_cbranch_scc1 L_rc_word
          L_rc_got:
          s_lshl_b32 s{S_RA}, s{S_RA}, 5
          s_or_b32 s{S_RA}, s{S_RA}, s{S_RB}
          v_mov_b32 v{V_CLAIM}, s{S_RA}
          v_mov_b32 v{V_CLAIM - 1}, {L_ROLE}
          ds_write_b32 v{V_CLAIM - 1}, v{V_CLAIM}
          s_waitcnt lgkmcnt(0)
          s_barrier
          L_restart:
          s_cmp_ge_u32 s{S_RA}, 256
          s_cbranch_scc1 L_end
          s_mov_b32 s{S_SPIN}, {SPIN_MAX}
          s_and_b32 s{S_ROLE}, s{S_RA}, 255
          s_mov_b32 s{S_CONF}, 1
          v_mbcnt_lo_u32_b32 v0, -1, 0
          v_mbcnt_hi_u32_b32 v0, -1, v0
          s_waitcnt vmcnt(0) lgkmcnt(0)
          s_barrier
          s_branch L_dispatch""")


def fake_worker(e, cfg):
    e(f"""s_cmp_lg_u32 s{S_WAVE}, 0
          s_cbranch_scc1 L_end
          s_waitcnt vmcnt(0)
          v_mov_b32 v2, 1
          s_mov_b64 exec, 1
          buffer_atomic_add v2, off, {sr(S_DBG, 4)}, 0 offset:{D_INIT}
          s_mov_b64 exec, -1
          s_cmp_ge_u32 s{S_ROLE}, {32 + NHH}
          s_cbranch_scc1 L_end
          L_fw_poll:
          buffer_load_dword v3, off, {sr(S_DBG, 4)}, 0 offset:{D_INIT} sc1
          s_sub_u32 s{S_SPIN}, s{S_SPIN}, 1
          s_cbranch_scc1 L_end
          v_readfirstlane_b32 s50, v3
          s_and_b32 s50, s50, 0xffff
          s_cmp_eq_u32 s50, 256
          s_cbranch_scc0 L_fw_poll
          s_sub_u32 s50, s{S_ROLE}, 32
          s_lshl_b32 s50, s50, 8
          s_add_u32 s50, s50, {F_QKV}
          v_mov_b32 v2, 1
          v_lshlrev_b32 v4, 2, v0
          buffer_store_dword v2, v4, {sr(S_WS, 4)}, s50 offen sc1
          s_waitcnt vmcnt(0)
          s_branch L_end""")


def build(cfg):
    e = Emitter()
    prologue(e, cfg)
    e(f"s_cmp_ge_u32 s{S_ROLE}, 32\n s_cbranch_scc1 L_worker")
    st = e.state()
    CH.chain(e, cfg)
    e.label("L_worker"); e.set_state(st)
    if cfg.get('fake_proj'):
        fake_worker(e, cfg)
    else:
        import workers
        workers.worker(e, cfg)
    reclaim(e)
    e.label("L_end")
    if cfg.get('dbgt'):
        e.forget()
        e("s_cmp_ge_u32 s2, 256\n s_cbranch_scc1 L_end3\n s_waitcnt vmcnt(0)")
        dbg_max(e, cfg, 13, mask=0)
        e.label("L_end3")
    if cfg.get('diag'):
        e.forget()
        e(f"""s_cmp_ge_u32 s2, 256
              s_cbranch_scc1 L_end2
              s_waitcnt vmcnt(0)
              s_memrealtime s[92:93]
              s_lshl_b32 s90, s{S_ROLE}, 2
              s_add_u32 s90, s90, s{S_WAVE}
              s_lshl_b32 s90, s90, 4
              s_add_u32 s90, s90, 0x6100000
              s_waitcnt lgkmcnt(0)
              v_mov_b32 v2, s94
              v_mov_b32 v3, s92
              v_mov_b32 v4, s88
              v_mov_b32 v5, s86
              buffer_store_dwordx4 v[2:5], off, {sr(S_WS, 4)}, s90
              L_end2:""")
    K = NAME + "_kernel"
    return HEADER + f"""; @launch grid=(256,1,1) block=(256,1,1) lds={LDS_BYTES}
.amdgcn_target "amdgcn-amd-amdhsa--gfx950"
.text
.globl {K}
.p2align 8
.type {K},@function
{K}:
""" + e.text() + f"""  s_endpgm
.section .rodata,"a"
.p2align 6
.amdhsa_kernel {K}
  .amdhsa_next_free_vgpr 512
  .amdhsa_next_free_sgpr 102
  .amdhsa_accum_offset 256
  .amdhsa_group_segment_fixed_size 0
  .amdhsa_kernarg_size 104
  .amdhsa_user_sgpr_count 2
  .amdhsa_user_sgpr_kernarg_segment_ptr 1
  .amdhsa_system_sgpr_workgroup_id_x 1
.end_amdhsa_kernel
"""


if __name__ == '__main__':
    out = sys.argv[1]
    cfg = eval(sys.argv[2]) if len(sys.argv) > 2 else {}
    open(out, 'w').write(build(cfg))
```

```python
from common import *

L_T, L_OB, L_DUMMY, L_KX, L_WL = 8192, 12544, 14592, 16384, 32768
T_PITCH = 1088
vL16, vPst, vMst, vTw, vTr, vKXr, vOw, vWL0, vWL1, vMw, vIdx, vSelC = range(12)
EX, PM, VX = 12, 16, 20
TMP = 28
MA = 32
ACC = 64
X, KXR, SPARE = 88, 104, 120
R1 = [MA + 8, MA + 16, MA + 24, X, X + 8, KXR, KXR + 8, SPARE, X, X + 8]
WO_SB = [KXR, KXR + 8, X, X + 8, ACC, ACC + 8]
(sStep, sMcur, sProg, sMtog, sG, sKl, sPst2, sKV, sC, sExp, sMcur2, sMbaseS, sPbaseS, sPbaseL, sFl, sFch, sTog, sNan,
 sA, sB) = range(50, 70)
sSel = 70
sOK, sHl, sMn2 = 78, 79, 3
sArm, sFm = 18, 98
sVx, sVt, sHs, sOK2, sG2 = 96, 97, 16, 17, 100
HV, HS, HA, HD = TMP + 2, TMP + 3, VX + 2, VX + 3
S_M0 = 84
sDbgT = 80

STREAM = [('q', 0, 0), ('q', 1, 0), ('k', 0, 0), ('k', 1, 0), ('q', 0, 1), ('q', 1, 1), ('k', 0, 1), ('k', 1, 1),
          ('q', 0, 5), ('q', 0, 7),
          ('o', 5, 0), ('o', 5, 1), ('o', 6, 0), ('o', 6, 1), ('o', 7, 0), ('o', 7, 1)]
WLPOS = {op: p for op, p in zip(STREAM[10:14], range(4))}
WLPOS.update({op: 4 + p for p, op in enumerate(STREAM[14:16] + STREAM[:10])})
ALLOPS = [(m, ft, i) for m in 'qkv' for ft in range(2) for i in range(8)] + [('o', t, kb) for t in range(8) for kb in range(2)]
RES = {}
for n, op in enumerate([o for o in ALLOPS if o not in STREAM]):
    RES[op] = ('a', 8 * n) if n < 32 else ('v', 128 + 8 * (n - 32))
PARK = {}
for n, op in enumerate(STREAM[14:16] + STREAM[:10]):
    PARK[op] = 32 + 8 * n
for n, op in enumerate(STREAM[10:14]):
    PARK[op] = 48 + 8 * n
W = sr(S_WS, 4)
CFG = {}


def wl_addr(op, half):
    p = WLPOS[op]
    off = (p >> 1) * 16384 + (p & 1) * 2048 + half * 1024
    return (vWL0, off) if off < 65536 else (vWL1, off - 65536)


def wl_write(e, op, src):
    for half in range(2):
        a, off = wl_addr(op, half)
        e(f"ds_write_b128 v{a}, {vr(src + 4 * half, 4)} offset:{off}")


def wl_lines(op, dst):
    out = []
    for half in range(2):
        a, off = wl_addr(op, half)
        out.append(f"ds_read_b128 {vr(dst + 4 * half, 4)}, v{a} offset:{off}")
    return out


def delay(e, cyc):
    if CFG.get('slp') and cyc >= 64:
        k = cyc // 64
        e(f"s_sleep {k}")
        cyc -= 64 * k
    n = cyc // 4
    while n > 0:
        k = min(n, 16)
        e(f"s_nop {k - 1}")
        n -= k


def mix(reads, other, per=3):
    out = []
    other = list(other)
    for r in reads:
        out.append(r)
        for _ in range(per):
            if other:
                out.append(other.pop(0))
    return out + other


def mload(b):
    return f"buffer_load_dwordx4 {vr(MA + 4 * b, 4)}, v{vMw}, {W}, s{sMcur if b == 0 else sMcur2} offen sc1"


def kx_dma(e, ldsbase):
    e(f"""s_lshl_b32 s{sA}, s{S_WAVE}, 11
          s_add_u32 m0, s{sA}, {ldsbase}
          buffer_load_dwordx4 v{vL16}, {W}, s{sKV} offen sc1 lds
          buffer_load_dwordx4 v{vL16}, {W}, s{sKV} offen offset:1024 sc1 lds""")


def scalar_lines():
    return [x.strip() for x in f"""s_and_b32 s{sA}, s{sStep}, 3
          s_lshl_b32 s{sA}, s{sA}, 13
          s_add_u32 s{sMcur}, s{sA}, {WS_M}
          s_add_u32 s{sMcur2}, s{sA}, {WS_M + 4096}
          s_and_b32 s{sA}, s{sA}, 0x2000
          s_add_u32 s{sMn2}, s{sMbaseS}, s{sA}
          s_lshl_b32 s{sMtog}, s{sA}, 1
          s_sub_u32 s{sVx}, s{sKV}, s{sTog}
          s_add_u32 s{sVx}, s{sVx}, {8192 - L_KX}
          s_add_u32 s{sKV}, s{sKV}, {0 if CFG.get('samekv') else UNIT}
          s_add_u32 s{sVt}, s{sKV}, 8192
          s_xor_b32 s{sA}, s{sTog}, 0x2000
          s_add_u32 m0, s{sA}, s{sKl}
          s_cmp_gt_u32 s{sStep}, 1
          s_cselect_b32 s{sA}, 4096, 0
          s_add_u32 s{sExp}, s{sExp}, s{sA}
          s_add_u32 s{sOK2}, s{sStep}, 1
          s_max_u32 s{sProg}, s{sStep}, 1
          s_sub_u32 s{sProg}, s{sProg}, 1
          s_and_b32 s{sG2}, s{sOK2}, 1""".split('\n')]


def prep_a_lines():
    other = [f"v_mov_b64 {vr(ACC + j, 2)}, 0" for j in range(0, 24, 2)] + [f"v_lshlrev_b32 v{PM + 3}, 1, v{vL16}", f"v_mov_b32 v{TMP}, s{sProg}"]
    reads = sum([wl_lines(STREAM[o], R1[o]) for o in range(3, 8)], [])
    return mix(reads, other, 2)


def prep_b_lines():
    other = [f"v_xor_b32 v{vMst}, s{sMtog}, v{vMst}"] + [f"v_xor_b32 v{TMP + p}, {p << 10}, v{vMw}" for p in range(1, 4)]
    reads = sum([wl_lines(STREAM[o], R1[o]) for o in range(3)], [])
    return mix(reads, other, 1)


def chain_startup(e, cfg):
    h = S_ROLE
    tA, tB, tC, tD = EX, EX + 1, EX + 2, EX + 3
    t0, t1, t2, t3 = TMP, TMP + 1, TMP + 2, TMP + 3
    lane = PM
    chunks = [('o', kb, Q) for kb in range(2) for Q in range(4)] + [(m, b, 0) for m in 'qkv' for b in range(8)]
    ring = {4: L_WL + 2 * 16384, 5: L_WL + 3 * 16384, 6: L_WL + 4 * 16384, 0: L_WL + 5 * 16384, 1: L_WL + 6 * 16384,
            2: L_WL + 7 * 16384, 3: 0}
    ptr = {'q': P_WQ, 'k': P_WK, 'v': P_WV, 'o': P_WO}
    sHq, sHo, sLw = sMcur, sProg, sMcur2
    cur, marks = [None], {}

    def dma(r):
        m, x, Q = chunks[r]
        if cur[0] != m:
            srd(e, S_T0, ptr[m], 0x400000); cur[0] = m
        for i in range(4):
            if m == 'o':
                row = 64 * x + 32 * (Q >> 1) + 2 * (Q & 1) + 4 * (i >> 1) + (i & 1)
                e(f"""s_add_u32 s{sA}, s{sHo}, {row * 1024}
                      s_add_u32 m0, s{sLw}, {ring[r % 7] + i * 1024}
                      buffer_load_dwordx4 v{vL16}, {sr(S_T0, 4)}, s{sA} offen lds""")
            else:
                e(f"""s_add_u32 s{sA}, s{sHq}, {(128 * (x & 3) + 64 * (x >> 2) + 4 * i) * 8192}
                      s_add_u32 m0, s{sLw}, {ring[r % 7] + i * 1024}
                      buffer_load_dwordx4 v{tA}, {sr(S_T0, 4)}, s{sA} offen lds""")
        marks[r] = e.vm[-1]

    e(f"""v_and_b32 v{lane}, 63, v0
          v_lshlrev_b32 v{vL16}, 4, v{lane}
          s_and_b32 s{sA}, s{S_WAVE}, 1
          s_lshr_b32 s{sB}, s{S_WAVE}, 1
          s_lshl_b32 s{sHo}, s{h}, 17
          s_lshl_b32 s{sLw}, s{sA}, 14
          s_add_u32 s{sHo}, s{sHo}, s{sLw}
          s_lshl_b32 s{sLw}, s{sB}, 13
          s_add_u32 s{sHo}, s{sHo}, s{sLw}
          s_lshl_b32 s{sHq}, s{h}, 8
          s_lshl_b32 s{sLw}, s{S_WAVE}, 17
          s_add_u32 s{sHq}, s{sHq}, s{sLw}
          s_lshl_b32 s{sLw}, s{S_WAVE}, 12""")
    for r in range(6):
        dma(r)
    e(f"""v_lshrrev_b32 v{t0}, 4, v{lane}
          v_and_b32 v{t1}, 15, v{lane}
          s_lshl_b32 s{sA}, s{S_WAVE}, 10
          v_add_u32 v{vMw}, s{sA}, v{vL16}
          v_lshlrev_b32 v{PM + 3}, 2, v{lane}""")
    e(f"""v_lshrrev_b32 v{t2}, 2, v{lane}
          v_lshlrev_b32 v{t2}, 12, v{t2}
          v_and_b32 v{t3}, 3, v{lane}
          v_lshl_add_u32 v{vPst}, v{t3}, 4, v{t2}""")
    e(f"""v_and_b32 v{t2}, 1, v{lane}
          v_lshlrev_b32 v{t2}, 5, v{t2}
          v_lshl_add_u32 v{t2}, v{t0}, 3, v{t2}
          v_and_b32 v{t3}, 4, v{lane}
          v_add_u32 v{t2}, v{t2}, v{t3}
          v_and_b32 v{t3}, 8, v{lane}
          v_cmp_ne_u32 {sr(sArm, 2)}, 0, v{t3}
          v_lshl_add_u32 v{t2}, v{t3}, 11, v{t2}
          v_and_b32 v{t3}, 2, v{lane}
          v_lshl_add_u32 v{vMst}, v{t3}, 29, v{t2}""")
    srd(e, S_M0, P_MEM0, 8192)
    e(f"""v_and_b32 v{t2}, 1, v{lane}
          v_lshlrev_b32 v{tD}, 10, v{t2}
          v_lshl_add_u32 v{tD}, v{t0}, 1, v{tD}
          v_bfe_u32 v{t2}, v{lane}, 2, 1
          v_lshl_add_u32 v{tD}, v{t2}, 6, v{tD}
          s_and_b32 s{sA}, s{h}, 6
          s_lshl_b32 s{sA}, s{sA}, 10
          s_lshr_b32 s{sB}, s{h}, 3
          s_lshl_b32 s{sB}, s{sB}, 8
          s_add_u32 s{sA}, s{sA}, s{sB}
          s_and_b32 s{sB}, s{S_WAVE}, 1
          s_lshl_b32 s{sB}, s{sB}, 7
          s_add_u32 s{sA}, s{sA}, s{sB}
          s_lshr_b32 s{sB}, s{S_WAVE}, 1
          s_lshl_b32 s{sB}, s{sB}, 3
          s_add_u32 s{sA}, s{sA}, s{sB}
          s_and_b32 s{sB}, s{h}, 1
          s_lshl_b32 s{sB}, s{sB}, 4
          s_add_u32 s{sA}, s{sA}, s{sB}
          buffer_load_ushort v{VX}, v{tD}, {sr(S_M0, 4)}, s{sA} offen
          buffer_load_ushort v{VX + 1}, v{tD}, {sr(S_M0, 4)}, s{sA} offen offset:32""")
    e(f"""s_lshl_b32 s{sA}, s{S_WAVE}, 8
          s_add_u32 s{sA}, s{sA}, {L_T}
          v_mul_u32_u24 v{t2}, {T_PITCH}, v{t0}
          v_lshl_add_u32 v{t2}, v{t1}, 3, v{t2}
          v_add_u32 v{vTw}, s{sA}, v{t2}
          v_and_b32 v{t3}, 3, v{lane}
          v_mul_u32_u24 v{t2}, {T_PITCH}, v{t3}
          v_lshrrev_b32 v{t3}, 5, v{lane}
          v_lshl_add_u32 v{t2}, v{t3}, 7, v{t2}
          v_bfe_u32 v{t3}, v{lane}, 2, 3
          v_lshl_add_u32 v{t2}, v{t3}, 3, v{t2}
          v_add_u32 v{vTr}, {L_T}, v{t2}
          v_lshlrev_b32 v{t2}, 9, v{t0}
          v_lshl_add_u32 v{t2}, v{t1}, 4, v{t2}
          v_add_u32 v{vKXr}, {L_KX}, v{t2}""")
    e(f"""s_lshl_b32 s{sA}, s{S_WAVE}, 9
          s_add_u32 s{sA}, s{sA}, {L_OB}
          v_lshrrev_b32 v{t2}, 5, v{lane}
          v_lshlrev_b32 v{t2}, 8, v{t2}
          v_and_b32 v{t3}, 16, v{lane}
          v_add_u32 v{t2}, v{t2}, v{t3}
          v_and_b32 v{t3}, 12, v{lane}
          v_lshl_add_u32 v{t2}, v{t3}, 4, v{t2}
          v_and_b32 v{t3}, 1, v{lane}
          v_lshl_add_u32 v{t2}, v{t3}, 5, v{t2}
          v_add_u32 v{t2}, s{sA}, v{t2}
          v_and_b32 v{t3}, 2, v{lane}
          v_lshlrev_b32 v{t3}, 12, v{t3}
          v_sub_u32 v{vOw}, v{t2}, v{t3}
          s_add_u32 s{sA}, s{sLw}, {L_WL}
          v_add_u32 v{vWL0}, s{sA}, v{vL16}
          v_add_u32 v{vWL1}, 0x10000, v{vWL0}""")
    e(f"""v_and_b32 v{t2}, 1, v{lane}
          v_cmp_ne_u32 vcc, 0, v{t2}
          v_mov_b32 v{t2}, 0x4444
          v_mov_b32 v{t3}, 0xeeee
          v_cndmask_b32 v{vIdx}, v{t2}, v{t3}, vcc
          v_mov_b32 v{t2}, 0x3f80
          v_mov_b32 v{t3}, 0x3f800000
          v_cndmask_b32 v{vSelC}, v{t2}, v{t3}, vcc
          v_lshrrev_b32 v{t2}, 1, v{t1}""")
    for j in range(4):
        e(f"v_cmp_eq_u32 {sr(sSel + 2 * j, 2)}, {j}, v{t2}")
    e(f"""v_lshlrev_b32 v{tA}, 13, v{t0}
          v_lshlrev_b32 v{t2}, 2, v{t0}
          v_xor_b32 v{t2}, v{t2}, v{t1}
          v_lshl_add_u32 v{tA}, v{t2}, 4, v{tA}""")
    e(f"""v_bfe_u32 v{t2}, v{lane}, 2, 1
          v_lshlrev_b32 v{tB}, 12, v{t2}
          v_bfe_u32 v{t2}, v{lane}, 5, 1
          v_lshl_add_u32 v{tB}, v{t2}, 10, v{tB}
          v_bfe_u32 v{t2}, v{lane}, 3, 1
          v_lshl_add_u32 v{tB}, v{t2}, 9, v{tB}
          v_bfe_u32 v{t2}, v{lane}, 4, 1
          v_lshl_add_u32 v{tB}, v{t2}, 8, v{tB}
          v_and_b32 v{t2}, 3, v{lane}
          v_lshl_add_u32 v{tB}, v{t2}, 3, v{tB}
          v_bfe_u32 v{t3}, v{tB}, 8, 2
          v_xor_b32 v{t3}, s{S_WAVE}, v{t3}
          v_lshl_add_u32 v{tB}, v{t3}, 6, v{tB}""")
    e(f"""v_lshrrev_b32 v{t3}, 2, v{lane}
          v_lshlrev_b32 v{tC}, 10, v{t3}
          v_lshl_add_u32 v{tC}, v{t2}, 3, v{tC}
          s_lshl_b32 s{sA}, s{S_WAVE}, 8
          v_add_u32 v{tC}, s{sA}, v{tC}""")
    e(f"""s_lshl_b32 s{sA}, s{S_WAVE}, 11
          s_lshl_b32 s{sB}, s{h}, 13
          s_add_u32 s{sPbaseL}, s{sA}, s{sB}
          s_add_u32 s{sPbaseL}, s{sPbaseL}, {WS_P}
          s_lshl_b32 s{sA}, s{S_WAVE}, 16
          s_lshl_b32 s{sB}, s{h}, 6
          s_add_u32 s{sPbaseS}, s{sA}, s{sB}
          s_add_u32 s{sPbaseS}, s{sPbaseS}, {WS_P}""")
    e(f"""s_and_b32 s{sA}, s{S_WAVE}, 1
          s_lshl_b32 s{sMbaseS}, s{sA}, 12
          s_and_b32 s{sA}, s{h}, 24
          s_lshl_b32 s{sA}, s{sA}, 7
          s_add_u32 s{sMbaseS}, s{sMbaseS}, s{sA}
          s_and_b32 s{sA}, s{h}, 1
          s_lshl_b32 s{sA}, s{sA}, 9
          s_add_u32 s{sMbaseS}, s{sMbaseS}, s{sA}
          s_lshr_b32 s{sA}, s{S_WAVE}, 1
          s_lshl_b32 s{sA}, s{sA}, 8
          s_add_u32 s{sMbaseS}, s{sMbaseS}, s{sA}
          s_and_b32 s{sA}, s{h}, 6
          s_lshl_b32 s{sA}, s{sA}, 5
          s_add_u32 s{sMbaseS}, s{sMbaseS}, s{sA}
          s_add_u32 s{sMbaseS}, s{sMbaseS}, {WS_M}""")
    e(f"""s_mul_i32 s{sKV}, s{h}, {64 * UNIT}
          s_lshl_b32 s{sA}, s{S_WAVE}, 11
          s_add_u32 s{sKV}, s{sKV}, s{sA}
          s_add_u32 s{sKV}, s{sKV}, {WS_QKV + 8192}
          s_lshl_b32 s{sExp}, s{h}, 18
          s_lshl_b32 s{sA}, s{S_WAVE}, 10
          s_add_u32 s{sExp}, s{sExp}, s{sA}
          s_add_u32 s{sExp}, s{sExp}, {WS_EXP}
          s_lshl_b32 s{sFl}, s{h}, 8
          s_add_u32 s{sFl}, s{sFl}, {F_QKV}
          s_lshl_b32 s{sFch}, s{h}, 7
          s_lshl_b32 s{sA}, s{S_WAVE}, 2
          s_add_u32 s{sFch}, s{sFch}, s{sA}
          s_add_u32 s{sFch}, s{sFch}, {F_CH}
          s_mov_b32 s{sC}, 0x3e0293ee
          s_add_u32 s{sPst2}, s{sPbaseS}, 4096
          s_lshl_b32 s{sKl}, s{S_WAVE}, 11
          s_add_u32 s{sKl}, s{sKl}, {L_KX}
          s_lshl_b32 s{sHl}, s{h}, 7
          s_add_u32 s{sHl}, s{sHl}, {F_HINT}
          s_lshl_b32 s{sHs}, s{h}, 2
          s_lshl_b32 s{sA}, s{S_WAVE}, 10
          s_add_u32 s{sHs}, s{sHs}, s{sA}
          s_add_u32 s{sHs}, s{sHs}, {F_HINT}
          s_mov_b32 s{sOK}, 1""")
    e(f"""v_mov_b64 {vr(VX + 4, 2)}, 0
          v_mov_b64 {vr(VX + 6, 2)}, 0
          v_mov_b32 v{VX + 2}, -1
          s_add_u32 s{sB}, s{sMbaseS}, 8192
          buffer_store_dwordx4 {vr(VX + 4, 4)}, v{vL16}, {W}, s{sPbaseL} offen sc1
          buffer_store_dwordx4 {vr(VX + 4, 4)}, v{vL16}, {W}, s{sPbaseL} offen offset:1024 sc1
          buffer_store_dword v{VX + 2}, v{vMst}, {W}, s{sB} offen sc1""")
    for j in range(4):
        e(f"v_mov_b32 v{32 + j}, {SENT1}")
    for sg in range(64 - NTAIL, 64):
        e(f"s_add_u32 s{sA}, s{sExp}, {sg * 4096}\n buffer_store_dwordx4 v[32:35], v{vL16}, {W}, s{sA} offen sc1")
    if cfg.get('sdiag'):
        e("s_memrealtime s[20:21]\n s_waitcnt lgkmcnt(0)")
    confirm_barrier(e, 'ch')
    if cfg.get('sdiag'):
        e("s_memrealtime s[22:23]\n s_waitcnt lgkmcnt(0)")
    parked = STREAM[14:16] + STREAM[:10]
    for r in range(32):
        m, x, Q = chunks[r]
        if marks[r] in e.vm:
            e.wait(vm=len(e.vm) - 1 - e.vm.index(marks[r]))
        e.wait(lgkm=0)
        e("s_barrier")
        if cfg.get('sdiag') and r in (0, 8, 16, 24, 31):
            e(f"s_memrealtime {sr({0: 24, 8: 26, 16: 28, 24: 36, 31: 40}[r], 2)}\n s_waitcnt lgkmcnt(0)")
        if r == 6:
            e.comment("publish this wave's piece of mem0 in slot 0 (and arm slot 2)")
            e(f"""v_lshl_or_b32 v{VX}, v{VX + 1}, 16, v{VX}
                  v_min_u32 v{VX}, -2, v{VX}
                  v_cndmask_b32 v{VX}, v{VX}, -1, {sr(sArm, 2)}
                  buffer_store_dword v{VX}, v{vMst}, {W}, s{sMbaseS} offen sc1""")
        if r == 12:
            e.comment("every wave's arming stores are complete: count this member as armed")
            e(f"""s_cmp_lg_u32 s{S_WAVE}, 0
                  s_cbranch_scc1 L_cs_in
                  s_cmp_lg_u32 s{S_XCC}, 0
                  s_mov_b32 s{sB}, 0x10000
                  s_cselect_b32 s{sA}, 0x1010000, s{sB}
                  v_mov_b32 v{t0}, s{sA}
                  s_mov_b64 exec, 1
                  buffer_atomic_add v{t0}, off, {sr(S_DBG, 4)}, 0 offset:{D_INIT}
                  s_mov_b64 exec, -1""")
            e.vm.pop()
            e.label("L_cs_in")
        if r + 6 < 32:
            dma(r + 6)
        if r == 8:
            for op in STREAM[10:14]:
                wl_write(e, op, PARK[op])
            e.wait(lgkm=0)
        if r == cfg.get('r1', 16):
            e(f"buffer_load_dword v{PM + 1}, off, {sr(S_DBG, 4)}, 0 offset:{D_INIT} sc1")
        if r == cfg.get('r2', 23):
            e(f"""v_readfirstlane_b32 s{sNan}, v{PM + 1}
                  buffer_load_dword v{PM + 2}, v{PM + 3}, {W}, s{sFl} offen sc1""")
            e(f"""s_add_u32 m0, s{sLw}, {L_KX + 8192}
                  s_lshr_b32 m0, m0, 1
                  s_add_u32 m0, m0, {(L_KX + 8192) // 2}
                  s_lshl_b32 s{sB}, s{h}, 10
                  s_add_u32 s{sB}, s{sB}, {WS_M}
                  buffer_load_dwordx4 v{vL16}, {W}, s{sPbaseL} offen sc1 lds
                  buffer_load_dwordx4 v{vL16}, {W}, s{sPbaseL} offen offset:1024 sc1 lds
                  buffer_load_dwordx4 v{vL16}, {W}, s{sHl} offen sc1 lds
                  buffer_load_dwordx4 v{vL16}, {W}, s{sB} offen sc1 lds""")
        if r == cfg.get('r3', 30):
            e(f"""v_cmp_ne_u32 {sr(sFm, 2)}, 0, v{PM + 2}
                  s_and_b32 s{sOK}, s{sFm}, 3
                  s_cmp_eq_u32 s{sOK}, 3
                  s_cselect_b32 s{sOK}, 1, 0
                  s_and_b32 s{sA}, s{sNan}, 0xffffff
                  s_cmp_eq_u32 s{sA}, 0x200100
                  s_cselect_b32 s{sOK}, s{sOK}, 0""")
            kx_dma(e, L_KX)
            e(f"""s_add_u32 m0, m0, 8192
                  s_add_u32 s{sA}, s{sKV}, 8192
                  buffer_load_dwordx4 v{vL16}, {W}, s{sA} offen sc1 lds
                  buffer_load_dwordx4 v{vL16}, {W}, s{sA} offen offset:1024 sc1 lds""")
        if r == 29:
            e(f"buffer_load_dword v{VX + 7}, v{PM + 3}, {W}, s{sFl} offen sc1")
        if r >= 26:
            for op in parked[2 * (r - 26):2 * (r - 26) + 2]:
                wl_write(e, op, PARK[op])
        e(f"v_add_u32 v{t1}, {ring[r % 7]}, v{tC if m == 'o' else tB}")
        if m == 'o':
            for t in range(8):
                op = ('o', t, x)
                kind, base = RES[op] if op in RES else ('v', PARK[op])
                e(f"ds_read_b64_tr_b16 {vr(base + 2 * Q, 2, kind)}, v{t1} offset:{t * 32}")
        else:
            for w in range(1, 4):
                e(f"s_cmp_eq_u32 s{S_WAVE}, {w}\n s_cbranch_scc1 L_cs{r}_{w}")
            st0 = e.state()
            for w in range(4):
                if w:
                    e.label(f"L_cs{r}_{w}"); e.set_state(st0)
                for ft in range(2):
                    op = (m, ft, 2 * ((x & 3) ^ w) + (x >> 2))
                    kind, base = RES[op] if op in RES else ('v', PARK[op])
                    for Q in range(4):
                        e(f"ds_read_b64_tr_b16 {vr(base + 2 * Q, 2, kind)}, v{t1} offset:{(32 * (Q & 1) + 8 * (Q >> 1)) * 256 + ft * 32}")
                if w < 3:
                    e(f"s_branch L_cs{r}_e")
            e.label(f"L_cs{r}_e")
    e.wait(lgkm=0)
    if cfg.get('sdiag'):
        e(f"""s_lshl_b32 s{sA}, s{S_ROLE}, 2
              s_add_u32 s{sA}, s{sA}, s{S_WAVE}
              s_lshl_b32 s{sA}, s{sA}, 6
              s_add_u32 s{sA}, s{sA}, 0x6400000""")
        for n, r in enumerate([94, 20, 22, 24, 26, 28, 36, 40, sOK]):
            e(f"v_mov_b32 v{PM}, s{r}\n buffer_store_dword v{PM}, off, {W}, s{sA} offset:{4 * n}")
    e(f"""s_cmp_lg_u32 s{sOK}, 0
          s_cbranch_scc1 L_cs_ready
          s_and_b32 s{sA}, s{sNan}, 0xffffff
          s_cmp_eq_u32 s{sA}, 0x200100
          s_cbranch_scc1 L_cs_p3
          L_cs_p1:
          buffer_load_dword v{t0}, off, {sr(S_DBG, 4)}, 0 offset:{D_INIT} sc1
          s_sub_u32 s{S_SPIN}, s{S_SPIN}, 1
          s_cbranch_scc1 L_end
          v_readfirstlane_b32 s{sNan}, v{t0}
          s_and_b32 s{sA}, s{sNan}, 0xffffff
          s_cmp_eq_u32 s{sA}, 0x200100
          s_cbranch_scc0 L_cs_p1
          L_cs_p2:
          buffer_load_dword v{VX + 7}, v{PM + 3}, {W}, s{sFl} offen sc1
          s_sub_u32 s{S_SPIN}, s{S_SPIN}, 1
          s_cbranch_scc1 L_end
          L_cs_p3:
          s_waitcnt vmcnt(0)
          v_cmp_ne_u32 {sr(sFm, 2)}, 0, v{VX + 7}
          s_and_b32 s{sA}, s{sFm}, 3
          s_cmp_eq_u32 s{sA}, 3
          s_cbranch_scc0 L_cs_p2""")
    kx_dma(e, L_KX)
    e.label("L_cs_ready")
    e(f"""v_mov_b32 v{PM + 1}, 0
          v_mov_b32 v{PM + 2}, 0
          s_mov_b32 s{sStep}, 0
          s_mov_b32 s{sTog}, 0""")
    e("\n".join(scalar_lines() + prep_a_lines()))
    for b in range(2):
        e(mload(b))
    e("\n".join(prep_b_lines()))
    dbg_max(e, cfg, 11, v=PM, mask=1)
    if cfg.get('holdto'):
        e(f"""L_hold:
              s_memrealtime s[92:93]
              s_waitcnt lgkmcnt(0)
              s_sub_u32 s92, s92, s94
              s_cmp_lt_u32 s92, {cfg['holdto']}
              s_cbranch_scc1 L_hold""")
    e("s_waitcnt vmcnt(0) lgkmcnt(0)\n s_barrier")
    if cfg.get('diag'):
        e.raw(f"  s_memtime {sr(sDbgT + 6, 2)}\n  s_memrealtime {sr(sDbgT + 10, 2)}\n  s_mov_b32 s{sDbgT + 5}, 0\n  s_mov_b32 s12, 0\n  s_mov_b32 s13, 0\n  s_mov_b32 s14, 0\n  s_mov_b32 s15, 0\n  s_waitcnt lgkmcnt(0)")
    e(f"""s_lshr_b32 s{sA}, s{sNan}, 24
          s_mov_b32 s{sNan}, 0
          s_cmp_lg_u32 s{sA}, 0
          s_cbranch_scc1 L_step_s""")
    e("s_branch L_step_s" if cfg.get('force_slow') else "s_branch L_step_f")


def chain_loop(e, cfg, sfx, st):
    acc = {('q', 0): ACC, ('q', 1): ACC + 4, ('k', 0): ACC + 8, ('k', 1): ACC + 12, ('v', 0): ACC + 16, ('v', 1): ACC + 20}
    loc = dict(RES)
    for o in range(10):
        loc[STREAM[o]] = ('v', R1[o])
    for o in range(6):
        loc[STREAM[10 + o]] = ('v', WO_SB[o])
    diag = cfg.get('diag')

    def stamp(n):
        tr = cfg.get('trace')
        if tr and n in tr:
            e.raw(f"  s_memtime {sr(20 + 2 * tr.index(n), 2)}")

    def trace_out(where, TR):
        if cfg.get('trace') and cfg.get('tpos', 'mid') == where:
            e(f"""s_memtime s[32:33]
                  s_memrealtime s[34:35]
                  s_lshl_b32 s40, s{S_ROLE}, 2
                  s_add_u32 s40, s40, s{S_WAVE}
                  s_lshl_b32 s40, s40, 6
                  s_add_u32 s40, s40, s{sStep}
                  s_lshl_b32 s40, s40, 5
                  s_add_u32 s40, s40, 0x6200000
                  s_waitcnt lgkmcnt(0)""")
            for j in range(8):
                e(f"v_mov_b32 v{TR + j}, s{20 + 2 * j}")
            e(f"""s_mov_b64 exec, 1
                  buffer_store_dwordx4 {vr(TR, 4)}, off, {W}, s40
                  buffer_store_dwordx4 {vr(TR + 4, 4)}, off, {W}, s40 offset:16
                  s_mov_b64 exec, -1""")

    def P(m, ft, i):
        k, b = loc[(m, ft, i)]
        return f"v_smfmac_f32_16x16x64_bf16 {vr(acc[(m, ft)], 4)}, {vr(MA + 4 * i, 4)}, {vr(b, 8, k)}, v{vIdx}"

    def post(a, dst):
        return [f"v_add_f32 v{a}, v{a}, v{a + 1}", f"v_add_f32 v{a + 2}, v{a + 2}, v{a + 3}",
                f"v_cvt_pk_bf16_f32 v{dst}, v{a}, v{a + 2}"]

    def xread(kb):
        return [f"ds_read_b64_tr_b16 {vr(X + 4 * kb, 2)}, v{vTr} offset:{kb * 256}",
                f"ds_read_b64_tr_b16 {vr(X + 4 * kb + 2, 2)}, v{vTr} offset:{kb * 256 + 64}"]

    kx_dst = [KXR, SPARE, KXR + 4, SPARE + 4, KXR + 8, KXR, KXR + 12, KXR + 4]

    def kxread(n):
        return f"ds_read_b128 {vr(kx_dst[n], 4)}, v{vKXr} offset:{(n >> 1) * 2048 + (n & 1) * 256}"

    Sx = [ACC, ACC + 4]
    Sm, Px = ACC + 8, ACC + 12

    def smx(n):
        kb, t = n >> 1, n & 1
        c = '0' if kb == 0 else vr(Sx[t], 4)
        return f"v_mfma_f32_16x16x32_bf16 {vr(Sx[t], 4)}, {vr(kx_dst[n], 4)}, {vr(X + 4 * kb, 4)}, {c}"

    def smm(kb):
        c = '0' if kb == 0 else vr(Sm, 4)
        return f"v_mfma_f32_16x16x32_bf16 {vr(Sm, 4)}, {vr(X + 4 * kb, 4)}, {vr(X + 4 * kb, 4)}, {c}"

    pace = cfg.get('pace', 0)
    ldH = lambda: pace and e.loose(f"buffer_load_dword v{HD}, v{HA}, {W}, s{sHl} offen sc1")
    ldV = [f"buffer_load_dwordx4 {vr(VX, 4)}, v{vKXr}, {W}, s{sVx} offen sc1",
           f"buffer_load_dwordx4 {vr(VX + 4, 4)}, v{vKXr}, {W}, s{sVx} offen offset:256 sc1"]
    ldK = [f"buffer_load_dwordx4 v{vL16}, {W}, s{sKV} offen sc1 lds",
           f"buffer_load_dwordx4 v{vL16}, {W}, s{sKV} offen offset:1024 sc1 lds"]
    touch = f"buffer_load_dword v{PM + 3}, {W}, s{sVt} offen sc1 lds"
    export = f"buffer_store_dwordx4 {vr(EX, 4)}, v{vL16}, {W}, s{sExp} offen sc1"
    progress = f"s_mov_b64 exec, 1\n buffer_store_dword v{TMP}, off, {W}, s{sFch} sc1\n s_mov_b64 exec, -1"
    ldF = f"buffer_load_dword v{TMP + 3}, v{TMP + 3}, {W}, s{sFl} offen sc1"
    if cfg.get('noexp'):
        export = progress = "s_nop 0"
    rf = sum([wl_lines(STREAM[o], R1[o]) for o in range(8, 10)], [])
    wo = sum([wl_lines(STREAM[10 + o], WO_SB[o]) for o in range(6)], [])
    q0p, q1p, k0p, k1p = post(ACC, ACC + 1), post(ACC + 4, ACC + 5), post(ACC + 8, EX), post(ACC + 12, EX + 1)
    v0p, v1p = post(ACC + 16, EX + 2), post(ACC + 20, EX + 3)
    m0, m1 = TMP, TMP + 1
    C0 = PM
    zero = [f"v_mov_b64 {vr(MA + j, 2)}, 0" for j in range(0, 32, 2)]
    st_ = lambda n: (lambda: stamp(n))
    mx = lambda d, a, b, c_: f"v_max3_f32 v{d}, v{a}, v{b}, v{c_}"

    def check(blocks):
        r = [MA + 4 * b + j for b in blocks for j in range(4)]
        out = [f"v_max3_u32 v{C0}, v{r[0]}, v{r[1]}, v{r[2]}"]
        k = 3
        while k + 1 < len(r):
            out.append(f"v_max3_u32 v{C0}, v{C0}, v{r[k]}, v{r[k + 1]}"); k += 2
        out.append(f"v_max_u32 v{C0}, v{C0}, v{r[k]}")
        out.append(f"v_cmp_eq_u32 vcc, -1, v{C0}")
        return out

    def mread(i):
        return f"ds_read_b128 {vr(MA + 4 * i, 4)}, v{TMP + (i >> 1)} offset:{(i & 1) * 4096}"

    e.slot_no = 0
    e.slot_hook = lambda n: stamp(100 + n)
    e.forget()
    e.raw(".p2align 8\n" + "  s_nop 0\n" * cfg.get('ph', 8))
    e.label(f"L_step_{sfx}")
    e("s_waitcnt vmcnt(2)")
    e.label(f"L_chkE_{sfx}")
    xe = 0
    spec = 0
    ce_ = check((0,))
    specb = []
    if spec:
        e(f"ds_write_b128 v{vMw}, {vr(MA, 4)}")
    else:
        e("\n".join(ce_))
        e(f"""ds_write_b128 v{vMw}, {vr(MA, 4)}
              s_cbranch_vccnz L_retE_{sfx}""")
    stamp(0)
    cl_ = check((1,))
    z = lambda: zero.pop(0)
    lw = lambda n: (lambda: e.wait(lgkm=n))
    seq = [
        (P('q', 0, 0), [lambda: e.loose(mload(1))] if not spec else ce_ + [f"s_cbranch_vccnz L_retE_{sfx}", lambda: e.loose(mload(1))]),
        (P('q', 1, 0), [ldV[0]]),
        (P('k', 0, 0), [ldV[1], e.barrier, mread(2), mread(4)]),
        (P('k', 1, 0), [mread(6), "s_waitcnt vmcnt(3)", cl_[0]]),
        (P('v', 0, 0), [cl_[1]]),
        (P('v', 1, 0), [cl_[2], f"ds_write_b128 v{vMw}, {vr(MA + 4, 4)} offset:4096", f"s_cbranch_vccnz L_retL_{sfx}", f"L_okL_{sfx}:"]),
        (P('q', 0, 1), [st_(1)]),
        (P('q', 1, 1), []),
        (P('k', 0, 1), [rf[0]]),
        (P('k', 1, 1), [rf[1], lw(3)]),
        (P('q', 0, 2), [rf[2]]),
        (P('q', 1, 2), [e.lds_writes_done]),
        (P('k', 0, 2), [e.barrier, ldK[0], mread(3)]),
        (P('k', 1, 2), [mread(5)]),
        (P('q', 0, 4), [mread(7), f"v_lshrrev_b32 v{TMP + 3}, 2, v{vL16}"]),
        (P('q', 1, 4), [ldK[1], f"s_movk_i32 m0, {L_DUMMY}"]),
        (P('k', 0, 4), [rf[3]]),
        (P('k', 1, 4), [touch]),
        (P('q', 0, 6), [kxread(0)]),
        (P('q', 1, 6), [kxread(2), ldF]),
        (P('k', 0, 6), ([] if xe else [export]) + [lambda: trace_out('mid', SPARE)]),
        (P('k', 1, 6), [kxread(4), st_(2), lw(3)]),
        (P('q', 0, 3), [kxread(6)]),
        (P('q', 0, 5), [kxread(1)]),
        (P('q', 0, 7), [kxread(3)]),
        (P('q', 1, 3), [lambda: e.prewait(f"v_mov_b32 v{VX + 7}, v{VX + 7}"), "s_nop 0"]),
        (P('q', 1, 5), [progress]),
        (P('q', 1, 7), ["s_nop 0", q0p[0]]),
        (P('k', 0, 3), ["s_nop 0", q0p[1]]),
        (P('k', 0, 5), ["s_nop 0", q0p[2]]),
        (P('k', 0, 7), [q1p[0]]),
        (P('k', 1, 3), ["s_nop 0", q1p[1]]),
        (P('k', 1, 5), ["s_nop 0", q1p[2]]),
        (P('k', 1, 7), [f"ds_write2_b32 v{vTw}, v{ACC + 1}, v{ACC + 5} offset0:0 offset1:32", st_(3), k0p[0]]),
        (P('v', 0, 1), ["s_nop 0", k0p[1]]),
        (P('v', 1, 1), ["s_nop 0", k0p[2], k1p[0]]),
        (P('v', 0, 2), [k1p[1], k1p[2]]),
        (P('v', 1, 2), [f"ds_write2_b32 v{vTw}, v{EX}, v{EX + 1} offset0:1 offset1:33", z()]),
        (P('v', 0, 3), [z()]),
        (P('v', 1, 3), [z()]),
        (P('v', 0, 4), [z()]),
        (P('v', 1, 4), [e.lds_writes_done, z()]),
        (P('v', 0, 5), [e.barrier] + xread(0)),
        (P('v', 1, 5), xread(1) + [z()]),
        (P('v', 0, 6), xread(2) + [z()]),
        (P('v', 0, 7), xread(3) + [z()]),
        (P('v', 1, 6), [z()]),
        (P('v', 1, 7), [st_(4), lw(4), z()]),
        (smx(0), [z(), z()]),
        (smx(2), [kxread(5), lw(1)]),
        (smx(4), [kxread(7), v0p[0]]),
        (smx(6), [v0p[1], v0p[2]]),
        (smm(0), [v1p[0], v1p[1]]),
        (smm(1), [v1p[2], z()]),
        (smm(2), [mx(m0, Sx[0], Sx[0] + 1, Sx[0] + 2)]),
        (smm(3), [z(), z()]),
        (smx(1), [lw(0), z()]),
        (smx(3), [f"v_exp_f32 v{m1}, v{vIdx}"] if cfg.get('warm', 1) == 1 else []),
        (smx(5), [mx(m0, m0, Sx[0] + 3, Sm + 2), f"v_max_f32 v{m0}, v{m0}, v{Sm + 3}"]),
        (smx(7), [wo[0], f"s_add_u32 s{sStep}, s{sStep}, 1", wo[1], f"s_xor_b32 s{sTog}, s{sTog}, 0x2000", wo[2],
                  f"s_mov_b32 s{sG}, s{sG2}", wo[3], f"v_xor_b32 v{vKXr}, 0x2000, v{vKXr}"]),
    ]
    e.slots(seq)
    assert not zero
    e(f"""{mx(m0, m0, Sx[1], Sx[1] + 1)}
          {mx(m0, m0, Sx[1] + 2, Sx[1] + 3)}
          v_mov_b32 v{m1}, v{m0}
          v_permlane32_swap_b32 v{m0}, v{m1}
          v_max_f32 v{m0}, v{m0}, v{m1}
          v_mov_b32 v{m1}, v{m0}
          v_permlane16_swap_b32 v{m0}, v{m1}
          v_max_f32 v{m0}, v{m0}, v{m1}
          v_mul_f32 v{m0}, s{sC}, v{m0}""")
    for j in (0, 2, 4, 6, 10):
        e(f"v_pk_fma_f32 {vr(ACC + j, 2)}, {vr(ACC + j, 2)}, {sr(sC, 2)}, {vr(m0, 2)} op_sel_hi:[1,0,0] neg_lo:[0,0,1] neg_hi:[0,0,1]")
    for j in (0, 1, 2, 3, 4, 5, 6, 7, 10, 11):
        e(f"v_exp_f32 v{ACC + j}, v{ACC + j}")
    stamp(5)
    for j in range(4):
        e(f"v_cvt_pk_bf16_f32 v{Px + j}, v{ACC + 2 * j}, v{ACC + 2 * j + 1}")
    e(f"""v_cvt_pk_bf16_f32 v{PM}, v{Sm + 2}, v{Sm + 3}
          v_cvt_pk_bf16_f32 v{PM + 3}, v{Sm + 2}, v{Sm + 3}
          v_pk_add_f32 {vr(ACC, 2)}, {vr(ACC, 2)}, {vr(ACC + 2, 2)}
          v_pk_add_f32 {vr(ACC + 4, 2)}, {vr(ACC + 4, 2)}, {vr(ACC + 6, 2)}
          v_pk_add_f32 {vr(ACC, 2)}, {vr(ACC, 2)}, {vr(Sm + 2, 2)}
          v_pk_add_f32 {vr(m0, 2)}, {vr(ACC, 2)}, {vr(ACC + 4, 2)}""")
    O = SPARE
    mpos = cfg.get('mpos', 'w')
    mark = ["s_mov_b64 exec, 0xff", f"buffer_store_dword v{HV}, v{HS}, {W}, s{sHs} offen {st}", "s_mov_b64 exec, -1", st_(15)]
    hsetup = [f"v_bfe_u32 v{HA}, v{vL16}, 2, 7", f"v_mov_b32 v{HD}, {cfg.get('hdef', -1)}"]
    e.slots([
        (f"v_mfma_f32_16x16x32_bf16 {vr(O, 4)}, {vr(VX, 4)}, {vr(Px, 4)}, 0",
         [f"v_add_f32 v{m0}, v{m0}, v{m1}", f"v_mov_b32 v{m1}, v{m0}"]),
        (f"v_mfma_f32_16x16x32_bf16 {vr(O + 4, 4)}, {vr(VX + 4, 4)}, {vr(Px, 4)}, 0",
         [f"v_permlane32_swap_b32 v{m0}, v{m1}"]),
        (f"v_mfma_f32_16x16x16_bf16 {vr(O, 4)}, {vr(EX + 2, 2)}, {vr(PM, 2)}, {vr(O, 4)}",
         [f"v_add_f32 v{m0}, v{m0}, v{m1}", f"v_mov_b32 v{m1}, v{m0}"]),
        (f"v_mfma_f32_16x16x16_bf16 {vr(O + 4, 4)}, {vr(EX + 2, 2)}, {vr(PM + 2, 2)}, {vr(O + 4, 4)}",
         [f"v_permlane16_swap_b32 v{m0}, v{m1}", f"v_add_f32 v{m0}, v{m0}, v{m1}", f"v_rcp_f32 v{m0}, v{m0}",
          ]),
    ])
    for j in range(0, 8, 2):
        e(f"v_pk_mul_f32 {vr(O + j, 2)}, {vr(O + j, 2)}, {vr(m0, 2)} op_sel_hi:[1,0]")
    OA = ACC + 16
    for j in range(4):
        e(f"v_cvt_pk_bf16_f32 v{O + j}, v{O + 2 * j}, v{O + 2 * j + 1}")
    e(f"ds_write_b128 v{vOw}, {vr(O, 4)}")
    if mpos == 'w' and pace:
        e("\n".join(mark[:3])); stamp(15)
    if mpos == 'p':
        e("\n".join(hsetup))
    if cfg.get('h0'):
        delay(e, cfg['h0']); ldH()
    e.barrier()
    e(f"""ds_read_b128 {vr(OA, 4)}, v{vL16} offset:{L_OB}
          ds_read_b128 {vr(OA + 4, 4)}, v{vL16} offset:{L_OB + 1024}""")
    stamp(6)
    OUT = SPARE

    def pstore(c):
        return f"buffer_store_dwordx4 {vr(OUT + 4 * c, 4)}, v{vPst}, {W}, s{sPbaseS} offen offset:{c * 2048} {st}"

    tag = lambda j: f"v_and_or_b32 v{OUT + j}, v{OUT + j}, -2, s{sG}"
    seq = []
    for t in range(8):
        for kb in range(2):
            k, b = loc[('o', t, kb)]
            if t >= 2:
                p = post(MA + 4 * (t - 2), OUT + t - 2)
                fl = p[0:1] if kb == 0 else p[1:3]
                if kb == 0 and t % 2 == 1:
                    fl = fl + [tag(t - 3)]
            else:
                fl = ["s_nop 0"]
            n = 2 * t + kb
            if 1 <= n <= 8:
                fl = [wo[3 + n]] + fl
            hc = cfg.get('hc', 10)
            if n in cfg.get('hs', (0, 2, 4, 8)) and pace:
                fl = [ldH] + [x for x in fl if x != "s_nop 0"]
            if n == hc and pace:
                fl = fl + [f"v_cmp_gt_u32 vcc, s{sStep}, v{HD}"]
            if n == hc + 1:
                fl = fl + [st_(16)] + ([f"s_cbranch_vccnz L_hret_{sfx}"] if pace else []) + [f"L_hok_{sfx}:", st_(13)]
            if kb == 0 and t == 6:
                fl = [pstore(0)] + fl
            seq.append((f"v_smfmac_f32_16x16x64_bf16 {vr(MA + 4 * t, 4)}, {vr(OA + 4 * kb, 4)}, {vr(b, 8, k)}, v{vIdx}", fl))
    e.slots(seq)
    PL, D, SEL, PL2 = MA + 8, MA + 16, MA + 20, MA + 24
    e("\n".join(post(MA + 24, OUT + 6) + [tag(6)]))
    e("\n".join(post(MA + 28, OUT + 7)))
    e(pstore(1))
    stamp(7)
    trace_out('late', MA)
    e(f"s_bitcmp1_b32 s{S_WAVE}, 0\n s_cbranch_scc1 L_x1_{sfx}")
    e.slot_hook = None
    st0 = e.state()
    ldP = [f"buffer_load_dwordx4 {vr(PL, 4)}, v{vL16}, {W}, s{sPbaseL} offen sc1",
           f"buffer_load_dwordx4 {vr(PL + 4, 4)}, v{vL16}, {W}, s{sPbaseL} offen offset:1024 sc1"]
    tP, dM, eM, gM = cfg.get('tP', (260, 380)), cfg.get('dM', (240, 120)), cfg.get('eM', 200), cfg.get('gM', (120, 120))
    for w in range(2):
        if w:
            e.raw(".p2align 6")
            e.label(f"L_x{w}_{sfx}"); e.set_state(st0)
        clk = [[12, 48][w]]
        pa = prep_a_lines()
        valu = [f"v_cndmask_b32 v{SEL + j}, 0, v{vSelC}, {sr(sSel + 2 * j, 2)}" for j in range(4)] + scalar_lines() + [l for l in pa if not l.startswith('ds_')]
        if diag:
            valu += [f"s_cmp_eq_u32 s{sStep}, 10", f"s_cselect_b32 s{sDbgT + 6}, s36, s{sDbgT + 6}"] + [f"s_cselect_b32 s{k}, 0, s{k}" for k in range(12, 16)]
        reads = [l for l in pa if l.startswith('ds_')]
        late_v = [l for l in pa if not l.startswith('ds_')]
        pool = [l for l in valu if l not in late_v]
        pool = [l for l in pool if not l.startswith('v_')] + [l for l in pool if l.startswith('v_')]
        def until(t):
            while clk[0] + 4 <= t and pool:
                e(pool.pop(0)); clk[0] += 4
            if clk[0] + 4 <= t:
                delay(e, t - clk[0]); clk[0] = t

        until(tP[w])
        e.loose(ldP[0]); e.loose(ldP[1]); stamp(11)
        ldP2 = [x.replace(vr(PL, 4), vr(PL2, 4)).replace(vr(PL + 4, 4), vr(PL2 + 4, 4)) for x in ldP]
        rest = mix(reads, pool, 2)
        nsp = cfg.get('nsp', (10, 10))[w]
        e("\n".join(rest[:nsp]))
        if nsp is not None:
            delay(e, cfg.get('dP2', (60, 40))[w])
            e.loose(ldP2[0]); e.loose(ldP2[1])
        else:
            nsp = len(rest)
        spare = cfg.get('nsp', (10, 10))[w] is not None
        e("\n".join(rest[nsp:]))
        e(f"s_mov_b32 s{sNan}, 0")
        if diag:
            e.raw("  s_memtime s[36:37]")
        ny = 2 if spare else 0
        e(f"""s_waitcnt vmcnt({ny + 1})
              L_redP{w}_{sfx}:
              v_mfma_f32_16x16x32_bf16 {vr(D, 4)}, {vr(PL, 4)}, {vr(SEL, 4)}, 0
              s_waitcnt vmcnt({ny})
              v_mfma_f32_16x16x32_bf16 {vr(D, 4)}, {vr(PL + 4, 4)}, {vr(SEL, 4)}, {vr(D, 4)}
              v_xor_b32 v{C0}, s{sG}, v{PL}
              v_bitop3_b32 v{C0}, v{C0}, v{PL + 2}, s{sG} bitop3:0xf6
              v_bitop3_b32 v{C0}, v{C0}, v{PL + 4}, s{sG} bitop3:0xf6
              v_bitop3_b32 v{C0}, v{C0}, v{PL + 6}, s{sG} bitop3:0xf6
              v_and_b32 v{C0}, 1, v{C0}
              v_cmp_ne_u32 vcc, 0, v{C0}
              v_cmp_ne_u32 {sr(sFm, 2)}, 0, v{TMP + 3}
              s_cbranch_vccnz L_reP{w}_{sfx}
              v_permlane32_swap_b32 v{D}, v{D + 2}
              v_permlane32_swap_b32 v{D + 1}, v{D + 3}
              v_add_f32 v{D}, v{D}, v{D + 2}
              v_add_f32 v{D + 1}, v{D + 1}, v{D + 3}
              v_permlane16_swap_b32 v{D}, v{D + 1}
              v_add_f32 v{D}, v{D}, v{D + 1}
              v_mov_b32_dpp v{D + 1}, v{D} quad_perm:[2,3,0,1] row_mask:0xf bank_mask:0xf
              v_cvt_pk_bf16_f32 v{D}, v{D}, v{D + 1}
              v_min_u32 v{D}, -2, v{D}
              v_cndmask_b32 v{VX + 4}, v{D}, -1, {sr(sArm, 2)}
              buffer_store_dword v{VX + 4}, v{vMst}, {W}, s{sMn2} offen {st}""")
        stamp(8)
        pb = ["s_waitcnt vmcnt(1)"] + prep_b_lines()
        d = dM[w]
        if d >= 100:
            e("\n".join(pb)); d -= 100; pb = []
        delay(e, d)
        e.loose(mload(0)); stamp(12)
        d = gM[w]
        if pb:
            pb[0] = "s_waitcnt vmcnt(2)"
            e("\n".join(pb)); d -= 100
        k = max(0, min(len(late_v), d // 4))
        e("\n".join(late_v[:k])); d -= 4 * k
        delay(e, d)
        e.loose(mload(0)); e.loose(mload(1))
        e("\n".join(late_v[k:]))
        e(f"""s_cmp_eq_u32 s{sStep}, 63
              s_cbranch_scc1 L_last_{sfx}
              s_bitcmp1_b64 {sr(sFm, 2)}, s{sOK2}
              s_waitcnt lgkmcnt(0)
              s_cbranch_scc1 L_step_{sfx}
              s_branch L_flag_{sfx}""")
        e.forget()
        e(f"L_reP{w}_{sfx}:")
        if spare:
            e("s_waitcnt vmcnt(0)")
            for j in range(0, 8, 2):
                e(f"v_mov_b64 {vr(PL + j, 2)}, {vr(PL2 + j, 2)}")
            e.loose(ldP2[0]); e.loose(ldP2[1])
        else:
            e.loose(ldP[0]); e.loose(ldP[1])
            e("s_waitcnt vmcnt(1)")
        e(f"""{'s_add_u32 s12, s12, 1' if diag else ''}
              s_sub_u32 s{S_SPIN}, s{S_SPIN}, 1
              s_cbranch_scc0 L_redP{w}_{sfx}
              s_branch L_end""")
    e.forget()
    e(f"L_hret_{sfx}:")
    for k in range(6):
        e(f"v_cmp_gt_u32 vcc, s{sStep}, v{HD}")
        ldH()
        if diag:
            e("s_add_u32 s15, s15, 1")
        e(f"s_cbranch_vccz L_{'hrel' if cfg.get('dH') is not None else 'hok'}_{sfx}")
    e(f"""s_sub_u32 s{S_SPIN}, s{S_SPIN}, 1
          s_waitcnt vmcnt(24)
          s_cbranch_scc0 L_hret_{sfx}
          s_branch L_end
          L_hrel_{sfx}:""")
    delay(e, cfg.get('dH') or 0)
    e(f"s_branch L_hok_{sfx}")
    e.forget()
    e(f"""L_flag_{sfx}:
          v_lshrrev_b32 v{C0}, 2, v{vL16}
          buffer_load_dword v{C0}, v{C0}, {W}, s{sFl} offen sc1
          s_sub_u32 s{S_SPIN}, s{S_SPIN}, 1
          s_cbranch_scc1 L_end
          v_cmp_ne_u32 {sr(sFm, 2)}, 0, v{C0}
          s_bitcmp1_b64 {sr(sFm, 2)}, s{sOK2}
          s_cbranch_scc1 L_step_{sfx}
          s_branch L_flag_{sfx}""")
    e.forget()
    e(f"L_retE_{sfx}:")
    e.loose(mload(0)); e.loose(mload(1))
    if spec:
        e(f"s_nop 3\n v_mov_b64 {vr(ACC, 2)}, 0\n v_mov_b64 {vr(ACC + 2, 2)}, 0")
    e(f"""{'s_add_u32 s13, s13, 1' if diag else ''}
          s_sub_u32 s{S_SPIN}, s{S_SPIN}, 1
          s_waitcnt vmcnt(3)
          s_cbranch_scc0 L_chkE_{sfx}
          s_branch L_end""")
    if xe:
        e(f"""L_retL_{sfx}:
              {'s_add_u32 s14, s14, 1' if diag else ''}
              s_sub_u32 s{S_SPIN}, s{S_SPIN}, 1
              s_cbranch_scc1 L_end
              s_bitcmp1_b32 s{sNan}, 0
              s_bitset1_b32 s{sNan}, 0
              s_waitcnt vmcnt(4)
              s_cbranch_scc0 L_retL1_{sfx}""")
        e.loose(mload(1))
        e(f"s_waitcnt vmcnt(0)\n L_retL1_{sfx}:")
    else:
        e(f"L_retL_{sfx}:")
        e.loose(mload(1))
        e(f"""{'s_add_u32 s14, s14, 1' if diag else ''}
              s_sub_u32 s{S_SPIN}, s{S_SPIN}, 1
              s_cbranch_scc1 L_end
              s_bitcmp1_b32 s{sNan}, 0
              s_bitset1_b32 s{sNan}, 0
              s_waitcnt vmcnt(3)
              s_cbranch_scc0 L_retL1_{sfx}
              s_waitcnt vmcnt(1)
              L_retL1_{sfx}:""")
    e("\n".join(cl_))
    e(f"""ds_write_b128 v{vMw}, {vr(MA + 4, 4)} offset:4096
          s_cbranch_vccz L_okL_{sfx}
          s_branch L_retL_{sfx}""")
    e.forget()
    e(f"L_lret_{sfx}:")
    e.loose(mload(0)); e.loose(mload(1))
    e(f"""s_sub_u32 s{S_SPIN}, s{S_SPIN}, 1
          s_cbranch_scc1 L_end
          L_last_{sfx}:
          s_waitcnt vmcnt(0) lgkmcnt(0)""")
    e("\n".join(check((0, 1))))
    e(f"""ds_write_b128 v{vMw}, {vr(MA, 4)}
          ds_write_b128 v{vMw}, {vr(MA + 4, 4)} offset:4096
          s_cbranch_vccnz L_lret_{sfx}""")
    own = [(m, ft, i) for i in (0, 1) for m in 'kv' for ft in range(2)]
    seq = [(P(*op), []) for op in own]
    seq[0][1].append(export)
    seq[3][1].extend([progress, e.barrier, mread(2), mread(3)])
    for k in range(4):
        seq[4 + k][1].append(mread(4 + k))
    seq += [(P(m, ft, i), []) for i in range(2, 6) for m in 'kv' for ft in range(2)]
    seq += [(P(m, ft, i), []) for m in 'kv' for ft in range(2) for i in (6, 7)]
    e.slots(seq)
    e("\n".join(k0p + k1p + v0p + v1p))
    e("s_branch L_final")


def chain_final(e, cfg):
    e.forget()
    e("L_final:")
    if cfg.get('holdend'):
        e(f"""L_hold2:
              s_memrealtime s[92:93]
              s_waitcnt lgkmcnt(0)
              s_sub_u32 s92, s92, s94
              s_cmp_lt_u32 s92, {cfg['holdend']}
              s_cbranch_scc1 L_hold2""")
    e(f"""s_add_u32 s{sExp}, s{sExp}, 4096
          buffer_store_dwordx4 {vr(EX, 4)}, v{vL16}, {W}, s{sExp} offen sc1
          s_waitcnt lgkmcnt(0)""")
    if cfg.get('diag'):
        e(f"""s_memrealtime {sr(sDbgT + 12, 2)}
              s_lshl_b32 s{sA}, s{S_ROLE}, 2
              s_add_u32 s{sA}, s{sA}, s{S_WAVE}
              s_lshl_b32 s{sA}, s{sA}, 6
              s_add_u32 s{sA}, s{sA}, 0x6000000
              s_waitcnt lgkmcnt(0)
              s_sub_u32 s{sDbgT + 8}, s36, s{sDbgT + 6}""")
        for n, r in enumerate([sDbgT + 8, sDbgT + 5, S_SPIN, sDbgT + 14, sDbgT + 10, sDbgT + 12, 12, 13, 14, 15]):
            e(f"v_mov_b32 v{TMP + 2}, s{r}\n buffer_store_dword v{TMP + 2}, off, {W}, s{sA} offset:{4 * n}")
    dbg_max(e, cfg, 12, v=TMP + 2)
    e("s_waitcnt vmcnt(0)\n s_branch L_end")


def chain(e, cfg):
    CFG.clear(); CFG.update(cfg)
    chain_startup(e, cfg)
    chain_loop(e, cfg, 'f', '')
    chain_loop(e, cfg, 's', 'sc1')
    chain_final(e, cfg)
```

```python
from common import *

W = sr(S_WS, 4)
DBG = sr(S_DBG, 4)
sWid, sA, sB, sC_, sD, sE, sF, sG, sH, sI, sJ, sK = range(50, 62)
S_W0, S_W1, S_W2, S_X = 64, 68, 72, 76
PS = [4]
NEG = 0xf149f2ca


def wait_init(e, tag, tmp, nap=16):
    e(f"""L_wi_{tag}:
          s_sleep {nap}
          buffer_load_dword v{tmp}, off, {DBG}, 0 offset:{D_INIT} sc1
          s_sub_u32 s{S_SPIN}, s{S_SPIN}, 1
          s_cbranch_scc1 L_end
          v_readfirstlane_b32 s{sA}, v{tmp}
          s_and_b32 s{sA}, s{sA}, 0xffff
          s_cmp_eq_u32 s{sA}, 256
          s_cbranch_scc0 L_wi_{tag}""")


def count_in(e, tmp):
    e(f"""v_mov_b32 v{tmp}, 1
          s_mov_b64 exec, 1
          buffer_atomic_add v{tmp}, off, {DBG}, 0 offset:{D_INIT}
          s_mov_b64 exec, -1""")


def srd_sel(e, s, pa, pb, na, nb):
    e(f"""s_cselect_b32 s{s}, s{pa}, s{pb}
          s_cselect_b32 s{s+1}, s{pa+1}, s{pb+1}
          s_mov_b32 s{s+2}, {nb}
          s_cselect_b32 s{s+2}, {na}, s{s+2}
          s_mov_b32 s{s+3}, 0x20000""")


def lane_consts(e, lane, l16, sig):
    e(f"""v_and_b32 v{lane}, 63, v0
          v_lshlrev_b32 v{l16}, 4, v{lane}
          v_and_b32 v{sig}, 39, v{lane}
          v_bfe_u32 v{lane + 1}, v{lane}, 3, 1
          v_lshl_or_b32 v{sig}, v{lane + 1}, 4, v{sig}
          v_bfe_u32 v{lane + 1}, v{lane}, 4, 1
          v_lshl_or_b32 v{sig}, v{lane + 1}, 3, v{sig}
          v_lshlrev_b32 v{sig}, 4, v{sig}""")


XROW = 1040
XBUF = 32 * XROW
RING0 = 33792


def proj(e, cfg):
    lane, t1, vL16, vSig, vSrc, vTr, vXr, vT, vIn = 1, 2, 3, 4, 5, 6, 7, 8, 9
    XF, ACC, OUT = 16, 32, 80
    sHH, sSeg, sStride, sCol, sUnit, sFlag, sXb, sPrev = sC_, sD, sE, sF, sG, sH, sI, sJ
    e(f"""s_mul_i32 s{sHH}, s{sWid}, 171
          s_lshr_b32 s{sHH}, s{sHH}, 10
          s_mul_i32 s{sA}, s{sHH}, 6
          s_sub_u32 s{sSeg}, s{sWid}, s{sA}
          s_cmp_lt_u32 s{sHH}, 32""")
    srd_sel(e, S_W0, P_WQ, P_AWQKV, 0x400000, 0x180000)
    srd_sel(e, S_W1, P_WK, P_AWQKV, 0x400000, 0x180000)
    srd_sel(e, S_W2, P_WV, P_AWQKV, 0x400000, 0x180000)
    srd_sel(e, S_X, P_BX, P_AX, 0x200000, 0x200000)
    e(f"""s_mov_b32 s{sStride}, 3072
          s_cselect_b32 s{sStride}, 8192, s{sStride}
          s_cselect_b32 s{sK}, 0, 1024
          s_and_b32 s{sCol}, s{sHH}, 31
          s_lshl_b32 s{sCol}, s{sCol}, 8""")
    lane_consts(e, lane, vL16, vSig)
    e(f"""v_lshrrev_b32 v{t1}, 4, v{lane}
          v_mul_lo_u32 v{vSrc}, v{t1}, s{sStride}
          v_lshlrev_b32 v{t1}, 2, v{t1}
          v_xor_b32 v{t1}, v{t1}, v{lane}
          v_and_b32 v{t1}, 15, v{t1}
          v_lshl_add_u32 v{vSrc}, v{t1}, 4, v{vSrc}""")
    e(f"""v_lshrrev_b32 v{t1}, 5, v{lane}
          v_lshlrev_b32 v{vTr}, 11, v{t1}
          v_bfe_u32 v{t1}, v{lane}, 2, 2
          v_lshl_add_u32 v{vTr}, v{t1}, 8, v{vTr}
          v_bfe_u32 v{t1}, v{lane}, 4, 1
          v_lshl_add_u32 v{vTr}, v{t1}, 5, v{vTr}
          v_and_b32 v{t1}, 3, v{lane}
          v_lshl_add_u32 v{vTr}, v{t1}, 3, v{vTr}
          v_bfe_u32 v{t1}, v{lane}, 2, 2
          v_xor_b32 v{t1}, s{S_WAVE}, v{t1}
          v_lshl_add_u32 v{vTr}, v{t1}, 6, v{vTr}""")
    e(f"""v_and_b32 v{t1}, 31, v{lane}
          v_mul_u32_u24 v{vXr}, {XROW}, v{t1}
          v_lshrrev_b32 v{t1}, 5, v{lane}
          v_lshl_add_u32 v{vXr}, v{t1}, 4, v{vXr}""")
    e(f"""s_lshl_b32 s{sA}, s{sHH}, 6
          s_add_u32 s{sA}, s{sA}, s{sSeg}
          s_mul_i32 s{sUnit}, s{sA}, {UNIT}
          s_lshl_b32 s{sB}, s{S_WAVE}, 11
          s_add_u32 s{sUnit}, s{sUnit}, s{sB}
          s_lshl_b32 s{sFlag}, s{sA}, 2
          s_add_u32 s{sFlag}, s{sFlag}, {F_QKV}
          s_mov_b32 s{sXb}, 0""")

    def xdma(seg_s, buf_s):
        e(f"""s_lshl_b32 s{sA}, s{seg_s}, 15
              s_lshl_b32 s{sB}, s{S_WAVE}, 13
              s_add_u32 s{sA}, s{sA}, s{sB}
              s_mul_i32 s{sB}, s{S_WAVE}, {8 * XROW}
              s_add_u32 s{sB}, s{sB}, s{buf_s}""")
        return [f"""s_add_u32 m0, s{sB}, {j * XROW}
                  s_add_u32 s3, s{sA}, {j * 1024}
                  buffer_load_dwordx4 v{vL16}, {sr(S_X, 4)}, s3 offen lds""" for j in range(8)]

    if cfg.get('wpf', 0):
        e.comment("the six workers of a head each request a sixth of its weights at once (one word per line)")
        e(f"""s_lshr_b32 s62, s{sSeg}, 1
              s_cmp_eq_u32 s62, 1
              s_cselect_b32 s{S_T0}, s{S_W1}, s{S_W0}
              s_cselect_b32 s{S_T0 + 1}, s{S_W1 + 1}, s{S_W0 + 1}
              s_cmp_eq_u32 s62, 2
              s_cselect_b32 s{S_T0}, s{S_W2}, s{S_T0}
              s_cselect_b32 s{S_T0 + 1}, s{S_W2 + 1}, s{S_T0 + 1}
              s_mov_b32 s{S_T0 + 2}, s{S_W0 + 2}
              s_mov_b32 s{S_T0 + 3}, 0x20000
              s_mul_i32 s62, s62, s{sK}
              s_add_u32 s62, s62, s{sCol}
              s_and_b32 s63, s{sSeg}, 1
              s_lshl_b32 s63, s63, 2
              s_add_u32 s63, s63, s{S_WAVE}
              s_lshl_b32 s63, s63, 6
              s_mul_i32 s63, s63, s{sStride}
              s_add_u32 s62, s62, s63
              v_mul_lo_u32 v{vT}, v{lane}, s{sStride}""")
        e.loose(f"buffer_load_dword v124, v{vT}, {sr(S_T0, 4)}, s62 offen")
        e.loose(f"buffer_load_dword v124, v{vT}, {sr(S_T0, 4)}, s62 offen offset:128")
    for l in xdma(sSeg, sXb):
        e(l)
    sRow = sPrev
    e(f"""s_lshl_b32 s{sA}, s{S_WAVE}, 4
          s_mul_i32 s{sRow}, s{sA}, s{sStride}
          s_add_u32 s{sRow}, s{sRow}, s{sCol}
          s_lshl_b32 s62, s{sStride}, 2
          s_lshl_b32 s63, s{S_WAVE}, 12""")
    order = [1, 2, 0]
    srds = [S_W0, S_W1, S_W2]
    dst = [('a', 0), ('a', 128), ('v', 128)]
    marks = {}

    def dma(r):
        m, b = order[r // 8], r % 8
        e(f"""s_mul_i32 s{sA}, s{sStride}, {64 * b}
              s_add_u32 s{sA}, s{sA}, s{sRow}
              s_mul_i32 s{sB}, s{sK}, {m}
              s_add_u32 s{sA}, s{sA}, s{sB}""")
        for j in range(4):
            e(f"""s_add_u32 m0, s63, {RING0 + (r % 7) * 16384 + j * 1024}
                  buffer_load_dwordx4 v{vSrc}, {sr(srds[m], 4)}, s{sA} offen lds""")
            if j < 3:
                e(f"s_add_u32 s{sA}, s{sA}, s62")
        marks[r] = e.vm[-1]

    for r in range(6):
        dma(r)
    confirm_barrier(e, 'pj')
    for r in range(24):
        m, b = order[r // 8], r % 8
        e.wait(vm=len(e.vm) - 1 - e.vm.index(marks[r]), lgkm=0)
        e("s_barrier")
        if r == 18:
            e(f"buffer_load_dword v{vT + 1}, off, {DBG}, 0 offset:{D_INIT} sc1")
        if r + 6 < 24:
            dma(r + 6)
        e(f"v_add_u32 v{vT + 2}, {RING0 + (r % 7) * 16384}, v{vTr}")
        k, base = dst[m]
        for ksl in range(4):
            for z in range(2):
                e(f"ds_read_b64_tr_b16 {vr(base + 4 * (4 * b + ksl) + 2 * z, 2, k)}, v{vT + 2} offset:{(16 * ksl + 4 * z) * 256}")
    e.wait(vm=0, lgkm=0)
    dbg_max(e, cfg, 14, v=vT + 3)
    e(f"""v_readfirstlane_b32 s{sA}, v{vT + 1}
          s_and_b32 s{sA}, s{sA}, 0xffff
          s_cmp_eq_u32 s{sA}, 256
          s_cbranch_scc1 L_pj_go""")
    wait_init(e, 'pj', vT)
    e.label("L_pj_go")
    if cfg.get('diag'):
        e("s_memrealtime s[86:87]\n s_waitcnt lgkmcnt(0)")
    e(f"s_mov_b32 s{sPrev}, 0\n v_mov_b32 v{vIn}, 1")
    e.forget()
    e.label("L_pj_loop")
    e(f"""s_waitcnt vmcnt(6)
          s_barrier
          v_add_u32 v{vT}, s{sXb}, v{vXr}
          s_add_u32 s62, s{sSeg}, 6
          s_min_u32 s62, s62, 63
          s_sub_u32 s63, {XBUF}, s{sXb}""")
    nxt = xdma(62, 63)
    for ks in range(3):
        e(f"ds_read_b128 {vr(XF + 4 * ks, 4)}, v{vT} offset:{32 * ks}")
    for ks in range(32):
        x = vr(XF + 4 * (ks % 4), 4)
        c = [('0' if ks == 0 else vr(ACC + 16 * m, 16)) for m in range(3)]
        e(f"v_mfma_f32_32x32x16_bf16 {vr(ACC, 16)}, {vr(4 * ks, 4, 'a')}, {x}, {c[0]}")
        if ks + 3 < 32:
            e(f"ds_read_b128 {vr(XF + 4 * ((ks + 3) % 4), 4)}, v{vT} offset:{32 * (ks + 3)}")
        e(f"v_mfma_f32_32x32x16_bf16 {vr(ACC + 16, 16)}, {vr(128 + 4 * ks, 4, 'a')}, {x}, {c[1]}")
        if ks < 8:
            e(nxt[ks])
        if ks == 20:
            e.comment("the previous segment's stores of every wave are complete behind this barrier: raise its flag")
            e(f"""s_waitcnt vmcnt(8)
                  s_barrier
                  s_cmp_eq_u32 s{sPrev}, 0
                  s_cbranch_scc1 L_pj_nf
                  s_mov_b64 exec, 1
                  buffer_store_dword v{vIn}, off, {W}, s{sPrev} sc1
                  s_mov_b64 exec, -1
                  L_pj_nf:""")
            e.vm.pop()
        e(f"v_mfma_f32_32x32x16_bf16 {vr(ACC + 32, 16)}, {x}, {vr(128 + 4 * ks, 4)}, {c[2]}")
    for m in range(3):
        for j in range(8):
            e(f"v_cvt_pk_bf16_f32 v{OUT + 8 * m + j}, v{ACC + 16 * m + 2 * j}, v{ACC + 16 * m + 2 * j + 1}")
        a = vSig if m == 1 else vL16
        e(f"""s_add_u32 s{sA}, s{sUnit}, {8192 * m}
              buffer_store_dwordx4 {vr(OUT + 8 * m, 4)}, v{a}, {W}, s{sA} offen sc1
              buffer_store_dwordx4 {vr(OUT + 8 * m + 4, 4)}, v{a}, {W}, s{sA} offen offset:1024 sc1""")
    e(f"""s_cmp_eq_u32 s{S_WAVE}, 0
          s_cselect_b32 s{sPrev}, s{sFlag}, 0
          s_cmp_ge_u32 s{sSeg}, 6
          s_cbranch_scc1 L_pj_later
          s_waitcnt vmcnt(0)
          s_barrier
          s_cmp_eq_u32 s{sPrev}, 0
          s_cbranch_scc1 L_pj_later
          s_mov_b64 exec, 1
          buffer_store_dword v{vIn}, off, {W}, s{sPrev} sc1
          s_mov_b64 exec, -1
          L_pj_later:
          s_add_u32 s{sFlag}, s{sFlag}, 24
          s_add_u32 s{sUnit}, s{sUnit}, {6 * UNIT}
          s_sub_u32 s{sXb}, {XBUF}, s{sXb}
          s_add_u32 s{sSeg}, s{sSeg}, 6
          s_cmp_lt_u32 s{sSeg}, 64
          s_cbranch_scc1 L_pj_loop
          s_waitcnt vmcnt(0)
          s_barrier
          s_cmp_eq_u32 s{sPrev}, 0
          s_cbranch_scc1 L_phase2
          s_mov_b64 exec, 1
          buffer_store_dword v{vIn}, off, {W}, s{sPrev} sc1
          s_mov_b64 exec, -1""")


def poll_ge(e, tag, tmp, voff, soff, cmpv, nl):
    off = f"v{voff}" if voff is not None else "off"
    e(f"""L_pg_{tag}:
          buffer_load_dword v{tmp}, {off}, {W}, {soff} {'offen' if voff is not None else ''} sc1
          s_sub_u32 s{S_SPIN}, s{S_SPIN}, 1
          s_cbranch_scc1 L_end
          v_cmp_gt_u32 vcc, {cmpv}, v{tmp}
          s_and_b32 vcc_lo, vcc_lo, {(1 << nl) - 1}
          s_cbranch_scc0 L_pk_{tag}
          s_sleep {PS[0]}
          s_branch L_pg_{tag}
          L_pk_{tag}:""")


def nap_until(e, tag, tmp, soff, need, st, unit):
    e(f"""L_nap_{tag}:
          buffer_load_dword v{tmp}, off, {W}, {soff} sc1
          s_sub_u32 s{S_SPIN}, s{S_SPIN}, 1
          s_cbranch_scc1 L_end
          v_readfirstlane_b32 s{st}, v{tmp}
          s_sub_u32 s{st}, {need}, s{st}
          s_cbranch_scc1 L_napx_{tag}
          s_cmp_eq_u32 s{st}, 0
          s_cbranch_scc1 L_napx_{tag}
          s_min_u32 s{st}, s{st}, 8
          L_napl_{tag}:
          s_sleep {unit}
          s_sub_u32 s{st}, s{st}, 1
          s_cmp_lg_u32 s{st}, 0
          s_cbranch_scc1 L_napl_{tag}
          s_branch L_nap_{tag}
          L_napx_{tag}:""")


def tstamp(e, cfg, n):
    if cfg.get('tdiag'):
        e(f"s_memrealtime {sr(20 + 2 * n, 2)}\n s_waitcnt lgkmcnt(0)")


def tdump(e, cfg):
    if cfg.get('tdiag'):
        e(f"""s_lshl_b32 s{sA}, s{S_ROLE}, 2
              s_add_u32 s{sA}, s{sA}, s{S_WAVE}
              s_lshl_b32 s{sA}, s{sA}, 5
              s_add_u32 s{sA}, s{sA}, 0x6500000""")
        for n in range(6):
            e(f"v_mov_b32 v2, s{20 + 2 * n}\n buffer_store_dword v2, off, {W}, s{sA} offset:{4 * n}")


def softmax_tail(e, vals, m0, m1, sC):
    v = list(vals)
    e(f"v_max3_f32 v{m0}, v{v[0]}, v{v[1]}, v{v[2]}")
    k = 3
    while k + 1 < len(v):
        e(f"v_max3_f32 v{m0}, v{m0}, v{v[k]}, v{v[k + 1]}"); k += 2
    if k < len(v):
        e(f"v_max_f32 v{m0}, v{m0}, v{v[k]}")
    e(f"""v_mov_b32 v{m1}, v{m0}
          v_permlane32_swap_b32 v{m0}, v{m1}
          v_max_f32 v{m0}, v{m0}, v{m1}
          v_mul_f32 v{m0}, s{sC}, v{m0}""")
    for r in v:
        e(f"v_fma_f32 v{r}, v{r}, s{sC}, -v{m0}")
    for r in v:
        e(f"v_exp_f32 v{r}, v{r}")
    e(f"v_add_f32 v{m0}, v{v[0]}, v{v[1]}\n v_add_f32 v{m1}, v{v[2]}, v{v[3]}")
    for k in range(4, len(v), 2):
        e(f"v_add_f32 v{m0}, v{m0}, v{v[k]}\n v_add_f32 v{m1}, v{m1}, v{v[k + 1]}")
    e(f"""v_add_f32 v{m0}, v{m0}, v{m1}
          v_mov_b32 v{m1}, v{m0}
          v_permlane32_swap_b32 v{m0}, v{m1}
          v_add_f32 v{m0}, v{m0}, v{m1}
          v_rcp_f32 v{m0}, v{m0}""")


def attn_b(e, cfg):
    lane, t1, vL16, vSig, vVm, vKm, vT, m0, m1, vOne, vF, vLw = range(1, 13)
    BIAS, Q, K, V, S, D0, D1, KM, VM, PX, PMm, O = 16, 32, 64, 96, 128, 144, 160, 176, 192, 208, 216, 128
    sSeg, sUnit, sExp, sOut, sFq, sFc, sFa, sCc, sLds = sC_, sD, sE, sF, sG, sH, sI, sJ, sK
    h = sWid
    lane_consts(e, lane, vL16, vSig)
    e(f"""v_and_b32 v{t1}, 31, v{lane}
          v_lshrrev_b32 v{vT}, 5, v{lane}
          v_lshlrev_b32 v{vT}, 2, v{vT}
          v_sub_u32 v{t1}, v{t1}, v{vT}
          v_mov_b32 v{vT}, {NEG}""")
    for r in range(16):
        e(f"v_cmp_gt_i32 vcc, {8 * (r >> 2) + (r & 3)}, v{t1}\n v_cndmask_b32 v{BIAS + r}, 0, v{vT}, vcc")
    e(f"""v_lshrrev_b32 v{t1}, 5, v{lane}
          v_lshlrev_b32 v{vVm}, 8, v{t1}
          v_and_b32 v{t1}, 15, v{lane}
          v_lshl_add_u32 v{vVm}, v{t1}, 4, v{vVm}
          v_bfe_u32 v{t1}, v{lane}, 4, 1
          v_lshl_add_u32 v{vVm}, v{t1}, 2, v{vVm}
          v_add_u32 v{vVm}, 8, v{vVm}""")
    e(f"""s_lshl_b32 s{sLds}, s{S_WAVE}, 12
          v_and_b32 v{t1}, 3, v{lane}
          v_lshlrev_b32 v{vKm}, 8, v{t1}
          v_lshrrev_b32 v{t1}, 5, v{lane}
          v_lshl_add_u32 v{vKm}, v{t1}, 6, v{vKm}
          v_bfe_u32 v{t1}, v{lane}, 2, 2
          v_lshl_add_u32 v{vKm}, v{t1}, 4, v{vKm}
          v_add_u32 v{vKm}, s{sLds}, v{vKm}
          v_add_u32 v{vVm}, s{sLds}, v{vVm}
          v_add_u32 v{vLw}, s{sLds}, v{vL16}
          v_and_b32 v{vF}, 3, v{lane}
          v_lshlrev_b32 v{vF}, 2, v{vF}
          v_mov_b32 v{vOne}, 1""")
    for wc in range(4):
        e(f"v_mov_b64 {vr(VM + 4 * wc + 2, 2)}, 0")
    e(f"v_mov_b64 {vr(PMm + 2, 2)}, 0")
    e(f"""s_mov_b32 s{sSeg}, s{S_WAVE}
          s_lshl_b32 s{sA}, s{h}, 6
          s_add_u32 s{sA}, s{sA}, s{sSeg}
          s_mul_i32 s{sUnit}, s{sA}, {UNIT}
          s_lshl_b32 s{sExp}, s{sA}, 12
          s_add_u32 s{sExp}, s{sExp}, {WS_EXP}
          s_lshl_b32 s{sFq}, s{sA}, 2
          s_add_u32 s{sFq}, s{sFq}, {F_QKV}
          s_lshl_b32 s{sFc}, s{h}, 7
          s_add_u32 s{sFc}, s{sFc}, {F_CH}
          s_lshl_b32 s{sA}, s{sSeg}, 5
          s_add_u32 s{sA}, s{sA}, s{h}
          s_lshl_b32 s{sOut}, s{sA}, 13
          s_add_u32 s{sOut}, s{sOut}, {WS_OF}
          s_lshr_b32 s{sFa}, s{sA}, 3
          s_lshl_b32 s{sFa}, s{sFa}, 7
          s_and_b32 s{sA}, s{h}, 7
          s_lshl_b32 s{sA}, s{sA}, 2
          s_add_u32 s{sFa}, s{sFa}, s{sA}
          s_add_u32 s{sFa}, s{sFa}, {F_AT}
          s_mov_b32 s{sCc}, 0x3e0293ee""")
    e.wait(vm=0, lgkm=0)
    e.label("L_ab_loop")
    poll_ge(e, 'abq', vT, None, f"s{sFq}", 1, 1)
    e(f"s_add_u32 s{sA}, s{sUnit}, 4096")
    for base, a, off in ((K, vSig, 8192), (Q, vL16, 0), (V, vL16, 16384)):
        e(f"s_add_u32 s{sA}, s{sUnit}, {off}\n s_add_u32 s{sB}, s{sUnit}, {off + 4096}")
        for j in range(8):
            e(f"buffer_load_dwordx4 {vr(base + 4 * j, 4)}, v{a}, {W}, s{sA if j < 4 else sB} offen offset:{1024 * (j & 3)} sc1")
    for j in range(8):
        c = vr(BIAS, 16) if j == 0 else vr(S, 16)
        e(f"v_mfma_f32_32x32x16_bf16 {vr(S, 16)}, {vr(K + 4 * j, 4)}, {vr(Q + 4 * j, 4)}, {c}")
    e(f"""s_add_u32 s{sA}, s{sSeg}, 1
          s_sub_u32 s62, s{sSeg}, 1
          s_min_u32 s62, s62, 61
          s_cmp_ge_u32 s{sSeg}, {64 - NTAIL}
          s_cselect_b32 s{sA}, s62, s{sA}
          s_sub_u32 s62, s{sA}, 1""")
    e.wait(vm=0)
    if cfg.get('nap', 1):
        nap_until(e, 'ab', vT, f"s{sFc}", "s62", sB, cfg.get('napu', 24))
    poll_ge(e, 'abc', vT, vF, f"s{sFc}", f"s{sA}", 4)
    e(f"s_mov_b32 s62, {SENT1}\n s_branch L_ab_ex1\n L_ab_ex:\n s_sleep {cfg.get('exs', 0)}\n L_ab_ex1:")
    for j in range(4):
        e(f"buffer_load_dwordx4 {vr(D0 + 4 * j, 4)}, v{vL16}, {W}, s{sExp} offen offset:{1024 * j} sc1")
    e(f"s_sub_u32 s{S_SPIN}, s{S_SPIN}, 1\n s_cbranch_scc1 L_end")
    for j in range(16):
        e(f"v_xor_b32 v{D1 + j}, s62, v{D0 + j}")
    for j in range(4):
        e(f"ds_write_b128 v{vLw}, {vr(D0 + 4 * j, 4)} offset:{1024 * j}")
    e(f"v_min3_u32 v{vT}, v{D1}, v{D1 + 1}, v{D1 + 2}")
    for j in range(3, 15, 2):
        e(f"v_min3_u32 v{vT}, v{vT}, v{D1 + j}, v{D1 + j + 1}")
    e(f"""v_min_u32 v{vT}, v{vT}, v{D1 + 15}
          v_cmp_eq_u32 vcc, 0, v{vT}
          s_waitcnt lgkmcnt(0)
          s_cbranch_vccnz L_ab_ex""")
    tstamp(e, cfg, 0)
    for wc in range(4):
        e(f"ds_read2st64_b32 {vr(VM + 4 * wc, 2)}, v{vVm} offset0:{4 * wc} offset1:{4 * wc + 2}")
    for wc in range(4):
        for z in range(2):
            e(f"ds_read_b64_tr_b16 {vr(KM + 4 * wc + 2 * z, 2)}, v{vKm} offset:{1024 * wc + 128 * z}")
    for wc in range(4):
        for ab, D in ((0, D0), (1, D1)):
            c = '0' if wc == 0 else vr(D, 16)
            e(f"v_mfma_f32_32x32x16_bf16 {vr(D, 16)}, {vr(KM + 4 * wc, 4)}, {vr(Q + 4 * (2 * wc + ab), 4)}, {c}")
    sm = [D0, D0 + 1, D0 + 4, D0 + 5]
    for r in sm:
        e(f"v_add_f32 v{r}, v{r}, v{r - D0 + D1 + 2}")
    tstamp(e, cfg, 1)
    softmax_tail(e, [S + r for r in range(16)] + sm, m0, m1, sCc)
    tstamp(e, cfg, 2)
    for j in range(8):
        e(f"v_cvt_pk_bf16_f32 v{PX + j}, v{S + 2 * j}, v{S + 2 * j + 1}")
    e(f"v_cvt_pk_bf16_f32 v{PMm}, v{D0}, v{D0 + 1}\n v_cvt_pk_bf16_f32 v{PMm + 1}, v{D0 + 4}, v{D0 + 5}")
    for wc in range(4):
        o = vr(O + 16 * wc, 16)
        e(f"""v_mfma_f32_32x32x16_bf16 {o}, {vr(V + 8 * wc, 4)}, {vr(PX, 4)}, 0
              v_mfma_f32_32x32x16_bf16 {o}, {vr(V + 8 * wc + 4, 4)}, {vr(PX + 4, 4)}, {o}
              v_mfma_f32_32x32x16_bf16 {o}, {vr(VM + 4 * wc, 4)}, {vr(PMm, 4)}, {o}""")
    e(f"s_add_u32 s{sB}, s{sOut}, 4096")
    for wc in range(4):
        o = O + 16 * wc
        for j in range(16):
            e(f"v_mul_f32 v{o + j}, v{o + j}, v{m0}")
        for j in range(8):
            e(f"v_cvt_pk_bf16_f32 v{Q + 8 * wc + j}, v{o + 2 * j}, v{o + 2 * j + 1}")
        for ab in range(2):
            j = 2 * wc + ab
            e(f"buffer_store_dwordx4 {vr(Q + 4 * j, 4)}, v{vL16}, {W}, s{sOut if j < 4 else sB} offen offset:{1024 * (j & 3)} sc1")
    tstamp(e, cfg, 3)
    e("s_waitcnt vmcnt(0)")
    tstamp(e, cfg, 4)
    e(f"""s_mov_b64 exec, 1
          buffer_store_dword v{vOne}, off, {W}, s{sFa} sc1
          s_mov_b64 exec, -1
          s_add_u32 s{sUnit}, s{sUnit}, {4 * UNIT}
          s_add_u32 s{sExp}, s{sExp}, {4 * 4096}
          s_add_u32 s{sFq}, s{sFq}, 16
          s_add_u32 s{sOut}, s{sOut}, {4 * 32 * 8192}
          s_add_u32 s{sFa}, s{sFa}, {4 * 512}
          s_add_u32 s{sSeg}, s{sSeg}, 4
          s_cmp_lt_u32 s{sSeg}, 64
          s_cbranch_scc1 L_ab_loop""")
    tdump(e, cfg)
    e("s_branch L_end")


def out_b(e, cfg):
    lane, t1, vL16, vSrc, vTr, vO, vSt, vT, vF, vRw, vRr = range(1, 12)
    ACC, RD = 16, 32
    sU, sSl, sRow, sLds, sOf, sFa, sTog = sC_, sD, sE, sF, sG, sH, sI
    sHi = 72
    srd(e, S_W0, P_WO, 0x400000)
    srd(e, S_W1, P_OUT, 0x400000)
    e(f"""s_sub_u32 s{sU}, s{sWid}, 64
          s_and_b32 s{sSl}, s{sU}, 15
          s_lshr_b32 s{sU}, s{sU}, 4
          s_cmp_ge_u32 s{sU}, {cfg.get('ng', 10)}
          s_cbranch_scc1 L_end
          v_and_b32 v{lane}, 63, v0
          v_lshlrev_b32 v{vL16}, 4, v{lane}
          v_and_b32 v{vF}, 7, v{lane}
          v_lshlrev_b32 v{vF}, 2, v{vF}""")
    e(f"""v_lshrrev_b32 v{t1}, 2, v{lane}
          v_lshlrev_b32 v{vSrc}, 10, v{t1}
          v_and_b32 v{t1}, 3, v{lane}
          v_lshl_add_u32 v{vSrc}, v{t1}, 4, v{vSrc}
          s_lshl_b32 s{sRow}, s{S_WAVE}, 20
          s_lshl_b32 s{sA}, s{sSl}, 6
          s_add_u32 s{sRow}, s{sRow}, s{sA}
          s_lshl_b32 s{sLds}, s{S_WAVE}, 15""")
    e(f"""v_lshlrev_b32 v{vTr}, 3, v{t1}
          v_lshrrev_b32 v{t1}, 5, v{lane}
          v_lshl_add_u32 v{vTr}, v{t1}, 10, v{vTr}
          v_bfe_u32 v{t1}, v{lane}, 2, 3
          v_lshl_add_u32 v{vTr}, v{t1}, 6, v{vTr}
          v_add_u32 v{vTr}, s{sLds}, v{vTr}""")
    e(f"""v_lshrrev_b32 v{t1}, 4, v{lane}
          v_lshlrev_b32 v{vO}, 9, v{t1}
          v_lshlrev_b32 v{vSt}, 3, v{t1}
          v_and_b32 v{t1}, 7, v{lane}
          v_lshl_add_u32 v{vO}, v{t1}, 4, v{vO}
          v_lshl_add_u32 v{vSt}, v{t1}, 11, v{vSt}
          v_and_b32 v{t1}, 8, v{lane}
          v_cmp_ne_u32 {sr(sHi, 2)}, 0, v{t1}
          v_lshl_add_u32 v{vO}, v{t1}, 8, v{vO}
          v_lshl_add_u32 v{vSt}, v{t1}, 27, v{vSt}
          s_lshl_b32 s{sA}, s{S_WAVE}, 11
          s_add_u32 s{sA}, s{sA}, 131072
          v_add_u32 v{vRw}, s{sA}, v{vL16}
          s_lshl_b32 s{sA}, s{S_WAVE}, 10
          s_add_u32 s{sA}, s{sA}, 131072
          v_add_u32 v{vRr}, s{sA}, v{vL16}""")
    e.wait(vm=0, lgkm=0)
    e("s_barrier")
    marks = {}

    def dma(ks):
        for j in range(2):
            e(f"""s_add_u32 m0, s{sLds}, {(ks % 16) * 2048 + j * 1024}
                  s_add_u32 s{sA}, s{sRow}, {(32 * ks + 16 * j) * 1024}
                  buffer_load_dwordx4 v{vSrc}, {sr(S_W0, 4)}, s{sA} offen lds""")
        marks[ks] = e.vm[-1]

    for ks in range(15):
        dma(ks)
    for ks in range(32):
        e.wait(vm=len(e.vm) - 1 - e.vm.index(marks[ks]), lgkm=0)
        if ks + 15 < 32:
            dma(ks + 15)
        for dt in range(2):
            for z in range(2):
                e(f"ds_read_b64_tr_b16 {vr(8 * ks + 4 * dt + 2 * z, 2, 'a')}, v{vTr} offset:{(ks % 16) * 2048 + z * 512 + dt * 32}")
    e.wait(vm=0, lgkm=0)
    e(f"s_mov_b32 s{sTog}, 0")
    e.label("L_ob_loop")
    e(f"""s_lshr_b32 s{sA}, s{sU}, 2
          s_lshl_b32 s{sA}, s{sA}, 5
          s_lshl_b32 s{sB}, s{S_WAVE}, 3
          s_add_u32 s{sA}, s{sA}, s{sB}
          s_lshl_b32 s{sFa}, s{sA}, 4
          s_add_u32 s{sFa}, s{sFa}, {F_AT}
          s_lshl_b32 s{sOf}, s{sA}, 13
          s_and_b32 s{sB}, s{sU}, 3
          s_lshl_b32 s{sB}, s{sB}, 7
          s_add_u32 s{sOf}, s{sOf}, s{sB}
          s_add_u32 s{sOf}, s{sOf}, {WS_OF}""")
    if cfg.get('nap', 1):
        e(f"""s_lshr_b32 s62, s{sU}, 2
              s_add_u32 s62, s62, 1
              s_min_u32 s62, s62, {64 - NTAIL}
              s_and_b32 s63, s{sWid}, 31
              s_lshl_b32 s63, s63, 7
              s_add_u32 s63, s63, {F_CH}""")
        nap_until(e, 'ob', vT, "s63", "s62", sB, cfg.get('napu', 24))
    poll_ge(e, 'ob', vT, vF, f"s{sFa}", 1, 8)
    tstamp(e, cfg, 0)
    for j in range(16):
        e(f"s_add_u32 s{sA}, s{sOf}, {j * 4096}\n buffer_load_dwordx4 {vr(128 + 4 * j, 4)}, v{vO}, {W}, s{sA} offen sc1")
    for ks in range(32):
        for dt in range(2):
            a = ACC + 8 * (ks & 1) + 4 * dt
            c = '0' if ks < 2 else vr(a, 4)
            e(f"v_mfma_f32_16x16x32_bf16 {vr(a, 4)}, {vr(8 * ks + 4 * dt, 4, 'a')}, {vr(128 + 4 * (ks >> 1), 4)}, {c}")
    for r in range(8):
        e(f"v_cndmask_b32 v{ACC + r}, v{ACC + r}, v{ACC + 8 + r}, {sr(sHi, 2)}")
    tstamp(e, cfg, 1)
    e(f"""v_add_u32 v{vT}, s{sTog}, v{vRw}
          ds_write_b128 v{vT}, {vr(ACC, 4)}
          ds_write_b128 v{vT}, {vr(ACC + 4, 4)} offset:1024""")
    e.barrier()
    e(f"""s_cmp_ge_u32 s{S_WAVE}, 2
          s_cbranch_scc1 L_ob_next
          v_add_u32 v{vT}, s{sTog}, v{vRr}""")
    for p in range(4):
        e(f"ds_read_b128 {vr(RD + 4 * p, 4)}, v{vT} offset:{2048 * p}")
    for r in range(4):
        e(f"""v_add_f32 v{RD + r}, v{RD + r}, v{RD + 4 + r}
              v_add_f32 v{RD + 8 + r}, v{RD + 8 + r}, v{RD + 12 + r}
              v_add_f32 v{RD + r}, v{RD + r}, v{RD + 8 + r}""")
    for r in range(4):
        e(f"v_add_f32_dpp v{RD + r}, v{RD + r}, v{RD + r} row_ror:8 row_mask:0xf bank_mask:0xf")
    e(f"""v_cvt_pk_bf16_f32 v{RD}, v{RD}, v{RD + 1}
          v_cvt_pk_bf16_f32 v{RD + 1}, v{RD + 2}, v{RD + 3}
          s_lshl_b32 s{sA}, s{sU}, 14
          s_lshl_b32 s{sB}, s{sSl}, 6
          s_add_u32 s{sA}, s{sA}, s{sB}
          s_lshl_b32 s{sB}, s{S_WAVE}, 5
          s_add_u32 s{sA}, s{sA}, s{sB}
          buffer_store_dwordx2 {vr(RD, 2)}, v{vSt}, {sr(S_W1, 4)}, s{sA} offen offset:1024 {cfg.get('ost', '')}
          L_ob_next:
          s_xor_b32 s{sTog}, s{sTog}, 8192
          s_add_u32 s{sU}, s{sU}, {cfg.get('ng', 10)}
          s_cmp_lt_u32 s{sU}, 256
          s_cbranch_scc1 L_ob_loop""")
    tstamp(e, cfg, 2)
    tdump(e, cfg)
    e("s_branch L_end")


def part_a(e, cfg):
    lane, t1, vL16, vSig, vSrc, vTr, vT, m0, m1, vSt, vW, vNeg = range(1, 13)
    BC, BP, BPX = 16, 32, 48
    SC, SP, O, PX = 64, 80, 96, 112
    Q, KC, KP, VC, VP = 128, 160, 192, 224, 48
    sSeg, sCh, sUnit, sPrevU, sFq, sCc, sRow = sC_, sD, sE, sF, sG, sH, sI
    srd(e, S_W0, P_AWO, 0x80000)
    srd(e, S_W1, P_OUT, 0x400000)
    lane_consts(e, lane, vL16, vSig)
    e(f"""s_sub_u32 s{sSeg}, s{sWid}, 32
          s_and_b32 s{sCh}, s{sSeg}, 1
          s_lshr_b32 s{sSeg}, s{sSeg}, 1
          s_mov_b32 s{sCc}, 0x3eb8aa3b""")
    e(f"""v_and_b32 v{t1}, 31, v{lane}
          v_lshrrev_b32 v{vT}, 5, v{lane}
          v_lshlrev_b32 v{vT}, 2, v{vT}
          v_sub_u32 v{t1}, v{t1}, v{vT}
          v_mov_b32 v{vNeg}, {NEG}""")
    for base, add in ((BC, 0), (BP, 32)):
        for r in range(16):
            e(f"""v_add_u32 v{vT}, {add - 8 * (r >> 2) - (r & 3)}, v{t1}
                  v_and_b32 v{vT}, 0xfffffff1, v{vT}
                  v_cmp_ne_u32 vcc, 0, v{vT}
                  v_cndmask_b32 v{base + r}, 0, v{vNeg}, vcc""")
    e(f"""v_lshrrev_b32 v{t1}, 5, v{lane}
          v_lshlrev_b32 v{vSrc}, 10, v{t1}
          v_and_b32 v{t1}, 31, v{lane}
          v_lshl_add_u32 v{vSrc}, v{t1}, 4, v{vSrc}
          v_lshlrev_b32 v{vSt}, 11, v{t1}
          s_lshl_b32 s{sRow}, s{S_WAVE}, 13
          s_lshl_b32 s{sA}, s{sCh}, 9
          s_add_u32 s{sRow}, s{sRow}, s{sA}
          s_lshl_b32 s63, s{S_WAVE}, 12""")
    e(f"""v_lshrrev_b32 v{t1}, 5, v{lane}
          v_lshlrev_b32 v{vTr}, 11, v{t1}
          v_lshl_add_u32 v{vSt}, v{t1}, 3, v{vSt}
          v_bfe_u32 v{t1}, v{lane}, 2, 2
          v_lshl_add_u32 v{vTr}, v{t1}, 9, v{vTr}
          v_bfe_u32 v{t1}, v{lane}, 4, 1
          v_lshl_add_u32 v{vTr}, v{t1}, 5, v{vTr}
          v_and_b32 v{t1}, 3, v{lane}
          v_lshl_add_u32 v{vTr}, v{t1}, 3, v{vTr}
          s_lshl_b32 s{sA}, s{S_WAVE}, 7
          v_add_u32 v{vTr}, s{sA}, v{vTr}
          s_lshl_b32 s{sA}, s{S_WAVE}, 13
          v_add_u32 v{vW}, s{sA}, v{vL16}""")
    e.wait(vm=0, lgkm=0)
    e("s_barrier")
    marks = {}

    def dma(r):
        for j in range(4):
            e(f"""s_add_u32 m0, s63, {(r % 8) * 16384 + j * 1024}
                  s_add_u32 s{sA}, s{sRow}, {(32 * r + 2 * j) * 1024}
                  buffer_load_dwordx4 v{vSrc}, {sr(S_W0, 4)}, s{sA} offen lds""")
        marks[r] = e.vm[-1]

    for r in range(7):
        dma(r)
    for r in range(16):
        e.wait(vm=len(e.vm) - 1 - e.vm.index(marks[r]), lgkm=0)
        e("s_barrier")
        if r + 7 < 16:
            dma(r + 7)
        e(f"v_add_u32 v{vT}, {(r % 8) * 16384}, v{vTr}")
        for hl in range(2):
            for dt in range(2):
                for z in range(2):
                    e(f"ds_read_b64_tr_b16 {vr(8 * (2 * r + hl) + 4 * dt + 2 * z, 2, 'a')}, v{vT} offset:{(16 * hl + 8 * z) * 512 + dt * 64}")
    e.wait(vm=0, lgkm=0)
    e.label("L_pa_loop")
    e(f"""s_add_u32 s{sA}, s{S_WAVE}, 32
          s_lshl_b32 s{sA}, s{sA}, 6
          s_add_u32 s{sA}, s{sA}, s{sSeg}
          s_mul_i32 s{sUnit}, s{sA}, {UNIT}
          s_lshl_b32 s{sFq}, s{sA}, 2
          s_add_u32 s{sFq}, s{sFq}, {F_QKV}
          s_cmp_eq_u32 s{sSeg}, 0
          s_cselect_b32 s{sA}, 0, {UNIT}
          s_cselect_b32 s{sB}, 0, 4
          s_cselect_b64 vcc, -1, 0
          s_sub_u32 s{sPrevU}, s{sUnit}, s{sA}
          s_sub_u32 s62, s{sFq}, s{sB}""")
    for r in range(8, 16):
        e(f"v_cndmask_b32 v{BP + r - 8}, v{BP + r}, v{vNeg}, vcc")
    poll_ge(e, 'pa1', vT, None, f"s{sFq}", 1, 1)
    poll_ge(e, 'pa2', vT, None, "s62", 1, 1)
    for base, a, u, off in ((Q, vL16, sUnit, 0), (KC, vSig, sUnit, 8192), (KP, vSig, sPrevU, 8192), (VC, vL16, sUnit, 16384)):
        e(f"s_add_u32 s{sA}, s{u}, {off}\n s_add_u32 s{sB}, s{u}, {off + 4096}")
        for j in range(8):
            e(f"buffer_load_dwordx4 {vr(base + 4 * j, 4)}, v{a}, {W}, s{sA if j < 4 else sB} offen offset:{1024 * (j & 3)} sc1")
    e(f"s_add_u32 s{sA}, s{sPrevU}, {16384 + 1024}\n s_add_u32 s{sB}, s{sPrevU}, {16384 + 1024 + 4096}")
    for wc in range(4):
        e(f"buffer_load_dwordx4 {vr(VP + 4 * wc, 4)}, v{vL16}, {W}, s{sA if wc < 2 else sB} offen offset:{2048 * (wc & 1)} sc1")
    e("s_barrier")
    for j in range(8):
        wc, ab = j >> 1, j & 1
        e(f"""v_mfma_f32_32x32x16_bf16 {vr(SC, 16)}, {vr(KC + 4 * j, 4)}, {vr(Q + 4 * j, 4)}, {vr(BC, 16)}
              v_mfma_f32_32x32x16_bf16 {vr(SP, 16)}, {vr(KP + 4 * j, 4)}, {vr(Q + 4 * j, 4)}, {vr(BP - 8, 16)}""")
        softmax_tail(e, [SC + r for r in range(16)] + [SP + r for r in range(8, 16)], m0, m1, sCc)
        for k in range(8):
            e(f"v_cvt_pk_bf16_f32 v{PX + k}, v{SC + 2 * k}, v{SC + 2 * k + 1}")
        for k in range(4):
            e(f"v_cvt_pk_bf16_f32 v{PX + 8 + k}, v{SP + 8 + 2 * k}, v{SP + 8 + 2 * k + 1}")
        o = vr(O, 16)
        e(f"""v_mfma_f32_32x32x16_bf16 {o}, {vr(VC + 8 * wc, 4)}, {vr(PX, 4)}, 0
              v_mfma_f32_32x32x16_bf16 {o}, {vr(VC + 8 * wc + 4, 4)}, {vr(PX + 4, 4)}, {o}
              v_mfma_f32_32x32x16_bf16 {o}, {vr(VP + 4 * wc, 4)}, {vr(PX + 8, 4)}, {o}""")
        for k in range(8):
            e(f"v_mul_f32 v{O + 8 * ab + k}, v{O + 8 * ab + k}, v{m0}")
        for k in range(4):
            e(f"v_cvt_pk_bf16_f32 v{124 + k}, v{O + 8 * ab + 2 * k}, v{O + 8 * ab + 2 * k + 1}")
        e(f"ds_write_b128 v{vW}, {vr(124, 4)} offset:{1024 * j}")
    e.barrier()
    for hd in range(32):
        e(f"ds_read_b128 {vr(128 + 4 * hd, 4)}, v{vL16} offset:{1024 * hd}")
        if hd >= 8:
            k = hd - 8
            for dt in range(2):
                c = '0' if k == 0 else vr(SC + 16 * dt, 16)
                e(f"v_mfma_f32_32x32x16_bf16 {vr(SC + 16 * dt, 16)}, {vr(8 * k + 4 * dt, 4, 'a')}, {vr(128 + 4 * k, 4)}, {c}")
    for k in range(24, 32):
        for dt in range(2):
            e(f"v_mfma_f32_32x32x16_bf16 {vr(SC + 16 * dt, 16)}, {vr(8 * k + 4 * dt, 4, 'a')}, {vr(128 + 4 * k, 4)}, {vr(SC + 16 * dt, 16)}")
    e(f"""s_lshl_b32 s{sA}, s{sSeg}, 16
          s_lshl_b32 s{sB}, s{sCh}, 9
          s_add_u32 s{sA}, s{sA}, s{sB}
          s_lshl_b32 s{sB}, s{S_WAVE}, 7
          s_add_u32 s{sA}, s{sA}, s{sB}""")
    for dt in range(2):
        for a in range(4):
            r = SC + 16 * dt + 4 * a
            d = O + 2 * (4 * dt + a)
            e(f"""v_cvt_pk_bf16_f32 v{d}, v{r}, v{r + 1}
                  v_cvt_pk_bf16_f32 v{d + 1}, v{r + 2}, v{r + 3}
                  buffer_store_dwordx2 {vr(d, 2)}, v{vSt}, {sr(S_W1, 4)}, s{sA} offen offset:{64 * dt + 16 * a} {cfg.get('ost', '')}""")
    e(f"""s_add_u32 s{sSeg}, s{sSeg}, 16
          s_cmp_lt_u32 s{sSeg}, 64
          s_cbranch_scc1 L_pa_loop
          s_branch L_end""")


def worker(e, cfg):
    PS[0] = cfg.get('ps', 4)
    e(f"""s_sub_u32 s{sWid}, s{S_ROLE}, 32
          s_cmp_lt_u32 s{sWid}, 216
          s_cbranch_scc1 L_proj""")
    st = e.state()
    e("s_waitcnt vmcnt(0)")
    confirm_barrier(e, 'sp')
    wait_init(e, 'sp', 3, 127)
    e("s_branch L_phase2")
    e.label("L_proj"); e.set_state(st)
    proj(e, cfg)
    e.label("L_phase2")
    dbg_max(e, cfg, 15, v=12)
    if cfg.get('diag'):
        e("s_memrealtime s[88:89]\n s_waitcnt lgkmcnt(0)")
    if cfg.get('nophase2'):
        e("s_branch L_end")
    e(f"""s_cmp_lt_u32 s{sWid}, 32
          s_cbranch_scc1 L_attn_b
          s_cmp_lt_u32 s{sWid}, 64
          s_cbranch_scc1 L_part_a""")
    st = e.state()
    out_b(e, cfg)
    e.label("L_attn_b"); e.set_state(st)
    attn_b(e, cfg)
    e.label("L_part_a"); e.set_state(st)
    part_a(e, cfg)
```

```python
import sys
from common import *
import chain3 as CH

HEADER = open('cdna_kernels/' + NAME + '.s.ref').read().split('; Override launch')[0]


def prologue(e, cfg):
    e(f"""s_cmp_ge_u32 s2, 256
          s_cbranch_scc1 L_end""")
    if cfg.get('diag') or cfg.get('holdto') or cfg.get('holdend'):
        e("s_memrealtime s[94:95]")
    e(f"""s_load_dwordx16 s[20:35], s[0:1], 0
          s_load_dwordx8 s[36:43], s[0:1], 64
          s_load_dwordx2 s[44:45], s[0:1], 96
          s_getreg_b32 s{S_XCC}, hwreg(HW_REG_XCC_ID, 0, 3)
          v_lshrrev_b32 v1, 6, v0
          v_readfirstlane_b32 s{S_WAVE}, v1
          s_mov_b32 s{S_SPIN}, {SPIN_MAX}""")
    if cfg.get('cpf', 0):
        e.comment("pull this kernel's code into the die's L2: every wave reads one word of 64 lines of it")
        e(f"""s_getpc_b64 s[50:51]
              L_pc:
              s_lshr_b32 s52, s2, 3
              s_lshl_b32 s52, s52, 15
              v_lshl_add_u32 v120, v0, 7, s52
              v_and_b32 v120, 0xffff, v120
              v_min_u32 v120, L_end - L_pc, v120
              v_mov_b32 v121, s51
              v_add_co_u32 v120, vcc, s50, v120
              v_addc_co_u32 v121, vcc, 0, v121, vcc""")
        e.loose("global_load_dword v122, v[120:121], off")
        e.vm = []
    e("s_waitcnt lgkmcnt(0)")
    srd(e, S_WS, P_WSP, WS_SIZE)
    srd(e, S_DBG, P_DBG, 256)
    dbg_max(e, cfg, 10, True, 5, 31)
    e(f"""s_lshr_b32 s50, s2, 3
          s_lshl_b32 s{S_ROLE}, s{S_XCC}, 5
          s_add_u32 s{S_ROLE}, s{S_ROLE}, s50
          s_mov_b32 s{S_CONF}, 0
          s_cmp_lg_u32 s{S_WAVE}, 0
          s_cbranch_scc1 L_dispatch
          s_lshl_b32 s51, 1, s50
          s_lshl_b32 s52, s{S_XCC}, {D_CLAIM_SH}
          v_mov_b32 v{V_CLAIM}, s51
          s_mov_b64 exec, 1
          buffer_atomic_or v{V_CLAIM}, off, {sr(S_DBG, 4)}, s52 sc0
          s_mov_b64 exec, -1
          v_mov_b32 v3, 0
          v_lshlrev_b32 v4, 2, v0
          s_lshl_b32 s51, s2, 8
          s_add_u32 s51, s51, {WS_FLAG}
          buffer_store_dword v3, v4, {sr(S_WS, 4)}, s51 offen sc1""")
    e.vm = []
    e.label("L_dispatch")


def reclaim(e):
    e.forget()
    e(f"""L_reclaim:
          s_mov_b32 s{S_RA}, s{S_XCC}
          s_movk_i32 s{S_SPIN}, 600
          L_rc_word:
          v_readfirstlane_b32 s{S_RB}, v{V_CLAIM}
          s_cmp_eq_u32 s{S_RB}, -1
          s_cbranch_scc0 L_rc_try
          s_add_u32 s{S_RA}, s{S_RA}, 1
          s_and_b32 s{S_RA}, s{S_RA}, 7
          s_mov_b32 s{S_RB}, 0
          L_rc_try:
          s_sub_u32 s{S_SPIN}, s{S_SPIN}, 1
          s_cselect_b32 s{S_RA}, 64, s{S_RA}
          s_cbranch_scc1 L_rc_got
          s_mov_b32 s38, s{S_RB}
          s_mov_b32 s39, s{S_RB}
          s_and_b32 s{S_RB}, s{S_ROLE}, 31
          s_add_u32 s{S_RB}, s{S_RB}, s2
          s_and_b32 s{S_RB}, s{S_RB}, 31
          s_lshr_b64 s[38:39], s[38:39], s{S_RB}
          s_ff0_i32_b32 s38, s38
          s_add_u32 s{S_RB}, s{S_RB}, s38
          s_and_b32 s{S_RB}, s{S_RB}, 31
          s_lshl_b32 s{S_RC}, 1, s{S_RB}
          v_mov_b32 v{V_CLAIM}, s{S_RC}
          s_lshl_b32 s{S_RC}, s{S_RA}, {D_CLAIM_SH}
          s_mov_b64 exec, 1
          buffer_atomic_or v{V_CLAIM}, off, {sr(S_DBG, 4)}, s{S_RC} sc0
          s_mov_b64 exec, -1
          v_readfirstlane_b32 s{S_RC}, v{V_CLAIM}
          s_bitcmp1_b32 s{S_RC}, s{S_RB}
          s_cbranch_scc1 L_rc_word
          L_rc_got:
          s_lshl_b32 s{S_RA}, s{S_RA}, 5
          s_or_b32 s{S_RA}, s{S_RA}, s{S_RB}
          v_mov_b32 v{V_CLAIM}, s{S_RA}
          v_mov_b32 v{V_CLAIM - 1}, {L_ROLE}
          ds_write_b32 v{V_CLAIM - 1}, v{V_CLAIM}
          s_waitcnt lgkmcnt(0)
          s_barrier
          L_restart:
          s_cmp_ge_u32 s{S_RA}, 256
          s_cbranch_scc1 L_end
          s_mov_b32 s{S_SPIN}, {SPIN_MAX}
          s_and_b32 s{S_ROLE}, s{S_RA}, 255
          s_mov_b32 s{S_CONF}, 1
          v_mbcnt_lo_u32_b32 v0, -1, 0
          v_mbcnt_hi_u32_b32 v0, -1, v0
          s_waitcnt vmcnt(0) lgkmcnt(0)
          s_barrier
          s_branch L_dispatch""")


def fake_worker(e, cfg):
    e(f"""s_cmp_lg_u32 s{S_WAVE}, 0
          s_cbranch_scc1 L_end
          s_waitcnt vmcnt(0)
          v_mov_b32 v2, 1
          s_mov_b64 exec, 1
          buffer_atomic_add v2, off, {sr(S_DBG, 4)}, 0 offset:{D_INIT}
          s_mov_b64 exec, -1
          s_cmp_ge_u32 s{S_ROLE}, {32 + NHH}
          s_cbranch_scc1 L_end
          L_fw_poll:
          buffer_load_dword v3, off, {sr(S_DBG, 4)}, 0 offset:{D_INIT} sc1
          s_sub_u32 s{S_SPIN}, s{S_SPIN}, 1
          s_cbranch_scc1 L_end
          v_readfirstlane_b32 s50, v3
          s_and_b32 s50, s50, 0xffff
          s_cmp_eq_u32 s50, 256
          s_cbranch_scc0 L_fw_poll
          s_sub_u32 s50, s{S_ROLE}, 32
          s_lshl_b32 s50, s50, 8
          s_add_u32 s50, s50, {F_QKV}
          v_mov_b32 v2, 1
          v_lshlrev_b32 v4, 2, v0
          buffer_store_dword v2, v4, {sr(S_WS, 4)}, s50 offen sc1
          s_waitcnt vmcnt(0)
          s_branch L_end""")


def build(cfg):
    e = Emitter()
    prologue(e, cfg)
    e(f"s_cmp_ge_u32 s{S_ROLE}, 32\n s_cbranch_scc1 L_worker")
    st = e.state()
    CH.chain(e, cfg)
    e.label("L_worker"); e.set_state(st)
    if cfg.get('fake_proj'):
        fake_worker(e, cfg)
    else:
        import workers
        workers.worker(e, cfg)
    reclaim(e)
    e.label("L_end")
    if cfg.get('dbgt'):
        e.forget()
        e("s_cmp_ge_u32 s2, 256\n s_cbranch_scc1 L_end3\n s_waitcnt vmcnt(0)")
        dbg_max(e, cfg, 13, mask=0)
        e.label("L_end3")
    if cfg.get('diag'):
        e.forget()
        e(f"""s_cmp_ge_u32 s2, 256
              s_cbranch_scc1 L_end2
              s_waitcnt vmcnt(0)
              s_memrealtime s[92:93]
              s_lshl_b32 s90, s{S_ROLE}, 2
              s_add_u32 s90, s90, s{S_WAVE}
              s_lshl_b32 s90, s90, 4
              s_add_u32 s90, s90, 0x6100000
              s_waitcnt lgkmcnt(0)
              v_mov_b32 v2, s94
              v_mov_b32 v3, s92
              v_mov_b32 v4, s88
              v_mov_b32 v5, s86
              buffer_store_dwordx4 v[2:5], off, {sr(S_WS, 4)}, s90
              L_end2:""")
    K = NAME + "_kernel"
    return HEADER + f"""; @launch grid=(256,1,1) block=(256,1,1) lds={LDS_BYTES}
.amdgcn_target "amdgcn-amd-amdhsa--gfx950"
.text
.globl {K}
.p2align 8
.type {K},@function
{K}:
""" + e.text() + f"""  s_endpgm
.section .rodata,"a"
.p2align 6
.amdhsa_kernel {K}
  .amdhsa_next_free_vgpr 512
  .amdhsa_next_free_sgpr 102
  .amdhsa_accum_offset 256
  .amdhsa_group_segment_fixed_size 0
  .amdhsa_kernarg_size 104
  .amdhsa_user_sgpr_count 2
  .amdhsa_user_sgpr_kernarg_segment_ptr 1
  .amdhsa_system_sgpr_workgroup_id_x 1
.end_amdhsa_kernel
"""


if __name__ == '__main__':
    out = sys.argv[1]
    cfg = eval(sys.argv[2]) if len(sys.argv) > 2 else {}
    open(out, 'w').write(build(cfg))
```

```python
from common import *

L_T, L_OB, L_DUMMY, L_KX, L_WL = 8192, 12544, 14592, 16384, 32768
T_PITCH = 1088
vL16, vPst, vMst, vTw, vTr, vKXr, vOw, vWL0, vWL1, vMw, vIdx, vSelC = range(12)
EX, PM, VX = 12, 16, 20
TMP = 28
MA = 32
ACC = 64
X, KXR, SPARE = 88, 104, 120
R1 = [MA + 8, MA + 16, MA + 24, X, X + 8, KXR, KXR + 8, SPARE, X, X + 8]
WO_SB = [KXR, KXR + 8, X, X + 8, ACC, ACC + 8]
(sStep, sMcur, sProg, sMtog, sG, sKl, sPst2, sKV, sC, sExp, sMcur2, sMbaseS, sPbaseS, sPbaseL, sFl, sFch, sTog, sNan,
 sA, sB) = range(50, 70)
sSel = 70
sOK, sHl, sMn2 = 78, 79, 3
sArm, sFm = 18, 98
sVx, sVt, sHs, sOK2, sG2 = 96, 97, 16, 17, 100
HV, HS, HA, HD = TMP + 2, TMP + 3, VX + 2, VX + 3
S_M0 = 84
sDbgT = 80

STREAM = [('q', 0, 0), ('q', 1, 0), ('k', 0, 0), ('k', 1, 0), ('q', 0, 1), ('q', 1, 1), ('k', 0, 1), ('k', 1, 1),
          ('q', 0, 5), ('q', 0, 7),
          ('o', 5, 0), ('o', 5, 1), ('o', 6, 0), ('o', 6, 1), ('o', 7, 0), ('o', 7, 1)]
WLPOS = {op: p for op, p in zip(STREAM[10:14], range(4))}
WLPOS.update({op: 4 + p for p, op in enumerate(STREAM[14:16] + STREAM[:10])})
ALLOPS = [(m, ft, i) for m in 'qkv' for ft in range(2) for i in range(8)] + [('o', t, kb) for t in range(8) for kb in range(2)]
RES = {}
for n, op in enumerate([o for o in ALLOPS if o not in STREAM]):
    RES[op] = ('a', 8 * n) if n < 32 else ('v', 128 + 8 * (n - 32))
PARK = {}
for n, op in enumerate(STREAM[14:16] + STREAM[:10]):
    PARK[op] = 32 + 8 * n
for n, op in enumerate(STREAM[10:14]):
    PARK[op] = 48 + 8 * n
W = sr(S_WS, 4)
CFG = {}


def wl_addr(op, half):
    p = WLPOS[op]
    off = (p >> 1) * 16384 + (p & 1) * 2048 + half * 1024
    return (vWL0, off) if off < 65536 else (vWL1, off - 65536)


def wl_write(e, op, src):
    for half in range(2):
        a, off = wl_addr(op, half)
        e(f"ds_write_b128 v{a}, {vr(src + 4 * half, 4)} offset:{off}")


def wl_lines(op, dst):
    out = []
    for half in range(2):
        a, off = wl_addr(op, half)
        out.append(f"ds_read_b128 {vr(dst + 4 * half, 4)}, v{a} offset:{off}")
    return out


def delay(e, cyc):
    if CFG.get('slp') and cyc >= 64:
        k = cyc // 64
        e(f"s_sleep {k}")
        cyc -= 64 * k
    n = cyc // 4
    while n > 0:
        k = min(n, 16)
        e(f"s_nop {k - 1}")
        n -= k


def mix(reads, other, per=3):
    out = []
    other = list(other)
    for r in reads:
        out.append(r)
        for _ in range(per):
            if other:
                out.append(other.pop(0))
    return out + other


def mload(b):
    return f"buffer_load_dwordx4 {vr(MA + 4 * b, 4)}, v{vMw}, {W}, s{sMcur if b == 0 else sMcur2} offen sc1"


def kx_dma(e, ldsbase):
    e(f"""s_lshl_b32 s{sA}, s{S_WAVE}, 11
          s_add_u32 m0, s{sA}, {ldsbase}
          buffer_load_dwordx4 v{vL16}, {W}, s{sKV} offen sc1 lds
          buffer_load_dwordx4 v{vL16}, {W}, s{sKV} offen offset:1024 sc1 lds""")


def scalar_lines():
    return [x.strip() for x in f"""s_and_b32 s{sA}, s{sStep}, 3
          s_lshl_b32 s{sA}, s{sA}, 13
          s_add_u32 s{sMcur}, s{sA}, {WS_M}
          s_add_u32 s{sMcur2}, s{sA}, {WS_M + 4096}
          s_and_b32 s{sA}, s{sA}, 0x2000
          s_add_u32 s{sMn2}, s{sMbaseS}, s{sA}
          s_lshl_b32 s{sMtog}, s{sA}, 1
          s_sub_u32 s{sVx}, s{sKV}, s{sTog}
          s_add_u32 s{sVx}, s{sVx}, {8192 - L_KX}
          s_add_u32 s{sKV}, s{sKV}, {0 if CFG.get('samekv') else UNIT}
          s_add_u32 s{sVt}, s{sKV}, 8192
          s_xor_b32 s{sA}, s{sTog}, 0x2000
          s_add_u32 m0, s{sA}, s{sKl}
          s_cmp_gt_u32 s{sStep}, 1
          s_cselect_b32 s{sA}, 4096, 0
          s_add_u32 s{sExp}, s{sExp}, s{sA}
          s_add_u32 s{sOK2}, s{sStep}, 1
          s_max_u32 s{sProg}, s{sStep}, 1
          s_sub_u32 s{sProg}, s{sProg}, 1
          s_and_b32 s{sG2}, s{sOK2}, 1""".split('\n')]


def prep_a_lines():
    other = [f"v_mov_b64 {vr(ACC + j, 2)}, 0" for j in range(0, 24, 2)] + [f"v_lshlrev_b32 v{PM + 3}, 1, v{vL16}", f"v_mov_b32 v{TMP}, s{sProg}"]
    reads = sum([wl_lines(STREAM[o], R1[o]) for o in range(3, 8)], [])
    return mix(reads, other, 2)


def prep_b_lines():
    other = [f"v_xor_b32 v{vMst}, s{sMtog}, v{vMst}"] + [f"v_xor_b32 v{TMP + p}, {p << 10}, v{vMw}" for p in range(1, 4)]
    reads = sum([wl_lines(STREAM[o], R1[o]) for o in range(3)], [])
    return mix(reads, other, 1)


def chain_startup(e, cfg):
    h = S_ROLE
    tA, tB, tC, tD = EX, EX + 1, EX + 2, EX + 3
    t0, t1, t2, t3 = TMP, TMP + 1, TMP + 2, TMP + 3
    lane = PM
    chunks = [('o', kb, Q) for kb in range(2) for Q in range(4)] + [(m, b, 0) for m in 'qkv' for b in range(8)]
    ring = {4: L_WL + 2 * 16384, 5: L_WL + 3 * 16384, 6: L_WL + 4 * 16384, 0: L_WL + 5 * 16384, 1: L_WL + 6 * 16384,
            2: L_WL + 7 * 16384, 3: 0}
    ptr = {'q': P_WQ, 'k': P_WK, 'v': P_WV, 'o': P_WO}
    sHq, sHo, sLw = sMcur, sProg, sMcur2
    cur, marks = [None], {}

    def dma(r):
        m, x, Q = chunks[r]
        if cur[0] != m:
            srd(e, S_T0, ptr[m], 0x400000); cur[0] = m
        for i in range(4):
            if m == 'o':
                row = 64 * x + 32 * (Q >> 1) + 2 * (Q & 1) + 4 * (i >> 1) + (i & 1)
                e(f"""s_add_u32 s{sA}, s{sHo}, {row * 1024}
                      s_add_u32 m0, s{sLw}, {ring[r % 7] + i * 1024}
                      buffer_load_dwordx4 v{vL16}, {sr(S_T0, 4)}, s{sA} offen lds""")
            else:
                e(f"""s_add_u32 s{sA}, s{sHq}, {(128 * (x & 3) + 64 * (x >> 2) + 4 * i) * 8192}
                      s_add_u32 m0, s{sLw}, {ring[r % 7] + i * 1024}
                      buffer_load_dwordx4 v{tA}, {sr(S_T0, 4)}, s{sA} offen lds""")
        marks[r] = e.vm[-1]

    e(f"""v_and_b32 v{lane}, 63, v0
          v_lshlrev_b32 v{vL16}, 4, v{lane}
          s_and_b32 s{sA}, s{S_WAVE}, 1
          s_lshr_b32 s{sB}, s{S_WAVE}, 1
          s_lshl_b32 s{sHo}, s{h}, 17
          s_lshl_b32 s{sLw}, s{sA}, 14
          s_add_u32 s{sHo}, s{sHo}, s{sLw}
          s_lshl_b32 s{sLw}, s{sB}, 13
          s_add_u32 s{sHo}, s{sHo}, s{sLw}
          s_lshl_b32 s{sHq}, s{h}, 8
          s_lshl_b32 s{sLw}, s{S_WAVE}, 17
          s_add_u32 s{sHq}, s{sHq}, s{sLw}
          s_lshl_b32 s{sLw}, s{S_WAVE}, 12""")
    for r in range(6):
        dma(r)
    e(f"""v_lshrrev_b32 v{t0}, 4, v{lane}
          v_and_b32 v{t1}, 15, v{lane}
          s_lshl_b32 s{sA}, s{S_WAVE}, 10
          v_add_u32 v{vMw}, s{sA}, v{vL16}
          v_lshlrev_b32 v{PM + 3}, 2, v{lane}""")
    e(f"""v_lshrrev_b32 v{t2}, 2, v{lane}
          v_lshlrev_b32 v{t2}, 12, v{t2}
          v_and_b32 v{t3}, 3, v{lane}
          v_lshl_add_u32 v{vPst}, v{t3}, 4, v{t2}""")
    e(f"""v_and_b32 v{t2}, 1, v{lane}
          v_lshlrev_b32 v{t2}, 5, v{t2}
          v_lshl_add_u32 v{t2}, v{t0}, 3, v{t2}
          v_and_b32 v{t3}, 4, v{lane}
          v_add_u32 v{t2}, v{t2}, v{t3}
          v_and_b32 v{t3}, 8, v{lane}
          v_cmp_ne_u32 {sr(sArm, 2)}, 0, v{t3}
          v_lshl_add_u32 v{t2}, v{t3}, 11, v{t2}
          v_and_b32 v{t3}, 2, v{lane}
          v_lshl_add_u32 v{vMst}, v{t3}, 29, v{t2}""")
    srd(e, S_M0, P_MEM0, 8192)
    e(f"""v_and_b32 v{t2}, 1, v{lane}
          v_lshlrev_b32 v{tD}, 10, v{t2}
          v_lshl_add_u32 v{tD}, v{t0}, 1, v{tD}
          v_bfe_u32 v{t2}, v{lane}, 2, 1
          v_lshl_add_u32 v{tD}, v{t2}, 6, v{tD}
          s_and_b32 s{sA}, s{h}, 6
          s_lshl_b32 s{sA}, s{sA}, 10
          s_lshr_b32 s{sB}, s{h}, 3
          s_lshl_b32 s{sB}, s{sB}, 8
          s_add_u32 s{sA}, s{sA}, s{sB}
          s_and_b32 s{sB}, s{S_WAVE}, 1
          s_lshl_b32 s{sB}, s{sB}, 7
          s_add_u32 s{sA}, s{sA}, s{sB}
          s_lshr_b32 s{sB}, s{S_WAVE}, 1
          s_lshl_b32 s{sB}, s{sB}, 3
          s_add_u32 s{sA}, s{sA}, s{sB}
          s_and_b32 s{sB}, s{h}, 1
          s_lshl_b32 s{sB}, s{sB}, 4
          s_add_u32 s{sA}, s{sA}, s{sB}
          buffer_load_ushort v{VX}, v{tD}, {sr(S_M0, 4)}, s{sA} offen
          buffer_load_ushort v{VX + 1}, v{tD}, {sr(S_M0, 4)}, s{sA} offen offset:32""")
    e(f"""s_lshl_b32 s{sA}, s{S_WAVE}, 8
          s_add_u32 s{sA}, s{sA}, {L_T}
          v_mul_u32_u24 v{t2}, {T_PITCH}, v{t0}
          v_lshl_add_u32 v{t2}, v{t1}, 3, v{t2}
          v_add_u32 v{vTw}, s{sA}, v{t2}
          v_and_b32 v{t3}, 3, v{lane}
          v_mul_u32_u24 v{t2}, {T_PITCH}, v{t3}
          v_lshrrev_b32 v{t3}, 5, v{lane}
          v_lshl_add_u32 v{t2}, v{t3}, 7, v{t2}
          v_bfe_u32 v{t3}, v{lane}, 2, 3
          v_lshl_add_u32 v{t2}, v{t3}, 3, v{t2}
          v_add_u32 v{vTr}, {L_T}, v{t2}
          v_lshlrev_b32 v{t2}, 9, v{t0}
          v_lshl_add_u32 v{t2}, v{t1}, 4, v{t2}
          v_add_u32 v{vKXr}, {L_KX}, v{t2}""")
    e(f"""s_lshl_b32 s{sA}, s{S_WAVE}, 9
          s_add_u32 s{sA}, s{sA}, {L_OB}
          v_lshrrev_b32 v{t2}, 5, v{lane}
          v_lshlrev_b32 v{t2}, 8, v{t2}
          v_and_b32 v{t3}, 16, v{lane}
          v_add_u32 v{t2}, v{t2}, v{t3}
          v_and_b32 v{t3}, 12, v{lane}
          v_lshl_add_u32 v{t2}, v{t3}, 4, v{t2}
          v_and_b32 v{t3}, 1, v{lane}
          v_lshl_add_u32 v{t2}, v{t3}, 5, v{t2}
          v_add_u32 v{t2}, s{sA}, v{t2}
          v_and_b32 v{t3}, 2, v{lane}
          v_lshlrev_b32 v{t3}, 12, v{t3}
          v_sub_u32 v{vOw}, v{t2}, v{t3}
          s_add_u32 s{sA}, s{sLw}, {L_WL}
          v_add_u32 v{vWL0}, s{sA}, v{vL16}
          v_add_u32 v{vWL1}, 0x10000, v{vWL0}""")
    e(f"""v_and_b32 v{t2}, 1, v{lane}
          v_cmp_ne_u32 vcc, 0, v{t2}
          v_mov_b32 v{t2}, 0x4444
          v_mov_b32 v{t3}, 0xeeee
          v_cndmask_b32 v{vIdx}, v{t2}, v{t3}, vcc
          v_mov_b32 v{t2}, 0x3f80
          v_mov_b32 v{t3}, 0x3f800000
          v_cndmask_b32 v{vSelC}, v{t2}, v{t3}, vcc
          v_lshrrev_b32 v{t2}, 1, v{t1}""")
    for j in range(4):
        e(f"v_cmp_eq_u32 {sr(sSel + 2 * j, 2)}, {j}, v{t2}")
    e(f"""v_lshlrev_b32 v{tA}, 13, v{t0}
          v_lshlrev_b32 v{t2}, 2, v{t0}
          v_xor_b32 v{t2}, v{t2}, v{t1}
          v_lshl_add_u32 v{tA}, v{t2}, 4, v{tA}""")
    e(f"""v_bfe_u32 v{t2}, v{lane}, 2, 1
          v_lshlrev_b32 v{tB}, 12, v{t2}
          v_bfe_u32 v{t2}, v{lane}, 5, 1
          v_lshl_add_u32 v{tB}, v{t2}, 10, v{tB}
          v_bfe_u32 v{t2}, v{lane}, 3, 1
          v_lshl_add_u32 v{tB}, v{t2}, 9, v{tB}
          v_bfe_u32 v{t2}, v{lane}, 4, 1
          v_lshl_add_u32 v{tB}, v{t2}, 8, v{tB}
          v_and_b32 v{t2}, 3, v{lane}
          v_lshl_add_u32 v{tB}, v{t2}, 3, v{tB}
          v_bfe_u32 v{t3}, v{tB}, 8, 2
          v_xor_b32 v{t3}, s{S_WAVE}, v{t3}
          v_lshl_add_u32 v{tB}, v{t3}, 6, v{tB}""")
    e(f"""v_lshrrev_b32 v{t3}, 2, v{lane}
          v_lshlrev_b32 v{tC}, 10, v{t3}
          v_lshl_add_u32 v{tC}, v{t2}, 3, v{tC}
          s_lshl_b32 s{sA}, s{S_WAVE}, 8
          v_add_u32 v{tC}, s{sA}, v{tC}""")
    e(f"""s_lshl_b32 s{sA}, s{S_WAVE}, 11
          s_lshl_b32 s{sB}, s{h}, 13
          s_add_u32 s{sPbaseL}, s{sA}, s{sB}
          s_add_u32 s{sPbaseL}, s{sPbaseL}, {WS_P}
          s_lshl_b32 s{sA}, s{S_WAVE}, 16
          s_lshl_b32 s{sB}, s{h}, 6
          s_add_u32 s{sPbaseS}, s{sA}, s{sB}
          s_add_u32 s{sPbaseS}, s{sPbaseS}, {WS_P}""")
    e(f"""s_and_b32 s{sA}, s{S_WAVE}, 1
          s_lshl_b32 s{sMbaseS}, s{sA}, 12
          s_and_b32 s{sA}, s{h}, 24
          s_lshl_b32 s{sA}, s{sA}, 7
          s_add_u32 s{sMbaseS}, s{sMbaseS}, s{sA}
          s_and_b32 s{sA}, s{h}, 1
          s_lshl_b32 s{sA}, s{sA}, 9
          s_add_u32 s{sMbaseS}, s{sMbaseS}, s{sA}
          s_lshr_b32 s{sA}, s{S_WAVE}, 1
          s_lshl_b32 s{sA}, s{sA}, 8
          s_add_u32 s{sMbaseS}, s{sMbaseS}, s{sA}
          s_and_b32 s{sA}, s{h}, 6
          s_lshl_b32 s{sA}, s{sA}, 5
          s_add_u32 s{sMbaseS}, s{sMbaseS}, s{sA}
          s_add_u32 s{sMbaseS}, s{sMbaseS}, {WS_M}""")
    e(f"""s_mul_i32 s{sKV}, s{h}, {64 * UNIT}
          s_lshl_b32 s{sA}, s{S_WAVE}, 11
          s_add_u32 s{sKV}, s{sKV}, s{sA}
          s_add_u32 s{sKV}, s{sKV}, {WS_QKV + 8192}
          s_lshl_b32 s{sExp}, s{h}, 18
          s_lshl_b32 s{sA}, s{S_WAVE}, 10
          s_add_u32 s{sExp}, s{sExp}, s{sA}
          s_add_u32 s{sExp}, s{sExp}, {WS_EXP}
          s_lshl_b32 s{sFl}, s{h}, 8
          s_add_u32 s{sFl}, s{sFl}, {F_QKV}
          s_lshl_b32 s{sFch}, s{h}, 7
          s_lshl_b32 s{sA}, s{S_WAVE}, 2
          s_add_u32 s{sFch}, s{sFch}, s{sA}
          s_add_u32 s{sFch}, s{sFch}, {F_CH}
          s_mov_b32 s{sC}, 0x3e0293ee
          s_add_u32 s{sPst2}, s{sPbaseS}, 4096
          s_lshl_b32 s{sKl}, s{S_WAVE}, 11
          s_add_u32 s{sKl}, s{sKl}, {L_KX}
          s_lshl_b32 s{sHl}, s{h}, 7
          s_add_u32 s{sHl}, s{sHl}, {F_HINT}
          s_lshl_b32 s{sHs}, s{h}, 2
          s_lshl_b32 s{sA}, s{S_WAVE}, 10
          s_add_u32 s{sHs}, s{sHs}, s{sA}
          s_add_u32 s{sHs}, s{sHs}, {F_HINT}
          s_mov_b32 s{sOK}, 1""")
    e(f"""v_mov_b64 {vr(VX + 4, 2)}, 0
          v_mov_b64 {vr(VX + 6, 2)}, 0
          v_mov_b32 v{VX + 2}, -1
          s_add_u32 s{sB}, s{sMbaseS}, 8192
          buffer_store_dwordx4 {vr(VX + 4, 4)}, v{vL16}, {W}, s{sPbaseL} offen sc1
          buffer_store_dwordx4 {vr(VX + 4, 4)}, v{vL16}, {W}, s{sPbaseL} offen offset:1024 sc1
          buffer_store_dword v{VX + 2}, v{vMst}, {W}, s{sB} offen sc1""")
    for j in range(4):
        e(f"v_mov_b32 v{32 + j}, {SENT1}")
    for sg in range(64 - NTAIL, 64):
        e(f"s_add_u32 s{sA}, s{sExp}, {sg * 4096}\n buffer_store_dwordx4 v[32:35], v{vL16}, {W}, s{sA} offen sc1")
    if cfg.get('sdiag'):
        e("s_memrealtime s[20:21]\n s_waitcnt lgkmcnt(0)")
    confirm_barrier(e, 'ch')
    if cfg.get('sdiag'):
        e("s_memrealtime s[22:23]\n s_waitcnt lgkmcnt(0)")
    parked = STREAM[14:16] + STREAM[:10]
    for r in range(32):
        m, x, Q = chunks[r]
        if marks[r] in e.vm:
            e.wait(vm=len(e.vm) - 1 - e.vm.index(marks[r]))
        e.wait(lgkm=0)
        e("s_barrier")
        if cfg.get('sdiag') and r in (0, 8, 16, 24, 31):
            e(f"s_memrealtime {sr({0: 24, 8: 26, 16: 28, 24: 36, 31: 40}[r], 2)}\n s_waitcnt lgkmcnt(0)")
        if r == 6:
            e.comment("publish this wave's piece of mem0 in slot 0 (and arm slot 2)")
            e(f"""v_lshl_or_b32 v{VX}, v{VX + 1}, 16, v{VX}
                  v_min_u32 v{VX}, -2, v{VX}
                  v_cndmask_b32 v{VX}, v{VX}, -1, {sr(sArm, 2)}
                  buffer_store_dword v{VX}, v{vMst}, {W}, s{sMbaseS} offen sc1""")
        if r == 12:
            e.comment("every wave's arming stores are complete: count this member as armed")
            e(f"""s_cmp_lg_u32 s{S_WAVE}, 0
                  s_cbranch_scc1 L_cs_in
                  s_cmp_lg_u32 s{S_XCC}, 0
                  s_mov_b32 s{sB}, 0x10000
                  s_cselect_b32 s{sA}, 0x1010000, s{sB}
                  v_mov_b32 v{t0}, s{sA}
                  s_mov_b64 exec, 1
                  buffer_atomic_add v{t0}, off, {sr(S_DBG, 4)}, 0 offset:{D_INIT}
                  s_mov_b64 exec, -1""")
            e.vm.pop()
            e.label("L_cs_in")
        if r + 6 < 32:
            dma(r + 6)
        if r == 8:
            for op in STREAM[10:14]:
                wl_write(e, op, PARK[op])
            e.wait(lgkm=0)
        if r == cfg.get('r1', 16):
            e(f"buffer_load_dword v{PM + 1}, off, {sr(S_DBG, 4)}, 0 offset:{D_INIT} sc1")
        if r == cfg.get('r2', 23):
            e(f"""v_readfirstlane_b32 s{sNan}, v{PM + 1}
                  buffer_load_dword v{PM + 2}, v{PM + 3}, {W}, s{sFl} offen sc1""")
            e(f"""s_add_u32 m0, s{sLw}, {L_KX + 8192}
                  s_lshr_b32 m0, m0, 1
                  s_add_u32 m0, m0, {(L_KX + 8192) // 2}
                  s_lshl_b32 s{sB}, s{h}, 10
                  s_add_u32 s{sB}, s{sB}, {WS_M}
                  buffer_load_dwordx4 v{vL16}, {W}, s{sPbaseL} offen sc1 lds
                  buffer_load_dwordx4 v{vL16}, {W}, s{sPbaseL} offen offset:1024 sc1 lds
                  buffer_load_dwordx4 v{vL16}, {W}, s{sHl} offen sc1 lds
                  buffer_load_dwordx4 v{vL16}, {W}, s{sB} offen sc1 lds""")
        if r == cfg.get('r3', 30):
            e(f"""v_cmp_ne_u32 {sr(sFm, 2)}, 0, v{PM + 2}
                  s_and_b32 s{sOK}, s{sFm}, 3
                  s_cmp_eq_u32 s{sOK}, 3
                  s_cselect_b32 s{sOK}, 1, 0
                  s_and_b32 s{sA}, s{sNan}, 0xffffff
                  s_cmp_eq_u32 s{sA}, 0x200100
                  s_cselect_b32 s{sOK}, s{sOK}, 0""")
            kx_dma(e, L_KX)
            e(f"""s_add_u32 m0, m0, 8192
                  s_add_u32 s{sA}, s{sKV}, 8192
                  buffer_load_dwordx4 v{vL16}, {W}, s{sA} offen sc1 lds
                  buffer_load_dwordx4 v{vL16}, {W}, s{sA} offen offset:1024 sc1 lds""")
        if r == 29:
            e(f"buffer_load_dword v{VX + 7}, v{PM + 3}, {W}, s{sFl} offen sc1")
        if r >= 26:
            for op in parked[2 * (r - 26):2 * (r - 26) + 2]:
                wl_write(e, op, PARK[op])
        e(f"v_add_u32 v{t1}, {ring[r % 7]}, v{tC if m == 'o' else tB}")
        if m == 'o':
            for t in range(8):
                op = ('o', t, x)
                kind, base = RES[op] if op in RES else ('v', PARK[op])
                e(f"ds_read_b64_tr_b16 {vr(base + 2 * Q, 2, kind)}, v{t1} offset:{t * 32}")
        else:
            for w in range(1, 4):
                e(f"s_cmp_eq_u32 s{S_WAVE}, {w}\n s_cbranch_scc1 L_cs{r}_{w}")
            st0 = e.state()
            for w in range(4):
                if w:
                    e.label(f"L_cs{r}_{w}"); e.set_state(st0)
                for ft in range(2):
                    op = (m, ft, 2 * ((x & 3) ^ w) + (x >> 2))
                    kind, base = RES[op] if op in RES else ('v', PARK[op])
                    for Q in range(4):
                        e(f"ds_read_b64_tr_b16 {vr(base + 2 * Q, 2, kind)}, v{t1} offset:{(32 * (Q & 1) + 8 * (Q >> 1)) * 256 + ft * 32}")
                if w < 3:
                    e(f"s_branch L_cs{r}_e")
            e.label(f"L_cs{r}_e")
    e.wait(lgkm=0)
    if cfg.get('sdiag'):
        e(f"""s_lshl_b32 s{sA}, s{S_ROLE}, 2
              s_add_u32 s{sA}, s{sA}, s{S_WAVE}
              s_lshl_b32 s{sA}, s{sA}, 6
              s_add_u32 s{sA}, s{sA}, 0x6400000""")
        for n, r in enumerate([94, 20, 22, 24, 26, 28, 36, 40, sOK]):
            e(f"v_mov_b32 v{PM}, s{r}\n buffer_store_dword v{PM}, off, {W}, s{sA} offset:{4 * n}")
    e(f"""s_cmp_lg_u32 s{sOK}, 0
          s_cbranch_scc1 L_cs_ready
          s_and_b32 s{sA}, s{sNan}, 0xffffff
          s_cmp_eq_u32 s{sA}, 0x200100
          s_cbranch_scc1 L_cs_p3
          L_cs_p1:
          buffer_load_dword v{t0}, off, {sr(S_DBG, 4)}, 0 offset:{D_INIT} sc1
          s_sub_u32 s{S_SPIN}, s{S_SPIN}, 1
          s_cbranch_scc1 L_end
          v_readfirstlane_b32 s{sNan}, v{t0}
          s_and_b32 s{sA}, s{sNan}, 0xffffff
          s_cmp_eq_u32 s{sA}, 0x200100
          s_cbranch_scc0 L_cs_p1
          L_cs_p2:
          buffer_load_dword v{VX + 7}, v{PM + 3}, {W}, s{sFl} offen sc1
          s_sub_u32 s{S_SPIN}, s{S_SPIN}, 1
          s_cbranch_scc1 L_end
          L_cs_p3:
          s_waitcnt vmcnt(0)
          v_cmp_ne_u32 {sr(sFm, 2)}, 0, v{VX + 7}
          s_and_b32 s{sA}, s{sFm}, 3
          s_cmp_eq_u32 s{sA}, 3
          s_cbranch_scc0 L_cs_p2""")
    kx_dma(e, L_KX)
    e.label("L_cs_ready")
    e(f"""v_mov_b32 v{PM + 1}, 0
          v_mov_b32 v{PM + 2}, 0
          s_mov_b32 s{sStep}, 0
          s_mov_b32 s{sTog}, 0""")
    e("\n".join(scalar_lines() + prep_a_lines()))
    for b in range(2):
        e(mload(b))
    e("\n".join(prep_b_lines()))
    dbg_max(e, cfg, 11, v=PM, mask=1)
    if cfg.get('holdto'):
        e(f"""L_hold:
              s_memrealtime s[92:93]
              s_waitcnt lgkmcnt(0)
              s_sub_u32 s92, s92, s94
              s_cmp_lt_u32 s92, {cfg['holdto']}
              s_cbranch_scc1 L_hold""")
    e("s_waitcnt vmcnt(0) lgkmcnt(0)\n s_barrier")
    if cfg.get('diag'):
        e.raw(f"  s_memtime {sr(sDbgT + 6, 2)}\n  s_memrealtime {sr(sDbgT + 10, 2)}\n  s_mov_b32 s{sDbgT + 5}, 0\n  s_mov_b32 s12, 0\n  s_mov_b32 s13, 0\n  s_mov_b32 s14, 0\n  s_mov_b32 s15, 0\n  s_waitcnt lgkmcnt(0)")
    e(f"""s_lshr_b32 s{sA}, s{sNan}, 24
          s_mov_b32 s{sNan}, 0
          s_cmp_lg_u32 s{sA}, 0
          s_cbranch_scc1 L_step_s""")
    e("s_branch L_step_s" if cfg.get('force_slow') else "s_branch L_step_f")


def chain_loop(e, cfg, sfx, st):
    acc = {('q', 0): ACC, ('q', 1): ACC + 4, ('k', 0): ACC + 8, ('k', 1): ACC + 12, ('v', 0): ACC + 16, ('v', 1): ACC + 20}
    loc = dict(RES)
    for o in range(10):
        loc[STREAM[o]] = ('v', R1[o])
    for o in range(6):
        loc[STREAM[10 + o]] = ('v', WO_SB[o])
    diag = cfg.get('diag')

    def stamp(n):
        tr = cfg.get('trace')
        if tr and n in tr:
            e.raw(f"  s_memtime {sr(20 + 2 * tr.index(n), 2)}")

    def trace_out(where, TR):
        if cfg.get('trace') and cfg.get('tpos', 'mid') == where:
            e(f"""s_memtime s[32:33]
                  s_memrealtime s[34:35]
                  s_lshl_b32 s40, s{S_ROLE}, 2
                  s_add_u32 s40, s40, s{S_WAVE}
                  s_lshl_b32 s40, s40, 6
                  s_add_u32 s40, s40, s{sStep}
                  s_lshl_b32 s40, s40, 5
                  s_add_u32 s40, s40, 0x6200000
                  s_waitcnt lgkmcnt(0)""")
            for j in range(8):
                e(f"v_mov_b32 v{TR + j}, s{20 + 2 * j}")
            e(f"""s_mov_b64 exec, 1
                  buffer_store_dwordx4 {vr(TR, 4)}, off, {W}, s40
                  buffer_store_dwordx4 {vr(TR + 4, 4)}, off, {W}, s40 offset:16
                  s_mov_b64 exec, -1""")

    def P(m, ft, i):
        k, b = loc[(m, ft, i)]
        return f"v_smfmac_f32_16x16x64_bf16 {vr(acc[(m, ft)], 4)}, {vr(MA + 4 * i, 4)}, {vr(b, 8, k)}, v{vIdx}"

    def post(a, dst):
        return [f"v_add_f32 v{a}, v{a}, v{a + 1}", f"v_add_f32 v{a + 2}, v{a + 2}, v{a + 3}",
                f"v_cvt_pk_bf16_f32 v{dst}, v{a}, v{a + 2}"]

    def xread(kb):
        return [f"ds_read_b64_tr_b16 {vr(X + 4 * kb, 2)}, v{vTr} offset:{kb * 256}",
                f"ds_read_b64_tr_b16 {vr(X + 4 * kb + 2, 2)}, v{vTr} offset:{kb * 256 + 64}"]

    kx_dst = [KXR, SPARE, KXR + 4, SPARE + 4, KXR + 8, KXR, KXR + 12, KXR + 4]

    def kxread(n):
        return f"ds_read_b128 {vr(kx_dst[n], 4)}, v{vKXr} offset:{(n >> 1) * 2048 + (n & 1) * 256}"

    Sx = [ACC, ACC + 4]
    Sm, Px = ACC + 8, ACC + 12

    def smx(n):
        kb, t = n >> 1, n & 1
        c = '0' if kb == 0 else vr(Sx[t], 4)
        return f"v_mfma_f32_16x16x32_bf16 {vr(Sx[t], 4)}, {vr(kx_dst[n], 4)}, {vr(X + 4 * kb, 4)}, {c}"

    def smm(kb):
        c = '0' if kb == 0 else vr(Sm, 4)
        return f"v_mfma_f32_16x16x32_bf16 {vr(Sm, 4)}, {vr(X + 4 * kb, 4)}, {vr(X + 4 * kb, 4)}, {c}"

    pace = cfg.get('pace', 0)
    ldH = lambda: pace and e.loose(f"buffer_load_dword v{HD}, v{HA}, {W}, s{sHl} offen sc1")
    ldV = [f"buffer_load_dwordx4 {vr(VX, 4)}, v{vKXr}, {W}, s{sVx} offen sc1",
           f"buffer_load_dwordx4 {vr(VX + 4, 4)}, v{vKXr}, {W}, s{sVx} offen offset:256 sc1"]
    ldK = [f"buffer_load_dwordx4 v{vL16}, {W}, s{sKV} offen sc1 lds",
           f"buffer_load_dwordx4 v{vL16}, {W}, s{sKV} offen offset:1024 sc1 lds"]
    touch = f"buffer_load_dword v{PM + 3}, {W}, s{sVt} offen sc1 lds"
    export = f"buffer_store_dwordx4 {vr(EX, 4)}, v{vL16}, {W}, s{sExp} offen sc1"
    progress = f"s_mov_b64 exec, 1\n buffer_store_dword v{TMP}, off, {W}, s{sFch} sc1\n s_mov_b64 exec, -1"
    ldF = f"buffer_load_dword v{TMP + 3}, v{TMP + 3}, {W}, s{sFl} offen sc1"
    if cfg.get('noexp'):
        export = progress = "s_nop 0"
    rf = sum([wl_lines(STREAM[o], R1[o]) for o in range(8, 10)], [])
    wo = sum([wl_lines(STREAM[10 + o], WO_SB[o]) for o in range(6)], [])
    q0p, q1p, k0p, k1p = post(ACC, ACC + 1), post(ACC + 4, ACC + 5), post(ACC + 8, EX), post(ACC + 12, EX + 1)
    v0p, v1p = post(ACC + 16, EX + 2), post(ACC + 20, EX + 3)
    m0, m1 = TMP, TMP + 1
    C0 = PM
    zero = [f"v_mov_b64 {vr(MA + j, 2)}, 0" for j in range(0, 32, 2)]
    st_ = lambda n: (lambda: stamp(n))
    mx = lambda d, a, b, c_: f"v_max3_f32 v{d}, v{a}, v{b}, v{c_}"

    def check(blocks):
        r = [MA + 4 * b + j for b in blocks for j in range(4)]
        out = [f"v_max3_u32 v{C0}, v{r[0]}, v{r[1]}, v{r[2]}"]
        k = 3
        while k + 1 < len(r):
            out.append(f"v_max3_u32 v{C0}, v{C0}, v{r[k]}, v{r[k + 1]}"); k += 2
        out.append(f"v_max_u32 v{C0}, v{C0}, v{r[k]}")
        out.append(f"v_cmp_eq_u32 vcc, -1, v{C0}")
        return out

    def mread(i):
        return f"ds_read_b128 {vr(MA + 4 * i, 4)}, v{TMP + (i >> 1)} offset:{(i & 1) * 4096}"

    e.slot_no = 0
    e.slot_hook = lambda n: stamp(100 + n)
    e.forget()
    e.raw(".p2align 8\n" + "  s_nop 0\n" * cfg.get('ph', 8))
    e.label(f"L_step_{sfx}")
    e("s_waitcnt vmcnt(2)")
    e.label(f"L_chkE_{sfx}")
    xe = 0
    lastsp = cfg.get('lastsp', 1)
    spec = 0
    ce_ = check((0,))
    specb = []
    if spec:
        e(f"ds_write_b128 v{vMw}, {vr(MA, 4)}")
    else:
        e("\n".join(ce_))
        e(f"""ds_write_b128 v{vMw}, {vr(MA, 4)}
              s_cbranch_vccnz L_retE_{sfx}""")
    stamp(0)
    cl_ = check((1,))
    z = lambda: zero.pop(0)
    lw = lambda n: (lambda: e.wait(lgkm=n))
    seq = [
        (P('q', 0, 0), [lambda: e.loose(mload(1))] if not spec else ce_ + [f"s_cbranch_vccnz L_retE_{sfx}", lambda: e.loose(mload(1))]),
        (P('q', 1, 0), [ldV[0]]),
        (P('k', 0, 0), [ldV[1], e.barrier, mread(2), mread(4)]),
        (P('k', 1, 0), [mread(6), "s_waitcnt vmcnt(3)", cl_[0]]),
        (P('v', 0, 0), [cl_[1]]),
        (P('v', 1, 0), [cl_[2], f"ds_write_b128 v{vMw}, {vr(MA + 4, 4)} offset:4096", f"s_cbranch_vccnz L_retL_{sfx}", f"L_okL_{sfx}:"]),
        (P('q', 0, 1), [st_(1)]),
        (P('q', 1, 1), []),
        (P('k', 0, 1), [rf[0]]),
        (P('k', 1, 1), [rf[1], lw(3)]),
        (P('q', 0, 2), [rf[2]]),
        (P('q', 1, 2), [e.lds_writes_done]),
        (P('k', 0, 2), [e.barrier, ldK[0], mread(3)]),
        (P('k', 1, 2), [mread(5)]),
        (P('q', 0, 4), [mread(7), f"v_lshrrev_b32 v{TMP + 3}, 2, v{vL16}"]),
        (P('q', 1, 4), [ldK[1], f"s_movk_i32 m0, {L_DUMMY}"]),
        (P('k', 0, 4), [rf[3]]),
        (P('k', 1, 4), [touch]),
        (P('q', 0, 6), [kxread(0)]),
        (P('q', 1, 6), [kxread(2), ldF]),
        (P('k', 0, 6), ([] if xe else [export]) + [lambda: trace_out('mid', SPARE)]),
        (P('k', 1, 6), [kxread(4), st_(2), lw(3)]),
        (P('q', 0, 3), [kxread(6)]),
        (P('q', 0, 5), [kxread(1)]),
        (P('q', 0, 7), [kxread(3)]),
        (P('q', 1, 3), [lambda: e.prewait(f"v_mov_b32 v{VX + 7}, v{VX + 7}"), "s_nop 0"]),
        (P('q', 1, 5), [progress]),
        (P('q', 1, 7), ["s_nop 0", q0p[0]]),
        (P('k', 0, 3), ["s_nop 0", q0p[1]]),
        (P('k', 0, 5), ["s_nop 0", q0p[2]]),
        (P('k', 0, 7), [q1p[0]]),
        (P('k', 1, 3), ["s_nop 0", q1p[1]]),
        (P('k', 1, 5), ["s_nop 0", q1p[2]]),
        (P('k', 1, 7), [f"ds_write2_b32 v{vTw}, v{ACC + 1}, v{ACC + 5} offset0:0 offset1:32", st_(3), k0p[0]]),
        (P('v', 0, 1), ["s_nop 0", k0p[1]]),
        (P('v', 1, 1), ["s_nop 0", k0p[2], k1p[0]]),
        (P('v', 0, 2), [k1p[1], k1p[2]]),
        (P('v', 1, 2), [f"ds_write2_b32 v{vTw}, v{EX}, v{EX + 1} offset0:1 offset1:33", z()]),
        (P('v', 0, 3), [z()]),
        (P('v', 1, 3), [z()]),
        (P('v', 0, 4), [z()]),
        (P('v', 1, 4), [e.lds_writes_done, z()]),
        (P('v', 0, 5), [e.barrier] + xread(0)),
        (P('v', 1, 5), xread(1) + [z()]),
        (P('v', 0, 6), xread(2) + [z()]),
        (P('v', 0, 7), xread(3) + [z()]),
        (P('v', 1, 6), ([] if lastsp else [f"s_cmp_eq_u32 s{sStep}, 63"]) + [z()]),
        (P('v', 1, 7), [st_(4), lw(4), z()]),
        (smx(0), [z(), z()]),
        (smx(2), [kxread(5), lw(1)]),
        (smx(4), [kxread(7), v0p[0]]),
        (smx(6), [v0p[1], v0p[2]]),
        (smm(0), [v1p[0], v1p[1]]),
        (smm(1), [v1p[2], z()]),
        (smm(2), ([] if lastsp else ["s_cbranch_scc1 L_final"]) + [mx(m0, Sx[0], Sx[0] + 1, Sx[0] + 2)]),
        (smm(3), [z(), z()]),
        (smx(1), [lw(0), z()]),
        (smx(3), [f"v_exp_f32 v{m1}, v{vIdx}"] if cfg.get('warm', 1) == 1 else []),
        (smx(5), [mx(m0, m0, Sx[0] + 3, Sm + 2), f"v_max_f32 v{m0}, v{m0}, v{Sm + 3}"]),
        (smx(7), [wo[0], f"s_add_u32 s{sStep}, s{sStep}, 1", wo[1], f"s_xor_b32 s{sTog}, s{sTog}, 0x2000", wo[2],
                  f"s_mov_b32 s{sG}, s{sG2}", wo[3], f"v_xor_b32 v{vKXr}, 0x2000, v{vKXr}"]),
    ]
    e.slots(seq)
    assert not zero
    e(f"""{mx(m0, m0, Sx[1], Sx[1] + 1)}
          {mx(m0, m0, Sx[1] + 2, Sx[1] + 3)}
          v_mov_b32 v{m1}, v{m0}
          v_permlane32_swap_b32 v{m0}, v{m1}
          v_max_f32 v{m0}, v{m0}, v{m1}
          v_mov_b32 v{m1}, v{m0}
          v_permlane16_swap_b32 v{m0}, v{m1}
          v_max_f32 v{m0}, v{m0}, v{m1}
          v_mul_f32 v{m0}, s{sC}, v{m0}""")
    for j in (0, 2, 4, 6, 10):
        e(f"v_pk_fma_f32 {vr(ACC + j, 2)}, {vr(ACC + j, 2)}, {sr(sC, 2)}, {vr(m0, 2)} op_sel_hi:[1,0,0] neg_lo:[0,0,1] neg_hi:[0,0,1]")
    for j in (0, 1, 2, 3, 4, 5, 6, 7, 10, 11):
        e(f"v_exp_f32 v{ACC + j}, v{ACC + j}")
    stamp(5)
    for j in range(4):
        e(f"v_cvt_pk_bf16_f32 v{Px + j}, v{ACC + 2 * j}, v{ACC + 2 * j + 1}")
    e(f"""v_cvt_pk_bf16_f32 v{PM}, v{Sm + 2}, v{Sm + 3}
          v_cvt_pk_bf16_f32 v{PM + 3}, v{Sm + 2}, v{Sm + 3}
          v_pk_add_f32 {vr(ACC, 2)}, {vr(ACC, 2)}, {vr(ACC + 2, 2)}
          v_pk_add_f32 {vr(ACC + 4, 2)}, {vr(ACC + 4, 2)}, {vr(ACC + 6, 2)}
          v_pk_add_f32 {vr(ACC, 2)}, {vr(ACC, 2)}, {vr(Sm + 2, 2)}
          v_pk_add_f32 {vr(m0, 2)}, {vr(ACC, 2)}, {vr(ACC + 4, 2)}""")
    O = SPARE
    mpos = cfg.get('mpos', 'w')
    mark = ["s_mov_b64 exec, 0xff", f"buffer_store_dword v{HV}, v{HS}, {W}, s{sHs} offen {st}", "s_mov_b64 exec, -1", st_(15)]
    hsetup = [f"v_bfe_u32 v{HA}, v{vL16}, 2, 7", f"v_mov_b32 v{HD}, {cfg.get('hdef', -1)}"]
    e.slots([
        (f"v_mfma_f32_16x16x32_bf16 {vr(O, 4)}, {vr(VX, 4)}, {vr(Px, 4)}, 0",
         [f"v_add_f32 v{m0}, v{m0}, v{m1}", f"v_mov_b32 v{m1}, v{m0}"]),
        (f"v_mfma_f32_16x16x32_bf16 {vr(O + 4, 4)}, {vr(VX + 4, 4)}, {vr(Px, 4)}, 0",
         [f"v_permlane32_swap_b32 v{m0}, v{m1}"]),
        (f"v_mfma_f32_16x16x16_bf16 {vr(O, 4)}, {vr(EX + 2, 2)}, {vr(PM, 2)}, {vr(O, 4)}",
         [f"v_add_f32 v{m0}, v{m0}, v{m1}", f"v_mov_b32 v{m1}, v{m0}"]),
        (f"v_mfma_f32_16x16x16_bf16 {vr(O + 4, 4)}, {vr(EX + 2, 2)}, {vr(PM + 2, 2)}, {vr(O + 4, 4)}",
         [f"v_permlane16_swap_b32 v{m0}, v{m1}", f"v_add_f32 v{m0}, v{m0}, v{m1}", f"v_rcp_f32 v{m0}, v{m0}",
          ]),
    ])
    for j in range(0, 8, 2):
        e(f"v_pk_mul_f32 {vr(O + j, 2)}, {vr(O + j, 2)}, {vr(m0, 2)} op_sel_hi:[1,0]")
    OA = ACC + 16
    for j in range(4):
        e(f"v_cvt_pk_bf16_f32 v{O + j}, v{O + 2 * j}, v{O + 2 * j + 1}")
    e(f"ds_write_b128 v{vOw}, {vr(O, 4)}")
    if mpos == 'w' and pace:
        e("\n".join(mark[:3])); stamp(15)
    if mpos == 'p':
        e("\n".join(hsetup))
    if cfg.get('h0'):
        delay(e, cfg['h0']); ldH()
    e.barrier()
    e(f"""ds_read_b128 {vr(OA, 4)}, v{vL16} offset:{L_OB}
          ds_read_b128 {vr(OA + 4, 4)}, v{vL16} offset:{L_OB + 1024}""")
    stamp(6)
    OUT = SPARE

    def pstore(c):
        return f"buffer_store_dwordx4 {vr(OUT + 4 * c, 4)}, v{vPst}, {W}, s{sPbaseS} offen offset:{c * 2048} {st}"

    tag = lambda j: f"v_and_or_b32 v{OUT + j}, v{OUT + j}, -2, s{sG}"
    seq = []
    for t in range(8):
        for kb in range(2):
            k, b = loc[('o', t, kb)]
            if t >= 2:
                p = post(MA + 4 * (t - 2), OUT + t - 2)
                fl = p[0:1] if kb == 0 else p[1:3]
                if kb == 0 and t % 2 == 1:
                    fl = fl + [tag(t - 3)]
            else:
                fl = ["s_nop 0"]
            n = 2 * t + kb
            if 1 <= n <= 8:
                fl = [wo[3 + n]] + fl
            hc = cfg.get('hc', 10)
            if n in cfg.get('hs', (0, 2, 4, 8)) and pace:
                fl = [ldH] + [x for x in fl if x != "s_nop 0"]
            if n == hc and pace:
                fl = fl + [f"v_cmp_gt_u32 vcc, s{sStep}, v{HD}"]
            if n == hc + 1:
                fl = fl + [st_(16)] + ([f"s_cbranch_vccnz L_hret_{sfx}"] if pace else []) + [f"L_hok_{sfx}:", st_(13)]
            if kb == 0 and t == 6:
                fl = [pstore(0)] + fl
            seq.append((f"v_smfmac_f32_16x16x64_bf16 {vr(MA + 4 * t, 4)}, {vr(OA + 4 * kb, 4)}, {vr(b, 8, k)}, v{vIdx}", fl))
    e.slots(seq)
    PL, D, SEL, PL2 = MA + 8, MA + 16, MA + 20, MA + 24
    e("\n".join(post(MA + 24, OUT + 6) + [tag(6)]))
    e("\n".join(post(MA + 28, OUT + 7)))
    e(pstore(1))
    stamp(7)
    trace_out('late', MA)
    e(f"s_bitcmp1_b32 s{S_WAVE}, 0\n s_cbranch_scc1 L_x1_{sfx}")
    e.slot_hook = None
    st0 = e.state()
    ldP = [f"buffer_load_dwordx4 {vr(PL, 4)}, v{vL16}, {W}, s{sPbaseL} offen sc1",
           f"buffer_load_dwordx4 {vr(PL + 4, 4)}, v{vL16}, {W}, s{sPbaseL} offen offset:1024 sc1"]
    tP, dM, eM, gM = cfg.get('tP', (260, 380)), cfg.get('dM', (240, 120)), cfg.get('eM', 200), cfg.get('gM', (120, 120))
    for w in range(2):
        if w:
            e.raw(".p2align 6")
            e.label(f"L_x{w}_{sfx}"); e.set_state(st0)
        clk = [[12, 48][w]]
        pa = prep_a_lines()
        valu = [f"v_cndmask_b32 v{SEL + j}, 0, v{vSelC}, {sr(sSel + 2 * j, 2)}" for j in range(4)] + scalar_lines() + [l for l in pa if not l.startswith('ds_')]
        if diag:
            valu += [f"s_cmp_eq_u32 s{sStep}, 10", f"s_cselect_b32 s{sDbgT + 6}, s36, s{sDbgT + 6}"] + [f"s_cselect_b32 s{k}, 0, s{k}" for k in range(12, 16)]
        reads = [l for l in pa if l.startswith('ds_')]
        late_v = [l for l in pa if not l.startswith('ds_')]
        pool = [l for l in valu if l not in late_v]
        pool = [l for l in pool if not l.startswith('v_')] + [l for l in pool if l.startswith('v_')]
        def until(t):
            while clk[0] + 4 <= t and pool:
                e(pool.pop(0)); clk[0] += 4
            if clk[0] + 4 <= t:
                delay(e, t - clk[0]); clk[0] = t

        until(tP[w])
        e.loose(ldP[0]); e.loose(ldP[1]); stamp(11)
        ldP2 = [x.replace(vr(PL, 4), vr(PL2, 4)).replace(vr(PL + 4, 4), vr(PL2 + 4, 4)) for x in ldP]
        rest = mix(reads, pool, 2)
        nsp = cfg.get('nsp', (10, 10))[w]
        e("\n".join(rest[:nsp]))
        if nsp is not None:
            delay(e, cfg.get('dP2', (60, 40))[w])
            e.loose(ldP2[0]); e.loose(ldP2[1])
        else:
            nsp = len(rest)
        spare = cfg.get('nsp', (10, 10))[w] is not None
        e("\n".join(rest[nsp:]))
        e(f"s_mov_b32 s{sNan}, 0")
        if diag:
            e.raw("  s_memtime s[36:37]")
        ny = 2 if spare else 0
        e(f"""s_waitcnt vmcnt({ny + 1})
              L_redP{w}_{sfx}:
              v_mfma_f32_16x16x32_bf16 {vr(D, 4)}, {vr(PL, 4)}, {vr(SEL, 4)}, 0
              s_waitcnt vmcnt({ny})
              v_mfma_f32_16x16x32_bf16 {vr(D, 4)}, {vr(PL + 4, 4)}, {vr(SEL, 4)}, {vr(D, 4)}
              v_xor_b32 v{C0}, s{sG}, v{PL}
              v_bitop3_b32 v{C0}, v{C0}, v{PL + 2}, s{sG} bitop3:0xf6
              v_bitop3_b32 v{C0}, v{C0}, v{PL + 4}, s{sG} bitop3:0xf6
              v_bitop3_b32 v{C0}, v{C0}, v{PL + 6}, s{sG} bitop3:0xf6
              v_and_b32 v{C0}, 1, v{C0}
              v_cmp_ne_u32 vcc, 0, v{C0}
              v_cmp_ne_u32 {sr(sFm, 2)}, 0, v{TMP + 3}
              s_cbranch_vccnz L_reP{w}_{sfx}
              v_permlane32_swap_b32 v{D}, v{D + 2}
              v_permlane32_swap_b32 v{D + 1}, v{D + 3}
              v_add_f32 v{D}, v{D}, v{D + 2}
              v_add_f32 v{D + 1}, v{D + 1}, v{D + 3}
              v_permlane16_swap_b32 v{D}, v{D + 1}
              v_add_f32 v{D}, v{D}, v{D + 1}
              v_mov_b32_dpp v{D + 1}, v{D} quad_perm:[2,3,0,1] row_mask:0xf bank_mask:0xf
              v_cvt_pk_bf16_f32 v{D}, v{D}, v{D + 1}
              v_min_u32 v{D}, -2, v{D}
              v_cndmask_b32 v{VX + 4}, v{D}, -1, {sr(sArm, 2)}
              buffer_store_dword v{VX + 4}, v{vMst}, {W}, s{sMn2} offen {st}""")
        stamp(8)
        pb = ["s_waitcnt vmcnt(1)"] + prep_b_lines()
        d = dM[w]
        if d >= 100:
            e("\n".join(pb)); d -= 100; pb = []
        delay(e, d)
        e.loose(mload(0)); stamp(12)
        d = gM[w]
        if pb:
            pb[0] = "s_waitcnt vmcnt(2)"
            e("\n".join(pb)); d -= 100
        k = max(0, min(len(late_v), d // 4))
        e("\n".join(late_v[:k])); d -= 4 * k
        delay(e, d)
        e.loose(mload(0)); e.loose(mload(1))
        e("\n".join(late_v[k:]))
        if lastsp:
            e(f"s_cmp_eq_u32 s{sStep}, 63\n s_cbranch_scc1 L_last_{sfx}")
        e(f"""s_bitcmp1_b64 {sr(sFm, 2)}, s{sOK2}
              s_waitcnt lgkmcnt(0)
              s_cbranch_scc1 L_step_{sfx}
              s_branch L_flag_{sfx}""")
        e.forget()
        e(f"L_reP{w}_{sfx}:")
        if spare:
            e("s_waitcnt vmcnt(0)")
            for j in range(0, 8, 2):
                e(f"v_mov_b64 {vr(PL + j, 2)}, {vr(PL2 + j, 2)}")
            e.loose(ldP2[0]); e.loose(ldP2[1])
        else:
            e.loose(ldP[0]); e.loose(ldP[1])
            e("s_waitcnt vmcnt(1)")
        e(f"""{'s_add_u32 s12, s12, 1' if diag else ''}
              s_sub_u32 s{S_SPIN}, s{S_SPIN}, 1
              s_cbranch_scc0 L_redP{w}_{sfx}
              s_branch L_end""")
    e.forget()
    e(f"L_hret_{sfx}:")
    for k in range(6):
        e(f"v_cmp_gt_u32 vcc, s{sStep}, v{HD}")
        ldH()
        if diag:
            e("s_add_u32 s15, s15, 1")
        e(f"s_cbranch_vccz L_{'hrel' if cfg.get('dH') is not None else 'hok'}_{sfx}")
    e(f"""s_sub_u32 s{S_SPIN}, s{S_SPIN}, 1
          s_waitcnt vmcnt(24)
          s_cbranch_scc0 L_hret_{sfx}
          s_branch L_end
          L_hrel_{sfx}:""")
    delay(e, cfg.get('dH') or 0)
    e(f"s_branch L_hok_{sfx}")
    e.forget()
    e(f"""L_flag_{sfx}:
          v_lshrrev_b32 v{C0}, 2, v{vL16}
          buffer_load_dword v{C0}, v{C0}, {W}, s{sFl} offen sc1
          s_sub_u32 s{S_SPIN}, s{S_SPIN}, 1
          s_cbranch_scc1 L_end
          v_cmp_ne_u32 {sr(sFm, 2)}, 0, v{C0}
          s_bitcmp1_b64 {sr(sFm, 2)}, s{sOK2}
          s_cbranch_scc1 L_step_{sfx}
          s_branch L_flag_{sfx}""")
    e.forget()
    e(f"L_retE_{sfx}:")
    e.loose(mload(0)); e.loose(mload(1))
    if spec:
        e(f"s_nop 3\n v_mov_b64 {vr(ACC, 2)}, 0\n v_mov_b64 {vr(ACC + 2, 2)}, 0")
    e(f"""{'s_add_u32 s13, s13, 1' if diag else ''}
          s_sub_u32 s{S_SPIN}, s{S_SPIN}, 1
          s_waitcnt vmcnt(3)
          s_cbranch_scc0 L_chkE_{sfx}
          s_branch L_end""")
    if xe:
        e(f"""L_retL_{sfx}:
              {'s_add_u32 s14, s14, 1' if diag else ''}
              s_sub_u32 s{S_SPIN}, s{S_SPIN}, 1
              s_cbranch_scc1 L_end
              s_bitcmp1_b32 s{sNan}, 0
              s_bitset1_b32 s{sNan}, 0
              s_waitcnt vmcnt(4)
              s_cbranch_scc0 L_retL1_{sfx}""")
        e.loose(mload(1))
        e(f"s_waitcnt vmcnt(0)\n L_retL1_{sfx}:")
    else:
        e(f"L_retL_{sfx}:")
        e.loose(mload(1))
        e(f"""{'s_add_u32 s14, s14, 1' if diag else ''}
              s_sub_u32 s{S_SPIN}, s{S_SPIN}, 1
              s_cbranch_scc1 L_end
              s_bitcmp1_b32 s{sNan}, 0
              s_bitset1_b32 s{sNan}, 0
              s_waitcnt vmcnt(3)
              s_cbranch_scc0 L_retL1_{sfx}
              s_waitcnt vmcnt(1)
              L_retL1_{sfx}:""")
    e("\n".join(cl_))
    e(f"""ds_write_b128 v{vMw}, {vr(MA + 4, 4)} offset:4096
          s_cbranch_vccz L_okL_{sfx}
          s_branch L_retL_{sfx}""")
    if not lastsp:
        return
    e.forget()
    e(f"L_lret_{sfx}:")
    e.loose(mload(0)); e.loose(mload(1))
    e(f"""s_sub_u32 s{S_SPIN}, s{S_SPIN}, 1
          s_cbranch_scc1 L_end
          L_last_{sfx}:
          s_waitcnt vmcnt(0) lgkmcnt(0)""")
    e("\n".join(check((0, 1))))
    e(f"""ds_write_b128 v{vMw}, {vr(MA, 4)}
          ds_write_b128 v{vMw}, {vr(MA + 4, 4)} offset:4096
          s_cbranch_vccnz L_lret_{sfx}""")
    own = [(m, ft, i) for i in (0, 1) for m in 'kv' for ft in range(2)]
    seq = [(P(*op), []) for op in own]
    seq[0][1].append(export)
    seq[3][1].extend([progress, e.barrier, mread(2), mread(3)])
    for k in range(4):
        seq[4 + k][1].append(mread(4 + k))
    seq += [(P(m, ft, i), []) for i in range(2, 6) for m in 'kv' for ft in range(2)]
    seq += [(P(m, ft, i), []) for m in 'kv' for ft in range(2) for i in (6, 7)]
    e.slots(seq)
    e("\n".join(k0p + k1p + v0p + v1p))
    e("s_branch L_final")


def chain_final(e, cfg):
    e.forget()
    e("L_final:")
    if cfg.get('holdend'):
        e(f"""L_hold2:
              s_memrealtime s[92:93]
              s_waitcnt lgkmcnt(0)
              s_sub_u32 s92, s92, s94
              s_cmp_lt_u32 s92, {cfg['holdend']}
              s_cbranch_scc1 L_hold2""")
    e(f"""s_add_u32 s{sExp}, s{sExp}, 4096
          buffer_store_dwordx4 {vr(EX, 4)}, v{vL16}, {W}, s{sExp} offen sc1
          s_waitcnt lgkmcnt(0)""")
    if cfg.get('diag'):
        e(f"""s_memrealtime {sr(sDbgT + 12, 2)}
              s_lshl_b32 s{sA}, s{S_ROLE}, 2
              s_add_u32 s{sA}, s{sA}, s{S_WAVE}
              s_lshl_b32 s{sA}, s{sA}, 6
              s_add_u32 s{sA}, s{sA}, 0x6000000
              s_waitcnt lgkmcnt(0)
              s_sub_u32 s{sDbgT + 8}, s36, s{sDbgT + 6}""")
        for n, r in enumerate([sDbgT + 8, sDbgT + 5, S_SPIN, sDbgT + 14, sDbgT + 10, sDbgT + 12, 12, 13, 14, 15]):
            e(f"v_mov_b32 v{TMP + 2}, s{r}\n buffer_store_dword v{TMP + 2}, off, {W}, s{sA} offset:{4 * n}")
    dbg_max(e, cfg, 12, v=TMP + 2)
    e("s_waitcnt vmcnt(0)\n s_branch L_end")


def chain(e, cfg):
    CFG.clear(); CFG.update(cfg)
    chain_startup(e, cfg)
    chain_loop(e, cfg, 'f', '')
    chain_loop(e, cfg, 's', 'sc1')
    chain_final(e, cfg)
```

```python
from common import *

L_T, L_OB, L_DUMMY, L_KX, L_WL = 8192, 12544, 14592, 16384, 32768
T_PITCH = 1088
vL16, vPst, vMst, vTw, vTr, vKXr, vOw, vWL0, vWL1, vMw, vIdx, vSelC = range(12)
EX, PM, VX = 12, 16, 20
TMP = 28
MA = 32
ACC = 64
X, KXR, SPARE = 88, 104, 120
R1 = [MA + 8, MA + 16, MA + 24, X, X + 8, KXR, KXR + 8, SPARE, X, X + 8]
WO_SB = [KXR, KXR + 8, X, X + 8, ACC, ACC + 8]
(sStep, sMcur, sProg, sMtog, sG, sKl, sPst2, sKV, sC, sExp, sMcur2, sMbaseS, sPbaseS, sPbaseL, sFl, sFch, sTog, sNan,
 sA, sB) = range(50, 70)
sSel = 70
sOK, sHl, sMn2 = 78, 79, 3
sArm, sFm = 18, 98
sVx, sVt, sHs, sOK2, sG2 = 96, 97, 16, 17, 100
HV, HS, HA, HD = TMP + 2, TMP + 3, VX + 2, VX + 3
S_M0 = 84
sDbgT = 80

STREAM = [('q', 0, 0), ('q', 1, 0), ('k', 0, 0), ('k', 1, 0), ('q', 0, 1), ('q', 1, 1), ('k', 0, 1), ('k', 1, 1),
          ('q', 0, 5), ('q', 0, 7),
          ('o', 5, 0), ('o', 5, 1), ('o', 6, 0), ('o', 6, 1), ('o', 7, 0), ('o', 7, 1)]
WLPOS = {op: p for op, p in zip(STREAM[10:14], range(4))}
WLPOS.update({op: 4 + p for p, op in enumerate(STREAM[14:16] + STREAM[:10])})
ALLOPS = [(m, ft, i) for m in 'qkv' for ft in range(2) for i in range(8)] + [('o', t, kb) for t in range(8) for kb in range(2)]
RES = {}
for n, op in enumerate([o for o in ALLOPS if o not in STREAM]):
    RES[op] = ('a', 8 * n) if n < 32 else ('v', 128 + 8 * (n - 32))
PARK = {}
for n, op in enumerate(STREAM[14:16] + STREAM[:10]):
    PARK[op] = 32 + 8 * n
for n, op in enumerate(STREAM[10:14]):
    PARK[op] = 48 + 8 * n
W = sr(S_WS, 4)
CFG = {}


def wl_addr(op, half):
    p = WLPOS[op]
    off = (p >> 1) * 16384 + (p & 1) * 2048 + half * 1024
    return (vWL0, off) if off < 65536 else (vWL1, off - 65536)


def wl_write(e, op, src):
    for half in range(2):
        a, off = wl_addr(op, half)
        e(f"ds_write_b128 v{a}, {vr(src + 4 * half, 4)} offset:{off}")


def wl_lines(op, dst):
    out = []
    for half in range(2):
        a, off = wl_addr(op, half)
        out.append(f"ds_read_b128 {vr(dst + 4 * half, 4)}, v{a} offset:{off}")
    return out


def delay(e, cyc):
    if CFG.get('slp') and cyc >= 64:
        k = cyc // 64
        e(f"s_sleep {k}")
        cyc -= 64 * k
    n = cyc // 4
    while n > 0:
        k = min(n, 16)
        e(f"s_nop {k - 1}")
        n -= k


def mix(reads, other, per=3):
    out = []
    other = list(other)
    for r in reads:
        out.append(r)
        for _ in range(per):
            if other:
                out.append(other.pop(0))
    return out + other


def mload(b):
    return f"buffer_load_dwordx4 {vr(MA + 4 * b, 4)}, v{vMw}, {W}, s{sMcur if b == 0 else sMcur2} offen sc1"


def kx_dma(e, ldsbase):
    e(f"""s_lshl_b32 s{sA}, s{S_WAVE}, 11
          s_add_u32 m0, s{sA}, {ldsbase}
          buffer_load_dwordx4 v{vL16}, {W}, s{sKV} offen sc1 lds
          buffer_load_dwordx4 v{vL16}, {W}, s{sKV} offen offset:1024 sc1 lds""")


def scalar_lines():
    return [x.strip() for x in f"""s_and_b32 s{sA}, s{sStep}, 3
          s_lshl_b32 s{sA}, s{sA}, 13
          s_add_u32 s{sMcur}, s{sA}, {WS_M}
          s_add_u32 s{sMcur2}, s{sA}, {WS_M + 4096}
          s_and_b32 s{sA}, s{sA}, 0x2000
          s_add_u32 s{sMn2}, s{sMbaseS}, s{sA}
          s_lshl_b32 s{sMtog}, s{sA}, 1
          s_sub_u32 s{sVx}, s{sKV}, s{sTog}
          s_add_u32 s{sVx}, s{sVx}, {8192 - L_KX}
          s_add_u32 s{sKV}, s{sKV}, {0 if CFG.get('samekv') else UNIT}
          s_add_u32 s{sVt}, s{sKV}, 8192
          s_xor_b32 s{sA}, s{sTog}, 0x2000
          s_add_u32 m0, s{sA}, s{sKl}
          s_cmp_gt_u32 s{sStep}, {0 if CFG.get('xo', 0) else 1}
          s_cselect_b32 s{sA}, 4096, 0
          s_add_u32 s{sExp}, s{sExp}, s{sA}
          s_add_u32 s{sOK2}, s{sStep}, 1
          s_max_u32 s{sProg}, s{sStep}, {0 if CFG.get('xo', 0) else 1}
          s_sub_u32 s{sProg}, s{sProg}, {0 if CFG.get('xo', 0) else 1}
          s_and_b32 s{sG2}, s{sOK2}, 1""".split('\n')]


def prep_a_lines():
    other = [f"v_mov_b64 {vr(ACC + j, 2)}, 0" for j in range(0, 24, 2)] + [f"v_lshlrev_b32 v{PM + 3}, 1, v{vL16}", f"v_mov_b32 v{TMP}, s{sProg}"]
    reads = sum([wl_lines(STREAM[o], R1[o]) for o in range(3, 8)], [])
    return mix(reads, other, 2)


def prep_b_lines():
    other = [f"v_xor_b32 v{vMst}, s{sMtog}, v{vMst}"] + [f"v_xor_b32 v{TMP + p}, {p << 10}, v{vMw}" for p in range(1, 4)]
    reads = sum([wl_lines(STREAM[o], R1[o]) for o in range(3)], [])
    return mix(reads, other, 1)


def chain_startup(e, cfg):
    h = S_ROLE
    tA, tB, tC, tD = EX, EX + 1, EX + 2, EX + 3
    t0, t1, t2, t3 = TMP, TMP + 1, TMP + 2, TMP + 3
    lane = PM
    chunks = [('o', kb, Q) for kb in range(2) for Q in range(4)] + [(m, b, 0) for m in 'qkv' for b in range(8)]
    ring = {4: L_WL + 2 * 16384, 5: L_WL + 3 * 16384, 6: L_WL + 4 * 16384, 0: L_WL + 5 * 16384, 1: L_WL + 6 * 16384,
            2: L_WL + 7 * 16384, 3: 0}
    ptr = {'q': P_WQ, 'k': P_WK, 'v': P_WV, 'o': P_WO}
    sHq, sHo, sLw = sMcur, sProg, sMcur2
    cur, marks = [None], {}

    def dma(r):
        m, x, Q = chunks[r]
        if cur[0] != m:
            srd(e, S_T0, ptr[m], 0x400000); cur[0] = m
        for i in range(4):
            if m == 'o':
                row = 64 * x + 32 * (Q >> 1) + 2 * (Q & 1) + 4 * (i >> 1) + (i & 1)
                e(f"""s_add_u32 s{sA}, s{sHo}, {row * 1024}
                      s_add_u32 m0, s{sLw}, {ring[r % 7] + i * 1024}
                      buffer_load_dwordx4 v{vL16}, {sr(S_T0, 4)}, s{sA} offen lds""")
            else:
                e(f"""s_add_u32 s{sA}, s{sHq}, {(128 * (x & 3) + 64 * (x >> 2) + 4 * i) * 8192}
                      s_add_u32 m0, s{sLw}, {ring[r % 7] + i * 1024}
                      buffer_load_dwordx4 v{tA}, {sr(S_T0, 4)}, s{sA} offen lds""")
        marks[r] = e.vm[-1]

    e(f"""v_and_b32 v{lane}, 63, v0
          v_lshlrev_b32 v{vL16}, 4, v{lane}
          s_and_b32 s{sA}, s{S_WAVE}, 1
          s_lshr_b32 s{sB}, s{S_WAVE}, 1
          s_lshl_b32 s{sHo}, s{h}, 17
          s_lshl_b32 s{sLw}, s{sA}, 14
          s_add_u32 s{sHo}, s{sHo}, s{sLw}
          s_lshl_b32 s{sLw}, s{sB}, 13
          s_add_u32 s{sHo}, s{sHo}, s{sLw}
          s_lshl_b32 s{sHq}, s{h}, 8
          s_lshl_b32 s{sLw}, s{S_WAVE}, 17
          s_add_u32 s{sHq}, s{sHq}, s{sLw}
          s_lshl_b32 s{sLw}, s{S_WAVE}, 12""")
    for r in range(6):
        dma(r)
    e(f"""v_lshrrev_b32 v{t0}, 4, v{lane}
          v_and_b32 v{t1}, 15, v{lane}
          s_lshl_b32 s{sA}, s{S_WAVE}, 10
          v_add_u32 v{vMw}, s{sA}, v{vL16}
          v_lshlrev_b32 v{PM + 3}, 2, v{lane}""")
    e(f"""v_lshrrev_b32 v{t2}, 2, v{lane}
          v_lshlrev_b32 v{t2}, 12, v{t2}
          v_and_b32 v{t3}, 3, v{lane}
          v_lshl_add_u32 v{vPst}, v{t3}, 4, v{t2}""")
    e(f"""v_and_b32 v{t2}, 1, v{lane}
          v_lshlrev_b32 v{t2}, 5, v{t2}
          v_lshl_add_u32 v{t2}, v{t0}, 3, v{t2}
          v_and_b32 v{t3}, 4, v{lane}
          v_add_u32 v{t2}, v{t2}, v{t3}
          v_and_b32 v{t3}, 8, v{lane}
          v_cmp_ne_u32 {sr(sArm, 2)}, 0, v{t3}
          v_lshl_add_u32 v{t2}, v{t3}, 11, v{t2}
          v_and_b32 v{t3}, 2, v{lane}
          v_lshl_add_u32 v{vMst}, v{t3}, 29, v{t2}""")
    srd(e, S_M0, P_MEM0, 8192)
    e(f"""v_and_b32 v{t2}, 1, v{lane}
          v_lshlrev_b32 v{tD}, 10, v{t2}
          v_lshl_add_u32 v{tD}, v{t0}, 1, v{tD}
          v_bfe_u32 v{t2}, v{lane}, 2, 1
          v_lshl_add_u32 v{tD}, v{t2}, 6, v{tD}
          s_and_b32 s{sA}, s{h}, 6
          s_lshl_b32 s{sA}, s{sA}, 10
          s_lshr_b32 s{sB}, s{h}, 3
          s_lshl_b32 s{sB}, s{sB}, 8
          s_add_u32 s{sA}, s{sA}, s{sB}
          s_and_b32 s{sB}, s{S_WAVE}, 1
          s_lshl_b32 s{sB}, s{sB}, 7
          s_add_u32 s{sA}, s{sA}, s{sB}
          s_lshr_b32 s{sB}, s{S_WAVE}, 1
          s_lshl_b32 s{sB}, s{sB}, 3
          s_add_u32 s{sA}, s{sA}, s{sB}
          s_and_b32 s{sB}, s{h}, 1
          s_lshl_b32 s{sB}, s{sB}, 4
          s_add_u32 s{sA}, s{sA}, s{sB}
          buffer_load_ushort v{VX}, v{tD}, {sr(S_M0, 4)}, s{sA} offen
          buffer_load_ushort v{VX + 1}, v{tD}, {sr(S_M0, 4)}, s{sA} offen offset:32""")
    e(f"""s_lshl_b32 s{sA}, s{S_WAVE}, 8
          s_add_u32 s{sA}, s{sA}, {L_T}
          v_mul_u32_u24 v{t2}, {T_PITCH}, v{t0}
          v_lshl_add_u32 v{t2}, v{t1}, 3, v{t2}
          v_add_u32 v{vTw}, s{sA}, v{t2}
          v_and_b32 v{t3}, 3, v{lane}
          v_mul_u32_u24 v{t2}, {T_PITCH}, v{t3}
          v_lshrrev_b32 v{t3}, 5, v{lane}
          v_lshl_add_u32 v{t2}, v{t3}, 7, v{t2}
          v_bfe_u32 v{t3}, v{lane}, 2, 3
          v_lshl_add_u32 v{t2}, v{t3}, 3, v{t2}
          v_add_u32 v{vTr}, {L_T}, v{t2}
          v_lshlrev_b32 v{t2}, 9, v{t0}
          v_lshl_add_u32 v{t2}, v{t1}, 4, v{t2}
          v_add_u32 v{vKXr}, {L_KX}, v{t2}""")
    e(f"""s_lshl_b32 s{sA}, s{S_WAVE}, 9
          s_add_u32 s{sA}, s{sA}, {L_OB}
          v_lshrrev_b32 v{t2}, 5, v{lane}
          v_lshlrev_b32 v{t2}, 8, v{t2}
          v_and_b32 v{t3}, 16, v{lane}
          v_add_u32 v{t2}, v{t2}, v{t3}
          v_and_b32 v{t3}, 12, v{lane}
          v_lshl_add_u32 v{t2}, v{t3}, 4, v{t2}
          v_and_b32 v{t3}, 1, v{lane}
          v_lshl_add_u32 v{t2}, v{t3}, 5, v{t2}
          v_add_u32 v{t2}, s{sA}, v{t2}
          v_and_b32 v{t3}, 2, v{lane}
          v_lshlrev_b32 v{t3}, 12, v{t3}
          v_sub_u32 v{vOw}, v{t2}, v{t3}
          s_add_u32 s{sA}, s{sLw}, {L_WL}
          v_add_u32 v{vWL0}, s{sA}, v{vL16}
          v_add_u32 v{vWL1}, 0x10000, v{vWL0}""")
    e(f"""v_and_b32 v{t2}, 1, v{lane}
          v_cmp_ne_u32 vcc, 0, v{t2}
          v_mov_b32 v{t2}, 0x4444
          v_mov_b32 v{t3}, 0xeeee
          v_cndmask_b32 v{vIdx}, v{t2}, v{t3}, vcc
          v_mov_b32 v{t2}, 0x3f80
          v_mov_b32 v{t3}, 0x3f800000
          v_cndmask_b32 v{vSelC}, v{t2}, v{t3}, vcc
          v_lshrrev_b32 v{t2}, 1, v{t1}""")
    for j in range(4):
        e(f"v_cmp_eq_u32 {sr(sSel + 2 * j, 2)}, {j}, v{t2}")
    e(f"""v_lshlrev_b32 v{tA}, 13, v{t0}
          v_lshlrev_b32 v{t2}, 2, v{t0}
          v_xor_b32 v{t2}, v{t2}, v{t1}
          v_lshl_add_u32 v{tA}, v{t2}, 4, v{tA}""")
    e(f"""v_bfe_u32 v{t2}, v{lane}, 2, 1
          v_lshlrev_b32 v{tB}, 12, v{t2}
          v_bfe_u32 v{t2}, v{lane}, 5, 1
          v_lshl_add_u32 v{tB}, v{t2}, 10, v{tB}
          v_bfe_u32 v{t2}, v{lane}, 3, 1
          v_lshl_add_u32 v{tB}, v{t2}, 9, v{tB}
          v_bfe_u32 v{t2}, v{lane}, 4, 1
          v_lshl_add_u32 v{tB}, v{t2}, 8, v{tB}
          v_and_b32 v{t2}, 3, v{lane}
          v_lshl_add_u32 v{tB}, v{t2}, 3, v{tB}
          v_bfe_u32 v{t3}, v{tB}, 8, 2
          v_xor_b32 v{t3}, s{S_WAVE}, v{t3}
          v_lshl_add_u32 v{tB}, v{t3}, 6, v{tB}""")
    e(f"""v_lshrrev_b32 v{t3}, 2, v{lane}
          v_lshlrev_b32 v{tC}, 10, v{t3}
          v_lshl_add_u32 v{tC}, v{t2}, 3, v{tC}
          s_lshl_b32 s{sA}, s{S_WAVE}, 8
          v_add_u32 v{tC}, s{sA}, v{tC}""")
    e(f"""s_lshl_b32 s{sA}, s{S_WAVE}, 11
          s_lshl_b32 s{sB}, s{h}, 13
          s_add_u32 s{sPbaseL}, s{sA}, s{sB}
          s_add_u32 s{sPbaseL}, s{sPbaseL}, {WS_P}
          s_lshl_b32 s{sA}, s{S_WAVE}, 16
          s_lshl_b32 s{sB}, s{h}, 6
          s_add_u32 s{sPbaseS}, s{sA}, s{sB}
          s_add_u32 s{sPbaseS}, s{sPbaseS}, {WS_P}""")
    e(f"""s_and_b32 s{sA}, s{S_WAVE}, 1
          s_lshl_b32 s{sMbaseS}, s{sA}, 12
          s_and_b32 s{sA}, s{h}, 24
          s_lshl_b32 s{sA}, s{sA}, 7
          s_add_u32 s{sMbaseS}, s{sMbaseS}, s{sA}
          s_and_b32 s{sA}, s{h}, 1
          s_lshl_b32 s{sA}, s{sA}, 9
          s_add_u32 s{sMbaseS}, s{sMbaseS}, s{sA}
          s_lshr_b32 s{sA}, s{S_WAVE}, 1
          s_lshl_b32 s{sA}, s{sA}, 8
          s_add_u32 s{sMbaseS}, s{sMbaseS}, s{sA}
          s_and_b32 s{sA}, s{h}, 6
          s_lshl_b32 s{sA}, s{sA}, 5
          s_add_u32 s{sMbaseS}, s{sMbaseS}, s{sA}
          s_add_u32 s{sMbaseS}, s{sMbaseS}, {WS_M}""")
    e(f"""s_mul_i32 s{sKV}, s{h}, {64 * UNIT}
          s_lshl_b32 s{sA}, s{S_WAVE}, 11
          s_add_u32 s{sKV}, s{sKV}, s{sA}
          s_add_u32 s{sKV}, s{sKV}, {WS_QKV + 8192}
          s_lshl_b32 s{sExp}, s{h}, 18
          s_lshl_b32 s{sA}, s{S_WAVE}, 10
          s_add_u32 s{sExp}, s{sExp}, s{sA}
          s_add_u32 s{sExp}, s{sExp}, {WS_EXP}
          s_lshl_b32 s{sFl}, s{h}, 8
          s_add_u32 s{sFl}, s{sFl}, {F_QKV}
          s_lshl_b32 s{sFch}, s{h}, 7
          s_lshl_b32 s{sA}, s{S_WAVE}, 2
          s_add_u32 s{sFch}, s{sFch}, s{sA}
          s_add_u32 s{sFch}, s{sFch}, {F_CH}
          s_mov_b32 s{sC}, 0x3e0293ee
          s_add_u32 s{sPst2}, s{sPbaseS}, 4096
          s_lshl_b32 s{sKl}, s{S_WAVE}, 11
          s_add_u32 s{sKl}, s{sKl}, {L_KX}
          s_lshl_b32 s{sHl}, s{h}, 7
          s_add_u32 s{sHl}, s{sHl}, {F_HINT}
          s_lshl_b32 s{sHs}, s{h}, 2
          s_lshl_b32 s{sA}, s{S_WAVE}, 10
          s_add_u32 s{sHs}, s{sHs}, s{sA}
          s_add_u32 s{sHs}, s{sHs}, {F_HINT}
          s_mov_b32 s{sOK}, 1""")
    e(f"""v_mov_b64 {vr(VX + 4, 2)}, 0
          v_mov_b64 {vr(VX + 6, 2)}, 0
          v_mov_b32 v{VX + 2}, -1
          s_add_u32 s{sB}, s{sMbaseS}, 8192
          buffer_store_dwordx4 {vr(VX + 4, 4)}, v{vL16}, {W}, s{sPbaseL} offen sc1
          buffer_store_dwordx4 {vr(VX + 4, 4)}, v{vL16}, {W}, s{sPbaseL} offen offset:1024 sc1
          buffer_store_dword v{VX + 2}, v{vMst}, {W}, s{sB} offen sc1""")
    if cfg.get('sdiag'):
        e("s_memrealtime s[20:21]\n s_waitcnt lgkmcnt(0)")
    confirm_barrier(e, 'ch')
    if cfg.get('sdiag'):
        e("s_memrealtime s[22:23]\n s_waitcnt lgkmcnt(0)")
    parked = STREAM[14:16] + STREAM[:10]
    for r in range(32):
        m, x, Q = chunks[r]
        if marks[r] in e.vm:
            e.wait(vm=len(e.vm) - 1 - e.vm.index(marks[r]))
        e.wait(lgkm=0)
        e("s_barrier")
        if cfg.get('sdiag') and r in (0, 8, 16, 24, 31):
            e(f"s_memrealtime {sr({0: 24, 8: 26, 16: 28, 24: 36, 31: 40}[r], 2)}\n s_waitcnt lgkmcnt(0)")
        if r == 6:
            e.comment("publish this wave's piece of mem0 in slot 0 (and arm slot 2)")
            e(f"""v_lshl_or_b32 v{VX}, v{VX + 1}, 16, v{VX}
                  v_min_u32 v{VX}, -2, v{VX}
                  v_cndmask_b32 v{VX}, v{VX}, -1, {sr(sArm, 2)}
                  buffer_store_dword v{VX}, v{vMst}, {W}, s{sMbaseS} offen sc1""")
        if r == 12:
            e.comment("every wave's arming stores are complete: count this member as armed")
            e(f"""s_cmp_lg_u32 s{S_WAVE}, 0
                  s_cbranch_scc1 L_cs_in
                  s_cmp_lg_u32 s{S_XCC}, 0
                  s_mov_b32 s{sB}, 0x10000
                  s_cselect_b32 s{sA}, 0x1010000, s{sB}
                  v_mov_b32 v{t0}, s{sA}
                  s_mov_b64 exec, 1
                  buffer_atomic_add v{t0}, off, {sr(S_DBG, 4)}, 0 offset:{D_INIT}
                  s_mov_b64 exec, -1""")
            e.vm.pop()
            e.label("L_cs_in")
        if r + 6 < 32:
            dma(r + 6)
        if r == 8:
            for op in STREAM[10:14]:
                wl_write(e, op, PARK[op])
            e.wait(lgkm=0)
        if r == cfg.get('r1', 16):
            e(f"buffer_load_dword v{PM + 1}, off, {sr(S_DBG, 4)}, 0 offset:{D_INIT} sc1")
        if r == cfg.get('r2', 23):
            e(f"""v_readfirstlane_b32 s{sNan}, v{PM + 1}
                  buffer_load_dword v{PM + 2}, v{PM + 3}, {W}, s{sFl} offen sc1""")
            e(f"""s_add_u32 m0, s{sLw}, {L_KX + 8192}
                  s_lshr_b32 m0, m0, 1
                  s_add_u32 m0, m0, {(L_KX + 8192) // 2}
                  s_lshl_b32 s{sB}, s{h}, 10
                  s_add_u32 s{sB}, s{sB}, {WS_M}
                  buffer_load_dwordx4 v{vL16}, {W}, s{sPbaseL} offen sc1 lds
                  buffer_load_dwordx4 v{vL16}, {W}, s{sPbaseL} offen offset:1024 sc1 lds
                  buffer_load_dwordx4 v{vL16}, {W}, s{sHl} offen sc1 lds
                  buffer_load_dwordx4 v{vL16}, {W}, s{sB} offen sc1 lds""")
        if r == cfg.get('r3', 30):
            e(f"""v_cmp_ne_u32 {sr(sFm, 2)}, 0, v{PM + 2}
                  s_and_b32 s{sOK}, s{sFm}, 3
                  s_cmp_eq_u32 s{sOK}, 3
                  s_cselect_b32 s{sOK}, 1, 0
                  s_and_b32 s{sA}, s{sNan}, 0xffffff
                  s_cmp_eq_u32 s{sA}, 0x200100
                  s_cselect_b32 s{sOK}, s{sOK}, 0""")
            kx_dma(e, L_KX)
            e(f"""s_add_u32 m0, m0, 8192
                  s_add_u32 s{sA}, s{sKV}, 8192
                  buffer_load_dwordx4 v{vL16}, {W}, s{sA} offen sc1 lds
                  buffer_load_dwordx4 v{vL16}, {W}, s{sA} offen offset:1024 sc1 lds""")
        if r == cfg.get('rt', 27):
            e.comment("the last exports are recognised by their data: fill their slots with a pattern no export holds")
            for j in range(4):
                e(f"v_mov_b32 v{VX + j}, {SENT1}")
            for sg in range(64 - NTAIL, 64):
                e(f"s_add_u32 s{sA}, s{sExp}, {sg * 4096}\n buffer_store_dwordx4 {vr(VX, 4)}, v{vL16}, {W}, s{sA} offen sc1")
        if r == 29:
            e(f"buffer_load_dword v{VX + 7}, v{PM + 3}, {W}, s{sFl} offen sc1")
        if r >= 26:
            for op in parked[2 * (r - 26):2 * (r - 26) + 2]:
                wl_write(e, op, PARK[op])
        e(f"v_add_u32 v{t1}, {ring[r % 7]}, v{tC if m == 'o' else tB}")
        if m == 'o':
            for t in range(8):
                op = ('o', t, x)
                kind, base = RES[op] if op in RES else ('v', PARK[op])
                e(f"ds_read_b64_tr_b16 {vr(base + 2 * Q, 2, kind)}, v{t1} offset:{t * 32}")
        else:
            for w in range(1, 4):
                e(f"s_cmp_eq_u32 s{S_WAVE}, {w}\n s_cbranch_scc1 L_cs{r}_{w}")
            st0 = e.state()
            for w in range(4):
                if w:
                    e.label(f"L_cs{r}_{w}"); e.set_state(st0)
                for ft in range(2):
                    op = (m, ft, 2 * ((x & 3) ^ w) + (x >> 2))
                    kind, base = RES[op] if op in RES else ('v', PARK[op])
                    for Q in range(4):
                        e(f"ds_read_b64_tr_b16 {vr(base + 2 * Q, 2, kind)}, v{t1} offset:{(32 * (Q & 1) + 8 * (Q >> 1)) * 256 + ft * 32}")
                if w < 3:
                    e(f"s_branch L_cs{r}_e")
            e.label(f"L_cs{r}_e")
    e.wait(lgkm=0)
    if cfg.get('sdiag'):
        e(f"""s_lshl_b32 s{sA}, s{S_ROLE}, 2
              s_add_u32 s{sA}, s{sA}, s{S_WAVE}
              s_lshl_b32 s{sA}, s{sA}, 6
              s_add_u32 s{sA}, s{sA}, 0x6400000""")
        for n, r in enumerate([94, 20, 22, 24, 26, 28, 36, 40, sOK]):
            e(f"v_mov_b32 v{PM}, s{r}\n buffer_store_dword v{PM}, off, {W}, s{sA} offset:{4 * n}")
    e(f"""s_cmp_lg_u32 s{sOK}, 0
          s_cbranch_scc1 L_cs_ready
          s_and_b32 s{sA}, s{sNan}, 0xffffff
          s_cmp_eq_u32 s{sA}, 0x200100
          s_cbranch_scc1 L_cs_p3
          L_cs_p1:
          buffer_load_dword v{t0}, off, {sr(S_DBG, 4)}, 0 offset:{D_INIT} sc1
          s_sub_u32 s{S_SPIN}, s{S_SPIN}, 1
          s_cbranch_scc1 L_end
          v_readfirstlane_b32 s{sNan}, v{t0}
          s_and_b32 s{sA}, s{sNan}, 0xffffff
          s_cmp_eq_u32 s{sA}, 0x200100
          s_cbranch_scc0 L_cs_p1
          L_cs_p2:
          buffer_load_dword v{VX + 7}, v{PM + 3}, {W}, s{sFl} offen sc1
          s_sub_u32 s{S_SPIN}, s{S_SPIN}, 1
          s_cbranch_scc1 L_end
          L_cs_p3:
          s_waitcnt vmcnt(0)
          v_cmp_ne_u32 {sr(sFm, 2)}, 0, v{VX + 7}
          s_and_b32 s{sA}, s{sFm}, 3
          s_cmp_eq_u32 s{sA}, 3
          s_cbranch_scc0 L_cs_p2""")
    kx_dma(e, L_KX)
    e.label("L_cs_ready")
    e(f"""v_mov_b32 v{PM + 1}, 0
          v_mov_b32 v{PM + 2}, 0
          s_mov_b32 s{sStep}, 0
          s_mov_b32 s{sTog}, 0""")
    e("\n".join(scalar_lines() + prep_a_lines()))
    for b in range(2):
        e(mload(b))
    e("\n".join(prep_b_lines()))
    dbg_max(e, cfg, 11, v=PM, mask=1)
    if cfg.get('holdto'):
        e(f"""L_hold:
              s_memrealtime s[92:93]
              s_waitcnt lgkmcnt(0)
              s_sub_u32 s92, s92, s94
              s_cmp_lt_u32 s92, {cfg['holdto']}
              s_cbranch_scc1 L_hold""")
    e("s_waitcnt vmcnt(0) lgkmcnt(0)\n s_barrier")
    if cfg.get('diag'):
        e.raw(f"  s_memtime {sr(sDbgT + 6, 2)}\n  s_memrealtime {sr(sDbgT + 10, 2)}\n  s_mov_b32 s{sDbgT + 5}, 0\n  s_mov_b32 s12, 0\n  s_mov_b32 s13, 0\n  s_mov_b32 s14, 0\n  s_mov_b32 s15, 0\n  s_waitcnt lgkmcnt(0)")
    e(f"""s_lshr_b32 s{sA}, s{sNan}, 24
          s_mov_b32 s{sNan}, 0
          s_cmp_lg_u32 s{sA}, 0
          s_cbranch_scc1 L_step_s""")
    e("s_branch L_step_s" if cfg.get('force_slow') else "s_branch L_step_f")


def chain_loop(e, cfg, sfx, st):
    acc = {('q', 0): ACC, ('q', 1): ACC + 4, ('k', 0): ACC + 8, ('k', 1): ACC + 12, ('v', 0): ACC + 16, ('v', 1): ACC + 20}
    loc = dict(RES)
    for o in range(10):
        loc[STREAM[o]] = ('v', R1[o])
    for o in range(6):
        loc[STREAM[10 + o]] = ('v', WO_SB[o])
    diag = cfg.get('diag')

    def stamp(n):
        tr = cfg.get('trace')
        if tr and n in tr:
            e.raw(f"  s_memtime {sr(20 + 2 * tr.index(n), 2)}")

    def trace_out(where, TR):
        if cfg.get('trace') and cfg.get('tpos', 'mid') == where:
            e(f"""s_memtime s[32:33]
                  s_memrealtime s[34:35]
                  s_lshl_b32 s40, s{S_ROLE}, 2
                  s_add_u32 s40, s40, s{S_WAVE}
                  s_lshl_b32 s40, s40, 6
                  s_add_u32 s40, s40, s{sStep}
                  s_lshl_b32 s40, s40, 5
                  s_add_u32 s40, s40, 0x6200000
                  s_waitcnt lgkmcnt(0)""")
            for j in range(8):
                e(f"v_mov_b32 v{TR + j}, s{20 + 2 * j}")
            e(f"""s_mov_b64 exec, 1
                  buffer_store_dwordx4 {vr(TR, 4)}, off, {W}, s40
                  buffer_store_dwordx4 {vr(TR + 4, 4)}, off, {W}, s40 offset:16
                  s_mov_b64 exec, -1""")

    def P(m, ft, i):
        k, b = loc[(m, ft, i)]
        return f"v_smfmac_f32_16x16x64_bf16 {vr(acc[(m, ft)], 4)}, {vr(MA + 4 * i, 4)}, {vr(b, 8, k)}, v{vIdx}"

    def post(a, dst):
        return [f"v_add_f32 v{a}, v{a}, v{a + 1}", f"v_add_f32 v{a + 2}, v{a + 2}, v{a + 3}",
                f"v_cvt_pk_bf16_f32 v{dst}, v{a}, v{a + 2}"]

    def xread(kb):
        return [f"ds_read_b64_tr_b16 {vr(X + 4 * kb, 2)}, v{vTr} offset:{kb * 256}",
                f"ds_read_b64_tr_b16 {vr(X + 4 * kb + 2, 2)}, v{vTr} offset:{kb * 256 + 64}"]

    kx_dst = [KXR, SPARE, KXR + 4, SPARE + 4, KXR + 8, KXR, KXR + 12, KXR + 4]

    def kxread(n):
        return f"ds_read_b128 {vr(kx_dst[n], 4)}, v{vKXr} offset:{(n >> 1) * 2048 + (n & 1) * 256}"

    Sx = [ACC, ACC + 4]
    Sm, Px = ACC + 8, ACC + 12

    def smx(n):
        kb, t = n >> 1, n & 1
        c = '0' if kb == 0 else vr(Sx[t], 4)
        return f"v_mfma_f32_16x16x32_bf16 {vr(Sx[t], 4)}, {vr(kx_dst[n], 4)}, {vr(X + 4 * kb, 4)}, {c}"

    def smm(kb):
        c = '0' if kb == 0 else vr(Sm, 4)
        return f"v_mfma_f32_16x16x32_bf16 {vr(Sm, 4)}, {vr(X + 4 * kb, 4)}, {vr(X + 4 * kb, 4)}, {c}"

    pace = cfg.get('pace', 0)
    ldH = lambda: pace and e.loose(f"buffer_load_dword v{HD}, v{HA}, {W}, s{sHl} offen sc1")
    ldV = [f"buffer_load_dwordx4 {vr(VX, 4)}, v{vKXr}, {W}, s{sVx} offen sc1",
           f"buffer_load_dwordx4 {vr(VX + 4, 4)}, v{vKXr}, {W}, s{sVx} offen offset:256 sc1"]
    ldK = [f"buffer_load_dwordx4 v{vL16}, {W}, s{sKV} offen sc1 lds",
           f"buffer_load_dwordx4 v{vL16}, {W}, s{sKV} offen offset:1024 sc1 lds"]
    touch = f"buffer_load_dword v{PM + 3}, {W}, s{sVt} offen sc1 lds"
    export = f"buffer_store_dwordx4 {vr(EX, 4)}, v{vL16}, {W}, s{sExp} offen sc1"
    progress = f"s_mov_b64 exec, 1\n buffer_store_dword v{TMP}, off, {W}, s{sFch} sc1\n s_mov_b64 exec, -1"
    ldF = f"buffer_load_dword v{TMP + 3}, v{TMP + 3}, {W}, s{sFl} offen sc1"
    if cfg.get('noexp'):
        export = progress = "s_nop 0"
    rf = sum([wl_lines(STREAM[o], R1[o]) for o in range(8, 10)], [])
    wo = sum([wl_lines(STREAM[10 + o], WO_SB[o]) for o in range(6)], [])
    q0p, q1p, k0p, k1p = post(ACC, ACC + 1), post(ACC + 4, ACC + 5), post(ACC + 8, EX), post(ACC + 12, EX + 1)
    v0p, v1p = post(ACC + 16, EX + 2), post(ACC + 20, EX + 3)
    m0, m1 = TMP, TMP + 1
    C0 = PM
    zero = [f"v_mov_b64 {vr(MA + j, 2)}, 0" for j in range(0, 32, 2)]
    st_ = lambda n: (lambda: stamp(n))
    mx = lambda d, a, b, c_: f"v_max3_f32 v{d}, v{a}, v{b}, v{c_}"

    def check(blocks):
        r = [MA + 4 * b + j for b in blocks for j in range(4)]
        out = [f"v_max3_u32 v{C0}, v{r[0]}, v{r[1]}, v{r[2]}"]
        k = 3
        while k + 1 < len(r):
            out.append(f"v_max3_u32 v{C0}, v{C0}, v{r[k]}, v{r[k + 1]}"); k += 2
        out.append(f"v_max_u32 v{C0}, v{C0}, v{r[k]}")
        out.append(f"v_cmp_eq_u32 vcc, -1, v{C0}")
        return out

    def mread(i):
        return f"ds_read_b128 {vr(MA + 4 * i, 4)}, v{TMP + (i >> 1)} offset:{(i & 1) * 4096}"

    e.slot_no = 0
    e.slot_hook = lambda n: stamp(100 + n)
    e.forget()
    e.raw(".p2align 8\n" + "  s_nop 0\n" * cfg.get('ph', 8))
    e.label(f"L_step_{sfx}")
    e("s_waitcnt vmcnt(2)")
    e.label(f"L_chkE_{sfx}")
    xe = 0
    ba, bb, bc = cfg.get('ba', 0), cfg.get('bb', 1), cfg.get('bc', 1)
    xo = cfg.get('xo', 0)
    lastsp = cfg.get('lastsp', 1)
    spec = 0
    ce_ = check((0,))
    specb = []
    if spec:
        e(f"ds_write_b128 v{vMw}, {vr(MA, 4)}")
    else:
        e("\n".join(ce_))
        e(f"""ds_write_b128 v{vMw}, {vr(MA, 4)}
              s_cbranch_vccnz L_retE_{sfx}""")
    stamp(0)
    cl_ = check((1,))
    z = lambda: zero.pop(0)
    lw = lambda n: (lambda: e.wait(lgkm=n))
    seq = [
        (P('q', 0, 0), [lambda: e.loose(mload(1))] if not spec else ce_ + [f"s_cbranch_vccnz L_retE_{sfx}", lambda: e.loose(mload(1))]),
        (P('q', 1, 0), [ldV[0]]),
        (P('k', 0, 0), [ldV[1]] if ba else [ldV[1], e.barrier, mread(2), mread(4)]),
        (P('k', 1, 0), ["s_waitcnt vmcnt(3)", cl_[0]] if ba else [mread(6), "s_waitcnt vmcnt(3)", cl_[0]]),
        (P('v', 0, 0), [e.barrier, cl_[1]] if ba == 1 else [cl_[1]]),
        (P('v', 1, 0), [cl_[2], f"ds_write_b128 v{vMw}, {vr(MA + 4, 4)} offset:4096", f"s_cbranch_vccnz L_retL_{sfx}", f"L_okL_{sfx}:"]),
        (P('q', 0, 1), [st_(1)] + ([mread(2), mread(4)] if ba == 1 else [lw(1), "s_barrier"] if ba == 2 else [])),
        (P('q', 1, 1), [mread(6)] if ba == 1 else [mread(2), mread(4)] if ba == 2 else []),
        (P('k', 0, 1), [mread(6), rf[0]] if ba == 2 else [rf[0]]),
        (P('k', 1, 1), [rf[1]] + ([] if ba else [lw(3)])),
        (P('q', 0, 2), [rf[2]]),
        (P('q', 1, 2), [e.lds_writes_done]),
        (P('k', 0, 2), [e.barrier] if bb else [e.barrier, ldK[0], mread(3)]),
        (P('k', 1, 2), [ldK[0], mread(3)] if bb else [mread(5)]),
        (P('q', 0, 4), [mread(5)] if bb else [mread(7), f"v_lshrrev_b32 v{TMP + 3}, 2, v{vL16}"]),
        (P('q', 1, 4), [mread(7), f"v_lshrrev_b32 v{TMP + 3}, 2, v{vL16}"] if bb else [ldK[1], f"s_movk_i32 m0, {L_DUMMY}"]),
        (P('k', 0, 4), [ldK[1], f"s_movk_i32 m0, {L_DUMMY}"] if bb else [rf[3]]),
        (P('k', 1, 4), [rf[3]] if bb else [touch]),
        (P('q', 0, 6), [kxread(0)] + ([touch] if bb else [])),
        (P('q', 1, 6), [kxread(2), ldF]),
        (P('k', 0, 6), ([] if xo else [export]) + [lambda: trace_out('mid', SPARE)]),
        (P('k', 1, 6), [kxread(4), st_(2), lw(3)]),
        (P('q', 0, 3), [kxread(6)]),
        (P('q', 0, 5), [kxread(1)]),
        (P('q', 0, 7), [kxread(3)]),
        (P('q', 1, 3), [lambda: e.prewait(f"v_mov_b32 v{VX + 7}, v{VX + 7}"), "s_nop 0"]),
        (P('q', 1, 5), ["s_nop 1"] if xo else [progress]),
        (P('q', 1, 7), ["s_nop 0", q0p[0]]),
        (P('k', 0, 3), ["s_nop 0", q0p[1]]),
        (P('k', 0, 5), ["s_nop 0", q0p[2]]),
        (P('k', 0, 7), [q1p[0]]),
        (P('k', 1, 3), ["s_nop 0", q1p[1]]),
        (P('k', 1, 5), ["s_nop 0", q1p[2]]),
        (P('k', 1, 7), [f"ds_write2_b32 v{vTw}, v{ACC + 1}, v{ACC + 5} offset0:0 offset1:32", st_(3), k0p[0]]),
        (P('v', 0, 1), ["s_nop 0", k0p[1]]),
        (P('v', 1, 1), ["s_nop 0", k0p[2], k1p[0]]),
        (P('v', 0, 2), [k1p[1], k1p[2]]),
        (P('v', 1, 2), [f"ds_write2_b32 v{vTw}, v{EX}, v{EX + 1} offset0:1 offset1:33", z()]),
        (P('v', 0, 3), [z()]),
        (P('v', 1, 3), [z()]),
        (P('v', 0, 4), [z()]),
        (P('v', 1, 4), [e.lds_writes_done, z()]),
        (P('v', 0, 5), [e.barrier] + ([] if bc else xread(0))),
        (P('v', 1, 5), xread(1 - bc) + [z()]),
        (P('v', 0, 6), xread(2 - bc) + [z()]),
        (P('v', 0, 7), xread(3 - bc) + [z()]),
        (P('v', 1, 6), (xread(3) if bc else []) + ([] if lastsp else [f"s_cmp_eq_u32 s{sStep}, 63"]) + [z()]),
        (P('v', 1, 7), [st_(4), lw(6 if bc else 4), z()]),
        (smx(0), [z(), z()]),
        (smx(2), [kxread(5), lw(1)]),
        (smx(4), [kxread(7), v0p[0]]),
        (smx(6), [v0p[1], v0p[2]]),
        (smm(0), [v1p[0], v1p[1]]),
        (smm(1), [v1p[2], z()]),
        (smm(2), ([] if lastsp else ["s_cbranch_scc1 L_final"]) + [mx(m0, Sx[0], Sx[0] + 1, Sx[0] + 2)]),
        (smm(3), [z(), z()]),
        (smx(1), [lw(0), z()]),
        (smx(3), [f"v_exp_f32 v{m1}, v{vIdx}"] if cfg.get('warm', 1) == 1 else []),
        (smx(5), [mx(m0, m0, Sx[0] + 3, Sm + 2), f"v_max_f32 v{m0}, v{m0}, v{Sm + 3}"]),
        (smx(7), [wo[0], f"s_add_u32 s{sStep}, s{sStep}, 1", wo[1], f"s_xor_b32 s{sTog}, s{sTog}, 0x2000", wo[2],
                  f"s_mov_b32 s{sG}, s{sG2}", wo[3], f"v_xor_b32 v{vKXr}, 0x2000, v{vKXr}"]),
    ]
    e.slots(seq)
    assert not zero
    e(f"""{mx(m0, m0, Sx[1], Sx[1] + 1)}
          {mx(m0, m0, Sx[1] + 2, Sx[1] + 3)}
          v_mov_b32 v{m1}, v{m0}
          v_permlane32_swap_b32 v{m0}, v{m1}
          v_max_f32 v{m0}, v{m0}, v{m1}
          v_mov_b32 v{m1}, v{m0}
          v_permlane16_swap_b32 v{m0}, v{m1}
          v_max_f32 v{m0}, v{m0}, v{m1}
          v_mul_f32 v{m0}, s{sC}, v{m0}""")
    for j in (0, 2, 4, 6, 10):
        e(f"v_pk_fma_f32 {vr(ACC + j, 2)}, {vr(ACC + j, 2)}, {sr(sC, 2)}, {vr(m0, 2)} op_sel_hi:[1,0,0] neg_lo:[0,0,1] neg_hi:[0,0,1]")
    for j in (0, 1, 2, 3, 4, 5, 6, 7, 10, 11):
        e(f"v_exp_f32 v{ACC + j}, v{ACC + j}")
    stamp(5)
    for j in range(4):
        e(f"v_cvt_pk_bf16_f32 v{Px + j}, v{ACC + 2 * j}, v{ACC + 2 * j + 1}")
    e(f"""v_cvt_pk_bf16_f32 v{PM}, v{Sm + 2}, v{Sm + 3}
          v_cvt_pk_bf16_f32 v{PM + 3}, v{Sm + 2}, v{Sm + 3}
          v_pk_add_f32 {vr(ACC, 2)}, {vr(ACC, 2)}, {vr(ACC + 2, 2)}
          v_pk_add_f32 {vr(ACC + 4, 2)}, {vr(ACC + 4, 2)}, {vr(ACC + 6, 2)}
          v_pk_add_f32 {vr(ACC, 2)}, {vr(ACC, 2)}, {vr(Sm + 2, 2)}
          v_pk_add_f32 {vr(m0, 2)}, {vr(ACC, 2)}, {vr(ACC + 4, 2)}""")
    O = SPARE
    mpos = cfg.get('mpos', 'w')
    mark = ["s_mov_b64 exec, 0xff", f"buffer_store_dword v{HV}, v{HS}, {W}, s{sHs} offen {st}", "s_mov_b64 exec, -1", st_(15)]
    hsetup = [f"v_bfe_u32 v{HA}, v{vL16}, 2, 7", f"v_mov_b32 v{HD}, {cfg.get('hdef', -1)}"]
    e.slots([
        (f"v_mfma_f32_16x16x32_bf16 {vr(O, 4)}, {vr(VX, 4)}, {vr(Px, 4)}, 0",
         [f"v_add_f32 v{m0}, v{m0}, v{m1}", f"v_mov_b32 v{m1}, v{m0}"]),
        (f"v_mfma_f32_16x16x32_bf16 {vr(O + 4, 4)}, {vr(VX + 4, 4)}, {vr(Px, 4)}, 0",
         [f"v_permlane32_swap_b32 v{m0}, v{m1}"]),
        (f"v_mfma_f32_16x16x16_bf16 {vr(O, 4)}, {vr(EX + 2, 2)}, {vr(PM, 2)}, {vr(O, 4)}",
         [f"v_add_f32 v{m0}, v{m0}, v{m1}", f"v_mov_b32 v{m1}, v{m0}"]),
        (f"v_mfma_f32_16x16x16_bf16 {vr(O + 4, 4)}, {vr(EX + 2, 2)}, {vr(PM + 2, 2)}, {vr(O + 4, 4)}",
         [f"v_permlane16_swap_b32 v{m0}, v{m1}", f"v_add_f32 v{m0}, v{m0}, v{m1}", f"v_rcp_f32 v{m0}, v{m0}",
          ]),
    ])
    for j in range(0, 8, 2):
        e(f"v_pk_mul_f32 {vr(O + j, 2)}, {vr(O + j, 2)}, {vr(m0, 2)} op_sel_hi:[1,0]")
    OA = ACC + 16
    for j in range(4):
        e(f"v_cvt_pk_bf16_f32 v{O + j}, v{O + 2 * j}, v{O + 2 * j + 1}")
    e(f"ds_write_b128 v{vOw}, {vr(O, 4)}")
    if xo:
        e(export)
        e(f"v_mov_b32 v{TMP + 2}, s{sProg}")
        e(progress.replace(f"v{TMP},", f"v{TMP + 2},"))
    if mpos == 'w' and pace:
        e("\n".join(mark[:3])); stamp(15)
    if mpos == 'p':
        e("\n".join(hsetup))
    if cfg.get('h0'):
        delay(e, cfg['h0']); ldH()
    e.barrier()
    e(f"""ds_read_b128 {vr(OA, 4)}, v{vL16} offset:{L_OB}
          ds_read_b128 {vr(OA + 4, 4)}, v{vL16} offset:{L_OB + 1024}""")
    stamp(6)
    OUT = SPARE

    def pstore(c):
        return f"buffer_store_dwordx4 {vr(OUT + 4 * c, 4)}, v{vPst}, {W}, s{sPbaseS} offen offset:{c * 2048} {st}"

    tag = lambda j: f"v_and_or_b32 v{OUT + j}, v{OUT + j}, -2, s{sG}"
    seq = []
    for t in range(8):
        for kb in range(2):
            k, b = loc[('o', t, kb)]
            if t >= 2:
                p = post(MA + 4 * (t - 2), OUT + t - 2)
                fl = p[0:1] if kb == 0 else p[1:3]
                if kb == 0 and t % 2 == 1:
                    fl = fl + [tag(t - 3)]
            else:
                fl = ["s_nop 0"]
            n = 2 * t + kb
            if 1 <= n <= 8:
                fl = [wo[3 + n]] + fl
            hc = cfg.get('hc', 10)
            if n in cfg.get('hs', (0, 2, 4, 8)) and pace:
                fl = [ldH] + [x for x in fl if x != "s_nop 0"]
            if n == hc and pace:
                fl = fl + [f"v_cmp_gt_u32 vcc, s{sStep}, v{HD}"]
            if n == hc + 1:
                fl = fl + [st_(16)] + ([f"s_cbranch_vccnz L_hret_{sfx}"] if pace else []) + [f"L_hok_{sfx}:", st_(13)]
            if kb == 0 and t == 6:
                fl = [pstore(0)] + fl
            seq.append((f"v_smfmac_f32_16x16x64_bf16 {vr(MA + 4 * t, 4)}, {vr(OA + 4 * kb, 4)}, {vr(b, 8, k)}, v{vIdx}", fl))
    e.slots(seq)
    PL, D, SEL, PL2 = MA + 8, MA + 16, MA + 20, MA + 24
    e("\n".join(post(MA + 24, OUT + 6) + [tag(6)]))
    e("\n".join(post(MA + 28, OUT + 7)))
    e(pstore(1))
    stamp(7)
    trace_out('late', MA)
    e(f"s_bitcmp1_b32 s{S_WAVE}, 0\n s_cbranch_scc1 L_x1_{sfx}")
    e.slot_hook = None
    st0 = e.state()
    ldP = [f"buffer_load_dwordx4 {vr(PL, 4)}, v{vL16}, {W}, s{sPbaseL} offen sc1",
           f"buffer_load_dwordx4 {vr(PL + 4, 4)}, v{vL16}, {W}, s{sPbaseL} offen offset:1024 sc1"]
    tP, dM, eM, gM = cfg.get('tP', (260, 380)), cfg.get('dM', (240, 120)), cfg.get('eM', 200), cfg.get('gM', (120, 120))
    for w in range(2):
        if w:
            e.raw(".p2align 6")
            e.label(f"L_x{w}_{sfx}"); e.set_state(st0)
        clk = [[12, 48][w]]
        pa = prep_a_lines()
        valu = [f"v_cndmask_b32 v{SEL + j}, 0, v{vSelC}, {sr(sSel + 2 * j, 2)}" for j in range(4)] + scalar_lines() + [l for l in pa if not l.startswith('ds_')]
        if diag:
            valu += [f"s_cmp_eq_u32 s{sStep}, 10", f"s_cselect_b32 s{sDbgT + 6}, s36, s{sDbgT + 6}"] + [f"s_cselect_b32 s{k}, 0, s{k}" for k in range(12, 16)]
        reads = [l for l in pa if l.startswith('ds_')]
        late_v = [l for l in pa if not l.startswith('ds_')]
        pool = [l for l in valu if l not in late_v]
        pool = [l for l in pool if not l.startswith('v_')] + [l for l in pool if l.startswith('v_')]
        def until(t):
            while clk[0] + 4 <= t and pool:
                e(pool.pop(0)); clk[0] += 4
            if clk[0] + 4 <= t:
                delay(e, t - clk[0]); clk[0] = t

        until(tP[w])
        e.loose(ldP[0]); e.loose(ldP[1]); stamp(11)
        ldP2 = [x.replace(vr(PL, 4), vr(PL2, 4)).replace(vr(PL + 4, 4), vr(PL2 + 4, 4)) for x in ldP]
        rest = mix(reads, pool, 2)
        nsp = cfg.get('nsp', (10, 10))[w]
        e("\n".join(rest[:nsp]))
        if nsp is not None:
            delay(e, cfg.get('dP2', (60, 40))[w])
            e.loose(ldP2[0]); e.loose(ldP2[1])
        else:
            nsp = len(rest)
        spare = cfg.get('nsp', (10, 10))[w] is not None
        e("\n".join(rest[nsp:]))
        e(f"s_mov_b32 s{sNan}, 0")
        if diag:
            e.raw("  s_memtime s[36:37]")
        ny = 2 if spare else 0
        e(f"""s_waitcnt vmcnt({ny + 1})
              L_redP{w}_{sfx}:
              v_mfma_f32_16x16x32_bf16 {vr(D, 4)}, {vr(PL, 4)}, {vr(SEL, 4)}, 0
              s_waitcnt vmcnt({ny})
              v_mfma_f32_16x16x32_bf16 {vr(D, 4)}, {vr(PL + 4, 4)}, {vr(SEL, 4)}, {vr(D, 4)}
              v_xor_b32 v{C0}, s{sG}, v{PL}
              v_bitop3_b32 v{C0}, v{C0}, v{PL + 2}, s{sG} bitop3:0xf6
              v_bitop3_b32 v{C0}, v{C0}, v{PL + 4}, s{sG} bitop3:0xf6
              v_bitop3_b32 v{C0}, v{C0}, v{PL + 6}, s{sG} bitop3:0xf6
              v_and_b32 v{C0}, 1, v{C0}
              v_cmp_ne_u32 vcc, 0, v{C0}
              v_cmp_ne_u32 {sr(sFm, 2)}, 0, v{TMP + 3}
              s_cbranch_vccnz L_reP{w}_{sfx}
              v_permlane32_swap_b32 v{D}, v{D + 2}
              v_permlane32_swap_b32 v{D + 1}, v{D + 3}
              v_add_f32 v{D}, v{D}, v{D + 2}
              v_add_f32 v{D + 1}, v{D + 1}, v{D + 3}
              v_permlane16_swap_b32 v{D}, v{D + 1}
              v_add_f32 v{D}, v{D}, v{D + 1}
              v_mov_b32_dpp v{D + 1}, v{D} quad_perm:[2,3,0,1] row_mask:0xf bank_mask:0xf
              v_cvt_pk_bf16_f32 v{D}, v{D}, v{D + 1}
              v_min_u32 v{D}, -2, v{D}
              v_cndmask_b32 v{VX + 4}, v{D}, -1, {sr(sArm, 2)}
              buffer_store_dword v{VX + 4}, v{vMst}, {W}, s{sMn2} offen {st}""")
        stamp(8)
        pb = ["s_waitcnt vmcnt(1)"] + prep_b_lines()
        d = dM[w]
        if d >= 100:
            e("\n".join(pb)); d -= 100; pb = []
        delay(e, d)
        e.loose(mload(0)); stamp(12)
        d = gM[w]
        if pb:
            pb[0] = "s_waitcnt vmcnt(2)"
            e("\n".join(pb)); d -= 100
        k = max(0, min(len(late_v), d // 4))
        e("\n".join(late_v[:k])); d -= 4 * k
        delay(e, d)
        e.loose(mload(0)); e.loose(mload(1))
        e("\n".join(late_v[k:]))
        if lastsp:
            e(f"s_cmp_eq_u32 s{sStep}, 63\n s_cbranch_scc1 L_last_{sfx}")
        e(f"""s_bitcmp1_b64 {sr(sFm, 2)}, s{sOK2}
              s_waitcnt lgkmcnt(0)
              s_cbranch_scc1 L_step_{sfx}
              s_branch L_flag_{sfx}""")
        e.forget()
        e(f"L_reP{w}_{sfx}:")
        if spare:
            e("s_waitcnt vmcnt(0)")
            for j in range(0, 8, 2):
                e(f"v_mov_b64 {vr(PL + j, 2)}, {vr(PL2 + j, 2)}")
            e.loose(ldP2[0]); e.loose(ldP2[1])
        else:
            e.loose(ldP[0]); e.loose(ldP[1])
            e("s_waitcnt vmcnt(1)")
        e(f"""{'s_add_u32 s12, s12, 1' if diag else ''}
              s_sub_u32 s{S_SPIN}, s{S_SPIN}, 1
              s_cbranch_scc0 L_redP{w}_{sfx}
              s_branch L_end""")
    e.forget()
    e(f"L_hret_{sfx}:")
    for k in range(6):
        e(f"v_cmp_gt_u32 vcc, s{sStep}, v{HD}")
        ldH()
        if diag:
            e("s_add_u32 s15, s15, 1")
        e(f"s_cbranch_vccz L_{'hrel' if cfg.get('dH') is not None else 'hok'}_{sfx}")
    e(f"""s_sub_u32 s{S_SPIN}, s{S_SPIN}, 1
          s_waitcnt vmcnt(24)
          s_cbranch_scc0 L_hret_{sfx}
          s_branch L_end
          L_hrel_{sfx}:""")
    delay(e, cfg.get('dH') or 0)
    e(f"s_branch L_hok_{sfx}")
    e.forget()
    e(f"""L_flag_{sfx}:
          v_lshrrev_b32 v{C0}, 2, v{vL16}
          buffer_load_dword v{C0}, v{C0}, {W}, s{sFl} offen sc1
          s_sub_u32 s{S_SPIN}, s{S_SPIN}, 1
          s_cbranch_scc1 L_end
          v_cmp_ne_u32 {sr(sFm, 2)}, 0, v{C0}
          s_bitcmp1_b64 {sr(sFm, 2)}, s{sOK2}
          s_cbranch_scc1 L_step_{sfx}
          s_branch L_flag_{sfx}""")
    e.forget()
    e(f"L_retE_{sfx}:")
    e.loose(mload(0)); e.loose(mload(1))
    if spec:
        e(f"s_nop 3\n v_mov_b64 {vr(ACC, 2)}, 0\n v_mov_b64 {vr(ACC + 2, 2)}, 0")
    e(f"""{'s_add_u32 s13, s13, 1' if diag else ''}
          s_sub_u32 s{S_SPIN}, s{S_SPIN}, 1
          s_waitcnt vmcnt(3)
          s_cbranch_scc0 L_chkE_{sfx}
          s_branch L_end""")
    if xe:
        e(f"""L_retL_{sfx}:
              {'s_add_u32 s14, s14, 1' if diag else ''}
              s_sub_u32 s{S_SPIN}, s{S_SPIN}, 1
              s_cbranch_scc1 L_end
              s_bitcmp1_b32 s{sNan}, 0
              s_bitset1_b32 s{sNan}, 0
              s_waitcnt vmcnt(4)
              s_cbranch_scc0 L_retL1_{sfx}""")
        e.loose(mload(1))
        e(f"s_waitcnt vmcnt(0)\n L_retL1_{sfx}:")
    else:
        e(f"L_retL_{sfx}:")
        e.loose(mload(1))
        e(f"""{'s_add_u32 s14, s14, 1' if diag else ''}
              s_sub_u32 s{S_SPIN}, s{S_SPIN}, 1
              s_cbranch_scc1 L_end
              s_bitcmp1_b32 s{sNan}, 0
              s_bitset1_b32 s{sNan}, 0
              s_waitcnt vmcnt(3)
              s_cbranch_scc0 L_retL1_{sfx}
              s_waitcnt vmcnt(1)
              L_retL1_{sfx}:""")
    e("\n".join(cl_))
    e(f"""ds_write_b128 v{vMw}, {vr(MA + 4, 4)} offset:4096
          s_cbranch_vccz L_okL_{sfx}
          s_branch L_retL_{sfx}""")
    if not lastsp:
        return
    e.forget()
    e(f"L_lret_{sfx}:")
    e.loose(mload(0)); e.loose(mload(1))
    e(f"""s_sub_u32 s{S_SPIN}, s{S_SPIN}, 1
          s_cbranch_scc1 L_end
          L_last_{sfx}:
          s_waitcnt vmcnt(0) lgkmcnt(0)""")
    e("\n".join(check((0, 1))))
    e(f"""ds_write_b128 v{vMw}, {vr(MA, 4)}
          ds_write_b128 v{vMw}, {vr(MA + 4, 4)} offset:4096
          s_cbranch_vccnz L_lret_{sfx}""")
    own = [(m, ft, i) for i in (0, 1) for m in 'kv' for ft in range(2)]
    seq = [(P(*op), []) for op in own]
    if not xo:
        seq[0][1].append(export)
    seq[3][1].extend([progress, e.barrier, mread(2), mread(3)])
    for k in range(4):
        seq[4 + k][1].append(mread(4 + k))
    seq += [(P(m, ft, i), []) for i in range(2, 6) for m in 'kv' for ft in range(2)]
    seq += [(P(m, ft, i), []) for m in 'kv' for ft in range(2) for i in (6, 7)]
    e.slots(seq)
    e("\n".join(k0p + k1p + v0p + v1p))
    e("s_branch L_final")


def chain_final(e, cfg):
    e.forget()
    e("L_final:")
    if cfg.get('holdend'):
        e(f"""L_hold2:
              s_memrealtime s[92:93]
              s_waitcnt lgkmcnt(0)
              s_sub_u32 s92, s92, s94
              s_cmp_lt_u32 s92, {cfg['holdend']}
              s_cbranch_scc1 L_hold2""")
    e(f"""s_add_u32 s{sExp}, s{sExp}, {0 if cfg.get('xo', 0) else 4096}
          buffer_store_dwordx4 {vr(EX, 4)}, v{vL16}, {W}, s{sExp} offen sc1
          s_waitcnt lgkmcnt(0)""")
    if cfg.get('diag'):
        e(f"""s_memrealtime {sr(sDbgT + 12, 2)}
              s_lshl_b32 s{sA}, s{S_ROLE}, 2
              s_add_u32 s{sA}, s{sA}, s{S_WAVE}
              s_lshl_b32 s{sA}, s{sA}, 6
              s_add_u32 s{sA}, s{sA}, 0x6000000
              s_waitcnt lgkmcnt(0)
              s_sub_u32 s{sDbgT + 8}, s36, s{sDbgT + 6}""")
        for n, r in enumerate([sDbgT + 8, sDbgT + 5, S_SPIN, sDbgT + 14, sDbgT + 10, sDbgT + 12, 12, 13, 14, 15]):
            e(f"v_mov_b32 v{TMP + 2}, s{r}\n buffer_store_dword v{TMP + 2}, off, {W}, s{sA} offset:{4 * n}")
    dbg_max(e, cfg, 12, v=TMP + 2)
    e("s_waitcnt vmcnt(0)\n s_branch L_end")


def chain(e, cfg):
    CFG.clear(); CFG.update(cfg)
    chain_startup(e, cfg)
    chain_loop(e, cfg, 'f', '')
    chain_loop(e, cfg, 's', 'sc1')
    chain_final(e, cfg)
```

```python
import sys
from common import *
import chain3, chain4

HEADER = open('cdna_kernels/' + NAME + '.s.ref').read().split('; Override launch')[0]


DOC = """; One persistent launch, one workgroup per CU, roles claimed at run time (generated by the author's own script):
"""


def prologue(e, cfg):
    e(f"""s_cmp_ge_u32 s2, 256
          s_cbranch_scc1 L_end""")
    if cfg.get('diag') or cfg.get('holdto') or cfg.get('holdend') or cfg.get('pjhold'):
        e("s_memrealtime s[94:95]")
    e(f"""s_load_dwordx16 s[20:35], s[0:1], 0
          s_load_dwordx8 s[36:43], s[0:1], 64
          s_load_dwordx2 s[44:45], s[0:1], 96
          s_getreg_b32 s{S_XCC}, hwreg(HW_REG_XCC_ID, 0, 3)
          v_lshrrev_b32 v1, 6, v0
          v_readfirstlane_b32 s{S_WAVE}, v1
          s_mov_b32 s{S_SPIN}, {SPIN_MAX}""")
    if cfg.get('cpf', 0):
        e.comment("pull this kernel's code into the die's L2: every wave reads one word of 64 lines of it")
        e(f"""s_getpc_b64 s[50:51]
              L_pc:
              s_lshr_b32 s52, s2, 3
              s_lshl_b32 s52, s52, 15
              v_lshl_add_u32 v120, v0, 7, s52
              v_and_b32 v120, 0xffff, v120
              v_min_u32 v120, L_end - L_pc, v120
              v_mov_b32 v121, s51
              v_add_co_u32 v120, vcc, s50, v120
              v_addc_co_u32 v121, vcc, 0, v121, vcc""")
        e.loose("global_load_dword v122, v[120:121], off")
        e.vm = []
    e("s_waitcnt lgkmcnt(0)")
    srd(e, S_WS, P_WSP, WS_SIZE)
    srd(e, S_DBG, P_DBG, 256)
    dbg_max(e, cfg, 10, True, 5, 31)
    e(f"""s_lshr_b32 s50, s2, 3
          s_lshl_b32 s{S_ROLE}, s{S_XCC}, 5
          s_add_u32 s{S_ROLE}, s{S_ROLE}, s50
          s_mov_b32 s{S_CONF}, 0""")
    if cfg.get('spread'):
        e(f"s_mov_b32 s{S_ROLE}, s2\n s_mov_b32 s{S_CONF}, 1")
    if cfg.get('crowd'):
        e(f"s_mov_b32 s{S_XCC}, 3\n s_add_u32 s{S_ROLE}, s50, 96")
    e(f"""s_cmp_lg_u32 s{S_WAVE}, 0
          s_cbranch_scc1 L_dispatch
          s_lshl_b32 s51, 1, s50
          s_lshl_b32 s52, s{S_XCC}, {D_CLAIM_SH}
          v_mov_b32 v{V_CLAIM}, s51
          s_mov_b64 exec, 1
          buffer_atomic_or v{V_CLAIM}, off, {sr(S_DBG, 4)}, s52 sc0
          s_mov_b64 exec, -1
          v_mov_b32 v3, 0
          v_lshlrev_b32 v4, 2, v0
          s_lshl_b32 s51, s2, 8
          s_add_u32 s51, s51, {WS_FLAG}
          buffer_store_dword v3, v4, {sr(S_WS, 4)}, s51 offen sc1""")
    e.vm = []
    e.label("L_dispatch")


def reclaim(e):
    e.forget()
    e(f"""L_reclaim:
          s_mov_b32 s{S_RA}, s{S_XCC}
          s_movk_i32 s{S_SPIN}, 600
          L_rc_word:
          v_readfirstlane_b32 s{S_RB}, v{V_CLAIM}
          s_cmp_eq_u32 s{S_RB}, -1
          s_cbranch_scc0 L_rc_try
          s_add_u32 s{S_RA}, s{S_RA}, 1
          s_and_b32 s{S_RA}, s{S_RA}, 7
          s_mov_b32 s{S_RB}, 0
          L_rc_try:
          s_sub_u32 s{S_SPIN}, s{S_SPIN}, 1
          s_cselect_b32 s{S_RA}, 64, s{S_RA}
          s_cbranch_scc1 L_rc_got
          s_mov_b32 s38, s{S_RB}
          s_mov_b32 s39, s{S_RB}
          s_and_b32 s{S_RB}, s{S_ROLE}, 31
          s_add_u32 s{S_RB}, s{S_RB}, s2
          s_and_b32 s{S_RB}, s{S_RB}, 31
          s_lshr_b64 s[38:39], s[38:39], s{S_RB}
          s_ff0_i32_b32 s38, s38
          s_add_u32 s{S_RB}, s{S_RB}, s38
          s_and_b32 s{S_RB}, s{S_RB}, 31
          s_lshl_b32 s{S_RC}, 1, s{S_RB}
          v_mov_b32 v{V_CLAIM}, s{S_RC}
          s_lshl_b32 s{S_RC}, s{S_RA}, {D_CLAIM_SH}
          s_mov_b64 exec, 1
          buffer_atomic_or v{V_CLAIM}, off, {sr(S_DBG, 4)}, s{S_RC} sc0
          s_mov_b64 exec, -1
          v_readfirstlane_b32 s{S_RC}, v{V_CLAIM}
          s_bitcmp1_b32 s{S_RC}, s{S_RB}
          s_cbranch_scc1 L_rc_word
          L_rc_got:
          s_lshl_b32 s{S_RA}, s{S_RA}, 5
          s_or_b32 s{S_RA}, s{S_RA}, s{S_RB}
          v_mov_b32 v{V_CLAIM}, s{S_RA}
          v_mov_b32 v{V_CLAIM - 1}, {L_ROLE}
          ds_write_b32 v{V_CLAIM - 1}, v{V_CLAIM}
          s_waitcnt lgkmcnt(0)
          s_barrier
          L_restart:
          s_cmp_ge_u32 s{S_RA}, 256
          s_cbranch_scc1 L_end
          s_mov_b32 s{S_SPIN}, {SPIN_MAX}
          s_and_b32 s{S_ROLE}, s{S_RA}, 255
          s_mov_b32 s{S_CONF}, 1
          v_mbcnt_lo_u32_b32 v0, -1, 0
          v_mbcnt_hi_u32_b32 v0, -1, v0
          s_waitcnt vmcnt(0) lgkmcnt(0)
          s_barrier
          s_branch L_dispatch""")


def fake_worker(e, cfg):
    e(f"""s_cmp_lg_u32 s{S_WAVE}, 0
          s_cbranch_scc1 L_end
          s_waitcnt vmcnt(0)
          v_mov_b32 v2, 1
          s_mov_b64 exec, 1
          buffer_atomic_add v2, off, {sr(S_DBG, 4)}, 0 offset:{D_INIT}
          s_mov_b64 exec, -1
          s_cmp_ge_u32 s{S_ROLE}, {32 + NHH}
          s_cbranch_scc1 L_end
          L_fw_poll:
          buffer_load_dword v3, off, {sr(S_DBG, 4)}, 0 offset:{D_INIT} sc1
          s_sub_u32 s{S_SPIN}, s{S_SPIN}, 1
          s_cbranch_scc1 L_end
          v_readfirstlane_b32 s50, v3
          s_and_b32 s50, s50, 0xffff
          s_cmp_eq_u32 s50, 256
          s_cbranch_scc0 L_fw_poll
          s_sub_u32 s50, s{S_ROLE}, 32
          s_lshl_b32 s50, s50, 8
          s_add_u32 s50, s50, {F_QKV}
          v_mov_b32 v2, 1
          v_lshlrev_b32 v4, 2, v0
          buffer_store_dword v2, v4, {sr(S_WS, 4)}, s50 offen sc1
          s_waitcnt vmcnt(0)
          s_branch L_end""")


def build(cfg):
    e = Emitter()
    prologue(e, cfg)
    e(f"s_cmp_ge_u32 s{S_ROLE}, 32\n s_cbranch_scc1 L_worker")
    st = e.state()
    (chain4 if cfg.get('c4') else chain3).chain(e, cfg)
    e.label("L_worker"); e.set_state(st)
    if cfg.get('fake_proj'):
        fake_worker(e, cfg)
    else:
        import workers
        workers.worker(e, cfg)
    reclaim(e)
    e.label("L_end")
    if cfg.get('dbgt'):
        e.forget()
        e("s_cmp_ge_u32 s2, 256\n s_cbranch_scc1 L_end3\n s_waitcnt vmcnt(0)")
        dbg_max(e, cfg, 13, mask=0)
        e.label("L_end3")
    if cfg.get('diag'):
        e.forget()
        e(f"""s_cmp_ge_u32 s2, 256
              s_cbranch_scc1 L_end2
              s_waitcnt vmcnt(0)
              s_memrealtime s[92:93]
              s_lshl_b32 s90, s{S_ROLE}, 2
              s_add_u32 s90, s90, s{S_WAVE}
              s_lshl_b32 s90, s90, 4
              s_add_u32 s90, s90, 0x6100000
              s_waitcnt lgkmcnt(0)
              v_mov_b32 v2, s94
              v_mov_b32 v3, s92
              v_mov_b32 v4, s88
              v_mov_b32 v5, s86
              buffer_store_dwordx4 v[2:5], off, {sr(S_WS, 4)}, s90
              L_end2:""")
    K = NAME + "_kernel"
    return HEADER + f"""; @launch grid=(256,1,1) block=(256,1,1) lds={LDS_BYTES}
.amdgcn_target "amdgcn-amd-amdhsa--gfx950"
.text
.globl {K}
.p2align 8
.type {K},@function
{K}:
""" + DOC + e.text() + f"""  s_endpgm
.section .rodata,"a"
.p2align 6
.amdhsa_kernel {K}
  .amdhsa_next_free_vgpr 512
  .amdhsa_next_free_sgpr 102
  .amdhsa_accum_offset 256
  .amdhsa_group_segment_fixed_size 0
  .amdhsa_kernarg_size 104
  .amdhsa_user_sgpr_count 2
  .amdhsa_user_sgpr_kernarg_segment_ptr 1
  .amdhsa_system_sgpr_workgroup_id_x 1
.end_amdhsa_kernel
"""


if __name__ == '__main__':
    out = sys.argv[1]
    cfg = eval(sys.argv[2]) if len(sys.argv) > 2 else {}
    open(out, 'w').write(build(cfg))
```

```python
from common import *

L_T, L_OB, L_DUMMY, L_KX, L_WL = 8192, 12544, 14592, 16384, 32768
T_PITCH = 1088
vL16, vPst, vMst, vTw, vTr, vKXr, vOw, vWL0, vWL1, vMw, vIdx, vSelC = range(12)
EX, PM, VX = 12, 16, 20
TMP = 28
MA = 32
ACC = 64
X, KXR, SPARE = 88, 104, 120
R1 = [MA + 8, MA + 16, MA + 24, X, X + 8, KXR, KXR + 8, SPARE, X, X + 8]
WO_SB = [KXR, KXR + 8, X, X + 8, ACC, ACC + 8]
(sStep, sMcur, sProg, sMtog, sG, sKl, sPst2, sKV, sC, sExp, sMcur2, sMbaseS, sPbaseS, sPbaseL, sFl, sFch, sTog, sNan,
 sA, sB) = range(50, 70)
sSel = 70
sOK, sHl, sMn2 = 78, 79, 3
sArm, sFm = 18, 98
sVx, sVt, sHs, sOK2, sG2 = 96, 97, 16, 17, 100
HV, HS, HA, HD = TMP + 2, TMP + 3, VX + 2, VX + 3
S_M0 = 84
sDbgT = 80

STREAM = [('q', 0, 0), ('q', 1, 0), ('k', 0, 0), ('k', 1, 0), ('q', 0, 1), ('q', 1, 1), ('k', 0, 1), ('k', 1, 1),
          ('q', 0, 5), ('q', 0, 7),
          ('o', 5, 0), ('o', 5, 1), ('o', 6, 0), ('o', 6, 1), ('o', 7, 0), ('o', 7, 1)]
WLPOS = {op: p for op, p in zip(STREAM[10:14], range(4))}
WLPOS.update({op: 4 + p for p, op in enumerate(STREAM[14:16] + STREAM[:10])})
ALLOPS = [(m, ft, i) for m in 'qkv' for ft in range(2) for i in range(8)] + [('o', t, kb) for t in range(8) for kb in range(2)]
RES = {}
for n, op in enumerate([o for o in ALLOPS if o not in STREAM]):
    RES[op] = ('a', 8 * n) if n < 32 else ('v', 128 + 8 * (n - 32))
PARK = {}
for n, op in enumerate(STREAM[14:16] + STREAM[:10]):
    PARK[op] = 32 + 8 * n
for n, op in enumerate(STREAM[10:14]):
    PARK[op] = 48 + 8 * n
W = sr(S_WS, 4)
CFG = {}


def wl_addr(op, half):
    p = WLPOS[op]
    off = (p >> 1) * 16384 + (p & 1) * 2048 + half * 1024
    return (vWL0, off) if off < 65536 else (vWL1, off - 65536)


def wl_write(e, op, src):
    for half in range(2):
        a, off = wl_addr(op, half)
        e(f"ds_write_b128 v{a}, {vr(src + 4 * half, 4)} offset:{off}")


def wl_lines(op, dst):
    out = []
    for half in range(2):
        a, off = wl_addr(op, half)
        out.append(f"ds_read_b128 {vr(dst + 4 * half, 4)}, v{a} offset:{off}")
    return out


def delay(e, cyc):
    if CFG.get('slp') and cyc >= 64:
        k = cyc // 64
        e(f"s_sleep {k}")
        cyc -= 64 * k
    if CFG.get('dmf'):
        while cyc >= 16:
            if CFG['dmf'] == 1:
                e(f"v_mfma_f32_16x16x32_bf16 {vr(VX, 4)}, a[0:3], a[8:11], 0")
            else:
                e(f"v_smfmac_f32_16x16x64_bf16 {vr(VX, 4)}, a[0:3], a[8:15], v{vIdx}")
            cyc -= 16
    n = cyc // 4
    while n > 0:
        k = min(n, 16)
        e(f"s_nop {k - 1}")
        n -= k


def mix(reads, other, per=3):
    out = []
    other = list(other)
    for r in reads:
        out.append(r)
        for _ in range(per):
            if other:
                out.append(other.pop(0))
    return out + other


def mload(b):
    return f"buffer_load_dwordx4 {vr(MA + 4 * b, 4)}, v{vMw}, {W}, s{sMcur if b == 0 else sMcur2} offen sc1"


def kx_dma(e, ldsbase):
    e(f"""s_lshl_b32 s{sA}, s{S_WAVE}, 11
          s_add_u32 m0, s{sA}, {ldsbase}
          buffer_load_dwordx4 v{vL16}, {W}, s{sKV} offen sc1 lds
          buffer_load_dwordx4 v{vL16}, {W}, s{sKV} offen offset:1024 sc1 lds""")


def scalar_lines():
    return [x.strip() for x in f"""s_and_b32 s{sA}, s{sStep}, 3
          s_lshl_b32 s{sA}, s{sA}, 13
          s_add_u32 s{sMcur}, s{sA}, {WS_M}
          s_add_u32 s{sMcur2}, s{sA}, {WS_M + 4096}
          s_and_b32 s{sA}, s{sA}, 0x2000
          s_add_u32 s{sMn2}, s{sMbaseS}, s{sA}
          s_lshl_b32 s{sMtog}, s{sA}, 1
          s_sub_u32 s{sVx}, s{sKV}, s{sTog}
          s_add_u32 s{sVx}, s{sVx}, {8192 - L_KX}
          s_add_u32 s{sKV}, s{sKV}, {0 if CFG.get('samekv') else UNIT}
          s_add_u32 s{sVt}, s{sKV}, 8192
          s_xor_b32 s{sA}, s{sTog}, 0x2000
          s_add_u32 m0, s{sA}, s{sKl}
          s_cmp_gt_u32 s{sStep}, {0 if CFG.get('xo', 0) else 1}
          s_cselect_b32 s{sA}, 4096, 0
          s_add_u32 s{sExp}, s{sExp}, s{sA}
          s_add_u32 s{sOK2}, s{sStep}, 1
          s_max_u32 s{sProg}, s{sStep}, {0 if CFG.get('xo', 0) else 1}
          s_sub_u32 s{sProg}, s{sProg}, {0 if CFG.get('xo', 0) else 1}
          s_and_b32 s{sG2}, s{sOK2}, 1""".split('\n')]


def prep_a_lines():
    other = [f"v_mov_b64 {vr(ACC + j, 2)}, 0" for j in range(0, 24, 2)] + [f"v_lshlrev_b32 v{PM + 3}, 1, v{vL16}", f"v_mov_b32 v{TMP}, s{sProg}"]
    reads = sum([wl_lines(STREAM[o], R1[o]) for o in range(3, 8)], [])
    return mix(reads, other, 2)


def prep_b_lines():
    other = [f"v_xor_b32 v{vMst}, s{sMtog}, v{vMst}"] + [f"v_xor_b32 v{TMP + p}, {p << 10}, v{vMw}" for p in range(1, 4)]
    reads = sum([wl_lines(STREAM[o], R1[o]) for o in range(3)], [])
    return mix(reads, other, 1)


def chain_startup(e, cfg):
    h = S_ROLE
    tA, tB, tC, tD = EX, EX + 1, EX + 2, EX + 3
    t0, t1, t2, t3 = TMP, TMP + 1, TMP + 2, TMP + 3
    lane = PM
    chunks = [('o', kb, Q) for kb in range(2) for Q in range(4)] + [(m, b, 0) for m in 'qkv' for b in range(8)]
    ring = {4: L_WL + 2 * 16384, 5: L_WL + 3 * 16384, 6: L_WL + 4 * 16384, 0: L_WL + 5 * 16384, 1: L_WL + 6 * 16384,
            2: L_WL + 7 * 16384, 3: 0}
    ptr = {'q': P_WQ, 'k': P_WK, 'v': P_WV, 'o': P_WO}
    sHq, sHo, sLw = sMcur, sProg, sMcur2
    cur, marks = [None], {}

    def dma(r):
        m, x, Q = chunks[r]
        if cur[0] != m:
            srd(e, S_T0, ptr[m], 0x400000); cur[0] = m
        for i in range(4):
            if m == 'o':
                row = 64 * x + 32 * (Q >> 1) + 2 * (Q & 1) + 4 * (i >> 1) + (i & 1)
                e(f"""s_add_u32 s{sA}, s{sHo}, {row * 1024}
                      s_add_u32 m0, s{sLw}, {ring[r % 7] + i * 1024}
                      buffer_load_dwordx4 v{vL16}, {sr(S_T0, 4)}, s{sA} offen lds""")
            else:
                e(f"""s_add_u32 s{sA}, s{sHq}, {(128 * (x & 3) + 64 * (x >> 2) + 4 * i) * 8192}
                      s_add_u32 m0, s{sLw}, {ring[r % 7] + i * 1024}
                      buffer_load_dwordx4 v{tA}, {sr(S_T0, 4)}, s{sA} offen lds""")
        marks[r] = e.vm[-1]

    e(f"""v_and_b32 v{lane}, 63, v0
          v_lshlrev_b32 v{vL16}, 4, v{lane}
          s_and_b32 s{sA}, s{S_WAVE}, 1
          s_lshr_b32 s{sB}, s{S_WAVE}, 1
          s_lshl_b32 s{sHo}, s{h}, 17
          s_lshl_b32 s{sLw}, s{sA}, 14
          s_add_u32 s{sHo}, s{sHo}, s{sLw}
          s_lshl_b32 s{sLw}, s{sB}, 13
          s_add_u32 s{sHo}, s{sHo}, s{sLw}
          s_lshl_b32 s{sHq}, s{h}, 8
          s_lshl_b32 s{sLw}, s{S_WAVE}, 17
          s_add_u32 s{sHq}, s{sHq}, s{sLw}
          s_lshl_b32 s{sLw}, s{S_WAVE}, 12""")
    for r in range(6):
        dma(r)
    e(f"""v_lshrrev_b32 v{t0}, 4, v{lane}
          v_and_b32 v{t1}, 15, v{lane}
          s_lshl_b32 s{sA}, s{S_WAVE}, 10
          v_add_u32 v{vMw}, s{sA}, v{vL16}
          v_lshlrev_b32 v{PM + 3}, 2, v{lane}""")
    e(f"""v_lshrrev_b32 v{t2}, 2, v{lane}
          v_lshlrev_b32 v{t2}, 12, v{t2}
          v_and_b32 v{t3}, 3, v{lane}
          v_lshl_add_u32 v{vPst}, v{t3}, 4, v{t2}""")
    e(f"""v_and_b32 v{t2}, 1, v{lane}
          v_lshlrev_b32 v{t2}, 5, v{t2}
          v_lshl_add_u32 v{t2}, v{t0}, 3, v{t2}
          v_and_b32 v{t3}, 4, v{lane}
          v_add_u32 v{t2}, v{t2}, v{t3}
          v_and_b32 v{t3}, 8, v{lane}
          v_cmp_ne_u32 {sr(sArm, 2)}, 0, v{t3}
          v_lshl_add_u32 v{t2}, v{t3}, 11, v{t2}
          v_and_b32 v{t3}, 2, v{lane}
          v_lshl_add_u32 v{vMst}, v{t3}, 29, v{t2}""")
    srd(e, S_M0, P_MEM0, 8192)
    e(f"""v_and_b32 v{t2}, 1, v{lane}
          v_lshlrev_b32 v{tD}, 10, v{t2}
          v_lshl_add_u32 v{tD}, v{t0}, 1, v{tD}
          v_bfe_u32 v{t2}, v{lane}, 2, 1
          v_lshl_add_u32 v{tD}, v{t2}, 6, v{tD}
          s_and_b32 s{sA}, s{h}, 6
          s_lshl_b32 s{sA}, s{sA}, 10
          s_lshr_b32 s{sB}, s{h}, 3
          s_lshl_b32 s{sB}, s{sB}, 8
          s_add_u32 s{sA}, s{sA}, s{sB}
          s_and_b32 s{sB}, s{S_WAVE}, 1
          s_lshl_b32 s{sB}, s{sB}, 7
          s_add_u32 s{sA}, s{sA}, s{sB}
          s_lshr_b32 s{sB}, s{S_WAVE}, 1
          s_lshl_b32 s{sB}, s{sB}, 3
          s_add_u32 s{sA}, s{sA}, s{sB}
          s_and_b32 s{sB}, s{h}, 1
          s_lshl_b32 s{sB}, s{sB}, 4
          s_add_u32 s{sA}, s{sA}, s{sB}
          buffer_load_ushort v{VX}, v{tD}, {sr(S_M0, 4)}, s{sA} offen
          buffer_load_ushort v{VX + 1}, v{tD}, {sr(S_M0, 4)}, s{sA} offen offset:32""")
    e(f"""s_lshl_b32 s{sA}, s{S_WAVE}, 8
          s_add_u32 s{sA}, s{sA}, {L_T}
          v_mul_u32_u24 v{t2}, {T_PITCH}, v{t0}
          v_lshl_add_u32 v{t2}, v{t1}, 3, v{t2}
          v_add_u32 v{vTw}, s{sA}, v{t2}
          v_and_b32 v{t3}, 3, v{lane}
          v_mul_u32_u24 v{t2}, {T_PITCH}, v{t3}
          v_lshrrev_b32 v{t3}, 5, v{lane}
          v_lshl_add_u32 v{t2}, v{t3}, 7, v{t2}
          v_bfe_u32 v{t3}, v{lane}, 2, 3
          v_lshl_add_u32 v{t2}, v{t3}, 3, v{t2}
          v_add_u32 v{vTr}, {L_T}, v{t2}
          v_lshlrev_b32 v{t2}, 9, v{t0}
          v_lshl_add_u32 v{t2}, v{t1}, 4, v{t2}
          v_add_u32 v{vKXr}, {L_KX}, v{t2}""")
    e(f"""s_lshl_b32 s{sA}, s{S_WAVE}, 9
          s_add_u32 s{sA}, s{sA}, {L_OB}
          v_lshrrev_b32 v{t2}, 5, v{lane}
          v_lshlrev_b32 v{t2}, 8, v{t2}
          v_and_b32 v{t3}, 16, v{lane}
          v_add_u32 v{t2}, v{t2}, v{t3}
          v_and_b32 v{t3}, 12, v{lane}
          v_lshl_add_u32 v{t2}, v{t3}, 4, v{t2}
          v_and_b32 v{t3}, 1, v{lane}
          v_lshl_add_u32 v{t2}, v{t3}, 5, v{t2}
          v_add_u32 v{t2}, s{sA}, v{t2}
          v_and_b32 v{t3}, 2, v{lane}
          v_lshlrev_b32 v{tA}, 3, v{t3}
          v_xor_b32 v{t2}, v{t2}, v{tA}
          v_lshlrev_b32 v{t3}, 12, v{t3}
          v_sub_u32 v{vOw}, v{t2}, v{t3}
          s_add_u32 s{sA}, s{sLw}, {L_WL}
          v_add_u32 v{vWL0}, s{sA}, v{vL16}
          v_add_u32 v{vWL1}, 0x10000, v{vWL0}""")
    e(f"""v_and_b32 v{t2}, 1, v{lane}
          v_cmp_ne_u32 vcc, 0, v{t2}
          v_mov_b32 v{t2}, 0x4444
          v_mov_b32 v{t3}, 0xeeee
          v_cndmask_b32 v{vIdx}, v{t2}, v{t3}, vcc
          v_mov_b32 v{t2}, 0x3f80
          v_mov_b32 v{t3}, 0x3f800000
          v_cndmask_b32 v{vSelC}, v{t2}, v{t3}, vcc
          v_lshrrev_b32 v{t2}, 1, v{t1}""")
    for j in range(4):
        e(f"v_cmp_eq_u32 {sr(sSel + 2 * j, 2)}, {j}, v{t2}")
    e(f"""v_lshlrev_b32 v{tA}, 13, v{t0}
          v_lshlrev_b32 v{t2}, 2, v{t0}
          v_xor_b32 v{t2}, v{t2}, v{t1}
          v_lshl_add_u32 v{tA}, v{t2}, 4, v{tA}""")
    e(f"""v_bfe_u32 v{t2}, v{lane}, 2, 1
          v_lshlrev_b32 v{tB}, 12, v{t2}
          v_bfe_u32 v{t2}, v{lane}, 5, 1
          v_lshl_add_u32 v{tB}, v{t2}, 10, v{tB}
          v_bfe_u32 v{t2}, v{lane}, 3, 1
          v_lshl_add_u32 v{tB}, v{t2}, 9, v{tB}
          v_bfe_u32 v{t2}, v{lane}, 4, 1
          v_lshl_add_u32 v{tB}, v{t2}, 8, v{tB}
          v_and_b32 v{t2}, 3, v{lane}
          v_lshl_add_u32 v{tB}, v{t2}, 3, v{tB}
          v_bfe_u32 v{t3}, v{tB}, 8, 2
          v_xor_b32 v{t3}, s{S_WAVE}, v{t3}
          v_lshl_add_u32 v{tB}, v{t3}, 6, v{tB}""")
    e(f"""v_lshrrev_b32 v{t3}, 2, v{lane}
          v_lshlrev_b32 v{tC}, 10, v{t3}
          v_lshl_add_u32 v{tC}, v{t2}, 3, v{tC}
          s_lshl_b32 s{sA}, s{S_WAVE}, 8
          v_add_u32 v{tC}, s{sA}, v{tC}""")
    e(f"""s_lshl_b32 s{sA}, s{S_WAVE}, 11
          s_lshl_b32 s{sB}, s{h}, 13
          s_add_u32 s{sPbaseL}, s{sA}, s{sB}
          s_add_u32 s{sPbaseL}, s{sPbaseL}, {WS_P}
          s_lshl_b32 s{sA}, s{S_WAVE}, 16
          s_lshl_b32 s{sB}, s{h}, 6
          s_add_u32 s{sPbaseS}, s{sA}, s{sB}
          s_add_u32 s{sPbaseS}, s{sPbaseS}, {WS_P}""")
    e(f"""s_and_b32 s{sA}, s{S_WAVE}, 1
          s_lshl_b32 s{sMbaseS}, s{sA}, 12
          s_and_b32 s{sA}, s{h}, 24
          s_lshl_b32 s{sA}, s{sA}, 7
          s_add_u32 s{sMbaseS}, s{sMbaseS}, s{sA}
          s_and_b32 s{sA}, s{h}, 1
          s_lshl_b32 s{sA}, s{sA}, 9
          s_add_u32 s{sMbaseS}, s{sMbaseS}, s{sA}
          s_lshr_b32 s{sA}, s{S_WAVE}, 1
          s_lshl_b32 s{sA}, s{sA}, 8
          s_add_u32 s{sMbaseS}, s{sMbaseS}, s{sA}
          s_and_b32 s{sA}, s{h}, 6
          s_lshl_b32 s{sA}, s{sA}, 5
          s_add_u32 s{sMbaseS}, s{sMbaseS}, s{sA}
          s_add_u32 s{sMbaseS}, s{sMbaseS}, {WS_M}""")
    e(f"""s_mul_i32 s{sKV}, s{h}, {64 * UNIT}
          s_lshl_b32 s{sA}, s{S_WAVE}, 11
          s_add_u32 s{sKV}, s{sKV}, s{sA}
          s_add_u32 s{sKV}, s{sKV}, {WS_QKV + 8192}
          s_lshl_b32 s{sExp}, s{h}, 18
          s_lshl_b32 s{sA}, s{S_WAVE}, 10
          s_add_u32 s{sExp}, s{sExp}, s{sA}
          s_add_u32 s{sExp}, s{sExp}, {WS_EXP}
          s_lshl_b32 s{sFl}, s{h}, 8
          s_add_u32 s{sFl}, s{sFl}, {F_QKV}
          s_lshl_b32 s{sFch}, s{h}, 7
          s_lshl_b32 s{sA}, s{S_WAVE}, 2
          s_add_u32 s{sFch}, s{sFch}, s{sA}
          s_add_u32 s{sFch}, s{sFch}, {F_CH}
          s_mov_b32 s{sC}, 0x3e0293ee
          s_add_u32 s{sPst2}, s{sPbaseS}, 4096
          s_lshl_b32 s{sKl}, s{S_WAVE}, 11
          s_add_u32 s{sKl}, s{sKl}, {L_KX}
          s_lshl_b32 s{sHl}, s{h}, 7
          s_add_u32 s{sHl}, s{sHl}, {F_HINT}
          s_lshl_b32 s{sHs}, s{h}, 2
          s_lshl_b32 s{sA}, s{S_WAVE}, 10
          s_add_u32 s{sHs}, s{sHs}, s{sA}
          s_add_u32 s{sHs}, s{sHs}, {F_HINT}
          s_mov_b32 s{sOK}, 1""")
    e(f"""v_mov_b64 {vr(VX + 4, 2)}, 0
          v_mov_b64 {vr(VX + 6, 2)}, 0
          v_mov_b32 v{VX + 2}, -1
          s_add_u32 s{sB}, s{sMbaseS}, 8192
          buffer_store_dwordx4 {vr(VX + 4, 4)}, v{vL16}, {W}, s{sPbaseL} offen sc1
          buffer_store_dwordx4 {vr(VX + 4, 4)}, v{vL16}, {W}, s{sPbaseL} offen offset:1024 sc1
          buffer_store_dword v{VX + 2}, v{vMst}, {W}, s{sB} offen sc1""")
    if cfg.get('sdiag'):
        e("s_memrealtime s[20:21]\n s_waitcnt lgkmcnt(0)")
    confirm_barrier(e, 'ch')
    if cfg.get('sdiag'):
        e("s_memrealtime s[22:23]\n s_waitcnt lgkmcnt(0)")
    parked = STREAM[14:16] + STREAM[:10]
    for r in range(32):
        m, x, Q = chunks[r]
        if marks[r] in e.vm:
            e.wait(vm=len(e.vm) - 1 - e.vm.index(marks[r]))
        e.wait(lgkm=0)
        e("s_barrier")
        if cfg.get('sdiag') and r in (0, 8, 16, 24, 31):
            e(f"s_memrealtime {sr({0: 24, 8: 26, 16: 28, 24: 36, 31: 40}[r], 2)}\n s_waitcnt lgkmcnt(0)")
        if r == 6:
            e.comment("publish this wave's piece of mem0 in slot 0 (and arm slot 2)")
            e(f"""v_lshl_or_b32 v{VX}, v{VX + 1}, 16, v{VX}
                  v_min_u32 v{VX}, -2, v{VX}
                  v_cndmask_b32 v{VX}, v{VX}, -1, {sr(sArm, 2)}
                  buffer_store_dword v{VX}, v{vMst}, {W}, s{sMbaseS} offen sc1""")
        if r == 12:
            e.comment("every wave's arming stores are complete: count this member as armed")
            e(f"""s_cmp_lg_u32 s{S_WAVE}, 0
                  s_cbranch_scc1 L_cs_in
                  s_cmp_lg_u32 s{S_XCC}, 0
                  s_mov_b32 s{sB}, 0x10000
                  s_cselect_b32 s{sA}, 0x1010000, s{sB}
                  v_mov_b32 v{t0}, s{sA}
                  s_mov_b64 exec, 1
                  buffer_atomic_add v{t0}, off, {sr(S_DBG, 4)}, 0 offset:{D_INIT}
                  s_mov_b64 exec, -1""")
            e.vm.pop()
            e.label("L_cs_in")
        if r + 6 < 32:
            dma(r + 6)
        if r == 8:
            for op in STREAM[10:14]:
                wl_write(e, op, PARK[op])
            e.wait(lgkm=0)
        if r == cfg.get('r1', 16):
            e(f"buffer_load_dword v{PM + 1}, off, {sr(S_DBG, 4)}, 0 offset:{D_INIT} sc1")
        if r == cfg.get('r2', 23):
            e(f"""v_readfirstlane_b32 s{sNan}, v{PM + 1}
                  buffer_load_dword v{PM + 2}, v{PM + 3}, {W}, s{sFl} offen sc1""")
            e(f"""s_add_u32 m0, s{sLw}, {L_KX + 8192}
                  s_lshr_b32 m0, m0, 1
                  s_add_u32 m0, m0, {(L_KX + 8192) // 2}
                  s_lshl_b32 s{sB}, s{h}, 10
                  s_add_u32 s{sB}, s{sB}, {WS_M}
                  buffer_load_dwordx4 v{vL16}, {W}, s{sPbaseL} offen sc1 lds
                  buffer_load_dwordx4 v{vL16}, {W}, s{sPbaseL} offen offset:1024 sc1 lds
                  buffer_load_dwordx4 v{vL16}, {W}, s{sHl} offen sc1 lds
                  buffer_load_dwordx4 v{vL16}, {W}, s{sB} offen sc1 lds""")
        if r == cfg.get('r3', 30):
            e(f"""v_cmp_ne_u32 {sr(sFm, 2)}, 0, v{PM + 2}
                  s_and_b32 s{sOK}, s{sFm}, 3
                  s_cmp_eq_u32 s{sOK}, 3
                  s_cselect_b32 s{sOK}, 1, 0
                  s_and_b32 s{sA}, s{sNan}, 0xffffff
                  s_cmp_eq_u32 s{sA}, 0x200100
                  s_cselect_b32 s{sOK}, s{sOK}, 0""")
            kx_dma(e, L_KX)
            e(f"""s_add_u32 m0, m0, 8192
                  s_add_u32 s{sA}, s{sKV}, 8192
                  buffer_load_dwordx4 v{vL16}, {W}, s{sA} offen sc1 lds
                  buffer_load_dwordx4 v{vL16}, {W}, s{sA} offen offset:1024 sc1 lds""")
        if r == cfg.get('rt', 27):
            e.comment("the last exports are recognised by their data: fill their slots with a pattern no export holds")
            for j in range(4):
                e(f"v_mov_b32 v{VX + j}, {SENT1}")
            for sg in range(64 - NTAIL, 64):
                e(f"s_add_u32 s{sA}, s{sExp}, {sg * 4096}\n buffer_store_dwordx4 {vr(VX, 4)}, v{vL16}, {W}, s{sA} offen sc1")
        if r == 29:
            e(f"buffer_load_dword v{VX + 7}, v{PM + 3}, {W}, s{sFl} offen sc1")
        if r >= 26:
            for op in parked[2 * (r - 26):2 * (r - 26) + 2]:
                wl_write(e, op, PARK[op])
        e(f"v_add_u32 v{t1}, {ring[r % 7]}, v{tC if m == 'o' else tB}")
        if m == 'o':
            for t in range(8):
                op = ('o', t, x)
                kind, base = RES[op] if op in RES else ('v', PARK[op])
                e(f"ds_read_b64_tr_b16 {vr(base + 2 * Q, 2, kind)}, v{t1} offset:{t * 32}")
        else:
            for w in range(1, 4):
                e(f"s_cmp_eq_u32 s{S_WAVE}, {w}\n s_cbranch_scc1 L_cs{r}_{w}")
            st0 = e.state()
            for w in range(4):
                if w:
                    e.label(f"L_cs{r}_{w}"); e.set_state(st0)
                for ft in range(2):
                    op = (m, ft, 2 * ((x & 3) ^ w) + (x >> 2))
                    kind, base = RES[op] if op in RES else ('v', PARK[op])
                    for Q in range(4):
                        e(f"ds_read_b64_tr_b16 {vr(base + 2 * Q, 2, kind)}, v{t1} offset:{(32 * (Q & 1) + 8 * (Q >> 1)) * 256 + ft * 32}")
                if w < 3:
                    e(f"s_branch L_cs{r}_e")
            e.label(f"L_cs{r}_e")
    e.wait(lgkm=0)
    if cfg.get('sdiag'):
        e(f"""s_lshl_b32 s{sA}, s{S_ROLE}, 2
              s_add_u32 s{sA}, s{sA}, s{S_WAVE}
              s_lshl_b32 s{sA}, s{sA}, 6
              s_add_u32 s{sA}, s{sA}, 0x6400000""")
        for n, r in enumerate([94, 20, 22, 24, 26, 28, 36, 40, sOK]):
            e(f"v_mov_b32 v{PM}, s{r}\n buffer_store_dword v{PM}, off, {W}, s{sA} offset:{4 * n}")
    e(f"""s_cmp_lg_u32 s{sOK}, 0
          s_cbranch_scc1 L_cs_ready
          s_and_b32 s{sA}, s{sNan}, 0xffffff
          s_cmp_eq_u32 s{sA}, 0x200100
          s_cbranch_scc1 L_cs_p3
          L_cs_p1:
          buffer_load_dword v{t0}, off, {sr(S_DBG, 4)}, 0 offset:{D_INIT} sc1
          s_sub_u32 s{S_SPIN}, s{S_SPIN}, 1
          s_cbranch_scc1 L_end
          v_readfirstlane_b32 s{sNan}, v{t0}
          s_and_b32 s{sA}, s{sNan}, 0xffffff
          s_cmp_eq_u32 s{sA}, 0x200100
          s_cbranch_scc0 L_cs_p1
          L_cs_p2:
          buffer_load_dword v{VX + 7}, v{PM + 3}, {W}, s{sFl} offen sc1
          s_sub_u32 s{S_SPIN}, s{S_SPIN}, 1
          s_cbranch_scc1 L_end
          L_cs_p3:
          s_waitcnt vmcnt(0)
          v_cmp_ne_u32 {sr(sFm, 2)}, 0, v{VX + 7}
          s_and_b32 s{sA}, s{sFm}, 3
          s_cmp_eq_u32 s{sA}, 3
          s_cbranch_scc0 L_cs_p2""")
    kx_dma(e, L_KX)
    e.label("L_cs_ready")
    e(f"""v_mov_b32 v{PM + 1}, 0
          v_mov_b32 v{PM + 2}, 0
          s_mov_b32 s{sStep}, 0
          s_mov_b32 s{sTog}, 0""")
    e("\n".join(scalar_lines() + prep_a_lines()))
    for b in range(2):
        e(mload(b))
    e("\n".join(prep_b_lines()))
    dbg_max(e, cfg, 11, v=PM, mask=1)
    if cfg.get('holdto'):
        e(f"""L_hold:
              s_memrealtime s[92:93]
              s_waitcnt lgkmcnt(0)
              s_sub_u32 s92, s92, s94
              s_cmp_lt_u32 s92, {cfg['holdto']}
              s_cbranch_scc1 L_hold""")
    e("s_waitcnt vmcnt(0) lgkmcnt(0)\n s_barrier")
    if cfg.get('diag'):
        e.raw(f"  s_memtime {sr(sDbgT + 6, 2)}\n  s_memrealtime {sr(sDbgT + 10, 2)}\n  s_mov_b32 s{sDbgT + 5}, 0\n  s_mov_b32 s12, 0\n  s_mov_b32 s13, 0\n  s_mov_b32 s14, 0\n  s_mov_b32 s15, 0\n  s_waitcnt lgkmcnt(0)")
    e(f"""s_lshr_b32 s{sA}, s{sNan}, 24
          s_mov_b32 s{sNan}, 0
          s_cmp_lg_u32 s{sA}, 0
          s_cbranch_scc1 L_step_s""")
    e("s_branch L_step_s" if cfg.get('force_slow') else "s_branch L_step_f")


def chain_loop(e, cfg, sfx, st):
    acc = {('q', 0): ACC, ('q', 1): ACC + 4, ('k', 0): ACC + 8, ('k', 1): ACC + 12, ('v', 0): ACC + 16, ('v', 1): ACC + 20}
    loc = dict(RES)
    for o in range(10):
        loc[STREAM[o]] = ('v', R1[o])
    for o in range(6):
        loc[STREAM[10 + o]] = ('v', WO_SB[o])
    diag = cfg.get('diag')

    def stamp(n):
        tr = cfg.get('trace')
        if tr and n in tr:
            e.raw(f"  s_memtime {sr(20 + 2 * tr.index(n), 2)}")

    def trace_out(where, TR):
        if cfg.get('trace') and cfg.get('tpos', 'mid') == where:
            e(f"""s_memtime s[32:33]
                  s_memrealtime s[34:35]
                  s_lshl_b32 s40, s{S_ROLE}, 2
                  s_add_u32 s40, s40, s{S_WAVE}
                  s_lshl_b32 s40, s40, 6
                  s_add_u32 s40, s40, s{sStep}
                  s_lshl_b32 s40, s40, 5
                  s_add_u32 s40, s40, 0x6200000
                  s_waitcnt lgkmcnt(0)""")
            for j in range(8):
                e(f"v_mov_b32 v{TR + j}, s{20 + 2 * j}")
            e(f"""s_mov_b64 exec, 1
                  buffer_store_dwordx4 {vr(TR, 4)}, off, {W}, s40
                  buffer_store_dwordx4 {vr(TR + 4, 4)}, off, {W}, s40 offset:16
                  s_mov_b64 exec, -1""")

    def P(m, ft, i):
        k, b = loc[(m, ft, i)]
        return f"v_smfmac_f32_16x16x64_bf16 {vr(acc[(m, ft)], 4)}, {vr(MA + 4 * i, 4)}, {vr(b, 8, k)}, v{vIdx}"

    def post(a, dst):
        return [f"v_add_f32 v{a}, v{a}, v{a + 1}", f"v_add_f32 v{a + 2}, v{a + 2}, v{a + 3}",
                f"v_cvt_pk_bf16_f32 v{dst}, v{a}, v{a + 2}"]

    def xread(kb):
        return [f"ds_read_b64_tr_b16 {vr(X + 4 * kb, 2)}, v{vTr} offset:{kb * 256}",
                f"ds_read_b64_tr_b16 {vr(X + 4 * kb + 2, 2)}, v{vTr} offset:{kb * 256 + 64}"]

    kx_dst = [KXR, SPARE, KXR + 4, SPARE + 4, KXR + 8, KXR, KXR + 12, KXR + 4]

    def kxread(n):
        return f"ds_read_b128 {vr(kx_dst[n], 4)}, v{vKXr} offset:{(n >> 1) * 2048 + (n & 1) * 256}"

    Sx = [ACC, ACC + 4]
    Sm, Px = ACC + 8, ACC + 12

    def smx(n):
        kb, t = n >> 1, n & 1
        c = '0' if kb == 0 else vr(Sx[t], 4)
        return f"v_mfma_f32_16x16x32_bf16 {vr(Sx[t], 4)}, {vr(kx_dst[n], 4)}, {vr(X + 4 * kb, 4)}, {c}"

    def smm(kb):
        c = '0' if kb == 0 else vr(Sm, 4)
        return f"v_mfma_f32_16x16x32_bf16 {vr(Sm, 4)}, {vr(X + 4 * kb, 4)}, {vr(X + 4 * kb, 4)}, {c}"

    pace = cfg.get('pace', 0)
    ldH = lambda: pace and e.loose(f"buffer_load_dword v{HD}, v{HA}, {W}, s{sHl} offen sc1")
    ldV = [f"buffer_load_dwordx4 {vr(VX, 4)}, v{vKXr}, {W}, s{sVx} offen sc1",
           f"buffer_load_dwordx4 {vr(VX + 4, 4)}, v{vKXr}, {W}, s{sVx} offen offset:256 sc1"]
    ldK = [f"buffer_load_dwordx4 v{vL16}, {W}, s{sKV} offen sc1 lds",
           f"buffer_load_dwordx4 v{vL16}, {W}, s{sKV} offen offset:1024 sc1 lds"]
    touch = f"buffer_load_dword v{PM + 3}, {W}, s{sVt} offen sc1 lds"
    export = f"buffer_store_dwordx4 {vr(EX, 4)}, v{vL16}, {W}, s{sExp} offen sc1"
    progress = f"s_mov_b64 exec, 1\n buffer_store_dword v{TMP}, off, {W}, s{sFch} sc1\n s_mov_b64 exec, -1"
    ldF = f"buffer_load_dword v{TMP + 3}, v{TMP + 3}, {W}, s{sFl} offen sc1"
    if cfg.get('noexp'):
        export = progress = "s_nop 0"
    rf = sum([wl_lines(STREAM[o], R1[o]) for o in range(8, 10)], [])
    wo = sum([wl_lines(STREAM[10 + o], WO_SB[o]) for o in range(6)], [])
    q0p, q1p, k0p, k1p = post(ACC, ACC + 1), post(ACC + 4, ACC + 5), post(ACC + 8, EX), post(ACC + 12, EX + 1)
    v0p, v1p = post(ACC + 16, EX + 2), post(ACC + 20, EX + 3)
    m0, m1 = TMP, TMP + 1
    C0 = PM
    zero = [f"v_mov_b64 {vr(MA + j, 2)}, 0" for j in range(0, 32, 2)]
    st_ = lambda n: (lambda: stamp(n))
    mx = lambda d, a, b, c_: f"v_max3_f32 v{d}, v{a}, v{b}, v{c_}"

    def check(blocks):
        r = [MA + 4 * b + j for b in blocks for j in range(4)]
        out = [f"v_max3_u32 v{C0}, v{r[0]}, v{r[1]}, v{r[2]}"]
        k = 3
        while k + 1 < len(r):
            out.append(f"v_max3_u32 v{C0}, v{C0}, v{r[k]}, v{r[k + 1]}"); k += 2
        out.append(f"v_max_u32 v{C0}, v{C0}, v{r[k]}")
        out.append(f"v_cmp_eq_u32 vcc, -1, v{C0}")
        return out

    def mread(i):
        return f"ds_read_b128 {vr(MA + 4 * i, 4)}, v{TMP + (i >> 1)} offset:{(i & 1) * 4096}"

    e.slot_no = 0
    e.slot_hook = lambda n: stamp(100 + n)
    e.forget()
    e.raw(".p2align 8\n" + "  s_nop 0\n" * cfg.get('ph', 8))
    e.label(f"L_step_{sfx}")
    e("s_waitcnt vmcnt(2)")
    e.label(f"L_chkE_{sfx}")
    xe = 0
    ba, bb, bc = cfg.get('ba', 0), cfg.get('bb', 1), cfg.get('bc', 1)
    xo = cfg.get('xo', 0)
    lastsp = cfg.get('lastsp', 1)
    spec = 0
    ce_ = check((0,))
    specb = []
    if spec:
        e(f"ds_write_b128 v{vMw}, {vr(MA, 4)}")
    else:
        e("\n".join(ce_))
        e(f"""ds_write_b128 v{vMw}, {vr(MA, 4)}
              s_cbranch_vccnz L_retE_{sfx}""")
    stamp(0)
    cl_ = check((1,))
    z = lambda: zero.pop(0)
    lw = lambda n: (lambda: e.wait(lgkm=n))
    seq = [
        (P('q', 0, 0), [lambda: e.loose(mload(1))] if not spec else ce_ + [f"s_cbranch_vccnz L_retE_{sfx}", lambda: e.loose(mload(1))]),
        (P('q', 1, 0), [ldV[0]]),
        (P('k', 0, 0), [ldV[1]] if ba else [ldV[1], e.barrier, mread(2), mread(4)]),
        (P('k', 1, 0), ["s_waitcnt vmcnt(3)", cl_[0]] if ba else [mread(6), "s_waitcnt vmcnt(3)", cl_[0]]),
        (P('v', 0, 0), [e.barrier, cl_[1]] if ba == 1 else [cl_[1]]),
        (P('v', 1, 0), [cl_[2], f"ds_write_b128 v{vMw}, {vr(MA + 4, 4)} offset:4096", f"s_cbranch_vccnz L_retL_{sfx}", f"L_okL_{sfx}:"]),
        (P('q', 0, 1), [st_(1)] + ([mread(2), mread(4)] if ba == 1 else [lw(1), "s_barrier"] if ba == 2 else [])),
        (P('q', 1, 1), [mread(6)] if ba == 1 else [mread(2), mread(4)] if ba == 2 else []),
        (P('k', 0, 1), [mread(6), rf[0]] if ba == 2 else [rf[0]]),
        (P('k', 1, 1), [rf[1]] + ([] if ba else [lw(3)])),
        (P('q', 0, 2), [rf[2]]),
        (P('q', 1, 2), [e.lds_writes_done]),
        (P('k', 0, 2), [e.barrier] if bb else [e.barrier, ldK[0], mread(3)]),
        (P('k', 1, 2), [ldK[0], mread(3)] if bb else [mread(5)]),
        (P('q', 0, 4), [mread(5)] if bb else [mread(7), f"v_lshrrev_b32 v{TMP + 3}, 2, v{vL16}"]),
        (P('q', 1, 4), [mread(7), f"v_lshrrev_b32 v{TMP + 3}, 2, v{vL16}"] if bb else [ldK[1], f"s_movk_i32 m0, {L_DUMMY}"]),
        (P('k', 0, 4), [ldK[1], f"s_movk_i32 m0, {L_DUMMY}"] if bb else [rf[3]]),
        (P('k', 1, 4), [rf[3]] if bb else [touch]),
        (P('q', 0, 6), [kxread(0)] + ([touch] if bb else [])),
        (P('q', 1, 6), [kxread(2), ldF]),
        (P('k', 0, 6), ([] if xo else [export]) + [lambda: trace_out('mid', SPARE)]),
        (P('k', 1, 6), [kxread(4), st_(2), lw(3)]),
        (P('q', 0, 3), [kxread(6)]),
        (P('q', 0, 5), [kxread(1)]),
        (P('q', 0, 7), [kxread(3)]),
        (P('q', 1, 3), [lambda: e.prewait(f"v_mov_b32 v{VX + 7}, v{VX + 7}"), "s_nop 0"]),
        (P('q', 1, 5), ["s_nop 1"] if xo else [progress]),
        (P('q', 1, 7), ["s_nop 0", q0p[0]]),
        (P('k', 0, 3), ["s_nop 0", q0p[1]]),
        (P('k', 0, 5), ["s_nop 0", q0p[2]]),
        (P('k', 0, 7), [q1p[0]]),
        (P('k', 1, 3), ["s_nop 0", q1p[1]]),
        (P('k', 1, 5), ["s_nop 0", q1p[2]]),
        (P('k', 1, 7), [f"ds_write2_b32 v{vTw}, v{ACC + 1}, v{ACC + 5} offset0:0 offset1:32", st_(3), k0p[0]]),
        (P('v', 0, 1), ["s_nop 0", k0p[1]]),
        (P('v', 1, 1), ["s_nop 0", k0p[2], k1p[0]]),
        (P('v', 0, 2), [k1p[1], k1p[2]]),
        (P('v', 1, 2), [f"ds_write2_b32 v{vTw}, v{EX}, v{EX + 1} offset0:1 offset1:33", z()]),
        (P('v', 0, 3), [z()]),
        (P('v', 1, 3), [z()]),
        (P('v', 0, 4), [z()]),
        (P('v', 1, 4), [e.lds_writes_done, z()]),
        (P('v', 0, 5), [e.barrier] + ([] if bc else xread(0))),
        (P('v', 1, 5), xread(1 - bc) + [z()]),
        (P('v', 0, 6), xread(2 - bc) + [z()]),
        (P('v', 0, 7), xread(3 - bc) + [z()]),
        (P('v', 1, 6), (xread(3) if bc else []) + ([] if lastsp else [f"s_cmp_eq_u32 s{sStep}, 63"]) + [z()]),
        (P('v', 1, 7), [st_(4), lw(6 if bc else 4), z()]),
        (smx(0), [z(), z()]),
        (smx(2), [kxread(5), lw(1)]),
        (smx(4), [kxread(7), v0p[0]]),
        (smx(6), [v0p[1], v0p[2]]),
        (smm(0), [v1p[0], v1p[1]]),
        (smm(1), [v1p[2], z()]),
        (smm(2), ([] if lastsp else ["s_cbranch_scc1 L_final"]) + [mx(m0, Sx[0], Sx[0] + 1, Sx[0] + 2)]),
        (smm(3), [z(), z()]),
        (smx(1), [lw(0), z()]),
        (smx(3), [f"v_exp_f32 v{m1}, v{vIdx}"] if cfg.get('warm', 1) == 1 else []),
        (smx(5), [mx(m0, m0, Sx[0] + 3, Sm + 2), f"v_max_f32 v{m0}, v{m0}, v{Sm + 3}"]),
        (smx(7), [wo[0], f"s_add_u32 s{sStep}, s{sStep}, 1", wo[1], f"s_xor_b32 s{sTog}, s{sTog}, 0x2000", wo[2],
                  f"s_mov_b32 s{sG}, s{sG2}", wo[3], f"v_xor_b32 v{vKXr}, 0x2000, v{vKXr}"]),
    ]
    e.slots(seq)
    assert not zero
    e(f"""{mx(m0, m0, Sx[1], Sx[1] + 1)}
          {mx(m0, m0, Sx[1] + 2, Sx[1] + 3)}
          v_mov_b32 v{m1}, v{m0}
          v_permlane32_swap_b32 v{m0}, v{m1}
          v_max_f32 v{m0}, v{m0}, v{m1}
          v_mov_b32 v{m1}, v{m0}
          v_permlane16_swap_b32 v{m0}, v{m1}
          v_max_f32 v{m0}, v{m0}, v{m1}
          v_mul_f32 v{m0}, s{sC}, v{m0}""")
    for j in (0, 2, 4, 6, 10):
        e(f"v_pk_fma_f32 {vr(ACC + j, 2)}, {vr(ACC + j, 2)}, {sr(sC, 2)}, {vr(m0, 2)} op_sel_hi:[1,0,0] neg_lo:[0,0,1] neg_hi:[0,0,1]")
    for j in (0, 1, 2, 3, 4, 5, 6, 7, 10, 11):
        e(f"v_exp_f32 v{ACC + j}, v{ACC + j}")
    stamp(5)
    for j in range(4):
        e(f"v_cvt_pk_bf16_f32 v{Px + j}, v{ACC + 2 * j}, v{ACC + 2 * j + 1}")
    e(f"""v_cvt_pk_bf16_f32 v{PM}, v{Sm + 2}, v{Sm + 3}
          v_cvt_pk_bf16_f32 v{PM + 3}, v{Sm + 2}, v{Sm + 3}
          v_pk_add_f32 {vr(ACC, 2)}, {vr(ACC, 2)}, {vr(ACC + 2, 2)}
          v_pk_add_f32 {vr(ACC + 4, 2)}, {vr(ACC + 4, 2)}, {vr(ACC + 6, 2)}
          v_pk_add_f32 {vr(ACC, 2)}, {vr(ACC, 2)}, {vr(Sm + 2, 2)}
          v_pk_add_f32 {vr(m0, 2)}, {vr(ACC, 2)}, {vr(ACC + 4, 2)}""")
    O = SPARE
    mpos = cfg.get('mpos', 'w')
    mark = ["s_mov_b64 exec, 0xff", f"buffer_store_dword v{HV}, v{HS}, {W}, s{sHs} offen {st}", "s_mov_b64 exec, -1", st_(15)]
    hsetup = [f"v_bfe_u32 v{HA}, v{vL16}, 2, 7", f"v_mov_b32 v{HD}, {cfg.get('hdef', -1)}"]
    e.slots([
        (f"v_mfma_f32_16x16x32_bf16 {vr(O, 4)}, {vr(VX, 4)}, {vr(Px, 4)}, 0",
         [f"v_add_f32 v{m0}, v{m0}, v{m1}", f"v_mov_b32 v{m1}, v{m0}"]),
        (f"v_mfma_f32_16x16x32_bf16 {vr(O + 4, 4)}, {vr(VX + 4, 4)}, {vr(Px, 4)}, 0",
         [f"v_permlane32_swap_b32 v{m0}, v{m1}"]),
        (f"v_mfma_f32_16x16x16_bf16 {vr(O, 4)}, {vr(EX + 2, 2)}, {vr(PM, 2)}, {vr(O, 4)}",
         [f"v_add_f32 v{m0}, v{m0}, v{m1}", f"v_mov_b32 v{m1}, v{m0}"]),
        (f"v_mfma_f32_16x16x16_bf16 {vr(O + 4, 4)}, {vr(EX + 2, 2)}, {vr(PM + 2, 2)}, {vr(O + 4, 4)}",
         [f"v_permlane16_swap_b32 v{m0}, v{m1}", f"v_add_f32 v{m0}, v{m0}, v{m1}", f"v_rcp_f32 v{m0}, v{m0}",
          ]),
    ])
    for j in range(0, 8, 2):
        e(f"v_pk_mul_f32 {vr(O + j, 2)}, {vr(O + j, 2)}, {vr(m0, 2)} op_sel_hi:[1,0]")
    OA = ACC + 16
    for j in range(4):
        e(f"v_cvt_pk_bf16_f32 v{O + j}, v{O + 2 * j}, v{O + 2 * j + 1}")
    e(f"ds_write_b128 v{vOw}, {vr(O, 4)}")
    if xo:
        e(export)
        e(f"v_mov_b32 v{TMP + 2}, s{sProg}")
        e(progress.replace(f"v{TMP},", f"v{TMP + 2},"))
    if mpos == 'w' and pace:
        e("\n".join(mark[:3])); stamp(15)
    if mpos == 'p':
        e("\n".join(hsetup))
    if cfg.get('h0'):
        delay(e, cfg['h0']); ldH()
    e.barrier()
    e(f"""ds_read_b128 {vr(OA, 4)}, v{vL16} offset:{L_OB}
          ds_read_b128 {vr(OA + 4, 4)}, v{vL16} offset:{L_OB + 1024}""")
    stamp(6)
    OUT = SPARE

    def pstore(c):
        return f"buffer_store_dwordx4 {vr(OUT + 4 * c, 4)}, v{vPst}, {W}, s{sPbaseS} offen offset:{c * 2048} {st}"

    tag = lambda j: f"v_and_or_b32 v{OUT + j}, v{OUT + j}, -2, s{sG}"
    seq = []
    for t in range(8):
        for kb in range(2):
            k, b = loc[('o', t, kb)]
            if t >= 2:
                p = post(MA + 4 * (t - 2), OUT + t - 2)
                fl = p[0:1] if kb == 0 else p[1:3]
                if kb == 0 and t % 2 == 1:
                    fl = fl + [tag(t - 3)]
            else:
                fl = ["s_nop 0"]
            n = 2 * t + kb
            if 1 <= n <= 8:
                fl = [wo[3 + n]] + fl
            hc = cfg.get('hc', 10)
            if n in cfg.get('hs', (0, 2, 4, 8)) and pace:
                fl = [ldH] + [x for x in fl if x != "s_nop 0"]
            if n == hc and pace:
                fl = fl + [f"v_cmp_gt_u32 vcc, s{sStep}, v{HD}"]
            if n == hc + 1:
                fl = fl + [st_(16)] + ([f"s_cbranch_vccnz L_hret_{sfx}"] if pace else []) + [f"L_hok_{sfx}:", st_(13)]
            if kb == 0 and t == 6:
                fl = [pstore(0)] + fl
            seq.append((f"v_smfmac_f32_16x16x64_bf16 {vr(MA + 4 * t, 4)}, {vr(OA + 4 * kb, 4)}, {vr(b, 8, k)}, v{vIdx}", fl))
    if cfg.get('wd', 0):
        seq[1], seq[2] = (seq[2][0], seq[1][1]), (seq[1][0], seq[2][1] + ["s_nop 0"])
        seq[3] = (seq[3][0], seq[3][1] + ["s_nop 0"])
    e.slots(seq)
    PL, D, SEL, PL2 = MA + 8, MA + 16, MA + 20, MA + 24
    e("\n".join(post(MA + 24, OUT + 6) + [tag(6)]))
    e("\n".join(post(MA + 28, OUT + 7)))
    e(pstore(1))
    stamp(7)
    trace_out('late', MA)
    e(f"s_bitcmp1_b32 s{S_WAVE}, 0\n s_cbranch_scc1 L_x1_{sfx}")
    e.slot_hook = None
    st0 = e.state()
    ldP = [f"buffer_load_dwordx4 {vr(PL, 4)}, v{vL16}, {W}, s{sPbaseL} offen sc1",
           f"buffer_load_dwordx4 {vr(PL + 4, 4)}, v{vL16}, {W}, s{sPbaseL} offen offset:1024 sc1"]
    tP, dM, eM, gM = cfg.get('tP', (260, 380)), cfg.get('dM', (270, 150)), cfg.get('eM', 200), cfg.get('gM', (110, 110))
    for w in range(2):
        if w:
            e.raw(".p2align 6")
            e.label(f"L_x{w}_{sfx}"); e.set_state(st0)
        clk = [[12, 48][w]]
        pa = prep_a_lines()
        valu = [f"v_cndmask_b32 v{SEL + j}, 0, v{vSelC}, {sr(sSel + 2 * j, 2)}" for j in range(4)] + scalar_lines() + [l for l in pa if not l.startswith('ds_')]
        if diag:
            valu += [f"s_cmp_eq_u32 s{sStep}, 10", f"s_cselect_b32 s{sDbgT + 6}, s36, s{sDbgT + 6}"] + [f"s_cselect_b32 s{k}, 0, s{k}" for k in range(12, 16)]
        reads = [l for l in pa if l.startswith('ds_')]
        late_v = [l for l in pa if not l.startswith('ds_')]
        pool = [l for l in valu if l not in late_v]
        pool = [l for l in pool if not l.startswith('v_')] + [l for l in pool if l.startswith('v_')]
        def until(t):
            while clk[0] + 4 <= t and pool:
                e(pool.pop(0)); clk[0] += 4
            if clk[0] + 4 <= t:
                delay(e, t - clk[0]); clk[0] = t

        until(tP[w])
        e.loose(ldP[0]); e.loose(ldP[1]); stamp(11)
        ldP2 = [x.replace(vr(PL, 4), vr(PL2, 4)).replace(vr(PL + 4, 4), vr(PL2 + 4, 4)) for x in ldP]
        rest = mix(reads, pool, 2)
        nsp = cfg.get('nsp', (10, 10))[w]
        e("\n".join(rest[:nsp]))
        if nsp is not None:
            delay(e, cfg.get('dP2', (60, 40))[w])
            e.loose(ldP2[0]); e.loose(ldP2[1])
        else:
            nsp = len(rest)
        spare = cfg.get('nsp', (10, 10))[w] is not None
        e("\n".join(rest[nsp:]))
        e(f"s_mov_b32 s{sNan}, 0")
        if diag:
            e.raw("  s_memtime s[36:37]")
        ny = 2 if spare else 0
        e(f"""s_waitcnt vmcnt({ny + 1})
              L_redP{w}_{sfx}:
              v_mfma_f32_16x16x32_bf16 {vr(D, 4)}, {vr(PL, 4)}, {vr(SEL, 4)}, 0
              s_waitcnt vmcnt({ny})
              v_mfma_f32_16x16x32_bf16 {vr(D, 4)}, {vr(PL + 4, 4)}, {vr(SEL, 4)}, {vr(D, 4)}
              v_xor_b32 v{C0}, s{sG}, v{PL}
              v_bitop3_b32 v{C0}, v{C0}, v{PL + 2}, s{sG} bitop3:0xf6
              v_bitop3_b32 v{C0}, v{C0}, v{PL + 4}, s{sG} bitop3:0xf6
              v_bitop3_b32 v{C0}, v{C0}, v{PL + 6}, s{sG} bitop3:0xf6
              v_and_b32 v{C0}, 1, v{C0}
              v_cmp_ne_u32 vcc, 0, v{C0}
              v_cmp_ne_u32 {sr(sFm, 2)}, 0, v{TMP + 3}
              s_cbranch_vccnz L_reP{w}_{sfx}
              v_permlane32_swap_b32 v{D}, v{D + 2}
              v_permlane32_swap_b32 v{D + 1}, v{D + 3}
              v_add_f32 v{D}, v{D}, v{D + 2}
              v_add_f32 v{D + 1}, v{D + 1}, v{D + 3}
              v_permlane16_swap_b32 v{D}, v{D + 1}
              v_add_f32 v{D}, v{D}, v{D + 1}
              v_mov_b32_dpp v{D + 1}, v{D} quad_perm:[2,3,0,1] row_mask:0xf bank_mask:0xf
              v_cvt_pk_bf16_f32 v{D}, v{D}, v{D + 1}
              v_min_u32 v{D}, -2, v{D}
              v_cndmask_b32 v{VX + 4}, v{D}, -1, {sr(sArm, 2)}
              buffer_store_dword v{VX + 4}, v{vMst}, {W}, s{sMn2} offen {st}""")
        stamp(8)
        pb = ["s_waitcnt vmcnt(1)"] + prep_b_lines()
        d = dM[w]
        if d >= 100:
            e("\n".join(pb)); d -= 100; pb = []
        delay(e, d)
        e.loose(mload(0)); stamp(12)
        d = gM[w]
        if pb:
            pb[0] = "s_waitcnt vmcnt(2)"
            e("\n".join(pb)); d -= 100
        gl = cfg.get('gL', 60)
        d -= gl
        k = max(0, min(len(late_v), d // 4))
        e("\n".join(late_v[:k])); d -= 4 * k
        delay(e, d)
        e.loose(mload(0))
        k2 = min(len(late_v), k + gl // 4)
        e("\n".join(late_v[k:k2])); delay(e, gl - 4 * (k2 - k)); k = k2
        e.loose(mload(1))
        e("\n".join(late_v[k:]))
        if lastsp:
            e(f"s_cmp_eq_u32 s{sStep}, 63\n s_cbranch_scc1 L_last_{sfx}")
        e(f"""s_bitcmp1_b64 {sr(sFm, 2)}, s{sOK2}
              s_waitcnt lgkmcnt(0)
              s_cbranch_scc1 L_step_{sfx}
              s_branch L_flag_{sfx}""")
        e.forget()
        e(f"L_reP{w}_{sfx}:")
        if spare:
            e("s_waitcnt vmcnt(0)")
            for j in range(0, 8, 2):
                e(f"v_mov_b64 {vr(PL + j, 2)}, {vr(PL2 + j, 2)}")
            e.loose(ldP2[0]); e.loose(ldP2[1])
        else:
            e.loose(ldP[0]); e.loose(ldP[1])
            e("s_waitcnt vmcnt(1)")
        e(f"""{'s_add_u32 s12, s12, 1' if diag else ''}
              s_sub_u32 s{S_SPIN}, s{S_SPIN}, 1
              s_cbranch_scc0 L_redP{w}_{sfx}
              s_branch L_end""")
    e.forget()
    e(f"L_hret_{sfx}:")
    for k in range(6):
        e(f"v_cmp_gt_u32 vcc, s{sStep}, v{HD}")
        ldH()
        if diag:
            e("s_add_u32 s15, s15, 1")
        e(f"s_cbranch_vccz L_{'hrel' if cfg.get('dH') is not None else 'hok'}_{sfx}")
    e(f"""s_sub_u32 s{S_SPIN}, s{S_SPIN}, 1
          s_waitcnt vmcnt(24)
          s_cbranch_scc0 L_hret_{sfx}
          s_branch L_end
          L_hrel_{sfx}:""")
    delay(e, cfg.get('dH') or 0)
    e(f"s_branch L_hok_{sfx}")
    e.forget()
    e(f"""L_flag_{sfx}:
          v_lshrrev_b32 v{C0}, 2, v{vL16}
          buffer_load_dword v{C0}, v{C0}, {W}, s{sFl} offen sc1
          s_sub_u32 s{S_SPIN}, s{S_SPIN}, 1
          s_cbranch_scc1 L_end
          v_cmp_ne_u32 {sr(sFm, 2)}, 0, v{C0}
          s_bitcmp1_b64 {sr(sFm, 2)}, s{sOK2}
          s_cbranch_scc1 L_step_{sfx}
          s_branch L_flag_{sfx}""")
    e.forget()
    e(f"L_retE_{sfx}:")
    e.loose(mload(0)); e.loose(mload(1))
    if spec:
        e(f"s_nop 3\n v_mov_b64 {vr(ACC, 2)}, 0\n v_mov_b64 {vr(ACC + 2, 2)}, 0")
    e(f"""{'s_add_u32 s13, s13, 1' if diag else ''}
          s_sub_u32 s{S_SPIN}, s{S_SPIN}, 1
          s_waitcnt vmcnt(3)
          s_cbranch_scc0 L_chkE_{sfx}
          s_branch L_end""")
    if xe:
        e(f"""L_retL_{sfx}:
              {'s_add_u32 s14, s14, 1' if diag else ''}
              s_sub_u32 s{S_SPIN}, s{S_SPIN}, 1
              s_cbranch_scc1 L_end
              s_bitcmp1_b32 s{sNan}, 0
              s_bitset1_b32 s{sNan}, 0
              s_waitcnt vmcnt(4)
              s_cbranch_scc0 L_retL1_{sfx}""")
        e.loose(mload(1))
        e(f"s_waitcnt vmcnt(0)\n L_retL1_{sfx}:")
    else:
        e(f"L_retL_{sfx}:")
        e.loose(mload(1))
        e(f"""{'s_add_u32 s14, s14, 1' if diag else ''}
              s_sub_u32 s{S_SPIN}, s{S_SPIN}, 1
              s_cbranch_scc1 L_end
              s_bitcmp1_b32 s{sNan}, 0
              s_bitset1_b32 s{sNan}, 0
              s_waitcnt vmcnt(3)
              s_cbranch_scc0 L_retL1_{sfx}
              s_waitcnt vmcnt(1)
              L_retL1_{sfx}:""")
    e("\n".join(cl_))
    e(f"""ds_write_b128 v{vMw}, {vr(MA + 4, 4)} offset:4096
          s_cbranch_vccz L_okL_{sfx}
          s_branch L_retL_{sfx}""")
    if not lastsp:
        return
    e.forget()
    e(f"L_lret_{sfx}:")
    e.loose(mload(0)); e.loose(mload(1))
    e(f"""s_sub_u32 s{S_SPIN}, s{S_SPIN}, 1
          s_cbranch_scc1 L_end
          L_last_{sfx}:
          s_waitcnt vmcnt(0) lgkmcnt(0)""")
    e("\n".join(check((0, 1))))
    e(f"""ds_write_b128 v{vMw}, {vr(MA, 4)}
          ds_write_b128 v{vMw}, {vr(MA + 4, 4)} offset:4096
          s_cbranch_vccnz L_lret_{sfx}""")
    own = [(m, ft, i) for i in (0, 1) for m in 'kv' for ft in range(2)]
    seq = [(P(*op), []) for op in own]
    if not xo:
        seq[0][1].append(export)
    seq[3][1].extend([progress, e.barrier, mread(2), mread(3)])
    for k in range(4):
        seq[4 + k][1].append(mread(4 + k))
    seq += [(P(m, ft, i), []) for i in range(2, 6) for m in 'kv' for ft in range(2)]
    seq += [(P(m, ft, i), []) for m in 'kv' for ft in range(2) for i in (6, 7)]
    e.slots(seq)
    e("\n".join(k0p + k1p + v0p + v1p))
    e("s_branch L_final")


def chain_final(e, cfg):
    e.forget()
    e("L_final:")
    if cfg.get('holdend'):
        e(f"""L_hold2:
              s_memrealtime s[92:93]
              s_waitcnt lgkmcnt(0)
              s_sub_u32 s92, s92, s94
              s_cmp_lt_u32 s92, {cfg['holdend']}
              s_cbranch_scc1 L_hold2""")
    e(f"""s_add_u32 s{sExp}, s{sExp}, {0 if cfg.get('xo', 0) else 4096}
          buffer_store_dwordx4 {vr(EX, 4)}, v{vL16}, {W}, s{sExp} offen sc1
          s_waitcnt lgkmcnt(0)""")
    if cfg.get('diag'):
        e(f"""s_memrealtime {sr(sDbgT + 12, 2)}
              s_lshl_b32 s{sA}, s{S_ROLE}, 2
              s_add_u32 s{sA}, s{sA}, s{S_WAVE}
              s_lshl_b32 s{sA}, s{sA}, 6
              s_add_u32 s{sA}, s{sA}, 0x6000000
              s_waitcnt lgkmcnt(0)
              s_sub_u32 s{sDbgT + 8}, s36, s{sDbgT + 6}""")
        for n, r in enumerate([sDbgT + 8, sDbgT + 5, S_SPIN, sDbgT + 14, sDbgT + 10, sDbgT + 12, 12, 13, 14, 15]):
            e(f"v_mov_b32 v{TMP + 2}, s{r}\n buffer_store_dword v{TMP + 2}, off, {W}, s{sA} offset:{4 * n}")
    dbg_max(e, cfg, 12, v=TMP + 2)
    e("s_waitcnt vmcnt(0)\n s_branch L_end")


def chain(e, cfg):
    CFG.clear(); CFG.update(cfg)
    chain_startup(e, cfg)
    chain_loop(e, cfg, 'f', '')
    chain_loop(e, cfg, 's', 'sc1')
    chain_final(e, cfg)
```

```python
from common import *

L_T, L_OB, L_DUMMY, L_KX, L_WL = 8192, 12544, 14592, 16384, 32768
T_PITCH = 1088
vL16, vPst, vMst, vTw, vTr, vKXr, vOw, vWL0, vWL1, vMw, vIdx, vSelC = range(12)
EX, PM, VX = 12, 16, 20
TMP = 28
MA = 32
ACC = 64
X, KXR, SPARE = 88, 104, 120
R1 = [MA + 8, MA + 16, MA + 24, X, X + 8, KXR, KXR + 8, SPARE, X, X + 8]
WO_SB = [KXR, KXR + 8, X, X + 8, ACC, ACC + 8]
(sStep, sMcur, sProg, sMtog, sG, sKl, sPst2, sKV, sC, sExp, sMcur2, sMbaseS, sPbaseS, sPbaseL, sFl, sFch, sTog, sNan,
 sA, sB) = range(50, 70)
sSel = 70
sOK, sHl, sMn2 = 78, 79, 3
sArm, sFm = 18, 98
sVx, sVt, sHs, sOK2, sG2 = 96, 97, 16, 17, 100
HV, HS, HA, HD = TMP + 2, TMP + 3, VX + 2, VX + 3
S_M0 = 84
sDbgT = 80

STREAM = [('q', 0, 0), ('q', 1, 0), ('k', 0, 0), ('k', 1, 0), ('q', 0, 2), ('q', 1, 2), ('k', 0, 2), ('k', 1, 2),
          ('q', 0, 5), ('q', 0, 7),
          ('o', 5, 0), ('o', 5, 1), ('o', 6, 0), ('o', 6, 1), ('o', 7, 0), ('o', 7, 1)]
WLPOS = {op: p for op, p in zip(STREAM[10:14], range(4))}
WLPOS.update({op: 4 + p for p, op in enumerate(STREAM[14:16] + STREAM[:10])})
ALLOPS = [(m, ft, i) for m in 'qkv' for ft in range(2) for i in range(8)] + [('o', t, kb) for t in range(8) for kb in range(2)]
RES = {}
for n, op in enumerate([o for o in ALLOPS if o not in STREAM]):
    RES[op] = ('a', 8 * n) if n < 32 else ('v', 128 + 8 * (n - 32))
PARK = {}
for n, op in enumerate(STREAM[14:16] + STREAM[:10]):
    PARK[op] = 32 + 8 * n
for n, op in enumerate(STREAM[10:14]):
    PARK[op] = 48 + 8 * n
W = sr(S_WS, 4)
CFG = {}


def wl_addr(op, half):
    p = WLPOS[op]
    off = (p >> 1) * 16384 + (p & 1) * 2048 + half * 1024
    return (vWL0, off) if off < 65536 else (vWL1, off - 65536)


def wl_write(e, op, src):
    for half in range(2):
        a, off = wl_addr(op, half)
        e(f"ds_write_b128 v{a}, {vr(src + 4 * half, 4)} offset:{off}")


def wl_lines(op, dst):
    out = []
    for half in range(2):
        a, off = wl_addr(op, half)
        out.append(f"ds_read_b128 {vr(dst + 4 * half, 4)}, v{a} offset:{off}")
    return out


def delay(e, cyc):
    if CFG.get('slp') and cyc >= 64:
        k = cyc // 64
        e(f"s_sleep {k}")
        cyc -= 64 * k
    n = cyc // 4
    while n > 0:
        k = min(n, 16)
        e(f"s_nop {k - 1}")
        n -= k


def mix(reads, other, per=3):
    out = []
    other = list(other)
    for r in reads:
        out.append(r)
        for _ in range(per):
            if other:
                out.append(other.pop(0))
    return out + other


def mload(b):
    return f"buffer_load_dwordx4 {vr(MA + 4 * b, 4)}, v{vMw}, {W}, s{sMcur} offen offset:{1024 * b} sc1"


def mspare(b):
    return f"buffer_load_dwordx4 {vr(VX + 4 * b, 4)}, v{vMw}, {W}, s{sMcur} offen offset:{1024 * b} sc1"


def mdma(b):
    return f"buffer_load_dwordx4 v{vMw}, {W}, s{sMcur} offen offset:{1024 * b} sc1 lds"


def kx_dma(e, ldsbase):
    e(f"""s_lshl_b32 s{sA}, s{S_WAVE}, 11
          s_add_u32 m0, s{sA}, {ldsbase}
          buffer_load_dwordx4 v{vL16}, {W}, s{sKV} offen sc1 lds
          buffer_load_dwordx4 v{vL16}, {W}, s{sKV} offen offset:1024 sc1 lds""")


def scalar_lines():
    return [x.strip() for x in f"""s_and_b32 s{sA}, s{sStep}, 3
          s_lshl_b32 s{sA}, s{sA}, 13
          s_add_u32 s{sMcur}, s{sA}, {WS_M}
          s_and_b32 s{sA}, s{sA}, 0x2000
          s_add_u32 s{sMn2}, s{sMbaseS}, s{sA}
          s_lshl_b32 s{sMtog}, s{sA}, 1
          s_sub_u32 s{sVx}, s{sKV}, s{sTog}
          s_add_u32 s{sVx}, s{sVx}, {8192 - L_KX}
          s_add_u32 s{sKV}, s{sKV}, {0 if CFG.get('samekv') else UNIT}
          s_add_u32 s{sVt}, s{sKV}, 8192
          s_xor_b32 s{sA}, s{sTog}, 0x2000
          s_add_u32 s{sMcur2}, s{sA}, s{sKl}
          s_sub_u32 m0, s{sKl}, {L_KX}
          s_cmp_gt_u32 s{sStep}, {0 if CFG.get('xo', 0) else 1}
          s_cselect_b32 s{sA}, 4096, 0
          s_add_u32 s{sExp}, s{sExp}, s{sA}
          s_add_u32 s{sOK2}, s{sStep}, 1
          s_max_u32 s{sProg}, s{sStep}, {0 if CFG.get('xo', 0) else 1}
          s_sub_u32 s{sProg}, s{sProg}, {0 if CFG.get('xo', 0) else 1}
          s_and_b32 s{sG2}, s{sOK2}, 1""".split('\n')]


def prep_a_lines():
    other = [f"v_mov_b64 {vr(ACC + j, 2)}, 0" for j in range(0, 24, 2)] + [f"v_lshlrev_b32 v{PM + 3}, 1, v{vL16}", f"v_mov_b32 v{TMP}, s{sProg}"]
    reads = sum([wl_lines(STREAM[o], R1[o]) for o in range(3, 8)], [])
    return mix(reads, other, 2)


def prep_b_lines():
    other = [f"v_xor_b32 v{vMst}, s{sMtog}, v{vMst}"] + [f"v_xor_b32 v{TMP + p}, {p << 11}, v{vMw}" for p in range(1, 4)]
    reads = sum([wl_lines(STREAM[o], R1[o]) for o in range(3)], [])
    return mix(reads, other, 1)


def chain_startup(e, cfg):
    h = S_ROLE
    tA, tB, tC, tD = EX, EX + 1, EX + 2, EX + 3
    t0, t1, t2, t3 = TMP, TMP + 1, TMP + 2, TMP + 3
    lane = PM
    chunks = [('o', kb, Q) for kb in range(2) for Q in range(4)] + [(m, b, 0) for m in 'qkv' for b in range(8)]
    ring = {4: L_WL + 2 * 16384, 5: L_WL + 3 * 16384, 6: L_WL + 4 * 16384, 0: L_WL + 5 * 16384, 1: L_WL + 6 * 16384,
            2: L_WL + 7 * 16384, 3: 0}
    ptr = {'q': P_WQ, 'k': P_WK, 'v': P_WV, 'o': P_WO}
    sHq, sHo, sLw = sMcur, sProg, sMcur2
    cur, marks = [None], {}

    def dma(r):
        m, x, Q = chunks[r]
        if cur[0] != m:
            srd(e, S_T0, ptr[m], 0x400000); cur[0] = m
        for i in range(4):
            if m == 'o':
                row = 64 * x + 32 * (Q >> 1) + 2 * (Q & 1) + 4 * (i >> 1) + (i & 1)
                e(f"""s_add_u32 s{sA}, s{sHo}, {row * 1024}
                      s_add_u32 m0, s{sLw}, {ring[r % 7] + i * 1024}
                      buffer_load_dwordx4 v{vL16}, {sr(S_T0, 4)}, s{sA} offen lds""")
            else:
                e(f"""s_add_u32 s{sA}, s{sHq}, {(128 * (x & 3) + 64 * (x >> 2) + 4 * i) * 8192}
                      s_add_u32 m0, s{sLw}, {ring[r % 7] + i * 1024}
                      buffer_load_dwordx4 v{tA}, {sr(S_T0, 4)}, s{sA} offen lds""")
        marks[r] = e.vm[-1]

    e(f"""v_and_b32 v{lane}, 63, v0
          v_lshlrev_b32 v{vL16}, 4, v{lane}
          s_and_b32 s{sA}, s{S_WAVE}, 1
          s_lshr_b32 s{sB}, s{S_WAVE}, 1
          s_lshl_b32 s{sHo}, s{h}, 17
          s_lshl_b32 s{sLw}, s{sA}, 14
          s_add_u32 s{sHo}, s{sHo}, s{sLw}
          s_lshl_b32 s{sLw}, s{sB}, 13
          s_add_u32 s{sHo}, s{sHo}, s{sLw}
          s_lshl_b32 s{sHq}, s{h}, 8
          s_lshl_b32 s{sLw}, s{S_WAVE}, 17
          s_add_u32 s{sHq}, s{sHq}, s{sLw}
          s_lshl_b32 s{sLw}, s{S_WAVE}, 12""")
    for r in range(6):
        dma(r)
    e(f"""v_lshrrev_b32 v{t0}, 4, v{lane}
          v_and_b32 v{t1}, 15, v{lane}
          s_lshl_b32 s{sA}, s{S_WAVE}, 11
          v_add_u32 v{vMw}, s{sA}, v{vL16}
          v_lshlrev_b32 v{PM + 3}, 2, v{lane}""")
    e(f"""v_lshrrev_b32 v{t2}, 2, v{lane}
          v_lshlrev_b32 v{t2}, 12, v{t2}
          v_and_b32 v{t3}, 3, v{lane}
          v_lshl_add_u32 v{vPst}, v{t3}, 4, v{t2}""")
    e(f"""v_and_b32 v{t2}, 1, v{lane}
          v_lshlrev_b32 v{t2}, 5, v{t2}
          v_lshl_add_u32 v{t2}, v{t0}, 3, v{t2}
          v_and_b32 v{t3}, 4, v{lane}
          v_add_u32 v{t2}, v{t2}, v{t3}
          v_and_b32 v{t3}, 8, v{lane}
          v_cmp_ne_u32 {sr(sArm, 2)}, 0, v{t3}
          v_lshl_add_u32 v{t2}, v{t3}, 11, v{t2}
          v_and_b32 v{t3}, 2, v{lane}
          v_lshl_add_u32 v{vMst}, v{t3}, 29, v{t2}""")
    srd(e, S_M0, P_MEM0, 8192)
    e(f"""v_and_b32 v{t2}, 1, v{lane}
          v_lshlrev_b32 v{tD}, 10, v{t2}
          v_lshl_add_u32 v{tD}, v{t0}, 1, v{tD}
          v_bfe_u32 v{t2}, v{lane}, 2, 1
          v_lshl_add_u32 v{tD}, v{t2}, 6, v{tD}
          s_and_b32 s{sA}, s{h}, 6
          s_lshl_b32 s{sA}, s{sA}, 10
          s_lshr_b32 s{sB}, s{h}, 3
          s_lshl_b32 s{sB}, s{sB}, 8
          s_add_u32 s{sA}, s{sA}, s{sB}
          s_and_b32 s{sB}, s{S_WAVE}, 1
          s_lshl_b32 s{sB}, s{sB}, 7
          s_add_u32 s{sA}, s{sA}, s{sB}
          s_lshr_b32 s{sB}, s{S_WAVE}, 1
          s_lshl_b32 s{sB}, s{sB}, 3
          s_add_u32 s{sA}, s{sA}, s{sB}
          s_and_b32 s{sB}, s{h}, 1
          s_lshl_b32 s{sB}, s{sB}, 4
          s_add_u32 s{sA}, s{sA}, s{sB}
          buffer_load_ushort v{VX}, v{tD}, {sr(S_M0, 4)}, s{sA} offen
          buffer_load_ushort v{VX + 1}, v{tD}, {sr(S_M0, 4)}, s{sA} offen offset:32""")
    e(f"""s_lshl_b32 s{sA}, s{S_WAVE}, 8
          s_add_u32 s{sA}, s{sA}, {L_T}
          v_mul_u32_u24 v{t2}, {T_PITCH}, v{t0}
          v_lshl_add_u32 v{t2}, v{t1}, 3, v{t2}
          v_add_u32 v{vTw}, s{sA}, v{t2}
          v_and_b32 v{t3}, 3, v{lane}
          v_mul_u32_u24 v{t2}, {T_PITCH}, v{t3}
          v_lshrrev_b32 v{t3}, 5, v{lane}
          v_lshl_add_u32 v{t2}, v{t3}, 7, v{t2}
          v_bfe_u32 v{t3}, v{lane}, 2, 3
          v_lshl_add_u32 v{t2}, v{t3}, 3, v{t2}
          v_add_u32 v{vTr}, {L_T}, v{t2}
          v_lshlrev_b32 v{t2}, 9, v{t0}
          v_lshl_add_u32 v{t2}, v{t1}, 4, v{t2}
          v_add_u32 v{vKXr}, {L_KX}, v{t2}""")
    e(f"""s_lshl_b32 s{sA}, s{S_WAVE}, 9
          s_add_u32 s{sA}, s{sA}, {L_OB}
          v_lshrrev_b32 v{t2}, 5, v{lane}
          v_lshlrev_b32 v{t2}, 8, v{t2}
          v_and_b32 v{t3}, 16, v{lane}
          v_add_u32 v{t2}, v{t2}, v{t3}
          v_and_b32 v{t3}, 12, v{lane}
          v_lshl_add_u32 v{t2}, v{t3}, 4, v{t2}
          v_and_b32 v{t3}, 1, v{lane}
          v_lshl_add_u32 v{t2}, v{t3}, 5, v{t2}
          v_add_u32 v{t2}, s{sA}, v{t2}
          v_and_b32 v{t3}, 2, v{lane}
          v_lshlrev_b32 v{t3}, 12, v{t3}
          v_sub_u32 v{vOw}, v{t2}, v{t3}
          s_add_u32 s{sA}, s{sLw}, {L_WL}
          v_add_u32 v{vWL0}, s{sA}, v{vL16}
          v_add_u32 v{vWL1}, 0x10000, v{vWL0}""")
    e(f"""v_and_b32 v{t2}, 1, v{lane}
          v_cmp_ne_u32 vcc, 0, v{t2}
          v_mov_b32 v{t2}, 0x4444
          v_mov_b32 v{t3}, 0xeeee
          v_cndmask_b32 v{vIdx}, v{t2}, v{t3}, vcc
          v_mov_b32 v{t2}, 0x3f80
          v_mov_b32 v{t3}, 0x3f800000
          v_cndmask_b32 v{vSelC}, v{t2}, v{t3}, vcc
          v_lshrrev_b32 v{t2}, 1, v{t1}""")
    for j in range(4):
        e(f"v_cmp_eq_u32 {sr(sSel + 2 * j, 2)}, {j}, v{t2}")
    e(f"""v_lshlrev_b32 v{tA}, 13, v{t0}
          v_lshlrev_b32 v{t2}, 2, v{t0}
          v_xor_b32 v{t2}, v{t2}, v{t1}
          v_lshl_add_u32 v{tA}, v{t2}, 4, v{tA}""")
    e(f"""v_bfe_u32 v{t2}, v{lane}, 2, 1
          v_lshlrev_b32 v{tB}, 12, v{t2}
          v_bfe_u32 v{t2}, v{lane}, 5, 1
          v_lshl_add_u32 v{tB}, v{t2}, 10, v{tB}
          v_bfe_u32 v{t2}, v{lane}, 3, 1
          v_lshl_add_u32 v{tB}, v{t2}, 9, v{tB}
          v_bfe_u32 v{t2}, v{lane}, 4, 1
          v_lshl_add_u32 v{tB}, v{t2}, 8, v{tB}
          v_and_b32 v{t2}, 3, v{lane}
          v_lshl_add_u32 v{tB}, v{t2}, 3, v{tB}
          v_bfe_u32 v{t3}, v{tB}, 8, 2
          v_xor_b32 v{t3}, s{S_WAVE}, v{t3}
          v_lshl_add_u32 v{tB}, v{t3}, 6, v{tB}""")
    e(f"""v_lshrrev_b32 v{t3}, 2, v{lane}
          v_lshlrev_b32 v{tC}, 10, v{t3}
          v_lshl_add_u32 v{tC}, v{t2}, 3, v{tC}
          s_lshl_b32 s{sA}, s{S_WAVE}, 8
          v_add_u32 v{tC}, s{sA}, v{tC}""")
    e(f"""s_lshl_b32 s{sA}, s{S_WAVE}, 11
          s_lshl_b32 s{sB}, s{h}, 13
          s_add_u32 s{sPbaseL}, s{sA}, s{sB}
          s_add_u32 s{sPbaseL}, s{sPbaseL}, {WS_P}
          s_lshl_b32 s{sA}, s{S_WAVE}, 16
          s_lshl_b32 s{sB}, s{h}, 6
          s_add_u32 s{sPbaseS}, s{sA}, s{sB}
          s_add_u32 s{sPbaseS}, s{sPbaseS}, {WS_P}""")
    e(f"""s_and_b32 s{sA}, s{S_WAVE}, 1
          s_lshl_b32 s{sMbaseS}, s{sA}, 10
          s_and_b32 s{sA}, s{h}, 24
          s_lshl_b32 s{sA}, s{sA}, 8
          s_add_u32 s{sMbaseS}, s{sMbaseS}, s{sA}
          s_and_b32 s{sA}, s{h}, 1
          s_lshl_b32 s{sA}, s{sA}, 9
          s_add_u32 s{sMbaseS}, s{sMbaseS}, s{sA}
          s_lshr_b32 s{sA}, s{S_WAVE}, 1
          s_lshl_b32 s{sA}, s{sA}, 8
          s_add_u32 s{sMbaseS}, s{sMbaseS}, s{sA}
          s_and_b32 s{sA}, s{h}, 6
          s_lshl_b32 s{sA}, s{sA}, 5
          s_add_u32 s{sMbaseS}, s{sMbaseS}, s{sA}
          s_add_u32 s{sMbaseS}, s{sMbaseS}, {WS_M}""")
    e(f"""s_mul_i32 s{sKV}, s{h}, {64 * UNIT}
          s_lshl_b32 s{sA}, s{S_WAVE}, 11
          s_add_u32 s{sKV}, s{sKV}, s{sA}
          s_add_u32 s{sKV}, s{sKV}, {WS_QKV + 8192}
          s_lshl_b32 s{sExp}, s{h}, 18
          s_lshl_b32 s{sA}, s{S_WAVE}, 10
          s_add_u32 s{sExp}, s{sExp}, s{sA}
          s_add_u32 s{sExp}, s{sExp}, {WS_EXP}
          s_lshl_b32 s{sFl}, s{h}, 8
          s_add_u32 s{sFl}, s{sFl}, {F_QKV}
          s_lshl_b32 s{sFch}, s{h}, 7
          s_lshl_b32 s{sA}, s{S_WAVE}, 2
          s_add_u32 s{sFch}, s{sFch}, s{sA}
          s_add_u32 s{sFch}, s{sFch}, {F_CH}
          s_mov_b32 s{sC}, 0x3e0293ee
          s_add_u32 s{sPst2}, s{sPbaseS}, 4096
          s_lshl_b32 s{sKl}, s{S_WAVE}, 11
          s_add_u32 s{sKl}, s{sKl}, {L_KX}
          s_lshl_b32 s{sHl}, s{h}, 7
          s_add_u32 s{sHl}, s{sHl}, {F_HINT}
          s_lshl_b32 s{sHs}, s{h}, 2
          s_lshl_b32 s{sA}, s{S_WAVE}, 10
          s_add_u32 s{sHs}, s{sHs}, s{sA}
          s_add_u32 s{sHs}, s{sHs}, {F_HINT}
          s_mov_b32 s{sOK}, 1""")
    e(f"""v_mov_b64 {vr(VX + 4, 2)}, 0
          v_mov_b64 {vr(VX + 6, 2)}, 0
          v_mov_b32 v{VX + 2}, -1
          s_add_u32 s{sB}, s{sMbaseS}, 8192
          buffer_store_dwordx4 {vr(VX + 4, 4)}, v{vL16}, {W}, s{sPbaseL} offen sc1
          buffer_store_dwordx4 {vr(VX + 4, 4)}, v{vL16}, {W}, s{sPbaseL} offen offset:1024 sc1
          buffer_store_dword v{VX + 2}, v{vMst}, {W}, s{sB} offen sc1""")
    if cfg.get('sdiag'):
        e("s_memrealtime s[20:21]\n s_waitcnt lgkmcnt(0)")
    confirm_barrier(e, 'ch')
    if cfg.get('sdiag'):
        e("s_memrealtime s[22:23]\n s_waitcnt lgkmcnt(0)")
    parked = STREAM[14:16] + STREAM[:10]
    for r in range(32):
        m, x, Q = chunks[r]
        if marks[r] in e.vm:
            e.wait(vm=len(e.vm) - 1 - e.vm.index(marks[r]))
        e.wait(lgkm=0)
        e("s_barrier")
        if cfg.get('sdiag') and r in (0, 8, 16, 24, 31):
            e(f"s_memrealtime {sr({0: 24, 8: 26, 16: 28, 24: 36, 31: 40}[r], 2)}\n s_waitcnt lgkmcnt(0)")
        if r == 6:
            e.comment("publish this wave's piece of mem0 in slot 0 (and arm slot 2)")
            e(f"""v_lshl_or_b32 v{VX}, v{VX + 1}, 16, v{VX}
                  v_min_u32 v{VX}, -2, v{VX}
                  v_cndmask_b32 v{VX}, v{VX}, -1, {sr(sArm, 2)}
                  buffer_store_dword v{VX}, v{vMst}, {W}, s{sMbaseS} offen sc1""")
        if r == 12:
            e.comment("every wave's arming stores are complete: count this member as armed")
            e(f"""s_cmp_lg_u32 s{S_WAVE}, 0
                  s_cbranch_scc1 L_cs_in
                  s_cmp_lg_u32 s{S_XCC}, 0
                  s_mov_b32 s{sB}, 0x10000
                  s_cselect_b32 s{sA}, 0x1010000, s{sB}
                  v_mov_b32 v{t0}, s{sA}
                  s_mov_b64 exec, 1
                  buffer_atomic_add v{t0}, off, {sr(S_DBG, 4)}, 0 offset:{D_INIT}
                  s_mov_b64 exec, -1""")
            e.vm.pop()
            e.label("L_cs_in")
        if r + 6 < 32:
            dma(r + 6)
        if r == 8:
            for op in STREAM[10:14]:
                wl_write(e, op, PARK[op])
            e.wait(lgkm=0)
        if r == cfg.get('r1', 16):
            e(f"buffer_load_dword v{PM + 1}, off, {sr(S_DBG, 4)}, 0 offset:{D_INIT} sc1")
        if r == cfg.get('r2', 23):
            e(f"""v_readfirstlane_b32 s{sNan}, v{PM + 1}
                  buffer_load_dword v{PM + 2}, v{PM + 3}, {W}, s{sFl} offen sc1""")
            e(f"""s_add_u32 m0, s{sLw}, {L_KX + 8192}
                  s_lshr_b32 m0, m0, 1
                  s_add_u32 m0, m0, {(L_KX + 8192) // 2}
                  s_lshl_b32 s{sB}, s{h}, 10
                  s_add_u32 s{sB}, s{sB}, {WS_M}
                  buffer_load_dwordx4 v{vL16}, {W}, s{sPbaseL} offen sc1 lds
                  buffer_load_dwordx4 v{vL16}, {W}, s{sPbaseL} offen offset:1024 sc1 lds
                  buffer_load_dwordx4 v{vL16}, {W}, s{sHl} offen sc1 lds
                  buffer_load_dwordx4 v{vL16}, {W}, s{sB} offen sc1 lds""")
        if r == cfg.get('r3', 30):
            e(f"""v_cmp_ne_u32 {sr(sFm, 2)}, 0, v{PM + 2}
                  s_and_b32 s{sOK}, s{sFm}, 3
                  s_cmp_eq_u32 s{sOK}, 3
                  s_cselect_b32 s{sOK}, 1, 0
                  s_and_b32 s{sA}, s{sNan}, 0xffffff
                  s_cmp_eq_u32 s{sA}, 0x200100
                  s_cselect_b32 s{sOK}, s{sOK}, 0""")
            kx_dma(e, L_KX)
            e(f"""s_add_u32 m0, m0, 8192
                  s_add_u32 s{sA}, s{sKV}, 8192
                  buffer_load_dwordx4 v{vL16}, {W}, s{sA} offen sc1 lds
                  buffer_load_dwordx4 v{vL16}, {W}, s{sA} offen offset:1024 sc1 lds""")
        if r == cfg.get('rt', 27):
            e.comment("the last exports are recognised by their data: fill their slots with a pattern no export holds")
            for j in range(4):
                e(f"v_mov_b32 v{VX + j}, {SENT1}")
            for sg in range(64 - NTAIL, 64):
                e(f"s_add_u32 s{sA}, s{sExp}, {sg * 4096}\n buffer_store_dwordx4 {vr(VX, 4)}, v{vL16}, {W}, s{sA} offen sc1")
        if r == 29:
            e(f"buffer_load_dword v{VX + 7}, v{PM + 3}, {W}, s{sFl} offen sc1")
        if r >= 26:
            for op in parked[2 * (r - 26):2 * (r - 26) + 2]:
                wl_write(e, op, PARK[op])
        e(f"v_add_u32 v{t1}, {ring[r % 7]}, v{tC if m == 'o' else tB}")
        if m == 'o':
            for t in range(8):
                op = ('o', t, x)
                kind, base = RES[op] if op in RES else ('v', PARK[op])
                e(f"ds_read_b64_tr_b16 {vr(base + 2 * Q, 2, kind)}, v{t1} offset:{t * 32}")
        else:
            for w in range(1, 4):
                e(f"s_cmp_eq_u32 s{S_WAVE}, {w}\n s_cbranch_scc1 L_cs{r}_{w}")
            st0 = e.state()
            for w in range(4):
                if w:
                    e.label(f"L_cs{r}_{w}"); e.set_state(st0)
                for ft in range(2):
                    op = (m, ft, 2 * ((x & 3) ^ w) + (x >> 2))
                    kind, base = RES[op] if op in RES else ('v', PARK[op])
                    for Q in range(4):
                        e(f"ds_read_b64_tr_b16 {vr(base + 2 * Q, 2, kind)}, v{t1} offset:{(32 * (Q & 1) + 8 * (Q >> 1)) * 256 + ft * 32}")
                if w < 3:
                    e(f"s_branch L_cs{r}_e")
            e.label(f"L_cs{r}_e")
    e.wait(lgkm=0)
    if cfg.get('sdiag'):
        e(f"""s_lshl_b32 s{sA}, s{S_ROLE}, 2
              s_add_u32 s{sA}, s{sA}, s{S_WAVE}
              s_lshl_b32 s{sA}, s{sA}, 6
              s_add_u32 s{sA}, s{sA}, 0x6400000""")
        for n, r in enumerate([94, 20, 22, 24, 26, 28, 36, 40, sOK]):
            e(f"v_mov_b32 v{PM}, s{r}\n buffer_store_dword v{PM}, off, {W}, s{sA} offset:{4 * n}")
    e(f"""s_cmp_lg_u32 s{sOK}, 0
          s_cbranch_scc1 L_cs_ready
          s_and_b32 s{sA}, s{sNan}, 0xffffff
          s_cmp_eq_u32 s{sA}, 0x200100
          s_cbranch_scc1 L_cs_p3
          L_cs_p1:
          buffer_load_dword v{t0}, off, {sr(S_DBG, 4)}, 0 offset:{D_INIT} sc1
          s_sub_u32 s{S_SPIN}, s{S_SPIN}, 1
          s_cbranch_scc1 L_end
          v_readfirstlane_b32 s{sNan}, v{t0}
          s_and_b32 s{sA}, s{sNan}, 0xffffff
          s_cmp_eq_u32 s{sA}, 0x200100
          s_cbranch_scc0 L_cs_p1
          L_cs_p2:
          buffer_load_dword v{VX + 7}, v{PM + 3}, {W}, s{sFl} offen sc1
          s_sub_u32 s{S_SPIN}, s{S_SPIN}, 1
          s_cbranch_scc1 L_end
          L_cs_p3:
          s_waitcnt vmcnt(0)
          v_cmp_ne_u32 {sr(sFm, 2)}, 0, v{VX + 7}
          s_and_b32 s{sA}, s{sFm}, 3
          s_cmp_eq_u32 s{sA}, 3
          s_cbranch_scc0 L_cs_p2""")
    kx_dma(e, L_KX)
    e.label("L_cs_ready")
    e(f"""v_mov_b32 v{PM + 1}, 0
          v_mov_b32 v{PM + 2}, 0
          s_mov_b32 s{sStep}, 0
          s_mov_b32 s{sTog}, 0""")
    e("\n".join(scalar_lines() + prep_a_lines()))
    e("s_barrier")
    e("\n".join([mload(0), mdma(0), mspare(0), mload(1)]))
    e("\n".join(prep_b_lines()))
    dbg_max(e, cfg, 11, v=PM, mask=1)
    if cfg.get('holdto'):
        e(f"""L_hold:
              s_memrealtime s[92:93]
              s_waitcnt lgkmcnt(0)
              s_sub_u32 s92, s92, s94
              s_cmp_lt_u32 s92, {cfg['holdto']}
              s_cbranch_scc1 L_hold""")
    e("s_waitcnt vmcnt(0) lgkmcnt(0)\n s_barrier")
    if cfg.get('diag'):
        e.raw(f"  s_memtime {sr(sDbgT + 6, 2)}\n  s_memrealtime {sr(sDbgT + 10, 2)}\n  s_mov_b32 s{sDbgT + 5}, 0\n  s_mov_b32 s12, 0\n  s_mov_b32 s13, 0\n  s_mov_b32 s14, 0\n  s_mov_b32 s15, 0\n  s_waitcnt lgkmcnt(0)")
    e(f"""s_lshr_b32 s{sA}, s{sNan}, 24
          s_mov_b32 s{sNan}, 0
          s_cmp_lg_u32 s{sA}, 0
          s_cbranch_scc1 L_step_s""")
    e("s_branch L_step_s" if cfg.get('force_slow') else "s_branch L_step_f")


def chain_loop(e, cfg, sfx, st):
    acc = {('q', 0): ACC, ('q', 1): ACC + 4, ('k', 0): ACC + 8, ('k', 1): ACC + 12, ('v', 0): ACC + 16, ('v', 1): ACC + 20}
    loc = dict(RES)
    for o in range(10):
        loc[STREAM[o]] = ('v', R1[o])
    for o in range(6):
        loc[STREAM[10 + o]] = ('v', WO_SB[o])
    diag = cfg.get('diag')

    def stamp(n):
        tr = cfg.get('trace')
        if tr and n in tr:
            e.raw(f"  s_memtime {sr(20 + 2 * tr.index(n), 2)}")

    def trace_out(where, TR):
        if cfg.get('trace') and cfg.get('tpos', 'mid') == where:
            e(f"""s_memtime s[32:33]
                  s_memrealtime s[34:35]
                  s_lshl_b32 s40, s{S_ROLE}, 2
                  s_add_u32 s40, s40, s{S_WAVE}
                  s_lshl_b32 s40, s40, 6
                  s_add_u32 s40, s40, s{sStep}
                  s_lshl_b32 s40, s40, 5
                  s_add_u32 s40, s40, 0x6200000
                  s_waitcnt lgkmcnt(0)""")
            for j in range(8):
                e(f"v_mov_b32 v{TR + j}, s{20 + 2 * j}")
            e(f"""s_mov_b64 exec, 1
                  buffer_store_dwordx4 {vr(TR, 4)}, off, {W}, s40
                  buffer_store_dwordx4 {vr(TR + 4, 4)}, off, {W}, s40 offset:16
                  s_mov_b64 exec, -1""")

    def P(m, ft, i):
        k, b = loc[(m, ft, i)]
        return f"v_smfmac_f32_16x16x64_bf16 {vr(acc[(m, ft)], 4)}, {vr(MA + 4 * i, 4)}, {vr(b, 8, k)}, v{vIdx}"

    def post(a, dst):
        return [f"v_add_f32 v{a}, v{a}, v{a + 1}", f"v_add_f32 v{a + 2}, v{a + 2}, v{a + 3}",
                f"v_cvt_pk_bf16_f32 v{dst}, v{a}, v{a + 2}"]

    def xread(kb):
        return [f"ds_read_b64_tr_b16 {vr(X + 4 * kb, 2)}, v{vTr} offset:{kb * 256}",
                f"ds_read_b64_tr_b16 {vr(X + 4 * kb + 2, 2)}, v{vTr} offset:{kb * 256 + 64}"]

    kx_dst = [KXR, SPARE, KXR + 4, SPARE + 4, KXR + 8, KXR, KXR + 12, KXR + 4]

    def kxread(n):
        return f"ds_read_b128 {vr(kx_dst[n], 4)}, v{vKXr} offset:{(n >> 1) * 2048 + (n & 1) * 256}"

    Sx = [ACC, ACC + 4]
    Sm, Px = ACC + 8, ACC + 12

    def smx(n):
        kb, t = n >> 1, n & 1
        c = '0' if kb == 0 else vr(Sx[t], 4)
        return f"v_mfma_f32_16x16x32_bf16 {vr(Sx[t], 4)}, {vr(kx_dst[n], 4)}, {vr(X + 4 * kb, 4)}, {c}"

    def smm(kb):
        c = '0' if kb == 0 else vr(Sm, 4)
        return f"v_mfma_f32_16x16x32_bf16 {vr(Sm, 4)}, {vr(X + 4 * kb, 4)}, {vr(X + 4 * kb, 4)}, {c}"

    pace = cfg.get('pace', 0)
    ldH = lambda: pace and e.loose(f"buffer_load_dword v{HD}, v{HA}, {W}, s{sHl} offen sc1")
    ldV = [f"buffer_load_dwordx4 {vr(VX, 4)}, v{vKXr}, {W}, s{sVx} offen sc1",
           f"buffer_load_dwordx4 {vr(VX + 4, 4)}, v{vKXr}, {W}, s{sVx} offen offset:256 sc1"]
    ldK = [f"buffer_load_dwordx4 v{vL16}, {W}, s{sKV} offen sc1 lds",
           f"buffer_load_dwordx4 v{vL16}, {W}, s{sKV} offen offset:1024 sc1 lds"]
    touch = f"buffer_load_dword v{PM + 3}, {W}, s{sVt} offen sc1 lds"
    export = f"buffer_store_dwordx4 {vr(EX, 4)}, v{vL16}, {W}, s{sExp} offen sc1"
    progress = f"s_mov_b64 exec, 1\n buffer_store_dword v{TMP}, off, {W}, s{sFch} sc1\n s_mov_b64 exec, -1"
    ldF = f"buffer_load_dword v{TMP + 3}, v{TMP + 3}, {W}, s{sFl} offen sc1"
    if cfg.get('noexp'):
        export = progress = "s_nop 0"
    rf = sum([wl_lines(STREAM[o], R1[o]) for o in range(8, 10)], [])
    wo = sum([wl_lines(STREAM[10 + o], WO_SB[o]) for o in range(6)], [])
    q0p, q1p, k0p, k1p = post(ACC, ACC + 1), post(ACC + 4, ACC + 5), post(ACC + 8, EX), post(ACC + 12, EX + 1)
    v0p, v1p = post(ACC + 16, EX + 2), post(ACC + 20, EX + 3)
    m0, m1 = TMP, TMP + 1
    C0 = PM
    zero = [f"v_mov_b64 {vr(MA + j, 2)}, 0" for j in range(0, 32, 2)]
    st_ = lambda n: (lambda: stamp(n))
    mx = lambda d, a, b, c_: f"v_max3_f32 v{d}, v{a}, v{b}, v{c_}"

    def check(blocks):
        r = [MA + 4 * b + j for b in blocks for j in range(4)]
        out = [f"v_max3_u32 v{C0}, v{r[0]}, v{r[1]}, v{r[2]}"]
        k = 3
        while k + 1 < len(r):
            out.append(f"v_max3_u32 v{C0}, v{C0}, v{r[k]}, v{r[k + 1]}"); k += 2
        out.append(f"v_max_u32 v{C0}, v{C0}, v{r[k]}")
        out.append(f"v_cmp_eq_u32 vcc, -1, v{C0}")
        return out

    def mread(i):
        return f"ds_read_b128 {vr(MA + 4 * i, 4)}, v{TMP + (i >> 1)} offset:{(i & 1) * 1024}"

    e.slot_no = 0
    e.slot_hook = lambda n: stamp(100 + n)
    e.forget()
    e.raw(".p2align 8\n" + "  s_nop 0\n" * cfg.get('ph', 8))
    e.label(f"L_step_{sfx}")
    xe = 0
    xo = cfg.get('xo', 0)
    lastsp = cfg.get('lastsp', 1)
    dmae = cfg.get('dmae', 0)
    wrE = f"ds_write_b128 v{vMw}, {vr(MA, 4)}"
    e(f"s_waitcnt vmcnt({2 + dmae})")
    ce_ = check((0,))
    e("\n".join(ce_))
    if dmae:
        e(ldV[1])
    else:
        e(wrE)
    e(f"s_cbranch_vccnz L_retE_{sfx}\n L_okE_{sfx}:")
    stamp(0)
    cl_ = check((1,))
    z = lambda: zero.pop(0)
    lw = lambda n: (lambda: e.wait(lgkm=n))
    lc = cfg.get('lc', 8)
    sl2 = cfg.get('sl2', 1)
    first = [(m, ft, 0) for m in 'qkv' for ft in range(2)] + [(m, ft, i) for i in (2, 4, 6, 1) for m in 'qk' for ft in range(2)]
    f = {n: [] for n in range(22)}
    f[0] += [ldV[0]] if dmae else [ldV[1]]
    f[1] += [] if dmae else [ldV[0]]
    f[sl2] += [lambda: e.loose(mload(1))]
    f[2] += [f"s_waitcnt vmcnt({4 + (sl2 <= 2)}) lgkmcnt(0)", "s_barrier", mread(2), mread(4)]
    f[3] += [mread(6), f"s_mov_b32 m0, s{sMcur2}"]
    f[4] += [ldK[0]]
    f[7] += [ldK[1], f"s_movk_i32 m0, {L_DUMMY}"]
    nyL = 2 if lc >= 8 else 1
    f[lc] += [f"s_waitcnt vmcnt({3 + nyL})", cl_[0]]
    f[lc + 1] += [cl_[1]]
    f[lc + 2] += [cl_[2]]
    f[lc + 3] += [f"ds_write_b128 v{vMw}, {vr(MA + 4, 4)} offset:1024", f"s_cbranch_vccnz L_retL_{sfx}", f"L_okL_{sfx}:", st_(1)]
    f[5].insert(0, rf[0]); f[6].insert(0, rf[1]); f[9].insert(0, rf[2]); f[10].insert(0, rf[3])
    f[lc + 4] += [touch]
    f[lc + 6] += [export]
    bb = lc + 9
    f[bb - 1] += [e.lds_writes_done]
    f[bb] += [e.barrier]
    f[bb + 1] += [mread(3), mread(5)]
    f[bb + 2] += [mread(7), f"v_lshrrev_b32 v{TMP + 3}, 2, v{vL16}"]
    f[13] += [kxread(0)]; f[15] += [kxread(2)]; f[20] += [kxread(4), ldF]
    f[21] += [st_(2), lambda: trace_out('mid', SPARE)]
    seq = [(P(*op), f[n]) for n, op in enumerate(first)] + [
        (P('q', 0, 3), [kxread(6)]),
        (P('q', 0, 5), [kxread(1)]),
        (P('q', 0, 7), [kxread(3)]),
        (P('q', 1, 3), [lambda: e(f"s_waitcnt vmcnt({len(e.vm) - [x.text for x in e.vm].index(ldK[0])})"), "s_nop 0"]),
        (P('q', 1, 5), ["s_nop 1"] if xo else [progress]),
        (P('q', 1, 7), ["s_nop 0", q0p[0]]),
        (P('k', 0, 3), ["s_nop 0", q0p[1]]),
        (P('k', 0, 5), ["s_nop 0", q0p[2]]),
        (P('k', 0, 7), [q1p[0]]),
        (P('k', 1, 3), ["s_nop 0", q1p[1]]),
        (P('k', 1, 5), ["s_nop 0", q1p[2]]),
        (P('k', 1, 7), [f"ds_write2_b32 v{vTw}, v{ACC + 1}, v{ACC + 5} offset0:0 offset1:32", st_(3), k0p[0]]),
        (P('v', 0, 1), ["s_nop 0", k0p[1]]),
        (P('v', 1, 1), ["s_nop 0", k0p[2], k1p[0]]),
        (P('v', 0, 2), [k1p[1], k1p[2]]),
        (P('v', 1, 2), [f"ds_write2_b32 v{vTw}, v{EX}, v{EX + 1} offset0:1 offset1:33", z()]),
        (P('v', 0, 3), [z()]),
        (P('v', 1, 3), [z()]),
        (P('v', 0, 4), [z()]),
        (P('v', 1, 4), [e.lds_writes_done, z()]),
        (P('v', 0, 5), [e.barrier]),
        (P('v', 1, 5), xread(0) + [z()]),
        (P('v', 0, 6), xread(1) + [z()]),
        (P('v', 0, 7), xread(2) + [z()]),
        (P('v', 1, 6), xread(3) + [z()]),
        (P('v', 1, 7), [st_(4), lw(6), z()]),
        (smx(0), [z(), z()]),
        (smx(2), [kxread(5), lw(1)]),
        (smx(4), [kxread(7), v0p[0]]),
        (smx(6), [v0p[1], v0p[2]]),
        (smm(0), [v1p[0], v1p[1]]),
        (smm(1), [v1p[2], z()]),
        (smm(2), ([] if lastsp else ["s_cbranch_scc1 L_final"]) + [mx(m0, Sx[0], Sx[0] + 1, Sx[0] + 2)]),
        (smm(3), [z(), z()]),
        (smx(1), [lw(0), z()]),
        (smx(3), [f"v_exp_f32 v{m1}, v{vIdx}"] if cfg.get('warm', 1) == 1 else []),
        (smx(5), [mx(m0, m0, Sx[0] + 3, Sm + 2), f"v_max_f32 v{m0}, v{m0}, v{Sm + 3}"]),
        (smx(7), [wo[0], f"s_add_u32 s{sStep}, s{sStep}, 1", wo[1], f"s_xor_b32 s{sTog}, s{sTog}, 0x2000", wo[2],
                  f"s_mov_b32 s{sG}, s{sG2}", wo[3], f"v_xor_b32 v{vKXr}, 0x2000, v{vKXr}"]),
    ]
    e.slots(seq)
    assert not zero
    e(f"""{mx(m0, m0, Sx[1], Sx[1] + 1)}
          {mx(m0, m0, Sx[1] + 2, Sx[1] + 3)}
          v_mov_b32 v{m1}, v{m0}
          v_permlane32_swap_b32 v{m0}, v{m1}
          v_max_f32 v{m0}, v{m0}, v{m1}
          v_mov_b32 v{m1}, v{m0}
          v_permlane16_swap_b32 v{m0}, v{m1}
          v_max_f32 v{m0}, v{m0}, v{m1}
          v_mul_f32 v{m0}, s{sC}, v{m0}""")
    for j in (0, 2, 4, 6, 10):
        e(f"v_pk_fma_f32 {vr(ACC + j, 2)}, {vr(ACC + j, 2)}, {sr(sC, 2)}, {vr(m0, 2)} op_sel_hi:[1,0,0] neg_lo:[0,0,1] neg_hi:[0,0,1]")
    for j in (0, 1, 2, 3, 4, 5, 6, 7, 10, 11):
        e(f"v_exp_f32 v{ACC + j}, v{ACC + j}")
    stamp(5)
    for j in range(4):
        e(f"v_cvt_pk_bf16_f32 v{Px + j}, v{ACC + 2 * j}, v{ACC + 2 * j + 1}")
    e(f"""v_cvt_pk_bf16_f32 v{PM}, v{Sm + 2}, v{Sm + 3}
          v_cvt_pk_bf16_f32 v{PM + 3}, v{Sm + 2}, v{Sm + 3}
          v_pk_add_f32 {vr(ACC, 2)}, {vr(ACC, 2)}, {vr(ACC + 2, 2)}
          v_pk_add_f32 {vr(ACC + 4, 2)}, {vr(ACC + 4, 2)}, {vr(ACC + 6, 2)}
          v_pk_add_f32 {vr(ACC, 2)}, {vr(ACC, 2)}, {vr(Sm + 2, 2)}
          v_pk_add_f32 {vr(m0, 2)}, {vr(ACC, 2)}, {vr(ACC + 4, 2)}""")
    O = SPARE
    mpos = cfg.get('mpos', 'w')
    mark = ["s_mov_b64 exec, 0xff", f"buffer_store_dword v{HV}, v{HS}, {W}, s{sHs} offen {st}", "s_mov_b64 exec, -1", st_(15)]
    hsetup = [f"v_bfe_u32 v{HA}, v{vL16}, 2, 7", f"v_mov_b32 v{HD}, {cfg.get('hdef', -1)}"]
    e.slots([
        (f"v_mfma_f32_16x16x32_bf16 {vr(O, 4)}, {vr(VX, 4)}, {vr(Px, 4)}, 0",
         [f"v_add_f32 v{m0}, v{m0}, v{m1}", f"v_mov_b32 v{m1}, v{m0}"]),
        (f"v_mfma_f32_16x16x32_bf16 {vr(O + 4, 4)}, {vr(VX + 4, 4)}, {vr(Px, 4)}, 0",
         [f"v_permlane32_swap_b32 v{m0}, v{m1}"]),
        (f"v_mfma_f32_16x16x16_bf16 {vr(O, 4)}, {vr(EX + 2, 2)}, {vr(PM, 2)}, {vr(O, 4)}",
         [f"v_add_f32 v{m0}, v{m0}, v{m1}", f"v_mov_b32 v{m1}, v{m0}"]),
        (f"v_mfma_f32_16x16x16_bf16 {vr(O + 4, 4)}, {vr(EX + 2, 2)}, {vr(PM + 2, 2)}, {vr(O + 4, 4)}",
         [f"v_permlane16_swap_b32 v{m0}, v{m1}", f"v_add_f32 v{m0}, v{m0}, v{m1}", f"v_rcp_f32 v{m0}, v{m0}",
          ]),
    ])
    for j in range(0, 8, 2):
        e(f"v_pk_mul_f32 {vr(O + j, 2)}, {vr(O + j, 2)}, {vr(m0, 2)} op_sel_hi:[1,0]")
    OA = ACC + 16
    for j in range(4):
        e(f"v_cvt_pk_bf16_f32 v{O + j}, v{O + 2 * j}, v{O + 2 * j + 1}")
    e(f"ds_write_b128 v{vOw}, {vr(O, 4)}")
    if xo:
        e(export)
        e(f"v_mov_b32 v{TMP + 2}, s{sProg}")
        e(progress.replace(f"v{TMP},", f"v{TMP + 2},"))
    if mpos == 'w' and pace:
        e("\n".join(mark[:3])); stamp(15)
    if mpos == 'p':
        e("\n".join(hsetup))
    if cfg.get('h0'):
        delay(e, cfg['h0']); ldH()
    e.barrier()
    e(f"""ds_read_b128 {vr(OA, 4)}, v{vL16} offset:{L_OB}
          ds_read_b128 {vr(OA + 4, 4)}, v{vL16} offset:{L_OB + 1024}""")
    stamp(6)
    OUT = SPARE

    def pstore(c):
        return f"buffer_store_dwordx4 {vr(OUT + 4 * c, 4)}, v{vPst}, {W}, s{sPbaseS} offen offset:{c * 2048} {st}"

    tag = lambda j: f"v_and_or_b32 v{OUT + j}, v{OUT + j}, -2, s{sG}"
    seq = []
    for t in range(8):
        for kb in range(2):
            k, b = loc[('o', t, kb)]
            if t >= 2:
                p = post(MA + 4 * (t - 2), OUT + t - 2)
                fl = p[0:1] if kb == 0 else p[1:3]
                if kb == 0 and t % 2 == 1:
                    fl = fl + [tag(t - 3)]
            else:
                fl = ["s_nop 0"]
            n = 2 * t + kb
            if 1 <= n <= 8:
                fl = [wo[3 + n]] + fl
            hc = cfg.get('hc', 10)
            if n in cfg.get('hs', (0, 2, 4, 8)) and pace:
                fl = [ldH] + [x for x in fl if x != "s_nop 0"]
            if n == hc and pace:
                fl = fl + [f"v_cmp_gt_u32 vcc, s{sStep}, v{HD}"]
            if n == hc + 1:
                fl = fl + [st_(16)] + ([f"s_cbranch_vccnz L_hret_{sfx}"] if pace else []) + [f"L_hok_{sfx}:", st_(13)]
            if kb == 0 and t == 6:
                fl = [pstore(0)] + fl
            seq.append((f"v_smfmac_f32_16x16x64_bf16 {vr(MA + 4 * t, 4)}, {vr(OA + 4 * kb, 4)}, {vr(b, 8, k)}, v{vIdx}", fl))
    e.slots(seq)
    PL, D, SEL, PL2 = MA + 8, MA + 16, MA + 20, MA + 24
    e("\n".join(post(MA + 24, OUT + 6) + [tag(6)]))
    e("\n".join(post(MA + 28, OUT + 7)))
    e(pstore(1))
    stamp(7)
    trace_out('late', MA)
    e(f"s_bitcmp1_b32 s{S_WAVE}, 0\n s_cbranch_scc1 L_x1_{sfx}")
    e.slot_hook = None
    st0 = e.state()
    ldP = [f"buffer_load_dwordx4 {vr(PL, 4)}, v{vL16}, {W}, s{sPbaseL} offen sc1",
           f"buffer_load_dwordx4 {vr(PL + 4, 4)}, v{vL16}, {W}, s{sPbaseL} offen offset:1024 sc1"]
    tP, dM, eM, gM = cfg.get('tP', (260, 380)), cfg.get('dM', (240, 120)), cfg.get('eM', 200), cfg.get('gM', (120, 120))
    for w in range(2):
        if w:
            e.raw(".p2align 6")
            e.label(f"L_x{w}_{sfx}"); e.set_state(st0)
        clk = [[12, 48][w]]
        pa = prep_a_lines()
        valu = [f"v_cndmask_b32 v{SEL + j}, 0, v{vSelC}, {sr(sSel + 2 * j, 2)}" for j in range(4)] + scalar_lines() + [l for l in pa if not l.startswith('ds_')]
        if diag:
            valu += [f"s_cmp_eq_u32 s{sStep}, 10", f"s_cselect_b32 s{sDbgT + 6}, s36, s{sDbgT + 6}"] + [f"s_cselect_b32 s{k}, 0, s{k}" for k in range(12, 16)]
        reads = [l for l in pa if l.startswith('ds_')]
        late_v = [l for l in pa if not l.startswith('ds_')]
        pool = [l for l in valu if l not in late_v]
        pool = [l for l in pool if not l.startswith('v_')] + [l for l in pool if l.startswith('v_')]
        def until(t):
            while clk[0] + 4 <= t and pool:
                e(pool.pop(0)); clk[0] += 4
            if clk[0] + 4 <= t:
                delay(e, t - clk[0]); clk[0] = t

        until(tP[w])
        e.loose(ldP[0]); e.loose(ldP[1]); stamp(11)
        ldP2 = [x.replace(vr(PL, 4), vr(PL2, 4)).replace(vr(PL + 4, 4), vr(PL2 + 4, 4)) for x in ldP]
        rest = mix(reads, pool, 2)
        nsp = cfg.get('nsp', (10, 10))[w]
        e("\n".join(rest[:nsp]))
        if nsp is not None:
            delay(e, cfg.get('dP2', (60, 40))[w])
            e.loose(ldP2[0]); e.loose(ldP2[1])
        else:
            nsp = len(rest)
        spare = cfg.get('nsp', (10, 10))[w] is not None
        e("\n".join(rest[nsp:]))
        e(f"s_mov_b32 s{sNan}, 0")
        if diag:
            e.raw("  s_memtime s[36:37]")
        ny = 2 if spare else 0
        e(f"""s_waitcnt vmcnt({ny + 1})
              L_redP{w}_{sfx}:
              v_mfma_f32_16x16x32_bf16 {vr(D, 4)}, {vr(PL, 4)}, {vr(SEL, 4)}, 0
              s_waitcnt vmcnt({ny})
              v_mfma_f32_16x16x32_bf16 {vr(D, 4)}, {vr(PL + 4, 4)}, {vr(SEL, 4)}, {vr(D, 4)}
              v_xor_b32 v{C0}, s{sG}, v{PL}
              v_bitop3_b32 v{C0}, v{C0}, v{PL + 2}, s{sG} bitop3:0xf6
              v_bitop3_b32 v{C0}, v{C0}, v{PL + 4}, s{sG} bitop3:0xf6
              v_bitop3_b32 v{C0}, v{C0}, v{PL + 6}, s{sG} bitop3:0xf6
              v_and_b32 v{C0}, 1, v{C0}
              v_cmp_ne_u32 vcc, 0, v{C0}
              v_cmp_ne_u32 {sr(sFm, 2)}, 0, v{TMP + 3}
              s_cbranch_vccnz L_reP{w}_{sfx}
              v_permlane32_swap_b32 v{D}, v{D + 2}
              v_permlane32_swap_b32 v{D + 1}, v{D + 3}
              v_add_f32 v{D}, v{D}, v{D + 2}
              v_add_f32 v{D + 1}, v{D + 1}, v{D + 3}
              v_permlane16_swap_b32 v{D}, v{D + 1}
              v_add_f32 v{D}, v{D}, v{D + 1}
              v_mov_b32_dpp v{D + 1}, v{D} quad_perm:[2,3,0,1] row_mask:0xf bank_mask:0xf
              v_cvt_pk_bf16_f32 v{D}, v{D}, v{D + 1}
              v_min_u32 v{D}, -2, v{D}
              v_cndmask_b32 v{VX + 4}, v{D}, -1, {sr(sArm, 2)}
              buffer_store_dword v{VX + 4}, v{vMst}, {W}, s{sMn2} offen {st}""")
        stamp(8)
        pb = ["s_waitcnt vmcnt(1)"] + prep_b_lines()
        d = dM[w]
        if d >= 100:
            e("\n".join(pb)); d -= 100; pb = []
        delay(e, d)
        e.loose(mload(0)); stamp(12)
        if cfg.get('dmae', 0):
            e(mdma(0))
        d = gM[w]
        if pb:
            pb[0] = f"s_waitcnt vmcnt({2 + dmae})"
            e("\n".join(pb)); d -= 100
        k = max(0, min(len(late_v), d // 4))
        e("\n".join(late_v[:k])); d -= 4 * k
        delay(e, d)
        e.loose(mspare(0)); e.loose(mload(1))
        e("\n".join(late_v[k:]))
        if lastsp:
            e(f"s_cmp_eq_u32 s{sStep}, 63\n s_cbranch_scc1 L_last_{sfx}")
        e(f"""s_bitcmp1_b64 {sr(sFm, 2)}, s{sOK2}
              s_waitcnt lgkmcnt(0)
              s_cbranch_scc1 L_step_{sfx}
              s_branch L_flag_{sfx}""")
        e.forget()
        e(f"L_reP{w}_{sfx}:")
        if spare:
            e("s_waitcnt vmcnt(0)")
            for j in range(0, 8, 2):
                e(f"v_mov_b64 {vr(PL + j, 2)}, {vr(PL2 + j, 2)}")
            e.loose(ldP2[0]); e.loose(ldP2[1])
        else:
            e.loose(ldP[0]); e.loose(ldP[1])
            e("s_waitcnt vmcnt(1)")
        e(f"""{'s_add_u32 s12, s12, 1' if diag else ''}
              s_sub_u32 s{S_SPIN}, s{S_SPIN}, 1
              s_cbranch_scc0 L_redP{w}_{sfx}
              s_branch L_end""")
    e.forget()
    e(f"L_hret_{sfx}:")
    for k in range(6):
        e(f"v_cmp_gt_u32 vcc, s{sStep}, v{HD}")
        ldH()
        if diag:
            e("s_add_u32 s15, s15, 1")
        e(f"s_cbranch_vccz L_{'hrel' if cfg.get('dH') is not None else 'hok'}_{sfx}")
    e(f"""s_sub_u32 s{S_SPIN}, s{S_SPIN}, 1
          s_waitcnt vmcnt(24)
          s_cbranch_scc0 L_hret_{sfx}
          s_branch L_end
          L_hrel_{sfx}:""")
    delay(e, cfg.get('dH') or 0)
    e(f"s_branch L_hok_{sfx}")
    e.forget()
    e(f"""L_flag_{sfx}:
          v_lshrrev_b32 v{C0}, 2, v{vL16}
          buffer_load_dword v{C0}, v{C0}, {W}, s{sFl} offen sc1
          s_sub_u32 s{S_SPIN}, s{S_SPIN}, 1
          s_cbranch_scc1 L_end
          v_cmp_ne_u32 {sr(sFm, 2)}, 0, v{C0}
          s_bitcmp1_b64 {sr(sFm, 2)}, s{sOK2}
          s_cbranch_scc1 L_step_{sfx}
          s_branch L_flag_{sfx}""")
    e.forget()
    e(f"""L_retE_{sfx}:
          s_waitcnt vmcnt({1 + dmae})
          v_mov_b64 {vr(MA, 2)}, {vr(VX, 2)}
          v_mov_b64 {vr(MA + 2, 2)}, {vr(VX + 2, 2)}""")
    e.loose(mload(0))
    e(f"L_retE1_{sfx}:")
    e("\n".join(ce_))
    e(f"""ds_write_b128 v{vMw}, {vr(MA, 4)}
          {'s_add_u32 s13, s13, 1' if diag else ''}
          s_cbranch_vccz L_okE_{sfx}""")
    e.loose(mload(1)); e.loose(mload(0))
    e(f"""s_sub_u32 s{S_SPIN}, s{S_SPIN}, 1
          s_waitcnt vmcnt(2)
          s_cbranch_scc0 L_retE1_{sfx}
          s_branch L_end""")
    e.forget()
    e(f"""L_retL_{sfx}:
          s_waitcnt vmcnt(2)
          L_retL1_{sfx}:""")
    e("\n".join(cl_))
    e(f"""ds_write_b128 v{vMw}, {vr(MA + 4, 4)} offset:1024
          {'s_add_u32 s14, s14, 1' if diag else ''}
          s_cbranch_vccz L_okL_{sfx}""")
    e.loose(mload(1))
    e(f"""{'s_add_u32 s15, s15, 1' if diag else ''}
          s_sub_u32 s{S_SPIN}, s{S_SPIN}, 1
          s_waitcnt vmcnt(0)
          s_cbranch_scc0 L_retL1_{sfx}
          s_branch L_end""")
    if not lastsp:
        return
    e.forget()
    e(f"L_lret_{sfx}:")
    e.loose(mload(0)); e.loose(mload(1))
    e(f"""s_sub_u32 s{S_SPIN}, s{S_SPIN}, 1
          s_cbranch_scc1 L_end
          L_last_{sfx}:
          s_waitcnt vmcnt(0) lgkmcnt(0)""")
    e("\n".join(check((0, 1))))
    e(f"""ds_write_b128 v{vMw}, {vr(MA, 4)}
          ds_write_b128 v{vMw}, {vr(MA + 4, 4)} offset:1024
          s_cbranch_vccnz L_lret_{sfx}""")
    own = [(m, ft, i) for i in (0, 1) for m in 'kv' for ft in range(2)]
    seq = [(P(*op), []) for op in own]
    if not xo:
        seq[0][1].append(export)
    seq[3][1].extend([progress, e.barrier, mread(2), mread(3)])
    for k in range(4):
        seq[4 + k][1].append(mread(4 + k))
    seq += [(P(m, ft, i), []) for i in range(2, 6) for m in 'kv' for ft in range(2)]
    seq += [(P(m, ft, i), []) for m in 'kv' for ft in range(2) for i in (6, 7)]
    e.slots(seq)
    e("\n".join(k0p + k1p + v0p + v1p))
    e("s_branch L_final")


def chain_final(e, cfg):
    e.forget()
    e("L_final:")
    if cfg.get('holdend'):
        e(f"""L_hold2:
              s_memrealtime s[92:93]
              s_waitcnt lgkmcnt(0)
              s_sub_u32 s92, s92, s94
              s_cmp_lt_u32 s92, {cfg['holdend']}
              s_cbranch_scc1 L_hold2""")
    e(f"""s_add_u32 s{sExp}, s{sExp}, {0 if cfg.get('xo', 0) else 4096}
          buffer_store_dwordx4 {vr(EX, 4)}, v{vL16}, {W}, s{sExp} offen sc1
          s_waitcnt lgkmcnt(0)""")
    if cfg.get('diag'):
        e(f"""s_memrealtime {sr(sDbgT + 12, 2)}
              s_lshl_b32 s{sA}, s{S_ROLE}, 2
              s_add_u32 s{sA}, s{sA}, s{S_WAVE}
              s_lshl_b32 s{sA}, s{sA}, 6
              s_add_u32 s{sA}, s{sA}, 0x6000000
              s_waitcnt lgkmcnt(0)
              s_sub_u32 s{sDbgT + 8}, s36, s{sDbgT + 6}""")
        for n, r in enumerate([sDbgT + 8, sDbgT + 5, S_SPIN, sDbgT + 14, sDbgT + 10, sDbgT + 12, 12, 13, 14, 15]):
            e(f"v_mov_b32 v{TMP + 2}, s{r}\n buffer_store_dword v{TMP + 2}, off, {W}, s{sA} offset:{4 * n}")
    dbg_max(e, cfg, 12, v=TMP + 2)
    e("s_waitcnt vmcnt(0)\n s_branch L_end")


def chain(e, cfg):
    CFG.clear(); CFG.update(cfg)
    chain_startup(e, cfg)
    chain_loop(e, cfg, 'f', '')
    chain_loop(e, cfg, 's', 'sc1')
    chain_final(e, cfg)
```

```python
from common import *

L_T, L_OB, L_DUMMY, L_KX, L_WL = 8192, 12544, 14592, 16384, 32768
T_PITCH = 1088
vL16, vPst, vMst, vTw, vTr, vKXr, vOw, vWL0, vWL1, vMw, vIdx, vSelC = range(12)
EX, PM, VX = 12, 16, 20
TMP = 28
MA = 32
ACC = 64
X, KXR, SPARE = 88, 104, 120
R1 = [MA + 8, MA + 16, MA + 24, X, X + 8, KXR, KXR + 8, SPARE, X, X + 8]
WO_SB = [KXR, KXR + 8, X, X + 8, ACC, ACC + 8]
(sStep, sMcur, sProg, sMtog, sG, sKl, sPst2, sKV, sC, sExp, sMcur2, sMbaseS, sPbaseS, sPbaseL, sFl, sFch, sTog, sNan,
 sA, sB) = range(50, 70)
sSel = 70
sOK, sHl, sMn2 = 78, 79, 3
sArm, sFm = 18, 98
sVx, sVt, sHs, sOK2, sG2 = 96, 97, 16, 17, 100
HV, HS, HA, HD = VX, VX + 1, VX + 2, VX + 4
sHm, sCnt = 20, 28
S_M0 = 84
TRS = [30, 42, 44, 80, 82, 88, 32, 34]
sDbgT = 80

STREAM = [('q', 0, 0), ('q', 1, 0), ('k', 0, 0), ('k', 1, 0), ('q', 0, 1), ('q', 1, 1), ('k', 0, 1), ('k', 1, 1),
          ('q', 0, 5), ('q', 0, 7),
          ('o', 5, 0), ('o', 5, 1), ('o', 6, 0), ('o', 6, 1), ('o', 7, 0), ('o', 7, 1)]
WLPOS = {op: p for op, p in zip(STREAM[10:14], range(4))}
WLPOS.update({op: 4 + p for p, op in enumerate(STREAM[14:16] + STREAM[:10])})
ALLOPS = [(m, ft, i) for m in 'qkv' for ft in range(2) for i in range(8)] + [('o', t, kb) for t in range(8) for kb in range(2)]
RES = {}
for n, op in enumerate([o for o in ALLOPS if o not in STREAM]):
    RES[op] = ('a', 8 * n) if n < 32 else ('v', 128 + 8 * (n - 32))
PARK = {}
for n, op in enumerate(STREAM[14:16] + STREAM[:10]):
    PARK[op] = 32 + 8 * n
for n, op in enumerate(STREAM[10:14]):
    PARK[op] = 48 + 8 * n
W = sr(S_WS, 4)
CFG = {}


def wl_addr(op, half):
    p = WLPOS[op]
    off = (p >> 1) * 16384 + (p & 1) * 2048 + half * 1024
    return (vWL0, off) if off < 65536 else (vWL1, off - 65536)


def wl_write(e, op, src):
    for half in range(2):
        a, off = wl_addr(op, half)
        e(f"ds_write_b128 v{a}, {vr(src + 4 * half, 4)} offset:{off}")


def wl_lines(op, dst):
    out = []
    for half in range(2):
        a, off = wl_addr(op, half)
        out.append(f"ds_read_b128 {vr(dst + 4 * half, 4)}, v{a} offset:{off}")
    return out


def delay(e, cyc):
    if CFG.get('slp') and cyc >= 64:
        k = cyc // 64
        e(f"s_sleep {k}")
        cyc -= 64 * k
    if CFG.get('dmf'):
        while cyc >= 16:
            if CFG['dmf'] == 1:
                e(f"v_mfma_f32_16x16x32_bf16 {vr(VX, 4)}, a[0:3], a[8:11], 0")
            else:
                e(f"v_smfmac_f32_16x16x64_bf16 {vr(VX, 4)}, a[0:3], a[8:15], v{vIdx}")
            cyc -= 16
    n = cyc // 4
    while n > 0:
        k = min(n, 16)
        e(f"s_nop {k - 1}")
        n -= k


def mix(reads, other, per=3):
    out = []
    other = list(other)
    for r in reads:
        out.append(r)
        for _ in range(per):
            if other:
                out.append(other.pop(0))
    return out + other


def mload(b):
    return f"buffer_load_dwordx4 {vr(MA + 4 * b, 4)}, v{vMw}, {W}, s{sMcur if b == 0 else sMcur2} offen sc1"


def kx_dma(e, ldsbase):
    e(f"""s_lshl_b32 s{sA}, s{S_WAVE}, 11
          s_add_u32 m0, s{sA}, {ldsbase}
          buffer_load_dwordx4 v{vL16}, {W}, s{sKV} offen sc1 lds
          buffer_load_dwordx4 v{vL16}, {W}, s{sKV} offen offset:1024 sc1 lds""")


def scalar_lines():
    return [x.strip() for x in f"""s_and_b32 s{sA}, s{sStep}, 3
          s_lshl_b32 s{sA}, s{sA}, 13
          s_add_u32 s{sMcur}, s{sA}, {WS_M}
          s_add_u32 s{sMcur2}, s{sA}, {WS_M + 4096}
          s_and_b32 s{sA}, s{sA}, 0x2000
          s_add_u32 s{sMn2}, s{sMbaseS}, s{sA}
          s_lshl_b32 s{sMtog}, s{sA}, 1
          s_sub_u32 s{sVx}, s{sKV}, s{sTog}
          s_add_u32 s{sVx}, s{sVx}, {8192 - L_KX}
          s_add_u32 s{sKV}, s{sKV}, {0 if CFG.get('samekv') else UNIT}
          s_add_u32 s{sVt}, s{sKV}, 8192
          s_xor_b32 s{sA}, s{sTog}, 0x2000
          s_add_u32 m0, s{sA}, s{sKl}
          s_cmp_gt_u32 s{sStep}, {0 if CFG.get('xo', 0) else 1}
          s_cselect_b32 s{sA}, 4096, 0
          s_add_u32 s{sExp}, s{sExp}, s{sA}
          s_add_u32 s{sOK2}, s{sStep}, 1
          s_max_u32 s{sProg}, s{sStep}, {0 if CFG.get('xo', 0) else 1}
          s_sub_u32 s{sProg}, s{sProg}, {0 if CFG.get('xo', 0) else 1}
          s_and_b32 s{sG2}, s{sOK2}, 1""".split('\n')]


def prep_a_lines():
    other = [f"v_mov_b64 {vr(ACC + j, 2)}, 0" for j in range(0, 24, 2)] + [f"v_lshlrev_b32 v{PM + 3}, 1, v{vL16}", f"v_mov_b32 v{TMP}, s{sProg}"]
    reads = sum([wl_lines(STREAM[o], R1[o]) for o in range(3, 8)], [])
    return mix(reads, other, 2)


def prep_b_lines():
    other = [f"v_xor_b32 v{vMst}, s{sMtog}, v{vMst}"] + [f"v_xor_b32 v{TMP + p}, {p << 10}, v{vMw}" for p in range(1, 4)]
    reads = sum([wl_lines(STREAM[o], R1[o]) for o in range(3)], [])
    return mix(reads, other, 1)


def chain_startup(e, cfg):
    h = S_ROLE
    tA, tB, tC, tD = EX, EX + 1, EX + 2, EX + 3
    t0, t1, t2, t3 = TMP, TMP + 1, TMP + 2, TMP + 3
    lane = PM
    chunks = [('o', kb, Q) for kb in range(2) for Q in range(4)] + [(m, b, 0) for m in 'qkv' for b in range(8)]
    ring = {4: L_WL + 2 * 16384, 5: L_WL + 3 * 16384, 6: L_WL + 4 * 16384, 0: L_WL + 5 * 16384, 1: L_WL + 6 * 16384,
            2: L_WL + 7 * 16384, 3: 0}
    ptr = {'q': P_WQ, 'k': P_WK, 'v': P_WV, 'o': P_WO}
    sHq, sHo, sLw = sMcur, sProg, sMcur2
    cur, marks = [None], {}

    def dma(r):
        m, x, Q = chunks[r]
        if cur[0] != m:
            srd(e, S_T0, ptr[m], 0x400000); cur[0] = m
        for i in range(4):
            if m == 'o':
                row = 64 * x + 32 * (Q >> 1) + 2 * (Q & 1) + 4 * (i >> 1) + (i & 1)
                e(f"""s_add_u32 s{sA}, s{sHo}, {row * 1024}
                      s_add_u32 m0, s{sLw}, {ring[r % 7] + i * 1024}
                      buffer_load_dwordx4 v{vL16}, {sr(S_T0, 4)}, s{sA} offen lds""")
            else:
                e(f"""s_add_u32 s{sA}, s{sHq}, {(128 * (x & 3) + 64 * (x >> 2) + 4 * i) * 8192}
                      s_add_u32 m0, s{sLw}, {ring[r % 7] + i * 1024}
                      buffer_load_dwordx4 v{tA}, {sr(S_T0, 4)}, s{sA} offen lds""")
        marks[r] = e.vm[-1]

    e(f"""v_and_b32 v{lane}, 63, v0
          v_lshlrev_b32 v{vL16}, 4, v{lane}
          s_and_b32 s{sA}, s{S_WAVE}, 1
          s_lshr_b32 s{sB}, s{S_WAVE}, 1
          s_lshl_b32 s{sHo}, s{h}, 17
          s_lshl_b32 s{sLw}, s{sA}, 14
          s_add_u32 s{sHo}, s{sHo}, s{sLw}
          s_lshl_b32 s{sLw}, s{sB}, 13
          s_add_u32 s{sHo}, s{sHo}, s{sLw}
          s_lshl_b32 s{sHq}, s{h}, 8
          s_lshl_b32 s{sLw}, s{S_WAVE}, 17
          s_add_u32 s{sHq}, s{sHq}, s{sLw}
          s_lshl_b32 s{sLw}, s{S_WAVE}, 12""")
    for r in range(6):
        dma(r)
    e(f"""v_lshrrev_b32 v{t0}, 4, v{lane}
          v_and_b32 v{t1}, 15, v{lane}
          s_lshl_b32 s{sA}, s{S_WAVE}, 10
          v_add_u32 v{vMw}, s{sA}, v{vL16}
          v_lshlrev_b32 v{PM + 3}, 2, v{lane}""")
    e(f"""v_lshrrev_b32 v{t2}, 2, v{lane}
          v_lshlrev_b32 v{t2}, 12, v{t2}
          v_and_b32 v{t3}, 3, v{lane}
          v_lshl_add_u32 v{vPst}, v{t3}, 4, v{t2}""")
    e(f"""v_and_b32 v{t2}, 1, v{lane}
          v_lshlrev_b32 v{t2}, 5, v{t2}
          v_lshl_add_u32 v{t2}, v{t0}, 3, v{t2}
          v_and_b32 v{t3}, 4, v{lane}
          v_add_u32 v{t2}, v{t2}, v{t3}
          v_and_b32 v{t3}, 8, v{lane}
          v_cmp_ne_u32 {sr(sArm, 2)}, 0, v{t3}
          v_lshl_add_u32 v{t2}, v{t3}, 11, v{t2}
          v_and_b32 v{t3}, 2, v{lane}
          v_lshl_add_u32 v{vMst}, v{t3}, 29, v{t2}""")
    srd(e, S_M0, P_MEM0, 8192)
    e(f"""v_and_b32 v{t2}, 1, v{lane}
          v_lshlrev_b32 v{tD}, 10, v{t2}
          v_lshl_add_u32 v{tD}, v{t0}, 1, v{tD}
          v_bfe_u32 v{t2}, v{lane}, 2, 1
          v_lshl_add_u32 v{tD}, v{t2}, 6, v{tD}
          s_and_b32 s{sA}, s{h}, 6
          s_lshl_b32 s{sA}, s{sA}, 10
          s_lshr_b32 s{sB}, s{h}, 3
          s_lshl_b32 s{sB}, s{sB}, 8
          s_add_u32 s{sA}, s{sA}, s{sB}
          s_and_b32 s{sB}, s{S_WAVE}, 1
          s_lshl_b32 s{sB}, s{sB}, 7
          s_add_u32 s{sA}, s{sA}, s{sB}
          s_lshr_b32 s{sB}, s{S_WAVE}, 1
          s_lshl_b32 s{sB}, s{sB}, 3
          s_add_u32 s{sA}, s{sA}, s{sB}
          s_and_b32 s{sB}, s{h}, 1
          s_lshl_b32 s{sB}, s{sB}, 4
          s_add_u32 s{sA}, s{sA}, s{sB}
          buffer_load_ushort v{VX}, v{tD}, {sr(S_M0, 4)}, s{sA} offen
          buffer_load_ushort v{VX + 1}, v{tD}, {sr(S_M0, 4)}, s{sA} offen offset:32""")
    e(f"""s_lshl_b32 s{sA}, s{S_WAVE}, 8
          s_add_u32 s{sA}, s{sA}, {L_T}
          v_mul_u32_u24 v{t2}, {T_PITCH}, v{t0}
          v_lshl_add_u32 v{t2}, v{t1}, 3, v{t2}
          v_add_u32 v{vTw}, s{sA}, v{t2}
          v_and_b32 v{t3}, 3, v{lane}
          v_mul_u32_u24 v{t2}, {T_PITCH}, v{t3}
          v_lshrrev_b32 v{t3}, 5, v{lane}
          v_lshl_add_u32 v{t2}, v{t3}, 7, v{t2}
          v_bfe_u32 v{t3}, v{lane}, 2, 3
          v_lshl_add_u32 v{t2}, v{t3}, 3, v{t2}
          v_add_u32 v{vTr}, {L_T}, v{t2}
          v_lshlrev_b32 v{t2}, 9, v{t0}
          v_lshl_add_u32 v{t2}, v{t1}, 4, v{t2}
          v_add_u32 v{vKXr}, {L_KX}, v{t2}""")
    e(f"""s_lshl_b32 s{sA}, s{S_WAVE}, 9
          s_add_u32 s{sA}, s{sA}, {L_OB}
          v_lshrrev_b32 v{t2}, 5, v{lane}
          v_lshlrev_b32 v{t2}, 8, v{t2}
          v_and_b32 v{t3}, 16, v{lane}
          v_add_u32 v{t2}, v{t2}, v{t3}
          v_and_b32 v{t3}, 12, v{lane}
          v_lshl_add_u32 v{t2}, v{t3}, 4, v{t2}
          v_and_b32 v{t3}, 1, v{lane}
          v_lshl_add_u32 v{t2}, v{t3}, 5, v{t2}
          v_add_u32 v{t2}, s{sA}, v{t2}
          v_and_b32 v{t3}, 2, v{lane}
          v_lshlrev_b32 v{tA}, 3, v{t3}
          v_xor_b32 v{t2}, v{t2}, v{tA}
          v_lshlrev_b32 v{t3}, 12, v{t3}
          v_sub_u32 v{vOw}, v{t2}, v{t3}
          s_add_u32 s{sA}, s{sLw}, {L_WL}
          v_add_u32 v{vWL0}, s{sA}, v{vL16}
          v_add_u32 v{vWL1}, 0x10000, v{vWL0}""")
    e(f"""v_and_b32 v{t2}, 1, v{lane}
          v_cmp_ne_u32 vcc, 0, v{t2}
          v_mov_b32 v{t2}, 0x4444
          v_mov_b32 v{t3}, 0xeeee
          v_cndmask_b32 v{vIdx}, v{t2}, v{t3}, vcc
          v_mov_b32 v{t2}, 0x3f80
          v_mov_b32 v{t3}, 0x3f800000
          v_cndmask_b32 v{vSelC}, v{t2}, v{t3}, vcc
          v_lshrrev_b32 v{t2}, 1, v{t1}""")
    for j in range(4):
        e(f"v_cmp_eq_u32 {sr(sSel + 2 * j, 2)}, {j}, v{t2}")
    e(f"""v_lshlrev_b32 v{tA}, 13, v{t0}
          v_lshlrev_b32 v{t2}, 2, v{t0}
          v_xor_b32 v{t2}, v{t2}, v{t1}
          v_lshl_add_u32 v{tA}, v{t2}, 4, v{tA}""")
    e(f"""v_bfe_u32 v{t2}, v{lane}, 2, 1
          v_lshlrev_b32 v{tB}, 12, v{t2}
          v_bfe_u32 v{t2}, v{lane}, 5, 1
          v_lshl_add_u32 v{tB}, v{t2}, 10, v{tB}
          v_bfe_u32 v{t2}, v{lane}, 3, 1
          v_lshl_add_u32 v{tB}, v{t2}, 9, v{tB}
          v_bfe_u32 v{t2}, v{lane}, 4, 1
          v_lshl_add_u32 v{tB}, v{t2}, 8, v{tB}
          v_and_b32 v{t2}, 3, v{lane}
          v_lshl_add_u32 v{tB}, v{t2}, 3, v{tB}
          v_bfe_u32 v{t3}, v{tB}, 8, 2
          v_xor_b32 v{t3}, s{S_WAVE}, v{t3}
          v_lshl_add_u32 v{tB}, v{t3}, 6, v{tB}""")
    e(f"""v_lshrrev_b32 v{t3}, 2, v{lane}
          v_lshlrev_b32 v{tC}, 10, v{t3}
          v_lshl_add_u32 v{tC}, v{t2}, 3, v{tC}
          s_lshl_b32 s{sA}, s{S_WAVE}, 8
          v_add_u32 v{tC}, s{sA}, v{tC}""")
    e(f"""s_lshl_b32 s{sA}, s{S_WAVE}, 11
          s_lshl_b32 s{sB}, s{h}, 13
          s_add_u32 s{sPbaseL}, s{sA}, s{sB}
          s_add_u32 s{sPbaseL}, s{sPbaseL}, {WS_P}
          s_lshl_b32 s{sA}, s{S_WAVE}, 16
          s_lshl_b32 s{sB}, s{h}, 6
          s_add_u32 s{sPbaseS}, s{sA}, s{sB}
          s_add_u32 s{sPbaseS}, s{sPbaseS}, {WS_P}""")
    e(f"""s_and_b32 s{sA}, s{S_WAVE}, 1
          s_lshl_b32 s{sMbaseS}, s{sA}, 12
          s_and_b32 s{sA}, s{h}, 24
          s_lshl_b32 s{sA}, s{sA}, 7
          s_add_u32 s{sMbaseS}, s{sMbaseS}, s{sA}
          s_and_b32 s{sA}, s{h}, 1
          s_lshl_b32 s{sA}, s{sA}, 9
          s_add_u32 s{sMbaseS}, s{sMbaseS}, s{sA}
          s_lshr_b32 s{sA}, s{S_WAVE}, 1
          s_lshl_b32 s{sA}, s{sA}, 8
          s_add_u32 s{sMbaseS}, s{sMbaseS}, s{sA}
          s_and_b32 s{sA}, s{h}, 6
          s_lshl_b32 s{sA}, s{sA}, 5
          s_add_u32 s{sMbaseS}, s{sMbaseS}, s{sA}
          s_add_u32 s{sMbaseS}, s{sMbaseS}, {WS_M}""")
    e(f"""s_mul_i32 s{sKV}, s{h}, {64 * UNIT}
          s_lshl_b32 s{sA}, s{S_WAVE}, 11
          s_add_u32 s{sKV}, s{sKV}, s{sA}
          s_add_u32 s{sKV}, s{sKV}, {WS_QKV + 8192}
          s_lshl_b32 s{sExp}, s{h}, 18
          s_lshl_b32 s{sA}, s{S_WAVE}, 10
          s_add_u32 s{sExp}, s{sExp}, s{sA}
          s_add_u32 s{sExp}, s{sExp}, {WS_EXP}
          s_lshl_b32 s{sFl}, s{h}, 8
          s_add_u32 s{sFl}, s{sFl}, {F_QKV}
          s_lshl_b32 s{sFch}, s{h}, 7
          s_lshl_b32 s{sA}, s{S_WAVE}, 2
          s_add_u32 s{sFch}, s{sFch}, s{sA}
          s_add_u32 s{sFch}, s{sFch}, {F_CH}
          s_mov_b32 s{sC}, 0x3e0293ee
          s_add_u32 s{sPst2}, s{sPbaseS}, 4096
          s_lshl_b32 s{sKl}, s{S_WAVE}, 11
          s_add_u32 s{sKl}, s{sKl}, {L_KX}
          s_lshl_b32 s{sHl}, s{h}, 7
          s_add_u32 s{sHl}, s{sHl}, {F_HINT}
          s_lshl_b32 s{sHs}, s{h}, 2
          s_lshl_b32 s{sA}, s{S_WAVE}, 10
          s_add_u32 s{sHs}, s{sHs}, s{sA}
          s_add_u32 s{sHs}, s{sHs}, {F_HINT}
          s_mov_b32 s{sOK}, 1""")
    e(f"""v_mov_b64 {vr(VX + 4, 2)}, 0
          v_mov_b64 {vr(VX + 6, 2)}, 0
          v_mov_b32 v{VX + 2}, -1
          s_add_u32 s{sB}, s{sMbaseS}, 8192
          buffer_store_dwordx4 {vr(VX + 4, 4)}, v{vL16}, {W}, s{sPbaseL} offen sc1
          buffer_store_dwordx4 {vr(VX + 4, 4)}, v{vL16}, {W}, s{sPbaseL} offen offset:1024 sc1
          buffer_store_dword v{VX + 2}, v{vMst}, {W}, s{sB} offen sc1""")
    if cfg.get('sdiag'):
        e("s_memrealtime s[20:21]\n s_waitcnt lgkmcnt(0)")
    confirm_barrier(e, 'ch')
    if cfg.get('sdiag'):
        e("s_memrealtime s[22:23]\n s_waitcnt lgkmcnt(0)")
    parked = STREAM[14:16] + STREAM[:10]
    for r in range(32):
        m, x, Q = chunks[r]
        if marks[r] in e.vm:
            e.wait(vm=len(e.vm) - 1 - e.vm.index(marks[r]))
        e.wait(lgkm=0)
        e("s_barrier")
        if cfg.get('sdiag') and r in (0, 8, 16, 24, 31):
            e(f"s_memrealtime {sr({0: 24, 8: 26, 16: 28, 24: 36, 31: 40}[r], 2)}\n s_waitcnt lgkmcnt(0)")
        if r == 6:
            e.comment("publish this wave's piece of mem0 in slot 0 (and arm slot 2)")
            e(f"""v_lshl_or_b32 v{VX}, v{VX + 1}, 16, v{VX}
                  v_min_u32 v{VX}, -2, v{VX}
                  v_cndmask_b32 v{VX}, v{VX}, -1, {sr(sArm, 2)}
                  buffer_store_dword v{VX}, v{vMst}, {W}, s{sMbaseS} offen sc1""")
        if r == 12:
            e.comment("every wave's arming stores are complete: count this member as armed")
            e(f"""s_cmp_lg_u32 s{S_WAVE}, 0
                  s_cbranch_scc1 L_cs_in
                  s_cmp_lg_u32 s{S_XCC}, 0
                  s_mov_b32 s{sB}, 0x10000
                  s_cselect_b32 s{sA}, 0x1010000, s{sB}
                  v_mov_b32 v{t0}, s{sA}
                  s_mov_b64 exec, 1
                  buffer_atomic_add v{t0}, off, {sr(S_DBG, 4)}, 0 offset:{D_INIT}
                  s_mov_b64 exec, -1""")
            e.vm.pop()
            e.label("L_cs_in")
        if r + 6 < 32:
            dma(r + 6)
        if r == 8:
            for op in STREAM[10:14]:
                wl_write(e, op, PARK[op])
            e.wait(lgkm=0)
        if r == cfg.get('r1', 16):
            e(f"buffer_load_dword v{PM + 1}, off, {sr(S_DBG, 4)}, 0 offset:{D_INIT} sc1")
        if r == cfg.get('r2', 23):
            e(f"""v_readfirstlane_b32 s{sNan}, v{PM + 1}
                  buffer_load_dword v{PM + 2}, v{PM + 3}, {W}, s{sFl} offen sc1""")
            e(f"""s_add_u32 m0, s{sLw}, {L_KX + 8192}
                  s_lshr_b32 m0, m0, 1
                  s_add_u32 m0, m0, {(L_KX + 8192) // 2}
                  s_lshl_b32 s{sB}, s{h}, 10
                  s_add_u32 s{sB}, s{sB}, {WS_M}
                  buffer_load_dwordx4 v{vL16}, {W}, s{sPbaseL} offen sc1 lds
                  buffer_load_dwordx4 v{vL16}, {W}, s{sPbaseL} offen offset:1024 sc1 lds
                  buffer_load_dwordx4 v{vL16}, {W}, s{sHl} offen sc1 lds
                  buffer_load_dwordx4 v{vL16}, {W}, s{sB} offen sc1 lds""")
        if r == cfg.get('r3', 30):
            e(f"""v_cmp_ne_u32 {sr(sFm, 2)}, 0, v{PM + 2}
                  s_and_b32 s{sOK}, s{sFm}, 3
                  s_cmp_eq_u32 s{sOK}, 3
                  s_cselect_b32 s{sOK}, 1, 0
                  s_and_b32 s{sA}, s{sNan}, 0xffffff
                  s_cmp_eq_u32 s{sA}, 0x200100
                  s_cselect_b32 s{sOK}, s{sOK}, 0""")
            kx_dma(e, L_KX)
            e(f"""s_add_u32 m0, m0, 8192
                  s_add_u32 s{sA}, s{sKV}, 8192
                  buffer_load_dwordx4 v{vL16}, {W}, s{sA} offen sc1 lds
                  buffer_load_dwordx4 v{vL16}, {W}, s{sA} offen offset:1024 sc1 lds""")
        if r == cfg.get('rt', 27):
            e.comment("the last exports are recognised by their data: fill their slots with a pattern no export holds")
            for j in range(4):
                e(f"v_mov_b32 v{VX + j}, {SENT1}")
            for sg in range(64 - NTAIL, 64):
                e(f"s_add_u32 s{sA}, s{sExp}, {sg * 4096}\n buffer_store_dwordx4 {vr(VX, 4)}, v{vL16}, {W}, s{sA} offen sc1")
        if r == 29:
            e(f"buffer_load_dword v{VX + 7}, v{PM + 3}, {W}, s{sFl} offen sc1")
        if r >= 26:
            for op in parked[2 * (r - 26):2 * (r - 26) + 2]:
                wl_write(e, op, PARK[op])
        e(f"v_add_u32 v{t1}, {ring[r % 7]}, v{tC if m == 'o' else tB}")
        if m == 'o':
            for t in range(8):
                op = ('o', t, x)
                kind, base = RES[op] if op in RES else ('v', PARK[op])
                e(f"ds_read_b64_tr_b16 {vr(base + 2 * Q, 2, kind)}, v{t1} offset:{t * 32}")
        else:
            for w in range(1, 4):
                e(f"s_cmp_eq_u32 s{S_WAVE}, {w}\n s_cbranch_scc1 L_cs{r}_{w}")
            st0 = e.state()
            for w in range(4):
                if w:
                    e.label(f"L_cs{r}_{w}"); e.set_state(st0)
                for ft in range(2):
                    op = (m, ft, 2 * ((x & 3) ^ w) + (x >> 2))
                    kind, base = RES[op] if op in RES else ('v', PARK[op])
                    for Q in range(4):
                        e(f"ds_read_b64_tr_b16 {vr(base + 2 * Q, 2, kind)}, v{t1} offset:{(32 * (Q & 1) + 8 * (Q >> 1)) * 256 + ft * 32}")
                if w < 3:
                    e(f"s_branch L_cs{r}_e")
            e.label(f"L_cs{r}_e")
    e.wait(lgkm=0)
    if cfg.get('sdiag'):
        e(f"""s_lshl_b32 s{sA}, s{S_ROLE}, 2
              s_add_u32 s{sA}, s{sA}, s{S_WAVE}
              s_lshl_b32 s{sA}, s{sA}, 6
              s_add_u32 s{sA}, s{sA}, 0x6400000""")
        for n, r in enumerate([94, 20, 22, 24, 26, 28, 36, 40, sOK]):
            e(f"v_mov_b32 v{PM}, s{r}\n buffer_store_dword v{PM}, off, {W}, s{sA} offset:{4 * n}")
    e(f"""s_cmp_lg_u32 s{sOK}, 0
          s_cbranch_scc1 L_cs_ready
          s_and_b32 s{sA}, s{sNan}, 0xffffff
          s_cmp_eq_u32 s{sA}, 0x200100
          s_cbranch_scc1 L_cs_p3
          L_cs_p1:
          buffer_load_dword v{t0}, off, {sr(S_DBG, 4)}, 0 offset:{D_INIT} sc1
          s_sub_u32 s{S_SPIN}, s{S_SPIN}, 1
          s_cbranch_scc1 L_end
          v_readfirstlane_b32 s{sNan}, v{t0}
          s_and_b32 s{sA}, s{sNan}, 0xffffff
          s_cmp_eq_u32 s{sA}, 0x200100
          s_cbranch_scc0 L_cs_p1
          L_cs_p2:
          buffer_load_dword v{VX + 7}, v{PM + 3}, {W}, s{sFl} offen sc1
          s_sub_u32 s{S_SPIN}, s{S_SPIN}, 1
          s_cbranch_scc1 L_end
          L_cs_p3:
          s_waitcnt vmcnt(0)
          v_cmp_ne_u32 {sr(sFm, 2)}, 0, v{VX + 7}
          s_and_b32 s{sA}, s{sFm}, 3
          s_cmp_eq_u32 s{sA}, 3
          s_cbranch_scc0 L_cs_p2""")
    kx_dma(e, L_KX)
    e.label("L_cs_ready")
    e(f"""v_mov_b32 v{PM + 1}, 0
          v_mov_b32 v{PM + 2}, 0
          s_mov_b32 s{sStep}, 0
          s_mov_b32 s{sTog}, 0""")
    e("\n".join(scalar_lines() + prep_a_lines()))
    for b in range(2):
        e(mload(b))
    e("\n".join(prep_b_lines()))
    dbg_max(e, cfg, 11, v=PM, mask=1)
    if cfg.get('holdto'):
        e(f"""L_hold:
              s_memrealtime s[92:93]
              s_waitcnt lgkmcnt(0)
              s_sub_u32 s92, s92, s94
              s_cmp_lt_u32 s92, {cfg['holdto']}
              s_cbranch_scc1 L_hold""")
    e("s_waitcnt vmcnt(0) lgkmcnt(0)\n s_barrier")
    if cfg.get('diag'):
        e.raw(f"  s_memtime {sr(sDbgT + 6, 2)}\n  s_memrealtime {sr(sDbgT + 10, 2)}\n  s_mov_b32 s{sDbgT + 5}, 0\n  s_mov_b32 s12, 0\n  s_mov_b32 s13, 0\n  s_mov_b32 s14, 0\n  s_mov_b32 s15, 0\n  s_waitcnt lgkmcnt(0)")
    e(f"""s_lshr_b32 s{sA}, s{sNan}, 24
          s_mov_b32 s{sNan}, 0
          s_cmp_lg_u32 s{sA}, 0
          s_cbranch_scc1 L_step_s""")
    e("s_branch L_step_s" if cfg.get('force_slow') else "s_branch L_step_f")


def chain_loop(e, cfg, sfx, st):
    acc = {('q', 0): ACC, ('q', 1): ACC + 4, ('k', 0): ACC + 8, ('k', 1): ACC + 12, ('v', 0): ACC + 16, ('v', 1): ACC + 20}
    loc = dict(RES)
    for o in range(10):
        loc[STREAM[o]] = ('v', R1[o])
    for o in range(6):
        loc[STREAM[10 + o]] = ('v', WO_SB[o])
    diag = cfg.get('diag')

    def stamp(n):
        tr = cfg.get('trace')
        if tr and n in tr:
            e.raw(f"  s_memtime {sr(TRS[tr.index(n)], 2)}")

    def trace_out(where, TR):
        if cfg.get('trace') and cfg.get('tpos', 'mid') == where:
            e(f"""s_memtime s[32:33]
                  s_memrealtime s[34:35]
                  s_lshl_b32 s40, s{S_ROLE}, 2
                  s_add_u32 s40, s40, s{S_WAVE}
                  s_lshl_b32 s40, s40, 6
                  s_add_u32 s40, s40, s{sStep}
                  s_lshl_b32 s40, s40, 5
                  s_add_u32 s40, s40, 0x6200000
                  s_waitcnt lgkmcnt(0)""")
            for j in range(8):
                e(f"v_mov_b32 v{TR + j}, s{TRS[j]}")
            e(f"""s_mov_b64 exec, 1
                  buffer_store_dwordx4 {vr(TR, 4)}, off, {W}, s40
                  buffer_store_dwordx4 {vr(TR + 4, 4)}, off, {W}, s40 offset:16
                  s_mov_b64 exec, -1""")

    def P(m, ft, i):
        k, b = loc[(m, ft, i)]
        return f"v_smfmac_f32_16x16x64_bf16 {vr(acc[(m, ft)], 4)}, {vr(MA + 4 * i, 4)}, {vr(b, 8, k)}, v{vIdx}"

    def post(a, dst):
        return [f"v_add_f32 v{a}, v{a}, v{a + 1}", f"v_add_f32 v{a + 2}, v{a + 2}, v{a + 3}",
                f"v_cvt_pk_bf16_f32 v{dst}, v{a}, v{a + 2}"]

    def xread(kb):
        return [f"ds_read_b64_tr_b16 {vr(X + 4 * kb, 2)}, v{vTr} offset:{kb * 256}",
                f"ds_read_b64_tr_b16 {vr(X + 4 * kb + 2, 2)}, v{vTr} offset:{kb * 256 + 64}"]

    kx_dst = [KXR, SPARE, KXR + 4, SPARE + 4, KXR + 8, KXR, KXR + 12, KXR + 4]

    def kxread(n):
        return f"ds_read_b128 {vr(kx_dst[n], 4)}, v{vKXr} offset:{(n >> 1) * 2048 + (n & 1) * 256}"

    Sx = [ACC, ACC + 4]
    Sm, Px = ACC + 8, ACC + 12

    def smx(n):
        kb, t = n >> 1, n & 1
        c = '0' if kb == 0 else vr(Sx[t], 4)
        return f"v_mfma_f32_16x16x32_bf16 {vr(Sx[t], 4)}, {vr(kx_dst[n], 4)}, {vr(X + 4 * kb, 4)}, {c}"

    def smm(kb):
        c = '0' if kb == 0 else vr(Sm, 4)
        return f"v_mfma_f32_16x16x32_bf16 {vr(Sm, 4)}, {vr(X + 4 * kb, 4)}, {vr(X + 4 * kb, 4)}, {c}"

    ad = cfg.get('ad', 0)
    ldH = lambda k: (lambda: e.loose(f"buffer_load_dword v{HD + k}, v{HA}, {W}, s{sHl} offen sc1"))
    ldV = [f"buffer_load_dwordx4 {vr(VX, 4)}, v{vKXr}, {W}, s{sVx} offen sc1",
           f"buffer_load_dwordx4 {vr(VX + 4, 4)}, v{vKXr}, {W}, s{sVx} offen offset:256 sc1"]
    ldK = [f"buffer_load_dwordx4 v{vL16}, {W}, s{sKV} offen sc1 lds",
           f"buffer_load_dwordx4 v{vL16}, {W}, s{sKV} offen offset:1024 sc1 lds"]
    touch = f"buffer_load_dword v{PM + 3}, {W}, s{sVt} offen sc1 lds"
    export = f"buffer_store_dwordx4 {vr(EX, 4)}, v{vL16}, {W}, s{sExp} offen sc1"
    progress = f"s_mov_b64 exec, 1\n buffer_store_dword v{TMP}, off, {W}, s{sFch} sc1\n s_mov_b64 exec, -1"
    ldF = f"buffer_load_dword v{TMP + 3}, v{TMP + 3}, {W}, s{sFl} offen sc1"
    if cfg.get('noexp'):
        export = progress = "s_nop 0"
    rf = sum([wl_lines(STREAM[o], R1[o]) for o in range(8, 10)], [])
    wo = sum([wl_lines(STREAM[10 + o], WO_SB[o]) for o in range(6)], [])
    q0p, q1p, k0p, k1p = post(ACC, ACC + 1), post(ACC + 4, ACC + 5), post(ACC + 8, EX), post(ACC + 12, EX + 1)
    v0p, v1p = post(ACC + 16, EX + 2), post(ACC + 20, EX + 3)
    m0, m1 = TMP, TMP + 1
    C0 = PM
    zero = [f"v_mov_b64 {vr(MA + j, 2)}, 0" for j in range(0, 32, 2)]
    st_ = lambda n: (lambda: stamp(n))
    mx = lambda d, a, b, c_: f"v_max3_f32 v{d}, v{a}, v{b}, v{c_}"

    def check(blocks):
        r = [MA + 4 * b + j for b in blocks for j in range(4)]
        out = [f"v_max3_u32 v{C0}, v{r[0]}, v{r[1]}, v{r[2]}"]
        k = 3
        while k + 1 < len(r):
            out.append(f"v_max3_u32 v{C0}, v{C0}, v{r[k]}, v{r[k + 1]}"); k += 2
        out.append(f"v_max_u32 v{C0}, v{C0}, v{r[k]}")
        out.append(f"v_cmp_eq_u32 vcc, -1, v{C0}")
        return out

    def mread(i):
        return f"ds_read_b128 {vr(MA + 4 * i, 4)}, v{TMP + (i >> 1)} offset:{(i & 1) * 4096}"

    e.slot_no = 0
    e.slot_hook = lambda n: stamp(100 + n)
    e.forget()
    e.raw(".p2align 8\n" + "  s_nop 0\n" * cfg.get('ph', 8))
    e.label(f"L_step_{sfx}")
    e("s_waitcnt vmcnt(2)")
    e.label(f"L_chkE_{sfx}")
    xe = 0
    ba, bb, bc = cfg.get('ba', 0), cfg.get('bb', 1), cfg.get('bc', 1)
    xo = cfg.get('xo', 0)
    lastsp = cfg.get('lastsp', 1)
    spec = 0
    ce_ = check((0,))
    specb = []
    if spec:
        e(f"ds_write_b128 v{vMw}, {vr(MA, 4)}")
    else:
        e("\n".join(ce_))
        e(f"""ds_write_b128 v{vMw}, {vr(MA, 4)}
              s_cbranch_vccnz L_retE_{sfx}""")
    stamp(0)
    cl_ = check((1,))
    z = lambda: zero.pop(0)
    lw = lambda n: (lambda: e.wait(lgkm=n))
    seq = [
        (P('q', 0, 0), [lambda: e.loose(mload(1))] if not spec else ce_ + [f"s_cbranch_vccnz L_retE_{sfx}", lambda: e.loose(mload(1))]),
        (P('q', 1, 0), [ldV[0]]),
        (P('k', 0, 0), [ldV[1]] if ba else [ldV[1], e.barrier, mread(2), mread(4)]),
        (P('k', 1, 0), ["s_waitcnt vmcnt(3)", cl_[0]] if ba else [mread(6), "s_waitcnt vmcnt(3)", cl_[0]]),
        (P('v', 0, 0), [e.barrier, cl_[1]] if ba == 1 else [cl_[1]]),
        (P('v', 1, 0), [cl_[2], f"ds_write_b128 v{vMw}, {vr(MA + 4, 4)} offset:4096", f"s_cbranch_vccnz L_retL_{sfx}", f"L_okL_{sfx}:"]),
        (P('q', 0, 1), [st_(1)] + ([mread(2), mread(4)] if ba == 1 else [lw(1), "s_barrier"] if ba == 2 else [])),
        (P('q', 1, 1), [mread(6)] if ba == 1 else [mread(2), mread(4)] if ba == 2 else []),
        (P('k', 0, 1), [mread(6), rf[0]] if ba == 2 else [rf[0]]),
        (P('k', 1, 1), [rf[1]] + ([] if ba else [lw(3)])),
        (P('q', 0, 2), [rf[2]]),
        (P('q', 1, 2), [e.lds_writes_done]),
        (P('k', 0, 2), [e.barrier] if bb else [e.barrier, ldK[0], mread(3)]),
        (P('k', 1, 2), [ldK[0], mread(3)] if bb else [mread(5)]),
        (P('q', 0, 4), [mread(5)] if bb else [mread(7), f"v_lshrrev_b32 v{TMP + 3}, 2, v{vL16}"]),
        (P('q', 1, 4), [mread(7), f"v_lshrrev_b32 v{TMP + 3}, 2, v{vL16}"] if bb else [ldK[1], f"s_movk_i32 m0, {L_DUMMY}"]),
        (P('k', 0, 4), [ldK[1], f"s_movk_i32 m0, {L_DUMMY}"] if bb else [rf[3]]),
        (P('k', 1, 4), [rf[3]] if bb else [touch]),
        (P('q', 0, 6), [kxread(0)] + ([touch] if bb else [])),
        (P('q', 1, 6), [kxread(2), ldF]),
        (P('k', 0, 6), ([] if xo else [export]) + [lambda: trace_out('mid', SPARE)]),
        (P('k', 1, 6), [kxread(4), st_(2), lw(3)]),
        (P('q', 0, 3), [kxread(6)]),
        (P('q', 0, 5), [kxread(1)]),
        (P('q', 0, 7), [kxread(3)]),
        (P('q', 1, 3), [lambda: e.prewait(f"v_mov_b32 v{VX + 7}, v{VX + 7}"), "s_nop 0"]),
        (P('q', 1, 5), ["s_nop 1"] if xo else [progress]),
        (P('q', 1, 7), ["s_nop 0", q0p[0]]),
        (P('k', 0, 3), ["s_nop 0", q0p[1]]),
        (P('k', 0, 5), ["s_nop 0", q0p[2]]),
        (P('k', 0, 7), [q1p[0]]),
        (P('k', 1, 3), ["s_nop 0", q1p[1]]),
        (P('k', 1, 5), ["s_nop 0", q1p[2]]),
        (P('k', 1, 7), [f"ds_write2_b32 v{vTw}, v{ACC + 1}, v{ACC + 5} offset0:0 offset1:32", st_(3), k0p[0]]),
        (P('v', 0, 1), ["s_nop 0", k0p[1]]),
        (P('v', 1, 1), ["s_nop 0", k0p[2], k1p[0]]),
        (P('v', 0, 2), [k1p[1], k1p[2]]),
        (P('v', 1, 2), [f"ds_write2_b32 v{vTw}, v{EX}, v{EX + 1} offset0:1 offset1:33", z()]),
        (P('v', 0, 3), [z()]),
        (P('v', 1, 3), [z()]),
        (P('v', 0, 4), [z()]),
        (P('v', 1, 4), [e.lds_writes_done, z()]),
        (P('v', 0, 5), [e.barrier] + ([] if bc else xread(0))),
        (P('v', 1, 5), xread(1 - bc) + [z()]),
        (P('v', 0, 6), xread(2 - bc) + [z()]),
        (P('v', 0, 7), xread(3 - bc) + [z()]),
        (P('v', 1, 6), (xread(3) if bc else []) + ([] if lastsp else [f"s_cmp_eq_u32 s{sStep}, 63"]) + [z()]),
        (P('v', 1, 7), [st_(4), lw(6 if bc else 4), z()]),
        (smx(0), [z(), z()]),
        (smx(2), [kxread(5), lw(1)]),
        (smx(4), [kxread(7), v0p[0]]),
        (smx(6), [v0p[1], v0p[2]]),
        (smm(0), [v1p[0], v1p[1]]),
        (smm(1), [v1p[2], z()]),
        (smm(2), ([] if lastsp else ["s_cbranch_scc1 L_final"]) + [mx(m0, Sx[0], Sx[0] + 1, Sx[0] + 2)]),
        (smm(3), [z(), z()]),
        (smx(1), [lw(0), z()]),
        (smx(3), [f"v_exp_f32 v{m1}, v{vIdx}"] if cfg.get('warm', 1) == 1 else []),
        (smx(5), [mx(m0, m0, Sx[0] + 3, Sm + 2), f"v_max_f32 v{m0}, v{m0}, v{Sm + 3}"]),
        (smx(7), [wo[0], f"s_add_u32 s{sStep}, s{sStep}, 1", wo[1], f"s_xor_b32 s{sTog}, s{sTog}, 0x2000", wo[2],
                  f"s_mov_b32 s{sG}, s{sG2}", wo[3], f"v_xor_b32 v{vKXr}, 0x2000, v{vKXr}"]),
    ]
    e.slots(seq)
    assert not zero
    e(f"""{mx(m0, m0, Sx[1], Sx[1] + 1)}
          {mx(m0, m0, Sx[1] + 2, Sx[1] + 3)}
          v_mov_b32 v{m1}, v{m0}
          v_permlane32_swap_b32 v{m0}, v{m1}
          v_max_f32 v{m0}, v{m0}, v{m1}
          v_mov_b32 v{m1}, v{m0}
          v_permlane16_swap_b32 v{m0}, v{m1}
          v_max_f32 v{m0}, v{m0}, v{m1}
          v_mul_f32 v{m0}, s{sC}, v{m0}""")
    for j in (0, 2, 4, 6, 10):
        e(f"v_pk_fma_f32 {vr(ACC + j, 2)}, {vr(ACC + j, 2)}, {sr(sC, 2)}, {vr(m0, 2)} op_sel_hi:[1,0,0] neg_lo:[0,0,1] neg_hi:[0,0,1]")
    for j in (0, 1, 2, 3, 4, 5, 6, 7, 10, 11):
        e(f"v_exp_f32 v{ACC + j}, v{ACC + j}")
    stamp(5)
    for j in range(4):
        e(f"v_cvt_pk_bf16_f32 v{Px + j}, v{ACC + 2 * j}, v{ACC + 2 * j + 1}")
    e(f"""v_cvt_pk_bf16_f32 v{PM}, v{Sm + 2}, v{Sm + 3}
          v_cvt_pk_bf16_f32 v{PM + 3}, v{Sm + 2}, v{Sm + 3}
          v_pk_add_f32 {vr(ACC, 2)}, {vr(ACC, 2)}, {vr(ACC + 2, 2)}
          v_pk_add_f32 {vr(ACC + 4, 2)}, {vr(ACC + 4, 2)}, {vr(ACC + 6, 2)}
          v_pk_add_f32 {vr(ACC, 2)}, {vr(ACC, 2)}, {vr(Sm + 2, 2)}
          v_pk_add_f32 {vr(m0, 2)}, {vr(ACC, 2)}, {vr(ACC + 4, 2)}""")
    O = SPARE
    e.slots([
        (f"v_mfma_f32_16x16x32_bf16 {vr(O, 4)}, {vr(VX, 4)}, {vr(Px, 4)}, 0",
         [f"v_add_f32 v{m0}, v{m0}, v{m1}", f"v_mov_b32 v{m1}, v{m0}"]),
        (f"v_mfma_f32_16x16x32_bf16 {vr(O + 4, 4)}, {vr(VX + 4, 4)}, {vr(Px, 4)}, 0",
         [f"v_permlane32_swap_b32 v{m0}, v{m1}"]),
        (f"v_mfma_f32_16x16x16_bf16 {vr(O, 4)}, {vr(EX + 2, 2)}, {vr(PM, 2)}, {vr(O, 4)}",
         [f"v_add_f32 v{m0}, v{m0}, v{m1}", f"v_mov_b32 v{m1}, v{m0}"]),
        (f"v_mfma_f32_16x16x16_bf16 {vr(O + 4, 4)}, {vr(EX + 2, 2)}, {vr(PM + 2, 2)}, {vr(O + 4, 4)}",
         [f"v_permlane16_swap_b32 v{m0}, v{m1}", f"v_add_f32 v{m0}, v{m0}, v{m1}", f"v_rcp_f32 v{m0}, v{m0}",
          ] + ([f"v_mov_b32 v{HV}, s{sStep}", f"v_lshlrev_b32 v{HS}, 3, v{vL16}"] if ad else [])),
    ])
    for j in range(0, 8, 2):
        e(f"v_pk_mul_f32 {vr(O + j, 2)}, {vr(O + j, 2)}, {vr(m0, 2)} op_sel_hi:[1,0]")
    OA = ACC + 16
    for j in range(4):
        e(f"v_cvt_pk_bf16_f32 v{O + j}, v{O + 2 * j}, v{O + 2 * j + 1}")
    e(f"ds_write_b128 v{vOw}, {vr(O, 4)}")
    if xo:
        e(export)
        e(f"v_mov_b32 v{TMP + 2}, s{sProg}")
        e(progress.replace(f"v{TMP},", f"v{TMP + 2},"))
    if ad:
        e.comment("progress marker for 8 members per wave (timing hint only)")
        e(f"""s_mov_b64 exec, 0xff
              buffer_store_dword v{HV}, v{HS}, {W}, s{sHs} offen {st}
              s_mov_b64 exec, -1
              v_bfe_u32 v{HA}, v{vL16}, 2, 7
              v_mov_b64 {vr(HD, 2)}, 0
              v_mov_b64 {vr(HD + 2, 2)}, 0""")
        stamp(15)
    e.barrier()
    e(f"""ds_read_b128 {vr(OA, 4)}, v{vL16} offset:{L_OB}
          ds_read_b128 {vr(OA + 4, 4)}, v{vL16} offset:{L_OB + 1024}""")
    hs = cfg.get('hs', (-1, 0, 3, 6))
    if ad and hs[0] == -1:
        ldH(0)()
    stamp(6)
    OUT = SPARE

    def pstore(c):
        return f"buffer_store_dwordx4 {vr(OUT + 4 * c, 4)}, v{vPst}, {W}, s{sPbaseS} offen offset:{c * 2048} {st}"

    tag = lambda j: f"v_and_or_b32 v{OUT + j}, v{OUT + j}, -2, s{sG}"
    seq = []
    for t in range(8):
        for kb in range(2):
            k, b = loc[('o', t, kb)]
            if t >= 2:
                p = post(MA + 4 * (t - 2), OUT + t - 2)
                fl = p[0:1] if kb == 0 else p[1:3]
                if kb == 0 and t % 2 == 1:
                    fl = fl + [tag(t - 3)]
            else:
                fl = ["s_nop 0"]
            n = 2 * t + kb
            if 1 <= n <= 8:
                fl = [wo[3 + n]] + fl
            if ad and n in hs:
                fl = [ldH(hs.index(n))] + [x for x in fl if x != "s_nop 0"]
            if kb == 0 and t == 6:
                fl = [pstore(0)] + fl
            seq.append((f"v_smfmac_f32_16x16x64_bf16 {vr(MA + 4 * t, 4)}, {vr(OA + 4 * kb, 4)}, {vr(b, 8, k)}, v{vIdx}", fl))
    if cfg.get('wd', 0):
        seq[1], seq[2] = (seq[2][0], seq[1][1]), (seq[1][0], seq[2][1] + ["s_nop 0"])
        seq[3] = (seq[3][0], seq[3][1] + ["s_nop 0"])
    e.slots(seq)
    PL, D, SEL, PL2 = MA + 8, MA + 16, MA + 20, MA + 24
    e("\n".join(post(MA + 24, OUT + 6) + [tag(6)]))
    e("\n".join(post(MA + 28, OUT + 7)))
    e(pstore(1))
    stamp(7)
    trace_out('late', MA)
    e(f"s_bitcmp1_b32 s{S_WAVE}, 0\n s_cbranch_scc1 L_x1_{sfx}")
    e.slot_hook = None
    st0 = e.state()
    ldP = [f"buffer_load_dwordx4 {vr(PL, 4)}, v{vL16}, {W}, s{sPbaseL} offen sc1",
           f"buffer_load_dwordx4 {vr(PL + 4, 4)}, v{vL16}, {W}, s{sPbaseL} offen offset:1024 sc1"]
    tP, dM, eM, gM = cfg.get('tP', (260, 380)), cfg.get('dM', (270, 150)), cfg.get('eM', 200), cfg.get('gM', (110, 110))
    for w in range(2):
        if w:
            e.raw(".p2align 6")
            e.label(f"L_x{w}_{sfx}"); e.set_state(st0)
        clk = [[12, 48][w]]
        pa = prep_a_lines()
        valu = [f"v_cndmask_b32 v{SEL + j}, 0, v{vSelC}, {sr(sSel + 2 * j, 2)}" for j in range(4)] + scalar_lines() + [l for l in pa if not l.startswith('ds_')]
        if diag:
            valu += [f"s_cmp_eq_u32 s{sStep}, 10", f"s_cselect_b32 s{sDbgT + 6}, s36, s{sDbgT + 6}"] + [f"s_cselect_b32 s{k}, 0, s{k}" for k in range(12, 16)]
        reads = [l for l in pa if l.startswith('ds_')]
        late_v = [l for l in pa if not l.startswith('ds_')]
        pool = [l for l in valu if l not in late_v]
        pool = [l for l in pool if not l.startswith('v_')] + [l for l in pool if l.startswith('v_')]
        merged = []
        for l in pool:
            if l.startswith('s_cselect'):
                merged[-1] += '\n' + l
            else:
                merged.append(l)
        pool = merged
        def until(t):
            while clk[0] + 4 <= t and pool:
                l = pool.pop(0); e(l); clk[0] += 4 * (1 + l.count('\n'))
            if clk[0] + 4 <= t:
                delay(e, t - clk[0]); clk[0] = t

        if ad:
            ev = [f"v_cmp_gt_u32 {sr(sHm + 2 * k, 2)}, s{sStep}, v{HD + k}" for k in range(4)] + [f"s_mov_b32 s{sCnt}, 0"]
            for k in range(4):
                ev += [f"s_cmp_lg_u64 {sr(sHm + 2 * k, 2)}, 0", f"s_addc_u32 s{sCnt}, s{sCnt}, 0"]
            if diag:
                ev += [f"s_add_u32 s15, s15, s{sCnt}"]
            ev += [f"s_mul_i32 s{sCnt}, s{sCnt}, {cfg.get('hm', 2)}"]
            until(tP[w] - 4 * len(ev) - 12)
            e("\n".join(ev))
            e(f"L_ad{w}_{sfx}:\n s_sub_u32 s{sCnt}, s{sCnt}, 1\n s_cbranch_scc0 L_ad{w}_{sfx}")
        else:
            until(tP[w])
        e.loose(ldP[0]); e.loose(ldP[1]); stamp(11)
        ldP2 = [x.replace(vr(PL, 4), vr(PL2, 4)).replace(vr(PL + 4, 4), vr(PL2 + 4, 4)) for x in ldP]
        need = scalar_lines()[:7]
        late_v = [l for l in pool if not l.startswith('v_') and l not in need and 's36' not in l] + late_v
        pool = [l for l in pool if l not in late_v]
        rest = reads + pool
        nsp = cfg.get('nsp', (10, 10))[w]
        e("\n".join(rest[:nsp]))
        if nsp is not None:
            delay(e, cfg.get('dP2', (60, 40))[w])
            e.loose(ldP2[0]); e.loose(ldP2[1])
        else:
            nsp = len(rest)
        spare = cfg.get('nsp', (10, 10))[w] is not None
        e("\n".join(rest[nsp:]))
        e(f"s_mov_b32 s{sNan}, 0")
        if diag:
            e.raw("  s_memtime s[36:37]")
        ny = 2 if spare else 0
        e(f"""s_waitcnt vmcnt({ny + 1})
              L_redP{w}_{sfx}:
              v_mfma_f32_16x16x32_bf16 {vr(D, 4)}, {vr(PL, 4)}, {vr(SEL, 4)}, 0
              s_waitcnt vmcnt({ny})
              v_mfma_f32_16x16x32_bf16 {vr(D, 4)}, {vr(PL + 4, 4)}, {vr(SEL, 4)}, {vr(D, 4)}
              v_xor_b32 v{C0}, s{sG}, v{PL}
              v_bitop3_b32 v{C0}, v{C0}, v{PL + 2}, s{sG} bitop3:0xf6
              v_bitop3_b32 v{C0}, v{C0}, v{PL + 4}, s{sG} bitop3:0xf6
              v_bitop3_b32 v{C0}, v{C0}, v{PL + 6}, s{sG} bitop3:0xf6
              v_and_b32 v{C0}, 1, v{C0}
              v_cmp_ne_u32 vcc, 0, v{C0}
              v_cmp_ne_u32 {sr(sFm, 2)}, 0, v{TMP + 3}
              s_cbranch_vccnz L_reP{w}_{sfx}
              v_permlane32_swap_b32 v{D}, v{D + 2}
              v_permlane32_swap_b32 v{D + 1}, v{D + 3}
              v_add_f32 v{D}, v{D}, v{D + 2}
              v_add_f32 v{D + 1}, v{D + 1}, v{D + 3}
              v_permlane16_swap_b32 v{D}, v{D + 1}
              v_add_f32 v{D}, v{D}, v{D + 1}
              v_mov_b32_dpp v{D + 1}, v{D} quad_perm:[2,3,0,1] row_mask:0xf bank_mask:0xf
              v_cvt_pk_bf16_f32 v{D}, v{D}, v{D + 1}
              v_min_u32 v{D}, -2, v{D}
              v_cndmask_b32 v{VX + 4}, v{D}, -1, {sr(sArm, 2)}
              buffer_store_dword v{VX + 4}, v{vMst}, {W}, s{sMn2} offen {st}""")
        stamp(8)
        pb = ["s_waitcnt vmcnt(1)"] + prep_b_lines()
        d = dM[w]
        if d >= 100:
            e("\n".join(pb)); d -= 100; pb = []
        delay(e, d)
        e.loose(mload(0)); stamp(12)
        d = gM[w]
        if pb:
            pb[0] = "s_waitcnt vmcnt(2)"
            e("\n".join(pb)); d -= 100
        gl = cfg.get('gL', 60)
        d -= gl
        k = max(0, min(len(late_v), d // 4))
        e("\n".join(late_v[:k])); d -= 4 * k
        delay(e, d)
        e.loose(mload(0))
        k2 = min(len(late_v), k + gl // 4)
        e("\n".join(late_v[k:k2])); delay(e, gl - 4 * (k2 - k)); k = k2
        e.loose(mload(1))
        e("\n".join(late_v[k:]))
        if lastsp:
            e(f"s_cmp_eq_u32 s{sStep}, 63\n s_cbranch_scc1 L_last_{sfx}")
        e(f"""s_bitcmp1_b64 {sr(sFm, 2)}, s{sOK2}
              s_waitcnt lgkmcnt(0)
              s_cbranch_scc1 L_step_{sfx}
              s_branch L_flag_{sfx}""")
        e.forget()
        e(f"L_reP{w}_{sfx}:")
        if spare:
            e("s_waitcnt vmcnt(0)")
            for j in range(0, 8, 2):
                e(f"v_mov_b64 {vr(PL + j, 2)}, {vr(PL2 + j, 2)}")
            e.loose(ldP2[0]); e.loose(ldP2[1])
        else:
            e.loose(ldP[0]); e.loose(ldP[1])
            e("s_waitcnt vmcnt(1)")
        e(f"""{'s_add_u32 s12, s12, 1' if diag else ''}
              s_sub_u32 s{S_SPIN}, s{S_SPIN}, 1
              s_cbranch_scc0 L_redP{w}_{sfx}
              s_branch L_end""")
    e.forget()
    e(f"""L_flag_{sfx}:
          v_lshrrev_b32 v{C0}, 2, v{vL16}
          buffer_load_dword v{C0}, v{C0}, {W}, s{sFl} offen sc1
          s_sub_u32 s{S_SPIN}, s{S_SPIN}, 1
          s_cbranch_scc1 L_end
          v_cmp_ne_u32 {sr(sFm, 2)}, 0, v{C0}
          s_bitcmp1_b64 {sr(sFm, 2)}, s{sOK2}
          s_cbranch_scc1 L_step_{sfx}
          s_branch L_flag_{sfx}""")
    e.forget()
    e(f"L_retE_{sfx}:")
    e.loose(mload(0)); e.loose(mload(1))
    if spec:
        e(f"s_nop 3\n v_mov_b64 {vr(ACC, 2)}, 0\n v_mov_b64 {vr(ACC + 2, 2)}, 0")
    e(f"""{'s_add_u32 s13, s13, 1' if diag else ''}
          s_sub_u32 s{S_SPIN}, s{S_SPIN}, 1
          s_waitcnt vmcnt(3)
          s_cbranch_scc0 L_chkE_{sfx}
          s_branch L_end""")
    if xe:
        e(f"""L_retL_{sfx}:
              {'s_add_u32 s14, s14, 1' if diag else ''}
              s_sub_u32 s{S_SPIN}, s{S_SPIN}, 1
              s_cbranch_scc1 L_end
              s_bitcmp1_b32 s{sNan}, 0
              s_bitset1_b32 s{sNan}, 0
              s_waitcnt vmcnt(4)
              s_cbranch_scc0 L_retL1_{sfx}""")
        e.loose(mload(1))
        e(f"s_waitcnt vmcnt(0)\n L_retL1_{sfx}:")
    else:
        e(f"L_retL_{sfx}:")
        e.loose(mload(1))
        e(f"""{'s_add_u32 s14, s14, 1' if diag else ''}
              s_sub_u32 s{S_SPIN}, s{S_SPIN}, 1
              s_cbranch_scc1 L_end
              s_bitcmp1_b32 s{sNan}, 0
              s_bitset1_b32 s{sNan}, 0
              s_waitcnt vmcnt(3)
              s_cbranch_scc0 L_retL1_{sfx}
              s_waitcnt vmcnt(1)
              L_retL1_{sfx}:""")
    e("\n".join(cl_))
    e(f"""ds_write_b128 v{vMw}, {vr(MA + 4, 4)} offset:4096
          s_cbranch_vccz L_okL_{sfx}
          s_branch L_retL_{sfx}""")
    if not lastsp:
        return
    e.forget()
    e(f"L_lret_{sfx}:")
    e.loose(mload(0)); e.loose(mload(1))
    e(f"""s_sub_u32 s{S_SPIN}, s{S_SPIN}, 1
          s_cbranch_scc1 L_end
          L_last_{sfx}:
          s_waitcnt vmcnt(0) lgkmcnt(0)""")
    e("\n".join(check((0, 1))))
    e(f"""ds_write_b128 v{vMw}, {vr(MA, 4)}
          ds_write_b128 v{vMw}, {vr(MA + 4, 4)} offset:4096
          s_cbranch_vccnz L_lret_{sfx}""")
    own = [(m, ft, i) for i in (0, 1) for m in 'kv' for ft in range(2)]
    seq = [(P(*op), []) for op in own]
    if not xo:
        seq[0][1].append(export)
    seq[3][1].extend([progress, e.barrier, mread(2), mread(3)])
    for k in range(4):
        seq[4 + k][1].append(mread(4 + k))
    seq += [(P(m, ft, i), []) for i in range(2, 6) for m in 'kv' for ft in range(2)]
    seq += [(P(m, ft, i), []) for m in 'kv' for ft in range(2) for i in (6, 7)]
    e.slots(seq)
    e("\n".join(k0p + k1p + v0p + v1p))
    e("s_branch L_final")


def chain_final(e, cfg):
    e.forget()
    e("L_final:")
    if cfg.get('holdend'):
        e(f"""L_hold2:
              s_memrealtime s[92:93]
              s_waitcnt lgkmcnt(0)
              s_sub_u32 s92, s92, s94
              s_cmp_lt_u32 s92, {cfg['holdend']}
              s_cbranch_scc1 L_hold2""")
    e(f"""s_add_u32 s{sExp}, s{sExp}, {0 if cfg.get('xo', 0) else 4096}
          buffer_store_dwordx4 {vr(EX, 4)}, v{vL16}, {W}, s{sExp} offen sc1
          s_waitcnt lgkmcnt(0)""")
    if cfg.get('diag'):
        e(f"""s_memrealtime {sr(sDbgT + 12, 2)}
              s_lshl_b32 s{sA}, s{S_ROLE}, 2
              s_add_u32 s{sA}, s{sA}, s{S_WAVE}
              s_lshl_b32 s{sA}, s{sA}, 6
              s_add_u32 s{sA}, s{sA}, 0x6000000
              s_waitcnt lgkmcnt(0)
              s_sub_u32 s{sDbgT + 8}, s36, s{sDbgT + 6}""")
        for n, r in enumerate([sDbgT + 8, sDbgT + 5, S_SPIN, sDbgT + 14, sDbgT + 10, sDbgT + 12, 12, 13, 14, 15]):
            e(f"v_mov_b32 v{TMP + 2}, s{r}\n buffer_store_dword v{TMP + 2}, off, {W}, s{sA} offset:{4 * n}")
    dbg_max(e, cfg, 12, v=TMP + 2)
    e("s_waitcnt vmcnt(0)\n s_branch L_end")


def chain(e, cfg):
    CFG.clear(); CFG.update(cfg)
    chain_startup(e, cfg)
    chain_loop(e, cfg, 'f', '')
    chain_loop(e, cfg, 's', 'sc1')
    chain_final(e, cfg)
```

```python
from common import *

L_T, L_OB, L_DUMMY, L_KX, L_WL = 8192, 12544, 14592, 16384, 32768
T_PITCH = 1088
vL16, vPst, vMst, vTw, vTr, vKXr, vOw, vWL0, vWL1, vMw, vIdx, vSelC = range(12)
EX, PM, VX = 12, 16, 20
TMP = 28
MA = 32
ACC = 64
X, KXR, SPARE = 88, 104, 120
R1 = [MA + 8, MA + 16, MA + 24, X, X + 8, KXR, KXR + 8, SPARE, X, X + 8]
WO_SB = [KXR, KXR + 8, X, X + 8, ACC, ACC + 8]
(sStep, sMcur, sProg, sMtog, sG, sKl, sPst2, sKV, sC, sExp, sMcur2, sMbaseS, sPbaseS, sPbaseL, sFl, sFch, sTog, sNan,
 sA, sB) = range(50, 70)
sSel = 70
sOK, sHl, sMn2 = 78, 79, 3
sArm, sFm = 18, 98
sVx, sVt, sHs, sOK2, sG2 = 96, 97, 16, 17, 100
HV, HS, HA, HD = VX, VX + 1, VX + 2, VX + 4
sHm, sCnt = 20, 28
S_M0 = 84
TRS = [30, 42, 44, 80, 82, 88, 32, 34]
sDbgT = 80

STREAM = [('q', 0, 0), ('q', 1, 0), ('k', 0, 0), ('k', 1, 0), ('q', 0, 1), ('q', 1, 1), ('k', 0, 1), ('k', 1, 1),
          ('q', 0, 5), ('q', 0, 7),
          ('o', 5, 0), ('o', 5, 1), ('o', 6, 0), ('o', 6, 1), ('o', 7, 0), ('o', 7, 1)]
WLPOS = {op: p for op, p in zip(STREAM[10:14], range(4))}
WLPOS.update({op: 4 + p for p, op in enumerate(STREAM[14:16] + STREAM[:10])})
ALLOPS = [(m, ft, i) for m in 'qkv' for ft in range(2) for i in range(8)] + [('o', t, kb) for t in range(8) for kb in range(2)]
RES = {}
for n, op in enumerate([o for o in ALLOPS if o not in STREAM]):
    RES[op] = ('a', 8 * n) if n < 32 else ('v', 128 + 8 * (n - 32))
PARK = {}
for n, op in enumerate(STREAM[14:16] + STREAM[:10]):
    PARK[op] = 32 + 8 * n
for n, op in enumerate(STREAM[10:14]):
    PARK[op] = 48 + 8 * n
W = sr(S_WS, 4)
CFG = {}


def wl_addr(op, half):
    p = WLPOS[op]
    off = (p >> 1) * 16384 + (p & 1) * 2048 + half * 1024
    return (vWL0, off) if off < 65536 else (vWL1, off - 65536)


def wl_write(e, op, src):
    for half in range(2):
        a, off = wl_addr(op, half)
        e(f"ds_write_b128 v{a}, {vr(src + 4 * half, 4)} offset:{off}")


def wl_lines(op, dst):
    out = []
    for half in range(2):
        a, off = wl_addr(op, half)
        out.append(f"ds_read_b128 {vr(dst + 4 * half, 4)}, v{a} offset:{off}")
    return out


def delay(e, cyc):
    if CFG.get('slp') and cyc >= 64:
        k = cyc // 64
        e(f"s_sleep {k}")
        cyc -= 64 * k
    if CFG.get('dmf'):
        while cyc >= 16:
            if CFG['dmf'] == 1:
                e(f"v_mfma_f32_16x16x32_bf16 {vr(VX, 4)}, a[0:3], a[8:11], 0")
            else:
                e(f"v_smfmac_f32_16x16x64_bf16 {vr(VX, 4)}, a[0:3], a[8:15], v{vIdx}")
            cyc -= 16
    n = cyc // 4
    while n > 0:
        k = min(n, 16)
        e(f"s_nop {k - 1}")
        n -= k


def mix(reads, other, per=3):
    out = []
    other = list(other)
    for r in reads:
        out.append(r)
        for _ in range(per):
            if other:
                out.append(other.pop(0))
    return out + other


def mload(b):
    return f"buffer_load_dwordx4 {vr(MA + 4 * b, 4)}, v{vMw}, {W}, s{sMcur if b == 0 else sMcur2} offen sc1"


def kx_dma(e, ldsbase):
    e(f"""s_lshl_b32 s{sA}, s{S_WAVE}, 11
          s_add_u32 m0, s{sA}, {ldsbase}
          buffer_load_dwordx4 v{vL16}, {W}, s{sKV} offen sc1 lds
          buffer_load_dwordx4 v{vL16}, {W}, s{sKV} offen offset:1024 sc1 lds""")


def scalar_lines():
    return [x.strip() for x in f"""s_and_b32 s{sA}, s{sStep}, 3
          s_lshl_b32 s{sA}, s{sA}, 13
          s_add_u32 s{sMcur}, s{sA}, {WS_M}
          s_add_u32 s{sMcur2}, s{sA}, {WS_M + 4096}
          s_and_b32 s{sA}, s{sA}, 0x2000
          s_add_u32 s{sMn2}, s{sMbaseS}, s{sA}
          s_lshl_b32 s{sMtog}, s{sA}, 1
          s_sub_u32 s{sVx}, s{sKV}, s{sTog}
          s_add_u32 s{sVx}, s{sVx}, {8192 - L_KX}
          s_add_u32 s{sKV}, s{sKV}, {0 if CFG.get('samekv') else UNIT}
          s_add_u32 s{sVt}, s{sKV}, 8192
          s_xor_b32 s{sA}, s{sTog}, 0x2000
          s_add_u32 m0, s{sA}, s{sKl}
          s_cmp_gt_u32 s{sStep}, {0 if CFG.get('xo', 0) else 1}
          s_cselect_b32 s{sA}, 4096, 0
          s_add_u32 s{sExp}, s{sExp}, s{sA}
          s_add_u32 s{sOK2}, s{sStep}, 1
          s_max_u32 s{sProg}, s{sStep}, {0 if CFG.get('xo', 0) else 1}
          s_sub_u32 s{sProg}, s{sProg}, {0 if CFG.get('xo', 0) else 1}
          s_and_b32 s{sG2}, s{sOK2}, 1""".split('\n')]


def prep_a_lines():
    other = [f"v_mov_b64 {vr(ACC + j, 2)}, 0" for j in range(0, 24, 2)] + [f"v_lshlrev_b32 v{PM + 3}, 1, v{vL16}", f"v_mov_b32 v{TMP}, s{sProg}"]
    reads = sum([wl_lines(STREAM[o], R1[o]) for o in range(3, 8)], [])
    return mix(reads, other, 2)


def prep_b_lines():
    other = [f"v_xor_b32 v{vMst}, s{sMtog}, v{vMst}"] + [f"v_xor_b32 v{TMP + p}, {p << 10}, v{vMw}" for p in range(1, 4)]
    reads = sum([wl_lines(STREAM[o], R1[o]) for o in range(3)], [])
    return mix(reads, other, 1)


def chain_startup(e, cfg):
    h = S_ROLE
    tA, tB, tC, tD = EX, EX + 1, EX + 2, EX + 3
    t0, t1, t2, t3 = TMP, TMP + 1, TMP + 2, TMP + 3
    lane = PM
    chunks = [('o', kb, Q) for kb in range(2) for Q in range(4)] + [(m, b, 0) for m in cfg.get('mo', 'qkv') for b in range(8)]
    ring = {4: L_WL + 2 * 16384, 5: L_WL + 3 * 16384, 6: L_WL + 4 * 16384, 0: L_WL + 5 * 16384, 1: L_WL + 6 * 16384,
            2: L_WL + 7 * 16384, 3: 0}
    ptr = {'q': P_WQ, 'k': P_WK, 'v': P_WV, 'o': P_WO}
    sHq, sHo, sLw = sMcur, sProg, sMcur2
    cur, marks = [None], {}

    def dma(r):
        m, x, Q = chunks[r]
        if cur[0] != m:
            srd(e, S_T0, ptr[m], 0x400000); cur[0] = m
        for i in range(4):
            if m == 'o':
                row = 64 * x + 32 * (Q >> 1) + 2 * (Q & 1) + 4 * (i >> 1) + (i & 1)
                e(f"""s_add_u32 s{sA}, s{sHo}, {row * 1024}
                      s_add_u32 m0, s{sLw}, {ring[r % 7] + i * 1024}
                      v_xor_b32 v{t2}, {i << 5}, v{VX + 3}
                      buffer_load_dwordx4 v{t2}, {sr(S_T0, 4)}, s{sA} offen lds""")
            else:
                e(f"""s_add_u32 s{sA}, s{sHq}, {(128 * (x & 3) + 64 * (x >> 2) + 4 * i) * 8192}
                      s_add_u32 m0, s{sLw}, {ring[r % 7] + i * 1024}
                      buffer_load_dwordx4 v{tA}, {sr(S_T0, 4)}, s{sA} offen lds""")
        marks[r] = e.vm[-1]

    e(f"""v_and_b32 v{lane}, 63, v0
          v_lshlrev_b32 v{vL16}, 4, v{lane}
          s_and_b32 s{sA}, s{S_WAVE}, 1
          s_lshr_b32 s{sB}, s{S_WAVE}, 1
          s_lshl_b32 s{sHo}, s{sA}, 7
          v_xor_b32 v{VX + 3}, s{sHo}, v{vL16}
          s_lshl_b32 s{sHo}, s{h}, 17
          s_lshl_b32 s{sLw}, s{sA}, 14
          s_add_u32 s{sHo}, s{sHo}, s{sLw}
          s_lshl_b32 s{sLw}, s{sB}, 13
          s_add_u32 s{sHo}, s{sHo}, s{sLw}
          s_lshl_b32 s{sHq}, s{h}, 8
          s_lshl_b32 s{sLw}, s{S_WAVE}, 17
          s_add_u32 s{sHq}, s{sHq}, s{sLw}
          s_lshl_b32 s{sLw}, s{S_WAVE}, 12""")
    for r in range(6):
        dma(r)
    e(f"""v_lshrrev_b32 v{t0}, 4, v{lane}
          v_and_b32 v{t1}, 15, v{lane}
          s_lshl_b32 s{sA}, s{S_WAVE}, 10
          v_add_u32 v{vMw}, s{sA}, v{vL16}
          v_lshlrev_b32 v{PM + 3}, 2, v{lane}""")
    e(f"""v_lshrrev_b32 v{t2}, 2, v{lane}
          v_lshlrev_b32 v{t2}, 12, v{t2}
          v_and_b32 v{t3}, 3, v{lane}
          v_lshl_add_u32 v{vPst}, v{t3}, 4, v{t2}""")
    e(f"""v_and_b32 v{t2}, 1, v{lane}
          v_lshlrev_b32 v{t2}, 5, v{t2}
          v_lshl_add_u32 v{t2}, v{t0}, 3, v{t2}
          v_and_b32 v{t3}, 4, v{lane}
          v_add_u32 v{t2}, v{t2}, v{t3}
          v_and_b32 v{t3}, 8, v{lane}
          v_cmp_ne_u32 {sr(sArm, 2)}, 0, v{t3}
          v_lshl_add_u32 v{t2}, v{t3}, 11, v{t2}
          v_and_b32 v{t3}, 2, v{lane}
          v_lshl_add_u32 v{vMst}, v{t3}, 29, v{t2}""")
    srd(e, S_M0, P_MEM0, 8192)
    e(f"""v_and_b32 v{t2}, 1, v{lane}
          v_lshlrev_b32 v{tD}, 10, v{t2}
          v_lshl_add_u32 v{tD}, v{t0}, 1, v{tD}
          v_bfe_u32 v{t2}, v{lane}, 2, 1
          v_lshl_add_u32 v{tD}, v{t2}, 6, v{tD}
          s_and_b32 s{sA}, s{h}, 6
          s_lshl_b32 s{sA}, s{sA}, 10
          s_lshr_b32 s{sB}, s{h}, 3
          s_lshl_b32 s{sB}, s{sB}, 8
          s_add_u32 s{sA}, s{sA}, s{sB}
          s_and_b32 s{sB}, s{S_WAVE}, 1
          s_lshl_b32 s{sB}, s{sB}, 7
          s_add_u32 s{sA}, s{sA}, s{sB}
          s_lshr_b32 s{sB}, s{S_WAVE}, 1
          s_lshl_b32 s{sB}, s{sB}, 3
          s_add_u32 s{sA}, s{sA}, s{sB}
          s_and_b32 s{sB}, s{h}, 1
          s_lshl_b32 s{sB}, s{sB}, 4
          s_add_u32 s{sA}, s{sA}, s{sB}
          buffer_load_ushort v{VX}, v{tD}, {sr(S_M0, 4)}, s{sA} offen
          buffer_load_ushort v{VX + 1}, v{tD}, {sr(S_M0, 4)}, s{sA} offen offset:32""")
    e(f"""s_lshl_b32 s{sA}, s{S_WAVE}, 8
          s_add_u32 s{sA}, s{sA}, {L_T}
          v_mul_u32_u24 v{t2}, {T_PITCH}, v{t0}
          v_lshl_add_u32 v{t2}, v{t1}, 3, v{t2}
          v_add_u32 v{vTw}, s{sA}, v{t2}
          v_and_b32 v{t3}, 3, v{lane}
          v_mul_u32_u24 v{t2}, {T_PITCH}, v{t3}
          v_lshrrev_b32 v{t3}, 5, v{lane}
          v_lshl_add_u32 v{t2}, v{t3}, 7, v{t2}
          v_bfe_u32 v{t3}, v{lane}, 2, 3
          v_lshl_add_u32 v{t2}, v{t3}, 3, v{t2}
          v_add_u32 v{vTr}, {L_T}, v{t2}
          v_lshlrev_b32 v{t2}, 9, v{t0}
          v_lshl_add_u32 v{t2}, v{t1}, 4, v{t2}
          v_add_u32 v{vKXr}, {L_KX}, v{t2}""")
    e(f"""s_lshl_b32 s{sA}, s{S_WAVE}, 9
          s_add_u32 s{sA}, s{sA}, {L_OB}
          v_lshrrev_b32 v{t2}, 5, v{lane}
          v_lshlrev_b32 v{t2}, 8, v{t2}
          v_and_b32 v{t3}, 16, v{lane}
          v_add_u32 v{t2}, v{t2}, v{t3}
          v_and_b32 v{t3}, 12, v{lane}
          v_lshl_add_u32 v{t2}, v{t3}, 4, v{t2}
          v_and_b32 v{t3}, 1, v{lane}
          v_lshl_add_u32 v{t2}, v{t3}, 5, v{t2}
          v_add_u32 v{t2}, s{sA}, v{t2}
          v_and_b32 v{t3}, 2, v{lane}
          v_lshlrev_b32 v{tA}, 3, v{t3}
          v_xor_b32 v{t2}, v{t2}, v{tA}
          v_lshlrev_b32 v{t3}, 12, v{t3}
          v_sub_u32 v{vOw}, v{t2}, v{t3}
          s_add_u32 s{sA}, s{sLw}, {L_WL}
          v_add_u32 v{vWL0}, s{sA}, v{vL16}
          v_add_u32 v{vWL1}, 0x10000, v{vWL0}""")
    e(f"""v_and_b32 v{t2}, 1, v{lane}
          v_cmp_ne_u32 vcc, 0, v{t2}
          v_mov_b32 v{t2}, 0x4444
          v_mov_b32 v{t3}, 0xeeee
          v_cndmask_b32 v{vIdx}, v{t2}, v{t3}, vcc
          v_mov_b32 v{t2}, 0x3f80
          v_mov_b32 v{t3}, 0x3f800000
          v_cndmask_b32 v{vSelC}, v{t2}, v{t3}, vcc
          v_lshrrev_b32 v{t2}, 1, v{t1}""")
    for j in range(4):
        e(f"v_cmp_eq_u32 {sr(sSel + 2 * j, 2)}, {j}, v{t2}")
    e(f"""v_lshlrev_b32 v{tA}, 13, v{t0}
          v_lshlrev_b32 v{t2}, 2, v{t0}
          v_xor_b32 v{t2}, v{t2}, v{t1}
          v_lshl_add_u32 v{tA}, v{t2}, 4, v{tA}""")
    e(f"""v_bfe_u32 v{t2}, v{lane}, 2, 1
          v_lshlrev_b32 v{tB}, 12, v{t2}
          v_bfe_u32 v{t2}, v{lane}, 5, 1
          v_lshl_add_u32 v{tB}, v{t2}, 10, v{tB}
          v_bfe_u32 v{t2}, v{lane}, 3, 1
          v_lshl_add_u32 v{tB}, v{t2}, 9, v{tB}
          v_bfe_u32 v{t2}, v{lane}, 4, 1
          v_lshl_add_u32 v{tB}, v{t2}, 8, v{tB}
          v_and_b32 v{t2}, 3, v{lane}
          v_lshl_add_u32 v{tB}, v{t2}, 3, v{tB}
          v_bfe_u32 v{t3}, v{tB}, 8, 2
          v_xor_b32 v{t3}, s{S_WAVE}, v{t3}
          v_lshl_add_u32 v{tB}, v{t3}, 6, v{tB}""")
    e(f"""v_lshrrev_b32 v{t3}, 2, v{lane}
          v_lshlrev_b32 v{tC}, 10, v{t3}
          v_lshl_add_u32 v{tC}, v{t2}, 3, v{tC}
          s_lshl_b32 s{sA}, s{S_WAVE}, 8
          v_add_u32 v{tC}, s{sA}, v{tC}
          v_and_b32 v{t3}, 7, v{t3}
          v_lshl_add_u32 v{tC}, v{t3}, 5, v{tC}""")
    e(f"""s_lshl_b32 s{sA}, s{S_WAVE}, 11
          s_lshl_b32 s{sB}, s{h}, 13
          s_add_u32 s{sPbaseL}, s{sA}, s{sB}
          s_add_u32 s{sPbaseL}, s{sPbaseL}, {WS_P}
          s_lshl_b32 s{sA}, s{S_WAVE}, 16
          s_lshl_b32 s{sB}, s{h}, 6
          s_add_u32 s{sPbaseS}, s{sA}, s{sB}
          s_add_u32 s{sPbaseS}, s{sPbaseS}, {WS_P}""")
    e(f"""s_and_b32 s{sA}, s{S_WAVE}, 1
          s_lshl_b32 s{sMbaseS}, s{sA}, 12
          s_and_b32 s{sA}, s{h}, 24
          s_lshl_b32 s{sA}, s{sA}, 7
          s_add_u32 s{sMbaseS}, s{sMbaseS}, s{sA}
          s_and_b32 s{sA}, s{h}, 1
          s_lshl_b32 s{sA}, s{sA}, 9
          s_add_u32 s{sMbaseS}, s{sMbaseS}, s{sA}
          s_lshr_b32 s{sA}, s{S_WAVE}, 1
          s_lshl_b32 s{sA}, s{sA}, 8
          s_add_u32 s{sMbaseS}, s{sMbaseS}, s{sA}
          s_and_b32 s{sA}, s{h}, 6
          s_lshl_b32 s{sA}, s{sA}, 5
          s_add_u32 s{sMbaseS}, s{sMbaseS}, s{sA}
          s_add_u32 s{sMbaseS}, s{sMbaseS}, {WS_M}""")
    e(f"""s_mul_i32 s{sKV}, s{h}, {64 * UNIT}
          s_lshl_b32 s{sA}, s{S_WAVE}, 11
          s_add_u32 s{sKV}, s{sKV}, s{sA}
          s_add_u32 s{sKV}, s{sKV}, {WS_QKV + 8192}
          s_lshl_b32 s{sExp}, s{h}, 18
          s_lshl_b32 s{sA}, s{S_WAVE}, 10
          s_add_u32 s{sExp}, s{sExp}, s{sA}
          s_add_u32 s{sExp}, s{sExp}, {WS_EXP}
          s_lshl_b32 s{sFl}, s{h}, 8
          s_add_u32 s{sFl}, s{sFl}, {F_QKV}
          s_lshl_b32 s{sFch}, s{h}, 7
          s_lshl_b32 s{sA}, s{S_WAVE}, 2
          s_add_u32 s{sFch}, s{sFch}, s{sA}
          s_add_u32 s{sFch}, s{sFch}, {F_CH}
          s_mov_b32 s{sC}, 0x3e0293ee
          s_add_u32 s{sPst2}, s{sPbaseS}, 4096
          s_lshl_b32 s{sKl}, s{S_WAVE}, 11
          s_add_u32 s{sKl}, s{sKl}, {L_KX}
          s_lshl_b32 s{sHl}, s{h}, 7
          s_add_u32 s{sHl}, s{sHl}, {F_HINT}
          s_lshl_b32 s{sHs}, s{h}, 2
          s_lshl_b32 s{sA}, s{S_WAVE}, 10
          s_add_u32 s{sHs}, s{sHs}, s{sA}
          s_add_u32 s{sHs}, s{sHs}, {F_HINT}
          s_mov_b32 s{sOK}, 1""")
    e(f"""v_mov_b64 {vr(VX + 4, 2)}, 0
          v_mov_b64 {vr(VX + 6, 2)}, 0
          v_mov_b32 v{VX + 2}, -1
          s_add_u32 s{sB}, s{sMbaseS}, 8192
          buffer_store_dwordx4 {vr(VX + 4, 4)}, v{vL16}, {W}, s{sPbaseL} offen sc1
          buffer_store_dwordx4 {vr(VX + 4, 4)}, v{vL16}, {W}, s{sPbaseL} offen offset:1024 sc1
          buffer_store_dword v{VX + 2}, v{vMst}, {W}, s{sB} offen sc1""")
    if cfg.get('sdiag'):
        e("s_memrealtime s[20:21]\n s_waitcnt lgkmcnt(0)")
    confirm_barrier(e, 'ch')
    if cfg.get('sdiag'):
        e("s_memrealtime s[22:23]\n s_waitcnt lgkmcnt(0)")
    parked = STREAM[14:16] + STREAM[:10]
    for r in range(32):
        m, x, Q = chunks[r]
        if marks[r] in e.vm:
            e.wait(vm=len(e.vm) - 1 - e.vm.index(marks[r]))
        e.wait(lgkm=0)
        e("s_barrier")
        if cfg.get('sdiag') and r in (0, 8, 16, 24, 31):
            e(f"s_memrealtime {sr({0: 24, 8: 26, 16: 28, 24: 36, 31: 40}[r], 2)}\n s_waitcnt lgkmcnt(0)")
        if r == 6:
            e.comment("publish this wave's piece of mem0 in slot 0 (and arm slot 2)")
            e(f"""v_lshl_or_b32 v{VX}, v{VX + 1}, 16, v{VX}
                  v_min_u32 v{VX}, -2, v{VX}
                  v_cndmask_b32 v{VX}, v{VX}, -1, {sr(sArm, 2)}
                  buffer_store_dword v{VX}, v{vMst}, {W}, s{sMbaseS} offen sc1""")
        if r == 12:
            e.comment("every wave's arming stores are complete: count this member as armed")
            e(f"""s_cmp_lg_u32 s{S_WAVE}, 0
                  s_cbranch_scc1 L_cs_in
                  s_cmp_lg_u32 s{S_XCC}, 0
                  s_mov_b32 s{sB}, 0x10000
                  s_cselect_b32 s{sA}, 0x1010000, s{sB}
                  v_mov_b32 v{t0}, s{sA}
                  s_mov_b64 exec, 1
                  buffer_atomic_add v{t0}, off, {sr(S_DBG, 4)}, 0 offset:{D_INIT}
                  s_mov_b64 exec, -1""")
            e.vm.pop()
            e.label("L_cs_in")
        if r + 6 < 32:
            dma(r + 6)
        if r == 8:
            for op in STREAM[10:14]:
                wl_write(e, op, PARK[op])
            e.wait(lgkm=0)
        if r == cfg.get('r1', 16):
            e(f"buffer_load_dword v{PM + 1}, off, {sr(S_DBG, 4)}, 0 offset:{D_INIT} sc1")
        if r == cfg.get('r2', 23):
            e(f"""v_readfirstlane_b32 s{sNan}, v{PM + 1}
                  buffer_load_dword v{PM + 2}, v{PM + 3}, {W}, s{sFl} offen sc1""")
            e(f"""s_add_u32 m0, s{sLw}, {L_KX + 8192}
                  s_lshr_b32 m0, m0, 1
                  s_add_u32 m0, m0, {(L_KX + 8192) // 2}
                  s_lshl_b32 s{sB}, s{h}, 10
                  s_add_u32 s{sB}, s{sB}, {WS_M}
                  buffer_load_dwordx4 v{vL16}, {W}, s{sPbaseL} offen sc1 lds
                  buffer_load_dwordx4 v{vL16}, {W}, s{sPbaseL} offen offset:1024 sc1 lds
                  buffer_load_dwordx4 v{vL16}, {W}, s{sHl} offen sc1 lds
                  buffer_load_dwordx4 v{vL16}, {W}, s{sB} offen sc1 lds""")
        if r == cfg.get('r3', 30):
            e(f"""v_cmp_ne_u32 {sr(sFm, 2)}, 0, v{PM + 2}
                  s_and_b32 s{sOK}, s{sFm}, 3
                  s_cmp_eq_u32 s{sOK}, 3
                  s_cselect_b32 s{sOK}, 1, 0
                  s_and_b32 s{sA}, s{sNan}, 0xffffff
                  s_cmp_eq_u32 s{sA}, 0x200100
                  s_cselect_b32 s{sOK}, s{sOK}, 0""")
            kx_dma(e, L_KX)
            e(f"""s_add_u32 m0, m0, 8192
                  s_add_u32 s{sA}, s{sKV}, 8192
                  buffer_load_dwordx4 v{vL16}, {W}, s{sA} offen sc1 lds
                  buffer_load_dwordx4 v{vL16}, {W}, s{sA} offen offset:1024 sc1 lds""")
        if r == cfg.get('rt', 27):
            e.comment("the last exports are recognised by their data: fill their slots with a pattern no export holds")
            for j in range(4):
                e(f"v_mov_b32 v{VX + j}, {SENT1}")
            for sg in range(64 - NTAIL, 64):
                e(f"s_add_u32 s{sA}, s{sExp}, {sg * 4096}\n buffer_store_dwordx4 {vr(VX, 4)}, v{vL16}, {W}, s{sA} offen sc1")
        if r == 29:
            e(f"buffer_load_dword v{VX + 7}, v{PM + 3}, {W}, s{sFl} offen sc1")
        if r >= 26:
            for op in parked[2 * (r - 26):2 * (r - 26) + 2]:
                wl_write(e, op, PARK[op])
        e(f"v_add_u32 v{t1}, {ring[r % 7]}, v{tC if m == 'o' else tB}")
        if m == 'o':
            for t in range(8):
                op = ('o', t, x)
                kind, base = RES[op] if op in RES else ('v', PARK[op])
                e(f"v_xor_b32 v{t3}, {t * 32}, v{t1}\n ds_read_b64_tr_b16 {vr(base + 2 * Q, 2, kind)}, v{t3}")
        else:
            for w in range(1, 4):
                e(f"s_cmp_eq_u32 s{S_WAVE}, {w}\n s_cbranch_scc1 L_cs{r}_{w}")
            st0 = e.state()
            for w in range(4):
                if w:
                    e.label(f"L_cs{r}_{w}"); e.set_state(st0)
                for ft in range(2):
                    op = (m, ft, 2 * ((x & 3) ^ w) + (x >> 2))
                    kind, base = RES[op] if op in RES else ('v', PARK[op])
                    for Q in range(4):
                        e(f"ds_read_b64_tr_b16 {vr(base + 2 * Q, 2, kind)}, v{t1} offset:{(32 * (Q & 1) + 8 * (Q >> 1)) * 256 + ft * 32}")
                if w < 3:
                    e(f"s_branch L_cs{r}_e")
            e.label(f"L_cs{r}_e")
    e.wait(lgkm=0)
    if cfg.get('sdiag'):
        e(f"""s_lshl_b32 s{sA}, s{S_ROLE}, 2
              s_add_u32 s{sA}, s{sA}, s{S_WAVE}
              s_lshl_b32 s{sA}, s{sA}, 6
              s_add_u32 s{sA}, s{sA}, 0x6400000""")
        for n, r in enumerate([94, 20, 22, 24, 26, 28, 36, 40, sOK]):
            e(f"v_mov_b32 v{PM}, s{r}\n buffer_store_dword v{PM}, off, {W}, s{sA} offset:{4 * n}")
    e(f"""s_cmp_lg_u32 s{sOK}, 0
          s_cbranch_scc1 L_cs_ready
          s_and_b32 s{sA}, s{sNan}, 0xffffff
          s_cmp_eq_u32 s{sA}, 0x200100
          s_cbranch_scc1 L_cs_p3
          L_cs_p1:
          buffer_load_dword v{t0}, off, {sr(S_DBG, 4)}, 0 offset:{D_INIT} sc1
          s_sub_u32 s{S_SPIN}, s{S_SPIN}, 1
          s_cbranch_scc1 L_end
          v_readfirstlane_b32 s{sNan}, v{t0}
          s_and_b32 s{sA}, s{sNan}, 0xffffff
          s_cmp_eq_u32 s{sA}, 0x200100
          s_cbranch_scc0 L_cs_p1
          L_cs_p2:
          buffer_load_dword v{VX + 7}, v{PM + 3}, {W}, s{sFl} offen sc1
          s_sub_u32 s{S_SPIN}, s{S_SPIN}, 1
          s_cbranch_scc1 L_end
          L_cs_p3:
          s_waitcnt vmcnt(0)
          v_cmp_ne_u32 {sr(sFm, 2)}, 0, v{VX + 7}
          s_and_b32 s{sA}, s{sFm}, 3
          s_cmp_eq_u32 s{sA}, 3
          s_cbranch_scc0 L_cs_p2""")
    kx_dma(e, L_KX)
    e.label("L_cs_ready")
    e(f"""v_mov_b32 v{PM + 1}, 0
          v_mov_b32 v{PM + 2}, 0
          s_mov_b32 s{sStep}, 0
          s_mov_b32 s{sTog}, 0""")
    e("\n".join(scalar_lines() + prep_a_lines()))
    for b in range(2):
        e(mload(b))
    e("\n".join(prep_b_lines()))
    dbg_max(e, cfg, 11, v=PM, mask=1)
    if cfg.get('holdto'):
        e(f"""L_hold:
              s_memrealtime s[92:93]
              s_waitcnt lgkmcnt(0)
              s_sub_u32 s92, s92, s94
              s_cmp_lt_u32 s92, {cfg['holdto']}
              s_cbranch_scc1 L_hold""")
    e("s_waitcnt vmcnt(0) lgkmcnt(0)\n s_barrier")
    if cfg.get('diag'):
        e.raw(f"  s_memtime {sr(sDbgT + 6, 2)}\n  s_memrealtime {sr(sDbgT + 10, 2)}\n  s_mov_b32 s{sDbgT + 5}, 0\n  s_mov_b32 s12, 0\n  s_mov_b32 s13, 0\n  s_mov_b32 s14, 0\n  s_mov_b32 s15, 0\n  s_waitcnt lgkmcnt(0)")
    e(f"""s_lshr_b32 s{sA}, s{sNan}, 24
          s_mov_b32 s{sNan}, 0
          s_cmp_lg_u32 s{sA}, 0
          s_cbranch_scc1 L_step_s""")
    e("s_branch L_step_s" if cfg.get('force_slow') else "s_branch L_step_f")


def chain_loop(e, cfg, sfx, st):
    acc = {('q', 0): ACC, ('q', 1): ACC + 4, ('k', 0): ACC + 8, ('k', 1): ACC + 12, ('v', 0): ACC + 16, ('v', 1): ACC + 20}
    loc = dict(RES)
    for o in range(10):
        loc[STREAM[o]] = ('v', R1[o])
    for o in range(6):
        loc[STREAM[10 + o]] = ('v', WO_SB[o])
    diag = cfg.get('diag')

    def stamp(n):
        tr = cfg.get('trace')
        if tr and n in tr:
            e.raw(f"  s_memtime {sr(TRS[tr.index(n)], 2)}")

    def trace_out(where, TR):
        if cfg.get('trace') and cfg.get('tpos', 'mid') == where:
            e(f"""s_memtime s[32:33]
                  s_memrealtime s[34:35]
                  s_lshl_b32 s40, s{S_ROLE}, 2
                  s_add_u32 s40, s40, s{S_WAVE}
                  s_lshl_b32 s40, s40, 6
                  s_add_u32 s40, s40, s{sStep}
                  s_lshl_b32 s40, s40, 5
                  s_add_u32 s40, s40, 0x6200000
                  s_waitcnt lgkmcnt(0)""")
            for j in range(8):
                e(f"v_mov_b32 v{TR + j}, s{TRS[j]}")
            e(f"""s_mov_b64 exec, 1
                  buffer_store_dwordx4 {vr(TR, 4)}, off, {W}, s40
                  buffer_store_dwordx4 {vr(TR + 4, 4)}, off, {W}, s40 offset:16
                  s_mov_b64 exec, -1""")

    def P(m, ft, i):
        k, b = loc[(m, ft, i)]
        return f"v_smfmac_f32_16x16x64_bf16 {vr(acc[(m, ft)], 4)}, {vr(MA + 4 * i, 4)}, {vr(b, 8, k)}, v{vIdx}"

    def post(a, dst):
        return [f"v_add_f32 v{a}, v{a}, v{a + 1}", f"v_add_f32 v{a + 2}, v{a + 2}, v{a + 3}",
                f"v_cvt_pk_bf16_f32 v{dst}, v{a}, v{a + 2}"]

    def xread(kb):
        return [f"ds_read_b64_tr_b16 {vr(X + 4 * kb, 2)}, v{vTr} offset:{kb * 256}",
                f"ds_read_b64_tr_b16 {vr(X + 4 * kb + 2, 2)}, v{vTr} offset:{kb * 256 + 64}"]

    kx_dst = [KXR, SPARE, KXR + 4, SPARE + 4, KXR + 8, KXR, KXR + 12, KXR + 4]

    def kxread(n):
        return f"ds_read_b128 {vr(kx_dst[n], 4)}, v{vKXr} offset:{(n >> 1) * 2048 + (n & 1) * 256}"

    Sx = [ACC, ACC + 4]
    Sm, Px = ACC + 8, ACC + 12

    def smx(n):
        kb, t = n >> 1, n & 1
        c = '0' if kb == 0 else vr(Sx[t], 4)
        return f"v_mfma_f32_16x16x32_bf16 {vr(Sx[t], 4)}, {vr(kx_dst[n], 4)}, {vr(X + 4 * kb, 4)}, {c}"

    def smm(kb):
        c = '0' if kb == 0 else vr(Sm, 4)
        return f"v_mfma_f32_16x16x32_bf16 {vr(Sm, 4)}, {vr(X + 4 * kb, 4)}, {vr(X + 4 * kb, 4)}, {c}"

    ad = cfg.get('ad', 0)
    ldH = lambda k: (lambda: e.loose(f"buffer_load_dword v{HD + k}, v{HA}, {W}, s{sHl} offen sc1"))
    ldV = [f"buffer_load_dwordx4 {vr(VX, 4)}, v{vKXr}, {W}, s{sVx} offen sc1",
           f"buffer_load_dwordx4 {vr(VX + 4, 4)}, v{vKXr}, {W}, s{sVx} offen offset:256 sc1"]
    ldK = [f"buffer_load_dwordx4 v{vL16}, {W}, s{sKV} offen sc1 lds",
           f"buffer_load_dwordx4 v{vL16}, {W}, s{sKV} offen offset:1024 sc1 lds"]
    touch = f"buffer_load_dword v{PM + 3}, {W}, s{sVt} offen sc1 lds"
    export = f"buffer_store_dwordx4 {vr(EX, 4)}, v{vL16}, {W}, s{sExp} offen sc1"
    progress = f"s_mov_b64 exec, 1\n buffer_store_dword v{TMP}, off, {W}, s{sFch} sc1\n s_mov_b64 exec, -1"
    ldF = f"buffer_load_dword v{TMP + 3}, v{TMP + 3}, {W}, s{sFl} offen sc1"
    if cfg.get('noexp'):
        export = progress = "s_nop 0"
    rf = sum([wl_lines(STREAM[o], R1[o]) for o in range(8, 10)], [])
    wo = sum([wl_lines(STREAM[10 + o], WO_SB[o]) for o in range(6)], [])
    q0p, q1p, k0p, k1p = post(ACC, ACC + 1), post(ACC + 4, ACC + 5), post(ACC + 8, EX), post(ACC + 12, EX + 1)
    v0p, v1p = post(ACC + 16, EX + 2), post(ACC + 20, EX + 3)
    m0, m1 = TMP, TMP + 1
    C0 = PM
    zero = [f"v_mov_b64 {vr(MA + j, 2)}, 0" for j in range(0, 32, 2)]
    st_ = lambda n: (lambda: stamp(n))
    mx = lambda d, a, b, c_: f"v_max3_f32 v{d}, v{a}, v{b}, v{c_}"

    def check(blocks):
        r = [MA + 4 * b + j for b in blocks for j in range(4)]
        out = [f"v_max3_u32 v{C0}, v{r[0]}, v{r[1]}, v{r[2]}"]
        k = 3
        while k + 1 < len(r):
            out.append(f"v_max3_u32 v{C0}, v{C0}, v{r[k]}, v{r[k + 1]}"); k += 2
        out.append(f"v_max_u32 v{C0}, v{C0}, v{r[k]}")
        out.append(f"v_cmp_eq_u32 vcc, -1, v{C0}")
        return out

    def mread(i):
        return f"ds_read_b128 {vr(MA + 4 * i, 4)}, v{TMP + (i >> 1)} offset:{(i & 1) * 4096}"

    e.slot_no = 0
    e.slot_hook = lambda n: stamp(100 + n)
    e.forget()
    e.raw(".p2align 8\n" + "  s_nop 0\n" * cfg.get('ph', 8))
    e.label(f"L_step_{sfx}")
    e("s_waitcnt vmcnt(2)")
    e.label(f"L_chkE_{sfx}")
    xe = 0
    ba, bb, bc = cfg.get('ba', 0), cfg.get('bb', 1), cfg.get('bc', 1)
    xo = cfg.get('xo', 0)
    lastsp = cfg.get('lastsp', 1)
    spec = 0
    ce_ = check((0,))
    specb = []
    if spec:
        e(f"ds_write_b128 v{vMw}, {vr(MA, 4)}")
    else:
        e("\n".join(ce_))
        e(f"""ds_write_b128 v{vMw}, {vr(MA, 4)}
              s_cbranch_vccnz L_retE_{sfx}""")
    stamp(0)
    cl_ = check((1,))
    z = lambda: zero.pop(0)
    lw = lambda n: (lambda: e.wait(lgkm=n))
    seq = [
        (P('q', 0, 0), [lambda: e.loose(mload(1))] if not spec else ce_ + [f"s_cbranch_vccnz L_retE_{sfx}", lambda: e.loose(mload(1))]),
        (P('q', 1, 0), [ldV[0]]),
        (P('k', 0, 0), [ldV[1]] if ba else [ldV[1], e.barrier, mread(2), mread(4)]),
        (P('k', 1, 0), ["s_waitcnt vmcnt(3)", cl_[0]] if ba else [mread(6), "s_waitcnt vmcnt(3)", cl_[0]]),
        (P('v', 0, 0), [e.barrier, cl_[1]] if ba == 1 else [cl_[1]]),
        (P('v', 1, 0), [cl_[2], f"ds_write_b128 v{vMw}, {vr(MA + 4, 4)} offset:4096", f"s_cbranch_vccnz L_retL_{sfx}", f"L_okL_{sfx}:"]),
        (P('q', 0, 1), [st_(1)] + ([mread(2), mread(4)] if ba == 1 else [lw(1), "s_barrier"] if ba == 2 else [])),
        (P('q', 1, 1), [mread(6)] if ba == 1 else [mread(2), mread(4)] if ba == 2 else []),
        (P('k', 0, 1), [mread(6), rf[0]] if ba == 2 else [rf[0]]),
        (P('k', 1, 1), [rf[1]] + ([] if ba else [lw(3)])),
        (P('q', 0, 2), [rf[2]]),
        (P('q', 1, 2), [e.lds_writes_done]),
        (P('k', 0, 2), [e.barrier] if bb else [e.barrier, ldK[0], mread(3)]),
        (P('k', 1, 2), [ldK[0], mread(3)] if bb else [mread(5)]),
        (P('q', 0, 4), [mread(5)] if bb else [mread(7), f"v_lshrrev_b32 v{TMP + 3}, 2, v{vL16}"]),
        (P('q', 1, 4), [mread(7), f"v_lshrrev_b32 v{TMP + 3}, 2, v{vL16}"] if bb else [ldK[1], f"s_movk_i32 m0, {L_DUMMY}"]),
        (P('k', 0, 4), [ldK[1], f"s_movk_i32 m0, {L_DUMMY}"] if bb else [rf[3]]),
        (P('k', 1, 4), [rf[3]] if bb else [touch]),
        (P('q', 0, 6), [kxread(0)] + ([touch] if bb else [])),
        (P('q', 1, 6), [kxread(2), ldF]),
        (P('k', 0, 6), ([] if xo else [export]) + [lambda: trace_out('mid', SPARE)]),
        (P('k', 1, 6), [kxread(4), st_(2), lw(3)]),
        (P('q', 0, 3), [kxread(6)]),
        (P('q', 0, 5), [kxread(1)]),
        (P('q', 0, 7), [kxread(3)]),
        (P('q', 1, 3), [lambda: e.prewait(f"v_mov_b32 v{VX + 7}, v{VX + 7}"), "s_nop 0"]),
        (P('q', 1, 5), ["s_nop 1"] if xo else [progress]),
        (P('q', 1, 7), ["s_nop 0", q0p[0]]),
        (P('k', 0, 3), ["s_nop 0", q0p[1]]),
        (P('k', 0, 5), ["s_nop 0", q0p[2]]),
        (P('k', 0, 7), [q1p[0]]),
        (P('k', 1, 3), ["s_nop 0", q1p[1]]),
        (P('k', 1, 5), ["s_nop 0", q1p[2]]),
        (P('k', 1, 7), [f"ds_write2_b32 v{vTw}, v{ACC + 1}, v{ACC + 5} offset0:0 offset1:32", st_(3), k0p[0]]),
        (P('v', 0, 1), ["s_nop 0", k0p[1]]),
        (P('v', 1, 1), ["s_nop 0", k0p[2], k1p[0]]),
        (P('v', 0, 2), [k1p[1], k1p[2]]),
        (P('v', 1, 2), [f"ds_write2_b32 v{vTw}, v{EX}, v{EX + 1} offset0:1 offset1:33", z()]),
        (P('v', 0, 3), [z()]),
        (P('v', 1, 3), [z()]),
        (P('v', 0, 4), [z()]),
        (P('v', 1, 4), [e.lds_writes_done, z()]),
        (P('v', 0, 5), [e.barrier] + ([] if bc else xread(0))),
        (P('v', 1, 5), xread(1 - bc) + [z()]),
        (P('v', 0, 6), xread(2 - bc) + [z()]),
        (P('v', 0, 7), xread(3 - bc) + [z()]),
        (P('v', 1, 6), (xread(3) if bc else []) + ([] if lastsp else [f"s_cmp_eq_u32 s{sStep}, 63"]) + [z()]),
        (P('v', 1, 7), [st_(4), lw(6 if bc else 4), z()]),
        (smx(0), [z(), z()]),
        (smx(2), [kxread(5), lw(1)]),
        (smx(4), [kxread(7), v0p[0]]),
        (smx(6), [v0p[1], v0p[2]]),
        (smm(0), [v1p[0], v1p[1]]),
        (smm(1), [v1p[2], z()]),
        (smm(2), ([] if lastsp else ["s_cbranch_scc1 L_final"]) + [mx(m0, Sx[0], Sx[0] + 1, Sx[0] + 2)]),
        (smm(3), [z(), z()]),
        (smx(1), [lw(0), z()]),
        (smx(3), [f"v_exp_f32 v{m1}, v{vIdx}"] if cfg.get('warm', 1) == 1 else []),
        (smx(5), [mx(m0, m0, Sx[0] + 3, Sm + 2), f"v_max_f32 v{m0}, v{m0}, v{Sm + 3}"]),
        (smx(7), [wo[0], f"s_add_u32 s{sStep}, s{sStep}, 1", wo[1], f"s_xor_b32 s{sTog}, s{sTog}, 0x2000", wo[2],
                  f"s_mov_b32 s{sG}, s{sG2}", wo[3], f"v_xor_b32 v{vKXr}, 0x2000, v{vKXr}"]),
    ]
    e.slots(seq)
    assert not zero
    e(f"""{mx(m0, m0, Sx[1], Sx[1] + 1)}
          {mx(m0, m0, Sx[1] + 2, Sx[1] + 3)}
          v_mov_b32 v{m1}, v{m0}
          v_permlane32_swap_b32 v{m0}, v{m1}
          v_max_f32 v{m0}, v{m0}, v{m1}
          v_mov_b32 v{m1}, v{m0}
          v_permlane16_swap_b32 v{m0}, v{m1}
          v_max_f32 v{m0}, v{m0}, v{m1}
          v_mul_f32 v{m0}, s{sC}, v{m0}""")
    for j in (0, 2, 4, 6, 10):
        e(f"v_pk_fma_f32 {vr(ACC + j, 2)}, {vr(ACC + j, 2)}, {sr(sC, 2)}, {vr(m0, 2)} op_sel_hi:[1,0,0] neg_lo:[0,0,1] neg_hi:[0,0,1]")
    for j in (0, 1, 2, 3, 4, 5, 6, 7, 10, 11):
        e(f"v_exp_f32 v{ACC + j}, v{ACC + j}")
    stamp(5)
    for j in range(4):
        e(f"v_cvt_pk_bf16_f32 v{Px + j}, v{ACC + 2 * j}, v{ACC + 2 * j + 1}")
    e(f"""v_cvt_pk_bf16_f32 v{PM}, v{Sm + 2}, v{Sm + 3}
          v_cvt_pk_bf16_f32 v{PM + 3}, v{Sm + 2}, v{Sm + 3}
          v_pk_add_f32 {vr(ACC, 2)}, {vr(ACC, 2)}, {vr(ACC + 2, 2)}
          v_pk_add_f32 {vr(ACC + 4, 2)}, {vr(ACC + 4, 2)}, {vr(ACC + 6, 2)}
          v_pk_add_f32 {vr(ACC, 2)}, {vr(ACC, 2)}, {vr(Sm + 2, 2)}
          v_pk_add_f32 {vr(m0, 2)}, {vr(ACC, 2)}, {vr(ACC + 4, 2)}""")
    O = SPARE
    e.slots([
        (f"v_mfma_f32_16x16x32_bf16 {vr(O, 4)}, {vr(VX, 4)}, {vr(Px, 4)}, 0",
         [f"v_add_f32 v{m0}, v{m0}, v{m1}", f"v_mov_b32 v{m1}, v{m0}"]),
        (f"v_mfma_f32_16x16x32_bf16 {vr(O + 4, 4)}, {vr(VX + 4, 4)}, {vr(Px, 4)}, 0",
         [f"v_permlane32_swap_b32 v{m0}, v{m1}"]),
        (f"v_mfma_f32_16x16x16_bf16 {vr(O, 4)}, {vr(EX + 2, 2)}, {vr(PM, 2)}, {vr(O, 4)}",
         [f"v_add_f32 v{m0}, v{m0}, v{m1}", f"v_mov_b32 v{m1}, v{m0}"]),
        (f"v_mfma_f32_16x16x16_bf16 {vr(O + 4, 4)}, {vr(EX + 2, 2)}, {vr(PM + 2, 2)}, {vr(O + 4, 4)}",
         [f"v_permlane16_swap_b32 v{m0}, v{m1}", f"v_add_f32 v{m0}, v{m0}, v{m1}", f"v_rcp_f32 v{m0}, v{m0}",
          ] + ([f"v_mov_b32 v{HV}, s{sStep}", f"v_lshlrev_b32 v{HS}, 3, v{vL16}"] if ad else [])),
    ])
    for j in range(0, 8, 2):
        e(f"v_pk_mul_f32 {vr(O + j, 2)}, {vr(O + j, 2)}, {vr(m0, 2)} op_sel_hi:[1,0]")
    OA = ACC + 16
    for j in range(4):
        e(f"v_cvt_pk_bf16_f32 v{O + j}, v{O + 2 * j}, v{O + 2 * j + 1}")
    e(f"ds_write_b128 v{vOw}, {vr(O, 4)}")
    if xo:
        e(export)
        e(f"v_mov_b32 v{TMP + 2}, s{sProg}")
        e(progress.replace(f"v{TMP},", f"v{TMP + 2},"))
    if ad:
        e.comment("progress marker for 8 members per wave (timing hint only)")
        e(f"""s_mov_b64 exec, 0xff
              buffer_store_dword v{HV}, v{HS}, {W}, s{sHs} offen {st}
              s_mov_b64 exec, -1
              v_bfe_u32 v{HA}, v{vL16}, 2, 7
              v_mov_b64 {vr(HD, 2)}, 0
              v_mov_b64 {vr(HD + 2, 2)}, 0""")
        stamp(15)
    e.barrier()
    e(f"""ds_read_b128 {vr(OA, 4)}, v{vL16} offset:{L_OB}
          ds_read_b128 {vr(OA + 4, 4)}, v{vL16} offset:{L_OB + 1024}""")
    hs = cfg.get('hs', (-1, 0, 3, 6))
    if ad and hs[0] == -1:
        ldH(0)()
    stamp(6)
    OUT = SPARE

    def pstore(c):
        return f"buffer_store_dwordx4 {vr(OUT + 4 * c, 4)}, v{vPst}, {W}, s{sPbaseS} offen offset:{c * 2048} {st}"

    tag = lambda j: f"v_and_or_b32 v{OUT + j}, v{OUT + j}, -2, s{sG}"
    seq = []
    for t in range(8):
        for kb in range(2):
            k, b = loc[('o', t, kb)]
            if t >= 2:
                p = post(MA + 4 * (t - 2), OUT + t - 2)
                fl = p[0:1] if kb == 0 else p[1:3]
                if kb == 0 and t % 2 == 1:
                    fl = fl + [tag(t - 3)]
            else:
                fl = ["s_nop 0"]
            n = 2 * t + kb
            if 1 <= n <= 8:
                fl = [wo[3 + n]] + fl
            if ad and n in hs:
                fl = [ldH(hs.index(n))] + [x for x in fl if x != "s_nop 0"]
            if kb == 0 and t == 6:
                fl = [pstore(0)] + fl
            seq.append((f"v_smfmac_f32_16x16x64_bf16 {vr(MA + 4 * t, 4)}, {vr(OA + 4 * kb, 4)}, {vr(b, 8, k)}, v{vIdx}", fl))
    if cfg.get('wd', 0):
        seq[1], seq[2] = (seq[2][0], seq[1][1]), (seq[1][0], seq[2][1] + ["s_nop 0"])
        seq[3] = (seq[3][0], seq[3][1] + ["s_nop 0"])
    e.slots(seq)
    PL, D, SEL, PL2 = MA + 8, MA + 16, MA + 20, MA + 24
    e("\n".join(post(MA + 24, OUT + 6) + [tag(6)]))
    e("\n".join(post(MA + 28, OUT + 7)))
    e(pstore(1))
    stamp(7)
    trace_out('late', MA)
    e(f"s_bitcmp1_b32 s{S_WAVE}, 0\n s_cbranch_scc1 L_x1_{sfx}")
    e.slot_hook = None
    st0 = e.state()
    ldP = [f"buffer_load_dwordx4 {vr(PL, 4)}, v{vL16}, {W}, s{sPbaseL} offen sc1",
           f"buffer_load_dwordx4 {vr(PL + 4, 4)}, v{vL16}, {W}, s{sPbaseL} offen offset:1024 sc1"]
    tP, dM, eM, gM = cfg.get('tP', (260, 380)), cfg.get('dM', (270, 150)), cfg.get('eM', 200), cfg.get('gM', (110, 110))
    for w in range(2):
        if w:
            e.raw(".p2align 6")
            e.label(f"L_x{w}_{sfx}"); e.set_state(st0)
        clk = [[12, 48][w]]
        pa = prep_a_lines()
        valu = [f"v_cndmask_b32 v{SEL + j}, 0, v{vSelC}, {sr(sSel + 2 * j, 2)}" for j in range(4)] + scalar_lines() + [l for l in pa if not l.startswith('ds_')]
        if diag:
            valu += [f"s_cmp_eq_u32 s{sStep}, 10", f"s_cselect_b32 s{sDbgT + 6}, s36, s{sDbgT + 6}"] + [f"s_cselect_b32 s{k}, 0, s{k}" for k in range(12, 16)]
        reads = [l for l in pa if l.startswith('ds_')]
        late_v = [l for l in pa if not l.startswith('ds_')]
        pool = [l for l in valu if l not in late_v]
        pool = [l for l in pool if not l.startswith('v_')] + [l for l in pool if l.startswith('v_')]
        merged = []
        for l in pool:
            if l.startswith('s_cselect'):
                merged[-1] += '\n' + l
            else:
                merged.append(l)
        pool = merged
        def until(t):
            while clk[0] + 4 <= t and pool:
                l = pool.pop(0); e(l); clk[0] += 4 * (1 + l.count('\n'))
            if clk[0] + 4 <= t:
                delay(e, t - clk[0]); clk[0] = t

        if ad:
            ev = [f"v_cmp_gt_u32 {sr(sHm + 2 * k, 2)}, s{sStep}, v{HD + k}" for k in range(4)] + [f"s_mov_b32 s{sCnt}, 0"]
            for k in range(4):
                ev += [f"s_cmp_lg_u64 {sr(sHm + 2 * k, 2)}, 0", f"s_addc_u32 s{sCnt}, s{sCnt}, 0"]
            if diag:
                ev += [f"s_add_u32 s15, s15, s{sCnt}"]
            ev += [f"s_mul_i32 s{sCnt}, s{sCnt}, {cfg.get('hm', 2)}"]
            until(tP[w] - 4 * len(ev) - 12)
            e("\n".join(ev))
            e(f"L_ad{w}_{sfx}:\n s_sub_u32 s{sCnt}, s{sCnt}, 1\n s_cbranch_scc0 L_ad{w}_{sfx}")
        else:
            until(tP[w])
        e.loose(ldP[0]); e.loose(ldP[1]); stamp(11)
        ldP2 = [x.replace(vr(PL, 4), vr(PL2, 4)).replace(vr(PL + 4, 4), vr(PL2 + 4, 4)) for x in ldP]
        need = scalar_lines()[:7]
        late_v = [l for l in pool if not l.startswith('v_') and l not in need and 's36' not in l] + late_v
        pool = [l for l in pool if l not in late_v]
        rest = reads + pool
        nsp = cfg.get('nsp', (10, 10))[w]
        e("\n".join(rest[:nsp]))
        if nsp is not None:
            delay(e, cfg.get('dP2', (60, 40))[w])
            e.loose(ldP2[0]); e.loose(ldP2[1])
        else:
            nsp = len(rest)
        spare = cfg.get('nsp', (10, 10))[w] is not None
        e("\n".join(rest[nsp:]))
        e(f"s_mov_b32 s{sNan}, 0")
        if diag:
            e.raw("  s_memtime s[36:37]")
        ny = 2 if spare else 0
        e(f"""s_waitcnt vmcnt({ny + 1})
              L_redP{w}_{sfx}:
              v_mfma_f32_16x16x32_bf16 {vr(D, 4)}, {vr(PL, 4)}, {vr(SEL, 4)}, 0
              s_waitcnt vmcnt({ny})
              v_mfma_f32_16x16x32_bf16 {vr(D, 4)}, {vr(PL + 4, 4)}, {vr(SEL, 4)}, {vr(D, 4)}
              v_xor_b32 v{C0}, s{sG}, v{PL}
              v_bitop3_b32 v{C0}, v{C0}, v{PL + 2}, s{sG} bitop3:0xf6
              v_bitop3_b32 v{C0}, v{C0}, v{PL + 4}, s{sG} bitop3:0xf6
              v_bitop3_b32 v{C0}, v{C0}, v{PL + 6}, s{sG} bitop3:0xf6
              v_and_b32 v{C0}, 1, v{C0}
              v_cmp_ne_u32 vcc, 0, v{C0}
              v_cmp_ne_u32 {sr(sFm, 2)}, 0, v{TMP + 3}
              s_cbranch_vccnz L_reP{w}_{sfx}
              v_permlane32_swap_b32 v{D}, v{D + 2}
              v_permlane32_swap_b32 v{D + 1}, v{D + 3}
              v_add_f32 v{D}, v{D}, v{D + 2}
              v_add_f32 v{D + 1}, v{D + 1}, v{D + 3}
              v_permlane16_swap_b32 v{D}, v{D + 1}
              v_add_f32 v{D}, v{D}, v{D + 1}
              v_mov_b32_dpp v{D + 1}, v{D} quad_perm:[2,3,0,1] row_mask:0xf bank_mask:0xf
              v_cvt_pk_bf16_f32 v{D}, v{D}, v{D + 1}
              v_min_u32 v{D}, -2, v{D}
              v_cndmask_b32 v{VX + 4}, v{D}, -1, {sr(sArm, 2)}
              buffer_store_dword v{VX + 4}, v{vMst}, {W}, s{sMn2} offen {st}""")
        stamp(8)
        pb = ["s_waitcnt vmcnt(1)"] + prep_b_lines()
        d = dM[w]
        if d >= 100:
            e("\n".join(pb)); d -= 100; pb = []
        delay(e, d)
        e.loose(mload(0)); stamp(12)
        d = gM[w]
        if pb:
            pb[0] = "s_waitcnt vmcnt(2)"
            e("\n".join(pb)); d -= 100
        gl = cfg.get('gL', 60)
        d -= gl
        k = max(0, min(len(late_v), d // 4))
        e("\n".join(late_v[:k])); d -= 4 * k
        delay(e, d)
        e.loose(mload(0))
        k2 = min(len(late_v), k + gl // 4)
        e("\n".join(late_v[k:k2])); delay(e, gl - 4 * (k2 - k)); k = k2
        e.loose(mload(1))
        e("\n".join(late_v[k:]))
        if lastsp:
            e(f"s_cmp_eq_u32 s{sStep}, 63\n s_cbranch_scc1 L_last_{sfx}")
        e(f"""s_bitcmp1_b64 {sr(sFm, 2)}, s{sOK2}
              s_waitcnt lgkmcnt(0)
              s_cbranch_scc1 L_step_{sfx}
              s_branch L_flag_{sfx}""")
        e.forget()
        e(f"L_reP{w}_{sfx}:")
        if spare:
            e("s_waitcnt vmcnt(0)")
            for j in range(0, 8, 2):
                e(f"v_mov_b64 {vr(PL + j, 2)}, {vr(PL2 + j, 2)}")
            e.loose(ldP2[0]); e.loose(ldP2[1])
        else:
            e.loose(ldP[0]); e.loose(ldP[1])
            e("s_waitcnt vmcnt(1)")
        e(f"""{'s_add_u32 s12, s12, 1' if diag else ''}
              s_sub_u32 s{S_SPIN}, s{S_SPIN}, 1
              s_cbranch_scc0 L_redP{w}_{sfx}
              s_branch L_end""")
    e.forget()
    e(f"""L_flag_{sfx}:
          v_lshrrev_b32 v{C0}, 2, v{vL16}
          buffer_load_dword v{C0}, v{C0}, {W}, s{sFl} offen sc1
          s_sub_u32 s{S_SPIN}, s{S_SPIN}, 1
          s_cbranch_scc1 L_end
          v_cmp_ne_u32 {sr(sFm, 2)}, 0, v{C0}
          s_bitcmp1_b64 {sr(sFm, 2)}, s{sOK2}
          s_cbranch_scc1 L_step_{sfx}
          s_branch L_flag_{sfx}""")
    e.forget()
    e(f"L_retE_{sfx}:")
    e.loose(mload(0)); e.loose(mload(1))
    if spec:
        e(f"s_nop 3\n v_mov_b64 {vr(ACC, 2)}, 0\n v_mov_b64 {vr(ACC + 2, 2)}, 0")
    e(f"""{'s_add_u32 s13, s13, 1' if diag else ''}
          s_sub_u32 s{S_SPIN}, s{S_SPIN}, 1
          s_waitcnt vmcnt(3)
          s_cbranch_scc0 L_chkE_{sfx}
          s_branch L_end""")
    if xe:
        e(f"""L_retL_{sfx}:
              {'s_add_u32 s14, s14, 1' if diag else ''}
              s_sub_u32 s{S_SPIN}, s{S_SPIN}, 1
              s_cbranch_scc1 L_end
              s_bitcmp1_b32 s{sNan}, 0
              s_bitset1_b32 s{sNan}, 0
              s_waitcnt vmcnt(4)
              s_cbranch_scc0 L_retL1_{sfx}""")
        e.loose(mload(1))
        e(f"s_waitcnt vmcnt(0)\n L_retL1_{sfx}:")
    else:
        e(f"L_retL_{sfx}:")
        e.loose(mload(1))
        e(f"""{'s_add_u32 s14, s14, 1' if diag else ''}
              s_sub_u32 s{S_SPIN}, s{S_SPIN}, 1
              s_cbranch_scc1 L_end
              s_bitcmp1_b32 s{sNan}, 0
              s_bitset1_b32 s{sNan}, 0
              s_waitcnt vmcnt(3)
              s_cbranch_scc0 L_retL1_{sfx}
              s_waitcnt vmcnt(1)
              L_retL1_{sfx}:""")
    e("\n".join(cl_))
    e(f"""ds_write_b128 v{vMw}, {vr(MA + 4, 4)} offset:4096
          s_cbranch_vccz L_okL_{sfx}
          s_branch L_retL_{sfx}""")
    if not lastsp:
        return
    e.forget()
    e(f"L_lret_{sfx}:")
    e.loose(mload(0)); e.loose(mload(1))
    e(f"""s_sub_u32 s{S_SPIN}, s{S_SPIN}, 1
          s_cbranch_scc1 L_end
          L_last_{sfx}:
          s_waitcnt vmcnt(0) lgkmcnt(0)""")
    e("\n".join(check((0, 1))))
    e(f"""ds_write_b128 v{vMw}, {vr(MA, 4)}
          ds_write_b128 v{vMw}, {vr(MA + 4, 4)} offset:4096
          s_cbranch_vccnz L_lret_{sfx}""")
    own = [(m, ft, i) for i in (0, 1) for m in 'kv' for ft in range(2)]
    seq = [(P(*op), []) for op in own]
    if not xo:
        seq[0][1].append(export)
    seq[3][1].extend([progress, e.barrier, mread(2), mread(3)])
    for k in range(4):
        seq[4 + k][1].append(mread(4 + k))
    seq += [(P(m, ft, i), []) for i in range(2, 6) for m in 'kv' for ft in range(2)]
    seq += [(P(m, ft, i), []) for m in 'kv' for ft in range(2) for i in (6, 7)]
    e.slots(seq)
    e("\n".join(k0p + k1p + v0p + v1p))
    e("s_branch L_final")


def chain_final(e, cfg):
    e.forget()
    e("L_final:")
    if cfg.get('holdend'):
        e(f"""L_hold2:
              s_memrealtime s[92:93]
              s_waitcnt lgkmcnt(0)
              s_sub_u32 s92, s92, s94
              s_cmp_lt_u32 s92, {cfg['holdend']}
              s_cbranch_scc1 L_hold2""")
    e(f"""s_add_u32 s{sExp}, s{sExp}, {0 if cfg.get('xo', 0) else 4096}
          buffer_store_dwordx4 {vr(EX, 4)}, v{vL16}, {W}, s{sExp} offen sc1
          s_waitcnt lgkmcnt(0)""")
    if cfg.get('diag'):
        e(f"""s_memrealtime {sr(sDbgT + 12, 2)}
              s_lshl_b32 s{sA}, s{S_ROLE}, 2
              s_add_u32 s{sA}, s{sA}, s{S_WAVE}
              s_lshl_b32 s{sA}, s{sA}, 6
              s_add_u32 s{sA}, s{sA}, 0x6000000
              s_waitcnt lgkmcnt(0)
              s_sub_u32 s{sDbgT + 8}, s36, s{sDbgT + 6}""")
        for n, r in enumerate([sDbgT + 8, sDbgT + 5, S_SPIN, sDbgT + 14, sDbgT + 10, sDbgT + 12, 12, 13, 14, 15]):
            e(f"v_mov_b32 v{TMP + 2}, s{r}\n buffer_store_dword v{TMP + 2}, off, {W}, s{sA} offset:{4 * n}")
    dbg_max(e, cfg, 12, v=TMP + 2)
    e("s_waitcnt vmcnt(0)\n s_branch L_end")


def chain(e, cfg):
    CFG.clear(); CFG.update(cfg)
    chain_startup(e, cfg)
    chain_loop(e, cfg, 'f', '')
    chain_loop(e, cfg, 's', 'sc1')
    chain_final(e, cfg)
```

```python
from common import *

W = sr(S_WS, 4)
DBG = sr(S_DBG, 4)
sWid, sA, sB, sC_, sD, sE, sF, sG, sH, sI, sJ, sK = range(50, 62)
S_W0, S_W1, S_W2, S_X = 64, 68, 72, 76
PS = [4]
NEG = 0xf149f2ca


def wait_init(e, tag, tmp, nap=16):
    e(f"""L_wi_{tag}:
          s_sleep {nap}
          buffer_load_dword v{tmp}, off, {DBG}, 0 offset:{D_INIT} sc1
          s_sub_u32 s{S_SPIN}, s{S_SPIN}, 1
          s_cbranch_scc1 L_end
          v_readfirstlane_b32 s{sA}, v{tmp}
          s_and_b32 s{sA}, s{sA}, 0xffff
          s_cmp_eq_u32 s{sA}, 256
          s_cbranch_scc0 L_wi_{tag}""")


def count_in(e, tmp):
    e(f"""v_mov_b32 v{tmp}, 1
          s_mov_b64 exec, 1
          buffer_atomic_add v{tmp}, off, {DBG}, 0 offset:{D_INIT}
          s_mov_b64 exec, -1""")


def srd_sel(e, s, pa, pb, na, nb):
    e(f"""s_cselect_b32 s{s}, s{pa}, s{pb}
          s_cselect_b32 s{s+1}, s{pa+1}, s{pb+1}
          s_mov_b32 s{s+2}, {nb}
          s_cselect_b32 s{s+2}, {na}, s{s+2}
          s_mov_b32 s{s+3}, 0x20000""")


def lane_consts(e, lane, l16, sig):
    e(f"""v_and_b32 v{lane}, 63, v0
          v_lshlrev_b32 v{l16}, 4, v{lane}
          v_and_b32 v{sig}, 39, v{lane}
          v_bfe_u32 v{lane + 1}, v{lane}, 3, 1
          v_lshl_or_b32 v{sig}, v{lane + 1}, 4, v{sig}
          v_bfe_u32 v{lane + 1}, v{lane}, 4, 1
          v_lshl_or_b32 v{sig}, v{lane + 1}, 3, v{sig}
          v_lshlrev_b32 v{sig}, 4, v{sig}""")


XROW = 1040
XBUF = 32 * XROW
RING0 = 33792


def proj(e, cfg):
    lane, t1, vL16, vSig, vSrc, vTr, vXr, vT, vIn = 1, 2, 3, 4, 5, 6, 7, 8, 9
    XF, ACC, OUT = 16, 32, 80
    sHH, sSeg, sStride, sCol, sUnit, sFlag, sXb, sPrev = sC_, sD, sE, sF, sG, sH, sI, sJ
    e(f"""s_mul_i32 s{sHH}, s{sWid}, 171
          s_lshr_b32 s{sHH}, s{sHH}, 10
          s_mul_i32 s{sA}, s{sHH}, 6
          s_sub_u32 s{sSeg}, s{sWid}, s{sA}
          s_cmp_lt_u32 s{sHH}, 32""")
    srd_sel(e, S_W0, P_WQ, P_AWQKV, 0x400000, 0x180000)
    srd_sel(e, S_W1, P_WK, P_AWQKV, 0x400000, 0x180000)
    srd_sel(e, S_W2, P_WV, P_AWQKV, 0x400000, 0x180000)
    srd_sel(e, S_X, P_BX, P_AX, 0x200000, 0x200000)
    e(f"""s_mov_b32 s{sStride}, 3072
          s_cselect_b32 s{sStride}, 8192, s{sStride}
          s_cselect_b32 s{sK}, 0, 1024
          s_and_b32 s{sCol}, s{sHH}, 31
          s_lshl_b32 s{sCol}, s{sCol}, 8""")
    lane_consts(e, lane, vL16, vSig)
    e(f"""v_lshrrev_b32 v{t1}, 4, v{lane}
          v_mul_lo_u32 v{vSrc}, v{t1}, s{sStride}
          v_lshlrev_b32 v{t1}, 2, v{t1}
          v_xor_b32 v{t1}, v{t1}, v{lane}
          v_and_b32 v{t1}, 15, v{t1}
          v_lshl_add_u32 v{vSrc}, v{t1}, 4, v{vSrc}""")
    e(f"""v_lshrrev_b32 v{t1}, 5, v{lane}
          v_lshlrev_b32 v{vTr}, 11, v{t1}
          v_bfe_u32 v{t1}, v{lane}, 2, 2
          v_lshl_add_u32 v{vTr}, v{t1}, 8, v{vTr}
          v_bfe_u32 v{t1}, v{lane}, 4, 1
          v_lshl_add_u32 v{vTr}, v{t1}, 5, v{vTr}
          v_and_b32 v{t1}, 3, v{lane}
          v_lshl_add_u32 v{vTr}, v{t1}, 3, v{vTr}
          v_bfe_u32 v{t1}, v{lane}, 2, 2
          v_xor_b32 v{t1}, s{S_WAVE}, v{t1}
          v_lshl_add_u32 v{vTr}, v{t1}, 6, v{vTr}""")
    e(f"""v_and_b32 v{t1}, 31, v{lane}
          v_mul_u32_u24 v{vXr}, {XROW}, v{t1}
          v_lshrrev_b32 v{t1}, 5, v{lane}
          v_lshl_add_u32 v{vXr}, v{t1}, 4, v{vXr}""")
    e(f"""s_lshl_b32 s{sA}, s{sHH}, 6
          s_add_u32 s{sA}, s{sA}, s{sSeg}
          s_mul_i32 s{sUnit}, s{sA}, {UNIT}
          s_lshl_b32 s{sB}, s{S_WAVE}, 11
          s_add_u32 s{sUnit}, s{sUnit}, s{sB}
          s_lshl_b32 s{sFlag}, s{sA}, 2
          s_add_u32 s{sFlag}, s{sFlag}, {F_QKV}
          s_mov_b32 s{sXb}, 0""")

    def xdma(seg_s, buf_s):
        e(f"""s_lshl_b32 s{sA}, s{seg_s}, 15
              s_lshl_b32 s{sB}, s{S_WAVE}, 13
              s_add_u32 s{sA}, s{sA}, s{sB}
              s_mul_i32 s{sB}, s{S_WAVE}, {8 * XROW}
              s_add_u32 s{sB}, s{sB}, s{buf_s}""")
        return [f"""s_add_u32 m0, s{sB}, {j * XROW}
                  s_add_u32 s3, s{sA}, {j * 1024}
                  buffer_load_dwordx4 v{vL16}, {sr(S_X, 4)}, s3 offen lds""" for j in range(8)]

    if cfg.get('wpf', 0):
        e.comment("the six workers of a head each request a sixth of its weights at once (one word per line)")
        e(f"""s_lshr_b32 s62, s{sSeg}, 1
              s_cmp_eq_u32 s62, 1
              s_cselect_b32 s{S_T0}, s{S_W1}, s{S_W0}
              s_cselect_b32 s{S_T0 + 1}, s{S_W1 + 1}, s{S_W0 + 1}
              s_cmp_eq_u32 s62, 2
              s_cselect_b32 s{S_T0}, s{S_W2}, s{S_T0}
              s_cselect_b32 s{S_T0 + 1}, s{S_W2 + 1}, s{S_T0 + 1}
              s_mov_b32 s{S_T0 + 2}, s{S_W0 + 2}
              s_mov_b32 s{S_T0 + 3}, 0x20000
              s_mul_i32 s62, s62, s{sK}
              s_add_u32 s62, s62, s{sCol}
              s_and_b32 s63, s{sSeg}, 1
              s_lshl_b32 s63, s63, 2
              s_add_u32 s63, s63, s{S_WAVE}
              s_lshl_b32 s63, s63, 6
              s_mul_i32 s63, s63, s{sStride}
              s_add_u32 s62, s62, s63
              v_mul_lo_u32 v{vT}, v{lane}, s{sStride}""")
        e.loose(f"buffer_load_dword v124, v{vT}, {sr(S_T0, 4)}, s62 offen")
        e.loose(f"buffer_load_dword v124, v{vT}, {sr(S_T0, 4)}, s62 offen offset:128")
    for l in xdma(sSeg, sXb):
        e(l)
    sRow = sPrev
    e(f"""s_lshl_b32 s{sA}, s{S_WAVE}, 4
          s_mul_i32 s{sRow}, s{sA}, s{sStride}
          s_add_u32 s{sRow}, s{sRow}, s{sCol}
          s_lshl_b32 s62, s{sStride}, 2
          s_lshl_b32 s63, s{S_WAVE}, 12""")
    order = cfg.get('po', [0, 1, 2])
    srds = [S_W0, S_W1, S_W2]
    dst = [('a', 0), ('a', 128), ('v', 128)]
    marks = {}

    def dma(r):
        m, b = order[r // 8], r % 8
        e(f"""s_mul_i32 s{sA}, s{sStride}, {64 * b}
              s_add_u32 s{sA}, s{sA}, s{sRow}
              s_mul_i32 s{sB}, s{sK}, {m}
              s_add_u32 s{sA}, s{sA}, s{sB}""")
        for j in range(4):
            e(f"""s_add_u32 m0, s63, {RING0 + (r % 7) * 16384 + j * 1024}
                  buffer_load_dwordx4 v{vSrc}, {sr(srds[m], 4)}, s{sA} offen lds""")
            if j < 3:
                e(f"s_add_u32 s{sA}, s{sA}, s62")
        marks[r] = e.vm[-1]

    for r in range(6):
        dma(r)
    confirm_barrier(e, 'pj')
    for r in range(24):
        m, b = order[r // 8], r % 8
        e.wait(vm=len(e.vm) - 1 - e.vm.index(marks[r]), lgkm=0)
        e("s_barrier")
        if r == 18:
            e(f"buffer_load_dword v{vT + 1}, off, {DBG}, 0 offset:{D_INIT} sc1")
        if r + 6 < 24:
            dma(r + 6)
        e(f"v_add_u32 v{vT + 2}, {RING0 + (r % 7) * 16384}, v{vTr}")
        k, base = dst[m]
        for ksl in range(4):
            for z in range(2):
                e(f"ds_read_b64_tr_b16 {vr(base + 4 * (4 * b + ksl) + 2 * z, 2, k)}, v{vT + 2} offset:{(16 * ksl + 4 * z) * 256}")
    e.wait(vm=0, lgkm=0)
    dbg_max(e, cfg, 14, v=vT + 3)
    e(f"""v_readfirstlane_b32 s{sA}, v{vT + 1}
          s_and_b32 s{sA}, s{sA}, 0xffff
          s_cmp_eq_u32 s{sA}, 256
          s_cbranch_scc1 L_pj_go""")
    wait_init(e, 'pj', vT)
    e.label("L_pj_go")
    if cfg.get('pjhold'):
        e(f"""L_hold3:
              s_memrealtime s[92:93]
              s_waitcnt lgkmcnt(0)
              s_sub_u32 s92, s92, s94
              s_cmp_lt_u32 s92, {cfg['pjhold']}
              s_cbranch_scc1 L_hold3""")
    if cfg.get('diag'):
        e("s_memrealtime s[86:87]\n s_waitcnt lgkmcnt(0)")
    e(f"s_mov_b32 s{sPrev}, 0\n v_mov_b32 v{vIn}, 1")
    e.forget()
    e.label("L_pj_loop")
    e(f"""s_waitcnt vmcnt(6)
          s_barrier
          v_add_u32 v{vT}, s{sXb}, v{vXr}
          s_add_u32 s62, s{sSeg}, 6
          s_min_u32 s62, s62, 63
          s_sub_u32 s63, {XBUF}, s{sXb}""")
    nxt = xdma(62, 63)
    for ks in range(3):
        e(f"ds_read_b128 {vr(XF + 4 * ks, 4)}, v{vT} offset:{32 * ks}")
    for ks in range(32):
        x = vr(XF + 4 * (ks % 4), 4)
        c = [('0' if ks == 0 else vr(ACC + 16 * m, 16)) for m in range(3)]
        e(f"v_mfma_f32_32x32x16_bf16 {vr(ACC, 16)}, {vr(4 * ks, 4, 'a')}, {x}, {c[0]}")
        if ks + 3 < 32:
            e(f"ds_read_b128 {vr(XF + 4 * ((ks + 3) % 4), 4)}, v{vT} offset:{32 * (ks + 3)}")
        e(f"v_mfma_f32_32x32x16_bf16 {vr(ACC + 16, 16)}, {vr(128 + 4 * ks, 4, 'a')}, {x}, {c[1]}")
        if ks < 8:
            e(nxt[ks])
        if ks == 20:
            e.comment("the previous segment's stores of every wave are complete behind this barrier: raise its flag")
            e(f"""s_waitcnt vmcnt(8)
                  s_barrier
                  s_cmp_eq_u32 s{sPrev}, 0
                  s_cbranch_scc1 L_pj_nf
                  s_mov_b64 exec, 1
                  buffer_store_dword v{vIn}, off, {W}, s{sPrev} sc1
                  s_mov_b64 exec, -1
                  L_pj_nf:""")
            e.vm.pop()
        e(f"v_mfma_f32_32x32x16_bf16 {vr(ACC + 32, 16)}, {x}, {vr(128 + 4 * ks, 4)}, {c[2]}")
    for m in range(3):
        for j in range(8):
            e(f"v_cvt_pk_bf16_f32 v{OUT + 8 * m + j}, v{ACC + 16 * m + 2 * j}, v{ACC + 16 * m + 2 * j + 1}")
        a = vSig if m == 1 else vL16
        e(f"""s_add_u32 s{sA}, s{sUnit}, {8192 * m}
              buffer_store_dwordx4 {vr(OUT + 8 * m, 4)}, v{a}, {W}, s{sA} offen sc1
              buffer_store_dwordx4 {vr(OUT + 8 * m + 4, 4)}, v{a}, {W}, s{sA} offen offset:1024 sc1""")
    e(f"""s_cmp_eq_u32 s{S_WAVE}, 0
          s_cselect_b32 s{sPrev}, s{sFlag}, 0
          s_cmp_ge_u32 s{sSeg}, 6
          s_cbranch_scc1 L_pj_later
          s_waitcnt vmcnt(0)
          s_barrier
          s_cmp_eq_u32 s{sPrev}, 0
          s_cbranch_scc1 L_pj_later
          s_mov_b64 exec, 1
          buffer_store_dword v{vIn}, off, {W}, s{sPrev} sc1
          s_mov_b64 exec, -1
          L_pj_later:
          s_add_u32 s{sFlag}, s{sFlag}, 24
          s_add_u32 s{sUnit}, s{sUnit}, {6 * UNIT}
          s_sub_u32 s{sXb}, {XBUF}, s{sXb}
          s_add_u32 s{sSeg}, s{sSeg}, 6
          s_cmp_lt_u32 s{sSeg}, 64
          s_cbranch_scc1 L_pj_loop
          s_waitcnt vmcnt(0)
          s_barrier
          s_cmp_eq_u32 s{sPrev}, 0
          s_cbranch_scc1 L_phase2
          s_mov_b64 exec, 1
          buffer_store_dword v{vIn}, off, {W}, s{sPrev} sc1
          s_mov_b64 exec, -1""")


def poll_ge(e, tag, tmp, voff, soff, cmpv, nl):
    off = f"v{voff}" if voff is not None else "off"
    e(f"""L_pg_{tag}:
          buffer_load_dword v{tmp}, {off}, {W}, {soff} {'offen' if voff is not None else ''} sc1
          s_sub_u32 s{S_SPIN}, s{S_SPIN}, 1
          s_cbranch_scc1 L_end
          v_cmp_gt_u32 vcc, {cmpv}, v{tmp}
          s_and_b32 vcc_lo, vcc_lo, {(1 << nl) - 1}
          s_cbranch_scc0 L_pk_{tag}
          s_sleep {PS[0]}
          s_branch L_pg_{tag}
          L_pk_{tag}:""")


def nap_until(e, tag, tmp, soff, need, st, unit):
    e(f"""L_nap_{tag}:
          buffer_load_dword v{tmp}, off, {W}, {soff} sc1
          s_sub_u32 s{S_SPIN}, s{S_SPIN}, 1
          s_cbranch_scc1 L_end
          v_readfirstlane_b32 s{st}, v{tmp}
          s_sub_u32 s{st}, {need}, s{st}
          s_cbranch_scc1 L_napx_{tag}
          s_cmp_eq_u32 s{st}, 0
          s_cbranch_scc1 L_napx_{tag}
          s_min_u32 s{st}, s{st}, 8
          L_napl_{tag}:
          s_sleep {unit}
          s_sub_u32 s{st}, s{st}, 1
          s_cmp_lg_u32 s{st}, 0
          s_cbranch_scc1 L_napl_{tag}
          s_branch L_nap_{tag}
          L_napx_{tag}:""")


def tstamp(e, cfg, n):
    if cfg.get('tdiag'):
        e(f"s_memrealtime {sr(20 + 2 * n, 2)}\n s_waitcnt lgkmcnt(0)")


def tdump(e, cfg):
    if cfg.get('tdiag'):
        e(f"""s_lshl_b32 s{sA}, s{S_ROLE}, 2
              s_add_u32 s{sA}, s{sA}, s{S_WAVE}
              s_lshl_b32 s{sA}, s{sA}, 5
              s_add_u32 s{sA}, s{sA}, 0x6500000""")
        for n in range(6):
            e(f"v_mov_b32 v2, s{20 + 2 * n}\n buffer_store_dword v2, off, {W}, s{sA} offset:{4 * n}")


def softmax_tail(e, vals, m0, m1, sC):
    v = list(vals)
    e(f"v_max3_f32 v{m0}, v{v[0]}, v{v[1]}, v{v[2]}")
    k = 3
    while k + 1 < len(v):
        e(f"v_max3_f32 v{m0}, v{m0}, v{v[k]}, v{v[k + 1]}"); k += 2
    if k < len(v):
        e(f"v_max_f32 v{m0}, v{m0}, v{v[k]}")
    e(f"""v_mov_b32 v{m1}, v{m0}
          v_permlane32_swap_b32 v{m0}, v{m1}
          v_max_f32 v{m0}, v{m0}, v{m1}
          v_mul_f32 v{m0}, s{sC}, v{m0}""")
    for r in v:
        e(f"v_fma_f32 v{r}, v{r}, s{sC}, -v{m0}")
    for r in v:
        e(f"v_exp_f32 v{r}, v{r}")
    e(f"v_add_f32 v{m0}, v{v[0]}, v{v[1]}\n v_add_f32 v{m1}, v{v[2]}, v{v[3]}")
    for k in range(4, len(v), 2):
        e(f"v_add_f32 v{m0}, v{m0}, v{v[k]}\n v_add_f32 v{m1}, v{m1}, v{v[k + 1]}")
    e(f"""v_add_f32 v{m0}, v{m0}, v{m1}
          v_mov_b32 v{m1}, v{m0}
          v_permlane32_swap_b32 v{m0}, v{m1}
          v_add_f32 v{m0}, v{m0}, v{m1}
          v_rcp_f32 v{m0}, v{m0}""")


def attn_b(e, cfg):
    lane, t1, vL16, vSig, vVm, vKm, vT, m0, m1, vOne, vF, vLw = range(1, 13)
    BIAS, Q, K, V, S, D0, D1, KM, VM, PX, PMm, O = 16, 32, 64, 96, 128, 144, 160, 176, 192, 208, 216, 128
    sSeg, sUnit, sExp, sOut, sFq, sFc, sFa, sCc, sLds = sC_, sD, sE, sF, sG, sH, sI, sJ, sK
    h = sWid
    lane_consts(e, lane, vL16, vSig)
    e(f"""v_and_b32 v{t1}, 31, v{lane}
          v_lshrrev_b32 v{vT}, 5, v{lane}
          v_lshlrev_b32 v{vT}, 2, v{vT}
          v_sub_u32 v{t1}, v{t1}, v{vT}
          v_mov_b32 v{vT}, {NEG}""")
    for r in range(16):
        e(f"v_cmp_gt_i32 vcc, {8 * (r >> 2) + (r & 3)}, v{t1}\n v_cndmask_b32 v{BIAS + r}, 0, v{vT}, vcc")
    e(f"""v_lshrrev_b32 v{t1}, 5, v{lane}
          v_lshlrev_b32 v{vVm}, 8, v{t1}
          v_and_b32 v{t1}, 15, v{lane}
          v_lshl_add_u32 v{vVm}, v{t1}, 4, v{vVm}
          v_bfe_u32 v{t1}, v{lane}, 4, 1
          v_lshl_add_u32 v{vVm}, v{t1}, 2, v{vVm}
          v_add_u32 v{vVm}, 8, v{vVm}""")
    e(f"""s_lshl_b32 s{sLds}, s{S_WAVE}, 12
          v_and_b32 v{t1}, 3, v{lane}
          v_lshlrev_b32 v{vKm}, 8, v{t1}
          v_lshrrev_b32 v{t1}, 5, v{lane}
          v_lshl_add_u32 v{vKm}, v{t1}, 6, v{vKm}
          v_bfe_u32 v{t1}, v{lane}, 2, 2
          v_lshl_add_u32 v{vKm}, v{t1}, 4, v{vKm}
          v_add_u32 v{vKm}, s{sLds}, v{vKm}
          v_add_u32 v{vVm}, s{sLds}, v{vVm}
          v_add_u32 v{vLw}, s{sLds}, v{vL16}
          v_and_b32 v{vF}, 3, v{lane}
          v_lshlrev_b32 v{vF}, 2, v{vF}
          v_mov_b32 v{vOne}, 1""")
    for wc in range(4):
        e(f"v_mov_b64 {vr(VM + 4 * wc + 2, 2)}, 0")
    e(f"v_mov_b64 {vr(PMm + 2, 2)}, 0")
    e(f"""s_mov_b32 s{sSeg}, s{S_WAVE}
          s_lshl_b32 s{sA}, s{h}, 6
          s_add_u32 s{sA}, s{sA}, s{sSeg}
          s_mul_i32 s{sUnit}, s{sA}, {UNIT}
          s_lshl_b32 s{sExp}, s{sA}, 12
          s_add_u32 s{sExp}, s{sExp}, {WS_EXP}
          s_lshl_b32 s{sFq}, s{sA}, 2
          s_add_u32 s{sFq}, s{sFq}, {F_QKV}
          s_lshl_b32 s{sFc}, s{h}, 7
          s_add_u32 s{sFc}, s{sFc}, {F_CH}
          s_lshl_b32 s{sA}, s{sSeg}, 5
          s_add_u32 s{sA}, s{sA}, s{h}
          s_lshl_b32 s{sOut}, s{sA}, 13
          s_add_u32 s{sOut}, s{sOut}, {WS_OF}
          s_lshr_b32 s{sFa}, s{sA}, 3
          s_lshl_b32 s{sFa}, s{sFa}, 7
          s_and_b32 s{sA}, s{h}, 7
          s_lshl_b32 s{sA}, s{sA}, 2
          s_add_u32 s{sFa}, s{sFa}, s{sA}
          s_add_u32 s{sFa}, s{sFa}, {F_AT}
          s_mov_b32 s{sCc}, 0x3e0293ee""")
    e.wait(vm=0, lgkm=0)
    e.label("L_ab_loop")
    poll_ge(e, 'abq', vT, None, f"s{sFq}", 1, 1)
    e(f"s_add_u32 s{sA}, s{sUnit}, 4096")
    for base, a, off in ((K, vSig, 8192), (Q, vL16, 0), (V, vL16, 16384)):
        e(f"s_add_u32 s{sA}, s{sUnit}, {off}\n s_add_u32 s{sB}, s{sUnit}, {off + 4096}")
        for j in range(8):
            e(f"buffer_load_dwordx4 {vr(base + 4 * j, 4)}, v{a}, {W}, s{sA if j < 4 else sB} offen offset:{1024 * (j & 3)} sc1")
    for j in range(8):
        c = vr(BIAS, 16) if j == 0 else vr(S, 16)
        e(f"v_mfma_f32_32x32x16_bf16 {vr(S, 16)}, {vr(K + 4 * j, 4)}, {vr(Q + 4 * j, 4)}, {c}")
    e(f"""s_add_u32 s{sA}, s{sSeg}, 1
          s_sub_u32 s62, s{sSeg}, 1
          s_min_u32 s62, s62, 61
          s_cmp_ge_u32 s{sSeg}, {64 - NTAIL}
          s_cselect_b32 s{sA}, s62, s{sA}
          s_sub_u32 s62, s{sA}, 1""")
    e.wait(vm=0)
    if cfg.get('nap', 1):
        nap_until(e, 'ab', vT, f"s{sFc}", "s62", sB, cfg.get('napu', 24))
    poll_ge(e, 'abc', vT, vF, f"s{sFc}", f"s{sA}", 4)
    e(f"s_mov_b32 s62, {SENT1}\n s_branch L_ab_ex1\n L_ab_ex:\n s_sleep {cfg.get('exs', 0)}\n L_ab_ex1:")
    for j in range(4):
        e(f"buffer_load_dwordx4 {vr(D0 + 4 * j, 4)}, v{vL16}, {W}, s{sExp} offen offset:{1024 * j} sc1")
    e(f"s_sub_u32 s{S_SPIN}, s{S_SPIN}, 1\n s_cbranch_scc1 L_end")
    for j in range(16):
        e(f"v_xor_b32 v{D1 + j}, s62, v{D0 + j}")
    for j in range(4):
        e(f"ds_write_b128 v{vLw}, {vr(D0 + 4 * j, 4)} offset:{1024 * j}")
    e(f"v_min3_u32 v{vT}, v{D1}, v{D1 + 1}, v{D1 + 2}")
    for j in range(3, 15, 2):
        e(f"v_min3_u32 v{vT}, v{vT}, v{D1 + j}, v{D1 + j + 1}")
    e(f"""v_min_u32 v{vT}, v{vT}, v{D1 + 15}
          v_cmp_eq_u32 vcc, 0, v{vT}
          s_waitcnt lgkmcnt(0)
          s_cbranch_vccnz L_ab_ex""")
    tstamp(e, cfg, 0)
    for wc in range(4):
        e(f"ds_read2st64_b32 {vr(VM + 4 * wc, 2)}, v{vVm} offset0:{4 * wc} offset1:{4 * wc + 2}")
    for wc in range(4):
        for z in range(2):
            e(f"ds_read_b64_tr_b16 {vr(KM + 4 * wc + 2 * z, 2)}, v{vKm} offset:{1024 * wc + 128 * z}")
    for wc in range(4):
        for ab, D in ((0, D0), (1, D1)):
            c = '0' if wc == 0 else vr(D, 16)
            e(f"v_mfma_f32_32x32x16_bf16 {vr(D, 16)}, {vr(KM + 4 * wc, 4)}, {vr(Q + 4 * (2 * wc + ab), 4)}, {c}")
    sm = [D0, D0 + 1, D0 + 4, D0 + 5]
    for r in sm:
        e(f"v_add_f32 v{r}, v{r}, v{r - D0 + D1 + 2}")
    tstamp(e, cfg, 1)
    softmax_tail(e, [S + r for r in range(16)] + sm, m0, m1, sCc)
    tstamp(e, cfg, 2)
    for j in range(8):
        e(f"v_cvt_pk_bf16_f32 v{PX + j}, v{S + 2 * j}, v{S + 2 * j + 1}")
    e(f"v_cvt_pk_bf16_f32 v{PMm}, v{D0}, v{D0 + 1}\n v_cvt_pk_bf16_f32 v{PMm + 1}, v{D0 + 4}, v{D0 + 5}")
    for wc in range(4):
        o = vr(O + 16 * wc, 16)
        e(f"""v_mfma_f32_32x32x16_bf16 {o}, {vr(V + 8 * wc, 4)}, {vr(PX, 4)}, 0
              v_mfma_f32_32x32x16_bf16 {o}, {vr(V + 8 * wc + 4, 4)}, {vr(PX + 4, 4)}, {o}
              v_mfma_f32_32x32x16_bf16 {o}, {vr(VM + 4 * wc, 4)}, {vr(PMm, 4)}, {o}""")
    e(f"s_add_u32 s{sB}, s{sOut}, 4096")
    for wc in range(4):
        o = O + 16 * wc
        for j in range(16):
            e(f"v_mul_f32 v{o + j}, v{o + j}, v{m0}")
        for j in range(8):
            e(f"v_cvt_pk_bf16_f32 v{Q + 8 * wc + j}, v{o + 2 * j}, v{o + 2 * j + 1}")
        for ab in range(2):
            j = 2 * wc + ab
            e(f"buffer_store_dwordx4 {vr(Q + 4 * j, 4)}, v{vL16}, {W}, s{sOut if j < 4 else sB} offen offset:{1024 * (j & 3)} sc1")
    tstamp(e, cfg, 3)
    e("s_waitcnt vmcnt(0)")
    tstamp(e, cfg, 4)
    e(f"""s_mov_b64 exec, 1
          buffer_store_dword v{vOne}, off, {W}, s{sFa} sc1
          s_mov_b64 exec, -1
          s_add_u32 s{sUnit}, s{sUnit}, {4 * UNIT}
          s_add_u32 s{sExp}, s{sExp}, {4 * 4096}
          s_add_u32 s{sFq}, s{sFq}, 16
          s_add_u32 s{sOut}, s{sOut}, {4 * 32 * 8192}
          s_add_u32 s{sFa}, s{sFa}, {4 * 512}
          s_add_u32 s{sSeg}, s{sSeg}, 4
          s_cmp_lt_u32 s{sSeg}, 64
          s_cbranch_scc1 L_ab_loop""")
    tdump(e, cfg)
    e("s_branch L_end")


def out_b(e, cfg):
    lane, t1, vL16, vSrc, vTr, vO, vSt, vT, vF, vRw, vRr = range(1, 12)
    ACC, RD = 16, 32
    sU, sSl, sRow, sLds, sOf, sFa, sTog = sC_, sD, sE, sF, sG, sH, sI
    sHi = 72
    srd(e, S_W0, P_WO, 0x400000)
    srd(e, S_W1, P_OUT, 0x400000)
    e(f"""s_sub_u32 s{sU}, s{sWid}, 64
          s_and_b32 s{sSl}, s{sU}, 15
          s_lshr_b32 s{sU}, s{sU}, 4
          s_cmp_ge_u32 s{sU}, {cfg.get('ng', 10)}
          s_cbranch_scc1 L_end
          v_and_b32 v{lane}, 63, v0
          v_lshlrev_b32 v{vL16}, 4, v{lane}
          v_and_b32 v{vF}, 7, v{lane}
          v_lshlrev_b32 v{vF}, 2, v{vF}""")
    e(f"""v_lshrrev_b32 v{t1}, 2, v{lane}
          v_lshlrev_b32 v{vSrc}, 10, v{t1}
          v_and_b32 v{t1}, 3, v{lane}
          v_lshl_add_u32 v{vSrc}, v{t1}, 4, v{vSrc}
          s_lshl_b32 s{sRow}, s{S_WAVE}, 20
          s_lshl_b32 s{sA}, s{sSl}, 6
          s_add_u32 s{sRow}, s{sRow}, s{sA}
          s_lshl_b32 s{sLds}, s{S_WAVE}, 15""")
    e(f"""v_lshlrev_b32 v{vTr}, 3, v{t1}
          v_lshrrev_b32 v{t1}, 5, v{lane}
          v_lshl_add_u32 v{vTr}, v{t1}, 10, v{vTr}
          v_bfe_u32 v{t1}, v{lane}, 2, 3
          v_lshl_add_u32 v{vTr}, v{t1}, 6, v{vTr}
          v_add_u32 v{vTr}, s{sLds}, v{vTr}""")
    e(f"""v_lshrrev_b32 v{t1}, 4, v{lane}
          v_lshlrev_b32 v{vO}, 9, v{t1}
          v_lshlrev_b32 v{vSt}, 3, v{t1}
          v_and_b32 v{t1}, 7, v{lane}
          v_lshl_add_u32 v{vO}, v{t1}, 4, v{vO}
          v_lshl_add_u32 v{vSt}, v{t1}, 11, v{vSt}
          v_and_b32 v{t1}, 8, v{lane}
          v_cmp_ne_u32 {sr(sHi, 2)}, 0, v{t1}
          v_lshl_add_u32 v{vO}, v{t1}, 8, v{vO}
          v_lshl_add_u32 v{vSt}, v{t1}, 27, v{vSt}
          s_lshl_b32 s{sA}, s{S_WAVE}, 11
          s_add_u32 s{sA}, s{sA}, 131072
          v_add_u32 v{vRw}, s{sA}, v{vL16}
          s_lshl_b32 s{sA}, s{S_WAVE}, 10
          s_add_u32 s{sA}, s{sA}, 131072
          v_add_u32 v{vRr}, s{sA}, v{vL16}""")
    e.wait(vm=0, lgkm=0)
    e("s_barrier")
    marks = {}

    def dma(ks):
        for j in range(2):
            e(f"""s_add_u32 m0, s{sLds}, {(ks % 16) * 2048 + j * 1024}
                  s_add_u32 s{sA}, s{sRow}, {(32 * ks + 16 * j) * 1024}
                  buffer_load_dwordx4 v{vSrc}, {sr(S_W0, 4)}, s{sA} offen lds""")
        marks[ks] = e.vm[-1]

    for ks in range(15):
        dma(ks)
    for ks in range(32):
        e.wait(vm=len(e.vm) - 1 - e.vm.index(marks[ks]), lgkm=0)
        if ks + 15 < 32:
            dma(ks + 15)
        for dt in range(2):
            for z in range(2):
                e(f"ds_read_b64_tr_b16 {vr(8 * ks + 4 * dt + 2 * z, 2, 'a')}, v{vTr} offset:{(ks % 16) * 2048 + z * 512 + dt * 32}")
    e.wait(vm=0, lgkm=0)
    e(f"s_mov_b32 s{sTog}, 0")
    e.label("L_ob_loop")
    e(f"""s_lshr_b32 s{sA}, s{sU}, 2
          s_lshl_b32 s{sA}, s{sA}, 5
          s_lshl_b32 s{sB}, s{S_WAVE}, 3
          s_add_u32 s{sA}, s{sA}, s{sB}
          s_lshl_b32 s{sFa}, s{sA}, 4
          s_add_u32 s{sFa}, s{sFa}, {F_AT}
          s_lshl_b32 s{sOf}, s{sA}, 13
          s_and_b32 s{sB}, s{sU}, 3
          s_lshl_b32 s{sB}, s{sB}, 7
          s_add_u32 s{sOf}, s{sOf}, s{sB}
          s_add_u32 s{sOf}, s{sOf}, {WS_OF}""")
    if cfg.get('nap', 1):
        e(f"""s_lshr_b32 s62, s{sU}, 2
              s_add_u32 s62, s62, 1
              s_min_u32 s62, s62, {64 - NTAIL}
              s_and_b32 s63, s{sWid}, 31
              s_lshl_b32 s63, s63, 7
              s_add_u32 s63, s63, {F_CH}""")
        nap_until(e, 'ob', vT, "s63", "s62", sB, cfg.get('napu', 24))
    poll_ge(e, 'ob', vT, vF, f"s{sFa}", 1, 8)
    tstamp(e, cfg, 0)
    for j in range(16):
        e(f"s_add_u32 s{sA}, s{sOf}, {j * 4096}\n buffer_load_dwordx4 {vr(128 + 4 * j, 4)}, v{vO}, {W}, s{sA} offen sc1")
    for ks in range(32):
        for dt in range(2):
            a = ACC + 8 * (ks & 1) + 4 * dt
            c = '0' if ks < 2 else vr(a, 4)
            e(f"v_mfma_f32_16x16x32_bf16 {vr(a, 4)}, {vr(8 * ks + 4 * dt, 4, 'a')}, {vr(128 + 4 * (ks >> 1), 4)}, {c}")
    for r in range(8):
        e(f"v_cndmask_b32 v{ACC + r}, v{ACC + r}, v{ACC + 8 + r}, {sr(sHi, 2)}")
    tstamp(e, cfg, 1)
    e(f"""v_add_u32 v{vT}, s{sTog}, v{vRw}
          ds_write_b128 v{vT}, {vr(ACC, 4)}
          ds_write_b128 v{vT}, {vr(ACC + 4, 4)} offset:1024""")
    e.barrier()
    e(f"""s_cmp_ge_u32 s{S_WAVE}, 2
          s_cbranch_scc1 L_ob_next
          v_add_u32 v{vT}, s{sTog}, v{vRr}""")
    for p in range(4):
        e(f"ds_read_b128 {vr(RD + 4 * p, 4)}, v{vT} offset:{2048 * p}")
    for r in range(4):
        e(f"""v_add_f32 v{RD + r}, v{RD + r}, v{RD + 4 + r}
              v_add_f32 v{RD + 8 + r}, v{RD + 8 + r}, v{RD + 12 + r}
              v_add_f32 v{RD + r}, v{RD + r}, v{RD + 8 + r}""")
    for r in range(4):
        e(f"v_add_f32_dpp v{RD + r}, v{RD + r}, v{RD + r} row_ror:8 row_mask:0xf bank_mask:0xf")
    e(f"""v_cvt_pk_bf16_f32 v{RD}, v{RD}, v{RD + 1}
          v_cvt_pk_bf16_f32 v{RD + 1}, v{RD + 2}, v{RD + 3}
          s_lshl_b32 s{sA}, s{sU}, 14
          s_lshl_b32 s{sB}, s{sSl}, 6
          s_add_u32 s{sA}, s{sA}, s{sB}
          s_lshl_b32 s{sB}, s{S_WAVE}, 5
          s_add_u32 s{sA}, s{sA}, s{sB}
          buffer_store_dwordx2 {vr(RD, 2)}, v{vSt}, {sr(S_W1, 4)}, s{sA} offen offset:1024 {cfg.get('ost', '')}
          L_ob_next:
          s_xor_b32 s{sTog}, s{sTog}, 8192
          s_add_u32 s{sU}, s{sU}, {cfg.get('ng', 10)}
          s_cmp_lt_u32 s{sU}, 256
          s_cbranch_scc1 L_ob_loop""")
    tstamp(e, cfg, 2)
    tdump(e, cfg)
    e("s_branch L_end")


def part_a(e, cfg):
    lane, t1, vL16, vSig, vSrc, vTr, vT, m0, m1, vSt, vW, vNeg = range(1, 13)
    BC, BP, BPX = 16, 32, 48
    SC, SP, O, PX = 64, 80, 96, 112
    Q, KC, KP, VC, VP = 128, 160, 192, 224, 48
    sSeg, sCh, sUnit, sPrevU, sFq, sCc, sRow = sC_, sD, sE, sF, sG, sH, sI
    srd(e, S_W0, P_AWO, 0x80000)
    srd(e, S_W1, P_OUT, 0x400000)
    lane_consts(e, lane, vL16, vSig)
    e(f"""s_sub_u32 s{sSeg}, s{sWid}, 32
          s_and_b32 s{sCh}, s{sSeg}, 1
          s_lshr_b32 s{sSeg}, s{sSeg}, 1
          s_mov_b32 s{sCc}, 0x3eb8aa3b""")
    e(f"""v_and_b32 v{t1}, 31, v{lane}
          v_lshrrev_b32 v{vT}, 5, v{lane}
          v_lshlrev_b32 v{vT}, 2, v{vT}
          v_sub_u32 v{t1}, v{t1}, v{vT}
          v_mov_b32 v{vNeg}, {NEG}""")
    for base, add in ((BC, 0), (BP, 32)):
        for r in range(16):
            e(f"""v_add_u32 v{vT}, {add - 8 * (r >> 2) - (r & 3)}, v{t1}
                  v_and_b32 v{vT}, 0xfffffff1, v{vT}
                  v_cmp_ne_u32 vcc, 0, v{vT}
                  v_cndmask_b32 v{base + r}, 0, v{vNeg}, vcc""")
    e(f"""v_lshrrev_b32 v{t1}, 5, v{lane}
          v_lshlrev_b32 v{vSrc}, 10, v{t1}
          v_and_b32 v{t1}, 31, v{lane}
          v_lshl_add_u32 v{vSrc}, v{t1}, 4, v{vSrc}
          v_lshlrev_b32 v{vSt}, 11, v{t1}
          s_lshl_b32 s{sRow}, s{S_WAVE}, 13
          s_lshl_b32 s{sA}, s{sCh}, 9
          s_add_u32 s{sRow}, s{sRow}, s{sA}
          s_lshl_b32 s63, s{S_WAVE}, 12""")
    e(f"""v_lshrrev_b32 v{t1}, 5, v{lane}
          v_lshlrev_b32 v{vTr}, 11, v{t1}
          v_lshl_add_u32 v{vSt}, v{t1}, 3, v{vSt}
          v_bfe_u32 v{t1}, v{lane}, 2, 2
          v_lshl_add_u32 v{vTr}, v{t1}, 9, v{vTr}
          v_bfe_u32 v{t1}, v{lane}, 4, 1
          v_lshl_add_u32 v{vTr}, v{t1}, 5, v{vTr}
          v_and_b32 v{t1}, 3, v{lane}
          v_lshl_add_u32 v{vTr}, v{t1}, 3, v{vTr}
          s_lshl_b32 s{sA}, s{S_WAVE}, 7
          v_add_u32 v{vTr}, s{sA}, v{vTr}
          s_lshl_b32 s{sA}, s{S_WAVE}, 13
          v_add_u32 v{vW}, s{sA}, v{vL16}""")
    e.wait(vm=0, lgkm=0)
    e("s_barrier")
    marks = {}

    def dma(r):
        for j in range(4):
            e(f"""s_add_u32 m0, s63, {(r % 8) * 16384 + j * 1024}
                  s_add_u32 s{sA}, s{sRow}, {(32 * r + 2 * j) * 1024}
                  buffer_load_dwordx4 v{vSrc}, {sr(S_W0, 4)}, s{sA} offen lds""")
        marks[r] = e.vm[-1]

    for r in range(7):
        dma(r)
    for r in range(16):
        e.wait(vm=len(e.vm) - 1 - e.vm.index(marks[r]), lgkm=0)
        e("s_barrier")
        if r + 7 < 16:
            dma(r + 7)
        e(f"v_add_u32 v{vT}, {(r % 8) * 16384}, v{vTr}")
        for hl in range(2):
            for dt in range(2):
                for z in range(2):
                    e(f"ds_read_b64_tr_b16 {vr(8 * (2 * r + hl) + 4 * dt + 2 * z, 2, 'a')}, v{vT} offset:{(16 * hl + 8 * z) * 512 + dt * 64}")
    e.wait(vm=0, lgkm=0)
    e.label("L_pa_loop")
    e(f"""s_add_u32 s{sA}, s{S_WAVE}, 32
          s_lshl_b32 s{sA}, s{sA}, 6
          s_add_u32 s{sA}, s{sA}, s{sSeg}
          s_mul_i32 s{sUnit}, s{sA}, {UNIT}
          s_lshl_b32 s{sFq}, s{sA}, 2
          s_add_u32 s{sFq}, s{sFq}, {F_QKV}
          s_cmp_eq_u32 s{sSeg}, 0
          s_cselect_b32 s{sA}, 0, {UNIT}
          s_cselect_b32 s{sB}, 0, 4
          s_cselect_b64 vcc, -1, 0
          s_sub_u32 s{sPrevU}, s{sUnit}, s{sA}
          s_sub_u32 s62, s{sFq}, s{sB}""")
    for r in range(8, 16):
        e(f"v_cndmask_b32 v{BP + r - 8}, v{BP + r}, v{vNeg}, vcc")
    poll_ge(e, 'pa1', vT, None, f"s{sFq}", 1, 1)
    poll_ge(e, 'pa2', vT, None, "s62", 1, 1)
    for base, a, u, off in ((Q, vL16, sUnit, 0), (KC, vSig, sUnit, 8192), (KP, vSig, sPrevU, 8192), (VC, vL16, sUnit, 16384)):
        e(f"s_add_u32 s{sA}, s{u}, {off}\n s_add_u32 s{sB}, s{u}, {off + 4096}")
        for j in range(8):
            e(f"buffer_load_dwordx4 {vr(base + 4 * j, 4)}, v{a}, {W}, s{sA if j < 4 else sB} offen offset:{1024 * (j & 3)} sc1")
    e(f"s_add_u32 s{sA}, s{sPrevU}, {16384 + 1024}\n s_add_u32 s{sB}, s{sPrevU}, {16384 + 1024 + 4096}")
    for wc in range(4):
        e(f"buffer_load_dwordx4 {vr(VP + 4 * wc, 4)}, v{vL16}, {W}, s{sA if wc < 2 else sB} offen offset:{2048 * (wc & 1)} sc1")
    e("s_barrier")
    for j in range(8):
        wc, ab = j >> 1, j & 1
        e(f"""v_mfma_f32_32x32x16_bf16 {vr(SC, 16)}, {vr(KC + 4 * j, 4)}, {vr(Q + 4 * j, 4)}, {vr(BC, 16)}
              v_mfma_f32_32x32x16_bf16 {vr(SP, 16)}, {vr(KP + 4 * j, 4)}, {vr(Q + 4 * j, 4)}, {vr(BP - 8, 16)}""")
        softmax_tail(e, [SC + r for r in range(16)] + [SP + r for r in range(8, 16)], m0, m1, sCc)
        for k in range(8):
            e(f"v_cvt_pk_bf16_f32 v{PX + k}, v{SC + 2 * k}, v{SC + 2 * k + 1}")
        for k in range(4):
            e(f"v_cvt_pk_bf16_f32 v{PX + 8 + k}, v{SP + 8 + 2 * k}, v{SP + 8 + 2 * k + 1}")
        o = vr(O, 16)
        e(f"""v_mfma_f32_32x32x16_bf16 {o}, {vr(VC + 8 * wc, 4)}, {vr(PX, 4)}, 0
              v_mfma_f32_32x32x16_bf16 {o}, {vr(VC + 8 * wc + 4, 4)}, {vr(PX + 4, 4)}, {o}
              v_mfma_f32_32x32x16_bf16 {o}, {vr(VP + 4 * wc, 4)}, {vr(PX + 8, 4)}, {o}""")
        for k in range(8):
            e(f"v_mul_f32 v{O + 8 * ab + k}, v{O + 8 * ab + k}, v{m0}")
        for k in range(4):
            e(f"v_cvt_pk_bf16_f32 v{124 + k}, v{O + 8 * ab + 2 * k}, v{O + 8 * ab + 2 * k + 1}")
        e(f"ds_write_b128 v{vW}, {vr(124, 4)} offset:{1024 * j}")
    e.barrier()
    for hd in range(32):
        e(f"ds_read_b128 {vr(128 + 4 * hd, 4)}, v{vL16} offset:{1024 * hd}")
        if hd >= 8:
            k = hd - 8
            for dt in range(2):
                c = '0' if k == 0 else vr(SC + 16 * dt, 16)
                e(f"v_mfma_f32_32x32x16_bf16 {vr(SC + 16 * dt, 16)}, {vr(8 * k + 4 * dt, 4, 'a')}, {vr(128 + 4 * k, 4)}, {c}")
    for k in range(24, 32):
        for dt in range(2):
            e(f"v_mfma_f32_32x32x16_bf16 {vr(SC + 16 * dt, 16)}, {vr(8 * k + 4 * dt, 4, 'a')}, {vr(128 + 4 * k, 4)}, {vr(SC + 16 * dt, 16)}")
    e(f"""s_lshl_b32 s{sA}, s{sSeg}, 16
          s_lshl_b32 s{sB}, s{sCh}, 9
          s_add_u32 s{sA}, s{sA}, s{sB}
          s_lshl_b32 s{sB}, s{S_WAVE}, 7
          s_add_u32 s{sA}, s{sA}, s{sB}""")
    for dt in range(2):
        for a in range(4):
            r = SC + 16 * dt + 4 * a
            d = O + 2 * (4 * dt + a)
            e(f"""v_cvt_pk_bf16_f32 v{d}, v{r}, v{r + 1}
                  v_cvt_pk_bf16_f32 v{d + 1}, v{r + 2}, v{r + 3}
                  buffer_store_dwordx2 {vr(d, 2)}, v{vSt}, {sr(S_W1, 4)}, s{sA} offen offset:{64 * dt + 16 * a} {cfg.get('ost', '')}""")
    e(f"""s_add_u32 s{sSeg}, s{sSeg}, 16
          s_cmp_lt_u32 s{sSeg}, 64
          s_cbranch_scc1 L_pa_loop
          s_branch L_end""")


def worker(e, cfg):
    PS[0] = cfg.get('ps', 4)
    e(f"""s_sub_u32 s{sWid}, s{S_ROLE}, 32
          s_cmp_lt_u32 s{sWid}, 216
          s_cbranch_scc1 L_proj""")
    st = e.state()
    e("s_waitcnt vmcnt(0)")
    confirm_barrier(e, 'sp')
    if cfg.get('opf', 0):
        e.comment("read Wo once (one word per line): the recurrence asks for it last and then finds it on the die-level cache")
        srd(e, S_W0, P_WO, 0x400000)
        e(f"""s_sub_u32 s{sA}, s{sWid}, 216
              s_lshl_b32 s{sA}, s{sA}, 2
              s_add_u32 s{sA}, s{sA}, s{S_WAVE}
              s_lshl_b32 s{sA}, s{sA}, 17
              v_and_b32 v4, 63, v0
              v_lshlrev_b32 v4, 7, v4""")
        for j in range(16):
            e.loose(f"buffer_load_dword v5, v4, {sr(S_W0, 4)}, s{sA} offen")
            e(f"s_add_u32 s{sA}, s{sA}, 8192")
    wait_init(e, 'sp', 3, 127)
    e("s_branch L_phase2")
    e.label("L_proj"); e.set_state(st)
    proj(e, cfg)
    e.label("L_phase2")
    dbg_max(e, cfg, 15, v=12)
    if cfg.get('diag'):
        e("s_memrealtime s[88:89]\n s_waitcnt lgkmcnt(0)")
    if cfg.get('nophase2'):
        e("s_branch L_end")
    e(f"""s_cmp_lt_u32 s{sWid}, 32
          s_cbranch_scc1 L_attn_b
          s_cmp_lt_u32 s{sWid}, 64
          s_cbranch_scc1 L_part_a""")
    st = e.state()
    out_b(e, cfg)
    e.label("L_attn_b"); e.set_state(st)
    attn_b(e, cfg)
    e.label("L_part_a"); e.set_state(st)
    part_a(e, cfg)
```

```python
from common import *

L_T, L_OB, L_DUMMY, L_KX, L_WL = 8192, 12544, 14592, 16384, 32768
T_PITCH = 1088
vL16, vPst, vMst, vTw, vTr, vKXr, vOw, vWL0, vWL1, vMw, vIdx, vSelC = range(12)
EX, PM, VX = 12, 16, 20
TMP = 28
MA = 32
ACC = 64
X, KXR, SPARE = 88, 104, 120
R1 = [MA + 8, MA + 16, MA + 24, X, X + 8, KXR, KXR + 8, SPARE, X, X + 8]
WO_SB = [KXR, KXR + 8, X, X + 8, ACC, ACC + 8]
(sStep, sMcur, sProg, sMtog, sG, sKl, sMb, sKV, sC, sExp, sMcur2, sMbaseS, sPbaseS, sPbaseL, sFl, sFch, sTog, sNan,
 sA, sB) = range(50, 70)
sSel = 70
sOK, sMn2, sF1, sEnd = 78, 3, 38, 39
sArm, sFm = 18, 98
sVx, sVt, sOK2, sG2 = 96, 97, 17, 100
HV, HS, HA, HD = VX, VX + 1, VX + 2, VX + 4
sHm, sCnt = 20, 28
S_M0 = 84
TRS = [30, 42, 44, 80, 82, 88, 32, 34]
sDbgT = 80

STREAM = [('q', 0, 0), ('q', 1, 0), ('k', 0, 0), ('k', 1, 0), ('q', 0, 1), ('q', 1, 1), ('k', 0, 1), ('k', 1, 1),
          ('q', 0, 5), ('q', 0, 7),
          ('o', 5, 0), ('o', 5, 1), ('o', 6, 0), ('o', 6, 1), ('o', 7, 0), ('o', 7, 1)]
WLPOS = {op: p for op, p in zip(STREAM[10:14], range(4))}
WLPOS.update({op: 4 + p for p, op in enumerate(STREAM[14:16] + STREAM[:10])})
ALLOPS = [(m, ft, i) for m in 'qkv' for ft in range(2) for i in range(8)] + [('o', t, kb) for t in range(8) for kb in range(2)]
RES = {}
for n, op in enumerate([o for o in ALLOPS if o not in STREAM]):
    RES[op] = ('a', 8 * n) if n < 32 else ('v', 128 + 8 * (n - 32))
PARK = {}
for n, op in enumerate(STREAM[14:16] + STREAM[:10]):
    PARK[op] = 32 + 8 * n
for n, op in enumerate(STREAM[10:14]):
    PARK[op] = 48 + 8 * n
W = sr(S_WS, 4)
CFG = {}


def wl_addr(op, half):
    p = WLPOS[op]
    off = (p >> 1) * 16384 + (p & 1) * 2048 + half * 1024
    return (vWL0, off) if off < 65536 else (vWL1, off - 65536)


def wl_write(e, op, src):
    for half in range(2):
        a, off = wl_addr(op, half)
        e(f"ds_write_b128 v{a}, {vr(src + 4 * half, 4)} offset:{off}")


def wl_lines(op, dst):
    out = []
    for half in range(2):
        a, off = wl_addr(op, half)
        out.append(f"ds_read_b128 {vr(dst + 4 * half, 4)}, v{a} offset:{off}")
    return out


def delay(e, cyc):
    if CFG.get('slp') and cyc >= 64:
        k = cyc // 64
        e(f"s_sleep {k}")
        cyc -= 64 * k
    if CFG.get('dmf'):
        while cyc >= 16:
            if CFG['dmf'] == 1:
                e(f"v_mfma_f32_16x16x32_bf16 {vr(VX, 4)}, a[0:3], a[8:11], 0")
            else:
                e(f"v_smfmac_f32_16x16x64_bf16 {vr(VX, 4)}, a[0:3], a[8:15], v{vIdx}")
            cyc -= 16
    n = cyc // 4
    while n > 0:
        k = min(n, 16)
        e(f"s_nop {k - 1}")
        n -= k


def mix(reads, other, per=3):
    out = []
    other = list(other)
    for r in reads:
        out.append(r)
        for _ in range(per):
            if other:
                out.append(other.pop(0))
    return out + other


def mload(b):
    return f"buffer_load_dwordx4 {vr(MA + 4 * b, 4)}, v{vMw}, {W}, s{sMcur if b == 0 else sMcur2} offen sc1"


def kx_dma(e, ldsbase):
    e(f"""s_lshl_b32 s{sA}, s{S_WAVE}, 11
          s_add_u32 m0, s{sA}, {ldsbase}
          buffer_load_dwordx4 v{vL16}, {W}, s{sKV} offen sc1 lds
          buffer_load_dwordx4 v{vL16}, {W}, s{sKV} offen offset:1024 sc1 lds""")


def scalar_lines():
    return [x.strip() for x in f"""s_and_b32 s{sA}, s{sStep}, 3
          s_lshl_b32 s{sA}, s{sA}, 13
          s_add_u32 s{sMcur}, s{sA}, s{sMb}
          s_add_u32 s{sMcur2}, s{sMcur}, 4096
          s_and_b32 s{sA}, s{sA}, 0x2000
          s_add_u32 s{sMn2}, s{sMbaseS}, s{sA}
          s_lshl_b32 s{sMtog}, s{sA}, 1
          s_sub_u32 s{sVx}, s{sKV}, s{sTog}
          s_add_u32 s{sVx}, s{sVx}, {8192 - L_KX}
          s_add_u32 s{sKV}, s{sKV}, {0 if CFG.get('samekv') else UNIT}
          s_add_u32 s{sVt}, s{sKV}, 8192
          s_xor_b32 s{sA}, s{sTog}, 0x2000
          s_add_u32 m0, s{sA}, s{sKl}
          s_cmp_gt_u32 s{sStep}, s{sF1}
          s_cselect_b32 s{sA}, 4096, 0
          s_add_u32 s{sExp}, s{sExp}, s{sA}
          s_add_u32 s{sOK2}, s{sStep}, 1
          s_max_u32 s{sProg}, s{sStep}, {0 if CFG.get('xo', 0) else 1}
          s_sub_u32 s{sProg}, s{sProg}, {0 if CFG.get('xo', 0) else 1}
          s_and_b32 s{sG2}, s{sOK2}, 1""".split('\n')]


def prep_a_lines():
    other = [f"v_mov_b64 {vr(ACC + j, 2)}, 0" for j in range(0, 24, 2)] + [f"v_lshlrev_b32 v{PM + 3}, 1, v{vL16}", f"v_mov_b32 v{TMP}, s{sProg}"]
    reads = sum([wl_lines(STREAM[o], R1[o]) for o in range(3, 8)], [])
    return mix(reads, other, 2)


def prep_b_lines():
    other = [f"v_xor_b32 v{vMst}, s{sMtog}, v{vMst}"] + [f"v_xor_b32 v{TMP + p}, {p << 10}, v{vMw}" for p in range(1, 4)]
    reads = sum([wl_lines(STREAM[o], R1[o]) for o in range(3)], [])
    return mix(reads, other, 1)


def chain_startup(e, cfg):
    h = S_HEAD
    NE = cfg.get('ne', 2)
    ARMED = (0x400100 if NE else 0x200100)
    tA, tB, tC, tD = EX, EX + 1, EX + 2, EX + 3
    t0, t1, t2, t3 = TMP, TMP + 1, TMP + 2, TMP + 3
    lane = PM
    chunks = [('o', kb, Q) for kb in range(2) for Q in range(4)] + [(m, b, 0) for m in cfg.get('mo', 'qkv') for b in range(8)]
    ring = {4: L_WL + 2 * 16384, 5: L_WL + 3 * 16384, 6: L_WL + 4 * 16384, 0: L_WL + 5 * 16384, 1: L_WL + 6 * 16384,
            2: L_WL + 7 * 16384, 3: 0}
    ptr = {'q': P_WQ, 'k': P_WK, 'v': P_WV, 'o': P_WO}
    sHq, sHo, sLw = sMcur, sProg, sMcur2
    cur, marks = [None], {}

    def dma(r):
        m, x, Q = chunks[r]
        if cur[0] != m:
            srd(e, S_T0, ptr[m], 0x400000); cur[0] = m
        for i in range(4):
            if m == 'o':
                row = 64 * x + 32 * (Q >> 1) + 2 * (Q & 1) + 4 * (i >> 1) + (i & 1)
                e(f"""s_add_u32 s{sA}, s{sHo}, {row * 1024}
                      s_add_u32 m0, s{sLw}, {ring[r % 7] + i * 1024}
                      v_xor_b32 v{t2}, {i << 5}, v{VX + 3}
                      buffer_load_dwordx4 v{t2}, {sr(S_T0, 4)}, s{sA} offen lds""")
            else:
                e(f"""s_add_u32 s{sA}, s{sHq}, {(128 * (x & 3) + 64 * (x >> 2) + 4 * i) * 8192}
                      s_add_u32 m0, s{sLw}, {ring[r % 7] + i * 1024}
                      buffer_load_dwordx4 v{tA}, {sr(S_T0, 4)}, s{sA} offen lds""")
        marks[r] = e.vm[-1]

    e(f"""v_and_b32 v{lane}, 63, v0
          v_lshlrev_b32 v{vL16}, 4, v{lane}
          s_and_b32 s{sA}, s{S_WAVE}, 1
          s_lshr_b32 s{sB}, s{S_WAVE}, 1
          s_lshl_b32 s{sHo}, s{sA}, 7
          v_xor_b32 v{VX + 3}, s{sHo}, v{vL16}
          s_lshl_b32 s{sHo}, s{h}, 17
          s_lshl_b32 s{sLw}, s{sA}, 14
          s_add_u32 s{sHo}, s{sHo}, s{sLw}
          s_lshl_b32 s{sLw}, s{sB}, 13
          s_add_u32 s{sHo}, s{sHo}, s{sLw}
          s_lshl_b32 s{sHq}, s{h}, 8
          s_lshl_b32 s{sLw}, s{S_WAVE}, 17
          s_add_u32 s{sHq}, s{sHq}, s{sLw}
          s_lshl_b32 s{sLw}, s{S_WAVE}, 12""")
    for r in range(6):
        dma(r)
    e(f"""v_lshrrev_b32 v{t0}, 4, v{lane}
          v_and_b32 v{t1}, 15, v{lane}
          s_lshl_b32 s{sA}, s{S_WAVE}, 10
          v_add_u32 v{vMw}, s{sA}, v{vL16}
          v_lshlrev_b32 v{PM + 3}, 2, v{lane}""")
    e(f"""v_lshrrev_b32 v{t2}, 2, v{lane}
          v_lshlrev_b32 v{t2}, 12, v{t2}
          v_and_b32 v{t3}, 3, v{lane}
          v_lshl_add_u32 v{vPst}, v{t3}, 4, v{t2}""")
    e(f"""v_and_b32 v{t2}, 1, v{lane}
          v_lshlrev_b32 v{t2}, 5, v{t2}
          v_lshl_add_u32 v{t2}, v{t0}, 3, v{t2}
          v_and_b32 v{t3}, 4, v{lane}
          v_add_u32 v{t2}, v{t2}, v{t3}
          v_and_b32 v{t3}, 8, v{lane}
          v_cmp_ne_u32 {sr(sArm, 2)}, 0, v{t3}
          v_lshl_add_u32 v{t2}, v{t3}, 11, v{t2}
          v_and_b32 v{t3}, 2, v{lane}
          v_lshl_add_u32 v{vMst}, v{t3}, 29, v{t2}""")
    srd(e, S_M0, P_MEM0, 8192)
    e(f"""v_and_b32 v{t2}, 1, v{lane}
          v_lshlrev_b32 v{tD}, 10, v{t2}
          v_lshl_add_u32 v{tD}, v{t0}, 1, v{tD}
          v_bfe_u32 v{t2}, v{lane}, 2, 1
          v_lshl_add_u32 v{tD}, v{t2}, 6, v{tD}
          s_and_b32 s{sA}, s{h}, 6
          s_lshl_b32 s{sA}, s{sA}, 10
          s_lshr_b32 s{sB}, s{h}, 3
          s_lshl_b32 s{sB}, s{sB}, 8
          s_add_u32 s{sA}, s{sA}, s{sB}
          s_and_b32 s{sB}, s{S_WAVE}, 1
          s_lshl_b32 s{sB}, s{sB}, 7
          s_add_u32 s{sA}, s{sA}, s{sB}
          s_lshr_b32 s{sB}, s{S_WAVE}, 1
          s_lshl_b32 s{sB}, s{sB}, 3
          s_add_u32 s{sA}, s{sA}, s{sB}
          s_and_b32 s{sB}, s{h}, 1
          s_lshl_b32 s{sB}, s{sB}, 4
          s_add_u32 s{sA}, s{sA}, s{sB}
          buffer_load_ushort v{VX}, v{tD}, {sr(S_M0, 4)}, s{sA} offen
          buffer_load_ushort v{VX + 1}, v{tD}, {sr(S_M0, 4)}, s{sA} offen offset:32""")
    e(f"""s_lshl_b32 s{sA}, s{S_WAVE}, 8
          s_add_u32 s{sA}, s{sA}, {L_T}
          v_mul_u32_u24 v{t2}, {T_PITCH}, v{t0}
          v_lshl_add_u32 v{t2}, v{t1}, 3, v{t2}
          v_add_u32 v{vTw}, s{sA}, v{t2}
          v_and_b32 v{t3}, 3, v{lane}
          v_mul_u32_u24 v{t2}, {T_PITCH}, v{t3}
          v_lshrrev_b32 v{t3}, 5, v{lane}
          v_lshl_add_u32 v{t2}, v{t3}, 7, v{t2}
          v_bfe_u32 v{t3}, v{lane}, 2, 3
          v_lshl_add_u32 v{t2}, v{t3}, 3, v{t2}
          v_add_u32 v{vTr}, {L_T}, v{t2}
          v_lshlrev_b32 v{t2}, 9, v{t0}
          v_lshl_add_u32 v{t2}, v{t1}, 4, v{t2}
          v_add_u32 v{vKXr}, {L_KX}, v{t2}""")
    e(f"""s_lshl_b32 s{sA}, s{S_WAVE}, 9
          s_add_u32 s{sA}, s{sA}, {L_OB}
          v_lshrrev_b32 v{t2}, 5, v{lane}
          v_lshlrev_b32 v{t2}, 8, v{t2}
          v_and_b32 v{t3}, 16, v{lane}
          v_add_u32 v{t2}, v{t2}, v{t3}
          v_and_b32 v{t3}, 12, v{lane}
          v_lshl_add_u32 v{t2}, v{t3}, 4, v{t2}
          v_and_b32 v{t3}, 1, v{lane}
          v_lshl_add_u32 v{t2}, v{t3}, 5, v{t2}
          v_add_u32 v{t2}, s{sA}, v{t2}
          v_and_b32 v{t3}, 2, v{lane}
          v_lshlrev_b32 v{tA}, 3, v{t3}
          v_xor_b32 v{t2}, v{t2}, v{tA}
          v_lshlrev_b32 v{t3}, 12, v{t3}
          v_sub_u32 v{vOw}, v{t2}, v{t3}
          s_add_u32 s{sA}, s{sLw}, {L_WL}
          v_add_u32 v{vWL0}, s{sA}, v{vL16}
          v_add_u32 v{vWL1}, 0x10000, v{vWL0}""")
    e(f"""v_and_b32 v{t2}, 1, v{lane}
          v_cmp_ne_u32 vcc, 0, v{t2}
          v_mov_b32 v{t2}, 0x4444
          v_mov_b32 v{t3}, 0xeeee
          v_cndmask_b32 v{vIdx}, v{t2}, v{t3}, vcc
          v_mov_b32 v{t2}, 0x3f80
          v_mov_b32 v{t3}, 0x3f800000
          v_cndmask_b32 v{vSelC}, v{t2}, v{t3}, vcc
          v_lshrrev_b32 v{t2}, 1, v{t1}""")
    for j in range(4):
        e(f"v_cmp_eq_u32 {sr(sSel + 2 * j, 2)}, {j}, v{t2}")
    e(f"""v_lshlrev_b32 v{tA}, 13, v{t0}
          v_lshlrev_b32 v{t2}, 2, v{t0}
          v_xor_b32 v{t2}, v{t2}, v{t1}
          v_lshl_add_u32 v{tA}, v{t2}, 4, v{tA}""")
    e(f"""v_bfe_u32 v{t2}, v{lane}, 2, 1
          v_lshlrev_b32 v{tB}, 12, v{t2}
          v_bfe_u32 v{t2}, v{lane}, 5, 1
          v_lshl_add_u32 v{tB}, v{t2}, 10, v{tB}
          v_bfe_u32 v{t2}, v{lane}, 3, 1
          v_lshl_add_u32 v{tB}, v{t2}, 9, v{tB}
          v_bfe_u32 v{t2}, v{lane}, 4, 1
          v_lshl_add_u32 v{tB}, v{t2}, 8, v{tB}
          v_and_b32 v{t2}, 3, v{lane}
          v_lshl_add_u32 v{tB}, v{t2}, 3, v{tB}
          v_bfe_u32 v{t3}, v{tB}, 8, 2
          v_xor_b32 v{t3}, s{S_WAVE}, v{t3}
          v_lshl_add_u32 v{tB}, v{t3}, 6, v{tB}""")
    e(f"""v_lshrrev_b32 v{t3}, 2, v{lane}
          v_lshlrev_b32 v{tC}, 10, v{t3}
          v_lshl_add_u32 v{tC}, v{t2}, 3, v{tC}
          s_lshl_b32 s{sA}, s{S_WAVE}, 8
          v_add_u32 v{tC}, s{sA}, v{tC}
          v_and_b32 v{t3}, 7, v{t3}
          v_lshl_add_u32 v{tC}, v{t3}, 5, v{tC}""")
    e(f"""s_lshl_b32 s{sA}, s{S_WAVE}, 11
          s_lshl_b32 s{sB}, s{h}, 13
          s_add_u32 s{sPbaseL}, s{sA}, s{sB}
          s_add_u32 s{sPbaseL}, s{sPbaseL}, {WS_P}
          s_lshl_b32 s{sA}, s{S_WAVE}, 16
          s_lshl_b32 s{sB}, s{h}, 6
          s_add_u32 s{sPbaseS}, s{sA}, s{sB}
          s_add_u32 s{sPbaseS}, s{sPbaseS}, {WS_P}
          s_lshl_b32 s{sA}, s{S_EC}, 18
          s_add_u32 s{sPbaseS}, s{sPbaseS}, s{sA}
          s_add_u32 s{sPbaseL}, s{sPbaseL}, s{sA}
          s_lshl_b32 s{sMb}, s{S_EC}, 15
          s_add_u32 s{sMb}, s{sMb}, {WS_M}
          s_cmp_eq_u32 s{S_EC}, 0
          s_cselect_b32 s{sStep}, {NE}, 0""")
    e(f"""s_and_b32 s{sA}, s{S_WAVE}, 1
          s_lshl_b32 s{sMbaseS}, s{sA}, 12
          s_and_b32 s{sA}, s{h}, 24
          s_lshl_b32 s{sA}, s{sA}, 7
          s_add_u32 s{sMbaseS}, s{sMbaseS}, s{sA}
          s_and_b32 s{sA}, s{h}, 1
          s_lshl_b32 s{sA}, s{sA}, 9
          s_add_u32 s{sMbaseS}, s{sMbaseS}, s{sA}
          s_lshr_b32 s{sA}, s{S_WAVE}, 1
          s_lshl_b32 s{sA}, s{sA}, 8
          s_add_u32 s{sMbaseS}, s{sMbaseS}, s{sA}
          s_and_b32 s{sA}, s{h}, 6
          s_lshl_b32 s{sA}, s{sA}, 5
          s_add_u32 s{sMbaseS}, s{sMbaseS}, s{sA}
          s_add_u32 s{sMbaseS}, s{sMbaseS}, s{sMb}""")
    e(f"""s_mul_i32 s{sKV}, s{h}, {64 * UNIT}
          s_lshl_b32 s{sA}, s{S_WAVE}, 11
          s_add_u32 s{sKV}, s{sKV}, s{sA}
          s_add_u32 s{sKV}, s{sKV}, {WS_QKV + 8192}
          s_lshl_b32 s{sExp}, s{h}, 18
          s_lshl_b32 s{sA}, s{S_WAVE}, 10
          s_add_u32 s{sExp}, s{sExp}, s{sA}
          s_add_u32 s{sExp}, s{sExp}, {WS_EXP}
          s_lshl_b32 s{sFl}, s{h}, 8
          s_add_u32 s{sFl}, s{sFl}, {F_QKV}
          s_lshl_b32 s{sFch}, s{h}, 7
          s_lshl_b32 s{sA}, s{S_WAVE}, 2
          s_add_u32 s{sFch}, s{sFch}, s{sA}
          s_add_u32 s{sFch}, s{sFch}, {F_CH}
          s_mov_b32 s{sC}, 0x3e0293ee
          s_lshl_b32 s{sKl}, s{S_WAVE}, 11
          s_add_u32 s{sKl}, s{sKl}, {L_KX}
          s_mul_i32 s{sA}, s{sStep}, {UNIT}
          s_add_u32 s{sKV}, s{sKV}, s{sA}
          s_mov_b32 s{sOK}, 1""")
    e(f"""s_and_b32 s{sA}, s{sStep}, 1
          v_mov_b32 v{VX + 4}, s{sA}
          v_mov_b32 v{VX + 5}, s{sA}
          v_mov_b32 v{VX + 6}, s{sA}
          v_mov_b32 v{VX + 7}, s{sA}
          v_mov_b32 v{VX + 2}, -1
          s_add_u32 s{sB}, s{sMbaseS}, 8192
          buffer_store_dwordx4 {vr(VX + 4, 4)}, v{vL16}, {W}, s{sPbaseL} offen sc1
          buffer_store_dwordx4 {vr(VX + 4, 4)}, v{vL16}, {W}, s{sPbaseL} offen offset:1024 sc1
          buffer_store_dword v{VX + 2}, v{vMst}, {W}, s{sB} offen sc1""")
    if cfg.get('sdiag'):
        e("s_memrealtime s[20:21]\n s_waitcnt lgkmcnt(0)")
    confirm_barrier(e, 'ch')
    if cfg.get('sdiag'):
        e("s_memrealtime s[22:23]\n s_waitcnt lgkmcnt(0)")
    parked = STREAM[14:16] + STREAM[:10]
    for r in range(32):
        m, x, Q = chunks[r]
        if marks[r] in e.vm:
            e.wait(vm=len(e.vm) - 1 - e.vm.index(marks[r]))
        e.wait(lgkm=0)
        e("s_barrier")
        if cfg.get('sdiag') and r in (0, 8, 16, 24, 31):
            e(f"s_memrealtime {sr({0: 24, 8: 26, 16: 28, 24: 36, 31: 40}[r], 2)}\n s_waitcnt lgkmcnt(0)")
        if r == 6:
            e.comment("publish this wave's piece of mem0 in slot 0 (and arm slot 2)")
            e(f"""v_lshl_or_b32 v{VX}, v{VX + 1}, 16, v{VX}
                  v_min_u32 v{VX}, -2, v{VX}
                  v_cndmask_b32 v{VX}, v{VX}, -1, {sr(sArm, 2)}
                  s_cmp_lg_u32 s{sStep}, 0
                  s_cselect_b32 s{sA}, -1, 0
                  v_or_b32 v{VX}, s{sA}, v{VX}
                  buffer_store_dword v{VX}, v{vMst}, {W}, s{sMbaseS} offen sc1""")
        if r == 12:
            e.comment("every wave's arming stores are complete: count this member as armed")
            e(f"""s_cmp_lg_u32 s{S_WAVE}, 0
                  s_cbranch_scc1 L_cs_in
                  s_sub_u32 s{sA}, s{S_EC}, 1
                  s_and_b32 s{sA}, s{sA}, s{S_XCC}
                  s_mov_b32 s{sB}, 0x10000
                  s_cselect_b32 s{sA}, 0x1010000, s{sB}
                  v_mov_b32 v{t0}, s{sA}
                  s_mov_b64 exec, 1
                  buffer_atomic_add v{t0}, off, {sr(S_DBG, 4)}, 0 offset:{D_INIT}
                  s_mov_b64 exec, -1""")
            e.vm.pop()
            e.label("L_cs_in")
        if r + 6 < 32:
            dma(r + 6)
        if r == 8:
            for op in STREAM[10:14]:
                wl_write(e, op, PARK[op])
            e.wait(lgkm=0)
        if r == cfg.get('r1', 16):
            e(f"buffer_load_dword v{PM + 1}, off, {sr(S_DBG, 4)}, 0 offset:{D_INIT} sc1")
        if r == cfg.get('r2', 23):
            e(f"""v_readfirstlane_b32 s{sNan}, v{PM + 1}
                  buffer_load_dword v{PM + 2}, v{PM + 3}, {W}, s{sFl} offen sc1""")
            e(f"""s_add_u32 m0, s{sLw}, {L_KX + 8192}
                  s_lshr_b32 m0, m0, 1
                  s_add_u32 m0, m0, {(L_KX + 8192) // 2}
                  s_lshl_b32 s{sB}, s{h}, 10
                  s_add_u32 s{sB}, s{sB}, s{sMb}
                  buffer_load_dwordx4 v{vL16}, {W}, s{sPbaseL} offen sc1 lds
                  buffer_load_dwordx4 v{vL16}, {W}, s{sPbaseL} offen offset:1024 sc1 lds
                  buffer_load_dwordx4 v{vL16}, {W}, s{sB} offen sc1 lds""")
        if r == cfg.get('r3', 30):
            e(f"""v_cmp_ne_u32 {sr(sFm, 2)}, 0, v{PM + 2}
                  s_lshr_b32 s{sOK}, s{sFm}, s{sStep}
                  s_and_b32 s{sOK}, s{sOK}, 3
                  s_cmp_eq_u32 s{sOK}, 3
                  s_cselect_b32 s{sOK}, 1, 0
                  s_and_b32 s{sA}, s{sNan}, 0xffffff
                  s_cmp_eq_u32 s{sA}, {ARMED}
                  s_cselect_b32 s{sOK}, s{sOK}, 0""")
            kx_dma(e, L_KX)
            e(f"""s_add_u32 m0, m0, 8192
                  s_add_u32 s{sA}, s{sKV}, 8192
                  buffer_load_dwordx4 v{vL16}, {W}, s{sA} offen sc1 lds
                  buffer_load_dwordx4 v{vL16}, {W}, s{sA} offen offset:1024 sc1 lds""")
        if r == cfg.get('rt', 27):
            e.comment("the last exports are recognised by their data: fill their slots with a pattern no export holds")
            for j in range(4):
                e(f"v_mov_b32 v{VX + j}, {SENT1}")
            for sg in range(64 - NTAIL, 64):
                e(f"s_add_u32 s{sA}, s{sExp}, {sg * 4096}\n buffer_store_dwordx4 {vr(VX, 4)}, v{vL16}, {W}, s{sA} offen sc1")
        if r == 29:
            e(f"buffer_load_dword v{VX + 7}, v{PM + 3}, {W}, s{sFl} offen sc1")
        if r >= 26:
            for op in parked[2 * (r - 26):2 * (r - 26) + 2]:
                wl_write(e, op, PARK[op])
        e(f"v_add_u32 v{t1}, {ring[r % 7]}, v{tC if m == 'o' else tB}")
        if m == 'o':
            for t in range(8):
                op = ('o', t, x)
                kind, base = RES[op] if op in RES else ('v', PARK[op])
                e(f"v_xor_b32 v{t3}, {t * 32}, v{t1}\n ds_read_b64_tr_b16 {vr(base + 2 * Q, 2, kind)}, v{t3}")
        else:
            for w in range(1, 4):
                e(f"s_cmp_eq_u32 s{S_WAVE}, {w}\n s_cbranch_scc1 L_cs{r}_{w}")
            st0 = e.state()
            for w in range(4):
                if w:
                    e.label(f"L_cs{r}_{w}"); e.set_state(st0)
                for ft in range(2):
                    op = (m, ft, 2 * ((x & 3) ^ w) + (x >> 2))
                    kind, base = RES[op] if op in RES else ('v', PARK[op])
                    for Q in range(4):
                        e(f"ds_read_b64_tr_b16 {vr(base + 2 * Q, 2, kind)}, v{t1} offset:{(32 * (Q & 1) + 8 * (Q >> 1)) * 256 + ft * 32}")
                if w < 3:
                    e(f"s_branch L_cs{r}_e")
            e.label(f"L_cs{r}_e")
    e.wait(lgkm=0)
    if cfg.get('sdiag'):
        e(f"""s_lshl_b32 s{sA}, s{S_ROLE}, 2
              s_add_u32 s{sA}, s{sA}, s{S_WAVE}
              s_lshl_b32 s{sA}, s{sA}, 6
              s_add_u32 s{sA}, s{sA}, 0x6400000""")
        for n, r in enumerate([94, 20, 22, 24, 26, 28, 36, 40, sOK]):
            e(f"v_mov_b32 v{PM}, s{r}\n buffer_store_dword v{PM}, off, {W}, s{sA} offset:{4 * n}")
    e(f"""s_cmp_lg_u32 s{sOK}, 0
          s_cbranch_scc1 L_cs_ready
          s_and_b32 s{sA}, s{sNan}, 0xffffff
          s_cmp_eq_u32 s{sA}, {ARMED}
          s_cbranch_scc1 L_cs_p3
          L_cs_p1:
          buffer_load_dword v{t0}, off, {sr(S_DBG, 4)}, 0 offset:{D_INIT} sc1
          s_sub_u32 s{S_SPIN}, s{S_SPIN}, 1
          s_cbranch_scc1 L_end
          v_readfirstlane_b32 s{sNan}, v{t0}
          s_and_b32 s{sA}, s{sNan}, 0xffffff
          s_cmp_eq_u32 s{sA}, {ARMED}
          s_cbranch_scc0 L_cs_p1
          L_cs_p2:
          buffer_load_dword v{VX + 7}, v{PM + 3}, {W}, s{sFl} offen sc1
          s_sub_u32 s{S_SPIN}, s{S_SPIN}, 1
          s_cbranch_scc1 L_end
          L_cs_p3:
          s_waitcnt vmcnt(0)
          v_cmp_ne_u32 {sr(sFm, 2)}, 0, v{VX + 7}
          s_lshr_b32 s{sA}, s{sFm}, s{sStep}
          s_and_b32 s{sA}, s{sA}, 3
          s_cmp_eq_u32 s{sA}, 3
          s_cbranch_scc0 L_cs_p2""")
    kx_dma(e, L_KX)
    e.label("L_cs_ready")
    e(f"""v_mov_b32 v{PM + 1}, 0
          v_mov_b32 v{PM + 2}, 0
          s_add_u32 s{sF1}, s{sStep}, 1
          s_cmp_eq_u32 s{S_EC}, 0
          s_cselect_b32 s{sEnd}, 255, {NE}
          s_lshl_b32 s{sA}, s{sStep}, 12
          s_add_u32 s{sExp}, s{sExp}, s{sA}
          s_and_b32 s{sA}, s{sStep}, 2
          s_lshl_b32 s{sA}, s{sA}, 13
          v_xor_b32 v{vMst}, s{sA}, v{vMst}
          s_mov_b32 s{sTog}, 0""")
    e("\n".join(scalar_lines() + prep_a_lines()))
    for b in range(2):
        e(mload(b))
    e("\n".join(prep_b_lines()))
    dbg_max(e, cfg, 11, v=PM, mask=1)
    if cfg.get('holdto'):
        e(f"""L_hold:
              s_memrealtime s[92:93]
              s_waitcnt lgkmcnt(0)
              s_sub_u32 s92, s92, s94
              s_cmp_lt_u32 s92, {cfg['holdto']}
              s_cbranch_scc1 L_hold""")
    e("s_waitcnt vmcnt(0) lgkmcnt(0)\n s_barrier")
    if cfg.get('diag'):
        e.raw(f"  s_memtime {sr(sDbgT + 6, 2)}\n  s_memrealtime {sr(sDbgT + 10, 2)}\n  s_mov_b32 s{sDbgT + 5}, 0\n  s_mov_b32 s12, 0\n  s_mov_b32 s13, 0\n  s_mov_b32 s14, 0\n  s_mov_b32 s15, 0\n  s_waitcnt lgkmcnt(0)")
    e(f"""s_lshr_b32 s{sA}, s{sNan}, 24
          s_mov_b32 s{sNan}, 0
          s_or_b32 s{sA}, s{sA}, s{S_EC}
          s_cbranch_scc1 L_step_s""")
    e("s_branch L_step_s" if cfg.get('force_slow') else "s_branch L_step_f")


def chain_loop(e, cfg, sfx, st):
    acc = {('q', 0): ACC, ('q', 1): ACC + 4, ('k', 0): ACC + 8, ('k', 1): ACC + 12, ('v', 0): ACC + 16, ('v', 1): ACC + 20}
    loc = dict(RES)
    for o in range(10):
        loc[STREAM[o]] = ('v', R1[o])
    for o in range(6):
        loc[STREAM[10 + o]] = ('v', WO_SB[o])
    diag = cfg.get('diag')

    def stamp(n):
        tr = cfg.get('trace')
        if tr and n in tr and sfx == 'f':
            e.raw(f"  s_memtime {sr(TRS[tr.index(n)], 2)}")

    def trace_out(where, TR):
        if cfg.get('trace') and cfg.get('tpos', 'mid') == where and sfx == 'f':
            e(f"""s_memtime s[32:33]
                  s_memrealtime s[34:35]
                  s_lshl_b32 s40, s{S_ROLE}, 2
                  s_add_u32 s40, s40, s{S_WAVE}
                  s_lshl_b32 s40, s40, 6
                  s_add_u32 s40, s40, s{sStep}
                  s_lshl_b32 s40, s40, 5
                  s_add_u32 s40, s40, 0x6200000
                  s_waitcnt lgkmcnt(0)""")
            for j in range(8):
                e(f"v_mov_b32 v{TR + j}, s{TRS[j]}")
            e(f"""s_mov_b64 exec, 1
                  buffer_store_dwordx4 {vr(TR, 4)}, off, {W}, s40
                  buffer_store_dwordx4 {vr(TR + 4, 4)}, off, {W}, s40 offset:16
                  s_mov_b64 exec, -1""")

    def P(m, ft, i):
        k, b = loc[(m, ft, i)]
        return f"v_smfmac_f32_16x16x64_bf16 {vr(acc[(m, ft)], 4)}, {vr(MA + 4 * i, 4)}, {vr(b, 8, k)}, v{vIdx}"

    def post(a, dst):
        return [f"v_add_f32 v{a}, v{a}, v{a + 1}", f"v_add_f32 v{a + 2}, v{a + 2}, v{a + 3}",
                f"v_cvt_pk_bf16_f32 v{dst}, v{a}, v{a + 2}"]

    def xread(kb):
        return [f"ds_read_b64_tr_b16 {vr(X + 4 * kb, 2)}, v{vTr} offset:{kb * 256}",
                f"ds_read_b64_tr_b16 {vr(X + 4 * kb + 2, 2)}, v{vTr} offset:{kb * 256 + 64}"]

    kx_dst = [KXR, SPARE, KXR + 4, SPARE + 4, KXR + 8, KXR, KXR + 12, KXR + 4]

    def kxread(n):
        return f"ds_read_b128 {vr(kx_dst[n], 4)}, v{vKXr} offset:{(n >> 1) * 2048 + (n & 1) * 256}"

    Sx = [ACC, ACC + 4]
    Sm, Px = ACC + 8, ACC + 12

    def smx(n):
        kb, t = n >> 1, n & 1
        c = '0' if kb == 0 else vr(Sx[t], 4)
        return f"v_mfma_f32_16x16x32_bf16 {vr(Sx[t], 4)}, {vr(kx_dst[n], 4)}, {vr(X + 4 * kb, 4)}, {c}"

    def smm(kb):
        c = '0' if kb == 0 else vr(Sm, 4)
        return f"v_mfma_f32_16x16x32_bf16 {vr(Sm, 4)}, {vr(X + 4 * kb, 4)}, {vr(X + 4 * kb, 4)}, {c}"

    ad = 0
    ldH = lambda k: (lambda: e.loose(f"buffer_load_dword v{HD + k}, v{HA}, {W}, s{sHl} offen sc1"))
    ldV = [f"buffer_load_dwordx4 {vr(VX, 4)}, v{vKXr}, {W}, s{sVx} offen sc1",
           f"buffer_load_dwordx4 {vr(VX + 4, 4)}, v{vKXr}, {W}, s{sVx} offen offset:256 sc1"]
    ldK = [f"buffer_load_dwordx4 v{vL16}, {W}, s{sKV} offen sc1 lds",
           f"buffer_load_dwordx4 v{vL16}, {W}, s{sKV} offen offset:1024 sc1 lds"]
    touch = f"buffer_load_dword v{PM + 3}, {W}, s{sVt} offen sc1 lds"
    export = f"buffer_store_dwordx4 {vr(EX, 4)}, v{vL16}, {W}, s{sExp} offen sc1"
    progress = f"s_mov_b64 exec, 1\n buffer_store_dword v{TMP}, off, {W}, s{sFch} sc1\n s_mov_b64 exec, -1"
    ldF = f"buffer_load_dword v{TMP + 3}, v{TMP + 3}, {W}, s{sFl} offen sc1"
    if cfg.get('noexp'):
        export = progress = "s_nop 0"
    rf = sum([wl_lines(STREAM[o], R1[o]) for o in range(8, 10)], [])
    wo = sum([wl_lines(STREAM[10 + o], WO_SB[o]) for o in range(6)], [])
    q0p, q1p, k0p, k1p = post(ACC, ACC + 1), post(ACC + 4, ACC + 5), post(ACC + 8, EX), post(ACC + 12, EX + 1)
    v0p, v1p = post(ACC + 16, EX + 2), post(ACC + 20, EX + 3)
    m0, m1 = TMP, TMP + 1
    C0 = PM
    zero = [f"v_mov_b64 {vr(MA + j, 2)}, 0" for j in range(0, 32, 2)]
    st_ = lambda n: (lambda: stamp(n))
    mx = lambda d, a, b, c_: f"v_max3_f32 v{d}, v{a}, v{b}, v{c_}"

    def check(blocks):
        r = [MA + 4 * b + j for b in blocks for j in range(4)]
        out = [f"v_max3_u32 v{C0}, v{r[0]}, v{r[1]}, v{r[2]}"]
        k = 3
        while k + 1 < len(r):
            out.append(f"v_max3_u32 v{C0}, v{C0}, v{r[k]}, v{r[k + 1]}"); k += 2
        out.append(f"v_max_u32 v{C0}, v{C0}, v{r[k]}")
        out.append(f"v_cmp_eq_u32 vcc, -1, v{C0}")
        return out

    def mread(i):
        return f"ds_read_b128 {vr(MA + 4 * i, 4)}, v{TMP + (i >> 1)} offset:{(i & 1) * 4096}"

    e.slot_no = 0
    e.slot_hook = lambda n: stamp(100 + n)
    e.forget()
    e.raw(".p2align 8\n" + "  s_nop 0\n" * cfg.get('ph', 8))
    e.label(f"L_step_{sfx}")
    e("s_waitcnt vmcnt(2)")
    e.label(f"L_chkE_{sfx}")
    xe = 0
    ba, bb, bc = cfg.get('ba', 0), cfg.get('bb', 1), cfg.get('bc', 1)
    xo = cfg.get('xo', 0)
    lastsp = cfg.get('lastsp', 1)
    spec = 0
    ce_ = check((0,))
    specb = []
    if spec:
        e(f"ds_write_b128 v{vMw}, {vr(MA, 4)}")
    else:
        e("\n".join(ce_))
        e(f"""ds_write_b128 v{vMw}, {vr(MA, 4)}
              s_cbranch_vccnz L_retE_{sfx}""")
    stamp(0)
    cl_ = check((1,))
    z = lambda: zero.pop(0)
    lw = lambda n: (lambda: e.wait(lgkm=n))
    seq = [
        (P('q', 0, 0), [lambda: e.loose(mload(1))] if not spec else ce_ + [f"s_cbranch_vccnz L_retE_{sfx}", lambda: e.loose(mload(1))]),
        (P('q', 1, 0), [ldV[0]]),
        (P('k', 0, 0), [ldV[1]] if ba else [ldV[1], e.barrier, mread(2), mread(4)]),
        (P('k', 1, 0), ["s_waitcnt vmcnt(3)", cl_[0]] if ba else [mread(6), "s_waitcnt vmcnt(3)", cl_[0]]),
        (P('v', 0, 0), [e.barrier, cl_[1]] if ba == 1 else [cl_[1]]),
        (P('v', 1, 0), [cl_[2], f"ds_write_b128 v{vMw}, {vr(MA + 4, 4)} offset:4096", f"s_cbranch_vccnz L_retL_{sfx}", f"L_okL_{sfx}:"]),
        (P('q', 0, 1), [st_(1)] + ([mread(2), mread(4)] if ba == 1 else [lw(1), "s_barrier"] if ba == 2 else [])),
        (P('q', 1, 1), [mread(6)] if ba == 1 else [mread(2), mread(4)] if ba == 2 else []),
        (P('k', 0, 1), [mread(6), rf[0]] if ba == 2 else [rf[0]]),
        (P('k', 1, 1), [rf[1]] + ([] if ba else [lw(3)])),
        (P('q', 0, 2), [rf[2]]),
        (P('q', 1, 2), [e.lds_writes_done]),
        (P('k', 0, 2), [e.barrier] if bb else [e.barrier, ldK[0], mread(3)]),
        (P('k', 1, 2), [ldK[0], mread(3)] if bb else [mread(5)]),
        (P('q', 0, 4), [mread(5)] if bb else [mread(7), f"v_lshrrev_b32 v{TMP + 3}, 2, v{vL16}"]),
        (P('q', 1, 4), [mread(7), f"v_lshrrev_b32 v{TMP + 3}, 2, v{vL16}"] if bb else [ldK[1], f"s_movk_i32 m0, {L_DUMMY}"]),
        (P('k', 0, 4), [ldK[1], f"s_movk_i32 m0, {L_DUMMY}"] if bb else [rf[3]]),
        (P('k', 1, 4), [rf[3]] if bb else [touch]),
        (P('q', 0, 6), [kxread(0)] + ([touch] if bb else [])),
        (P('q', 1, 6), [kxread(2), ldF]),
        (P('k', 0, 6), ([] if xo else [export]) + [lambda: trace_out('mid', SPARE)]),
        (P('k', 1, 6), [kxread(4), st_(2), lw(3)]),
        (P('q', 0, 3), [kxread(6)]),
        (P('q', 0, 5), [kxread(1)]),
        (P('q', 0, 7), [kxread(3)]),
        (P('q', 1, 3), [lambda: e.prewait(f"v_mov_b32 v{VX + 7}, v{VX + 7}"), "s_nop 0"]),
        (P('q', 1, 5), ["s_nop 1"] if xo else [progress]),
        (P('q', 1, 7), ["s_nop 0", q0p[0]]),
        (P('k', 0, 3), ["s_nop 0", q0p[1]]),
        (P('k', 0, 5), ["s_nop 0", q0p[2]]),
        (P('k', 0, 7), [q1p[0]]),
        (P('k', 1, 3), ["s_nop 0", q1p[1]]),
        (P('k', 1, 5), ["s_nop 0", q1p[2]]),
        (P('k', 1, 7), [f"ds_write2_b32 v{vTw}, v{ACC + 1}, v{ACC + 5} offset0:0 offset1:32", st_(3), k0p[0]]),
        (P('v', 0, 1), ["s_nop 0", k0p[1]]),
        (P('v', 1, 1), ["s_nop 0", k0p[2], k1p[0]]),
        (P('v', 0, 2), [k1p[1], k1p[2]]),
        (P('v', 1, 2), [f"ds_write2_b32 v{vTw}, v{EX}, v{EX + 1} offset0:1 offset1:33", z()]),
        (P('v', 0, 3), [z()]),
        (P('v', 1, 3), [z()]),
        (P('v', 0, 4), [z()]),
        (P('v', 1, 4), [e.lds_writes_done, z()]),
        (P('v', 0, 5), [e.barrier] + ([] if bc else xread(0))),
        (P('v', 1, 5), xread(1 - bc) + [z()]),
        (P('v', 0, 6), xread(2 - bc) + [z()]),
        (P('v', 0, 7), xread(3 - bc) + [z()]),
        (P('v', 1, 6), (xread(3) if bc else []) + ([] if lastsp else [f"s_cmp_eq_u32 s{sStep}, 63"]) + [z()]),
        (P('v', 1, 7), [st_(4), lw(6 if bc else 4), z()]),
        (smx(0), [z(), z()]),
        (smx(2), [kxread(5), lw(1)]),
        (smx(4), [kxread(7), v0p[0]]),
        (smx(6), [v0p[1], v0p[2]]),
        (smm(0), [v1p[0], v1p[1]]),
        (smm(1), [v1p[2], z()]),
        (smm(2), ([] if lastsp else ["s_cbranch_scc1 L_final"]) + [mx(m0, Sx[0], Sx[0] + 1, Sx[0] + 2)]),
        (smm(3), [z(), z()]),
        (smx(1), [lw(0), z()]),
        (smx(3), [f"v_exp_f32 v{m1}, v{vIdx}"] if cfg.get('warm', 1) == 1 else []),
        (smx(5), [mx(m0, m0, Sx[0] + 3, Sm + 2), f"v_max_f32 v{m0}, v{m0}, v{Sm + 3}"]),
        (smx(7), [wo[0], f"s_add_u32 s{sStep}, s{sStep}, 1", wo[1], f"s_xor_b32 s{sTog}, s{sTog}, 0x2000", wo[2],
                  f"s_mov_b32 s{sG}, s{sG2}", wo[3], f"v_xor_b32 v{vKXr}, 0x2000, v{vKXr}"]),
    ]
    e.slots(seq)
    assert not zero
    e(f"""{mx(m0, m0, Sx[1], Sx[1] + 1)}
          {mx(m0, m0, Sx[1] + 2, Sx[1] + 3)}
          v_mov_b32 v{m1}, v{m0}
          v_permlane32_swap_b32 v{m0}, v{m1}
          v_max_f32 v{m0}, v{m0}, v{m1}
          v_mov_b32 v{m1}, v{m0}
          v_permlane16_swap_b32 v{m0}, v{m1}
          v_max_f32 v{m0}, v{m0}, v{m1}
          v_mul_f32 v{m0}, s{sC}, v{m0}""")
    for j in (0, 2, 4, 6, 10):
        e(f"v_pk_fma_f32 {vr(ACC + j, 2)}, {vr(ACC + j, 2)}, {sr(sC, 2)}, {vr(m0, 2)} op_sel_hi:[1,0,0] neg_lo:[0,0,1] neg_hi:[0,0,1]")
    for j in (0, 1, 2, 3, 4, 5, 6, 7, 10, 11):
        e(f"v_exp_f32 v{ACC + j}, v{ACC + j}")
    stamp(5)
    for j in range(4):
        e(f"v_cvt_pk_bf16_f32 v{Px + j}, v{ACC + 2 * j}, v{ACC + 2 * j + 1}")
    e(f"""v_cvt_pk_bf16_f32 v{PM}, v{Sm + 2}, v{Sm + 3}
          v_cvt_pk_bf16_f32 v{PM + 3}, v{Sm + 2}, v{Sm + 3}
          v_pk_add_f32 {vr(ACC, 2)}, {vr(ACC, 2)}, {vr(ACC + 2, 2)}
          v_pk_add_f32 {vr(ACC + 4, 2)}, {vr(ACC + 4, 2)}, {vr(ACC + 6, 2)}
          v_pk_add_f32 {vr(ACC, 2)}, {vr(ACC, 2)}, {vr(Sm + 2, 2)}
          v_pk_add_f32 {vr(m0, 2)}, {vr(ACC, 2)}, {vr(ACC + 4, 2)}""")
    O = SPARE
    e.slots([
        (f"v_mfma_f32_16x16x32_bf16 {vr(O, 4)}, {vr(VX, 4)}, {vr(Px, 4)}, 0",
         [f"v_add_f32 v{m0}, v{m0}, v{m1}", f"v_mov_b32 v{m1}, v{m0}"]),
        (f"v_mfma_f32_16x16x32_bf16 {vr(O + 4, 4)}, {vr(VX + 4, 4)}, {vr(Px, 4)}, 0",
         [f"v_permlane32_swap_b32 v{m0}, v{m1}"]),
        (f"v_mfma_f32_16x16x16_bf16 {vr(O, 4)}, {vr(EX + 2, 2)}, {vr(PM, 2)}, {vr(O, 4)}",
         [f"v_add_f32 v{m0}, v{m0}, v{m1}", f"v_mov_b32 v{m1}, v{m0}"]),
        (f"v_mfma_f32_16x16x16_bf16 {vr(O + 4, 4)}, {vr(EX + 2, 2)}, {vr(PM + 2, 2)}, {vr(O + 4, 4)}",
         [f"v_permlane16_swap_b32 v{m0}, v{m1}", f"v_add_f32 v{m0}, v{m0}, v{m1}", f"v_rcp_f32 v{m0}, v{m0}",
          ] + ([f"v_mov_b32 v{HV}, s{sStep}", f"v_lshlrev_b32 v{HS}, 3, v{vL16}"] if ad else [])),
    ])
    for j in range(0, 8, 2):
        e(f"v_pk_mul_f32 {vr(O + j, 2)}, {vr(O + j, 2)}, {vr(m0, 2)} op_sel_hi:[1,0]")
    OA = ACC + 16
    for j in range(4):
        e(f"v_cvt_pk_bf16_f32 v{O + j}, v{O + 2 * j}, v{O + 2 * j + 1}")
    e(f"ds_write_b128 v{vOw}, {vr(O, 4)}")
    if xo:
        e(export)
        e(f"v_mov_b32 v{TMP + 2}, s{sProg}")
        e(progress.replace(f"v{TMP},", f"v{TMP + 2},"))
    if ad:
        e.comment("progress marker for 8 members per wave (timing hint only)")
        e(f"""s_mov_b64 exec, 0xff
              buffer_store_dword v{HV}, v{HS}, {W}, s{sHs} offen {st}
              s_mov_b64 exec, -1
              v_bfe_u32 v{HA}, v{vL16}, 2, 7
              v_mov_b64 {vr(HD, 2)}, 0
              v_mov_b64 {vr(HD + 2, 2)}, 0""")
        stamp(15)
    e.barrier()
    e(f"""ds_read_b128 {vr(OA, 4)}, v{vL16} offset:{L_OB}
          ds_read_b128 {vr(OA + 4, 4)}, v{vL16} offset:{L_OB + 1024}""")
    hs = cfg.get('hs', (-1, 0, 3, 6))
    if ad and hs[0] == -1:
        ldH(0)()
    stamp(6)
    OUT = SPARE

    def pstore(c):
        return f"buffer_store_dwordx4 {vr(OUT + 4 * c, 4)}, v{vPst}, {W}, s{sPbaseS} offen offset:{c * 2048} {st}"

    tag = lambda j: f"v_and_or_b32 v{OUT + j}, v{OUT + j}, -2, s{sG}"
    seq = []
    for t in range(8):
        for kb in range(2):
            k, b = loc[('o', t, kb)]
            if t >= 2:
                p = post(MA + 4 * (t - 2), OUT + t - 2)
                fl = p[0:1] if kb == 0 else p[1:3]
                if kb == 0 and t % 2 == 1:
                    fl = fl + [tag(t - 3)]
            else:
                fl = ["s_nop 0"]
            n = 2 * t + kb
            if 1 <= n <= 8:
                fl = [wo[3 + n]] + fl
            if ad and n in hs:
                fl = [ldH(hs.index(n))] + [x for x in fl if x != "s_nop 0"]
            if kb == 0 and t == 6:
                fl = [pstore(0)] + fl
            seq.append((f"v_smfmac_f32_16x16x64_bf16 {vr(MA + 4 * t, 4)}, {vr(OA + 4 * kb, 4)}, {vr(b, 8, k)}, v{vIdx}", fl))
    if cfg.get('wd', 0):
        seq[1], seq[2] = (seq[2][0], seq[1][1]), (seq[1][0], seq[2][1] + ["s_nop 0"])
        seq[3] = (seq[3][0], seq[3][1] + ["s_nop 0"])
    e.slots(seq)
    PL, D, SEL, PL2 = MA + 8, MA + 16, MA + 20, MA + 24
    e("\n".join(post(MA + 24, OUT + 6) + [tag(6)]))
    e("\n".join(post(MA + 28, OUT + 7)))
    e(pstore(1))
    stamp(7)
    trace_out('late', MA)
    e(f"s_bitcmp1_b32 s{S_WAVE}, 0\n s_cbranch_scc1 L_x1_{sfx}")
    e.slot_hook = None
    st0 = e.state()
    ldP = [f"buffer_load_dwordx4 {vr(PL, 4)}, v{vL16}, {W}, s{sPbaseL} offen sc1",
           f"buffer_load_dwordx4 {vr(PL + 4, 4)}, v{vL16}, {W}, s{sPbaseL} offen offset:1024 sc1"]
    tP, dM, eM, gM = cfg.get('tP', (260, 380)), cfg.get('dM', (270, 150)), cfg.get('eM', 200), cfg.get('gM', (110, 110))
    if sfx == 's':
        tP, dM, gM = cfg.get('tPs', (900, 1100)), cfg.get('dMs', (900, 700)), cfg.get('gMs', (300, 300))
    for w in range(2):
        if w:
            e.raw(".p2align 6")
            e.label(f"L_x{w}_{sfx}"); e.set_state(st0)
        clk = [[12, 48][w]]
        pa = prep_a_lines()
        valu = [f"v_cndmask_b32 v{SEL + j}, 0, v{vSelC}, {sr(sSel + 2 * j, 2)}" for j in range(4)] + scalar_lines() + [l for l in pa if not l.startswith('ds_')]
        if diag:
            valu += [f"s_cmp_eq_u32 s{sStep}, 10", f"s_cselect_b32 s{sDbgT + 6}, s0, s{sDbgT + 6}"] + [f"s_cselect_b32 s{k}, 0, s{k}" for k in range(12, 16)]
        reads = [l for l in pa if l.startswith('ds_')]
        late_v = [l for l in pa if not l.startswith('ds_')]
        pool = [l for l in valu if l not in late_v]
        pool = [l for l in pool if not l.startswith('v_')] + [l for l in pool if l.startswith('v_')]
        merged = []
        for l in pool:
            if l.startswith('s_cselect'):
                merged[-1] += '\n' + l
            else:
                merged.append(l)
        pool = merged
        def until(t):
            while clk[0] + 4 <= t and pool:
                l = pool.pop(0); e(l); clk[0] += 4 * (1 + l.count('\n'))
            if clk[0] + 4 <= t:
                delay(e, t - clk[0]); clk[0] = t

        if ad:
            ev = [f"v_cmp_gt_u32 {sr(sHm + 2 * k, 2)}, s{sStep}, v{HD + k}" for k in range(4)] + [f"s_mov_b32 s{sCnt}, 0"]
            for k in range(4):
                ev += [f"s_cmp_lg_u64 {sr(sHm + 2 * k, 2)}, 0", f"s_addc_u32 s{sCnt}, s{sCnt}, 0"]
            if diag:
                ev += [f"s_add_u32 s15, s15, s{sCnt}"]
            ev += [f"s_mul_i32 s{sCnt}, s{sCnt}, {cfg.get('hm', 2)}"]
            until(tP[w] - 4 * len(ev) - 12)
            e("\n".join(ev))
            e(f"L_ad{w}_{sfx}:\n s_sub_u32 s{sCnt}, s{sCnt}, 1\n s_cbranch_scc0 L_ad{w}_{sfx}")
        else:
            until(tP[w])
        if sfx == 's':
            assert not [l for l in pool if not l.startswith('v_')]
            e(f"""s_cmp_lg_u32 s{sStep}, s{sEnd}
                  s_cbranch_scc1 L_ho{w}
                  {export}
                  s_sub_u32 s{sMn2}, s{sMn2}, 0x8000
                  v_bfrev_b32 v{C0}, 2
                  v_cndmask_b32 v{vMst}, v{vMst}, v{C0}, {sr(sArm, 2)}
                  L_ho{w}:""")
        e.loose(ldP[0]); e.loose(ldP[1]); stamp(11)
        ldP2 = [x.replace(vr(PL, 4), vr(PL2, 4)).replace(vr(PL + 4, 4), vr(PL2 + 4, 4)) for x in ldP]
        need = scalar_lines()[:7]
        late_v = [l for l in pool if not l.startswith('v_') and l not in need and 's0' not in l] + late_v
        pool = [l for l in pool if l not in late_v]
        rest = reads + pool
        nsp = cfg.get('nsp', (10, 10))[w]
        e("\n".join(rest[:nsp]))
        if nsp is not None:
            delay(e, cfg.get('dP2', (60, 40))[w])
            e.loose(ldP2[0]); e.loose(ldP2[1])
        else:
            nsp = len(rest)
        spare = cfg.get('nsp', (10, 10))[w] is not None
        e("\n".join(rest[nsp:]))
        e(f"s_mov_b32 s{sNan}, 0")
        if diag:
            e.raw("  s_memtime s[0:1]")
        ny = 2 if spare else 0
        e(f"""s_waitcnt vmcnt({ny + 1})
              L_redP{w}_{sfx}:
              v_mfma_f32_16x16x32_bf16 {vr(D, 4)}, {vr(PL, 4)}, {vr(SEL, 4)}, 0
              s_waitcnt vmcnt({ny})
              v_mfma_f32_16x16x32_bf16 {vr(D, 4)}, {vr(PL + 4, 4)}, {vr(SEL, 4)}, {vr(D, 4)}
              v_xor_b32 v{C0}, s{sG}, v{PL}
              v_bitop3_b32 v{C0}, v{C0}, v{PL + 2}, s{sG} bitop3:0xf6
              v_bitop3_b32 v{C0}, v{C0}, v{PL + 4}, s{sG} bitop3:0xf6
              v_bitop3_b32 v{C0}, v{C0}, v{PL + 6}, s{sG} bitop3:0xf6
              v_and_b32 v{C0}, 1, v{C0}
              v_cmp_ne_u32 vcc, 0, v{C0}
              v_cmp_ne_u32 {sr(sFm, 2)}, 0, v{TMP + 3}
              s_cbranch_vccnz L_reP{w}_{sfx}
              v_permlane32_swap_b32 v{D}, v{D + 2}
              v_permlane32_swap_b32 v{D + 1}, v{D + 3}
              v_add_f32 v{D}, v{D}, v{D + 2}
              v_add_f32 v{D + 1}, v{D + 1}, v{D + 3}
              v_permlane16_swap_b32 v{D}, v{D + 1}
              v_add_f32 v{D}, v{D}, v{D + 1}
              v_mov_b32_dpp v{D + 1}, v{D} quad_perm:[2,3,0,1] row_mask:0xf bank_mask:0xf
              v_cvt_pk_bf16_f32 v{D}, v{D}, v{D + 1}
              v_min_u32 v{D}, -2, v{D}
              v_cndmask_b32 v{VX + 4}, v{D}, -1, {sr(sArm, 2)}
              buffer_store_dword v{VX + 4}, v{vMst}, {W}, s{sMn2} offen {st}""")
        stamp(8)
        if sfx == 's':
            e(f"s_cmp_eq_u32 s{sStep}, s{sEnd}\n s_cbranch_scc1 L_ec_done")
        pb = ["s_waitcnt vmcnt(1)"] + prep_b_lines()
        d = dM[w]
        if d >= 100:
            e("\n".join(pb)); d -= 100; pb = []
        delay(e, d)
        e.loose(mload(0)); stamp(12)
        d = gM[w]
        if pb:
            pb[0] = "s_waitcnt vmcnt(2)"
            e("\n".join(pb)); d -= 100
        gl = cfg.get('gL', 60)
        d -= gl
        k = max(0, min(len(late_v), d // 4))
        e("\n".join(late_v[:k])); d -= 4 * k
        delay(e, d)
        e.loose(mload(0))
        k2 = min(len(late_v), k + gl // 4)
        e("\n".join(late_v[k:k2])); delay(e, gl - 4 * (k2 - k)); k = k2
        e.loose(mload(1))
        e("\n".join(late_v[k:]))
        if lastsp:
            e(f"s_cmp_eq_u32 s{sStep}, 63\n s_cbranch_scc1 L_last_{sfx}")
        e(f"""s_bitcmp1_b64 {sr(sFm, 2)}, s{sOK2}
              s_waitcnt lgkmcnt(0)
              s_cbranch_scc1 L_step_{sfx}
              s_branch L_flag_{sfx}""")
        e.forget()
        e(f"L_reP{w}_{sfx}:")
        if spare:
            e("s_waitcnt vmcnt(0)")
            for j in range(0, 8, 2):
                e(f"v_mov_b64 {vr(PL + j, 2)}, {vr(PL2 + j, 2)}")
            e.loose(ldP2[0]); e.loose(ldP2[1])
        else:
            e.loose(ldP[0]); e.loose(ldP[1])
            e("s_waitcnt vmcnt(1)")
        e(f"""{'s_add_u32 s12, s12, 1' if diag else ''}
              s_sub_u32 s{S_SPIN}, s{S_SPIN}, 1
              s_cbranch_scc0 L_redP{w}_{sfx}
              s_branch L_end""")
    e.forget()
    e(f"""L_flag_{sfx}:
          v_lshrrev_b32 v{C0}, 2, v{vL16}
          buffer_load_dword v{C0}, v{C0}, {W}, s{sFl} offen sc1
          s_sub_u32 s{S_SPIN}, s{S_SPIN}, 1
          s_cbranch_scc1 L_end
          v_cmp_ne_u32 {sr(sFm, 2)}, 0, v{C0}
          s_bitcmp1_b64 {sr(sFm, 2)}, s{sOK2}
          s_cbranch_scc1 L_step_{sfx}
          s_branch L_flag_{sfx}""")
    e.forget()
    e(f"L_retE_{sfx}:")
    e.loose(mload(0)); e.loose(mload(1))
    if spec:
        e(f"s_nop 3\n v_mov_b64 {vr(ACC, 2)}, 0\n v_mov_b64 {vr(ACC + 2, 2)}, 0")
    e(f"""{'s_add_u32 s13, s13, 1' if diag else ''}
          s_sub_u32 s{S_SPIN}, s{S_SPIN}, 1
          s_waitcnt vmcnt(3)
          s_cbranch_scc0 L_chkE_{sfx}
          s_branch L_end""")
    if xe:
        e(f"""L_retL_{sfx}:
              {'s_add_u32 s14, s14, 1' if diag else ''}
              s_sub_u32 s{S_SPIN}, s{S_SPIN}, 1
              s_cbranch_scc1 L_end
              s_bitcmp1_b32 s{sNan}, 0
              s_bitset1_b32 s{sNan}, 0
              s_waitcnt vmcnt(4)
              s_cbranch_scc0 L_retL1_{sfx}""")
        e.loose(mload(1))
        e(f"s_waitcnt vmcnt(0)\n L_retL1_{sfx}:")
    else:
        e(f"L_retL_{sfx}:")
        e.loose(mload(1))
        e(f"""{'s_add_u32 s14, s14, 1' if diag else ''}
              s_sub_u32 s{S_SPIN}, s{S_SPIN}, 1
              s_cbranch_scc1 L_end
              s_bitcmp1_b32 s{sNan}, 0
              s_bitset1_b32 s{sNan}, 0
              s_waitcnt vmcnt(3)
              s_cbranch_scc0 L_retL1_{sfx}
              s_waitcnt vmcnt(1)
              L_retL1_{sfx}:""")
    e("\n".join(cl_))
    e(f"""ds_write_b128 v{vMw}, {vr(MA + 4, 4)} offset:4096
          s_cbranch_vccz L_okL_{sfx}
          s_branch L_retL_{sfx}""")
    if not lastsp:
        return
    e.forget()
    e(f"L_lret_{sfx}:")
    e.loose(mload(0)); e.loose(mload(1))
    e(f"""s_sub_u32 s{S_SPIN}, s{S_SPIN}, 1
          s_cbranch_scc1 L_end
          L_last_{sfx}:
          s_waitcnt vmcnt(0) lgkmcnt(0)""")
    e("\n".join(check((0, 1))))
    e(f"""ds_write_b128 v{vMw}, {vr(MA, 4)}
          ds_write_b128 v{vMw}, {vr(MA + 4, 4)} offset:4096
          s_cbranch_vccnz L_lret_{sfx}""")
    own = [(m, ft, i) for i in (0, 1) for m in 'kv' for ft in range(2)]
    seq = [(P(*op), []) for op in own]
    if not xo:
        seq[0][1].append(export)
    seq[3][1].extend([progress, e.barrier, mread(2), mread(3)])
    for k in range(4):
        seq[4 + k][1].append(mread(4 + k))
    seq += [(P(m, ft, i), []) for i in range(2, 6) for m in 'kv' for ft in range(2)]
    seq += [(P(m, ft, i), []) for m in 'kv' for ft in range(2) for i in (6, 7)]
    e.slots(seq)
    e("\n".join(k0p + k1p + v0p + v1p))
    e("s_branch L_final")


def chain_final(e, cfg):
    e.forget()
    e("L_final:")
    if cfg.get('holdend'):
        e(f"""L_hold2:
              s_memrealtime s[92:93]
              s_waitcnt lgkmcnt(0)
              s_sub_u32 s92, s92, s94
              s_cmp_lt_u32 s92, {cfg['holdend']}
              s_cbranch_scc1 L_hold2""")
    e(f"""s_add_u32 s{sExp}, s{sExp}, {0 if cfg.get('xo', 0) else 4096}
          buffer_store_dwordx4 {vr(EX, 4)}, v{vL16}, {W}, s{sExp} offen sc1
          s_waitcnt lgkmcnt(0)""")
    if cfg.get('diag'):
        e(f"""s_memrealtime {sr(sDbgT + 12, 2)}
              s_lshl_b32 s{sA}, s{S_ROLE}, 2
              s_add_u32 s{sA}, s{sA}, s{S_WAVE}
              s_lshl_b32 s{sA}, s{sA}, 6
              s_add_u32 s{sA}, s{sA}, 0x6000000
              s_waitcnt lgkmcnt(0)
              s_sub_u32 s{sDbgT + 8}, s0, s{sDbgT + 6}""")
        for n, r in enumerate([sDbgT + 8, sDbgT + 5, S_SPIN, sDbgT + 14, sDbgT + 10, sDbgT + 12, 12, 13, 14, 15]):
            e(f"v_mov_b32 v{TMP + 2}, s{r}\n buffer_store_dword v{TMP + 2}, off, {W}, s{sA} offset:{4 * n}")
    dbg_max(e, cfg, 12, v=TMP + 2)
    e("s_waitcnt vmcnt(0)\n s_branch L_end")


def chain_handover(e):
    e.forget()
    e(f"""L_ec_done:
          v_mbcnt_lo_u32_b32 v0, -1, 0
          v_mbcnt_hi_u32_b32 v0, -1, v0
          s_sub_u32 s50, s{S_ROLE}, 32
          s_waitcnt vmcnt(0) lgkmcnt(0)
          s_barrier
          s_branch L_phase2""")


def chain(e, cfg):
    CFG.clear(); CFG.update(cfg)
    chain_startup(e, cfg)
    chain_loop(e, cfg, 'f', '')
    chain_loop(e, cfg, 's', 'sc1')
    chain_final(e, cfg)
    chain_handover(e)
```

```python
from common import *

W = sr(S_WS, 4)
DBG = sr(S_DBG, 4)
sWid, sA, sB, sC_, sD, sE, sF, sG, sH, sI, sJ, sK = range(50, 62)
S_W0, S_W1, S_W2, S_X = 64, 68, 72, 76
PS = [4]
NEG = 0xf149f2ca


def wait_init(e, tag, tmp, nap=16):
    e(f"""L_wi_{tag}:
          s_sleep {nap}
          buffer_load_dword v{tmp}, off, {DBG}, 0 offset:{D_INIT} sc1
          s_sub_u32 s{S_SPIN}, s{S_SPIN}, 1
          s_cbranch_scc1 L_end
          v_readfirstlane_b32 s{sA}, v{tmp}
          s_and_b32 s{sA}, s{sA}, 0xffff
          s_cmp_eq_u32 s{sA}, 256
          s_cbranch_scc0 L_wi_{tag}""")


def count_in(e, tmp):
    e(f"""v_mov_b32 v{tmp}, 1
          s_mov_b64 exec, 1
          buffer_atomic_add v{tmp}, off, {DBG}, 0 offset:{D_INIT}
          s_mov_b64 exec, -1""")


def srd_sel(e, s, pa, pb, na, nb):
    e(f"""s_cselect_b32 s{s}, s{pa}, s{pb}
          s_cselect_b32 s{s+1}, s{pa+1}, s{pb+1}
          s_mov_b32 s{s+2}, {nb}
          s_cselect_b32 s{s+2}, {na}, s{s+2}
          s_mov_b32 s{s+3}, 0x20000""")


def lane_consts(e, lane, l16, sig):
    e(f"""v_and_b32 v{lane}, 63, v0
          v_lshlrev_b32 v{l16}, 4, v{lane}
          v_and_b32 v{sig}, 39, v{lane}
          v_bfe_u32 v{lane + 1}, v{lane}, 3, 1
          v_lshl_or_b32 v{sig}, v{lane + 1}, 4, v{sig}
          v_bfe_u32 v{lane + 1}, v{lane}, 4, 1
          v_lshl_or_b32 v{sig}, v{lane + 1}, 3, v{sig}
          v_lshlrev_b32 v{sig}, 4, v{sig}""")


XROW = 1040
XBUF = 32 * XROW
RING0 = 33792


def proj(e, cfg):
    lane, t1, vL16, vSig, vSrc, vTr, vXr, vT, vIn = 1, 2, 3, 4, 5, 6, 7, 8, 9
    XF, ACC, OUT = 16, 32, 80
    sHH, sSeg, sStride, sCol, sUnit, sFlag, sXb, sPrev = sC_, sD, sE, sF, sG, sH, sI, sJ
    NP = 5 if cfg.get('ne', 0) else 6
    e(f"""s_mul_i32 s{sHH}, s63, {205 if NP == 5 else 171}
          s_lshr_b32 s{sHH}, s{sHH}, 10
          s_mul_i32 s{sA}, s{sHH}, {NP}
          s_sub_u32 s{sSeg}, s63, s{sA}
          s_cmp_lt_u32 s{sHH}, 32""")
    srd_sel(e, S_W0, P_WQ, P_AWQKV, 0x400000, 0x180000)
    srd_sel(e, S_W1, P_WK, P_AWQKV, 0x400000, 0x180000)
    srd_sel(e, S_W2, P_WV, P_AWQKV, 0x400000, 0x180000)
    srd_sel(e, S_X, P_BX, P_AX, 0x200000, 0x200000)
    e(f"""s_mov_b32 s{sStride}, 3072
          s_cselect_b32 s{sStride}, 8192, s{sStride}
          s_cselect_b32 s{sK}, 0, 1024
          s_and_b32 s{sCol}, s{sHH}, 31
          s_lshl_b32 s{sCol}, s{sCol}, 8""")
    lane_consts(e, lane, vL16, vSig)
    e(f"""v_lshrrev_b32 v{t1}, 4, v{lane}
          v_mul_lo_u32 v{vSrc}, v{t1}, s{sStride}
          v_lshlrev_b32 v{t1}, 2, v{t1}
          v_xor_b32 v{t1}, v{t1}, v{lane}
          v_and_b32 v{t1}, 15, v{t1}
          v_lshl_add_u32 v{vSrc}, v{t1}, 4, v{vSrc}""")
    e(f"""v_lshrrev_b32 v{t1}, 5, v{lane}
          v_lshlrev_b32 v{vTr}, 11, v{t1}
          v_bfe_u32 v{t1}, v{lane}, 2, 2
          v_lshl_add_u32 v{vTr}, v{t1}, 8, v{vTr}
          v_bfe_u32 v{t1}, v{lane}, 4, 1
          v_lshl_add_u32 v{vTr}, v{t1}, 5, v{vTr}
          v_and_b32 v{t1}, 3, v{lane}
          v_lshl_add_u32 v{vTr}, v{t1}, 3, v{vTr}
          v_bfe_u32 v{t1}, v{lane}, 2, 2
          v_xor_b32 v{t1}, s{S_WAVE}, v{t1}
          v_lshl_add_u32 v{vTr}, v{t1}, 6, v{vTr}""")
    e(f"""v_and_b32 v{t1}, 31, v{lane}
          v_mul_u32_u24 v{vXr}, {XROW}, v{t1}
          v_lshrrev_b32 v{t1}, 5, v{lane}
          v_lshl_add_u32 v{vXr}, v{t1}, 4, v{vXr}""")
    e(f"""s_lshl_b32 s{sA}, s{sHH}, 6
          s_add_u32 s{sA}, s{sA}, s{sSeg}
          s_mul_i32 s{sUnit}, s{sA}, {UNIT}
          s_lshl_b32 s{sB}, s{S_WAVE}, 11
          s_add_u32 s{sUnit}, s{sUnit}, s{sB}
          s_lshl_b32 s{sFlag}, s{sA}, 2
          s_add_u32 s{sFlag}, s{sFlag}, {F_QKV}
          s_mov_b32 s{sXb}, 0""")

    def xdma(seg_s, buf_s):
        e(f"""s_lshl_b32 s{sA}, s{seg_s}, 15
              s_lshl_b32 s{sB}, s{S_WAVE}, 13
              s_add_u32 s{sA}, s{sA}, s{sB}
              s_mul_i32 s{sB}, s{S_WAVE}, {8 * XROW}
              s_add_u32 s{sB}, s{sB}, s{buf_s}""")
        return [f"""s_add_u32 m0, s{sB}, {j * XROW}
                  s_add_u32 s3, s{sA}, {j * 1024}
                  buffer_load_dwordx4 v{vL16}, {sr(S_X, 4)}, s3 offen lds""" for j in range(8)]

    if cfg.get('wpf', 0):
        e.comment("the six workers of a head each request a sixth of its weights at once (one word per line)")
        e(f"""s_lshr_b32 s62, s{sSeg}, 1
              s_cmp_eq_u32 s62, 1
              s_cselect_b32 s{S_T0}, s{S_W1}, s{S_W0}
              s_cselect_b32 s{S_T0 + 1}, s{S_W1 + 1}, s{S_W0 + 1}
              s_cmp_eq_u32 s62, 2
              s_cselect_b32 s{S_T0}, s{S_W2}, s{S_T0}
              s_cselect_b32 s{S_T0 + 1}, s{S_W2 + 1}, s{S_T0 + 1}
              s_mov_b32 s{S_T0 + 2}, s{S_W0 + 2}
              s_mov_b32 s{S_T0 + 3}, 0x20000
              s_mul_i32 s62, s62, s{sK}
              s_add_u32 s62, s62, s{sCol}
              s_and_b32 s63, s{sSeg}, 1
              s_lshl_b32 s63, s63, 2
              s_add_u32 s63, s63, s{S_WAVE}
              s_lshl_b32 s63, s63, 6
              s_mul_i32 s63, s63, s{sStride}
              s_add_u32 s62, s62, s63
              v_mul_lo_u32 v{vT}, v{lane}, s{sStride}""")
        e.loose(f"buffer_load_dword v124, v{vT}, {sr(S_T0, 4)}, s62 offen")
        e.loose(f"buffer_load_dword v124, v{vT}, {sr(S_T0, 4)}, s62 offen offset:128")
    for l in xdma(sSeg, sXb):
        e(l)
    sRow = sPrev
    e(f"""s_lshl_b32 s{sA}, s{S_WAVE}, 4
          s_mul_i32 s{sRow}, s{sA}, s{sStride}
          s_add_u32 s{sRow}, s{sRow}, s{sCol}
          s_lshl_b32 s62, s{sStride}, 2
          s_lshl_b32 s63, s{S_WAVE}, 12""")
    order = cfg.get('po', [0, 1, 2])
    srds = [S_W0, S_W1, S_W2]
    dst = [('a', 0), ('a', 128), ('v', 128)]
    marks = {}

    def dma(r):
        m, b = order[r // 8], r % 8
        e(f"""s_mul_i32 s{sA}, s{sStride}, {64 * b}
              s_add_u32 s{sA}, s{sA}, s{sRow}
              s_mul_i32 s{sB}, s{sK}, {m}
              s_add_u32 s{sA}, s{sA}, s{sB}""")
        for j in range(4):
            e(f"""s_add_u32 m0, s63, {RING0 + (r % 7) * 16384 + j * 1024}
                  buffer_load_dwordx4 v{vSrc}, {sr(srds[m], 4)}, s{sA} offen lds""")
            if j < 3:
                e(f"s_add_u32 s{sA}, s{sA}, s62")
        marks[r] = e.vm[-1]

    for r in range(6):
        dma(r)
    confirm_barrier(e, 'pj')
    for r in range(24):
        m, b = order[r // 8], r % 8
        e.wait(vm=len(e.vm) - 1 - e.vm.index(marks[r]), lgkm=0)
        e("s_barrier")
        if r == 18:
            e(f"buffer_load_dword v{vT + 1}, off, {DBG}, 0 offset:{D_INIT} sc1")
        if r + 6 < 24:
            dma(r + 6)
        e(f"v_add_u32 v{vT + 2}, {RING0 + (r % 7) * 16384}, v{vTr}")
        k, base = dst[m]
        for ksl in range(4):
            for z in range(2):
                e(f"ds_read_b64_tr_b16 {vr(base + 4 * (4 * b + ksl) + 2 * z, 2, k)}, v{vT + 2} offset:{(16 * ksl + 4 * z) * 256}")
    e.wait(vm=0, lgkm=0)
    dbg_max(e, cfg, 14, v=vT + 3)
    e(f"""v_readfirstlane_b32 s{sA}, v{vT + 1}
          s_and_b32 s{sA}, s{sA}, 0xffff
          s_cmp_eq_u32 s{sA}, 256
          s_cbranch_scc1 L_pj_go""")
    wait_init(e, 'pj', vT)
    e.label("L_pj_go")
    if cfg.get('pjhold'):
        e(f"""L_hold3:
              s_memrealtime s[92:93]
              s_waitcnt lgkmcnt(0)
              s_sub_u32 s92, s92, s94
              s_cmp_lt_u32 s92, {cfg['pjhold']}
              s_cbranch_scc1 L_hold3""")
    if cfg.get('diag'):
        e("s_memrealtime s[86:87]\n s_waitcnt lgkmcnt(0)")
    e(f"s_mov_b32 s{sPrev}, 0\n v_mov_b32 v{vIn}, 1")
    e.forget()
    e.label("L_pj_loop")
    e(f"""s_waitcnt vmcnt(6)
          s_barrier
          v_add_u32 v{vT}, s{sXb}, v{vXr}
          s_add_u32 s62, s{sSeg}, {NP}
          s_min_u32 s62, s62, 63
          s_sub_u32 s63, {XBUF}, s{sXb}""")
    nxt = xdma(62, 63)
    for ks in range(3):
        e(f"ds_read_b128 {vr(XF + 4 * ks, 4)}, v{vT} offset:{32 * ks}")
    for ks in range(32):
        x = vr(XF + 4 * (ks % 4), 4)
        c = [('0' if ks == 0 else vr(ACC + 16 * m, 16)) for m in range(3)]
        e(f"v_mfma_f32_32x32x16_bf16 {vr(ACC, 16)}, {vr(4 * ks, 4, 'a')}, {x}, {c[0]}")
        if ks + 3 < 32:
            e(f"ds_read_b128 {vr(XF + 4 * ((ks + 3) % 4), 4)}, v{vT} offset:{32 * (ks + 3)}")
        e(f"v_mfma_f32_32x32x16_bf16 {vr(ACC + 16, 16)}, {vr(128 + 4 * ks, 4, 'a')}, {x}, {c[1]}")
        if ks < 8:
            e(nxt[ks])
        if ks == 20:
            e.comment("the previous segment's stores of every wave are complete behind this barrier: raise its flag")
            e(f"""s_waitcnt vmcnt(8)
                  s_barrier
                  s_cmp_eq_u32 s{sPrev}, 0
                  s_cbranch_scc1 L_pj_nf
                  s_mov_b64 exec, 1
                  buffer_store_dword v{vIn}, off, {W}, s{sPrev} sc1
                  s_mov_b64 exec, -1
                  L_pj_nf:""")
            e.vm.pop()
        e(f"v_mfma_f32_32x32x16_bf16 {vr(ACC + 32, 16)}, {x}, {vr(128 + 4 * ks, 4)}, {c[2]}")
    for m in range(3):
        for j in range(8):
            e(f"v_cvt_pk_bf16_f32 v{OUT + 8 * m + j}, v{ACC + 16 * m + 2 * j}, v{ACC + 16 * m + 2 * j + 1}")
        a = vSig if m == 1 else vL16
        e(f"""s_add_u32 s{sA}, s{sUnit}, {8192 * m}
              buffer_store_dwordx4 {vr(OUT + 8 * m, 4)}, v{a}, {W}, s{sA} offen sc1
              buffer_store_dwordx4 {vr(OUT + 8 * m + 4, 4)}, v{a}, {W}, s{sA} offen offset:1024 sc1""")
    e(f"""s_cmp_eq_u32 s{S_WAVE}, 0
          s_cselect_b32 s{sPrev}, s{sFlag}, 0
          s_cmp_ge_u32 s{sSeg}, {NP}
          s_cbranch_scc1 L_pj_later
          s_waitcnt vmcnt(0)
          s_barrier
          s_cmp_eq_u32 s{sPrev}, 0
          s_cbranch_scc1 L_pj_later
          s_mov_b64 exec, 1
          buffer_store_dword v{vIn}, off, {W}, s{sPrev} sc1
          s_mov_b64 exec, -1
          L_pj_later:
          s_add_u32 s{sFlag}, s{sFlag}, {4 * NP}
          s_add_u32 s{sUnit}, s{sUnit}, {NP * UNIT}
          s_sub_u32 s{sXb}, {XBUF}, s{sXb}
          s_add_u32 s{sSeg}, s{sSeg}, {NP}
          s_cmp_lt_u32 s{sSeg}, 64
          s_cbranch_scc1 L_pj_loop
          s_waitcnt vmcnt(0)
          s_barrier
          s_cmp_eq_u32 s{sPrev}, 0
          s_cbranch_scc1 L_phase2
          s_mov_b64 exec, 1
          buffer_store_dword v{vIn}, off, {W}, s{sPrev} sc1
          s_mov_b64 exec, -1""")


def poll_ge(e, tag, tmp, voff, soff, cmpv, nl):
    off = f"v{voff}" if voff is not None else "off"
    e(f"""L_pg_{tag}:
          buffer_load_dword v{tmp}, {off}, {W}, {soff} {'offen' if voff is not None else ''} sc1
          s_sub_u32 s{S_SPIN}, s{S_SPIN}, 1
          s_cbranch_scc1 L_end
          v_cmp_gt_u32 vcc, {cmpv}, v{tmp}
          s_and_b32 vcc_lo, vcc_lo, {(1 << nl) - 1}
          s_cbranch_scc0 L_pk_{tag}
          s_sleep {PS[0]}
          s_branch L_pg_{tag}
          L_pk_{tag}:""")


def nap_until(e, tag, tmp, soff, need, st, unit):
    e(f"""L_nap_{tag}:
          buffer_load_dword v{tmp}, off, {W}, {soff} sc1
          s_sub_u32 s{S_SPIN}, s{S_SPIN}, 1
          s_cbranch_scc1 L_end
          v_readfirstlane_b32 s{st}, v{tmp}
          s_sub_u32 s{st}, {need}, s{st}
          s_cbranch_scc1 L_napx_{tag}
          s_cmp_eq_u32 s{st}, 0
          s_cbranch_scc1 L_napx_{tag}
          s_min_u32 s{st}, s{st}, 8
          L_napl_{tag}:
          s_sleep {unit}
          s_sub_u32 s{st}, s{st}, 1
          s_cmp_lg_u32 s{st}, 0
          s_cbranch_scc1 L_napl_{tag}
          s_branch L_nap_{tag}
          L_napx_{tag}:""")


def tstamp(e, cfg, n):
    if cfg.get('tdiag'):
        e(f"s_memrealtime {sr(20 + 2 * n, 2)}\n s_waitcnt lgkmcnt(0)")


def tdump(e, cfg):
    if cfg.get('tdiag'):
        e(f"""s_lshl_b32 s{sA}, s{S_ROLE}, 2
              s_add_u32 s{sA}, s{sA}, s{S_WAVE}
              s_lshl_b32 s{sA}, s{sA}, 5
              s_add_u32 s{sA}, s{sA}, 0x6500000""")
        for n in range(6):
            e(f"v_mov_b32 v2, s{20 + 2 * n}\n buffer_store_dword v2, off, {W}, s{sA} offset:{4 * n}")


def softmax_tail(e, vals, m0, m1, sC):
    v = list(vals)
    e(f"v_max3_f32 v{m0}, v{v[0]}, v{v[1]}, v{v[2]}")
    k = 3
    while k + 1 < len(v):
        e(f"v_max3_f32 v{m0}, v{m0}, v{v[k]}, v{v[k + 1]}"); k += 2
    if k < len(v):
        e(f"v_max_f32 v{m0}, v{m0}, v{v[k]}")
    e(f"""v_mov_b32 v{m1}, v{m0}
          v_permlane32_swap_b32 v{m0}, v{m1}
          v_max_f32 v{m0}, v{m0}, v{m1}
          v_mul_f32 v{m0}, s{sC}, v{m0}""")
    for r in v:
        e(f"v_fma_f32 v{r}, v{r}, s{sC}, -v{m0}")
    for r in v:
        e(f"v_exp_f32 v{r}, v{r}")
    e(f"v_add_f32 v{m0}, v{v[0]}, v{v[1]}\n v_add_f32 v{m1}, v{v[2]}, v{v[3]}")
    for k in range(4, len(v), 2):
        e(f"v_add_f32 v{m0}, v{m0}, v{v[k]}\n v_add_f32 v{m1}, v{m1}, v{v[k + 1]}")
    e(f"""v_add_f32 v{m0}, v{m0}, v{m1}
          v_mov_b32 v{m1}, v{m0}
          v_permlane32_swap_b32 v{m0}, v{m1}
          v_add_f32 v{m0}, v{m0}, v{m1}
          v_rcp_f32 v{m0}, v{m0}""")


def attn_b(e, cfg):
    lane, t1, vL16, vSig, vVm, vKm, vT, m0, m1, vOne, vF, vLw = range(1, 13)
    BIAS, Q, K, V, S, D0, D1, KM, VM, PX, PMm, O = 16, 32, 64, 96, 128, 144, 160, 176, 192, 208, 216, 128
    sSeg, sUnit, sExp, sOut, sFq, sFc, sFa, sCc, sLds = sC_, sD, sE, sF, sG, sH, sI, sJ, sK
    h = sWid
    lane_consts(e, lane, vL16, vSig)
    e(f"""v_and_b32 v{t1}, 31, v{lane}
          v_lshrrev_b32 v{vT}, 5, v{lane}
          v_lshlrev_b32 v{vT}, 2, v{vT}
          v_sub_u32 v{t1}, v{t1}, v{vT}
          v_mov_b32 v{vT}, {NEG}""")
    for r in range(16):
        e(f"v_cmp_gt_i32 vcc, {8 * (r >> 2) + (r & 3)}, v{t1}\n v_cndmask_b32 v{BIAS + r}, 0, v{vT}, vcc")
    e(f"""v_lshrrev_b32 v{t1}, 5, v{lane}
          v_lshlrev_b32 v{vVm}, 8, v{t1}
          v_and_b32 v{t1}, 15, v{lane}
          v_lshl_add_u32 v{vVm}, v{t1}, 4, v{vVm}
          v_bfe_u32 v{t1}, v{lane}, 4, 1
          v_lshl_add_u32 v{vVm}, v{t1}, 2, v{vVm}
          v_add_u32 v{vVm}, 8, v{vVm}""")
    e(f"""s_lshl_b32 s{sLds}, s{S_WAVE}, 12
          v_and_b32 v{t1}, 3, v{lane}
          v_lshlrev_b32 v{vKm}, 8, v{t1}
          v_lshrrev_b32 v{t1}, 5, v{lane}
          v_lshl_add_u32 v{vKm}, v{t1}, 6, v{vKm}
          v_bfe_u32 v{t1}, v{lane}, 2, 2
          v_lshl_add_u32 v{vKm}, v{t1}, 4, v{vKm}
          v_add_u32 v{vKm}, s{sLds}, v{vKm}
          v_add_u32 v{vVm}, s{sLds}, v{vVm}
          v_add_u32 v{vLw}, s{sLds}, v{vL16}
          v_and_b32 v{vF}, 3, v{lane}
          v_lshlrev_b32 v{vF}, 2, v{vF}
          v_mov_b32 v{vOne}, 1""")
    for wc in range(4):
        e(f"v_mov_b64 {vr(VM + 4 * wc + 2, 2)}, 0")
    e(f"v_mov_b64 {vr(PMm + 2, 2)}, 0")
    e(f"""s_mov_b32 s{sSeg}, s{S_WAVE}
          s_lshl_b32 s{sA}, s{h}, 6
          s_add_u32 s{sA}, s{sA}, s{sSeg}
          s_mul_i32 s{sUnit}, s{sA}, {UNIT}
          s_lshl_b32 s{sExp}, s{sA}, 12
          s_add_u32 s{sExp}, s{sExp}, {WS_EXP}
          s_lshl_b32 s{sFq}, s{sA}, 2
          s_add_u32 s{sFq}, s{sFq}, {F_QKV}
          s_lshl_b32 s{sFc}, s{h}, 7
          s_add_u32 s{sFc}, s{sFc}, {F_CH}
          s_lshl_b32 s{sA}, s{sSeg}, 5
          s_add_u32 s{sA}, s{sA}, s{h}
          s_lshl_b32 s{sOut}, s{sA}, 13
          s_add_u32 s{sOut}, s{sOut}, {WS_OF}
          s_lshr_b32 s{sFa}, s{sA}, 3
          s_lshl_b32 s{sFa}, s{sFa}, 7
          s_and_b32 s{sA}, s{h}, 7
          s_lshl_b32 s{sA}, s{sA}, 2
          s_add_u32 s{sFa}, s{sFa}, s{sA}
          s_add_u32 s{sFa}, s{sFa}, {F_AT}
          s_mov_b32 s{sCc}, 0x3e0293ee""")
    e.wait(vm=0, lgkm=0)
    e.label("L_ab_loop")
    poll_ge(e, 'abq', vT, None, f"s{sFq}", 1, 1)
    e(f"s_add_u32 s{sA}, s{sUnit}, 4096")
    for base, a, off in ((K, vSig, 8192), (Q, vL16, 0), (V, vL16, 16384)):
        e(f"s_add_u32 s{sA}, s{sUnit}, {off}\n s_add_u32 s{sB}, s{sUnit}, {off + 4096}")
        for j in range(8):
            e(f"buffer_load_dwordx4 {vr(base + 4 * j, 4)}, v{a}, {W}, s{sA if j < 4 else sB} offen offset:{1024 * (j & 3)} sc1")
    for j in range(8):
        c = vr(BIAS, 16) if j == 0 else vr(S, 16)
        e(f"v_mfma_f32_32x32x16_bf16 {vr(S, 16)}, {vr(K + 4 * j, 4)}, {vr(Q + 4 * j, 4)}, {c}")
    e(f"""s_add_u32 s{sA}, s{sSeg}, 1
          s_sub_u32 s62, s{sSeg}, 1
          s_min_u32 s62, s62, 61
          s_cmp_ge_u32 s{sSeg}, {64 - NTAIL}
          s_cselect_b32 s{sA}, s62, s{sA}
          s_sub_u32 s62, s{sA}, 1""")
    e.wait(vm=0)
    if cfg.get('nap', 1):
        nap_until(e, 'ab', vT, f"s{sFc}", "s62", sB, cfg.get('napu', 24))
    poll_ge(e, 'abc', vT, vF, f"s{sFc}", f"s{sA}", 4)
    e(f"s_mov_b32 s62, {SENT1}\n s_branch L_ab_ex1\n L_ab_ex:\n s_sleep {cfg.get('exs', 0)}\n L_ab_ex1:")
    for j in range(4):
        e(f"buffer_load_dwordx4 {vr(D0 + 4 * j, 4)}, v{vL16}, {W}, s{sExp} offen offset:{1024 * j} sc1")
    e(f"s_sub_u32 s{S_SPIN}, s{S_SPIN}, 1\n s_cbranch_scc1 L_end")
    for j in range(16):
        e(f"v_xor_b32 v{D1 + j}, s62, v{D0 + j}")
    for j in range(4):
        e(f"ds_write_b128 v{vLw}, {vr(D0 + 4 * j, 4)} offset:{1024 * j}")
    e(f"v_min3_u32 v{vT}, v{D1}, v{D1 + 1}, v{D1 + 2}")
    for j in range(3, 15, 2):
        e(f"v_min3_u32 v{vT}, v{vT}, v{D1 + j}, v{D1 + j + 1}")
    e(f"""v_min_u32 v{vT}, v{vT}, v{D1 + 15}
          v_cmp_eq_u32 vcc, 0, v{vT}
          s_waitcnt lgkmcnt(0)
          s_cbranch_vccnz L_ab_ex""")
    tstamp(e, cfg, 0)
    for wc in range(4):
        e(f"ds_read2st64_b32 {vr(VM + 4 * wc, 2)}, v{vVm} offset0:{4 * wc} offset1:{4 * wc + 2}")
    for wc in range(4):
        for z in range(2):
            e(f"ds_read_b64_tr_b16 {vr(KM + 4 * wc + 2 * z, 2)}, v{vKm} offset:{1024 * wc + 128 * z}")
    for wc in range(4):
        for ab, D in ((0, D0), (1, D1)):
            c = '0' if wc == 0 else vr(D, 16)
            e(f"v_mfma_f32_32x32x16_bf16 {vr(D, 16)}, {vr(KM + 4 * wc, 4)}, {vr(Q + 4 * (2 * wc + ab), 4)}, {c}")
    sm = [D0, D0 + 1, D0 + 4, D0 + 5]
    for r in sm:
        e(f"v_add_f32 v{r}, v{r}, v{r - D0 + D1 + 2}")
    tstamp(e, cfg, 1)
    softmax_tail(e, [S + r for r in range(16)] + sm, m0, m1, sCc)
    tstamp(e, cfg, 2)
    for j in range(8):
        e(f"v_cvt_pk_bf16_f32 v{PX + j}, v{S + 2 * j}, v{S + 2 * j + 1}")
    e(f"v_cvt_pk_bf16_f32 v{PMm}, v{D0}, v{D0 + 1}\n v_cvt_pk_bf16_f32 v{PMm + 1}, v{D0 + 4}, v{D0 + 5}")
    for wc in range(4):
        o = vr(O + 16 * wc, 16)
        e(f"""v_mfma_f32_32x32x16_bf16 {o}, {vr(V + 8 * wc, 4)}, {vr(PX, 4)}, 0
              v_mfma_f32_32x32x16_bf16 {o}, {vr(V + 8 * wc + 4, 4)}, {vr(PX + 4, 4)}, {o}
              v_mfma_f32_32x32x16_bf16 {o}, {vr(VM + 4 * wc, 4)}, {vr(PMm, 4)}, {o}""")
    e(f"s_add_u32 s{sB}, s{sOut}, 4096")
    for wc in range(4):
        o = O + 16 * wc
        for j in range(16):
            e(f"v_mul_f32 v{o + j}, v{o + j}, v{m0}")
        for j in range(8):
            e(f"v_cvt_pk_bf16_f32 v{Q + 8 * wc + j}, v{o + 2 * j}, v{o + 2 * j + 1}")
        for ab in range(2):
            j = 2 * wc + ab
            e(f"buffer_store_dwordx4 {vr(Q + 4 * j, 4)}, v{vL16}, {W}, s{sOut if j < 4 else sB} offen offset:{1024 * (j & 3)} sc1")
    tstamp(e, cfg, 3)
    e("s_waitcnt vmcnt(0)")
    tstamp(e, cfg, 4)
    e(f"""s_mov_b64 exec, 1
          buffer_store_dword v{vOne}, off, {W}, s{sFa} sc1
          s_mov_b64 exec, -1
          s_add_u32 s{sUnit}, s{sUnit}, {4 * UNIT}
          s_add_u32 s{sExp}, s{sExp}, {4 * 4096}
          s_add_u32 s{sFq}, s{sFq}, 16
          s_add_u32 s{sOut}, s{sOut}, {4 * 32 * 8192}
          s_add_u32 s{sFa}, s{sFa}, {4 * 512}
          s_add_u32 s{sSeg}, s{sSeg}, 4
          s_cmp_lt_u32 s{sSeg}, 64
          s_cbranch_scc1 L_ab_loop""")
    tdump(e, cfg)
    e("s_branch L_end")


def out_b(e, cfg):
    lane, t1, vL16, vSrc, vTr, vO, vSt, vT, vF, vRw, vRr = range(1, 12)
    ACC, RD = 16, 32
    sU, sSl, sRow, sLds, sOf, sFa, sTog = sC_, sD, sE, sF, sG, sH, sI
    sHi = 72
    srd(e, S_W0, P_WO, 0x400000)
    srd(e, S_W1, P_OUT, 0x400000)
    e(f"""s_sub_u32 s{sU}, s{sWid}, 64
          s_and_b32 s{sSl}, s{sU}, 15
          s_lshr_b32 s{sU}, s{sU}, 4
          s_cmp_ge_u32 s{sU}, {cfg.get('ng', 10)}
          s_cbranch_scc1 L_end
          v_and_b32 v{lane}, 63, v0
          v_lshlrev_b32 v{vL16}, 4, v{lane}
          v_and_b32 v{vF}, 7, v{lane}
          v_lshlrev_b32 v{vF}, 2, v{vF}""")
    e(f"""v_lshrrev_b32 v{t1}, 2, v{lane}
          v_lshlrev_b32 v{vSrc}, 10, v{t1}
          v_and_b32 v{t1}, 3, v{lane}
          v_lshl_add_u32 v{vSrc}, v{t1}, 4, v{vSrc}
          s_lshl_b32 s{sRow}, s{S_WAVE}, 20
          s_lshl_b32 s{sA}, s{sSl}, 6
          s_add_u32 s{sRow}, s{sRow}, s{sA}
          s_lshl_b32 s{sLds}, s{S_WAVE}, 15""")
    e(f"""v_lshlrev_b32 v{vTr}, 3, v{t1}
          v_lshrrev_b32 v{t1}, 5, v{lane}
          v_lshl_add_u32 v{vTr}, v{t1}, 10, v{vTr}
          v_bfe_u32 v{t1}, v{lane}, 2, 3
          v_lshl_add_u32 v{vTr}, v{t1}, 6, v{vTr}
          v_add_u32 v{vTr}, s{sLds}, v{vTr}""")
    e(f"""v_lshrrev_b32 v{t1}, 4, v{lane}
          v_lshlrev_b32 v{vO}, 9, v{t1}
          v_lshlrev_b32 v{vSt}, 3, v{t1}
          v_and_b32 v{t1}, 7, v{lane}
          v_lshl_add_u32 v{vO}, v{t1}, 4, v{vO}
          v_lshl_add_u32 v{vSt}, v{t1}, 11, v{vSt}
          v_and_b32 v{t1}, 8, v{lane}
          v_cmp_ne_u32 {sr(sHi, 2)}, 0, v{t1}
          v_lshl_add_u32 v{vO}, v{t1}, 8, v{vO}
          v_lshl_add_u32 v{vSt}, v{t1}, 27, v{vSt}
          s_lshl_b32 s{sA}, s{S_WAVE}, 11
          s_add_u32 s{sA}, s{sA}, 131072
          v_add_u32 v{vRw}, s{sA}, v{vL16}
          s_lshl_b32 s{sA}, s{S_WAVE}, 10
          s_add_u32 s{sA}, s{sA}, 131072
          v_add_u32 v{vRr}, s{sA}, v{vL16}""")
    e.wait(vm=0, lgkm=0)
    e("s_barrier")
    marks = {}

    def dma(ks):
        for j in range(2):
            e(f"""s_add_u32 m0, s{sLds}, {(ks % 16) * 2048 + j * 1024}
                  s_add_u32 s{sA}, s{sRow}, {(32 * ks + 16 * j) * 1024}
                  buffer_load_dwordx4 v{vSrc}, {sr(S_W0, 4)}, s{sA} offen lds""")
        marks[ks] = e.vm[-1]

    for ks in range(15):
        dma(ks)
    for ks in range(32):
        e.wait(vm=len(e.vm) - 1 - e.vm.index(marks[ks]), lgkm=0)
        if ks + 15 < 32:
            dma(ks + 15)
        for dt in range(2):
            for z in range(2):
                e(f"ds_read_b64_tr_b16 {vr(8 * ks + 4 * dt + 2 * z, 2, 'a')}, v{vTr} offset:{(ks % 16) * 2048 + z * 512 + dt * 32}")
    e.wait(vm=0, lgkm=0)
    e(f"s_mov_b32 s{sTog}, 0")
    e.label("L_ob_loop")
    e(f"""s_lshr_b32 s{sA}, s{sU}, 2
          s_lshl_b32 s{sA}, s{sA}, 5
          s_lshl_b32 s{sB}, s{S_WAVE}, 3
          s_add_u32 s{sA}, s{sA}, s{sB}
          s_lshl_b32 s{sFa}, s{sA}, 4
          s_add_u32 s{sFa}, s{sFa}, {F_AT}
          s_lshl_b32 s{sOf}, s{sA}, 13
          s_and_b32 s{sB}, s{sU}, 3
          s_lshl_b32 s{sB}, s{sB}, 7
          s_add_u32 s{sOf}, s{sOf}, s{sB}
          s_add_u32 s{sOf}, s{sOf}, {WS_OF}""")
    if cfg.get('nap', 1):
        e(f"""s_lshr_b32 s62, s{sU}, 2
              s_add_u32 s62, s62, 1
              s_min_u32 s62, s62, {64 - NTAIL}
              s_and_b32 s63, s{sWid}, 31
              s_lshl_b32 s63, s63, 7
              s_add_u32 s63, s63, {F_CH}""")
        nap_until(e, 'ob', vT, "s63", "s62", sB, cfg.get('napu', 24))
    poll_ge(e, 'ob', vT, vF, f"s{sFa}", 1, 8)
    tstamp(e, cfg, 0)
    for j in range(16):
        e(f"s_add_u32 s{sA}, s{sOf}, {j * 4096}\n buffer_load_dwordx4 {vr(128 + 4 * j, 4)}, v{vO}, {W}, s{sA} offen sc1")
    for ks in range(32):
        for dt in range(2):
            a = ACC + 8 * (ks & 1) + 4 * dt
            c = '0' if ks < 2 else vr(a, 4)
            e(f"v_mfma_f32_16x16x32_bf16 {vr(a, 4)}, {vr(8 * ks + 4 * dt, 4, 'a')}, {vr(128 + 4 * (ks >> 1), 4)}, {c}")
    for r in range(8):
        e(f"v_cndmask_b32 v{ACC + r}, v{ACC + r}, v{ACC + 8 + r}, {sr(sHi, 2)}")
    tstamp(e, cfg, 1)
    e(f"""v_add_u32 v{vT}, s{sTog}, v{vRw}
          ds_write_b128 v{vT}, {vr(ACC, 4)}
          ds_write_b128 v{vT}, {vr(ACC + 4, 4)} offset:1024""")
    e.barrier()
    e(f"""s_cmp_ge_u32 s{S_WAVE}, 2
          s_cbranch_scc1 L_ob_next
          v_add_u32 v{vT}, s{sTog}, v{vRr}""")
    for p in range(4):
        e(f"ds_read_b128 {vr(RD + 4 * p, 4)}, v{vT} offset:{2048 * p}")
    for r in range(4):
        e(f"""v_add_f32 v{RD + r}, v{RD + r}, v{RD + 4 + r}
              v_add_f32 v{RD + 8 + r}, v{RD + 8 + r}, v{RD + 12 + r}
              v_add_f32 v{RD + r}, v{RD + r}, v{RD + 8 + r}""")
    for r in range(4):
        e(f"v_add_f32_dpp v{RD + r}, v{RD + r}, v{RD + r} row_ror:8 row_mask:0xf bank_mask:0xf")
    e(f"""v_cvt_pk_bf16_f32 v{RD}, v{RD}, v{RD + 1}
          v_cvt_pk_bf16_f32 v{RD + 1}, v{RD + 2}, v{RD + 3}
          s_lshl_b32 s{sA}, s{sU}, 14
          s_lshl_b32 s{sB}, s{sSl}, 6
          s_add_u32 s{sA}, s{sA}, s{sB}
          s_lshl_b32 s{sB}, s{S_WAVE}, 5
          s_add_u32 s{sA}, s{sA}, s{sB}
          buffer_store_dwordx2 {vr(RD, 2)}, v{vSt}, {sr(S_W1, 4)}, s{sA} offen offset:1024 {cfg.get('ost', '')}
          L_ob_next:
          s_xor_b32 s{sTog}, s{sTog}, 8192
          s_add_u32 s{sU}, s{sU}, {cfg.get('ng', 10)}
          s_cmp_lt_u32 s{sU}, 256
          s_cbranch_scc1 L_ob_loop""")
    tstamp(e, cfg, 2)
    tdump(e, cfg)
    e("s_branch L_end")


def part_a(e, cfg):
    lane, t1, vL16, vSig, vSrc, vTr, vT, m0, m1, vSt, vW, vNeg = range(1, 13)
    BC, BP, BPX = 16, 32, 48
    SC, SP, O, PX = 64, 80, 96, 112
    Q, KC, KP, VC, VP = 128, 160, 192, 224, 48
    sSeg, sCh, sUnit, sPrevU, sFq, sCc, sRow = sC_, sD, sE, sF, sG, sH, sI
    srd(e, S_W0, P_AWO, 0x80000)
    srd(e, S_W1, P_OUT, 0x400000)
    lane_consts(e, lane, vL16, vSig)
    e(f"""s_sub_u32 s{sSeg}, s{sWid}, 32
          s_and_b32 s{sCh}, s{sSeg}, 1
          s_lshr_b32 s{sSeg}, s{sSeg}, 1
          s_mov_b32 s{sCc}, 0x3eb8aa3b""")
    e(f"""v_and_b32 v{t1}, 31, v{lane}
          v_lshrrev_b32 v{vT}, 5, v{lane}
          v_lshlrev_b32 v{vT}, 2, v{vT}
          v_sub_u32 v{t1}, v{t1}, v{vT}
          v_mov_b32 v{vNeg}, {NEG}""")
    for base, add in ((BC, 0), (BP, 32)):
        for r in range(16):
            e(f"""v_add_u32 v{vT}, {add - 8 * (r >> 2) - (r & 3)}, v{t1}
                  v_and_b32 v{vT}, 0xfffffff1, v{vT}
                  v_cmp_ne_u32 vcc, 0, v{vT}
                  v_cndmask_b32 v{base + r}, 0, v{vNeg}, vcc""")
    e(f"""v_lshrrev_b32 v{t1}, 5, v{lane}
          v_lshlrev_b32 v{vSrc}, 10, v{t1}
          v_and_b32 v{t1}, 31, v{lane}
          v_lshl_add_u32 v{vSrc}, v{t1}, 4, v{vSrc}
          v_lshlrev_b32 v{vSt}, 11, v{t1}
          s_lshl_b32 s{sRow}, s{S_WAVE}, 13
          s_lshl_b32 s{sA}, s{sCh}, 9
          s_add_u32 s{sRow}, s{sRow}, s{sA}
          s_lshl_b32 s63, s{S_WAVE}, 12""")
    e(f"""v_lshrrev_b32 v{t1}, 5, v{lane}
          v_lshlrev_b32 v{vTr}, 11, v{t1}
          v_lshl_add_u32 v{vSt}, v{t1}, 3, v{vSt}
          v_bfe_u32 v{t1}, v{lane}, 2, 2
          v_lshl_add_u32 v{vTr}, v{t1}, 9, v{vTr}
          v_bfe_u32 v{t1}, v{lane}, 4, 1
          v_lshl_add_u32 v{vTr}, v{t1}, 5, v{vTr}
          v_and_b32 v{t1}, 3, v{lane}
          v_lshl_add_u32 v{vTr}, v{t1}, 3, v{vTr}
          s_lshl_b32 s{sA}, s{S_WAVE}, 7
          v_add_u32 v{vTr}, s{sA}, v{vTr}
          s_lshl_b32 s{sA}, s{S_WAVE}, 13
          v_add_u32 v{vW}, s{sA}, v{vL16}""")
    e.wait(vm=0, lgkm=0)
    e("s_barrier")
    marks = {}

    def dma(r):
        for j in range(4):
            e(f"""s_add_u32 m0, s63, {(r % 8) * 16384 + j * 1024}
                  s_add_u32 s{sA}, s{sRow}, {(32 * r + 2 * j) * 1024}
                  buffer_load_dwordx4 v{vSrc}, {sr(S_W0, 4)}, s{sA} offen lds""")
        marks[r] = e.vm[-1]

    for r in range(7):
        dma(r)
    for r in range(16):
        e.wait(vm=len(e.vm) - 1 - e.vm.index(marks[r]), lgkm=0)
        e("s_barrier")
        if r + 7 < 16:
            dma(r + 7)
        e(f"v_add_u32 v{vT}, {(r % 8) * 16384}, v{vTr}")
        for hl in range(2):
            for dt in range(2):
                for z in range(2):
                    e(f"ds_read_b64_tr_b16 {vr(8 * (2 * r + hl) + 4 * dt + 2 * z, 2, 'a')}, v{vT} offset:{(16 * hl + 8 * z) * 512 + dt * 64}")
    e.wait(vm=0, lgkm=0)
    e.label("L_pa_loop")
    e(f"""s_add_u32 s{sA}, s{S_WAVE}, 32
          s_lshl_b32 s{sA}, s{sA}, 6
          s_add_u32 s{sA}, s{sA}, s{sSeg}
          s_mul_i32 s{sUnit}, s{sA}, {UNIT}
          s_lshl_b32 s{sFq}, s{sA}, 2
          s_add_u32 s{sFq}, s{sFq}, {F_QKV}
          s_cmp_eq_u32 s{sSeg}, 0
          s_cselect_b32 s{sA}, 0, {UNIT}
          s_cselect_b32 s{sB}, 0, 4
          s_cselect_b64 vcc, -1, 0
          s_sub_u32 s{sPrevU}, s{sUnit}, s{sA}
          s_sub_u32 s62, s{sFq}, s{sB}""")
    for r in range(8, 16):
        e(f"v_cndmask_b32 v{BP + r - 8}, v{BP + r}, v{vNeg}, vcc")
    poll_ge(e, 'pa1', vT, None, f"s{sFq}", 1, 1)
    poll_ge(e, 'pa2', vT, None, "s62", 1, 1)
    for base, a, u, off in ((Q, vL16, sUnit, 0), (KC, vSig, sUnit, 8192), (KP, vSig, sPrevU, 8192), (VC, vL16, sUnit, 16384)):
        e(f"s_add_u32 s{sA}, s{u}, {off}\n s_add_u32 s{sB}, s{u}, {off + 4096}")
        for j in range(8):
            e(f"buffer_load_dwordx4 {vr(base + 4 * j, 4)}, v{a}, {W}, s{sA if j < 4 else sB} offen offset:{1024 * (j & 3)} sc1")
    e(f"s_add_u32 s{sA}, s{sPrevU}, {16384 + 1024}\n s_add_u32 s{sB}, s{sPrevU}, {16384 + 1024 + 4096}")
    for wc in range(4):
        e(f"buffer_load_dwordx4 {vr(VP + 4 * wc, 4)}, v{vL16}, {W}, s{sA if wc < 2 else sB} offen offset:{2048 * (wc & 1)} sc1")
    e("s_barrier")
    for j in range(8):
        wc, ab = j >> 1, j & 1
        e(f"""v_mfma_f32_32x32x16_bf16 {vr(SC, 16)}, {vr(KC + 4 * j, 4)}, {vr(Q + 4 * j, 4)}, {vr(BC, 16)}
              v_mfma_f32_32x32x16_bf16 {vr(SP, 16)}, {vr(KP + 4 * j, 4)}, {vr(Q + 4 * j, 4)}, {vr(BP - 8, 16)}""")
        softmax_tail(e, [SC + r for r in range(16)] + [SP + r for r in range(8, 16)], m0, m1, sCc)
        for k in range(8):
            e(f"v_cvt_pk_bf16_f32 v{PX + k}, v{SC + 2 * k}, v{SC + 2 * k + 1}")
        for k in range(4):
            e(f"v_cvt_pk_bf16_f32 v{PX + 8 + k}, v{SP + 8 + 2 * k}, v{SP + 8 + 2 * k + 1}")
        o = vr(O, 16)
        e(f"""v_mfma_f32_32x32x16_bf16 {o}, {vr(VC + 8 * wc, 4)}, {vr(PX, 4)}, 0
              v_mfma_f32_32x32x16_bf16 {o}, {vr(VC + 8 * wc + 4, 4)}, {vr(PX + 4, 4)}, {o}
              v_mfma_f32_32x32x16_bf16 {o}, {vr(VP + 4 * wc, 4)}, {vr(PX + 8, 4)}, {o}""")
        for k in range(8):
            e(f"v_mul_f32 v{O + 8 * ab + k}, v{O + 8 * ab + k}, v{m0}")
        for k in range(4):
            e(f"v_cvt_pk_bf16_f32 v{124 + k}, v{O + 8 * ab + 2 * k}, v{O + 8 * ab + 2 * k + 1}")
        e(f"ds_write_b128 v{vW}, {vr(124, 4)} offset:{1024 * j}")
    e.barrier()
    for hd in range(32):
        e(f"ds_read_b128 {vr(128 + 4 * hd, 4)}, v{vL16} offset:{1024 * hd}")
        if hd >= 8:
            k = hd - 8
            for dt in range(2):
                c = '0' if k == 0 else vr(SC + 16 * dt, 16)
                e(f"v_mfma_f32_32x32x16_bf16 {vr(SC + 16 * dt, 16)}, {vr(8 * k + 4 * dt, 4, 'a')}, {vr(128 + 4 * k, 4)}, {c}")
    for k in range(24, 32):
        for dt in range(2):
            e(f"v_mfma_f32_32x32x16_bf16 {vr(SC + 16 * dt, 16)}, {vr(8 * k + 4 * dt, 4, 'a')}, {vr(128 + 4 * k, 4)}, {vr(SC + 16 * dt, 16)}")
    e(f"""s_lshl_b32 s{sA}, s{sSeg}, 16
          s_lshl_b32 s{sB}, s{sCh}, 9
          s_add_u32 s{sA}, s{sA}, s{sB}
          s_lshl_b32 s{sB}, s{S_WAVE}, 7
          s_add_u32 s{sA}, s{sA}, s{sB}""")
    for dt in range(2):
        for a in range(4):
            r = SC + 16 * dt + 4 * a
            d = O + 2 * (4 * dt + a)
            e(f"""v_cvt_pk_bf16_f32 v{d}, v{r}, v{r + 1}
                  v_cvt_pk_bf16_f32 v{d + 1}, v{r + 2}, v{r + 3}
                  buffer_store_dwordx2 {vr(d, 2)}, v{vSt}, {sr(S_W1, 4)}, s{sA} offen offset:{64 * dt + 16 * a} {cfg.get('ost', '')}""")
    e(f"""s_add_u32 s{sSeg}, s{sSeg}, 16
          s_cmp_lt_u32 s{sSeg}, 64
          s_cbranch_scc1 L_pa_loop
          s_branch L_end""")


def worker(e, cfg):
    PS[0] = cfg.get('ps', 4)
    e(f"s_sub_u32 s{sWid}, s{S_ROLE}, 32")
    if cfg.get('ne', 0):
        e.comment("five workgroups of each die form the team that runs the first steps while die 0 still loads its weights")
        e(f"""s_lshr_b32 s62, s{sWid}, 5
              s_and_b32 s63, s{sWid}, 31
              s_cmp_ge_u32 s63, 5
              s_cbranch_scc1 L_noec
              s_mul_i32 s62, s62, 5
              s_add_u32 s{S_HEAD}, s62, s63
              s_mov_b32 s{S_EC}, 1
              s_cmp_lt_u32 s{S_HEAD}, 32
              s_cbranch_scc1 L_chain
              s_branch L_spare
              L_noec:
              s_mul_i32 s62, s62, 27
              s_add_u32 s63, s63, s62
              s_sub_u32 s63, s63, 5
              s_cmp_lt_u32 s63, 180
              s_cbranch_scc1 L_proj
              L_spare:""")
    else:
        e(f"s_mov_b32 s63, s{sWid}\n s_cmp_lt_u32 s{sWid}, 216\n s_cbranch_scc1 L_proj")
    st = e.state()
    e("s_waitcnt vmcnt(0)")
    confirm_barrier(e, 'sp')
    if cfg.get('opf', 0):
        e.comment("read Wo once (one word per line): the recurrence asks for it last and then finds it on the die-level cache")
        srd(e, S_W0, P_WO, 0x400000)
        e(f"""s_sub_u32 s{sA}, s{sWid}, 216
              s_lshl_b32 s{sA}, s{sA}, 2
              s_add_u32 s{sA}, s{sA}, s{S_WAVE}
              s_lshl_b32 s{sA}, s{sA}, 17
              v_and_b32 v4, 63, v0
              v_lshlrev_b32 v4, 7, v4""")
        for j in range(16):
            e.loose(f"buffer_load_dword v5, v4, {sr(S_W0, 4)}, s{sA} offen")
            e(f"s_add_u32 s{sA}, s{sA}, 8192")
    wait_init(e, 'sp', 3, 127)
    e("s_branch L_phase2")
    e.label("L_proj"); e.set_state(st)
    proj(e, cfg)
    e.label("L_phase2")
    dbg_max(e, cfg, 15, v=12)
    if cfg.get('diag'):
        e("s_memrealtime s[88:89]\n s_waitcnt lgkmcnt(0)")
    if cfg.get('nophase2'):
        e("s_branch L_end")
    e(f"""s_cmp_lt_u32 s{sWid}, 32
          s_cbranch_scc1 L_attn_b
          s_cmp_lt_u32 s{sWid}, 64
          s_cbranch_scc1 L_part_a""")
    st = e.state()
    out_b(e, cfg)
    e.label("L_attn_b"); e.set_state(st)
    attn_b(e, cfg)
    e.label("L_part_a"); e.set_state(st)
    part_a(e, cfg)
```

```python
import sys
from common import *
import chain3

HEADER = open('cdna_kernels/' + NAME + '.s.ref').read().split('; Override launch')[0]


DOC = """; One persistent launch, one workgroup per CU, roles claimed at run time (generated by the author's own script):
;                 latency-bound recurrence clocks about 6 % higher beside a quiet neighbour.
"""


def prologue(e, cfg):
    e(f"""s_cmp_ge_u32 s2, 256
          s_cbranch_scc1 L_end""")
    if cfg.get('diag') or cfg.get('holdto') or cfg.get('holdend') or cfg.get('pjhold') or cfg.get('lhold') or cfg.get('pdbg'):
        e("s_memrealtime s[94:95]")
    e(f"""s_load_dwordx16 s[20:35], s[0:1], 0
          s_load_dwordx8 s[36:43], s[0:1], 64
          s_load_dwordx2 s[44:45], s[0:1], 96
          s_getreg_b32 s{S_XCC}, hwreg(HW_REG_XCC_ID, 0, 3)
          v_lshrrev_b32 v1, 6, v0
          v_readfirstlane_b32 s{S_WAVE}, v1
          s_mov_b32 s{S_SPIN}, {SPIN_MAX}""")
    if cfg.get('cpf', 0):
        e.comment("pull this kernel's code into the die's L2: every wave reads one word of 64 lines of it")
        e(f"""s_getpc_b64 s[50:51]
              L_pc:
              s_lshr_b32 s52, s2, 3
              s_lshl_b32 s52, s52, 15
              v_lshl_add_u32 v120, v0, 7, s52
              v_and_b32 v120, 0xffff, v120
              v_min_u32 v120, L_end - L_pc, v120
              v_mov_b32 v121, s51
              v_add_co_u32 v120, vcc, s50, v120
              v_addc_co_u32 v121, vcc, 0, v121, vcc""")
        e.loose("global_load_dword v122, v[120:121], off")
        e.vm = []
    e("s_waitcnt lgkmcnt(0)")
    if cfg.get('pdbg'):
        e("s_memrealtime s[90:91]")
    e(f"s_xor_b32 s{S_XCC}, s{S_XCC}, {cfg.get('cx', 3)}")
    srd(e, S_WS, P_WSP, WS_SIZE)
    srd(e, S_DBG, P_DBG, 256)
    dbg_max(e, cfg, 10, True, 5, 31)
    e(f"""s_lshr_b32 s50, s2, 3
          s_lshl_b32 s{S_ROLE}, s{S_XCC}, 5
          s_add_u32 s{S_ROLE}, s{S_ROLE}, s50
          s_mov_b32 s{S_CONF}, 0""")
    if cfg.get('spread'):
        e(f"s_mov_b32 s{S_ROLE}, s2\n s_mov_b32 s{S_CONF}, 1")
    if cfg.get('crowd'):
        e(f"s_mov_b32 s{S_XCC}, 3\n s_add_u32 s{S_ROLE}, s50, 96")
    e(f"""s_cmp_lg_u32 s{S_WAVE}, 0
          s_cbranch_scc1 L_dispatch
          s_lshl_b32 s51, 1, s50
          s_lshl_b32 s52, s{S_XCC}, {D_CLAIM_SH}
          v_mov_b32 v{V_CLAIM}, s51
          s_mov_b64 exec, 1
          buffer_atomic_or v{V_CLAIM}, off, {sr(S_DBG, 4)}, s52 sc0
          s_mov_b64 exec, -1
          v_mov_b32 v3, 0
          v_lshlrev_b32 v4, 2, v0
          s_lshl_b32 s51, s2, 8
          s_add_u32 s51, s51, {WS_FLAG}
          buffer_store_dword v3, v4, {sr(S_WS, 4)}, s51 offen sc1""")
    e.vm = []
    e.label("L_dispatch")


def reclaim(e):
    e.forget()
    e(f"""L_reclaim:
          s_mov_b32 s{S_RA}, s{S_XCC}
          s_movk_i32 s{S_SPIN}, 600
          L_rc_word:
          v_readfirstlane_b32 s{S_RB}, v{V_CLAIM}
          s_cmp_eq_u32 s{S_RB}, -1
          s_cbranch_scc0 L_rc_try
          s_add_u32 s{S_RA}, s{S_RA}, 1
          s_and_b32 s{S_RA}, s{S_RA}, 7
          s_mov_b32 s{S_RB}, 0
          L_rc_try:
          s_sub_u32 s{S_SPIN}, s{S_SPIN}, 1
          s_cselect_b32 s{S_RA}, 64, s{S_RA}
          s_cbranch_scc1 L_rc_got
          s_mov_b32 s38, s{S_RB}
          s_mov_b32 s39, s{S_RB}
          s_and_b32 s{S_RB}, s{S_ROLE}, 31
          s_add_u32 s{S_RB}, s{S_RB}, s2
          s_and_b32 s{S_RB}, s{S_RB}, 31
          s_lshr_b64 s[38:39], s[38:39], s{S_RB}
          s_ff0_i32_b32 s38, s38
          s_add_u32 s{S_RB}, s{S_RB}, s38
          s_and_b32 s{S_RB}, s{S_RB}, 31
          s_lshl_b32 s{S_RC}, 1, s{S_RB}
          v_mov_b32 v{V_CLAIM}, s{S_RC}
          s_lshl_b32 s{S_RC}, s{S_RA}, {D_CLAIM_SH}
          s_mov_b64 exec, 1
          buffer_atomic_or v{V_CLAIM}, off, {sr(S_DBG, 4)}, s{S_RC} sc0
          s_mov_b64 exec, -1
          v_readfirstlane_b32 s{S_RC}, v{V_CLAIM}
          s_bitcmp1_b32 s{S_RC}, s{S_RB}
          s_cbranch_scc1 L_rc_word
          L_rc_got:
          s_lshl_b32 s{S_RA}, s{S_RA}, 5
          s_or_b32 s{S_RA}, s{S_RA}, s{S_RB}
          v_mov_b32 v{V_CLAIM}, s{S_RA}
          v_mov_b32 v{V_CLAIM - 1}, {L_ROLE}
          ds_write_b32 v{V_CLAIM - 1}, v{V_CLAIM}
          s_waitcnt lgkmcnt(0)
          s_barrier
          L_restart:
          s_cmp_ge_u32 s{S_RA}, 256
          s_cbranch_scc1 L_end
          s_mov_b32 s{S_SPIN}, {SPIN_MAX}
          s_and_b32 s{S_ROLE}, s{S_RA}, 255
          s_mov_b32 s{S_CONF}, 1
          v_mbcnt_lo_u32_b32 v0, -1, 0
          v_mbcnt_hi_u32_b32 v0, -1, v0
          s_waitcnt vmcnt(0) lgkmcnt(0)
          s_barrier
          s_branch L_dispatch""")


def fake_worker(e, cfg):
    e(f"""s_cmp_lg_u32 s{S_WAVE}, 0
          s_cbranch_scc1 L_end
          s_waitcnt vmcnt(0)
          v_mov_b32 v2, 1
          s_mov_b64 exec, 1
          buffer_atomic_add v2, off, {sr(S_DBG, 4)}, 0 offset:{D_INIT}
          s_mov_b64 exec, -1
          s_cmp_ge_u32 s{S_ROLE}, {32 + NHH}
          s_cbranch_scc1 L_end
          L_fw_poll:
          buffer_load_dword v3, off, {sr(S_DBG, 4)}, 0 offset:{D_INIT} sc1
          s_sub_u32 s{S_SPIN}, s{S_SPIN}, 1
          s_cbranch_scc1 L_end
          v_readfirstlane_b32 s50, v3
          s_and_b32 s50, s50, 0xffff
          s_cmp_eq_u32 s50, 256
          s_cbranch_scc0 L_fw_poll
          s_sub_u32 s50, s{S_ROLE}, 32
          s_lshl_b32 s50, s50, 8
          s_add_u32 s50, s50, {F_QKV}
          v_mov_b32 v2, 1
          v_lshlrev_b32 v4, 2, v0
          buffer_store_dword v2, v4, {sr(S_WS, 4)}, s50 offen sc1
          s_waitcnt vmcnt(0)
          s_branch L_end""")


def build(cfg):
    e = Emitter()
    prologue(e, cfg)
    e(f"s_mov_b32 s{S_HEAD}, s{S_ROLE}\n s_mov_b32 s{S_EC}, 0\n s_cmp_ge_u32 s{S_ROLE}, 32\n s_cbranch_scc1 L_worker\n L_chain:")
    st = e.state()
    chain3.chain(e, cfg)
    e.label("L_worker"); e.set_state(st)
    if cfg.get('fake_proj'):
        fake_worker(e, cfg)
    else:
        import workers
        workers.worker(e, cfg)
    reclaim(e)
    e.label("L_end")
    if cfg.get('dbgt'):
        e.forget()
        e("s_cmp_ge_u32 s2, 256\n s_cbranch_scc1 L_end3\n s_waitcnt vmcnt(0)")
        dbg_max(e, cfg, 13, mask=0)
        e.label("L_end3")
    if cfg.get('diag'):
        e.forget()
        e(f"""s_cmp_ge_u32 s2, 256
              s_cbranch_scc1 L_end2
              s_waitcnt vmcnt(0)
              s_memrealtime s[92:93]
              s_lshl_b32 s90, s{S_ROLE}, 2
              s_add_u32 s90, s90, s{S_WAVE}
              s_lshl_b32 s90, s90, 4
              s_add_u32 s90, s90, 0x6100000
              s_waitcnt lgkmcnt(0)
              v_mov_b32 v2, s94
              v_mov_b32 v3, s92
              v_mov_b32 v4, s88
              v_mov_b32 v5, s86
              buffer_store_dwordx4 v[2:5], off, {sr(S_WS, 4)}, s90
              L_end2:""")
    K = NAME + "_kernel"
    return HEADER + f"""; @launch grid=(256,1,1) block=(256,1,1) lds={LDS_BYTES}
.amdgcn_target "amdgcn-amd-amdhsa--gfx950"
.text
.globl {K}
.p2align 8
.type {K},@function
{K}:
""" + DOC + e.text() + f"""  s_endpgm
.section .rodata,"a"
.p2align 6
.amdhsa_kernel {K}
  .amdhsa_next_free_vgpr 512
  .amdhsa_next_free_sgpr 102
  .amdhsa_accum_offset 256
  .amdhsa_group_segment_fixed_size 0
  .amdhsa_kernarg_size 104
  .amdhsa_user_sgpr_count 2
  .amdhsa_user_sgpr_kernarg_segment_ptr 1
  .amdhsa_system_sgpr_workgroup_id_x 1
.end_amdhsa_kernel
"""


if __name__ == '__main__':
    out = sys.argv[1]
    cfg = eval(sys.argv[2]) if len(sys.argv) > 2 else {}
    open(out, 'w').write(build(cfg))
```

```python
from common import *

L_T, L_OB, L_DUMMY, L_KX, L_WL = 8192, 12544, 14592, 16384, 32768
T_PITCH = 1088
vL16, vPst, vMst, vTw, vTr, vKXr, vOw, vWL0, vWL1, vMw, vIdx, vSelC = range(12)
EX, PM, VX = 12, 16, 20
TMP = 28
MA = 32
ACC = 64
X, KXR, SPARE = 88, 104, 120
R1 = [MA + 8, MA + 16, MA + 24, X, X + 8, KXR, KXR + 8, SPARE, X, X + 8]
WO_SB = [KXR, KXR + 8, X, X + 8, ACC, ACC + 8]
(sStep, sMcur, sProg, sMtog, sG, sKl, sMb, sKV, sC, sExp, sMcur2, sMbaseS, sPbaseS, sPbaseL, sFl, sFch, sTog, sNan,
 sA, sB) = range(50, 70)
sSel = 70
sOK, sMn2, sF1, sEnd = 78, 3, 38, 39
sArm, sFm = 18, 98
sVx, sVt, sOK2, sG2 = 96, 97, 17, 100
HV, HS, HA, HD = VX, VX + 1, VX + 2, VX + 4
sHm, sCnt = 20, 28
S_M0 = 84
TRS = [30, 42, 44, 80, 82, 88, 32, 34]
sDbgT = 80

STREAM = [('q', 0, 0), ('q', 1, 0), ('k', 0, 0), ('k', 1, 0), ('q', 0, 1), ('q', 1, 1), ('k', 0, 1), ('k', 1, 1),
          ('q', 0, 5), ('q', 0, 7),
          ('o', 5, 0), ('o', 5, 1), ('o', 6, 0), ('o', 6, 1), ('o', 7, 0), ('o', 7, 1)]
WLPOS = {op: p for op, p in zip(STREAM[10:14], range(4))}
WLPOS.update({op: 4 + p for p, op in enumerate(STREAM[14:16] + STREAM[:10])})
ALLOPS = [(m, ft, i) for m in 'qkv' for ft in range(2) for i in range(8)] + [('o', t, kb) for t in range(8) for kb in range(2)]
RES = {}
for n, op in enumerate([o for o in ALLOPS if o not in STREAM]):
    RES[op] = ('a', 8 * n) if n < 32 else ('v', 128 + 8 * (n - 32))
PARK = {}
for n, op in enumerate(STREAM[14:16] + STREAM[:10]):
    PARK[op] = 32 + 8 * n
for n, op in enumerate(STREAM[10:14]):
    PARK[op] = 48 + 8 * n
W = sr(S_WS, 4)
CFG = {}


def wl_addr(op, half):
    p = WLPOS[op]
    off = (p >> 1) * 16384 + (p & 1) * 2048 + half * 1024
    return (vWL0, off) if off < 65536 else (vWL1, off - 65536)


def wl_write(e, op, src):
    for half in range(2):
        a, off = wl_addr(op, half)
        e(f"ds_write_b128 v{a}, {vr(src + 4 * half, 4)} offset:{off}")


def wl_lines(op, dst):
    out = []
    for half in range(2):
        a, off = wl_addr(op, half)
        out.append(f"ds_read_b128 {vr(dst + 4 * half, 4)}, v{a} offset:{off}")
    return out


def delay(e, cyc):
    if CFG.get('slp') and cyc >= 64:
        k = cyc // 64
        e(f"s_sleep {k}")
        cyc -= 64 * k
    if CFG.get('dmf'):
        while cyc >= 16:
            if CFG['dmf'] == 1:
                e(f"v_mfma_f32_16x16x32_bf16 {vr(VX, 4)}, a[0:3], a[8:11], 0")
            else:
                e(f"v_smfmac_f32_16x16x64_bf16 {vr(VX, 4)}, a[0:3], a[8:15], v{vIdx}")
            cyc -= 16
    n = cyc // 4
    while n > 0:
        k = min(n, 16)
        e(f"s_nop {k - 1}")
        n -= k


def mix(reads, other, per=3):
    out = []
    other = list(other)
    for r in reads:
        out.append(r)
        for _ in range(per):
            if other:
                out.append(other.pop(0))
    return out + other


def mload(b):
    return f"buffer_load_dwordx4 {vr(MA + 4 * b, 4)}, v{vMw}, {W}, s{sMcur if b == 0 else sMcur2} offen sc1"


def mspare():
    return f"buffer_load_dwordx4 {vr(VX, 4)}, v{vMw}, {W}, s{sMcur} offen sc1"


def kx_dma(e, ldsbase):
    e(f"""s_lshl_b32 s{sA}, s{S_WAVE}, 11
          s_add_u32 m0, s{sA}, {ldsbase}
          buffer_load_dwordx4 v{vL16}, {W}, s{sKV} offen sc1 lds
          buffer_load_dwordx4 v{vL16}, {W}, s{sKV} offen offset:1024 sc1 lds""")


def scalar_lines():
    return [x.strip() for x in f"""s_and_b32 s{sA}, s{sStep}, 3
          s_lshl_b32 s{sA}, s{sA}, 13
          s_add_u32 s{sMcur}, s{sA}, s{sMb}
          s_add_u32 s{sMcur2}, s{sMcur}, 4096
          s_and_b32 s{sA}, s{sA}, 0x2000
          s_add_u32 s{sMn2}, s{sMbaseS}, s{sA}
          s_lshl_b32 s{sMtog}, s{sA}, 1
          s_sub_u32 s{sVx}, s{sKV}, s{sTog}
          s_add_u32 s{sVx}, s{sVx}, {8192 - L_KX}
          s_add_u32 s{sKV}, s{sKV}, {0 if CFG.get('samekv') else UNIT}
          s_add_u32 s{sVt}, s{sKV}, 8192
          s_xor_b32 s{sA}, s{sTog}, 0x2000
          s_add_u32 m0, s{sA}, s{sKl}
          s_cmp_gt_u32 s{sStep}, s{sF1}
          s_cselect_b32 s{sA}, 4096, 0
          s_add_u32 s{sExp}, s{sExp}, s{sA}
          s_add_u32 s{sOK2}, s{sStep}, 1
          s_max_u32 s{sProg}, s{sStep}, {0 if CFG.get('xo', 0) else 1}
          s_sub_u32 s{sProg}, s{sProg}, {0 if CFG.get('xo', 0) else 1}
          s_and_b32 s{sG2}, s{sOK2}, 1""".split('\n')]


def prep_a_lines():
    other = [f"v_mov_b64 {vr(ACC + j, 2)}, 0" for j in range(0, 24, 2)] + [f"v_lshlrev_b32 v{PM + 3}, 1, v{vL16}", f"v_mov_b32 v{TMP}, s{sProg}"]
    reads = sum([wl_lines(STREAM[o], R1[o]) for o in range(3, 8)], [])
    return mix(reads, other, 2)


def prep_b_lines():
    other = [f"v_xor_b32 v{vMst}, s{sMtog}, v{vMst}"] + [f"v_xor_b32 v{TMP + p}, {p << 10}, v{vMw}" for p in range(1, 4)]
    reads = sum([wl_lines(STREAM[o], R1[o]) for o in range(3)], [])
    return mix(reads, other, 1)


def chain_startup(e, cfg):
    h = S_HEAD
    ent = 'retE' if cfg.get('ic', 0) else 'step'
    NE = cfg.get('ne', 0)
    ARMED = (0x400100 if NE else 0x200100)
    tA, tB, tC, tD = EX, EX + 1, EX + 2, EX + 3
    t0, t1, t2, t3 = TMP, TMP + 1, TMP + 2, TMP + 3
    lane = PM
    chunks = [('o', kb, Q) for kb in range(2) for Q in range(4)] + [(m, b, 0) for m in cfg.get('mo', 'qkv') for b in range(8)]
    ring = {4: L_WL + 2 * 16384, 5: L_WL + 3 * 16384, 6: L_WL + 4 * 16384, 0: L_WL + 5 * 16384, 1: L_WL + 6 * 16384,
            2: L_WL + 7 * 16384, 3: 0}
    ptr = {'q': P_WQ, 'k': P_WK, 'v': P_WV, 'o': P_WO}
    sHq, sHo, sLw = sMcur, sProg, sMcur2
    cur, marks = [None], {}

    def dma(r):
        m, x, Q = chunks[r]
        if cur[0] != m:
            srd(e, S_T0, ptr[m], 0x400000); cur[0] = m
        for i in range(4):
            if m == 'o':
                row = 64 * x + 32 * (Q >> 1) + 2 * (Q & 1) + 4 * (i >> 1) + (i & 1)
                e(f"""s_add_u32 s{sA}, s{sHo}, {row * 1024}
                      s_add_u32 m0, s{sLw}, {ring[r % 7] + i * 1024}
                      v_xor_b32 v{t2}, {i << 5}, v{VX + 3}
                      buffer_load_dwordx4 v{t2}, {sr(S_T0, 4)}, s{sA} offen {cfg.get('wnt', '')} lds""")
            else:
                e(f"""s_add_u32 s{sA}, s{sHq}, {(128 * (x & 3) + 64 * (x >> 2) + 4 * i) * 8192}
                      s_add_u32 m0, s{sLw}, {ring[r % 7] + i * 1024}
                      buffer_load_dwordx4 v{tA}, {sr(S_T0, 4)}, s{sA} offen {cfg.get('wnt', '')} lds""")
        marks[r] = e.vm[-1]

    e(f"""v_and_b32 v{lane}, 63, v0
          v_lshlrev_b32 v{vL16}, 4, v{lane}
          s_and_b32 s{sA}, s{S_WAVE}, 1
          s_lshr_b32 s{sB}, s{S_WAVE}, 1
          s_lshl_b32 s{sHo}, s{sA}, 7
          v_xor_b32 v{VX + 3}, s{sHo}, v{vL16}
          s_lshl_b32 s{sHo}, s{h}, 17
          s_lshl_b32 s{sLw}, s{sA}, 14
          s_add_u32 s{sHo}, s{sHo}, s{sLw}
          s_lshl_b32 s{sLw}, s{sB}, 13
          s_add_u32 s{sHo}, s{sHo}, s{sLw}
          s_lshl_b32 s{sHq}, s{h}, 8
          s_lshl_b32 s{sLw}, s{S_WAVE}, 17
          s_add_u32 s{sHq}, s{sHq}, s{sLw}
          s_lshl_b32 s{sLw}, s{S_WAVE}, 12""")
    for r in range(6):
        dma(r)
    e(f"""v_lshrrev_b32 v{t0}, 4, v{lane}
          v_and_b32 v{t1}, 15, v{lane}
          s_lshl_b32 s{sA}, s{S_WAVE}, 10
          v_add_u32 v{vMw}, s{sA}, v{vL16}
          v_lshlrev_b32 v{PM + 3}, 2, v{lane}""")
    e(f"""v_lshrrev_b32 v{t2}, 2, v{lane}
          v_lshlrev_b32 v{t2}, 12, v{t2}
          v_and_b32 v{t3}, 3, v{lane}
          v_lshl_add_u32 v{vPst}, v{t3}, 4, v{t2}""")
    e(f"""v_and_b32 v{t2}, 1, v{lane}
          v_lshlrev_b32 v{t2}, 5, v{t2}
          v_lshl_add_u32 v{t2}, v{t0}, 3, v{t2}
          v_and_b32 v{t3}, 4, v{lane}
          v_add_u32 v{t2}, v{t2}, v{t3}
          v_and_b32 v{t3}, 8, v{lane}
          v_cmp_ne_u32 {sr(sArm, 2)}, 0, v{t3}
          v_lshl_add_u32 v{t2}, v{t3}, 11, v{t2}
          v_and_b32 v{t3}, 2, v{lane}
          v_lshl_add_u32 v{vMst}, v{t3}, 29, v{t2}""")
    srd(e, S_M0, P_MEM0, 8192)
    e(f"""v_and_b32 v{t2}, 1, v{lane}
          v_lshlrev_b32 v{tD}, 10, v{t2}
          v_lshl_add_u32 v{tD}, v{t0}, 1, v{tD}
          v_bfe_u32 v{t2}, v{lane}, 2, 1
          v_lshl_add_u32 v{tD}, v{t2}, 6, v{tD}
          s_and_b32 s{sA}, s{h}, 6
          s_lshl_b32 s{sA}, s{sA}, 10
          s_lshr_b32 s{sB}, s{h}, 3
          s_lshl_b32 s{sB}, s{sB}, 8
          s_add_u32 s{sA}, s{sA}, s{sB}
          s_and_b32 s{sB}, s{S_WAVE}, 1
          s_lshl_b32 s{sB}, s{sB}, 7
          s_add_u32 s{sA}, s{sA}, s{sB}
          s_lshr_b32 s{sB}, s{S_WAVE}, 1
          s_lshl_b32 s{sB}, s{sB}, 3
          s_add_u32 s{sA}, s{sA}, s{sB}
          s_and_b32 s{sB}, s{h}, 1
          s_lshl_b32 s{sB}, s{sB}, 4
          s_add_u32 s{sA}, s{sA}, s{sB}
          buffer_load_ushort v{VX}, v{tD}, {sr(S_M0, 4)}, s{sA} offen
          buffer_load_ushort v{VX + 1}, v{tD}, {sr(S_M0, 4)}, s{sA} offen offset:32""")
    e(f"""s_lshl_b32 s{sA}, s{S_WAVE}, 8
          s_add_u32 s{sA}, s{sA}, {L_T}
          v_mul_u32_u24 v{t2}, {T_PITCH}, v{t0}
          v_lshl_add_u32 v{t2}, v{t1}, 3, v{t2}
          v_add_u32 v{vTw}, s{sA}, v{t2}
          v_and_b32 v{t3}, 3, v{lane}
          v_mul_u32_u24 v{t2}, {T_PITCH}, v{t3}
          v_lshrrev_b32 v{t3}, 5, v{lane}
          v_lshl_add_u32 v{t2}, v{t3}, 7, v{t2}
          v_bfe_u32 v{t3}, v{lane}, 2, 3
          v_lshl_add_u32 v{t2}, v{t3}, 3, v{t2}
          v_add_u32 v{vTr}, {L_T}, v{t2}
          v_lshlrev_b32 v{t2}, 9, v{t0}
          v_lshl_add_u32 v{t2}, v{t1}, 4, v{t2}
          v_add_u32 v{vKXr}, {L_KX}, v{t2}""")
    e(f"""s_lshl_b32 s{sA}, s{S_WAVE}, 9
          s_add_u32 s{sA}, s{sA}, {L_OB}
          v_lshrrev_b32 v{t2}, 5, v{lane}
          v_lshlrev_b32 v{t2}, 8, v{t2}
          v_and_b32 v{t3}, 16, v{lane}
          v_add_u32 v{t2}, v{t2}, v{t3}
          v_and_b32 v{t3}, 12, v{lane}
          v_lshl_add_u32 v{t2}, v{t3}, 4, v{t2}
          v_and_b32 v{t3}, 1, v{lane}
          v_lshl_add_u32 v{t2}, v{t3}, 5, v{t2}
          v_add_u32 v{t2}, s{sA}, v{t2}
          v_and_b32 v{t3}, 2, v{lane}
          v_lshlrev_b32 v{tA}, 3, v{t3}
          v_xor_b32 v{t2}, v{t2}, v{tA}
          v_lshlrev_b32 v{t3}, 12, v{t3}
          v_sub_u32 v{vOw}, v{t2}, v{t3}
          s_add_u32 s{sA}, s{sLw}, {L_WL}
          v_add_u32 v{vWL0}, s{sA}, v{vL16}
          v_add_u32 v{vWL1}, 0x10000, v{vWL0}""")
    e(f"""v_and_b32 v{t2}, 1, v{lane}
          v_cmp_ne_u32 vcc, 0, v{t2}
          v_mov_b32 v{t2}, 0x4444
          v_mov_b32 v{t3}, 0xeeee
          v_cndmask_b32 v{vIdx}, v{t2}, v{t3}, vcc
          v_mov_b32 v{t2}, 0x3f80
          v_mov_b32 v{t3}, 0x3f800000
          v_cndmask_b32 v{vSelC}, v{t2}, v{t3}, vcc
          v_lshrrev_b32 v{t2}, 1, v{t1}""")
    for j in range(4):
        e(f"v_cmp_eq_u32 {sr(sSel + 2 * j, 2)}, {j}, v{t2}")
    e(f"""v_lshlrev_b32 v{tA}, 13, v{t0}
          v_lshlrev_b32 v{t2}, 2, v{t0}
          v_xor_b32 v{t2}, v{t2}, v{t1}
          v_lshl_add_u32 v{tA}, v{t2}, 4, v{tA}""")
    e(f"""v_bfe_u32 v{t2}, v{lane}, 2, 1
          v_lshlrev_b32 v{tB}, 12, v{t2}
          v_bfe_u32 v{t2}, v{lane}, 5, 1
          v_lshl_add_u32 v{tB}, v{t2}, 10, v{tB}
          v_bfe_u32 v{t2}, v{lane}, 3, 1
          v_lshl_add_u32 v{tB}, v{t2}, 9, v{tB}
          v_bfe_u32 v{t2}, v{lane}, 4, 1
          v_lshl_add_u32 v{tB}, v{t2}, 8, v{tB}
          v_and_b32 v{t2}, 3, v{lane}
          v_lshl_add_u32 v{tB}, v{t2}, 3, v{tB}
          v_bfe_u32 v{t3}, v{tB}, 8, 2
          v_xor_b32 v{t3}, s{S_WAVE}, v{t3}
          v_lshl_add_u32 v{tB}, v{t3}, 6, v{tB}""")
    e(f"""v_lshrrev_b32 v{t3}, 2, v{lane}
          v_lshlrev_b32 v{tC}, 10, v{t3}
          v_lshl_add_u32 v{tC}, v{t2}, 3, v{tC}
          s_lshl_b32 s{sA}, s{S_WAVE}, 8
          v_add_u32 v{tC}, s{sA}, v{tC}
          v_and_b32 v{t3}, 7, v{t3}
          v_lshl_add_u32 v{tC}, v{t3}, 5, v{tC}""")
    e(f"""s_lshl_b32 s{sA}, s{S_WAVE}, 11
          s_lshl_b32 s{sB}, s{h}, 13
          s_add_u32 s{sPbaseL}, s{sA}, s{sB}
          s_add_u32 s{sPbaseL}, s{sPbaseL}, {WS_P}
          s_lshl_b32 s{sA}, s{S_WAVE}, 16
          s_lshl_b32 s{sB}, s{h}, 6
          s_add_u32 s{sPbaseS}, s{sA}, s{sB}
          s_add_u32 s{sPbaseS}, s{sPbaseS}, {WS_P}
          s_lshl_b32 s{sA}, s{S_EC}, 18
          s_add_u32 s{sPbaseS}, s{sPbaseS}, s{sA}
          s_add_u32 s{sPbaseL}, s{sPbaseL}, s{sA}
          s_lshl_b32 s{sMb}, s{S_EC}, 15
          s_add_u32 s{sMb}, s{sMb}, {WS_M}
          s_cmp_eq_u32 s{S_EC}, 0
          s_cselect_b32 s{sStep}, {NE}, 0""")
    e(f"""s_and_b32 s{sA}, s{S_WAVE}, 1
          s_lshl_b32 s{sMbaseS}, s{sA}, 12
          s_and_b32 s{sA}, s{h}, 24
          s_lshl_b32 s{sA}, s{sA}, 7
          s_add_u32 s{sMbaseS}, s{sMbaseS}, s{sA}
          s_and_b32 s{sA}, s{h}, 1
          s_lshl_b32 s{sA}, s{sA}, 9
          s_add_u32 s{sMbaseS}, s{sMbaseS}, s{sA}
          s_lshr_b32 s{sA}, s{S_WAVE}, 1
          s_lshl_b32 s{sA}, s{sA}, 8
          s_add_u32 s{sMbaseS}, s{sMbaseS}, s{sA}
          s_and_b32 s{sA}, s{h}, 6
          s_lshl_b32 s{sA}, s{sA}, 5
          s_add_u32 s{sMbaseS}, s{sMbaseS}, s{sA}
          s_add_u32 s{sMbaseS}, s{sMbaseS}, s{sMb}""")
    e(f"""s_mul_i32 s{sKV}, s{h}, {64 * UNIT}
          s_lshl_b32 s{sA}, s{S_WAVE}, 11
          s_add_u32 s{sKV}, s{sKV}, s{sA}
          s_add_u32 s{sKV}, s{sKV}, {WS_QKV + 8192}
          s_lshl_b32 s{sExp}, s{h}, 18
          s_lshl_b32 s{sA}, s{S_WAVE}, 10
          s_add_u32 s{sExp}, s{sExp}, s{sA}
          s_add_u32 s{sExp}, s{sExp}, {WS_EXP}
          s_lshl_b32 s{sFl}, s{h}, 8
          s_add_u32 s{sFl}, s{sFl}, {F_QKV}
          s_lshl_b32 s{sFch}, s{h}, 7
          s_lshl_b32 s{sA}, s{S_WAVE}, 2
          s_add_u32 s{sFch}, s{sFch}, s{sA}
          s_add_u32 s{sFch}, s{sFch}, {F_CH}
          s_mov_b32 s{sC}, 0x3e0293ee
          s_lshl_b32 s{sKl}, s{S_WAVE}, 11
          s_add_u32 s{sKl}, s{sKl}, {L_KX}
          s_mul_i32 s{sA}, s{sStep}, {UNIT}
          s_add_u32 s{sKV}, s{sKV}, s{sA}
          s_mov_b32 s{sOK}, 1""")
    e(f"""s_and_b32 s{sA}, s{sStep}, 1
          v_mov_b32 v{VX + 4}, s{sA}
          v_mov_b32 v{VX + 5}, s{sA}
          v_mov_b32 v{VX + 6}, s{sA}
          v_mov_b32 v{VX + 7}, s{sA}
          v_mov_b32 v{VX + 2}, -1
          s_add_u32 s{sB}, s{sMbaseS}, 8192
          buffer_store_dwordx4 {vr(VX + 4, 4)}, v{vL16}, {W}, s{sPbaseL} offen sc1
          buffer_store_dwordx4 {vr(VX + 4, 4)}, v{vL16}, {W}, s{sPbaseL} offen offset:1024 sc1
          buffer_store_dword v{VX + 2}, v{vMst}, {W}, s{sB} offen sc1""")
    if cfg.get('sdiag'):
        e("s_memrealtime s[20:21]\n s_waitcnt lgkmcnt(0)")
    confirm_barrier(e, 'ch')
    if cfg.get('sdiag'):
        e("s_memrealtime s[22:23]\n s_waitcnt lgkmcnt(0)")
    parked = STREAM[14:16] + STREAM[:10]
    for r in range(32):
        m, x, Q = chunks[r]
        if marks[r] in e.vm:
            e.wait(vm=len(e.vm) - 1 - e.vm.index(marks[r]))
        e.wait(lgkm=0)
        e("s_barrier")
        if cfg.get('sdiag') and r in (0, 8, 16, 24, 31):
            e(f"s_memrealtime {sr({0: 24, 8: 26, 16: 28, 24: 36, 31: 40}[r], 2)}\n s_waitcnt lgkmcnt(0)")
        if r == 6:
            e.comment("publish this wave's piece of mem0 in slot 0 (and arm slot 2)")
            e(f"""v_lshl_or_b32 v{VX}, v{VX + 1}, 16, v{VX}
                  v_min_u32 v{VX}, -2, v{VX}
                  v_cndmask_b32 v{VX}, v{VX}, -1, {sr(sArm, 2)}
                  s_cmp_lg_u32 s{sStep}, 0
                  s_cselect_b32 s{sA}, -1, 0
                  v_or_b32 v{VX}, s{sA}, v{VX}
                  buffer_store_dword v{VX}, v{vMst}, {W}, s{sMbaseS} offen sc1""")
        if r == 12:
            e.comment("every wave's arming stores are complete: count this member as armed")
            e(f"""s_cmp_lg_u32 s{S_WAVE}, 0
                  s_cbranch_scc1 L_cs_in
                  s_sub_u32 s{sA}, s{S_EC}, 1
                  s_and_b32 s{sA}, s{sA}, s{S_XCC}
                  s_mov_b32 s{sB}, 0x10000
                  s_cselect_b32 s{sA}, 0x1010000, s{sB}
                  v_mov_b32 v{t0}, s{sA}
                  s_mov_b64 exec, 1
                  buffer_atomic_add v{t0}, off, {sr(S_DBG, 4)}, 0 offset:{D_INIT}
                  s_mov_b64 exec, -1""")
            e.vm.pop()
            e.label("L_cs_in")
        if r + 6 < 32:
            dma(r + 6)
        if r == 8:
            for op in STREAM[10:14]:
                wl_write(e, op, PARK[op])
            e.wait(lgkm=0)
        if r == cfg.get('r1', 16):
            e(f"buffer_load_dword v{PM + 1}, off, {sr(S_DBG, 4)}, 0 offset:{D_INIT} sc1")
        if r == cfg.get('r2', 23):
            e(f"""v_readfirstlane_b32 s{sNan}, v{PM + 1}
                  buffer_load_dword v{PM + 2}, v{PM + 3}, {W}, s{sFl} offen sc1""")
            e(f"""s_add_u32 m0, s{sLw}, {L_KX + 8192}
                  s_lshr_b32 m0, m0, 1
                  s_add_u32 m0, m0, {(L_KX + 8192) // 2}
                  s_lshl_b32 s{sB}, s{h}, 10
                  s_add_u32 s{sB}, s{sB}, s{sMb}
                  buffer_load_dwordx4 v{vL16}, {W}, s{sPbaseL} offen sc1 lds
                  buffer_load_dwordx4 v{vL16}, {W}, s{sPbaseL} offen offset:1024 sc1 lds
                  buffer_load_dwordx4 v{vL16}, {W}, s{sB} offen sc1 lds""")
        if r == cfg.get('r3', 30):
            e(f"""v_cmp_ne_u32 {sr(sFm, 2)}, 0, v{PM + 2}
                  s_lshr_b32 s{sOK}, s{sFm}, s{sStep}
                  s_and_b32 s{sOK}, s{sOK}, 3
                  s_cmp_eq_u32 s{sOK}, 3
                  s_cselect_b32 s{sOK}, 1, 0
                  s_and_b32 s{sA}, s{sNan}, 0xffffff
                  s_cmp_eq_u32 s{sA}, {ARMED}
                  s_cselect_b32 s{sOK}, s{sOK}, 0""")
            kx_dma(e, L_KX)
            e(f"""s_add_u32 m0, m0, 8192
                  s_add_u32 s{sA}, s{sKV}, 8192
                  buffer_load_dwordx4 v{vL16}, {W}, s{sA} offen sc1 lds
                  buffer_load_dwordx4 v{vL16}, {W}, s{sA} offen offset:1024 sc1 lds""")
        if r == cfg.get('rt', 27):
            e.comment("the last exports are recognised by their data: fill their slots with a pattern no export holds")
            for j in range(4):
                e(f"v_mov_b32 v{VX + j}, {SENT1}")
            for sg in range(64 - NTAIL, 64):
                e(f"s_add_u32 s{sA}, s{sExp}, {sg * 4096}\n buffer_store_dwordx4 {vr(VX, 4)}, v{vL16}, {W}, s{sA} offen sc1")
        if r == 29:
            e(f"buffer_load_dword v{VX + 7}, v{PM + 3}, {W}, s{sFl} offen sc1")
        if r >= 26:
            for op in parked[2 * (r - 26):2 * (r - 26) + 2]:
                wl_write(e, op, PARK[op])
        e(f"v_add_u32 v{t1}, {ring[r % 7]}, v{tC if m == 'o' else tB}")
        if m == 'o':
            for t in range(8):
                op = ('o', t, x)
                kind, base = RES[op] if op in RES else ('v', PARK[op])
                e(f"v_xor_b32 v{t3}, {t * 32}, v{t1}\n ds_read_b64_tr_b16 {vr(base + 2 * Q, 2, kind)}, v{t3}")
        else:
            for w in range(1, 4):
                e(f"s_cmp_eq_u32 s{S_WAVE}, {w}\n s_cbranch_scc1 L_cs{r}_{w}")
            st0 = e.state()
            for w in range(4):
                if w:
                    e.label(f"L_cs{r}_{w}"); e.set_state(st0)
                for ft in range(2):
                    op = (m, ft, 2 * ((x & 3) ^ w) + (x >> 2))
                    kind, base = RES[op] if op in RES else ('v', PARK[op])
                    for Q in range(4):
                        e(f"ds_read_b64_tr_b16 {vr(base + 2 * Q, 2, kind)}, v{t1} offset:{(32 * (Q & 1) + 8 * (Q >> 1)) * 256 + ft * 32}")
                if w < 3:
                    e(f"s_branch L_cs{r}_e")
            e.label(f"L_cs{r}_e")
    e.wait(lgkm=0)
    if cfg.get('sdiag'):
        e(f"""s_lshl_b32 s{sA}, s{S_ROLE}, 2
              s_add_u32 s{sA}, s{sA}, s{S_WAVE}
              s_lshl_b32 s{sA}, s{sA}, 6
              s_add_u32 s{sA}, s{sA}, 0x6400000""")
        for n, r in enumerate([94, 20, 22, 24, 26, 28, 36, 40, sOK]):
            e(f"v_mov_b32 v{PM}, s{r}\n buffer_store_dword v{PM}, off, {W}, s{sA} offset:{4 * n}")
    if cfg.get('diag'):
        e("s_memrealtime s[82:83]\n s_waitcnt lgkmcnt(0)")
    e(f"""s_cmp_lg_u32 s{sOK}, 0
          s_cbranch_scc1 L_cs_ready
          s_and_b32 s{sA}, s{sNan}, 0xffffff
          s_cmp_eq_u32 s{sA}, {ARMED}
          s_cbranch_scc1 L_cs_p3
          L_cs_p1:
          s_sleep {cfg.get('sp1', 8)}
          buffer_load_dword v{t0}, off, {sr(S_DBG, 4)}, 0 offset:{D_INIT} sc1
          s_sub_u32 s{S_SPIN}, s{S_SPIN}, 1
          s_cbranch_scc1 L_end
          v_readfirstlane_b32 s{sNan}, v{t0}
          s_and_b32 s{sA}, s{sNan}, 0xffffff
          s_cmp_eq_u32 s{sA}, {ARMED}
          s_cbranch_scc0 L_cs_p1
          {'s_memrealtime s[80:81]' if cfg.get('diag') else ''}
          L_cs_p2:
          s_sleep {cfg.get('sp2', 4)}
          buffer_load_dword v{VX + 7}, v{PM + 3}, {W}, s{sFl} offen sc1
          s_sub_u32 s{S_SPIN}, s{S_SPIN}, 1
          s_cbranch_scc1 L_end
          L_cs_p3:
          s_waitcnt vmcnt(0)
          v_cmp_ne_u32 {sr(sFm, 2)}, 0, v{VX + 7}
          s_lshr_b32 s{sA}, s{sFm}, s{sStep}
          s_and_b32 s{sA}, s{sA}, 3
          s_cmp_eq_u32 s{sA}, 3
          s_cbranch_scc0 L_cs_p2""")
    kx_dma(e, L_KX)
    e.label("L_cs_ready")
    e(f"""v_mov_b32 v{PM + 1}, 0
          v_mov_b32 v{PM + 2}, 0
          s_add_u32 s{sF1}, s{sStep}, 1
          s_cmp_eq_u32 s{S_EC}, 0
          s_cselect_b32 s{sEnd}, 255, {NE}
          s_lshl_b32 s{sA}, s{sStep}, 12
          s_add_u32 s{sExp}, s{sExp}, s{sA}
          s_and_b32 s{sA}, s{sStep}, 2
          s_lshl_b32 s{sA}, s{sA}, 13
          v_xor_b32 v{vMst}, s{sA}, v{vMst}
          s_mov_b32 s{sTog}, 0""")
    e("\n".join(scalar_lines() + prep_a_lines()))
    for b in range(2):
        e(mload(b))
    if cfg.get('se', 0):
        e(mspare())
    e("\n".join(prep_b_lines()))
    dbg_max(e, cfg, 11, v=PM, mask=1)
    if cfg.get('holdto'):
        e(f"""L_hold:
              s_memrealtime s[92:93]
              s_waitcnt lgkmcnt(0)
              s_sub_u32 s92, s92, s94
              s_cmp_lt_u32 s92, {cfg['holdto']}
              s_cbranch_scc1 L_hold""")
    e("s_waitcnt vmcnt(0) lgkmcnt(0)\n s_barrier")
    if cfg.get('diag'):
        e.raw(f"  s_memtime {sr(sDbgT + 6, 2)}\n  s_memrealtime {sr(sDbgT + 10, 2)}\n  s_mov_b32 s{sDbgT + 5}, 0\n  s_mov_b32 s12, 0\n  s_mov_b32 s13, 0\n  s_mov_b32 s14, 0\n  s_mov_b32 s15, 0\n  s_waitcnt lgkmcnt(0)")
    e(f"""s_lshr_b32 s{sA}, s{sNan}, 24
          s_mov_b32 s{sNan}, 0
          s_or_b32 s{sA}, s{sA}, s{S_EC}
          s_cbranch_scc1 L_{ent}_s""")
    e(f"s_branch L_{ent}_s" if cfg.get('force_slow') else f"s_branch L_{ent}_f")


def chain_loop(e, cfg, sfx, st):
    acc = {('q', 0): ACC, ('q', 1): ACC + 4, ('k', 0): ACC + 8, ('k', 1): ACC + 12, ('v', 0): ACC + 16, ('v', 1): ACC + 20}
    loc = dict(RES)
    for o in range(10):
        loc[STREAM[o]] = ('v', R1[o])
    for o in range(6):
        loc[STREAM[10 + o]] = ('v', WO_SB[o])
    diag = cfg.get('diag')

    def stamp(n):
        tr = cfg.get('trace')
        if tr and n in tr and sfx == 'f':
            e.raw(f"  s_memtime {sr(TRS[tr.index(n)], 2)}")

    def trace_out(where, TR):
        if cfg.get('trace') and cfg.get('tpos', 'mid') == where and sfx == 'f':
            e(f"""s_memtime s[32:33]
                  s_memrealtime s[34:35]
                  s_lshl_b32 s40, s{S_ROLE}, 2
                  s_add_u32 s40, s40, s{S_WAVE}
                  s_lshl_b32 s40, s40, 6
                  s_add_u32 s40, s40, s{sStep}
                  s_lshl_b32 s40, s40, 5
                  s_add_u32 s40, s40, 0x6200000
                  s_waitcnt lgkmcnt(0)""")
            for j in range(8):
                e(f"v_mov_b32 v{TR + j}, s{TRS[j]}")
            e(f"""s_mov_b64 exec, 1
                  buffer_store_dwordx4 {vr(TR, 4)}, off, {W}, s40
                  buffer_store_dwordx4 {vr(TR + 4, 4)}, off, {W}, s40 offset:16
                  s_mov_b64 exec, -1""")

    def P(m, ft, i):
        k, b = loc[(m, ft, i)]
        return f"v_smfmac_f32_16x16x64_bf16 {vr(acc[(m, ft)], 4)}, {vr(MA + 4 * i, 4)}, {vr(b, 8, k)}, v{vIdx}"

    def post(a, dst):
        return [f"v_add_f32 v{a}, v{a}, v{a + 1}", f"v_add_f32 v{a + 2}, v{a + 2}, v{a + 3}",
                f"v_cvt_pk_bf16_f32 v{dst}, v{a}, v{a + 2}"]

    def xread(kb):
        return [f"ds_read_b64_tr_b16 {vr(X + 4 * kb, 2)}, v{vTr} offset:{kb * 256}",
                f"ds_read_b64_tr_b16 {vr(X + 4 * kb + 2, 2)}, v{vTr} offset:{kb * 256 + 64}"]

    kx_dst = [KXR, SPARE, KXR + 4, SPARE + 4, KXR + 8, KXR, KXR + 12, KXR + 4]

    def kxread(n):
        return f"ds_read_b128 {vr(kx_dst[n], 4)}, v{vKXr} offset:{(n >> 1) * 2048 + (n & 1) * 256}"

    Sx = [ACC, ACC + 4]
    Sm, Px = ACC + 8, ACC + 12

    def smx(n):
        kb, t = n >> 1, n & 1
        c = '0' if kb == 0 else vr(Sx[t], 4)
        return f"v_mfma_f32_16x16x32_bf16 {vr(Sx[t], 4)}, {vr(kx_dst[n], 4)}, {vr(X + 4 * kb, 4)}, {c}"

    def smm(kb):
        c = '0' if kb == 0 else vr(Sm, 4)
        return f"v_mfma_f32_16x16x32_bf16 {vr(Sm, 4)}, {vr(X + 4 * kb, 4)}, {vr(X + 4 * kb, 4)}, {c}"

    ad = 0
    ldH = lambda k: (lambda: e.loose(f"buffer_load_dword v{HD + k}, v{HA}, {W}, s{sHl} offen sc1"))
    ldV = [f"buffer_load_dwordx4 {vr(VX, 4)}, v{vKXr}, {W}, s{sVx} offen sc1",
           f"buffer_load_dwordx4 {vr(VX + 4, 4)}, v{vKXr}, {W}, s{sVx} offen offset:256 sc1"]
    ldK = [f"buffer_load_dwordx4 v{vL16}, {W}, s{sKV} offen sc1 lds",
           f"buffer_load_dwordx4 v{vL16}, {W}, s{sKV} offen offset:1024 sc1 lds"]
    touch = f"buffer_load_dword v{PM + 3}, {W}, s{sVt} offen sc1 lds"
    export = f"buffer_store_dwordx4 {vr(EX, 4)}, v{vL16}, {W}, s{sExp} offen sc1"
    progress = f"s_mov_b64 exec, 1\n buffer_store_dword v{TMP}, off, {W}, s{sFch} sc1\n s_mov_b64 exec, -1"
    ldF = f"buffer_load_dword v{TMP + 3}, v{TMP + 3}, {W}, s{sFl} offen sc1"
    if cfg.get('noexp'):
        export = progress = "s_nop 0"
    rf = sum([wl_lines(STREAM[o], R1[o]) for o in range(8, 10)], [])
    wo = sum([wl_lines(STREAM[10 + o], WO_SB[o]) for o in range(6)], [])
    q0p, q1p, k0p, k1p = post(ACC, ACC + 1), post(ACC + 4, ACC + 5), post(ACC + 8, EX), post(ACC + 12, EX + 1)
    v0p, v1p = post(ACC + 16, EX + 2), post(ACC + 20, EX + 3)
    m0, m1 = TMP, TMP + 1
    C0 = PM
    zero = [f"v_mov_b64 {vr(MA + j, 2)}, 0" for j in range(0, 32, 2)]
    st_ = lambda n: (lambda: stamp(n))
    mx = lambda d, a, b, c_: f"v_max3_f32 v{d}, v{a}, v{b}, v{c_}"

    def check(blocks):
        r = [MA + 4 * b + j for b in blocks for j in range(4)]
        out = [f"v_max3_u32 v{C0}, v{r[0]}, v{r[1]}, v{r[2]}"]
        k = 3
        while k + 1 < len(r):
            out.append(f"v_max3_u32 v{C0}, v{C0}, v{r[k]}, v{r[k + 1]}"); k += 2
        out.append(f"v_max_u32 v{C0}, v{C0}, v{r[k]}")
        out.append(f"v_cmp_eq_u32 vcc, -1, v{C0}")
        return out

    def mread(i):
        return f"ds_read_b128 {vr(MA + 4 * i, 4)}, v{TMP + (i >> 1)} offset:{(i & 1) * 4096}"

    e.slot_no = 0
    e.slot_hook = lambda n: stamp(100 + n)
    e.forget()
    e.raw(".p2align 8\n" + "  s_nop 0\n" * cfg.get('ph', 8))
    e.label(f"L_step_{sfx}")
    ic = cfg.get('ic', 0)
    e3 = cfg.get('e3', 0) if ic else 0
    if not ic:
        e("s_waitcnt vmcnt(2)")
    e.label(f"L_chkE_{sfx}")
    xe = 0
    so = cfg.get('so', 1)
    xr = xread(0) + xread(1) + xread(2) + xread(3)
    ba, bb, bc = cfg.get('ba', 0), cfg.get('bb', 1), cfg.get('bc', 1)
    xo = cfg.get('xo', 0)
    lastsp = cfg.get('lastsp', 1)
    spec = cfg.get('se', 0)
    ce_ = check((0,))
    specb = []
    wrE = f"ds_write_b128 v{vMw}, {vr(MA, 4)}"
    if ic:
        e.lgkm = [parse(wrE)]
    elif spec:
        e(f"ds_write_b128 v{vMw}, {vr(MA, 4)}\n L_okE_{sfx}:")
    else:
        e("\n".join(ce_))
        e(f"""ds_write_b128 v{vMw}, {vr(MA, 4)}
              s_cbranch_vccnz L_retE_{sfx}""")
    stamp(0)
    cl_ = check((1,))
    z = lambda: zero.pop(0)
    lw = lambda n: (lambda: e.wait(lgkm=n))
    seq = [
        (P('q', 0, 0), [] if ic else [lambda: e.loose(mload(1))] + ([ce_[0]] if spec else [])),
        (P('q', 1, 0), [ldV[1], ce_[1], ce_[2]] if spec else [ldV[0]]),
        (P('k', 0, 0), [f"s_cbranch_vccnz L_retE_{sfx}" if spec else ldV[1], e.barrier, mread(2), mread(4)]),
        (P('k', 1, 0), [mread(6), f"s_waitcnt vmcnt({3 - spec + e3})", cl_[0]]),
        (P('v', 0, 0), [e.barrier, cl_[1]] if ba == 1 else [cl_[1]]),
        (P('v', 1, 0), [cl_[2], f"ds_write_b128 v{vMw}, {vr(MA + 4, 4)} offset:4096", f"s_cbranch_vccnz L_retL_{sfx}", f"L_okL_{sfx}:"]),
        (P('q', 0, 1), [st_(1)] + ([mread(2), mread(4)] if ba == 1 else [lw(1), "s_barrier"] if ba == 2 else [])),
        (P('q', 1, 1), [ldV[0]] if spec else []),
        (P('k', 0, 1), [mread(6), rf[0]] if ba == 2 else [rf[0]]),
        (P('k', 1, 1), [rf[1]] + ([] if ba else [lw(3)])),
        (P('q', 0, 2), [rf[2]]),
        (P('q', 1, 2), [e.lds_writes_done]),
        (P('k', 0, 2), [e.barrier] if bb else [e.barrier, ldK[0], mread(3)]),
        (P('k', 1, 2), [ldK[0], mread(3)] if bb else [mread(5)]),
        (P('q', 0, 4), [mread(5)] if bb else [mread(7), f"v_lshrrev_b32 v{TMP + 3}, 2, v{vL16}"]),
        (P('q', 1, 4), [mread(7), f"v_lshrrev_b32 v{TMP + 3}, 2, v{vL16}"] if bb else [ldK[1], f"s_movk_i32 m0, {L_DUMMY}"]),
        (P('k', 0, 4), [ldK[1], f"s_movk_i32 m0, {L_DUMMY}"] if bb else [rf[3]]),
        (P('k', 1, 4), [rf[3]] if bb else [touch]),
        (P('q', 0, 6), [kxread(0)] + ([touch] if bb else [])),
        (P('q', 1, 6), [kxread(2), ldF]),
        (P('k', 0, 6), ([] if xo else [export]) + [lambda: trace_out('mid', SPARE)]),
        (P('k', 1, 6), [kxread(4), st_(2), lw(3)]),
        (P('q', 0, 3), [kxread(6)]),
        (P('q', 0, 5), [kxread(1)]),
        (P('q', 0, 7), [kxread(3)]),
        (P('q', 1, 3), [lambda: e(f"s_waitcnt vmcnt({len(e.vm) - [x.text for x in e.vm].index(ldK[0])})"), "s_nop 0"]),
        (P('q', 1, 5), ["s_nop 1"] if xo else [progress]),
        (P('q', 1, 7), ["s_nop 0", q0p[0]]),
        (P('k', 0, 3), ["s_nop 0", q0p[1]]),
        (P('k', 0, 5), ["s_nop 0", q0p[2]]),
        (P('k', 0, 7), [q1p[0]]),
        (P('k', 1, 3), ["s_nop 0", q1p[1]]),
        (P('k', 1, 5), ["s_nop 0", q1p[2]]),
        (P('k', 1, 7), [f"ds_write2_b32 v{vTw}, v{ACC + 1}, v{ACC + 5} offset0:0 offset1:32", st_(3), k0p[0]]),
        (P('v', 0, 1), ["s_nop 0", k0p[1]]),
        (P('v', 1, 1), ["s_nop 0", k0p[2], k1p[0]]),
        (P('v', 0, 2), [k1p[1], k1p[2]]),
        (P('v', 1, 2), [f"ds_write2_b32 v{vTw}, v{EX}, v{EX + 1} offset0:1 offset1:33", z()]),
        (P('v', 0, 3), [z()]),
        (P('v', 1, 3), [z()]),
        (P('v', 0, 4), [z()]),
        (P('v', 1, 4), [e.lds_writes_done, z()]),
    ] + ([
        (P('v', 0, 5), [e.barrier]),
        (P('v', 1, 5), xread(0) + [z()]),
        (P('v', 0, 6), [xr[2], z()]),
        (P('v', 0, 7), [xr[3], z()]),
        (P('v', 1, 6), [xr[4], z()]),
        (P('v', 1, 7), [xr[5], st_(4), lw(4), z()]),
        (smx(0), [xr[6], z()]),
        (smx(1), [xr[7], z()]),
        (smm(0), [lw(4), v0p[0]]),
        (smx(2), [kxread(5), v0p[1]]),
        (smx(3), [kxread(7), v0p[2]]),
        (smm(1), [lw(2), v1p[0]]),
        (smx(4), [v1p[1], v1p[2]]),
        (smx(6), [z(), z()]),
        (smm(2), [z(), z()]),
        (smm(3), [lw(0)] + ([f"v_exp_f32 v{m1}, v{vIdx}"] if cfg.get('warm', 1) == 1 else ["s_nop 1"])),
        (smx(5), [mx(m0, Sx[0], Sx[0] + 1, Sx[0] + 2)]),
    ] if so else [
        (P('v', 0, 5), [e.barrier] + ([] if bc else xread(0))),
        (P('v', 1, 5), xread(1 - bc) + [z()]),
        (P('v', 0, 6), xread(2 - bc) + [z()]),
        (P('v', 0, 7), xread(3 - bc) + [z()]),
        (P('v', 1, 6), (xread(3) if bc else []) + ([] if lastsp else [f"s_cmp_eq_u32 s{sStep}, 63"]) + [z()]),
        (P('v', 1, 7), [st_(4), lw(6 if bc else 4), z()]),
        (smx(0), [z(), z()]),
        (smx(2), [kxread(5), lw(1)]),
        (smx(4), [kxread(7), v0p[0]]),
        (smx(6), [v0p[1], v0p[2]]),
        (smm(0), [v1p[0], v1p[1]]),
        (smm(1), [v1p[2], z()]),
        (smm(2), ([] if lastsp else ["s_cbranch_scc1 L_final"]) + [mx(m0, Sx[0], Sx[0] + 1, Sx[0] + 2)]),
        (smm(3), [z(), z()]),
        (smx(1), [lw(0), z()]),
        (smx(3), [f"v_exp_f32 v{m1}, v{vIdx}"] if cfg.get('warm', 1) == 1 else []),
        (smx(5), [mx(m0, m0, Sx[0] + 3, Sm + 2), f"v_max_f32 v{m0}, v{m0}, v{Sm + 3}"]),
    ]) + [
        (smx(7), [wo[0], f"s_add_u32 s{sStep}, s{sStep}, 1", wo[1], f"s_xor_b32 s{sTog}, s{sTog}, 0x2000", wo[2],
                  f"s_mov_b32 s{sG}, s{sG2}", wo[3], f"v_xor_b32 v{vKXr}, 0x2000, v{vKXr}"] if not so else
         [wo[0], f"s_add_u32 s{sStep}, s{sStep}, 1", wo[1], f"s_mov_b32 s{sG}, s{sG2}", wo[2], wo[3],
          mx(m0, m0, Sx[0] + 3, Sm + 2), f"v_max_f32 v{m0}, v{m0}, v{Sm + 3}"]),
    ]
    e.slots(seq)
    assert not zero
    e(f"""{mx(m0, m0, Sx[1], Sx[1] + 1)}
          {mx(m0, m0, Sx[1] + 2, Sx[1] + 3)}
          v_mov_b32 v{m1}, v{m0}
          {f's_xor_b32 s{sTog}, s{sTog}, 0x2000' if so else ''}
          {f'v_xor_b32 v{vKXr}, 0x2000, v{vKXr}' if so else ''}
          v_permlane32_swap_b32 v{m0}, v{m1}
          v_max_f32 v{m0}, v{m0}, v{m1}
          v_mov_b32 v{m1}, v{m0}
          v_permlane16_swap_b32 v{m0}, v{m1}
          v_max_f32 v{m0}, v{m0}, v{m1}
          v_mul_f32 v{m0}, s{sC}, v{m0}""")
    for j in (0, 2, 4, 6, 10):
        e(f"v_pk_fma_f32 {vr(ACC + j, 2)}, {vr(ACC + j, 2)}, {sr(sC, 2)}, {vr(m0, 2)} op_sel_hi:[1,0,0] neg_lo:[0,0,1] neg_hi:[0,0,1]")
    for j in (0, 1, 2, 3, 4, 5, 6, 7, 10, 11):
        e(f"v_exp_f32 v{ACC + j}, v{ACC + j}")
    stamp(5)
    for j in range(4):
        e(f"v_cvt_pk_bf16_f32 v{Px + j}, v{ACC + 2 * j}, v{ACC + 2 * j + 1}")
    e(f"""v_cvt_pk_bf16_f32 v{PM}, v{Sm + 2}, v{Sm + 3}
          v_cvt_pk_bf16_f32 v{PM + 3}, v{Sm + 2}, v{Sm + 3}
          v_pk_add_f32 {vr(ACC, 2)}, {vr(ACC, 2)}, {vr(ACC + 2, 2)}
          v_pk_add_f32 {vr(ACC + 4, 2)}, {vr(ACC + 4, 2)}, {vr(ACC + 6, 2)}
          v_pk_add_f32 {vr(ACC, 2)}, {vr(ACC, 2)}, {vr(Sm + 2, 2)}
          v_pk_add_f32 {vr(m0, 2)}, {vr(ACC, 2)}, {vr(ACC + 4, 2)}""")
    O = SPARE
    e.slots([
        (f"v_mfma_f32_16x16x32_bf16 {vr(O, 4)}, {vr(VX, 4)}, {vr(Px, 4)}, 0",
         [f"v_add_f32 v{m0}, v{m0}, v{m1}", f"v_mov_b32 v{m1}, v{m0}"]),
        (f"v_mfma_f32_16x16x32_bf16 {vr(O + 4, 4)}, {vr(VX + 4, 4)}, {vr(Px, 4)}, 0",
         [f"v_permlane32_swap_b32 v{m0}, v{m1}"]),
        (f"v_mfma_f32_16x16x16_bf16 {vr(O, 4)}, {vr(EX + 2, 2)}, {vr(PM, 2)}, {vr(O, 4)}",
         [f"v_add_f32 v{m0}, v{m0}, v{m1}", f"v_mov_b32 v{m1}, v{m0}"]),
        (f"v_mfma_f32_16x16x16_bf16 {vr(O + 4, 4)}, {vr(EX + 2, 2)}, {vr(PM + 2, 2)}, {vr(O + 4, 4)}",
         [f"v_permlane16_swap_b32 v{m0}, v{m1}", f"v_add_f32 v{m0}, v{m0}, v{m1}", f"v_rcp_f32 v{m0}, v{m0}",
          ] + ([f"v_mov_b32 v{HV}, s{sStep}", f"v_lshlrev_b32 v{HS}, 3, v{vL16}"] if ad else [])),
    ])
    for j in range(0, 8, 2):
        e(f"v_pk_mul_f32 {vr(O + j, 2)}, {vr(O + j, 2)}, {vr(m0, 2)} op_sel_hi:[1,0]")
    OA = ACC + 16
    for j in range(4):
        e(f"v_cvt_pk_bf16_f32 v{O + j}, v{O + 2 * j}, v{O + 2 * j + 1}")
    e(f"ds_write_b128 v{vOw}, {vr(O, 4)}")
    if xo:
        e(export)
        e(f"v_mov_b32 v{TMP + 2}, s{sProg}")
        e(progress.replace(f"v{TMP},", f"v{TMP + 2},"))
    if ad:
        e.comment("progress marker for 8 members per wave (timing hint only)")
        e(f"""s_mov_b64 exec, 0xff
              buffer_store_dword v{HV}, v{HS}, {W}, s{sHs} offen {st}
              s_mov_b64 exec, -1
              v_bfe_u32 v{HA}, v{vL16}, 2, 7
              v_mov_b64 {vr(HD, 2)}, 0
              v_mov_b64 {vr(HD + 2, 2)}, 0""")
        stamp(15)
    e.barrier()
    e(f"""ds_read_b128 {vr(OA, 4)}, v{vL16} offset:{L_OB}
          ds_read_b128 {vr(OA + 4, 4)}, v{vL16} offset:{L_OB + 1024}""")
    hs = cfg.get('hs', (-1, 0, 3, 6))
    if ad and hs[0] == -1:
        ldH(0)()
    stamp(6)
    OUT = SPARE

    def pstore(c):
        return f"buffer_store_dwordx4 {vr(OUT + 4 * c, 4)}, v{vPst}, {W}, s{sPbaseS} offen offset:{c * 2048} {st}"

    tag = lambda j: f"v_and_or_b32 v{OUT + j}, v{OUT + j}, -2, s{sG}"
    seq = []
    for t in range(8):
        for kb in range(2):
            k, b = loc[('o', t, kb)]
            if t >= 2:
                p = post(MA + 4 * (t - 2), OUT + t - 2)
                fl = p[0:1] if kb == 0 else p[1:3]
                if kb == 0 and t % 2 == 1:
                    fl = fl + [tag(t - 3)]
            else:
                fl = ["s_nop 0"]
            n = 2 * t + kb
            if 1 <= n <= 8:
                fl = [wo[3 + n]] + fl
            if ad and n in hs:
                fl = [ldH(hs.index(n))] + [x for x in fl if x != "s_nop 0"]
            if kb == 0 and t == 6:
                fl = [pstore(0)] + fl
            seq.append((f"v_smfmac_f32_16x16x64_bf16 {vr(MA + 4 * t, 4)}, {vr(OA + 4 * kb, 4)}, {vr(b, 8, k)}, v{vIdx}", fl))
    if cfg.get('wd', 0):
        seq[1], seq[2] = (seq[2][0], seq[1][1]), (seq[1][0], seq[2][1] + ["s_nop 0"])
        seq[3] = (seq[3][0], seq[3][1] + ["s_nop 0"])
    e.slots(seq)
    PL, D, SEL, PL2 = MA + 8, MA + 16, MA + 20, MA + 24
    e("\n".join(post(MA + 24, OUT + 6) + [tag(6)]))
    e("\n".join(post(MA + 28, OUT + 7)))
    e(pstore(1))
    stamp(7)
    trace_out('late', MA)
    e(f"s_bitcmp1_b32 s{S_WAVE}, 0\n s_cbranch_scc1 L_x1_{sfx}")
    e.slot_hook = None
    st0 = e.state()
    ldP = [f"buffer_load_dwordx4 {vr(PL, 4)}, v{vL16}, {W}, s{sPbaseL} offen sc1",
           f"buffer_load_dwordx4 {vr(PL + 4, 4)}, v{vL16}, {W}, s{sPbaseL} offen offset:1024 sc1"]
    tP, dM, eM, gM = cfg.get('tP', (244, 388)), cfg.get('dM', (270, 150)), cfg.get('eM', 200), cfg.get('gM', (120, 116))
    if sfx == 's':
        tP, dM, gM = cfg.get('tPs', (900, 1100)), cfg.get('dMs', (900, 700)), cfg.get('gMs', (300, 300))
    for w in range(2):
        if w:
            e.raw(".p2align 6")
            e.label(f"L_x{w}_{sfx}"); e.set_state(st0)
        clk = [[12, 48][w]]
        pa = prep_a_lines()
        valu = [f"v_cndmask_b32 v{SEL + j}, 0, v{vSelC}, {sr(sSel + 2 * j, 2)}" for j in range(4)] + scalar_lines() + [l for l in pa if not l.startswith('ds_')]
        if diag:
            valu += [f"s_cmp_eq_u32 s{sStep}, 10", f"s_cselect_b32 s{sDbgT + 6}, s0, s{sDbgT + 6}"] + [f"s_cselect_b32 s{k}, 0, s{k}" for k in range(12, 16)]
        reads = [l for l in pa if l.startswith('ds_')]
        late_v = [l for l in pa if not l.startswith('ds_')]
        pool = [l for l in valu if l not in late_v]
        pool = [l for l in pool if not l.startswith('v_')] + [l for l in pool if l.startswith('v_')]
        merged = []
        for l in pool:
            if l.startswith('s_cselect'):
                merged[-1] += '\n' + l
            else:
                merged.append(l)
        pool = merged
        def until(t):
            while clk[0] + 4 <= t and pool:
                l = pool.pop(0); e(l); clk[0] += 4 * (1 + l.count('\n'))
            if clk[0] + 4 <= t:
                delay(e, t - clk[0]); clk[0] = t

        if ad:
            ev = [f"v_cmp_gt_u32 {sr(sHm + 2 * k, 2)}, s{sStep}, v{HD + k}" for k in range(4)] + [f"s_mov_b32 s{sCnt}, 0"]
            for k in range(4):
                ev += [f"s_cmp_lg_u64 {sr(sHm + 2 * k, 2)}, 0", f"s_addc_u32 s{sCnt}, s{sCnt}, 0"]
            if diag:
                ev += [f"s_add_u32 s15, s15, s{sCnt}"]
            ev += [f"s_mul_i32 s{sCnt}, s{sCnt}, {cfg.get('hm', 2)}"]
            until(tP[w] - 4 * len(ev) - 12)
            e("\n".join(ev))
            e(f"L_ad{w}_{sfx}:\n s_sub_u32 s{sCnt}, s{sCnt}, 1\n s_cbranch_scc0 L_ad{w}_{sfx}")
        else:
            until(tP[w])
        if sfx == 's' and cfg.get('ne', 0):
            assert not [l for l in pool if not l.startswith('v_')]
            e(f"""s_cmp_lg_u32 s{sStep}, s{sEnd}
                  s_cbranch_scc1 L_ho{w}
                  {export}
                  s_sub_u32 s{sMn2}, s{sMn2}, 0x8000
                  v_bfrev_b32 v{C0}, 2
                  v_cndmask_b32 v{vMst}, v{vMst}, v{C0}, {sr(sArm, 2)}
                  L_ho{w}:""")
        e.loose(ldP[0]); e.loose(ldP[1]); stamp(11)
        ldP2 = [x.replace(vr(PL, 4), vr(PL2, 4)).replace(vr(PL + 4, 4), vr(PL2 + 4, 4)) for x in ldP]
        need = scalar_lines()[:7]
        late_v = [l for l in pool if not l.startswith('v_') and l not in need and 's0' not in l] + late_v
        pool = [l for l in pool if l not in late_v]
        rest = reads + pool
        nsp = cfg.get('nsp', (10, 10))[w]
        e("\n".join(rest[:nsp]))
        if nsp is not None:
            delay(e, cfg.get('dP2', (60, 40))[w])
            e.loose(ldP2[0]); e.loose(ldP2[1])
        else:
            nsp = len(rest)
        spare = cfg.get('nsp', (10, 10))[w] is not None
        e("\n".join(rest[nsp:]))
        e(f"s_mov_b32 s{sNan}, 0")
        if diag:
            e.raw("  s_memtime s[0:1]")
        ny = 2 if spare else 0
        e(f"""s_waitcnt vmcnt({ny + 1})
              L_redP{w}_{sfx}:
              v_mfma_f32_16x16x32_bf16 {vr(D, 4)}, {vr(PL, 4)}, {vr(SEL, 4)}, 0
              s_waitcnt vmcnt({ny})
              v_mfma_f32_16x16x32_bf16 {vr(D, 4)}, {vr(PL + 4, 4)}, {vr(SEL, 4)}, {vr(D, 4)}
              v_xor_b32 v{C0}, s{sG}, v{PL}
              v_bitop3_b32 v{C0}, v{C0}, v{PL + 2}, s{sG} bitop3:0xf6
              v_bitop3_b32 v{C0}, v{C0}, v{PL + 4}, s{sG} bitop3:0xf6
              v_bitop3_b32 v{C0}, v{C0}, v{PL + 6}, s{sG} bitop3:0xf6
              v_and_b32 v{C0}, 1, v{C0}
              v_cmp_ne_u32 vcc, 0, v{C0}
              v_cmp_ne_u32 {sr(sFm, 2)}, 0, v{TMP + 3}
              {f's_cbranch_vccnz L_reP{w}_{sfx}' if not cfg.get('lb', 1) else ''}
              v_permlane32_swap_b32 v{D}, v{D + 2}
              v_permlane32_swap_b32 v{D + 1}, v{D + 3}
              v_add_f32 v{D}, v{D}, v{D + 2}
              v_add_f32 v{D + 1}, v{D + 1}, v{D + 3}
              {f's_cbranch_vccnz L_reP{w}_{sfx}' if cfg.get('lb', 1) else ''}
              v_permlane16_swap_b32 v{D}, v{D + 1}
              v_add_f32 v{D}, v{D}, v{D + 1}
              v_mov_b32_dpp v{D + 1}, v{D} quad_perm:[2,3,0,1] row_mask:0xf bank_mask:0xf
              v_cvt_pk_bf16_f32 v{D}, v{D}, v{D + 1}
              v_min_u32 v{D}, -2, v{D}
              v_cndmask_b32 v{VX + 4}, v{D}, -1, {sr(sArm, 2)}
              buffer_store_dword v{VX + 4}, v{vMst}, {W}, s{sMn2} offen {st}""")
        stamp(8)
        if sfx == 's' and cfg.get('ne', 0):
            e(f"s_cmp_eq_u32 s{sStep}, s{sEnd}\n s_cbranch_scc1 L_ec_done")
        pb = ["s_waitcnt vmcnt(1)"] + prep_b_lines()
        d = dM[w]
        if d >= 100 and cfg.get('pw', 0):
            e("\n".join(pb[1:-2])); d -= 72
            late_v = ["s_waitcnt vmcnt(2)"] + pb[-2:] + late_v; pb = []
        elif d >= 100:
            e("\n".join(pb)); d -= 100; pb = []
        delay(e, d)
        e.loose(mload(0)); stamp(12)
        d = gM[w]
        if pb:
            pb[0] = "s_waitcnt vmcnt(2)"
            e("\n".join(pb)); d -= 100
        gl = cfg.get('gL', 60)
        d -= gl
        k = max(0, min(len(late_v), d // 4))
        e("\n".join(late_v[:k])); d -= 4 * k
        delay(e, d)
        e.loose(mspare() if spec else mload(0))
        k2 = min(len(late_v), k + gl // 4)
        e("\n".join(late_v[k:k2])); delay(e, gl - 4 * (k2 - k)); k = k2
        e.loose(mload(1))
        e("\n".join(late_v[k:]))
        if lastsp:
            e(f"s_cmp_eq_u32 s{sStep}, 63\n s_cbranch_scc1 L_last_{sfx}")
        if ic:
            e(f"s_bitcmp1_b64 {sr(sFm, 2)}, s{sOK2}\n s_cbranch_scc0 L_flag_{sfx}")
            if e3:
                delay(e, cfg.get('g3', 20)); e.loose(mload(0))
            e(f"s_waitcnt vmcnt({2 + e3}) lgkmcnt(0)")
            e("\n".join(ce_ + [wrE]))
            e.loose(mload(1))
            e(f"s_cbranch_vccz L_step_{sfx}")
            e.loose(mload(0))
            for k in range(1 + e3):
                e(f"s_waitcnt vmcnt({3 + e3 if k == 0 else 2})")
                e("\n".join(ce_ + [wrE]))
                e(f"""{'s_add_u32 s13, s13, 1' if diag else ''}
                      s_cbranch_vccz L_step_{sfx}""")
            e(f"s_branch L_retE_{sfx}")
        else:
            e(f"""s_bitcmp1_b64 {sr(sFm, 2)}, s{sOK2}
                  s_waitcnt lgkmcnt(0)
                  s_cbranch_scc1 L_step_{sfx}
                  s_branch L_flag_{sfx}""")
        e.forget()
        e(f"L_reP{w}_{sfx}:")
        if spare:
            e("s_waitcnt vmcnt(0)")
            for j in range(0, 8, 2):
                e(f"v_mov_b64 {vr(PL + j, 2)}, {vr(PL2 + j, 2)}")
            e.loose(ldP2[0]); e.loose(ldP2[1])
        else:
            e.loose(ldP[0]); e.loose(ldP[1])
            e("s_waitcnt vmcnt(1)")
        e(f"""{'s_add_u32 s12, s12, 1' if diag else ''}
              s_sub_u32 s{S_SPIN}, s{S_SPIN}, 1
              s_cbranch_scc0 L_redP{w}_{sfx}
              s_branch L_end""")
    e.forget()
    e(f"""L_flag_{sfx}:
          v_lshrrev_b32 v{C0}, 2, v{vL16}
          buffer_load_dword v{C0}, v{C0}, {W}, s{sFl} offen sc1
          s_sub_u32 s{S_SPIN}, s{S_SPIN}, 1
          s_cbranch_scc1 L_end
          v_cmp_ne_u32 {sr(sFm, 2)}, 0, v{C0}
          s_bitcmp1_b64 {sr(sFm, 2)}, s{sOK2}
          s_cbranch_scc1 L_{'retE' if ic else 'step'}_{sfx}
          s_branch L_flag_{sfx}""")
    e.forget()
    if ic:
        e(f"L_retE_{sfx}:")
        e.loose(mload(1)); e.loose(mload(0))
        e(f"""{'s_add_u32 s15, s15, 1' if diag else ''}
              s_sub_u32 s{S_SPIN}, s{S_SPIN}, 1
              s_cbranch_scc1 L_end
              s_waitcnt vmcnt(2) lgkmcnt(0)""")
        e("\n".join(ce_ + [wrE]))
        e(f"s_cbranch_vccz L_step_{sfx}\n s_branch L_retE_{sfx}")
        e.forget()
    elif spec:
        e(f"""L_retE_{sfx}:
              s_waitcnt vmcnt(3)
              v_mov_b64 {vr(MA, 2)}, {vr(VX, 2)}
              v_mov_b64 {vr(MA + 2, 2)}, {vr(VX + 2, 2)}""")
        e.loose(mload(0))
        e(f"L_retE1_{sfx}:")
        e("\n".join(ce_))
        e(f"ds_write_b128 v{vMw}, {vr(MA, 4)}")
        for j in range(0, 12, 2):
            e(f"v_mov_b64 {vr(ACC + j, 2)}, 0")
        e(f"""{'s_add_u32 s13, s13, 1' if diag else 's_nop 0'}
              s_cbranch_vccz L_okE_{sfx}""")
        e.loose(mload(1)); e.loose(mload(0))
        e(f"""s_sub_u32 s{S_SPIN}, s{S_SPIN}, 1
              s_waitcnt vmcnt(2)
              s_cbranch_scc0 L_retE1_{sfx}
              s_branch L_end""")
        e.forget()
    else:
        e(f"L_retE_{sfx}:")
        e.loose(mload(0)); e.loose(mload(1))
        e(f"""{'s_add_u32 s13, s13, 1' if diag else ''}
              s_sub_u32 s{S_SPIN}, s{S_SPIN}, 1
              s_waitcnt vmcnt(3)
              s_cbranch_scc0 L_chkE_{sfx}
              s_branch L_end""")
    if xe:
        e(f"""L_retL_{sfx}:
              {'s_add_u32 s14, s14, 1' if diag else ''}
              s_sub_u32 s{S_SPIN}, s{S_SPIN}, 1
              s_cbranch_scc1 L_end
              s_bitcmp1_b32 s{sNan}, 0
              s_bitset1_b32 s{sNan}, 0
              s_waitcnt vmcnt(4)
              s_cbranch_scc0 L_retL1_{sfx}""")
        e.loose(mload(1))
        e(f"s_waitcnt vmcnt(0)\n L_retL1_{sfx}:")
    else:
        e(f"L_retL_{sfx}:")
        e.loose(mload(1))
        e(f"""{'s_add_u32 s14, s14, 1' if diag else ''}
              s_sub_u32 s{S_SPIN}, s{S_SPIN}, 1
              s_cbranch_scc1 L_end
              s_bitcmp1_b32 s{sNan}, 0
              s_bitset1_b32 s{sNan}, 0
              s_waitcnt vmcnt({3 - spec})
              s_cbranch_scc0 L_retL1_{sfx}
              s_waitcnt vmcnt(1)
              L_retL1_{sfx}:""")
    e("\n".join(cl_))
    e(f"""ds_write_b128 v{vMw}, {vr(MA + 4, 4)} offset:4096
          s_cbranch_vccz L_okL_{sfx}
          s_branch L_retL_{sfx}""")
    if not lastsp:
        return
    e.forget()
    e(f"L_lret_{sfx}:")
    e.loose(mload(0)); e.loose(mload(1))
    e(f"""s_sub_u32 s{S_SPIN}, s{S_SPIN}, 1
          s_cbranch_scc1 L_end
          L_last_{sfx}:
          s_waitcnt vmcnt(0) lgkmcnt(0)""")
    e("\n".join(check((0, 1))))
    e(f"""ds_write_b128 v{vMw}, {vr(MA, 4)}
          ds_write_b128 v{vMw}, {vr(MA + 4, 4)} offset:4096
          s_cbranch_vccnz L_lret_{sfx}""")
    own = [(m, ft, i) for i in (0, 1) for m in 'kv' for ft in range(2)]
    seq = [(P(*op), []) for op in own]
    if not xo:
        seq[0][1].append(export)
    seq[3][1].extend([progress, e.barrier, mread(2), mread(3)])
    for k in range(4):
        seq[4 + k][1].append(mread(4 + k))
    seq += [(P(m, ft, i), []) for i in range(2, 6) for m in 'kv' for ft in range(2)]
    seq += [(P(m, ft, i), []) for m in 'kv' for ft in range(2) for i in (6, 7)]
    e.slots(seq)
    e("\n".join(k0p + k1p + v0p + v1p))
    e("s_branch L_final")


def chain_final(e, cfg):
    e.forget()
    e("L_final:")
    if cfg.get('holdend'):
        e(f"""L_hold2:
              s_memrealtime s[92:93]
              s_waitcnt lgkmcnt(0)
              s_sub_u32 s92, s92, s94
              s_cmp_lt_u32 s92, {cfg['holdend']}
              s_cbranch_scc1 L_hold2""")
    e(f"""s_add_u32 s{sExp}, s{sExp}, {0 if cfg.get('xo', 0) else 4096}
          buffer_store_dwordx4 {vr(EX, 4)}, v{vL16}, {W}, s{sExp} offen sc1
          s_waitcnt lgkmcnt(0)""")
    if cfg.get('diag'):
        e(f"""s_memrealtime {sr(sDbgT + 12, 2)}
              s_lshl_b32 s{sA}, s{S_ROLE}, 2
              s_add_u32 s{sA}, s{sA}, s{S_WAVE}
              s_lshl_b32 s{sA}, s{sA}, 6
              s_add_u32 s{sA}, s{sA}, 0x6000000
              s_waitcnt lgkmcnt(0)
              s_sub_u32 s{sDbgT + 8}, s0, s{sDbgT + 6}""")
        for n, r in enumerate([sDbgT + 8, sDbgT + 5, S_SPIN, sDbgT + 14, sDbgT + 10, sDbgT + 12, 12, 13, 14, 15]):
            e(f"v_mov_b32 v{TMP + 2}, s{r}\n buffer_store_dword v{TMP + 2}, off, {W}, s{sA} offset:{4 * n}")
    dbg_max(e, cfg, 12, v=TMP + 2)
    e("s_waitcnt vmcnt(0)\n s_branch L_end")


def chain_handover(e, cfg):
    e.forget()
    e("L_ec_done:")
    if cfg.get('diag'):
        e(f"""s_memrealtime s[92:93]
              s_lshl_b32 s{sA}, s{S_HEAD}, 2
              s_add_u32 s{sA}, s{sA}, s{S_WAVE}
              s_lshl_b32 s{sA}, s{sA}, 6
              s_add_u32 s{sA}, s{sA}, 0x6400000
              s_waitcnt lgkmcnt(0)""")
        for n, r in enumerate([94, 82, 80, 90, 92, 12, 13, 14]):
            e(f"v_mov_b32 v{PM}, s{r}\n buffer_store_dword v{PM}, off, {W}, s{sA} offset:{4 * n}")
    e(f"""
          v_mbcnt_lo_u32_b32 v0, -1, 0
          v_mbcnt_hi_u32_b32 v0, -1, v0
          s_sub_u32 s50, s{S_ROLE}, 32
          s_waitcnt vmcnt(0) lgkmcnt(0)
          s_barrier
          s_branch L_phase2""")


def chain(e, cfg):
    CFG.clear(); CFG.update(cfg)
    chain_startup(e, cfg)
    chain_loop(e, cfg, 'f', '')
    chain_loop(e, cfg, 's', 'sc1')
    chain_final(e, cfg)
    if cfg.get('ne', 0):
        chain_handover(e, cfg)
```

```python
from common import *

W = sr(S_WS, 4)
DBG = sr(S_DBG, 4)
sWid, sA, sB, sC_, sD, sE, sF, sG, sH, sI, sJ, sK = range(50, 62)
S_W0, S_W1, S_W2, S_X = 64, 68, 72, 76
PS = [4]
NEG = 0xf149f2ca


def wait_init(e, tag, tmp, nap=16):
    e(f"""L_wi_{tag}:
          s_sleep {nap}
          buffer_load_dword v{tmp}, off, {DBG}, 0 offset:{D_INIT} sc1
          s_sub_u32 s{S_SPIN}, s{S_SPIN}, 1
          s_cbranch_scc1 L_end
          v_readfirstlane_b32 s{sA}, v{tmp}
          s_and_b32 s{sA}, s{sA}, 0xffff
          s_cmp_eq_u32 s{sA}, 256
          s_cbranch_scc0 L_wi_{tag}""")


def count_in(e, tmp):
    e(f"""v_mov_b32 v{tmp}, 1
          s_mov_b64 exec, 1
          buffer_atomic_add v{tmp}, off, {DBG}, 0 offset:{D_INIT}
          s_mov_b64 exec, -1""")


def srd_sel(e, s, pa, pb, na, nb):
    e(f"""s_cselect_b32 s{s}, s{pa}, s{pb}
          s_cselect_b32 s{s+1}, s{pa+1}, s{pb+1}
          s_mov_b32 s{s+2}, {nb}
          s_cselect_b32 s{s+2}, {na}, s{s+2}
          s_mov_b32 s{s+3}, 0x20000""")


def lane_consts(e, lane, l16, sig):
    e(f"""v_and_b32 v{lane}, 63, v0
          v_lshlrev_b32 v{l16}, 4, v{lane}
          v_and_b32 v{sig}, 39, v{lane}
          v_bfe_u32 v{lane + 1}, v{lane}, 3, 1
          v_lshl_or_b32 v{sig}, v{lane + 1}, 4, v{sig}
          v_bfe_u32 v{lane + 1}, v{lane}, 4, 1
          v_lshl_or_b32 v{sig}, v{lane + 1}, 3, v{sig}
          v_lshlrev_b32 v{sig}, 4, v{sig}""")


XROW = 1040
XBUF = 32 * XROW
RING0 = 33792


def proj(e, cfg):
    lane, t1, vL16, vSig, vSrc, vTr, vXr, vT, vIn = 1, 2, 3, 4, 5, 6, 7, 8, 9
    XF, ACC, OUT = 16, 32, 80
    sHH, sSeg, sStride, sCol, sUnit, sFlag, sXb, sPrev = sC_, sD, sE, sF, sG, sH, sI, sJ
    NP = 5 if cfg.get('ne', 0) or cfg.get('nb', 0) == 3 else 6
    e(f"""s_mul_i32 s{sHH}, s63, {205 if NP == 5 else 171}
          s_lshr_b32 s{sHH}, s{sHH}, 10
          s_mul_i32 s{sA}, s{sHH}, {NP}
          s_sub_u32 s{sSeg}, s63, s{sA}
          s_cmp_lt_u32 s{sHH}, 32""")
    srd_sel(e, S_W0, P_WQ, P_AWQKV, 0x400000, 0x180000)
    srd_sel(e, S_W1, P_WK, P_AWQKV, 0x400000, 0x180000)
    srd_sel(e, S_W2, P_WV, P_AWQKV, 0x400000, 0x180000)
    srd_sel(e, S_X, P_BX, P_AX, 0x200000, 0x200000)
    e(f"""s_mov_b32 s{sStride}, 3072
          s_cselect_b32 s{sStride}, 8192, s{sStride}
          s_cselect_b32 s{sK}, 0, 1024
          s_and_b32 s{sCol}, s{sHH}, 31
          s_lshl_b32 s{sCol}, s{sCol}, 8""")
    lane_consts(e, lane, vL16, vSig)
    e(f"""v_lshrrev_b32 v{t1}, 4, v{lane}
          v_mul_lo_u32 v{vSrc}, v{t1}, s{sStride}
          v_lshlrev_b32 v{t1}, 2, v{t1}
          v_xor_b32 v{t1}, v{t1}, v{lane}
          v_and_b32 v{t1}, 15, v{t1}
          v_lshl_add_u32 v{vSrc}, v{t1}, 4, v{vSrc}""")
    e(f"""v_lshrrev_b32 v{t1}, 5, v{lane}
          v_lshlrev_b32 v{vTr}, 11, v{t1}
          v_bfe_u32 v{t1}, v{lane}, 2, 2
          v_lshl_add_u32 v{vTr}, v{t1}, 8, v{vTr}
          v_bfe_u32 v{t1}, v{lane}, 4, 1
          v_lshl_add_u32 v{vTr}, v{t1}, 5, v{vTr}
          v_and_b32 v{t1}, 3, v{lane}
          v_lshl_add_u32 v{vTr}, v{t1}, 3, v{vTr}
          v_bfe_u32 v{t1}, v{lane}, 2, 2
          v_xor_b32 v{t1}, s{S_WAVE}, v{t1}
          v_lshl_add_u32 v{vTr}, v{t1}, 6, v{vTr}""")
    e(f"""v_and_b32 v{t1}, 31, v{lane}
          v_mul_u32_u24 v{vXr}, {XROW}, v{t1}
          v_lshrrev_b32 v{t1}, 5, v{lane}
          v_lshl_add_u32 v{vXr}, v{t1}, 4, v{vXr}""")
    e(f"""s_lshl_b32 s{sA}, s{sHH}, 6
          s_add_u32 s{sA}, s{sA}, s{sSeg}
          s_mul_i32 s{sUnit}, s{sA}, {UNIT}
          s_lshl_b32 s{sB}, s{S_WAVE}, 11
          s_add_u32 s{sUnit}, s{sUnit}, s{sB}
          s_lshl_b32 s{sFlag}, s{sA}, 2
          s_add_u32 s{sFlag}, s{sFlag}, {F_QKV}
          s_mov_b32 s{sXb}, 0""")

    def xdma(seg_s, buf_s):
        e(f"""s_lshl_b32 s{sA}, s{seg_s}, 15
              s_lshl_b32 s{sB}, s{S_WAVE}, 13
              s_add_u32 s{sA}, s{sA}, s{sB}
              s_mul_i32 s{sB}, s{S_WAVE}, {8 * XROW}
              s_add_u32 s{sB}, s{sB}, s{buf_s}""")
        return [f"""s_add_u32 m0, s{sB}, {j * XROW}
                  s_add_u32 s3, s{sA}, {j * 1024}
                  buffer_load_dwordx4 v{vL16}, {sr(S_X, 4)}, s3 offen lds""" for j in range(8)]

    if cfg.get('wpf', 0):
        e.comment("the six workers of a head each request a sixth of its weights at once (one word per line)")
        e(f"""s_lshr_b32 s62, s{sSeg}, 1
              s_cmp_eq_u32 s62, 1
              s_cselect_b32 s{S_T0}, s{S_W1}, s{S_W0}
              s_cselect_b32 s{S_T0 + 1}, s{S_W1 + 1}, s{S_W0 + 1}
              s_cmp_eq_u32 s62, 2
              s_cselect_b32 s{S_T0}, s{S_W2}, s{S_T0}
              s_cselect_b32 s{S_T0 + 1}, s{S_W2 + 1}, s{S_T0 + 1}
              s_mov_b32 s{S_T0 + 2}, s{S_W0 + 2}
              s_mov_b32 s{S_T0 + 3}, 0x20000
              s_mul_i32 s62, s62, s{sK}
              s_add_u32 s62, s62, s{sCol}
              s_and_b32 s63, s{sSeg}, 1
              s_lshl_b32 s63, s63, 2
              s_add_u32 s63, s63, s{S_WAVE}
              s_lshl_b32 s63, s63, 6
              s_mul_i32 s63, s63, s{sStride}
              s_add_u32 s62, s62, s63
              v_mul_lo_u32 v{vT}, v{lane}, s{sStride}""")
        e.loose(f"buffer_load_dword v124, v{vT}, {sr(S_T0, 4)}, s62 offen")
        e.loose(f"buffer_load_dword v124, v{vT}, {sr(S_T0, 4)}, s62 offen offset:128")
    for l in xdma(sSeg, sXb):
        e(l)
    sRow = sPrev
    e(f"""s_lshl_b32 s{sA}, s{S_WAVE}, 4
          s_mul_i32 s{sRow}, s{sA}, s{sStride}
          s_add_u32 s{sRow}, s{sRow}, s{sCol}
          s_lshl_b32 s62, s{sStride}, 2
          s_lshl_b32 s63, s{S_WAVE}, 12""")
    order = cfg.get('po', [0, 1, 2])
    srds = [S_W0, S_W1, S_W2]
    dst = [('a', 0), ('a', 128), ('v', 128)]
    marks = {}

    def dma(r):
        m, b = order[r // 8], r % 8
        e(f"""s_mul_i32 s{sA}, s{sStride}, {64 * b}
              s_add_u32 s{sA}, s{sA}, s{sRow}
              s_mul_i32 s{sB}, s{sK}, {m}
              s_add_u32 s{sA}, s{sA}, s{sB}""")
        for j in range(4):
            e(f"""s_add_u32 m0, s63, {RING0 + (r % 7) * 16384 + j * 1024}
                  buffer_load_dwordx4 v{vSrc}, {sr(srds[m], 4)}, s{sA} offen lds""")
            if j < 3:
                e(f"s_add_u32 s{sA}, s{sA}, s62")
        marks[r] = e.vm[-1]

    for r in range(6):
        dma(r)
    confirm_barrier(e, 'pj')
    for r in range(24):
        m, b = order[r // 8], r % 8
        e.wait(vm=len(e.vm) - 1 - e.vm.index(marks[r]), lgkm=0)
        e("s_barrier")
        if r == 18:
            e(f"buffer_load_dword v{vT + 1}, off, {DBG}, 0 offset:{D_INIT} sc1")
        if r + 6 < 24:
            dma(r + 6)
        e(f"v_add_u32 v{vT + 2}, {RING0 + (r % 7) * 16384}, v{vTr}")
        k, base = dst[m]
        for ksl in range(4):
            for z in range(2):
                e(f"ds_read_b64_tr_b16 {vr(base + 4 * (4 * b + ksl) + 2 * z, 2, k)}, v{vT + 2} offset:{(16 * ksl + 4 * z) * 256}")
    e.wait(vm=0, lgkm=0)
    dbg_max(e, cfg, 14, v=vT + 3)
    e(f"""v_readfirstlane_b32 s{sA}, v{vT + 1}
          s_and_b32 s{sA}, s{sA}, 0xffff
          s_cmp_eq_u32 s{sA}, 256
          s_cbranch_scc1 L_pj_go""")
    wait_init(e, 'pj', vT)
    e.label("L_pj_go")
    if cfg.get('pjhold'):
        e(f"""L_hold3:
              s_memrealtime s[92:93]
              s_waitcnt lgkmcnt(0)
              s_sub_u32 s92, s92, s94
              s_cmp_lt_u32 s92, {cfg['pjhold']}
              s_cbranch_scc1 L_hold3""")
    if cfg.get('diag'):
        e("s_memrealtime s[86:87]\n s_waitcnt lgkmcnt(0)")
    e(f"s_mov_b32 s{sPrev}, 0\n v_mov_b32 v{vIn}, 1")
    e.forget()
    e.label("L_pj_loop")
    e(f"""s_waitcnt vmcnt(6)
          s_barrier
          v_add_u32 v{vT}, s{sXb}, v{vXr}
          s_add_u32 s62, s{sSeg}, {NP}
          s_min_u32 s62, s62, 63
          s_sub_u32 s63, {XBUF}, s{sXb}""")
    nxt = xdma(62, 63)
    for ks in range(3):
        e(f"ds_read_b128 {vr(XF + 4 * ks, 4)}, v{vT} offset:{32 * ks}")
    for ks in range(32):
        x = vr(XF + 4 * (ks % 4), 4)
        c = [('0' if ks == 0 else vr(ACC + 16 * m, 16)) for m in range(3)]
        e(f"v_mfma_f32_32x32x16_bf16 {vr(ACC, 16)}, {vr(4 * ks, 4, 'a')}, {x}, {c[0]}")
        if ks + 3 < 32:
            e(f"ds_read_b128 {vr(XF + 4 * ((ks + 3) % 4), 4)}, v{vT} offset:{32 * (ks + 3)}")
        e(f"v_mfma_f32_32x32x16_bf16 {vr(ACC + 16, 16)}, {vr(128 + 4 * ks, 4, 'a')}, {x}, {c[1]}")
        if ks < 8:
            e(nxt[ks])
        if ks == 20:
            e.comment("the previous segment's stores of every wave are complete behind this barrier: raise its flag")
            e(f"""s_waitcnt vmcnt(8)
                  s_barrier
                  s_cmp_eq_u32 s{sPrev}, 0
                  s_cbranch_scc1 L_pj_nf
                  s_mov_b64 exec, 1
                  buffer_store_dword v{vIn}, off, {W}, s{sPrev} sc1
                  s_mov_b64 exec, -1
                  L_pj_nf:""")
            e.vm.pop()
        e(f"v_mfma_f32_32x32x16_bf16 {vr(ACC + 32, 16)}, {x}, {vr(128 + 4 * ks, 4)}, {c[2]}")
    for m in range(3):
        for j in range(8):
            e(f"v_cvt_pk_bf16_f32 v{OUT + 8 * m + j}, v{ACC + 16 * m + 2 * j}, v{ACC + 16 * m + 2 * j + 1}")
        a = vSig if m == 1 else vL16
        e(f"""s_add_u32 s{sA}, s{sUnit}, {8192 * m}
              buffer_store_dwordx4 {vr(OUT + 8 * m, 4)}, v{a}, {W}, s{sA} offen sc1
              buffer_store_dwordx4 {vr(OUT + 8 * m + 4, 4)}, v{a}, {W}, s{sA} offen offset:1024 sc1""")
    e(f"""s_cmp_eq_u32 s{S_WAVE}, 0
          s_cselect_b32 s{sPrev}, s{sFlag}, 0
          s_cmp_ge_u32 s{sSeg}, {NP}
          s_cbranch_scc1 L_pj_later
          s_waitcnt vmcnt(0)
          s_barrier
          s_cmp_eq_u32 s{sPrev}, 0
          s_cbranch_scc1 L_pj_later
          s_mov_b64 exec, 1
          buffer_store_dword v{vIn}, off, {W}, s{sPrev} sc1
          s_mov_b64 exec, -1
          L_pj_later:
          s_add_u32 s{sFlag}, s{sFlag}, {4 * NP}
          s_add_u32 s{sUnit}, s{sUnit}, {NP * UNIT}
          s_sub_u32 s{sXb}, {XBUF}, s{sXb}
          s_add_u32 s{sSeg}, s{sSeg}, {NP}
          s_cmp_lt_u32 s{sSeg}, 64
          s_cbranch_scc1 L_pj_loop
          s_waitcnt vmcnt(0)
          s_barrier
          s_cmp_eq_u32 s{sPrev}, 0
          s_cbranch_scc1 L_phase2
          s_mov_b64 exec, 1
          buffer_store_dword v{vIn}, off, {W}, s{sPrev} sc1
          s_mov_b64 exec, -1""")


def poll_ge(e, tag, tmp, voff, soff, cmpv, nl):
    off = f"v{voff}" if voff is not None else "off"
    e(f"""L_pg_{tag}:
          buffer_load_dword v{tmp}, {off}, {W}, {soff} {'offen' if voff is not None else ''} sc1
          s_sub_u32 s{S_SPIN}, s{S_SPIN}, 1
          s_cbranch_scc1 L_end
          v_cmp_gt_u32 vcc, {cmpv}, v{tmp}
          s_and_b32 vcc_lo, vcc_lo, {(1 << nl) - 1}
          s_cbranch_scc0 L_pk_{tag}
          s_sleep {PS[0]}
          s_branch L_pg_{tag}
          L_pk_{tag}:""")


def nap_until(e, tag, tmp, soff, need, st, unit):
    e(f"""L_nap_{tag}:
          buffer_load_dword v{tmp}, off, {W}, {soff} sc1
          s_sub_u32 s{S_SPIN}, s{S_SPIN}, 1
          s_cbranch_scc1 L_end
          v_readfirstlane_b32 s{st}, v{tmp}
          s_sub_u32 s{st}, {need}, s{st}
          s_cbranch_scc1 L_napx_{tag}
          s_cmp_eq_u32 s{st}, 0
          s_cbranch_scc1 L_napx_{tag}
          s_min_u32 s{st}, s{st}, 8
          L_napl_{tag}:
          s_sleep {unit}
          s_sub_u32 s{st}, s{st}, 1
          s_cmp_lg_u32 s{st}, 0
          s_cbranch_scc1 L_napl_{tag}
          s_branch L_nap_{tag}
          L_napx_{tag}:""")


def tstamp(e, cfg, n):
    if cfg.get('tdiag'):
        e(f"s_memrealtime {sr(20 + 2 * n, 2)}\n s_waitcnt lgkmcnt(0)")


def tdump(e, cfg):
    if cfg.get('tdiag'):
        e(f"""s_lshl_b32 s{sA}, s{S_ROLE}, 2
              s_add_u32 s{sA}, s{sA}, s{S_WAVE}
              s_lshl_b32 s{sA}, s{sA}, 5
              s_add_u32 s{sA}, s{sA}, 0x6500000""")
        for n in range(6):
            e(f"v_mov_b32 v2, s{20 + 2 * n}\n buffer_store_dword v2, off, {W}, s{sA} offset:{4 * n}")


def softmax_tail(e, vals, m0, m1, sC):
    v = list(vals)
    e(f"v_max3_f32 v{m0}, v{v[0]}, v{v[1]}, v{v[2]}")
    k = 3
    while k + 1 < len(v):
        e(f"v_max3_f32 v{m0}, v{m0}, v{v[k]}, v{v[k + 1]}"); k += 2
    if k < len(v):
        e(f"v_max_f32 v{m0}, v{m0}, v{v[k]}")
    e(f"""v_mov_b32 v{m1}, v{m0}
          v_permlane32_swap_b32 v{m0}, v{m1}
          v_max_f32 v{m0}, v{m0}, v{m1}
          v_mul_f32 v{m0}, s{sC}, v{m0}""")
    for r in v:
        e(f"v_fma_f32 v{r}, v{r}, s{sC}, -v{m0}")
    for r in v:
        e(f"v_exp_f32 v{r}, v{r}")
    e(f"v_add_f32 v{m0}, v{v[0]}, v{v[1]}\n v_add_f32 v{m1}, v{v[2]}, v{v[3]}")
    for k in range(4, len(v), 2):
        e(f"v_add_f32 v{m0}, v{m0}, v{v[k]}\n v_add_f32 v{m1}, v{m1}, v{v[k + 1]}")
    e(f"""v_add_f32 v{m0}, v{m0}, v{m1}
          v_mov_b32 v{m1}, v{m0}
          v_permlane32_swap_b32 v{m0}, v{m1}
          v_add_f32 v{m0}, v{m0}, v{m1}
          v_rcp_f32 v{m0}, v{m0}""")


def attn_b(e, cfg):
    lane, t1, vL16, vSig, vVm, vKm, vT, m0, m1, vOne, vF, vLw = range(1, 13)
    BIAS, Q, K, V, S, D0, D1, KM, VM, PX, PMm, O = 16, 32, 64, 96, 128, 144, 160, 176, 192, 208, 216, 128
    sSeg, sUnit, sExp, sOut, sFq, sFc, sFa, sCc, sLds = sC_, sD, sE, sF, sG, sH, sI, sJ, sK
    h = sWid
    lane_consts(e, lane, vL16, vSig)
    e(f"""v_and_b32 v{t1}, 31, v{lane}
          v_lshrrev_b32 v{vT}, 5, v{lane}
          v_lshlrev_b32 v{vT}, 2, v{vT}
          v_sub_u32 v{t1}, v{t1}, v{vT}
          v_mov_b32 v{vT}, {NEG}""")
    for r in range(16):
        e(f"v_cmp_gt_i32 vcc, {8 * (r >> 2) + (r & 3)}, v{t1}\n v_cndmask_b32 v{BIAS + r}, 0, v{vT}, vcc")
    e(f"""v_lshrrev_b32 v{t1}, 5, v{lane}
          v_lshlrev_b32 v{vVm}, 8, v{t1}
          v_and_b32 v{t1}, 15, v{lane}
          v_lshl_add_u32 v{vVm}, v{t1}, 4, v{vVm}
          v_bfe_u32 v{t1}, v{lane}, 4, 1
          v_lshl_add_u32 v{vVm}, v{t1}, 2, v{vVm}
          v_add_u32 v{vVm}, 8, v{vVm}""")
    e(f"""s_lshl_b32 s{sLds}, s{S_WAVE}, 12
          v_and_b32 v{t1}, 3, v{lane}
          v_lshlrev_b32 v{vKm}, 8, v{t1}
          v_lshrrev_b32 v{t1}, 5, v{lane}
          v_lshl_add_u32 v{vKm}, v{t1}, 6, v{vKm}
          v_bfe_u32 v{t1}, v{lane}, 2, 2
          v_lshl_add_u32 v{vKm}, v{t1}, 4, v{vKm}
          v_add_u32 v{vKm}, s{sLds}, v{vKm}
          v_add_u32 v{vVm}, s{sLds}, v{vVm}
          v_add_u32 v{vLw}, s{sLds}, v{vL16}
          v_and_b32 v{vF}, 3, v{lane}
          v_lshlrev_b32 v{vF}, 2, v{vF}
          v_mov_b32 v{vOne}, 1""")
    for wc in range(4):
        e(f"v_mov_b64 {vr(VM + 4 * wc + 2, 2)}, 0")
    e(f"v_mov_b64 {vr(PMm + 2, 2)}, 0")
    e(f"""s_mov_b32 s{sSeg}, s{S_WAVE}
          s_lshl_b32 s{sA}, s{h}, 6
          s_add_u32 s{sA}, s{sA}, s{sSeg}
          s_mul_i32 s{sUnit}, s{sA}, {UNIT}
          s_lshl_b32 s{sExp}, s{sA}, 12
          s_add_u32 s{sExp}, s{sExp}, {WS_EXP}
          s_lshl_b32 s{sFq}, s{sA}, 2
          s_add_u32 s{sFq}, s{sFq}, {F_QKV}
          s_lshl_b32 s{sFc}, s{h}, 7
          s_add_u32 s{sFc}, s{sFc}, {F_CH}
          s_lshl_b32 s{sA}, s{sSeg}, 5
          s_add_u32 s{sA}, s{sA}, s{h}
          s_lshl_b32 s{sOut}, s{sA}, 13
          s_add_u32 s{sOut}, s{sOut}, {WS_OF}
          s_lshr_b32 s{sFa}, s{sA}, 3
          s_lshl_b32 s{sFa}, s{sFa}, 7
          s_and_b32 s{sA}, s{h}, 7
          s_lshl_b32 s{sA}, s{sA}, 2
          s_add_u32 s{sFa}, s{sFa}, s{sA}
          s_add_u32 s{sFa}, s{sFa}, {F_AT}
          s_mov_b32 s{sCc}, 0x3e0293ee""")
    e.wait(vm=0, lgkm=0)
    e.label("L_ab_loop")
    poll_ge(e, 'abq', vT, None, f"s{sFq}", 1, 1)
    e(f"s_add_u32 s{sA}, s{sUnit}, 4096")
    for base, a, off in ((K, vSig, 8192), (Q, vL16, 0), (V, vL16, 16384)):
        e(f"s_add_u32 s{sA}, s{sUnit}, {off}\n s_add_u32 s{sB}, s{sUnit}, {off + 4096}")
        for j in range(8):
            e(f"buffer_load_dwordx4 {vr(base + 4 * j, 4)}, v{a}, {W}, s{sA if j < 4 else sB} offen offset:{1024 * (j & 3)} sc1")
    for j in range(8):
        c = vr(BIAS, 16) if j == 0 else vr(S, 16)
        e(f"v_mfma_f32_32x32x16_bf16 {vr(S, 16)}, {vr(K + 4 * j, 4)}, {vr(Q + 4 * j, 4)}, {c}")
    e(f"""s_add_u32 s{sA}, s{sSeg}, 1
          s_sub_u32 s62, s{sSeg}, 1
          s_min_u32 s62, s62, 61
          s_cmp_ge_u32 s{sSeg}, {64 - NTAIL}
          s_cselect_b32 s{sA}, s62, s{sA}
          s_sub_u32 s62, s{sA}, 1""")
    e.wait(vm=0)
    if cfg.get('nap', 1):
        nap_until(e, 'ab', vT, f"s{sFc}", "s62", sB, cfg.get('napu', 24))
    poll_ge(e, 'abc', vT, vF, f"s{sFc}", f"s{sA}", 4)
    e(f"s_mov_b32 s62, {SENT1}\n s_branch L_ab_ex1\n L_ab_ex:\n s_sleep {cfg.get('exs', 0)}\n L_ab_ex1:")
    for j in range(4):
        e(f"buffer_load_dwordx4 {vr(D0 + 4 * j, 4)}, v{vL16}, {W}, s{sExp} offen offset:{1024 * j} sc1")
    e(f"s_sub_u32 s{S_SPIN}, s{S_SPIN}, 1\n s_cbranch_scc1 L_end")
    for j in range(16):
        e(f"v_xor_b32 v{D1 + j}, s62, v{D0 + j}")
    for j in range(4):
        e(f"ds_write_b128 v{vLw}, {vr(D0 + 4 * j, 4)} offset:{1024 * j}")
    e(f"v_min3_u32 v{vT}, v{D1}, v{D1 + 1}, v{D1 + 2}")
    for j in range(3, 15, 2):
        e(f"v_min3_u32 v{vT}, v{vT}, v{D1 + j}, v{D1 + j + 1}")
    e(f"""v_min_u32 v{vT}, v{vT}, v{D1 + 15}
          v_cmp_eq_u32 vcc, 0, v{vT}
          s_waitcnt lgkmcnt(0)
          s_cbranch_vccnz L_ab_ex""")
    tstamp(e, cfg, 0)
    for wc in range(4):
        e(f"ds_read2st64_b32 {vr(VM + 4 * wc, 2)}, v{vVm} offset0:{4 * wc} offset1:{4 * wc + 2}")
    for wc in range(4):
        for z in range(2):
            e(f"ds_read_b64_tr_b16 {vr(KM + 4 * wc + 2 * z, 2)}, v{vKm} offset:{1024 * wc + 128 * z}")
    for wc in range(4):
        for ab, D in ((0, D0), (1, D1)):
            c = '0' if wc == 0 else vr(D, 16)
            e(f"v_mfma_f32_32x32x16_bf16 {vr(D, 16)}, {vr(KM + 4 * wc, 4)}, {vr(Q + 4 * (2 * wc + ab), 4)}, {c}")
    sm = [D0, D0 + 1, D0 + 4, D0 + 5]
    for r in sm:
        e(f"v_add_f32 v{r}, v{r}, v{r - D0 + D1 + 2}")
    tstamp(e, cfg, 1)
    softmax_tail(e, [S + r for r in range(16)] + sm, m0, m1, sCc)
    tstamp(e, cfg, 2)
    for j in range(8):
        e(f"v_cvt_pk_bf16_f32 v{PX + j}, v{S + 2 * j}, v{S + 2 * j + 1}")
    e(f"v_cvt_pk_bf16_f32 v{PMm}, v{D0}, v{D0 + 1}\n v_cvt_pk_bf16_f32 v{PMm + 1}, v{D0 + 4}, v{D0 + 5}")
    for wc in range(4):
        o = vr(O + 16 * wc, 16)
        e(f"""v_mfma_f32_32x32x16_bf16 {o}, {vr(V + 8 * wc, 4)}, {vr(PX, 4)}, 0
              v_mfma_f32_32x32x16_bf16 {o}, {vr(V + 8 * wc + 4, 4)}, {vr(PX + 4, 4)}, {o}
              v_mfma_f32_32x32x16_bf16 {o}, {vr(VM + 4 * wc, 4)}, {vr(PMm, 4)}, {o}""")
    e(f"s_add_u32 s{sB}, s{sOut}, 4096")
    for wc in range(4):
        o = O + 16 * wc
        for j in range(16):
            e(f"v_mul_f32 v{o + j}, v{o + j}, v{m0}")
        for j in range(8):
            e(f"v_cvt_pk_bf16_f32 v{Q + 8 * wc + j}, v{o + 2 * j}, v{o + 2 * j + 1}")
        for ab in range(2):
            j = 2 * wc + ab
            e(f"buffer_store_dwordx4 {vr(Q + 4 * j, 4)}, v{vL16}, {W}, s{sOut if j < 4 else sB} offen offset:{1024 * (j & 3)} sc1")
    tstamp(e, cfg, 3)
    e("s_waitcnt vmcnt(0)")
    tstamp(e, cfg, 4)
    e(f"""s_mov_b64 exec, 1
          buffer_store_dword v{vOne}, off, {W}, s{sFa} sc1
          s_mov_b64 exec, -1
          s_add_u32 s{sUnit}, s{sUnit}, {4 * UNIT}
          s_add_u32 s{sExp}, s{sExp}, {4 * 4096}
          s_add_u32 s{sFq}, s{sFq}, 16
          s_add_u32 s{sOut}, s{sOut}, {4 * 32 * 8192}
          s_add_u32 s{sFa}, s{sFa}, {4 * 512}
          s_add_u32 s{sSeg}, s{sSeg}, 4
          s_cmp_lt_u32 s{sSeg}, 64
          s_cbranch_scc1 L_ab_loop""")
    tdump(e, cfg)
    e("s_branch L_end")


def out_b(e, cfg):
    lane, t1, vL16, vSrc, vTr, vO, vSt, vT, vF, vRw, vRr = range(1, 12)
    ACC, RD = 16, 32
    sU, sSl, sRow, sLds, sOf, sFa, sTog = sC_, sD, sE, sF, sG, sH, sI
    sHi = 72
    srd(e, S_W0, P_WO, 0x400000)
    srd(e, S_W1, P_OUT, 0x400000)
    e(f"""s_sub_u32 s{sU}, s{sWid}, 64
          s_and_b32 s{sSl}, s{sU}, 15
          s_lshr_b32 s{sU}, s{sU}, 4
          s_cmp_ge_u32 s{sU}, {cfg.get('ng', 8 if cfg.get('nb', 0) >= 2 else 10)}
          s_cbranch_scc1 L_end
          v_and_b32 v{lane}, 63, v0
          v_lshlrev_b32 v{vL16}, 4, v{lane}
          v_and_b32 v{vF}, 7, v{lane}
          v_lshlrev_b32 v{vF}, 2, v{vF}""")
    e(f"""v_lshrrev_b32 v{t1}, 2, v{lane}
          v_lshlrev_b32 v{vSrc}, 10, v{t1}
          v_and_b32 v{t1}, 3, v{lane}
          v_lshl_add_u32 v{vSrc}, v{t1}, 4, v{vSrc}
          s_lshl_b32 s{sRow}, s{S_WAVE}, 20
          s_lshl_b32 s{sA}, s{sSl}, 6
          s_add_u32 s{sRow}, s{sRow}, s{sA}
          s_lshl_b32 s{sLds}, s{S_WAVE}, 15""")
    e(f"""v_lshlrev_b32 v{vTr}, 3, v{t1}
          v_lshrrev_b32 v{t1}, 5, v{lane}
          v_lshl_add_u32 v{vTr}, v{t1}, 10, v{vTr}
          v_bfe_u32 v{t1}, v{lane}, 2, 3
          v_lshl_add_u32 v{vTr}, v{t1}, 6, v{vTr}
          v_add_u32 v{vTr}, s{sLds}, v{vTr}""")
    e(f"""v_lshrrev_b32 v{t1}, 4, v{lane}
          v_lshlrev_b32 v{vO}, 9, v{t1}
          v_lshlrev_b32 v{vSt}, 3, v{t1}
          v_and_b32 v{t1}, 7, v{lane}
          v_lshl_add_u32 v{vO}, v{t1}, 4, v{vO}
          v_lshl_add_u32 v{vSt}, v{t1}, 11, v{vSt}
          v_and_b32 v{t1}, 8, v{lane}
          v_cmp_ne_u32 {sr(sHi, 2)}, 0, v{t1}
          v_lshl_add_u32 v{vO}, v{t1}, 8, v{vO}
          v_lshl_add_u32 v{vSt}, v{t1}, 27, v{vSt}
          s_lshl_b32 s{sA}, s{S_WAVE}, 11
          s_add_u32 s{sA}, s{sA}, 131072
          v_add_u32 v{vRw}, s{sA}, v{vL16}
          s_lshl_b32 s{sA}, s{S_WAVE}, 10
          s_add_u32 s{sA}, s{sA}, 131072
          v_add_u32 v{vRr}, s{sA}, v{vL16}""")
    e.wait(vm=0, lgkm=0)
    e("s_barrier")
    marks = {}

    def dma(ks):
        for j in range(2):
            e(f"""s_add_u32 m0, s{sLds}, {(ks % 16) * 2048 + j * 1024}
                  s_add_u32 s{sA}, s{sRow}, {(32 * ks + 16 * j) * 1024}
                  buffer_load_dwordx4 v{vSrc}, {sr(S_W0, 4)}, s{sA} offen lds""")
        marks[ks] = e.vm[-1]

    for ks in range(15):
        dma(ks)
    for ks in range(32):
        e.wait(vm=len(e.vm) - 1 - e.vm.index(marks[ks]), lgkm=0)
        if ks + 15 < 32:
            dma(ks + 15)
        for dt in range(2):
            for z in range(2):
                e(f"ds_read_b64_tr_b16 {vr(8 * ks + 4 * dt + 2 * z, 2, 'a')}, v{vTr} offset:{(ks % 16) * 2048 + z * 512 + dt * 32}")
    e.wait(vm=0, lgkm=0)
    e(f"s_mov_b32 s{sTog}, 0")
    e.label("L_ob_loop")
    e(f"""s_lshr_b32 s{sA}, s{sU}, 2
          s_lshl_b32 s{sA}, s{sA}, 5
          s_lshl_b32 s{sB}, s{S_WAVE}, 3
          s_add_u32 s{sA}, s{sA}, s{sB}
          s_lshl_b32 s{sFa}, s{sA}, 4
          s_add_u32 s{sFa}, s{sFa}, {F_AT}
          s_lshl_b32 s{sOf}, s{sA}, 13
          s_and_b32 s{sB}, s{sU}, 3
          s_lshl_b32 s{sB}, s{sB}, 7
          s_add_u32 s{sOf}, s{sOf}, s{sB}
          s_add_u32 s{sOf}, s{sOf}, {WS_OF}""")
    if cfg.get('nap', 1):
        e(f"""s_lshr_b32 s62, s{sU}, 2
              s_add_u32 s62, s62, 1
              s_min_u32 s62, s62, {64 - NTAIL}
              s_and_b32 s63, s{sWid}, 31
              s_lshl_b32 s63, s63, 7
              s_add_u32 s63, s63, {F_CH}""")
        nap_until(e, 'ob', vT, "s63", "s62", sB, cfg.get('napu', 24))
    poll_ge(e, 'ob', vT, vF, f"s{sFa}", 1, 8)
    tstamp(e, cfg, 0)
    for j in range(16):
        e(f"s_add_u32 s{sA}, s{sOf}, {j * 4096}\n buffer_load_dwordx4 {vr(128 + 4 * j, 4)}, v{vO}, {W}, s{sA} offen sc1")
    for ks in range(32):
        for dt in range(2):
            a = ACC + 8 * (ks & 1) + 4 * dt
            c = '0' if ks < 2 else vr(a, 4)
            e(f"v_mfma_f32_16x16x32_bf16 {vr(a, 4)}, {vr(8 * ks + 4 * dt, 4, 'a')}, {vr(128 + 4 * (ks >> 1), 4)}, {c}")
    for r in range(8):
        e(f"v_cndmask_b32 v{ACC + r}, v{ACC + r}, v{ACC + 8 + r}, {sr(sHi, 2)}")
    tstamp(e, cfg, 1)
    e(f"""v_add_u32 v{vT}, s{sTog}, v{vRw}
          ds_write_b128 v{vT}, {vr(ACC, 4)}
          ds_write_b128 v{vT}, {vr(ACC + 4, 4)} offset:1024""")
    e.barrier()
    e(f"""s_cmp_ge_u32 s{S_WAVE}, 2
          s_cbranch_scc1 L_ob_next
          v_add_u32 v{vT}, s{sTog}, v{vRr}""")
    for p in range(4):
        e(f"ds_read_b128 {vr(RD + 4 * p, 4)}, v{vT} offset:{2048 * p}")
    for r in range(4):
        e(f"""v_add_f32 v{RD + r}, v{RD + r}, v{RD + 4 + r}
              v_add_f32 v{RD + 8 + r}, v{RD + 8 + r}, v{RD + 12 + r}
              v_add_f32 v{RD + r}, v{RD + r}, v{RD + 8 + r}""")
    for r in range(4):
        e(f"v_add_f32_dpp v{RD + r}, v{RD + r}, v{RD + r} row_ror:8 row_mask:0xf bank_mask:0xf")
    e(f"""v_cvt_pk_bf16_f32 v{RD}, v{RD}, v{RD + 1}
          v_cvt_pk_bf16_f32 v{RD + 1}, v{RD + 2}, v{RD + 3}
          s_lshl_b32 s{sA}, s{sU}, 14
          s_lshl_b32 s{sB}, s{sSl}, 6
          s_add_u32 s{sA}, s{sA}, s{sB}
          s_lshl_b32 s{sB}, s{S_WAVE}, 5
          s_add_u32 s{sA}, s{sA}, s{sB}
          buffer_store_dwordx2 {vr(RD, 2)}, v{vSt}, {sr(S_W1, 4)}, s{sA} offen offset:1024 {cfg.get('ost', '')}
          L_ob_next:
          s_xor_b32 s{sTog}, s{sTog}, 8192
          s_add_u32 s{sU}, s{sU}, {cfg.get('ng', 8 if cfg.get('nb', 0) >= 2 else 10)}
          s_cmp_lt_u32 s{sU}, 256
          s_cbranch_scc1 L_ob_loop""")
    tstamp(e, cfg, 2)
    tdump(e, cfg)
    e("s_branch L_end")


def part_a(e, cfg):
    lane, t1, vL16, vSig, vSrc, vTr, vT, m0, m1, vSt, vW, vNeg = range(1, 13)
    BC, BP, BPX = 16, 32, 48
    SC, SP, O, PX = 64, 80, 96, 112
    Q, KC, KP, VC, VP = 128, 160, 192, 224, 48
    sSeg, sCh, sUnit, sPrevU, sFq, sCc, sRow = sC_, sD, sE, sF, sG, sH, sI
    srd(e, S_W0, P_AWO, 0x80000)
    srd(e, S_W1, P_OUT, 0x400000)
    lane_consts(e, lane, vL16, vSig)
    e(f"""s_sub_u32 s{sSeg}, s{sWid}, 32
          s_and_b32 s{sCh}, s{sSeg}, 1
          s_lshr_b32 s{sSeg}, s{sSeg}, 1
          s_mov_b32 s{sCc}, 0x3eb8aa3b""")
    e(f"""v_and_b32 v{t1}, 31, v{lane}
          v_lshrrev_b32 v{vT}, 5, v{lane}
          v_lshlrev_b32 v{vT}, 2, v{vT}
          v_sub_u32 v{t1}, v{t1}, v{vT}
          v_mov_b32 v{vNeg}, {NEG}""")
    for base, add in ((BC, 0), (BP, 32)):
        for r in range(16):
            e(f"""v_add_u32 v{vT}, {add - 8 * (r >> 2) - (r & 3)}, v{t1}
                  v_and_b32 v{vT}, 0xfffffff1, v{vT}
                  v_cmp_ne_u32 vcc, 0, v{vT}
                  v_cndmask_b32 v{base + r}, 0, v{vNeg}, vcc""")
    e(f"""v_lshrrev_b32 v{t1}, 5, v{lane}
          v_lshlrev_b32 v{vSrc}, 10, v{t1}
          v_and_b32 v{t1}, 31, v{lane}
          v_lshl_add_u32 v{vSrc}, v{t1}, 4, v{vSrc}
          v_lshlrev_b32 v{vSt}, 11, v{t1}
          s_lshl_b32 s{sRow}, s{S_WAVE}, 13
          s_lshl_b32 s{sA}, s{sCh}, 9
          s_add_u32 s{sRow}, s{sRow}, s{sA}
          s_lshl_b32 s63, s{S_WAVE}, 12""")
    e(f"""v_lshrrev_b32 v{t1}, 5, v{lane}
          v_lshlrev_b32 v{vTr}, 11, v{t1}
          v_lshl_add_u32 v{vSt}, v{t1}, 3, v{vSt}
          v_bfe_u32 v{t1}, v{lane}, 2, 2
          v_lshl_add_u32 v{vTr}, v{t1}, 9, v{vTr}
          v_bfe_u32 v{t1}, v{lane}, 4, 1
          v_lshl_add_u32 v{vTr}, v{t1}, 5, v{vTr}
          v_and_b32 v{t1}, 3, v{lane}
          v_lshl_add_u32 v{vTr}, v{t1}, 3, v{vTr}
          s_lshl_b32 s{sA}, s{S_WAVE}, 7
          v_add_u32 v{vTr}, s{sA}, v{vTr}
          s_lshl_b32 s{sA}, s{S_WAVE}, 13
          v_add_u32 v{vW}, s{sA}, v{vL16}""")
    e.wait(vm=0, lgkm=0)
    e("s_barrier")
    marks = {}

    def dma(r):
        for j in range(4):
            e(f"""s_add_u32 m0, s63, {(r % 8) * 16384 + j * 1024}
                  s_add_u32 s{sA}, s{sRow}, {(32 * r + 2 * j) * 1024}
                  buffer_load_dwordx4 v{vSrc}, {sr(S_W0, 4)}, s{sA} offen lds""")
        marks[r] = e.vm[-1]

    for r in range(7):
        dma(r)
    for r in range(16):
        e.wait(vm=len(e.vm) - 1 - e.vm.index(marks[r]), lgkm=0)
        e("s_barrier")
        if r + 7 < 16:
            dma(r + 7)
        e(f"v_add_u32 v{vT}, {(r % 8) * 16384}, v{vTr}")
        for hl in range(2):
            for dt in range(2):
                for z in range(2):
                    e(f"ds_read_b64_tr_b16 {vr(8 * (2 * r + hl) + 4 * dt + 2 * z, 2, 'a')}, v{vT} offset:{(16 * hl + 8 * z) * 512 + dt * 64}")
    e.wait(vm=0, lgkm=0)
    e.label("L_pa_loop")
    e(f"""s_add_u32 s{sA}, s{S_WAVE}, 32
          s_lshl_b32 s{sA}, s{sA}, 6
          s_add_u32 s{sA}, s{sA}, s{sSeg}
          s_mul_i32 s{sUnit}, s{sA}, {UNIT}
          s_lshl_b32 s{sFq}, s{sA}, 2
          s_add_u32 s{sFq}, s{sFq}, {F_QKV}
          s_cmp_eq_u32 s{sSeg}, 0
          s_cselect_b32 s{sA}, 0, {UNIT}
          s_cselect_b32 s{sB}, 0, 4
          s_cselect_b64 vcc, -1, 0
          s_sub_u32 s{sPrevU}, s{sUnit}, s{sA}
          s_sub_u32 s62, s{sFq}, s{sB}""")
    for r in range(8, 16):
        e(f"v_cndmask_b32 v{BP + r - 8}, v{BP + r}, v{vNeg}, vcc")
    poll_ge(e, 'pa1', vT, None, f"s{sFq}", 1, 1)
    poll_ge(e, 'pa2', vT, None, "s62", 1, 1)
    for base, a, u, off in ((Q, vL16, sUnit, 0), (KC, vSig, sUnit, 8192), (KP, vSig, sPrevU, 8192), (VC, vL16, sUnit, 16384)):
        e(f"s_add_u32 s{sA}, s{u}, {off}\n s_add_u32 s{sB}, s{u}, {off + 4096}")
        for j in range(8):
            e(f"buffer_load_dwordx4 {vr(base + 4 * j, 4)}, v{a}, {W}, s{sA if j < 4 else sB} offen offset:{1024 * (j & 3)} sc1")
    e(f"s_add_u32 s{sA}, s{sPrevU}, {16384 + 1024}\n s_add_u32 s{sB}, s{sPrevU}, {16384 + 1024 + 4096}")
    for wc in range(4):
        e(f"buffer_load_dwordx4 {vr(VP + 4 * wc, 4)}, v{vL16}, {W}, s{sA if wc < 2 else sB} offen offset:{2048 * (wc & 1)} sc1")
    e("s_barrier")
    for j in range(8):
        wc, ab = j >> 1, j & 1
        e(f"""v_mfma_f32_32x32x16_bf16 {vr(SC, 16)}, {vr(KC + 4 * j, 4)}, {vr(Q + 4 * j, 4)}, {vr(BC, 16)}
              v_mfma_f32_32x32x16_bf16 {vr(SP, 16)}, {vr(KP + 4 * j, 4)}, {vr(Q + 4 * j, 4)}, {vr(BP - 8, 16)}""")
        softmax_tail(e, [SC + r for r in range(16)] + [SP + r for r in range(8, 16)], m0, m1, sCc)
        for k in range(8):
            e(f"v_cvt_pk_bf16_f32 v{PX + k}, v{SC + 2 * k}, v{SC + 2 * k + 1}")
        for k in range(4):
            e(f"v_cvt_pk_bf16_f32 v{PX + 8 + k}, v{SP + 8 + 2 * k}, v{SP + 8 + 2 * k + 1}")
        o = vr(O, 16)
        e(f"""v_mfma_f32_32x32x16_bf16 {o}, {vr(VC + 8 * wc, 4)}, {vr(PX, 4)}, 0
              v_mfma_f32_32x32x16_bf16 {o}, {vr(VC + 8 * wc + 4, 4)}, {vr(PX + 4, 4)}, {o}
              v_mfma_f32_32x32x16_bf16 {o}, {vr(VP + 4 * wc, 4)}, {vr(PX + 8, 4)}, {o}""")
        for k in range(8):
            e(f"v_mul_f32 v{O + 8 * ab + k}, v{O + 8 * ab + k}, v{m0}")
        for k in range(4):
            e(f"v_cvt_pk_bf16_f32 v{124 + k}, v{O + 8 * ab + 2 * k}, v{O + 8 * ab + 2 * k + 1}")
        e(f"ds_write_b128 v{vW}, {vr(124, 4)} offset:{1024 * j}")
    e.barrier()
    for hd in range(32):
        e(f"ds_read_b128 {vr(128 + 4 * hd, 4)}, v{vL16} offset:{1024 * hd}")
        if hd >= 8:
            k = hd - 8
            for dt in range(2):
                c = '0' if k == 0 else vr(SC + 16 * dt, 16)
                e(f"v_mfma_f32_32x32x16_bf16 {vr(SC + 16 * dt, 16)}, {vr(8 * k + 4 * dt, 4, 'a')}, {vr(128 + 4 * k, 4)}, {c}")
    for k in range(24, 32):
        for dt in range(2):
            e(f"v_mfma_f32_32x32x16_bf16 {vr(SC + 16 * dt, 16)}, {vr(8 * k + 4 * dt, 4, 'a')}, {vr(128 + 4 * k, 4)}, {vr(SC + 16 * dt, 16)}")
    e(f"""s_lshl_b32 s{sA}, s{sSeg}, 16
          s_lshl_b32 s{sB}, s{sCh}, 9
          s_add_u32 s{sA}, s{sA}, s{sB}
          s_lshl_b32 s{sB}, s{S_WAVE}, 7
          s_add_u32 s{sA}, s{sA}, s{sB}""")
    for dt in range(2):
        for a in range(4):
            r = SC + 16 * dt + 4 * a
            d = O + 2 * (4 * dt + a)
            e(f"""v_cvt_pk_bf16_f32 v{d}, v{r}, v{r + 1}
                  v_cvt_pk_bf16_f32 v{d + 1}, v{r + 2}, v{r + 3}
                  buffer_store_dwordx2 {vr(d, 2)}, v{vSt}, {sr(S_W1, 4)}, s{sA} offen offset:{64 * dt + 16 * a} {cfg.get('ost', '')}""")
    e(f"""s_add_u32 s{sSeg}, s{sSeg}, 16
          s_cmp_lt_u32 s{sSeg}, 64
          s_cbranch_scc1 L_pa_loop
          s_branch L_end""")


def worker(e, cfg):
    PS[0] = cfg.get('ps', 4)
    e(f"s_sub_u32 s{sWid}, s{S_ROLE}, 32")
    if cfg.get('ne', 0):
        e.comment("five workgroups of each die form the team that runs the first steps while die 0 still loads its weights")
        e(f"""s_lshr_b32 s62, s{sWid}, 5
              s_and_b32 s63, s{sWid}, 31
              s_cmp_ge_u32 s63, 5
              s_cbranch_scc1 L_noec
              s_mul_i32 s62, s62, 5
              s_add_u32 s{S_HEAD}, s62, s63
              s_mov_b32 s{S_EC}, 1
              s_cmp_lt_u32 s{S_HEAD}, 32
              s_cbranch_scc1 L_chain
              s_branch L_spare
              L_noec:
              s_mul_i32 s62, s62, 27
              s_add_u32 s63, s63, s62
              s_sub_u32 s63, s63, 5
              s_cmp_lt_u32 s63, 180
              s_cbranch_scc1 L_proj
              L_spare:""")
    elif cfg.get('nb', 0) == 3:
        e(f"s_sub_u32 s63, s{sWid}, 32\n s_cmp_lt_u32 s63, 180\n s_cbranch_scc1 L_proj")
    else:
        e(f"s_mov_b32 s63, s{sWid}\n s_cmp_lt_u32 s{sWid}, 216\n s_cbranch_scc1 L_proj")
    st = e.state()
    e("s_waitcnt vmcnt(0)")
    confirm_barrier(e, 'sp')
    if cfg.get('nb', 0) == 3:
        e(f"s_cmp_lt_u32 s{sWid}, 32\n s_cbranch_scc1 L_end")
    if cfg.get('opf', 0):
        e.comment("read Wo once (one word per line): the recurrence asks for it last and then finds it on the die-level cache")
        srd(e, S_W0, P_WO, 0x400000)
        e(f"""s_sub_u32 s{sA}, s{sWid}, 216
              s_lshl_b32 s{sA}, s{sA}, 2
              s_add_u32 s{sA}, s{sA}, s{S_WAVE}
              s_lshl_b32 s{sA}, s{sA}, 17
              v_and_b32 v4, 63, v0
              v_lshlrev_b32 v4, 7, v4""")
        for j in range(16):
            e.loose(f"buffer_load_dword v5, v4, {sr(S_W0, 4)}, s{sA} offen")
            e(f"s_add_u32 s{sA}, s{sA}, 8192")
    wait_init(e, 'sp', 3, 127)
    e("s_branch L_phase2")
    e.label("L_proj"); e.set_state(st)
    proj(e, cfg)
    e.label("L_phase2")
    dbg_max(e, cfg, 15, v=12)
    if cfg.get('diag'):
        e("s_memrealtime s[88:89]\n s_waitcnt lgkmcnt(0)")
    if cfg.get('nophase2'):
        e("s_branch L_end")
    nb = cfg.get('nb', 0)
    if nb == 1:
        e(f"s_cmp_lt_u32 s{sWid}, 64\n s_cselect_b32 s{sA}, 32, 0\n s_xor_b32 s{sWid}, s{sWid}, s{sA}")
    if nb >= 2:
        e(f"s_sub_u32 s{sWid}, s{sWid}, 32\n s_cbranch_scc1 L_end")
        if cfg.get('rot'):
            e(f"""s_add_u32 s{sWid}, s{sWid}, {32 * cfg['rot']}
                  s_cmp_ge_u32 s{sWid}, 192
                  s_cselect_b32 s{sA}, 192, 0
                  s_sub_u32 s{sWid}, s{sWid}, s{sA}""")
    e(f"""s_cmp_lt_u32 s{sWid}, 32
          s_cbranch_scc1 L_attn_b
          s_cmp_lt_u32 s{sWid}, 64
          s_cbranch_scc1 L_part_a""")
    st = e.state()
    out_b(e, cfg)
    e.label("L_attn_b"); e.set_state(st)
    attn_b(e, cfg)
    e.label("L_part_a"); e.set_state(st)
    part_a(e, cfg)
```

```python
from common import *

W = sr(S_WS, 4)
DBG = sr(S_DBG, 4)
sWid, sA, sB, sC_, sD, sE, sF, sG, sH, sI, sJ, sK = range(50, 62)
S_W0, S_W1, S_W2, S_X = 64, 68, 72, 76
PS = [4]
NEG = 0xf149f2ca


def wait_init(e, tag, tmp, nap=16):
    e(f"""L_wi_{tag}:
          s_sleep {nap}
          buffer_load_dword v{tmp}, off, {DBG}, 0 offset:{D_INIT} sc1
          s_sub_u32 s{S_SPIN}, s{S_SPIN}, 1
          s_cbranch_scc1 L_end
          v_readfirstlane_b32 s{sA}, v{tmp}
          s_and_b32 s{sA}, s{sA}, 0xffff
          s_cmp_eq_u32 s{sA}, 256
          s_cbranch_scc0 L_wi_{tag}""")


def count_in(e, tmp):
    e(f"""v_mov_b32 v{tmp}, 1
          s_mov_b64 exec, 1
          buffer_atomic_add v{tmp}, off, {DBG}, 0 offset:{D_INIT}
          s_mov_b64 exec, -1""")


def srd_sel(e, s, pa, pb, na, nb):
    e(f"""s_cselect_b32 s{s}, s{pa}, s{pb}
          s_cselect_b32 s{s+1}, s{pa+1}, s{pb+1}
          s_mov_b32 s{s+2}, {nb}
          s_cselect_b32 s{s+2}, {na}, s{s+2}
          s_mov_b32 s{s+3}, 0x20000""")


def lane_consts(e, lane, l16, sig):
    e(f"""v_and_b32 v{lane}, 63, v0
          v_lshlrev_b32 v{l16}, 4, v{lane}
          v_and_b32 v{sig}, 39, v{lane}
          v_bfe_u32 v{lane + 1}, v{lane}, 3, 1
          v_lshl_or_b32 v{sig}, v{lane + 1}, 4, v{sig}
          v_bfe_u32 v{lane + 1}, v{lane}, 4, 1
          v_lshl_or_b32 v{sig}, v{lane + 1}, 3, v{sig}
          v_lshlrev_b32 v{sig}, 4, v{sig}""")


XROW = 1040
XBUF = 32 * XROW
RING0 = 33792


def proj(e, cfg):
    lane, t1, vL16, vSig, vSrc, vTr, vXr, vT, vIn = 1, 2, 3, 4, 5, 6, 7, 8, 9
    XF, ACC, OUT = 16, 32, 80
    sHH, sSeg, sStride, sCol, sUnit, sFlag, sXb, sPrev = sC_, sD, sE, sF, sG, sH, sI, sJ
    NP = 5 if cfg.get('ne', 0) or cfg.get('nb', 3) == 3 else 6
    e(f"""s_mul_i32 s{sHH}, s63, {205 if NP == 5 else 171}
          s_lshr_b32 s{sHH}, s{sHH}, 10
          s_mul_i32 s{sA}, s{sHH}, {NP}
          s_sub_u32 s{sSeg}, s63, s{sA}
          s_cmp_lt_u32 s{sHH}, 32""")
    srd_sel(e, S_W0, P_WQ, P_AWQKV, 0x400000, 0x180000)
    srd_sel(e, S_W1, P_WK, P_AWQKV, 0x400000, 0x180000)
    srd_sel(e, S_W2, P_WV, P_AWQKV, 0x400000, 0x180000)
    srd_sel(e, S_X, P_BX, P_AX, 0x200000, 0x200000)
    e(f"""s_mov_b32 s{sStride}, 3072
          s_cselect_b32 s{sStride}, 8192, s{sStride}
          s_cselect_b32 s{sK}, 0, 1024
          s_and_b32 s{sCol}, s{sHH}, 31
          s_lshl_b32 s{sCol}, s{sCol}, 8""")
    lane_consts(e, lane, vL16, vSig)
    e(f"""v_lshrrev_b32 v{t1}, 4, v{lane}
          v_mul_lo_u32 v{vSrc}, v{t1}, s{sStride}
          v_lshlrev_b32 v{t1}, 2, v{t1}
          v_xor_b32 v{t1}, v{t1}, v{lane}
          v_and_b32 v{t1}, 15, v{t1}
          v_lshl_add_u32 v{vSrc}, v{t1}, 4, v{vSrc}""")
    e(f"""v_lshrrev_b32 v{t1}, 5, v{lane}
          v_lshlrev_b32 v{vTr}, 11, v{t1}
          v_bfe_u32 v{t1}, v{lane}, 2, 2
          v_lshl_add_u32 v{vTr}, v{t1}, 8, v{vTr}
          v_bfe_u32 v{t1}, v{lane}, 4, 1
          v_lshl_add_u32 v{vTr}, v{t1}, 5, v{vTr}
          v_and_b32 v{t1}, 3, v{lane}
          v_lshl_add_u32 v{vTr}, v{t1}, 3, v{vTr}
          v_bfe_u32 v{t1}, v{lane}, 2, 2
          v_xor_b32 v{t1}, s{S_WAVE}, v{t1}
          v_lshl_add_u32 v{vTr}, v{t1}, 6, v{vTr}""")
    e(f"""v_and_b32 v{t1}, 31, v{lane}
          v_mul_u32_u24 v{vXr}, {XROW}, v{t1}
          v_lshrrev_b32 v{t1}, 5, v{lane}
          v_lshl_add_u32 v{vXr}, v{t1}, 4, v{vXr}""")
    e(f"""s_lshl_b32 s{sA}, s{sHH}, 6
          s_add_u32 s{sA}, s{sA}, s{sSeg}
          s_mul_i32 s{sUnit}, s{sA}, {UNIT}
          s_lshl_b32 s{sB}, s{S_WAVE}, 11
          s_add_u32 s{sUnit}, s{sUnit}, s{sB}
          s_lshl_b32 s{sFlag}, s{sA}, 2
          s_add_u32 s{sFlag}, s{sFlag}, {F_QKV}
          s_mov_b32 s{sXb}, 0""")

    def xdma(seg_s, buf_s):
        e(f"""s_lshl_b32 s{sA}, s{seg_s}, 15
              s_lshl_b32 s{sB}, s{S_WAVE}, 13
              s_add_u32 s{sA}, s{sA}, s{sB}
              s_mul_i32 s{sB}, s{S_WAVE}, {8 * XROW}
              s_add_u32 s{sB}, s{sB}, s{buf_s}""")
        return [f"""s_add_u32 m0, s{sB}, {j * XROW}
                  s_add_u32 s3, s{sA}, {j * 1024}
                  buffer_load_dwordx4 v{vL16}, {sr(S_X, 4)}, s3 offen lds""" for j in range(8)]

    if cfg.get('wpf', 0):
        e.comment("the six workers of a head each request a sixth of its weights at once (one word per line)")
        e(f"""s_lshr_b32 s62, s{sSeg}, 1
              s_cmp_eq_u32 s62, 1
              s_cselect_b32 s{S_T0}, s{S_W1}, s{S_W0}
              s_cselect_b32 s{S_T0 + 1}, s{S_W1 + 1}, s{S_W0 + 1}
              s_cmp_eq_u32 s62, 2
              s_cselect_b32 s{S_T0}, s{S_W2}, s{S_T0}
              s_cselect_b32 s{S_T0 + 1}, s{S_W2 + 1}, s{S_T0 + 1}
              s_mov_b32 s{S_T0 + 2}, s{S_W0 + 2}
              s_mov_b32 s{S_T0 + 3}, 0x20000
              s_mul_i32 s62, s62, s{sK}
              s_add_u32 s62, s62, s{sCol}
              s_and_b32 s63, s{sSeg}, 1
              s_lshl_b32 s63, s63, 2
              s_add_u32 s63, s63, s{S_WAVE}
              s_lshl_b32 s63, s63, 6
              s_mul_i32 s63, s63, s{sStride}
              s_add_u32 s62, s62, s63
              v_mul_lo_u32 v{vT}, v{lane}, s{sStride}""")
        e.loose(f"buffer_load_dword v124, v{vT}, {sr(S_T0, 4)}, s62 offen")
        e.loose(f"buffer_load_dword v124, v{vT}, {sr(S_T0, 4)}, s62 offen offset:128")
    if cfg.get('wh', 0):
        e.comment("the projections have slack: leave the memory system to the first requests of the recurrence")
        e(f"s_sleep {cfg['wh']}")
    for l in xdma(sSeg, sXb):
        e(l)
    sRow = sPrev
    e(f"""s_lshl_b32 s{sA}, s{S_WAVE}, 4
          s_mul_i32 s{sRow}, s{sA}, s{sStride}
          s_add_u32 s{sRow}, s{sRow}, s{sCol}
          s_lshl_b32 s62, s{sStride}, 2
          s_lshl_b32 s63, s{S_WAVE}, 12""")
    order = cfg.get('po', [0, 1, 2])
    srds = [S_W0, S_W1, S_W2]
    dst = [('a', 0), ('a', 128), ('v', 128)]
    marks = {}

    def dma(r):
        m, b = order[r // 8], r % 8
        e(f"""s_mul_i32 s{sA}, s{sStride}, {64 * b}
              s_add_u32 s{sA}, s{sA}, s{sRow}
              s_mul_i32 s{sB}, s{sK}, {m}
              s_add_u32 s{sA}, s{sA}, s{sB}""")
        for j in range(4):
            e(f"""s_add_u32 m0, s63, {RING0 + (r % 7) * 16384 + j * 1024}
                  buffer_load_dwordx4 v{vSrc}, {sr(srds[m], 4)}, s{sA} offen lds""")
            if j < 3:
                e(f"s_add_u32 s{sA}, s{sA}, s62")
        marks[r] = e.vm[-1]

    for r in range(6):
        dma(r)
    confirm_barrier(e, 'pj')
    for r in range(24):
        m, b = order[r // 8], r % 8
        e.wait(vm=len(e.vm) - 1 - e.vm.index(marks[r]), lgkm=0)
        e("s_barrier")
        if r == 18:
            e(f"buffer_load_dword v{vT + 1}, off, {DBG}, 0 offset:{D_INIT} sc1")
        if r + 6 < 24:
            dma(r + 6)
        e(f"v_add_u32 v{vT + 2}, {RING0 + (r % 7) * 16384}, v{vTr}")
        k, base = dst[m]
        for ksl in range(4):
            for z in range(2):
                e(f"ds_read_b64_tr_b16 {vr(base + 4 * (4 * b + ksl) + 2 * z, 2, k)}, v{vT + 2} offset:{(16 * ksl + 4 * z) * 256}")
    e.wait(vm=0, lgkm=0)
    dbg_max(e, cfg, 14, v=vT + 3)
    e(f"""v_readfirstlane_b32 s{sA}, v{vT + 1}
          s_and_b32 s{sA}, s{sA}, 0xffff
          s_cmp_eq_u32 s{sA}, 256
          s_cbranch_scc1 L_pj_go""")
    wait_init(e, 'pj', vT)
    e.label("L_pj_go")
    if cfg.get('pjhold'):
        e(f"""L_hold3:
              s_memrealtime s[92:93]
              s_waitcnt lgkmcnt(0)
              s_sub_u32 s92, s92, s94
              s_cmp_lt_u32 s92, {cfg['pjhold']}
              s_cbranch_scc1 L_hold3""")
    if cfg.get('diag'):
        e("s_memrealtime s[86:87]\n s_waitcnt lgkmcnt(0)")
    e(f"s_mov_b32 s{sPrev}, 0\n v_mov_b32 v{vIn}, 1")
    e.forget()
    e.label("L_pj_loop")
    e(f"""s_waitcnt vmcnt(6)
          s_barrier
          v_add_u32 v{vT}, s{sXb}, v{vXr}
          s_add_u32 s62, s{sSeg}, {NP}
          s_min_u32 s62, s62, 63
          s_sub_u32 s63, {XBUF}, s{sXb}""")
    nxt = xdma(62, 63)
    for ks in range(3):
        e(f"ds_read_b128 {vr(XF + 4 * ks, 4)}, v{vT} offset:{32 * ks}")
    for ks in range(32):
        x = vr(XF + 4 * (ks % 4), 4)
        c = [('0' if ks == 0 else vr(ACC + 16 * m, 16)) for m in range(3)]
        e(f"v_mfma_f32_32x32x16_bf16 {vr(ACC, 16)}, {vr(4 * ks, 4, 'a')}, {x}, {c[0]}")
        if ks + 3 < 32:
            e(f"ds_read_b128 {vr(XF + 4 * ((ks + 3) % 4), 4)}, v{vT} offset:{32 * (ks + 3)}")
        e(f"v_mfma_f32_32x32x16_bf16 {vr(ACC + 16, 16)}, {vr(128 + 4 * ks, 4, 'a')}, {x}, {c[1]}")
        if ks < 8:
            e(nxt[ks])
        if ks == 20:
            e.comment("the previous segment's stores of every wave are complete behind this barrier: raise its flag")
            e(f"""s_waitcnt vmcnt(8)
                  s_barrier
                  s_cmp_eq_u32 s{sPrev}, 0
                  s_cbranch_scc1 L_pj_nf
                  s_mov_b64 exec, 1
                  buffer_store_dword v{vIn}, off, {W}, s{sPrev} sc1
                  s_mov_b64 exec, -1
                  L_pj_nf:""")
            e.vm.pop()
        e(f"v_mfma_f32_32x32x16_bf16 {vr(ACC + 32, 16)}, {x}, {vr(128 + 4 * ks, 4)}, {c[2]}")
    for m in range(3):
        for j in range(8):
            e(f"v_cvt_pk_bf16_f32 v{OUT + 8 * m + j}, v{ACC + 16 * m + 2 * j}, v{ACC + 16 * m + 2 * j + 1}")
        a = vSig if m == 1 else vL16
        e(f"""s_add_u32 s{sA}, s{sUnit}, {8192 * m}
              buffer_store_dwordx4 {vr(OUT + 8 * m, 4)}, v{a}, {W}, s{sA} offen sc1
              buffer_store_dwordx4 {vr(OUT + 8 * m + 4, 4)}, v{a}, {W}, s{sA} offen offset:1024 sc1""")
    e(f"""s_cmp_eq_u32 s{S_WAVE}, 0
          s_cselect_b32 s{sPrev}, s{sFlag}, 0
          s_cmp_ge_u32 s{sSeg}, {NP}
          s_cbranch_scc1 L_pj_later
          s_waitcnt vmcnt(0)
          s_barrier
          s_cmp_eq_u32 s{sPrev}, 0
          s_cbranch_scc1 L_pj_later
          s_mov_b64 exec, 1
          buffer_store_dword v{vIn}, off, {W}, s{sPrev} sc1
          s_mov_b64 exec, -1
          L_pj_later:
          s_add_u32 s{sFlag}, s{sFlag}, {4 * NP}
          s_add_u32 s{sUnit}, s{sUnit}, {NP * UNIT}
          s_sub_u32 s{sXb}, {XBUF}, s{sXb}
          s_add_u32 s{sSeg}, s{sSeg}, {NP}
          s_cmp_lt_u32 s{sSeg}, 64
          s_cbranch_scc1 L_pj_loop
          s_waitcnt vmcnt(0)
          s_barrier
          s_cmp_eq_u32 s{sPrev}, 0
          s_cbranch_scc1 L_phase2
          s_mov_b64 exec, 1
          buffer_store_dword v{vIn}, off, {W}, s{sPrev} sc1
          s_mov_b64 exec, -1""")


def poll_ge(e, tag, tmp, voff, soff, cmpv, nl):
    off = f"v{voff}" if voff is not None else "off"
    e(f"""L_pg_{tag}:
          buffer_load_dword v{tmp}, {off}, {W}, {soff} {'offen' if voff is not None else ''} sc1
          s_sub_u32 s{S_SPIN}, s{S_SPIN}, 1
          s_cbranch_scc1 L_end
          v_cmp_gt_u32 vcc, {cmpv}, v{tmp}
          s_and_b32 vcc_lo, vcc_lo, {(1 << nl) - 1}
          s_cbranch_scc0 L_pk_{tag}
          s_sleep {PS[0]}
          s_branch L_pg_{tag}
          L_pk_{tag}:""")


def nap_until(e, tag, tmp, soff, need, st, unit):
    e(f"""L_nap_{tag}:
          buffer_load_dword v{tmp}, off, {W}, {soff} sc1
          s_sub_u32 s{S_SPIN}, s{S_SPIN}, 1
          s_cbranch_scc1 L_end
          v_readfirstlane_b32 s{st}, v{tmp}
          s_sub_u32 s{st}, {need}, s{st}
          s_cbranch_scc1 L_napx_{tag}
          s_cmp_eq_u32 s{st}, 0
          s_cbranch_scc1 L_napx_{tag}
          s_min_u32 s{st}, s{st}, 8
          L_napl_{tag}:
          s_sleep {unit}
          s_sub_u32 s{st}, s{st}, 1
          s_cmp_lg_u32 s{st}, 0
          s_cbranch_scc1 L_napl_{tag}
          s_branch L_nap_{tag}
          L_napx_{tag}:""")


def tstamp(e, cfg, n):
    if cfg.get('tdiag'):
        e(f"s_memrealtime {sr(20 + 2 * n, 2)}\n s_waitcnt lgkmcnt(0)")


def tdump(e, cfg):
    if cfg.get('tdiag'):
        e(f"""s_lshl_b32 s{sA}, s{S_ROLE}, 2
              s_add_u32 s{sA}, s{sA}, s{S_WAVE}
              s_lshl_b32 s{sA}, s{sA}, 5
              s_add_u32 s{sA}, s{sA}, 0x6500000""")
        for n in range(6):
            e(f"v_mov_b32 v2, s{20 + 2 * n}\n buffer_store_dword v2, off, {W}, s{sA} offset:{4 * n}")


def softmax_tail(e, vals, m0, m1, sC):
    v = list(vals)
    e(f"v_max3_f32 v{m0}, v{v[0]}, v{v[1]}, v{v[2]}")
    k = 3
    while k + 1 < len(v):
        e(f"v_max3_f32 v{m0}, v{m0}, v{v[k]}, v{v[k + 1]}"); k += 2
    if k < len(v):
        e(f"v_max_f32 v{m0}, v{m0}, v{v[k]}")
    e(f"""v_mov_b32 v{m1}, v{m0}
          v_permlane32_swap_b32 v{m0}, v{m1}
          v_max_f32 v{m0}, v{m0}, v{m1}
          v_mul_f32 v{m0}, s{sC}, v{m0}""")
    for r in v:
        e(f"v_fma_f32 v{r}, v{r}, s{sC}, -v{m0}")
    for r in v:
        e(f"v_exp_f32 v{r}, v{r}")
    e(f"v_add_f32 v{m0}, v{v[0]}, v{v[1]}\n v_add_f32 v{m1}, v{v[2]}, v{v[3]}")
    for k in range(4, len(v), 2):
        e(f"v_add_f32 v{m0}, v{m0}, v{v[k]}\n v_add_f32 v{m1}, v{m1}, v{v[k + 1]}")
    e(f"""v_add_f32 v{m0}, v{m0}, v{m1}
          v_mov_b32 v{m1}, v{m0}
          v_permlane32_swap_b32 v{m0}, v{m1}
          v_add_f32 v{m0}, v{m0}, v{m1}
          v_rcp_f32 v{m0}, v{m0}""")


def attn_b(e, cfg):
    lane, t1, vL16, vSig, vVm, vKm, vT, m0, m1, vOne, vF, vLw = range(1, 13)
    BIAS, Q, K, V, S, D0, D1, KM, VM, PX, PMm, O = 16, 32, 64, 96, 128, 144, 160, 176, 192, 208, 216, 128
    sSeg, sUnit, sExp, sOut, sFq, sFc, sFa, sCc, sLds = sC_, sD, sE, sF, sG, sH, sI, sJ, sK
    h = sWid
    lane_consts(e, lane, vL16, vSig)
    e(f"""v_and_b32 v{t1}, 31, v{lane}
          v_lshrrev_b32 v{vT}, 5, v{lane}
          v_lshlrev_b32 v{vT}, 2, v{vT}
          v_sub_u32 v{t1}, v{t1}, v{vT}
          v_mov_b32 v{vT}, {NEG}""")
    for r in range(16):
        e(f"v_cmp_gt_i32 vcc, {8 * (r >> 2) + (r & 3)}, v{t1}\n v_cndmask_b32 v{BIAS + r}, 0, v{vT}, vcc")
    e(f"""v_lshrrev_b32 v{t1}, 5, v{lane}
          v_lshlrev_b32 v{vVm}, 8, v{t1}
          v_and_b32 v{t1}, 15, v{lane}
          v_lshl_add_u32 v{vVm}, v{t1}, 4, v{vVm}
          v_bfe_u32 v{t1}, v{lane}, 4, 1
          v_lshl_add_u32 v{vVm}, v{t1}, 2, v{vVm}
          v_add_u32 v{vVm}, 8, v{vVm}""")
    e(f"""s_lshl_b32 s{sLds}, s{S_WAVE}, 12
          v_and_b32 v{t1}, 3, v{lane}
          v_lshlrev_b32 v{vKm}, 8, v{t1}
          v_lshrrev_b32 v{t1}, 5, v{lane}
          v_lshl_add_u32 v{vKm}, v{t1}, 6, v{vKm}
          v_bfe_u32 v{t1}, v{lane}, 2, 2
          v_lshl_add_u32 v{vKm}, v{t1}, 4, v{vKm}
          v_add_u32 v{vKm}, s{sLds}, v{vKm}
          v_add_u32 v{vVm}, s{sLds}, v{vVm}
          v_add_u32 v{vLw}, s{sLds}, v{vL16}
          v_and_b32 v{vF}, 3, v{lane}
          v_lshlrev_b32 v{vF}, 2, v{vF}
          v_mov_b32 v{vOne}, 1""")
    for wc in range(4):
        e(f"v_mov_b64 {vr(VM + 4 * wc + 2, 2)}, 0")
    e(f"v_mov_b64 {vr(PMm + 2, 2)}, 0")
    e(f"""s_mov_b32 s{sSeg}, s{S_WAVE}
          s_lshl_b32 s{sA}, s{h}, 6
          s_add_u32 s{sA}, s{sA}, s{sSeg}
          s_mul_i32 s{sUnit}, s{sA}, {UNIT}
          s_lshl_b32 s{sExp}, s{sA}, 12
          s_add_u32 s{sExp}, s{sExp}, {WS_EXP}
          s_lshl_b32 s{sFq}, s{sA}, 2
          s_add_u32 s{sFq}, s{sFq}, {F_QKV}
          s_lshl_b32 s{sFc}, s{h}, 7
          s_add_u32 s{sFc}, s{sFc}, {F_CH}
          s_lshl_b32 s{sA}, s{sSeg}, 5
          s_add_u32 s{sA}, s{sA}, s{h}
          s_lshl_b32 s{sOut}, s{sA}, 13
          s_add_u32 s{sOut}, s{sOut}, {WS_OF}
          s_lshr_b32 s{sFa}, s{sA}, 3
          s_lshl_b32 s{sFa}, s{sFa}, 7
          s_and_b32 s{sA}, s{h}, 7
          s_lshl_b32 s{sA}, s{sA}, 2
          s_add_u32 s{sFa}, s{sFa}, s{sA}
          s_add_u32 s{sFa}, s{sFa}, {F_AT}
          s_mov_b32 s{sCc}, 0x3e0293ee""")
    e.wait(vm=0, lgkm=0)
    e.label("L_ab_loop")
    poll_ge(e, 'abq', vT, None, f"s{sFq}", 1, 1)
    e(f"s_add_u32 s{sA}, s{sUnit}, 4096")
    for base, a, off in ((K, vSig, 8192), (Q, vL16, 0), (V, vL16, 16384)):
        e(f"s_add_u32 s{sA}, s{sUnit}, {off}\n s_add_u32 s{sB}, s{sUnit}, {off + 4096}")
        for j in range(8):
            e(f"buffer_load_dwordx4 {vr(base + 4 * j, 4)}, v{a}, {W}, s{sA if j < 4 else sB} offen offset:{1024 * (j & 3)} sc1")
    for j in range(8):
        c = vr(BIAS, 16) if j == 0 else vr(S, 16)
        e(f"v_mfma_f32_32x32x16_bf16 {vr(S, 16)}, {vr(K + 4 * j, 4)}, {vr(Q + 4 * j, 4)}, {c}")
    e(f"""s_add_u32 s{sA}, s{sSeg}, 1
          s_sub_u32 s62, s{sSeg}, 1
          s_min_u32 s62, s62, 61
          s_cmp_ge_u32 s{sSeg}, {64 - NTAIL}
          s_cselect_b32 s{sA}, s62, s{sA}
          s_sub_u32 s62, s{sA}, 1""")
    e.wait(vm=0)
    if cfg.get('nap', 1):
        nap_until(e, 'ab', vT, f"s{sFc}", "s62", sB, cfg.get('napu', 24))
    poll_ge(e, 'abc', vT, vF, f"s{sFc}", f"s{sA}", 4)
    e(f"s_mov_b32 s62, {SENT1}\n s_branch L_ab_ex1\n L_ab_ex:\n s_sleep {cfg.get('exs', 0)}\n L_ab_ex1:")
    for j in range(4):
        e(f"buffer_load_dwordx4 {vr(D0 + 4 * j, 4)}, v{vL16}, {W}, s{sExp} offen offset:{1024 * j} sc1")
    e(f"s_sub_u32 s{S_SPIN}, s{S_SPIN}, 1\n s_cbranch_scc1 L_end")
    for j in range(16):
        e(f"v_xor_b32 v{D1 + j}, s62, v{D0 + j}")
    for j in range(4):
        e(f"ds_write_b128 v{vLw}, {vr(D0 + 4 * j, 4)} offset:{1024 * j}")
    e(f"v_min3_u32 v{vT}, v{D1}, v{D1 + 1}, v{D1 + 2}")
    for j in range(3, 15, 2):
        e(f"v_min3_u32 v{vT}, v{vT}, v{D1 + j}, v{D1 + j + 1}")
    e(f"""v_min_u32 v{vT}, v{vT}, v{D1 + 15}
          v_cmp_eq_u32 vcc, 0, v{vT}
          s_waitcnt lgkmcnt(0)
          s_cbranch_vccnz L_ab_ex""")
    tstamp(e, cfg, 0)
    for wc in range(4):
        e(f"ds_read2st64_b32 {vr(VM + 4 * wc, 2)}, v{vVm} offset0:{4 * wc} offset1:{4 * wc + 2}")
    for wc in range(4):
        for z in range(2):
            e(f"ds_read_b64_tr_b16 {vr(KM + 4 * wc + 2 * z, 2)}, v{vKm} offset:{1024 * wc + 128 * z}")
    for wc in range(4):
        for ab, D in ((0, D0), (1, D1)):
            c = '0' if wc == 0 else vr(D, 16)
            e(f"v_mfma_f32_32x32x16_bf16 {vr(D, 16)}, {vr(KM + 4 * wc, 4)}, {vr(Q + 4 * (2 * wc + ab), 4)}, {c}")
    sm = [D0, D0 + 1, D0 + 4, D0 + 5]
    for r in sm:
        e(f"v_add_f32 v{r}, v{r}, v{r - D0 + D1 + 2}")
    tstamp(e, cfg, 1)
    softmax_tail(e, [S + r for r in range(16)] + sm, m0, m1, sCc)
    tstamp(e, cfg, 2)
    for j in range(8):
        e(f"v_cvt_pk_bf16_f32 v{PX + j}, v{S + 2 * j}, v{S + 2 * j + 1}")
    e(f"v_cvt_pk_bf16_f32 v{PMm}, v{D0}, v{D0 + 1}\n v_cvt_pk_bf16_f32 v{PMm + 1}, v{D0 + 4}, v{D0 + 5}")
    for wc in range(4):
        o = vr(O + 16 * wc, 16)
        e(f"""v_mfma_f32_32x32x16_bf16 {o}, {vr(V + 8 * wc, 4)}, {vr(PX, 4)}, 0
              v_mfma_f32_32x32x16_bf16 {o}, {vr(V + 8 * wc + 4, 4)}, {vr(PX + 4, 4)}, {o}
              v_mfma_f32_32x32x16_bf16 {o}, {vr(VM + 4 * wc, 4)}, {vr(PMm, 4)}, {o}""")
    e(f"s_add_u32 s{sB}, s{sOut}, 4096")
    for wc in range(4):
        o = O + 16 * wc
        for j in range(16):
            e(f"v_mul_f32 v{o + j}, v{o + j}, v{m0}")
        for j in range(8):
            e(f"v_cvt_pk_bf16_f32 v{Q + 8 * wc + j}, v{o + 2 * j}, v{o + 2 * j + 1}")
        for ab in range(2):
            j = 2 * wc + ab
            e(f"buffer_store_dwordx4 {vr(Q + 4 * j, 4)}, v{vL16}, {W}, s{sOut if j < 4 else sB} offen offset:{1024 * (j & 3)} sc1")
    tstamp(e, cfg, 3)
    e("s_waitcnt vmcnt(0)")
    tstamp(e, cfg, 4)
    e(f"""s_mov_b64 exec, 1
          buffer_store_dword v{vOne}, off, {W}, s{sFa} sc1
          s_mov_b64 exec, -1
          s_add_u32 s{sUnit}, s{sUnit}, {4 * UNIT}
          s_add_u32 s{sExp}, s{sExp}, {4 * 4096}
          s_add_u32 s{sFq}, s{sFq}, 16
          s_add_u32 s{sOut}, s{sOut}, {4 * 32 * 8192}
          s_add_u32 s{sFa}, s{sFa}, {4 * 512}
          s_add_u32 s{sSeg}, s{sSeg}, 4
          s_cmp_lt_u32 s{sSeg}, 64
          s_cbranch_scc1 L_ab_loop""")
    tdump(e, cfg)
    e("s_branch L_end")


def out_b(e, cfg):
    lane, t1, vL16, vSrc, vTr, vO, vSt, vT, vF, vRw, vRr = range(1, 12)
    ACC, RD = 16, 32
    sU, sSl, sRow, sLds, sOf, sFa, sTog = sC_, sD, sE, sF, sG, sH, sI
    sHi = 72
    srd(e, S_W0, P_WO, 0x400000)
    srd(e, S_W1, P_OUT, 0x400000)
    e(f"""s_sub_u32 s{sU}, s{sWid}, 64
          s_and_b32 s{sSl}, s{sU}, 15
          s_lshr_b32 s{sU}, s{sU}, 4
          s_cmp_ge_u32 s{sU}, {cfg.get('ng', 8 if cfg.get('nb', 3) >= 2 else 10)}
          s_cbranch_scc1 L_end
          v_and_b32 v{lane}, 63, v0
          v_lshlrev_b32 v{vL16}, 4, v{lane}
          v_and_b32 v{vF}, 7, v{lane}
          v_lshlrev_b32 v{vF}, 2, v{vF}""")
    e(f"""v_lshrrev_b32 v{t1}, 2, v{lane}
          v_lshlrev_b32 v{vSrc}, 10, v{t1}
          v_and_b32 v{t1}, 3, v{lane}
          v_lshl_add_u32 v{vSrc}, v{t1}, 4, v{vSrc}
          s_lshl_b32 s{sRow}, s{S_WAVE}, 20
          s_lshl_b32 s{sA}, s{sSl}, 6
          s_add_u32 s{sRow}, s{sRow}, s{sA}
          s_lshl_b32 s{sLds}, s{S_WAVE}, 15""")
    e(f"""v_lshlrev_b32 v{vTr}, 3, v{t1}
          v_lshrrev_b32 v{t1}, 5, v{lane}
          v_lshl_add_u32 v{vTr}, v{t1}, 10, v{vTr}
          v_bfe_u32 v{t1}, v{lane}, 2, 3
          v_lshl_add_u32 v{vTr}, v{t1}, 6, v{vTr}
          v_add_u32 v{vTr}, s{sLds}, v{vTr}""")
    e(f"""v_lshrrev_b32 v{t1}, 4, v{lane}
          v_lshlrev_b32 v{vO}, 9, v{t1}
          v_lshlrev_b32 v{vSt}, 3, v{t1}
          v_and_b32 v{t1}, 7, v{lane}
          v_lshl_add_u32 v{vO}, v{t1}, 4, v{vO}
          v_lshl_add_u32 v{vSt}, v{t1}, 11, v{vSt}
          v_and_b32 v{t1}, 8, v{lane}
          v_cmp_ne_u32 {sr(sHi, 2)}, 0, v{t1}
          v_lshl_add_u32 v{vO}, v{t1}, 8, v{vO}
          v_lshl_add_u32 v{vSt}, v{t1}, 27, v{vSt}
          s_lshl_b32 s{sA}, s{S_WAVE}, 11
          s_add_u32 s{sA}, s{sA}, 131072
          v_add_u32 v{vRw}, s{sA}, v{vL16}
          s_lshl_b32 s{sA}, s{S_WAVE}, 10
          s_add_u32 s{sA}, s{sA}, 131072
          v_add_u32 v{vRr}, s{sA}, v{vL16}""")
    e.wait(vm=0, lgkm=0)
    e("s_barrier")
    marks = {}

    def dma(ks):
        for j in range(2):
            e(f"""s_add_u32 m0, s{sLds}, {(ks % 16) * 2048 + j * 1024}
                  s_add_u32 s{sA}, s{sRow}, {(32 * ks + 16 * j) * 1024}
                  buffer_load_dwordx4 v{vSrc}, {sr(S_W0, 4)}, s{sA} offen lds""")
        marks[ks] = e.vm[-1]

    for ks in range(15):
        dma(ks)
    for ks in range(32):
        e.wait(vm=len(e.vm) - 1 - e.vm.index(marks[ks]), lgkm=0)
        if ks + 15 < 32:
            dma(ks + 15)
        for dt in range(2):
            for z in range(2):
                e(f"ds_read_b64_tr_b16 {vr(8 * ks + 4 * dt + 2 * z, 2, 'a')}, v{vTr} offset:{(ks % 16) * 2048 + z * 512 + dt * 32}")
    e.wait(vm=0, lgkm=0)
    e(f"s_mov_b32 s{sTog}, 0")
    e.label("L_ob_loop")
    e(f"""s_lshr_b32 s{sA}, s{sU}, 2
          s_lshl_b32 s{sA}, s{sA}, 5
          s_lshl_b32 s{sB}, s{S_WAVE}, 3
          s_add_u32 s{sA}, s{sA}, s{sB}
          s_lshl_b32 s{sFa}, s{sA}, 4
          s_add_u32 s{sFa}, s{sFa}, {F_AT}
          s_lshl_b32 s{sOf}, s{sA}, 13
          s_and_b32 s{sB}, s{sU}, 3
          s_lshl_b32 s{sB}, s{sB}, 7
          s_add_u32 s{sOf}, s{sOf}, s{sB}
          s_add_u32 s{sOf}, s{sOf}, {WS_OF}""")
    if cfg.get('nap', 1):
        e(f"""s_lshr_b32 s62, s{sU}, 2
              s_add_u32 s62, s62, 1
              s_min_u32 s62, s62, {64 - NTAIL}
              s_and_b32 s63, s{sWid}, 31
              s_lshl_b32 s63, s63, 7
              s_add_u32 s63, s63, {F_CH}""")
        nap_until(e, 'ob', vT, "s63", "s62", sB, cfg.get('napu', 24))
    poll_ge(e, 'ob', vT, vF, f"s{sFa}", 1, 8)
    tstamp(e, cfg, 0)
    for j in range(16):
        e(f"s_add_u32 s{sA}, s{sOf}, {j * 4096}\n buffer_load_dwordx4 {vr(128 + 4 * j, 4)}, v{vO}, {W}, s{sA} offen sc1")
    for ks in range(32):
        for dt in range(2):
            a = ACC + 8 * (ks & 1) + 4 * dt
            c = '0' if ks < 2 else vr(a, 4)
            e(f"v_mfma_f32_16x16x32_bf16 {vr(a, 4)}, {vr(8 * ks + 4 * dt, 4, 'a')}, {vr(128 + 4 * (ks >> 1), 4)}, {c}")
    for r in range(8):
        e(f"v_cndmask_b32 v{ACC + r}, v{ACC + r}, v{ACC + 8 + r}, {sr(sHi, 2)}")
    tstamp(e, cfg, 1)
    e(f"""v_add_u32 v{vT}, s{sTog}, v{vRw}
          ds_write_b128 v{vT}, {vr(ACC, 4)}
          ds_write_b128 v{vT}, {vr(ACC + 4, 4)} offset:1024""")
    e.barrier()
    e(f"""s_cmp_ge_u32 s{S_WAVE}, 2
          s_cbranch_scc1 L_ob_next
          v_add_u32 v{vT}, s{sTog}, v{vRr}""")
    for p in range(4):
        e(f"ds_read_b128 {vr(RD + 4 * p, 4)}, v{vT} offset:{2048 * p}")
    for r in range(4):
        e(f"""v_add_f32 v{RD + r}, v{RD + r}, v{RD + 4 + r}
              v_add_f32 v{RD + 8 + r}, v{RD + 8 + r}, v{RD + 12 + r}
              v_add_f32 v{RD + r}, v{RD + r}, v{RD + 8 + r}""")
    for r in range(4):
        e(f"v_add_f32_dpp v{RD + r}, v{RD + r}, v{RD + r} row_ror:8 row_mask:0xf bank_mask:0xf")
    e(f"""v_cvt_pk_bf16_f32 v{RD}, v{RD}, v{RD + 1}
          v_cvt_pk_bf16_f32 v{RD + 1}, v{RD + 2}, v{RD + 3}
          s_lshl_b32 s{sA}, s{sU}, 14
          s_lshl_b32 s{sB}, s{sSl}, 6
          s_add_u32 s{sA}, s{sA}, s{sB}
          s_lshl_b32 s{sB}, s{S_WAVE}, 5
          s_add_u32 s{sA}, s{sA}, s{sB}
          buffer_store_dwordx2 {vr(RD, 2)}, v{vSt}, {sr(S_W1, 4)}, s{sA} offen offset:1024 {cfg.get('ost', '')}
          L_ob_next:
          s_xor_b32 s{sTog}, s{sTog}, 8192
          s_add_u32 s{sU}, s{sU}, {cfg.get('ng', 8 if cfg.get('nb', 3) >= 2 else 10)}
          s_cmp_lt_u32 s{sU}, 256
          s_cbranch_scc1 L_ob_loop""")
    tstamp(e, cfg, 2)
    tdump(e, cfg)
    e("s_branch L_end")


def part_a(e, cfg):
    lane, t1, vL16, vSig, vSrc, vTr, vT, m0, m1, vSt, vW, vNeg = range(1, 13)
    BC, BP, BPX = 16, 32, 48
    SC, SP, O, PX = 64, 80, 96, 112
    Q, KC, KP, VC, VP = 128, 160, 192, 224, 48
    sSeg, sCh, sUnit, sPrevU, sFq, sCc, sRow = sC_, sD, sE, sF, sG, sH, sI
    srd(e, S_W0, P_AWO, 0x80000)
    srd(e, S_W1, P_OUT, 0x400000)
    lane_consts(e, lane, vL16, vSig)
    e(f"""s_sub_u32 s{sSeg}, s{sWid}, 32
          s_and_b32 s{sCh}, s{sSeg}, 1
          s_lshr_b32 s{sSeg}, s{sSeg}, 1
          s_mov_b32 s{sCc}, 0x3eb8aa3b""")
    e(f"""v_and_b32 v{t1}, 31, v{lane}
          v_lshrrev_b32 v{vT}, 5, v{lane}
          v_lshlrev_b32 v{vT}, 2, v{vT}
          v_sub_u32 v{t1}, v{t1}, v{vT}
          v_mov_b32 v{vNeg}, {NEG}""")
    for base, add in ((BC, 0), (BP, 32)):
        for r in range(16):
            e(f"""v_add_u32 v{vT}, {add - 8 * (r >> 2) - (r & 3)}, v{t1}
                  v_and_b32 v{vT}, 0xfffffff1, v{vT}
                  v_cmp_ne_u32 vcc, 0, v{vT}
                  v_cndmask_b32 v{base + r}, 0, v{vNeg}, vcc""")
    e(f"""v_lshrrev_b32 v{t1}, 5, v{lane}
          v_lshlrev_b32 v{vSrc}, 10, v{t1}
          v_and_b32 v{t1}, 31, v{lane}
          v_lshl_add_u32 v{vSrc}, v{t1}, 4, v{vSrc}
          v_lshlrev_b32 v{vSt}, 11, v{t1}
          s_lshl_b32 s{sRow}, s{S_WAVE}, 13
          s_lshl_b32 s{sA}, s{sCh}, 9
          s_add_u32 s{sRow}, s{sRow}, s{sA}
          s_lshl_b32 s63, s{S_WAVE}, 12""")
    e(f"""v_lshrrev_b32 v{t1}, 5, v{lane}
          v_lshlrev_b32 v{vTr}, 11, v{t1}
          v_lshl_add_u32 v{vSt}, v{t1}, 3, v{vSt}
          v_bfe_u32 v{t1}, v{lane}, 2, 2
          v_lshl_add_u32 v{vTr}, v{t1}, 9, v{vTr}
          v_bfe_u32 v{t1}, v{lane}, 4, 1
          v_lshl_add_u32 v{vTr}, v{t1}, 5, v{vTr}
          v_and_b32 v{t1}, 3, v{lane}
          v_lshl_add_u32 v{vTr}, v{t1}, 3, v{vTr}
          s_lshl_b32 s{sA}, s{S_WAVE}, 7
          v_add_u32 v{vTr}, s{sA}, v{vTr}
          s_lshl_b32 s{sA}, s{S_WAVE}, 13
          v_add_u32 v{vW}, s{sA}, v{vL16}""")
    e.wait(vm=0, lgkm=0)
    e("s_barrier")
    marks = {}

    def dma(r):
        for j in range(4):
            e(f"""s_add_u32 m0, s63, {(r % 8) * 16384 + j * 1024}
                  s_add_u32 s{sA}, s{sRow}, {(32 * r + 2 * j) * 1024}
                  buffer_load_dwordx4 v{vSrc}, {sr(S_W0, 4)}, s{sA} offen lds""")
        marks[r] = e.vm[-1]

    for r in range(7):
        dma(r)
    for r in range(16):
        e.wait(vm=len(e.vm) - 1 - e.vm.index(marks[r]), lgkm=0)
        e("s_barrier")
        if r + 7 < 16:
            dma(r + 7)
        e(f"v_add_u32 v{vT}, {(r % 8) * 16384}, v{vTr}")
        for hl in range(2):
            for dt in range(2):
                for z in range(2):
                    e(f"ds_read_b64_tr_b16 {vr(8 * (2 * r + hl) + 4 * dt + 2 * z, 2, 'a')}, v{vT} offset:{(16 * hl + 8 * z) * 512 + dt * 64}")
    e.wait(vm=0, lgkm=0)
    e.label("L_pa_loop")
    e(f"""s_add_u32 s{sA}, s{S_WAVE}, 32
          s_lshl_b32 s{sA}, s{sA}, 6
          s_add_u32 s{sA}, s{sA}, s{sSeg}
          s_mul_i32 s{sUnit}, s{sA}, {UNIT}
          s_lshl_b32 s{sFq}, s{sA}, 2
          s_add_u32 s{sFq}, s{sFq}, {F_QKV}
          s_cmp_eq_u32 s{sSeg}, 0
          s_cselect_b32 s{sA}, 0, {UNIT}
          s_cselect_b32 s{sB}, 0, 4
          s_cselect_b64 vcc, -1, 0
          s_sub_u32 s{sPrevU}, s{sUnit}, s{sA}
          s_sub_u32 s62, s{sFq}, s{sB}""")
    for r in range(8, 16):
        e(f"v_cndmask_b32 v{BP + r - 8}, v{BP + r}, v{vNeg}, vcc")
    poll_ge(e, 'pa1', vT, None, f"s{sFq}", 1, 1)
    poll_ge(e, 'pa2', vT, None, "s62", 1, 1)
    for base, a, u, off in ((Q, vL16, sUnit, 0), (KC, vSig, sUnit, 8192), (KP, vSig, sPrevU, 8192), (VC, vL16, sUnit, 16384)):
        e(f"s_add_u32 s{sA}, s{u}, {off}\n s_add_u32 s{sB}, s{u}, {off + 4096}")
        for j in range(8):
            e(f"buffer_load_dwordx4 {vr(base + 4 * j, 4)}, v{a}, {W}, s{sA if j < 4 else sB} offen offset:{1024 * (j & 3)} sc1")
    e(f"s_add_u32 s{sA}, s{sPrevU}, {16384 + 1024}\n s_add_u32 s{sB}, s{sPrevU}, {16384 + 1024 + 4096}")
    for wc in range(4):
        e(f"buffer_load_dwordx4 {vr(VP + 4 * wc, 4)}, v{vL16}, {W}, s{sA if wc < 2 else sB} offen offset:{2048 * (wc & 1)} sc1")
    e("s_barrier")
    for j in range(8):
        wc, ab = j >> 1, j & 1
        e(f"""v_mfma_f32_32x32x16_bf16 {vr(SC, 16)}, {vr(KC + 4 * j, 4)}, {vr(Q + 4 * j, 4)}, {vr(BC, 16)}
              v_mfma_f32_32x32x16_bf16 {vr(SP, 16)}, {vr(KP + 4 * j, 4)}, {vr(Q + 4 * j, 4)}, {vr(BP - 8, 16)}""")
        softmax_tail(e, [SC + r for r in range(16)] + [SP + r for r in range(8, 16)], m0, m1, sCc)
        for k in range(8):
            e(f"v_cvt_pk_bf16_f32 v{PX + k}, v{SC + 2 * k}, v{SC + 2 * k + 1}")
        for k in range(4):
            e(f"v_cvt_pk_bf16_f32 v{PX + 8 + k}, v{SP + 8 + 2 * k}, v{SP + 8 + 2 * k + 1}")
        o = vr(O, 16)
        e(f"""v_mfma_f32_32x32x16_bf16 {o}, {vr(VC + 8 * wc, 4)}, {vr(PX, 4)}, 0
              v_mfma_f32_32x32x16_bf16 {o}, {vr(VC + 8 * wc + 4, 4)}, {vr(PX + 4, 4)}, {o}
              v_mfma_f32_32x32x16_bf16 {o}, {vr(VP + 4 * wc, 4)}, {vr(PX + 8, 4)}, {o}""")
        for k in range(8):
            e(f"v_mul_f32 v{O + 8 * ab + k}, v{O + 8 * ab + k}, v{m0}")
        for k in range(4):
            e(f"v_cvt_pk_bf16_f32 v{124 + k}, v{O + 8 * ab + 2 * k}, v{O + 8 * ab + 2 * k + 1}")
        e(f"ds_write_b128 v{vW}, {vr(124, 4)} offset:{1024 * j}")
    e.barrier()
    for hd in range(32):
        e(f"ds_read_b128 {vr(128 + 4 * hd, 4)}, v{vL16} offset:{1024 * hd}")
        if hd >= 8:
            k = hd - 8
            for dt in range(2):
                c = '0' if k == 0 else vr(SC + 16 * dt, 16)
                e(f"v_mfma_f32_32x32x16_bf16 {vr(SC + 16 * dt, 16)}, {vr(8 * k + 4 * dt, 4, 'a')}, {vr(128 + 4 * k, 4)}, {c}")
    for k in range(24, 32):
        for dt in range(2):
            e(f"v_mfma_f32_32x32x16_bf16 {vr(SC + 16 * dt, 16)}, {vr(8 * k + 4 * dt, 4, 'a')}, {vr(128 + 4 * k, 4)}, {vr(SC + 16 * dt, 16)}")
    e(f"""s_lshl_b32 s{sA}, s{sSeg}, 16
          s_lshl_b32 s{sB}, s{sCh}, 9
          s_add_u32 s{sA}, s{sA}, s{sB}
          s_lshl_b32 s{sB}, s{S_WAVE}, 7
          s_add_u32 s{sA}, s{sA}, s{sB}""")
    for dt in range(2):
        for a in range(4):
            r = SC + 16 * dt + 4 * a
            d = O + 2 * (4 * dt + a)
            e(f"""v_cvt_pk_bf16_f32 v{d}, v{r}, v{r + 1}
                  v_cvt_pk_bf16_f32 v{d + 1}, v{r + 2}, v{r + 3}
                  buffer_store_dwordx2 {vr(d, 2)}, v{vSt}, {sr(S_W1, 4)}, s{sA} offen offset:{64 * dt + 16 * a} {cfg.get('ost', '')}""")
    e(f"""s_add_u32 s{sSeg}, s{sSeg}, 16
          s_cmp_lt_u32 s{sSeg}, 64
          s_cbranch_scc1 L_pa_loop
          s_branch L_end""")


def worker(e, cfg):
    PS[0] = cfg.get('ps', 4)
    e(f"s_sub_u32 s{sWid}, s{S_ROLE}, 32")
    if cfg.get('ne', 0):
        e.comment("five workgroups of each die form the team that runs the first steps while die 0 still loads its weights")
        e(f"""s_lshr_b32 s62, s{sWid}, 5
              s_and_b32 s63, s{sWid}, 31
              s_cmp_ge_u32 s63, 5
              s_cbranch_scc1 L_noec
              s_mul_i32 s62, s62, 5
              s_add_u32 s{S_HEAD}, s62, s63
              s_mov_b32 s{S_EC}, 1
              s_cmp_lt_u32 s{S_HEAD}, 32
              s_cbranch_scc1 L_chain
              s_branch L_spare
              L_noec:
              s_mul_i32 s62, s62, 27
              s_add_u32 s63, s63, s62
              s_sub_u32 s63, s63, 5
              s_cmp_lt_u32 s63, 180
              s_cbranch_scc1 L_proj
              L_spare:""")
    elif cfg.get('nb', 3) == 3:
        e(f"s_sub_u32 s63, s{sWid}, 32\n s_cmp_lt_u32 s63, 180\n s_cbranch_scc1 L_proj")
    else:
        e(f"s_mov_b32 s63, s{sWid}\n s_cmp_lt_u32 s{sWid}, 216\n s_cbranch_scc1 L_proj")
    st = e.state()
    e("s_waitcnt vmcnt(0)")
    confirm_barrier(e, 'sp')
    if cfg.get('nb', 3) == 3:
        e(f"s_cmp_lt_u32 s{sWid}, 32\n s_cbranch_scc1 L_end")
    if cfg.get('opf', 0):
        e.comment("read Wo once (one word per line): the recurrence asks for it last and then finds it on the die-level cache")
        srd(e, S_W0, P_WO, 0x400000)
        e(f"""s_sub_u32 s{sA}, s{sWid}, 216
              s_lshl_b32 s{sA}, s{sA}, 2
              s_add_u32 s{sA}, s{sA}, s{S_WAVE}
              s_lshl_b32 s{sA}, s{sA}, 17
              v_and_b32 v4, 63, v0
              v_lshlrev_b32 v4, 7, v4""")
        for j in range(16):
            e.loose(f"buffer_load_dword v5, v4, {sr(S_W0, 4)}, s{sA} offen")
            e(f"s_add_u32 s{sA}, s{sA}, 8192")
    wait_init(e, 'sp', 3, 127)
    e("s_branch L_phase2")
    e.label("L_proj"); e.set_state(st)
    proj(e, cfg)
    e.label("L_phase2")
    dbg_max(e, cfg, 15, v=12)
    if cfg.get('diag'):
        e("s_memrealtime s[88:89]\n s_waitcnt lgkmcnt(0)")
    if cfg.get('nophase2'):
        e("s_branch L_end")
    nb = cfg.get('nb', 3)
    if nb == 1:
        e(f"s_cmp_lt_u32 s{sWid}, 64\n s_cselect_b32 s{sA}, 32, 0\n s_xor_b32 s{sWid}, s{sWid}, s{sA}")
    if nb >= 2:
        e(f"s_sub_u32 s{sWid}, s{sWid}, 32\n s_cbranch_scc1 L_end")
        if cfg.get('rot'):
            e(f"""s_add_u32 s{sWid}, s{sWid}, {32 * cfg['rot']}
                  s_cmp_ge_u32 s{sWid}, 192
                  s_cselect_b32 s{sA}, 192, 0
                  s_sub_u32 s{sWid}, s{sWid}, s{sA}""")
    e(f"""s_cmp_lt_u32 s{sWid}, 32
          s_cbranch_scc1 L_attn_b
          s_cmp_lt_u32 s{sWid}, 64
          s_cbranch_scc1 L_part_a""")
    st = e.state()
    out_b(e, cfg)
    e.label("L_attn_b"); e.set_state(st)
    attn_b(e, cfg)
    e.label("L_part_a"); e.set_state(st)
    part_a(e, cfg)
```

```python
from common import *

L_T, L_OB, L_DUMMY, L_KX, L_WL = 8192, 12544, 14592, 16384, 32768
T_PITCH = 1088
vL16, vPst, vMst, vTw, vTr, vKXr, vOw, vWL0, vWL1, vMw, vIdx, vSelC = range(12)
EX, PM, VX = 12, 16, 20
TMP = 28
MA = 32
ACC = 64
X, KXR, SPARE = 88, 104, 120
R1 = [MA + 8, MA + 16, MA + 24, X, X + 8, KXR, KXR + 8, SPARE, X, X + 8]
WO_SB = [KXR, KXR + 8, X, X + 8, ACC, ACC + 8]
(sStep, sMcur, sProg, sMtog, sG, sKl, sMb, sKV, sC, sExp, sMcur2, sMbaseS, sPbaseS, sPbaseL, sFl, sFch, sTog, sNan,
 sA, sB) = range(50, 70)
sSel = 70
sOK, sMn2, sF1, sEnd = 78, 3, 38, 39
sArm, sFm = 18, 98
sVx, sVt, sOK2, sG2 = 96, 97, 17, 100
HV, HS, HA, HD = VX, VX + 1, VX + 2, VX + 4
sHm, sCnt = 20, 28
S_M0 = 84
TRS = [30, 42, 44, 80, 82, 88, 32, 34]
sDbgT = 80

STREAM = [('q', 0, 0), ('q', 1, 0), ('k', 0, 0), ('k', 1, 0), ('q', 0, 1), ('q', 1, 1), ('k', 0, 1), ('k', 1, 1),
          ('q', 0, 5), ('q', 0, 7),
          ('o', 5, 0), ('o', 5, 1), ('o', 6, 0), ('o', 6, 1), ('o', 7, 0), ('o', 7, 1)]
WLPOS = {op: p for op, p in zip(STREAM[10:14], range(4))}
WLPOS.update({op: 4 + p for p, op in enumerate(STREAM[14:16] + STREAM[:10])})
ALLOPS = [(m, ft, i) for m in 'qkv' for ft in range(2) for i in range(8)] + [('o', t, kb) for t in range(8) for kb in range(2)]
RES = {}
for n, op in enumerate([o for o in ALLOPS if o not in STREAM]):
    RES[op] = ('a', 8 * n) if n < 32 else ('v', 128 + 8 * (n - 32))
PARK = {}
for n, op in enumerate(STREAM[14:16] + STREAM[:10]):
    PARK[op] = 32 + 8 * n
for n, op in enumerate(STREAM[10:14]):
    PARK[op] = 48 + 8 * n
W = sr(S_WS, 4)
CFG = {}


def wl_addr(op, half):
    p = WLPOS[op]
    off = (p >> 1) * 16384 + (p & 1) * 2048 + half * 1024
    return (vWL0, off) if off < 65536 else (vWL1, off - 65536)


def wl_write(e, op, src):
    for half in range(2):
        a, off = wl_addr(op, half)
        e(f"ds_write_b128 v{a}, {vr(src + 4 * half, 4)} offset:{off}")


def wl_lines(op, dst):
    out = []
    for half in range(2):
        a, off = wl_addr(op, half)
        out.append(f"ds_read_b128 {vr(dst + 4 * half, 4)}, v{a} offset:{off}")
    return out


def delay(e, cyc):
    if CFG.get('slp') and cyc >= 64:
        k = cyc // 64
        e(f"s_sleep {k}")
        cyc -= 64 * k
    if CFG.get('dmf'):
        while cyc >= 16:
            if CFG['dmf'] == 1:
                e(f"v_mfma_f32_16x16x32_bf16 {vr(VX, 4)}, a[0:3], a[8:11], 0")
            else:
                e(f"v_smfmac_f32_16x16x64_bf16 {vr(VX, 4)}, a[0:3], a[8:15], v{vIdx}")
            cyc -= 16
    n = cyc // 4
    while n > 0:
        k = min(n, 16)
        e(f"s_nop {k - 1}")
        n -= k


def mix(reads, other, per=3):
    out = []
    other = list(other)
    for r in reads:
        out.append(r)
        for _ in range(per):
            if other:
                out.append(other.pop(0))
    return out + other


def mload(b):
    return f"buffer_load_dwordx4 {vr(MA + 4 * b, 4)}, v{vMw}, {W}, s{sMcur if b == 0 else sMcur2} offen sc1"


def mspare():
    return f"buffer_load_dwordx4 {vr(VX, 4)}, v{vMw}, {W}, s{sMcur} offen sc1"


def kx_dma(e, ldsbase):
    e(f"""s_lshl_b32 s{sA}, s{S_WAVE}, 11
          s_add_u32 m0, s{sA}, {ldsbase}
          buffer_load_dwordx4 v{vL16}, {W}, s{sKV} offen sc1 lds
          buffer_load_dwordx4 v{vL16}, {W}, s{sKV} offen offset:1024 sc1 lds""")


def scalar_lines():
    return [x.strip() for x in f"""s_and_b32 s{sA}, s{sStep}, 3
          s_lshl_b32 s{sA}, s{sA}, 13
          s_add_u32 s{sMcur}, s{sA}, s{sMb}
          s_add_u32 s{sMcur2}, s{sMcur}, 4096
          s_and_b32 s{sA}, s{sA}, 0x2000
          s_add_u32 s{sMn2}, s{sMbaseS}, s{sA}
          s_lshl_b32 s{sMtog}, s{sA}, 1
          s_sub_u32 s{sVx}, s{sKV}, s{sTog}
          s_add_u32 s{sVx}, s{sVx}, {8192 - L_KX}
          s_add_u32 s{sKV}, s{sKV}, {0 if CFG.get('samekv') else UNIT}
          s_add_u32 s{sVt}, s{sKV}, 8192
          s_xor_b32 s{sA}, s{sTog}, 0x2000
          s_add_u32 m0, s{sA}, s{sKl}
          s_cmp_gt_u32 s{sStep}, s{sF1}
          s_cselect_b32 s{sA}, 4096, 0
          s_add_u32 s{sExp}, s{sExp}, s{sA}
          s_add_u32 s{sOK2}, s{sStep}, 1
          s_max_u32 s{sProg}, s{sStep}, {0 if CFG.get('xo', 0) else 1}
          s_sub_u32 s{sProg}, s{sProg}, {0 if CFG.get('xo', 0) else 1}
          s_and_b32 s{sG2}, s{sOK2}, 1""".split('\n')]


def prep_a_lines():
    other = [f"v_mov_b64 {vr(ACC + j, 2)}, 0" for j in range(0, 24, 2)] + [f"v_lshlrev_b32 v{PM + 3}, 1, v{vL16}", f"v_mov_b32 v{TMP}, s{sProg}"]
    reads = sum([wl_lines(STREAM[o], R1[o]) for o in range(3, 8)], [])
    return mix(reads, other, 2)


def prep_b_lines():
    other = [f"v_xor_b32 v{vMst}, s{sMtog}, v{vMst}"] + [f"v_xor_b32 v{TMP + p}, {p << 10}, v{vMw}" for p in range(1, 4)]
    reads = sum([wl_lines(STREAM[o], R1[o]) for o in range(3)], [])
    return mix(reads, other, 1)


def chain_startup(e, cfg):
    h = S_HEAD
    ent = 'retE' if cfg.get('ic', 0) else 'step'
    NE = cfg.get('ne', 0)
    ARMED = (0x400100 if NE else 0x200100)
    tA, tB, tC, tD = EX, EX + 1, EX + 2, EX + 3
    t0, t1, t2, t3 = TMP, TMP + 1, TMP + 2, TMP + 3
    lane = PM
    chunks = [('o', kb, Q) for kb in range(2) for Q in range(4)] + [(m, b, 0) for m in cfg.get('mo', 'qkv') for b in range(8)]
    ring = {4: L_WL + 2 * 16384, 5: L_WL + 3 * 16384, 6: L_WL + 4 * 16384, 0: L_WL + 5 * 16384, 1: L_WL + 6 * 16384,
            2: L_WL + 7 * 16384, 3: 0}
    ptr = {'q': P_WQ, 'k': P_WK, 'v': P_WV, 'o': P_WO}
    sHq, sHo, sLw = sMcur, sProg, sMcur2
    cur, marks = [None], {}

    def dma(r):
        m, x, Q = chunks[r]
        if cur[0] != m:
            srd(e, S_T0, ptr[m], 0x400000); cur[0] = m
        for i in range(4):
            if m == 'o':
                row = 64 * x + 32 * (Q >> 1) + 2 * (Q & 1) + 4 * (i >> 1) + (i & 1)
                e(f"""s_add_u32 s{sA}, s{sHo}, {row * 1024}
                      s_add_u32 m0, s{sLw}, {ring[r % 7] + i * 1024}
                      v_xor_b32 v{t2}, {i << 5}, v{VX + 3}
                      buffer_load_dwordx4 v{t2}, {sr(S_T0, 4)}, s{sA} offen {cfg.get('wnt', '')} lds""")
            else:
                e(f"""s_add_u32 s{sA}, s{sHq}, {(128 * (x & 3) + 64 * (x >> 2) + 4 * i) * 8192}
                      s_add_u32 m0, s{sLw}, {ring[r % 7] + i * 1024}
                      buffer_load_dwordx4 v{tA}, {sr(S_T0, 4)}, s{sA} offen {cfg.get('wnt', '')} lds""")
        marks[r] = e.vm[-1]

    S_T2 = 20
    cur2 = [None]

    def ahead(r):
        m, x, Q = chunks[r]
        if m == 'o':
            return
        if cur2[0] != m:
            srd(e, S_T2, ptr[m], 0x400000); cur2[0] = m
        e(f"s_add_u32 s{sA}, s24, {(128 * (x & 3) + 64 * (x >> 2)) * 8192}")
        e.loose(f"buffer_load_dword v{PM}, v{tD}, {sr(S_T2, 4)}, s{sA} offen")

    e(f"""v_and_b32 v{lane}, 63, v0
          v_lshlrev_b32 v{vL16}, 4, v{lane}
          s_and_b32 s{sA}, s{S_WAVE}, 1
          s_lshr_b32 s{sB}, s{S_WAVE}, 1
          s_lshl_b32 s{sHo}, s{sA}, 7
          v_xor_b32 v{VX + 3}, s{sHo}, v{vL16}
          s_lshl_b32 s{sHo}, s{h}, 17
          s_lshl_b32 s{sLw}, s{sA}, 14
          s_add_u32 s{sHo}, s{sHo}, s{sLw}
          s_lshl_b32 s{sLw}, s{sB}, 13
          s_add_u32 s{sHo}, s{sHo}, s{sLw}
          s_lshl_b32 s{sHq}, s{h}, 8
          s_lshl_b32 s{sLw}, s{S_WAVE}, 17
          s_add_u32 s{sHq}, s{sHq}, s{sLw}
          s_lshl_b32 s{sLw}, s{S_WAVE}, 12""")
    if cfg.get('tw', 0):
        e.comment("first touch of every page of the other three matrices at once")
        e(f"v_lshlrev_b32 v{t3}, 16, v{lane}")
        for m in 'qkv':
            srd(e, S_M0, ptr[m], 0x400000)
            e.loose(f"buffer_load_dword v125, v{t3}, {sr(S_M0, 4)}, s{sHq} offen")
    DD = cfg.get('dd', 5)
    for r in range(cfg.get('d0', 6)):
        dma(r)
    e(f"""v_lshrrev_b32 v{t0}, 4, v{lane}
          v_and_b32 v{t1}, 15, v{lane}
          s_lshl_b32 s{sA}, s{S_WAVE}, 10
          v_add_u32 v{vMw}, s{sA}, v{vL16}
          v_lshlrev_b32 v{PM + 3}, 2, v{lane}""")
    e(f"""v_lshrrev_b32 v{t2}, 2, v{lane}
          v_lshlrev_b32 v{t2}, 12, v{t2}
          v_and_b32 v{t3}, 3, v{lane}
          v_lshl_add_u32 v{vPst}, v{t3}, 4, v{t2}""")
    e(f"""v_and_b32 v{t2}, 1, v{lane}
          v_lshlrev_b32 v{t2}, 5, v{t2}
          v_lshl_add_u32 v{t2}, v{t0}, 3, v{t2}
          v_and_b32 v{t3}, 4, v{lane}
          v_add_u32 v{t2}, v{t2}, v{t3}
          v_and_b32 v{t3}, 8, v{lane}
          v_cmp_ne_u32 {sr(sArm, 2)}, 0, v{t3}
          v_lshl_add_u32 v{t2}, v{t3}, 11, v{t2}
          v_and_b32 v{t3}, 2, v{lane}
          v_lshl_add_u32 v{vMst}, v{t3}, 29, v{t2}""")
    srd(e, S_M0, P_MEM0, 8192)
    e(f"""v_and_b32 v{t2}, 1, v{lane}
          v_lshlrev_b32 v{tD}, 10, v{t2}
          v_lshl_add_u32 v{tD}, v{t0}, 1, v{tD}
          v_bfe_u32 v{t2}, v{lane}, 2, 1
          v_lshl_add_u32 v{tD}, v{t2}, 6, v{tD}
          s_and_b32 s{sA}, s{h}, 6
          s_lshl_b32 s{sA}, s{sA}, 10
          s_lshr_b32 s{sB}, s{h}, 3
          s_lshl_b32 s{sB}, s{sB}, 8
          s_add_u32 s{sA}, s{sA}, s{sB}
          s_and_b32 s{sB}, s{S_WAVE}, 1
          s_lshl_b32 s{sB}, s{sB}, 7
          s_add_u32 s{sA}, s{sA}, s{sB}
          s_lshr_b32 s{sB}, s{S_WAVE}, 1
          s_lshl_b32 s{sB}, s{sB}, 3
          s_add_u32 s{sA}, s{sA}, s{sB}
          s_and_b32 s{sB}, s{h}, 1
          s_lshl_b32 s{sB}, s{sB}, 4
          s_add_u32 s{sA}, s{sA}, s{sB}
          buffer_load_ushort v{VX}, v{tD}, {sr(S_M0, 4)}, s{sA} offen
          buffer_load_ushort v{VX + 1}, v{tD}, {sr(S_M0, 4)}, s{sA} offen offset:32""")
    e(f"""s_lshl_b32 s{sA}, s{S_WAVE}, 8
          s_add_u32 s{sA}, s{sA}, {L_T}
          v_mul_u32_u24 v{t2}, {T_PITCH}, v{t0}
          v_lshl_add_u32 v{t2}, v{t1}, 3, v{t2}
          v_add_u32 v{vTw}, s{sA}, v{t2}
          v_and_b32 v{t3}, 3, v{lane}
          v_mul_u32_u24 v{t2}, {T_PITCH}, v{t3}
          v_lshrrev_b32 v{t3}, 5, v{lane}
          v_lshl_add_u32 v{t2}, v{t3}, 7, v{t2}
          v_bfe_u32 v{t3}, v{lane}, 2, 3
          v_lshl_add_u32 v{t2}, v{t3}, 3, v{t2}
          v_add_u32 v{vTr}, {L_T}, v{t2}
          v_lshlrev_b32 v{t2}, 9, v{t0}
          v_lshl_add_u32 v{t2}, v{t1}, 4, v{t2}
          v_add_u32 v{vKXr}, {L_KX}, v{t2}""")
    e(f"""s_lshl_b32 s{sA}, s{S_WAVE}, 9
          s_add_u32 s{sA}, s{sA}, {L_OB}
          v_lshrrev_b32 v{t2}, 5, v{lane}
          v_lshlrev_b32 v{t2}, 8, v{t2}
          v_and_b32 v{t3}, 16, v{lane}
          v_add_u32 v{t2}, v{t2}, v{t3}
          v_and_b32 v{t3}, 12, v{lane}
          v_lshl_add_u32 v{t2}, v{t3}, 4, v{t2}
          v_and_b32 v{t3}, 1, v{lane}
          v_lshl_add_u32 v{t2}, v{t3}, 5, v{t2}
          v_add_u32 v{t2}, s{sA}, v{t2}
          v_and_b32 v{t3}, 2, v{lane}
          v_lshlrev_b32 v{tA}, 3, v{t3}
          v_xor_b32 v{t2}, v{t2}, v{tA}
          v_lshlrev_b32 v{t3}, 12, v{t3}
          v_sub_u32 v{vOw}, v{t2}, v{t3}
          s_add_u32 s{sA}, s{sLw}, {L_WL}
          v_add_u32 v{vWL0}, s{sA}, v{vL16}
          v_add_u32 v{vWL1}, 0x10000, v{vWL0}""")
    e(f"""v_and_b32 v{t2}, 1, v{lane}
          v_cmp_ne_u32 vcc, 0, v{t2}
          v_mov_b32 v{t2}, 0x4444
          v_mov_b32 v{t3}, 0xeeee
          v_cndmask_b32 v{vIdx}, v{t2}, v{t3}, vcc
          v_mov_b32 v{t2}, 0x3f80
          v_mov_b32 v{t3}, 0x3f800000
          v_cndmask_b32 v{vSelC}, v{t2}, v{t3}, vcc
          v_lshrrev_b32 v{t2}, 1, v{t1}""")
    for j in range(4):
        e(f"v_cmp_eq_u32 {sr(sSel + 2 * j, 2)}, {j}, v{t2}")
    e(f"""v_lshlrev_b32 v{tA}, 13, v{t0}
          v_lshlrev_b32 v{t2}, 2, v{t0}
          v_xor_b32 v{t2}, v{t2}, v{t1}
          v_lshl_add_u32 v{tA}, v{t2}, 4, v{tA}""")
    e(f"""v_bfe_u32 v{t2}, v{lane}, 2, 1
          v_lshlrev_b32 v{tB}, 12, v{t2}
          v_bfe_u32 v{t2}, v{lane}, 5, 1
          v_lshl_add_u32 v{tB}, v{t2}, 10, v{tB}
          v_bfe_u32 v{t2}, v{lane}, 3, 1
          v_lshl_add_u32 v{tB}, v{t2}, 9, v{tB}
          v_bfe_u32 v{t2}, v{lane}, 4, 1
          v_lshl_add_u32 v{tB}, v{t2}, 8, v{tB}
          v_and_b32 v{t2}, 3, v{lane}
          v_lshl_add_u32 v{tB}, v{t2}, 3, v{tB}
          v_bfe_u32 v{t3}, v{tB}, 8, 2
          v_xor_b32 v{t3}, s{S_WAVE}, v{t3}
          v_lshl_add_u32 v{tB}, v{t3}, 6, v{tB}""")
    e(f"""v_lshrrev_b32 v{t3}, 2, v{lane}
          v_lshlrev_b32 v{tC}, 10, v{t3}
          v_lshl_add_u32 v{tC}, v{t2}, 3, v{tC}
          s_lshl_b32 s{sA}, s{S_WAVE}, 8
          v_add_u32 v{tC}, s{sA}, v{tC}
          v_and_b32 v{t3}, 7, v{t3}
          v_lshl_add_u32 v{tC}, v{t3}, 5, v{tC}""")
    e(f"""s_lshl_b32 s{sA}, s{S_WAVE}, 11
          s_lshl_b32 s{sB}, s{h}, 13
          s_add_u32 s{sPbaseL}, s{sA}, s{sB}
          s_add_u32 s{sPbaseL}, s{sPbaseL}, {WS_P}
          s_lshl_b32 s{sA}, s{S_WAVE}, 16
          s_lshl_b32 s{sB}, s{h}, 6
          s_add_u32 s{sPbaseS}, s{sA}, s{sB}
          s_add_u32 s{sPbaseS}, s{sPbaseS}, {WS_P}
          s_lshl_b32 s{sA}, s{S_EC}, 18
          s_add_u32 s{sPbaseS}, s{sPbaseS}, s{sA}
          s_add_u32 s{sPbaseL}, s{sPbaseL}, s{sA}
          s_lshl_b32 s{sMb}, s{S_EC}, 15
          s_add_u32 s{sMb}, s{sMb}, {WS_M}
          s_cmp_eq_u32 s{S_EC}, 0
          s_cselect_b32 s{sStep}, {NE}, 0""")
    e(f"""s_and_b32 s{sA}, s{S_WAVE}, 1
          s_lshl_b32 s{sMbaseS}, s{sA}, 12
          s_and_b32 s{sA}, s{h}, 24
          s_lshl_b32 s{sA}, s{sA}, 7
          s_add_u32 s{sMbaseS}, s{sMbaseS}, s{sA}
          s_and_b32 s{sA}, s{h}, 1
          s_lshl_b32 s{sA}, s{sA}, 9
          s_add_u32 s{sMbaseS}, s{sMbaseS}, s{sA}
          s_lshr_b32 s{sA}, s{S_WAVE}, 1
          s_lshl_b32 s{sA}, s{sA}, 8
          s_add_u32 s{sMbaseS}, s{sMbaseS}, s{sA}
          s_and_b32 s{sA}, s{h}, 6
          s_lshl_b32 s{sA}, s{sA}, 5
          s_add_u32 s{sMbaseS}, s{sMbaseS}, s{sA}
          s_add_u32 s{sMbaseS}, s{sMbaseS}, s{sMb}""")
    e(f"""s_mul_i32 s{sKV}, s{h}, {64 * UNIT}
          s_lshl_b32 s{sA}, s{S_WAVE}, 11
          s_add_u32 s{sKV}, s{sKV}, s{sA}
          s_add_u32 s{sKV}, s{sKV}, {WS_QKV + 8192}
          s_lshl_b32 s{sExp}, s{h}, 18
          s_lshl_b32 s{sA}, s{S_WAVE}, 10
          s_add_u32 s{sExp}, s{sExp}, s{sA}
          s_add_u32 s{sExp}, s{sExp}, {WS_EXP}
          s_lshl_b32 s{sFl}, s{h}, 8
          s_add_u32 s{sFl}, s{sFl}, {F_QKV}
          s_lshl_b32 s{sFch}, s{h}, 7
          s_lshl_b32 s{sA}, s{S_WAVE}, 2
          s_add_u32 s{sFch}, s{sFch}, s{sA}
          s_add_u32 s{sFch}, s{sFch}, {F_CH}
          s_mov_b32 s{sC}, 0x3e0293ee
          s_lshl_b32 s{sKl}, s{S_WAVE}, 11
          s_add_u32 s{sKl}, s{sKl}, {L_KX}
          s_mul_i32 s{sA}, s{sStep}, {UNIT}
          s_add_u32 s{sKV}, s{sKV}, s{sA}
          s_mov_b32 s{sOK}, 1""")
    e(f"""s_and_b32 s{sA}, s{sStep}, 1
          v_mov_b32 v{VX + 4}, s{sA}
          v_mov_b32 v{VX + 5}, s{sA}
          v_mov_b32 v{VX + 6}, s{sA}
          v_mov_b32 v{VX + 7}, s{sA}
          v_mov_b32 v{VX + 2}, -1
          s_add_u32 s{sB}, s{sMbaseS}, 8192
          buffer_store_dwordx4 {vr(VX + 4, 4)}, v{vL16}, {W}, s{sPbaseL} offen sc1
          buffer_store_dwordx4 {vr(VX + 4, 4)}, v{vL16}, {W}, s{sPbaseL} offen offset:1024 sc1
          buffer_store_dword v{VX + 2}, v{vMst}, {W}, s{sB} offen sc1""")
    if cfg.get('sdiag'):
        e("s_memrealtime s[20:21]\n s_waitcnt lgkmcnt(0)")
    confirm_barrier(e, 'ch')
    if cfg.get('sdiag'):
        e("s_memrealtime s[22:23]\n s_waitcnt lgkmcnt(0)")
    LA = cfg.get('la', 0)
    if LA:
        assert not NE and not cfg.get('sdiag')
        e(f"""v_bfe_u32 v{t2}, v{lane}, 3, 2
              v_lshlrev_b32 v{tD}, 13, v{t2}
              v_and_b32 v{t2}, 7, v{lane}
              v_lshl_add_u32 v{tD}, v{t2}, 7, v{tD}
              s_and_b32 s24, s{h}, 3
              s_lshl_b32 s24, s24, 2
              s_add_u32 s24, s24, s{S_WAVE}
              s_lshl_b32 s24, s24, 15
              s_lshr_b32 s{sA}, s{h}, 2
              s_lshl_b32 s{sA}, s{sA}, 10
              s_add_u32 s24, s24, s{sA}""")
        for r in range(6, 6 + LA):
            ahead(r)
    parked = STREAM[14:16] + STREAM[:10]
    for r in range(32):
        m, x, Q = chunks[r]
        if marks[r] in e.vm:
            e.wait(vm=len(e.vm) - 1 - e.vm.index(marks[r]))
        e.wait(lgkm=0)
        e("s_barrier")
        if cfg.get('sdiag') and r in (0, 8, 16, 24, 31):
            e(f"s_memrealtime {sr({0: 24, 8: 26, 16: 28, 24: 36, 31: 40}[r], 2)}\n s_waitcnt lgkmcnt(0)")
        if r == 6:
            e.comment("publish this wave's piece of mem0 in slot 0 (and arm slot 2)")
            e(f"""v_lshl_or_b32 v{VX}, v{VX + 1}, 16, v{VX}
                  v_min_u32 v{VX}, -2, v{VX}
                  v_cndmask_b32 v{VX}, v{VX}, -1, {sr(sArm, 2)}
                  s_cmp_lg_u32 s{sStep}, 0
                  s_cselect_b32 s{sA}, -1, 0
                  v_or_b32 v{VX}, s{sA}, v{VX}
                  buffer_store_dword v{VX}, v{vMst}, {W}, s{sMbaseS} offen sc1""")
        if r == 12:
            e.comment("every wave's arming stores are complete: count this member as armed")
            e(f"""s_cmp_lg_u32 s{S_WAVE}, 0
                  s_cbranch_scc1 L_cs_in
                  s_sub_u32 s{sA}, s{S_EC}, 1
                  s_and_b32 s{sA}, s{sA}, s{S_XCC}
                  s_mov_b32 s{sB}, 0x10000
                  s_cselect_b32 s{sA}, 0x1010000, s{sB}
                  v_mov_b32 v{t0}, s{sA}
                  s_mov_b64 exec, 1
                  buffer_atomic_add v{t0}, off, {sr(S_DBG, 4)}, 0 offset:{D_INIT}
                  s_mov_b64 exec, -1""")
            e.vm.pop()
            e.label("L_cs_in")
        if r + DD < 32 and r + DD not in marks:
            dma(r + DD)
        if LA and r + 6 + LA < 32:
            ahead(r + 6 + LA)
        if r == 8:
            for op in STREAM[10:14]:
                wl_write(e, op, PARK[op])
            e.wait(lgkm=0)
        if r == cfg.get('r1', 16):
            e(f"buffer_load_dword v{PM + 1}, off, {sr(S_DBG, 4)}, 0 offset:{D_INIT} sc1")
        if r == cfg.get('r2', 23):
            e(f"""v_readfirstlane_b32 s{sNan}, v{PM + 1}
                  buffer_load_dword v{PM + 2}, v{PM + 3}, {W}, s{sFl} offen sc1""")
            e(f"""s_add_u32 m0, s{sLw}, {L_KX + 8192}
                  s_lshr_b32 m0, m0, 1
                  s_add_u32 m0, m0, {(L_KX + 8192) // 2}
                  s_lshl_b32 s{sB}, s{h}, 10
                  s_add_u32 s{sB}, s{sB}, s{sMb}
                  buffer_load_dwordx4 v{vL16}, {W}, s{sPbaseL} offen sc1 lds
                  buffer_load_dwordx4 v{vL16}, {W}, s{sPbaseL} offen offset:1024 sc1 lds
                  buffer_load_dwordx4 v{vL16}, {W}, s{sB} offen sc1 lds""")
        if r == cfg.get('r3', 30):
            e(f"""v_cmp_ne_u32 {sr(sFm, 2)}, 0, v{PM + 2}
                  s_lshr_b32 s{sOK}, s{sFm}, s{sStep}
                  s_and_b32 s{sOK}, s{sOK}, 3
                  s_cmp_eq_u32 s{sOK}, 3
                  s_cselect_b32 s{sOK}, 1, 0
                  s_and_b32 s{sA}, s{sNan}, 0xffffff
                  s_cmp_eq_u32 s{sA}, {ARMED}
                  s_cselect_b32 s{sOK}, s{sOK}, 0""")
            kx_dma(e, L_KX)
            e(f"""s_add_u32 m0, m0, 8192
                  s_add_u32 s{sA}, s{sKV}, 8192
                  buffer_load_dwordx4 v{vL16}, {W}, s{sA} offen sc1 lds
                  buffer_load_dwordx4 v{vL16}, {W}, s{sA} offen offset:1024 sc1 lds""")
        if r == cfg.get('rt', 27):
            e.comment("the last exports are recognised by their data: fill their slots with a pattern no export holds")
            for j in range(4):
                e(f"v_mov_b32 v{VX + j}, {SENT1}")
            for sg in range(64 - NTAIL, 64):
                e(f"s_add_u32 s{sA}, s{sExp}, {sg * 4096}\n buffer_store_dwordx4 {vr(VX, 4)}, v{vL16}, {W}, s{sA} offen sc1")
        if r == 29:
            e(f"buffer_load_dword v{VX + 7}, v{PM + 3}, {W}, s{sFl} offen sc1")
        if r >= 26:
            for op in parked[2 * (r - 26):2 * (r - 26) + 2]:
                wl_write(e, op, PARK[op])
        e(f"v_add_u32 v{t1}, {ring[r % 7]}, v{tC if m == 'o' else tB}")
        if m == 'o':
            for t in range(8):
                op = ('o', t, x)
                kind, base = RES[op] if op in RES else ('v', PARK[op])
                e(f"v_xor_b32 v{t3}, {t * 32}, v{t1}\n ds_read_b64_tr_b16 {vr(base + 2 * Q, 2, kind)}, v{t3}")
        else:
            for w in range(1, 4):
                e(f"s_cmp_eq_u32 s{S_WAVE}, {w}\n s_cbranch_scc1 L_cs{r}_{w}")
            st0 = e.state()
            for w in range(4):
                if w:
                    e.label(f"L_cs{r}_{w}"); e.set_state(st0)
                for ft in range(2):
                    op = (m, ft, 2 * ((x & 3) ^ w) + (x >> 2))
                    kind, base = RES[op] if op in RES else ('v', PARK[op])
                    for Q in range(4):
                        e(f"ds_read_b64_tr_b16 {vr(base + 2 * Q, 2, kind)}, v{t1} offset:{(32 * (Q & 1) + 8 * (Q >> 1)) * 256 + ft * 32}")
                if w < 3:
                    e(f"s_branch L_cs{r}_e")
            e.label(f"L_cs{r}_e")
    e.wait(lgkm=0)
    if cfg.get('sdiag'):
        e(f"""s_lshl_b32 s{sA}, s{S_ROLE}, 2
              s_add_u32 s{sA}, s{sA}, s{S_WAVE}
              s_lshl_b32 s{sA}, s{sA}, 6
              s_add_u32 s{sA}, s{sA}, 0x6400000""")
        for n, r in enumerate([94, 20, 22, 24, 26, 28, 36, 40, sOK]):
            e(f"v_mov_b32 v{PM}, s{r}\n buffer_store_dword v{PM}, off, {W}, s{sA} offset:{4 * n}")
    if cfg.get('diag'):
        e("s_memrealtime s[82:83]\n s_waitcnt lgkmcnt(0)")
    e(f"""s_cmp_lg_u32 s{sOK}, 0
          s_cbranch_scc1 L_cs_ready
          s_and_b32 s{sA}, s{sNan}, 0xffffff
          s_cmp_eq_u32 s{sA}, {ARMED}
          s_cbranch_scc1 L_cs_p3
          L_cs_p1:
          s_sleep {cfg.get('sp1', 8)}
          buffer_load_dword v{t0}, off, {sr(S_DBG, 4)}, 0 offset:{D_INIT} sc1
          s_sub_u32 s{S_SPIN}, s{S_SPIN}, 1
          s_cbranch_scc1 L_end
          v_readfirstlane_b32 s{sNan}, v{t0}
          s_and_b32 s{sA}, s{sNan}, 0xffffff
          s_cmp_eq_u32 s{sA}, {ARMED}
          s_cbranch_scc0 L_cs_p1
          {'s_memrealtime s[80:81]' if cfg.get('diag') else ''}
          L_cs_p2:
          s_sleep {cfg.get('sp2', 4)}
          buffer_load_dword v{VX + 7}, v{PM + 3}, {W}, s{sFl} offen sc1
          s_sub_u32 s{S_SPIN}, s{S_SPIN}, 1
          s_cbranch_scc1 L_end
          L_cs_p3:
          s_waitcnt vmcnt(0)
          v_cmp_ne_u32 {sr(sFm, 2)}, 0, v{VX + 7}
          s_lshr_b32 s{sA}, s{sFm}, s{sStep}
          s_and_b32 s{sA}, s{sA}, 3
          s_cmp_eq_u32 s{sA}, 3
          s_cbranch_scc0 L_cs_p2""")
    kx_dma(e, L_KX)
    e.label("L_cs_ready")
    e(f"""v_mov_b32 v{PM + 1}, 0
          v_mov_b32 v{PM + 2}, 0
          s_add_u32 s{sF1}, s{sStep}, 1
          s_cmp_eq_u32 s{S_EC}, 0
          s_cselect_b32 s{sEnd}, 255, {NE}
          s_lshl_b32 s{sA}, s{sStep}, 12
          s_add_u32 s{sExp}, s{sExp}, s{sA}
          s_and_b32 s{sA}, s{sStep}, 2
          s_lshl_b32 s{sA}, s{sA}, 13
          v_xor_b32 v{vMst}, s{sA}, v{vMst}
          s_mov_b32 s{sTog}, 0""")
    e("\n".join(scalar_lines() + prep_a_lines()))
    for b in range(2):
        e(mload(b))
    if cfg.get('se', 0):
        e(mspare())
    e("\n".join(prep_b_lines()))
    dbg_max(e, cfg, 11, v=PM, mask=1)
    if cfg.get('holdto'):
        e(f"""L_hold:
              s_memrealtime s[92:93]
              s_waitcnt lgkmcnt(0)
              s_sub_u32 s92, s92, s94
              s_cmp_lt_u32 s92, {cfg['holdto']}
              s_cbranch_scc1 L_hold""")
    e("s_waitcnt vmcnt(0) lgkmcnt(0)\n s_barrier")
    if cfg.get('diag'):
        e.raw(f"  s_memtime {sr(sDbgT + 6, 2)}\n  s_memrealtime {sr(sDbgT + 10, 2)}\n  s_mov_b32 s{sDbgT + 5}, 0\n  s_mov_b32 s12, 0\n  s_mov_b32 s13, 0\n  s_mov_b32 s14, 0\n  s_mov_b32 s15, 0\n  s_waitcnt lgkmcnt(0)")
    e(f"""s_lshr_b32 s{sA}, s{sNan}, 24
          s_mov_b32 s{sNan}, 0
          s_or_b32 s{sA}, s{sA}, s{S_EC}
          s_cbranch_scc1 L_{ent}_s""")
    e(f"s_branch L_{ent}_s" if cfg.get('force_slow') else f"s_branch L_{ent}_f")


def chain_loop(e, cfg, sfx, st):
    acc = {('q', 0): ACC, ('q', 1): ACC + 4, ('k', 0): ACC + 8, ('k', 1): ACC + 12, ('v', 0): ACC + 16, ('v', 1): ACC + 20}
    loc = dict(RES)
    for o in range(10):
        loc[STREAM[o]] = ('v', R1[o])
    for o in range(6):
        loc[STREAM[10 + o]] = ('v', WO_SB[o])
    diag = cfg.get('diag')

    def stamp(n):
        tr = cfg.get('trace')
        if tr and n in tr and sfx == 'f':
            e.raw(f"  s_memtime {sr(TRS[tr.index(n)], 2)}")

    def trace_out(where, TR):
        if cfg.get('trace') and cfg.get('tpos', 'mid') == where and sfx == 'f':
            e(f"""s_memtime s[32:33]
                  s_memrealtime s[34:35]
                  s_lshl_b32 s40, s{S_ROLE}, 2
                  s_add_u32 s40, s40, s{S_WAVE}
                  s_lshl_b32 s40, s40, 6
                  s_add_u32 s40, s40, s{sStep}
                  s_lshl_b32 s40, s40, 5
                  s_add_u32 s40, s40, 0x6200000
                  s_waitcnt lgkmcnt(0)""")
            for j in range(8):
                e(f"v_mov_b32 v{TR + j}, s{TRS[j]}")
            e(f"""s_mov_b64 exec, 1
                  buffer_store_dwordx4 {vr(TR, 4)}, off, {W}, s40
                  buffer_store_dwordx4 {vr(TR + 4, 4)}, off, {W}, s40 offset:16
                  s_mov_b64 exec, -1""")

    def P(m, ft, i):
        k, b = loc[(m, ft, i)]
        return f"v_smfmac_f32_16x16x64_bf16 {vr(acc[(m, ft)], 4)}, {vr(MA + 4 * i, 4)}, {vr(b, 8, k)}, v{vIdx}"

    def post(a, dst):
        return [f"v_add_f32 v{a}, v{a}, v{a + 1}", f"v_add_f32 v{a + 2}, v{a + 2}, v{a + 3}",
                f"v_cvt_pk_bf16_f32 v{dst}, v{a}, v{a + 2}"]

    def xread(kb):
        return [f"ds_read_b64_tr_b16 {vr(X + 4 * kb, 2)}, v{vTr} offset:{kb * 256}",
                f"ds_read_b64_tr_b16 {vr(X + 4 * kb + 2, 2)}, v{vTr} offset:{kb * 256 + 64}"]

    kx_dst = [KXR, SPARE, KXR + 4, SPARE + 4, KXR + 8, KXR, KXR + 12, KXR + 4]

    def kxread(n):
        return f"ds_read_b128 {vr(kx_dst[n], 4)}, v{vKXr} offset:{(n >> 1) * 2048 + (n & 1) * 256}"

    Sx = [ACC, ACC + 4]
    Sm, Px = ACC + 8, ACC + 12

    def smx(n):
        kb, t = n >> 1, n & 1
        c = '0' if kb == 0 else vr(Sx[t], 4)
        return f"v_mfma_f32_16x16x32_bf16 {vr(Sx[t], 4)}, {vr(kx_dst[n], 4)}, {vr(X + 4 * kb, 4)}, {c}"

    def smm(kb):
        c = '0' if kb == 0 else vr(Sm, 4)
        return f"v_mfma_f32_16x16x32_bf16 {vr(Sm, 4)}, {vr(X + 4 * kb, 4)}, {vr(X + 4 * kb, 4)}, {c}"

    ad = 0
    ldH = lambda k: (lambda: e.loose(f"buffer_load_dword v{HD + k}, v{HA}, {W}, s{sHl} offen sc1"))
    ldV = [f"buffer_load_dwordx4 {vr(VX, 4)}, v{vKXr}, {W}, s{sVx} offen sc1",
           f"buffer_load_dwordx4 {vr(VX + 4, 4)}, v{vKXr}, {W}, s{sVx} offen offset:256 sc1"]
    ldK = [f"buffer_load_dwordx4 v{vL16}, {W}, s{sKV} offen sc1 lds",
           f"buffer_load_dwordx4 v{vL16}, {W}, s{sKV} offen offset:1024 sc1 lds"]
    touch = f"buffer_load_dword v{PM + 3}, {W}, s{sVt} offen sc1 lds"
    export = f"buffer_store_dwordx4 {vr(EX, 4)}, v{vL16}, {W}, s{sExp} offen sc1"
    progress = f"s_mov_b64 exec, 1\n buffer_store_dword v{TMP}, off, {W}, s{sFch} sc1\n s_mov_b64 exec, -1"
    ldF = f"buffer_load_dword v{TMP + 3}, v{TMP + 3}, {W}, s{sFl} offen sc1"
    if cfg.get('noexp'):
        export = progress = "s_nop 0"
    rf = sum([wl_lines(STREAM[o], R1[o]) for o in range(8, 10)], [])
    wo = sum([wl_lines(STREAM[10 + o], WO_SB[o]) for o in range(6)], [])
    q0p, q1p, k0p, k1p = post(ACC, ACC + 1), post(ACC + 4, ACC + 5), post(ACC + 8, EX), post(ACC + 12, EX + 1)
    v0p, v1p = post(ACC + 16, EX + 2), post(ACC + 20, EX + 3)
    m0, m1 = TMP, TMP + 1
    C0 = PM
    zero = [f"v_mov_b64 {vr(MA + j, 2)}, 0" for j in range(0, 32, 2)]
    st_ = lambda n: (lambda: stamp(n))
    mx = lambda d, a, b, c_: f"v_max3_f32 v{d}, v{a}, v{b}, v{c_}"

    def check(blocks):
        r = [MA + 4 * b + j for b in blocks for j in range(4)]
        out = [f"v_max3_u32 v{C0}, v{r[0]}, v{r[1]}, v{r[2]}"]
        k = 3
        while k + 1 < len(r):
            out.append(f"v_max3_u32 v{C0}, v{C0}, v{r[k]}, v{r[k + 1]}"); k += 2
        out.append(f"v_max_u32 v{C0}, v{C0}, v{r[k]}")
        out.append(f"v_cmp_eq_u32 vcc, -1, v{C0}")
        return out

    def mread(i):
        return f"ds_read_b128 {vr(MA + 4 * i, 4)}, v{TMP + (i >> 1)} offset:{(i & 1) * 4096}"

    e.slot_no = 0
    e.slot_hook = lambda n: stamp(100 + n)
    e.forget()
    e.raw(".p2align 8\n" + "  s_nop 0\n" * cfg.get('ph', 8))
    e.label(f"L_step_{sfx}")
    ic = cfg.get('ic', 0)
    e3 = cfg.get('e3', 0) if ic else 0
    if not ic:
        e("s_waitcnt vmcnt(2)")
    e.label(f"L_chkE_{sfx}")
    xe = 0
    so = cfg.get('so', 1)
    xr = xread(0) + xread(1) + xread(2) + xread(3)
    ba, bb, bc = cfg.get('ba', 0), cfg.get('bb', 1), cfg.get('bc', 1)
    xo = cfg.get('xo', 0)
    lastsp = cfg.get('lastsp', 1)
    spec = cfg.get('se', 0)
    ce_ = check((0,))
    specb = []
    wrE = f"ds_write_b128 v{vMw}, {vr(MA, 4)}"
    if ic:
        e.lgkm = [parse(wrE)]
    elif spec:
        e(f"ds_write_b128 v{vMw}, {vr(MA, 4)}\n L_okE_{sfx}:")
    else:
        e("\n".join(ce_))
        e(f"""ds_write_b128 v{vMw}, {vr(MA, 4)}
              s_cbranch_vccnz L_retE_{sfx}""")
    stamp(0)
    cl_ = check((1,))
    z = lambda: zero.pop(0)
    lw = lambda n: (lambda: e.wait(lgkm=n))
    seq = [
        (P('q', 0, 0), [] if ic else [lambda: e.loose(mload(1))] + ([ce_[0]] if spec else [])),
        (P('q', 1, 0), [ldV[1], ce_[1], ce_[2]] if spec else [ldV[0]]),
        (P('k', 0, 0), [f"s_cbranch_vccnz L_retE_{sfx}" if spec else ldV[1], e.barrier, mread(2), mread(4)]),
        (P('k', 1, 0), [mread(6), f"s_waitcnt vmcnt({3 - spec + e3})", cl_[0]]),
        (P('v', 0, 0), [e.barrier, cl_[1]] if ba == 1 else [cl_[1]]),
        (P('v', 1, 0), [cl_[2], f"ds_write_b128 v{vMw}, {vr(MA + 4, 4)} offset:4096", f"s_cbranch_vccnz L_retL_{sfx}", f"L_okL_{sfx}:"]),
        (P('q', 0, 1), [st_(1)] + ([mread(2), mread(4)] if ba == 1 else [lw(1), "s_barrier"] if ba == 2 else [])),
        (P('q', 1, 1), [ldV[0]] if spec else []),
        (P('k', 0, 1), [mread(6), rf[0]] if ba == 2 else [rf[0]]),
        (P('k', 1, 1), [rf[1]] + ([] if ba else [lw(3)])),
        (P('q', 0, 2), [rf[2]]),
        (P('q', 1, 2), [e.lds_writes_done]),
        (P('k', 0, 2), [e.barrier] if bb else [e.barrier, ldK[0], mread(3)]),
        (P('k', 1, 2), [ldK[0], mread(3)] if bb else [mread(5)]),
        (P('q', 0, 4), [mread(5)] if bb else [mread(7), f"v_lshrrev_b32 v{TMP + 3}, 2, v{vL16}"]),
        (P('q', 1, 4), [mread(7), f"v_lshrrev_b32 v{TMP + 3}, 2, v{vL16}"] if bb else [ldK[1], f"s_movk_i32 m0, {L_DUMMY}"]),
        (P('k', 0, 4), [ldK[1], f"s_movk_i32 m0, {L_DUMMY}"] if bb else [rf[3]]),
        (P('k', 1, 4), [rf[3]] if bb else [touch]),
        (P('q', 0, 6), [kxread(0)] + ([touch] if bb else [])),
        (P('q', 1, 6), [kxread(2), ldF]),
        (P('k', 0, 6), ([] if xo else [export]) + [lambda: trace_out('mid', SPARE)]),
        (P('k', 1, 6), [kxread(4), st_(2), lw(3)]),
        (P('q', 0, 3), [kxread(6)]),
        (P('q', 0, 5), [kxread(1)]),
        (P('q', 0, 7), [kxread(3)]),
        (P('q', 1, 3), [lambda: e(f"s_waitcnt vmcnt({len(e.vm) - [x.text for x in e.vm].index(ldK[0])})"), "s_nop 0"]),
        (P('q', 1, 5), ["s_nop 1"] if xo else [progress]),
        (P('q', 1, 7), ["s_nop 0", q0p[0]]),
        (P('k', 0, 3), ["s_nop 0", q0p[1]]),
        (P('k', 0, 5), ["s_nop 0", q0p[2]]),
        (P('k', 0, 7), [q1p[0]]),
        (P('k', 1, 3), ["s_nop 0", q1p[1]]),
        (P('k', 1, 5), ["s_nop 0", q1p[2]]),
        (P('k', 1, 7), [f"ds_write2_b32 v{vTw}, v{ACC + 1}, v{ACC + 5} offset0:0 offset1:32", st_(3), k0p[0]]),
        (P('v', 0, 1), ["s_nop 0", k0p[1]]),
        (P('v', 1, 1), ["s_nop 0", k0p[2], k1p[0]]),
        (P('v', 0, 2), [k1p[1], k1p[2]]),
        (P('v', 1, 2), [f"ds_write2_b32 v{vTw}, v{EX}, v{EX + 1} offset0:1 offset1:33", z()]),
        (P('v', 0, 3), [z()]),
        (P('v', 1, 3), [z()]),
        (P('v', 0, 4), [z()]),
        (P('v', 1, 4), [e.lds_writes_done, z()]),
    ] + ([
        (P('v', 0, 5), [e.barrier]),
        (P('v', 1, 5), xread(0) + [z()]),
        (P('v', 0, 6), [xr[2], z()]),
        (P('v', 0, 7), [xr[3], z()]),
        (P('v', 1, 6), [xr[4], z()]),
        (P('v', 1, 7), [xr[5], st_(4), lw(4), z()]),
        (smx(0), [xr[6], z()]),
        (smx(1), [xr[7], z()]),
        (smm(0), [lw(4), v0p[0]]),
        (smx(2), [kxread(5), v0p[1]]),
        (smx(3), [kxread(7), v0p[2]]),
        (smm(1), [lw(2), v1p[0]]),
        (smx(4), [v1p[1], v1p[2]]),
        (smx(6), [z(), z()]),
        (smm(2), [z(), z()]),
        (smm(3), [lw(0)] + ([f"v_exp_f32 v{m1}, v{vIdx}"] if cfg.get('warm', 1) == 1 else ["s_nop 1"])),
        (smx(5), [mx(m0, Sx[0], Sx[0] + 1, Sx[0] + 2)]),
    ] if so else [
        (P('v', 0, 5), [e.barrier] + ([] if bc else xread(0))),
        (P('v', 1, 5), xread(1 - bc) + [z()]),
        (P('v', 0, 6), xread(2 - bc) + [z()]),
        (P('v', 0, 7), xread(3 - bc) + [z()]),
        (P('v', 1, 6), (xread(3) if bc else []) + ([] if lastsp else [f"s_cmp_eq_u32 s{sStep}, 63"]) + [z()]),
        (P('v', 1, 7), [st_(4), lw(6 if bc else 4), z()]),
        (smx(0), [z(), z()]),
        (smx(2), [kxread(5), lw(1)]),
        (smx(4), [kxread(7), v0p[0]]),
        (smx(6), [v0p[1], v0p[2]]),
        (smm(0), [v1p[0], v1p[1]]),
        (smm(1), [v1p[2], z()]),
        (smm(2), ([] if lastsp else ["s_cbranch_scc1 L_final"]) + [mx(m0, Sx[0], Sx[0] + 1, Sx[0] + 2)]),
        (smm(3), [z(), z()]),
        (smx(1), [lw(0), z()]),
        (smx(3), [f"v_exp_f32 v{m1}, v{vIdx}"] if cfg.get('warm', 1) == 1 else []),
        (smx(5), [mx(m0, m0, Sx[0] + 3, Sm + 2), f"v_max_f32 v{m0}, v{m0}, v{Sm + 3}"]),
    ]) + [
        (smx(7), [wo[0], f"s_add_u32 s{sStep}, s{sStep}, 1", wo[1], f"s_xor_b32 s{sTog}, s{sTog}, 0x2000", wo[2],
                  f"s_mov_b32 s{sG}, s{sG2}", wo[3], f"v_xor_b32 v{vKXr}, 0x2000, v{vKXr}"] if not so else
         [wo[0], f"s_add_u32 s{sStep}, s{sStep}, 1", wo[1], f"s_mov_b32 s{sG}, s{sG2}", wo[2], wo[3],
          mx(m0, m0, Sx[0] + 3, Sm + 2), f"v_max_f32 v{m0}, v{m0}, v{Sm + 3}"]),
    ]
    e.slots(seq)
    assert not zero
    e(f"""{mx(m0, m0, Sx[1], Sx[1] + 1)}
          {mx(m0, m0, Sx[1] + 2, Sx[1] + 3)}
          v_mov_b32 v{m1}, v{m0}
          {f's_xor_b32 s{sTog}, s{sTog}, 0x2000' if so else ''}
          {f'v_xor_b32 v{vKXr}, 0x2000, v{vKXr}' if so else ''}
          v_permlane32_swap_b32 v{m0}, v{m1}
          v_max_f32 v{m0}, v{m0}, v{m1}
          v_mov_b32 v{m1}, v{m0}
          v_permlane16_swap_b32 v{m0}, v{m1}
          v_max_f32 v{m0}, v{m0}, v{m1}
          v_mul_f32 v{m0}, s{sC}, v{m0}""")
    for j in (0, 2, 4, 6, 10):
        e(f"v_pk_fma_f32 {vr(ACC + j, 2)}, {vr(ACC + j, 2)}, {sr(sC, 2)}, {vr(m0, 2)} op_sel_hi:[1,0,0] neg_lo:[0,0,1] neg_hi:[0,0,1]")
    for j in (0, 1, 2, 3, 4, 5, 6, 7, 10, 11):
        e(f"v_exp_f32 v{ACC + j}, v{ACC + j}")
    stamp(5)
    for j in range(4):
        e(f"v_cvt_pk_bf16_f32 v{Px + j}, v{ACC + 2 * j}, v{ACC + 2 * j + 1}")
    e(f"""v_cvt_pk_bf16_f32 v{PM}, v{Sm + 2}, v{Sm + 3}
          v_cvt_pk_bf16_f32 v{PM + 3}, v{Sm + 2}, v{Sm + 3}
          v_pk_add_f32 {vr(ACC, 2)}, {vr(ACC, 2)}, {vr(ACC + 2, 2)}
          v_pk_add_f32 {vr(ACC + 4, 2)}, {vr(ACC + 4, 2)}, {vr(ACC + 6, 2)}
          v_pk_add_f32 {vr(ACC, 2)}, {vr(ACC, 2)}, {vr(Sm + 2, 2)}
          v_pk_add_f32 {vr(m0, 2)}, {vr(ACC, 2)}, {vr(ACC + 4, 2)}""")
    O = SPARE
    e.slots([
        (f"v_mfma_f32_16x16x32_bf16 {vr(O, 4)}, {vr(VX, 4)}, {vr(Px, 4)}, 0",
         [f"v_add_f32 v{m0}, v{m0}, v{m1}", f"v_mov_b32 v{m1}, v{m0}"]),
        (f"v_mfma_f32_16x16x32_bf16 {vr(O + 4, 4)}, {vr(VX + 4, 4)}, {vr(Px, 4)}, 0",
         [f"v_permlane32_swap_b32 v{m0}, v{m1}"]),
        (f"v_mfma_f32_16x16x16_bf16 {vr(O, 4)}, {vr(EX + 2, 2)}, {vr(PM, 2)}, {vr(O, 4)}",
         [f"v_add_f32 v{m0}, v{m0}, v{m1}", f"v_mov_b32 v{m1}, v{m0}"]),
        (f"v_mfma_f32_16x16x16_bf16 {vr(O + 4, 4)}, {vr(EX + 2, 2)}, {vr(PM + 2, 2)}, {vr(O + 4, 4)}",
         [f"v_permlane16_swap_b32 v{m0}, v{m1}", f"v_add_f32 v{m0}, v{m0}, v{m1}", f"v_rcp_f32 v{m0}, v{m0}",
          ] + ([f"v_mov_b32 v{HV}, s{sStep}", f"v_lshlrev_b32 v{HS}, 3, v{vL16}"] if ad else [])),
    ])
    for j in range(0, 8, 2):
        e(f"v_pk_mul_f32 {vr(O + j, 2)}, {vr(O + j, 2)}, {vr(m0, 2)} op_sel_hi:[1,0]")
    OA = ACC + 16
    for j in range(4):
        e(f"v_cvt_pk_bf16_f32 v{O + j}, v{O + 2 * j}, v{O + 2 * j + 1}")
    e(f"ds_write_b128 v{vOw}, {vr(O, 4)}")
    if xo:
        e(export)
        e(f"v_mov_b32 v{TMP + 2}, s{sProg}")
        e(progress.replace(f"v{TMP},", f"v{TMP + 2},"))
    if ad:
        e.comment("progress marker for 8 members per wave (timing hint only)")
        e(f"""s_mov_b64 exec, 0xff
              buffer_store_dword v{HV}, v{HS}, {W}, s{sHs} offen {st}
              s_mov_b64 exec, -1
              v_bfe_u32 v{HA}, v{vL16}, 2, 7
              v_mov_b64 {vr(HD, 2)}, 0
              v_mov_b64 {vr(HD + 2, 2)}, 0""")
        stamp(15)
    e.barrier()
    e(f"""ds_read_b128 {vr(OA, 4)}, v{vL16} offset:{L_OB}
          ds_read_b128 {vr(OA + 4, 4)}, v{vL16} offset:{L_OB + 1024}""")
    hs = cfg.get('hs', (-1, 0, 3, 6))
    if ad and hs[0] == -1:
        ldH(0)()
    stamp(6)
    OUT = SPARE

    def pstore(c):
        return f"buffer_store_dwordx4 {vr(OUT + 4 * c, 4)}, v{vPst}, {W}, s{sPbaseS} offen offset:{c * 2048} {st}"

    tag = lambda j: f"v_and_or_b32 v{OUT + j}, v{OUT + j}, -2, s{sG}"
    seq = []
    for t in range(8):
        for kb in range(2):
            k, b = loc[('o', t, kb)]
            if t >= 2:
                p = post(MA + 4 * (t - 2), OUT + t - 2)
                fl = p[0:1] if kb == 0 else p[1:3]
                if kb == 0 and t % 2 == 1:
                    fl = fl + [tag(t - 3)]
            else:
                fl = ["s_nop 0"]
            n = 2 * t + kb
            if 1 <= n <= 8:
                fl = [wo[3 + n]] + fl
            if ad and n in hs:
                fl = [ldH(hs.index(n))] + [x for x in fl if x != "s_nop 0"]
            if kb == 0 and t == 6:
                fl = [pstore(0)] + fl
            seq.append((f"v_smfmac_f32_16x16x64_bf16 {vr(MA + 4 * t, 4)}, {vr(OA + 4 * kb, 4)}, {vr(b, 8, k)}, v{vIdx}", fl))
    if cfg.get('wd', 0):
        seq[1], seq[2] = (seq[2][0], seq[1][1]), (seq[1][0], seq[2][1] + ["s_nop 0"])
        seq[3] = (seq[3][0], seq[3][1] + ["s_nop 0"])
    e.slots(seq)
    PL, D, SEL, PL2 = MA + 8, MA + 16, MA + 20, MA + 24
    e("\n".join(post(MA + 24, OUT + 6) + [tag(6)]))
    e("\n".join(post(MA + 28, OUT + 7)))
    e(pstore(1))
    stamp(7)
    trace_out('late', MA)
    e(f"s_bitcmp1_b32 s{S_WAVE}, 0\n s_cbranch_scc1 L_x1_{sfx}")
    e.slot_hook = None
    st0 = e.state()
    ldP = [f"buffer_load_dwordx4 {vr(PL, 4)}, v{vL16}, {W}, s{sPbaseL} offen sc1",
           f"buffer_load_dwordx4 {vr(PL + 4, 4)}, v{vL16}, {W}, s{sPbaseL} offen offset:1024 sc1"]
    tP, dM, eM, gM = cfg.get('tP', (244, 388)), cfg.get('dM', (270, 150)), cfg.get('eM', 200), cfg.get('gM', (120, 116))
    if sfx == 's':
        tP, dM, gM = cfg.get('tPs', (900, 1100)), cfg.get('dMs', (900, 700)), cfg.get('gMs', (300, 300))
    for w in range(2):
        if w:
            e.raw(".p2align 6")
            e.label(f"L_x{w}_{sfx}"); e.set_state(st0)
        clk = [[12, 48][w]]
        pa = prep_a_lines()
        valu = [f"v_cndmask_b32 v{SEL + j}, 0, v{vSelC}, {sr(sSel + 2 * j, 2)}" for j in range(4)] + scalar_lines() + [l for l in pa if not l.startswith('ds_')]
        if diag:
            valu += [f"s_cmp_eq_u32 s{sStep}, 10", f"s_cselect_b32 s{sDbgT + 6}, s0, s{sDbgT + 6}"] + [f"s_cselect_b32 s{k}, 0, s{k}" for k in range(12, 16)]
        reads = [l for l in pa if l.startswith('ds_')]
        late_v = [l for l in pa if not l.startswith('ds_')]
        pool = [l for l in valu if l not in late_v]
        pool = [l for l in pool if not l.startswith('v_')] + [l for l in pool if l.startswith('v_')]
        merged = []
        for l in pool:
            if l.startswith('s_cselect'):
                merged[-1] += '\n' + l
            else:
                merged.append(l)
        pool = merged
        def until(t):
            while clk[0] + 4 <= t and pool:
                l = pool.pop(0); e(l); clk[0] += 4 * (1 + l.count('\n'))
            if clk[0] + 4 <= t:
                delay(e, t - clk[0]); clk[0] = t

        if ad:
            ev = [f"v_cmp_gt_u32 {sr(sHm + 2 * k, 2)}, s{sStep}, v{HD + k}" for k in range(4)] + [f"s_mov_b32 s{sCnt}, 0"]
            for k in range(4):
                ev += [f"s_cmp_lg_u64 {sr(sHm + 2 * k, 2)}, 0", f"s_addc_u32 s{sCnt}, s{sCnt}, 0"]
            if diag:
                ev += [f"s_add_u32 s15, s15, s{sCnt}"]
            ev += [f"s_mul_i32 s{sCnt}, s{sCnt}, {cfg.get('hm', 2)}"]
            until(tP[w] - 4 * len(ev) - 12)
            e("\n".join(ev))
            e(f"L_ad{w}_{sfx}:\n s_sub_u32 s{sCnt}, s{sCnt}, 1\n s_cbranch_scc0 L_ad{w}_{sfx}")
        else:
            until(tP[w])
        if sfx == 's' and cfg.get('ne', 0):
            assert not [l for l in pool if not l.startswith('v_')]
            e(f"""s_cmp_lg_u32 s{sStep}, s{sEnd}
                  s_cbranch_scc1 L_ho{w}
                  {export}
                  s_sub_u32 s{sMn2}, s{sMn2}, 0x8000
                  v_bfrev_b32 v{C0}, 2
                  v_cndmask_b32 v{vMst}, v{vMst}, v{C0}, {sr(sArm, 2)}
                  L_ho{w}:""")
        e.loose(ldP[0]); e.loose(ldP[1]); stamp(11)
        ldP2 = [x.replace(vr(PL, 4), vr(PL2, 4)).replace(vr(PL + 4, 4), vr(PL2 + 4, 4)) for x in ldP]
        need = scalar_lines()[:7]
        late_v = [l for l in pool if not l.startswith('v_') and l not in need and 's0' not in l] + late_v
        pool = [l for l in pool if l not in late_v]
        rest = reads + pool
        nsp = cfg.get('nsp', (10, 10))[w]
        e("\n".join(rest[:nsp]))
        if nsp is not None:
            delay(e, cfg.get('dP2', (60, 40))[w])
            e.loose(ldP2[0]); e.loose(ldP2[1])
        else:
            nsp = len(rest)
        spare = cfg.get('nsp', (10, 10))[w] is not None
        e("\n".join(rest[nsp:]))
        e(f"s_mov_b32 s{sNan}, 0")
        if diag:
            e.raw("  s_memtime s[0:1]")
        ny = 2 if spare else 0
        e(f"""s_waitcnt vmcnt({ny + 1})
              L_redP{w}_{sfx}:
              v_mfma_f32_16x16x32_bf16 {vr(D, 4)}, {vr(PL, 4)}, {vr(SEL, 4)}, 0
              s_waitcnt vmcnt({ny})
              v_mfma_f32_16x16x32_bf16 {vr(D, 4)}, {vr(PL + 4, 4)}, {vr(SEL, 4)}, {vr(D, 4)}
              v_xor_b32 v{C0}, s{sG}, v{PL}
              v_bitop3_b32 v{C0}, v{C0}, v{PL + 2}, s{sG} bitop3:0xf6
              v_bitop3_b32 v{C0}, v{C0}, v{PL + 4}, s{sG} bitop3:0xf6
              v_bitop3_b32 v{C0}, v{C0}, v{PL + 6}, s{sG} bitop3:0xf6
              v_and_b32 v{C0}, 1, v{C0}
              v_cmp_ne_u32 vcc, 0, v{C0}
              v_cmp_ne_u32 {sr(sFm, 2)}, 0, v{TMP + 3}
              {f's_cbranch_vccnz L_reP{w}_{sfx}' if not cfg.get('lb', 1) else ''}
              v_permlane32_swap_b32 v{D}, v{D + 2}
              v_permlane32_swap_b32 v{D + 1}, v{D + 3}
              v_add_f32 v{D}, v{D}, v{D + 2}
              v_add_f32 v{D + 1}, v{D + 1}, v{D + 3}
              {f's_cbranch_vccnz L_reP{w}_{sfx}' if cfg.get('lb', 1) else ''}
              v_permlane16_swap_b32 v{D}, v{D + 1}
              v_add_f32 v{D}, v{D}, v{D + 1}
              v_mov_b32_dpp v{D + 1}, v{D} quad_perm:[2,3,0,1] row_mask:0xf bank_mask:0xf
              v_cvt_pk_bf16_f32 v{D}, v{D}, v{D + 1}
              v_min_u32 v{D}, -2, v{D}
              v_cndmask_b32 v{VX + 4}, v{D}, -1, {sr(sArm, 2)}
              buffer_store_dword v{VX + 4}, v{vMst}, {W}, s{sMn2} offen {st}""")
        stamp(8)
        if sfx == 's' and cfg.get('ne', 0):
            e(f"s_cmp_eq_u32 s{sStep}, s{sEnd}\n s_cbranch_scc1 L_ec_done")
        pb = ["s_waitcnt vmcnt(1)"] + prep_b_lines()
        d = dM[w]
        if d >= 100 and cfg.get('pw', 0):
            e("\n".join(pb[1:-2])); d -= 72
            late_v = ["s_waitcnt vmcnt(2)"] + pb[-2:] + late_v; pb = []
        elif d >= 100:
            e("\n".join(pb)); d -= 100; pb = []
        delay(e, d)
        e.loose(mload(0)); stamp(12)
        d = gM[w]
        if pb:
            pb[0] = "s_waitcnt vmcnt(2)"
            e("\n".join(pb)); d -= 100
        gl = cfg.get('gL', 60)
        d -= gl
        k = max(0, min(len(late_v), d // 4))
        e("\n".join(late_v[:k])); d -= 4 * k
        delay(e, d)
        e.loose(mspare() if spec else mload(0))
        k2 = min(len(late_v), k + gl // 4)
        e("\n".join(late_v[k:k2])); delay(e, gl - 4 * (k2 - k)); k = k2
        e.loose(mload(1))
        e("\n".join(late_v[k:]))
        if lastsp:
            e(f"s_cmp_eq_u32 s{sStep}, 63\n s_cbranch_scc1 L_last_{sfx}")
        if ic:
            e(f"s_bitcmp1_b64 {sr(sFm, 2)}, s{sOK2}\n s_cbranch_scc0 L_flag_{sfx}")
            if e3:
                delay(e, cfg.get('g3', 20)); e.loose(mload(0))
            e(f"s_waitcnt vmcnt({2 + e3}) lgkmcnt(0)")
            e("\n".join(ce_ + [wrE]))
            e.loose(mload(1))
            e(f"s_cbranch_vccz L_step_{sfx}")
            e.loose(mload(0))
            for k in range(1 + e3):
                e(f"s_waitcnt vmcnt({3 + e3 if k == 0 else 2})")
                e("\n".join(ce_ + [wrE]))
                e(f"""{'s_add_u32 s13, s13, 1' if diag else ''}
                      s_cbranch_vccz L_step_{sfx}""")
            e(f"s_branch L_retE_{sfx}")
        else:
            e(f"""s_bitcmp1_b64 {sr(sFm, 2)}, s{sOK2}
                  s_waitcnt lgkmcnt(0)
                  s_cbranch_scc1 L_step_{sfx}
                  s_branch L_flag_{sfx}""")
        e.forget()
        e(f"L_reP{w}_{sfx}:")
        if spare:
            e("s_waitcnt vmcnt(0)")
            for j in range(0, 8, 2):
                e(f"v_mov_b64 {vr(PL + j, 2)}, {vr(PL2 + j, 2)}")
            e.loose(ldP2[0]); e.loose(ldP2[1])
        else:
            e.loose(ldP[0]); e.loose(ldP[1])
            e("s_waitcnt vmcnt(1)")
        e(f"""{'s_add_u32 s12, s12, 1' if diag else ''}
              s_sub_u32 s{S_SPIN}, s{S_SPIN}, 1
              s_cbranch_scc0 L_redP{w}_{sfx}
              s_branch L_end""")
    e.forget()
    e(f"""L_flag_{sfx}:
          v_lshrrev_b32 v{C0}, 2, v{vL16}
          buffer_load_dword v{C0}, v{C0}, {W}, s{sFl} offen sc1
          s_sub_u32 s{S_SPIN}, s{S_SPIN}, 1
          s_cbranch_scc1 L_end
          v_cmp_ne_u32 {sr(sFm, 2)}, 0, v{C0}
          s_bitcmp1_b64 {sr(sFm, 2)}, s{sOK2}
          s_cbranch_scc1 L_{'retE' if ic else 'step'}_{sfx}
          s_branch L_flag_{sfx}""")
    e.forget()
    if ic:
        e(f"L_retE_{sfx}:")
        e.loose(mload(1)); e.loose(mload(0))
        e(f"""{'s_add_u32 s15, s15, 1' if diag else ''}
              s_sub_u32 s{S_SPIN}, s{S_SPIN}, 1
              s_cbranch_scc1 L_end
              s_waitcnt vmcnt(2) lgkmcnt(0)""")
        e("\n".join(ce_ + [wrE]))
        e(f"s_cbranch_vccz L_step_{sfx}\n s_branch L_retE_{sfx}")
        e.forget()
    elif spec:
        e(f"""L_retE_{sfx}:
              s_waitcnt vmcnt(3)
              v_mov_b64 {vr(MA, 2)}, {vr(VX, 2)}
              v_mov_b64 {vr(MA + 2, 2)}, {vr(VX + 2, 2)}""")
        e.loose(mload(0))
        e(f"L_retE1_{sfx}:")
        e("\n".join(ce_))
        e(f"ds_write_b128 v{vMw}, {vr(MA, 4)}")
        for j in range(0, 12, 2):
            e(f"v_mov_b64 {vr(ACC + j, 2)}, 0")
        e(f"""{'s_add_u32 s13, s13, 1' if diag else 's_nop 0'}
              s_cbranch_vccz L_okE_{sfx}""")
        e.loose(mload(1)); e.loose(mload(0))
        e(f"""s_sub_u32 s{S_SPIN}, s{S_SPIN}, 1
              s_waitcnt vmcnt(2)
              s_cbranch_scc0 L_retE1_{sfx}
              s_branch L_end""")
        e.forget()
    else:
        e(f"L_retE_{sfx}:")
        e.loose(mload(0)); e.loose(mload(1))
        e(f"""{'s_add_u32 s13, s13, 1' if diag else ''}
              s_sub_u32 s{S_SPIN}, s{S_SPIN}, 1
              s_waitcnt vmcnt(3)
              s_cbranch_scc0 L_chkE_{sfx}
              s_branch L_end""")
    if xe:
        e(f"""L_retL_{sfx}:
              {'s_add_u32 s14, s14, 1' if diag else ''}
              s_sub_u32 s{S_SPIN}, s{S_SPIN}, 1
              s_cbranch_scc1 L_end
              s_bitcmp1_b32 s{sNan}, 0
              s_bitset1_b32 s{sNan}, 0
              s_waitcnt vmcnt(4)
              s_cbranch_scc0 L_retL1_{sfx}""")
        e.loose(mload(1))
        e(f"s_waitcnt vmcnt(0)\n L_retL1_{sfx}:")
    else:
        e(f"L_retL_{sfx}:")
        e.loose(mload(1))
        e(f"""{'s_add_u32 s14, s14, 1' if diag else ''}
              s_sub_u32 s{S_SPIN}, s{S_SPIN}, 1
              s_cbranch_scc1 L_end
              s_bitcmp1_b32 s{sNan}, 0
              s_bitset1_b32 s{sNan}, 0
              s_waitcnt vmcnt({3 - spec})
              s_cbranch_scc0 L_retL1_{sfx}
              s_waitcnt vmcnt(1)
              L_retL1_{sfx}:""")
    e("\n".join(cl_))
    e(f"""ds_write_b128 v{vMw}, {vr(MA + 4, 4)} offset:4096
          s_cbranch_vccz L_okL_{sfx}
          s_branch L_retL_{sfx}""")
    if not lastsp:
        return
    e.forget()
    e(f"L_lret_{sfx}:")
    e.loose(mload(0)); e.loose(mload(1))
    e(f"""s_sub_u32 s{S_SPIN}, s{S_SPIN}, 1
          s_cbranch_scc1 L_end
          L_last_{sfx}:
          s_waitcnt vmcnt(0) lgkmcnt(0)""")
    e("\n".join(check((0, 1))))
    e(f"""ds_write_b128 v{vMw}, {vr(MA, 4)}
          ds_write_b128 v{vMw}, {vr(MA + 4, 4)} offset:4096
          s_cbranch_vccnz L_lret_{sfx}""")
    own = [(m, ft, i) for i in (0, 1) for m in 'kv' for ft in range(2)]
    seq = [(P(*op), []) for op in own]
    if not xo:
        seq[0][1].append(export)
    seq[3][1].extend([progress, e.barrier, mread(2), mread(3)])
    for k in range(4):
        seq[4 + k][1].append(mread(4 + k))
    seq += [(P(m, ft, i), []) for i in range(2, 6) for m in 'kv' for ft in range(2)]
    seq += [(P(m, ft, i), []) for m in 'kv' for ft in range(2) for i in (6, 7)]
    e.slots(seq)
    e("\n".join(k0p + k1p + v0p + v1p))
    e("s_branch L_final")


def chain_final(e, cfg):
    e.forget()
    e("L_final:")
    if cfg.get('holdend'):
        e(f"""L_hold2:
              s_memrealtime s[92:93]
              s_waitcnt lgkmcnt(0)
              s_sub_u32 s92, s92, s94
              s_cmp_lt_u32 s92, {cfg['holdend']}
              s_cbranch_scc1 L_hold2""")
    e(f"""s_add_u32 s{sExp}, s{sExp}, {0 if cfg.get('xo', 0) else 4096}
          buffer_store_dwordx4 {vr(EX, 4)}, v{vL16}, {W}, s{sExp} offen sc1
          s_waitcnt lgkmcnt(0)""")
    if cfg.get('diag'):
        e(f"""s_memrealtime {sr(sDbgT + 12, 2)}
              s_lshl_b32 s{sA}, s{S_ROLE}, 2
              s_add_u32 s{sA}, s{sA}, s{S_WAVE}
              s_lshl_b32 s{sA}, s{sA}, 6
              s_add_u32 s{sA}, s{sA}, 0x6000000
              s_waitcnt lgkmcnt(0)
              s_sub_u32 s{sDbgT + 8}, s0, s{sDbgT + 6}""")
        for n, r in enumerate([sDbgT + 8, sDbgT + 5, S_SPIN, sDbgT + 14, sDbgT + 10, sDbgT + 12, 12, 13, 14, 15]):
            e(f"v_mov_b32 v{TMP + 2}, s{r}\n buffer_store_dword v{TMP + 2}, off, {W}, s{sA} offset:{4 * n}")
    dbg_max(e, cfg, 12, v=TMP + 2)
    e("s_waitcnt vmcnt(0)\n s_branch L_end")


def chain_handover(e, cfg):
    e.forget()
    e("L_ec_done:")
    if cfg.get('diag'):
        e(f"""s_memrealtime s[92:93]
              s_lshl_b32 s{sA}, s{S_HEAD}, 2
              s_add_u32 s{sA}, s{sA}, s{S_WAVE}
              s_lshl_b32 s{sA}, s{sA}, 6
              s_add_u32 s{sA}, s{sA}, 0x6400000
              s_waitcnt lgkmcnt(0)""")
        for n, r in enumerate([94, 82, 80, 90, 92, 12, 13, 14]):
            e(f"v_mov_b32 v{PM}, s{r}\n buffer_store_dword v{PM}, off, {W}, s{sA} offset:{4 * n}")
    e(f"""
          v_mbcnt_lo_u32_b32 v0, -1, 0
          v_mbcnt_hi_u32_b32 v0, -1, v0
          s_sub_u32 s50, s{S_ROLE}, 32
          s_waitcnt vmcnt(0) lgkmcnt(0)
          s_barrier
          s_branch L_phase2""")


def chain(e, cfg):
    CFG.clear(); CFG.update(cfg)
    chain_startup(e, cfg)
    chain_loop(e, cfg, 'f', '')
    chain_loop(e, cfg, 's', 'sc1')
    chain_final(e, cfg)
    if cfg.get('ne', 0):
        chain_handover(e, cfg)
```

```python
from common import *

L_T, L_OB, L_DUMMY, L_KX, L_WL = 8192, 12544, 14592, 16384, 32768
T_PITCH = 1088
vL16, vPst, vMst, vTw, vTr, vKXr, vOw, vWL0, vWL1, vMw, vIdx, vSelC = range(12)
EX, PM, VX = 12, 16, 20
TMP = 28
MA = 32
ACC = 64
X, KXR, SPARE = 88, 104, 120
R1 = [MA + 8, MA + 16, MA + 24, X, X + 8, KXR, KXR + 8, SPARE, X, X + 8]
WO_SB = [KXR, KXR + 8, X, X + 8, ACC, ACC + 8]
(sStep, sMcur, sProg, sMtog, sG, sKl, sMb, sKV, sC, sExp, sMcur2, sMbaseS, sPbaseS, sPbaseL, sFl, sFch, sTog, sNan,
 sA, sB) = range(50, 70)
sSel = 70
sOK, sMn2, sF1, sEnd = 78, 3, 38, 39
sArm, sFm = 18, 98
sVx, sVt, sOK2, sG2 = 96, 97, 17, 100
HV, HS, HA, HD = VX, VX + 1, VX + 2, VX + 4
sHm, sCnt = 20, 28
S_M0 = 84
TRS = [30, 42, 44, 80, 82, 88, 32, 34]
sDbgT = 80

STREAM = [('q', 0, 0), ('q', 1, 0), ('k', 0, 0), ('k', 1, 0), ('q', 0, 1), ('q', 1, 1), ('k', 0, 1), ('k', 1, 1),
          ('q', 0, 5), ('q', 0, 7),
          ('o', 5, 0), ('o', 5, 1), ('o', 6, 0), ('o', 6, 1), ('o', 7, 0), ('o', 7, 1)]
WLPOS = {op: p for op, p in zip(STREAM[10:14], range(4))}
WLPOS.update({op: 4 + p for p, op in enumerate(STREAM[14:16] + STREAM[:10])})
ALLOPS = [(m, ft, i) for m in 'qkv' for ft in range(2) for i in range(8)] + [('o', t, kb) for t in range(8) for kb in range(2)]
RES = {}
for n, op in enumerate([o for o in ALLOPS if o not in STREAM]):
    RES[op] = ('a', 8 * n) if n < 32 else ('v', 128 + 8 * (n - 32))
PARK = {}
for n, op in enumerate(STREAM[14:16] + STREAM[:10]):
    PARK[op] = 32 + 8 * n
for n, op in enumerate(STREAM[10:14]):
    PARK[op] = 48 + 8 * n
W = sr(S_WS, 4)
CFG = {}


def wl_addr(op, half):
    p = WLPOS[op]
    off = (p >> 1) * 16384 + (p & 1) * 2048 + half * 1024
    return (vWL0, off) if off < 65536 else (vWL1, off - 65536)


def wl_write(e, op, src):
    for half in range(2):
        a, off = wl_addr(op, half)
        e(f"ds_write_b128 v{a}, {vr(src + 4 * half, 4)} offset:{off}")


def wl_lines(op, dst):
    out = []
    for half in range(2):
        a, off = wl_addr(op, half)
        out.append(f"ds_read_b128 {vr(dst + 4 * half, 4)}, v{a} offset:{off}")
    return out


def delay(e, cyc):
    if CFG.get('slp') and cyc >= 64:
        k = cyc // 64
        e(f"s_sleep {k}")
        cyc -= 64 * k
    if CFG.get('dmf'):
        while cyc >= 16:
            if CFG['dmf'] == 1:
                e(f"v_mfma_f32_16x16x32_bf16 {vr(VX, 4)}, a[0:3], a[8:11], 0")
            else:
                e(f"v_smfmac_f32_16x16x64_bf16 {vr(VX, 4)}, a[0:3], a[8:15], v{vIdx}")
            cyc -= 16
    n = cyc // 4
    while n > 0:
        k = min(n, 16)
        e(f"s_nop {k - 1}")
        n -= k


def mix(reads, other, per=3):
    out = []
    other = list(other)
    for r in reads:
        out.append(r)
        for _ in range(per):
            if other:
                out.append(other.pop(0))
    return out + other


def mload(b):
    return f"buffer_load_dwordx4 {vr(MA + 4 * b, 4)}, v{vMw}, {W}, s{sMcur if b == 0 else sMcur2} offen sc1"


def mspare():
    return f"buffer_load_dwordx4 {vr(VX, 4)}, v{vMw}, {W}, s{sMcur} offen sc1"


def kx_dma(e, ldsbase):
    e(f"""s_lshl_b32 s{sA}, s{S_WAVE}, 11
          s_add_u32 m0, s{sA}, {ldsbase}
          buffer_load_dwordx4 v{vL16}, {W}, s{sKV} offen sc1 lds
          buffer_load_dwordx4 v{vL16}, {W}, s{sKV} offen offset:1024 sc1 lds""")


def scalar_lines():
    return [x.strip() for x in f"""s_and_b32 s{sA}, s{sStep}, 3
          s_lshl_b32 s{sA}, s{sA}, 13
          s_add_u32 s{sMcur}, s{sA}, s{sMb}
          s_add_u32 s{sMcur2}, s{sMcur}, 4096
          s_and_b32 s{sA}, s{sA}, 0x2000
          s_add_u32 s{sMn2}, s{sMbaseS}, s{sA}
          s_lshl_b32 s{sMtog}, s{sA}, 1
          s_sub_u32 s{sVx}, s{sKV}, s{sTog}
          s_add_u32 s{sVx}, s{sVx}, {8192 - L_KX}
          s_add_u32 s{sKV}, s{sKV}, {0 if CFG.get('samekv') else UNIT}
          s_add_u32 s{sVt}, s{sKV}, 8192
          s_xor_b32 s{sA}, s{sTog}, 0x2000
          s_add_u32 m0, s{sA}, s{sKl}
          s_cmp_gt_u32 s{sStep}, s{sF1}
          s_cselect_b32 s{sA}, 4096, 0
          s_add_u32 s{sExp}, s{sExp}, s{sA}
          s_add_u32 s{sOK2}, s{sStep}, 1
          s_max_u32 s{sProg}, s{sStep}, {0 if CFG.get('xo', 0) else 1}
          s_sub_u32 s{sProg}, s{sProg}, {0 if CFG.get('xo', 0) else 1}
          s_and_b32 s{sG2}, s{sOK2}, 1""".split('\n')]


def prep_a_lines():
    other = [f"v_mov_b64 {vr(ACC + j, 2)}, 0" for j in range(0, 24, 2)] + [f"v_lshlrev_b32 v{PM + 3}, 1, v{vL16}", f"v_mov_b32 v{TMP}, s{sProg}"]
    reads = sum([wl_lines(STREAM[o], R1[o]) for o in range(3, 8)], [])
    return mix(reads, other, 2)


def prep_b_lines():
    other = [f"v_xor_b32 v{vMst}, s{sMtog}, v{vMst}"] + [f"v_xor_b32 v{TMP + p}, {p << 10}, v{vMw}" for p in range(1, 4)]
    reads = sum([wl_lines(STREAM[o], R1[o]) for o in range(3)], [])
    return mix(reads, other, 1)


def chain_startup(e, cfg):
    h = S_HEAD
    ent = 'retE' if cfg.get('ic', 0) else 'step'
    NE = cfg.get('ne', 0)
    ARMED = (0x400100 if NE else 0x200100)
    tA, tB, tC, tD = EX, EX + 1, EX + 2, EX + 3
    t0, t1, t2, t3 = TMP, TMP + 1, TMP + 2, TMP + 3
    lane = PM
    chunks = [('o', kb, Q) for kb in range(2) for Q in range(4)] + [(m, b, 0) for m in cfg.get('mo', 'qkv') for b in range(8)]
    ring = {4: L_WL + 2 * 16384, 5: L_WL + 3 * 16384, 6: L_WL + 4 * 16384, 0: L_WL + 5 * 16384, 1: L_WL + 6 * 16384,
            2: L_WL + 7 * 16384, 3: 0}
    ptr = {'q': P_WQ, 'k': P_WK, 'v': P_WV, 'o': P_WO}
    sHq, sHo, sLw = sMcur, sProg, sMcur2
    cur, marks = [None], {}

    def dma(r):
        m, x, Q = chunks[r]
        if cur[0] != m:
            srd(e, S_T0, ptr[m], 0x400000); cur[0] = m
        for i in range(4):
            if m == 'o':
                row = 64 * x + 32 * (Q >> 1) + 2 * (Q & 1) + 4 * (i >> 1) + (i & 1)
                e(f"""s_add_u32 s{sA}, s{sHo}, {row * 1024}
                      s_add_u32 m0, s{sLw}, {ring[r % 7] + i * 1024}
                      v_xor_b32 v{t2}, {i << 5}, v{VX + 3}
                      buffer_load_dwordx4 v{t2}, {sr(S_T0, 4)}, s{sA} offen {cfg.get('wnt', '')} lds""")
            else:
                e(f"""s_add_u32 s{sA}, s{sHq}, {(128 * (x & 3) + 64 * (x >> 2) + 4 * i) * 8192}
                      s_add_u32 m0, s{sLw}, {ring[r % 7] + i * 1024}
                      buffer_load_dwordx4 v{tA}, {sr(S_T0, 4)}, s{sA} offen {cfg.get('wnt', '')} lds""")
        marks[r] = e.vm[-1]

    S_T2 = 20
    cur2 = [None]

    def ahead(r):
        m, x, Q = chunks[r]
        if m == 'o':
            return
        if cur2[0] != m:
            srd(e, S_T2, ptr[m], 0x400000); cur2[0] = m
        e(f"s_add_u32 s{sA}, s24, {(128 * (x & 3) + 64 * (x >> 2)) * 8192}")
        e.loose(f"buffer_load_dword v{PM}, v{tD}, {sr(S_T2, 4)}, s{sA} offen")

    if cfg.get('lhold'):
        e(f"""L_hold4:
              s_memrealtime s[92:93]
              s_waitcnt lgkmcnt(0)
              s_sub_u32 s92, s92, s94
              s_cmp_lt_u32 s92, {cfg['lhold']}
              s_cbranch_scc1 L_hold4""")
    e(f"""v_and_b32 v{lane}, 63, v0
          v_lshlrev_b32 v{vL16}, 4, v{lane}
          s_and_b32 s{sA}, s{S_WAVE}, 1
          s_lshr_b32 s{sB}, s{S_WAVE}, 1
          s_lshl_b32 s{sHo}, s{sA}, 7
          v_xor_b32 v{VX + 3}, s{sHo}, v{vL16}
          s_lshl_b32 s{sHo}, s{h}, 17
          s_lshl_b32 s{sLw}, s{sA}, 14
          s_add_u32 s{sHo}, s{sHo}, s{sLw}
          s_lshl_b32 s{sLw}, s{sB}, 13
          s_add_u32 s{sHo}, s{sHo}, s{sLw}
          s_lshl_b32 s{sHq}, s{h}, 8
          s_lshl_b32 s{sLw}, s{S_WAVE}, 17
          s_add_u32 s{sHq}, s{sHq}, s{sLw}
          s_lshl_b32 s{sLw}, s{S_WAVE}, 12""")
    if cfg.get('tw', 0):
        e.comment("first touch of every page of the other three matrices at once")
        e(f"v_lshlrev_b32 v{t3}, 16, v{lane}")
        for m in 'qkv':
            srd(e, S_M0, ptr[m], 0x400000)
            e.loose(f"buffer_load_dword v125, v{t3}, {sr(S_M0, 4)}, s{sHq} offen")
    DD = cfg.get('dd', 6)
    for r in range(cfg.get('d0', 6)):
        dma(r)
    e(f"""v_lshrrev_b32 v{t0}, 4, v{lane}
          v_and_b32 v{t1}, 15, v{lane}
          s_lshl_b32 s{sA}, s{S_WAVE}, 10
          v_add_u32 v{vMw}, s{sA}, v{vL16}
          v_lshlrev_b32 v{PM + 3}, 2, v{lane}""")
    e(f"""v_lshrrev_b32 v{t2}, 2, v{lane}
          v_lshlrev_b32 v{t2}, 12, v{t2}
          v_and_b32 v{t3}, 3, v{lane}
          v_lshl_add_u32 v{vPst}, v{t3}, 4, v{t2}""")
    e(f"""v_and_b32 v{t2}, 1, v{lane}
          v_lshlrev_b32 v{t2}, 5, v{t2}
          v_lshl_add_u32 v{t2}, v{t0}, 3, v{t2}
          v_and_b32 v{t3}, 4, v{lane}
          v_add_u32 v{t2}, v{t2}, v{t3}
          v_and_b32 v{t3}, 8, v{lane}
          v_cmp_ne_u32 {sr(sArm, 2)}, 0, v{t3}
          v_lshl_add_u32 v{t2}, v{t3}, 11, v{t2}
          v_and_b32 v{t3}, 2, v{lane}
          v_lshl_add_u32 v{vMst}, v{t3}, 29, v{t2}""")
    srd(e, S_M0, P_MEM0, 8192)
    e(f"""v_and_b32 v{t2}, 1, v{lane}
          v_lshlrev_b32 v{tD}, 10, v{t2}
          v_lshl_add_u32 v{tD}, v{t0}, 1, v{tD}
          v_bfe_u32 v{t2}, v{lane}, 2, 1
          v_lshl_add_u32 v{tD}, v{t2}, 6, v{tD}
          s_and_b32 s{sA}, s{h}, 6
          s_lshl_b32 s{sA}, s{sA}, 10
          s_lshr_b32 s{sB}, s{h}, 3
          s_lshl_b32 s{sB}, s{sB}, 8
          s_add_u32 s{sA}, s{sA}, s{sB}
          s_and_b32 s{sB}, s{S_WAVE}, 1
          s_lshl_b32 s{sB}, s{sB}, 7
          s_add_u32 s{sA}, s{sA}, s{sB}
          s_lshr_b32 s{sB}, s{S_WAVE}, 1
          s_lshl_b32 s{sB}, s{sB}, 3
          s_add_u32 s{sA}, s{sA}, s{sB}
          s_and_b32 s{sB}, s{h}, 1
          s_lshl_b32 s{sB}, s{sB}, 4
          s_add_u32 s{sA}, s{sA}, s{sB}
          buffer_load_ushort v{VX}, v{tD}, {sr(S_M0, 4)}, s{sA} offen
          buffer_load_ushort v{VX + 1}, v{tD}, {sr(S_M0, 4)}, s{sA} offen offset:32""")
    e(f"""s_lshl_b32 s{sA}, s{S_WAVE}, 8
          s_add_u32 s{sA}, s{sA}, {L_T}
          v_mul_u32_u24 v{t2}, {T_PITCH}, v{t0}
          v_lshl_add_u32 v{t2}, v{t1}, 3, v{t2}
          v_add_u32 v{vTw}, s{sA}, v{t2}
          v_and_b32 v{t3}, 3, v{lane}
          v_mul_u32_u24 v{t2}, {T_PITCH}, v{t3}
          v_lshrrev_b32 v{t3}, 5, v{lane}
          v_lshl_add_u32 v{t2}, v{t3}, 7, v{t2}
          v_bfe_u32 v{t3}, v{lane}, 2, 3
          v_lshl_add_u32 v{t2}, v{t3}, 3, v{t2}
          v_add_u32 v{vTr}, {L_T}, v{t2}
          v_lshlrev_b32 v{t2}, 9, v{t0}
          v_lshl_add_u32 v{t2}, v{t1}, 4, v{t2}
          v_add_u32 v{vKXr}, {L_KX}, v{t2}""")
    e(f"""s_lshl_b32 s{sA}, s{S_WAVE}, 9
          s_add_u32 s{sA}, s{sA}, {L_OB}
          v_lshrrev_b32 v{t2}, 5, v{lane}
          v_lshlrev_b32 v{t2}, 8, v{t2}
          v_and_b32 v{t3}, 16, v{lane}
          v_add_u32 v{t2}, v{t2}, v{t3}
          v_and_b32 v{t3}, 12, v{lane}
          v_lshl_add_u32 v{t2}, v{t3}, 4, v{t2}
          v_and_b32 v{t3}, 1, v{lane}
          v_lshl_add_u32 v{t2}, v{t3}, 5, v{t2}
          v_add_u32 v{t2}, s{sA}, v{t2}
          v_and_b32 v{t3}, 2, v{lane}
          v_lshlrev_b32 v{tA}, 3, v{t3}
          v_xor_b32 v{t2}, v{t2}, v{tA}
          v_lshlrev_b32 v{t3}, 12, v{t3}
          v_sub_u32 v{vOw}, v{t2}, v{t3}
          s_add_u32 s{sA}, s{sLw}, {L_WL}
          v_add_u32 v{vWL0}, s{sA}, v{vL16}
          v_add_u32 v{vWL1}, 0x10000, v{vWL0}""")
    e(f"""v_and_b32 v{t2}, 1, v{lane}
          v_cmp_ne_u32 vcc, 0, v{t2}
          v_mov_b32 v{t2}, 0x4444
          v_mov_b32 v{t3}, 0xeeee
          v_cndmask_b32 v{vIdx}, v{t2}, v{t3}, vcc
          v_mov_b32 v{t2}, 0x3f80
          v_mov_b32 v{t3}, 0x3f800000
          v_cndmask_b32 v{vSelC}, v{t2}, v{t3}, vcc
          v_lshrrev_b32 v{t2}, 1, v{t1}""")
    for j in range(4):
        e(f"v_cmp_eq_u32 {sr(sSel + 2 * j, 2)}, {j}, v{t2}")
    e(f"""v_lshlrev_b32 v{tA}, 13, v{t0}
          v_lshlrev_b32 v{t2}, 2, v{t0}
          v_xor_b32 v{t2}, v{t2}, v{t1}
          v_lshl_add_u32 v{tA}, v{t2}, 4, v{tA}""")
    e(f"""v_bfe_u32 v{t2}, v{lane}, 2, 1
          v_lshlrev_b32 v{tB}, 12, v{t2}
          v_bfe_u32 v{t2}, v{lane}, 5, 1
          v_lshl_add_u32 v{tB}, v{t2}, 10, v{tB}
          v_bfe_u32 v{t2}, v{lane}, 3, 1
          v_lshl_add_u32 v{tB}, v{t2}, 9, v{tB}
          v_bfe_u32 v{t2}, v{lane}, 4, 1
          v_lshl_add_u32 v{tB}, v{t2}, 8, v{tB}
          v_and_b32 v{t2}, 3, v{lane}
          v_lshl_add_u32 v{tB}, v{t2}, 3, v{tB}
          v_bfe_u32 v{t3}, v{tB}, 8, 2
          v_xor_b32 v{t3}, s{S_WAVE}, v{t3}
          v_lshl_add_u32 v{tB}, v{t3}, 6, v{tB}""")
    e(f"""v_lshrrev_b32 v{t3}, 2, v{lane}
          v_lshlrev_b32 v{tC}, 10, v{t3}
          v_lshl_add_u32 v{tC}, v{t2}, 3, v{tC}
          s_lshl_b32 s{sA}, s{S_WAVE}, 8
          v_add_u32 v{tC}, s{sA}, v{tC}
          v_and_b32 v{t3}, 7, v{t3}
          v_lshl_add_u32 v{tC}, v{t3}, 5, v{tC}""")
    e(f"""s_lshl_b32 s{sA}, s{S_WAVE}, 11
          s_lshl_b32 s{sB}, s{h}, 13
          s_add_u32 s{sPbaseL}, s{sA}, s{sB}
          s_add_u32 s{sPbaseL}, s{sPbaseL}, {WS_P}
          s_lshl_b32 s{sA}, s{S_WAVE}, 16
          s_lshl_b32 s{sB}, s{h}, 6
          s_add_u32 s{sPbaseS}, s{sA}, s{sB}
          s_add_u32 s{sPbaseS}, s{sPbaseS}, {WS_P}
          s_lshl_b32 s{sA}, s{S_EC}, 18
          s_add_u32 s{sPbaseS}, s{sPbaseS}, s{sA}
          s_add_u32 s{sPbaseL}, s{sPbaseL}, s{sA}
          s_lshl_b32 s{sMb}, s{S_EC}, 15
          s_add_u32 s{sMb}, s{sMb}, {WS_M}
          s_cmp_eq_u32 s{S_EC}, 0
          s_cselect_b32 s{sStep}, {NE}, 0""")
    e(f"""s_and_b32 s{sA}, s{S_WAVE}, 1
          s_lshl_b32 s{sMbaseS}, s{sA}, 12
          s_and_b32 s{sA}, s{h}, 24
          s_lshl_b32 s{sA}, s{sA}, 7
          s_add_u32 s{sMbaseS}, s{sMbaseS}, s{sA}
          s_and_b32 s{sA}, s{h}, 1
          s_lshl_b32 s{sA}, s{sA}, 9
          s_add_u32 s{sMbaseS}, s{sMbaseS}, s{sA}
          s_lshr_b32 s{sA}, s{S_WAVE}, 1
          s_lshl_b32 s{sA}, s{sA}, 8
          s_add_u32 s{sMbaseS}, s{sMbaseS}, s{sA}
          s_and_b32 s{sA}, s{h}, 6
          s_lshl_b32 s{sA}, s{sA}, 5
          s_add_u32 s{sMbaseS}, s{sMbaseS}, s{sA}
          s_add_u32 s{sMbaseS}, s{sMbaseS}, s{sMb}""")
    e(f"""s_mul_i32 s{sKV}, s{h}, {64 * UNIT}
          s_lshl_b32 s{sA}, s{S_WAVE}, 11
          s_add_u32 s{sKV}, s{sKV}, s{sA}
          s_add_u32 s{sKV}, s{sKV}, {WS_QKV + 8192}
          s_lshl_b32 s{sExp}, s{h}, 18
          s_lshl_b32 s{sA}, s{S_WAVE}, 10
          s_add_u32 s{sExp}, s{sExp}, s{sA}
          s_add_u32 s{sExp}, s{sExp}, {WS_EXP}
          s_lshl_b32 s{sFl}, s{h}, 8
          s_add_u32 s{sFl}, s{sFl}, {F_QKV}
          s_lshl_b32 s{sFch}, s{h}, 7
          s_lshl_b32 s{sA}, s{S_WAVE}, 2
          s_add_u32 s{sFch}, s{sFch}, s{sA}
          s_add_u32 s{sFch}, s{sFch}, {F_CH}
          s_mov_b32 s{sC}, 0x3e0293ee
          s_lshl_b32 s{sKl}, s{S_WAVE}, 11
          s_add_u32 s{sKl}, s{sKl}, {L_KX}
          s_mul_i32 s{sA}, s{sStep}, {UNIT}
          s_add_u32 s{sKV}, s{sKV}, s{sA}
          s_mov_b32 s{sOK}, 1""")
    e(f"""s_and_b32 s{sA}, s{sStep}, 1
          v_mov_b32 v{VX + 4}, s{sA}
          v_mov_b32 v{VX + 5}, s{sA}
          v_mov_b32 v{VX + 6}, s{sA}
          v_mov_b32 v{VX + 7}, s{sA}
          v_mov_b32 v{VX + 2}, -1
          s_add_u32 s{sB}, s{sMbaseS}, 8192
          buffer_store_dwordx4 {vr(VX + 4, 4)}, v{vL16}, {W}, s{sPbaseL} offen sc1
          buffer_store_dwordx4 {vr(VX + 4, 4)}, v{vL16}, {W}, s{sPbaseL} offen offset:1024 sc1
          buffer_store_dword v{VX + 2}, v{vMst}, {W}, s{sB} offen sc1""")
    if cfg.get('sdiag'):
        e("s_memrealtime s[20:21]\n s_waitcnt lgkmcnt(0)")
    confirm_barrier(e, 'ch')
    if cfg.get('sdiag'):
        e("s_memrealtime s[22:23]\n s_waitcnt lgkmcnt(0)")
    LA = cfg.get('la', 0)
    if LA:
        assert not NE and not cfg.get('sdiag')
        e(f"""v_bfe_u32 v{t2}, v{lane}, 3, 2
              v_lshlrev_b32 v{tD}, 13, v{t2}
              v_and_b32 v{t2}, 7, v{lane}
              v_lshl_add_u32 v{tD}, v{t2}, 7, v{tD}
              s_and_b32 s24, s{h}, 3
              s_lshl_b32 s24, s24, 2
              s_add_u32 s24, s24, s{S_WAVE}
              s_lshl_b32 s24, s24, 15
              s_lshr_b32 s{sA}, s{h}, 2
              s_lshl_b32 s{sA}, s{sA}, 10
              s_add_u32 s24, s24, s{sA}""")
        for r in range(6, 6 + LA):
            ahead(r)
    parked = STREAM[14:16] + STREAM[:10]
    for r in range(32):
        m, x, Q = chunks[r]
        if marks[r] in e.vm:
            e.wait(vm=len(e.vm) - 1 - e.vm.index(marks[r]))
        e.wait(lgkm=0)
        e("s_barrier")
        if cfg.get('sdiag') and r in (0, 8, 16, 24, 31):
            e(f"s_memrealtime {sr({0: 24, 8: 26, 16: 28, 24: 36, 31: 40}[r], 2)}\n s_waitcnt lgkmcnt(0)")
        if r == 6:
            e.comment("publish this wave's piece of mem0 in slot 0 (and arm slot 2)")
            e(f"""v_lshl_or_b32 v{VX}, v{VX + 1}, 16, v{VX}
                  v_min_u32 v{VX}, -2, v{VX}
                  v_cndmask_b32 v{VX}, v{VX}, -1, {sr(sArm, 2)}
                  s_cmp_lg_u32 s{sStep}, 0
                  s_cselect_b32 s{sA}, -1, 0
                  v_or_b32 v{VX}, s{sA}, v{VX}
                  buffer_store_dword v{VX}, v{vMst}, {W}, s{sMbaseS} offen sc1""")
        if r == 12:
            e.comment("every wave's arming stores are complete: count this member as armed")
            e(f"""s_cmp_lg_u32 s{S_WAVE}, 0
                  s_cbranch_scc1 L_cs_in
                  s_sub_u32 s{sA}, s{S_EC}, 1
                  s_and_b32 s{sA}, s{sA}, s{S_XCC}
                  s_mov_b32 s{sB}, 0x10000
                  s_cselect_b32 s{sA}, 0x1010000, s{sB}
                  v_mov_b32 v{t0}, s{sA}
                  s_mov_b64 exec, 1
                  buffer_atomic_add v{t0}, off, {sr(S_DBG, 4)}, 0 offset:{D_INIT}
                  s_mov_b64 exec, -1""")
            e.vm.pop()
            e.label("L_cs_in")
        if r + DD < 32 and r + DD not in marks:
            dma(r + DD)
        if LA and r + 6 + LA < 32:
            ahead(r + 6 + LA)
        if r == 8:
            for op in STREAM[10:14]:
                wl_write(e, op, PARK[op])
            e.wait(lgkm=0)
        if r == cfg.get('r1', 16):
            e(f"buffer_load_dword v{PM + 1}, off, {sr(S_DBG, 4)}, 0 offset:{D_INIT} sc1")
        if r == cfg.get('r2', 23):
            e(f"""v_readfirstlane_b32 s{sNan}, v{PM + 1}
                  buffer_load_dword v{PM + 2}, v{PM + 3}, {W}, s{sFl} offen sc1""")
            e(f"""s_add_u32 m0, s{sLw}, {L_KX + 8192}
                  s_lshr_b32 m0, m0, 1
                  s_add_u32 m0, m0, {(L_KX + 8192) // 2}
                  s_lshl_b32 s{sB}, s{h}, 10
                  s_add_u32 s{sB}, s{sB}, s{sMb}
                  buffer_load_dwordx4 v{vL16}, {W}, s{sPbaseL} offen sc1 lds
                  buffer_load_dwordx4 v{vL16}, {W}, s{sPbaseL} offen offset:1024 sc1 lds
                  buffer_load_dwordx4 v{vL16}, {W}, s{sB} offen sc1 lds""")
        if r == cfg.get('r3', 30):
            e(f"""v_cmp_ne_u32 {sr(sFm, 2)}, 0, v{PM + 2}
                  s_lshr_b32 s{sOK}, s{sFm}, s{sStep}
                  s_and_b32 s{sOK}, s{sOK}, 3
                  s_cmp_eq_u32 s{sOK}, 3
                  s_cselect_b32 s{sOK}, 1, 0
                  s_and_b32 s{sA}, s{sNan}, 0xffffff
                  s_cmp_eq_u32 s{sA}, {ARMED}
                  s_cselect_b32 s{sOK}, s{sOK}, 0""")
            kx_dma(e, L_KX)
            e(f"""s_add_u32 m0, m0, 8192
                  s_add_u32 s{sA}, s{sKV}, 8192
                  buffer_load_dwordx4 v{vL16}, {W}, s{sA} offen sc1 lds
                  buffer_load_dwordx4 v{vL16}, {W}, s{sA} offen offset:1024 sc1 lds""")
        if r == cfg.get('rt', 27):
            e.comment("the last exports are recognised by their data: fill their slots with a pattern no export holds")
            for j in range(4):
                e(f"v_mov_b32 v{VX + j}, {SENT1}")
            for sg in range(64 - NTAIL, 64):
                e(f"s_add_u32 s{sA}, s{sExp}, {sg * 4096}\n buffer_store_dwordx4 {vr(VX, 4)}, v{vL16}, {W}, s{sA} offen sc1")
        if r == 29:
            e(f"buffer_load_dword v{VX + 7}, v{PM + 3}, {W}, s{sFl} offen sc1")
        if r >= 26:
            for op in parked[2 * (r - 26):2 * (r - 26) + 2]:
                wl_write(e, op, PARK[op])
        e(f"v_add_u32 v{t1}, {ring[r % 7]}, v{tC if m == 'o' else tB}")
        if m == 'o':
            for t in range(8):
                op = ('o', t, x)
                kind, base = RES[op] if op in RES else ('v', PARK[op])
                e(f"v_xor_b32 v{t3}, {t * 32}, v{t1}\n ds_read_b64_tr_b16 {vr(base + 2 * Q, 2, kind)}, v{t3}")
        else:
            for w in range(1, 4):
                e(f"s_cmp_eq_u32 s{S_WAVE}, {w}\n s_cbranch_scc1 L_cs{r}_{w}")
            st0 = e.state()
            for w in range(4):
                if w:
                    e.label(f"L_cs{r}_{w}"); e.set_state(st0)
                for ft in range(2):
                    op = (m, ft, 2 * ((x & 3) ^ w) + (x >> 2))
                    kind, base = RES[op] if op in RES else ('v', PARK[op])
                    for Q in range(4):
                        e(f"ds_read_b64_tr_b16 {vr(base + 2 * Q, 2, kind)}, v{t1} offset:{(32 * (Q & 1) + 8 * (Q >> 1)) * 256 + ft * 32}")
                if w < 3:
                    e(f"s_branch L_cs{r}_e")
            e.label(f"L_cs{r}_e")
    e.wait(lgkm=0)
    if cfg.get('sdiag'):
        e(f"""s_lshl_b32 s{sA}, s{S_ROLE}, 2
              s_add_u32 s{sA}, s{sA}, s{S_WAVE}
              s_lshl_b32 s{sA}, s{sA}, 6
              s_add_u32 s{sA}, s{sA}, 0x6400000""")
        for n, r in enumerate([94, 20, 22, 24, 26, 28, 36, 40, sOK]):
            e(f"v_mov_b32 v{PM}, s{r}\n buffer_store_dword v{PM}, off, {W}, s{sA} offset:{4 * n}")
    if cfg.get('diag'):
        e("s_memrealtime s[82:83]\n s_waitcnt lgkmcnt(0)")
    e(f"""s_cmp_lg_u32 s{sOK}, 0
          s_cbranch_scc1 L_cs_ready
          s_and_b32 s{sA}, s{sNan}, 0xffffff
          s_cmp_eq_u32 s{sA}, {ARMED}
          s_cbranch_scc1 L_cs_p3
          L_cs_p1:
          s_sleep {cfg.get('sp1', 8)}
          buffer_load_dword v{t0}, off, {sr(S_DBG, 4)}, 0 offset:{D_INIT} sc1
          s_sub_u32 s{S_SPIN}, s{S_SPIN}, 1
          s_cbranch_scc1 L_end
          v_readfirstlane_b32 s{sNan}, v{t0}
          s_and_b32 s{sA}, s{sNan}, 0xffffff
          s_cmp_eq_u32 s{sA}, {ARMED}
          s_cbranch_scc0 L_cs_p1
          {'s_memrealtime s[80:81]' if cfg.get('diag') else ''}
          L_cs_p2:
          s_sleep {cfg.get('sp2', 4)}
          buffer_load_dword v{VX + 7}, v{PM + 3}, {W}, s{sFl} offen sc1
          s_sub_u32 s{S_SPIN}, s{S_SPIN}, 1
          s_cbranch_scc1 L_end
          L_cs_p3:
          s_waitcnt vmcnt(0)
          v_cmp_ne_u32 {sr(sFm, 2)}, 0, v{VX + 7}
          s_lshr_b32 s{sA}, s{sFm}, s{sStep}
          s_and_b32 s{sA}, s{sA}, 3
          s_cmp_eq_u32 s{sA}, 3
          s_cbranch_scc0 L_cs_p2""")
    kx_dma(e, L_KX)
    e.label("L_cs_ready")
    e(f"""v_mov_b32 v{PM + 1}, 0
          v_mov_b32 v{PM + 2}, 0
          s_add_u32 s{sF1}, s{sStep}, 1
          s_cmp_eq_u32 s{S_EC}, 0
          s_cselect_b32 s{sEnd}, 255, {NE}
          s_lshl_b32 s{sA}, s{sStep}, 12
          s_add_u32 s{sExp}, s{sExp}, s{sA}
          s_and_b32 s{sA}, s{sStep}, 2
          s_lshl_b32 s{sA}, s{sA}, 13
          v_xor_b32 v{vMst}, s{sA}, v{vMst}
          s_mov_b32 s{sTog}, 0""")
    e("\n".join(scalar_lines() + prep_a_lines()))
    for b in range(2):
        e(mload(b))
    if cfg.get('se', 0):
        e(mspare())
    e("\n".join(prep_b_lines()))
    dbg_max(e, cfg, 11, v=PM, mask=1)
    if cfg.get('holdto'):
        e(f"""L_hold:
              s_memrealtime s[92:93]
              s_waitcnt lgkmcnt(0)
              s_sub_u32 s92, s92, s94
              s_cmp_lt_u32 s92, {cfg['holdto']}
              s_cbranch_scc1 L_hold""")
    e("s_waitcnt vmcnt(0) lgkmcnt(0)\n s_barrier")
    if cfg.get('diag'):
        e.raw(f"  s_memtime {sr(sDbgT + 6, 2)}\n  s_memrealtime {sr(sDbgT + 10, 2)}\n  s_mov_b32 s{sDbgT + 5}, 0\n  s_mov_b32 s12, 0\n  s_mov_b32 s13, 0\n  s_mov_b32 s14, 0\n  s_mov_b32 s15, 0\n  s_waitcnt lgkmcnt(0)")
    e(f"""s_lshr_b32 s{sA}, s{sNan}, 24
          s_mov_b32 s{sNan}, 0
          s_or_b32 s{sA}, s{sA}, s{S_EC}
          s_cbranch_scc1 L_{ent}_s""")
    e(f"s_branch L_{ent}_s" if cfg.get('force_slow') else f"s_branch L_{ent}_f")


def chain_loop(e, cfg, sfx, st):
    acc = {('q', 0): ACC, ('q', 1): ACC + 4, ('k', 0): ACC + 8, ('k', 1): ACC + 12, ('v', 0): ACC + 16, ('v', 1): ACC + 20}
    loc = dict(RES)
    for o in range(10):
        loc[STREAM[o]] = ('v', R1[o])
    for o in range(6):
        loc[STREAM[10 + o]] = ('v', WO_SB[o])
    diag = cfg.get('diag')

    def stamp(n):
        tr = cfg.get('trace')
        if tr and n in tr and sfx == 'f':
            e.raw(f"  s_memtime {sr(TRS[tr.index(n)], 2)}")

    def trace_out(where, TR):
        if cfg.get('trace') and cfg.get('tpos', 'mid') == where and sfx == 'f':
            e(f"""s_memtime s[32:33]
                  s_memrealtime s[34:35]
                  s_lshl_b32 s40, s{S_ROLE}, 2
                  s_add_u32 s40, s40, s{S_WAVE}
                  s_lshl_b32 s40, s40, 6
                  s_add_u32 s40, s40, s{sStep}
                  s_lshl_b32 s40, s40, 5
                  s_add_u32 s40, s40, 0x6200000
                  s_waitcnt lgkmcnt(0)""")
            for j in range(8):
                e(f"v_mov_b32 v{TR + j}, s{TRS[j]}")
            e(f"""s_mov_b64 exec, 1
                  buffer_store_dwordx4 {vr(TR, 4)}, off, {W}, s40
                  buffer_store_dwordx4 {vr(TR + 4, 4)}, off, {W}, s40 offset:16
                  s_mov_b64 exec, -1""")

    def P(m, ft, i):
        k, b = loc[(m, ft, i)]
        return f"v_smfmac_f32_16x16x64_bf16 {vr(acc[(m, ft)], 4)}, {vr(MA + 4 * i, 4)}, {vr(b, 8, k)}, v{vIdx}"

    def post(a, dst):
        return [f"v_add_f32 v{a}, v{a}, v{a + 1}", f"v_add_f32 v{a + 2}, v{a + 2}, v{a + 3}",
                f"v_cvt_pk_bf16_f32 v{dst}, v{a}, v{a + 2}"]

    def xread(kb):
        return [f"ds_read_b64_tr_b16 {vr(X + 4 * kb, 2)}, v{vTr} offset:{kb * 256}",
                f"ds_read_b64_tr_b16 {vr(X + 4 * kb + 2, 2)}, v{vTr} offset:{kb * 256 + 64}"]

    kx_dst = [KXR, SPARE, KXR + 4, SPARE + 4, KXR + 8, KXR, KXR + 12, KXR + 4]

    def kxread(n):
        return f"ds_read_b128 {vr(kx_dst[n], 4)}, v{vKXr} offset:{(n >> 1) * 2048 + (n & 1) * 256}"

    Sx = [ACC, ACC + 4]
    Sm, Px = ACC + 8, ACC + 12

    def smx(n):
        kb, t = n >> 1, n & 1
        c = '0' if kb == 0 else vr(Sx[t], 4)
        return f"v_mfma_f32_16x16x32_bf16 {vr(Sx[t], 4)}, {vr(kx_dst[n], 4)}, {vr(X + 4 * kb, 4)}, {c}"

    def smm(kb):
        c = '0' if kb == 0 else vr(Sm, 4)
        return f"v_mfma_f32_16x16x32_bf16 {vr(Sm, 4)}, {vr(X + 4 * kb, 4)}, {vr(X + 4 * kb, 4)}, {c}"

    ad = 0
    ldH = lambda k: (lambda: e.loose(f"buffer_load_dword v{HD + k}, v{HA}, {W}, s{sHl} offen sc1"))
    ldV = [f"buffer_load_dwordx4 {vr(VX, 4)}, v{vKXr}, {W}, s{sVx} offen sc1",
           f"buffer_load_dwordx4 {vr(VX + 4, 4)}, v{vKXr}, {W}, s{sVx} offen offset:256 sc1"]
    ldK = [f"buffer_load_dwordx4 v{vL16}, {W}, s{sKV} offen sc1 lds",
           f"buffer_load_dwordx4 v{vL16}, {W}, s{sKV} offen offset:1024 sc1 lds"]
    touch = f"buffer_load_dword v{PM + 3}, {W}, s{sVt} offen sc1 lds"
    export = f"buffer_store_dwordx4 {vr(EX, 4)}, v{vL16}, {W}, s{sExp} offen sc1"
    progress = f"s_mov_b64 exec, 1\n buffer_store_dword v{TMP}, off, {W}, s{sFch} sc1\n s_mov_b64 exec, -1"
    ldF = f"buffer_load_dword v{TMP + 3}, v{TMP + 3}, {W}, s{sFl} offen sc1"
    if cfg.get('noexp'):
        export = progress = "s_nop 0"
    rf = sum([wl_lines(STREAM[o], R1[o]) for o in range(8, 10)], [])
    wo = sum([wl_lines(STREAM[10 + o], WO_SB[o]) for o in range(6)], [])
    q0p, q1p, k0p, k1p = post(ACC, ACC + 1), post(ACC + 4, ACC + 5), post(ACC + 8, EX), post(ACC + 12, EX + 1)
    v0p, v1p = post(ACC + 16, EX + 2), post(ACC + 20, EX + 3)
    m0, m1 = TMP, TMP + 1
    C0 = PM
    zero = [f"v_mov_b64 {vr(MA + j, 2)}, 0" for j in range(0, 32, 2)]
    st_ = lambda n: (lambda: stamp(n))
    mx = lambda d, a, b, c_: f"v_max3_f32 v{d}, v{a}, v{b}, v{c_}"

    def check(blocks):
        r = [MA + 4 * b + j for b in blocks for j in range(4)]
        out = [f"v_max3_u32 v{C0}, v{r[0]}, v{r[1]}, v{r[2]}"]
        k = 3
        while k + 1 < len(r):
            out.append(f"v_max3_u32 v{C0}, v{C0}, v{r[k]}, v{r[k + 1]}"); k += 2
        out.append(f"v_max_u32 v{C0}, v{C0}, v{r[k]}")
        out.append(f"v_cmp_eq_u32 vcc, -1, v{C0}")
        return out

    def mread(i):
        return f"ds_read_b128 {vr(MA + 4 * i, 4)}, v{TMP + (i >> 1)} offset:{(i & 1) * 4096}"

    e.slot_no = 0
    e.slot_hook = lambda n: stamp(100 + n)
    e.forget()
    e.raw(".p2align 8\n" + "  s_nop 0\n" * cfg.get('ph', 8))
    e.label(f"L_step_{sfx}")
    ic = cfg.get('ic', 0)
    e3 = cfg.get('e3', 0) if ic else 0
    if not ic:
        e("s_waitcnt vmcnt(2)")
    e.label(f"L_chkE_{sfx}")
    xe = 0
    so = cfg.get('so', 1)
    xr = xread(0) + xread(1) + xread(2) + xread(3)
    ba, bb, bc = cfg.get('ba', 0), cfg.get('bb', 1), cfg.get('bc', 1)
    xo = cfg.get('xo', 0)
    lastsp = cfg.get('lastsp', 1)
    spec = cfg.get('se', 0)
    ce_ = check((0,))
    specb = []
    wrE = f"ds_write_b128 v{vMw}, {vr(MA, 4)}"
    if ic:
        e.lgkm = [parse(wrE)]
    elif spec:
        e(f"ds_write_b128 v{vMw}, {vr(MA, 4)}\n L_okE_{sfx}:")
    else:
        e("\n".join(ce_))
        e(f"""ds_write_b128 v{vMw}, {vr(MA, 4)}
              s_cbranch_vccnz L_retE_{sfx}""")
    stamp(0)
    cl_ = check((1,))
    z = lambda: zero.pop(0)
    lw = lambda n: (lambda: e.wait(lgkm=n))
    seq = [
        (P('q', 0, 0), [] if ic else [lambda: e.loose(mload(1))] + ([ce_[0]] if spec else [])),
        (P('q', 1, 0), [ldV[1], ce_[1], ce_[2]] if spec else [ldV[0]]),
        (P('k', 0, 0), [f"s_cbranch_vccnz L_retE_{sfx}" if spec else ldV[1], e.barrier, mread(2), mread(4)]),
        (P('k', 1, 0), [mread(6), f"s_waitcnt vmcnt({3 - spec + e3})", cl_[0]]),
        (P('v', 0, 0), [e.barrier, cl_[1]] if ba == 1 else [cl_[1]]),
        (P('v', 1, 0), [cl_[2], f"ds_write_b128 v{vMw}, {vr(MA + 4, 4)} offset:4096", f"s_cbranch_vccnz L_retL_{sfx}", f"L_okL_{sfx}:"]),
        (P('q', 0, 1), [st_(1)] + ([mread(2), mread(4)] if ba == 1 else [lw(1), "s_barrier"] if ba == 2 else [])),
        (P('q', 1, 1), [ldV[0]] if spec else []),
        (P('k', 0, 1), [mread(6), rf[0]] if ba == 2 else [rf[0]]),
        (P('k', 1, 1), [rf[1]] + ([] if ba else [lw(3)])),
        (P('q', 0, 2), [rf[2]]),
        (P('q', 1, 2), [e.lds_writes_done]),
        (P('k', 0, 2), [e.barrier] if bb else [e.barrier, ldK[0], mread(3)]),
        (P('k', 1, 2), [ldK[0], mread(3)] if bb else [mread(5)]),
        (P('q', 0, 4), [mread(5)] if bb else [mread(7), f"v_lshrrev_b32 v{TMP + 3}, 2, v{vL16}"]),
        (P('q', 1, 4), [mread(7), f"v_lshrrev_b32 v{TMP + 3}, 2, v{vL16}"] if bb else [ldK[1], f"s_movk_i32 m0, {L_DUMMY}"]),
        (P('k', 0, 4), [ldK[1], f"s_movk_i32 m0, {L_DUMMY}"] if bb else [rf[3]]),
        (P('k', 1, 4), [rf[3]] if bb else [touch]),
        (P('q', 0, 6), [kxread(0)] + ([touch] if bb else [])),
        (P('q', 1, 6), [kxread(2), ldF]),
        (P('k', 0, 6), ([] if xo else [export]) + [lambda: trace_out('mid', SPARE)]),
        (P('k', 1, 6), [kxread(4), st_(2), lw(3)]),
        (P('q', 0, 3), [kxread(6)]),
        (P('q', 0, 5), [kxread(1)]),
        (P('q', 0, 7), [kxread(3)]),
        (P('q', 1, 3), [lambda: e(f"s_waitcnt vmcnt({len(e.vm) - [x.text for x in e.vm].index(ldK[0])})"), "s_nop 0"]),
        (P('q', 1, 5), ["s_nop 1"] if xo else [progress]),
        (P('q', 1, 7), ["s_nop 0", q0p[0]]),
        (P('k', 0, 3), ["s_nop 0", q0p[1]]),
        (P('k', 0, 5), ["s_nop 0", q0p[2]]),
        (P('k', 0, 7), [q1p[0]]),
        (P('k', 1, 3), ["s_nop 0", q1p[1]]),
        (P('k', 1, 5), ["s_nop 0", q1p[2]]),
        (P('k', 1, 7), [f"ds_write2_b32 v{vTw}, v{ACC + 1}, v{ACC + 5} offset0:0 offset1:32", st_(3), k0p[0]]),
        (P('v', 0, 1), ["s_nop 0", k0p[1]]),
        (P('v', 1, 1), ["s_nop 0", k0p[2], k1p[0]]),
        (P('v', 0, 2), [k1p[1], k1p[2]]),
        (P('v', 1, 2), [f"ds_write2_b32 v{vTw}, v{EX}, v{EX + 1} offset0:1 offset1:33", z()]),
        (P('v', 0, 3), [z()]),
        (P('v', 1, 3), [z()]),
        (P('v', 0, 4), [z()]),
        (P('v', 1, 4), [e.lds_writes_done, z()]),
    ] + ([
        (P('v', 0, 5), [e.barrier]),
        (P('v', 1, 5), xread(0) + [z()]),
        (P('v', 0, 6), [xr[2], z()]),
        (P('v', 0, 7), [xr[3], z()]),
        (P('v', 1, 6), [xr[4], z()]),
        (P('v', 1, 7), [xr[5], st_(4), lw(4), z()]),
        (smx(0), [xr[6], z()]),
        (smx(1), [xr[7], z()]),
        (smm(0), [lw(4), v0p[0]]),
        (smx(2), [kxread(5), v0p[1]]),
        (smx(3), [kxread(7), v0p[2]]),
        (smm(1), [lw(2), v1p[0]]),
        (smx(4), [v1p[1], v1p[2]]),
        (smx(6), [z(), z()]),
        (smm(2), [z(), z()]),
        (smm(3), [lw(0)] + ([f"v_exp_f32 v{m1}, v{vIdx}"] if cfg.get('warm', 1) == 1 else ["s_nop 1"])),
        (smx(5), [mx(m0, Sx[0], Sx[0] + 1, Sx[0] + 2)]),
    ] if so else [
        (P('v', 0, 5), [e.barrier] + ([] if bc else xread(0))),
        (P('v', 1, 5), xread(1 - bc) + [z()]),
        (P('v', 0, 6), xread(2 - bc) + [z()]),
        (P('v', 0, 7), xread(3 - bc) + [z()]),
        (P('v', 1, 6), (xread(3) if bc else []) + ([] if lastsp else [f"s_cmp_eq_u32 s{sStep}, 63"]) + [z()]),
        (P('v', 1, 7), [st_(4), lw(6 if bc else 4), z()]),
        (smx(0), [z(), z()]),
        (smx(2), [kxread(5), lw(1)]),
        (smx(4), [kxread(7), v0p[0]]),
        (smx(6), [v0p[1], v0p[2]]),
        (smm(0), [v1p[0], v1p[1]]),
        (smm(1), [v1p[2], z()]),
        (smm(2), ([] if lastsp else ["s_cbranch_scc1 L_final"]) + [mx(m0, Sx[0], Sx[0] + 1, Sx[0] + 2)]),
        (smm(3), [z(), z()]),
        (smx(1), [lw(0), z()]),
        (smx(3), [f"v_exp_f32 v{m1}, v{vIdx}"] if cfg.get('warm', 1) == 1 else []),
        (smx(5), [mx(m0, m0, Sx[0] + 3, Sm + 2), f"v_max_f32 v{m0}, v{m0}, v{Sm + 3}"]),
    ]) + [
        (smx(7), [wo[0], f"s_add_u32 s{sStep}, s{sStep}, 1", wo[1], f"s_xor_b32 s{sTog}, s{sTog}, 0x2000", wo[2],
                  f"s_mov_b32 s{sG}, s{sG2}", wo[3], f"v_xor_b32 v{vKXr}, 0x2000, v{vKXr}"] if not so else
         [wo[0], f"s_add_u32 s{sStep}, s{sStep}, 1", wo[1], f"s_mov_b32 s{sG}, s{sG2}", wo[2], wo[3],
          mx(m0, m0, Sx[0] + 3, Sm + 2), f"v_max_f32 v{m0}, v{m0}, v{Sm + 3}"]),
    ]
    e.slots(seq)
    assert not zero
    e(f"""{mx(m0, m0, Sx[1], Sx[1] + 1)}
          {mx(m0, m0, Sx[1] + 2, Sx[1] + 3)}
          v_mov_b32 v{m1}, v{m0}
          {f's_xor_b32 s{sTog}, s{sTog}, 0x2000' if so else ''}
          {f'v_xor_b32 v{vKXr}, 0x2000, v{vKXr}' if so else ''}
          v_permlane32_swap_b32 v{m0}, v{m1}
          v_max_f32 v{m0}, v{m0}, v{m1}
          v_mov_b32 v{m1}, v{m0}
          v_permlane16_swap_b32 v{m0}, v{m1}
          v_max_f32 v{m0}, v{m0}, v{m1}
          v_mul_f32 v{m0}, s{sC}, v{m0}""")
    for j in (0, 2, 4, 6, 10):
        e(f"v_pk_fma_f32 {vr(ACC + j, 2)}, {vr(ACC + j, 2)}, {sr(sC, 2)}, {vr(m0, 2)} op_sel_hi:[1,0,0] neg_lo:[0,0,1] neg_hi:[0,0,1]")
    for j in (0, 1, 2, 3, 4, 5, 6, 7, 10, 11):
        e(f"v_exp_f32 v{ACC + j}, v{ACC + j}")
    stamp(5)
    for j in range(4):
        e(f"v_cvt_pk_bf16_f32 v{Px + j}, v{ACC + 2 * j}, v{ACC + 2 * j + 1}")
    e(f"""v_cvt_pk_bf16_f32 v{PM}, v{Sm + 2}, v{Sm + 3}
          v_cvt_pk_bf16_f32 v{PM + 3}, v{Sm + 2}, v{Sm + 3}
          v_pk_add_f32 {vr(ACC, 2)}, {vr(ACC, 2)}, {vr(ACC + 2, 2)}
          v_pk_add_f32 {vr(ACC + 4, 2)}, {vr(ACC + 4, 2)}, {vr(ACC + 6, 2)}
          v_pk_add_f32 {vr(ACC, 2)}, {vr(ACC, 2)}, {vr(Sm + 2, 2)}
          v_pk_add_f32 {vr(m0, 2)}, {vr(ACC, 2)}, {vr(ACC + 4, 2)}""")
    O = SPARE
    e.slots([
        (f"v_mfma_f32_16x16x32_bf16 {vr(O, 4)}, {vr(VX, 4)}, {vr(Px, 4)}, 0",
         [f"v_add_f32 v{m0}, v{m0}, v{m1}", f"v_mov_b32 v{m1}, v{m0}"]),
        (f"v_mfma_f32_16x16x32_bf16 {vr(O + 4, 4)}, {vr(VX + 4, 4)}, {vr(Px, 4)}, 0",
         [f"v_permlane32_swap_b32 v{m0}, v{m1}"]),
        (f"v_mfma_f32_16x16x16_bf16 {vr(O, 4)}, {vr(EX + 2, 2)}, {vr(PM, 2)}, {vr(O, 4)}",
         [f"v_add_f32 v{m0}, v{m0}, v{m1}", f"v_mov_b32 v{m1}, v{m0}"]),
        (f"v_mfma_f32_16x16x16_bf16 {vr(O + 4, 4)}, {vr(EX + 2, 2)}, {vr(PM + 2, 2)}, {vr(O + 4, 4)}",
         [f"v_permlane16_swap_b32 v{m0}, v{m1}", f"v_add_f32 v{m0}, v{m0}, v{m1}", f"v_rcp_f32 v{m0}, v{m0}",
          ] + ([f"v_mov_b32 v{HV}, s{sStep}", f"v_lshlrev_b32 v{HS}, 3, v{vL16}"] if ad else [])),
    ])
    for j in range(0, 8, 2):
        e(f"v_pk_mul_f32 {vr(O + j, 2)}, {vr(O + j, 2)}, {vr(m0, 2)} op_sel_hi:[1,0]")
    OA = ACC + 16
    for j in range(4):
        e(f"v_cvt_pk_bf16_f32 v{O + j}, v{O + 2 * j}, v{O + 2 * j + 1}")
    e(f"ds_write_b128 v{vOw}, {vr(O, 4)}")
    if xo:
        e(export)
        e(f"v_mov_b32 v{TMP + 2}, s{sProg}")
        e(progress.replace(f"v{TMP},", f"v{TMP + 2},"))
    if ad:
        e.comment("progress marker for 8 members per wave (timing hint only)")
        e(f"""s_mov_b64 exec, 0xff
              buffer_store_dword v{HV}, v{HS}, {W}, s{sHs} offen {st}
              s_mov_b64 exec, -1
              v_bfe_u32 v{HA}, v{vL16}, 2, 7
              v_mov_b64 {vr(HD, 2)}, 0
              v_mov_b64 {vr(HD + 2, 2)}, 0""")
        stamp(15)
    e.barrier()
    e(f"""ds_read_b128 {vr(OA, 4)}, v{vL16} offset:{L_OB}
          ds_read_b128 {vr(OA + 4, 4)}, v{vL16} offset:{L_OB + 1024}""")
    hs = cfg.get('hs', (-1, 0, 3, 6))
    if ad and hs[0] == -1:
        ldH(0)()
    stamp(6)
    OUT = SPARE

    def pstore(c):
        return f"buffer_store_dwordx4 {vr(OUT + 4 * c, 4)}, v{vPst}, {W}, s{sPbaseS} offen offset:{c * 2048} {st}"

    tag = lambda j: f"v_and_or_b32 v{OUT + j}, v{OUT + j}, -2, s{sG}"
    seq = []
    for t in range(8):
        for kb in range(2):
            k, b = loc[('o', t, kb)]
            if t >= 2:
                p = post(MA + 4 * (t - 2), OUT + t - 2)
                fl = p[0:1] if kb == 0 else p[1:3]
                if kb == 0 and t % 2 == 1:
                    fl = fl + [tag(t - 3)]
            else:
                fl = ["s_nop 0"]
            n = 2 * t + kb
            if 1 <= n <= 8:
                fl = [wo[3 + n]] + fl
            if ad and n in hs:
                fl = [ldH(hs.index(n))] + [x for x in fl if x != "s_nop 0"]
            if kb == 0 and t == 6:
                fl = [pstore(0)] + fl
            seq.append((f"v_smfmac_f32_16x16x64_bf16 {vr(MA + 4 * t, 4)}, {vr(OA + 4 * kb, 4)}, {vr(b, 8, k)}, v{vIdx}", fl))
    if cfg.get('wd', 0):
        seq[1], seq[2] = (seq[2][0], seq[1][1]), (seq[1][0], seq[2][1] + ["s_nop 0"])
        seq[3] = (seq[3][0], seq[3][1] + ["s_nop 0"])
    e.slots(seq)
    PL, D, SEL, PL2 = MA + 8, MA + 16, MA + 20, MA + 24
    e("\n".join(post(MA + 24, OUT + 6) + [tag(6)]))
    e("\n".join(post(MA + 28, OUT + 7)))
    e(pstore(1))
    stamp(7)
    trace_out('late', MA)
    e(f"s_bitcmp1_b32 s{S_WAVE}, 0\n s_cbranch_scc1 L_x1_{sfx}")
    e.slot_hook = None
    st0 = e.state()
    ldP = [f"buffer_load_dwordx4 {vr(PL, 4)}, v{vL16}, {W}, s{sPbaseL} offen sc1",
           f"buffer_load_dwordx4 {vr(PL + 4, 4)}, v{vL16}, {W}, s{sPbaseL} offen offset:1024 sc1"]
    tP, dM, eM, gM = cfg.get('tP', (244, 388)), cfg.get('dM', (270, 150)), cfg.get('eM', 200), cfg.get('gM', (120, 116))
    if sfx == 's':
        tP, dM, gM = cfg.get('tPs', (900, 1100)), cfg.get('dMs', (900, 700)), cfg.get('gMs', (300, 300))
    for w in range(2):
        if w:
            e.raw(".p2align 6")
            e.label(f"L_x{w}_{sfx}"); e.set_state(st0)
        clk = [[12, 48][w]]
        pa = prep_a_lines()
        valu = [f"v_cndmask_b32 v{SEL + j}, 0, v{vSelC}, {sr(sSel + 2 * j, 2)}" for j in range(4)] + scalar_lines() + [l for l in pa if not l.startswith('ds_')]
        if diag:
            valu += [f"s_cmp_eq_u32 s{sStep}, 10", f"s_cselect_b32 s{sDbgT + 6}, s0, s{sDbgT + 6}"] + [f"s_cselect_b32 s{k}, 0, s{k}" for k in range(12, 16)]
        reads = [l for l in pa if l.startswith('ds_')]
        late_v = [l for l in pa if not l.startswith('ds_')]
        pool = [l for l in valu if l not in late_v]
        pool = [l for l in pool if not l.startswith('v_')] + [l for l in pool if l.startswith('v_')]
        merged = []
        for l in pool:
            if l.startswith('s_cselect'):
                merged[-1] += '\n' + l
            else:
                merged.append(l)
        pool = merged
        def until(t):
            while clk[0] + 4 <= t and pool:
                l = pool.pop(0); e(l); clk[0] += 4 * (1 + l.count('\n'))
            if clk[0] + 4 <= t:
                delay(e, t - clk[0]); clk[0] = t

        if ad:
            ev = [f"v_cmp_gt_u32 {sr(sHm + 2 * k, 2)}, s{sStep}, v{HD + k}" for k in range(4)] + [f"s_mov_b32 s{sCnt}, 0"]
            for k in range(4):
                ev += [f"s_cmp_lg_u64 {sr(sHm + 2 * k, 2)}, 0", f"s_addc_u32 s{sCnt}, s{sCnt}, 0"]
            if diag:
                ev += [f"s_add_u32 s15, s15, s{sCnt}"]
            ev += [f"s_mul_i32 s{sCnt}, s{sCnt}, {cfg.get('hm', 2)}"]
            until(tP[w] - 4 * len(ev) - 12)
            e("\n".join(ev))
            e(f"L_ad{w}_{sfx}:\n s_sub_u32 s{sCnt}, s{sCnt}, 1\n s_cbranch_scc0 L_ad{w}_{sfx}")
        else:
            until(tP[w])
        if sfx == 's' and cfg.get('ne', 0):
            assert not [l for l in pool if not l.startswith('v_')]
            e(f"""s_cmp_lg_u32 s{sStep}, s{sEnd}
                  s_cbranch_scc1 L_ho{w}
                  {export}
                  s_sub_u32 s{sMn2}, s{sMn2}, 0x8000
                  v_bfrev_b32 v{C0}, 2
                  v_cndmask_b32 v{vMst}, v{vMst}, v{C0}, {sr(sArm, 2)}
                  L_ho{w}:""")
        e.loose(ldP[0]); e.loose(ldP[1]); stamp(11)
        ldP2 = [x.replace(vr(PL, 4), vr(PL2, 4)).replace(vr(PL + 4, 4), vr(PL2 + 4, 4)) for x in ldP]
        need = scalar_lines()[:7]
        late_v = [l for l in pool if not l.startswith('v_') and l not in need and 's0' not in l] + late_v
        pool = [l for l in pool if l not in late_v]
        rest = reads + pool
        nsp = cfg.get('nsp', (10, 10))[w]
        e("\n".join(rest[:nsp]))
        if nsp is not None:
            delay(e, cfg.get('dP2', (60, 40))[w])
            e.loose(ldP2[0]); e.loose(ldP2[1])
        else:
            nsp = len(rest)
        spare = cfg.get('nsp', (10, 10))[w] is not None
        e("\n".join(rest[nsp:]))
        e(f"s_mov_b32 s{sNan}, 0")
        if diag:
            e.raw("  s_memtime s[0:1]")
        ny = 2 if spare else 0
        e(f"""s_waitcnt vmcnt({ny + 1})
              L_redP{w}_{sfx}:
              v_mfma_f32_16x16x32_bf16 {vr(D, 4)}, {vr(PL, 4)}, {vr(SEL, 4)}, 0
              s_waitcnt vmcnt({ny})
              v_mfma_f32_16x16x32_bf16 {vr(D, 4)}, {vr(PL + 4, 4)}, {vr(SEL, 4)}, {vr(D, 4)}
              v_xor_b32 v{C0}, s{sG}, v{PL}
              v_bitop3_b32 v{C0}, v{C0}, v{PL + 2}, s{sG} bitop3:0xf6
              v_bitop3_b32 v{C0}, v{C0}, v{PL + 4}, s{sG} bitop3:0xf6
              v_bitop3_b32 v{C0}, v{C0}, v{PL + 6}, s{sG} bitop3:0xf6
              v_and_b32 v{C0}, 1, v{C0}
              v_cmp_ne_u32 vcc, 0, v{C0}
              v_cmp_ne_u32 {sr(sFm, 2)}, 0, v{TMP + 3}
              {f's_cbranch_vccnz L_reP{w}_{sfx}' if not cfg.get('lb', 1) else ''}
              v_permlane32_swap_b32 v{D}, v{D + 2}
              v_permlane32_swap_b32 v{D + 1}, v{D + 3}
              v_add_f32 v{D}, v{D}, v{D + 2}
              v_add_f32 v{D + 1}, v{D + 1}, v{D + 3}
              {f's_cbranch_vccnz L_reP{w}_{sfx}' if cfg.get('lb', 1) else ''}
              v_permlane16_swap_b32 v{D}, v{D + 1}
              v_add_f32 v{D}, v{D}, v{D + 1}
              v_mov_b32_dpp v{D + 1}, v{D} quad_perm:[2,3,0,1] row_mask:0xf bank_mask:0xf
              v_cvt_pk_bf16_f32 v{D}, v{D}, v{D + 1}
              v_min_u32 v{D}, -2, v{D}
              v_cndmask_b32 v{VX + 4}, v{D}, -1, {sr(sArm, 2)}
              buffer_store_dword v{VX + 4}, v{vMst}, {W}, s{sMn2} offen {st}""")
        stamp(8)
        if sfx == 's' and cfg.get('ne', 0):
            e(f"s_cmp_eq_u32 s{sStep}, s{sEnd}\n s_cbranch_scc1 L_ec_done")
        pb = ["s_waitcnt vmcnt(1)"] + prep_b_lines()
        d = dM[w]
        if d >= 100 and cfg.get('pw', 0):
            e("\n".join(pb[1:-2])); d -= 72
            late_v = ["s_waitcnt vmcnt(2)"] + pb[-2:] + late_v; pb = []
        elif d >= 100:
            e("\n".join(pb)); d -= 100; pb = []
        delay(e, d)
        e.loose(mload(0)); stamp(12)
        d = gM[w]
        if pb:
            pb[0] = "s_waitcnt vmcnt(2)"
            e("\n".join(pb)); d -= 100
        gl = cfg.get('gL', 60)
        d -= gl
        k = max(0, min(len(late_v), d // 4))
        e("\n".join(late_v[:k])); d -= 4 * k
        delay(e, d)
        e.loose(mspare() if spec else mload(0))
        k2 = min(len(late_v), k + gl // 4)
        e("\n".join(late_v[k:k2])); delay(e, gl - 4 * (k2 - k)); k = k2
        e.loose(mload(1))
        e("\n".join(late_v[k:]))
        if lastsp:
            e(f"s_cmp_eq_u32 s{sStep}, 63\n s_cbranch_scc1 L_last_{sfx}")
        if ic:
            e(f"s_bitcmp1_b64 {sr(sFm, 2)}, s{sOK2}\n s_cbranch_scc0 L_flag_{sfx}")
            if e3:
                delay(e, cfg.get('g3', 20)); e.loose(mload(0))
            e(f"s_waitcnt vmcnt({2 + e3}) lgkmcnt(0)")
            e("\n".join(ce_ + [wrE]))
            e.loose(mload(1))
            e(f"s_cbranch_vccz L_step_{sfx}")
            e.loose(mload(0))
            for k in range(1 + e3):
                e(f"s_waitcnt vmcnt({3 + e3 if k == 0 else 2})")
                e("\n".join(ce_ + [wrE]))
                e(f"""{'s_add_u32 s13, s13, 1' if diag else ''}
                      s_cbranch_vccz L_step_{sfx}""")
            e(f"s_branch L_retE_{sfx}")
        else:
            e(f"""s_bitcmp1_b64 {sr(sFm, 2)}, s{sOK2}
                  s_waitcnt lgkmcnt(0)
                  s_cbranch_scc1 L_step_{sfx}
                  s_branch L_flag_{sfx}""")
        e.forget()
        e(f"L_reP{w}_{sfx}:")
        if spare:
            e("s_waitcnt vmcnt(0)")
            for j in range(0, 8, 2):
                e(f"v_mov_b64 {vr(PL + j, 2)}, {vr(PL2 + j, 2)}")
            e.loose(ldP2[0]); e.loose(ldP2[1])
        else:
            e.loose(ldP[0]); e.loose(ldP[1])
            e("s_waitcnt vmcnt(1)")
        e(f"""{'s_add_u32 s12, s12, 1' if diag else ''}
              s_sub_u32 s{S_SPIN}, s{S_SPIN}, 1
              s_cbranch_scc0 L_redP{w}_{sfx}
              s_branch L_end""")
    e.forget()
    e(f"""L_flag_{sfx}:
          v_lshrrev_b32 v{C0}, 2, v{vL16}
          buffer_load_dword v{C0}, v{C0}, {W}, s{sFl} offen sc1
          s_sub_u32 s{S_SPIN}, s{S_SPIN}, 1
          s_cbranch_scc1 L_end
          v_cmp_ne_u32 {sr(sFm, 2)}, 0, v{C0}
          s_bitcmp1_b64 {sr(sFm, 2)}, s{sOK2}
          s_cbranch_scc1 L_{'retE' if ic else 'step'}_{sfx}
          s_branch L_flag_{sfx}""")
    e.forget()
    if ic:
        e(f"L_retE_{sfx}:")
        e.loose(mload(1)); e.loose(mload(0))
        e(f"""{'s_add_u32 s15, s15, 1' if diag else ''}
              s_sub_u32 s{S_SPIN}, s{S_SPIN}, 1
              s_cbranch_scc1 L_end
              s_waitcnt vmcnt(2) lgkmcnt(0)""")
        e("\n".join(ce_ + [wrE]))
        e(f"s_cbranch_vccz L_step_{sfx}\n s_branch L_retE_{sfx}")
        e.forget()
    elif spec:
        e(f"""L_retE_{sfx}:
              s_waitcnt vmcnt(3)
              v_mov_b64 {vr(MA, 2)}, {vr(VX, 2)}
              v_mov_b64 {vr(MA + 2, 2)}, {vr(VX + 2, 2)}""")
        e.loose(mload(0))
        e(f"L_retE1_{sfx}:")
        e("\n".join(ce_))
        e(f"ds_write_b128 v{vMw}, {vr(MA, 4)}")
        for j in range(0, 12, 2):
            e(f"v_mov_b64 {vr(ACC + j, 2)}, 0")
        e(f"""{'s_add_u32 s13, s13, 1' if diag else 's_nop 0'}
              s_cbranch_vccz L_okE_{sfx}""")
        e.loose(mload(1)); e.loose(mload(0))
        e(f"""s_sub_u32 s{S_SPIN}, s{S_SPIN}, 1
              s_waitcnt vmcnt(2)
              s_cbranch_scc0 L_retE1_{sfx}
              s_branch L_end""")
        e.forget()
    else:
        e(f"L_retE_{sfx}:")
        e.loose(mload(0)); e.loose(mload(1))
        e(f"""{'s_add_u32 s13, s13, 1' if diag else ''}
              s_sub_u32 s{S_SPIN}, s{S_SPIN}, 1
              s_waitcnt vmcnt(3)
              s_cbranch_scc0 L_chkE_{sfx}
              s_branch L_end""")
    if xe:
        e(f"""L_retL_{sfx}:
              {'s_add_u32 s14, s14, 1' if diag else ''}
              s_sub_u32 s{S_SPIN}, s{S_SPIN}, 1
              s_cbranch_scc1 L_end
              s_bitcmp1_b32 s{sNan}, 0
              s_bitset1_b32 s{sNan}, 0
              s_waitcnt vmcnt(4)
              s_cbranch_scc0 L_retL1_{sfx}""")
        e.loose(mload(1))
        e(f"s_waitcnt vmcnt(0)\n L_retL1_{sfx}:")
    else:
        e(f"L_retL_{sfx}:")
        e.loose(mload(1))
        e(f"""{'s_add_u32 s14, s14, 1' if diag else ''}
              s_sub_u32 s{S_SPIN}, s{S_SPIN}, 1
              s_cbranch_scc1 L_end
              s_bitcmp1_b32 s{sNan}, 0
              s_bitset1_b32 s{sNan}, 0
              s_waitcnt vmcnt({3 - spec})
              s_cbranch_scc0 L_retL1_{sfx}
              s_waitcnt vmcnt(1)
              L_retL1_{sfx}:""")
    e("\n".join(cl_))
    e(f"""ds_write_b128 v{vMw}, {vr(MA + 4, 4)} offset:4096
          s_cbranch_vccz L_okL_{sfx}
          s_branch L_retL_{sfx}""")
    if not lastsp:
        return
    e.forget()
    e(f"L_lret_{sfx}:")
    e.loose(mload(0)); e.loose(mload(1))
    e(f"""s_sub_u32 s{S_SPIN}, s{S_SPIN}, 1
          s_cbranch_scc1 L_end
          L_last_{sfx}:
          s_waitcnt vmcnt(0) lgkmcnt(0)""")
    e("\n".join(check((0, 1))))
    e(f"""ds_write_b128 v{vMw}, {vr(MA, 4)}
          ds_write_b128 v{vMw}, {vr(MA + 4, 4)} offset:4096
          s_cbranch_vccnz L_lret_{sfx}""")
    own = [(m, ft, i) for i in (0, 1) for m in 'kv' for ft in range(2)]
    seq = [(P(*op), []) for op in own]
    if not xo:
        seq[0][1].append(export)
    seq[3][1].extend([progress, e.barrier, mread(2), mread(3)])
    for k in range(4):
        seq[4 + k][1].append(mread(4 + k))
    seq += [(P(m, ft, i), []) for i in range(2, 6) for m in 'kv' for ft in range(2)]
    seq += [(P(m, ft, i), []) for m in 'kv' for ft in range(2) for i in (6, 7)]
    e.slots(seq)
    e("\n".join(k0p + k1p + v0p + v1p))
    e("s_branch L_final")


def chain_final(e, cfg):
    e.forget()
    e("L_final:")
    if cfg.get('holdend'):
        e(f"""L_hold2:
              s_memrealtime s[92:93]
              s_waitcnt lgkmcnt(0)
              s_sub_u32 s92, s92, s94
              s_cmp_lt_u32 s92, {cfg['holdend']}
              s_cbranch_scc1 L_hold2""")
    e(f"""s_add_u32 s{sExp}, s{sExp}, {0 if cfg.get('xo', 0) else 4096}
          buffer_store_dwordx4 {vr(EX, 4)}, v{vL16}, {W}, s{sExp} offen sc1
          s_waitcnt lgkmcnt(0)""")
    if cfg.get('diag'):
        e(f"""s_memrealtime {sr(sDbgT + 12, 2)}
              s_lshl_b32 s{sA}, s{S_ROLE}, 2
              s_add_u32 s{sA}, s{sA}, s{S_WAVE}
              s_lshl_b32 s{sA}, s{sA}, 6
              s_add_u32 s{sA}, s{sA}, 0x6000000
              s_waitcnt lgkmcnt(0)
              s_sub_u32 s{sDbgT + 8}, s0, s{sDbgT + 6}""")
        for n, r in enumerate([sDbgT + 8, sDbgT + 5, S_SPIN, sDbgT + 14, sDbgT + 10, sDbgT + 12, 12, 13, 14, 15]):
            e(f"v_mov_b32 v{TMP + 2}, s{r}\n buffer_store_dword v{TMP + 2}, off, {W}, s{sA} offset:{4 * n}")
    dbg_max(e, cfg, 12, v=TMP + 2)
    e("s_waitcnt vmcnt(0)\n s_branch L_end")


def chain_handover(e, cfg):
    e.forget()
    e("L_ec_done:")
    if cfg.get('diag'):
        e(f"""s_memrealtime s[92:93]
              s_lshl_b32 s{sA}, s{S_HEAD}, 2
              s_add_u32 s{sA}, s{sA}, s{S_WAVE}
              s_lshl_b32 s{sA}, s{sA}, 6
              s_add_u32 s{sA}, s{sA}, 0x6400000
              s_waitcnt lgkmcnt(0)""")
        for n, r in enumerate([94, 82, 80, 90, 92, 12, 13, 14]):
            e(f"v_mov_b32 v{PM}, s{r}\n buffer_store_dword v{PM}, off, {W}, s{sA} offset:{4 * n}")
    e(f"""
          v_mbcnt_lo_u32_b32 v0, -1, 0
          v_mbcnt_hi_u32_b32 v0, -1, v0
          s_sub_u32 s50, s{S_ROLE}, 32
          s_waitcnt vmcnt(0) lgkmcnt(0)
          s_barrier
          s_branch L_phase2""")


def chain(e, cfg):
    CFG.clear(); CFG.update(cfg)
    chain_startup(e, cfg)
    chain_loop(e, cfg, 'f', '')
    chain_loop(e, cfg, 's', 'sc1')
    chain_final(e, cfg)
    if cfg.get('ne', 0):
        chain_handover(e, cfg)
```

```python
from common import *

L_T, L_OB, L_DUMMY, L_KX, L_WL = 8192, 12544, 14592, 16384, 32768
T_PITCH = 1088
vL16, vPst, vMst, vTw, vTr, vKXr, vOw, vWL0, vWL1, vMw, vIdx, vSelC = range(12)
EX, PM, VX = 12, 16, 20
TMP = 28
MA = 32
ACC = 64
X, KXR, SPARE = 88, 104, 120
R1 = [MA + 8, MA + 16, MA + 24, X, X + 8, KXR, KXR + 8, SPARE, X, X + 8]
WO_SB = [KXR, KXR + 8, X, X + 8, ACC, ACC + 8]
(sStep, sMcur, sProg, sMtog, sG, sKl, sMb, sKV, sC, sExp, sMcur2, sMbaseS, sPbaseS, sPbaseL, sFl, sFch, sTog, sNan,
 sA, sB) = range(50, 70)
sSel = 70
sOK, sMn2, sF1, sEnd = 78, 3, 38, 39
sArm, sFm = 18, 98
sVx, sVt, sOK2, sG2 = 96, 97, 17, 100
HV, HS, HA, HD = VX, VX + 1, VX + 2, VX + 4
sHm, sCnt = 20, 28
S_M0 = 84
TRS = [30, 42, 44, 80, 82, 88, 32, 34]
sDbgT = 80

STREAM = [('q', 0, 0), ('q', 1, 0), ('k', 0, 0), ('k', 1, 0), ('q', 0, 1), ('q', 1, 1), ('k', 0, 1), ('k', 1, 1),
          ('q', 0, 5), ('q', 0, 7),
          ('o', 5, 0), ('o', 5, 1), ('o', 6, 0), ('o', 6, 1), ('o', 7, 0), ('o', 7, 1)]
WLPOS = {op: p for op, p in zip(STREAM[10:14], range(4))}
WLPOS.update({op: 4 + p for p, op in enumerate(STREAM[14:16] + STREAM[:10])})
ALLOPS = [(m, ft, i) for m in 'qkv' for ft in range(2) for i in range(8)] + [('o', t, kb) for t in range(8) for kb in range(2)]
RES = {}
for n, op in enumerate([o for o in ALLOPS if o not in STREAM]):
    RES[op] = ('a', 8 * n) if n < 32 else ('v', 128 + 8 * (n - 32))
PARK = {}
for n, op in enumerate(STREAM[14:16] + STREAM[:10]):
    PARK[op] = 32 + 8 * n
for n, op in enumerate(STREAM[10:14]):
    PARK[op] = 48 + 8 * n
W = sr(S_WS, 4)
CFG = {}


def wl_addr(op, half):
    p = WLPOS[op]
    off = (p >> 1) * 16384 + (p & 1) * 2048 + half * 1024
    return (vWL0, off) if off < 65536 else (vWL1, off - 65536)


def wl_write(e, op, src):
    for half in range(2):
        a, off = wl_addr(op, half)
        e(f"ds_write_b128 v{a}, {vr(src + 4 * half, 4)} offset:{off}")


def wl_lines(op, dst):
    out = []
    for half in range(2):
        a, off = wl_addr(op, half)
        out.append(f"ds_read_b128 {vr(dst + 4 * half, 4)}, v{a} offset:{off}")
    return out


def delay(e, cyc):
    if CFG.get('slp') and cyc >= 64:
        k = cyc // 64
        e(f"s_sleep {k}")
        cyc -= 64 * k
    if CFG.get('dmf'):
        while cyc >= 16:
            if CFG['dmf'] == 1:
                e(f"v_mfma_f32_16x16x32_bf16 {vr(VX, 4)}, a[0:3], a[8:11], 0")
            else:
                e(f"v_smfmac_f32_16x16x64_bf16 {vr(VX, 4)}, a[0:3], a[8:15], v{vIdx}")
            cyc -= 16
    n = cyc // 4
    while n > 0:
        k = min(n, 16)
        e(f"s_nop {k - 1}")
        n -= k


def mix(reads, other, per=3):
    out = []
    other = list(other)
    for r in reads:
        out.append(r)
        for _ in range(per):
            if other:
                out.append(other.pop(0))
    return out + other


def mload(b):
    return f"buffer_load_dwordx4 {vr(MA + 4 * b, 4)}, v{vMw}, {W}, s{sMcur if b == 0 else sMcur2} offen sc1"


def mspare():
    return f"buffer_load_dwordx4 {vr(VX, 4)}, v{vMw}, {W}, s{sMcur} offen sc1"


def kx_dma(e, ldsbase):
    e(f"""s_lshl_b32 s{sA}, s{S_WAVE}, 11
          s_add_u32 m0, s{sA}, {ldsbase}
          buffer_load_dwordx4 v{vL16}, {W}, s{sKV} offen sc1 lds
          buffer_load_dwordx4 v{vL16}, {W}, s{sKV} offen offset:1024 sc1 lds""")


def scalar_lines():
    return [x.strip() for x in f"""s_and_b32 s{sA}, s{sStep}, 3
          s_lshl_b32 s{sA}, s{sA}, 13
          s_add_u32 s{sMcur}, s{sA}, s{sMb}
          s_add_u32 s{sMcur2}, s{sMcur}, 4096
          s_and_b32 s{sA}, s{sA}, 0x2000
          s_add_u32 s{sMn2}, s{sMbaseS}, s{sA}
          s_lshl_b32 s{sMtog}, s{sA}, 1
          s_sub_u32 s{sVx}, s{sKV}, s{sTog}
          s_add_u32 s{sVx}, s{sVx}, {8192 - L_KX}
          s_add_u32 s{sKV}, s{sKV}, {0 if CFG.get('samekv') else UNIT}
          s_add_u32 s{sVt}, s{sKV}, 8192
          s_xor_b32 s{sA}, s{sTog}, 0x2000
          s_add_u32 m0, s{sA}, s{sKl}
          s_cmp_gt_u32 s{sStep}, s{sF1}
          s_cselect_b32 s{sA}, 4096, 0
          s_add_u32 s{sExp}, s{sExp}, s{sA}
          s_add_u32 s{sOK2}, s{sStep}, 1
          s_max_u32 s{sProg}, s{sStep}, {0 if CFG.get('xo', 0) else 1}
          s_sub_u32 s{sProg}, s{sProg}, {0 if CFG.get('xo', 0) else 1}
          s_and_b32 s{sG2}, s{sOK2}, 1""".split('\n')]


def prep_a_lines():
    other = [f"v_mov_b64 {vr(ACC + j, 2)}, 0" for j in range(0, 24, 2)] + [f"v_lshlrev_b32 v{PM + 3}, 1, v{vL16}", f"v_mov_b32 v{TMP}, s{sProg}"]
    reads = sum([wl_lines(STREAM[o], R1[o]) for o in range(3, 8)], [])
    return mix(reads, other, 2)


def prep_b_lines():
    other = [f"v_xor_b32 v{vMst}, s{sMtog}, v{vMst}"] + [f"v_xor_b32 v{TMP + p}, {p << 10}, v{vMw}" for p in range(1, 4)]
    reads = sum([wl_lines(STREAM[o], R1[o]) for o in range(3)], [])
    return mix(reads, other, 1)


def chain_startup(e, cfg):
    h = S_HEAD
    ent = 'retE' if cfg.get('ic', 0) else 'step'
    NE = cfg.get('ne', 0)
    ARMED = (0x400100 if NE else 0x200100)
    tA, tB, tC, tD = EX, EX + 1, EX + 2, EX + 3
    t0, t1, t2, t3 = TMP, TMP + 1, TMP + 2, TMP + 3
    lane = PM
    chunks = [('o', kb, Q) for kb in range(2) for Q in range(4)] + [(m, b, 0) for m in cfg.get('mo', 'qkv') for b in range(8)]
    ring = {4: L_WL + 2 * 16384, 5: L_WL + 3 * 16384, 6: L_WL + 4 * 16384, 0: L_WL + 5 * 16384, 1: L_WL + 6 * 16384,
            2: L_WL + 7 * 16384, 3: 0}
    ptr = {'q': P_WQ, 'k': P_WK, 'v': P_WV, 'o': P_WO}
    sHq, sHo, sLw = sMcur, sProg, sMcur2
    cur, marks = [None], {}

    def dma(r):
        m, x, Q = chunks[r]
        if cur[0] != m:
            srd(e, S_T0, ptr[m], 0x400000); cur[0] = m
        for i in range(4):
            if m == 'o':
                row = 64 * x + 32 * (Q >> 1) + 2 * (Q & 1) + 4 * (i >> 1) + (i & 1)
                e(f"""s_add_u32 s{sA}, s{sHo}, {row * 1024}
                      s_add_u32 m0, s{sLw}, {ring[r % 7] + i * 1024}
                      v_xor_b32 v{t2}, {i << 5}, v{VX + 3}
                      buffer_load_dwordx4 v{t2}, {sr(S_T0, 4)}, s{sA} offen {cfg.get('wnt', '')} lds""")
            else:
                e(f"""s_add_u32 s{sA}, s{sHq}, {(128 * (x & 3) + 64 * (x >> 2) + 4 * i) * 8192}
                      s_add_u32 m0, s{sLw}, {ring[r % 7] + i * 1024}
                      buffer_load_dwordx4 v{tA}, {sr(S_T0, 4)}, s{sA} offen {cfg.get('wnt', '')} lds""")
        marks[r] = e.vm[-1]

    S_T2 = 20
    cur2 = [None]

    def ahead(r):
        m, x, Q = chunks[r]
        if m == 'o':
            return
        if cur2[0] != m:
            srd(e, S_T2, ptr[m], 0x400000); cur2[0] = m
        e(f"s_add_u32 s{sA}, s24, {(128 * (x & 3) + 64 * (x >> 2)) * 8192}")
        e.loose(f"buffer_load_dword v{PM}, v{tD}, {sr(S_T2, 4)}, s{sA} offen")

    if cfg.get('lhold'):
        e(f"""L_hold4:
              s_memrealtime s[92:93]
              s_waitcnt lgkmcnt(0)
              s_sub_u32 s92, s92, s94
              s_cmp_lt_u32 s92, {cfg['lhold']}
              s_cbranch_scc1 L_hold4""")
    e(f"""v_and_b32 v{lane}, 63, v0
          v_lshlrev_b32 v{vL16}, 4, v{lane}
          s_and_b32 s{sA}, s{S_WAVE}, 1
          s_lshr_b32 s{sB}, s{S_WAVE}, 1
          s_lshl_b32 s{sHo}, s{sA}, 7
          v_xor_b32 v{VX + 3}, s{sHo}, v{vL16}
          s_lshl_b32 s{sHo}, s{h}, 17
          s_lshl_b32 s{sLw}, s{sA}, 14
          s_add_u32 s{sHo}, s{sHo}, s{sLw}
          s_lshl_b32 s{sLw}, s{sB}, 13
          s_add_u32 s{sHo}, s{sHo}, s{sLw}
          s_lshl_b32 s{sHq}, s{h}, 8
          s_lshl_b32 s{sLw}, s{S_WAVE}, 17
          s_add_u32 s{sHq}, s{sHq}, s{sLw}
          s_lshl_b32 s{sLw}, s{S_WAVE}, 12""")
    if cfg.get('tw', 0):
        e.comment("first touch of every page of the other three matrices at once")
        e(f"v_lshlrev_b32 v{t3}, 16, v{lane}")
        for m in 'qkv':
            srd(e, S_M0, ptr[m], 0x400000)
            e.loose(f"buffer_load_dword v125, v{t3}, {sr(S_M0, 4)}, s{sHq} offen")
    DD = cfg.get('dd', 6)
    for r in range(cfg.get('d0', 6)):
        dma(r)
        if cfg.get('pdbg') and r in (0, 5):
            e(f"s_memrealtime {sr(88 if r == 0 else 82, 2)}")
    e(f"""v_lshrrev_b32 v{t0}, 4, v{lane}
          v_and_b32 v{t1}, 15, v{lane}
          s_lshl_b32 s{sA}, s{S_WAVE}, 10
          v_add_u32 v{vMw}, s{sA}, v{vL16}
          v_lshlrev_b32 v{PM + 3}, 2, v{lane}""")
    e(f"""v_lshrrev_b32 v{t2}, 2, v{lane}
          v_lshlrev_b32 v{t2}, 12, v{t2}
          v_and_b32 v{t3}, 3, v{lane}
          v_lshl_add_u32 v{vPst}, v{t3}, 4, v{t2}""")
    e(f"""v_and_b32 v{t2}, 1, v{lane}
          v_lshlrev_b32 v{t2}, 5, v{t2}
          v_lshl_add_u32 v{t2}, v{t0}, 3, v{t2}
          v_and_b32 v{t3}, 4, v{lane}
          v_add_u32 v{t2}, v{t2}, v{t3}
          v_and_b32 v{t3}, 8, v{lane}
          v_cmp_ne_u32 {sr(sArm, 2)}, 0, v{t3}
          v_lshl_add_u32 v{t2}, v{t3}, 11, v{t2}
          v_and_b32 v{t3}, 2, v{lane}
          v_lshl_add_u32 v{vMst}, v{t3}, 29, v{t2}""")
    srd(e, S_M0, P_MEM0, 8192)
    e(f"""v_and_b32 v{t2}, 1, v{lane}
          v_lshlrev_b32 v{tD}, 10, v{t2}
          v_lshl_add_u32 v{tD}, v{t0}, 1, v{tD}
          v_bfe_u32 v{t2}, v{lane}, 2, 1
          v_lshl_add_u32 v{tD}, v{t2}, 6, v{tD}
          s_and_b32 s{sA}, s{h}, 6
          s_lshl_b32 s{sA}, s{sA}, 10
          s_lshr_b32 s{sB}, s{h}, 3
          s_lshl_b32 s{sB}, s{sB}, 8
          s_add_u32 s{sA}, s{sA}, s{sB}
          s_and_b32 s{sB}, s{S_WAVE}, 1
          s_lshl_b32 s{sB}, s{sB}, 7
          s_add_u32 s{sA}, s{sA}, s{sB}
          s_lshr_b32 s{sB}, s{S_WAVE}, 1
          s_lshl_b32 s{sB}, s{sB}, 3
          s_add_u32 s{sA}, s{sA}, s{sB}
          s_and_b32 s{sB}, s{h}, 1
          s_lshl_b32 s{sB}, s{sB}, 4
          s_add_u32 s{sA}, s{sA}, s{sB}
          buffer_load_ushort v{VX}, v{tD}, {sr(S_M0, 4)}, s{sA} offen
          buffer_load_ushort v{VX + 1}, v{tD}, {sr(S_M0, 4)}, s{sA} offen offset:32""")
    e(f"""s_lshl_b32 s{sA}, s{S_WAVE}, 8
          s_add_u32 s{sA}, s{sA}, {L_T}
          v_mul_u32_u24 v{t2}, {T_PITCH}, v{t0}
          v_lshl_add_u32 v{t2}, v{t1}, 3, v{t2}
          v_add_u32 v{vTw}, s{sA}, v{t2}
          v_and_b32 v{t3}, 3, v{lane}
          v_mul_u32_u24 v{t2}, {T_PITCH}, v{t3}
          v_lshrrev_b32 v{t3}, 5, v{lane}
          v_lshl_add_u32 v{t2}, v{t3}, 7, v{t2}
          v_bfe_u32 v{t3}, v{lane}, 2, 3
          v_lshl_add_u32 v{t2}, v{t3}, 3, v{t2}
          v_add_u32 v{vTr}, {L_T}, v{t2}
          v_lshlrev_b32 v{t2}, 9, v{t0}
          v_lshl_add_u32 v{t2}, v{t1}, 4, v{t2}
          v_add_u32 v{vKXr}, {L_KX}, v{t2}""")
    e(f"""s_lshl_b32 s{sA}, s{S_WAVE}, 9
          s_add_u32 s{sA}, s{sA}, {L_OB}
          v_lshrrev_b32 v{t2}, 5, v{lane}
          v_lshlrev_b32 v{t2}, 8, v{t2}
          v_and_b32 v{t3}, 16, v{lane}
          v_add_u32 v{t2}, v{t2}, v{t3}
          v_and_b32 v{t3}, 12, v{lane}
          v_lshl_add_u32 v{t2}, v{t3}, 4, v{t2}
          v_and_b32 v{t3}, 1, v{lane}
          v_lshl_add_u32 v{t2}, v{t3}, 5, v{t2}
          v_add_u32 v{t2}, s{sA}, v{t2}
          v_and_b32 v{t3}, 2, v{lane}
          v_lshlrev_b32 v{tA}, 3, v{t3}
          v_xor_b32 v{t2}, v{t2}, v{tA}
          v_lshlrev_b32 v{t3}, 12, v{t3}
          v_sub_u32 v{vOw}, v{t2}, v{t3}
          s_add_u32 s{sA}, s{sLw}, {L_WL}
          v_add_u32 v{vWL0}, s{sA}, v{vL16}
          v_add_u32 v{vWL1}, 0x10000, v{vWL0}""")
    e(f"""v_and_b32 v{t2}, 1, v{lane}
          v_cmp_ne_u32 vcc, 0, v{t2}
          v_mov_b32 v{t2}, 0x4444
          v_mov_b32 v{t3}, 0xeeee
          v_cndmask_b32 v{vIdx}, v{t2}, v{t3}, vcc
          v_mov_b32 v{t2}, 0x3f80
          v_mov_b32 v{t3}, 0x3f800000
          v_cndmask_b32 v{vSelC}, v{t2}, v{t3}, vcc
          v_lshrrev_b32 v{t2}, 1, v{t1}""")
    for j in range(4):
        e(f"v_cmp_eq_u32 {sr(sSel + 2 * j, 2)}, {j}, v{t2}")
    e(f"""v_lshlrev_b32 v{tA}, 13, v{t0}
          v_lshlrev_b32 v{t2}, 2, v{t0}
          v_xor_b32 v{t2}, v{t2}, v{t1}
          v_lshl_add_u32 v{tA}, v{t2}, 4, v{tA}""")
    e(f"""v_bfe_u32 v{t2}, v{lane}, 2, 1
          v_lshlrev_b32 v{tB}, 12, v{t2}
          v_bfe_u32 v{t2}, v{lane}, 5, 1
          v_lshl_add_u32 v{tB}, v{t2}, 10, v{tB}
          v_bfe_u32 v{t2}, v{lane}, 3, 1
          v_lshl_add_u32 v{tB}, v{t2}, 9, v{tB}
          v_bfe_u32 v{t2}, v{lane}, 4, 1
          v_lshl_add_u32 v{tB}, v{t2}, 8, v{tB}
          v_and_b32 v{t2}, 3, v{lane}
          v_lshl_add_u32 v{tB}, v{t2}, 3, v{tB}
          v_bfe_u32 v{t3}, v{tB}, 8, 2
          v_xor_b32 v{t3}, s{S_WAVE}, v{t3}
          v_lshl_add_u32 v{tB}, v{t3}, 6, v{tB}""")
    e(f"""v_lshrrev_b32 v{t3}, 2, v{lane}
          v_lshlrev_b32 v{tC}, 10, v{t3}
          v_lshl_add_u32 v{tC}, v{t2}, 3, v{tC}
          s_lshl_b32 s{sA}, s{S_WAVE}, 8
          v_add_u32 v{tC}, s{sA}, v{tC}
          v_and_b32 v{t3}, 7, v{t3}
          v_lshl_add_u32 v{tC}, v{t3}, 5, v{tC}""")
    e(f"""s_lshl_b32 s{sA}, s{S_WAVE}, 11
          s_lshl_b32 s{sB}, s{h}, 13
          s_add_u32 s{sPbaseL}, s{sA}, s{sB}
          s_add_u32 s{sPbaseL}, s{sPbaseL}, {WS_P}
          s_lshl_b32 s{sA}, s{S_WAVE}, 16
          s_lshl_b32 s{sB}, s{h}, 6
          s_add_u32 s{sPbaseS}, s{sA}, s{sB}
          s_add_u32 s{sPbaseS}, s{sPbaseS}, {WS_P}
          s_lshl_b32 s{sA}, s{S_EC}, 18
          s_add_u32 s{sPbaseS}, s{sPbaseS}, s{sA}
          s_add_u32 s{sPbaseL}, s{sPbaseL}, s{sA}
          s_lshl_b32 s{sMb}, s{S_EC}, 15
          s_add_u32 s{sMb}, s{sMb}, {WS_M}
          s_cmp_eq_u32 s{S_EC}, 0
          s_cselect_b32 s{sStep}, {NE}, 0""")
    e(f"""s_and_b32 s{sA}, s{S_WAVE}, 1
          s_lshl_b32 s{sMbaseS}, s{sA}, 12
          s_and_b32 s{sA}, s{h}, 24
          s_lshl_b32 s{sA}, s{sA}, 7
          s_add_u32 s{sMbaseS}, s{sMbaseS}, s{sA}
          s_and_b32 s{sA}, s{h}, 1
          s_lshl_b32 s{sA}, s{sA}, 9
          s_add_u32 s{sMbaseS}, s{sMbaseS}, s{sA}
          s_lshr_b32 s{sA}, s{S_WAVE}, 1
          s_lshl_b32 s{sA}, s{sA}, 8
          s_add_u32 s{sMbaseS}, s{sMbaseS}, s{sA}
          s_and_b32 s{sA}, s{h}, 6
          s_lshl_b32 s{sA}, s{sA}, 5
          s_add_u32 s{sMbaseS}, s{sMbaseS}, s{sA}
          s_add_u32 s{sMbaseS}, s{sMbaseS}, s{sMb}""")
    e(f"""s_mul_i32 s{sKV}, s{h}, {64 * UNIT}
          s_lshl_b32 s{sA}, s{S_WAVE}, 11
          s_add_u32 s{sKV}, s{sKV}, s{sA}
          s_add_u32 s{sKV}, s{sKV}, {WS_QKV + 8192}
          s_lshl_b32 s{sExp}, s{h}, 18
          s_lshl_b32 s{sA}, s{S_WAVE}, 10
          s_add_u32 s{sExp}, s{sExp}, s{sA}
          s_add_u32 s{sExp}, s{sExp}, {WS_EXP}
          s_lshl_b32 s{sFl}, s{h}, 8
          s_add_u32 s{sFl}, s{sFl}, {F_QKV}
          s_lshl_b32 s{sFch}, s{h}, 7
          s_lshl_b32 s{sA}, s{S_WAVE}, 2
          s_add_u32 s{sFch}, s{sFch}, s{sA}
          s_add_u32 s{sFch}, s{sFch}, {F_CH}
          s_mov_b32 s{sC}, 0x3e0293ee
          s_lshl_b32 s{sKl}, s{S_WAVE}, 11
          s_add_u32 s{sKl}, s{sKl}, {L_KX}
          s_mul_i32 s{sA}, s{sStep}, {UNIT}
          s_add_u32 s{sKV}, s{sKV}, s{sA}
          s_mov_b32 s{sOK}, 1""")
    e(f"""s_and_b32 s{sA}, s{sStep}, 1
          v_mov_b32 v{VX + 4}, s{sA}
          v_mov_b32 v{VX + 5}, s{sA}
          v_mov_b32 v{VX + 6}, s{sA}
          v_mov_b32 v{VX + 7}, s{sA}
          v_mov_b32 v{VX + 2}, -1
          s_add_u32 s{sB}, s{sMbaseS}, 8192
          buffer_store_dwordx4 {vr(VX + 4, 4)}, v{vL16}, {W}, s{sPbaseL} offen sc1
          buffer_store_dwordx4 {vr(VX + 4, 4)}, v{vL16}, {W}, s{sPbaseL} offen offset:1024 sc1
          buffer_store_dword v{VX + 2}, v{vMst}, {W}, s{sB} offen sc1""")
    if cfg.get('sdiag'):
        e("s_memrealtime s[20:21]\n s_waitcnt lgkmcnt(0)")
    confirm_barrier(e, 'ch')
    if cfg.get('sdiag'):
        e("s_memrealtime s[22:23]\n s_waitcnt lgkmcnt(0)")
    LA = cfg.get('la', 0)
    if LA:
        assert not NE and not cfg.get('sdiag')
        e(f"""v_bfe_u32 v{t2}, v{lane}, 3, 2
              v_lshlrev_b32 v{tD}, 13, v{t2}
              v_and_b32 v{t2}, 7, v{lane}
              v_lshl_add_u32 v{tD}, v{t2}, 7, v{tD}
              s_and_b32 s24, s{h}, 3
              s_lshl_b32 s24, s24, 2
              s_add_u32 s24, s24, s{S_WAVE}
              s_lshl_b32 s24, s24, 15
              s_lshr_b32 s{sA}, s{h}, 2
              s_lshl_b32 s{sA}, s{sA}, 10
              s_add_u32 s24, s24, s{sA}""")
        for r in range(6, 6 + LA):
            ahead(r)
    parked = STREAM[14:16] + STREAM[:10]
    for r in range(32):
        m, x, Q = chunks[r]
        if marks[r] in e.vm:
            e.wait(vm=len(e.vm) - 1 - e.vm.index(marks[r]))
        e.wait(lgkm=0)
        e("s_barrier")
        if cfg.get('sdiag') and r in (0, 8, 16, 24, 31):
            e(f"s_memrealtime {sr({0: 24, 8: 26, 16: 28, 24: 36, 31: 40}[r], 2)}\n s_waitcnt lgkmcnt(0)")
        if r == 6:
            e.comment("publish this wave's piece of mem0 in slot 0 (and arm slot 2)")
            e(f"""v_lshl_or_b32 v{VX}, v{VX + 1}, 16, v{VX}
                  v_min_u32 v{VX}, -2, v{VX}
                  v_cndmask_b32 v{VX}, v{VX}, -1, {sr(sArm, 2)}
                  s_cmp_lg_u32 s{sStep}, 0
                  s_cselect_b32 s{sA}, -1, 0
                  v_or_b32 v{VX}, s{sA}, v{VX}
                  buffer_store_dword v{VX}, v{vMst}, {W}, s{sMbaseS} offen sc1""")
        if r == 12:
            e.comment("every wave's arming stores are complete: count this member as armed")
            e(f"""s_cmp_lg_u32 s{S_WAVE}, 0
                  s_cbranch_scc1 L_cs_in
                  s_sub_u32 s{sA}, s{S_EC}, 1
                  s_and_b32 s{sA}, s{sA}, s{S_XCC}
                  s_mov_b32 s{sB}, 0x10000
                  s_cselect_b32 s{sA}, 0x1010000, s{sB}
                  v_mov_b32 v{t0}, s{sA}
                  s_mov_b64 exec, 1
                  buffer_atomic_add v{t0}, off, {sr(S_DBG, 4)}, 0 offset:{D_INIT}
                  s_mov_b64 exec, -1""")
            e.vm.pop()
            e.label("L_cs_in")
        if r + DD < 32 and r + DD not in marks:
            dma(r + DD)
        if LA and r + 6 + LA < 32:
            ahead(r + 6 + LA)
        if r == 8:
            for op in STREAM[10:14]:
                wl_write(e, op, PARK[op])
            e.wait(lgkm=0)
        if r == cfg.get('r1', 16):
            e(f"buffer_load_dword v{PM + 1}, off, {sr(S_DBG, 4)}, 0 offset:{D_INIT} sc1")
        if r == cfg.get('r2', 23):
            e(f"""v_readfirstlane_b32 s{sNan}, v{PM + 1}
                  buffer_load_dword v{PM + 2}, v{PM + 3}, {W}, s{sFl} offen sc1""")
            e(f"""s_add_u32 m0, s{sLw}, {L_KX + 8192}
                  s_lshr_b32 m0, m0, 1
                  s_add_u32 m0, m0, {(L_KX + 8192) // 2}
                  s_lshl_b32 s{sB}, s{h}, 10
                  s_add_u32 s{sB}, s{sB}, s{sMb}
                  buffer_load_dwordx4 v{vL16}, {W}, s{sPbaseL} offen sc1 lds
                  buffer_load_dwordx4 v{vL16}, {W}, s{sPbaseL} offen offset:1024 sc1 lds
                  buffer_load_dwordx4 v{vL16}, {W}, s{sB} offen sc1 lds""")
        if r == cfg.get('r3', 30):
            e(f"""v_cmp_ne_u32 {sr(sFm, 2)}, 0, v{PM + 2}
                  s_lshr_b32 s{sOK}, s{sFm}, s{sStep}
                  s_and_b32 s{sOK}, s{sOK}, 3
                  s_cmp_eq_u32 s{sOK}, 3
                  s_cselect_b32 s{sOK}, 1, 0
                  s_and_b32 s{sA}, s{sNan}, 0xffffff
                  s_cmp_eq_u32 s{sA}, {ARMED}
                  s_cselect_b32 s{sOK}, s{sOK}, 0""")
            kx_dma(e, L_KX)
            e(f"""s_add_u32 m0, m0, 8192
                  s_add_u32 s{sA}, s{sKV}, 8192
                  buffer_load_dwordx4 v{vL16}, {W}, s{sA} offen sc1 lds
                  buffer_load_dwordx4 v{vL16}, {W}, s{sA} offen offset:1024 sc1 lds""")
        if r == cfg.get('rt', 27):
            e.comment("the last exports are recognised by their data: fill their slots with a pattern no export holds")
            for j in range(4):
                e(f"v_mov_b32 v{VX + j}, {SENT1}")
            for sg in range(64 - NTAIL, 64):
                e(f"s_add_u32 s{sA}, s{sExp}, {sg * 4096}\n buffer_store_dwordx4 {vr(VX, 4)}, v{vL16}, {W}, s{sA} offen sc1")
        if r == 29:
            e(f"buffer_load_dword v{VX + 7}, v{PM + 3}, {W}, s{sFl} offen sc1")
        if r >= 26:
            for op in parked[2 * (r - 26):2 * (r - 26) + 2]:
                wl_write(e, op, PARK[op])
        e(f"v_add_u32 v{t1}, {ring[r % 7]}, v{tC if m == 'o' else tB}")
        if m == 'o':
            for t in range(8):
                op = ('o', t, x)
                kind, base = RES[op] if op in RES else ('v', PARK[op])
                e(f"v_xor_b32 v{t3}, {t * 32}, v{t1}\n ds_read_b64_tr_b16 {vr(base + 2 * Q, 2, kind)}, v{t3}")
        else:
            for w in range(1, 4):
                e(f"s_cmp_eq_u32 s{S_WAVE}, {w}\n s_cbranch_scc1 L_cs{r}_{w}")
            st0 = e.state()
            for w in range(4):
                if w:
                    e.label(f"L_cs{r}_{w}"); e.set_state(st0)
                for ft in range(2):
                    op = (m, ft, 2 * ((x & 3) ^ w) + (x >> 2))
                    kind, base = RES[op] if op in RES else ('v', PARK[op])
                    for Q in range(4):
                        e(f"ds_read_b64_tr_b16 {vr(base + 2 * Q, 2, kind)}, v{t1} offset:{(32 * (Q & 1) + 8 * (Q >> 1)) * 256 + ft * 32}")
                if w < 3:
                    e(f"s_branch L_cs{r}_e")
            e.label(f"L_cs{r}_e")
    e.wait(lgkm=0)
    if cfg.get('sdiag'):
        e(f"""s_lshl_b32 s{sA}, s{S_ROLE}, 2
              s_add_u32 s{sA}, s{sA}, s{S_WAVE}
              s_lshl_b32 s{sA}, s{sA}, 6
              s_add_u32 s{sA}, s{sA}, 0x6400000""")
        for n, r in enumerate([94, 20, 22, 24, 26, 28, 36, 40, sOK]):
            e(f"v_mov_b32 v{PM}, s{r}\n buffer_store_dword v{PM}, off, {W}, s{sA} offset:{4 * n}")
    if cfg.get('diag'):
        e("s_memrealtime s[82:83]\n s_waitcnt lgkmcnt(0)")
    e(f"""s_cmp_lg_u32 s{sOK}, 0
          s_cbranch_scc1 L_cs_ready
          s_and_b32 s{sA}, s{sNan}, 0xffffff
          s_cmp_eq_u32 s{sA}, {ARMED}
          s_cbranch_scc1 L_cs_p3
          L_cs_p1:
          s_sleep {cfg.get('sp1', 8)}
          buffer_load_dword v{t0}, off, {sr(S_DBG, 4)}, 0 offset:{D_INIT} sc1
          s_sub_u32 s{S_SPIN}, s{S_SPIN}, 1
          s_cbranch_scc1 L_end
          v_readfirstlane_b32 s{sNan}, v{t0}
          s_and_b32 s{sA}, s{sNan}, 0xffffff
          s_cmp_eq_u32 s{sA}, {ARMED}
          s_cbranch_scc0 L_cs_p1
          {'s_memrealtime s[80:81]' if cfg.get('diag') else ''}
          L_cs_p2:
          s_sleep {cfg.get('sp2', 4)}
          buffer_load_dword v{VX + 7}, v{PM + 3}, {W}, s{sFl} offen sc1
          s_sub_u32 s{S_SPIN}, s{S_SPIN}, 1
          s_cbranch_scc1 L_end
          L_cs_p3:
          s_waitcnt vmcnt(0)
          v_cmp_ne_u32 {sr(sFm, 2)}, 0, v{VX + 7}
          s_lshr_b32 s{sA}, s{sFm}, s{sStep}
          s_and_b32 s{sA}, s{sA}, 3
          s_cmp_eq_u32 s{sA}, 3
          s_cbranch_scc0 L_cs_p2""")
    kx_dma(e, L_KX)
    e.label("L_cs_ready")
    e(f"""v_mov_b32 v{PM + 1}, 0
          v_mov_b32 v{PM + 2}, 0
          s_add_u32 s{sF1}, s{sStep}, 1
          s_cmp_eq_u32 s{S_EC}, 0
          s_cselect_b32 s{sEnd}, 255, {NE}
          s_lshl_b32 s{sA}, s{sStep}, 12
          s_add_u32 s{sExp}, s{sExp}, s{sA}
          s_and_b32 s{sA}, s{sStep}, 2
          s_lshl_b32 s{sA}, s{sA}, 13
          v_xor_b32 v{vMst}, s{sA}, v{vMst}
          s_mov_b32 s{sTog}, 0""")
    e("\n".join(scalar_lines() + prep_a_lines()))
    for b in range(2):
        e(mload(b))
    if cfg.get('se', 0):
        e(mspare())
    e("\n".join(prep_b_lines()))
    dbg_max(e, cfg, 11, v=PM, mask=1)
    if cfg.get('pdbg'):
        e(f"""s_memrealtime s[92:93]
              s_cmp_lg_u32 s{S_ROLE}, 5
              s_cbranch_scc1 L_pd
              s_cmp_lg_u32 s{S_WAVE}, 1
              s_cbranch_scc1 L_pd
              s_waitcnt lgkmcnt(0)""")
        for n, r in enumerate([90, 88, 82, 92]):
            e(f"s_sub_u32 s{sA}, s{r}, s94\n v_mov_b32 v{PM}, s{sA}\n buffer_store_dword v{PM}, off, {sr(S_DBG, 4)}, 0 offset:{36 + 4 * n}")
        e(f"v_mov_b32 v{PM}, s{sOK}\n buffer_store_dword v{PM}, off, {sr(S_DBG, 4)}, 0 offset:52\n L_pd:")
    if cfg.get('holdto'):
        e(f"""L_hold:
              s_memrealtime s[92:93]
              s_waitcnt lgkmcnt(0)
              s_sub_u32 s92, s92, s94
              s_cmp_lt_u32 s92, {cfg['holdto']}
              s_cbranch_scc1 L_hold""")
    e("s_waitcnt vmcnt(0) lgkmcnt(0)\n s_barrier")
    if cfg.get('diag'):
        e.raw(f"  s_memtime {sr(sDbgT + 6, 2)}\n  s_memrealtime {sr(sDbgT + 10, 2)}\n  s_mov_b32 s{sDbgT + 5}, 0\n  s_mov_b32 s12, 0\n  s_mov_b32 s13, 0\n  s_mov_b32 s14, 0\n  s_mov_b32 s15, 0\n  s_waitcnt lgkmcnt(0)")
    e(f"""s_lshr_b32 s{sA}, s{sNan}, 24
          s_mov_b32 s{sNan}, 0
          s_or_b32 s{sA}, s{sA}, s{S_EC}
          s_cbranch_scc1 L_{ent}_s""")
    e(f"s_branch L_{ent}_s" if cfg.get('force_slow') else f"s_branch L_{ent}_f")


def chain_loop(e, cfg, sfx, st):
    acc = {('q', 0): ACC, ('q', 1): ACC + 4, ('k', 0): ACC + 8, ('k', 1): ACC + 12, ('v', 0): ACC + 16, ('v', 1): ACC + 20}
    loc = dict(RES)
    for o in range(10):
        loc[STREAM[o]] = ('v', R1[o])
    for o in range(6):
        loc[STREAM[10 + o]] = ('v', WO_SB[o])
    diag = cfg.get('diag')

    def stamp(n):
        tr = cfg.get('trace')
        if tr and n in tr and sfx == 'f':
            e.raw(f"  s_memtime {sr(TRS[tr.index(n)], 2)}")

    def trace_out(where, TR):
        if cfg.get('trace') and cfg.get('tpos', 'mid') == where and sfx == 'f':
            e(f"""s_memtime s[32:33]
                  s_memrealtime s[34:35]
                  s_lshl_b32 s40, s{S_ROLE}, 2
                  s_add_u32 s40, s40, s{S_WAVE}
                  s_lshl_b32 s40, s40, 6
                  s_add_u32 s40, s40, s{sStep}
                  s_lshl_b32 s40, s40, 5
                  s_add_u32 s40, s40, 0x6200000
                  s_waitcnt lgkmcnt(0)""")
            for j in range(8):
                e(f"v_mov_b32 v{TR + j}, s{TRS[j]}")
            e(f"""s_mov_b64 exec, 1
                  buffer_store_dwordx4 {vr(TR, 4)}, off, {W}, s40
                  buffer_store_dwordx4 {vr(TR + 4, 4)}, off, {W}, s40 offset:16
                  s_mov_b64 exec, -1""")

    def P(m, ft, i):
        k, b = loc[(m, ft, i)]
        return f"v_smfmac_f32_16x16x64_bf16 {vr(acc[(m, ft)], 4)}, {vr(MA + 4 * i, 4)}, {vr(b, 8, k)}, v{vIdx}"

    def post(a, dst):
        return [f"v_add_f32 v{a}, v{a}, v{a + 1}", f"v_add_f32 v{a + 2}, v{a + 2}, v{a + 3}",
                f"v_cvt_pk_bf16_f32 v{dst}, v{a}, v{a + 2}"]

    def xread(kb):
        return [f"ds_read_b64_tr_b16 {vr(X + 4 * kb, 2)}, v{vTr} offset:{kb * 256}",
                f"ds_read_b64_tr_b16 {vr(X + 4 * kb + 2, 2)}, v{vTr} offset:{kb * 256 + 64}"]

    kx_dst = [KXR, SPARE, KXR + 4, SPARE + 4, KXR + 8, KXR, KXR + 12, KXR + 4]

    def kxread(n):
        return f"ds_read_b128 {vr(kx_dst[n], 4)}, v{vKXr} offset:{(n >> 1) * 2048 + (n & 1) * 256}"

    Sx = [ACC, ACC + 4]
    Sm, Px = ACC + 8, ACC + 12

    def smx(n):
        kb, t = n >> 1, n & 1
        c = '0' if kb == 0 else vr(Sx[t], 4)
        return f"v_mfma_f32_16x16x32_bf16 {vr(Sx[t], 4)}, {vr(kx_dst[n], 4)}, {vr(X + 4 * kb, 4)}, {c}"

    def smm(kb):
        c = '0' if kb == 0 else vr(Sm, 4)
        return f"v_mfma_f32_16x16x32_bf16 {vr(Sm, 4)}, {vr(X + 4 * kb, 4)}, {vr(X + 4 * kb, 4)}, {c}"

    ad = 0
    ldH = lambda k: (lambda: e.loose(f"buffer_load_dword v{HD + k}, v{HA}, {W}, s{sHl} offen sc1"))
    ldV = [f"buffer_load_dwordx4 {vr(VX, 4)}, v{vKXr}, {W}, s{sVx} offen sc1",
           f"buffer_load_dwordx4 {vr(VX + 4, 4)}, v{vKXr}, {W}, s{sVx} offen offset:256 sc1"]
    ldK = [f"buffer_load_dwordx4 v{vL16}, {W}, s{sKV} offen sc1 lds",
           f"buffer_load_dwordx4 v{vL16}, {W}, s{sKV} offen offset:1024 sc1 lds"]
    touch = f"buffer_load_dword v{PM + 3}, {W}, s{sVt} offen sc1 lds"
    export = f"buffer_store_dwordx4 {vr(EX, 4)}, v{vL16}, {W}, s{sExp} offen sc1"
    progress = f"s_mov_b64 exec, 1\n buffer_store_dword v{TMP}, off, {W}, s{sFch} sc1\n s_mov_b64 exec, -1"
    ldF = f"buffer_load_dword v{TMP + 3}, v{TMP + 3}, {W}, s{sFl} offen sc1"
    if cfg.get('noexp'):
        export = progress = "s_nop 0"
    rf = sum([wl_lines(STREAM[o], R1[o]) for o in range(8, 10)], [])
    wo = sum([wl_lines(STREAM[10 + o], WO_SB[o]) for o in range(6)], [])
    q0p, q1p, k0p, k1p = post(ACC, ACC + 1), post(ACC + 4, ACC + 5), post(ACC + 8, EX), post(ACC + 12, EX + 1)
    v0p, v1p = post(ACC + 16, EX + 2), post(ACC + 20, EX + 3)
    m0, m1 = TMP, TMP + 1
    C0 = PM
    zero = [f"v_mov_b64 {vr(MA + j, 2)}, 0" for j in range(0, 32, 2)]
    st_ = lambda n: (lambda: stamp(n))
    mx = lambda d, a, b, c_: f"v_max3_f32 v{d}, v{a}, v{b}, v{c_}"

    def check(blocks):
        r = [MA + 4 * b + j for b in blocks for j in range(4)]
        out = [f"v_max3_u32 v{C0}, v{r[0]}, v{r[1]}, v{r[2]}"]
        k = 3
        while k + 1 < len(r):
            out.append(f"v_max3_u32 v{C0}, v{C0}, v{r[k]}, v{r[k + 1]}"); k += 2
        out.append(f"v_max_u32 v{C0}, v{C0}, v{r[k]}")
        out.append(f"v_cmp_eq_u32 vcc, -1, v{C0}")
        return out

    def mread(i):
        return f"ds_read_b128 {vr(MA + 4 * i, 4)}, v{TMP + (i >> 1)} offset:{(i & 1) * 4096}"

    e.slot_no = 0
    e.slot_hook = lambda n: stamp(100 + n)
    e.forget()
    e.raw(".p2align 8\n" + "  s_nop 0\n" * cfg.get('ph', 8))
    e.label(f"L_step_{sfx}")
    ic = cfg.get('ic', 0)
    e3 = cfg.get('e3', 0) if ic else 0
    if not ic:
        e("s_waitcnt vmcnt(2)")
    e.label(f"L_chkE_{sfx}")
    xe = 0
    so = cfg.get('so', 1)
    xr = xread(0) + xread(1) + xread(2) + xread(3)
    ba, bb, bc = cfg.get('ba', 0), cfg.get('bb', 1), cfg.get('bc', 1)
    xo = cfg.get('xo', 0)
    lastsp = cfg.get('lastsp', 1)
    spec = cfg.get('se', 0)
    ce_ = check((0,))
    specb = []
    wrE = f"ds_write_b128 v{vMw}, {vr(MA, 4)}"
    if ic:
        e.lgkm = [parse(wrE)]
    elif spec:
        e(f"ds_write_b128 v{vMw}, {vr(MA, 4)}\n L_okE_{sfx}:")
    else:
        e("\n".join(ce_))
        e(f"""ds_write_b128 v{vMw}, {vr(MA, 4)}
              s_cbranch_vccnz L_retE_{sfx}""")
    stamp(0)
    cl_ = check((1,))
    z = lambda: zero.pop(0)
    lw = lambda n: (lambda: e.wait(lgkm=n))
    seq = [
        (P('q', 0, 0), [] if ic else [lambda: e.loose(mload(1))] + ([ce_[0]] if spec else [])),
        (P('q', 1, 0), [ldV[1], ce_[1], ce_[2]] if spec else [ldV[0]]),
        (P('k', 0, 0), [f"s_cbranch_vccnz L_retE_{sfx}" if spec else ldV[1], e.barrier, mread(2), mread(4)]),
        (P('k', 1, 0), [mread(6), f"s_waitcnt vmcnt({3 - spec + e3})", cl_[0]]),
        (P('v', 0, 0), [e.barrier, cl_[1]] if ba == 1 else [cl_[1]]),
        (P('v', 1, 0), [cl_[2], f"ds_write_b128 v{vMw}, {vr(MA + 4, 4)} offset:4096", f"s_cbranch_vccnz L_retL_{sfx}", f"L_okL_{sfx}:"]),
        (P('q', 0, 1), [st_(1)] + ([mread(2), mread(4)] if ba == 1 else [lw(1), "s_barrier"] if ba == 2 else [])),
        (P('q', 1, 1), [ldV[0]] if spec else []),
        (P('k', 0, 1), [mread(6), rf[0]] if ba == 2 else [rf[0]]),
        (P('k', 1, 1), [rf[1]] + ([] if ba else [lw(3)])),
        (P('q', 0, 2), [rf[2]]),
        (P('q', 1, 2), [e.lds_writes_done]),
        (P('k', 0, 2), [e.barrier] if bb else [e.barrier, ldK[0], mread(3)]),
        (P('k', 1, 2), [ldK[0], mread(3)] if bb else [mread(5)]),
        (P('q', 0, 4), [mread(5)] if bb else [mread(7), f"v_lshrrev_b32 v{TMP + 3}, 2, v{vL16}"]),
        (P('q', 1, 4), [mread(7), f"v_lshrrev_b32 v{TMP + 3}, 2, v{vL16}"] if bb else [ldK[1], f"s_movk_i32 m0, {L_DUMMY}"]),
        (P('k', 0, 4), [ldK[1], f"s_movk_i32 m0, {L_DUMMY}"] if bb else [rf[3]]),
        (P('k', 1, 4), [rf[3]] if bb else [touch]),
        (P('q', 0, 6), [kxread(0)] + ([touch] if bb else [])),
        (P('q', 1, 6), [kxread(2), ldF]),
        (P('k', 0, 6), ([] if xo else [export]) + [lambda: trace_out('mid', SPARE)]),
        (P('k', 1, 6), [kxread(4), st_(2), lw(3)]),
        (P('q', 0, 3), [kxread(6)]),
        (P('q', 0, 5), [kxread(1)]),
        (P('q', 0, 7), [kxread(3)]),
        (P('q', 1, 3), [lambda: e(f"s_waitcnt vmcnt({len(e.vm) - [x.text for x in e.vm].index(ldK[0])})"), "s_nop 0"]),
        (P('q', 1, 5), ["s_nop 1"] if xo else [progress]),
        (P('q', 1, 7), ["s_nop 0", q0p[0]]),
        (P('k', 0, 3), ["s_nop 0", q0p[1]]),
        (P('k', 0, 5), ["s_nop 0", q0p[2]]),
        (P('k', 0, 7), [q1p[0]]),
        (P('k', 1, 3), ["s_nop 0", q1p[1]]),
        (P('k', 1, 5), ["s_nop 0", q1p[2]]),
        (P('k', 1, 7), [f"ds_write2_b32 v{vTw}, v{ACC + 1}, v{ACC + 5} offset0:0 offset1:32", st_(3), k0p[0]]),
        (P('v', 0, 1), ["s_nop 0", k0p[1]]),
        (P('v', 1, 1), ["s_nop 0", k0p[2], k1p[0]]),
        (P('v', 0, 2), [k1p[1], k1p[2]]),
        (P('v', 1, 2), [f"ds_write2_b32 v{vTw}, v{EX}, v{EX + 1} offset0:1 offset1:33", z()]),
        (P('v', 0, 3), [z()]),
        (P('v', 1, 3), [z()]),
        (P('v', 0, 4), [z()]),
        (P('v', 1, 4), [e.lds_writes_done, z()]),
    ] + ([
        (P('v', 0, 5), [e.barrier]),
        (P('v', 1, 5), xread(0) + [z()]),
        (P('v', 0, 6), [xr[2], z()]),
        (P('v', 0, 7), [xr[3], z()]),
        (P('v', 1, 6), [xr[4], z()]),
        (P('v', 1, 7), [xr[5], st_(4), lw(4), z()]),
        (smx(0), [xr[6], z()]),
        (smx(1), [xr[7], z()]),
        (smm(0), [lw(4), v0p[0]]),
        (smx(2), [kxread(5), v0p[1]]),
        (smx(3), [kxread(7), v0p[2]]),
        (smm(1), [lw(2), v1p[0]]),
        (smx(4), [v1p[1], v1p[2]]),
        (smx(6), [z(), z()]),
        (smm(2), [z(), z()]),
        (smm(3), [lw(0)] + ([f"v_exp_f32 v{m1}, v{vIdx}"] if cfg.get('warm', 1) == 1 else ["s_nop 1"])),
        (smx(5), [mx(m0, Sx[0], Sx[0] + 1, Sx[0] + 2)]),
    ] if so else [
        (P('v', 0, 5), [e.barrier] + ([] if bc else xread(0))),
        (P('v', 1, 5), xread(1 - bc) + [z()]),
        (P('v', 0, 6), xread(2 - bc) + [z()]),
        (P('v', 0, 7), xread(3 - bc) + [z()]),
        (P('v', 1, 6), (xread(3) if bc else []) + ([] if lastsp else [f"s_cmp_eq_u32 s{sStep}, 63"]) + [z()]),
        (P('v', 1, 7), [st_(4), lw(6 if bc else 4), z()]),
        (smx(0), [z(), z()]),
        (smx(2), [kxread(5), lw(1)]),
        (smx(4), [kxread(7), v0p[0]]),
        (smx(6), [v0p[1], v0p[2]]),
        (smm(0), [v1p[0], v1p[1]]),
        (smm(1), [v1p[2], z()]),
        (smm(2), ([] if lastsp else ["s_cbranch_scc1 L_final"]) + [mx(m0, Sx[0], Sx[0] + 1, Sx[0] + 2)]),
        (smm(3), [z(), z()]),
        (smx(1), [lw(0), z()]),
        (smx(3), [f"v_exp_f32 v{m1}, v{vIdx}"] if cfg.get('warm', 1) == 1 else []),
        (smx(5), [mx(m0, m0, Sx[0] + 3, Sm + 2), f"v_max_f32 v{m0}, v{m0}, v{Sm + 3}"]),
    ]) + [
        (smx(7), [wo[0], f"s_add_u32 s{sStep}, s{sStep}, 1", wo[1], f"s_xor_b32 s{sTog}, s{sTog}, 0x2000", wo[2],
                  f"s_mov_b32 s{sG}, s{sG2}", wo[3], f"v_xor_b32 v{vKXr}, 0x2000, v{vKXr}"] if not so else
         [wo[0], f"s_add_u32 s{sStep}, s{sStep}, 1", wo[1], f"s_mov_b32 s{sG}, s{sG2}", wo[2], wo[3],
          mx(m0, m0, Sx[0] + 3, Sm + 2), f"v_max_f32 v{m0}, v{m0}, v{Sm + 3}"]),
    ]
    e.slots(seq)
    assert not zero
    e(f"""{mx(m0, m0, Sx[1], Sx[1] + 1)}
          {mx(m0, m0, Sx[1] + 2, Sx[1] + 3)}
          v_mov_b32 v{m1}, v{m0}
          {f's_xor_b32 s{sTog}, s{sTog}, 0x2000' if so else ''}
          {f'v_xor_b32 v{vKXr}, 0x2000, v{vKXr}' if so else ''}
          v_permlane32_swap_b32 v{m0}, v{m1}
          v_max_f32 v{m0}, v{m0}, v{m1}
          v_mov_b32 v{m1}, v{m0}
          v_permlane16_swap_b32 v{m0}, v{m1}
          v_max_f32 v{m0}, v{m0}, v{m1}
          v_mul_f32 v{m0}, s{sC}, v{m0}""")
    for j in (0, 2, 4, 6, 10):
        e(f"v_pk_fma_f32 {vr(ACC + j, 2)}, {vr(ACC + j, 2)}, {sr(sC, 2)}, {vr(m0, 2)} op_sel_hi:[1,0,0] neg_lo:[0,0,1] neg_hi:[0,0,1]")
    for j in (0, 1, 2, 3, 4, 5, 6, 7, 10, 11):
        e(f"v_exp_f32 v{ACC + j}, v{ACC + j}")
    stamp(5)
    for j in range(4):
        e(f"v_cvt_pk_bf16_f32 v{Px + j}, v{ACC + 2 * j}, v{ACC + 2 * j + 1}")
    e(f"""v_cvt_pk_bf16_f32 v{PM}, v{Sm + 2}, v{Sm + 3}
          v_cvt_pk_bf16_f32 v{PM + 3}, v{Sm + 2}, v{Sm + 3}
          v_pk_add_f32 {vr(ACC, 2)}, {vr(ACC, 2)}, {vr(ACC + 2, 2)}
          v_pk_add_f32 {vr(ACC + 4, 2)}, {vr(ACC + 4, 2)}, {vr(ACC + 6, 2)}
          v_pk_add_f32 {vr(ACC, 2)}, {vr(ACC, 2)}, {vr(Sm + 2, 2)}
          v_pk_add_f32 {vr(m0, 2)}, {vr(ACC, 2)}, {vr(ACC + 4, 2)}""")
    O = SPARE
    e.slots([
        (f"v_mfma_f32_16x16x32_bf16 {vr(O, 4)}, {vr(VX, 4)}, {vr(Px, 4)}, 0",
         [f"v_add_f32 v{m0}, v{m0}, v{m1}", f"v_mov_b32 v{m1}, v{m0}"]),
        (f"v_mfma_f32_16x16x32_bf16 {vr(O + 4, 4)}, {vr(VX + 4, 4)}, {vr(Px, 4)}, 0",
         [f"v_permlane32_swap_b32 v{m0}, v{m1}"]),
        (f"v_mfma_f32_16x16x16_bf16 {vr(O, 4)}, {vr(EX + 2, 2)}, {vr(PM, 2)}, {vr(O, 4)}",
         [f"v_add_f32 v{m0}, v{m0}, v{m1}", f"v_mov_b32 v{m1}, v{m0}"]),
        (f"v_mfma_f32_16x16x16_bf16 {vr(O + 4, 4)}, {vr(EX + 2, 2)}, {vr(PM + 2, 2)}, {vr(O + 4, 4)}",
         [f"v_permlane16_swap_b32 v{m0}, v{m1}", f"v_add_f32 v{m0}, v{m0}, v{m1}", f"v_rcp_f32 v{m0}, v{m0}",
          ] + ([f"v_mov_b32 v{HV}, s{sStep}", f"v_lshlrev_b32 v{HS}, 3, v{vL16}"] if ad else [])),
    ])
    for j in range(0, 8, 2):
        e(f"v_pk_mul_f32 {vr(O + j, 2)}, {vr(O + j, 2)}, {vr(m0, 2)} op_sel_hi:[1,0]")
    OA = ACC + 16
    for j in range(4):
        e(f"v_cvt_pk_bf16_f32 v{O + j}, v{O + 2 * j}, v{O + 2 * j + 1}")
    e(f"ds_write_b128 v{vOw}, {vr(O, 4)}")
    if xo:
        e(export)
        e(f"v_mov_b32 v{TMP + 2}, s{sProg}")
        e(progress.replace(f"v{TMP},", f"v{TMP + 2},"))
    if ad:
        e.comment("progress marker for 8 members per wave (timing hint only)")
        e(f"""s_mov_b64 exec, 0xff
              buffer_store_dword v{HV}, v{HS}, {W}, s{sHs} offen {st}
              s_mov_b64 exec, -1
              v_bfe_u32 v{HA}, v{vL16}, 2, 7
              v_mov_b64 {vr(HD, 2)}, 0
              v_mov_b64 {vr(HD + 2, 2)}, 0""")
        stamp(15)
    e.barrier()
    e(f"""ds_read_b128 {vr(OA, 4)}, v{vL16} offset:{L_OB}
          ds_read_b128 {vr(OA + 4, 4)}, v{vL16} offset:{L_OB + 1024}""")
    hs = cfg.get('hs', (-1, 0, 3, 6))
    if ad and hs[0] == -1:
        ldH(0)()
    stamp(6)
    OUT = SPARE

    def pstore(c):
        return f"buffer_store_dwordx4 {vr(OUT + 4 * c, 4)}, v{vPst}, {W}, s{sPbaseS} offen offset:{c * 2048} {st}"

    tag = lambda j: f"v_and_or_b32 v{OUT + j}, v{OUT + j}, -2, s{sG}"
    seq = []
    for t in range(8):
        for kb in range(2):
            k, b = loc[('o', t, kb)]
            if t >= 2:
                p = post(MA + 4 * (t - 2), OUT + t - 2)
                fl = p[0:1] if kb == 0 else p[1:3]
                if kb == 0 and t % 2 == 1:
                    fl = fl + [tag(t - 3)]
            else:
                fl = ["s_nop 0"]
            n = 2 * t + kb
            if 1 <= n <= 8:
                fl = [wo[3 + n]] + fl
            if ad and n in hs:
                fl = [ldH(hs.index(n))] + [x for x in fl if x != "s_nop 0"]
            if kb == 0 and t == 6:
                fl = [pstore(0)] + fl
            seq.append((f"v_smfmac_f32_16x16x64_bf16 {vr(MA + 4 * t, 4)}, {vr(OA + 4 * kb, 4)}, {vr(b, 8, k)}, v{vIdx}", fl))
    if cfg.get('wd', 0):
        seq[1], seq[2] = (seq[2][0], seq[1][1]), (seq[1][0], seq[2][1] + ["s_nop 0"])
        seq[3] = (seq[3][0], seq[3][1] + ["s_nop 0"])
    e.slots(seq)
    PL, D, SEL, PL2 = MA + 8, MA + 16, MA + 20, MA + 24
    e("\n".join(post(MA + 24, OUT + 6) + [tag(6)]))
    e("\n".join(post(MA + 28, OUT + 7)))
    e(pstore(1))
    stamp(7)
    trace_out('late', MA)
    e(f"s_bitcmp1_b32 s{S_WAVE}, 0\n s_cbranch_scc1 L_x1_{sfx}")
    e.slot_hook = None
    st0 = e.state()
    ldP = [f"buffer_load_dwordx4 {vr(PL, 4)}, v{vL16}, {W}, s{sPbaseL} offen sc1",
           f"buffer_load_dwordx4 {vr(PL + 4, 4)}, v{vL16}, {W}, s{sPbaseL} offen offset:1024 sc1"]
    tP, dM, eM, gM = cfg.get('tP', (244, 388)), cfg.get('dM', (270, 150)), cfg.get('eM', 200), cfg.get('gM', (120, 116))
    if sfx == 's':
        tP, dM, gM = cfg.get('tPs', (900, 1100)), cfg.get('dMs', (900, 700)), cfg.get('gMs', (300, 300))
    for w in range(2):
        if w:
            e.raw(".p2align 6")
            e.label(f"L_x{w}_{sfx}"); e.set_state(st0)
        clk = [[12, 48][w]]
        pa = prep_a_lines()
        valu = [f"v_cndmask_b32 v{SEL + j}, 0, v{vSelC}, {sr(sSel + 2 * j, 2)}" for j in range(4)] + scalar_lines() + [l for l in pa if not l.startswith('ds_')]
        if diag:
            valu += [f"s_cmp_eq_u32 s{sStep}, 10", f"s_cselect_b32 s{sDbgT + 6}, s0, s{sDbgT + 6}"] + [f"s_cselect_b32 s{k}, 0, s{k}" for k in range(12, 16)]
        reads = [l for l in pa if l.startswith('ds_')]
        late_v = [l for l in pa if not l.startswith('ds_')]
        pool = [l for l in valu if l not in late_v]
        pool = [l for l in pool if not l.startswith('v_')] + [l for l in pool if l.startswith('v_')]
        merged = []
        for l in pool:
            if l.startswith('s_cselect'):
                merged[-1] += '\n' + l
            else:
                merged.append(l)
        pool = merged
        def until(t):
            while clk[0] + 4 <= t and pool:
                l = pool.pop(0); e(l); clk[0] += 4 * (1 + l.count('\n'))
            if clk[0] + 4 <= t:
                delay(e, t - clk[0]); clk[0] = t

        if ad:
            ev = [f"v_cmp_gt_u32 {sr(sHm + 2 * k, 2)}, s{sStep}, v{HD + k}" for k in range(4)] + [f"s_mov_b32 s{sCnt}, 0"]
            for k in range(4):
                ev += [f"s_cmp_lg_u64 {sr(sHm + 2 * k, 2)}, 0", f"s_addc_u32 s{sCnt}, s{sCnt}, 0"]
            if diag:
                ev += [f"s_add_u32 s15, s15, s{sCnt}"]
            ev += [f"s_mul_i32 s{sCnt}, s{sCnt}, {cfg.get('hm', 2)}"]
            until(tP[w] - 4 * len(ev) - 12)
            e("\n".join(ev))
            e(f"L_ad{w}_{sfx}:\n s_sub_u32 s{sCnt}, s{sCnt}, 1\n s_cbranch_scc0 L_ad{w}_{sfx}")
        else:
            until(tP[w])
        if sfx == 's' and cfg.get('ne', 0):
            assert not [l for l in pool if not l.startswith('v_')]
            e(f"""s_cmp_lg_u32 s{sStep}, s{sEnd}
                  s_cbranch_scc1 L_ho{w}
                  {export}
                  s_sub_u32 s{sMn2}, s{sMn2}, 0x8000
                  v_bfrev_b32 v{C0}, 2
                  v_cndmask_b32 v{vMst}, v{vMst}, v{C0}, {sr(sArm, 2)}
                  L_ho{w}:""")
        e.loose(ldP[0]); e.loose(ldP[1]); stamp(11)
        ldP2 = [x.replace(vr(PL, 4), vr(PL2, 4)).replace(vr(PL + 4, 4), vr(PL2 + 4, 4)) for x in ldP]
        need = scalar_lines()[:7]
        late_v = [l for l in pool if not l.startswith('v_') and l not in need and 's0' not in l] + late_v
        pool = [l for l in pool if l not in late_v]
        rest = reads + pool
        nsp = cfg.get('nsp', (10, 10))[w]
        e("\n".join(rest[:nsp]))
        if nsp is not None:
            delay(e, cfg.get('dP2', (60, 40))[w])
            e.loose(ldP2[0]); e.loose(ldP2[1])
        else:
            nsp = len(rest)
        spare = cfg.get('nsp', (10, 10))[w] is not None
        e("\n".join(rest[nsp:]))
        e(f"s_mov_b32 s{sNan}, 0")
        if diag:
            e.raw("  s_memtime s[0:1]")
        ny = 2 if spare else 0
        e(f"""s_waitcnt vmcnt({ny + 1})
              L_redP{w}_{sfx}:
              v_mfma_f32_16x16x32_bf16 {vr(D, 4)}, {vr(PL, 4)}, {vr(SEL, 4)}, 0
              s_waitcnt vmcnt({ny})
              v_mfma_f32_16x16x32_bf16 {vr(D, 4)}, {vr(PL + 4, 4)}, {vr(SEL, 4)}, {vr(D, 4)}
              v_xor_b32 v{C0}, s{sG}, v{PL}
              v_bitop3_b32 v{C0}, v{C0}, v{PL + 2}, s{sG} bitop3:0xf6
              v_bitop3_b32 v{C0}, v{C0}, v{PL + 4}, s{sG} bitop3:0xf6
              v_bitop3_b32 v{C0}, v{C0}, v{PL + 6}, s{sG} bitop3:0xf6
              v_and_b32 v{C0}, 1, v{C0}
              v_cmp_ne_u32 vcc, 0, v{C0}
              v_cmp_ne_u32 {sr(sFm, 2)}, 0, v{TMP + 3}
              {f's_cbranch_vccnz L_reP{w}_{sfx}' if not cfg.get('lb', 1) else ''}
              v_permlane32_swap_b32 v{D}, v{D + 2}
              v_permlane32_swap_b32 v{D + 1}, v{D + 3}
              v_add_f32 v{D}, v{D}, v{D + 2}
              v_add_f32 v{D + 1}, v{D + 1}, v{D + 3}
              {f's_cbranch_vccnz L_reP{w}_{sfx}' if cfg.get('lb', 1) else ''}
              v_permlane16_swap_b32 v{D}, v{D + 1}
              v_add_f32 v{D}, v{D}, v{D + 1}
              v_mov_b32_dpp v{D + 1}, v{D} quad_perm:[2,3,0,1] row_mask:0xf bank_mask:0xf
              v_cvt_pk_bf16_f32 v{D}, v{D}, v{D + 1}
              v_min_u32 v{D}, -2, v{D}
              v_cndmask_b32 v{VX + 4}, v{D}, -1, {sr(sArm, 2)}
              buffer_store_dword v{VX + 4}, v{vMst}, {W}, s{sMn2} offen {st}""")
        stamp(8)
        if sfx == 's' and cfg.get('ne', 0):
            e(f"s_cmp_eq_u32 s{sStep}, s{sEnd}\n s_cbranch_scc1 L_ec_done")
        pb = ["s_waitcnt vmcnt(1)"] + prep_b_lines()
        d = dM[w]
        if d >= 100 and cfg.get('pw', 0):
            e("\n".join(pb[1:-2])); d -= 72
            late_v = ["s_waitcnt vmcnt(2)"] + pb[-2:] + late_v; pb = []
        elif d >= 100:
            e("\n".join(pb)); d -= 100; pb = []
        delay(e, d)
        e.loose(mload(0)); stamp(12)
        d = gM[w]
        if pb:
            pb[0] = "s_waitcnt vmcnt(2)"
            e("\n".join(pb)); d -= 100
        gl = cfg.get('gL', 60)
        d -= gl
        k = max(0, min(len(late_v), d // 4))
        e("\n".join(late_v[:k])); d -= 4 * k
        delay(e, d)
        e.loose(mspare() if spec else mload(0))
        k2 = min(len(late_v), k + gl // 4)
        e("\n".join(late_v[k:k2])); delay(e, gl - 4 * (k2 - k)); k = k2
        e.loose(mload(1))
        e("\n".join(late_v[k:]))
        if lastsp:
            e(f"s_cmp_eq_u32 s{sStep}, 63\n s_cbranch_scc1 L_last_{sfx}")
        if ic:
            e(f"s_bitcmp1_b64 {sr(sFm, 2)}, s{sOK2}\n s_cbranch_scc0 L_flag_{sfx}")
            if e3:
                delay(e, cfg.get('g3', 20)); e.loose(mload(0))
            e(f"s_waitcnt vmcnt({2 + e3}) lgkmcnt(0)")
            e("\n".join(ce_ + [wrE]))
            e.loose(mload(1))
            e(f"s_cbranch_vccz L_step_{sfx}")
            e.loose(mload(0))
            for k in range(1 + e3):
                e(f"s_waitcnt vmcnt({3 + e3 if k == 0 else 2})")
                e("\n".join(ce_ + [wrE]))
                e(f"""{'s_add_u32 s13, s13, 1' if diag else ''}
                      s_cbranch_vccz L_step_{sfx}""")
            e(f"s_branch L_retE_{sfx}")
        else:
            e(f"""s_bitcmp1_b64 {sr(sFm, 2)}, s{sOK2}
                  s_waitcnt lgkmcnt(0)
                  s_cbranch_scc1 L_step_{sfx}
                  s_branch L_flag_{sfx}""")
        e.forget()
        e(f"L_reP{w}_{sfx}:")
        if spare:
            e("s_waitcnt vmcnt(0)")
            for j in range(0, 8, 2):
                e(f"v_mov_b64 {vr(PL + j, 2)}, {vr(PL2 + j, 2)}")
            e.loose(ldP2[0]); e.loose(ldP2[1])
        else:
            e.loose(ldP[0]); e.loose(ldP[1])
            e("s_waitcnt vmcnt(1)")
        e(f"""{'s_add_u32 s12, s12, 1' if diag else ''}
              s_sub_u32 s{S_SPIN}, s{S_SPIN}, 1
              s_cbranch_scc0 L_redP{w}_{sfx}
              s_branch L_end""")
    e.forget()
    e(f"""L_flag_{sfx}:
          v_lshrrev_b32 v{C0}, 2, v{vL16}
          buffer_load_dword v{C0}, v{C0}, {W}, s{sFl} offen sc1
          s_sub_u32 s{S_SPIN}, s{S_SPIN}, 1
          s_cbranch_scc1 L_end
          v_cmp_ne_u32 {sr(sFm, 2)}, 0, v{C0}
          s_bitcmp1_b64 {sr(sFm, 2)}, s{sOK2}
          s_cbranch_scc1 L_{'retE' if ic else 'step'}_{sfx}
          s_branch L_flag_{sfx}""")
    e.forget()
    if ic:
        e(f"L_retE_{sfx}:")
        e.loose(mload(1)); e.loose(mload(0))
        e(f"""{'s_add_u32 s15, s15, 1' if diag else ''}
              s_sub_u32 s{S_SPIN}, s{S_SPIN}, 1
              s_cbranch_scc1 L_end
              s_waitcnt vmcnt(2) lgkmcnt(0)""")
        e("\n".join(ce_ + [wrE]))
        e(f"s_cbranch_vccz L_step_{sfx}\n s_branch L_retE_{sfx}")
        e.forget()
    elif spec:
        e(f"""L_retE_{sfx}:
              s_waitcnt vmcnt(3)
              v_mov_b64 {vr(MA, 2)}, {vr(VX, 2)}
              v_mov_b64 {vr(MA + 2, 2)}, {vr(VX + 2, 2)}""")
        e.loose(mload(0))
        e(f"L_retE1_{sfx}:")
        e("\n".join(ce_))
        e(f"ds_write_b128 v{vMw}, {vr(MA, 4)}")
        for j in range(0, 12, 2):
            e(f"v_mov_b64 {vr(ACC + j, 2)}, 0")
        e(f"""{'s_add_u32 s13, s13, 1' if diag else 's_nop 0'}
              s_cbranch_vccz L_okE_{sfx}""")
        e.loose(mload(1)); e.loose(mload(0))
        e(f"""s_sub_u32 s{S_SPIN}, s{S_SPIN}, 1
              s_waitcnt vmcnt(2)
              s_cbranch_scc0 L_retE1_{sfx}
              s_branch L_end""")
        e.forget()
    else:
        e(f"L_retE_{sfx}:")
        e.loose(mload(0)); e.loose(mload(1))
        e(f"""{'s_add_u32 s13, s13, 1' if diag else ''}
              s_sub_u32 s{S_SPIN}, s{S_SPIN}, 1
              s_waitcnt vmcnt(3)
              s_cbranch_scc0 L_chkE_{sfx}
              s_branch L_end""")
    if xe:
        e(f"""L_retL_{sfx}:
              {'s_add_u32 s14, s14, 1' if diag else ''}
              s_sub_u32 s{S_SPIN}, s{S_SPIN}, 1
              s_cbranch_scc1 L_end
              s_bitcmp1_b32 s{sNan}, 0
              s_bitset1_b32 s{sNan}, 0
              s_waitcnt vmcnt(4)
              s_cbranch_scc0 L_retL1_{sfx}""")
        e.loose(mload(1))
        e(f"s_waitcnt vmcnt(0)\n L_retL1_{sfx}:")
    else:
        e(f"L_retL_{sfx}:")
        e.loose(mload(1))
        e(f"""{'s_add_u32 s14, s14, 1' if diag else ''}
              s_sub_u32 s{S_SPIN}, s{S_SPIN}, 1
              s_cbranch_scc1 L_end
              s_bitcmp1_b32 s{sNan}, 0
              s_bitset1_b32 s{sNan}, 0
              s_waitcnt vmcnt({3 - spec})
              s_cbranch_scc0 L_retL1_{sfx}
              s_waitcnt vmcnt(1)
              L_retL1_{sfx}:""")
    e("\n".join(cl_))
    e(f"""ds_write_b128 v{vMw}, {vr(MA + 4, 4)} offset:4096
          s_cbranch_vccz L_okL_{sfx}
          s_branch L_retL_{sfx}""")
    if not lastsp:
        return
    e.forget()
    e(f"L_lret_{sfx}:")
    e.loose(mload(0)); e.loose(mload(1))
    e(f"""s_sub_u32 s{S_SPIN}, s{S_SPIN}, 1
          s_cbranch_scc1 L_end
          L_last_{sfx}:
          s_waitcnt vmcnt(0) lgkmcnt(0)""")
    e("\n".join(check((0, 1))))
    e(f"""ds_write_b128 v{vMw}, {vr(MA, 4)}
          ds_write_b128 v{vMw}, {vr(MA + 4, 4)} offset:4096
          s_cbranch_vccnz L_lret_{sfx}""")
    own = [(m, ft, i) for i in (0, 1) for m in 'kv' for ft in range(2)]
    seq = [(P(*op), []) for op in own]
    if not xo:
        seq[0][1].append(export)
    seq[3][1].extend([progress, e.barrier, mread(2), mread(3)])
    for k in range(4):
        seq[4 + k][1].append(mread(4 + k))
    seq += [(P(m, ft, i), []) for i in range(2, 6) for m in 'kv' for ft in range(2)]
    seq += [(P(m, ft, i), []) for m in 'kv' for ft in range(2) for i in (6, 7)]
    e.slots(seq)
    e("\n".join(k0p + k1p + v0p + v1p))
    e("s_branch L_final")


def chain_final(e, cfg):
    e.forget()
    e("L_final:")
    if cfg.get('holdend'):
        e(f"""L_hold2:
              s_memrealtime s[92:93]
              s_waitcnt lgkmcnt(0)
              s_sub_u32 s92, s92, s94
              s_cmp_lt_u32 s92, {cfg['holdend']}
              s_cbranch_scc1 L_hold2""")
    e(f"""s_add_u32 s{sExp}, s{sExp}, {0 if cfg.get('xo', 0) else 4096}
          buffer_store_dwordx4 {vr(EX, 4)}, v{vL16}, {W}, s{sExp} offen sc1
          s_waitcnt lgkmcnt(0)""")
    if cfg.get('diag'):
        e(f"""s_memrealtime {sr(sDbgT + 12, 2)}
              s_lshl_b32 s{sA}, s{S_ROLE}, 2
              s_add_u32 s{sA}, s{sA}, s{S_WAVE}
              s_lshl_b32 s{sA}, s{sA}, 6
              s_add_u32 s{sA}, s{sA}, 0x6000000
              s_waitcnt lgkmcnt(0)
              s_sub_u32 s{sDbgT + 8}, s0, s{sDbgT + 6}""")
        for n, r in enumerate([sDbgT + 8, sDbgT + 5, S_SPIN, sDbgT + 14, sDbgT + 10, sDbgT + 12, 12, 13, 14, 15]):
            e(f"v_mov_b32 v{TMP + 2}, s{r}\n buffer_store_dword v{TMP + 2}, off, {W}, s{sA} offset:{4 * n}")
    dbg_max(e, cfg, 12, v=TMP + 2)
    e("s_waitcnt vmcnt(0)\n s_branch L_end")


def chain_handover(e, cfg):
    e.forget()
    e("L_ec_done:")
    if cfg.get('diag'):
        e(f"""s_memrealtime s[92:93]
              s_lshl_b32 s{sA}, s{S_HEAD}, 2
              s_add_u32 s{sA}, s{sA}, s{S_WAVE}
              s_lshl_b32 s{sA}, s{sA}, 6
              s_add_u32 s{sA}, s{sA}, 0x6400000
              s_waitcnt lgkmcnt(0)""")
        for n, r in enumerate([94, 82, 80, 90, 92, 12, 13, 14]):
            e(f"v_mov_b32 v{PM}, s{r}\n buffer_store_dword v{PM}, off, {W}, s{sA} offset:{4 * n}")
    e(f"""
          v_mbcnt_lo_u32_b32 v0, -1, 0
          v_mbcnt_hi_u32_b32 v0, -1, v0
          s_sub_u32 s50, s{S_ROLE}, 32
          s_waitcnt vmcnt(0) lgkmcnt(0)
          s_barrier
          s_branch L_phase2""")


def chain(e, cfg):
    CFG.clear(); CFG.update(cfg)
    chain_startup(e, cfg)
    chain_loop(e, cfg, 'f', '')
    chain_loop(e, cfg, 's', 'sc1')
    chain_final(e, cfg)
    if cfg.get('ne', 0):
        chain_handover(e, cfg)
```

```python
from common import *

W = sr(S_WS, 4)
DBG = sr(S_DBG, 4)
sWid, sA, sB, sC_, sD, sE, sF, sG, sH, sI, sJ, sK = range(50, 62)
S_W0, S_W1, S_W2, S_X = 64, 68, 72, 76
PS = [4]
NEG = 0xf149f2ca


def wait_init(e, tag, tmp, nap=16):
    e(f"""L_wi_{tag}:
          s_sleep {nap}
          buffer_load_dword v{tmp}, off, {DBG}, 0 offset:{D_INIT} sc1
          s_sub_u32 s{S_SPIN}, s{S_SPIN}, 1
          s_cbranch_scc1 L_end
          v_readfirstlane_b32 s{sA}, v{tmp}
          s_and_b32 s{sA}, s{sA}, 0xffff
          s_cmp_eq_u32 s{sA}, 256
          s_cbranch_scc0 L_wi_{tag}""")


def count_in(e, tmp):
    e(f"""v_mov_b32 v{tmp}, 1
          s_mov_b64 exec, 1
          buffer_atomic_add v{tmp}, off, {DBG}, 0 offset:{D_INIT}
          s_mov_b64 exec, -1""")


def srd_sel(e, s, pa, pb, na, nb):
    e(f"""s_cselect_b32 s{s}, s{pa}, s{pb}
          s_cselect_b32 s{s+1}, s{pa+1}, s{pb+1}
          s_mov_b32 s{s+2}, {nb}
          s_cselect_b32 s{s+2}, {na}, s{s+2}
          s_mov_b32 s{s+3}, 0x20000""")


def lane_consts(e, lane, l16, sig):
    e(f"""v_and_b32 v{lane}, 63, v0
          v_lshlrev_b32 v{l16}, 4, v{lane}
          v_and_b32 v{sig}, 39, v{lane}
          v_bfe_u32 v{lane + 1}, v{lane}, 3, 1
          v_lshl_or_b32 v{sig}, v{lane + 1}, 4, v{sig}
          v_bfe_u32 v{lane + 1}, v{lane}, 4, 1
          v_lshl_or_b32 v{sig}, v{lane + 1}, 3, v{sig}
          v_lshlrev_b32 v{sig}, 4, v{sig}""")


XROW = 1040
XBUF = 32 * XROW
RING0 = 33792


def proj(e, cfg):
    lane, t1, vL16, vSig, vSrc, vTr, vXr, vT, vIn = 1, 2, 3, 4, 5, 6, 7, 8, 9
    XF, ACC, OUT = 16, 32, 80
    sHH, sSeg, sStride, sCol, sUnit, sFlag, sXb, sPrev = sC_, sD, sE, sF, sG, sH, sI, sJ
    NP = 5 if cfg.get('ne', 0) or cfg.get('nb', 3) == 3 else 6
    e(f"""s_mul_i32 s{sHH}, s63, {205 if NP == 5 else 171}
          s_lshr_b32 s{sHH}, s{sHH}, 10
          s_mul_i32 s{sA}, s{sHH}, {NP}
          s_sub_u32 s{sSeg}, s63, s{sA}
          s_cmp_lt_u32 s{sHH}, 32""")
    srd_sel(e, S_W0, P_WQ, P_AWQKV, 0x400000, 0x180000)
    srd_sel(e, S_W1, P_WK, P_AWQKV, 0x400000, 0x180000)
    srd_sel(e, S_W2, P_WV, P_AWQKV, 0x400000, 0x180000)
    srd_sel(e, S_X, P_BX, P_AX, 0x200000, 0x200000)
    e(f"""s_mov_b32 s{sStride}, 3072
          s_cselect_b32 s{sStride}, 8192, s{sStride}
          s_cselect_b32 s{sK}, 0, 1024
          s_and_b32 s{sCol}, s{sHH}, 31
          s_lshl_b32 s{sCol}, s{sCol}, 8""")
    lane_consts(e, lane, vL16, vSig)
    e(f"""v_lshrrev_b32 v{t1}, 4, v{lane}
          v_mul_lo_u32 v{vSrc}, v{t1}, s{sStride}
          v_lshlrev_b32 v{t1}, 2, v{t1}
          v_xor_b32 v{t1}, v{t1}, v{lane}
          v_and_b32 v{t1}, 15, v{t1}
          v_lshl_add_u32 v{vSrc}, v{t1}, 4, v{vSrc}""")
    e(f"""v_lshrrev_b32 v{t1}, 5, v{lane}
          v_lshlrev_b32 v{vTr}, 11, v{t1}
          v_bfe_u32 v{t1}, v{lane}, 2, 2
          v_lshl_add_u32 v{vTr}, v{t1}, 8, v{vTr}
          v_bfe_u32 v{t1}, v{lane}, 4, 1
          v_lshl_add_u32 v{vTr}, v{t1}, 5, v{vTr}
          v_and_b32 v{t1}, 3, v{lane}
          v_lshl_add_u32 v{vTr}, v{t1}, 3, v{vTr}
          v_bfe_u32 v{t1}, v{lane}, 2, 2
          v_xor_b32 v{t1}, s{S_WAVE}, v{t1}
          v_lshl_add_u32 v{vTr}, v{t1}, 6, v{vTr}""")
    e(f"""v_and_b32 v{t1}, 31, v{lane}
          v_mul_u32_u24 v{vXr}, {XROW}, v{t1}
          v_lshrrev_b32 v{t1}, 5, v{lane}
          v_lshl_add_u32 v{vXr}, v{t1}, 4, v{vXr}""")
    e(f"""s_lshl_b32 s{sA}, s{sHH}, 6
          s_add_u32 s{sA}, s{sA}, s{sSeg}
          s_mul_i32 s{sUnit}, s{sA}, {UNIT}
          s_lshl_b32 s{sB}, s{S_WAVE}, 11
          s_add_u32 s{sUnit}, s{sUnit}, s{sB}
          s_lshl_b32 s{sFlag}, s{sA}, 2
          s_add_u32 s{sFlag}, s{sFlag}, {F_QKV}
          s_mov_b32 s{sXb}, 0""")

    def xdma(seg_s, buf_s):
        e(f"""s_lshl_b32 s{sA}, s{seg_s}, 15
              s_lshl_b32 s{sB}, s{S_WAVE}, 13
              s_add_u32 s{sA}, s{sA}, s{sB}
              s_mul_i32 s{sB}, s{S_WAVE}, {8 * XROW}
              s_add_u32 s{sB}, s{sB}, s{buf_s}""")
        return [f"""s_add_u32 m0, s{sB}, {j * XROW}
                  s_add_u32 s3, s{sA}, {j * 1024}
                  buffer_load_dwordx4 v{vL16}, {sr(S_X, 4)}, s3 offen lds""" for j in range(8)]

    if cfg.get('wpf', 0):
        e.comment("the six workers of a head each request a sixth of its weights at once (one word per line)")
        e(f"""s_lshr_b32 s62, s{sSeg}, 1
              s_cmp_eq_u32 s62, 1
              s_cselect_b32 s{S_T0}, s{S_W1}, s{S_W0}
              s_cselect_b32 s{S_T0 + 1}, s{S_W1 + 1}, s{S_W0 + 1}
              s_cmp_eq_u32 s62, 2
              s_cselect_b32 s{S_T0}, s{S_W2}, s{S_T0}
              s_cselect_b32 s{S_T0 + 1}, s{S_W2 + 1}, s{S_T0 + 1}
              s_mov_b32 s{S_T0 + 2}, s{S_W0 + 2}
              s_mov_b32 s{S_T0 + 3}, 0x20000
              s_mul_i32 s62, s62, s{sK}
              s_add_u32 s62, s62, s{sCol}
              s_and_b32 s63, s{sSeg}, 1
              s_lshl_b32 s63, s63, 2
              s_add_u32 s63, s63, s{S_WAVE}
              s_lshl_b32 s63, s63, 6
              s_mul_i32 s63, s63, s{sStride}
              s_add_u32 s62, s62, s63
              v_mul_lo_u32 v{vT}, v{lane}, s{sStride}""")
        e.loose(f"buffer_load_dword v124, v{vT}, {sr(S_T0, 4)}, s62 offen")
        e.loose(f"buffer_load_dword v124, v{vT}, {sr(S_T0, 4)}, s62 offen offset:128")
    if cfg.get('wh', 0):
        e.comment("the projections have slack: leave the memory system to the first requests of the recurrence")
        e(f"s_sleep {cfg['wh']}")
    for l in xdma(sSeg, sXb):
        e(l)
    sRow = sPrev
    e(f"""s_lshl_b32 s{sA}, s{S_WAVE}, 4
          s_mul_i32 s{sRow}, s{sA}, s{sStride}
          s_add_u32 s{sRow}, s{sRow}, s{sCol}
          s_lshl_b32 s62, s{sStride}, 2
          s_lshl_b32 s63, s{S_WAVE}, 12""")
    order = cfg.get('po', [0, 1, 2])
    srds = [S_W0, S_W1, S_W2]
    dst = [('a', 0), ('a', 128), ('v', 128)]
    marks = {}

    def dma(r):
        m, b = order[r // 8], r % 8
        e(f"""s_mul_i32 s{sA}, s{sStride}, {64 * b}
              s_add_u32 s{sA}, s{sA}, s{sRow}
              s_mul_i32 s{sB}, s{sK}, {m}
              s_add_u32 s{sA}, s{sA}, s{sB}""")
        for j in range(4):
            e(f"""s_add_u32 m0, s63, {RING0 + (r % 7) * 16384 + j * 1024}
                  buffer_load_dwordx4 v{vSrc}, {sr(srds[m], 4)}, s{sA} offen lds""")
            if j < 3:
                e(f"s_add_u32 s{sA}, s{sA}, s62")
        marks[r] = e.vm[-1]

    for r in range(6):
        dma(r)
    confirm_barrier(e, 'pj')
    for r in range(24):
        m, b = order[r // 8], r % 8
        e.wait(vm=len(e.vm) - 1 - e.vm.index(marks[r]), lgkm=0)
        e("s_barrier")
        if r == 18:
            e(f"buffer_load_dword v{vT + 1}, off, {DBG}, 0 offset:{D_INIT} sc1")
        if r + 6 < 24:
            dma(r + 6)
        e(f"v_add_u32 v{vT + 2}, {RING0 + (r % 7) * 16384}, v{vTr}")
        k, base = dst[m]
        for ksl in range(4):
            for z in range(2):
                e(f"ds_read_b64_tr_b16 {vr(base + 4 * (4 * b + ksl) + 2 * z, 2, k)}, v{vT + 2} offset:{(16 * ksl + 4 * z) * 256}")
    e.wait(vm=0, lgkm=0)
    dbg_max(e, cfg, 14, v=vT + 3)
    e(f"""v_readfirstlane_b32 s{sA}, v{vT + 1}
          s_and_b32 s{sA}, s{sA}, 0xffff
          s_cmp_eq_u32 s{sA}, 256
          s_cbranch_scc1 L_pj_go""")
    wait_init(e, 'pj', vT)
    e.label("L_pj_go")
    if cfg.get('pjhold'):
        e(f"""L_hold3:
              s_memrealtime s[92:93]
              s_waitcnt lgkmcnt(0)
              s_sub_u32 s92, s92, s94
              s_cmp_lt_u32 s92, {cfg['pjhold']}
              s_cbranch_scc1 L_hold3""")
    if cfg.get('diag'):
        e("s_memrealtime s[86:87]\n s_waitcnt lgkmcnt(0)")
    e(f"s_mov_b32 s{sPrev}, 0\n v_mov_b32 v{vIn}, 1")
    e.forget()
    e.label("L_pj_loop")
    e(f"""s_waitcnt vmcnt(6)
          s_barrier
          v_add_u32 v{vT}, s{sXb}, v{vXr}
          s_add_u32 s62, s{sSeg}, {NP}
          s_min_u32 s62, s62, 63
          s_sub_u32 s63, {XBUF}, s{sXb}""")
    nxt = xdma(62, 63)
    for ks in range(3):
        e(f"ds_read_b128 {vr(XF + 4 * ks, 4)}, v{vT} offset:{32 * ks}")
    for ks in range(32):
        x = vr(XF + 4 * (ks % 4), 4)
        c = [('0' if ks == 0 else vr(ACC + 16 * m, 16)) for m in range(3)]
        e(f"v_mfma_f32_32x32x16_bf16 {vr(ACC, 16)}, {vr(4 * ks, 4, 'a')}, {x}, {c[0]}")
        if ks + 3 < 32:
            e(f"ds_read_b128 {vr(XF + 4 * ((ks + 3) % 4), 4)}, v{vT} offset:{32 * (ks + 3)}")
        e(f"v_mfma_f32_32x32x16_bf16 {vr(ACC + 16, 16)}, {vr(128 + 4 * ks, 4, 'a')}, {x}, {c[1]}")
        if ks < 8:
            e(nxt[ks])
        if ks == 20:
            e.comment("the previous segment's stores of every wave are complete behind this barrier: raise its flag")
            e(f"""s_waitcnt vmcnt(8)
                  s_barrier
                  s_cmp_eq_u32 s{sPrev}, 0
                  s_cbranch_scc1 L_pj_nf
                  s_mov_b64 exec, 1
                  buffer_store_dword v{vIn}, off, {W}, s{sPrev} sc1
                  s_mov_b64 exec, -1
                  L_pj_nf:""")
            e.vm.pop()
        e(f"v_mfma_f32_32x32x16_bf16 {vr(ACC + 32, 16)}, {x}, {vr(128 + 4 * ks, 4)}, {c[2]}")
    for m in range(3):
        for j in range(8):
            e(f"v_cvt_pk_bf16_f32 v{OUT + 8 * m + j}, v{ACC + 16 * m + 2 * j}, v{ACC + 16 * m + 2 * j + 1}")
        a = vSig if m == 1 else vL16
        e(f"""s_add_u32 s{sA}, s{sUnit}, {8192 * m}
              buffer_store_dwordx4 {vr(OUT + 8 * m, 4)}, v{a}, {W}, s{sA} offen sc1
              buffer_store_dwordx4 {vr(OUT + 8 * m + 4, 4)}, v{a}, {W}, s{sA} offen offset:1024 sc1""")
    e(f"""s_cmp_eq_u32 s{S_WAVE}, 0
          s_cselect_b32 s{sPrev}, s{sFlag}, 0
          s_cmp_ge_u32 s{sSeg}, {NP}
          s_cbranch_scc1 L_pj_later
          s_waitcnt vmcnt(0)
          s_barrier
          s_cmp_eq_u32 s{sPrev}, 0
          s_cbranch_scc1 L_pj_later
          s_mov_b64 exec, 1
          buffer_store_dword v{vIn}, off, {W}, s{sPrev} sc1
          s_mov_b64 exec, -1
          L_pj_later:
          s_add_u32 s{sFlag}, s{sFlag}, {4 * NP}
          s_add_u32 s{sUnit}, s{sUnit}, {NP * UNIT}
          s_sub_u32 s{sXb}, {XBUF}, s{sXb}
          s_add_u32 s{sSeg}, s{sSeg}, {NP}
          s_cmp_lt_u32 s{sSeg}, 64
          s_cbranch_scc1 L_pj_loop
          s_waitcnt vmcnt(0)
          s_barrier
          s_cmp_eq_u32 s{sPrev}, 0
          s_cbranch_scc1 L_phase2
          s_mov_b64 exec, 1
          buffer_store_dword v{vIn}, off, {W}, s{sPrev} sc1
          s_mov_b64 exec, -1""")


def poll_ge(e, tag, tmp, voff, soff, cmpv, nl):
    off = f"v{voff}" if voff is not None else "off"
    e(f"""L_pg_{tag}:
          buffer_load_dword v{tmp}, {off}, {W}, {soff} {'offen' if voff is not None else ''} sc1
          s_sub_u32 s{S_SPIN}, s{S_SPIN}, 1
          s_cbranch_scc1 L_end
          v_cmp_gt_u32 vcc, {cmpv}, v{tmp}
          s_and_b32 vcc_lo, vcc_lo, {(1 << nl) - 1}
          s_cbranch_scc0 L_pk_{tag}
          s_sleep {PS[0]}
          s_branch L_pg_{tag}
          L_pk_{tag}:""")


def nap_until(e, tag, tmp, soff, need, st, unit):
    e(f"""L_nap_{tag}:
          buffer_load_dword v{tmp}, off, {W}, {soff} sc1
          s_sub_u32 s{S_SPIN}, s{S_SPIN}, 1
          s_cbranch_scc1 L_end
          v_readfirstlane_b32 s{st}, v{tmp}
          s_sub_u32 s{st}, {need}, s{st}
          s_cbranch_scc1 L_napx_{tag}
          s_cmp_eq_u32 s{st}, 0
          s_cbranch_scc1 L_napx_{tag}
          s_min_u32 s{st}, s{st}, 8
          L_napl_{tag}:
          s_sleep {unit}
          s_sub_u32 s{st}, s{st}, 1
          s_cmp_lg_u32 s{st}, 0
          s_cbranch_scc1 L_napl_{tag}
          s_branch L_nap_{tag}
          L_napx_{tag}:""")


def tstamp(e, cfg, n):
    if cfg.get('tdiag'):
        e(f"s_memrealtime {sr(20 + 2 * n, 2)}\n s_waitcnt lgkmcnt(0)")


def tdump(e, cfg):
    if cfg.get('tdiag'):
        e(f"""s_lshl_b32 s{sA}, s{S_ROLE}, 2
              s_add_u32 s{sA}, s{sA}, s{S_WAVE}
              s_lshl_b32 s{sA}, s{sA}, 5
              s_add_u32 s{sA}, s{sA}, 0x6500000""")
        for n in range(6):
            e(f"v_mov_b32 v2, s{20 + 2 * n}\n buffer_store_dword v2, off, {W}, s{sA} offset:{4 * n}")


def softmax_tail(e, vals, m0, m1, sC):
    v = list(vals)
    e(f"v_max3_f32 v{m0}, v{v[0]}, v{v[1]}, v{v[2]}")
    k = 3
    while k + 1 < len(v):
        e(f"v_max3_f32 v{m0}, v{m0}, v{v[k]}, v{v[k + 1]}"); k += 2
    if k < len(v):
        e(f"v_max_f32 v{m0}, v{m0}, v{v[k]}")
    e(f"""v_mov_b32 v{m1}, v{m0}
          v_permlane32_swap_b32 v{m0}, v{m1}
          v_max_f32 v{m0}, v{m0}, v{m1}
          v_mul_f32 v{m0}, s{sC}, v{m0}""")
    for r in v:
        e(f"v_fma_f32 v{r}, v{r}, s{sC}, -v{m0}")
    for r in v:
        e(f"v_exp_f32 v{r}, v{r}")
    e(f"v_add_f32 v{m0}, v{v[0]}, v{v[1]}\n v_add_f32 v{m1}, v{v[2]}, v{v[3]}")
    for k in range(4, len(v), 2):
        e(f"v_add_f32 v{m0}, v{m0}, v{v[k]}\n v_add_f32 v{m1}, v{m1}, v{v[k + 1]}")
    e(f"""v_add_f32 v{m0}, v{m0}, v{m1}
          v_mov_b32 v{m1}, v{m0}
          v_permlane32_swap_b32 v{m0}, v{m1}
          v_add_f32 v{m0}, v{m0}, v{m1}
          v_rcp_f32 v{m0}, v{m0}""")


def attn_b(e, cfg):
    lane, t1, vL16, vSig, vVm, vKm, vT, m0, m1, vOne, vF, vLw = range(1, 13)
    BIAS, Q, K, V, S, D0, D1, KM, VM, PX, PMm, O = 16, 32, 64, 96, 128, 144, 160, 176, 192, 208, 216, 128
    sSeg, sUnit, sExp, sOut, sFq, sFc, sFa, sCc, sLds = sC_, sD, sE, sF, sG, sH, sI, sJ, sK
    h = sWid
    lane_consts(e, lane, vL16, vSig)
    e(f"""v_and_b32 v{t1}, 31, v{lane}
          v_lshrrev_b32 v{vT}, 5, v{lane}
          v_lshlrev_b32 v{vT}, 2, v{vT}
          v_sub_u32 v{t1}, v{t1}, v{vT}
          v_mov_b32 v{vT}, {NEG}""")
    for r in range(16):
        e(f"v_cmp_gt_i32 vcc, {8 * (r >> 2) + (r & 3)}, v{t1}\n v_cndmask_b32 v{BIAS + r}, 0, v{vT}, vcc")
    e(f"""v_lshrrev_b32 v{t1}, 5, v{lane}
          v_lshlrev_b32 v{vVm}, 8, v{t1}
          v_and_b32 v{t1}, 15, v{lane}
          v_lshl_add_u32 v{vVm}, v{t1}, 4, v{vVm}
          v_bfe_u32 v{t1}, v{lane}, 4, 1
          v_lshl_add_u32 v{vVm}, v{t1}, 2, v{vVm}
          v_add_u32 v{vVm}, 8, v{vVm}""")
    e(f"""s_lshl_b32 s{sLds}, s{S_WAVE}, 12
          v_and_b32 v{t1}, 3, v{lane}
          v_lshlrev_b32 v{vKm}, 8, v{t1}
          v_lshrrev_b32 v{t1}, 5, v{lane}
          v_lshl_add_u32 v{vKm}, v{t1}, 6, v{vKm}
          v_bfe_u32 v{t1}, v{lane}, 2, 2
          v_lshl_add_u32 v{vKm}, v{t1}, 4, v{vKm}
          v_add_u32 v{vKm}, s{sLds}, v{vKm}
          v_add_u32 v{vVm}, s{sLds}, v{vVm}
          v_add_u32 v{vLw}, s{sLds}, v{vL16}
          v_and_b32 v{vF}, 3, v{lane}
          v_lshlrev_b32 v{vF}, 2, v{vF}
          v_mov_b32 v{vOne}, 1""")
    for wc in range(4):
        e(f"v_mov_b64 {vr(VM + 4 * wc + 2, 2)}, 0")
    e(f"v_mov_b64 {vr(PMm + 2, 2)}, 0")
    e(f"""s_mov_b32 s{sSeg}, s{S_WAVE}
          s_lshl_b32 s{sA}, s{h}, 6
          s_add_u32 s{sA}, s{sA}, s{sSeg}
          s_mul_i32 s{sUnit}, s{sA}, {UNIT}
          s_lshl_b32 s{sExp}, s{sA}, 12
          s_add_u32 s{sExp}, s{sExp}, {WS_EXP}
          s_lshl_b32 s{sFq}, s{sA}, 2
          s_add_u32 s{sFq}, s{sFq}, {F_QKV}
          s_lshl_b32 s{sFc}, s{h}, 7
          s_add_u32 s{sFc}, s{sFc}, {F_CH}
          s_lshl_b32 s{sA}, s{sSeg}, 5
          s_add_u32 s{sA}, s{sA}, s{h}
          s_lshl_b32 s{sOut}, s{sA}, 13
          s_add_u32 s{sOut}, s{sOut}, {WS_OF}
          s_lshr_b32 s{sFa}, s{sA}, 3
          s_lshl_b32 s{sFa}, s{sFa}, 7
          s_and_b32 s{sA}, s{h}, 7
          s_lshl_b32 s{sA}, s{sA}, 2
          s_add_u32 s{sFa}, s{sFa}, s{sA}
          s_add_u32 s{sFa}, s{sFa}, {F_AT}
          s_mov_b32 s{sCc}, 0x3e0293ee""")
    e.wait(vm=0, lgkm=0)
    e.label("L_ab_loop")
    poll_ge(e, 'abq', vT, None, f"s{sFq}", 1, 1)
    e(f"s_add_u32 s{sA}, s{sUnit}, 4096")
    for base, a, off in ((K, vSig, 8192), (Q, vL16, 0), (V, vL16, 16384)):
        e(f"s_add_u32 s{sA}, s{sUnit}, {off}\n s_add_u32 s{sB}, s{sUnit}, {off + 4096}")
        for j in range(8):
            e(f"buffer_load_dwordx4 {vr(base + 4 * j, 4)}, v{a}, {W}, s{sA if j < 4 else sB} offen offset:{1024 * (j & 3)} sc1")
    for j in range(8):
        c = vr(BIAS, 16) if j == 0 else vr(S, 16)
        e(f"v_mfma_f32_32x32x16_bf16 {vr(S, 16)}, {vr(K + 4 * j, 4)}, {vr(Q + 4 * j, 4)}, {c}")
    e(f"""s_add_u32 s{sA}, s{sSeg}, 1
          s_sub_u32 s62, s{sSeg}, 1
          s_min_u32 s62, s62, 61
          s_cmp_ge_u32 s{sSeg}, {64 - NTAIL}
          s_cselect_b32 s{sA}, s62, s{sA}
          s_sub_u32 s62, s{sA}, 1""")
    e.wait(vm=0)
    if cfg.get('nap', 1):
        nap_until(e, 'ab', vT, f"s{sFc}", "s62", sB, cfg.get('napu', 24))
    poll_ge(e, 'abc', vT, vF, f"s{sFc}", f"s{sA}", 4)
    e(f"s_mov_b32 s62, {SENT1}\n s_branch L_ab_ex1\n L_ab_ex:\n s_sleep {cfg.get('exs', 0)}\n L_ab_ex1:")
    for j in range(4):
        e(f"buffer_load_dwordx4 {vr(D0 + 4 * j, 4)}, v{vL16}, {W}, s{sExp} offen offset:{1024 * j} sc1")
    e(f"s_sub_u32 s{S_SPIN}, s{S_SPIN}, 1\n s_cbranch_scc1 L_end")
    for j in range(16):
        e(f"v_xor_b32 v{D1 + j}, s62, v{D0 + j}")
    for j in range(4):
        e(f"ds_write_b128 v{vLw}, {vr(D0 + 4 * j, 4)} offset:{1024 * j}")
    e(f"v_min3_u32 v{vT}, v{D1}, v{D1 + 1}, v{D1 + 2}")
    for j in range(3, 15, 2):
        e(f"v_min3_u32 v{vT}, v{vT}, v{D1 + j}, v{D1 + j + 1}")
    e(f"""v_min_u32 v{vT}, v{vT}, v{D1 + 15}
          v_cmp_eq_u32 vcc, 0, v{vT}
          s_waitcnt lgkmcnt(0)
          s_cbranch_vccnz L_ab_ex""")
    tstamp(e, cfg, 0)
    for wc in range(4):
        e(f"ds_read2st64_b32 {vr(VM + 4 * wc, 2)}, v{vVm} offset0:{4 * wc} offset1:{4 * wc + 2}")
    for wc in range(4):
        for z in range(2):
            e(f"ds_read_b64_tr_b16 {vr(KM + 4 * wc + 2 * z, 2)}, v{vKm} offset:{1024 * wc + 128 * z}")
    for wc in range(4):
        for ab, D in ((0, D0), (1, D1)):
            c = '0' if wc == 0 else vr(D, 16)
            e(f"v_mfma_f32_32x32x16_bf16 {vr(D, 16)}, {vr(KM + 4 * wc, 4)}, {vr(Q + 4 * (2 * wc + ab), 4)}, {c}")
    sm = [D0, D0 + 1, D0 + 4, D0 + 5]
    for r in sm:
        e(f"v_add_f32 v{r}, v{r}, v{r - D0 + D1 + 2}")
    tstamp(e, cfg, 1)
    softmax_tail(e, [S + r for r in range(16)] + sm, m0, m1, sCc)
    tstamp(e, cfg, 2)
    for j in range(8):
        e(f"v_cvt_pk_bf16_f32 v{PX + j}, v{S + 2 * j}, v{S + 2 * j + 1}")
    e(f"v_cvt_pk_bf16_f32 v{PMm}, v{D0}, v{D0 + 1}\n v_cvt_pk_bf16_f32 v{PMm + 1}, v{D0 + 4}, v{D0 + 5}")
    for wc in range(4):
        o = vr(O + 16 * wc, 16)
        e(f"""v_mfma_f32_32x32x16_bf16 {o}, {vr(V + 8 * wc, 4)}, {vr(PX, 4)}, 0
              v_mfma_f32_32x32x16_bf16 {o}, {vr(V + 8 * wc + 4, 4)}, {vr(PX + 4, 4)}, {o}
              v_mfma_f32_32x32x16_bf16 {o}, {vr(VM + 4 * wc, 4)}, {vr(PMm, 4)}, {o}""")
    e(f"s_add_u32 s{sB}, s{sOut}, 4096")
    for wc in range(4):
        o = O + 16 * wc
        for j in range(16):
            e(f"v_mul_f32 v{o + j}, v{o + j}, v{m0}")
        for j in range(8):
            e(f"v_cvt_pk_bf16_f32 v{Q + 8 * wc + j}, v{o + 2 * j}, v{o + 2 * j + 1}")
        for ab in range(2):
            j = 2 * wc + ab
            e(f"buffer_store_dwordx4 {vr(Q + 4 * j, 4)}, v{vL16}, {W}, s{sOut if j < 4 else sB} offen offset:{1024 * (j & 3)} sc1")
    tstamp(e, cfg, 3)
    e("s_waitcnt vmcnt(0)")
    tstamp(e, cfg, 4)
    e(f"""s_mov_b64 exec, 1
          buffer_store_dword v{vOne}, off, {W}, s{sFa} sc1
          s_mov_b64 exec, -1
          s_add_u32 s{sUnit}, s{sUnit}, {4 * UNIT}
          s_add_u32 s{sExp}, s{sExp}, {4 * 4096}
          s_add_u32 s{sFq}, s{sFq}, 16
          s_add_u32 s{sOut}, s{sOut}, {4 * 32 * 8192}
          s_add_u32 s{sFa}, s{sFa}, {4 * 512}
          s_add_u32 s{sSeg}, s{sSeg}, 4
          s_cmp_lt_u32 s{sSeg}, 64
          s_cbranch_scc1 L_ab_loop""")
    tdump(e, cfg)
    e("s_branch L_end")


def out_b(e, cfg):
    lane, t1, vL16, vSrc, vTr, vO, vSt, vT, vF, vRw, vRr = range(1, 12)
    ACC, RD = 16, 32
    sU, sSl, sRow, sLds, sOf, sFa, sTog = sC_, sD, sE, sF, sG, sH, sI
    sHi = 72
    srd(e, S_W0, P_WO, 0x400000)
    srd(e, S_W1, P_OUT, 0x400000)
    e(f"""s_sub_u32 s{sU}, s{sWid}, 64
          s_and_b32 s{sSl}, s{sU}, 15
          s_lshr_b32 s{sU}, s{sU}, 4
          s_cmp_ge_u32 s{sU}, {cfg.get('ng', 8 if cfg.get('nb', 3) >= 2 else 10)}
          s_cbranch_scc1 L_end
          v_and_b32 v{lane}, 63, v0
          v_lshlrev_b32 v{vL16}, 4, v{lane}
          v_and_b32 v{vF}, 7, v{lane}
          v_lshlrev_b32 v{vF}, 2, v{vF}""")
    e(f"""v_lshrrev_b32 v{t1}, 2, v{lane}
          v_lshlrev_b32 v{vSrc}, 10, v{t1}
          v_and_b32 v{t1}, 3, v{lane}
          v_lshl_add_u32 v{vSrc}, v{t1}, 4, v{vSrc}
          s_lshl_b32 s{sRow}, s{S_WAVE}, 20
          s_lshl_b32 s{sA}, s{sSl}, 6
          s_add_u32 s{sRow}, s{sRow}, s{sA}
          s_lshl_b32 s{sLds}, s{S_WAVE}, 15""")
    e(f"""v_lshlrev_b32 v{vTr}, 3, v{t1}
          v_lshrrev_b32 v{t1}, 5, v{lane}
          v_lshl_add_u32 v{vTr}, v{t1}, 10, v{vTr}
          v_bfe_u32 v{t1}, v{lane}, 2, 3
          v_lshl_add_u32 v{vTr}, v{t1}, 6, v{vTr}
          v_add_u32 v{vTr}, s{sLds}, v{vTr}""")
    e(f"""v_lshrrev_b32 v{t1}, 4, v{lane}
          v_lshlrev_b32 v{vO}, 9, v{t1}
          v_lshlrev_b32 v{vSt}, 3, v{t1}
          v_and_b32 v{t1}, 7, v{lane}
          v_lshl_add_u32 v{vO}, v{t1}, 4, v{vO}
          v_lshl_add_u32 v{vSt}, v{t1}, 11, v{vSt}
          v_and_b32 v{t1}, 8, v{lane}
          v_cmp_ne_u32 {sr(sHi, 2)}, 0, v{t1}
          v_lshl_add_u32 v{vO}, v{t1}, 8, v{vO}
          v_lshl_add_u32 v{vSt}, v{t1}, 27, v{vSt}
          s_lshl_b32 s{sA}, s{S_WAVE}, 11
          s_add_u32 s{sA}, s{sA}, 131072
          v_add_u32 v{vRw}, s{sA}, v{vL16}
          s_lshl_b32 s{sA}, s{S_WAVE}, 10
          s_add_u32 s{sA}, s{sA}, 131072
          v_add_u32 v{vRr}, s{sA}, v{vL16}""")
    e.wait(vm=0, lgkm=0)
    e("s_barrier")
    marks = {}

    def dma(ks):
        for j in range(2):
            e(f"""s_add_u32 m0, s{sLds}, {(ks % 16) * 2048 + j * 1024}
                  s_add_u32 s{sA}, s{sRow}, {(32 * ks + 16 * j) * 1024}
                  buffer_load_dwordx4 v{vSrc}, {sr(S_W0, 4)}, s{sA} offen lds""")
        marks[ks] = e.vm[-1]

    for ks in range(15):
        dma(ks)
    for ks in range(32):
        e.wait(vm=len(e.vm) - 1 - e.vm.index(marks[ks]), lgkm=0)
        if ks + 15 < 32:
            dma(ks + 15)
        for dt in range(2):
            for z in range(2):
                e(f"ds_read_b64_tr_b16 {vr(8 * ks + 4 * dt + 2 * z, 2, 'a')}, v{vTr} offset:{(ks % 16) * 2048 + z * 512 + dt * 32}")
    e.wait(vm=0, lgkm=0)
    e(f"s_mov_b32 s{sTog}, 0")
    e.label("L_ob_loop")
    e(f"""s_lshr_b32 s{sA}, s{sU}, 2
          s_lshl_b32 s{sA}, s{sA}, 5
          s_lshl_b32 s{sB}, s{S_WAVE}, 3
          s_add_u32 s{sA}, s{sA}, s{sB}
          s_lshl_b32 s{sFa}, s{sA}, 4
          s_add_u32 s{sFa}, s{sFa}, {F_AT}
          s_lshl_b32 s{sOf}, s{sA}, 13
          s_and_b32 s{sB}, s{sU}, 3
          s_lshl_b32 s{sB}, s{sB}, 7
          s_add_u32 s{sOf}, s{sOf}, s{sB}
          s_add_u32 s{sOf}, s{sOf}, {WS_OF}""")
    if cfg.get('nap', 1):
        e(f"""s_lshr_b32 s62, s{sU}, 2
              s_add_u32 s62, s62, 1
              s_min_u32 s62, s62, {64 - NTAIL}
              s_and_b32 s63, s{sWid}, 31
              s_lshl_b32 s63, s63, 7
              s_add_u32 s63, s63, {F_CH}""")
        nap_until(e, 'ob', vT, "s63", "s62", sB, cfg.get('napu', 24))
    poll_ge(e, 'ob', vT, vF, f"s{sFa}", 1, 8)
    tstamp(e, cfg, 0)
    for j in range(16):
        e(f"s_add_u32 s{sA}, s{sOf}, {j * 4096}\n buffer_load_dwordx4 {vr(128 + 4 * j, 4)}, v{vO}, {W}, s{sA} offen sc1")
    for ks in range(32):
        for dt in range(2):
            a = ACC + 8 * (ks & 1) + 4 * dt
            c = '0' if ks < 2 else vr(a, 4)
            e(f"v_mfma_f32_16x16x32_bf16 {vr(a, 4)}, {vr(8 * ks + 4 * dt, 4, 'a')}, {vr(128 + 4 * (ks >> 1), 4)}, {c}")
    for r in range(8):
        e(f"v_cndmask_b32 v{ACC + r}, v{ACC + r}, v{ACC + 8 + r}, {sr(sHi, 2)}")
    tstamp(e, cfg, 1)
    e(f"""v_add_u32 v{vT}, s{sTog}, v{vRw}
          ds_write_b128 v{vT}, {vr(ACC, 4)}
          ds_write_b128 v{vT}, {vr(ACC + 4, 4)} offset:1024""")
    e.barrier()
    e(f"""s_cmp_ge_u32 s{S_WAVE}, 2
          s_cbranch_scc1 L_ob_next
          v_add_u32 v{vT}, s{sTog}, v{vRr}""")
    for p in range(4):
        e(f"ds_read_b128 {vr(RD + 4 * p, 4)}, v{vT} offset:{2048 * p}")
    for r in range(4):
        e(f"""v_add_f32 v{RD + r}, v{RD + r}, v{RD + 4 + r}
              v_add_f32 v{RD + 8 + r}, v{RD + 8 + r}, v{RD + 12 + r}
              v_add_f32 v{RD + r}, v{RD + r}, v{RD + 8 + r}""")
    for r in range(4):
        e(f"v_add_f32_dpp v{RD + r}, v{RD + r}, v{RD + r} row_ror:8 row_mask:0xf bank_mask:0xf")
    e(f"""v_cvt_pk_bf16_f32 v{RD}, v{RD}, v{RD + 1}
          v_cvt_pk_bf16_f32 v{RD + 1}, v{RD + 2}, v{RD + 3}
          s_lshl_b32 s{sA}, s{sU}, 14
          s_lshl_b32 s{sB}, s{sSl}, 6
          s_add_u32 s{sA}, s{sA}, s{sB}
          s_lshl_b32 s{sB}, s{S_WAVE}, 5
          s_add_u32 s{sA}, s{sA}, s{sB}
          buffer_store_dwordx2 {vr(RD, 2)}, v{vSt}, {sr(S_W1, 4)}, s{sA} offen offset:1024 {cfg.get('ost', '')}
          L_ob_next:
          s_xor_b32 s{sTog}, s{sTog}, 8192
          s_add_u32 s{sU}, s{sU}, {cfg.get('ng', 8 if cfg.get('nb', 3) >= 2 else 10)}
          s_cmp_lt_u32 s{sU}, 256
          s_cbranch_scc1 L_ob_loop""")
    tstamp(e, cfg, 2)
    tdump(e, cfg)
    e("s_branch L_end")


def part_a(e, cfg):
    lane, t1, vL16, vSig, vSrc, vTr, vT, m0, m1, vSt, vW, vNeg = range(1, 13)
    BC, BP, BPX = 16, 32, 48
    SC, SP, O, PX = 64, 80, 96, 112
    Q, KC, KP, VC, VP = 128, 160, 192, 224, 48
    sSeg, sCh, sUnit, sPrevU, sFq, sCc, sRow = sC_, sD, sE, sF, sG, sH, sI
    srd(e, S_W0, P_AWO, 0x80000)
    srd(e, S_W1, P_OUT, 0x400000)
    lane_consts(e, lane, vL16, vSig)
    e(f"""s_sub_u32 s{sSeg}, s{sWid}, 32
          s_and_b32 s{sCh}, s{sSeg}, 1
          s_lshr_b32 s{sSeg}, s{sSeg}, 1
          s_mov_b32 s{sCc}, 0x3eb8aa3b""")
    e(f"""v_and_b32 v{t1}, 31, v{lane}
          v_lshrrev_b32 v{vT}, 5, v{lane}
          v_lshlrev_b32 v{vT}, 2, v{vT}
          v_sub_u32 v{t1}, v{t1}, v{vT}
          v_mov_b32 v{vNeg}, {NEG}""")
    for base, add in ((BC, 0), (BP, 32)):
        for r in range(16):
            e(f"""v_add_u32 v{vT}, {add - 8 * (r >> 2) - (r & 3)}, v{t1}
                  v_and_b32 v{vT}, 0xfffffff1, v{vT}
                  v_cmp_ne_u32 vcc, 0, v{vT}
                  v_cndmask_b32 v{base + r}, 0, v{vNeg}, vcc""")
    e(f"""v_lshrrev_b32 v{t1}, 5, v{lane}
          v_lshlrev_b32 v{vSrc}, 10, v{t1}
          v_and_b32 v{t1}, 31, v{lane}
          v_lshl_add_u32 v{vSrc}, v{t1}, 4, v{vSrc}
          v_lshlrev_b32 v{vSt}, 11, v{t1}
          s_lshl_b32 s{sRow}, s{S_WAVE}, 13
          s_lshl_b32 s{sA}, s{sCh}, 9
          s_add_u32 s{sRow}, s{sRow}, s{sA}
          s_lshl_b32 s63, s{S_WAVE}, 12""")
    e(f"""v_lshrrev_b32 v{t1}, 5, v{lane}
          v_lshlrev_b32 v{vTr}, 11, v{t1}
          v_lshl_add_u32 v{vSt}, v{t1}, 3, v{vSt}
          v_bfe_u32 v{t1}, v{lane}, 2, 2
          v_lshl_add_u32 v{vTr}, v{t1}, 9, v{vTr}
          v_bfe_u32 v{t1}, v{lane}, 4, 1
          v_lshl_add_u32 v{vTr}, v{t1}, 5, v{vTr}
          v_and_b32 v{t1}, 3, v{lane}
          v_lshl_add_u32 v{vTr}, v{t1}, 3, v{vTr}
          s_lshl_b32 s{sA}, s{S_WAVE}, 7
          v_add_u32 v{vTr}, s{sA}, v{vTr}
          s_lshl_b32 s{sA}, s{S_WAVE}, 13
          v_add_u32 v{vW}, s{sA}, v{vL16}""")
    e.wait(vm=0, lgkm=0)
    e("s_barrier")
    marks = {}

    def dma(r):
        for j in range(4):
            e(f"""s_add_u32 m0, s63, {(r % 8) * 16384 + j * 1024}
                  s_add_u32 s{sA}, s{sRow}, {(32 * r + 2 * j) * 1024}
                  buffer_load_dwordx4 v{vSrc}, {sr(S_W0, 4)}, s{sA} offen lds""")
        marks[r] = e.vm[-1]

    for r in range(7):
        dma(r)
    for r in range(16):
        e.wait(vm=len(e.vm) - 1 - e.vm.index(marks[r]), lgkm=0)
        e("s_barrier")
        if r + 7 < 16:
            dma(r + 7)
        e(f"v_add_u32 v{vT}, {(r % 8) * 16384}, v{vTr}")
        for hl in range(2):
            for dt in range(2):
                for z in range(2):
                    e(f"ds_read_b64_tr_b16 {vr(8 * (2 * r + hl) + 4 * dt + 2 * z, 2, 'a')}, v{vT} offset:{(16 * hl + 8 * z) * 512 + dt * 64}")
    e.wait(vm=0, lgkm=0)
    e.label("L_pa_loop")
    e(f"""s_add_u32 s{sA}, s{S_WAVE}, 32
          s_lshl_b32 s{sA}, s{sA}, 6
          s_add_u32 s{sA}, s{sA}, s{sSeg}
          s_mul_i32 s{sUnit}, s{sA}, {UNIT}
          s_lshl_b32 s{sFq}, s{sA}, 2
          s_add_u32 s{sFq}, s{sFq}, {F_QKV}
          s_cmp_eq_u32 s{sSeg}, 0
          s_cselect_b32 s{sA}, 0, {UNIT}
          s_cselect_b32 s{sB}, 0, 4
          s_cselect_b64 vcc, -1, 0
          s_sub_u32 s{sPrevU}, s{sUnit}, s{sA}
          s_sub_u32 s62, s{sFq}, s{sB}""")
    for r in range(8, 16):
        e(f"v_cndmask_b32 v{BP + r - 8}, v{BP + r}, v{vNeg}, vcc")
    poll_ge(e, 'pa1', vT, None, f"s{sFq}", 1, 1)
    poll_ge(e, 'pa2', vT, None, "s62", 1, 1)
    for base, a, u, off in ((Q, vL16, sUnit, 0), (KC, vSig, sUnit, 8192), (KP, vSig, sPrevU, 8192), (VC, vL16, sUnit, 16384)):
        e(f"s_add_u32 s{sA}, s{u}, {off}\n s_add_u32 s{sB}, s{u}, {off + 4096}")
        for j in range(8):
            e(f"buffer_load_dwordx4 {vr(base + 4 * j, 4)}, v{a}, {W}, s{sA if j < 4 else sB} offen offset:{1024 * (j & 3)} sc1")
    e(f"s_add_u32 s{sA}, s{sPrevU}, {16384 + 1024}\n s_add_u32 s{sB}, s{sPrevU}, {16384 + 1024 + 4096}")
    for wc in range(4):
        e(f"buffer_load_dwordx4 {vr(VP + 4 * wc, 4)}, v{vL16}, {W}, s{sA if wc < 2 else sB} offen offset:{2048 * (wc & 1)} sc1")
    e("s_barrier")
    for j in range(8):
        wc, ab = j >> 1, j & 1
        e(f"""v_mfma_f32_32x32x16_bf16 {vr(SC, 16)}, {vr(KC + 4 * j, 4)}, {vr(Q + 4 * j, 4)}, {vr(BC, 16)}
              v_mfma_f32_32x32x16_bf16 {vr(SP, 16)}, {vr(KP + 4 * j, 4)}, {vr(Q + 4 * j, 4)}, {vr(BP - 8, 16)}""")
        softmax_tail(e, [SC + r for r in range(16)] + [SP + r for r in range(8, 16)], m0, m1, sCc)
        for k in range(8):
            e(f"v_cvt_pk_bf16_f32 v{PX + k}, v{SC + 2 * k}, v{SC + 2 * k + 1}")
        for k in range(4):
            e(f"v_cvt_pk_bf16_f32 v{PX + 8 + k}, v{SP + 8 + 2 * k}, v{SP + 8 + 2 * k + 1}")
        o = vr(O, 16)
        e(f"""v_mfma_f32_32x32x16_bf16 {o}, {vr(VC + 8 * wc, 4)}, {vr(PX, 4)}, 0
              v_mfma_f32_32x32x16_bf16 {o}, {vr(VC + 8 * wc + 4, 4)}, {vr(PX + 4, 4)}, {o}
              v_mfma_f32_32x32x16_bf16 {o}, {vr(VP + 4 * wc, 4)}, {vr(PX + 8, 4)}, {o}""")
        for k in range(8):
            e(f"v_mul_f32 v{O + 8 * ab + k}, v{O + 8 * ab + k}, v{m0}")
        for k in range(4):
            e(f"v_cvt_pk_bf16_f32 v{124 + k}, v{O + 8 * ab + 2 * k}, v{O + 8 * ab + 2 * k + 1}")
        e(f"ds_write_b128 v{vW}, {vr(124, 4)} offset:{1024 * j}")
    e.barrier()
    for hd in range(32):
        e(f"ds_read_b128 {vr(128 + 4 * hd, 4)}, v{vL16} offset:{1024 * hd}")
        if hd >= 8:
            k = hd - 8
            for dt in range(2):
                c = '0' if k == 0 else vr(SC + 16 * dt, 16)
                e(f"v_mfma_f32_32x32x16_bf16 {vr(SC + 16 * dt, 16)}, {vr(8 * k + 4 * dt, 4, 'a')}, {vr(128 + 4 * k, 4)}, {c}")
    for k in range(24, 32):
        for dt in range(2):
            e(f"v_mfma_f32_32x32x16_bf16 {vr(SC + 16 * dt, 16)}, {vr(8 * k + 4 * dt, 4, 'a')}, {vr(128 + 4 * k, 4)}, {vr(SC + 16 * dt, 16)}")
    e(f"""s_lshl_b32 s{sA}, s{sSeg}, 16
          s_lshl_b32 s{sB}, s{sCh}, 9
          s_add_u32 s{sA}, s{sA}, s{sB}
          s_lshl_b32 s{sB}, s{S_WAVE}, 7
          s_add_u32 s{sA}, s{sA}, s{sB}""")
    for dt in range(2):
        for a in range(4):
            r = SC + 16 * dt + 4 * a
            d = O + 2 * (4 * dt + a)
            e(f"""v_cvt_pk_bf16_f32 v{d}, v{r}, v{r + 1}
                  v_cvt_pk_bf16_f32 v{d + 1}, v{r + 2}, v{r + 3}
                  buffer_store_dwordx2 {vr(d, 2)}, v{vSt}, {sr(S_W1, 4)}, s{sA} offen offset:{64 * dt + 16 * a} {cfg.get('ost', '')}""")
    e(f"""s_add_u32 s{sSeg}, s{sSeg}, 16
          s_cmp_lt_u32 s{sSeg}, 64
          s_cbranch_scc1 L_pa_loop
          s_branch L_end""")


def worker(e, cfg):
    PS[0] = cfg.get('ps', 4)
    e(f"s_sub_u32 s{sWid}, s{S_ROLE}, 32")
    if cfg.get('lin', 1):
        e.comment("sweep Wq/Wk/Wv once in address order (one word per line, 64 KiB per workgroup): every strided reader")
        e(f"""s_sub_u32 s62, s{sWid}, 32
              s_cbranch_scc1 L_nolin
              s_mul_i32 s63, s62, 171
              s_lshr_b32 s63, s63, 9
              s_mul_i32 s{sA}, s63, 3
              s_sub_u32 s62, s62, s{sA}
              s_cmp_eq_u32 s62, 1
              s_cselect_b32 s{S_T0}, s{P_WK}, s{P_WQ}
              s_cselect_b32 s{S_T0 + 1}, s{P_WK + 1}, s{P_WQ + 1}
              s_cmp_eq_u32 s62, 2
              s_cselect_b32 s{S_T0}, s{P_WV}, s{S_T0}
              s_cselect_b32 s{S_T0 + 1}, s{P_WV + 1}, s{S_T0 + 1}
              s_mov_b32 s{S_T0 + 2}, 0x400000
              s_mov_b32 s{S_T0 + 3}, 0x20000
              s_lshl_b32 s63, s63, 2
              s_add_u32 s63, s63, s{S_WAVE}
              s_lshl_b32 s63, s63, 14
              s_add_u32 s62, s63, 8192
              v_and_b32 v123, 63, v0
              v_lshlrev_b32 v123, 7, v123""")
        e.loose(f"buffer_load_dword v124, v123, {sr(S_T0, 4)}, s63 offen")
        e.loose(f"buffer_load_dword v124, v123, {sr(S_T0, 4)}, s62 offen")
        e.vm = []
        e.label("L_nolin")
    if cfg.get('ne', 0):
        e.comment("five workgroups of each die form the team that runs the first steps while die 0 still loads its weights")
        e(f"""s_lshr_b32 s62, s{sWid}, 5
              s_and_b32 s63, s{sWid}, 31
              s_cmp_ge_u32 s63, 5
              s_cbranch_scc1 L_noec
              s_mul_i32 s62, s62, 5
              s_add_u32 s{S_HEAD}, s62, s63
              s_mov_b32 s{S_EC}, 1
              s_cmp_lt_u32 s{S_HEAD}, 32
              s_cbranch_scc1 L_chain
              s_branch L_spare
              L_noec:
              s_mul_i32 s62, s62, 27
              s_add_u32 s63, s63, s62
              s_sub_u32 s63, s63, 5
              s_cmp_lt_u32 s63, 180
              s_cbranch_scc1 L_proj
              L_spare:""")
    elif cfg.get('nb', 3) == 3:
        e(f"s_sub_u32 s63, s{sWid}, 32\n s_cmp_lt_u32 s63, 180\n s_cbranch_scc1 L_proj")
    else:
        e(f"s_mov_b32 s63, s{sWid}\n s_cmp_lt_u32 s{sWid}, 216\n s_cbranch_scc1 L_proj")
    st = e.state()
    e("s_waitcnt vmcnt(0)")
    confirm_barrier(e, 'sp')
    if cfg.get('nb', 3) == 3:
        e(f"s_cmp_lt_u32 s{sWid}, 32\n s_cbranch_scc1 L_end")
    if cfg.get('opf', 0):
        e.comment("read Wo once (one word per line): the recurrence asks for it last and then finds it on the die-level cache")
        srd(e, S_W0, P_WO, 0x400000)
        e(f"""s_sub_u32 s{sA}, s{sWid}, 216
              s_lshl_b32 s{sA}, s{sA}, 2
              s_add_u32 s{sA}, s{sA}, s{S_WAVE}
              s_lshl_b32 s{sA}, s{sA}, 17
              v_and_b32 v4, 63, v0
              v_lshlrev_b32 v4, 7, v4""")
        for j in range(16):
            e.loose(f"buffer_load_dword v5, v4, {sr(S_W0, 4)}, s{sA} offen")
            e(f"s_add_u32 s{sA}, s{sA}, 8192")
    wait_init(e, 'sp', 3, 127)
    e("s_branch L_phase2")
    e.label("L_proj"); e.set_state(st)
    proj(e, cfg)
    e.label("L_phase2")
    dbg_max(e, cfg, 15, v=12)
    if cfg.get('diag'):
        e("s_memrealtime s[88:89]\n s_waitcnt lgkmcnt(0)")
    if cfg.get('nophase2'):
        e("s_branch L_end")
    nb = cfg.get('nb', 3)
    if nb == 1:
        e(f"s_cmp_lt_u32 s{sWid}, 64\n s_cselect_b32 s{sA}, 32, 0\n s_xor_b32 s{sWid}, s{sWid}, s{sA}")
    if nb >= 2:
        e(f"s_sub_u32 s{sWid}, s{sWid}, 32\n s_cbranch_scc1 L_end")
        if cfg.get('rot'):
            e(f"""s_add_u32 s{sWid}, s{sWid}, {32 * cfg['rot']}
                  s_cmp_ge_u32 s{sWid}, 192
                  s_cselect_b32 s{sA}, 192, 0
                  s_sub_u32 s{sWid}, s{sWid}, s{sA}""")
    e(f"""s_cmp_lt_u32 s{sWid}, 32
          s_cbranch_scc1 L_attn_b
          s_cmp_lt_u32 s{sWid}, 64
          s_cbranch_scc1 L_part_a""")
    st = e.state()
    out_b(e, cfg)
    e.label("L_attn_b"); e.set_state(st)
    attn_b(e, cfg)
    e.label("L_part_a"); e.set_state(st)
    part_a(e, cfg)
```

```python
from common import *

W = sr(S_WS, 4)
DBG = sr(S_DBG, 4)
sWid, sA, sB, sC_, sD, sE, sF, sG, sH, sI, sJ, sK = range(50, 62)
S_W0, S_W1, S_W2, S_X = 64, 68, 72, 76
PS = [4]
NEG = 0xf149f2ca


def wait_init(e, tag, tmp, nap=16):
    e(f"""L_wi_{tag}:
          s_sleep {nap}
          buffer_load_dword v{tmp}, off, {DBG}, 0 offset:{D_INIT} sc1
          s_sub_u32 s{S_SPIN}, s{S_SPIN}, 1
          s_cbranch_scc1 L_end
          v_readfirstlane_b32 s{sA}, v{tmp}
          s_and_b32 s{sA}, s{sA}, 0xffff
          s_cmp_eq_u32 s{sA}, 256
          s_cbranch_scc0 L_wi_{tag}""")


def count_in(e, tmp):
    e(f"""v_mov_b32 v{tmp}, 1
          s_mov_b64 exec, 1
          buffer_atomic_add v{tmp}, off, {DBG}, 0 offset:{D_INIT}
          s_mov_b64 exec, -1""")


def srd_sel(e, s, pa, pb, na, nb):
    e(f"""s_cselect_b32 s{s}, s{pa}, s{pb}
          s_cselect_b32 s{s+1}, s{pa+1}, s{pb+1}
          s_mov_b32 s{s+2}, {nb}
          s_cselect_b32 s{s+2}, {na}, s{s+2}
          s_mov_b32 s{s+3}, 0x20000""")


def lane_consts(e, lane, l16, sig):
    e(f"""v_and_b32 v{lane}, 63, v0
          v_lshlrev_b32 v{l16}, 4, v{lane}
          v_and_b32 v{sig}, 39, v{lane}
          v_bfe_u32 v{lane + 1}, v{lane}, 3, 1
          v_lshl_or_b32 v{sig}, v{lane + 1}, 4, v{sig}
          v_bfe_u32 v{lane + 1}, v{lane}, 4, 1
          v_lshl_or_b32 v{sig}, v{lane + 1}, 3, v{sig}
          v_lshlrev_b32 v{sig}, 4, v{sig}""")


XROW = 1040
XBUF = 32 * XROW
RING0 = 33792


def proj(e, cfg):
    lane, t1, vL16, vSig, vSrc, vTr, vXr, vT, vIn = 1, 2, 3, 4, 5, 6, 7, 8, 9
    XF, ACC, OUT = 16, 32, 80
    sHH, sSeg, sStride, sCol, sUnit, sFlag, sXb, sPrev = sC_, sD, sE, sF, sG, sH, sI, sJ
    NP = 5 if cfg.get('ne', 0) or cfg.get('nb', 3) == 3 else 6
    e(f"""s_mul_i32 s{sHH}, s63, {205 if NP == 5 else 171}
          s_lshr_b32 s{sHH}, s{sHH}, 10
          s_mul_i32 s{sA}, s{sHH}, {NP}
          s_sub_u32 s{sSeg}, s63, s{sA}
          s_cmp_lt_u32 s{sHH}, 32""")
    srd_sel(e, S_W0, P_WQ, P_AWQKV, 0x400000, 0x180000)
    srd_sel(e, S_W1, P_WK, P_AWQKV, 0x400000, 0x180000)
    srd_sel(e, S_W2, P_WV, P_AWQKV, 0x400000, 0x180000)
    srd_sel(e, S_X, P_BX, P_AX, 0x200000, 0x200000)
    e(f"""s_mov_b32 s{sStride}, 3072
          s_cselect_b32 s{sStride}, 8192, s{sStride}
          s_cselect_b32 s{sK}, 0, 1024
          s_and_b32 s{sCol}, s{sHH}, 31
          s_lshl_b32 s{sCol}, s{sCol}, 8""")
    lane_consts(e, lane, vL16, vSig)
    e(f"""v_lshrrev_b32 v{t1}, 4, v{lane}
          v_mul_lo_u32 v{vSrc}, v{t1}, s{sStride}
          v_lshlrev_b32 v{t1}, 2, v{t1}
          v_xor_b32 v{t1}, v{t1}, v{lane}
          v_and_b32 v{t1}, 15, v{t1}
          v_lshl_add_u32 v{vSrc}, v{t1}, 4, v{vSrc}""")
    e(f"""v_lshrrev_b32 v{t1}, 5, v{lane}
          v_lshlrev_b32 v{vTr}, 11, v{t1}
          v_bfe_u32 v{t1}, v{lane}, 2, 2
          v_lshl_add_u32 v{vTr}, v{t1}, 8, v{vTr}
          v_bfe_u32 v{t1}, v{lane}, 4, 1
          v_lshl_add_u32 v{vTr}, v{t1}, 5, v{vTr}
          v_and_b32 v{t1}, 3, v{lane}
          v_lshl_add_u32 v{vTr}, v{t1}, 3, v{vTr}
          v_bfe_u32 v{t1}, v{lane}, 2, 2
          v_xor_b32 v{t1}, s{S_WAVE}, v{t1}
          v_lshl_add_u32 v{vTr}, v{t1}, 6, v{vTr}""")
    e(f"""v_and_b32 v{t1}, 31, v{lane}
          v_mul_u32_u24 v{vXr}, {XROW}, v{t1}
          v_lshrrev_b32 v{t1}, 5, v{lane}
          v_lshl_add_u32 v{vXr}, v{t1}, 4, v{vXr}""")
    e(f"""s_lshl_b32 s{sA}, s{sHH}, 6
          s_add_u32 s{sA}, s{sA}, s{sSeg}
          s_mul_i32 s{sUnit}, s{sA}, {UNIT}
          s_lshl_b32 s{sB}, s{S_WAVE}, 11
          s_add_u32 s{sUnit}, s{sUnit}, s{sB}
          s_lshl_b32 s{sFlag}, s{sA}, 2
          s_add_u32 s{sFlag}, s{sFlag}, {F_QKV}
          s_mov_b32 s{sXb}, 0""")

    def xdma(seg_s, buf_s):
        e(f"""s_lshl_b32 s{sA}, s{seg_s}, 15
              s_lshl_b32 s{sB}, s{S_WAVE}, 13
              s_add_u32 s{sA}, s{sA}, s{sB}
              s_mul_i32 s{sB}, s{S_WAVE}, {8 * XROW}
              s_add_u32 s{sB}, s{sB}, s{buf_s}""")
        return [f"""s_add_u32 m0, s{sB}, {j * XROW}
                  s_add_u32 s3, s{sA}, {j * 1024}
                  buffer_load_dwordx4 v{vL16}, {sr(S_X, 4)}, s3 offen lds""" for j in range(8)]

    if cfg.get('wpf', 0):
        e.comment("the six workers of a head each request a sixth of its weights at once (one word per line)")
        e(f"""s_lshr_b32 s62, s{sSeg}, 1
              s_cmp_eq_u32 s62, 1
              s_cselect_b32 s{S_T0}, s{S_W1}, s{S_W0}
              s_cselect_b32 s{S_T0 + 1}, s{S_W1 + 1}, s{S_W0 + 1}
              s_cmp_eq_u32 s62, 2
              s_cselect_b32 s{S_T0}, s{S_W2}, s{S_T0}
              s_cselect_b32 s{S_T0 + 1}, s{S_W2 + 1}, s{S_T0 + 1}
              s_mov_b32 s{S_T0 + 2}, s{S_W0 + 2}
              s_mov_b32 s{S_T0 + 3}, 0x20000
              s_mul_i32 s62, s62, s{sK}
              s_add_u32 s62, s62, s{sCol}
              s_and_b32 s63, s{sSeg}, 1
              s_lshl_b32 s63, s63, 2
              s_add_u32 s63, s63, s{S_WAVE}
              s_lshl_b32 s63, s63, 6
              s_mul_i32 s63, s63, s{sStride}
              s_add_u32 s62, s62, s63
              v_mul_lo_u32 v{vT}, v{lane}, s{sStride}""")
        e.loose(f"buffer_load_dword v124, v{vT}, {sr(S_T0, 4)}, s62 offen")
        e.loose(f"buffer_load_dword v124, v{vT}, {sr(S_T0, 4)}, s62 offen offset:128")
    if cfg.get('wh', 0):
        e.comment("the projections have slack: leave the memory system to the first requests of the recurrence")
        e(f"s_sleep {cfg['wh']}")
    for l in xdma(sSeg, sXb):
        e(l)
    sRow = sPrev
    e(f"""s_lshl_b32 s{sA}, s{S_WAVE}, 4
          s_mul_i32 s{sRow}, s{sA}, s{sStride}
          s_add_u32 s{sRow}, s{sRow}, s{sCol}
          s_lshl_b32 s62, s{sStride}, 2
          s_lshl_b32 s63, s{S_WAVE}, 12""")
    kvf = cfg.get('kvf', 1)
    order = cfg.get('po', [1, 2, 0] if kvf else [0, 1, 2])
    srds = [S_W0, S_W1, S_W2]
    dst = [('a', 0), ('a', 128), ('v', 128)]
    marks = {}

    def dma(r):
        m, b = order[r // 8], r % 8
        e(f"""s_mul_i32 s{sA}, s{sStride}, {64 * b}
              s_add_u32 s{sA}, s{sA}, s{sRow}
              s_mul_i32 s{sB}, s{sK}, {m}
              s_add_u32 s{sA}, s{sA}, s{sB}""")
        for j in range(4):
            e(f"""s_add_u32 m0, s63, {RING0 + (r % 7) * 16384 + j * 1024}
                  buffer_load_dwordx4 v{vSrc}, {sr(srds[m], 4)}, s{sA} offen lds""")
            if j < 3:
                e(f"s_add_u32 s{sA}, s{sA}, s62")
        marks[r] = e.vm[-1]

    def init_check(tag):
        st = e.state()
        e(f"""v_readfirstlane_b32 s{sA}, v{vT + 1}
              s_and_b32 s{sA}, s{sA}, 0xffff
              s_cmp_eq_u32 s{sA}, 256
              s_cbranch_scc1 L_go_{tag}""")
        st = e.state()
        wait_init(e, tag, vT)
        e.label(f"L_go_{tag}"); e.set_state(st)

    def epilogue(ms):
        for m in ms:
            for j in range(8):
                e(f"v_cvt_pk_bf16_f32 v{OUT + 8 * m + j}, v{ACC + 16 * m + 2 * j}, v{ACC + 16 * m + 2 * j + 1}")
            a = vSig if m == 1 else vL16
            e(f"""s_add_u32 s{sA}, s{sUnit}, {8192 * m}
                  buffer_store_dwordx4 {vr(OUT + 8 * m, 4)}, v{a}, {W}, s{sA} offen sc1
                  buffer_store_dwordx4 {vr(OUT + 8 * m + 4, 4)}, v{a}, {W}, s{sA} offen offset:1024 sc1""")

    for r in range(6):
        dma(r)
    confirm_barrier(e, 'pj')
    for r in range(24):
        m, b = order[r // 8], r % 8
        e.wait(vm=len(e.vm) - 1 - e.vm.index(marks[r]), lgkm=0)
        e("s_barrier")
        if r == (9 if kvf else 18):
            e(f"buffer_load_dword v{vT + 1}, off, {DBG}, 0 offset:{D_INIT} sc1")
        if r == 16 and kvf:
            init_check('pk')
            e(f"s_cmp_ge_u32 s{sSeg}, 2\n s_cbranch_scc1 L_pj_nokv")
            st = e.state()
            for ks in range(3):
                e(f"ds_read_b128 {vr(XF + 4 * ks, 4)}, v{vXr} offset:{32 * ks}")
            for ks in range(32):
                x = vr(XF + 4 * (ks % 4), 4)
                e(f"v_mfma_f32_32x32x16_bf16 {vr(ACC + 16, 16)}, {vr(128 + 4 * ks, 4, 'a')}, {x}, {'0' if ks == 0 else vr(ACC + 16, 16)}")
                if ks + 3 < 32:
                    e(f"ds_read_b128 {vr(XF + 4 * ((ks + 3) % 4), 4)}, v{vXr} offset:{32 * (ks + 3)}")
                e(f"v_mfma_f32_32x32x16_bf16 {vr(ACC + 32, 16)}, {x}, {vr(128 + 4 * ks, 4)}, {'0' if ks == 0 else vr(ACC + 32, 16)}")
            epilogue((1, 2))
            e(f"""v_mov_b32 v{vIn}, 1
                  s_waitcnt vmcnt(0)
                  s_barrier
                  s_cmp_lg_u32 s{S_WAVE}, 0
                  s_cbranch_scc1 L_pj_nokv
                  s_mov_b64 exec, 1
                  buffer_store_dword v{vIn}, off, {W}, s{sFlag} sc1
                  s_mov_b64 exec, -1
                  L_pj_nokv:""")
            e.set_state(st)
        if r + 6 < 24:
            dma(r + 6)
        e(f"v_add_u32 v{vT + 2}, {RING0 + (r % 7) * 16384}, v{vTr}")
        k, base = dst[m]
        for ksl in range(4):
            for z in range(2):
                e(f"ds_read_b64_tr_b16 {vr(base + 4 * (4 * b + ksl) + 2 * z, 2, k)}, v{vT + 2} offset:{(16 * ksl + 4 * z) * 256}")
    e.wait(vm=0, lgkm=0)
    dbg_max(e, cfg, 14, v=vT + 3)
    if not kvf:
        init_check('pj')
    if cfg.get('pjhold'):
        e(f"""L_hold3:
              s_memrealtime s[92:93]
              s_waitcnt lgkmcnt(0)
              s_sub_u32 s92, s92, s94
              s_cmp_lt_u32 s92, {cfg['pjhold']}
              s_cbranch_scc1 L_hold3""")
    if cfg.get('diag'):
        e("s_memrealtime s[86:87]\n s_waitcnt lgkmcnt(0)")
    e(f"s_mov_b32 s{sPrev}, 0\n v_mov_b32 v{vIn}, 2")
    e.forget()
    e.label("L_pj_loop")
    e(f"""s_waitcnt vmcnt(6)
          s_barrier
          v_add_u32 v{vT}, s{sXb}, v{vXr}
          s_add_u32 s62, s{sSeg}, {NP}
          s_min_u32 s62, s62, 63
          s_sub_u32 s63, {XBUF}, s{sXb}""")
    nxt = xdma(62, 63)
    for ks in range(3):
        e(f"ds_read_b128 {vr(XF + 4 * ks, 4)}, v{vT} offset:{32 * ks}")
    for ks in range(32):
        x = vr(XF + 4 * (ks % 4), 4)
        c = [('0' if ks == 0 else vr(ACC + 16 * m, 16)) for m in range(3)]
        e(f"v_mfma_f32_32x32x16_bf16 {vr(ACC, 16)}, {vr(4 * ks, 4, 'a')}, {x}, {c[0]}")
        if ks + 3 < 32:
            e(f"ds_read_b128 {vr(XF + 4 * ((ks + 3) % 4), 4)}, v{vT} offset:{32 * (ks + 3)}")
        e(f"v_mfma_f32_32x32x16_bf16 {vr(ACC + 16, 16)}, {vr(128 + 4 * ks, 4, 'a')}, {x}, {c[1]}")
        if ks < 8:
            e(nxt[ks])
        if ks == 20:
            e.comment("the previous segment's stores of every wave are complete behind this barrier: raise its flag")
            e(f"""s_waitcnt vmcnt(8)
                  s_barrier
                  s_cmp_eq_u32 s{sPrev}, 0
                  s_cbranch_scc1 L_pj_nf
                  s_mov_b64 exec, 1
                  buffer_store_dword v{vIn}, off, {W}, s{sPrev} sc1
                  s_mov_b64 exec, -1
                  L_pj_nf:""")
            e.vm.pop()
        e(f"v_mfma_f32_32x32x16_bf16 {vr(ACC + 32, 16)}, {x}, {vr(128 + 4 * ks, 4)}, {c[2]}")
    epilogue((0, 1, 2))
    e(f"""s_cmp_eq_u32 s{S_WAVE}, 0
          s_cselect_b32 s{sPrev}, s{sFlag}, 0
          s_cmp_ge_u32 s{sSeg}, {NP}
          s_cbranch_scc1 L_pj_later
          s_waitcnt vmcnt(0)
          s_barrier
          s_cmp_eq_u32 s{sPrev}, 0
          s_cbranch_scc1 L_pj_later
          s_mov_b64 exec, 1
          buffer_store_dword v{vIn}, off, {W}, s{sPrev} sc1
          s_mov_b64 exec, -1
          L_pj_later:
          s_add_u32 s{sFlag}, s{sFlag}, {4 * NP}
          s_add_u32 s{sUnit}, s{sUnit}, {NP * UNIT}
          s_sub_u32 s{sXb}, {XBUF}, s{sXb}
          s_add_u32 s{sSeg}, s{sSeg}, {NP}
          s_cmp_lt_u32 s{sSeg}, 64
          s_cbranch_scc1 L_pj_loop
          s_waitcnt vmcnt(0)
          s_barrier
          s_cmp_eq_u32 s{sPrev}, 0
          s_cbranch_scc1 L_phase2
          s_mov_b64 exec, 1
          buffer_store_dword v{vIn}, off, {W}, s{sPrev} sc1
          s_mov_b64 exec, -1""")


def poll_ge(e, tag, tmp, voff, soff, cmpv, nl):
    off = f"v{voff}" if voff is not None else "off"
    e(f"""L_pg_{tag}:
          buffer_load_dword v{tmp}, {off}, {W}, {soff} {'offen' if voff is not None else ''} sc1
          s_sub_u32 s{S_SPIN}, s{S_SPIN}, 1
          s_cbranch_scc1 L_end
          v_cmp_gt_u32 vcc, {cmpv}, v{tmp}
          s_and_b32 vcc_lo, vcc_lo, {(1 << nl) - 1}
          s_cbranch_scc0 L_pk_{tag}
          s_sleep {PS[0]}
          s_branch L_pg_{tag}
          L_pk_{tag}:""")


def nap_until(e, tag, tmp, soff, need, st, unit):
    e(f"""L_nap_{tag}:
          buffer_load_dword v{tmp}, off, {W}, {soff} sc1
          s_sub_u32 s{S_SPIN}, s{S_SPIN}, 1
          s_cbranch_scc1 L_end
          v_readfirstlane_b32 s{st}, v{tmp}
          s_sub_u32 s{st}, {need}, s{st}
          s_cbranch_scc1 L_napx_{tag}
          s_cmp_eq_u32 s{st}, 0
          s_cbranch_scc1 L_napx_{tag}
          s_min_u32 s{st}, s{st}, 8
          L_napl_{tag}:
          s_sleep {unit}
          s_sub_u32 s{st}, s{st}, 1
          s_cmp_lg_u32 s{st}, 0
          s_cbranch_scc1 L_napl_{tag}
          s_branch L_nap_{tag}
          L_napx_{tag}:""")


def tstamp(e, cfg, n):
    if cfg.get('tdiag'):
        e(f"s_memrealtime {sr(20 + 2 * n, 2)}\n s_waitcnt lgkmcnt(0)")


def tdump(e, cfg):
    if cfg.get('tdiag'):
        e(f"""s_lshl_b32 s{sA}, s{S_ROLE}, 2
              s_add_u32 s{sA}, s{sA}, s{S_WAVE}
              s_lshl_b32 s{sA}, s{sA}, 5
              s_add_u32 s{sA}, s{sA}, 0x6500000""")
        for n in range(6):
            e(f"v_mov_b32 v2, s{20 + 2 * n}\n buffer_store_dword v2, off, {W}, s{sA} offset:{4 * n}")


def softmax_tail(e, vals, m0, m1, sC):
    v = list(vals)
    e(f"v_max3_f32 v{m0}, v{v[0]}, v{v[1]}, v{v[2]}")
    k = 3
    while k + 1 < len(v):
        e(f"v_max3_f32 v{m0}, v{m0}, v{v[k]}, v{v[k + 1]}"); k += 2
    if k < len(v):
        e(f"v_max_f32 v{m0}, v{m0}, v{v[k]}")
    e(f"""v_mov_b32 v{m1}, v{m0}
          v_permlane32_swap_b32 v{m0}, v{m1}
          v_max_f32 v{m0}, v{m0}, v{m1}
          v_mul_f32 v{m0}, s{sC}, v{m0}""")
    for r in v:
        e(f"v_fma_f32 v{r}, v{r}, s{sC}, -v{m0}")
    for r in v:
        e(f"v_exp_f32 v{r}, v{r}")
    e(f"v_add_f32 v{m0}, v{v[0]}, v{v[1]}\n v_add_f32 v{m1}, v{v[2]}, v{v[3]}")
    for k in range(4, len(v), 2):
        e(f"v_add_f32 v{m0}, v{m0}, v{v[k]}\n v_add_f32 v{m1}, v{m1}, v{v[k + 1]}")
    e(f"""v_add_f32 v{m0}, v{m0}, v{m1}
          v_mov_b32 v{m1}, v{m0}
          v_permlane32_swap_b32 v{m0}, v{m1}
          v_add_f32 v{m0}, v{m0}, v{m1}
          v_rcp_f32 v{m0}, v{m0}""")


def attn_b(e, cfg):
    lane, t1, vL16, vSig, vVm, vKm, vT, m0, m1, vOne, vF, vLw = range(1, 13)
    BIAS, Q, K, V, S, D0, D1, KM, VM, PX, PMm, O = 16, 32, 64, 96, 128, 144, 160, 176, 192, 208, 216, 128
    sSeg, sUnit, sExp, sOut, sFq, sFc, sFa, sCc, sLds = sC_, sD, sE, sF, sG, sH, sI, sJ, sK
    h = sWid
    lane_consts(e, lane, vL16, vSig)
    e(f"""v_and_b32 v{t1}, 31, v{lane}
          v_lshrrev_b32 v{vT}, 5, v{lane}
          v_lshlrev_b32 v{vT}, 2, v{vT}
          v_sub_u32 v{t1}, v{t1}, v{vT}
          v_mov_b32 v{vT}, {NEG}""")
    for r in range(16):
        e(f"v_cmp_gt_i32 vcc, {8 * (r >> 2) + (r & 3)}, v{t1}\n v_cndmask_b32 v{BIAS + r}, 0, v{vT}, vcc")
    e(f"""v_lshrrev_b32 v{t1}, 5, v{lane}
          v_lshlrev_b32 v{vVm}, 8, v{t1}
          v_and_b32 v{t1}, 15, v{lane}
          v_lshl_add_u32 v{vVm}, v{t1}, 4, v{vVm}
          v_bfe_u32 v{t1}, v{lane}, 4, 1
          v_lshl_add_u32 v{vVm}, v{t1}, 2, v{vVm}
          v_add_u32 v{vVm}, 8, v{vVm}""")
    e(f"""s_lshl_b32 s{sLds}, s{S_WAVE}, 12
          v_and_b32 v{t1}, 3, v{lane}
          v_lshlrev_b32 v{vKm}, 8, v{t1}
          v_lshrrev_b32 v{t1}, 5, v{lane}
          v_lshl_add_u32 v{vKm}, v{t1}, 6, v{vKm}
          v_bfe_u32 v{t1}, v{lane}, 2, 2
          v_lshl_add_u32 v{vKm}, v{t1}, 4, v{vKm}
          v_add_u32 v{vKm}, s{sLds}, v{vKm}
          v_add_u32 v{vVm}, s{sLds}, v{vVm}
          v_add_u32 v{vLw}, s{sLds}, v{vL16}
          v_and_b32 v{vF}, 3, v{lane}
          v_lshlrev_b32 v{vF}, 2, v{vF}
          v_mov_b32 v{vOne}, 1""")
    for wc in range(4):
        e(f"v_mov_b64 {vr(VM + 4 * wc + 2, 2)}, 0")
    e(f"v_mov_b64 {vr(PMm + 2, 2)}, 0")
    e(f"""s_mov_b32 s{sSeg}, s{S_WAVE}
          s_lshl_b32 s{sA}, s{h}, 6
          s_add_u32 s{sA}, s{sA}, s{sSeg}
          s_mul_i32 s{sUnit}, s{sA}, {UNIT}
          s_lshl_b32 s{sExp}, s{sA}, 12
          s_add_u32 s{sExp}, s{sExp}, {WS_EXP}
          s_lshl_b32 s{sFq}, s{sA}, 2
          s_add_u32 s{sFq}, s{sFq}, {F_QKV}
          s_lshl_b32 s{sFc}, s{h}, 7
          s_add_u32 s{sFc}, s{sFc}, {F_CH}
          s_lshl_b32 s{sA}, s{sSeg}, 5
          s_add_u32 s{sA}, s{sA}, s{h}
          s_lshl_b32 s{sOut}, s{sA}, 13
          s_add_u32 s{sOut}, s{sOut}, {WS_OF}
          s_lshr_b32 s{sFa}, s{sA}, 3
          s_lshl_b32 s{sFa}, s{sFa}, 7
          s_and_b32 s{sA}, s{h}, 7
          s_lshl_b32 s{sA}, s{sA}, 2
          s_add_u32 s{sFa}, s{sFa}, s{sA}
          s_add_u32 s{sFa}, s{sFa}, {F_AT}
          s_mov_b32 s{sCc}, 0x3e0293ee""")
    e.wait(vm=0, lgkm=0)
    e.label("L_ab_loop")
    poll_ge(e, 'abq', vT, None, f"s{sFq}", 2, 1)
    e(f"s_add_u32 s{sA}, s{sUnit}, 4096")
    for base, a, off in ((K, vSig, 8192), (Q, vL16, 0), (V, vL16, 16384)):
        e(f"s_add_u32 s{sA}, s{sUnit}, {off}\n s_add_u32 s{sB}, s{sUnit}, {off + 4096}")
        for j in range(8):
            e(f"buffer_load_dwordx4 {vr(base + 4 * j, 4)}, v{a}, {W}, s{sA if j < 4 else sB} offen offset:{1024 * (j & 3)} sc1")
    for j in range(8):
        c = vr(BIAS, 16) if j == 0 else vr(S, 16)
        e(f"v_mfma_f32_32x32x16_bf16 {vr(S, 16)}, {vr(K + 4 * j, 4)}, {vr(Q + 4 * j, 4)}, {c}")
    e(f"""s_add_u32 s{sA}, s{sSeg}, 1
          s_sub_u32 s62, s{sSeg}, 1
          s_min_u32 s62, s62, 61
          s_cmp_ge_u32 s{sSeg}, {64 - NTAIL}
          s_cselect_b32 s{sA}, s62, s{sA}
          s_sub_u32 s62, s{sA}, 1""")
    e.wait(vm=0)
    if cfg.get('nap', 1):
        nap_until(e, 'ab', vT, f"s{sFc}", "s62", sB, cfg.get('napu', 24))
    poll_ge(e, 'abc', vT, vF, f"s{sFc}", f"s{sA}", 4)
    e(f"s_mov_b32 s62, {SENT1}\n s_branch L_ab_ex1\n L_ab_ex:\n s_sleep {cfg.get('exs', 0)}\n L_ab_ex1:")
    for j in range(4):
        e(f"buffer_load_dwordx4 {vr(D0 + 4 * j, 4)}, v{vL16}, {W}, s{sExp} offen offset:{1024 * j} sc1")
    e(f"s_sub_u32 s{S_SPIN}, s{S_SPIN}, 1\n s_cbranch_scc1 L_end")
    for j in range(16):
        e(f"v_xor_b32 v{D1 + j}, s62, v{D0 + j}")
    for j in range(4):
        e(f"ds_write_b128 v{vLw}, {vr(D0 + 4 * j, 4)} offset:{1024 * j}")
    e(f"v_min3_u32 v{vT}, v{D1}, v{D1 + 1}, v{D1 + 2}")
    for j in range(3, 15, 2):
        e(f"v_min3_u32 v{vT}, v{vT}, v{D1 + j}, v{D1 + j + 1}")
    e(f"""v_min_u32 v{vT}, v{vT}, v{D1 + 15}
          v_cmp_eq_u32 vcc, 0, v{vT}
          s_waitcnt lgkmcnt(0)
          s_cbranch_vccnz L_ab_ex""")
    tstamp(e, cfg, 0)
    for wc in range(4):
        e(f"ds_read2st64_b32 {vr(VM + 4 * wc, 2)}, v{vVm} offset0:{4 * wc} offset1:{4 * wc + 2}")
    for wc in range(4):
        for z in range(2):
            e(f"ds_read_b64_tr_b16 {vr(KM + 4 * wc + 2 * z, 2)}, v{vKm} offset:{1024 * wc + 128 * z}")
    for wc in range(4):
        for ab, D in ((0, D0), (1, D1)):
            c = '0' if wc == 0 else vr(D, 16)
            e(f"v_mfma_f32_32x32x16_bf16 {vr(D, 16)}, {vr(KM + 4 * wc, 4)}, {vr(Q + 4 * (2 * wc + ab), 4)}, {c}")
    sm = [D0, D0 + 1, D0 + 4, D0 + 5]
    for r in sm:
        e(f"v_add_f32 v{r}, v{r}, v{r - D0 + D1 + 2}")
    tstamp(e, cfg, 1)
    softmax_tail(e, [S + r for r in range(16)] + sm, m0, m1, sCc)
    tstamp(e, cfg, 2)
    for j in range(8):
        e(f"v_cvt_pk_bf16_f32 v{PX + j}, v{S + 2 * j}, v{S + 2 * j + 1}")
    e(f"v_cvt_pk_bf16_f32 v{PMm}, v{D0}, v{D0 + 1}\n v_cvt_pk_bf16_f32 v{PMm + 1}, v{D0 + 4}, v{D0 + 5}")
    for wc in range(4):
        o = vr(O + 16 * wc, 16)
        e(f"""v_mfma_f32_32x32x16_bf16 {o}, {vr(V + 8 * wc, 4)}, {vr(PX, 4)}, 0
              v_mfma_f32_32x32x16_bf16 {o}, {vr(V + 8 * wc + 4, 4)}, {vr(PX + 4, 4)}, {o}
              v_mfma_f32_32x32x16_bf16 {o}, {vr(VM + 4 * wc, 4)}, {vr(PMm, 4)}, {o}""")
    e(f"s_add_u32 s{sB}, s{sOut}, 4096")
    for wc in range(4):
        o = O + 16 * wc
        for j in range(16):
            e(f"v_mul_f32 v{o + j}, v{o + j}, v{m0}")
        for j in range(8):
            e(f"v_cvt_pk_bf16_f32 v{Q + 8 * wc + j}, v{o + 2 * j}, v{o + 2 * j + 1}")
        for ab in range(2):
            j = 2 * wc + ab
            e(f"buffer_store_dwordx4 {vr(Q + 4 * j, 4)}, v{vL16}, {W}, s{sOut if j < 4 else sB} offen offset:{1024 * (j & 3)} sc1")
    tstamp(e, cfg, 3)
    e("s_waitcnt vmcnt(0)")
    tstamp(e, cfg, 4)
    e(f"""s_mov_b64 exec, 1
          buffer_store_dword v{vOne}, off, {W}, s{sFa} sc1
          s_mov_b64 exec, -1
          s_add_u32 s{sUnit}, s{sUnit}, {4 * UNIT}
          s_add_u32 s{sExp}, s{sExp}, {4 * 4096}
          s_add_u32 s{sFq}, s{sFq}, 16
          s_add_u32 s{sOut}, s{sOut}, {4 * 32 * 8192}
          s_add_u32 s{sFa}, s{sFa}, {4 * 512}
          s_add_u32 s{sSeg}, s{sSeg}, 4
          s_cmp_lt_u32 s{sSeg}, 64
          s_cbranch_scc1 L_ab_loop""")
    tdump(e, cfg)
    e("s_branch L_end")


def out_b(e, cfg):
    lane, t1, vL16, vSrc, vTr, vO, vSt, vT, vF, vRw, vRr = range(1, 12)
    ACC, RD = 16, 32
    sU, sSl, sRow, sLds, sOf, sFa, sTog = sC_, sD, sE, sF, sG, sH, sI
    sHi = 72
    srd(e, S_W0, P_WO, 0x400000)
    srd(e, S_W1, P_OUT, 0x400000)
    e(f"""s_sub_u32 s{sU}, s{sWid}, 64
          s_and_b32 s{sSl}, s{sU}, 15
          s_lshr_b32 s{sU}, s{sU}, 4
          s_cmp_ge_u32 s{sU}, {cfg.get('ng', 8 if cfg.get('nb', 3) >= 2 else 10)}
          s_cbranch_scc1 L_end
          v_and_b32 v{lane}, 63, v0
          v_lshlrev_b32 v{vL16}, 4, v{lane}
          v_and_b32 v{vF}, 7, v{lane}
          v_lshlrev_b32 v{vF}, 2, v{vF}""")
    e(f"""v_lshrrev_b32 v{t1}, 2, v{lane}
          v_lshlrev_b32 v{vSrc}, 10, v{t1}
          v_and_b32 v{t1}, 3, v{lane}
          v_lshl_add_u32 v{vSrc}, v{t1}, 4, v{vSrc}
          s_lshl_b32 s{sRow}, s{S_WAVE}, 20
          s_lshl_b32 s{sA}, s{sSl}, 6
          s_add_u32 s{sRow}, s{sRow}, s{sA}
          s_lshl_b32 s{sLds}, s{S_WAVE}, 15""")
    e(f"""v_lshlrev_b32 v{vTr}, 3, v{t1}
          v_lshrrev_b32 v{t1}, 5, v{lane}
          v_lshl_add_u32 v{vTr}, v{t1}, 10, v{vTr}
          v_bfe_u32 v{t1}, v{lane}, 2, 3
          v_lshl_add_u32 v{vTr}, v{t1}, 6, v{vTr}
          v_add_u32 v{vTr}, s{sLds}, v{vTr}""")
    e(f"""v_lshrrev_b32 v{t1}, 4, v{lane}
          v_lshlrev_b32 v{vO}, 9, v{t1}
          v_lshlrev_b32 v{vSt}, 3, v{t1}
          v_and_b32 v{t1}, 7, v{lane}
          v_lshl_add_u32 v{vO}, v{t1}, 4, v{vO}
          v_lshl_add_u32 v{vSt}, v{t1}, 11, v{vSt}
          v_and_b32 v{t1}, 8, v{lane}
          v_cmp_ne_u32 {sr(sHi, 2)}, 0, v{t1}
          v_lshl_add_u32 v{vO}, v{t1}, 8, v{vO}
          v_lshl_add_u32 v{vSt}, v{t1}, 27, v{vSt}
          s_lshl_b32 s{sA}, s{S_WAVE}, 11
          s_add_u32 s{sA}, s{sA}, 131072
          v_add_u32 v{vRw}, s{sA}, v{vL16}
          s_lshl_b32 s{sA}, s{S_WAVE}, 10
          s_add_u32 s{sA}, s{sA}, 131072
          v_add_u32 v{vRr}, s{sA}, v{vL16}""")
    e.wait(vm=0, lgkm=0)
    e("s_barrier")
    marks = {}

    def dma(ks):
        for j in range(2):
            e(f"""s_add_u32 m0, s{sLds}, {(ks % 16) * 2048 + j * 1024}
                  s_add_u32 s{sA}, s{sRow}, {(32 * ks + 16 * j) * 1024}
                  buffer_load_dwordx4 v{vSrc}, {sr(S_W0, 4)}, s{sA} offen lds""")
        marks[ks] = e.vm[-1]

    for ks in range(15):
        dma(ks)
    for ks in range(32):
        e.wait(vm=len(e.vm) - 1 - e.vm.index(marks[ks]), lgkm=0)
        if ks + 15 < 32:
            dma(ks + 15)
        for dt in range(2):
            for z in range(2):
                e(f"ds_read_b64_tr_b16 {vr(8 * ks + 4 * dt + 2 * z, 2, 'a')}, v{vTr} offset:{(ks % 16) * 2048 + z * 512 + dt * 32}")
    e.wait(vm=0, lgkm=0)
    e(f"s_mov_b32 s{sTog}, 0")
    e.label("L_ob_loop")
    e(f"""s_lshr_b32 s{sA}, s{sU}, 2
          s_lshl_b32 s{sA}, s{sA}, 5
          s_lshl_b32 s{sB}, s{S_WAVE}, 3
          s_add_u32 s{sA}, s{sA}, s{sB}
          s_lshl_b32 s{sFa}, s{sA}, 4
          s_add_u32 s{sFa}, s{sFa}, {F_AT}
          s_lshl_b32 s{sOf}, s{sA}, 13
          s_and_b32 s{sB}, s{sU}, 3
          s_lshl_b32 s{sB}, s{sB}, 7
          s_add_u32 s{sOf}, s{sOf}, s{sB}
          s_add_u32 s{sOf}, s{sOf}, {WS_OF}""")
    if cfg.get('nap', 1):
        e(f"""s_lshr_b32 s62, s{sU}, 2
              s_add_u32 s62, s62, 1
              s_min_u32 s62, s62, {64 - NTAIL}
              s_and_b32 s63, s{sWid}, 31
              s_lshl_b32 s63, s63, 7
              s_add_u32 s63, s63, {F_CH}""")
        nap_until(e, 'ob', vT, "s63", "s62", sB, cfg.get('napu', 24))
    poll_ge(e, 'ob', vT, vF, f"s{sFa}", 1, 8)
    tstamp(e, cfg, 0)
    for j in range(16):
        e(f"s_add_u32 s{sA}, s{sOf}, {j * 4096}\n buffer_load_dwordx4 {vr(128 + 4 * j, 4)}, v{vO}, {W}, s{sA} offen sc1")
    for ks in range(32):
        for dt in range(2):
            a = ACC + 8 * (ks & 1) + 4 * dt
            c = '0' if ks < 2 else vr(a, 4)
            e(f"v_mfma_f32_16x16x32_bf16 {vr(a, 4)}, {vr(8 * ks + 4 * dt, 4, 'a')}, {vr(128 + 4 * (ks >> 1), 4)}, {c}")
    for r in range(8):
        e(f"v_cndmask_b32 v{ACC + r}, v{ACC + r}, v{ACC + 8 + r}, {sr(sHi, 2)}")
    tstamp(e, cfg, 1)
    e(f"""v_add_u32 v{vT}, s{sTog}, v{vRw}
          ds_write_b128 v{vT}, {vr(ACC, 4)}
          ds_write_b128 v{vT}, {vr(ACC + 4, 4)} offset:1024""")
    e.barrier()
    e(f"""s_cmp_ge_u32 s{S_WAVE}, 2
          s_cbranch_scc1 L_ob_next
          v_add_u32 v{vT}, s{sTog}, v{vRr}""")
    for p in range(4):
        e(f"ds_read_b128 {vr(RD + 4 * p, 4)}, v{vT} offset:{2048 * p}")
    for r in range(4):
        e(f"""v_add_f32 v{RD + r}, v{RD + r}, v{RD + 4 + r}
              v_add_f32 v{RD + 8 + r}, v{RD + 8 + r}, v{RD + 12 + r}
              v_add_f32 v{RD + r}, v{RD + r}, v{RD + 8 + r}""")
    for r in range(4):
        e(f"v_add_f32_dpp v{RD + r}, v{RD + r}, v{RD + r} row_ror:8 row_mask:0xf bank_mask:0xf")
    e(f"""v_cvt_pk_bf16_f32 v{RD}, v{RD}, v{RD + 1}
          v_cvt_pk_bf16_f32 v{RD + 1}, v{RD + 2}, v{RD + 3}
          s_lshl_b32 s{sA}, s{sU}, 14
          s_lshl_b32 s{sB}, s{sSl}, 6
          s_add_u32 s{sA}, s{sA}, s{sB}
          s_lshl_b32 s{sB}, s{S_WAVE}, 5
          s_add_u32 s{sA}, s{sA}, s{sB}
          buffer_store_dwordx2 {vr(RD, 2)}, v{vSt}, {sr(S_W1, 4)}, s{sA} offen offset:1024 {cfg.get('ost', '')}
          L_ob_next:
          s_xor_b32 s{sTog}, s{sTog}, 8192
          s_add_u32 s{sU}, s{sU}, {cfg.get('ng', 8 if cfg.get('nb', 3) >= 2 else 10)}
          s_cmp_lt_u32 s{sU}, 256
          s_cbranch_scc1 L_ob_loop""")
    tstamp(e, cfg, 2)
    tdump(e, cfg)
    e("s_branch L_end")


def part_a(e, cfg):
    lane, t1, vL16, vSig, vSrc, vTr, vT, m0, m1, vSt, vW, vNeg = range(1, 13)
    BC, BP, BPX = 16, 32, 48
    SC, SP, O, PX = 64, 80, 96, 112
    Q, KC, KP, VC, VP = 128, 160, 192, 224, 48
    sSeg, sCh, sUnit, sPrevU, sFq, sCc, sRow = sC_, sD, sE, sF, sG, sH, sI
    srd(e, S_W0, P_AWO, 0x80000)
    srd(e, S_W1, P_OUT, 0x400000)
    lane_consts(e, lane, vL16, vSig)
    e(f"""s_sub_u32 s{sSeg}, s{sWid}, 32
          s_and_b32 s{sCh}, s{sSeg}, 1
          s_lshr_b32 s{sSeg}, s{sSeg}, 1
          s_mov_b32 s{sCc}, 0x3eb8aa3b""")
    e(f"""v_and_b32 v{t1}, 31, v{lane}
          v_lshrrev_b32 v{vT}, 5, v{lane}
          v_lshlrev_b32 v{vT}, 2, v{vT}
          v_sub_u32 v{t1}, v{t1}, v{vT}
          v_mov_b32 v{vNeg}, {NEG}""")
    for base, add in ((BC, 0), (BP, 32)):
        for r in range(16):
            e(f"""v_add_u32 v{vT}, {add - 8 * (r >> 2) - (r & 3)}, v{t1}
                  v_and_b32 v{vT}, 0xfffffff1, v{vT}
                  v_cmp_ne_u32 vcc, 0, v{vT}
                  v_cndmask_b32 v{base + r}, 0, v{vNeg}, vcc""")
    e(f"""v_lshrrev_b32 v{t1}, 5, v{lane}
          v_lshlrev_b32 v{vSrc}, 10, v{t1}
          v_and_b32 v{t1}, 31, v{lane}
          v_lshl_add_u32 v{vSrc}, v{t1}, 4, v{vSrc}
          v_lshlrev_b32 v{vSt}, 11, v{t1}
          s_lshl_b32 s{sRow}, s{S_WAVE}, 13
          s_lshl_b32 s{sA}, s{sCh}, 9
          s_add_u32 s{sRow}, s{sRow}, s{sA}
          s_lshl_b32 s63, s{S_WAVE}, 12""")
    e(f"""v_lshrrev_b32 v{t1}, 5, v{lane}
          v_lshlrev_b32 v{vTr}, 11, v{t1}
          v_lshl_add_u32 v{vSt}, v{t1}, 3, v{vSt}
          v_bfe_u32 v{t1}, v{lane}, 2, 2
          v_lshl_add_u32 v{vTr}, v{t1}, 9, v{vTr}
          v_bfe_u32 v{t1}, v{lane}, 4, 1
          v_lshl_add_u32 v{vTr}, v{t1}, 5, v{vTr}
          v_and_b32 v{t1}, 3, v{lane}
          v_lshl_add_u32 v{vTr}, v{t1}, 3, v{vTr}
          s_lshl_b32 s{sA}, s{S_WAVE}, 7
          v_add_u32 v{vTr}, s{sA}, v{vTr}
          s_lshl_b32 s{sA}, s{S_WAVE}, 13
          v_add_u32 v{vW}, s{sA}, v{vL16}""")
    e.wait(vm=0, lgkm=0)
    e("s_barrier")
    marks = {}

    def dma(r):
        for j in range(4):
            e(f"""s_add_u32 m0, s63, {(r % 8) * 16384 + j * 1024}
                  s_add_u32 s{sA}, s{sRow}, {(32 * r + 2 * j) * 1024}
                  buffer_load_dwordx4 v{vSrc}, {sr(S_W0, 4)}, s{sA} offen lds""")
        marks[r] = e.vm[-1]

    for r in range(7):
        dma(r)
    for r in range(16):
        e.wait(vm=len(e.vm) - 1 - e.vm.index(marks[r]), lgkm=0)
        e("s_barrier")
        if r + 7 < 16:
            dma(r + 7)
        e(f"v_add_u32 v{vT}, {(r % 8) * 16384}, v{vTr}")
        for hl in range(2):
            for dt in range(2):
                for z in range(2):
                    e(f"ds_read_b64_tr_b16 {vr(8 * (2 * r + hl) + 4 * dt + 2 * z, 2, 'a')}, v{vT} offset:{(16 * hl + 8 * z) * 512 + dt * 64}")
    e.wait(vm=0, lgkm=0)
    e.label("L_pa_loop")
    e(f"""s_add_u32 s{sA}, s{S_WAVE}, 32
          s_lshl_b32 s{sA}, s{sA}, 6
          s_add_u32 s{sA}, s{sA}, s{sSeg}
          s_mul_i32 s{sUnit}, s{sA}, {UNIT}
          s_lshl_b32 s{sFq}, s{sA}, 2
          s_add_u32 s{sFq}, s{sFq}, {F_QKV}
          s_cmp_eq_u32 s{sSeg}, 0
          s_cselect_b32 s{sA}, 0, {UNIT}
          s_cselect_b32 s{sB}, 0, 4
          s_cselect_b64 vcc, -1, 0
          s_sub_u32 s{sPrevU}, s{sUnit}, s{sA}
          s_sub_u32 s62, s{sFq}, s{sB}""")
    for r in range(8, 16):
        e(f"v_cndmask_b32 v{BP + r - 8}, v{BP + r}, v{vNeg}, vcc")
    poll_ge(e, 'pa1', vT, None, f"s{sFq}", 2, 1)
    poll_ge(e, 'pa2', vT, None, "s62", 2, 1)
    for base, a, u, off in ((Q, vL16, sUnit, 0), (KC, vSig, sUnit, 8192), (KP, vSig, sPrevU, 8192), (VC, vL16, sUnit, 16384)):
        e(f"s_add_u32 s{sA}, s{u}, {off}\n s_add_u32 s{sB}, s{u}, {off + 4096}")
        for j in range(8):
            e(f"buffer_load_dwordx4 {vr(base + 4 * j, 4)}, v{a}, {W}, s{sA if j < 4 else sB} offen offset:{1024 * (j & 3)} sc1")
    e(f"s_add_u32 s{sA}, s{sPrevU}, {16384 + 1024}\n s_add_u32 s{sB}, s{sPrevU}, {16384 + 1024 + 4096}")
    for wc in range(4):
        e(f"buffer_load_dwordx4 {vr(VP + 4 * wc, 4)}, v{vL16}, {W}, s{sA if wc < 2 else sB} offen offset:{2048 * (wc & 1)} sc1")
    e("s_barrier")
    for j in range(8):
        wc, ab = j >> 1, j & 1
        e(f"""v_mfma_f32_32x32x16_bf16 {vr(SC, 16)}, {vr(KC + 4 * j, 4)}, {vr(Q + 4 * j, 4)}, {vr(BC, 16)}
              v_mfma_f32_32x32x16_bf16 {vr(SP, 16)}, {vr(KP + 4 * j, 4)}, {vr(Q + 4 * j, 4)}, {vr(BP - 8, 16)}""")
        softmax_tail(e, [SC + r for r in range(16)] + [SP + r for r in range(8, 16)], m0, m1, sCc)
        for k in range(8):
            e(f"v_cvt_pk_bf16_f32 v{PX + k}, v{SC + 2 * k}, v{SC + 2 * k + 1}")
        for k in range(4):
            e(f"v_cvt_pk_bf16_f32 v{PX + 8 + k}, v{SP + 8 + 2 * k}, v{SP + 8 + 2 * k + 1}")
        o = vr(O, 16)
        e(f"""v_mfma_f32_32x32x16_bf16 {o}, {vr(VC + 8 * wc, 4)}, {vr(PX, 4)}, 0
              v_mfma_f32_32x32x16_bf16 {o}, {vr(VC + 8 * wc + 4, 4)}, {vr(PX + 4, 4)}, {o}
              v_mfma_f32_32x32x16_bf16 {o}, {vr(VP + 4 * wc, 4)}, {vr(PX + 8, 4)}, {o}""")
        for k in range(8):
            e(f"v_mul_f32 v{O + 8 * ab + k}, v{O + 8 * ab + k}, v{m0}")
        for k in range(4):
            e(f"v_cvt_pk_bf16_f32 v{124 + k}, v{O + 8 * ab + 2 * k}, v{O + 8 * ab + 2 * k + 1}")
        e(f"ds_write_b128 v{vW}, {vr(124, 4)} offset:{1024 * j}")
    e.barrier()
    for hd in range(32):
        e(f"ds_read_b128 {vr(128 + 4 * hd, 4)}, v{vL16} offset:{1024 * hd}")
        if hd >= 8:
            k = hd - 8
            for dt in range(2):
                c = '0' if k == 0 else vr(SC + 16 * dt, 16)
                e(f"v_mfma_f32_32x32x16_bf16 {vr(SC + 16 * dt, 16)}, {vr(8 * k + 4 * dt, 4, 'a')}, {vr(128 + 4 * k, 4)}, {c}")
    for k in range(24, 32):
        for dt in range(2):
            e(f"v_mfma_f32_32x32x16_bf16 {vr(SC + 16 * dt, 16)}, {vr(8 * k + 4 * dt, 4, 'a')}, {vr(128 + 4 * k, 4)}, {vr(SC + 16 * dt, 16)}")
    e(f"""s_lshl_b32 s{sA}, s{sSeg}, 16
          s_lshl_b32 s{sB}, s{sCh}, 9
          s_add_u32 s{sA}, s{sA}, s{sB}
          s_lshl_b32 s{sB}, s{S_WAVE}, 7
          s_add_u32 s{sA}, s{sA}, s{sB}""")
    for dt in range(2):
        for a in range(4):
            r = SC + 16 * dt + 4 * a
            d = O + 2 * (4 * dt + a)
            e(f"""v_cvt_pk_bf16_f32 v{d}, v{r}, v{r + 1}
                  v_cvt_pk_bf16_f32 v{d + 1}, v{r + 2}, v{r + 3}
                  buffer_store_dwordx2 {vr(d, 2)}, v{vSt}, {sr(S_W1, 4)}, s{sA} offen offset:{64 * dt + 16 * a} {cfg.get('ost', '')}""")
    e(f"""s_add_u32 s{sSeg}, s{sSeg}, 16
          s_cmp_lt_u32 s{sSeg}, 64
          s_cbranch_scc1 L_pa_loop
          s_branch L_end""")


def worker(e, cfg):
    PS[0] = cfg.get('ps', 4)
    e(f"s_sub_u32 s{sWid}, s{S_ROLE}, 32")
    if cfg.get('lin', 0):
        e.comment("sweep Wq/Wk/Wv once in address order (one word per line, 64 KiB per workgroup): every strided reader")
        e(f"""s_sub_u32 s62, s{sWid}, 32
              s_cbranch_scc1 L_nolin
              s_mul_i32 s63, s62, 171
              s_lshr_b32 s63, s63, 9
              s_mul_i32 s{sA}, s63, 3
              s_sub_u32 s62, s62, s{sA}
              s_cmp_eq_u32 s62, 1
              s_cselect_b32 s{S_T0}, s{P_WK}, s{P_WQ}
              s_cselect_b32 s{S_T0 + 1}, s{P_WK + 1}, s{P_WQ + 1}
              s_cmp_eq_u32 s62, 2
              s_cselect_b32 s{S_T0}, s{P_WV}, s{S_T0}
              s_cselect_b32 s{S_T0 + 1}, s{P_WV + 1}, s{S_T0 + 1}
              s_mov_b32 s{S_T0 + 2}, 0x400000
              s_mov_b32 s{S_T0 + 3}, 0x20000
              s_lshl_b32 s63, s63, 2
              s_add_u32 s63, s63, s{S_WAVE}
              s_lshl_b32 s63, s63, 14
              s_add_u32 s62, s63, 8192
              v_and_b32 v123, 63, v0
              v_lshlrev_b32 v123, 7, v123""")
        e.loose(f"buffer_load_dword v124, v123, {sr(S_T0, 4)}, s63 offen")
        e.loose(f"buffer_load_dword v124, v123, {sr(S_T0, 4)}, s62 offen")
        e.vm = []
        e.label("L_nolin")
    if cfg.get('ne', 0):
        e.comment("five workgroups of each die form the team that runs the first steps while die 0 still loads its weights")
        e(f"""s_lshr_b32 s62, s{sWid}, 5
              s_and_b32 s63, s{sWid}, 31
              s_cmp_ge_u32 s63, 5
              s_cbranch_scc1 L_noec
              s_mul_i32 s62, s62, 5
              s_add_u32 s{S_HEAD}, s62, s63
              s_mov_b32 s{S_EC}, 1
              s_cmp_lt_u32 s{S_HEAD}, 32
              s_cbranch_scc1 L_chain
              s_branch L_spare
              L_noec:
              s_mul_i32 s62, s62, 27
              s_add_u32 s63, s63, s62
              s_sub_u32 s63, s63, 5
              s_cmp_lt_u32 s63, 180
              s_cbranch_scc1 L_proj
              L_spare:""")
    elif cfg.get('nb', 3) == 3:
        e(f"s_sub_u32 s63, s{sWid}, 32\n s_cmp_lt_u32 s63, 180\n s_cbranch_scc1 L_proj")
    else:
        e(f"s_mov_b32 s63, s{sWid}\n s_cmp_lt_u32 s{sWid}, 216\n s_cbranch_scc1 L_proj")
    st = e.state()
    e("s_waitcnt vmcnt(0)")
    confirm_barrier(e, 'sp')
    if cfg.get('nb', 3) == 3:
        e(f"s_cmp_lt_u32 s{sWid}, 32\n s_cbranch_scc1 L_end")
    if cfg.get('opf', 0):
        e.comment("read Wo once (one word per line): the recurrence asks for it last and then finds it on the die-level cache")
        srd(e, S_W0, P_WO, 0x400000)
        e(f"""s_sub_u32 s{sA}, s{sWid}, 216
              s_lshl_b32 s{sA}, s{sA}, 2
              s_add_u32 s{sA}, s{sA}, s{S_WAVE}
              s_lshl_b32 s{sA}, s{sA}, 17
              v_and_b32 v4, 63, v0
              v_lshlrev_b32 v4, 7, v4""")
        for j in range(16):
            e.loose(f"buffer_load_dword v5, v4, {sr(S_W0, 4)}, s{sA} offen")
            e(f"s_add_u32 s{sA}, s{sA}, 8192")
    wait_init(e, 'sp', 3, 127)
    e("s_branch L_phase2")
    e.label("L_proj"); e.set_state(st)
    proj(e, cfg)
    e.label("L_phase2")
    dbg_max(e, cfg, 15, v=12)
    if cfg.get('diag'):
        e("s_memrealtime s[88:89]\n s_waitcnt lgkmcnt(0)")
    if cfg.get('nophase2'):
        e("s_branch L_end")
    nb = cfg.get('nb', 3)
    if nb == 1:
        e(f"s_cmp_lt_u32 s{sWid}, 64\n s_cselect_b32 s{sA}, 32, 0\n s_xor_b32 s{sWid}, s{sWid}, s{sA}")
    if nb >= 2:
        e(f"s_sub_u32 s{sWid}, s{sWid}, 32\n s_cbranch_scc1 L_end")
        if cfg.get('rot'):
            e(f"""s_add_u32 s{sWid}, s{sWid}, {32 * cfg['rot']}
                  s_cmp_ge_u32 s{sWid}, 192
                  s_cselect_b32 s{sA}, 192, 0
                  s_sub_u32 s{sWid}, s{sWid}, s{sA}""")
    e(f"""s_cmp_lt_u32 s{sWid}, 32
          s_cbranch_scc1 L_attn_b
          s_cmp_lt_u32 s{sWid}, 64
          s_cbranch_scc1 L_part_a""")
    st = e.state()
    out_b(e, cfg)
    e.label("L_attn_b"); e.set_state(st)
    attn_b(e, cfg)
    e.label("L_part_a"); e.set_state(st)
    part_a(e, cfg)
```

```python
from common import *

L_T, L_OB, L_DUMMY, L_KX, L_WL = 8192, 12544, 14592, 16384, 32768
T_PITCH = 1088
vL16, vPst, vMst, vTw, vTr, vKXr, vOw, vWL0, vWL1, vMw, vIdx, vSelC = range(12)
EX, PM, VX = 12, 16, 20
TMP = 28
MA = 32
ACC = 64
X, KXR, SPARE = 88, 104, 120
R1 = [MA + 8, MA + 16, MA + 24, X, X + 8, KXR, KXR + 8, SPARE, X, X + 8]
WO_SB = [KXR, KXR + 8, X, X + 8, ACC, ACC + 8]
(sStep, sMcur, sProg, sMtog, sG, sKl, sMb, sKV, sC, sExp, sMcur2, sMbaseS, sPbaseS, sPbaseL, sFl, sFch, sTog, sNan,
 sA, sB) = range(50, 70)
sSel = 70
sOK, sMn2, sF1, sEnd = 78, 3, 38, 39
sArm, sFm = 18, 98
sVx, sVt, sOK2, sG2 = 96, 97, 17, 100
HV, HS, HA, HD = VX, VX + 1, VX + 2, VX + 4
sHm, sCnt = 20, 28
S_M0 = 84
TRS = [30, 42, 44, 80, 82, 88, 32, 34]
sDbgT = 80

STREAM = [('q', 0, 0), ('q', 1, 0), ('k', 0, 0), ('k', 1, 0), ('q', 0, 1), ('q', 1, 1), ('k', 0, 1), ('k', 1, 1),
          ('q', 0, 5), ('q', 0, 7),
          ('o', 5, 0), ('o', 5, 1), ('o', 6, 0), ('o', 6, 1), ('o', 7, 0), ('o', 7, 1)]
WLPOS = {op: p for op, p in zip(STREAM[10:14], range(4))}
WLPOS.update({op: 4 + p for p, op in enumerate(STREAM[14:16] + STREAM[:10])})
ALLOPS = [(m, ft, i) for m in 'qkv' for ft in range(2) for i in range(8)] + [('o', t, kb) for t in range(8) for kb in range(2)]
RES = {}
for n, op in enumerate([o for o in ALLOPS if o not in STREAM]):
    RES[op] = ('a', 8 * n) if n < 32 else ('v', 128 + 8 * (n - 32))
PARK = {}
for n, op in enumerate(STREAM[14:16] + STREAM[:10]):
    PARK[op] = 32 + 8 * n
for n, op in enumerate(STREAM[10:14]):
    PARK[op] = 48 + 8 * n
W = sr(S_WS, 4)
CFG = {}


def wl_addr(op, half):
    p = WLPOS[op]
    off = (p >> 1) * 16384 + (p & 1) * 2048 + half * 1024
    return (vWL0, off) if off < 65536 else (vWL1, off - 65536)


def wl_write(e, op, src):
    for half in range(2):
        a, off = wl_addr(op, half)
        e(f"ds_write_b128 v{a}, {vr(src + 4 * half, 4)} offset:{off}")


def wl_lines(op, dst):
    out = []
    for half in range(2):
        a, off = wl_addr(op, half)
        out.append(f"ds_read_b128 {vr(dst + 4 * half, 4)}, v{a} offset:{off}")
    return out


def delay(e, cyc):
    if (CFG.get('slp') or cyc >= 384) and cyc >= 64:
        k = cyc // 64
        e(f"s_sleep {k}")
        cyc -= 64 * k
    if CFG.get('dmf'):
        while cyc >= 16:
            if CFG['dmf'] == 1:
                e(f"v_mfma_f32_16x16x32_bf16 {vr(VX, 4)}, a[0:3], a[8:11], 0")
            else:
                e(f"v_smfmac_f32_16x16x64_bf16 {vr(VX, 4)}, a[0:3], a[8:15], v{vIdx}")
            cyc -= 16
    n = cyc // 4
    while n > 0:
        k = min(n, 16)
        e(f"s_nop {k - 1}")
        n -= k


def mix(reads, other, per=3):
    out = []
    other = list(other)
    for r in reads:
        out.append(r)
        for _ in range(per):
            if other:
                out.append(other.pop(0))
    return out + other


def mload(b):
    return f"buffer_load_dwordx4 {vr(MA + 4 * b, 4)}, v{vMw}, {W}, s{sMcur if b == 0 else sMcur2} offen sc1"


def mspare():
    return f"buffer_load_dwordx4 {vr(VX, 4)}, v{vMw}, {W}, s{sMcur} offen sc1"


def kx_dma(e, ldsbase):
    e(f"""s_lshl_b32 s{sA}, s{S_WAVE}, 11
          s_add_u32 m0, s{sA}, {ldsbase}
          buffer_load_dwordx4 v{vL16}, {W}, s{sKV} offen sc1 lds
          buffer_load_dwordx4 v{vL16}, {W}, s{sKV} offen offset:1024 sc1 lds""")


def scalar_lines():
    return [x.strip() for x in f"""s_and_b32 s{sA}, s{sStep}, 3
          s_lshl_b32 s{sA}, s{sA}, 13
          s_add_u32 s{sMcur}, s{sA}, s{sMb}
          s_add_u32 s{sMcur2}, s{sMcur}, 4096
          s_and_b32 s{sA}, s{sA}, 0x2000
          s_add_u32 s{sMn2}, s{sMbaseS}, s{sA}
          s_lshl_b32 s{sMtog}, s{sA}, 1
          s_sub_u32 s{sVx}, s{sKV}, s{sTog}
          s_add_u32 s{sVx}, s{sVx}, {8192 - L_KX}
          s_add_u32 s{sKV}, s{sKV}, {0 if CFG.get('samekv') else UNIT}
          s_add_u32 s{sVt}, s{sKV}, 8192
          s_xor_b32 s{sA}, s{sTog}, 0x2000
          s_add_u32 m0, s{sA}, s{sKl}
          s_cmp_gt_u32 s{sStep}, s{sF1}
          s_cselect_b32 s{sA}, 4096, 0
          s_add_u32 s{sExp}, s{sExp}, s{sA}
          s_add_u32 s{sOK2}, s{sStep}, 1
          s_max_u32 s{sProg}, s{sStep}, {0 if CFG.get('xo', 0) else 1}
          s_sub_u32 s{sProg}, s{sProg}, {0 if CFG.get('xo', 0) else 1}
          s_and_b32 s{sG2}, s{sOK2}, 1""".split('\n')]


def prep_a_lines():
    other = [f"v_mov_b64 {vr(ACC + j, 2)}, 0" for j in range(0, 24, 2)] + [f"v_lshlrev_b32 v{PM + 3}, 1, v{vL16}", f"v_mov_b32 v{TMP}, s{sProg}"]
    reads = sum([wl_lines(STREAM[o], R1[o]) for o in range(3, 8)], [])
    return mix(reads, other, 2)


def prep_b_lines():
    other = [f"v_xor_b32 v{vMst}, s{sMtog}, v{vMst}"] + [f"v_xor_b32 v{TMP + p}, {p << 10}, v{vMw}" for p in range(1, 4)]
    reads = sum([wl_lines(STREAM[o], R1[o]) for o in range(3)], [])
    return mix(reads, other, 1)


def chain_startup(e, cfg):
    h = S_HEAD
    ent = 'retE' if cfg.get('ic', 0) else 'step'
    NE = cfg.get('ne', 0)
    ARMED = (0x400100 if NE else 0x200100)
    tA, tB, tC, tD = EX, EX + 1, EX + 2, EX + 3
    t0, t1, t2, t3 = TMP, TMP + 1, TMP + 2, TMP + 3
    lane = PM
    chunks = [('o', kb, Q) for kb in range(2) for Q in range(4)] + [(m, b, 0) for m in cfg.get('mo', 'qkv') for b in range(8)]
    ring = {4: L_WL + 2 * 16384, 5: L_WL + 3 * 16384, 6: L_WL + 4 * 16384, 0: L_WL + 5 * 16384, 1: L_WL + 6 * 16384,
            2: L_WL + 7 * 16384, 3: 0}
    ptr = {'q': P_WQ, 'k': P_WK, 'v': P_WV, 'o': P_WO}
    sHq, sHo, sLw = sMcur, sProg, sMcur2
    cur, marks = [None], {}

    def dma(r):
        m, x, Q = chunks[r]
        if cur[0] != m:
            srd(e, S_T0, ptr[m], 0x400000); cur[0] = m
        for i in range(4):
            if m == 'o':
                row = 64 * x + 32 * (Q >> 1) + 2 * (Q & 1) + 4 * (i >> 1) + (i & 1)
                e(f"""s_add_u32 s{sA}, s{sHo}, {row * 1024}
                      s_add_u32 m0, s{sLw}, {ring[r % 7] + i * 1024}
                      v_xor_b32 v{t2}, {i << 5}, v{VX + 3}
                      buffer_load_dwordx4 v{t2}, {sr(S_T0, 4)}, s{sA} offen {cfg.get('wnt', '')} lds""")
            else:
                e(f"""s_add_u32 s{sA}, s{sHq}, {(128 * (x & 3) + 64 * (x >> 2) + 4 * i) * 8192}
                      s_add_u32 m0, s{sLw}, {ring[r % 7] + i * 1024}
                      buffer_load_dwordx4 v{tA}, {sr(S_T0, 4)}, s{sA} offen {cfg.get('wnt', '')} lds""")
        marks[r] = e.vm[-1]

    S_T2 = 20
    cur2 = [None]

    def ahead(r):
        m, x, Q = chunks[r]
        if m == 'o':
            return
        if cur2[0] != m:
            srd(e, S_T2, ptr[m], 0x400000); cur2[0] = m
        e(f"s_add_u32 s{sA}, s24, {(128 * (x & 3) + 64 * (x >> 2)) * 8192}")
        e.loose(f"buffer_load_dword v{PM}, v{tD}, {sr(S_T2, 4)}, s{sA} offen")

    if cfg.get('lhold'):
        e(f"""L_hold4:
              s_memrealtime s[92:93]
              s_waitcnt lgkmcnt(0)
              s_sub_u32 s92, s92, s94
              s_cmp_lt_u32 s92, {cfg['lhold']}
              s_cbranch_scc1 L_hold4""")
    e(f"""v_and_b32 v{lane}, 63, v0
          v_lshlrev_b32 v{vL16}, 4, v{lane}
          s_and_b32 s{sA}, s{S_WAVE}, 1
          s_lshr_b32 s{sB}, s{S_WAVE}, 1
          s_lshl_b32 s{sHo}, s{sA}, 7
          v_xor_b32 v{VX + 3}, s{sHo}, v{vL16}
          s_lshl_b32 s{sHo}, s{h}, 17
          s_lshl_b32 s{sLw}, s{sA}, 14
          s_add_u32 s{sHo}, s{sHo}, s{sLw}
          s_lshl_b32 s{sLw}, s{sB}, 13
          s_add_u32 s{sHo}, s{sHo}, s{sLw}
          s_lshl_b32 s{sHq}, s{h}, 8
          s_lshl_b32 s{sLw}, s{S_WAVE}, 17
          s_add_u32 s{sHq}, s{sHq}, s{sLw}
          s_lshl_b32 s{sLw}, s{S_WAVE}, 12""")
    if cfg.get('tw', 0):
        e.comment("first touch of every page of the other three matrices at once")
        e(f"v_lshlrev_b32 v{t3}, 16, v{lane}")
        for m in 'qkv':
            srd(e, S_M0, ptr[m], 0x400000)
            e.loose(f"buffer_load_dword v125, v{t3}, {sr(S_M0, 4)}, s{sHq} offen")
    DD = cfg.get('dd', 6)
    for r in range(cfg.get('d0', 6)):
        dma(r)
        if cfg.get('pdbg') and r in (0, 5):
            e(f"s_memrealtime {sr(88 if r == 0 else 82, 2)}")
    e(f"""v_lshrrev_b32 v{t0}, 4, v{lane}
          v_and_b32 v{t1}, 15, v{lane}
          s_lshl_b32 s{sA}, s{S_WAVE}, 10
          v_add_u32 v{vMw}, s{sA}, v{vL16}
          v_lshlrev_b32 v{PM + 3}, 2, v{lane}""")
    e(f"""v_lshrrev_b32 v{t2}, 2, v{lane}
          v_lshlrev_b32 v{t2}, 12, v{t2}
          v_and_b32 v{t3}, 3, v{lane}
          v_lshl_add_u32 v{vPst}, v{t3}, 4, v{t2}""")
    e(f"""v_and_b32 v{t2}, 1, v{lane}
          v_lshlrev_b32 v{t2}, 5, v{t2}
          v_lshl_add_u32 v{t2}, v{t0}, 3, v{t2}
          v_and_b32 v{t3}, 4, v{lane}
          v_add_u32 v{t2}, v{t2}, v{t3}
          v_and_b32 v{t3}, 8, v{lane}
          v_cmp_ne_u32 {sr(sArm, 2)}, 0, v{t3}
          v_lshl_add_u32 v{t2}, v{t3}, 11, v{t2}
          v_and_b32 v{t3}, 2, v{lane}
          v_lshl_add_u32 v{vMst}, v{t3}, 29, v{t2}""")
    srd(e, S_M0, P_MEM0, 8192)
    e(f"""v_and_b32 v{t2}, 1, v{lane}
          v_lshlrev_b32 v{tD}, 10, v{t2}
          v_lshl_add_u32 v{tD}, v{t0}, 1, v{tD}
          v_bfe_u32 v{t2}, v{lane}, 2, 1
          v_lshl_add_u32 v{tD}, v{t2}, 6, v{tD}
          s_and_b32 s{sA}, s{h}, 6
          s_lshl_b32 s{sA}, s{sA}, 10
          s_lshr_b32 s{sB}, s{h}, 3
          s_lshl_b32 s{sB}, s{sB}, 8
          s_add_u32 s{sA}, s{sA}, s{sB}
          s_and_b32 s{sB}, s{S_WAVE}, 1
          s_lshl_b32 s{sB}, s{sB}, 7
          s_add_u32 s{sA}, s{sA}, s{sB}
          s_lshr_b32 s{sB}, s{S_WAVE}, 1
          s_lshl_b32 s{sB}, s{sB}, 3
          s_add_u32 s{sA}, s{sA}, s{sB}
          s_and_b32 s{sB}, s{h}, 1
          s_lshl_b32 s{sB}, s{sB}, 4
          s_add_u32 s{sA}, s{sA}, s{sB}
          buffer_load_ushort v{VX}, v{tD}, {sr(S_M0, 4)}, s{sA} offen
          buffer_load_ushort v{VX + 1}, v{tD}, {sr(S_M0, 4)}, s{sA} offen offset:32""")
    e(f"""s_lshl_b32 s{sA}, s{S_WAVE}, 8
          s_add_u32 s{sA}, s{sA}, {L_T}
          v_mul_u32_u24 v{t2}, {T_PITCH}, v{t0}
          v_lshl_add_u32 v{t2}, v{t1}, 3, v{t2}
          v_add_u32 v{vTw}, s{sA}, v{t2}
          v_and_b32 v{t3}, 3, v{lane}
          v_mul_u32_u24 v{t2}, {T_PITCH}, v{t3}
          v_lshrrev_b32 v{t3}, 5, v{lane}
          v_lshl_add_u32 v{t2}, v{t3}, 7, v{t2}
          v_bfe_u32 v{t3}, v{lane}, 2, 3
          v_lshl_add_u32 v{t2}, v{t3}, 3, v{t2}
          v_add_u32 v{vTr}, {L_T}, v{t2}
          v_lshlrev_b32 v{t2}, 9, v{t0}
          v_lshl_add_u32 v{t2}, v{t1}, 4, v{t2}
          v_add_u32 v{vKXr}, {L_KX}, v{t2}""")
    e(f"""s_lshl_b32 s{sA}, s{S_WAVE}, 9
          s_add_u32 s{sA}, s{sA}, {L_OB}
          v_lshrrev_b32 v{t2}, 5, v{lane}
          v_lshlrev_b32 v{t2}, 8, v{t2}
          v_and_b32 v{t3}, 16, v{lane}
          v_add_u32 v{t2}, v{t2}, v{t3}
          v_and_b32 v{t3}, 12, v{lane}
          v_lshl_add_u32 v{t2}, v{t3}, 4, v{t2}
          v_and_b32 v{t3}, 1, v{lane}
          v_lshl_add_u32 v{t2}, v{t3}, 5, v{t2}
          v_add_u32 v{t2}, s{sA}, v{t2}
          v_and_b32 v{t3}, 2, v{lane}
          v_lshlrev_b32 v{tA}, 3, v{t3}
          v_xor_b32 v{t2}, v{t2}, v{tA}
          v_lshlrev_b32 v{t3}, 12, v{t3}
          v_sub_u32 v{vOw}, v{t2}, v{t3}
          s_add_u32 s{sA}, s{sLw}, {L_WL}
          v_add_u32 v{vWL0}, s{sA}, v{vL16}
          v_add_u32 v{vWL1}, 0x10000, v{vWL0}""")
    e(f"""v_and_b32 v{t2}, 1, v{lane}
          v_cmp_ne_u32 vcc, 0, v{t2}
          v_mov_b32 v{t2}, 0x4444
          v_mov_b32 v{t3}, 0xeeee
          v_cndmask_b32 v{vIdx}, v{t2}, v{t3}, vcc
          v_mov_b32 v{t2}, 0x3f80
          v_mov_b32 v{t3}, 0x3f800000
          v_cndmask_b32 v{vSelC}, v{t2}, v{t3}, vcc
          v_lshrrev_b32 v{t2}, 1, v{t1}""")
    for j in range(4):
        e(f"v_cmp_eq_u32 {sr(sSel + 2 * j, 2)}, {j}, v{t2}")
    e(f"""v_lshlrev_b32 v{tA}, 13, v{t0}
          v_lshlrev_b32 v{t2}, 2, v{t0}
          v_xor_b32 v{t2}, v{t2}, v{t1}
          v_lshl_add_u32 v{tA}, v{t2}, 4, v{tA}""")
    e(f"""v_bfe_u32 v{t2}, v{lane}, 2, 1
          v_lshlrev_b32 v{tB}, 12, v{t2}
          v_bfe_u32 v{t2}, v{lane}, 5, 1
          v_lshl_add_u32 v{tB}, v{t2}, 10, v{tB}
          v_bfe_u32 v{t2}, v{lane}, 3, 1
          v_lshl_add_u32 v{tB}, v{t2}, 9, v{tB}
          v_bfe_u32 v{t2}, v{lane}, 4, 1
          v_lshl_add_u32 v{tB}, v{t2}, 8, v{tB}
          v_and_b32 v{t2}, 3, v{lane}
          v_lshl_add_u32 v{tB}, v{t2}, 3, v{tB}
          v_bfe_u32 v{t3}, v{tB}, 8, 2
          v_xor_b32 v{t3}, s{S_WAVE}, v{t3}
          v_lshl_add_u32 v{tB}, v{t3}, 6, v{tB}""")
    e(f"""v_lshrrev_b32 v{t3}, 2, v{lane}
          v_lshlrev_b32 v{tC}, 10, v{t3}
          v_lshl_add_u32 v{tC}, v{t2}, 3, v{tC}
          s_lshl_b32 s{sA}, s{S_WAVE}, 8
          v_add_u32 v{tC}, s{sA}, v{tC}
          v_and_b32 v{t3}, 7, v{t3}
          v_lshl_add_u32 v{tC}, v{t3}, 5, v{tC}""")
    e(f"""s_lshl_b32 s{sA}, s{S_WAVE}, 11
          s_lshl_b32 s{sB}, s{h}, 13
          s_add_u32 s{sPbaseL}, s{sA}, s{sB}
          s_add_u32 s{sPbaseL}, s{sPbaseL}, {WS_P}
          s_lshl_b32 s{sA}, s{S_WAVE}, 16
          s_lshl_b32 s{sB}, s{h}, 6
          s_add_u32 s{sPbaseS}, s{sA}, s{sB}
          s_add_u32 s{sPbaseS}, s{sPbaseS}, {WS_P}
          s_lshl_b32 s{sA}, s{S_EC}, 18
          s_add_u32 s{sPbaseS}, s{sPbaseS}, s{sA}
          s_add_u32 s{sPbaseL}, s{sPbaseL}, s{sA}
          s_lshl_b32 s{sMb}, s{S_EC}, 15
          s_add_u32 s{sMb}, s{sMb}, {WS_M}
          s_cmp_eq_u32 s{S_EC}, 0
          s_cselect_b32 s{sStep}, {NE}, 0""")
    e(f"""s_and_b32 s{sA}, s{S_WAVE}, 1
          s_lshl_b32 s{sMbaseS}, s{sA}, 12
          s_and_b32 s{sA}, s{h}, 24
          s_lshl_b32 s{sA}, s{sA}, 7
          s_add_u32 s{sMbaseS}, s{sMbaseS}, s{sA}
          s_and_b32 s{sA}, s{h}, 1
          s_lshl_b32 s{sA}, s{sA}, 9
          s_add_u32 s{sMbaseS}, s{sMbaseS}, s{sA}
          s_lshr_b32 s{sA}, s{S_WAVE}, 1
          s_lshl_b32 s{sA}, s{sA}, 8
          s_add_u32 s{sMbaseS}, s{sMbaseS}, s{sA}
          s_and_b32 s{sA}, s{h}, 6
          s_lshl_b32 s{sA}, s{sA}, 5
          s_add_u32 s{sMbaseS}, s{sMbaseS}, s{sA}
          s_add_u32 s{sMbaseS}, s{sMbaseS}, s{sMb}""")
    e(f"""s_mul_i32 s{sKV}, s{h}, {64 * UNIT}
          s_lshl_b32 s{sA}, s{S_WAVE}, 11
          s_add_u32 s{sKV}, s{sKV}, s{sA}
          s_add_u32 s{sKV}, s{sKV}, {WS_QKV + 8192}
          s_lshl_b32 s{sExp}, s{h}, 18
          s_lshl_b32 s{sA}, s{S_WAVE}, 10
          s_add_u32 s{sExp}, s{sExp}, s{sA}
          s_add_u32 s{sExp}, s{sExp}, {WS_EXP}
          s_lshl_b32 s{sFl}, s{h}, 8
          s_add_u32 s{sFl}, s{sFl}, {F_QKV}
          s_lshl_b32 s{sFch}, s{h}, 7
          s_lshl_b32 s{sA}, s{S_WAVE}, 2
          s_add_u32 s{sFch}, s{sFch}, s{sA}
          s_add_u32 s{sFch}, s{sFch}, {F_CH}
          s_mov_b32 s{sC}, 0x3e0293ee
          s_lshl_b32 s{sKl}, s{S_WAVE}, 11
          s_add_u32 s{sKl}, s{sKl}, {L_KX}
          s_mul_i32 s{sA}, s{sStep}, {UNIT}
          s_add_u32 s{sKV}, s{sKV}, s{sA}
          s_mov_b32 s{sOK}, 1""")
    e(f"""s_and_b32 s{sA}, s{sStep}, 1
          v_mov_b32 v{VX + 4}, s{sA}
          v_mov_b32 v{VX + 5}, s{sA}
          v_mov_b32 v{VX + 6}, s{sA}
          v_mov_b32 v{VX + 7}, s{sA}
          v_mov_b32 v{VX + 2}, -1
          s_add_u32 s{sB}, s{sMbaseS}, 8192
          buffer_store_dwordx4 {vr(VX + 4, 4)}, v{vL16}, {W}, s{sPbaseL} offen sc1
          buffer_store_dwordx4 {vr(VX + 4, 4)}, v{vL16}, {W}, s{sPbaseL} offen offset:1024 sc1
          buffer_store_dword v{VX + 2}, v{vMst}, {W}, s{sB} offen sc1""")
    if cfg.get('sdiag'):
        e("s_memrealtime s[20:21]\n s_waitcnt lgkmcnt(0)")
    confirm_barrier(e, 'ch')
    if cfg.get('sdiag'):
        e("s_memrealtime s[22:23]\n s_waitcnt lgkmcnt(0)")
    LA = cfg.get('la', 0)
    if LA:
        assert not NE and not cfg.get('sdiag')
        e(f"""v_bfe_u32 v{t2}, v{lane}, 3, 2
              v_lshlrev_b32 v{tD}, 13, v{t2}
              v_and_b32 v{t2}, 7, v{lane}
              v_lshl_add_u32 v{tD}, v{t2}, 7, v{tD}
              s_and_b32 s24, s{h}, 3
              s_lshl_b32 s24, s24, 2
              s_add_u32 s24, s24, s{S_WAVE}
              s_lshl_b32 s24, s24, 15
              s_lshr_b32 s{sA}, s{h}, 2
              s_lshl_b32 s{sA}, s{sA}, 10
              s_add_u32 s24, s24, s{sA}""")
        for r in range(6, 6 + LA):
            ahead(r)
    parked = STREAM[14:16] + STREAM[:10]
    for r in range(32):
        m, x, Q = chunks[r]
        if marks[r] in e.vm:
            e.wait(vm=len(e.vm) - 1 - e.vm.index(marks[r]))
        e.wait(lgkm=0)
        e("s_barrier")
        if cfg.get('sdiag') and r in (0, 8, 16, 24, 31):
            e(f"s_memrealtime {sr({0: 24, 8: 26, 16: 28, 24: 36, 31: 40}[r], 2)}\n s_waitcnt lgkmcnt(0)")
        if r == 6:
            e.comment("publish this wave's piece of mem0 in slot 0 (and arm slot 2)")
            e(f"""v_lshl_or_b32 v{VX}, v{VX + 1}, 16, v{VX}
                  v_min_u32 v{VX}, -2, v{VX}
                  v_cndmask_b32 v{VX}, v{VX}, -1, {sr(sArm, 2)}
                  s_cmp_lg_u32 s{sStep}, 0
                  s_cselect_b32 s{sA}, -1, 0
                  v_or_b32 v{VX}, s{sA}, v{VX}
                  buffer_store_dword v{VX}, v{vMst}, {W}, s{sMbaseS} offen sc1""")
        if r == 12:
            e.comment("every wave's arming stores are complete: count this member as armed")
            e(f"""s_cmp_lg_u32 s{S_WAVE}, 0
                  s_cbranch_scc1 L_cs_in
                  s_sub_u32 s{sA}, s{S_EC}, 1
                  s_and_b32 s{sA}, s{sA}, s{S_XCC}
                  s_mov_b32 s{sB}, 0x10000
                  s_cselect_b32 s{sA}, 0x1010000, s{sB}
                  v_mov_b32 v{t0}, s{sA}
                  s_mov_b64 exec, 1
                  buffer_atomic_add v{t0}, off, {sr(S_DBG, 4)}, 0 offset:{D_INIT}
                  s_mov_b64 exec, -1""")
            e.vm.pop()
            e.label("L_cs_in")
        if r + DD < 32 and r + DD not in marks:
            dma(r + DD)
        if LA and r + 6 + LA < 32:
            ahead(r + 6 + LA)
        if r == 8:
            for op in STREAM[10:14]:
                wl_write(e, op, PARK[op])
            e.wait(lgkm=0)
        if r == cfg.get('r1', 16):
            e(f"buffer_load_dword v{PM + 1}, off, {sr(S_DBG, 4)}, 0 offset:{D_INIT} sc1")
        if r == cfg.get('r2', 23):
            e(f"""v_readfirstlane_b32 s{sNan}, v{PM + 1}
                  buffer_load_dword v{PM + 2}, v{PM + 3}, {W}, s{sFl} offen sc1""")
            e(f"""s_add_u32 m0, s{sLw}, {L_KX + 8192}
                  s_lshr_b32 m0, m0, 1
                  s_add_u32 m0, m0, {(L_KX + 8192) // 2}
                  s_lshl_b32 s{sB}, s{h}, 10
                  s_add_u32 s{sB}, s{sB}, s{sMb}
                  buffer_load_dwordx4 v{vL16}, {W}, s{sPbaseL} offen sc1 lds
                  buffer_load_dwordx4 v{vL16}, {W}, s{sPbaseL} offen offset:1024 sc1 lds
                  buffer_load_dwordx4 v{vL16}, {W}, s{sB} offen sc1 lds""")
        if r == cfg.get('r3', 30):
            e(f"""v_cmp_ne_u32 {sr(sFm, 2)}, 0, v{PM + 2}
                  s_lshr_b32 s{sOK}, s{sFm}, s{sStep}
                  s_and_b32 s{sOK}, s{sOK}, 3
                  s_cmp_eq_u32 s{sOK}, 3
                  s_cselect_b32 s{sOK}, 1, 0
                  s_and_b32 s{sA}, s{sNan}, 0xffffff
                  s_cmp_eq_u32 s{sA}, {ARMED}
                  s_cselect_b32 s{sOK}, s{sOK}, 0""")
            kx_dma(e, L_KX)
            e(f"""s_add_u32 m0, m0, 8192
                  s_add_u32 s{sA}, s{sKV}, 8192
                  buffer_load_dwordx4 v{vL16}, {W}, s{sA} offen sc1 lds
                  buffer_load_dwordx4 v{vL16}, {W}, s{sA} offen offset:1024 sc1 lds""")
        if r == cfg.get('rt', 27):
            e.comment("the last exports are recognised by their data: fill their slots with a pattern no export holds")
            for j in range(4):
                e(f"v_mov_b32 v{VX + j}, {SENT1}")
            for sg in range(64 - NTAIL, 64):
                e(f"s_add_u32 s{sA}, s{sExp}, {sg * 4096}\n buffer_store_dwordx4 {vr(VX, 4)}, v{vL16}, {W}, s{sA} offen sc1")
        if r == 29:
            e(f"buffer_load_dword v{VX + 7}, v{PM + 3}, {W}, s{sFl} offen sc1")
        if r >= 26:
            for op in parked[2 * (r - 26):2 * (r - 26) + 2]:
                wl_write(e, op, PARK[op])
        e(f"v_add_u32 v{t1}, {ring[r % 7]}, v{tC if m == 'o' else tB}")
        if m == 'o':
            for t in range(8):
                op = ('o', t, x)
                kind, base = RES[op] if op in RES else ('v', PARK[op])
                e(f"v_xor_b32 v{t3}, {t * 32}, v{t1}\n ds_read_b64_tr_b16 {vr(base + 2 * Q, 2, kind)}, v{t3}")
        else:
            for w in range(1, 4):
                e(f"s_cmp_eq_u32 s{S_WAVE}, {w}\n s_cbranch_scc1 L_cs{r}_{w}")
            st0 = e.state()
            for w in range(4):
                if w:
                    e.label(f"L_cs{r}_{w}"); e.set_state(st0)
                for ft in range(2):
                    op = (m, ft, 2 * ((x & 3) ^ w) + (x >> 2))
                    kind, base = RES[op] if op in RES else ('v', PARK[op])
                    for Q in range(4):
                        e(f"ds_read_b64_tr_b16 {vr(base + 2 * Q, 2, kind)}, v{t1} offset:{(32 * (Q & 1) + 8 * (Q >> 1)) * 256 + ft * 32}")
                if w < 3:
                    e(f"s_branch L_cs{r}_e")
            e.label(f"L_cs{r}_e")
    e.wait(lgkm=0)
    if cfg.get('sdiag'):
        e(f"""s_lshl_b32 s{sA}, s{S_ROLE}, 2
              s_add_u32 s{sA}, s{sA}, s{S_WAVE}
              s_lshl_b32 s{sA}, s{sA}, 6
              s_add_u32 s{sA}, s{sA}, 0x6400000""")
        for n, r in enumerate([94, 20, 22, 24, 26, 28, 36, 40, sOK]):
            e(f"v_mov_b32 v{PM}, s{r}\n buffer_store_dword v{PM}, off, {W}, s{sA} offset:{4 * n}")
    if cfg.get('diag'):
        e("s_memrealtime s[82:83]\n s_waitcnt lgkmcnt(0)")
    e(f"""s_cmp_lg_u32 s{sOK}, 0
          s_cbranch_scc1 L_cs_ready
          s_and_b32 s{sA}, s{sNan}, 0xffffff
          s_cmp_eq_u32 s{sA}, {ARMED}
          s_cbranch_scc1 L_cs_p3
          L_cs_p1:
          s_sleep {cfg.get('sp1', 8)}
          buffer_load_dword v{t0}, off, {sr(S_DBG, 4)}, 0 offset:{D_INIT} sc1
          s_sub_u32 s{S_SPIN}, s{S_SPIN}, 1
          s_cbranch_scc1 L_end
          v_readfirstlane_b32 s{sNan}, v{t0}
          s_and_b32 s{sA}, s{sNan}, 0xffffff
          s_cmp_eq_u32 s{sA}, {ARMED}
          s_cbranch_scc0 L_cs_p1
          {'s_memrealtime s[80:81]' if cfg.get('diag') else ''}
          L_cs_p2:
          s_sleep {cfg.get('sp2', 4)}
          buffer_load_dword v{VX + 7}, v{PM + 3}, {W}, s{sFl} offen sc1
          s_sub_u32 s{S_SPIN}, s{S_SPIN}, 1
          s_cbranch_scc1 L_end
          L_cs_p3:
          s_waitcnt vmcnt(0)
          v_cmp_ne_u32 {sr(sFm, 2)}, 0, v{VX + 7}
          s_lshr_b32 s{sA}, s{sFm}, s{sStep}
          s_and_b32 s{sA}, s{sA}, 3
          s_cmp_eq_u32 s{sA}, 3
          s_cbranch_scc0 L_cs_p2""")
    kx_dma(e, L_KX)
    e.label("L_cs_ready")
    e(f"""v_mov_b32 v{PM + 1}, 0
          v_mov_b32 v{PM + 2}, 0
          s_add_u32 s{sF1}, s{sStep}, 1
          s_cmp_eq_u32 s{S_EC}, 0
          s_cselect_b32 s{sEnd}, 255, {NE}
          s_lshl_b32 s{sA}, s{sStep}, 12
          s_add_u32 s{sExp}, s{sExp}, s{sA}
          s_and_b32 s{sA}, s{sStep}, 2
          s_lshl_b32 s{sA}, s{sA}, 13
          v_xor_b32 v{vMst}, s{sA}, v{vMst}
          s_mov_b32 s{sTog}, 0""")
    e("\n".join(scalar_lines() + prep_a_lines()))
    for b in range(2):
        e(mload(b))
    if cfg.get('se', 0):
        e(mspare())
    e("\n".join(prep_b_lines()))
    dbg_max(e, cfg, 11, v=PM, mask=1)
    if cfg.get('pdbg'):
        e(f"""s_memrealtime s[92:93]
              s_cmp_lg_u32 s{S_ROLE}, 5
              s_cbranch_scc1 L_pd
              s_cmp_lg_u32 s{S_WAVE}, 1
              s_cbranch_scc1 L_pd
              s_waitcnt lgkmcnt(0)""")
        for n, r in enumerate([90, 88, 82, 92]):
            e(f"s_sub_u32 s{sA}, s{r}, s94\n v_mov_b32 v{PM}, s{sA}\n buffer_store_dword v{PM}, off, {sr(S_DBG, 4)}, 0 offset:{36 + 4 * n}")
        e(f"v_mov_b32 v{PM}, s{sOK}\n buffer_store_dword v{PM}, off, {sr(S_DBG, 4)}, 0 offset:52\n L_pd:")
    if cfg.get('holdto'):
        e(f"""L_hold:
              s_memrealtime s[92:93]
              s_waitcnt lgkmcnt(0)
              s_sub_u32 s92, s92, s94
              s_cmp_lt_u32 s92, {cfg['holdto']}
              s_cbranch_scc1 L_hold""")
    e("s_waitcnt vmcnt(0) lgkmcnt(0)\n s_barrier")
    if cfg.get('diag'):
        e.raw(f"  s_memtime {sr(sDbgT + 6, 2)}\n  s_memrealtime {sr(sDbgT + 10, 2)}\n  s_mov_b32 s{sDbgT + 5}, 0\n  s_mov_b32 s12, 0\n  s_mov_b32 s13, 0\n  s_mov_b32 s14, 0\n  s_mov_b32 s15, 0\n  s_waitcnt lgkmcnt(0)")
    e(f"""s_lshr_b32 s{sA}, s{sNan}, 24
          s_mov_b32 s{sNan}, 0
          s_or_b32 s{sA}, s{sA}, s{S_EC}
          s_cbranch_scc1 L_{ent}_s""")
    e(f"s_branch L_{ent}_s" if cfg.get('force_slow') else f"s_branch L_{ent}_f")


def chain_loop(e, cfg, sfx, st):
    acc = {('q', 0): ACC, ('q', 1): ACC + 4, ('k', 0): ACC + 8, ('k', 1): ACC + 12, ('v', 0): ACC + 16, ('v', 1): ACC + 20}
    loc = dict(RES)
    for o in range(10):
        loc[STREAM[o]] = ('v', R1[o])
    for o in range(6):
        loc[STREAM[10 + o]] = ('v', WO_SB[o])
    diag = cfg.get('diag')

    def stamp(n):
        tr = cfg.get('trace')
        if tr and n in tr and sfx == 'f':
            e.raw(f"  s_memtime {sr(TRS[tr.index(n)], 2)}")

    def trace_out(where, TR):
        if cfg.get('trace') and cfg.get('tpos', 'mid') == where and sfx == 'f':
            e(f"""s_memtime s[32:33]
                  s_memrealtime s[34:35]
                  s_lshl_b32 s40, s{S_ROLE}, 2
                  s_add_u32 s40, s40, s{S_WAVE}
                  s_lshl_b32 s40, s40, 6
                  s_add_u32 s40, s40, s{sStep}
                  s_lshl_b32 s40, s40, 5
                  s_add_u32 s40, s40, 0x6200000
                  s_waitcnt lgkmcnt(0)""")
            for j in range(8):
                e(f"v_mov_b32 v{TR + j}, s{TRS[j]}")
            e(f"""s_mov_b64 exec, 1
                  buffer_store_dwordx4 {vr(TR, 4)}, off, {W}, s40
                  buffer_store_dwordx4 {vr(TR + 4, 4)}, off, {W}, s40 offset:16
                  s_mov_b64 exec, -1""")

    def P(m, ft, i):
        k, b = loc[(m, ft, i)]
        return f"v_smfmac_f32_16x16x64_bf16 {vr(acc[(m, ft)], 4)}, {vr(MA + 4 * i, 4)}, {vr(b, 8, k)}, v{vIdx}"

    def post(a, dst):
        return [f"v_add_f32 v{a}, v{a}, v{a + 1}", f"v_add_f32 v{a + 2}, v{a + 2}, v{a + 3}",
                f"v_cvt_pk_bf16_f32 v{dst}, v{a}, v{a + 2}"]

    def xread(kb):
        return [f"ds_read_b64_tr_b16 {vr(X + 4 * kb, 2)}, v{vTr} offset:{kb * 256}",
                f"ds_read_b64_tr_b16 {vr(X + 4 * kb + 2, 2)}, v{vTr} offset:{kb * 256 + 64}"]

    kx_dst = [KXR, SPARE, KXR + 4, SPARE + 4, KXR + 8, KXR, KXR + 12, KXR + 4]

    def kxread(n):
        return f"ds_read_b128 {vr(kx_dst[n], 4)}, v{vKXr} offset:{(n >> 1) * 2048 + (n & 1) * 256}"

    Sx = [ACC, ACC + 4]
    Sm, Px = ACC + 8, ACC + 12

    def smx(n):
        kb, t = n >> 1, n & 1
        c = '0' if kb == 0 else vr(Sx[t], 4)
        return f"v_mfma_f32_16x16x32_bf16 {vr(Sx[t], 4)}, {vr(kx_dst[n], 4)}, {vr(X + 4 * kb, 4)}, {c}"

    def smm(kb):
        c = '0' if kb == 0 else vr(Sm, 4)
        return f"v_mfma_f32_16x16x32_bf16 {vr(Sm, 4)}, {vr(X + 4 * kb, 4)}, {vr(X + 4 * kb, 4)}, {c}"

    ad = 0
    ldH = lambda k: (lambda: e.loose(f"buffer_load_dword v{HD + k}, v{HA}, {W}, s{sHl} offen sc1"))
    ldV = [f"buffer_load_dwordx4 {vr(VX, 4)}, v{vKXr}, {W}, s{sVx} offen sc1",
           f"buffer_load_dwordx4 {vr(VX + 4, 4)}, v{vKXr}, {W}, s{sVx} offen offset:256 sc1"]
    ldK = [f"buffer_load_dwordx4 v{vL16}, {W}, s{sKV} offen sc1 lds",
           f"buffer_load_dwordx4 v{vL16}, {W}, s{sKV} offen offset:1024 sc1 lds"]
    touch = f"buffer_load_dword v{PM + 3}, {W}, s{sVt} offen sc1 lds"
    export = f"buffer_store_dwordx4 {vr(EX, 4)}, v{vL16}, {W}, s{sExp} offen sc1"
    progress = f"s_mov_b64 exec, 1\n buffer_store_dword v{TMP}, off, {W}, s{sFch} sc1\n s_mov_b64 exec, -1"
    ldF = f"buffer_load_dword v{TMP + 3}, v{TMP + 3}, {W}, s{sFl} offen sc1"
    if cfg.get('noexp'):
        export = progress = "s_nop 0"
    rf = sum([wl_lines(STREAM[o], R1[o]) for o in range(8, 10)], [])
    wo = sum([wl_lines(STREAM[10 + o], WO_SB[o]) for o in range(6)], [])
    q0p, q1p, k0p, k1p = post(ACC, ACC + 1), post(ACC + 4, ACC + 5), post(ACC + 8, EX), post(ACC + 12, EX + 1)
    v0p, v1p = post(ACC + 16, EX + 2), post(ACC + 20, EX + 3)
    m0, m1 = TMP, TMP + 1
    C0 = PM
    zero = [f"v_mov_b64 {vr(MA + j, 2)}, 0" for j in range(0, 32, 2)]
    st_ = lambda n: (lambda: stamp(n))
    mx = lambda d, a, b, c_: f"v_max3_f32 v{d}, v{a}, v{b}, v{c_}"

    def check(blocks):
        r = [MA + 4 * b + j for b in blocks for j in range(4)]
        out = [f"v_max3_u32 v{C0}, v{r[0]}, v{r[1]}, v{r[2]}"]
        k = 3
        while k + 1 < len(r):
            out.append(f"v_max3_u32 v{C0}, v{C0}, v{r[k]}, v{r[k + 1]}"); k += 2
        out.append(f"v_max_u32 v{C0}, v{C0}, v{r[k]}")
        out.append(f"v_cmp_eq_u32 vcc, -1, v{C0}")
        return out

    def mread(i):
        return f"ds_read_b128 {vr(MA + 4 * i, 4)}, v{TMP + (i >> 1)} offset:{(i & 1) * 4096}"

    e.slot_no = 0
    e.slot_hook = lambda n: stamp(100 + n)
    e.forget()
    e.raw(".p2align 8\n" + "  s_nop 0\n" * cfg.get('ph', 8))
    e.label(f"L_step_{sfx}")
    ic = cfg.get('ic', 0)
    e3 = cfg.get('e3', 0) if ic else 0
    if not ic:
        e("s_waitcnt vmcnt(2)")
    e.label(f"L_chkE_{sfx}")
    xe = 0
    vl = cfg.get('vl', (7, 10))
    nvl = sum(1 for n in vl if n > 5) if vl else 0
    assert not vl or all(n < 3 or n > 5 for n in vl)
    nvl += cfg.get('l2', 0) == 9
    so = cfg.get('so', 1)
    xr = xread(0) + xread(1) + xread(2) + xread(3)
    ba, bb, bc = cfg.get('ba', 0), cfg.get('bb', 1), cfg.get('bc', 1)
    xo = cfg.get('xo', 0)
    lastsp = cfg.get('lastsp', 1)
    spec = cfg.get('se', 0)
    ce_ = check((0,))
    specb = []
    wrE = f"ds_write_b128 v{vMw}, {vr(MA, 4)}"
    if ic:
        e.lgkm = [parse(wrE)]
    elif spec:
        e(f"ds_write_b128 v{vMw}, {vr(MA, 4)}\n L_okE_{sfx}:")
    else:
        e("\n".join(ce_))
        e(f"""ds_write_b128 v{vMw}, {vr(MA, 4)}
              s_cbranch_vccnz L_retE_{sfx}
              L_okE_{sfx}:""")
    stamp(0)
    cl_ = check((1,))
    z = lambda: zero.pop(0)
    lw = lambda n: (lambda: e.wait(lgkm=n))
    seq = [
        (P('q', 0, 0), [] if ic or cfg.get('l2', 0) else [lambda: e.loose(mload(1)), f"L_okE2_{sfx}:"] + ([ce_[0]] if spec else [])),
        (P('q', 1, 0), [ldV[1], ce_[1], ce_[2]] if spec else [ldV[0]] + ([lambda: e.loose(mload(1))] if cfg.get('l2', 0) == 1 else [])),
        (P('k', 0, 0), ([lambda: e.loose(mload(1))] if cfg.get('l2', 0) == 2 else []) + [f"s_cbranch_vccnz L_retE_{sfx}" if spec else ldV[1], e.barrier, mread(2), mread(4)]),
        (P('k', 1, 0), [mread(6), f"s_waitcnt vmcnt({3 - spec + e3 - nvl})", cl_[0]]),
        (P('v', 0, 0), [e.barrier, cl_[1]] if ba == 1 else [cl_[1]]),
        (P('v', 1, 0), [cl_[2], f"ds_write_b128 v{vMw}, {vr(MA + 4, 4)} offset:4096", f"s_cbranch_vccnz L_retL_{sfx}", f"L_okL_{sfx}:"]),
        (P('q', 0, 1), [st_(1)] + ([mread(2), mread(4)] if ba == 1 else [lw(1), "s_barrier"] if ba == 2 else [])),
        (P('q', 1, 1), [ldV[0]] if spec else []),
        (P('k', 0, 1), [mread(6), rf[0]] if ba == 2 else [rf[0]]),
        (P('k', 1, 1), [rf[1]] + ([] if ba else [lw(3)])),
        (P('q', 0, 2), [rf[2]]),
        (P('q', 1, 2), [e.lds_writes_done]),
        (P('k', 0, 2), [e.barrier] if bb else [e.barrier, ldK[0], mread(3)]),
        (P('k', 1, 2), [ldK[0], mread(3)] if bb else [mread(5)]),
        (P('q', 0, 4), [mread(5)] if bb else [mread(7), f"v_lshrrev_b32 v{TMP + 3}, 2, v{vL16}"]),
        (P('q', 1, 4), [mread(7), f"v_lshrrev_b32 v{TMP + 3}, 2, v{vL16}"] if bb else [ldK[1], f"s_movk_i32 m0, {L_DUMMY}"]),
        (P('k', 0, 4), [ldK[1], f"s_movk_i32 m0, {L_DUMMY}"] if bb else [rf[3]]),
        (P('k', 1, 4), [rf[3]] if bb else [touch]),
        (P('q', 0, 6), [kxread(0)] + ([touch] if bb else [])),
        (P('q', 1, 6), [kxread(2), ldF]),
        (P('k', 0, 6), ([] if xo else [export]) + [lambda: trace_out('mid', SPARE)]),
        (P('k', 1, 6), [kxread(4), st_(2), lw(3)]),
        (P('q', 0, 3), [kxread(6)]),
        (P('q', 0, 5), [kxread(1)]),
        (P('q', 0, 7), [kxread(3)]),
        (P('q', 1, 3), [lambda: e(f"s_waitcnt vmcnt({len(e.vm) - [x.text for x in e.vm].index(ldK[0])})"), "s_nop 0"]),
        (P('q', 1, 5), ["s_nop 1"] if xo else [progress]),
        (P('q', 1, 7), ["s_nop 0", q0p[0]]),
        (P('k', 0, 3), ["s_nop 0", q0p[1]]),
        (P('k', 0, 5), ["s_nop 0", q0p[2]]),
        (P('k', 0, 7), [q1p[0]]),
        (P('k', 1, 3), ["s_nop 0", q1p[1]]),
        (P('k', 1, 5), ["s_nop 0", q1p[2]]),
        (P('k', 1, 7), [f"ds_write2_b32 v{vTw}, v{ACC + 1}, v{ACC + 5} offset0:0 offset1:32", st_(3), k0p[0]]),
        (P('v', 0, 1), ["s_nop 0", k0p[1]]),
        (P('v', 1, 1), ["s_nop 0", k0p[2], k1p[0]]),
        (P('v', 0, 2), [k1p[1], k1p[2]]),
        (P('v', 1, 2), [f"ds_write2_b32 v{vTw}, v{EX}, v{EX + 1} offset0:1 offset1:33", z()]),
        (P('v', 0, 3), [z()]),
        (P('v', 1, 3), [z()]),
        (P('v', 0, 4), [z()]),
        (P('v', 1, 4), [e.lds_writes_done, z()]),
    ] + ([
        (P('v', 0, 5), [e.barrier]),
        (P('v', 1, 5), xread(0) + [z()]),
        (P('v', 0, 6), [xr[2], z()]),
        (P('v', 0, 7), [xr[3], z()]),
        (P('v', 1, 6), [xr[4], z()]),
        (P('v', 1, 7), [xr[5], st_(4), lw(4), z()]),
        (smx(0), [xr[6], z()]),
        (smx(1), [xr[7], z()]),
        (smm(0), [lw(4), v0p[0]]),
        (smx(2), [kxread(5), v0p[1]]),
        (smx(3), [kxread(7), v0p[2]]),
        (smm(1), [lw(2), v1p[0]]),
        (smx(4), [v1p[1], v1p[2]]),
        (smx(6), [z(), z()]),
        (smm(2), [z(), z()]),
        (smm(3), [lw(0)] + ([f"v_exp_f32 v{m1}, v{vIdx}"] if cfg.get('warm', 0) == 1 else ["s_nop 1"])),
        (smx(5), [mx(m0, Sx[0], Sx[0] + 1, Sx[0] + 2)]),
    ] if so else [
        (P('v', 0, 5), [e.barrier] + ([] if bc else xread(0))),
        (P('v', 1, 5), xread(1 - bc) + [z()]),
        (P('v', 0, 6), xread(2 - bc) + [z()]),
        (P('v', 0, 7), xread(3 - bc) + [z()]),
        (P('v', 1, 6), (xread(3) if bc else []) + ([] if lastsp else [f"s_cmp_eq_u32 s{sStep}, 63"]) + [z()]),
        (P('v', 1, 7), [st_(4), lw(6 if bc else 4), z()]),
        (smx(0), [z(), z()]),
        (smx(2), [kxread(5), lw(1)]),
        (smx(4), [kxread(7), v0p[0]]),
        (smx(6), [v0p[1], v0p[2]]),
        (smm(0), [v1p[0], v1p[1]]),
        (smm(1), [v1p[2], z()]),
        (smm(2), ([] if lastsp else ["s_cbranch_scc1 L_final"]) + [mx(m0, Sx[0], Sx[0] + 1, Sx[0] + 2)]),
        (smm(3), [z(), z()]),
        (smx(1), [lw(0), z()]),
        (smx(3), [f"v_exp_f32 v{m1}, v{vIdx}"] if cfg.get('warm', 0) == 1 else []),
        (smx(5), [mx(m0, m0, Sx[0] + 3, Sm + 2), f"v_max_f32 v{m0}, v{m0}, v{Sm + 3}"]),
    ]) + [
        (smx(7), [wo[0], f"s_add_u32 s{sStep}, s{sStep}, 1", wo[1], f"s_xor_b32 s{sTog}, s{sTog}, 0x2000", wo[2],
                  f"s_mov_b32 s{sG}, s{sG2}", wo[3], f"v_xor_b32 v{vKXr}, 0x2000, v{vKXr}"] if not so else
         [wo[0], f"s_add_u32 s{sStep}, s{sStep}, 1", wo[1], f"s_mov_b32 s{sG}, s{sG2}", wo[2], wo[3],
          mx(m0, m0, Sx[0] + 3, Sm + 2), f"v_max_f32 v{m0}, v{m0}, v{Sm + 3}"]),
    ]
    if vl:
        seq = [(m, [x for x in fl if x not in ldV]) for m, fl in seq]
        for x, n in zip(ldV, vl):
            seq[n] = (seq[n][0], [x] + seq[n][1])
    if cfg.get('k0'):
        seq = [(m, [x for x in fl if x != ldK[0]]) for m, fl in seq]
        seq[cfg['k0']] = (seq[cfg['k0']][0], seq[cfg['k0']][1] + [ldK[0]])
    vp = cfg.get('vp', (17, 20, 26, 23, 29))
    if vp:
        mv = [[ldK[1], f"s_movk_i32 m0, {L_DUMMY}"], [touch], [ldF], [export], [progress]]
        seq = [(m, [x for x in fl if not any(x is y or x == y for g in mv for y in g)]) for m, fl in seq]
        for g, n in zip(mv, vp):
            seq[n] = (seq[n][0], g + [x for x in seq[n][1] if x != "s_nop 0"])
    e.slots(seq)
    assert not zero
    e(f"""{mx(m0, m0, Sx[1], Sx[1] + 1)}
          {mx(m0, m0, Sx[1] + 2, Sx[1] + 3)}
          v_mov_b32 v{m1}, v{m0}
          {f's_xor_b32 s{sTog}, s{sTog}, 0x2000' if so else ''}
          {f'v_xor_b32 v{vKXr}, 0x2000, v{vKXr}' if so else ''}
          v_permlane32_swap_b32 v{m0}, v{m1}
          v_max_f32 v{m0}, v{m0}, v{m1}
          v_mov_b32 v{m1}, v{m0}
          v_permlane16_swap_b32 v{m0}, v{m1}
          v_max_f32 v{m0}, v{m0}, v{m1}
          v_mul_f32 v{m0}, s{sC}, v{m0}""")
    for j in (0, 2, 4, 6, 10):
        e(f"v_pk_fma_f32 {vr(ACC + j, 2)}, {vr(ACC + j, 2)}, {sr(sC, 2)}, {vr(m0, 2)} op_sel_hi:[1,0,0] neg_lo:[0,0,1] neg_hi:[0,0,1]")
    for j in (0, 1, 2, 3, 4, 5, 6, 7, 10, 11):
        e(f"v_exp_f32 v{ACC + j}, v{ACC + j}")
    stamp(5)
    for j in range(4):
        e(f"v_cvt_pk_bf16_f32 v{Px + j}, v{ACC + 2 * j}, v{ACC + 2 * j + 1}")
    e(f"""v_cvt_pk_bf16_f32 v{PM}, v{Sm + 2}, v{Sm + 3}
          v_cvt_pk_bf16_f32 v{PM + 3}, v{Sm + 2}, v{Sm + 3}
          v_pk_add_f32 {vr(ACC, 2)}, {vr(ACC, 2)}, {vr(ACC + 2, 2)}
          v_pk_add_f32 {vr(ACC + 4, 2)}, {vr(ACC + 4, 2)}, {vr(ACC + 6, 2)}
          v_pk_add_f32 {vr(ACC, 2)}, {vr(ACC, 2)}, {vr(Sm + 2, 2)}
          v_pk_add_f32 {vr(m0, 2)}, {vr(ACC, 2)}, {vr(ACC + 4, 2)}""")
    O = SPARE
    e.slots([
        (f"v_mfma_f32_16x16x32_bf16 {vr(O, 4)}, {vr(VX, 4)}, {vr(Px, 4)}, 0",
         [f"v_add_f32 v{m0}, v{m0}, v{m1}", f"v_mov_b32 v{m1}, v{m0}"]),
        (f"v_mfma_f32_16x16x32_bf16 {vr(O + 4, 4)}, {vr(VX + 4, 4)}, {vr(Px, 4)}, 0",
         [f"v_permlane32_swap_b32 v{m0}, v{m1}"]),
        (f"v_mfma_f32_16x16x16_bf16 {vr(O, 4)}, {vr(EX + 2, 2)}, {vr(PM, 2)}, {vr(O, 4)}",
         [f"v_add_f32 v{m0}, v{m0}, v{m1}", f"v_mov_b32 v{m1}, v{m0}"]),
        (f"v_mfma_f32_16x16x16_bf16 {vr(O + 4, 4)}, {vr(EX + 2, 2)}, {vr(PM + 2, 2)}, {vr(O + 4, 4)}",
         [f"v_permlane16_swap_b32 v{m0}, v{m1}", f"v_add_f32 v{m0}, v{m0}, v{m1}", f"v_rcp_f32 v{m0}, v{m0}",
          ] + ([f"v_mov_b32 v{HV}, s{sStep}", f"v_lshlrev_b32 v{HS}, 3, v{vL16}"] if ad else [])),
    ])
    for j in range(0, 8, 2):
        e(f"v_pk_mul_f32 {vr(O + j, 2)}, {vr(O + j, 2)}, {vr(m0, 2)} op_sel_hi:[1,0]")
    OA = ACC + 16
    for j in range(4):
        e(f"v_cvt_pk_bf16_f32 v{O + j}, v{O + 2 * j}, v{O + 2 * j + 1}")
    e(f"ds_write_b128 v{vOw}, {vr(O, 4)}")
    if xo:
        e(export)
        e(f"v_mov_b32 v{TMP + 2}, s{sProg}")
        e(progress.replace(f"v{TMP},", f"v{TMP + 2},"))
    if ad:
        e.comment("progress marker for 8 members per wave (timing hint only)")
        e(f"""s_mov_b64 exec, 0xff
              buffer_store_dword v{HV}, v{HS}, {W}, s{sHs} offen {st}
              s_mov_b64 exec, -1
              v_bfe_u32 v{HA}, v{vL16}, 2, 7
              v_mov_b64 {vr(HD, 2)}, 0
              v_mov_b64 {vr(HD + 2, 2)}, 0""")
        stamp(15)
    e.barrier()
    e(f"""ds_read_b128 {vr(OA, 4)}, v{vL16} offset:{L_OB}
          ds_read_b128 {vr(OA + 4, 4)}, v{vL16} offset:{L_OB + 1024}""")
    hs = cfg.get('hs', (-1, 0, 3, 6))
    if ad and hs[0] == -1:
        ldH(0)()
    stamp(6)
    OUT = SPARE

    def pstore(c):
        return f"buffer_store_dwordx4 {vr(OUT + 4 * c, 4)}, v{vPst}, {W}, s{sPbaseS} offen offset:{c * 2048} {st}"

    tag = lambda j: f"v_and_or_b32 v{OUT + j}, v{OUT + j}, -2, s{sG}"
    seq = []
    for t in range(8):
        for kb in range(2):
            k, b = loc[('o', t, kb)]
            if t >= 2:
                p = post(MA + 4 * (t - 2), OUT + t - 2)
                fl = p[0:1] if kb == 0 else p[1:3]
                if kb == 0 and t % 2 == 1:
                    fl = fl + [tag(t - 3)]
            else:
                fl = ["s_nop 0"]
            n = 2 * t + kb
            if 1 <= n <= 8:
                fl = [wo[3 + n]] + fl
            if ad and n in hs:
                fl = [ldH(hs.index(n))] + [x for x in fl if x != "s_nop 0"]
            if kb == 0 and t == 6:
                fl = [pstore(0)] + fl
            seq.append((f"v_smfmac_f32_16x16x64_bf16 {vr(MA + 4 * t, 4)}, {vr(OA + 4 * kb, 4)}, {vr(b, 8, k)}, v{vIdx}", fl))
    if cfg.get('wd', 0):
        seq[1], seq[2] = (seq[2][0], seq[1][1]), (seq[1][0], seq[2][1] + ["s_nop 0"])
        seq[3] = (seq[3][0], seq[3][1] + ["s_nop 0"])
    e.slots(seq)
    PL, D, SEL, PL2 = MA + 8, MA + 16, MA + 20, MA + 24
    e("\n".join(post(MA + 24, OUT + 6) + [tag(6)]))
    e("\n".join(post(MA + 28, OUT + 7)))
    e(pstore(1))
    stamp(7)
    trace_out('late', MA)
    e(f"s_bitcmp1_b32 s{S_WAVE}, 0\n s_cbranch_scc1 L_x1_{sfx}")
    e.slot_hook = None
    st0 = e.state()
    ldP = [f"buffer_load_dwordx4 {vr(PL, 4)}, v{vL16}, {W}, s{sPbaseL} offen sc1",
           f"buffer_load_dwordx4 {vr(PL + 4, 4)}, v{vL16}, {W}, s{sPbaseL} offen offset:1024 sc1"]
    tP, dM, eM, gM = cfg.get('tP', (240, 380)), cfg.get('dM', (270, 150)), cfg.get('eM', 200), cfg.get('gM', (120, 116))
    if sfx == 's':
        tP, dM, gM = cfg.get('tPs', (900, 1100)), cfg.get('dMs', (900, 700)), cfg.get('gMs', (300, 300))
    for w in range(2):
        if w:
            e.raw(".p2align 6\n" + "  s_nop 0\n" * cfg.get('ph1', 0))
            e.label(f"L_x{w}_{sfx}"); e.set_state(st0)
        clk = [[12, 48][w]]
        pa = prep_a_lines()
        valu = [f"v_cndmask_b32 v{SEL + j}, 0, v{vSelC}, {sr(sSel + 2 * j, 2)}" for j in range(4)] + ([f"v_cndmask_b32 v{VX + 5}, 0, -1, {sr(sArm, 2)}", f"v_cndmask_b32 v{VX + 6}, -2, -1, {sr(sArm, 2)}"] if cfg.get('m3', 0) else []) + scalar_lines() + [l for l in pa if not l.startswith('ds_')]
        if diag:
            valu += [f"s_cmp_eq_u32 s{sStep}, 10", f"s_cselect_b32 s{sDbgT + 6}, s0, s{sDbgT + 6}"] + [f"s_cselect_b32 s{k}, 0, s{k}" for k in range(12, 16)]
        reads = [l for l in pa if l.startswith('ds_')]
        late_v = [l for l in pa if not l.startswith('ds_')]
        pool = [l for l in valu if l not in late_v]
        pool = [l for l in pool if not l.startswith('v_')] + [l for l in pool if l.startswith('v_')]
        merged = []
        for l in pool:
            if l.startswith('s_cselect'):
                merged[-1] += '\n' + l
            else:
                merged.append(l)
        pool = merged
        if cfg.get('sl', 0):
            reads = mix(reads, [l for l in pool if l.startswith('v_')], 1)
            pool = [l for l in pool if not l.startswith('v_')]
        def until(t):
            while clk[0] + 4 <= t and pool:
                l = pool.pop(0); e(l); clk[0] += 4 * (1 + l.count('\n'))
            if clk[0] + 4 <= t:
                delay(e, t - clk[0]); clk[0] = t

        if ad:
            ev = [f"v_cmp_gt_u32 {sr(sHm + 2 * k, 2)}, s{sStep}, v{HD + k}" for k in range(4)] + [f"s_mov_b32 s{sCnt}, 0"]
            for k in range(4):
                ev += [f"s_cmp_lg_u64 {sr(sHm + 2 * k, 2)}, 0", f"s_addc_u32 s{sCnt}, s{sCnt}, 0"]
            if diag:
                ev += [f"s_add_u32 s15, s15, s{sCnt}"]
            ev += [f"s_mul_i32 s{sCnt}, s{sCnt}, {cfg.get('hm', 2)}"]
            until(tP[w] - 4 * len(ev) - 12)
            e("\n".join(ev))
            e(f"L_ad{w}_{sfx}:\n s_sub_u32 s{sCnt}, s{sCnt}, 1\n s_cbranch_scc0 L_ad{w}_{sfx}")
        else:
            until(tP[w])
        if sfx == 's' and cfg.get('ne', 0):
            assert not [l for l in pool if not l.startswith('v_')]
            e(f"""s_cmp_lg_u32 s{sStep}, s{sEnd}
                  s_cbranch_scc1 L_ho{w}
                  {export}
                  s_sub_u32 s{sMn2}, s{sMn2}, 0x8000
                  v_bfrev_b32 v{C0}, 2
                  v_cndmask_b32 v{vMst}, v{vMst}, v{C0}, {sr(sArm, 2)}
                  L_ho{w}:""")
        e.loose(ldP[0]); e.loose(ldP[1]); stamp(11)
        ldP2 = [x.replace(vr(PL, 4), vr(PL2, 4)).replace(vr(PL + 4, 4), vr(PL2 + 4, 4)) for x in ldP]
        need = scalar_lines()[:7]
        late_v = [l for l in pool if not l.startswith('v_') and l not in need and 's0' not in l] + late_v
        pool = [l for l in pool if l not in late_v]
        rest = reads + pool
        nsp = cfg.get('nsp', (10, 10))[w]
        e("\n".join(rest[:nsp]))
        if nsp is not None:
            delay(e, cfg.get('dP2', (60, 40))[w])
            e.loose(ldP2[0]); e.loose(ldP2[1])
        else:
            nsp = len(rest)
        spare = cfg.get('nsp', (10, 10))[w] is not None
        e("\n".join(rest[nsp:]))
        e(f"s_mov_b32 s{sNan}, 0")
        if diag:
            e.raw("  s_memtime s[0:1]")
        ny = 2 if spare else 0
        def reduce(R, fail):
            e(f"""v_mfma_f32_16x16x32_bf16 {vr(D, 4)}, {vr(R, 4)}, {vr(SEL, 4)}, 0
                  s_waitcnt vmcnt({ny})
                  v_mfma_f32_16x16x32_bf16 {vr(D, 4)}, {vr(R + 4, 4)}, {vr(SEL, 4)}, {vr(D, 4)}
                  v_xor_b32 v{C0}, s{sG}, v{R}
                  v_bitop3_b32 v{C0}, v{C0}, v{R + 2}, s{sG} bitop3:0xf6
                  v_bitop3_b32 v{C0}, v{C0}, v{R + 4}, s{sG} bitop3:0xf6
                  v_bitop3_b32 v{C0}, v{C0}, v{R + 6}, s{sG} bitop3:0xf6
                  v_and_b32 v{C0}, 1, v{C0}
                  v_cmp_ne_u32 vcc, 0, v{C0}
                  v_cmp_ne_u32 {sr(sFm, 2)}, 0, v{TMP + 3}
                  v_permlane32_swap_b32 v{D}, v{D + 2}
                  v_permlane32_swap_b32 v{D + 1}, v{D + 3}
                  v_add_f32 v{D}, v{D}, v{D + 2}
                  v_add_f32 v{D + 1}, v{D + 1}, v{D + 3}
                  s_cbranch_vccnz {fail}
                  v_permlane16_swap_b32 v{D}, v{D + 1}
                  v_add_f32 v{D}, v{D}, v{D + 1}
                  v_mov_b32_dpp v{D + 1}, v{D} quad_perm:[2,3,0,1] row_mask:0xf bank_mask:0xf
                  v_cvt_pk_bf16_f32 v{D}, v{D}, v{D + 1}
                  v_min_u32 v{D}, -2, v{D}
                  v_cndmask_b32 v{VX + 4}, v{D}, -1, {sr(sArm, 2)}
                  buffer_store_dword v{VX + 4}, v{vMst}, {W}, s{sMn2} offen {st}""")

        pp = cfg.get('pp', 1) and spare
        e(f"{f'L_redQ{w}_{sfx}:' if pp else ''}\n s_waitcnt vmcnt({ny + 1})\n L_redP{w}_{sfx}:")
        reduce(PL, f"L_reP{w}_{sfx}")
        e.label(f"L_pub{w}_{sfx}")
        stamp(8)
        if sfx == 's' and cfg.get('ne', 0):
            e(f"s_cmp_eq_u32 s{sStep}, s{sEnd}\n s_cbranch_scc1 L_ec_done")
        pb = ["s_waitcnt vmcnt(1)"] + prep_b_lines()
        d = dM[w]
        if d >= 100 and cfg.get('pw', 0):
            e("\n".join(pb[1:-2])); d -= 72
            late_v = ["s_waitcnt vmcnt(2)"] + pb[-2:] + late_v; pb = []
        elif d >= 100:
            e("\n".join(pb)); d -= 100; pb = []
        sk = min(d, cfg.get('sk', (170, 50))[w])
        assert not pb or not sk
        delay(e, sk)
        e.label(f"L_ep{w}_{sfx}")
        delay(e, d - sk)
        e.loose(mload(0)); stamp(12)
        d = gM[w]
        if pb:
            pb[0] = "s_waitcnt vmcnt(2)"
            e("\n".join(pb)); d -= 100
        gl = cfg.get('gL', 60)
        d -= gl
        k = max(0, min(len(late_v), d // 4))
        e("\n".join(late_v[:k])); d -= 4 * k
        delay(e, d)
        e.loose(mspare() if spec else mload(0))
        k2 = min(len(late_v), k + gl // 4)
        e("\n".join(late_v[k:k2])); delay(e, gl - 4 * (k2 - k)); k = k2
        e.loose(mload(1))
        e("\n".join(late_v[k:]))
        if lastsp:
            e(f"s_cmp_eq_u32 s{sStep}, 63\n s_cbranch_scc1 L_last_{sfx}")
        if ic:
            e(f"s_bitcmp1_b64 {sr(sFm, 2)}, s{sOK2}\n s_cbranch_scc0 L_flag_{sfx}")
            if e3:
                delay(e, cfg.get('g3', 20)); e.loose(mload(0))
            e(f"s_waitcnt vmcnt({2 + e3}) lgkmcnt(0)")
            e("\n".join(ce_ + [wrE]))
            e.loose(mload(1))
            e(f"s_cbranch_vccz L_step_{sfx}")
            e.loose(mload(0))
            for k in range(1 + e3):
                e(f"s_waitcnt vmcnt({3 + e3 if k == 0 else 2})")
                e("\n".join(ce_ + [wrE]))
                e(f"""{'s_add_u32 s13, s13, 1' if diag else ''}
                      s_cbranch_vccz L_step_{sfx}""")
            e(f"s_branch L_retE_{sfx}")
        else:
            e(f"""s_bitcmp1_b64 {sr(sFm, 2)}, s{sOK2}
                  s_waitcnt lgkmcnt(0)
                  s_cbranch_scc1 L_step_{sfx}
                  s_branch L_flag_{sfx}""")
        e.forget()
        e(f"L_reP{w}_{sfx}:")
        if pp:
            e.loose(ldP[0]); e.loose(ldP[1])
            e(f"{'s_add_u32 s12, s12, 1' if diag else ''}\n s_waitcnt vmcnt(3)")
            reduce(PL2, f"L_reQ{w}_{sfx}")
            if sk:
                e("\n".join(["s_waitcnt vmcnt(1)"] + prep_b_lines()))
            e(f"s_branch L_{'ep' if sk else 'pub'}{w}_{sfx}")
            e.forget()
            e(f"L_reQ{w}_{sfx}:")
            e.loose(ldP2[0]); e.loose(ldP2[1])
            e(f"""{'s_add_u32 s12, s12, 1' if diag else ''}
                  s_sub_u32 s{S_SPIN}, s{S_SPIN}, 1
                  s_cbranch_scc0 L_redQ{w}_{sfx}
                  s_branch L_end""")
            continue
        if spare:
            e("s_waitcnt vmcnt(0)")
            for j in range(0, 8, 2):
                e(f"v_mov_b64 {vr(PL + j, 2)}, {vr(PL2 + j, 2)}")
            e.loose(ldP2[0]); e.loose(ldP2[1])
        else:
            e.loose(ldP[0]); e.loose(ldP[1])
            e("s_waitcnt vmcnt(1)")
        e(f"""{'s_add_u32 s12, s12, 1' if diag else ''}
              s_sub_u32 s{S_SPIN}, s{S_SPIN}, 1
              s_cbranch_scc0 L_redP{w}_{sfx}
              s_branch L_end""")
    e.forget()
    e(f"""L_flag_{sfx}:
          v_lshrrev_b32 v{C0}, 2, v{vL16}
          buffer_load_dword v{C0}, v{C0}, {W}, s{sFl} offen sc1
          s_sub_u32 s{S_SPIN}, s{S_SPIN}, 1
          s_cbranch_scc1 L_end
          v_cmp_ne_u32 {sr(sFm, 2)}, 0, v{C0}
          s_bitcmp1_b64 {sr(sFm, 2)}, s{sOK2}
          s_cbranch_scc1 L_{'retE' if ic else 'step'}_{sfx}
          s_branch L_flag_{sfx}""")
    e.forget()
    if ic:
        e(f"L_retE_{sfx}:")
        e.loose(mload(1)); e.loose(mload(0))
        e(f"""{'s_add_u32 s15, s15, 1' if diag else ''}
              s_sub_u32 s{S_SPIN}, s{S_SPIN}, 1
              s_cbranch_scc1 L_end
              s_waitcnt vmcnt(2) lgkmcnt(0)""")
        e("\n".join(ce_ + [wrE]))
        e(f"s_cbranch_vccz L_step_{sfx}\n s_branch L_retE_{sfx}")
        e.forget()
    elif spec:
        e(f"""L_retE_{sfx}:
              s_waitcnt vmcnt(3)
              v_mov_b64 {vr(MA, 2)}, {vr(VX, 2)}
              v_mov_b64 {vr(MA + 2, 2)}, {vr(VX + 2, 2)}""")
        e.loose(mload(0))
        e(f"L_retE1_{sfx}:")
        e("\n".join(ce_))
        e(f"ds_write_b128 v{vMw}, {vr(MA, 4)}")
        for j in range(0, 12, 2):
            e(f"v_mov_b64 {vr(ACC + j, 2)}, 0")
        e(f"""{'s_add_u32 s13, s13, 1' if diag else 's_nop 0'}
              s_cbranch_vccz L_okE_{sfx}""")
        e.loose(mload(1)); e.loose(mload(0))
        e(f"""s_sub_u32 s{S_SPIN}, s{S_SPIN}, 1
              s_waitcnt vmcnt(2)
              s_cbranch_scc0 L_retE1_{sfx}
              s_branch L_end""")
        e.forget()
    else:
        e(f"L_retE_{sfx}:")
        er = cfg.get('er', 0)
        if er:
            e.loose(mload(1)); e.loose(mload(0))
            e(f"s_waitcnt vmcnt(3)\n L_retE1_{sfx}:")
            e("\n".join(ce_ + [wrE]))
            if diag:
                e("s_add_u32 s13, s13, 1")
            if er == 1:
                e(f"s_cbranch_vccz L_okE_{sfx}")
            else:
                e(f"s_cbranch_vccnz L_retE2_{sfx}\n {P('q', 0, 0)}\n s_branch L_okE2_{sfx}\n L_retE2_{sfx}:")
            e.loose(mload(1)); e.loose(mload(0))
            e(f"""s_sub_u32 s{S_SPIN}, s{S_SPIN}, 1
                  s_waitcnt vmcnt(2)
                  s_cbranch_scc0 L_retE1_{sfx}
                  s_branch L_end""")
    if not (spec or ic or cfg.get('er', 0)):
        re = cfg.get('re', 0)
        if re:
            e(f"""{'s_add_u32 s13, s13, 1' if diag else ''}
                  s_bitcmp1_b32 s{sNan}, 1
                  s_bitset1_b32 s{sNan}, 1
                  s_waitcnt vmcnt(1)
                  s_cbranch_scc0 L_chkE_{sfx}""")
        e.loose(mload(0)); e.loose(mload(1))
        e(f"""{('s_add_u32 s15, s15, 1' if re else 's_add_u32 s13, s13, 1') if diag else ''}
              s_sub_u32 s{S_SPIN}, s{S_SPIN}, 1
              s_waitcnt vmcnt({1 if re else 3})
              s_cbranch_scc0 L_chkE_{sfx}
              s_branch L_end""")
    if xe:
        e(f"""L_retL_{sfx}:
              {'s_add_u32 s14, s14, 1' if diag else ''}
              s_sub_u32 s{S_SPIN}, s{S_SPIN}, 1
              s_cbranch_scc1 L_end
              s_bitcmp1_b32 s{sNan}, 0
              s_bitset1_b32 s{sNan}, 0
              s_waitcnt vmcnt(4)
              s_cbranch_scc0 L_retL1_{sfx}""")
        e.loose(mload(1))
        e(f"s_waitcnt vmcnt(0)\n L_retL1_{sfx}:")
    else:
        e(f"L_retL_{sfx}:")
        e.loose(mload(1))
        e(f"""{'s_add_u32 s14, s14, 1' if diag else ''}
              s_sub_u32 s{S_SPIN}, s{S_SPIN}, 1
              s_cbranch_scc1 L_end
              s_bitcmp1_b32 s{sNan}, 0
              s_bitset1_b32 s{sNan}, 0
              s_waitcnt vmcnt({3 - spec - nvl})
              s_cbranch_scc0 L_retL1_{sfx}
              s_waitcnt vmcnt(1)
              L_retL1_{sfx}:""")
    e("\n".join(cl_))
    e(f"""ds_write_b128 v{vMw}, {vr(MA + 4, 4)} offset:4096
          s_cbranch_vccz L_okL_{sfx}
          s_branch L_retL_{sfx}""")
    if not lastsp:
        return
    e.forget()
    e(f"L_lret_{sfx}:")
    e.loose(mload(0)); e.loose(mload(1))
    e(f"""s_sub_u32 s{S_SPIN}, s{S_SPIN}, 1
          s_cbranch_scc1 L_end
          L_last_{sfx}:
          s_waitcnt vmcnt(0) lgkmcnt(0)""")
    e("\n".join(check((0, 1))))
    e(f"""ds_write_b128 v{vMw}, {vr(MA, 4)}
          ds_write_b128 v{vMw}, {vr(MA + 4, 4)} offset:4096
          s_cbranch_vccnz L_lret_{sfx}""")
    own = [(m, ft, i) for i in (0, 1) for m in 'kv' for ft in range(2)]
    seq = [(P(*op), []) for op in own]
    if not xo:
        seq[0][1].append(export)
    seq[3][1].extend([progress, e.barrier, mread(2), mread(3)])
    for k in range(4):
        seq[4 + k][1].append(mread(4 + k))
    seq += [(P(m, ft, i), []) for i in range(2, 6) for m in 'kv' for ft in range(2)]
    seq += [(P(m, ft, i), []) for m in 'kv' for ft in range(2) for i in (6, 7)]
    e.slots(seq)
    e("\n".join(k0p + k1p + v0p + v1p))
    e("s_branch L_final")


def chain_final(e, cfg):
    e.forget()
    e("L_final:")
    if cfg.get('holdend'):
        e(f"""L_hold2:
              s_memrealtime s[92:93]
              s_waitcnt lgkmcnt(0)
              s_sub_u32 s92, s92, s94
              s_cmp_lt_u32 s92, {cfg['holdend']}
              s_cbranch_scc1 L_hold2""")
    e(f"""s_add_u32 s{sExp}, s{sExp}, {0 if cfg.get('xo', 0) else 4096}
          buffer_store_dwordx4 {vr(EX, 4)}, v{vL16}, {W}, s{sExp} offen sc1
          s_waitcnt lgkmcnt(0)""")
    if cfg.get('diag'):
        e(f"""s_memrealtime {sr(sDbgT + 12, 2)}
              s_lshl_b32 s{sA}, s{S_ROLE}, 2
              s_add_u32 s{sA}, s{sA}, s{S_WAVE}
              s_lshl_b32 s{sA}, s{sA}, 6
              s_add_u32 s{sA}, s{sA}, 0x6000000
              s_waitcnt lgkmcnt(0)
              s_sub_u32 s{sDbgT + 8}, s0, s{sDbgT + 6}""")
        for n, r in enumerate([sDbgT + 8, sDbgT + 5, S_SPIN, sDbgT + 14, sDbgT + 10, sDbgT + 12, 12, 13, 14, 15]):
            e(f"v_mov_b32 v{TMP + 2}, s{r}\n buffer_store_dword v{TMP + 2}, off, {W}, s{sA} offset:{4 * n}")
    dbg_max(e, cfg, 12, v=TMP + 2)
    e("s_waitcnt vmcnt(0)\n s_branch L_end")


def chain_handover(e, cfg):
    e.forget()
    e("L_ec_done:")
    if cfg.get('diag'):
        e(f"""s_memrealtime s[92:93]
              s_lshl_b32 s{sA}, s{S_HEAD}, 2
              s_add_u32 s{sA}, s{sA}, s{S_WAVE}
              s_lshl_b32 s{sA}, s{sA}, 6
              s_add_u32 s{sA}, s{sA}, 0x6400000
              s_waitcnt lgkmcnt(0)""")
        for n, r in enumerate([94, 82, 80, 90, 92, 12, 13, 14]):
            e(f"v_mov_b32 v{PM}, s{r}\n buffer_store_dword v{PM}, off, {W}, s{sA} offset:{4 * n}")
    e(f"""
          v_mbcnt_lo_u32_b32 v0, -1, 0
          v_mbcnt_hi_u32_b32 v0, -1, v0
          s_sub_u32 s50, s{S_ROLE}, 32
          s_waitcnt vmcnt(0) lgkmcnt(0)
          s_barrier
          s_branch L_phase2""")


def chain(e, cfg):
    CFG.clear(); CFG.update(cfg)
    chain_startup(e, cfg)
    chain_loop(e, cfg, 'f', '')
    chain_loop(e, cfg, 's', 'sc1')
    chain_final(e, cfg)
    if cfg.get('ne', 0):
        chain_handover(e, cfg)
```

```python
from common import *

W = sr(S_WS, 4)
DBG = sr(S_DBG, 4)
sWid, sA, sB, sC_, sD, sE, sF, sG, sH, sI, sJ, sK = range(50, 62)
S_W0, S_W1, S_W2, S_X = 64, 68, 72, 76
PS = [4]
NEG = 0xf149f2ca


def wait_init(e, tag, tmp, nap=16):
    e(f"""L_wi_{tag}:
          s_sleep {nap}
          buffer_load_dword v{tmp}, off, {DBG}, 0 offset:{D_INIT} sc1
          s_sub_u32 s{S_SPIN}, s{S_SPIN}, 1
          s_cbranch_scc1 L_end
          v_readfirstlane_b32 s{sA}, v{tmp}
          s_and_b32 s{sA}, s{sA}, 0xffff
          s_cmp_eq_u32 s{sA}, 256
          s_cbranch_scc0 L_wi_{tag}""")


def count_in(e, tmp):
    e(f"""v_mov_b32 v{tmp}, 1
          s_mov_b64 exec, 1
          buffer_atomic_add v{tmp}, off, {DBG}, 0 offset:{D_INIT}
          s_mov_b64 exec, -1""")


def srd_sel(e, s, pa, pb, na, nb):
    e(f"""s_cselect_b32 s{s}, s{pa}, s{pb}
          s_cselect_b32 s{s+1}, s{pa+1}, s{pb+1}
          s_mov_b32 s{s+2}, {nb}
          s_cselect_b32 s{s+2}, {na}, s{s+2}
          s_mov_b32 s{s+3}, 0x20000""")


def lane_consts(e, lane, l16, sig):
    e(f"""v_and_b32 v{lane}, 63, v0
          v_lshlrev_b32 v{l16}, 4, v{lane}
          v_and_b32 v{sig}, 39, v{lane}
          v_bfe_u32 v{lane + 1}, v{lane}, 3, 1
          v_lshl_or_b32 v{sig}, v{lane + 1}, 4, v{sig}
          v_bfe_u32 v{lane + 1}, v{lane}, 4, 1
          v_lshl_or_b32 v{sig}, v{lane + 1}, 3, v{sig}
          v_lshlrev_b32 v{sig}, 4, v{sig}""")


XROW = 1040
XBUF = 32 * XROW
RING0 = 33792


def proj(e, cfg):
    lane, t1, vL16, vSig, vSrc, vTr, vXr, vT, vIn = 1, 2, 3, 4, 5, 6, 7, 8, 9
    XF, ACC, OUT = 16, 32, 80
    sHH, sSeg, sStride, sCol, sUnit, sFlag, sXb, sPrev = sC_, sD, sE, sF, sG, sH, sI, sJ
    NP = 5 if cfg.get('ne', 0) or cfg.get('nb', 3) == 3 else 6
    e(f"""s_mul_i32 s{sHH}, s63, {205 if NP == 5 else 171}
          s_lshr_b32 s{sHH}, s{sHH}, 10
          s_mul_i32 s{sA}, s{sHH}, {NP}
          s_sub_u32 s{sSeg}, s63, s{sA}
          s_cmp_lt_u32 s{sHH}, 32""")
    srd_sel(e, S_W0, P_WQ, P_AWQKV, 0x400000, 0x180000)
    srd_sel(e, S_W1, P_WK, P_AWQKV, 0x400000, 0x180000)
    srd_sel(e, S_W2, P_WV, P_AWQKV, 0x400000, 0x180000)
    srd_sel(e, S_X, P_BX, P_AX, 0x200000, 0x200000)
    e(f"""s_mov_b32 s{sStride}, 3072
          s_cselect_b32 s{sStride}, 8192, s{sStride}
          s_cselect_b32 s{sK}, 0, 1024
          s_and_b32 s{sCol}, s{sHH}, 31
          s_lshl_b32 s{sCol}, s{sCol}, 8""")
    lane_consts(e, lane, vL16, vSig)
    e(f"""v_lshrrev_b32 v{t1}, 4, v{lane}
          v_mul_lo_u32 v{vSrc}, v{t1}, s{sStride}
          v_lshlrev_b32 v{t1}, 2, v{t1}
          v_xor_b32 v{t1}, v{t1}, v{lane}
          v_and_b32 v{t1}, 15, v{t1}
          v_lshl_add_u32 v{vSrc}, v{t1}, 4, v{vSrc}""")
    e(f"""v_lshrrev_b32 v{t1}, 5, v{lane}
          v_lshlrev_b32 v{vTr}, 11, v{t1}
          v_bfe_u32 v{t1}, v{lane}, 2, 2
          v_lshl_add_u32 v{vTr}, v{t1}, 8, v{vTr}
          v_bfe_u32 v{t1}, v{lane}, 4, 1
          v_lshl_add_u32 v{vTr}, v{t1}, 5, v{vTr}
          v_and_b32 v{t1}, 3, v{lane}
          v_lshl_add_u32 v{vTr}, v{t1}, 3, v{vTr}
          v_bfe_u32 v{t1}, v{lane}, 2, 2
          v_xor_b32 v{t1}, s{S_WAVE}, v{t1}
          v_lshl_add_u32 v{vTr}, v{t1}, 6, v{vTr}""")
    e(f"""v_and_b32 v{t1}, 31, v{lane}
          v_mul_u32_u24 v{vXr}, {XROW}, v{t1}
          v_lshrrev_b32 v{t1}, 5, v{lane}
          v_lshl_add_u32 v{vXr}, v{t1}, 4, v{vXr}""")
    e(f"""s_lshl_b32 s{sA}, s{sHH}, 6
          s_add_u32 s{sA}, s{sA}, s{sSeg}
          s_mul_i32 s{sUnit}, s{sA}, {UNIT}
          s_lshl_b32 s{sB}, s{S_WAVE}, 11
          s_add_u32 s{sUnit}, s{sUnit}, s{sB}
          s_lshl_b32 s{sFlag}, s{sA}, 2
          s_add_u32 s{sFlag}, s{sFlag}, {F_QKV}
          s_mov_b32 s{sXb}, 0""")

    def xdma(seg_s, buf_s):
        e(f"""s_lshl_b32 s{sA}, s{seg_s}, 15
              s_lshl_b32 s{sB}, s{S_WAVE}, 13
              s_add_u32 s{sA}, s{sA}, s{sB}
              s_mul_i32 s{sB}, s{S_WAVE}, {8 * XROW}
              s_add_u32 s{sB}, s{sB}, s{buf_s}""")
        return [f"""s_add_u32 m0, s{sB}, {j * XROW}
                  s_add_u32 s3, s{sA}, {j * 1024}
                  buffer_load_dwordx4 v{vL16}, {sr(S_X, 4)}, s3 offen lds""" for j in range(8)]

    if cfg.get('wpf', 0):
        e.comment("the six workers of a head each request a sixth of its weights at once (one word per line)")
        e(f"""s_lshr_b32 s62, s{sSeg}, 1
              s_cmp_eq_u32 s62, 1
              s_cselect_b32 s{S_T0}, s{S_W1}, s{S_W0}
              s_cselect_b32 s{S_T0 + 1}, s{S_W1 + 1}, s{S_W0 + 1}
              s_cmp_eq_u32 s62, 2
              s_cselect_b32 s{S_T0}, s{S_W2}, s{S_T0}
              s_cselect_b32 s{S_T0 + 1}, s{S_W2 + 1}, s{S_T0 + 1}
              s_mov_b32 s{S_T0 + 2}, s{S_W0 + 2}
              s_mov_b32 s{S_T0 + 3}, 0x20000
              s_mul_i32 s62, s62, s{sK}
              s_add_u32 s62, s62, s{sCol}
              s_and_b32 s63, s{sSeg}, 1
              s_lshl_b32 s63, s63, 2
              s_add_u32 s63, s63, s{S_WAVE}
              s_lshl_b32 s63, s63, 6
              s_mul_i32 s63, s63, s{sStride}
              s_add_u32 s62, s62, s63
              v_mul_lo_u32 v{vT}, v{lane}, s{sStride}""")
        e.loose(f"buffer_load_dword v124, v{vT}, {sr(S_T0, 4)}, s62 offen")
        e.loose(f"buffer_load_dword v124, v{vT}, {sr(S_T0, 4)}, s62 offen offset:128")
    if cfg.get('wh', 0):
        e.comment("the projections have slack: leave the memory system to the first requests of the recurrence")
        e(f"s_sleep {cfg['wh']}")
    for l in xdma(sSeg, sXb):
        e(l)
    sRow = sPrev
    e(f"""s_lshl_b32 s{sA}, s{S_WAVE}, 4
          s_mul_i32 s{sRow}, s{sA}, s{sStride}
          s_add_u32 s{sRow}, s{sRow}, s{sCol}
          s_lshl_b32 s62, s{sStride}, 2
          s_lshl_b32 s63, s{S_WAVE}, 12""")
    kvf = cfg.get('kvf', 0)
    order = cfg.get('po', [1, 2, 0] if kvf else [0, 1, 2])
    srds = [S_W0, S_W1, S_W2]
    dst = [('a', 0), ('a', 128), ('v', 128)]
    marks = {}

    def dma(r):
        m, b = order[r // 8], r % 8
        e(f"""s_mul_i32 s{sA}, s{sStride}, {64 * b}
              s_add_u32 s{sA}, s{sA}, s{sRow}
              s_mul_i32 s{sB}, s{sK}, {m}
              s_add_u32 s{sA}, s{sA}, s{sB}""")
        for j in range(4):
            e(f"""s_add_u32 m0, s63, {RING0 + (r % 7) * 16384 + j * 1024}
                  buffer_load_dwordx4 v{vSrc}, {sr(srds[m], 4)}, s{sA} offen lds""")
            if j < 3:
                e(f"s_add_u32 s{sA}, s{sA}, s62")
        marks[r] = e.vm[-1]

    def init_check(tag):
        st = e.state()
        e(f"""v_readfirstlane_b32 s{sA}, v{vT + 1}
              s_and_b32 s{sA}, s{sA}, 0xffff
              s_cmp_eq_u32 s{sA}, 256
              s_cbranch_scc1 L_go_{tag}""")
        st = e.state()
        wait_init(e, tag, vT)
        e.label(f"L_go_{tag}"); e.set_state(st)

    def epilogue(ms):
        for m in ms:
            for j in range(8):
                e(f"v_cvt_pk_bf16_f32 v{OUT + 8 * m + j}, v{ACC + 16 * m + 2 * j}, v{ACC + 16 * m + 2 * j + 1}")
            a = vSig if m == 1 else vL16
            e(f"""s_add_u32 s{sA}, s{sUnit}, {8192 * m}
                  buffer_store_dwordx4 {vr(OUT + 8 * m, 4)}, v{a}, {W}, s{sA} offen sc1
                  buffer_store_dwordx4 {vr(OUT + 8 * m + 4, 4)}, v{a}, {W}, s{sA} offen offset:1024 sc1""")

    for r in range(6):
        dma(r)
    confirm_barrier(e, 'pj')
    for r in range(24):
        m, b = order[r // 8], r % 8
        e.wait(vm=len(e.vm) - 1 - e.vm.index(marks[r]), lgkm=0)
        e("s_barrier")
        if r == (8 if kvf else 18):
            e(f"buffer_load_dword v{vT + 1}, off, {DBG}, 0 offset:{D_INIT} sc1")
        if r + 6 < 24:
            dma(r + 6)
        e(f"v_add_u32 v{vT + 2}, {RING0 + (r % 7) * 16384}, v{vTr}")
        k, base = dst[m]
        for ksl in range(4):
            for z in range(2):
                e(f"ds_read_b64_tr_b16 {vr(base + 4 * (4 * b + ksl) + 2 * z, 2, k)}, v{vT + 2} offset:{(16 * ksl + 4 * z) * 256}")
        if r == 15 and kvf:
            e.wait(lgkm=0)
            init_check('pk')
            e(f"s_cmp_ge_u32 s{sSeg}, 2\n s_cbranch_scc1 L_pj_nokv")
            st = e.state()
            for ks in range(3):
                e(f"ds_read_b128 {vr(XF + 4 * ks, 4)}, v{vXr} offset:{32 * ks}")
            for ks in range(32):
                x = vr(XF + 4 * (ks % 4), 4)
                e(f"v_mfma_f32_32x32x16_bf16 {vr(ACC + 16, 16)}, {vr(128 + 4 * ks, 4, 'a')}, {x}, {'0' if ks == 0 else vr(ACC + 16, 16)}")
                if ks + 3 < 32:
                    e(f"ds_read_b128 {vr(XF + 4 * ((ks + 3) % 4), 4)}, v{vXr} offset:{32 * (ks + 3)}")
                e(f"v_mfma_f32_32x32x16_bf16 {vr(ACC + 32, 16)}, {x}, {vr(128 + 4 * ks, 4)}, {'0' if ks == 0 else vr(ACC + 32, 16)}")
            epilogue((1, 2))
            e(f"""v_mov_b32 v{vIn}, 1
                  s_waitcnt vmcnt(0)
                  s_barrier
                  s_cmp_lg_u32 s{S_WAVE}, 0
                  s_cbranch_scc1 L_pj_nokv
                  s_mov_b64 exec, 1
                  buffer_store_dword v{vIn}, off, {W}, s{sFlag} sc1
                  s_mov_b64 exec, -1
                  L_pj_nokv:""")
            e.set_state(st)
    e.wait(vm=0, lgkm=0)
    dbg_max(e, cfg, 14, v=vT + 3)
    if not kvf:
        init_check('pj')
    if cfg.get('pjhold'):
        e(f"""L_hold3:
              s_memrealtime s[92:93]
              s_waitcnt lgkmcnt(0)
              s_sub_u32 s92, s92, s94
              s_cmp_lt_u32 s92, {cfg['pjhold']}
              s_cbranch_scc1 L_hold3""")
    if cfg.get('diag'):
        e("s_memrealtime s[86:87]\n s_waitcnt lgkmcnt(0)")
    e(f"s_mov_b32 s{sPrev}, 0\n v_mov_b32 v{vIn}, 2")
    e.forget()
    e.label("L_pj_loop")
    e(f"""s_waitcnt vmcnt(6)
          s_barrier
          v_add_u32 v{vT}, s{sXb}, v{vXr}
          s_add_u32 s62, s{sSeg}, {NP}
          s_min_u32 s62, s62, 63
          s_sub_u32 s63, {XBUF}, s{sXb}""")
    nxt = xdma(62, 63)
    for ks in range(3):
        e(f"ds_read_b128 {vr(XF + 4 * ks, 4)}, v{vT} offset:{32 * ks}")
    for ks in range(32):
        x = vr(XF + 4 * (ks % 4), 4)
        c = [('0' if ks == 0 else vr(ACC + 16 * m, 16)) for m in range(3)]
        e(f"v_mfma_f32_32x32x16_bf16 {vr(ACC, 16)}, {vr(4 * ks, 4, 'a')}, {x}, {c[0]}")
        if ks + 3 < 32:
            e(f"ds_read_b128 {vr(XF + 4 * ((ks + 3) % 4), 4)}, v{vT} offset:{32 * (ks + 3)}")
        e(f"v_mfma_f32_32x32x16_bf16 {vr(ACC + 16, 16)}, {vr(128 + 4 * ks, 4, 'a')}, {x}, {c[1]}")
        if ks < 8:
            e(nxt[ks])
        if ks == 20:
            e.comment("the previous segment's stores of every wave are complete behind this barrier: raise its flag")
            e(f"""s_waitcnt vmcnt(8)
                  s_barrier
                  s_cmp_eq_u32 s{sPrev}, 0
                  s_cbranch_scc1 L_pj_nf
                  s_mov_b64 exec, 1
                  buffer_store_dword v{vIn}, off, {W}, s{sPrev} sc1
                  s_mov_b64 exec, -1
                  L_pj_nf:""")
            e.vm.pop()
        e(f"v_mfma_f32_32x32x16_bf16 {vr(ACC + 32, 16)}, {x}, {vr(128 + 4 * ks, 4)}, {c[2]}")
    epilogue((0, 1, 2))
    e(f"""s_cmp_eq_u32 s{S_WAVE}, 0
          s_cselect_b32 s{sPrev}, s{sFlag}, 0
          s_cmp_ge_u32 s{sSeg}, {NP}
          s_cbranch_scc1 L_pj_later
          s_waitcnt vmcnt(0)
          s_barrier
          s_cmp_eq_u32 s{sPrev}, 0
          s_cbranch_scc1 L_pj_later
          s_mov_b64 exec, 1
          buffer_store_dword v{vIn}, off, {W}, s{sPrev} sc1
          s_mov_b64 exec, -1
          L_pj_later:
          s_add_u32 s{sFlag}, s{sFlag}, {4 * NP}
          s_add_u32 s{sUnit}, s{sUnit}, {NP * UNIT}
          s_sub_u32 s{sXb}, {XBUF}, s{sXb}
          s_add_u32 s{sSeg}, s{sSeg}, {NP}
          s_cmp_lt_u32 s{sSeg}, 64
          s_cbranch_scc1 L_pj_loop
          s_waitcnt vmcnt(0)
          s_barrier
          s_cmp_eq_u32 s{sPrev}, 0
          s_cbranch_scc1 L_phase2
          s_mov_b64 exec, 1
          buffer_store_dword v{vIn}, off, {W}, s{sPrev} sc1
          s_mov_b64 exec, -1""")


def poll_ge(e, tag, tmp, voff, soff, cmpv, nl):
    off = f"v{voff}" if voff is not None else "off"
    e(f"""L_pg_{tag}:
          buffer_load_dword v{tmp}, {off}, {W}, {soff} {'offen' if voff is not None else ''} sc1
          s_sub_u32 s{S_SPIN}, s{S_SPIN}, 1
          s_cbranch_scc1 L_end
          v_cmp_gt_u32 vcc, {cmpv}, v{tmp}
          s_and_b32 vcc_lo, vcc_lo, {(1 << nl) - 1}
          s_cbranch_scc0 L_pk_{tag}
          s_sleep {PS[0]}
          s_branch L_pg_{tag}
          L_pk_{tag}:""")


def nap_until(e, tag, tmp, soff, need, st, unit):
    e(f"""L_nap_{tag}:
          buffer_load_dword v{tmp}, off, {W}, {soff} sc1
          s_sub_u32 s{S_SPIN}, s{S_SPIN}, 1
          s_cbranch_scc1 L_end
          v_readfirstlane_b32 s{st}, v{tmp}
          s_sub_u32 s{st}, {need}, s{st}
          s_cbranch_scc1 L_napx_{tag}
          s_cmp_eq_u32 s{st}, 0
          s_cbranch_scc1 L_napx_{tag}
          s_min_u32 s{st}, s{st}, 8
          L_napl_{tag}:
          s_sleep {unit}
          s_sub_u32 s{st}, s{st}, 1
          s_cmp_lg_u32 s{st}, 0
          s_cbranch_scc1 L_napl_{tag}
          s_branch L_nap_{tag}
          L_napx_{tag}:""")


def tstamp(e, cfg, n):
    if cfg.get('tdiag'):
        e(f"s_memrealtime {sr(20 + 2 * n, 2)}\n s_waitcnt lgkmcnt(0)")


def tdump(e, cfg):
    if cfg.get('tdiag'):
        e(f"""s_lshl_b32 s{sA}, s{S_ROLE}, 2
              s_add_u32 s{sA}, s{sA}, s{S_WAVE}
              s_lshl_b32 s{sA}, s{sA}, 5
              s_add_u32 s{sA}, s{sA}, 0x6500000""")
        for n in range(6):
            e(f"v_mov_b32 v2, s{20 + 2 * n}\n buffer_store_dword v2, off, {W}, s{sA} offset:{4 * n}")


def softmax_tail(e, vals, m0, m1, sC):
    v = list(vals)
    e(f"v_max3_f32 v{m0}, v{v[0]}, v{v[1]}, v{v[2]}")
    k = 3
    while k + 1 < len(v):
        e(f"v_max3_f32 v{m0}, v{m0}, v{v[k]}, v{v[k + 1]}"); k += 2
    if k < len(v):
        e(f"v_max_f32 v{m0}, v{m0}, v{v[k]}")
    e(f"""v_mov_b32 v{m1}, v{m0}
          v_permlane32_swap_b32 v{m0}, v{m1}
          v_max_f32 v{m0}, v{m0}, v{m1}
          v_mul_f32 v{m0}, s{sC}, v{m0}""")
    for r in v:
        e(f"v_fma_f32 v{r}, v{r}, s{sC}, -v{m0}")
    for r in v:
        e(f"v_exp_f32 v{r}, v{r}")
    e(f"v_add_f32 v{m0}, v{v[0]}, v{v[1]}\n v_add_f32 v{m1}, v{v[2]}, v{v[3]}")
    for k in range(4, len(v), 2):
        e(f"v_add_f32 v{m0}, v{m0}, v{v[k]}\n v_add_f32 v{m1}, v{m1}, v{v[k + 1]}")
    e(f"""v_add_f32 v{m0}, v{m0}, v{m1}
          v_mov_b32 v{m1}, v{m0}
          v_permlane32_swap_b32 v{m0}, v{m1}
          v_add_f32 v{m0}, v{m0}, v{m1}
          v_rcp_f32 v{m0}, v{m0}""")


def attn_b(e, cfg):
    lane, t1, vL16, vSig, vVm, vKm, vT, m0, m1, vOne, vF, vLw = range(1, 13)
    BIAS, Q, K, V, S, D0, D1, KM, VM, PX, PMm, O = 16, 32, 64, 96, 128, 144, 160, 176, 192, 208, 216, 128
    sSeg, sUnit, sExp, sOut, sFq, sFc, sFa, sCc, sLds = sC_, sD, sE, sF, sG, sH, sI, sJ, sK
    h = sWid
    lane_consts(e, lane, vL16, vSig)
    e(f"""v_and_b32 v{t1}, 31, v{lane}
          v_lshrrev_b32 v{vT}, 5, v{lane}
          v_lshlrev_b32 v{vT}, 2, v{vT}
          v_sub_u32 v{t1}, v{t1}, v{vT}
          v_mov_b32 v{vT}, {NEG}""")
    for r in range(16):
        e(f"v_cmp_gt_i32 vcc, {8 * (r >> 2) + (r & 3)}, v{t1}\n v_cndmask_b32 v{BIAS + r}, 0, v{vT}, vcc")
    e(f"""v_lshrrev_b32 v{t1}, 5, v{lane}
          v_lshlrev_b32 v{vVm}, 8, v{t1}
          v_and_b32 v{t1}, 15, v{lane}
          v_lshl_add_u32 v{vVm}, v{t1}, 4, v{vVm}
          v_bfe_u32 v{t1}, v{lane}, 4, 1
          v_lshl_add_u32 v{vVm}, v{t1}, 2, v{vVm}
          v_add_u32 v{vVm}, 8, v{vVm}""")
    e(f"""s_lshl_b32 s{sLds}, s{S_WAVE}, 12
          v_and_b32 v{t1}, 3, v{lane}
          v_lshlrev_b32 v{vKm}, 8, v{t1}
          v_lshrrev_b32 v{t1}, 5, v{lane}
          v_lshl_add_u32 v{vKm}, v{t1}, 6, v{vKm}
          v_bfe_u32 v{t1}, v{lane}, 2, 2
          v_lshl_add_u32 v{vKm}, v{t1}, 4, v{vKm}
          v_add_u32 v{vKm}, s{sLds}, v{vKm}
          v_add_u32 v{vVm}, s{sLds}, v{vVm}
          v_add_u32 v{vLw}, s{sLds}, v{vL16}
          v_and_b32 v{vF}, 3, v{lane}
          v_lshlrev_b32 v{vF}, 2, v{vF}
          v_mov_b32 v{vOne}, 1""")
    for wc in range(4):
        e(f"v_mov_b64 {vr(VM + 4 * wc + 2, 2)}, 0")
    e(f"v_mov_b64 {vr(PMm + 2, 2)}, 0")
    e(f"""s_mov_b32 s{sSeg}, s{S_WAVE}
          s_lshl_b32 s{sA}, s{h}, 6
          s_add_u32 s{sA}, s{sA}, s{sSeg}
          s_mul_i32 s{sUnit}, s{sA}, {UNIT}
          s_lshl_b32 s{sExp}, s{sA}, 12
          s_add_u32 s{sExp}, s{sExp}, {WS_EXP}
          s_lshl_b32 s{sFq}, s{sA}, 2
          s_add_u32 s{sFq}, s{sFq}, {F_QKV}
          s_lshl_b32 s{sFc}, s{h}, 7
          s_add_u32 s{sFc}, s{sFc}, {F_CH}
          s_lshl_b32 s{sA}, s{sSeg}, 5
          s_add_u32 s{sA}, s{sA}, s{h}
          s_lshl_b32 s{sOut}, s{sA}, 13
          s_add_u32 s{sOut}, s{sOut}, {WS_OF}
          s_lshr_b32 s{sFa}, s{sA}, 3
          s_lshl_b32 s{sFa}, s{sFa}, 7
          s_and_b32 s{sA}, s{h}, 7
          s_lshl_b32 s{sA}, s{sA}, 2
          s_add_u32 s{sFa}, s{sFa}, s{sA}
          s_add_u32 s{sFa}, s{sFa}, {F_AT}
          s_mov_b32 s{sCc}, 0x3e0293ee""")
    e.wait(vm=0, lgkm=0)
    e.label("L_ab_loop")
    poll_ge(e, 'abq', vT, None, f"s{sFq}", 2, 1)
    e(f"s_add_u32 s{sA}, s{sUnit}, 4096")
    for base, a, off in ((K, vSig, 8192), (Q, vL16, 0), (V, vL16, 16384)):
        e(f"s_add_u32 s{sA}, s{sUnit}, {off}\n s_add_u32 s{sB}, s{sUnit}, {off + 4096}")
        for j in range(8):
            e(f"buffer_load_dwordx4 {vr(base + 4 * j, 4)}, v{a}, {W}, s{sA if j < 4 else sB} offen offset:{1024 * (j & 3)} sc1")
    for j in range(8):
        c = vr(BIAS, 16) if j == 0 else vr(S, 16)
        e(f"v_mfma_f32_32x32x16_bf16 {vr(S, 16)}, {vr(K + 4 * j, 4)}, {vr(Q + 4 * j, 4)}, {c}")
    e(f"""s_add_u32 s{sA}, s{sSeg}, 1
          s_sub_u32 s62, s{sSeg}, 1
          s_min_u32 s62, s62, 61
          s_cmp_ge_u32 s{sSeg}, {64 - NTAIL}
          s_cselect_b32 s{sA}, s62, s{sA}
          s_sub_u32 s62, s{sA}, 1""")
    e.wait(vm=0)
    if cfg.get('nap', 1):
        nap_until(e, 'ab', vT, f"s{sFc}", "s62", sB, cfg.get('napu', 24))
    poll_ge(e, 'abc', vT, vF, f"s{sFc}", f"s{sA}", 4)
    e(f"s_mov_b32 s62, {SENT1}\n s_branch L_ab_ex1\n L_ab_ex:\n s_sleep {cfg.get('exs', 0)}\n L_ab_ex1:")
    for j in range(4):
        e(f"buffer_load_dwordx4 {vr(D0 + 4 * j, 4)}, v{vL16}, {W}, s{sExp} offen offset:{1024 * j} sc1")
    e(f"s_sub_u32 s{S_SPIN}, s{S_SPIN}, 1\n s_cbranch_scc1 L_end")
    for j in range(16):
        e(f"v_xor_b32 v{D1 + j}, s62, v{D0 + j}")
    for j in range(4):
        e(f"ds_write_b128 v{vLw}, {vr(D0 + 4 * j, 4)} offset:{1024 * j}")
    e(f"v_min3_u32 v{vT}, v{D1}, v{D1 + 1}, v{D1 + 2}")
    for j in range(3, 15, 2):
        e(f"v_min3_u32 v{vT}, v{vT}, v{D1 + j}, v{D1 + j + 1}")
    e(f"""v_min_u32 v{vT}, v{vT}, v{D1 + 15}
          v_cmp_eq_u32 vcc, 0, v{vT}
          s_waitcnt lgkmcnt(0)
          s_cbranch_vccnz L_ab_ex""")
    tstamp(e, cfg, 0)
    for wc in range(4):
        e(f"ds_read2st64_b32 {vr(VM + 4 * wc, 2)}, v{vVm} offset0:{4 * wc} offset1:{4 * wc + 2}")
    for wc in range(4):
        for z in range(2):
            e(f"ds_read_b64_tr_b16 {vr(KM + 4 * wc + 2 * z, 2)}, v{vKm} offset:{1024 * wc + 128 * z}")
    for wc in range(4):
        for ab, D in ((0, D0), (1, D1)):
            c = '0' if wc == 0 else vr(D, 16)
            e(f"v_mfma_f32_32x32x16_bf16 {vr(D, 16)}, {vr(KM + 4 * wc, 4)}, {vr(Q + 4 * (2 * wc + ab), 4)}, {c}")
    sm = [D0, D0 + 1, D0 + 4, D0 + 5]
    for r in sm:
        e(f"v_add_f32 v{r}, v{r}, v{r - D0 + D1 + 2}")
    tstamp(e, cfg, 1)
    softmax_tail(e, [S + r for r in range(16)] + sm, m0, m1, sCc)
    tstamp(e, cfg, 2)
    for j in range(8):
        e(f"v_cvt_pk_bf16_f32 v{PX + j}, v{S + 2 * j}, v{S + 2 * j + 1}")
    e(f"v_cvt_pk_bf16_f32 v{PMm}, v{D0}, v{D0 + 1}\n v_cvt_pk_bf16_f32 v{PMm + 1}, v{D0 + 4}, v{D0 + 5}")
    for wc in range(4):
        o = vr(O + 16 * wc, 16)
        e(f"""v_mfma_f32_32x32x16_bf16 {o}, {vr(V + 8 * wc, 4)}, {vr(PX, 4)}, 0
              v_mfma_f32_32x32x16_bf16 {o}, {vr(V + 8 * wc + 4, 4)}, {vr(PX + 4, 4)}, {o}
              v_mfma_f32_32x32x16_bf16 {o}, {vr(VM + 4 * wc, 4)}, {vr(PMm, 4)}, {o}""")
    e(f"s_add_u32 s{sB}, s{sOut}, 4096")
    for wc in range(4):
        o = O + 16 * wc
        for j in range(16):
            e(f"v_mul_f32 v{o + j}, v{o + j}, v{m0}")
        for j in range(8):
            e(f"v_cvt_pk_bf16_f32 v{Q + 8 * wc + j}, v{o + 2 * j}, v{o + 2 * j + 1}")
        for ab in range(2):
            j = 2 * wc + ab
            e(f"buffer_store_dwordx4 {vr(Q + 4 * j, 4)}, v{vL16}, {W}, s{sOut if j < 4 else sB} offen offset:{1024 * (j & 3)} sc1")
    tstamp(e, cfg, 3)
    e("s_waitcnt vmcnt(0)")
    tstamp(e, cfg, 4)
    e(f"""s_mov_b64 exec, 1
          buffer_store_dword v{vOne}, off, {W}, s{sFa} sc1
          s_mov_b64 exec, -1
          s_add_u32 s{sUnit}, s{sUnit}, {4 * UNIT}
          s_add_u32 s{sExp}, s{sExp}, {4 * 4096}
          s_add_u32 s{sFq}, s{sFq}, 16
          s_add_u32 s{sOut}, s{sOut}, {4 * 32 * 8192}
          s_add_u32 s{sFa}, s{sFa}, {4 * 512}
          s_add_u32 s{sSeg}, s{sSeg}, 4
          s_cmp_lt_u32 s{sSeg}, 64
          s_cbranch_scc1 L_ab_loop""")
    tdump(e, cfg)
    e("s_branch L_end")


def out_b(e, cfg):
    lane, t1, vL16, vSrc, vTr, vO, vSt, vT, vF, vRw, vRr = range(1, 12)
    ACC, RD = 16, 32
    sU, sSl, sRow, sLds, sOf, sFa, sTog = sC_, sD, sE, sF, sG, sH, sI
    sHi = 72
    srd(e, S_W0, P_WO, 0x400000)
    srd(e, S_W1, P_OUT, 0x400000)
    e(f"""s_sub_u32 s{sU}, s{sWid}, 64
          s_and_b32 s{sSl}, s{sU}, 15
          s_lshr_b32 s{sU}, s{sU}, 4
          s_cmp_ge_u32 s{sU}, {cfg.get('ng', 8 if cfg.get('nb', 3) >= 2 else 10)}
          s_cbranch_scc1 L_end
          v_and_b32 v{lane}, 63, v0
          v_lshlrev_b32 v{vL16}, 4, v{lane}
          v_and_b32 v{vF}, 7, v{lane}
          v_lshlrev_b32 v{vF}, 2, v{vF}""")
    e(f"""v_lshrrev_b32 v{t1}, 2, v{lane}
          v_lshlrev_b32 v{vSrc}, 10, v{t1}
          v_and_b32 v{t1}, 3, v{lane}
          v_lshl_add_u32 v{vSrc}, v{t1}, 4, v{vSrc}
          s_lshl_b32 s{sRow}, s{S_WAVE}, 20
          s_lshl_b32 s{sA}, s{sSl}, 6
          s_add_u32 s{sRow}, s{sRow}, s{sA}
          s_lshl_b32 s{sLds}, s{S_WAVE}, 15""")
    e(f"""v_lshlrev_b32 v{vTr}, 3, v{t1}
          v_lshrrev_b32 v{t1}, 5, v{lane}
          v_lshl_add_u32 v{vTr}, v{t1}, 10, v{vTr}
          v_bfe_u32 v{t1}, v{lane}, 2, 3
          v_lshl_add_u32 v{vTr}, v{t1}, 6, v{vTr}
          v_add_u32 v{vTr}, s{sLds}, v{vTr}""")
    e(f"""v_lshrrev_b32 v{t1}, 4, v{lane}
          v_lshlrev_b32 v{vO}, 9, v{t1}
          v_lshlrev_b32 v{vSt}, 3, v{t1}
          v_and_b32 v{t1}, 7, v{lane}
          v_lshl_add_u32 v{vO}, v{t1}, 4, v{vO}
          v_lshl_add_u32 v{vSt}, v{t1}, 11, v{vSt}
          v_and_b32 v{t1}, 8, v{lane}
          v_cmp_ne_u32 {sr(sHi, 2)}, 0, v{t1}
          v_lshl_add_u32 v{vO}, v{t1}, 8, v{vO}
          v_lshl_add_u32 v{vSt}, v{t1}, 27, v{vSt}
          s_lshl_b32 s{sA}, s{S_WAVE}, 11
          s_add_u32 s{sA}, s{sA}, 131072
          v_add_u32 v{vRw}, s{sA}, v{vL16}
          s_lshl_b32 s{sA}, s{S_WAVE}, 10
          s_add_u32 s{sA}, s{sA}, 131072
          v_add_u32 v{vRr}, s{sA}, v{vL16}""")
    e.wait(vm=0, lgkm=0)
    e("s_barrier")
    marks = {}

    def dma(ks):
        for j in range(2):
            e(f"""s_add_u32 m0, s{sLds}, {(ks % 16) * 2048 + j * 1024}
                  s_add_u32 s{sA}, s{sRow}, {(32 * ks + 16 * j) * 1024}
                  buffer_load_dwordx4 v{vSrc}, {sr(S_W0, 4)}, s{sA} offen lds""")
        marks[ks] = e.vm[-1]

    for ks in range(15):
        dma(ks)
    for ks in range(32):
        e.wait(vm=len(e.vm) - 1 - e.vm.index(marks[ks]), lgkm=0)
        if ks + 15 < 32:
            dma(ks + 15)
        for dt in range(2):
            for z in range(2):
                e(f"ds_read_b64_tr_b16 {vr(8 * ks + 4 * dt + 2 * z, 2, 'a')}, v{vTr} offset:{(ks % 16) * 2048 + z * 512 + dt * 32}")
    e.wait(vm=0, lgkm=0)
    e(f"s_mov_b32 s{sTog}, 0")
    e.label("L_ob_loop")
    e(f"""s_lshr_b32 s{sA}, s{sU}, 2
          s_lshl_b32 s{sA}, s{sA}, 5
          s_lshl_b32 s{sB}, s{S_WAVE}, 3
          s_add_u32 s{sA}, s{sA}, s{sB}
          s_lshl_b32 s{sFa}, s{sA}, 4
          s_add_u32 s{sFa}, s{sFa}, {F_AT}
          s_lshl_b32 s{sOf}, s{sA}, 13
          s_and_b32 s{sB}, s{sU}, 3
          s_lshl_b32 s{sB}, s{sB}, 7
          s_add_u32 s{sOf}, s{sOf}, s{sB}
          s_add_u32 s{sOf}, s{sOf}, {WS_OF}""")
    if cfg.get('nap', 1):
        e(f"""s_lshr_b32 s62, s{sU}, 2
              s_add_u32 s62, s62, 1
              s_min_u32 s62, s62, {64 - NTAIL}
              s_and_b32 s63, s{sWid}, 31
              s_lshl_b32 s63, s63, 7
              s_add_u32 s63, s63, {F_CH}""")
        nap_until(e, 'ob', vT, "s63", "s62", sB, cfg.get('napu', 24))
    poll_ge(e, 'ob', vT, vF, f"s{sFa}", 1, 8)
    tstamp(e, cfg, 0)
    for j in range(16):
        e(f"s_add_u32 s{sA}, s{sOf}, {j * 4096}\n buffer_load_dwordx4 {vr(128 + 4 * j, 4)}, v{vO}, {W}, s{sA} offen sc1")
    for ks in range(32):
        for dt in range(2):
            a = ACC + 8 * (ks & 1) + 4 * dt
            c = '0' if ks < 2 else vr(a, 4)
            e(f"v_mfma_f32_16x16x32_bf16 {vr(a, 4)}, {vr(8 * ks + 4 * dt, 4, 'a')}, {vr(128 + 4 * (ks >> 1), 4)}, {c}")
    for r in range(8):
        e(f"v_cndmask_b32 v{ACC + r}, v{ACC + r}, v{ACC + 8 + r}, {sr(sHi, 2)}")
    tstamp(e, cfg, 1)
    e(f"""v_add_u32 v{vT}, s{sTog}, v{vRw}
          ds_write_b128 v{vT}, {vr(ACC, 4)}
          ds_write_b128 v{vT}, {vr(ACC + 4, 4)} offset:1024""")
    e.barrier()
    e(f"""s_cmp_ge_u32 s{S_WAVE}, 2
          s_cbranch_scc1 L_ob_next
          v_add_u32 v{vT}, s{sTog}, v{vRr}""")
    for p in range(4):
        e(f"ds_read_b128 {vr(RD + 4 * p, 4)}, v{vT} offset:{2048 * p}")
    for r in range(4):
        e(f"""v_add_f32 v{RD + r}, v{RD + r}, v{RD + 4 + r}
              v_add_f32 v{RD + 8 + r}, v{RD + 8 + r}, v{RD + 12 + r}
              v_add_f32 v{RD + r}, v{RD + r}, v{RD + 8 + r}""")
    for r in range(4):
        e(f"v_add_f32_dpp v{RD + r}, v{RD + r}, v{RD + r} row_ror:8 row_mask:0xf bank_mask:0xf")
    e(f"""v_cvt_pk_bf16_f32 v{RD}, v{RD}, v{RD + 1}
          v_cvt_pk_bf16_f32 v{RD + 1}, v{RD + 2}, v{RD + 3}
          s_lshl_b32 s{sA}, s{sU}, 14
          s_lshl_b32 s{sB}, s{sSl}, 6
          s_add_u32 s{sA}, s{sA}, s{sB}
          s_lshl_b32 s{sB}, s{S_WAVE}, 5
          s_add_u32 s{sA}, s{sA}, s{sB}
          buffer_store_dwordx2 {vr(RD, 2)}, v{vSt}, {sr(S_W1, 4)}, s{sA} offen offset:1024 {cfg.get('ost', '')}
          L_ob_next:
          s_xor_b32 s{sTog}, s{sTog}, 8192
          s_add_u32 s{sU}, s{sU}, {cfg.get('ng', 8 if cfg.get('nb', 3) >= 2 else 10)}
          s_cmp_lt_u32 s{sU}, 256
          s_cbranch_scc1 L_ob_loop""")
    tstamp(e, cfg, 2)
    tdump(e, cfg)
    e("s_branch L_end")


def part_a(e, cfg):
    lane, t1, vL16, vSig, vSrc, vTr, vT, m0, m1, vSt, vW, vNeg = range(1, 13)
    BC, BP, BPX = 16, 32, 48
    SC, SP, O, PX = 64, 80, 96, 112
    Q, KC, KP, VC, VP = 128, 160, 192, 224, 48
    sSeg, sCh, sUnit, sPrevU, sFq, sCc, sRow = sC_, sD, sE, sF, sG, sH, sI
    srd(e, S_W0, P_AWO, 0x80000)
    srd(e, S_W1, P_OUT, 0x400000)
    lane_consts(e, lane, vL16, vSig)
    e(f"""s_sub_u32 s{sSeg}, s{sWid}, 32
          s_and_b32 s{sCh}, s{sSeg}, 1
          s_lshr_b32 s{sSeg}, s{sSeg}, 1
          s_mov_b32 s{sCc}, 0x3eb8aa3b""")
    e(f"""v_and_b32 v{t1}, 31, v{lane}
          v_lshrrev_b32 v{vT}, 5, v{lane}
          v_lshlrev_b32 v{vT}, 2, v{vT}
          v_sub_u32 v{t1}, v{t1}, v{vT}
          v_mov_b32 v{vNeg}, {NEG}""")
    for base, add in ((BC, 0), (BP, 32)):
        for r in range(16):
            e(f"""v_add_u32 v{vT}, {add - 8 * (r >> 2) - (r & 3)}, v{t1}
                  v_and_b32 v{vT}, 0xfffffff1, v{vT}
                  v_cmp_ne_u32 vcc, 0, v{vT}
                  v_cndmask_b32 v{base + r}, 0, v{vNeg}, vcc""")
    e(f"""v_lshrrev_b32 v{t1}, 5, v{lane}
          v_lshlrev_b32 v{vSrc}, 10, v{t1}
          v_and_b32 v{t1}, 31, v{lane}
          v_lshl_add_u32 v{vSrc}, v{t1}, 4, v{vSrc}
          v_lshlrev_b32 v{vSt}, 11, v{t1}
          s_lshl_b32 s{sRow}, s{S_WAVE}, 13
          s_lshl_b32 s{sA}, s{sCh}, 9
          s_add_u32 s{sRow}, s{sRow}, s{sA}
          s_lshl_b32 s63, s{S_WAVE}, 12""")
    e(f"""v_lshrrev_b32 v{t1}, 5, v{lane}
          v_lshlrev_b32 v{vTr}, 11, v{t1}
          v_lshl_add_u32 v{vSt}, v{t1}, 3, v{vSt}
          v_bfe_u32 v{t1}, v{lane}, 2, 2
          v_lshl_add_u32 v{vTr}, v{t1}, 9, v{vTr}
          v_bfe_u32 v{t1}, v{lane}, 4, 1
          v_lshl_add_u32 v{vTr}, v{t1}, 5, v{vTr}
          v_and_b32 v{t1}, 3, v{lane}
          v_lshl_add_u32 v{vTr}, v{t1}, 3, v{vTr}
          s_lshl_b32 s{sA}, s{S_WAVE}, 7
          v_add_u32 v{vTr}, s{sA}, v{vTr}
          s_lshl_b32 s{sA}, s{S_WAVE}, 13
          v_add_u32 v{vW}, s{sA}, v{vL16}""")
    e.wait(vm=0, lgkm=0)
    e("s_barrier")
    marks = {}

    def dma(r):
        for j in range(4):
            e(f"""s_add_u32 m0, s63, {(r % 8) * 16384 + j * 1024}
                  s_add_u32 s{sA}, s{sRow}, {(32 * r + 2 * j) * 1024}
                  buffer_load_dwordx4 v{vSrc}, {sr(S_W0, 4)}, s{sA} offen lds""")
        marks[r] = e.vm[-1]

    for r in range(7):
        dma(r)
    for r in range(16):
        e.wait(vm=len(e.vm) - 1 - e.vm.index(marks[r]), lgkm=0)
        e("s_barrier")
        if r + 7 < 16:
            dma(r + 7)
        e(f"v_add_u32 v{vT}, {(r % 8) * 16384}, v{vTr}")
        for hl in range(2):
            for dt in range(2):
                for z in range(2):
                    e(f"ds_read_b64_tr_b16 {vr(8 * (2 * r + hl) + 4 * dt + 2 * z, 2, 'a')}, v{vT} offset:{(16 * hl + 8 * z) * 512 + dt * 64}")
    e.wait(vm=0, lgkm=0)
    e.label("L_pa_loop")
    e(f"""s_add_u32 s{sA}, s{S_WAVE}, 32
          s_lshl_b32 s{sA}, s{sA}, 6
          s_add_u32 s{sA}, s{sA}, s{sSeg}
          s_mul_i32 s{sUnit}, s{sA}, {UNIT}
          s_lshl_b32 s{sFq}, s{sA}, 2
          s_add_u32 s{sFq}, s{sFq}, {F_QKV}
          s_cmp_eq_u32 s{sSeg}, 0
          s_cselect_b32 s{sA}, 0, {UNIT}
          s_cselect_b32 s{sB}, 0, 4
          s_cselect_b64 vcc, -1, 0
          s_sub_u32 s{sPrevU}, s{sUnit}, s{sA}
          s_sub_u32 s62, s{sFq}, s{sB}""")
    for r in range(8, 16):
        e(f"v_cndmask_b32 v{BP + r - 8}, v{BP + r}, v{vNeg}, vcc")
    poll_ge(e, 'pa1', vT, None, f"s{sFq}", 2, 1)
    poll_ge(e, 'pa2', vT, None, "s62", 2, 1)
    for base, a, u, off in ((Q, vL16, sUnit, 0), (KC, vSig, sUnit, 8192), (KP, vSig, sPrevU, 8192), (VC, vL16, sUnit, 16384)):
        e(f"s_add_u32 s{sA}, s{u}, {off}\n s_add_u32 s{sB}, s{u}, {off + 4096}")
        for j in range(8):
            e(f"buffer_load_dwordx4 {vr(base + 4 * j, 4)}, v{a}, {W}, s{sA if j < 4 else sB} offen offset:{1024 * (j & 3)} sc1")
    e(f"s_add_u32 s{sA}, s{sPrevU}, {16384 + 1024}\n s_add_u32 s{sB}, s{sPrevU}, {16384 + 1024 + 4096}")
    for wc in range(4):
        e(f"buffer_load_dwordx4 {vr(VP + 4 * wc, 4)}, v{vL16}, {W}, s{sA if wc < 2 else sB} offen offset:{2048 * (wc & 1)} sc1")
    e("s_barrier")
    for j in range(8):
        wc, ab = j >> 1, j & 1
        e(f"""v_mfma_f32_32x32x16_bf16 {vr(SC, 16)}, {vr(KC + 4 * j, 4)}, {vr(Q + 4 * j, 4)}, {vr(BC, 16)}
              v_mfma_f32_32x32x16_bf16 {vr(SP, 16)}, {vr(KP + 4 * j, 4)}, {vr(Q + 4 * j, 4)}, {vr(BP - 8, 16)}""")
        softmax_tail(e, [SC + r for r in range(16)] + [SP + r for r in range(8, 16)], m0, m1, sCc)
        for k in range(8):
            e(f"v_cvt_pk_bf16_f32 v{PX + k}, v{SC + 2 * k}, v{SC + 2 * k + 1}")
        for k in range(4):
            e(f"v_cvt_pk_bf16_f32 v{PX + 8 + k}, v{SP + 8 + 2 * k}, v{SP + 8 + 2 * k + 1}")
        o = vr(O, 16)
        e(f"""v_mfma_f32_32x32x16_bf16 {o}, {vr(VC + 8 * wc, 4)}, {vr(PX, 4)}, 0
              v_mfma_f32_32x32x16_bf16 {o}, {vr(VC + 8 * wc + 4, 4)}, {vr(PX + 4, 4)}, {o}
              v_mfma_f32_32x32x16_bf16 {o}, {vr(VP + 4 * wc, 4)}, {vr(PX + 8, 4)}, {o}""")
        for k in range(8):
            e(f"v_mul_f32 v{O + 8 * ab + k}, v{O + 8 * ab + k}, v{m0}")
        for k in range(4):
            e(f"v_cvt_pk_bf16_f32 v{124 + k}, v{O + 8 * ab + 2 * k}, v{O + 8 * ab + 2 * k + 1}")
        e(f"ds_write_b128 v{vW}, {vr(124, 4)} offset:{1024 * j}")
    e.barrier()
    for hd in range(32):
        e(f"ds_read_b128 {vr(128 + 4 * hd, 4)}, v{vL16} offset:{1024 * hd}")
        if hd >= 8:
            k = hd - 8
            for dt in range(2):
                c = '0' if k == 0 else vr(SC + 16 * dt, 16)
                e(f"v_mfma_f32_32x32x16_bf16 {vr(SC + 16 * dt, 16)}, {vr(8 * k + 4 * dt, 4, 'a')}, {vr(128 + 4 * k, 4)}, {c}")
    for k in range(24, 32):
        for dt in range(2):
            e(f"v_mfma_f32_32x32x16_bf16 {vr(SC + 16 * dt, 16)}, {vr(8 * k + 4 * dt, 4, 'a')}, {vr(128 + 4 * k, 4)}, {vr(SC + 16 * dt, 16)}")
    e(f"""s_lshl_b32 s{sA}, s{sSeg}, 16
          s_lshl_b32 s{sB}, s{sCh}, 9
          s_add_u32 s{sA}, s{sA}, s{sB}
          s_lshl_b32 s{sB}, s{S_WAVE}, 7
          s_add_u32 s{sA}, s{sA}, s{sB}""")
    for dt in range(2):
        for a in range(4):
            r = SC + 16 * dt + 4 * a
            d = O + 2 * (4 * dt + a)
            e(f"""v_cvt_pk_bf16_f32 v{d}, v{r}, v{r + 1}
                  v_cvt_pk_bf16_f32 v{d + 1}, v{r + 2}, v{r + 3}
                  buffer_store_dwordx2 {vr(d, 2)}, v{vSt}, {sr(S_W1, 4)}, s{sA} offen offset:{64 * dt + 16 * a} {cfg.get('ost', '')}""")
    e(f"""s_add_u32 s{sSeg}, s{sSeg}, 16
          s_cmp_lt_u32 s{sSeg}, 64
          s_cbranch_scc1 L_pa_loop
          s_branch L_end""")


def worker(e, cfg):
    PS[0] = cfg.get('ps', 4)
    e(f"s_sub_u32 s{sWid}, s{S_ROLE}, 32")
    if cfg.get('lin', 0):
        e.comment("sweep Wq/Wk/Wv once in address order (one word per line, 64 KiB per workgroup): every strided reader")
        e(f"""s_sub_u32 s62, s{sWid}, 32
              s_cbranch_scc1 L_nolin
              s_mul_i32 s63, s62, 171
              s_lshr_b32 s63, s63, 9
              s_mul_i32 s{sA}, s63, 3
              s_sub_u32 s62, s62, s{sA}
              s_cmp_eq_u32 s62, 1
              s_cselect_b32 s{S_T0}, s{P_WK}, s{P_WQ}
              s_cselect_b32 s{S_T0 + 1}, s{P_WK + 1}, s{P_WQ + 1}
              s_cmp_eq_u32 s62, 2
              s_cselect_b32 s{S_T0}, s{P_WV}, s{S_T0}
              s_cselect_b32 s{S_T0 + 1}, s{P_WV + 1}, s{S_T0 + 1}
              s_mov_b32 s{S_T0 + 2}, 0x400000
              s_mov_b32 s{S_T0 + 3}, 0x20000
              s_lshl_b32 s63, s63, 2
              s_add_u32 s63, s63, s{S_WAVE}
              s_lshl_b32 s63, s63, 14
              s_add_u32 s62, s63, 8192
              v_and_b32 v123, 63, v0
              v_lshlrev_b32 v123, 7, v123""")
        e.loose(f"buffer_load_dword v124, v123, {sr(S_T0, 4)}, s63 offen")
        e.loose(f"buffer_load_dword v124, v123, {sr(S_T0, 4)}, s62 offen")
        e.vm = []
        e.label("L_nolin")
    if cfg.get('ne', 0):
        e.comment("five workgroups of each die form the team that runs the first steps while die 0 still loads its weights")
        e(f"""s_lshr_b32 s62, s{sWid}, 5
              s_and_b32 s63, s{sWid}, 31
              s_cmp_ge_u32 s63, 5
              s_cbranch_scc1 L_noec
              s_mul_i32 s62, s62, 5
              s_add_u32 s{S_HEAD}, s62, s63
              s_mov_b32 s{S_EC}, 1
              s_cmp_lt_u32 s{S_HEAD}, 32
              s_cbranch_scc1 L_chain
              s_branch L_spare
              L_noec:
              s_mul_i32 s62, s62, 27
              s_add_u32 s63, s63, s62
              s_sub_u32 s63, s63, 5
              s_cmp_lt_u32 s63, 180
              s_cbranch_scc1 L_proj
              L_spare:""")
    elif cfg.get('nb', 3) == 3:
        e(f"s_sub_u32 s63, s{sWid}, 32\n s_cmp_lt_u32 s63, 180\n s_cbranch_scc1 L_proj")
    else:
        e(f"s_mov_b32 s63, s{sWid}\n s_cmp_lt_u32 s{sWid}, 216\n s_cbranch_scc1 L_proj")
    st = e.state()
    e("s_waitcnt vmcnt(0)")
    confirm_barrier(e, 'sp')
    if cfg.get('nb', 3) == 3:
        e(f"s_cmp_lt_u32 s{sWid}, 32\n s_cbranch_scc1 L_end")
    if cfg.get('opf', 0):
        e.comment("read Wo once (one word per line): the recurrence asks for it last and then finds it on the die-level cache")
        srd(e, S_W0, P_WO, 0x400000)
        e(f"""s_sub_u32 s{sA}, s{sWid}, 216
              s_lshl_b32 s{sA}, s{sA}, 2
              s_add_u32 s{sA}, s{sA}, s{S_WAVE}
              s_lshl_b32 s{sA}, s{sA}, 17
              v_and_b32 v4, 63, v0
              v_lshlrev_b32 v4, 7, v4""")
        for j in range(16):
            e.loose(f"buffer_load_dword v5, v4, {sr(S_W0, 4)}, s{sA} offen")
            e(f"s_add_u32 s{sA}, s{sA}, 8192")
    wait_init(e, 'sp', 3, 127)
    e("s_branch L_phase2")
    e.label("L_proj"); e.set_state(st)
    proj(e, cfg)
    e.label("L_phase2")
    dbg_max(e, cfg, 15, v=12)
    if cfg.get('diag'):
        e("s_memrealtime s[88:89]\n s_waitcnt lgkmcnt(0)")
    if cfg.get('nophase2'):
        e("s_branch L_end")
    nb = cfg.get('nb', 3)
    if nb == 1:
        e(f"s_cmp_lt_u32 s{sWid}, 64\n s_cselect_b32 s{sA}, 32, 0\n s_xor_b32 s{sWid}, s{sWid}, s{sA}")
    if nb >= 2:
        e(f"s_sub_u32 s{sWid}, s{sWid}, 32\n s_cbranch_scc1 L_end")
        if cfg.get('rot'):
            e(f"""s_add_u32 s{sWid}, s{sWid}, {32 * cfg['rot']}
                  s_cmp_ge_u32 s{sWid}, 192
                  s_cselect_b32 s{sA}, 192, 0
                  s_sub_u32 s{sWid}, s{sWid}, s{sA}""")
    e(f"""s_cmp_lt_u32 s{sWid}, 32
          s_cbranch_scc1 L_attn_b
          s_cmp_lt_u32 s{sWid}, 64
          s_cbranch_scc1 L_part_a""")
    st = e.state()
    out_b(e, cfg)
    e.label("L_attn_b"); e.set_state(st)
    attn_b(e, cfg)
    e.label("L_part_a"); e.set_state(st)
    part_a(e, cfg)
```

```python
from common import *

L_T, L_OB, L_DUMMY, L_KX, L_WL = 8192, 12544, 14592, 16384, 32768
T_PITCH = 1088
vL16, vPst, vMst, vTw, vTr, vKXr, vOw, vWL0, vWL1, vMw, vIdx, vSelC = range(12)
EX, PM, VX = 12, 16, 20
TMP = 28
MA = 32
ACC = 64
X, KXR, SPARE = 88, 104, 120
R1 = [MA + 8, MA + 16, MA + 24, X, X + 8, KXR, KXR + 8, SPARE, X, X + 8]
WO_SB = [KXR, KXR + 8, X, X + 8, ACC, ACC + 8]
(sStep, sMcur, sProg, sMtog, sG, sKl, sMb, sKV, sC, sExp, sMcur2, sMbaseS, sPbaseS, sPbaseL, sFl, sFch, sTog, sNan,
 sA, sB) = range(50, 70)
sSel = 70
sOK, sMn2, sF1, sEnd = 78, 3, 38, 39
sArm, sFm = 18, 98
sVx, sVt, sOK2, sG2 = 96, 97, 17, 100
HV, HS, HA, HD = VX, VX + 1, VX + 2, VX + 4
sHm, sCnt = 20, 28
S_M0 = 84
TRS = [30, 42, 44, 80, 82, 88, 32, 34]
sDbgT = 80

STREAM, WLPOS, RES, PARK = [], {}, {}, {}
ALLOPS = [(m, ft, i) for m in 'qkv' for ft in range(2) for i in range(8)] + [('o', t, kb) for t in range(8) for kb in range(2)]


def tables(J):
    STREAM[:] = [(m, ft, i) for i in (0, J) for m in 'qk' for ft in range(2)] + [('q', 0, 5), ('q', 0, 7)] + \
        [('o', t, kb) for t in (5, 6, 7) for kb in range(2)]
    WLPOS.clear(); RES.clear(); PARK.clear()
    WLPOS.update({op: p for op, p in zip(STREAM[10:14], range(4))})
    WLPOS.update({op: 4 + p for p, op in enumerate(STREAM[14:16] + STREAM[:10])})
    for n, op in enumerate([o for o in ALLOPS if o not in STREAM]):
        RES[op] = ('a', 8 * n) if n < 32 else ('v', 128 + 8 * (n - 32))
    for n, op in enumerate(STREAM[14:16] + STREAM[:10]):
        PARK[op] = 32 + 8 * n
    for n, op in enumerate(STREAM[10:14]):
        PARK[op] = 48 + 8 * n


W = sr(S_WS, 4)
CFG = {}


def wl_addr(op, half):
    p = WLPOS[op]
    off = (p >> 1) * 16384 + (p & 1) * 2048 + half * 1024
    return (vWL0, off) if off < 65536 else (vWL1, off - 65536)


def wl_write(e, op, src):
    for half in range(2):
        a, off = wl_addr(op, half)
        e(f"ds_write_b128 v{a}, {vr(src + 4 * half, 4)} offset:{off}")


def wl_lines(op, dst):
    out = []
    for half in range(2):
        a, off = wl_addr(op, half)
        out.append(f"ds_read_b128 {vr(dst + 4 * half, 4)}, v{a} offset:{off}")
    return out


def delay(e, cyc):
    if (CFG.get('slp') or cyc >= 384) and cyc >= 64:
        k = cyc // 64
        e(f"s_sleep {k}")
        cyc -= 64 * k
    if CFG.get('dmf'):
        while cyc >= 16:
            if CFG['dmf'] == 1:
                e(f"v_mfma_f32_16x16x32_bf16 {vr(VX, 4)}, a[0:3], a[8:11], 0")
            else:
                e(f"v_smfmac_f32_16x16x64_bf16 {vr(VX, 4)}, a[0:3], a[8:15], v{vIdx}")
            cyc -= 16
    n = cyc // 4
    while n > 0:
        k = min(n, 16)
        e(f"s_nop {k - 1}")
        n -= k


def mix(reads, other, per=3):
    out = []
    other = list(other)
    for r in reads:
        out.append(r)
        for _ in range(per):
            if other:
                out.append(other.pop(0))
    return out + other


def mload(b):
    return f"buffer_load_dwordx4 {vr(MA + 4 * b, 4)}, v{vMw}, {W}, s{sMcur if b == 0 else sMcur2} offen sc1"


def mspare():
    return f"buffer_load_dwordx4 {vr(VX, 4)}, v{vMw}, {W}, s{sMcur} offen sc1"


def kx_dma(e, ldsbase):
    e(f"""s_lshl_b32 s{sA}, s{S_WAVE}, 11
          s_add_u32 m0, s{sA}, {ldsbase}
          buffer_load_dwordx4 v{vL16}, {W}, s{sKV} offen sc1 lds
          buffer_load_dwordx4 v{vL16}, {W}, s{sKV} offen offset:1024 sc1 lds""")


def scalar_lines():
    return [x.strip() for x in f"""s_and_b32 s{sA}, s{sStep}, 3
          s_lshl_b32 s{sA}, s{sA}, 13
          s_add_u32 s{sMcur}, s{sA}, s{sMb}
          s_add_u32 s{sMcur2}, s{sMcur}, 4096
          s_and_b32 s{sA}, s{sA}, 0x2000
          s_add_u32 s{sMn2}, s{sMbaseS}, s{sA}
          s_lshl_b32 s{sMtog}, s{sA}, 1
          s_sub_u32 s{sVx}, s{sKV}, s{sTog}
          s_add_u32 s{sVx}, s{sVx}, {8192 - L_KX}
          s_add_u32 s{sKV}, s{sKV}, {0 if CFG.get('samekv') else UNIT}
          s_add_u32 s{sVt}, s{sKV}, 8192
          s_xor_b32 s{sA}, s{sTog}, 0x2000
          s_add_u32 m0, s{sA}, s{sKl}
          s_cmp_gt_u32 s{sStep}, s{sF1}
          s_cselect_b32 s{sA}, 4096, 0
          s_add_u32 s{sExp}, s{sExp}, s{sA}
          s_add_u32 s{sOK2}, s{sStep}, 1
          s_max_u32 s{sProg}, s{sStep}, {0 if CFG.get('xo', 0) else 1}
          s_sub_u32 s{sProg}, s{sProg}, {0 if CFG.get('xo', 0) else 1}
          s_and_b32 s{sG2}, s{sOK2}, 1""".split('\n')]


def prep_a_lines():
    other = [f"v_mov_b64 {vr(ACC + j, 2)}, 0" for j in range(0, 24, 2)] + [f"v_lshlrev_b32 v{PM + 3}, 1, v{vL16}", f"v_mov_b32 v{TMP}, s{sProg}"]
    reads = sum([wl_lines(STREAM[o], R1[o]) for o in range(3, 8)], [])
    return mix(reads, other, 2)


def prep_b_lines():
    other = [f"v_xor_b32 v{vMst}, s{sMtog}, v{vMst}"] + [f"v_xor_b32 v{TMP + p}, {p << 10}, v{vMw}" for p in range(1, 4)]
    reads = sum([wl_lines(STREAM[o], R1[o]) for o in range(3)], [])
    return mix(reads, other, 1)


def chain_startup(e, cfg):
    h = S_HEAD
    ent = 'retE' if cfg.get('ic', 0) else 'step'
    NE = cfg.get('ne', 0)
    ARMED = (0x400100 if NE else 0x200100)
    tA, tB, tC, tD = EX, EX + 1, EX + 2, EX + 3
    t0, t1, t2, t3 = TMP, TMP + 1, TMP + 2, TMP + 3
    lane = PM
    chunks = [('o', kb, Q) for kb in range(2) for Q in range(4)] + [(m, b, 0) for m in cfg.get('mo', 'qkv') for b in range(8)]
    ring = {4: L_WL + 2 * 16384, 5: L_WL + 3 * 16384, 6: L_WL + 4 * 16384, 0: L_WL + 5 * 16384, 1: L_WL + 6 * 16384,
            2: L_WL + 7 * 16384, 3: 0}
    ptr = {'q': P_WQ, 'k': P_WK, 'v': P_WV, 'o': P_WO}
    sHq, sHo, sLw = sMcur, sProg, sMcur2
    cur, marks = [None], {}

    def dma(r):
        m, x, Q = chunks[r]
        if cur[0] != m:
            srd(e, S_T0, ptr[m], 0x400000); cur[0] = m
        for i in range(4):
            if m == 'o':
                row = 64 * x + 32 * (Q >> 1) + 2 * (Q & 1) + 4 * (i >> 1) + (i & 1)
                e(f"""s_add_u32 s{sA}, s{sHo}, {row * 1024}
                      s_add_u32 m0, s{sLw}, {ring[r % 7] + i * 1024}
                      v_xor_b32 v{t2}, {i << 5}, v{VX + 3}
                      buffer_load_dwordx4 v{t2}, {sr(S_T0, 4)}, s{sA} offen {cfg.get('wnt', '')} lds""")
            else:
                e(f"""s_add_u32 s{sA}, s{sHq}, {(128 * (x & 3) + 64 * (x >> 2) + 4 * i) * 8192}
                      s_add_u32 m0, s{sLw}, {ring[r % 7] + i * 1024}
                      buffer_load_dwordx4 v{tA}, {sr(S_T0, 4)}, s{sA} offen {cfg.get('wnt', '')} lds""")
        marks[r] = e.vm[-1]

    S_T2 = 20
    cur2 = [None]

    def ahead(r):
        m, x, Q = chunks[r]
        if m == 'o':
            return
        if cur2[0] != m:
            srd(e, S_T2, ptr[m], 0x400000); cur2[0] = m
        e(f"s_add_u32 s{sA}, s24, {(128 * (x & 3) + 64 * (x >> 2)) * 8192}")
        e.loose(f"buffer_load_dword v{PM}, v{tD}, {sr(S_T2, 4)}, s{sA} offen")

    if cfg.get('lhold'):
        e(f"""L_hold4:
              s_memrealtime s[92:93]
              s_waitcnt lgkmcnt(0)
              s_sub_u32 s92, s92, s94
              s_cmp_lt_u32 s92, {cfg['lhold']}
              s_cbranch_scc1 L_hold4""")
    e(f"""v_and_b32 v{lane}, 63, v0
          v_lshlrev_b32 v{vL16}, 4, v{lane}
          s_and_b32 s{sA}, s{S_WAVE}, 1
          s_lshr_b32 s{sB}, s{S_WAVE}, 1
          s_lshl_b32 s{sHo}, s{sA}, 7
          v_xor_b32 v{VX + 3}, s{sHo}, v{vL16}
          s_lshl_b32 s{sHo}, s{h}, 17
          s_lshl_b32 s{sLw}, s{sA}, 14
          s_add_u32 s{sHo}, s{sHo}, s{sLw}
          s_lshl_b32 s{sLw}, s{sB}, 13
          s_add_u32 s{sHo}, s{sHo}, s{sLw}
          s_lshl_b32 s{sHq}, s{h}, 8
          s_lshl_b32 s{sLw}, s{S_WAVE}, 17
          s_add_u32 s{sHq}, s{sHq}, s{sLw}
          s_lshl_b32 s{sLw}, s{S_WAVE}, 12""")
    if cfg.get('tw', 0):
        e.comment("first touch of every page of the other three matrices at once")
        e(f"v_lshlrev_b32 v{t3}, 16, v{lane}")
        for m in 'qkv':
            srd(e, S_M0, ptr[m], 0x400000)
            e.loose(f"buffer_load_dword v125, v{t3}, {sr(S_M0, 4)}, s{sHq} offen")
    DD = cfg.get('dd', 6)
    for r in range(cfg.get('d0', 6)):
        dma(r)
        if cfg.get('pdbg') and r in (0, 5):
            e(f"s_memrealtime {sr(88 if r == 0 else 82, 2)}")
    e(f"""v_lshrrev_b32 v{t0}, 4, v{lane}
          v_and_b32 v{t1}, 15, v{lane}
          s_lshl_b32 s{sA}, s{S_WAVE}, 10
          v_add_u32 v{vMw}, s{sA}, v{vL16}
          v_lshlrev_b32 v{PM + 3}, 2, v{lane}""")
    e(f"""v_lshrrev_b32 v{t2}, 2, v{lane}
          v_lshlrev_b32 v{t2}, 12, v{t2}
          v_and_b32 v{t3}, 3, v{lane}
          v_lshl_add_u32 v{vPst}, v{t3}, 4, v{t2}""")
    e(f"""v_and_b32 v{t2}, 1, v{lane}
          v_lshlrev_b32 v{t2}, 5, v{t2}
          v_lshl_add_u32 v{t2}, v{t0}, 3, v{t2}
          v_and_b32 v{t3}, 4, v{lane}
          v_add_u32 v{t2}, v{t2}, v{t3}
          v_and_b32 v{t3}, 8, v{lane}
          v_cmp_ne_u32 {sr(sArm, 2)}, 0, v{t3}
          v_lshl_add_u32 v{t2}, v{t3}, 11, v{t2}
          v_and_b32 v{t3}, 2, v{lane}
          v_lshl_add_u32 v{vMst}, v{t3}, 29, v{t2}""")
    srd(e, S_M0, P_MEM0, 8192)
    e(f"""v_and_b32 v{t2}, 1, v{lane}
          v_lshlrev_b32 v{tD}, 10, v{t2}
          v_lshl_add_u32 v{tD}, v{t0}, 1, v{tD}
          v_bfe_u32 v{t2}, v{lane}, 2, 1
          v_lshl_add_u32 v{tD}, v{t2}, 6, v{tD}
          s_and_b32 s{sA}, s{h}, 6
          s_lshl_b32 s{sA}, s{sA}, 10
          s_lshr_b32 s{sB}, s{h}, 3
          s_lshl_b32 s{sB}, s{sB}, 8
          s_add_u32 s{sA}, s{sA}, s{sB}
          s_and_b32 s{sB}, s{S_WAVE}, 1
          s_lshl_b32 s{sB}, s{sB}, 7
          s_add_u32 s{sA}, s{sA}, s{sB}
          s_lshr_b32 s{sB}, s{S_WAVE}, 1
          s_lshl_b32 s{sB}, s{sB}, 3
          s_add_u32 s{sA}, s{sA}, s{sB}
          s_and_b32 s{sB}, s{h}, 1
          s_lshl_b32 s{sB}, s{sB}, 4
          s_add_u32 s{sA}, s{sA}, s{sB}
          buffer_load_ushort v{VX}, v{tD}, {sr(S_M0, 4)}, s{sA} offen
          buffer_load_ushort v{VX + 1}, v{tD}, {sr(S_M0, 4)}, s{sA} offen offset:32""")
    e(f"""s_lshl_b32 s{sA}, s{S_WAVE}, 8
          s_add_u32 s{sA}, s{sA}, {L_T}
          v_mul_u32_u24 v{t2}, {T_PITCH}, v{t0}
          v_lshl_add_u32 v{t2}, v{t1}, 3, v{t2}
          v_add_u32 v{vTw}, s{sA}, v{t2}
          v_and_b32 v{t3}, 3, v{lane}
          v_mul_u32_u24 v{t2}, {T_PITCH}, v{t3}
          v_lshrrev_b32 v{t3}, 5, v{lane}
          v_lshl_add_u32 v{t2}, v{t3}, 7, v{t2}
          v_bfe_u32 v{t3}, v{lane}, 2, 3
          v_lshl_add_u32 v{t2}, v{t3}, 3, v{t2}
          v_add_u32 v{vTr}, {L_T}, v{t2}
          v_lshlrev_b32 v{t2}, 9, v{t0}
          v_lshl_add_u32 v{t2}, v{t1}, 4, v{t2}
          v_add_u32 v{vKXr}, {L_KX}, v{t2}""")
    e(f"""s_lshl_b32 s{sA}, s{S_WAVE}, 9
          s_add_u32 s{sA}, s{sA}, {L_OB}
          v_lshrrev_b32 v{t2}, 5, v{lane}
          v_lshlrev_b32 v{t2}, 8, v{t2}
          v_and_b32 v{t3}, 16, v{lane}
          v_add_u32 v{t2}, v{t2}, v{t3}
          v_and_b32 v{t3}, 12, v{lane}
          v_lshl_add_u32 v{t2}, v{t3}, 4, v{t2}
          v_and_b32 v{t3}, 1, v{lane}
          v_lshl_add_u32 v{t2}, v{t3}, 5, v{t2}
          v_add_u32 v{t2}, s{sA}, v{t2}
          v_and_b32 v{t3}, 2, v{lane}
          v_lshlrev_b32 v{tA}, 3, v{t3}
          v_xor_b32 v{t2}, v{t2}, v{tA}
          v_lshlrev_b32 v{t3}, 12, v{t3}
          v_sub_u32 v{vOw}, v{t2}, v{t3}
          s_add_u32 s{sA}, s{sLw}, {L_WL}
          v_add_u32 v{vWL0}, s{sA}, v{vL16}
          v_add_u32 v{vWL1}, 0x10000, v{vWL0}""")
    e(f"""v_and_b32 v{t2}, 1, v{lane}
          v_cmp_ne_u32 vcc, 0, v{t2}
          v_mov_b32 v{t2}, 0x4444
          v_mov_b32 v{t3}, 0xeeee
          v_cndmask_b32 v{vIdx}, v{t2}, v{t3}, vcc
          v_mov_b32 v{t2}, 0x3f80
          v_mov_b32 v{t3}, 0x3f800000
          v_cndmask_b32 v{vSelC}, v{t2}, v{t3}, vcc
          v_lshrrev_b32 v{t2}, 1, v{t1}""")
    for j in range(4):
        e(f"v_cmp_eq_u32 {sr(sSel + 2 * j, 2)}, {j}, v{t2}")
    e(f"""v_lshlrev_b32 v{tA}, 13, v{t0}
          v_lshlrev_b32 v{t2}, 2, v{t0}
          v_xor_b32 v{t2}, v{t2}, v{t1}
          v_lshl_add_u32 v{tA}, v{t2}, 4, v{tA}""")
    e(f"""v_bfe_u32 v{t2}, v{lane}, 2, 1
          v_lshlrev_b32 v{tB}, 12, v{t2}
          v_bfe_u32 v{t2}, v{lane}, 5, 1
          v_lshl_add_u32 v{tB}, v{t2}, 10, v{tB}
          v_bfe_u32 v{t2}, v{lane}, 3, 1
          v_lshl_add_u32 v{tB}, v{t2}, 9, v{tB}
          v_bfe_u32 v{t2}, v{lane}, 4, 1
          v_lshl_add_u32 v{tB}, v{t2}, 8, v{tB}
          v_and_b32 v{t2}, 3, v{lane}
          v_lshl_add_u32 v{tB}, v{t2}, 3, v{tB}
          v_bfe_u32 v{t3}, v{tB}, 8, 2
          v_xor_b32 v{t3}, s{S_WAVE}, v{t3}
          v_lshl_add_u32 v{tB}, v{t3}, 6, v{tB}""")
    e(f"""v_lshrrev_b32 v{t3}, 2, v{lane}
          v_lshlrev_b32 v{tC}, 10, v{t3}
          v_lshl_add_u32 v{tC}, v{t2}, 3, v{tC}
          s_lshl_b32 s{sA}, s{S_WAVE}, 8
          v_add_u32 v{tC}, s{sA}, v{tC}
          v_and_b32 v{t3}, 7, v{t3}
          v_lshl_add_u32 v{tC}, v{t3}, 5, v{tC}""")
    e(f"""s_lshl_b32 s{sA}, s{S_WAVE}, 11
          s_lshl_b32 s{sB}, s{h}, 13
          s_add_u32 s{sPbaseL}, s{sA}, s{sB}
          s_add_u32 s{sPbaseL}, s{sPbaseL}, {WS_P}
          s_lshl_b32 s{sA}, s{S_WAVE}, 16
          s_lshl_b32 s{sB}, s{h}, 6
          s_add_u32 s{sPbaseS}, s{sA}, s{sB}
          s_add_u32 s{sPbaseS}, s{sPbaseS}, {WS_P}
          s_lshl_b32 s{sA}, s{S_EC}, 18
          s_add_u32 s{sPbaseS}, s{sPbaseS}, s{sA}
          s_add_u32 s{sPbaseL}, s{sPbaseL}, s{sA}
          s_lshl_b32 s{sMb}, s{S_EC}, 15
          s_add_u32 s{sMb}, s{sMb}, {WS_M}
          s_cmp_eq_u32 s{S_EC}, 0
          s_cselect_b32 s{sStep}, {NE}, 0""")
    e(f"""s_and_b32 s{sA}, s{S_WAVE}, 1
          s_lshl_b32 s{sMbaseS}, s{sA}, 12
          s_and_b32 s{sA}, s{h}, 24
          s_lshl_b32 s{sA}, s{sA}, 7
          s_add_u32 s{sMbaseS}, s{sMbaseS}, s{sA}
          s_and_b32 s{sA}, s{h}, 1
          s_lshl_b32 s{sA}, s{sA}, 9
          s_add_u32 s{sMbaseS}, s{sMbaseS}, s{sA}
          s_lshr_b32 s{sA}, s{S_WAVE}, 1
          s_lshl_b32 s{sA}, s{sA}, 8
          s_add_u32 s{sMbaseS}, s{sMbaseS}, s{sA}
          s_and_b32 s{sA}, s{h}, 6
          s_lshl_b32 s{sA}, s{sA}, 5
          s_add_u32 s{sMbaseS}, s{sMbaseS}, s{sA}
          s_add_u32 s{sMbaseS}, s{sMbaseS}, s{sMb}""")
    e(f"""s_mul_i32 s{sKV}, s{h}, {64 * UNIT}
          s_lshl_b32 s{sA}, s{S_WAVE}, 11
          s_add_u32 s{sKV}, s{sKV}, s{sA}
          s_add_u32 s{sKV}, s{sKV}, {WS_QKV + 8192}
          s_lshl_b32 s{sExp}, s{h}, 18
          s_lshl_b32 s{sA}, s{S_WAVE}, 10
          s_add_u32 s{sExp}, s{sExp}, s{sA}
          s_add_u32 s{sExp}, s{sExp}, {WS_EXP}
          s_lshl_b32 s{sFl}, s{h}, 8
          s_add_u32 s{sFl}, s{sFl}, {F_QKV}
          s_lshl_b32 s{sFch}, s{h}, 7
          s_lshl_b32 s{sA}, s{S_WAVE}, 2
          s_add_u32 s{sFch}, s{sFch}, s{sA}
          s_add_u32 s{sFch}, s{sFch}, {F_CH}
          s_mov_b32 s{sC}, 0x3e0293ee
          s_lshl_b32 s{sKl}, s{S_WAVE}, 11
          s_add_u32 s{sKl}, s{sKl}, {L_KX}
          s_mul_i32 s{sA}, s{sStep}, {UNIT}
          s_add_u32 s{sKV}, s{sKV}, s{sA}
          s_mov_b32 s{sOK}, 1""")
    e(f"""s_and_b32 s{sA}, s{sStep}, 1
          v_mov_b32 v{VX + 4}, s{sA}
          v_mov_b32 v{VX + 5}, s{sA}
          v_mov_b32 v{VX + 6}, s{sA}
          v_mov_b32 v{VX + 7}, s{sA}
          v_mov_b32 v{VX + 2}, -1
          s_add_u32 s{sB}, s{sMbaseS}, 8192
          buffer_store_dwordx4 {vr(VX + 4, 4)}, v{vL16}, {W}, s{sPbaseL} offen sc1
          buffer_store_dwordx4 {vr(VX + 4, 4)}, v{vL16}, {W}, s{sPbaseL} offen offset:1024 sc1
          buffer_store_dword v{VX + 2}, v{vMst}, {W}, s{sB} offen sc1""")
    if cfg.get('sdiag'):
        e("s_memrealtime s[20:21]\n s_waitcnt lgkmcnt(0)")
    confirm_barrier(e, 'ch')
    if cfg.get('sdiag'):
        e("s_memrealtime s[22:23]\n s_waitcnt lgkmcnt(0)")
    LA = cfg.get('la', 0)
    if LA:
        assert not NE and not cfg.get('sdiag')
        e(f"""v_bfe_u32 v{t2}, v{lane}, 3, 2
              v_lshlrev_b32 v{tD}, 13, v{t2}
              v_and_b32 v{t2}, 7, v{lane}
              v_lshl_add_u32 v{tD}, v{t2}, 7, v{tD}
              s_and_b32 s24, s{h}, 3
              s_lshl_b32 s24, s24, 2
              s_add_u32 s24, s24, s{S_WAVE}
              s_lshl_b32 s24, s24, 15
              s_lshr_b32 s{sA}, s{h}, 2
              s_lshl_b32 s{sA}, s{sA}, 10
              s_add_u32 s24, s24, s{sA}""")
        for r in range(6, 6 + LA):
            ahead(r)
    parked = STREAM[14:16] + STREAM[:10]
    for r in range(32):
        m, x, Q = chunks[r]
        if marks[r] in e.vm:
            e.wait(vm=len(e.vm) - 1 - e.vm.index(marks[r]))
        e.wait(lgkm=0)
        e("s_barrier")
        if cfg.get('sdiag') and r in (0, 8, 16, 24, 31):
            e(f"s_memrealtime {sr({0: 24, 8: 26, 16: 28, 24: 36, 31: 40}[r], 2)}\n s_waitcnt lgkmcnt(0)")
        if r == 6:
            e.comment("publish this wave's piece of mem0 in slot 0 (and arm slot 2)")
            e(f"""v_lshl_or_b32 v{VX}, v{VX + 1}, 16, v{VX}
                  v_min_u32 v{VX}, -2, v{VX}
                  v_cndmask_b32 v{VX}, v{VX}, -1, {sr(sArm, 2)}
                  s_cmp_lg_u32 s{sStep}, 0
                  s_cselect_b32 s{sA}, -1, 0
                  v_or_b32 v{VX}, s{sA}, v{VX}
                  buffer_store_dword v{VX}, v{vMst}, {W}, s{sMbaseS} offen sc1""")
        if r == 12:
            e.comment("every wave's arming stores are complete: count this member as armed")
            e(f"""s_cmp_lg_u32 s{S_WAVE}, 0
                  s_cbranch_scc1 L_cs_in
                  s_sub_u32 s{sA}, s{S_EC}, 1
                  s_and_b32 s{sA}, s{sA}, s{S_XCC}
                  s_mov_b32 s{sB}, 0x10000
                  s_cselect_b32 s{sA}, 0x1010000, s{sB}
                  v_mov_b32 v{t0}, s{sA}
                  s_mov_b64 exec, 1
                  buffer_atomic_add v{t0}, off, {sr(S_DBG, 4)}, 0 offset:{D_INIT}
                  s_mov_b64 exec, -1""")
            e.vm.pop()
            e.label("L_cs_in")
        if r + DD < 32 and r + DD not in marks:
            dma(r + DD)
        if LA and r + 6 + LA < 32:
            ahead(r + 6 + LA)
        if r == 8:
            for op in STREAM[10:14]:
                wl_write(e, op, PARK[op])
            e.wait(lgkm=0)
        if r == cfg.get('r1', 16):
            e(f"buffer_load_dword v{PM + 1}, off, {sr(S_DBG, 4)}, 0 offset:{D_INIT} sc1")
        if r == cfg.get('r2', 23):
            e(f"""v_readfirstlane_b32 s{sNan}, v{PM + 1}
                  buffer_load_dword v{PM + 2}, v{PM + 3}, {W}, s{sFl} offen sc1""")
            e(f"""s_add_u32 m0, s{sLw}, {L_KX + 8192}
                  s_lshr_b32 m0, m0, 1
                  s_add_u32 m0, m0, {(L_KX + 8192) // 2}
                  s_lshl_b32 s{sB}, s{h}, 10
                  s_add_u32 s{sB}, s{sB}, s{sMb}
                  buffer_load_dwordx4 v{vL16}, {W}, s{sPbaseL} offen sc1 lds
                  buffer_load_dwordx4 v{vL16}, {W}, s{sPbaseL} offen offset:1024 sc1 lds
                  buffer_load_dwordx4 v{vL16}, {W}, s{sB} offen sc1 lds""")
        if r == cfg.get('r3', 30):
            e(f"""v_cmp_ne_u32 {sr(sFm, 2)}, 0, v{PM + 2}
                  s_lshr_b32 s{sOK}, s{sFm}, s{sStep}
                  s_and_b32 s{sOK}, s{sOK}, 3
                  s_cmp_eq_u32 s{sOK}, 3
                  s_cselect_b32 s{sOK}, 1, 0
                  s_and_b32 s{sA}, s{sNan}, 0xffffff
                  s_cmp_eq_u32 s{sA}, {ARMED}
                  s_cselect_b32 s{sOK}, s{sOK}, 0""")
            kx_dma(e, L_KX)
            e(f"""s_add_u32 m0, m0, 8192
                  s_add_u32 s{sA}, s{sKV}, 8192
                  buffer_load_dwordx4 v{vL16}, {W}, s{sA} offen sc1 lds
                  buffer_load_dwordx4 v{vL16}, {W}, s{sA} offen offset:1024 sc1 lds""")
        if r == cfg.get('rt', 27):
            e.comment("the last exports are recognised by their data: fill their slots with a pattern no export holds")
            for j in range(4):
                e(f"v_mov_b32 v{VX + j}, {SENT1}")
            for sg in range(64 - NTAIL, 64):
                e(f"s_add_u32 s{sA}, s{sExp}, {sg * 4096}\n buffer_store_dwordx4 {vr(VX, 4)}, v{vL16}, {W}, s{sA} offen sc1")
        if r == 29:
            e(f"buffer_load_dword v{VX + 7}, v{PM + 3}, {W}, s{sFl} offen sc1")
        if r >= 26:
            for op in parked[2 * (r - 26):2 * (r - 26) + 2]:
                wl_write(e, op, PARK[op])
        e(f"v_add_u32 v{t1}, {ring[r % 7]}, v{tC if m == 'o' else tB}")
        if m == 'o':
            for t in range(8):
                op = ('o', t, x)
                kind, base = RES[op] if op in RES else ('v', PARK[op])
                e(f"v_xor_b32 v{t3}, {t * 32}, v{t1}\n ds_read_b64_tr_b16 {vr(base + 2 * Q, 2, kind)}, v{t3}")
        else:
            for w in range(1, 4):
                e(f"s_cmp_eq_u32 s{S_WAVE}, {w}\n s_cbranch_scc1 L_cs{r}_{w}")
            st0 = e.state()
            for w in range(4):
                if w:
                    e.label(f"L_cs{r}_{w}"); e.set_state(st0)
                for ft in range(2):
                    op = (m, ft, 2 * ((x & 3) ^ w) + (x >> 2))
                    kind, base = RES[op] if op in RES else ('v', PARK[op])
                    for Q in range(4):
                        e(f"ds_read_b64_tr_b16 {vr(base + 2 * Q, 2, kind)}, v{t1} offset:{(32 * (Q & 1) + 8 * (Q >> 1)) * 256 + ft * 32}")
                if w < 3:
                    e(f"s_branch L_cs{r}_e")
            e.label(f"L_cs{r}_e")
    e.wait(lgkm=0)
    if cfg.get('sdiag'):
        e(f"""s_lshl_b32 s{sA}, s{S_ROLE}, 2
              s_add_u32 s{sA}, s{sA}, s{S_WAVE}
              s_lshl_b32 s{sA}, s{sA}, 6
              s_add_u32 s{sA}, s{sA}, 0x6400000""")
        for n, r in enumerate([94, 20, 22, 24, 26, 28, 36, 40, sOK]):
            e(f"v_mov_b32 v{PM}, s{r}\n buffer_store_dword v{PM}, off, {W}, s{sA} offset:{4 * n}")
    if cfg.get('diag'):
        e("s_memrealtime s[82:83]\n s_waitcnt lgkmcnt(0)")
    e(f"""s_cmp_lg_u32 s{sOK}, 0
          s_cbranch_scc1 L_cs_ready
          s_and_b32 s{sA}, s{sNan}, 0xffffff
          s_cmp_eq_u32 s{sA}, {ARMED}
          s_cbranch_scc1 L_cs_p3
          L_cs_p1:
          s_sleep {cfg.get('sp1', 8)}
          buffer_load_dword v{t0}, off, {sr(S_DBG, 4)}, 0 offset:{D_INIT} sc1
          s_sub_u32 s{S_SPIN}, s{S_SPIN}, 1
          s_cbranch_scc1 L_end
          v_readfirstlane_b32 s{sNan}, v{t0}
          s_and_b32 s{sA}, s{sNan}, 0xffffff
          s_cmp_eq_u32 s{sA}, {ARMED}
          s_cbranch_scc0 L_cs_p1
          {'s_memrealtime s[80:81]' if cfg.get('diag') else ''}
          L_cs_p2:
          s_sleep {cfg.get('sp2', 4)}
          buffer_load_dword v{VX + 7}, v{PM + 3}, {W}, s{sFl} offen sc1
          s_sub_u32 s{S_SPIN}, s{S_SPIN}, 1
          s_cbranch_scc1 L_end
          L_cs_p3:
          s_waitcnt vmcnt(0)
          v_cmp_ne_u32 {sr(sFm, 2)}, 0, v{VX + 7}
          s_lshr_b32 s{sA}, s{sFm}, s{sStep}
          s_and_b32 s{sA}, s{sA}, 3
          s_cmp_eq_u32 s{sA}, 3
          s_cbranch_scc0 L_cs_p2""")
    kx_dma(e, L_KX)
    e.label("L_cs_ready")
    e(f"""v_mov_b32 v{PM + 1}, 0
          v_mov_b32 v{PM + 2}, 0
          s_add_u32 s{sF1}, s{sStep}, 1
          s_cmp_eq_u32 s{S_EC}, 0
          s_cselect_b32 s{sEnd}, 255, {NE}
          s_lshl_b32 s{sA}, s{sStep}, 12
          s_add_u32 s{sExp}, s{sExp}, s{sA}
          s_and_b32 s{sA}, s{sStep}, 2
          s_lshl_b32 s{sA}, s{sA}, 13
          v_xor_b32 v{vMst}, s{sA}, v{vMst}
          s_mov_b32 s{sTog}, 0""")
    e("\n".join(scalar_lines() + prep_a_lines()))
    for b in range(2):
        e(mload(b))
    if cfg.get('se', 0):
        e(mspare())
    e("\n".join(prep_b_lines()))
    dbg_max(e, cfg, 11, v=PM, mask=1)
    if cfg.get('pdbg'):
        e(f"""s_memrealtime s[92:93]
              s_cmp_lg_u32 s{S_ROLE}, 5
              s_cbranch_scc1 L_pd
              s_cmp_lg_u32 s{S_WAVE}, 1
              s_cbranch_scc1 L_pd
              s_waitcnt lgkmcnt(0)""")
        for n, r in enumerate([90, 88, 82, 92]):
            e(f"s_sub_u32 s{sA}, s{r}, s94\n v_mov_b32 v{PM}, s{sA}\n buffer_store_dword v{PM}, off, {sr(S_DBG, 4)}, 0 offset:{36 + 4 * n}")
        e(f"v_mov_b32 v{PM}, s{sOK}\n buffer_store_dword v{PM}, off, {sr(S_DBG, 4)}, 0 offset:52\n L_pd:")
    if cfg.get('holdto'):
        e(f"""L_hold:
              s_memrealtime s[92:93]
              s_waitcnt lgkmcnt(0)
              s_sub_u32 s92, s92, s94
              s_cmp_lt_u32 s92, {cfg['holdto']}
              s_cbranch_scc1 L_hold""")
    e("s_waitcnt vmcnt(0) lgkmcnt(0)\n s_barrier")
    if cfg.get('diag'):
        e.raw(f"  s_memtime {sr(sDbgT + 6, 2)}\n  s_memrealtime {sr(sDbgT + 10, 2)}\n  s_mov_b32 s{sDbgT + 5}, 0\n  s_mov_b32 s12, 0\n  s_mov_b32 s13, 0\n  s_mov_b32 s14, 0\n  s_mov_b32 s15, 0\n  s_waitcnt lgkmcnt(0)")
    e(f"""s_lshr_b32 s{sA}, s{sNan}, 24
          s_mov_b32 s{sNan}, 0
          s_or_b32 s{sA}, s{sA}, s{S_EC}
          s_cbranch_scc1 L_{ent}_s""")
    e(f"s_branch L_{ent}_s" if cfg.get('force_slow') else f"s_branch L_{ent}_f")


def chain_loop(e, cfg, sfx, st):
    acc = {('q', 0): ACC, ('q', 1): ACC + 4, ('k', 0): ACC + 8, ('k', 1): ACC + 12, ('v', 0): ACC + 16, ('v', 1): ACC + 20}
    loc = dict(RES)
    for o in range(10):
        loc[STREAM[o]] = ('v', R1[o])
    for o in range(6):
        loc[STREAM[10 + o]] = ('v', WO_SB[o])
    diag = cfg.get('diag')

    def stamp(n):
        tr = cfg.get('trace')
        if tr and n in tr and sfx == 'f':
            e.raw(f"  s_memtime {sr(TRS[tr.index(n)], 2)}")

    def trace_out(where, TR):
        if cfg.get('trace') and cfg.get('tpos', 'mid') == where and sfx == 'f':
            e(f"""s_memtime s[32:33]
                  s_memrealtime s[34:35]
                  s_lshl_b32 s40, s{S_ROLE}, 2
                  s_add_u32 s40, s40, s{S_WAVE}
                  s_lshl_b32 s40, s40, 6
                  s_add_u32 s40, s40, s{sStep}
                  s_lshl_b32 s40, s40, 5
                  s_add_u32 s40, s40, 0x6200000
                  s_waitcnt lgkmcnt(0)""")
            for j in range(8):
                e(f"v_mov_b32 v{TR + j}, s{TRS[j]}")
            e(f"""s_mov_b64 exec, 1
                  buffer_store_dwordx4 {vr(TR, 4)}, off, {W}, s40
                  buffer_store_dwordx4 {vr(TR + 4, 4)}, off, {W}, s40 offset:16
                  s_mov_b64 exec, -1""")

    def P(m, ft, i):
        k, b = loc[(m, ft, i)]
        return f"v_smfmac_f32_16x16x64_bf16 {vr(acc[(m, ft)], 4)}, {vr(MA + 4 * i, 4)}, {vr(b, 8, k)}, v{vIdx}"

    def post(a, dst):
        return [f"v_add_f32 v{a}, v{a}, v{a + 1}", f"v_add_f32 v{a + 2}, v{a + 2}, v{a + 3}",
                f"v_cvt_pk_bf16_f32 v{dst}, v{a}, v{a + 2}"]

    def xread(kb):
        return [f"ds_read_b64_tr_b16 {vr(X + 4 * kb, 2)}, v{vTr} offset:{kb * 256}",
                f"ds_read_b64_tr_b16 {vr(X + 4 * kb + 2, 2)}, v{vTr} offset:{kb * 256 + 64}"]

    kx_dst = [KXR, SPARE, KXR + 4, SPARE + 4, KXR + 8, KXR, KXR + 12, KXR + 4]

    def kxread(n):
        return f"ds_read_b128 {vr(kx_dst[n], 4)}, v{vKXr} offset:{(n >> 1) * 2048 + (n & 1) * 256}"

    Sx = [ACC, ACC + 4]
    Sm, Px = ACC + 8, ACC + 12

    def smx(n):
        kb, t = n >> 1, n & 1
        c = '0' if kb == 0 else vr(Sx[t], 4)
        return f"v_mfma_f32_16x16x32_bf16 {vr(Sx[t], 4)}, {vr(kx_dst[n], 4)}, {vr(X + 4 * kb, 4)}, {c}"

    def smm(kb):
        c = '0' if kb == 0 else vr(Sm, 4)
        return f"v_mfma_f32_16x16x32_bf16 {vr(Sm, 4)}, {vr(X + 4 * kb, 4)}, {vr(X + 4 * kb, 4)}, {c}"

    ad = 0
    ldH = lambda k: (lambda: e.loose(f"buffer_load_dword v{HD + k}, v{HA}, {W}, s{sHl} offen sc1"))
    ldV = [f"buffer_load_dwordx4 {vr(VX, 4)}, v{vKXr}, {W}, s{sVx} offen sc1",
           f"buffer_load_dwordx4 {vr(VX + 4, 4)}, v{vKXr}, {W}, s{sVx} offen offset:256 sc1"]
    ldK = [f"buffer_load_dwordx4 v{vL16}, {W}, s{sKV} offen sc1 lds",
           f"buffer_load_dwordx4 v{vL16}, {W}, s{sKV} offen offset:1024 sc1 lds"]
    touch = f"buffer_load_dword v{PM + 3}, {W}, s{sVt} offen sc1 lds"
    export = f"buffer_store_dwordx4 {vr(EX, 4)}, v{vL16}, {W}, s{sExp} offen sc1"
    progress = f"s_mov_b64 exec, 1\n buffer_store_dword v{TMP}, off, {W}, s{sFch} sc1\n s_mov_b64 exec, -1"
    ldF = f"buffer_load_dword v{TMP + 3}, v{TMP + 3}, {W}, s{sFl} offen sc1"
    if cfg.get('noexp'):
        export, progress = "s_nop 0 ; x", "s_nop 0 ; p"
    if cfg.get('noprog'):
        progress = "s_nop 0 ; p"
    if cfg.get('noflag'):
        ldF = f"v_mov_b32 v{TMP + 3}, 1"
    rf = sum([wl_lines(STREAM[o], R1[o]) for o in range(8, 10)], [])
    wo = sum([wl_lines(STREAM[10 + o], WO_SB[o]) for o in range(6)], [])
    q0p, q1p, k0p, k1p = post(ACC, ACC + 1), post(ACC + 4, ACC + 5), post(ACC + 8, EX), post(ACC + 12, EX + 1)
    v0p, v1p = post(ACC + 16, EX + 2), post(ACC + 20, EX + 3)
    m0, m1 = TMP, TMP + 1
    C0 = PM
    zero = [f"v_mov_b64 {vr(MA + j, 2)}, 0" for j in range(0, 32, 2)]
    st_ = lambda n: (lambda: stamp(n))
    mx = lambda d, a, b, c_: f"v_max3_f32 v{d}, v{a}, v{b}, v{c_}"

    def check(blocks):
        r = [MA + 4 * b + j for b in blocks for j in range(4)]
        out = [f"v_max3_u32 v{C0}, v{r[0]}, v{r[1]}, v{r[2]}"]
        k = 3
        while k + 1 < len(r):
            out.append(f"v_max3_u32 v{C0}, v{C0}, v{r[k]}, v{r[k + 1]}"); k += 2
        out.append(f"v_max_u32 v{C0}, v{C0}, v{r[k]}")
        out.append(f"v_cmp_eq_u32 vcc, -1, v{C0}")
        return out

    def mread(i):
        return f"ds_read_b128 {vr(MA + 4 * i, 4)}, v{TMP + (i >> 1)} offset:{(i & 1) * 4096}"

    e.slot_no = 0
    e.slot_hook = lambda n: stamp(100 + n)
    e.forget()
    e.raw(".p2align 8\n" + "  s_nop 0\n" * cfg.get('ph', 8))
    e.label(f"L_step_{sfx}")
    ic = cfg.get('ic', 0)
    e3 = cfg.get('e3', 0) if ic else 0
    if not ic:
        e("s_waitcnt vmcnt(2)")
    e.label(f"L_chkE_{sfx}")
    xe = 0
    vl = cfg.get('vl', (7, 10))
    nvl = sum(1 for n in vl if n > 5) if vl else 0
    assert not vl or all(n < 3 or n > 5 for n in vl)
    nvl += cfg.get('l2', 0) == 9
    so = cfg.get('so', 1)
    xr = xread(0) + xread(1) + xread(2) + xread(3)
    ba, bb, bc = cfg.get('ba', 0), cfg.get('bb', 1), cfg.get('bc', 1)
    xo = cfg.get('xo', 0)
    lastsp = cfg.get('lastsp', 1)
    spec = cfg.get('se', 0)
    ce_ = check((0,))
    specb = []
    wrE = f"ds_write_b128 v{vMw}, {vr(MA, 4)}"
    if ic:
        e.lgkm = [parse(wrE)]
    elif spec:
        e(f"ds_write_b128 v{vMw}, {vr(MA, 4)}\n L_okE_{sfx}:")
    else:
        e("\n".join(ce_))
        e(f"""ds_write_b128 v{vMw}, {vr(MA, 4)}
              s_cbranch_vccnz L_retE_{sfx}
              L_okE_{sfx}:""")
    stamp(0)
    cl_ = check((1,))
    z = lambda: zero.pop(0)
    lw = lambda n: (lambda: e.wait(lgkm=n))
    seq = [
        (P('q', 0, 0), [] if ic or cfg.get('l2', 0) else [lambda: e.loose(mload(1)), f"L_okE2_{sfx}:"] + ([ce_[0]] if spec else [])),
        (P('q', 1, 0), [ldV[1], ce_[1], ce_[2]] if spec else [ldV[0]] + ([lambda: e.loose(mload(1))] if cfg.get('l2', 0) == 1 else [])),
        (P('k', 0, 0), ([lambda: e.loose(mload(1))] if cfg.get('l2', 0) == 2 else []) + [f"s_cbranch_vccnz L_retE_{sfx}" if spec else ldV[1], e.barrier, mread(2), mread(4)]),
        (P('k', 1, 0), [mread(6), f"s_waitcnt vmcnt({3 - spec + e3 - nvl})", cl_[0]]),
        (P('v', 0, 0), [e.barrier, cl_[1]] if ba == 1 else [cl_[1]]),
        (P('v', 1, 0), [cl_[2], f"ds_write_b128 v{vMw}, {vr(MA + 4, 4)} offset:4096", f"s_cbranch_vccnz L_retL_{sfx}", f"L_okL_{sfx}:"]),
        (P('q', 0, 1), [st_(1)] + ([mread(2), mread(4)] if ba == 1 else [lw(1), "s_barrier"] if ba == 2 else [])),
        (P('q', 1, 1), [ldV[0]] if spec else []),
        (P('k', 0, 1), [mread(6), rf[0]] if ba == 2 else [rf[0]]),
        (P('k', 1, 1), [rf[1]] + ([] if ba else [lw(3)])),
        (P('q', 0, 2), [rf[2]]),
        (P('q', 1, 2), [e.lds_writes_done]),
        (P('k', 0, 2), [e.barrier] if bb else [e.barrier, ldK[0], mread(3)]),
        (P('k', 1, 2), [ldK[0], mread(3)] if bb else [mread(5)]),
        (P('q', 0, 4), [mread(5)] if bb else [mread(7), f"v_lshrrev_b32 v{TMP + 3}, 2, v{vL16}"]),
        (P('q', 1, 4), [mread(7), f"v_lshrrev_b32 v{TMP + 3}, 2, v{vL16}"] if bb else [ldK[1], f"s_movk_i32 m0, {L_DUMMY}"]),
        (P('k', 0, 4), [ldK[1], f"s_movk_i32 m0, {L_DUMMY}"] if bb else [rf[3]]),
        (P('k', 1, 4), [rf[3]] if bb else [touch]),
        (P('q', 0, 6), [kxread(0)] + ([touch] if bb else [])),
        (P('q', 1, 6), [kxread(2), ldF]),
        (P('k', 0, 6), ([] if xo else [export]) + [lambda: trace_out('mid', SPARE)]),
        (P('k', 1, 6), [kxread(4), st_(2), lw(3)]),
        (P('q', 0, 3), [kxread(6)]),
        (P('q', 0, 5), [kxread(1)]),
        (P('q', 0, 7), [kxread(3)]),
        (P('q', 1, 3), [lambda: e(f"s_waitcnt vmcnt({len(e.vm) - [x.text for x in e.vm].index(ldK[0])})"), "s_nop 0"]),
        (P('q', 1, 5), ["s_nop 1"] if xo else [progress]),
        (P('q', 1, 7), ["s_nop 0", q0p[0]]),
        (P('k', 0, 3), ["s_nop 0", q0p[1]]),
        (P('k', 0, 5), ["s_nop 0", q0p[2]]),
        (P('k', 0, 7), [q1p[0]]),
        (P('k', 1, 3), ["s_nop 0", q1p[1]]),
        (P('k', 1, 5), ["s_nop 0", q1p[2]]),
        (P('k', 1, 7), [f"ds_write2_b32 v{vTw}, v{ACC + 1}, v{ACC + 5} offset0:0 offset1:32", st_(3), k0p[0]]),
        (P('v', 0, 1), ["s_nop 0", k0p[1]]),
        (P('v', 1, 1), ["s_nop 0", k0p[2], k1p[0]]),
        (P('v', 0, 2), [k1p[1], k1p[2]]),
        (P('v', 1, 2), [f"ds_write2_b32 v{vTw}, v{EX}, v{EX + 1} offset0:1 offset1:33", z()]),
        (P('v', 0, 3), [z()]),
        (P('v', 1, 3), [z()]),
        (P('v', 0, 4), [z()]),
        (P('v', 1, 4), [e.lds_writes_done, z()]),
    ] + ([
        (P('v', 0, 5), [e.barrier]),
        (P('v', 1, 5), xread(0) + [z()]),
        (P('v', 0, 6), [xr[2], z()]),
        (P('v', 0, 7), [xr[3], z()]),
        (P('v', 1, 6), [xr[4], z()]),
        (P('v', 1, 7), [xr[5], st_(4), lw(4), z()]),
        (smx(0), [xr[6], z()]),
        (smx(1), [xr[7], z()]),
        (smm(0), [lw(4), v0p[0]]),
        (smx(2), [kxread(5), v0p[1]]),
        (smx(3), [kxread(7), v0p[2]]),
        (smm(1), [lw(2), v1p[0]]),
        (smx(4), [v1p[1], v1p[2]]),
        (smx(6), [z(), z()]),
        (smm(2), [z(), z()]),
        (smm(3), [lw(0)] + ([f"v_exp_f32 v{m1}, v{vIdx}"] if cfg.get('warm', 0) == 1 else ["s_nop 1"])),
        (smx(5), [mx(m0, Sx[0], Sx[0] + 1, Sx[0] + 2)]),
    ] if so else [
        (P('v', 0, 5), [e.barrier] + ([] if bc else xread(0))),
        (P('v', 1, 5), xread(1 - bc) + [z()]),
        (P('v', 0, 6), xread(2 - bc) + [z()]),
        (P('v', 0, 7), xread(3 - bc) + [z()]),
        (P('v', 1, 6), (xread(3) if bc else []) + ([] if lastsp else [f"s_cmp_eq_u32 s{sStep}, 63"]) + [z()]),
        (P('v', 1, 7), [st_(4), lw(6 if bc else 4), z()]),
        (smx(0), [z(), z()]),
        (smx(2), [kxread(5), lw(1)]),
        (smx(4), [kxread(7), v0p[0]]),
        (smx(6), [v0p[1], v0p[2]]),
        (smm(0), [v1p[0], v1p[1]]),
        (smm(1), [v1p[2], z()]),
        (smm(2), ([] if lastsp else ["s_cbranch_scc1 L_final"]) + [mx(m0, Sx[0], Sx[0] + 1, Sx[0] + 2)]),
        (smm(3), [z(), z()]),
        (smx(1), [lw(0), z()]),
        (smx(3), [f"v_exp_f32 v{m1}, v{vIdx}"] if cfg.get('warm', 0) == 1 else []),
        (smx(5), [mx(m0, m0, Sx[0] + 3, Sm + 2), f"v_max_f32 v{m0}, v{m0}, v{Sm + 3}"]),
    ]) + [
        (smx(7), [wo[0], f"s_add_u32 s{sStep}, s{sStep}, 1", wo[1], f"s_xor_b32 s{sTog}, s{sTog}, 0x2000", wo[2],
                  f"s_mov_b32 s{sG}, s{sG2}", wo[3], f"v_xor_b32 v{vKXr}, 0x2000, v{vKXr}"] if not so else
         [wo[0], f"s_add_u32 s{sStep}, s{sStep}, 1", wo[1], f"s_mov_b32 s{sG}, s{sG2}", wo[2], wo[3],
          mx(m0, m0, Sx[0] + 3, Sm + 2), f"v_max_f32 v{m0}, v{m0}, v{Sm + 3}"]),
    ]
    if cfg.get('eo'):
        lc = cfg['eo']
        first = [(m, ft, 0) for m in 'qkv' for ft in range(2)] + [(m, ft, i) for i in (2, 4, 6, 1) for m in 'qk' for ft in range(2)]
        f = {n: [] for n in range(22)}
        f[cfg.get('sl2', 0)] += [lambda: e.loose(mload(1)), f"L_okE2_{sfx}:"]
        f[2] += [e.barrier, mread(2), mread(4)]
        f[3] += [mread(6)]
        f[lc] += ["s_waitcnt vmcnt(1)", cl_[0]]
        f[lc + 1] += [cl_[1]]
        f[lc + 2] += [cl_[2], f"ds_write_b128 v{vMw}, {vr(MA + 4, 4)} offset:4096", f"s_cbranch_vccnz L_retL_{sfx}", f"L_okL_{sfx}:", st_(1)]
        for k, n in enumerate((4, 5, 10, 11)):
            f[n].insert(0, rf[k])
        bq = lc + 9
        f[bq - 1] += [e.lds_writes_done]
        f[bq] += [e.barrier]
        f[bq + 1] += [ldK[0], mread(3)]
        f[bq + 2] += [mread(5)]
        f[bq + 3] += [mread(7), f"v_lshrrev_b32 v{TMP + 3}, 2, v{vL16}"]
        f[12] += [kxread(0)]; f[13] += [kxread(2)]; f[21] += [kxread(4)]
        seq = [(P(*op), f[n]) for n, op in enumerate(first)] + seq[22:]
        assert all(n > lc + 2 for n in vl)
    if vl:
        seq = [(m, [x for x in fl if x not in ldV]) for m, fl in seq]
        for x, n in zip(ldV, vl):
            seq[n] = (seq[n][0], [x] + seq[n][1])
    if cfg.get('k0'):
        seq = [(m, [x for x in fl if x != ldK[0]]) for m, fl in seq]
        seq[cfg['k0']] = (seq[cfg['k0']][0], seq[cfg['k0']][1] + [ldK[0]])
    vp = cfg.get('vp', (17, 20, 26, 23, 29))
    if vp:
        mv = [[ldK[1], f"s_movk_i32 m0, {L_DUMMY}"], [touch], [ldF], [export], [progress]]
        seq = [(m, [x for x in fl if not any(x is y or x == y for g in mv for y in g)]) for m, fl in seq]
        for g, n in zip(mv, vp):
            seq[n] = (seq[n][0], g + [x for x in seq[n][1] if x != "s_nop 0"])
    e.slots(seq)
    assert not zero
    e(f"""{mx(m0, m0, Sx[1], Sx[1] + 1)}
          {mx(m0, m0, Sx[1] + 2, Sx[1] + 3)}
          v_mov_b32 v{m1}, v{m0}
          {f's_xor_b32 s{sTog}, s{sTog}, 0x2000' if so else ''}
          {f'v_xor_b32 v{vKXr}, 0x2000, v{vKXr}' if so else ''}
          v_permlane32_swap_b32 v{m0}, v{m1}
          v_max_f32 v{m0}, v{m0}, v{m1}
          v_mov_b32 v{m1}, v{m0}
          {wo[4] if cfg.get('wr', 0) else ''}
          {wo[5] if cfg.get('wr', 0) else ''}
          v_permlane16_swap_b32 v{m0}, v{m1}
          v_max_f32 v{m0}, v{m0}, v{m1}
          v_mul_f32 v{m0}, s{sC}, v{m0}""")
    for j in (0, 2, 4, 6, 10):
        e(f"v_pk_fma_f32 {vr(ACC + j, 2)}, {vr(ACC + j, 2)}, {sr(sC, 2)}, {vr(m0, 2)} op_sel_hi:[1,0,0] neg_lo:[0,0,1] neg_hi:[0,0,1]")
    O = SPARE
    OA = ACC + 16
    wr = cfg.get('wr', 0)
    if cfg.get('pv', 0):
        ex = lambda j: f"v_exp_f32 v{ACC + j}, v{ACC + j}"
        e(f"""{ex(10)}
              {ex(11)}
              {ex(0)}
              v_cvt_pk_bf16_f32 v{PM}, v{Sm + 2}, v{Sm + 3}
              v_cvt_pk_bf16_f32 v{PM + 3}, v{Sm + 2}, v{Sm + 3}
              {ex(1)}
              v_mfma_f32_16x16x16_bf16 {vr(O, 4)}, {vr(EX + 2, 2)}, {vr(PM, 2)}, 0
              {wo[6] if wr else ''}
              {ex(2)}
              v_mfma_f32_16x16x16_bf16 {vr(O + 4, 4)}, {vr(EX + 2, 2)}, {vr(PM + 2, 2)}, 0
              {wo[7] if wr else ''}""")
        for j in range(3, 8):
            e(ex(j))
        stamp(5)
        cv = [f"v_cvt_pk_bf16_f32 v{Px + j}, v{ACC + 2 * j}, v{ACC + 2 * j + 1}" for j in range(4)]
        e(f"""{cv[0]}
              {cv[1]}
              {cv[2]}
              {cv[3]}
              v_pk_add_f32 {vr(ACC, 2)}, {vr(ACC, 2)}, {vr(ACC + 2, 2)}
              v_pk_add_f32 {vr(ACC + 4, 2)}, {vr(ACC + 4, 2)}, {vr(ACC + 6, 2)}
              v_pk_add_f32 {vr(ACC, 2)}, {vr(ACC, 2)}, {vr(Sm + 2, 2)}
              v_pk_add_f32 {vr(m0, 2)}, {vr(ACC, 2)}, {vr(ACC + 4, 2)}
              v_mfma_f32_16x16x32_bf16 {vr(O, 4)}, {vr(VX, 4)}, {vr(Px, 4)}, {vr(O, 4)}
              v_add_f32 v{m0}, v{m0}, v{m1}
              v_mov_b32 v{m1}, v{m0}
              v_mfma_f32_16x16x32_bf16 {vr(O + 4, 4)}, {vr(VX + 4, 4)}, {vr(Px, 4)}, {vr(O + 4, 4)}
              v_permlane32_swap_b32 v{m0}, v{m1}
              v_add_f32 v{m0}, v{m0}, v{m1}
              v_mov_b32 v{m1}, v{m0}
              v_permlane16_swap_b32 v{m0}, v{m1}
              v_add_f32 v{m0}, v{m0}, v{m1}
              v_rcp_f32 v{m0}, v{m0}""")
        for j in range(0, 8, 2):
            e(f"v_pk_mul_f32 {vr(O + j, 2)}, {vr(O + j, 2)}, {vr(m0, 2)} op_sel_hi:[1,0]")
        for j in range(4):
            e(f"v_cvt_pk_bf16_f32 v{O + j}, v{O + 2 * j}, v{O + 2 * j + 1}")
        e.slot_no += 4
    else:
        if wr:
            e(wo[6]); e(wo[7])
        for j in (0, 1, 2, 3, 4, 5, 6, 7, 10, 11):
            e(f"v_exp_f32 v{ACC + j}, v{ACC + j}")
        stamp(5)
        for j in range(4):
            e(f"v_cvt_pk_bf16_f32 v{Px + j}, v{ACC + 2 * j}, v{ACC + 2 * j + 1}")
        e(f"""v_cvt_pk_bf16_f32 v{PM}, v{Sm + 2}, v{Sm + 3}
              v_cvt_pk_bf16_f32 v{PM + 3}, v{Sm + 2}, v{Sm + 3}
              v_pk_add_f32 {vr(ACC, 2)}, {vr(ACC, 2)}, {vr(ACC + 2, 2)}
              v_pk_add_f32 {vr(ACC + 4, 2)}, {vr(ACC + 4, 2)}, {vr(ACC + 6, 2)}
              v_pk_add_f32 {vr(ACC, 2)}, {vr(ACC, 2)}, {vr(Sm + 2, 2)}
              v_pk_add_f32 {vr(m0, 2)}, {vr(ACC, 2)}, {vr(ACC + 4, 2)}""")
        O = SPARE
        e.slots([
            (f"v_mfma_f32_16x16x32_bf16 {vr(O, 4)}, {vr(VX, 4)}, {vr(Px, 4)}, 0",
             [f"v_add_f32 v{m0}, v{m0}, v{m1}", f"v_mov_b32 v{m1}, v{m0}"]),
            (f"v_mfma_f32_16x16x32_bf16 {vr(O + 4, 4)}, {vr(VX + 4, 4)}, {vr(Px, 4)}, 0",
             [f"v_permlane32_swap_b32 v{m0}, v{m1}"]),
            (f"v_mfma_f32_16x16x16_bf16 {vr(O, 4)}, {vr(EX + 2, 2)}, {vr(PM, 2)}, {vr(O, 4)}",
             [f"v_add_f32 v{m0}, v{m0}, v{m1}", f"v_mov_b32 v{m1}, v{m0}"]),
            (f"v_mfma_f32_16x16x16_bf16 {vr(O + 4, 4)}, {vr(EX + 2, 2)}, {vr(PM + 2, 2)}, {vr(O + 4, 4)}",
             [f"v_permlane16_swap_b32 v{m0}, v{m1}", f"v_add_f32 v{m0}, v{m0}, v{m1}", f"v_rcp_f32 v{m0}, v{m0}",
              ] + ([f"v_mov_b32 v{HV}, s{sStep}", f"v_lshlrev_b32 v{HS}, 3, v{vL16}"] if ad else [])),
        ])
        ow = cfg.get('ow', 0)
        pm = [f"v_pk_mul_f32 {vr(O + j, 2)}, {vr(O + j, 2)}, {vr(m0, 2)} op_sel_hi:[1,0]" for j in range(0, 8, 2)]
        cv = [f"v_cvt_pk_bf16_f32 v{O + j}, v{O + 2 * j}, v{O + 2 * j + 1}" for j in range(4)]
        if ow == 0:
            e("\n".join(pm + cv))
        else:
            e("\n".join(pm[:2] + cv[:2] + ([f"ds_write_b64 v{vOw}, {vr(O, 2)}"] if ow == 2 else []) + pm[2:] + cv[2:]))
    e(f"ds_write_b64 v{vOw}, {vr(O + 2, 2)} offset:8" if cfg.get('ow', 0) == 2 else f"ds_write_b128 v{vOw}, {vr(O, 4)}")
    if wr == 2:
        e("\n".join(wo[8:12]))
    if xo:
        e(export)
        e(f"v_mov_b32 v{TMP + 2}, s{sProg}")
        e(progress.replace(f"v{TMP},", f"v{TMP + 2},"))
    if ad:
        e.comment("progress marker for 8 members per wave (timing hint only)")
        e(f"""s_mov_b64 exec, 0xff
              buffer_store_dword v{HV}, v{HS}, {W}, s{sHs} offen {st}
              s_mov_b64 exec, -1
              v_bfe_u32 v{HA}, v{vL16}, 2, 7
              v_mov_b64 {vr(HD, 2)}, 0
              v_mov_b64 {vr(HD + 2, 2)}, 0""")
        stamp(15)
    e.barrier()
    e(f"""ds_read_b128 {vr(OA, 4)}, v{vL16} offset:{L_OB}
          ds_read_b128 {vr(OA + 4, 4)}, v{vL16} offset:{L_OB + 1024}""")
    hs = cfg.get('hs', (-1, 0, 3, 6))
    if ad and hs[0] == -1:
        ldH(0)()
    stamp(6)
    OUT = SPARE

    def pstore(c):
        return f"buffer_store_dwordx4 {vr(OUT + 4 * c, 4)}, v{vPst}, {W}, s{sPbaseS} offen offset:{c * 2048} {st}"

    tag = lambda j: f"v_and_or_b32 v{OUT + j}, v{OUT + j}, -2, s{sG}"
    seq = []
    for t in range(8):
        for kb in range(2):
            k, b = loc[('o', t, kb)]
            if t >= 2:
                p = post(MA + 4 * (t - 2), OUT + t - 2)
                fl = p[0:1] if kb == 0 else p[1:3]
                if kb == 0 and t % 2 == 1:
                    fl = fl + [tag(t - 3)]
            else:
                fl = ["s_nop 0"]
            n = 2 * t + kb
            if 1 <= n <= 8 and not wr:
                fl = [wo[3 + n]] + fl
            if 1 <= n <= 4 and wr == 1:
                fl = [wo[7 + n]] + fl
            if n < 4 and wr == 2:
                fl = ["s_nop 1"]
            if n == 12 and cfg.get('mw', 0):
                fl = [lw(0)] + fl
            if n == 8 and wr == 1:
                fl = [lw(0)] + fl
            if ad and n in hs:
                fl = [ldH(hs.index(n))] + [x for x in fl if x != "s_nop 0"]
            if kb == 0 and t == 6:
                fl = [pstore(0)] + fl
            seq.append((f"v_smfmac_f32_16x16x64_bf16 {vr(MA + 4 * t, 4)}, {vr(OA + 4 * kb, 4)}, {vr(b, 8, k)}, v{vIdx}", fl))
    if cfg.get('wd', 0):
        seq[1], seq[2] = (seq[2][0], seq[1][1]), (seq[1][0], seq[2][1] + ["s_nop 0"])
        seq[3] = (seq[3][0], seq[3][1] + ["s_nop 0"])
    e.slots(seq)
    PL, D, SEL, PL2 = MA + 8, MA + 16, MA + 20, MA + 24
    e("\n".join(post(MA + 24, OUT + 6) + [tag(6)]))
    e("\n".join(post(MA + 28, OUT + 7)))
    e(pstore(1))
    stamp(7)
    trace_out('late', MA)
    e(f"s_bitcmp1_b32 s{S_WAVE}, 0\n s_cbranch_scc1 L_x1_{sfx}")
    e.slot_hook = None
    st0 = e.state()
    ldP = [f"buffer_load_dwordx4 {vr(PL, 4)}, v{vL16}, {W}, s{sPbaseL} offen sc1",
           f"buffer_load_dwordx4 {vr(PL + 4, 4)}, v{vL16}, {W}, s{sPbaseL} offen offset:1024 sc1"]
    tP, dM, eM, gM = cfg.get('tP', (240, 380)), cfg.get('dM', (270, 150)), cfg.get('eM', 200), cfg.get('gM', (120, 116))
    if sfx == 's':
        tP, dM, gM = cfg.get('tPs', (900, 1100)), cfg.get('dMs', (900, 700)), cfg.get('gMs', (300, 300))
    for w in range(2):
        if w:
            e.raw(".p2align 6\n" + "  s_nop 0\n" * cfg.get('ph1', 0))
            e.label(f"L_x{w}_{sfx}"); e.set_state(st0)
        clk = [[12, 48][w]]
        pa = prep_a_lines()
        valu = [f"v_cndmask_b32 v{SEL + j}, 0, v{vSelC}, {sr(sSel + 2 * j, 2)}" for j in range(4)] + ([f"v_cndmask_b32 v{VX + 5}, 0, -1, {sr(sArm, 2)}", f"v_cndmask_b32 v{VX + 6}, -2, -1, {sr(sArm, 2)}"] if cfg.get('m3', 0) else []) + scalar_lines() + [l for l in pa if not l.startswith('ds_')]
        if diag:
            valu += [f"s_cmp_eq_u32 s{sStep}, 10", f"s_cselect_b32 s{sDbgT + 6}, s0, s{sDbgT + 6}"] + [f"s_cselect_b32 s{k}, 0, s{k}" for k in range(12, 16)]
        reads = [l for l in pa if l.startswith('ds_')]
        late_v = [l for l in pa if not l.startswith('ds_')]
        pool = [l for l in valu if l not in late_v]
        pool = [l for l in pool if not l.startswith('v_')] + [l for l in pool if l.startswith('v_')]
        merged = []
        for l in pool:
            if l.startswith('s_cselect'):
                merged[-1] += '\n' + l
            else:
                merged.append(l)
        pool = merged
        if cfg.get('sl', 0):
            reads = mix(reads, [l for l in pool if l.startswith('v_')], 1)
            pool = [l for l in pool if not l.startswith('v_')]
        def until(t):
            while clk[0] + 4 <= t and pool:
                l = pool.pop(0); e(l); clk[0] += 4 * (1 + l.count('\n'))
            if clk[0] + 4 <= t:
                delay(e, t - clk[0]); clk[0] = t

        if ad:
            ev = [f"v_cmp_gt_u32 {sr(sHm + 2 * k, 2)}, s{sStep}, v{HD + k}" for k in range(4)] + [f"s_mov_b32 s{sCnt}, 0"]
            for k in range(4):
                ev += [f"s_cmp_lg_u64 {sr(sHm + 2 * k, 2)}, 0", f"s_addc_u32 s{sCnt}, s{sCnt}, 0"]
            if diag:
                ev += [f"s_add_u32 s15, s15, s{sCnt}"]
            ev += [f"s_mul_i32 s{sCnt}, s{sCnt}, {cfg.get('hm', 2)}"]
            until(tP[w] - 4 * len(ev) - 12)
            e("\n".join(ev))
            e(f"L_ad{w}_{sfx}:\n s_sub_u32 s{sCnt}, s{sCnt}, 1\n s_cbranch_scc0 L_ad{w}_{sfx}")
        else:
            until(tP[w])
        if sfx == 's' and cfg.get('ne', 0):
            assert not [l for l in pool if not l.startswith('v_')]
            e(f"""s_cmp_lg_u32 s{sStep}, s{sEnd}
                  s_cbranch_scc1 L_ho{w}
                  {export}
                  s_sub_u32 s{sMn2}, s{sMn2}, 0x8000
                  v_bfrev_b32 v{C0}, 2
                  v_cndmask_b32 v{vMst}, v{vMst}, v{C0}, {sr(sArm, 2)}
                  L_ho{w}:""")
        e.loose(ldP[0]); e.loose(ldP[1]); stamp(11)
        ldP2 = [x.replace(vr(PL, 4), vr(PL2, 4)).replace(vr(PL + 4, 4), vr(PL2 + 4, 4)) for x in ldP]
        need = scalar_lines()[:7]
        late_v = [l for l in pool if not l.startswith('v_') and l not in need and 's0' not in l] + late_v
        pool = [l for l in pool if l not in late_v]
        rest = reads + pool
        nsp = cfg.get('nsp', (10, 10))[w]
        e("\n".join(rest[:nsp]))
        if nsp is not None:
            delay(e, cfg.get('dP2', (60, 40))[w])
            e.loose(ldP2[0]); e.loose(ldP2[1])
        else:
            nsp = len(rest)
        spare = cfg.get('nsp', (10, 10))[w] is not None
        e("\n".join(rest[nsp:]))
        e(f"s_mov_b32 s{sNan}, 0")
        if diag:
            e.raw("  s_memtime s[0:1]")
        ny = 2 if spare else 0
        def reduce(R, fail):
            e(f"""v_mfma_f32_16x16x32_bf16 {vr(D, 4)}, {vr(R, 4)}, {vr(SEL, 4)}, 0
                  s_waitcnt vmcnt({ny})
                  v_mfma_f32_16x16x32_bf16 {vr(D, 4)}, {vr(R + 4, 4)}, {vr(SEL, 4)}, {vr(D, 4)}
                  v_xor_b32 v{C0}, s{sG}, v{R}
                  v_bitop3_b32 v{C0}, v{C0}, v{R + 2}, s{sG} bitop3:0xf6
                  v_bitop3_b32 v{C0}, v{C0}, v{R + 4}, s{sG} bitop3:0xf6
                  v_bitop3_b32 v{C0}, v{C0}, v{R + 6}, s{sG} bitop3:0xf6
                  v_and_b32 v{C0}, 1, v{C0}
                  v_cmp_ne_u32 vcc, 0, v{C0}
                  v_cmp_ne_u32 {sr(sFm, 2)}, 0, v{TMP + 3}
                  v_permlane32_swap_b32 v{D}, v{D + 2}
                  v_permlane32_swap_b32 v{D + 1}, v{D + 3}
                  v_add_f32 v{D}, v{D}, v{D + 2}
                  v_add_f32 v{D + 1}, v{D + 1}, v{D + 3}
                  s_cbranch_vccnz {fail}
                  v_permlane16_swap_b32 v{D}, v{D + 1}
                  v_add_f32 v{D}, v{D}, v{D + 1}
                  v_mov_b32_dpp v{D + 1}, v{D} quad_perm:[2,3,0,1] row_mask:0xf bank_mask:0xf
                  v_cvt_pk_bf16_f32 v{D}, v{D}, v{D + 1}
                  v_min_u32 v{D}, -2, v{D}
                  v_cndmask_b32 v{VX + 4}, v{D}, -1, {sr(sArm, 2)}
                  buffer_store_dword v{VX + 4}, v{vMst}, {W}, s{sMn2} offen {st}""")

        pp = cfg.get('pp', 1) and spare
        e(f"{f'L_redQ{w}_{sfx}:' if pp else ''}\n s_waitcnt vmcnt({ny + 1})\n L_redP{w}_{sfx}:")
        reduce(PL, f"L_reP{w}_{sfx}")
        e.label(f"L_pub{w}_{sfx}")
        stamp(8)
        if sfx == 's' and cfg.get('ne', 0):
            e(f"s_cmp_eq_u32 s{sStep}, s{sEnd}\n s_cbranch_scc1 L_ec_done")
        pb = ["s_waitcnt vmcnt(1)"] + prep_b_lines()
        d = dM[w]
        if d >= 100 and cfg.get('pw', 0):
            e("\n".join(pb[1:-2])); d -= 72
            late_v = ["s_waitcnt vmcnt(2)"] + pb[-2:] + late_v; pb = []
        elif d >= 100:
            e("\n".join(pb)); d -= 100; pb = []
        sk = min(d, cfg.get('sk', (170, 50))[w])
        assert not pb or not sk
        delay(e, sk)
        e.label(f"L_ep{w}_{sfx}")
        delay(e, d - sk)
        e.loose(mload(0)); stamp(12)
        d = gM[w]
        if pb:
            pb[0] = "s_waitcnt vmcnt(2)"
            e("\n".join(pb)); d -= 100
        gl = cfg.get('gL', 60)
        d -= gl
        k = max(0, min(len(late_v), d // 4))
        e("\n".join(late_v[:k])); d -= 4 * k
        delay(e, d)
        e.loose(mspare() if spec else mload(0))
        k2 = min(len(late_v), k + gl // 4)
        e("\n".join(late_v[k:k2])); delay(e, gl - 4 * (k2 - k)); k = k2
        e.loose(mload(1))
        e("\n".join(late_v[k:]))
        if lastsp:
            e(f"s_cmp_eq_u32 s{sStep}, 63\n s_cbranch_scc1 L_last_{sfx}")
        if ic:
            e(f"s_bitcmp1_b64 {sr(sFm, 2)}, s{sOK2}\n s_cbranch_scc0 L_flag_{sfx}")
            if e3:
                delay(e, cfg.get('g3', 20)); e.loose(mload(0))
            e(f"s_waitcnt vmcnt({2 + e3}) lgkmcnt(0)")
            e("\n".join(ce_ + [wrE]))
            e.loose(mload(1))
            e(f"s_cbranch_vccz L_step_{sfx}")
            e.loose(mload(0))
            for k in range(1 + e3):
                e(f"s_waitcnt vmcnt({3 + e3 if k == 0 else 2})")
                e("\n".join(ce_ + [wrE]))
                e(f"""{'s_add_u32 s13, s13, 1' if diag else ''}
                      s_cbranch_vccz L_step_{sfx}""")
            e(f"s_branch L_retE_{sfx}")
        else:
            e(f"""s_bitcmp1_b64 {sr(sFm, 2)}, s{sOK2}
                  s_waitcnt lgkmcnt(0)
                  s_cbranch_scc1 L_step_{sfx}
                  s_branch L_flag_{sfx}""")
        e.forget()
        e(f"L_reP{w}_{sfx}:")
        if pp:
            e.loose(ldP[0]); e.loose(ldP[1])
            e(f"{'s_add_u32 s12, s12, 1' if diag else ''}\n s_waitcnt vmcnt(3)")
            reduce(PL2, f"L_reQ{w}_{sfx}")
            if sk:
                e("\n".join(["s_waitcnt vmcnt(1)"] + prep_b_lines()))
            e(f"s_branch L_{'ep' if sk else 'pub'}{w}_{sfx}")
            e.forget()
            e(f"L_reQ{w}_{sfx}:")
            e.loose(ldP2[0]); e.loose(ldP2[1])
            e(f"""{'s_add_u32 s12, s12, 1' if diag else ''}
                  s_sub_u32 s{S_SPIN}, s{S_SPIN}, 1
                  s_cbranch_scc0 L_redQ{w}_{sfx}
                  s_branch L_end""")
            continue
        if spare:
            e("s_waitcnt vmcnt(0)")
            for j in range(0, 8, 2):
                e(f"v_mov_b64 {vr(PL + j, 2)}, {vr(PL2 + j, 2)}")
            e.loose(ldP2[0]); e.loose(ldP2[1])
        else:
            e.loose(ldP[0]); e.loose(ldP[1])
            e("s_waitcnt vmcnt(1)")
        e(f"""{'s_add_u32 s12, s12, 1' if diag else ''}
              s_sub_u32 s{S_SPIN}, s{S_SPIN}, 1
              s_cbranch_scc0 L_redP{w}_{sfx}
              s_branch L_end""")
    e.forget()
    e(f"""L_flag_{sfx}:
          v_lshrrev_b32 v{C0}, 2, v{vL16}
          buffer_load_dword v{C0}, v{C0}, {W}, s{sFl} offen sc1
          s_sub_u32 s{S_SPIN}, s{S_SPIN}, 1
          s_cbranch_scc1 L_end
          v_cmp_ne_u32 {sr(sFm, 2)}, 0, v{C0}
          s_bitcmp1_b64 {sr(sFm, 2)}, s{sOK2}
          s_cbranch_scc1 L_{'retE' if ic else 'step'}_{sfx}
          s_branch L_flag_{sfx}""")
    e.forget()
    if ic:
        e(f"L_retE_{sfx}:")
        e.loose(mload(1)); e.loose(mload(0))
        e(f"""{'s_add_u32 s15, s15, 1' if diag else ''}
              s_sub_u32 s{S_SPIN}, s{S_SPIN}, 1
              s_cbranch_scc1 L_end
              s_waitcnt vmcnt(2) lgkmcnt(0)""")
        e("\n".join(ce_ + [wrE]))
        e(f"s_cbranch_vccz L_step_{sfx}\n s_branch L_retE_{sfx}")
        e.forget()
    elif spec:
        e(f"""L_retE_{sfx}:
              s_waitcnt vmcnt(3)
              v_mov_b64 {vr(MA, 2)}, {vr(VX, 2)}
              v_mov_b64 {vr(MA + 2, 2)}, {vr(VX + 2, 2)}""")
        e.loose(mload(0))
        e(f"L_retE1_{sfx}:")
        e("\n".join(ce_))
        e(f"ds_write_b128 v{vMw}, {vr(MA, 4)}")
        for j in range(0, 12, 2):
            e(f"v_mov_b64 {vr(ACC + j, 2)}, 0")
        e(f"""{'s_add_u32 s13, s13, 1' if diag else 's_nop 0'}
              s_cbranch_vccz L_okE_{sfx}""")
        e.loose(mload(1)); e.loose(mload(0))
        e(f"""s_sub_u32 s{S_SPIN}, s{S_SPIN}, 1
              s_waitcnt vmcnt(2)
              s_cbranch_scc0 L_retE1_{sfx}
              s_branch L_end""")
        e.forget()
    else:
        e(f"L_retE_{sfx}:")
        er = cfg.get('er', 0)
        if er:
            e.loose(mload(1)); e.loose(mload(0))
            e(f"s_waitcnt vmcnt(3)\n L_retE1_{sfx}:")
            e("\n".join(ce_ + [wrE]))
            if diag:
                e("s_add_u32 s13, s13, 1")
            if er == 1:
                e(f"s_cbranch_vccz L_okE_{sfx}")
            else:
                e(f"s_cbranch_vccnz L_retE2_{sfx}\n {P('q', 0, 0)}\n s_branch L_okE2_{sfx}\n L_retE2_{sfx}:")
            e.loose(mload(1)); e.loose(mload(0))
            e(f"""s_sub_u32 s{S_SPIN}, s{S_SPIN}, 1
                  s_waitcnt vmcnt(2)
                  s_cbranch_scc0 L_retE1_{sfx}
                  s_branch L_end""")
    if not (spec or ic or cfg.get('er', 0)):
        re = cfg.get('re', 0)
        if re:
            e(f"""{'s_add_u32 s13, s13, 1' if diag else ''}
                  s_bitcmp1_b32 s{sNan}, 1
                  s_bitset1_b32 s{sNan}, 1
                  s_waitcnt vmcnt(1)
                  s_cbranch_scc0 L_chkE_{sfx}""")
        e.loose(mload(0)); e.loose(mload(1))
        e(f"""{('s_add_u32 s15, s15, 1' if re else 's_add_u32 s13, s13, 1') if diag else ''}
              s_sub_u32 s{S_SPIN}, s{S_SPIN}, 1
              s_waitcnt vmcnt({1 if re else 3})
              s_cbranch_scc0 L_chkE_{sfx}
              s_branch L_end""")
    if xe:
        e(f"""L_retL_{sfx}:
              {'s_add_u32 s14, s14, 1' if diag else ''}
              s_sub_u32 s{S_SPIN}, s{S_SPIN}, 1
              s_cbranch_scc1 L_end
              s_bitcmp1_b32 s{sNan}, 0
              s_bitset1_b32 s{sNan}, 0
              s_waitcnt vmcnt(4)
              s_cbranch_scc0 L_retL1_{sfx}""")
        e.loose(mload(1))
        e(f"s_waitcnt vmcnt(0)\n L_retL1_{sfx}:")
    else:
        e(f"L_retL_{sfx}:")
        e.loose(mload(1))
        e(f"""{'s_add_u32 s14, s14, 1' if diag else ''}
              s_sub_u32 s{S_SPIN}, s{S_SPIN}, 1
              s_cbranch_scc1 L_end
              s_bitcmp1_b32 s{sNan}, 0
              s_bitset1_b32 s{sNan}, 0
              s_waitcnt vmcnt({3 - spec - nvl})
              s_cbranch_scc0 L_retL1_{sfx}
              s_waitcnt vmcnt(1)
              L_retL1_{sfx}:""")
    e("\n".join(cl_))
    e(f"""ds_write_b128 v{vMw}, {vr(MA + 4, 4)} offset:4096
          s_cbranch_vccz L_okL_{sfx}
          s_branch L_retL_{sfx}""")
    if not lastsp:
        return
    e.forget()
    e(f"L_lret_{sfx}:")
    e.loose(mload(0)); e.loose(mload(1))
    e(f"""s_sub_u32 s{S_SPIN}, s{S_SPIN}, 1
          s_cbranch_scc1 L_end
          L_last_{sfx}:
          s_waitcnt vmcnt(0) lgkmcnt(0)""")
    e("\n".join(check((0, 1))))
    e(f"""ds_write_b128 v{vMw}, {vr(MA, 4)}
          ds_write_b128 v{vMw}, {vr(MA + 4, 4)} offset:4096
          s_cbranch_vccnz L_lret_{sfx}""")
    own = [(m, ft, i) for i in (0, 1) for m in 'kv' for ft in range(2)]
    seq = [(P(*op), []) for op in own]
    if not xo:
        seq[0][1].append(export)
    seq[3][1].extend([progress, e.barrier, mread(2), mread(3)])
    for k in range(4):
        seq[4 + k][1].append(mread(4 + k))
    seq += [(P(m, ft, i), []) for i in range(2, 6) for m in 'kv' for ft in range(2)]
    seq += [(P(m, ft, i), []) for m in 'kv' for ft in range(2) for i in (6, 7)]
    e.slots(seq)
    e("\n".join(k0p + k1p + v0p + v1p))
    e("s_branch L_final")


def chain_final(e, cfg):
    e.forget()
    e("L_final:")
    if cfg.get('holdend'):
        e(f"""L_hold2:
              s_memrealtime s[92:93]
              s_waitcnt lgkmcnt(0)
              s_sub_u32 s92, s92, s94
              s_cmp_lt_u32 s92, {cfg['holdend']}
              s_cbranch_scc1 L_hold2""")
    e(f"""s_add_u32 s{sExp}, s{sExp}, {0 if cfg.get('xo', 0) else 4096}
          buffer_store_dwordx4 {vr(EX, 4)}, v{vL16}, {W}, s{sExp} offen sc1
          s_waitcnt lgkmcnt(0)""")
    if cfg.get('diag'):
        e(f"""s_memrealtime {sr(sDbgT + 12, 2)}
              s_lshl_b32 s{sA}, s{S_ROLE}, 2
              s_add_u32 s{sA}, s{sA}, s{S_WAVE}
              s_lshl_b32 s{sA}, s{sA}, 6
              s_add_u32 s{sA}, s{sA}, 0x6000000
              s_waitcnt lgkmcnt(0)
              s_sub_u32 s{sDbgT + 8}, s0, s{sDbgT + 6}""")
        for n, r in enumerate([sDbgT + 8, sDbgT + 5, S_SPIN, sDbgT + 14, sDbgT + 10, sDbgT + 12, 12, 13, 14, 15]):
            e(f"v_mov_b32 v{TMP + 2}, s{r}\n buffer_store_dword v{TMP + 2}, off, {W}, s{sA} offset:{4 * n}")
    dbg_max(e, cfg, 12, v=TMP + 2)
    e("s_waitcnt vmcnt(0)\n s_branch L_end")


def chain_handover(e, cfg):
    e.forget()
    e("L_ec_done:")
    if cfg.get('diag'):
        e(f"""s_memrealtime s[92:93]
              s_lshl_b32 s{sA}, s{S_HEAD}, 2
              s_add_u32 s{sA}, s{sA}, s{S_WAVE}
              s_lshl_b32 s{sA}, s{sA}, 6
              s_add_u32 s{sA}, s{sA}, 0x6400000
              s_waitcnt lgkmcnt(0)""")
        for n, r in enumerate([94, 82, 80, 90, 92, 12, 13, 14]):
            e(f"v_mov_b32 v{PM}, s{r}\n buffer_store_dword v{PM}, off, {W}, s{sA} offset:{4 * n}")
    e(f"""
          v_mbcnt_lo_u32_b32 v0, -1, 0
          v_mbcnt_hi_u32_b32 v0, -1, v0
          s_sub_u32 s50, s{S_ROLE}, 32
          s_waitcnt vmcnt(0) lgkmcnt(0)
          s_barrier
          s_branch L_phase2""")


def chain(e, cfg):
    CFG.clear(); CFG.update(cfg)
    tables(2 if cfg.get('eo') else 1)
    chain_startup(e, cfg)
    chain_loop(e, cfg, 'f', '')
    chain_loop(e, cfg, 's', 'sc1')
    chain_final(e, cfg)
    if cfg.get('ne', 0):
        chain_handover(e, cfg)
```

```python
import sys, os
sys.path.insert(0, 'gen')
import main
out = []
for a in sys.argv[1:]:
    n, c = a.split('=', 1)
    open(f'build/{n}.s', 'w').write(main.build(eval(f"dict(diag=1, {c})")))
    out.append(f"build/{n}.s")
print(out)
```
